```python
import torch

def _softmax(x, axis=-1):
    return torch.softmax(x, dim=axis)

def _gelu(x):
    return torch.nn.functional.gelu(x, approximate='tanh')

def _silu(x):
    return torch.nn.functional.silu(x)

def _sigmoid(x):
    return torch.sigmoid(x)

def _layernorm(x, axis=-1, eps=1e-05):
    m = x.mean(dim=axis, keepdim=True)
    v = x.var(dim=axis, keepdim=True, unbiased=False)
    return (x - m) / torch.sqrt(v + eps)

def _scatter_add(tgt, idx, src, axis=0):
    return tgt.clone().index_add_(axis, idx, src)

def _segment_sum(src, seg, n):
    out = torch.zeros((n,) + src.shape[1:], dtype=src.dtype)
    return out.index_add_(0, seg, src)

def _pad(x, pw):
    flat = tuple((v for pair in reversed(pw) for v in pair))
    return torch.nn.functional.pad(x, flat)
kernel_name = 'gated_mix__ssm_conv_s5__memory_aug_recurrent_mem_tr__prompt'

def setup_inputs():

    _w = lambda a: (lambda t: t.to(torch.bfloat16) if t.is_floating_point() else t)(torch.as_tensor(a))

    def _A_setup():
        B, S, D = (1, 2048, 512)
        P = D
        Lambda_re = -0.5 * (lambda _x: torch.exp(torch.as_tensor(_x)))((lambda *s: torch.randn(*s, dtype=torch.bfloat16) * 0.8)(P))
        Lambda_im = (lambda *s: torch.randn(*s, dtype=torch.bfloat16) * 0.8)(P) * 1.0
        B_re = (lambda *s: torch.randn(*s, dtype=torch.bfloat16) * 0.8)(P, D) * D ** (-0.5)
        B_im = (lambda *s: torch.randn(*s, dtype=torch.bfloat16) * 0.8)(P, D) * D ** (-0.5)
        C_re = (lambda *s: torch.randn(*s, dtype=torch.bfloat16) * 0.8)(D, P) * P ** (-0.5)
        C_im = (lambda *s: torch.randn(*s, dtype=torch.bfloat16) * 0.8)(D, P) * P ** (-0.5)
        log_dt = (lambda *s: torch.randn(*s, dtype=torch.bfloat16) * 0.8)(P) * 0.3 - 2.0
        Dskip = (lambda *s: torch.randn(*s, dtype=torch.bfloat16) * 0.8)(D)
        return {'x': _w((lambda *s: torch.randn(*s, dtype=torch.bfloat16) * 0.05)(B, S, D)), 'Lambda_re': _w(Lambda_re), 'Lambda_im': _w(Lambda_im), 'B_re': _w(B_re), 'B_im': _w(B_im), 'C_re': _w(C_re), 'C_im': _w(C_im), 'log_dt': _w(log_dt), 'Dskip': _w(Dskip)}
    _A_in = _A_setup()

    def _B_setup():
        B, S, Dm = (1, 2048, 512)
        H, Dh = (32, 128)
        M, seg = (8, 32)
        seg = min(seg, S)
        S = S // seg * seg
        return {'x': _w((lambda *s: torch.randn(*s, dtype=torch.bfloat16) * 0.05)(B, S, Dm)), 'mem0': _w((lambda *s: torch.randn(*s, dtype=torch.bfloat16) * 0.8)(B, M, Dm)), 'Wq': _w((lambda *s: torch.randn(*s, dtype=torch.bfloat16) * 3.2)(Dm, H, Dh) * Dm ** (-0.5)), 'Wk': _w((lambda *s: torch.randn(*s, dtype=torch.bfloat16) * 3.2)(Dm, H, Dh) * Dm ** (-0.5)), 'Wv': _w((lambda *s: torch.randn(*s, dtype=torch.bfloat16) * 0.8)(Dm, H, Dh) * Dm ** (-0.5)), 'Wo': _w((lambda *s: torch.randn(*s, dtype=torch.bfloat16) * 0.8)(H, Dh, Dm) * (H * Dh) ** (-0.5)), 'seg_len': seg}
    _B_in = _B_setup()
    return {'A_x': _A_in['x'], 'A_Lambda_re': _A_in['Lambda_re'], 'A_Lambda_im': _A_in['Lambda_im'], 'A_B_re': _A_in['B_re'], 'A_B_im': _A_in['B_im'], 'A_C_re': _A_in['C_re'], 'A_C_im': _A_in['C_im'], 'A_log_dt': _A_in['log_dt'], 'A_Dskip': _A_in['Dskip'], 'B_x': _B_in['x'], 'B_mem0': _B_in['mem0'], 'B_Wq': _B_in['Wq'], 'B_Wk': _B_in['Wk'], 'B_Wv': _B_in['Wv'], 'B_Wo': _B_in['Wo'], 'B_seg_len': _B_in['seg_len'], 'gate_w': _w((lambda *s: torch.randn(*s, dtype=torch.bfloat16) * 0.05)(512) * 16.0)}

def reference(A_x, A_Lambda_re, A_Lambda_im, A_B_re, A_B_im, A_C_re, A_C_im, A_log_dt, A_Dskip, B_x, B_mem0, B_Wq, B_Wk, B_Wv, B_Wo, B_seg_len, gate_w):

    def _A_ref(x, Lambda_re, Lambda_im, B_re, B_im, C_re, C_im, log_dt, Dskip):
        Bsz, L, H = x.shape
        Lam = Lambda_re + 1j * Lambda_im
        Bmat = B_re + 1j * B_im
        Cmat = C_re + 1j * C_im
        dt = torch.exp(log_dt)
        Lam_bar = torch.exp(dt * Lam)
        B_bar = ((Lam_bar - 1.0) / Lam)[:, None] * Bmat
        Bu = torch.einsum('bld,pd->blp', x + 0j, B_bar)
        h = torch.zeros_like(Bu[:, 0, :])
        hs = []
        for t in range(L):
            h = Lam_bar[None, :] * h + Bu[:, t, :]
            hs.append(h)
        hseq = torch.stack(hs, 1)
        y = 2.0 * torch.einsum('blp,dp->bld', hseq, Cmat).real + x * Dskip[None, None, :]
        return y

    def _B_ref(x, mem0, Wq, Wk, Wv, Wo, seg_len):
        B, S, Dm = x.shape
        H, Dh = (Wq.shape[1], Wq.shape[2])
        M = mem0.shape[1]
        scale = Dh ** (-0.5)
        n_seg = S // seg_len
        L = M + seg_len
        idx = torch.arange(L)
        mask = (idx[:, None] < M) | (idx[:, None] >= idx[None, :])
        mem = mem0
        outs = []
        for s in range(n_seg):
            xs = x[:, s * seg_len:(s + 1) * seg_len, :].clone()
            h = torch.concatenate([mem, xs], axis=1)
            q = torch.einsum('btd,dhe->bhte', h, Wq)
            k = torch.einsum('btd,dhe->bhte', h, Wk)
            v = torch.einsum('btd,dhe->bhte', h, Wv)
            scores = torch.einsum('bhqe,bhke->bhqk', q, k) * scale
            scores = torch.where(mask[None, None], scores, -1000000000.0)
            p = _softmax(scores, axis=-1)
            o = torch.einsum('bhqk,bhke->bhqe', p, v)
            o = torch.einsum('bhte,hed->btd', o, Wo)
            mem = o[:, :M, :].clone()
            outs.append(o[:, M:, :])
        return torch.concatenate(outs, axis=1)
    x = A_x
    g = _sigmoid((x * gate_w).sum(-1, keepdims=True))
    a = _A_ref(x, A_Lambda_re, A_Lambda_im, A_B_re, A_B_im, A_C_re, A_C_im, A_log_dt, A_Dskip)
    b = _B_ref(x, B_mem0, B_Wq, B_Wk, B_Wv, B_Wo, B_seg_len)
    return g * a + (1 - g) * b
```

```python
import re

def vr(a, n=1, k='v'):
    return f"{k}{a}" if n == 1 else f"{k}[{a}:{a+n-1}]"
def ar(a, n=1): return vr(a, n, 'a')
def sr(a, n=1): return vr(a, n, 's')

class Asm:
    def __init__(self):
        self.lines = []
        self.lg = []
        self.vm = []
    def __call__(self, s, lg=None, vm=None):
        for ln in s.strip('\n').split('\n'):
            ln = ln.strip()
            if not ln: continue
            self.lines.append(ln)
            op = ln.split()[0]
            if op.startswith('ds_'): self.lg.append(lg)
            elif op.startswith('buffer_') or op.startswith('global_'): self.vm.append(vm)
    def label(self, l): self.lines.append(l + ':')
    def wait(self, lg=None, vm=None):
        parts = []
        if vm is not None:
            if vm == 'all': n = 0
            else:
                idx = max(i for i, t in enumerate(self.vm) if t == vm); n = len(self.vm) - 1 - idx
            assert n <= 63
            self.vm = self.vm[len(self.vm) - n:] if n else []
            parts.append(f"vmcnt({n})")
        if lg is not None:
            if lg == 'all': n = 0
            else:
                idx = max(i for i, t in enumerate(self.lg) if t == lg); n = len(self.lg) - 1 - idx
            assert n <= 15, n
            self.lg = self.lg[len(self.lg) - n:] if n else []
            parts.append(f"lgkmcnt({n})")
        self.lines.append("s_waitcnt " + ' '.join(parts))
    def text(self):
        return '\n'.join(('' if l.endswith(':') or l.startswith('.') else '    ') + l for l in self.lines) + '\n'

_R = re.compile(r'^(-|\|)?(abs\()?([vas])(?:(\d+)|\[(\d+):(\d+)\])')
def regs(tok):
    tok = tok.strip()
    if tok in ('vcc',): return {('s', 106), ('s', 107)}
    if tok == 'exec': return {('s', 126), ('s', 127)}
    if tok == 'm0': return {('s', 124)}
    m = _R.match(tok)
    if not m: return set()
    k = m.group(3)
    if m.group(4) is not None: return {(k, int(m.group(4)))}
    return {(k, i) for i in range(int(m.group(5)), int(m.group(6)) + 1)}
TRANS = ('v_exp_f32', 'v_log_f32', 'v_rcp_f32', 'v_rsq_f32', 'v_sqrt_f32', 'v_sin_f32', 'v_cos_f32')
def decode(ln):
    ln = ln.split(';')[0].strip()
    op, _, rest = ln.partition(' ')
    ops = [o.strip() for o in rest.split(',')] if rest else []
    if ops: ops[-1] = ops[-1].split(' ')[0]
    R = [regs(o) for o in ops]
    U = lambda l: set().union(*l) if l else set()
    d = dict(op=op, ln=ln, w=set(), r=set(), cls='salu', c=set(), passes=0)
    if op.startswith('v_smfmac'):
        d.update(cls='mfma', w=R[0], c=R[0], r=U(R[1:]), passes=4 if '16x16' in op else 8, sp=True)
    elif op.startswith('v_mfma'):
        d.update(cls='mfma', w=R[0], c=R[3], r=U(R[1:3]), passes=4 if '16x16' in op else 8, sp=False)
    elif op.startswith('v_'):
        d['cls'] = 'valu'
        if 'permlane' in op and 'swap' in op: d.update(w=U(R[:2]), r=U(R[:2]), perm=True)
        elif op.startswith('v_cmp'): d.update(w=R[0], r=U(R[1:]))
        elif '_co_' in op: d.update(w=U(R[:2]), r=U(R[2:]))
        else:
            d.update(w=R[0], r=U(R[1:]))
            if op.startswith('v_fmac') or '_dpp' in op or op.startswith('v_writelane') or op.startswith('v_dot2c'): d['r'] = d['r'] | R[0]
            if op.startswith('v_cndmask') and len(ops) == 3: d['r'] = d['r'] | regs('vcc')
        d['dpp'] = '_dpp' in op
        if d['dpp']: d['dppsrc'] = R[1]
        d['trans'] = any(op.startswith(t) for t in TRANS)
        d['rl'] = op.startswith('v_readlane') or op.startswith('v_readfirstlane')
    elif op.startswith('ds_'):
        d['cls'] = 'ds'
        if op.startswith('ds_read') or 'permute' in op or 'swizzle' in op or 'rtn' in op: d.update(w=R[0], r=U(R[1:]))
        else: d.update(r=U(R))
    elif op.startswith('buffer_') or op.startswith('global_'):
        d['cls'] = 'vmem'
        lds = ' lds' in ln or '_lds_' in op
        d['lds'] = lds
        if 'load' in op and not lds: d.update(w=R[0], r=U(R[1:]))
        elif 'atomic' in op and ' sc0' in ln: d.update(w=R[0], r=U(R if op.startswith('buffer_') else R[1:]))
        else: d.update(r=U(R))
        if 'store' in op and ('x4' in op or 'x3' in op): d['wide'] = R[0] if op.startswith('buffer_') else R[1]
    elif op.startswith('s_'):
        if op in ('s_nop', 's_waitcnt', 's_barrier', 's_branch', 's_endpgm', 's_sleep', 's_setprio') or op.startswith('s_cbranch') or op.startswith('s_cmp') or op.startswith('s_bitcmp'):
            d.update(r=U(R))
        else: d.update(w=R[0] if R else set(), r=U(R[1:]))
        if op == 's_nop': d['nop'] = int(ops[0], 0) + 1
    return d

def check(lines, name=''):
    ins = [decode(l) for l in lines if not l.endswith(':') and not l.startswith('.') and not l.startswith(';')]
    t = 0; last_mfma = None; errs = []
    for i, d in enumerate(ins):
        if last_mfma is not None:
            lm = ins[last_mfma]
            if d['cls'] == 'mfma': t = max(t, lm['t'] + 4 * lm['passes'])
            elif d['cls'] == 'valu': t = max(t, lm['t'] + (12 if lm['sp'] else 4 if '16x16x16' in lm['op'] else 8))
        d['t'] = t
        if d['cls'] == 'mfma': last_mfma = i
        for j in range(i - 1, max(-1, i - 24), -1):
            p = ins[j]; dt = t - p['t']; need = 0; st = i - j - 1 + sum(q.get('nop', 1) - 1 for q in ins[j + 1:i])
            if p['cls'] == 'mfma':
                big = 36 if p['passes'] == 4 else 52
                if d['cls'] == 'mfma':
                    if p['w'] & d['r']: need = big
                    elif p['w'] & (d['c'] | d['w']) and not (p['w'] == d['c'] and p['op'] == d['op']): need = big - 8
                elif d['cls'] in ('valu', 'ds', 'vmem') and p['w'] & (d['r'] | d['w']): need = big
                if d['cls'] == 'valu' and p['c'] & d['w']: need = max(need, 16 if p['passes'] == 4 else 32)
                if d['cls'] == 'mfma' and p['ln'] == d['ln'] and not d['c']: need = 0
                if dt < need: errs.append((name, p['ln'], d['ln'], dt, need))
                continue
            ns = 0
            if p['cls'] == 'valu':
                vw = {x for x in p['w'] if x[0] != 's'}; sw = {x for x in p['w'] if x[0] == 's'}
                if d['cls'] == 'mfma' and vw & (d['r'] | d['c']): ns = 2
                if d['cls'] == 'valu':
                    if d.get('dpp') and vw & d['dppsrc']: ns = 2
                    if d.get('perm') and vw & d['r']: ns = 2
                    if d.get('rl') and vw & d['r']: ns = max(ns, 1)
                    if p.get('trans') and not d.get('trans') and vw & d['r']: ns = max(ns, 1)
                    if sw & d['r']: ns = max(ns, 2)
                    if d.get('dpp') and sw & regs('exec'): ns = 5
                if d['cls'] == 'vmem' and sw & d['r']: ns = 5
                if d['cls'] == 'mfma' and sw & regs('exec'): ns = 4
            if p['cls'] == 'vmem' and p.get('wide') and d['cls'] == 'valu' and p['wide'] & d['w']: ns = 2
            if p['cls'] == 'salu' and regs('m0') & p['w'] and d['cls'] == 'vmem' and d.get('lds'): ns = 1
            if st < ns: errs.append((name, p['ln'], d['ln'], 'states %d' % st, ns))
        t += 4 * d.get('nop', 1)
    return errs, ins
```

```python
from asmlib import *

WS_KV = 0
WS_KM = 32 << 20
WS_H1 = 48 << 20
WS_IMG = WS_H1 + (512 << 10)
WS_FL = WS_IMG + (64 << 10)
WS_DUMMY = WS_IMG + (128 << 10)
WS_STAMP = 49 << 20
WS_SIZE = 268435456
DBG_XCNT = 0
DBG_WIN = 32
DBG_CBAR = 36
DBG_KVC = 64
L_MEM, L_S, L_KV, L_W = 0, 8192, 16384, 32768
L_O = L_MEM
L_SM = L_S + 1024
L_MISC = L_S + 5120
S_WS, S_WQ, S_WK, S_WV, S_WO, S_DBG, S_M0 = 4, 8, 12, 16, 20, 24, 28
sH, sW, sS = 32, 33, 34
sKV, sKM, sH1l, sTAG, sIMl = 35, 36, 37, 38, 39
sH1 = 40
sIMw, sIMr, sFL, sSPIN = 44, 45, 46, 47
sIML, sKMv = 59, 58
sC = 48
sT = 50
IDX, L16, A_W, A_SMW, NEG1, A_O, A_H1S, A_IMS = 0, 1, 2, 3, 4, 5, 6, 7
A_OW, FLV, HZ = 8, 9, 10
F, SEL, ONE = 12, 16, 20
MA = 24
Q0, K0, Q1, K1, V0, V1 = 56, 60, 64, 68, 72, 76
KX, VX, ST = 80, 88, 96
RW = 128
SPIN_MAX = 200000

QK_A = {1: 0, 2: 1, 3: 2, 5: 3, 6: 4, 7: 5}
def wqk_reg(sig, u):
    if sig in (0, 4): return ('v', ST + 8 * u)
    return ('a', 32 * QK_A[sig] + 8 * u)
def wv_reg(sig, tau):
    if sig < 4: return ('a', 192 + 8 * (2 * sig + tau))
    return ('v', RW + 8 * (2 * (sig - 4) + tau))
def wo_reg(T, k2):
    if T < 2: return ('v', RW + 64 + 8 * (4 * T + k2))
    return ('v', (ST if T == 2 else MA) + 8 * k2)
def R8(r): return vr(r[1], 8, r[0])
def smf(a, D, A, B): a(f"v_smfmac_f32_16x16x64_bf16 {vr(D,4)}, {vr(A,4)}, {R8(B)}, v{IDX}")
def lw_qk(sig, u): return 8192 * (sig >> 2) + 4096 * (u & 1) + 2048 * (u >> 1)
def lw_wo(T, k2): return 16384 + 2048 * (4 * (T - 2) + k2)
def nops(a, n):
    while n > 0:
        k = min(n, 16); a(f"s_nop {k-1}"); n -= k

def srd(a, s, koff, size):
    a(f"s_load_dwordx2 {sr(s,2)}, s[0:1], {koff}")
    a(f"s_mov_b32 s{s+2}, {size}\ns_mov_b32 s{s+3}, 0x20000")

def chain_setup(a):
    t = 96
    lane, i, g, g1, g0, hi, i3, i2 = t + 1, t + 2, t + 3, t + 6, t + 7, t + 8, t + 9, t + 10
    x, y, z = t + 5, t + 12, t + 13
    a(f"""
    v_lshrrev_b32 v{t}, 6, v0
    v_and_b32 v{lane}, 63, v0
    s_nop 0
    v_readfirstlane_b32 s{sW}, v{t}
    v_and_b32 v{i}, 15, v{lane}
    v_lshrrev_b32 v{g}, 4, v{lane}
    v_lshlrev_b32 v{L16}, 4, v{lane}
    v_lshrrev_b32 v{g1}, 1, v{g}
    v_and_b32 v{g0}, 1, v{g}
    v_lshrrev_b32 v{hi}, 3, v{i}
    v_and_b32 v{i3}, 3, v{i}
    v_lshrrev_b32 v{i2}, 2, v{i}
    s_lshl_b32 s{sT+1}, s{sW}, 15
    s_add_u32 s{sT+1}, s{sT+1}, {L_W}
    v_add_u32 v{A_W}, s{sT+1}, v{L16}
    v_lshl_add_u32 v{y}, v{hi}, 1, v{g0}
    v_and_b32 v{x}, 7, v{i}
    v_lshl_add_u32 v{x}, v{y}, 4, v{x}
    v_lshlrev_b32 v{x}, 4, v{x}
    v_add_u32 v{y}, s{sW}, v{y}
    v_and_b32 v{y}, 3, v{y}
    v_lshl_add_u32 v{x}, v{y}, 2, v{x}
    v_xor_b32 v{y}, 1, v{g1}
    v_lshl_add_u32 v{x}, v{y}, 11, v{x}
    v_add_u32 v{A_SMW}, {L_SM}, v{x}
    v_mov_b32 v{HZ}, 0x3f803f80
    v_mov_b32 v{HZ+1}, 0
    v_mov_b32 v{NEG1}, -1
    v_and_b32 v{A_O}, 0x37f, v{L16}
    v_lshlrev_b32 v{y}, 7, v{g0}
    v_or_b32 v{A_O}, v{A_O}, v{y}
    v_xor_b32 v{A_OW}, v{L16}, v{y}
    v_mov_b32 v{FLV}, 0
    v_cmp_lt_u32 vcc, 7, v{i}
    v_mov_b32 v{y}, 0x4444
    v_mov_b32 v{z}, 0xeeee
    v_cndmask_b32 v{t+11}, v{y}, v{z}, vcc
    """)
    a(f"""
    v_lshlrev_b32 v{x}, 2, v{g1}
    v_lshl_add_u32 v{x}, v{hi}, 1, v{x}
    v_add_u32 v{x}, v{x}, v{g0}
    v_lshlrev_b32 v{x}, 11, v{x}
    v_and_b32 v{y}, 7, v{i}
    v_lshl_add_u32 v{x}, v{y}, 3, v{x}
    s_lshl_b32 s{sT+2}, s{sW}, 14
    s_lshl_b32 s{sT+3}, s{sH}, 6
    s_add_u32 s{sT+2}, s{sT+2}, s{sT+3}
    v_add_u32 v{A_H1S}, s{sT+2}, v{x}
    """)
    a(f"""
    s_lshl_b32 s{sT+2}, s{sW}, 5
    s_add_u32 s{sT+2}, s{sT+2}, s{sH}
    s_lshl_b32 s{sT+2}, s{sT+2}, 6
    v_lshlrev_b32 v{x}, 4, v{g}
    v_lshl_add_u32 v{x}, v{i}, 2, v{x}
    v_add_u32 v{x}, s{sT+2}, v{x}
    v_cmp_gt_u32 vcc, 4, v{i}
    v_bfrev_b32 v{z}, 1
    s_nop 0
    v_cndmask_b32 v{A_IMS}, v{z}, v{x}, vcc
    """)
    a(f"""
    v_lshl_add_u32 v{x}, v{hi}, 2, v{i3}
    v_and_b32 v{y}, 1, v{i2}
    v_cmp_eq_u32 vcc, v{y}, v{g0}
    v_mov_b32 v{z}, 64
    s_nop 0
    v_cndmask_b32 v{x}, v{z}, v{x}, vcc
    v_and_b32 v{y}, 1, v{i}
    v_lshl_add_u32 v{t+14}, v{y}, 2, v{i2}
    v_cmp_gt_u32 vcc, 2, v{i3}
    s_mov_b32 s{sT+3}, 0x3f80
    s_nop 0
    v_cndmask_b32 v{t+14}, v{z}, v{t+14}, vcc
    """)
    for base, pos in ((F, x), (SEL, t + 14)):
        a(f"""
        v_and_b32 v{t+15}, 1, v{pos}
        v_lshlrev_b32 v{t+15}, 4, v{t+15}
        v_lshlrev_b32 v{t+15}, v{t+15}, s{sT+3}
        v_lshrrev_b32 v{t+16}, 1, v{pos}
        """)
        for d in range(4):
            a(f"""
            v_cmp_eq_u32 vcc, {d}, v{t+16}
            s_nop 1
            v_cndmask_b32 v{base+d}, 0, v{t+15}, vcc
            """)
    a(f"""
    v_lshrrev_b32 v{x}, 2, v{lane}
    s_lshl_b32 s{sT+2}, s{sW}, 6
    v_lshlrev_b32 v{z}, 4, v{i3}
    v_add_u32 v{z}, s{sT+2}, v{z}
    v_lshl_add_u32 v56, v{x}, 13, v{z}
    v_lshl_add_u32 v57, v{x}, 10, v{z}
    v_and_b32 v{t+14}, 1, v{i2}
    v_lshl_add_u32 v{t+14}, v{g0}, 2, v{t+14}
    v_lshl_add_u32 v{t+15}, v{g1}, 4, v{t+14}
    v_lshl_add_u32 v{t+15}, v{hi}, 3, v{t+15}
    v_lshlrev_b32 v{t+15}, 6, v{t+15}
    v_lshl_add_u32 v{t+15}, v{i3}, 4, v{t+15}
    v_add_u32 v58, s{sT+1}, v{t+15}
    v_lshl_add_u32 v{t+15}, v{g1}, 3, v{t+14}
    v_lshlrev_b32 v{t+15}, 6, v{t+15}
    v_lshl_add_u32 v{t+15}, v{hi}, 5, v{t+15}
    v_lshl_add_u32 v{t+15}, v{i3}, 3, v{t+15}
    v_add_u32 v59, s{sT+1}, v{t+15}
    v_and_b32 v{x}, 7, v{i}
    v_lshlrev_b32 v{x}, 10, v{x}
    v_lshl_add_u32 v{x}, v{g}, 5, v{x}
    v_lshl_add_u32 v{x}, v{hi}, 4, v{x}
    s_lshl_b32 s{sT+2}, s{sW}, 7
    v_add_u32 v60, s{sT+2}, v{x}
    v_mov_b32 v{IDX}, v{t+11}
    """)
    for k in range(4): a(f"v_mov_b32 v{64+k}, -1")

def chain_prologue(a, P):
    WS = sr(S_WS, 4)
    a(f"""
    s_mov_b32 s{sS}, 0
    s_lshl_b32 s{sT}, s{sH}, 2
    s_add_u32 s{sT}, s{sT}, s{sW}
    s_lshl_b32 s{sKV}, s{sT}, 12
    s_add_u32 s{sKV}, s{sKV}, {WS_KV}
    s_lshl_b32 s{sKM}, s{sT}, 11
    s_add_u32 s{sKM}, s{sKM}, {WS_KM}
    s_mov_b32 s{sH1}, {WS_H1}
    s_mov_b32 s{sH1+1}, {WS_H1 + 65536}
    s_mov_b32 s{sH1+2}, {WS_H1 + 2*65536}
    s_mov_b32 s{sH1+3}, {WS_H1 + 3*65536}
    s_lshl_b32 s{sT}, s{sW}, 5
    s_add_u32 s{sT}, s{sT}, s{sH}
    s_lshl_b32 s{sT}, s{sT}, 11
    s_add_u32 s{sH1l}, s{sT}, {WS_H1}
    s_mov_b32 s{sTAG}, 0
    s_mov_b32 s{sIMw}, {WS_IMG + 8192}
    s_mov_b32 s{sIMr}, {WS_IMG + 16384}
    s_mov_b32 s{sIMl}, {WS_IMG}
    s_mov_b32 s{sIML}, {WS_IMG}
    s_mov_b32 s{sKMv}, {WS_DUMMY}
    s_mov_b32 s{sC}, 0x3e0293ee
    s_mov_b32 s{sC+1}, 0x3e0293ee
    """)
    a(f"""
    buffer_store_dwordx4 v[64:67], v{L16}, {WS}, s{sH1l} offen
    buffer_store_dwordx4 v[64:67], v{L16}, {WS}, s{sH1l} offen offset:1024
    buffer_store_dword v64, v{A_IMS}, {WS}, s{sIMw} offen
    buffer_store_dword v64, v{A_IMS}, {WS}, s{sIMr} offen
    buffer_load_dwordx4 {vr(MA,4)}, v60, {sr(S_M0,4)}, 0 offen
    buffer_load_dwordx4 {vr(MA+16,4)}, v60, {sr(S_M0,4)}, 0 offen offset:512
    """, vm='init')
    units = [(m, s) for s in (1, 2, 3, 5, 6, 7) for m in 'qk'] + [('v', s) for s in range(8)] + [('o', u) for u in range(4)] + \
            [('q', 0), ('k', 0), ('q', 4), ('k', 4)] + [('o', u) for u in range(4, 8)]
    assert len(units) == 32
    sLB, sO1, sHB, sHO = sT + 4, sT + 5, sT + 6, sT + 7
    a(f"""
    s_lshl_b32 s{sLB}, s{sW}, 15
    s_add_u32 s{sLB}, s{sLB}, {L_W}
    s_lshl_b32 s{sHB}, s{sH}, 8
    s_lshl_b32 s{sHO}, s{sH}, 17
    """)
    def issue(u):
        kind, x = units[u]
        if kind == 'o':
            T, half = x >> 1, x & 1
            a(f"s_add_u32 s{sO1}, s{sHO}, {64*half*1024 + 256*T}")
            step, voff, S = 16 * 1024, 57, S_WO
        else:
            a(f"""
            s_add_u32 s{sO1}, s{sW}, {x}
            s_and_b32 s{sO1}, s{sO1}, 3
            s_or_b32 s{sO1}, s{sO1}, {x & 4}
            s_lshl_b32 s{sO1}, s{sO1}, 19
            s_add_u32 s{sO1}, s{sO1}, s{sHB}
            """)
            step, voff, S = 16 * 8192, 56, {'q': S_WQ, 'k': S_WK, 'v': S_WV}[kind]
        for i in range(4):
            a(f"s_add_u32 m0, s{sLB}, {(u % 8) * 4096 + i * 1024}")
            if i: a(f"s_add_u32 s{sO1}, s{sO1}, {step}")
            else: a("s_nop 0")
            a(f"buffer_load_dwordx4 v{voff}, {sr(S,4)}, s{sO1} offen lds", vm=('u', u))
    def consume(u):
        kind, x = units[u]
        a.wait(vm=('u', u))
        base = (u % 8) * 4096
        final = u >= 24
        for half in range(2):
            if final: k, dst = 'v', 64 + 8 * half
            elif kind == 'q': k, dst = wqk_reg(x, 2 * half)
            elif kind == 'k': k, dst = wqk_reg(x, 2 * half + 1)
            elif kind == 'v': k, dst = wv_reg(x, half)
            else: k, dst = wo_reg(x >> 1, 2 * (x & 1) + half)
            for p in range(4):
                if kind == 'o': off, ad = base + (32 * half + 16 * (p >> 1) + 2 * (p & 1)) * 64, 59
                else: off, ad = base + (32 * (p >> 1) + 2 * (p & 1)) * 64 + 8 * half, 58
                a(f"ds_read_b64_tr_b16 {vr(dst + 2*p, 2, k)}, v{ad} offset:{off}")
        a.wait(lg='all')
        if final:
            for i in range(4): a(f"ds_write_b128 v{A_W}, {vr(64+4*i,4)} offset:{base + 1024*i}")
            a.wait(lg='all')
    for u in range(8): issue(u)
    a.wait(vm='init')
    for r in list(range(MA, MA + 4)) + list(range(MA + 16, MA + 20)): a(f"v_min_u32 v{r}, -2, v{r}")
    a(f"""
    s_barrier
    s_cmp_lg_u32 s{sW}, 0
    s_cbranch_scc1 L_c_noarr
    s_mov_b64 exec, 1
    v_mov_b32 v64, 1
    v_mov_b32 v65, {DBG_CBAR}
    buffer_atomic_add v64, v65, {sr(S_DBG,4)}, 0 offen
    s_mov_b64 exec, -1
    """)
    a.vm.pop()
    a.label('L_c_noarr')
    for u in range(32):
        consume(u)
        if u + 8 < 32: issue(u + 8)
    a(f"""
    v_mov_b32 v64, {DBG_CBAR}
    v_mov_b32 v65, {DBG_KVC}
    s_mov_b32 s{sSPIN}, 0
    s_lshl_b32 s{sT}, s{sW}, 12
    s_add_u32 m0, s{sT}, {L_KV}
    """)
    a.label('L_c_w0')
    a(f"""
    buffer_load_dword v66, v64, {sr(S_DBG,4)}, 0 offen sc1
    buffer_load_dword v67, v65, {sr(S_DBG,4)}, 0 offen sc1
    s_add_u32 s{sSPIN}, s{sSPIN}, 1
    s_cmp_gt_u32 s{sSPIN}, {SPIN_MAX}
    s_cbranch_scc1 L_exit
    """)
    a.wait(vm='all')
    a(f"""
    v_min_u32 v66, v66, v67
    v_cmp_gt_u32 vcc, 32, v66
    s_cbranch_vccnz L_c_w0
    """)
    for k in range(4): a(f"buffer_load_dwordx4 {vr(KX+4*k,4)}, v{L16}, {WS}, s{sKV} offen offset:{1024*k} sc1")
    a(f"s_add_u32 s{sKV}, s{sKV}, 0x80000\ns_mov_b32 s{sFL}, {DBG_KVC}\ns_mov_b32 s{sSPIN}, 0")
    for l in idle_work(): a(l)
    a.wait(vm='all', lg='all')

def idle_work():
    L = [f"ds_read_b128 {vr(ST + 8*u + 4*hf, 4)}, v{A_W} offset:{lw_qk(0, u) + 1024*hf}" for u in range(4) for hf in range(2)]
    L += [f"v_mov_b64 {vr(Q0+i,2)}, 0" for i in range(0, 24, 2)]
    L += [f"v_mov_b32 v{ONE+i}, 0x3f803f80" for i in range(4)]
    return L

DEF = dict(b1=4, nL=10, nB2=6, nv1=2, nv2=2, nvA=4, earlyL=0, dH1=[30, 52, 74, 96], dE=[52, 30, 8, 0], pE=18, inGap=[0, 0, 0, 1], nPre=[0, 0, 0, 0],
           dS=[-1, -1], kw=1, dma0=14, nE=3, dT=0, stg=1)
def chain_step(a, P0, w):
    P = dict(DEF); P.update(P0)
    allow = P.get('stamps', [])
    used = []
    def stamp(k):
        if k in allow:
            a(f"s_memtime s[{72+2*len(used)}:{73+2*len(used)}]"); used.append(k)
    WS = sr(S_WS, 4)
    acc = [Q0, K0, Q1, K1]
    lb = lambda s: f"L_{s}_{w}"
    own = 2048 * w
    oth = lambda q: 2048 * ((w + q) & 3)
    T0 = MA + 28
    ldE = f"buffer_load_dwordx4 {vr(MA,4)}, v{L16}, {WS}, s{sIMl} offen sc1"
    ldL = f"buffer_load_dwordx4 {vr(MA+16,4)}, v{L16}, {WS}, s{sIML} offen sc1"
    chkE = f"v_max3_u32 v{T0}, v{MA}, v{MA+1}, v{MA+2}\nv_max_u32 v{T0}, v{T0}, v{MA+3}\nv_cmp_eq_u32 vcc, -1, v{T0}"
    chkL = [f"v_max3_u32 v{T0}, v{MA+16}, v{MA+17}, v{MA+18}", f"v_max3_u32 v{T0}, v{T0}, v{MA+19}, v{FLV}", f"v_cmp_eq_u32 vcc, -1, v{T0}"]
    ldF = f"buffer_load_dword v{FLV}, off, {sr(S_DBG,4)}, s{sFL} sc1"
    cvF = [f"v_subrev_u32 v{FLV}, 32, v{FLV}", f"v_ashrrev_i32 v{FLV}, 31, v{FLV}"]
    dwE = f"ds_write_b128 v{L16}, {vr(MA,4)} offset:{L_MEM + own}"
    dwL = f"ds_write_b128 v{L16}, {vr(MA+16,4)} offset:{L_MEM + own + 1024}"
    cv = lambda d, s0: f"v_cvt_pk_bf16_f32 v{d}, v{s0}, v{s0+1}"
    z2 = lambda r: f"v_mov_b64 {vr(r,2)}, 0"
    ror8 = lambda d, s0, bm: f"v_mov_b32_dpp v{d}, v{s0} row_ror:8 row_mask:0xf bank_mask:{bm}"
    mf32 = lambda D, A, B, C: a(f"v_mfma_f32_16x16x32_bf16 {vr(D,4)}, {vr(A,4)}, {vr(B,4)}, {vr(C,4) if C is not None else 0}")
    mf16 = lambda D, A, B, C: a(f"v_mfma_f32_16x16x16_bf16 {vr(D,4)}, {vr(A,2)}, {vr(B,2)}, {vr(C,4) if C is not None else 0}")
    def wdelay(n):
        while P['kw'] and n >= 8:
            mf32(MA + 24, F, F, None); a("s_nop 2"); mf32(MA + 4, F, F, None); a("s_nop 2"); n -= 8
        nops(a, n)
    a.label(lb('top'))
    a("s_waitcnt vmcnt(0)")
    a.vm = []; a.lg = []
    stamp(0)
    if P['earlyL']: a(ldL, vm='L2')
    a(chkE)
    a(dwE, lg='we')
    a(f"s_cbranch_vccnz {lb('f1')}")
    if not P['earlyL']: a(ldL, vm='L2')
    a.label(lb('go'))
    stamp(14)
    KVF = P.get('kvf', 'sc1')
    dma = [f"buffer_load_dwordx4 v{L16}, {WS}, s{sKV} offen offset:{1024*k} {KVF} lds" for k in range(4)]
    mrd = lambda s: f"ds_read_b128 {vr(MA+4*s,4)}, v{L16} offset:{L_MEM + oth(s & 3) + 1024*(s>>2)}"
    r2 = [f"ds_read_b128 {vr(ST + 8*u + 4*hf, 4)}, v{A_W} offset:{lw_qk(4, u) + 1024*hf}" for u in range(4) for hf in range(2)]
    r3 = [f"ds_read_b128 {vr(ST + 8*k + 4*hf, 4)}, v{A_W} offset:{lw_wo(2,k) + 1024*hf}" for k in range(4) for hf in range(2)]
    vq = [(V0 + 4 * tau, MA + 4 * s, wv_reg(s, tau)) for s in range(8) for tau in range(2)]
    qk = lambda s: [(acc[u], MA + 4 * s, wqk_reg(s, u)) for u in range(4)]
    sA = qk(0) + [vq.pop(0), vq.pop(0)]
    for k in range(P['b1']): smf(a, *sA.pop(0))
    a.wait(lg='all')
    a("s_barrier")
    stamp(1)
    a(mrd(1), lg=('ma', 1)); a(mrd(2), lg=('ma', 2))
    smf(a, *sA.pop(0))
    a(mrd(3), lg=('ma', 3))
    while sA: smf(a, *sA.pop(0))
    if not P.get('nokm'): a(f"buffer_store_dwordx4 {vr(MA+20,4)}, v{L16}, {WS}, s{sKMv} offen offset:1024 sc1", vm='km')
    a(r2.pop(0), lg='r2'); a(r2.pop(0), lg='r2')
    seq = qk(1) + qk(2) + qk(3) + [vq.pop(0) for _ in range(P['nv1'])]
    i4 = len(seq); seq += qk(4) + [vq.pop(0) for _ in range(P['nv2'])]
    i5 = len(seq); seq += qk(5)
    i6 = len(seq); q6, q7 = qk(6), qk(7)
    seq += [q6[0], q6[1], q7[0], q7[1], q6[2], q6[3], q7[2], q7[3]]
    nL, nB2 = P['nL'], P['nB2']
    assert i4 >= nL + 4 and nL + nB2 <= i5
    KVST = 0 if P.get('kvfix') else 0x80000
    for n, q in enumerate(seq):
        if n == 0: a.wait(lg=('ma', 1))
        if n == 4: a.wait(lg=('ma', 3))
        if n == nL:
            stamp(2)
            a.wait(vm='L2'); a(dwL, lg='wl'); a(chkL[0])
        if n == nL + nB2:
            a.wait(lg='wl'); a("s_barrier"); stamp(3); a(mrd(5), lg=('ma', 5))
        if n == i4 and 'r2' in a.lg: a.wait(lg='r2')
        if n == i5: a.wait(lg=('ma', 5))
        if n == i6: a.wait(lg=('ma', 7))
        smf(a, *q)
        if n == nL + nB2: a(mrd(6), lg=('ma', 6)); a(mrd(7), lg=('ma', 7))
        elif r2: a(r2.pop(0), lg='r2')
        elif n > i4 and n > nL + nB2 and r3: a(r3.pop(0), lg='r3')
        if n >= max(P['dma0'] + w * P['stg'], nL + 4) and (n - P['dma0'] - w * P['stg']) % 4 == 0 and dma:
            a(dma.pop(0), vm='dma')
            if not dma: a(f"s_add_u32 s{sKV}, s{sKV}, {KVST}")
        if n == nL: a(chkL[1])
        if n == nL + 1: a(chkL[2])
        if n == nL + 3:
            a(f"s_cbranch_vccnz {lb('rL')}"); a.label(lb('bL'))
        if n == nL + 4: a(f"s_add_u32 s{sFL}, s{sS}, 2\ns_lshr_b32 s{sFL}, s{sFL}, 3")
        if n == nL + 5: a(f"s_min_u32 s{sFL}, s{sFL}, 7\ns_lshl2_add_u32 s{sFL}, s{sFL}, {DBG_KVC}")
        if n == i6 + 2: a(ldF, vm='fl')
        if n == i6 + 4: a(cv(Q0, Q0))
        if n == i6 + 5: a(cv(Q0 + 1, Q0 + 2))
        if n == i6 + 6: a(cv(Q0 + 2, K0))
    assert not r3 and not dma and not r2
    stamp(4)
    a(cv(Q0 + 3, K0 + 2))
    a("s_nop 0")
    a(cv(Q1, Q1))
    mf32(K0, Q0, F, None)
    a(cv(Q1 + 1, Q1 + 2)); a(cv(Q1 + 2, K1)); a(cv(Q1 + 3, K1 + 2))
    a("s_nop 1")
    mf32(K1, Q1, F, None)
    X = Q0
    a(cv(X, K0)); a(cv(X + 1, K0 + 2))
    smf(a, *vq.pop(0))
    a("s_nop 0"); a(f"buffer_store_dword v{NEG1}, v{A_IMS}, {WS}, s{sIMr} offen", vm='rs'); a("s_nop 1")
    a(cv(X + 2, K1)); a(cv(X + 3, K1 + 2))
    a("s_nop 1")
    S1, S2, SM = Q1, K0, K1
    mf32(SM, X, X, None); mf32(S2, KX + 4, X, None); mf32(S1, KX, X, None)
    for r in range(2): a(ror8(SM + r, SM + 2 + r, '0xc'))
    smf(a, *vq.pop(0))
    a("s_nop 0")
    a(f"ds_write2_b32 v{A_SMW}, v{SM}, v{SM+1} offset0:0 offset1:32")
    a("s_nop 1")
    for r in range(4): a(ror8(S1 + r, S2 + r, '0xc'))
    smf(a, *vq.pop(0))
    a(f"ds_write_b128 v{L16}, {vr(S1,4)} offset:{L_S + own}")
    stamp(5)
    for k in range(P['nvA']):
        smf(a, *vq.pop(0))
        if k == min(w * P['stg'], P['nvA'] - 1) and not P.get('nokm'): a(f"buffer_store_dwordx4 {vr(X,4)}, v{L16}, {WS}, s{sKM} offen sc1", vm='km')
    a.wait(lg='all')
    a("s_barrier")
    stamp(6)
    R1, R2, R3, RM = K0, KX, KX + 4, K1
    a(f"ds_read_b128 {vr(RM,4)}, v{L16} offset:{L_SM}", lg='rm')
    a(f"ds_read_b128 {vr(R1,4)}, v{L16} offset:{L_S + oth(1)}", lg='r1')
    smf(a, *vq.pop(0))
    a(f"ds_read_b128 {vr(R2,4)}, v{L16} offset:{L_S + oth(2)}", lg='r2')
    a(f"ds_read_b128 {vr(R3,4)}, v{L16} offset:{L_S + oth(3)}", lg='r3')
    while vq: smf(a, *vq.pop(0))
    pka = lambda d, s0: f"v_pk_add_f32 {vr(d,2)}, {vr(d,2)}, {vr(s0,2)}"
    a.wait(lg='r1')
    a(f"v_add_f32 v{RM}, v{RM}, v{RM+1}\nv_add_f32 v{RM+2}, v{RM+2}, v{RM+3}")
    a(f"v_add_f32 v{S1}, v{S1}, v{R1}\nv_add_f32 v{S1+1}, v{S1+1}, v{R1+1}")
    a(pka(S1 + 2, R1 + 2))
    a.wait(lg='r2')
    a(pka(S1, R2)); a(pka(S1 + 2, R2 + 2))
    a(f"v_add_f32 v{RM}, v{RM}, v{RM+2}")
    a.wait(lg='all')
    stamp(7)
    a(pka(S1, R3)); a(pka(S1 + 2, R3 + 2))
    m0, m1 = K0, K0 + 1
    a(f"v_max3_f32 v{m0}, v{RM}, v{S1}, v{S1+1}")
    a(f"v_max3_f32 v{m0}, v{m0}, v{S1+2}, v{S1+3}")
    a(cv(V0, V0)); a(cv(V0 + 1, V0 + 2))
    a(f"v_max_f32_dpp v{m1}, v{m0}, v{m0} row_ror:8 row_mask:0xf bank_mask:0xf")
    a(f"v_max_f32_dpp v{m0}, v{m0}, v{m0} row_ror:8 row_mask:0xf bank_mask:0xf")
    a(cv(V0 + 2, V1)); a(cv(V0 + 3, V1 + 2))
    a(f"v_permlane32_swap_b32 v{m0}, v{m1}")
    a(f"v_max_f32 v{m0+2}, v{m0}, v{m1}")
    a(f"v_max_f32 v{m0+3}, v{m0}, v{m1}")
    a(f"v_permlane32_swap_b32 v{V0}, v{V0+1}")
    a(f"v_permlane32_swap_b32 v{V0+2}, v{V0+3}")
    a(f"v_permlane16_swap_b32 v{m0+2}, v{m0+3}")
    a(f"v_max_f32 v{m0}, v{m0+2}, v{m0+3}")
    a(f"v_mul_f32 v{m0}, s{sC}, v{m0}")
    a(f"v_fma_f32 v{RM}, v{RM}, s{sC}, -v{m0}")
    pkf = lambda r: f"v_pk_fma_f32 {vr(r,2)}, {vr(r,2)}, {sr(sC,2)}, {vr(m0,2)} op_sel_hi:[1,1,0] neg_lo:[0,0,1] neg_hi:[0,0,1]"
    BX, BM = K0, K1 + 2
    O0, O1, L = KX, V1, Q0
    a(f"v_exp_f32 v{RM}, v{RM}")
    a(pkf(S1)); a(pkf(S1 + 2))
    a(ror8(RM + 1, RM, '0xf'))
    a(cv(BM, RM)); a(cv(BM + 1, RM))
    a(f"v_exp_f32 v{S1}, v{S1}\nv_exp_f32 v{S1+1}, v{S1+1}")
    mf16(O0, V0, BM, None)
    a(f"v_exp_f32 v{S1+2}, v{S1+2}\nv_exp_f32 v{S1+3}, v{S1+3}")
    a(cv(BX, S1)); a(cv(BX + 1, S1 + 2))
    mf16(O1, V0 + 2, BM, None)
    a(ror8(BX + 2, BX, '0xf')); a(ror8(BX + 3, BX + 1, '0xf'))
    AC = [Q1, KX, V1, ONE]
    OW = KX + 4
    a(z2(AC[0])); a(z2(AC[0] + 2))
    mf32(O0, VX, BX, O0)
    stamp(8)
    mf32(O1, VX + 4, BX, O1)
    mf16(L, BM, HZ, None)
    a(cv(OW, O0)); a(cv(OW + 1, O0 + 2))
    a(z2(AC[1]))
    a(cv(OW + 2, O1)); a(cv(OW + 3, O1 + 2))
    mf32(L, BX, ONE, L)
    a(f"s_cmp_eq_u32 s{sS}, 63")
    a(f"ds_write_b128 v{A_OW}, {vr(OW,4)} offset:{L_O + own}")
    stamp(9)
    for r in range(4): a(ror8(OW + r, OW + r, '0xc'))
    a(z2(AC[1] + 2)); a(z2(AC[2])); a(z2(AC[2] + 2))
    for r in range(4): a(f"v_rcp_f32 v{L+r}, v{L+r}")
    a(z2(AC[3])); a(z2(AC[3] + 2))
    smf(a, AC[0], OW, wo_reg(0, w))
    a(f"s_cbranch_scc1 L_last")
    a.wait(lg='all')
    a("s_barrier")
    stamp(10)
    ks = [(w + q) & 3 for q in range(1, 4)]
    OA = {ks[0]: VX, ks[1]: VX + 4, ks[2]: K1, w: OW}
    oard = lambda k: a(f"ds_read_b128 {vr(OA[k],4)}, v{A_O} offset:{L_O + 2048*k}", lg=('oa', k))
    r4 = [f"ds_read_b128 {vr(MA + 8*k + 4*hf, 4)}, v{A_W} offset:{lw_wo(3,k) + 1024*hf}" for k in [w] + ks for hf in range(2)]
    g2 = lambda T, k: smf(a, AC[T], OA[k], wo_reg(T, k))
    mul = lambda T, r: a(f"v_mul_f32 v{AC[T]+r}, v{AC[T]+r}, v{L+r}")
    def cvt(T, r):
        a(cv(AC[T] + r, AC[T] + 2 * r))
        if r == 1: a(f"v_bfi_b32 v{AC[T]}, 1, s{sTAG}, v{AC[T]}")
    sto = lambda T: f"buffer_store_dwordx2 {vr(AC[T],2)}, v{A_H1S}, {WS}, s{sH1+T} offen"
    rd4 = lambda: a(r4.pop(0), lg='r4')
    oard(ks[0]); oard(ks[1])
    g2(1, w); oard(ks[2]); rd4()
    g2(2, w); rd4()
    mf32(K0, F, F, None); rd4()
    a.wait(lg=('oa', ks[0])); g2(0, ks[0]); stamp(20); rd4()
    a.wait(lg=('oa', ks[1])); g2(0, ks[1]); rd4()
    a.wait(lg=('oa', ks[2])); g2(0, ks[2]); rd4()
    g2(1, ks[0]); rd4()
    g2(1, ks[1]); rd4(); mul(0, 0)
    g2(1, ks[2]); mul(0, 1); mul(0, 2); mul(0, 3); cvt(0, 0); cvt(0, 1)
    g2(2, ks[0]); a("s_nop 0"); a(sto(0), vm='h1')
    for r in range(4): mul(1, r)
    cvt(1, 0); cvt(1, 1)
    g2(2, ks[1]); a("s_nop 0"); a(sto(1), vm='h1')
    stamp(21)
    g2(2, ks[2])
    a.wait(lg='all')
    g2(3, w)
    a(f"s_add_u32 s{sIMl}, s{sIMw}, {1024*w}\ns_add_u32 s{sIML}, s{sIMw}, {4096+1024*w}")
    g2(3, ks[0]); a(f"s_add_u32 s{sS}, s{sS}, 1\ns_mov_b32 s{sKMv}, s{sKM}"); mul(2, 0)
    g2(3, ks[1]); mul(2, 1)
    g2(3, ks[2]); mul(2, 2); mul(2, 3); cvt(2, 0); cvt(2, 1)
    dS = P['dS']
    a("s_nop 1")
    if dS[0] < 0: a(sto(2), vm='h1')
    c = AC[3]
    a(f"v_pk_mul_f32 {vr(c,2)}, {vr(c,2)}, {vr(L,2)}\nv_pk_mul_f32 {vr(c+2,2)}, {vr(c+2,2)}, {vr(L+2,2)}")
    cvt(3, 0); cvt(3, 1)
    a(f"s_add_u32 s{sKM}, s{sKM}, 0x40000\ns_nop 0")
    if dS[1] < 0: a(sto(3), vm='h1')
    stamp(11)
    HA = KX
    ld1 = [f"buffer_load_dwordx4 {vr(HA+4*c_,4)}, v{L16}, {WS}, s{sH1l} offen offset:{1024*c_} sc1" for c_ in range(2)]
    HD, T1 = MA + 8, MA + 12
    idle = [f"v_mov_b64 {vr(MA+20,2)}, {vr(V0,2)}", f"v_mov_b64 {vr(MA+22,2)}, {vr(V0+2,2)}"] + idle_work()
    late = [l for l in idle if l.startswith(f"v_mov_b64 v[{V1}:") or l.startswith(f"v_mov_b64 v[{V1+2}:") or l.startswith("v_mov_b32")]
    dsq = [l for l in idle if l.startswith('ds_')]
    idle = [l for l in idle if l not in late and l not in dsq]
    ev = [(max(dS[k], 0), k, [(sto(2 + k) if dS[k] >= 0 else None, 'h1')]) for k in range(2)]
    ev.append((P['dH1'][w], -1 if w < 2 else 2, [(ld1[0], 'H0'), (ld1[1], 'H1')]))
    pos = 0; nst = 0
    for (tpos, _, ops) in sorted(ev):
        while pos < tpos:
            if idle and tpos - pos > 2: a(idle.pop(0)); pos += 1
            elif dsq and nst == 2 and tpos - pos >= 6:
                if P['kw']: mf32(MA + 24 if len(dsq) & 1 else MA + 4, F, F, None); a("s_nop 1")
                else: a("s_nop 2")
                a(dsq.pop(0), lg='pre'); pos += 4
            else: wdelay(tpos - pos); pos = tpos
        for (o, tag) in ops:
            if o: a(o, vm=tag); pos += 1
            if tag == 'h1':
                nst += 1
                if nst == 2: idle += late
    for l in dsq + idle: a(l, lg='pre')
    dE = P['dE'][w]; pE = P['pE']; nPre = P['nPre'][w]; inGap = P['inGap'][w]
    eq = ['E0', 'E1', 'E2'][:P['nE']]; nE = len(eq)
    for k in range(nPre):
        wdelay(dE if k == 0 else pE); a(ldE, vm=eq.pop(0))
    nH0 = len(a.vm) - 1 - a.vm.index('H0')
    a(f"s_waitcnt vmcnt({nH0})")
    a.label(lb('a1'))
    stamp(12)
    mf32(HD, SEL, HA, None)
    a(f"v_bitop3_b32 v{T1}, v{HA}, v{HA+2}, s{sTAG} bitop3:0x7e")
    a.wait(vm='H1')
    mf32(HD, SEL, HA + 4, HD)
    a(f"v_bitop3_b32 v{T1+1}, v{HA+4}, v{HA+6}, s{sTAG} bitop3:0x7e\nv_bitop3_b32 v{T1}, v{T1}, v{T1+1}, 1 bitop3:0xa8\nv_cmp_ne_u32 vcc, 0, v{T1}")
    if inGap and eq:
        a("s_nop 1"); a(ldE, vm=eq.pop(0)); a("s_nop 0")
    else: a("s_nop 3")
    dpa = lambda r, n: f"v_add_f32_dpp v{r}, v{r}, v{r} row_ror:{n} row_mask:0xf bank_mask:0xf"
    a(dpa(HD, 4)); a(dpa(HD + 1, 4)); a("s_nop 0"); a(dpa(HD, 8)); a(dpa(HD + 1, 8))
    a(cv(HD, HD))
    a(f"s_cbranch_vccnz {lb('r1')}")
    a(f"buffer_store_dword v{HD}, v{A_IMS}, {WS}, s{sIMw} offen", vm='im')
    stamp(13)
    if inGap and eq: a(ldE, vm=eq.pop(0))
    misc = [f"ds_read_b128 {vr(KX+4*k,4)}, v{L16} offset:{L_KV + 4096*w + 1024*k}" for k in range(4)]
    misc += [f"s_mov_b32 s{sIMw}, s{sIMr}", f"s_add_u32 s{sIMr}, s{sIMr}, 0x2000", f"s_and_b32 s{sIMr}, s{sIMr}, 0xffff7fff",
             f"s_xor_b32 s{sTAG}, s{sTAG}, 1"] + cvF
    def delay(n):
        while n > 0 and misc: a(misc.pop(0), lg='pre'); n -= 1
        wdelay(n)
    while eq:
        delay(dE if len(eq) == nE else pE); a(ldE, vm=eq.pop(0))
    delay(len(misc))
    if used:
        a("s_waitcnt lgkmcnt(0)")
        if P.get('trace'):
            a("s_nop 7")
            for k in range(len(used)): a(f"v_mov_b32 v{MA+8+k}, s{72+2*k}")
            a(f"s_lshl_b32 s{sT}, s{sH}, 12\ns_lshl_b32 s{sT+1}, s{sS}, 4\ns_add_u32 s{sT}, s{sT}, s{sT+1}\ns_add_u32 s{sT}, s{sT}, {WS_STAMP + 65536 + 1024*w}\ns_mov_b64 exec, 1")
            a(f"buffer_store_dwordx4 {vr(MA+8,4)}, v{L16}, {WS}, s{sT} offen", vm='tr')
            a("s_mov_b64 exec, -1")
        else:
            for k in range(1, len(used)):
                a(f"s_sub_u32 s{sT}, s{72+2*k}, s{70+2*k}\ns_add_u32 s{88+k}, s{88+k}, s{sT}")
    if w == 0: wdelay(P['dT'])
    if P.get('stat'):
        a(f"s_cmp_lg_u32 s{sS}, 3\ns_cbranch_scc1 {lb('top')}\ns_memtime s[68:69]\ns_mov_b32 s70, 0\ns_mov_b32 s71, 0")
        for k in range(8): a(f"s_mov_b32 s{88+k}, 0")
    young = lambda t: len(a.vm) - 1 - a.vm.index(t)
    eL = P['earlyL']
    ns = [young(f'E{k}') + k + (eL if k else 0) for k in range(nE)]
    a.lines[a.lines.index(lb('top') + ':') + 1] = f"s_waitcnt vmcnt({ns[0]}) lgkmcnt(0)"
    a(f"s_branch {lb('top')}")
    end_main = len(a.lines)
    cnt = lambda r, v: (f"s_add_u32 s{r}, s{r}, {v}\n" if P.get('stat') else '')
    spin = f"s_add_u32 s{sSPIN}, s{sSPIN}, 1\ns_cmp_gt_u32 s{sSPIN}, {SPIN_MAX}\ns_cbranch_scc1 L_exit\n"
    for k in range(1, nE + 1):
        a.label(lb(f'f{k}'))
        a(ldE); a(cnt(71, 1) + f"s_waitcnt vmcnt({ns[k] if k < nE else nE - 1})"); a(chkE); a(dwE)
        a(f"s_cbranch_vccnz {lb(f'f{k+1}')}")
        a(ldL); a(f"s_branch {lb('go')}")
    a.label(lb(f'f{nE+1}'))
    a(spin + f"s_branch {lb(f'f{nE}')}")
    a.label(lb('rL'))
    a(ldF); a(f"s_cmp_eq_u32 s{sS}, 0\ns_cbranch_scc1 {lb('rL0')}"); a(ldL)
    a.label(lb('rL0'))
    a(cnt(71, 65536) + spin + "s_waitcnt vmcnt(0)")
    a(dwL); a('\n'.join(cvF))
    a('\n'.join(chkL))
    a(f"s_waitcnt lgkmcnt(0)\ns_cbranch_vccnz {lb('rL')}\ns_branch {lb('bL')}")
    a.label(lb('r1'))
    a(ld1[0]); a(ld1[1])
    a(cnt(70, 1) + spin + f"s_waitcnt vmcnt(0)\ns_branch {lb('a1')}")
    a.label(lb('step'))
    a(dwE)
    a(f"s_branch {lb('go')}")
    return end_main, None

def chain_test_kernel(P):
    a = Asm()
    a(f"s_cmp_ge_u32 s2, 256\ns_cbranch_scc1 L_end")
    srd(a, S_WS, 152, WS_SIZE); srd(a, S_WQ, 88, 4194304); srd(a, S_WK, 96, 4194304); srd(a, S_WV, 104, 4194304)
    srd(a, S_WO, 112, 4194304); srd(a, S_DBG, 144, 256); srd(a, S_M0, 80, 8192)
    a(f"""
    s_memtime s[60:61]
    s_getreg_b32 s{sT}, hwreg(HW_REG_XCC_ID, 0, 4)
    s_waitcnt lgkmcnt(0)
    s_cmp_lg_u32 s{sT}, 0
    s_cbranch_scc1 L_end
    v_cmp_eq_u32 vcc, 0, v0
    v_mov_b32 v1, 1
    v_mov_b32 v2, {DBG_XCNT}
    v_mov_b32 v3, {L_MISC}
    s_and_saveexec_b64 s[62:63], vcc
    s_cbranch_execz L_t1
    buffer_atomic_add v1, v2, {sr(S_DBG,4)}, 0 offen sc0
    s_waitcnt vmcnt(0)
    ds_write_b32 v3, v1
    s_waitcnt lgkmcnt(0)
    """)
    a.label('L_t1')
    a(f"""
    s_mov_b64 exec, s[62:63]
    s_barrier
    ds_read_b32 v1, v3
    s_waitcnt lgkmcnt(0)
    v_readfirstlane_b32 s{sH}, v1
    s_mov_b32 s70, 0
    s_mov_b32 s71, 0
    """)
    for k in range(8): a(f"s_mov_b32 s{88+k}, 0")
    a.lg = []; a.vm = []
    chain_setup(a)
    chain_prologue(a, P)
    a("s_memtime s[64:65]\ns_waitcnt lgkmcnt(0)")
    for w in range(4): a(f"s_cmp_eq_u32 s{sW}, {w}\ns_cbranch_scc1 L_step_{w}")
    a("s_branch L_exit")
    errs, _ = check(a.lines, 'pro')
    for w in range(4):
        a(".p2align 6")
        n0 = len(a.lines)
        n1, _ = chain_step(a, P, w)
        e, ins = check(a.lines[n0:n1] * 2, f'loop{w}'); errs += e
        e, _ = check(a.lines[n1:], f'retry{w}'); errs += e
    a.label('L_last')
    a(f"buffer_store_dwordx4 {vr(V0,4)}, v{L16}, {sr(S_WS,4)}, s{sKM} offen offset:1024 sc1")
    a.label('L_exit')
    a(f"""
    s_memtime s[66:67]
    s_waitcnt lgkmcnt(0)
    s_sub_u32 s66, s66, s68
    s_sub_u32 s64, s64, s60
    s_nop 7
    v_mov_b32 v24, s64
    v_mov_b32 v25, s66
    v_mov_b32 v26, s70
    v_mov_b32 v27, s71
    s_lshl_b32 s{sT}, s{sH}, 2
    s_add_u32 s{sT}, s{sT}, s{sW}
    s_lshl_b32 s{sT}, s{sT}, 6
    s_add_u32 s{sT}, s{sT}, {WS_STAMP}
    v_mov_b32 v28, 0
    buffer_store_dwordx4 v[24:27], v28, {sr(S_WS,4)}, s{sT} offen
    """)
    for k in range(8): a(f"v_mov_b32 v{32+k}, s{88+k}")
    a(f"""
    buffer_store_dwordx4 v[32:35], v28, {sr(S_WS,4)}, s{sT} offen offset:16
    buffer_store_dwordx4 v[36:39], v28, {sr(S_WS,4)}, s{sT} offen offset:32
    s_waitcnt vmcnt(0)
    """)
    a.label('L_end')
    return a, errs, ins

if __name__ == '__main__':
    a, errs, ins = chain_test_kernel({})
    for e in errs: print(e)
    n = len(ins) // 2
    print('instrs', n, 'lower-bound cycles', ins[n]['t'])
```

```python
from asmlib import *
from chain import WS_KV, WS_KM, WS_SIZE, DBG_KVC, S_WS, S_DBG, sH, sW, nops

WS_A = 50 << 20
WS_CNT = WS_A + (64 << 10)
WS_PART = 64 << 20
H_GW = 131072
H_E = H_GW + 1024
H_C = H_E + 1024
S_X, S_W1, S_W2, S_WO, S_OUT = 8, 12, 16, 20, 28
sB = 34
sX0, sWo1, sWo2, sStI, sStS, sSlot, sCnt, sSeg, sSpin, sJ = 35, 36, 37, 38, 39, 40, 41, 42, 43, 44
sA, sA2, sA3, sA4 = 45, 46, 47, 48
sWoo = 49
sM = 50
P_LRE, P_LIM, P_LDT, P_DSK, P_GW, P_CRE, P_CIM = 60, 62, 64, 66, 68, 70, 72
P_T0, P_T1, P_T2 = 74, 76, 78
LANE, L16, VX_, VW, VW2, XA, WA, BA, GA, VKV, G, VN, HH, VKM, VVM, WOA, MX = 0, 1, 2, 3, 4, 5, 7, 11, 13, 14, 15, 16, 17, 18, 19, 20, 28
T = 29
KF, VF, FR = 32, 96, 160
QF, SS, HF = 160, 224, 240
HSPIN = 400000
LOG2E = 0x3fb8aa3b
def mf(a, D, A, B, C): a(f"v_mfma_f32_32x32x16_bf16 {D}, {A}, {B}, {C}")
WS = sr(S_WS, 4)

def h_once(a):
    a(f"""
    s_load_dwordx2 {sr(S_X,2)}, s[0:1], 0
    s_load_dwordx2 {sr(S_WO,2)}, s[0:1], 112
    s_load_dwordx2 {sr(S_OUT,2)}, s[0:1], 136
    s_load_dwordx2 {sr(P_LRE,2)}, s[0:1], 8
    s_load_dwordx2 {sr(P_LIM,2)}, s[0:1], 16
    s_load_dwordx2 {sr(P_LDT,2)}, s[0:1], 56
    s_load_dwordx2 {sr(P_DSK,2)}, s[0:1], 64
    s_waitcnt lgkmcnt(0)
    s_load_dwordx2 {sr(P_GW,2)}, s[0:1], 128
    s_load_dwordx2 {sr(P_CRE,2)}, s[0:1], 40
    s_load_dwordx2 {sr(P_CIM,2)}, s[0:1], 48
    v_lshrrev_b32 v{T}, 6, v0
    v_and_b32 v{LANE}, 63, v0
    s_mov_b32 s{S_X+2}, 2097152
    v_readfirstlane_b32 s{sW}, v{T}
    s_mov_b32 s{S_X+3}, 0x20000
    s_mov_b32 s{S_WO+2}, 4194304
    s_mov_b32 s{S_WO+3}, 0x20000
    s_mov_b32 s{S_OUT+2}, 4194304
    s_mov_b32 s{S_OUT+3}, 0x20000
    s_mov_b32 s{S_W1+2}, 4194304
    s_mov_b32 s{S_W1+3}, 0x20000
    s_mov_b32 s{S_W2+3}, 0x20000
    s_waitcnt lgkmcnt(0)
    s_cmp_ge_u32 s{sW}, 2
    s_cbranch_scc1 L_h_hi
    s_load_dwordx2 {sr(S_W1,2)}, s[0:1], 96
    s_load_dwordx2 {sr(S_W2,2)}, s[0:1], 88
    s_mov_b32 s{S_W2+2}, 4194304
    s_mov_b32 s{sStI}, {4*8192}
    s_mov_b32 s{sStS}, {32*8192}
    s_branch L_h_sel
    """)
    a.label('L_h_hi')
    a(f"""
    s_load_dwordx2 {sr(S_W1,2)}, s[0:1], 104
    s_mov_b32 s{S_W2+2}, 524288
    s_mov_b32 s{sStI}, 0x10000000
    s_mov_b32 s{sStS}, 64
    s_cmp_eq_u32 s{sW}, 3
    s_cbranch_scc1 L_h_w3
    s_load_dwordx2 {sr(S_W2,2)}, s[0:1], 24
    s_branch L_h_sel
    """)
    a.label('L_h_w3')
    a(f"s_load_dwordx2 {sr(S_W2,2)}, s[0:1], 32")
    a.label('L_h_sel')
    t = 32
    a(f"""
    v_lshlrev_b32 v{L16}, 4, v{LANE}
    v_and_b32 v{VN}, 31, v{LANE}
    v_lshrrev_b32 v{HH}, 5, v{LANE}
    v_lshrrev_b32 v{t}, 2, v{LANE}              ; r = lane>>2
    v_lshrrev_b32 v{t+1}, 4, v{LANE}            ; lane>>4
    v_and_b32 v{t+2}, 3, v{LANE}                ; c
    v_xor_b32 v{t+3}, v{t+2}, v{t+1}
    v_lshlrev_b32 v{t+3}, 4, v{t+3}
    v_lshl_add_u32 v{VX_}, v{t}, 10, v{t+3}
    v_and_b32 v{t+3}, 15, v{LANE}
    v_lshlrev_b32 v{t+4}, 2, v{t+1}
    v_xor_b32 v{t+3}, v{t+3}, v{t+4}
    v_lshlrev_b32 v{t+3}, 4, v{t+3}
    v_lshl_add_u32 v{VW}, v{t+1}, 13, v{t+3}
    s_cmp_ge_u32 s{sW}, 2
    s_cselect_b64 vcc, -1, 0
    v_cndmask_b32 v{VW2}, v{VW}, v{VX_}, vcc
    v_bfe_u32 v{t+5}, v{LANE}, 2, 1             ; h'
    v_bfe_u32 v{t+6}, v{LANE}, 3, 1             ; t
    v_bfe_u32 v{t+7}, v{LANE}, 4, 1             ; n>>4
    v_lshl_add_u32 v{t+8}, v{t+7}, 2, v{t+2}
    v_lshl_add_u32 v{t+8}, v{t+5}, 3, v{t+8}    ; i = 8h' + 4(n>>4) + (n&3)
    v_lshl_add_u32 v{t+9}, v{HH}, 5, v{t+8}
    v_lshlrev_b32 v{t+9}, 4, v{t+9}
    v_lshl_add_u32 v{VKV}, v{t+6}, 10, v{t+9}
    v_lshl_add_u32 v{t+9}, v{HH}, 4, v{t+8}
    v_lshlrev_b32 v{t+9}, 4, v{t+9}
    v_lshl_add_u32 v{t+9}, v{t+6}, 3, v{t+9}
    v_add_u32 v{VVM}, 1024, v{t+9}
    v_and_b32 v{t+9}, 7, v{LANE}
    v_lshl_add_u32 v{t+9}, v{HH}, 5, v{t+9}
    v_add_u32 v{t+9}, 8, v{t+9}
    v_lshlrev_b32 v{VKM}, 4, v{t+9}
    s_waitcnt lgkmcnt(0)
    """)

def xaddr(a, row, base_s, dst):
    a(f"""
    v_bfe_u32 v{T}, v{row}, 2, 2
    v_xor_b32 v{T}, v{T}, v{HH}
    v_lshlrev_b32 v{T}, 4, v{T}
    v_lshl_add_u32 v{T}, v{row}, 6, v{T}
    v_add_u32 v{dst}, {base_s}, v{T}
    v_xor_b32 v{dst+1}, 32, v{dst}
    """)

def dma_x(i, first):
    L = [f"s_add_u32 m0, s{sSlot}, {1024*i}"]
    off = (i >> 1) * 131072 + (i & 1) * 16384
    L.append(f"s_add_u32 s{sA}, s{sX0}, {off}")
    L.append(f"buffer_load_dwordx4 v{VX_}, {sr(S_X,4)}, s{sA} offen lds")
    return L
def dma_group(kind):
    G_ = []
    if kind in ('p1', 'p2'):
        for i in range(4): G_.append(dma_x(i, False))
        for i in range(4):
            L = [f"s_add_u32 m0, s{sSlot}, {16384 + 1024*i}"]
            if kind == 'p1':
                L += [f"s_add_u32 s{sA}, s{sWo1}, {4*8192*i}", f"buffer_load_dwordx4 v{VW}, {sr(S_W1,4)}, s{sA} offen lds"]
            else:
                L += [f"s_mov_b32 s{sA2}, s{sWo2}" if i == 0 else f"s_add_u32 s{sA2}, s{sA2}, s{sStI}", f"buffer_load_dwordx4 v{VW2}, {sr(S_W2,4)}, s{sA2} offen lds"]
            G_.append(L)
        G_[-1] += [f"s_add_u32 s{sX0}, s{sX0}, 64", f"s_add_u32 s{sWo1}, s{sWo1}, {32*8192}" if kind == 'p1' else f"s_add_u32 s{sWo2}, s{sWo2}, s{sStS}"]
    else:
        for i in range(8):
            o = 16384 * (i >> 2) + 1024 * (i & 3)
            G_.append([f"s_add_u32 m0, s{sSlot}, {o}", f"s_add_u32 s{sA}, s{sWoo}, {o}", f"buffer_load_dwordx4 v{WOA + (i & 3)}, {sr(S_WO,4)}, s{sA} offen lds"])
        G_[-1] += [f"s_add_u32 s{sWoo}, s{sWoo}, 32768"]
    G_[-1] += [f"s_add_u32 s{sSlot}, s{sSlot}, 32768", f"s_and_b32 s{sSlot}, s{sSlot}, 0x1ffff"]
    return G_

def frag_reads(p, k, fs):
    b = FR + 40 * fs
    L = [f"ds_read_b128 {vr(b + 4*j, 4)}, v{XA + k} offset:{2048*j}" for j in range(2)]
    for m in range(2 if p == 1 else 1):
        for tau in range(4):
            for pp in range(2):
                L.append(f"ds_read_b64_tr_b16 {vr(b + 8 + 16*m + 4*tau + 2*pp, 2)}, v{WA + tau} offset:{8192*m + (16*k + 4*pp)*256}")
    if p == 2:
        L.append(f"ds_read_b128 {vr(b + 24, 4)}, v{BA + k}")
        L.append(f"ds_read_b128 {vr(b + 28, 4)}, v{GA} offset:{32*k}")
    return L
def mfmas(p, fs):
    b = FR + 40 * fs
    L = []
    x = lambda j: vr(b + 4 * j, 4)
    for tau in range(4):
        for j in range(2):
            D = ar(64 * j + 16 * tau, 16); L.append((D, vr(b + 8 + 4 * tau, 4), x(j), D))
    if p == 1:
        for tau in range(4):
            for j in range(2):
                D = ar(128 + 64 * j + 16 * tau, 16); L.append((D, x(j), vr(b + 24 + 4 * tau, 4), D))
    else:
        for q in range(2):
            for j in range(2):
                D = ar(128 + 32 * q + 16 * j, 16); L.append((D, vr(b + 24 + 4 * q, 4), x(j), D))
    return L
def adv_addr(p):
    L = []
    regs_ = [XA, XA + 1] + [WA + t for t in range(4)] + ([BA, BA + 1] if p == 2 else [])
    for r in regs_: L += [f"v_add_u32 v{r}, 0x8000, v{r}", f"v_and_b32 v{r}, 0x1ffff, v{r}"]
    if p == 2: L.append(f"v_add_u32 v{GA}, 64, v{GA}")
    return L

def stage_loop(a, name, p, dkind, n):
    a(f"s_mov_b32 s{sCnt}, {n}")
    a.label(name)
    a("s_waitcnt lgkmcnt(0)")
    rd = frag_reads(p, 1, 1); av = adv_addr(p)
    M = mfmas(p, 0)
    for i, m in enumerate(M):
        mf(a, *m)
        for _ in range(2):
            if rd: a(rd.pop(0))
        if not rd:
            for _ in range(4):
                if av: a(av.pop(0))
    assert not rd and not av
    a("s_waitcnt vmcnt(16) lgkmcnt(0)\ns_barrier")
    rd = frag_reads(p, 0, 0); dg = dma_group(dkind)
    M = mfmas(p, 1)
    for i, m in enumerate(M):
        mf(a, *m)
        for _ in range(2):
            if rd: a(rd.pop(0))
        if dg and i >= len(M) - 9:
            for l in dg.pop(0): a(l)
        if i == len(M) - 1: a(f"s_sub_u32 s{sCnt}, s{sCnt}, 1\ns_cmp_lg_u32 s{sCnt}, 0")
    assert not rd and not dg
    a(f"s_cbranch_scc1 {name}")

def poll_fail(a, back):
    a(f"s_add_u32 s{sSpin}, s{sSpin}, 1\ns_cmp_gt_u32 s{sSpin}, {HSPIN}\ns_cbranch_scc1 L_end\ns_sleep 4\ns_branch {back}")

def unpack8(a, dst, src):
    for j in range(4):
        a(f"v_lshlrev_b32 v{dst+2*j}, 16, v{src+j}\nv_and_b32 v{dst+2*j+1}, 0xffff0000, v{src+j}")

def pw(a, LR, LI, A2, B2, n, cnt, tmp):
    for j in range(cnt):
        if n is None: a(f"v_exp_f32 v{tmp+j}, v{A2+j}\nv_fract_f32 v{LI+j}, v{B2+j}")
        else: a(f"v_mul_f32 v{tmp+j}, {n}, v{A2+j}\nv_mul_f32 v{LI+j}, {n}, v{B2+j}\nv_exp_f32 v{tmp+j}, v{tmp+j}\nv_fract_f32 v{LI+j}, v{LI+j}")
    for j in range(cnt): a(f"v_cos_f32 v{LR+j}, v{LI+j}\nv_sin_f32 v{LI+j}, v{LI+j}")
    a("s_nop 0")
    for j in range(cnt): a(f"v_mul_f32 v{LR+j}, v{LR+j}, v{tmp+j}\nv_mul_f32 v{LI+j}, v{LI+j}, v{tmp+j}")

def dtprep(a, A2, B2, DT, cnt):
    for j in range(cnt): a(f"v_mul_f32 v{DT+j}, {LOG2E}, v{DT+j}")
    for j in range(cnt): a(f"v_exp_f32 v{DT+j}, v{DT+j}")
    a("s_nop 0")
    for j in range(cnt): a(f"v_cvt_pk_bf16_f32 v{DT+j}, v{DT+j}, v{DT+j}")
    for j in range(cnt): a(f"v_and_b32 v{DT+j}, 0xffff0000, v{DT+j}")
    for j in range(cnt):
        a(f"v_mul_f32 v{A2+j}, v{DT+j}, v{A2+j}\nv_mul_f32 v{B2+j}, v{DT+j}, v{B2+j}")
        a(f"v_mul_f32 v{A2+j}, {LOG2E}, v{A2+j}\nv_mul_f32 v{B2+j}, 0.15915494, v{B2+j}")

def helper_task(a, P):
    DBG = sr(S_DBG, 4)
    a.label('L_h_task')
    t = 32
    a(f"""
    s_lshl_b32 s{sSeg}, s{sB}, 3
    s_add_u32 s{sSeg}, s{sSeg}, s{sW}
    s_lshl_b32 s{sX0}, s{sSeg}, 15
    s_lshl_b32 s{sWo1}, s{sH}, 8
    s_and_b32 s{sA}, s{sW}, 1
    s_lshl_b32 s{sA}, s{sA}, 17
    s_add_u32 s{sWo1}, s{sWo1}, s{sA}
    s_lshl_b32 s{sA}, s{sH}, 14
    s_cmp_ge_u32 s{sW}, 2
    s_cselect_b32 s{sWo2}, s{sA}, s{sWo1}
    s_lshl_b32 s{sSlot}, s{sW}, 12
    s_lshl_b32 s{sWoo}, s{sH}, 17
    s_add_u32 s{sWoo}, s{sWoo}, s{sSlot}
    s_mov_b32 s{sSpin}, 0
    """)
    for st in range(4):
        for g_ in dma_group('p1'):
            for l in g_: a(l)
    a(f"""
    v_bfe_u32 v{t}, v{LANE}, 2, 1
    v_bfe_u32 v{t+1}, v{LANE}, 3, 2
    v_and_b32 v{t+2}, 3, v{LANE}
    v_lshl_add_u32 v{t+3}, v{t+1}, 2, v{t+2}
    v_lshl_add_u32 v{t+3}, v{t}, 4, v{t+3}
    s_lshl_b32 s{sA}, s{sW}, 12
    """)
    xaddr(a, t + 3, f"s{sA}", XA)
    a(f"""
    v_bfe_u32 v{t+4}, v{LANE}, 2, 2             ; r'
    v_bfe_u32 v{t+5}, v{LANE}, 4, 1             ; half
    v_and_b32 v{t+6}, 1, v{LANE}
    v_bfe_u32 v{t+7}, v{LANE}, 1, 1
    v_lshl_add_u32 v{t+8}, v{t+5}, 1, v{t+7}
    v_lshl_add_u32 v{t+8}, v{t+6}, 2, v{t+8}
    v_lshlrev_b32 v{t+8}, 3, v{t+8}
    v_lshl_add_u32 v{t+9}, v{HH}, 3, v{t+4}
    v_lshl_add_u32 v{t+8}, v{t+9}, 8, v{t+8}
    v_lshl_add_u32 v{t+8}, v{t+4}, 6, v{t+8}
    v_add_u32 v{WA}, 16384, v{t+8}
    """)
    for tau in range(1, 4): a(f"v_xor_b32 v{WA+tau}, {64*tau}, v{WA}")
    for i in range(4): a(f"v_xor_b32 v{WOA+i}, {64*i}, v{L16}")
    for i in range(4): a(f"v_mov_b32 v{t+12+i}, -1")
    a(f"""
    s_lshl_b32 s{sA}, s{sSeg}, 18
    s_lshl_b32 s{sA2}, s{sH}, 13
    s_add_u32 s{sA}, s{sA}, s{sA2}
    s_add_u32 s{sA}, s{sA}, {WS_KM}
    """)
    for j in range(2):
        for hf in range(2):
            a(f"s_add_u32 s{sA2}, s{sA}, {j * (4 << 18) + hf * 4096}")
            for k in range(4): a(f"buffer_store_dwordx4 {vr(t+12,4)}, v{L16}, {WS}, s{sA2} offen offset:{1024*k} sc1")
    a(f"""
    s_lshl_b32 s{sA}, s{sB}, 5
    s_add_u32 s{sA}, s{sA}, s{sH}
    s_lshl_b32 s{sA}, s{sA}, 7
    s_add_u32 s{sA}, s{sA}, {WS_A}
    s_mov_b64 exec, 0xff
    buffer_store_dwordx4 {vr(t+12,4)}, v{L16}, {WS}, s{sA} offen sc1
    s_mov_b64 exec, -1
    s_lshl_b32 s{sA}, s{sH}, 2
    s_add_u32 s{sA}, s{sA}, s{sSeg}
    s_lshl_b32 s{sA}, s{sA}, 7
    s_add_u32 s{sA}, s{sA}, {WS_CNT}
    s_cmp_lt_u32 s{sH}, 2
    s_cselect_b32 s{sA}, s{sA}, 0x70000000
    v_mov_b32 v{t+16}, 0
    s_mov_b64 exec, 1
    buffer_store_dword v{t+16}, v{t+16}, {WS}, s{sA} offen sc1
    s_mov_b64 exec, -1
    global_load_dwordx4 {vr(t+20,4)}, v{L16}, {sr(P_GW,2)}
    """)
    for i in range(256): a(f"v_accvgpr_write_b32 a{i}, 0")
    a(f"s_waitcnt vmcnt({24 + 19})\ns_barrier")
    for l in frag_reads(1, 0, 0): a(l)
    stage_loop(a, 'L_h_p1a', 1, 'p1', 12)
    a(f"s_sub_u32 s{sX0}, s{sX0}, 1024\nv_add_u32 v{T}, {H_GW}, v{L16}\nds_write_b128 v{T}, {vr(t+20,4)}")
    stage_loop(a, 'L_h_p1b', 1, 'p2', 4)
    a(f"""
    s_lshl_b32 s{sA3}, s{sSeg}, 19
    s_lshl_b32 s{sA2}, s{sH}, 14
    s_add_u32 s{sA3}, s{sA3}, s{sA2}
    s_add_u32 s{sA3}, s{sA3}, {WS_KV}
    s_waitcnt lgkmcnt(0)
    s_nop 7
    """)
    TM = 240
    for j in range(2):
        for m in range(2):
            for tau in range(4):
                src = 128 * m + 64 * j + 16 * tau; dst = (KF if m == 0 else VF) + 32 * j + 8 * tau
                for r in range(16): a(f"v_accvgpr_read_b32 v{TM+r}, a{src+r}")
                for r in range(8): a(f"v_cvt_pk_bf16_f32 v{dst+r}, v{TM+2*r}, v{TM+2*r+1}")
                a(f"s_add_u32 s{sA}, s{sA3}, {j * (4 << 19) + 4096 * tau}")
                for u in range(2): a(f"buffer_store_dwordx4 {vr(dst+4*u,4)}, v{VKV}, {WS}, s{sA} offen offset:{2048*m + 256*u} sc1")
    for i in range(192): a(f"v_accvgpr_write_b32 a{i}, 0")
    a(f"s_lshl_b32 s{sA}, s{sW}, 12")
    xaddr(a, VN, f"s{sA}", XA)
    a(f"""
    v_bfe_u32 v{TM}, v{LANE}, 2, 1
    v_bfe_u32 v{TM+1}, v{LANE}, 3, 1
    v_and_b32 v{TM+2}, 3, v{LANE}
    v_lshl_add_u32 v{TM+2}, v{TM+1}, 2, v{TM+2}
    v_lshl_add_u32 v{TM+2}, v{TM}, 3, v{TM+2}      ; ch
    v_bfe_u32 v{TM+3}, v{LANE}, 4, 1
    v_lshlrev_b32 v{TM+3}, 12, v{TM+3}
    v_add_u32 v{TM+3}, 24576, v{TM+3}
    v_lshlrev_b32 v{GA}, 4, v{HH}
    v_add_u32 v{GA}, {H_GW}, v{GA}
    """)
    xaddr(a, TM + 2, f"v{TM+3}", BA)
    a(f"""
    s_waitcnt vmcnt(0)
    s_barrier
    s_cmp_lg_u32 s{sW}, 0
    s_cbranch_scc1 L_h_nokvc
    s_lshl_b32 s{sA}, s{sB}, 2
    v_mov_b32 v{T}, 1
    v_mov_b32 v{T+1}, {DBG_KVC}
    s_mov_b64 exec, 1
    buffer_atomic_add v{T}, v{T+1}, {DBG}, s{sA} offen
    s_mov_b64 exec, -1
    """)
    a.label('L_h_nokvc')
    for l in frag_reads(2, 0, 0): a(l)
    stage_loop(a, 'L_h_p2a', 2, 'p2', 12)
    stage_loop(a, 'L_h_p2b', 2, 'wo', 4)
    a("s_waitcnt lgkmcnt(0)\ns_nop 7")
    PK = 128 + 0
    for j in range(2):
        for tau in range(4):
            src = 64 * j + 16 * tau; dst = QF + 32 * j + 8 * tau
            for r in range(16): a(f"v_accvgpr_read_b32 v{TM+r}, a{src+r}")
            for r in range(8): a(f"v_cvt_pk_bf16_f32 v{dst+r}, v{TM+2*r}, v{TM+2*r+1}")
    a(f"""
    v_bfe_u32 v{T}, v{LANE}, 2, 1
    v_bfe_u32 v{T+1}, v{LANE}, 3, 1
    v_and_b32 v{T+2}, 0x13, v{LANE}
    v_lshl_add_u32 v{T+2}, v{T+1}, 2, v{T+2}
    v_lshl_add_u32 v{T+2}, v{T}, 3, v{T+2}
    v_lshlrev_b32 v{T+2}, 10, v{T+2}
    s_lshl_b32 s{sA}, s{sH}, 5
    v_lshl_add_u32 v{T+1}, v{HH}, 4, s{sA}
    v_add_u32 v{T+2}, v{T+2}, v{T+1}
    """)
    for j in range(2):
        for k in range(8):
            D = vr(SS + 16 * j, 16)
            mf(a, D, vr(KF + 32 * j + 4 * k, 4), vr(QF + 32 * j + 4 * k, 4), D if k else 0)
            tile = 8 * j + k
            a(f"global_load_dwordx4 {ar(8*tile,4)}, v{T+2}, {sr(P_CRE,2)}\nglobal_load_dwordx4 {ar(8*tile+4,4)}, v{T+2}, {sr(P_CIM,2)}")
            a(f"v_add_u32 v{T+2}, 32768, v{T+2}")
    RI = 32
    for r in range(32): a(f"v_accvgpr_read_b32 v{RI+r}, a{128+r}")
    a(f"v_accvgpr_read_b32 v{G}, a160\nv_accvgpr_read_b32 v{MX}, a176")
    A2, B2, LR, LI = 64, 72, 80, 88
    a(f"global_load_dwordx4 {vr(LR,4)}, v{T+1}, {sr(P_LRE,2)}\nglobal_load_dwordx4 {vr(LR+4,4)}, v{T+1}, {sr(P_LIM,2)}\nglobal_load_dwordx4 {vr(LI,4)}, v{T+1}, {sr(P_LDT,2)}")
    for r in (G, MX): a(f"v_mul_f32 v{r}, 0xbfb8aa3b, v{r}")
    for r in (G, MX): a(f"v_exp_f32 v{r}, v{r}")
    a("s_nop 0")
    for r in (G, MX): a(f"v_add_f32 v{r}, 1.0, v{r}")
    for r in (G, MX): a(f"v_rcp_f32 v{r}, v{r}")
    a(f"v_lshlrev_b32 v{T}, 4, v{HH}\nv_sub_u32 v{T}, v{VN}, v{T}\nv_mov_b32 v{T+2}, 0xff800000")
    for r in range(16):
        a(f"v_cmp_le_i32 vcc, {r}, v{T}\ns_nop 1")
        for j in range(2): a(f"v_cndmask_b32 v{SS+16*j+r}, v{T+2}, v{SS+16*j+r}, vcc")
    PQ, PV, PS, PH, PG = 128, 160, 192, 208, 216
    for r in range(32): a(f"v_accvgpr_write_b32 a{PQ+r}, v{QF+32+r}\nv_accvgpr_write_b32 a{PV+r}, v{VF+32+r}")
    for r in range(16): a(f"v_accvgpr_write_b32 a{PS+r}, v{SS+16+r}")
    a(f"v_accvgpr_write_b32 a{PG}, v{MX}")
    CA, CB, CD = 192, 193, 194
    a(f"""
    v_and_b32 v{T}, 15, v{LANE}
    s_lshl_b32 s{sA}, s{sH}, 5
    v_lshl_add_u32 v{T+2}, v{T}, 1, s{sA}
    global_load_ushort v{CA}, v{T+2}, {sr(P_LRE,2)}
    global_load_ushort v{CB}, v{T+2}, {sr(P_LIM,2)}
    global_load_ushort v{CD}, v{T+2}, {sr(P_LDT,2)}
    s_waitcnt vmcnt(0)
    """)
    TT, LE, LM = 128, 136, 144
    unpack8(a, LE, LR); unpack8(a, LM, LR + 4); unpack8(a, TT, LI)
    for j in range(8): a(f"v_mov_b32 v{A2+j}, v{LE+j}\nv_mov_b32 v{B2+j}, v{LM+j}")
    dtprep(a, A2, B2, TT, 8)
    pw(a, LR, LI, A2, B2, None, 8, TT)
    for j in range(8):
        a(f"""
        v_mul_f32 v{TT}, v{LE+j}, v{LE+j}
        v_fmac_f32 v{TT}, v{LM+j}, v{LM+j}
        v_rcp_f32 v{TT}, v{TT}
        v_add_f32 v{TT+1}, -1.0, v{LR+j}
        v_mul_f32 v{TT+2}, v{TT+1}, v{LE+j}
        v_fmac_f32 v{TT+2}, v{LI+j}, v{LM+j}
        v_mul_f32 v{TT+3}, v{LI+j}, v{LE+j}
        v_fma_f32 v{TT+3}, -v{TT+1}, v{LM+j}, v{TT+3}
        v_mul_f32 v{LE+j}, v{TT+2}, v{TT}
        v_mul_f32 v{LM+j}, v{TT+3}, v{TT}
        """)
    for d in (1, 2, 4, 8):
        dp = f"row_shr:{d} row_mask:0xf bank_mask:0xf bound_ctrl:1"
        for j in range(2):
            R, I = RI + 16 * j, RI + 16 * j + 8
            for c in range(8): a(f"v_mov_b32 v{TT+c}, v{R+c}")
            for c in range(8): a(f"v_fmac_f32_dpp v{R+c}, v{R+c}, v{LR+c} {dp}")
            for c in range(8): a(f"v_fmac_f32_dpp v{R+c}, -v{I+c}, v{LI+c} {dp}")
            for c in range(8): a(f"v_fmac_f32_dpp v{I+c}, v{I+c}, v{LR+c} {dp}")
            for c in range(8): a(f"v_fmac_f32_dpp v{I+c}, v{TT+c}, v{LI+c} {dp}")
        if d < 8:
            for c in range(8):
                a(f"v_mul_f32 v{TT}, v{LI+c}, v{LI+c}\nv_add_f32 v{TT+1}, v{LR+c}, v{LR+c}\nv_fma_f32 v{LR+c}, v{LR+c}, v{LR+c}, -v{TT}\nv_mul_f32 v{LI+c}, v{TT+1}, v{LI+c}")
    a(f"v_and_b32 v{T+2}, 15, v{LANE}\nv_add_u32 v{T+2}, 1, v{T+2}\nv_cvt_f32_u32 v{T+2}, v{T+2}")
    pw(a, LR, LI, A2, B2, f"v{T+2}", 8, TT)
    dp = "row_bcast:15 row_mask:0xa bank_mask:0xf"
    for j in range(2):
        R, I = RI + 16 * j, RI + 16 * j + 8
        for c in range(8): a(f"v_fmac_f32_dpp v{R+c}, v{R+c}, v{LR+c} {dp}")
        for c in range(8): a(f"v_fmac_f32_dpp v{R+c}, -v{I+c}, v{LI+c} {dp}")
        for c in range(8): a(f"v_fmac_f32_dpp v{I+c}, v{I+c}, v{LR+c} {dp}")
        for c in range(8): a(f"v_fmac_f32_dpp v{I+c}, v{R+c}, v{LI+c} {dp}")
    a(f"""
    s_lshl_b32 s{sA}, s{sW}, 7
    s_add_u32 s{sA}, s{sA}, {H_E}
    v_lshl_add_u32 v{T+2}, v{HH}, 5, s{sA}
    s_mov_b32 exec_lo, 0x80000000
    s_mov_b32 exec_hi, 0x80000000
    """)
    for j in range(2):
        for q in range(4): a(f"ds_write_b128 v{T+2}, {vr(RI + 16*j + 4*q, 4)} offset:{512*j + 64*(q>>1) + 16*(q&1)}")
    a("s_mov_b64 exec, -1")
    a(f"v_lshlrev_b32 v{CA}, 16, v{CA}\nv_lshlrev_b32 v{CB}, 16, v{CB}\nv_lshlrev_b32 v{CD}, 16, v{CD}")
    dtprep(a, CA, CB, CD, 1)
    U, W_ = 196, 198
    pw(a, U, U + 1, CA, CB, "0x42000000", 1, CD)
    pw(a, W_, W_ + 1, CA, CB, "0x43800000", 1, CD)
    a(f"v_add_u32 v{T+2}, 1, v{VN}\nv_cvt_f32_u32 v{T+2}, v{T+2}")
    pw(a, LR, LI, A2, B2, f"v{T+2}", 8, TT)
    EE = 200
    a(f"v_lshlrev_b32 v{T}, 2, v{T}\nv_add_u32 v{T+2}, {H_E}, v{T}\ns_waitcnt lgkmcnt(0)\ns_barrier")
    for s_ in range(8): a(f"ds_read2_b32 {vr(EE+2*s_,2)}, v{T+2} offset0:{32*s_} offset1:{32*s_+16}")
    AC_ = 216
    def cmac(M_, Er):
        a(f"""
        v_fma_f32 v{AC_+2}, v{M_}, v{AC_}, v{Er}
        v_fma_f32 v{AC_+3}, v{M_}, v{AC_+1}, v{Er+1}
        v_fma_f32 v{AC_+2}, -v{M_+1}, v{AC_+1}, v{AC_+2}
        v_fma_f32 v{AC_+1}, v{M_+1}, v{AC_}, v{AC_+3}
        v_mov_b32 v{AC_}, v{AC_+2}
        """)
    a(f"s_waitcnt lgkmcnt(0)\nv_mov_b32 v{AC_}, v{EE}\nv_mov_b32 v{AC_+1}, v{EE+1}")
    for s_ in range(1, 8): cmac(U, EE + 2 * s_)
    a(f"""
    v_min_u32 v{AC_}, -2, v{AC_}
    v_min_u32 v{AC_+1}, -2, v{AC_+1}
    v_lshlrev_b32 v{T+1}, 1, v{T}
    s_lshl_b32 s{sA3}, s{sH}, 7
    s_add_u32 s{sA3}, s{sA3}, {WS_A}
    s_lshl_b32 s{sA}, s{sB}, 12
    s_add_u32 s{sA}, s{sA}, s{sA3}
    s_cmp_eq_u32 s{sW}, 0
    s_cselect_b32 s{sA}, s{sA}, 0x70000000
    buffer_store_dwordx2 {vr(AC_,2)}, v{T+1}, {WS}, s{sA} offen sc1
    v_and_b32 v{T+2}, 7, v{LANE}
    v_cmp_gt_u32 {sr(sM,2)}, s{sB}, v{T+2}
    v_lshlrev_b32 v{T+2}, 2, v{T+2}
    v_mov_b32 v{AC_}, 0
    v_mov_b32 v{AC_+1}, 0
    s_mov_b32 s{sCnt}, 0
    """)
    a.label('L_h_wk')
    a(f"""
    buffer_load_dword v{AC_+2}, v{T+2}, {DBG}, 0 offen offset:{DBG_KVC} sc1
    s_waitcnt vmcnt(0)
    v_cmp_gt_u32 vcc, 32, v{AC_+2}
    s_and_b64 vcc, vcc, {sr(sM,2)}
    s_cbranch_vccz L_h_wa
    """)
    poll_fail(a, 'L_h_wk')
    a.label('L_h_wa')
    a(f"""
    s_cmp_ge_u32 s{sCnt}, s{sB}
    s_cbranch_scc1 L_h_wd
    buffer_load_dwordx2 {vr(220,2)}, v{T+1}, {WS}, s{sA3} offen sc1
    s_waitcnt vmcnt(0)
    v_max_u32 v{AC_+2}, v220, v221
    v_cmp_eq_u32 vcc, -1, v{AC_+2}
    s_cbranch_vccz L_h_wb
    """)
    poll_fail(a, 'L_h_wa')
    a.label('L_h_wb')
    cmac(W_, 220)
    a(f"s_add_u32 s{sCnt}, s{sCnt}, 1\ns_add_u32 s{sA3}, s{sA3}, 4096\ns_branch L_h_wa")
    a.label('L_h_wd')
    a(f"s_lshl_b32 s{sA}, s{sW}, 10\ns_add_u32 s{sA}, s{sA}, {H_C}\nv_add_u32 v{T+2}, s{sA}, v{T}")
    for s_ in range(8):
        a(f"ds_write2_b32 v{T+2}, v{AC_}, v{AC_+1} offset0:{32*s_} offset1:{32*s_+16}")
        if s_ < 7: cmac(U, EE + 2 * s_)
    a(f"""
    s_lshl_b32 s{sA2}, s{sW}, 7
    s_add_u32 s{sA}, s{sA}, s{sA2}
    v_lshl_add_u32 v{T+2}, v{HH}, 5, s{sA}
    s_waitcnt lgkmcnt(0)
    """)
    CC = 192
    for j in range(2):
        for q in range(4): a(f"ds_read_b128 {vr(CC + 16*j + 4*q, 4)}, v{T+2} offset:{512*j + 64*(q>>1) + 16*(q&1)}")
    a(f"v_add_f32 v{T}, v{G}, v{G}\nv_add_f32 v{T+1}, v{MX}, v{MX}\ns_waitcnt lgkmcnt(0)")
    for j in range(2):
        R, I, cr, ci = RI + 16 * j, RI + 16 * j + 8, CC + 16 * j, CC + 16 * j + 8
        for c in range(8):
            a(f"""
            v_fmac_f32 v{R+c}, v{LR+c}, v{cr+c}
            v_fmac_f32 v{I+c}, v{LR+c}, v{ci+c}
            v_fma_f32 v{R+c}, -v{LI+c}, v{ci+c}, v{R+c}
            v_fmac_f32 v{I+c}, v{LI+c}, v{cr+c}
            v_mul_f32 v{cr+c}, v{R+c}, v{LE+c}
            v_mul_f32 v{ci+c}, v{R+c}, v{LM+c}
            v_fma_f32 v{cr+c}, -v{I+c}, v{LM+c}, v{cr+c}
            v_fmac_f32 v{ci+c}, v{I+c}, v{LE+c}
            v_mul_f32 v{cr+c}, v{cr+c}, v{T+j}
            v_mul_f32_e64 v{ci+c}, -v{ci+c}, v{T+j}
            """)
        for r in range(8): a(f"v_cvt_pk_bf16_f32 v{HF+8*j+r}, v{cr+2*r}, v{cr+2*r+1}")
    for r in range(8): a(f"v_accvgpr_write_b32 a{PH+r}, v{HF+8+r}")
    a(f"""
    v_bfe_u32 v{t+4}, v{LANE}, 2, 2
    v_bfe_u32 v{t+5}, v{LANE}, 4, 1
    v_and_b32 v{t+6}, 1, v{LANE}
    v_bfe_u32 v{t+7}, v{LANE}, 1, 1
    v_lshl_add_u32 v{t+8}, v{t+6}, 1, v{t+7}
    v_lshl_add_u32 v{t+8}, v{t+5}, 2, v{t+8}
    v_lshlrev_b32 v{t+8}, 3, v{t+8}
    v_lshl_add_u32 v{t+9}, v{HH}, 4, v{t+4}
    v_lshl_add_u32 v{t+8}, v{t+9}, 10, v{t+8}
    v_lshl_add_u32 v{WOA}, v{t+4}, 6, v{t+8}
    """)
    for tt in range(1, 4): a(f"v_xor_b32 v{WOA+tt}, {64*tt}, v{WOA}")
    for tt in range(4): a(f"v_add_u32 v{WOA+4+tt}, 0x10000, v{WOA+tt}")
    a(f"s_mov_b32 s{sJ}, 0")
    a.label('L_h_seg')
    KMF, VMF, SM, PX, PM, OA_ = 32, 64, 80, 248, 128, 192
    a(f"v_max3_f32 v{MX}, v{SS}, v{SS+1}, v{SS+2}")
    for r in range(3, 15, 2): a(f"v_max3_f32 v{MX}, v{MX}, v{SS+r}, v{SS+r+1}")
    a(f"""
    v_max_f32 v{MX}, v{MX}, v{SS+15}
    s_lshl_b32 s{sA}, s{sSeg}, 18
    s_lshl_b32 s{sA2}, s{sH}, 13
    s_add_u32 s{sA}, s{sA}, s{sA2}
    s_add_u32 s{sA}, s{sA}, {WS_KM}
    s_add_u32 s{sA2}, s{sA}, 4096
    s_mov_b32 s{sA4}, 0x3e0293ee
    v_mov_b32 v{T+1}, 1024
    """)
    a.label('L_h_pr')
    a(f"""
    buffer_load_dword v{T}, v{T+1}, {WS}, s{sA} offen sc1
    s_waitcnt vmcnt(0)
    v_cmp_eq_u32 vcc, -1, v{T}
    s_cbranch_vccz L_h_ld
    """)
    a.label('L_h_pf')
    poll_fail(a, 'L_h_pr')
    a.label('L_h_ld')
    for tau in range(4):
        S_ = sA if tau < 2 else sA2
        for u in range(2): a(f"buffer_load_dwordx4 {vr(KMF + 8*tau + 4*u, 4)}, v{VKM}, {WS}, s{S_} offen offset:{2048*(tau&1) + 256*u} sc1")
    for tau in range(4):
        S_ = sA if tau < 2 else sA2
        for u in range(2): a(f"buffer_load_dwordx2 {vr(VMF + 4*tau + 2*u, 2)}, v{VVM}, {WS}, s{S_} offen offset:{2048*(tau&1) + 512*u} sc1")
    a("s_waitcnt vmcnt(0)")
    ck = [f"v_max3_u32 v{T}, v{KMF}, v{KMF+1}, v{KMF+2}"] + [f"v_max3_u32 v{T}, v{T}, v{KMF+r}, v{KMF+r+1}" for r in range(3, 47, 2)] + [f"v_max_u32 v{T}, v{T}, v{KMF+47}", f"v_cmp_eq_u32 vcc, -1, v{T}"]
    for k in range(8):
        mf(a, vr(SM, 16), vr(KMF + 4 * k, 4), vr(QF + 4 * k, 4), vr(SM, 16) if k else 0)
        for _ in range(4):
            if ck: a(ck.pop(0))
    assert not ck
    a("s_cbranch_vccnz L_h_pf\ns_nop 11")
    a(f"""
    v_max3_f32 v{T}, v{MX}, v{SM}, v{SM+1}
    v_max3_f32 v{T}, v{T}, v{SM+2}, v{SM+3}
    v_mov_b32 v{T+1}, v{T}
    s_nop 1
    v_permlane32_swap_b32 v{T}, v{T+1}
    v_max_f32 v{T}, v{T}, v{T+1}
    v_mul_f32 v{T}, s{sA4}, v{T}
    """)
    ev = [SM + r for r in range(4)] + [SS + r for r in range(16)]
    for r in ev: a(f"v_fma_f32 v{r}, v{r}, s{sA4}, -v{T}")
    for r in ev: a(f"v_exp_f32 v{r}, v{r}")
    a(f"v_cvt_pk_bf16_f32 v{PM}, v{SM}, v{SM+1}\nv_cvt_pk_bf16_f32 v{PM+1}, v{SM}, v{SM+1}\nv_cvt_pk_bf16_f32 v{PM+2}, v{SM+2}, v{SM+3}\nv_cvt_pk_bf16_f32 v{PM+3}, v{SM+2}, v{SM+3}")
    for r in range(8): a(f"v_cvt_pk_bf16_f32 v{PX+r}, v{SS+2*r}, v{SS+2*r+1}")
    sm = [f"v_add_f32 v{T}, v{ev[0]}, v{ev[1]}"] + [f"v_add_f32 v{T}, v{T}, v{r}" for r in ev[2:]]
    sm += [f"v_mov_b32 v{T+1}, v{T}", f"v_sub_f32 v{T+2}, 1.0, v{G}", "s_nop 0", f"v_permlane32_swap_b32 v{T}, v{T+1}", f"v_add_f32 v{T}, v{T}, v{T+1}",
           f"v_rcp_f32 v{T}, v{T}", "s_nop 0", f"v_mul_f32 v{T}, v{T}, v{T+2}"]
    WF = 32
    wrd = lambda tile: [f"ds_read_b64_tr_b16 {vr(WF + 32*(tile&1) + 4*k + 2*pp, 2)}, v{WOA + 4*(k>>2) + (tile&3)} offset:{(32*((k>>1)&1) + 8*(k&1) + 4*pp)*1024 + 256*(tile>>2)}"
                        for k in range(8) for pp in range(2)]
    rd = wrd(0)
    OB = [192, 208, 132, 148]
    OB = [192, 208, 132, 80]
    def onorm(tau):
        L_ = [f"v_mul_f32 v{OB[tau]+r}, v{OB[tau]+r}, v{T}" for r in range(16)]
        L_ += [f"v_cvt_pk_bf16_f32 v{QF+8*tau+r}, v{OB[tau]+2*r}, v{OB[tau]+2*r+1}" for r in range(8)]
        return L_
    n = 0
    for tau in range(4):
        D = vr(OB[tau], 16)
        for k in range(3):
            if k == 0: mf(a, D, vr(VMF + 4 * tau, 4), vr(PM, 4), 0)
            else: mf(a, D, vr(VF + 8 * tau + 4 * (k - 1), 4), vr(PX + 4 * (k - 1), 4), D)
            for _ in range(2):
                if rd: a(rd.pop(0))
            if n == 6: sm += onorm(0)
            if n == 9: sm += onorm(1)
            for _ in range(6):
                if sm: a(sm.pop(0))
            n += 1
    for l in sm + onorm(2) + onorm(3): a(l)
    a(f"""
    s_lshl_b32 s{sA}, s{sSeg}, 20
    s_lshl_b32 s{sA2}, s{sH}, 10
    s_add_u32 s{sA}, s{sA}, s{sA2}
    s_add_u32 s{sA}, s{sA}, {WS_PART}
    """)
    CT = 128
    def epi(tile):
        D = 192 + 16 * (tile & 1); c = CT + 8 * (tile & 1)
        L_ = []
        for u in range(2):
            L_ += [f"v_cvt_pk_bf16_f32 v{c+4*u+r}, v{D+8*u+2*r}, v{D+8*u+2*r+1}" for r in range(4)]
        for u in range(2):
            L_ += [f"buffer_store_dwordx4 {vr(c+4*u,4)}, v{L16}, {WS}, s{sA} offen sc1\ns_add_u32 s{sA}, s{sA}, 32768"]
        return L_
    for tile in range(16):
        D = vr(192 + 16 * (tile & 1), 16)
        rd = wrd(tile + 1) if tile < 15 else []
        ep = epi(tile - 1) if tile else []
        for k in range(10):
            if k == 2: a("s_waitcnt lgkmcnt(0)")
            if k < 2: mf(a, D, ar(8 * tile + 4 * k, 4), vr(HF + 4 * k, 4), D if k else 0)
            else: mf(a, D, vr(WF + 32 * (tile & 1) + 4 * (k - 2), 4), vr(QF + 4 * (k - 2), 4), D)
            if k >= 2:
                for _ in range(2):
                    if rd: a(rd.pop(0))
            if ep and k >= 6 and len(ep) <= 2: a(ep.pop(0))
            elif ep and k >= 1 and len(ep) > 2:
                a(ep.pop(0)); a(ep.pop(0))
        assert not ep and not rd
    a("s_nop 12")
    for l in epi(15): a(l)
    SELR, XS, DS_ = 216, 208, 212
    a(f"""
    s_lshl_b32 s{sA3}, s{sSeg}, 15
    s_lshl_b32 s{sA2}, s{sH}, 5
    s_add_u32 s{sA3}, s{sA3}, s{sA2}
    v_lshlrev_b32 v{T+1}, 4, v{HH}
    v_lshl_add_u32 v{T+2}, v{VN}, 10, v{T+1}
    v_add_u32 v{T+1}, s{sA2}, v{T+1}
    s_lshl_b32 s{sA4}, s{sSeg}, 7
    s_add_u32 s{sA4}, s{sA4}, {WS_CNT}
    v_mov_b32 v220, 1
    v_mov_b32 v221, 0
    s_waitcnt vmcnt(0)
    s_mov_b64 exec, 1
    buffer_atomic_add v220, v221, {WS}, s{sA4} offen
    s_mov_b64 exec, -1
    buffer_load_dwordx4 {vr(XS,4)}, v{T+2}, {sr(S_X,4)}, s{sA3} offen
    global_load_dwordx4 {vr(DS_,4)}, v{T+1}, {sr(P_DSK,2)}
    v_bfe_u32 v{t}, v{LANE}, 2, 1
    v_bfe_u32 v{t+1}, v{LANE}, 3, 2
    v_and_b32 v{t+2}, 3, v{LANE}
    v_lshl_add_u32 v{t+1}, v{t+1}, 2, v{t+2}
    v_cmp_eq_u32 vcc, v{t}, v{HH}
    v_mov_b32 v{t+3}, 64
    s_mov_b32 s{sA2}, 0x3f80
    v_cndmask_b32 v{t+1}, v{t+3}, v{t+1}, vcc
    v_and_b32 v{t+2}, 1, v{t+1}
    v_lshlrev_b32 v{t+2}, 4, v{t+2}
    v_lshlrev_b32 v{t+2}, v{t+2}, s{sA2}
    v_lshrrev_b32 v{t+1}, 1, v{t+1}
    """)
    for d in range(4): a(f"v_cmp_eq_u32 vcc, {d}, v{t+1}\ns_nop 1\nv_cndmask_b32 v{SELR+d}, 0, v{t+2}, vcc")
    a(f"""
    s_lshl_b32 s{sA}, s{sSeg}, 20
    s_lshl_b32 s{sA2}, s{sH}, 15
    s_add_u32 s{sA}, s{sA}, s{sA2}
    s_add_u32 s{sA}, s{sA}, {WS_PART}
    s_lshl_b32 s{sA3}, s{sA3}, 1
    v_lshlrev_b32 v{T+2}, 1, v{T+2}
    s_waitcnt vmcnt(0)
    """)
    XU, DU = 224, 232
    unpack8(a, XU, XS); unpack8(a, DU, DS_)
    for r in range(8): a(f"v_mul_f32 v{XU+r}, v{XU+r}, v{DU+r}")
    a.label('L_h_wc')
    a(f"""
    buffer_load_dword v220, v221, {WS}, s{sA4} offen sc1
    s_waitcnt vmcnt(0)
    v_cmp_gt_u32 vcc, 32, v220
    s_cbranch_vccz L_h_rd
    """)
    poll_fail(a, 'L_h_wc')
    a.label('L_h_rd')
    for k in range(32):
        a(f"buffer_load_dwordx4 {vr(32+4*k,4)}, v{L16}, {WS}, s{sA} offen offset:{1024*(k&3)} sc1")
        if k & 3 == 3: a(f"s_add_u32 s{sA}, s{sA}, 4096")
    for k in range(32):
        a(f"s_waitcnt vmcnt({31-k})")
        mf(a, vr(192, 16), vr(SELR, 4), vr(32 + 4 * k, 4), vr(192, 16) if k else 0)
    a("s_nop 12")
    for r in range(8): a(f"v_fmac_f32 v{192+r}, v{XU+r}, v{G}")
    a(f"""
    buffer_store_dwordx4 v[192:195], v{T+2}, {sr(S_OUT,4)}, s{sA3} offen
    buffer_store_dwordx4 v[196:199], v{T+2}, {sr(S_OUT,4)}, s{sA3} offen offset:16
    s_cmp_lg_u32 s{sJ}, 0
    s_cbranch_scc1 L_h_done
    s_mov_b32 s{sJ}, 1
    s_add_u32 s{sSeg}, s{sSeg}, 4
    """)
    for r in range(32): a(f"v_accvgpr_read_b32 v{QF+r}, a{PQ+r}\nv_accvgpr_read_b32 v{VF+r}, a{PV+r}")
    for r in range(16): a(f"v_accvgpr_read_b32 v{SS+r}, a{PS+r}")
    for r in range(8): a(f"v_accvgpr_read_b32 v{HF+r}, a{PH+r}")
    a(f"v_accvgpr_read_b32 v{G}, a{PG}\ns_branch L_h_seg")
    a.label('L_h_done')
    a(f"""
    s_cmp_lg_u32 s{sB}, 0
    s_cbranch_scc1 L_end
    s_mov_b32 s{sB}, 7
    s_waitcnt vmcnt(0)
    s_barrier
    s_branch L_h_task
    """)

if __name__ == '__main__':
    a = Asm(); h_once(a); helper_task(a, {})
    errs, ins = check(a.lines, 'helper')
    for e in errs: print(e)
    print(len(ins), ins[-1]['t'])
```

```python
import sys, json
from asmlib import *
import chain, helper
from chain import *
KNAME = 'gated_mix__ssm_conv_s5__memory_aug_recurrent_mem_tr__prompt_kernel'
L_EL = 163840 - 16

def build_kernel(P):
    a = Asm()
    DBG = sr(S_DBG, 4)
    a("s_cmp_ge_u32 s2, 256\ns_cbranch_scc1 L_end")
    srd(a, S_WS, 152, WS_SIZE); srd(a, S_DBG, 144, 256)
    if P.get('stat'): a("s_memtime s[96:97]\ns_memrealtime s[98:99]")
    a("s_getpc_b64 s[60:61]\nv_lshlrev_b32 v1, 7, v0\nv_min_u32 v1, CODE_LAST, v1\nglobal_load_dword v2, v1, s[60:61]\nv_add_u32 v1, 0x8000, v1\nv_min_u32 v1, CODE_LAST, v1\nglobal_load_dword v2, v1, s[60:61]")
    a(f"""
    s_getreg_b32 s{sT}, hwreg(HW_REG_XCC_ID, 0, 3)
    v_mov_b32 v3, {L_EL}
    v_cmp_eq_u32 vcc, 0, v0
    s_waitcnt lgkmcnt(0)
    s_and_saveexec_b64 s[62:63], vcc
    s_cbranch_execz L_el_done
    s_lshl_b32 s{sT+1}, s{sT}, 2
    v_mov_b32 v4, 1
    buffer_atomic_add v4, off, {DBG}, s{sT+1} sc0
    s_mov_b32 s{sSPIN}, 0
    s_waitcnt vmcnt(0)
    v_readfirstlane_b32 s{sT+2}, v4
    s_cmp_lg_u32 s{sT+2}, 31
    s_cbranch_scc1 L_el_wait
    s_add_u32 s{sT+3}, s{sT}, 1
    v_mov_b32 v4, s{sT+3}
    v_mov_b32 v5, 0
    buffer_atomic_cmpswap v[4:5], off, {DBG}, 0 offset:{DBG_WIN}
    """)
    a.label('L_el_wait')
    a(f"""
    buffer_load_dword v4, off, {DBG}, 0 offset:{DBG_WIN} sc1
    s_add_u32 s{sSPIN}, s{sSPIN}, 1
    s_waitcnt vmcnt(0)
    v_readfirstlane_b32 s{sT+3}, v4
    s_cmp_gt_u32 s{sSPIN}, {SPIN_MAX}
    s_cselect_b32 s{sT+3}, 1, s{sT+3}
    s_cmp_eq_u32 s{sT+3}, 0
    s_cbranch_scc1 L_el_wait
    s_sub_u32 s{sT+3}, s{sT+3}, 1
    s_mov_b32 s{sSPIN}, 0
    """)
    a.label('L_el_ovf')
    a(f"""
    s_cmp_lt_u32 s{sT+2}, 32
    s_cbranch_scc1 L_el_role
    s_add_u32 s{sT}, s{sT}, 1
    s_and_b32 s{sT}, s{sT}, 7
    s_lshl_b32 s{sT+1}, s{sT}, 2
    v_mov_b32 v4, 1
    buffer_atomic_add v4, off, {DBG}, s{sT+1} sc0
    s_add_u32 s{sSPIN}, s{sSPIN}, 1
    s_waitcnt vmcnt(0)
    v_readfirstlane_b32 s{sT+2}, v4
    s_cmp_lt_u32 s{sSPIN}, 8
    s_cbranch_scc1 L_el_ovf
    s_mov_b32 s{sT+4}, 0x200
    s_branch L_el_pub
    """)
    a.label('L_el_role')
    a(f"""
    s_or_b32 s{sT+4}, s{sT+2}, 0x100
    s_cmp_eq_u32 s{sT}, s{sT+3}
    s_cbranch_scc1 L_el_pub
    s_cmp_gt_u32 s{sT}, s{sT+3}
    s_cselect_b32 s{sT+1}, 1, 0
    s_sub_u32 s{sT+1}, s{sT}, s{sT+1}
    s_lshl_b32 s{sT+1}, s{sT+1}, 5
    s_add_u32 s{sT+4}, s{sT+1}, s{sT+2}
    """)
    a.label('L_el_pub')
    a(f"v_mov_b32 v4, s{sT+4}\nds_write_b32 v3, v4\ns_waitcnt lgkmcnt(0)")
    a.label('L_el_done')
    a(f"""
    s_mov_b64 exec, s[62:63]
    s_barrier
    ds_read_b32 v4, v3
    s_waitcnt vmcnt(0) lgkmcnt(0)
    v_readfirstlane_b32 s{sT}, v4
    s_barrier
    s_cmp_ge_u32 s{sT}, 0x200
    s_cbranch_scc1 L_end
    s_cmp_ge_u32 s{sT}, 0x100
    s_cbranch_scc1 L_chain
    s_mul_i32 s{sH}, s{sT}, 9363
    s_lshr_b32 s{sH}, s{sH}, 16
    s_mul_i32 s{sT+1}, s{sH}, 7
    s_sub_u32 s{helper.sB}, s{sT}, s{sT+1}
    """)
    errs, _ = check(a.lines, 'el')
    n0 = len(a.lines)
    helper.h_once(a); helper.helper_task(a, P)
    e, _ = check(a.lines[n0:], 'helper'); errs += e
    a.label('L_chain')
    n0 = len(a.lines)
    a(f"s_and_b32 s{sH}, s{sT}, 31")
    srd(a, S_WQ, 88, 4194304); srd(a, S_WK, 96, 4194304); srd(a, S_WV, 104, 4194304); srd(a, S_WO, 112, 4194304); srd(a, S_M0, 80, 8192)
    if P.get('stat'):
        for r in [70, 71] + list(range(88, 96)): a(f"s_mov_b32 s{r}, 0")
        a("s_memtime s[60:61]")
    a.lg = []; a.vm = []
    chain_setup(a)
    a("s_waitcnt lgkmcnt(0)")
    chain_prologue(a, P)
    if P.get('stat'): a("s_memtime s[64:65]\ns_waitcnt lgkmcnt(0)")
    for w in range(3): a(f"s_cmp_eq_u32 s{sW}, {w}\ns_cbranch_scc1 L_step_{w}")
    a("s_branch L_step_3")
    e, _ = check(a.lines[n0:], 'cpro'); errs += e
    for w in range(4):
        a(".p2align 6")
        n0 = len(a.lines)
        n1, _ = chain_step(a, P, w)
        e, ins = check(a.lines[n0:n1] * 2, f'loop{w}'); errs += e
        e, _ = check(a.lines[n1:], f'retry{w}'); errs += e
    a.label('L_last')
    a(f"buffer_store_dwordx4 {vr(V0,4)}, v{L16}, {sr(S_WS,4)}, s{sKM} offen offset:1024 sc1")
    a.label('L_exit')
    if P.get('stat'):
        a(f"""
        s_memtime s[66:67]
        s_waitcnt lgkmcnt(0)
        s_sub_u32 s88, s66, s96
        s_sub_u32 s66, s66, s68
        s_sub_u32 s64, s64, s96
        s_sub_u32 s95, s60, s96
        s_nop 7
        v_mov_b32 v24, s64
        v_mov_b32 v25, s66
        v_mov_b32 v26, s70
        v_mov_b32 v27, s71
        s_lshl_b32 s{sT}, s{sH}, 2
        s_add_u32 s{sT}, s{sT}, s{sW}
        s_lshl_b32 s{sT}, s{sT}, 6
        s_add_u32 s{sT}, s{sT}, {WS_STAMP}
        v_mov_b32 v28, 0
        buffer_store_dwordx4 v[24:27], v28, {sr(S_WS,4)}, s{sT} offen
        """)
        for k in range(8): a(f"v_mov_b32 v{32+k}, s{88+k}")
        a(f"buffer_store_dwordx4 v[32:35], v28, {sr(S_WS,4)}, s{sT} offen offset:16\nbuffer_store_dwordx4 v[36:39], v28, {sr(S_WS,4)}, s{sT} offen offset:32")
    a.label('L_end')
    return a, errs

def full_text(P):
    a, errs = build_kernel(P)
    ref = open('gated_mix__ssm_conv_s5__memory_aug_recurrent_mem_tr__prompt.s.ref').read()
    head = ref[:ref.index('; @launch')]
    txt = head + f"""; @launch grid=(256,1,1) block=(256,1,1) lds=163840
.amdgcn_target "amdgcn-amd-amdhsa--gfx950"
.text
.globl {KNAME}
.p2align 8
.type {KNAME},@function
{KNAME}:
.set CODE_LAST, (L_end - {KNAME} - 128)
{a.text()}    s_endpgm
.section .rodata,"a"
.p2align 6
.amdhsa_kernel {KNAME}
  .amdhsa_next_free_vgpr 512
  .amdhsa_next_free_sgpr 102
  .amdhsa_accum_offset 256
  .amdhsa_group_segment_fixed_size 0
  .amdhsa_kernarg_size 160
  .amdhsa_user_sgpr_count 2
  .amdhsa_user_sgpr_kernarg_segment_ptr 1
  .amdhsa_system_sgpr_workgroup_id_x 1
  .amdhsa_float_denorm_mode_32 3
.end_amdhsa_kernel
"""
    return txt, errs

if __name__ == '__main__':
    P = json.loads(sys.argv[2]) if len(sys.argv) > 2 else {}
    txt, errs = full_text(P)
    for e in errs: print('HAZ', e)
    out = sys.argv[1] if len(sys.argv) > 1 else 'gated_mix__ssm_conv_s5__memory_aug_recurrent_mem_tr__prompt.s'
    open(out, 'w').write(txt)
    print('wrote', out, len(txt))
```

```python
from asmlib import *

WS_KV = 0
WS_KM = 32 << 20
WS_H1 = 48 << 20
WS_IMG = WS_H1 + (512 << 10)
WS_FL = WS_IMG + (64 << 10)
WS_DUMMY = WS_IMG + (128 << 10)
WS_STAMP = 49 << 20
WS_SIZE = 268435456
DBG_XCNT = 0
DBG_CBAR = 4
DBG_KV0 = 12
DBG_KVC = 16
DBG_GO = 252
L_MEM, L_S, L_KV, L_W = 0, 8192, 16384, 32768
L_O = L_MEM
L_SM = L_S + 1024
L_MISC = L_S + 5120
S_WS, S_WQ, S_WK, S_WV, S_WO, S_DBG, S_M0 = 4, 8, 12, 16, 20, 24, 28
sH, sW, sS = 32, 33, 34
sKV, sKM, sH1l, sTAG, sIMl = 35, 36, 37, 38, 39
sH1 = 40
sIMw, sIMr, sFL, sSPIN = 44, 45, 46, 47
sIML, sKMv = 59, 58
sC = 48
sT = 50
IDX, L16, A_W, A_SMW, NEG1, A_O, A_H1S, A_IMS = 0, 1, 2, 3, 4, 5, 6, 7
A_OW, FLV, HZ = 8, 9, 10
F, SEL, ONE = 12, 16, 20
MA = 24
Q0, K0, Q1, K1, V0, V1 = 56, 60, 64, 68, 72, 76
KX, VX, ST = 80, 88, 96
RW = 128
SPIN_MAX = 200000

QK_A = {1: 0, 2: 1, 3: 2, 5: 3, 6: 4, 7: 5}
def wqk_reg(sig, u):
    if sig in (0, 4): return ('v', ST + 8 * u)
    return ('a', 32 * QK_A[sig] + 8 * u)
def wv_reg(sig, tau):
    if sig < 4: return ('a', 192 + 8 * (2 * sig + tau))
    return ('v', RW + 8 * (2 * (sig - 4) + tau))
def wo_reg(T, k2):
    if T < 2: return ('v', RW + 64 + 8 * (4 * T + k2))
    return ('v', (ST if T == 2 else MA) + 8 * k2)
def R8(r): return vr(r[1], 8, r[0])
def smf(a, D, A, B): a(f"v_smfmac_f32_16x16x64_bf16 {vr(D,4)}, {vr(A,4)}, {R8(B)}, v{IDX}")
def lw_qk(sig, u): return 8192 * (sig >> 2) + 4096 * (u & 1) + 2048 * (u >> 1)
def lw_wo(T, k2): return 16384 + 2048 * (4 * (T - 2) + k2)
def nops(a, n):
    while n > 0:
        k = min(n, 16); a(f"s_nop {k-1}"); n -= k

def srd(a, s, koff, size):
    a(f"s_load_dwordx2 {sr(s,2)}, s[0:1], {koff}")
    a(f"s_mov_b32 s{s+2}, {size}\ns_mov_b32 s{s+3}, 0x20000")

def chain_setup(a):
    t = 96
    lane, i, g, g1, g0, hi, i3, i2 = t + 1, t + 2, t + 3, t + 6, t + 7, t + 8, t + 9, t + 10
    x, y, z = t + 5, t + 12, t + 13
    a(f"""
    v_and_b32 v{lane}, 63, v0
    v_and_b32 v{i}, 15, v{lane}
    v_lshrrev_b32 v{g}, 4, v{lane}
    v_lshlrev_b32 v{L16}, 4, v{lane}
    v_lshrrev_b32 v{g1}, 1, v{g}
    v_and_b32 v{g0}, 1, v{g}
    v_lshrrev_b32 v{hi}, 3, v{i}
    v_and_b32 v{i3}, 3, v{i}
    v_lshrrev_b32 v{i2}, 2, v{i}
    s_lshl_b32 s{sT+1}, s{sW}, 15
    s_add_u32 s{sT+1}, s{sT+1}, {L_W}
    v_add_u32 v{A_W}, s{sT+1}, v{L16}
    v_lshl_add_u32 v{y}, v{hi}, 1, v{g0}
    v_and_b32 v{x}, 7, v{i}
    v_lshl_add_u32 v{x}, v{y}, 4, v{x}
    v_lshlrev_b32 v{x}, 4, v{x}
    v_add_u32 v{y}, s{sW}, v{y}
    v_and_b32 v{y}, 3, v{y}
    v_lshl_add_u32 v{x}, v{y}, 2, v{x}
    v_xor_b32 v{y}, 1, v{g1}
    v_lshl_add_u32 v{x}, v{y}, 11, v{x}
    v_add_u32 v{A_SMW}, {L_SM}, v{x}
    v_mov_b32 v{HZ}, 0x3f803f80
    v_mov_b32 v{HZ+1}, 0
    v_mov_b32 v{NEG1}, -1
    v_and_b32 v{A_O}, 0x37f, v{L16}
    v_lshlrev_b32 v{y}, 7, v{g0}
    v_or_b32 v{A_O}, v{A_O}, v{y}
    v_xor_b32 v{A_OW}, v{L16}, v{y}
    v_mov_b32 v{FLV}, 0
    v_cmp_lt_u32 vcc, 7, v{i}
    v_mov_b32 v{y}, 0x4444
    v_mov_b32 v{z}, 0xeeee
    v_cndmask_b32 v{t+11}, v{y}, v{z}, vcc
    """)
    a(f"""
    v_lshlrev_b32 v{x}, 2, v{g1}
    v_lshl_add_u32 v{x}, v{hi}, 1, v{x}
    v_add_u32 v{x}, v{x}, v{g0}
    v_lshlrev_b32 v{x}, 11, v{x}
    v_and_b32 v{y}, 7, v{i}
    v_lshl_add_u32 v{x}, v{y}, 3, v{x}
    s_lshl_b32 s{sT+2}, s{sW}, 14
    s_lshl_b32 s{sT+3}, s{sH}, 6
    s_add_u32 s{sT+2}, s{sT+2}, s{sT+3}
    v_add_u32 v{A_H1S}, s{sT+2}, v{x}
    """)
    a(f"""
    s_lshl_b32 s{sT+2}, s{sW}, 5
    s_add_u32 s{sT+2}, s{sT+2}, s{sH}
    s_lshl_b32 s{sT+2}, s{sT+2}, 6
    v_lshlrev_b32 v{x}, 4, v{g}
    v_lshl_add_u32 v{x}, v{i}, 2, v{x}
    v_add_u32 v{x}, s{sT+2}, v{x}
    v_cmp_gt_u32 vcc, 4, v{i}
    v_bfrev_b32 v{z}, 1
    s_nop 0
    v_cndmask_b32 v{A_IMS}, v{z}, v{x}, vcc
    """)
    a(f"""
    v_lshl_add_u32 v{x}, v{hi}, 2, v{i3}
    v_and_b32 v{y}, 1, v{i2}
    v_cmp_eq_u32 vcc, v{y}, v{g0}
    v_mov_b32 v{z}, 64
    s_nop 0
    v_cndmask_b32 v{x}, v{z}, v{x}, vcc
    v_and_b32 v{y}, 1, v{i}
    v_lshl_add_u32 v{t+14}, v{y}, 2, v{i2}
    v_cmp_gt_u32 vcc, 2, v{i3}
    s_mov_b32 s{sT+3}, 0x3f80
    s_nop 0
    v_cndmask_b32 v{t+14}, v{z}, v{t+14}, vcc
    """)
    for base, pos in ((F, x), (SEL, t + 14)):
        a(f"""
        v_and_b32 v{t+15}, 1, v{pos}
        v_lshlrev_b32 v{t+15}, 4, v{t+15}
        v_lshlrev_b32 v{t+15}, v{t+15}, s{sT+3}
        v_lshrrev_b32 v{t+16}, 1, v{pos}
        """)
        for d in range(4):
            a(f"""
            v_cmp_eq_u32 vcc, {d}, v{t+16}
            s_nop 1
            v_cndmask_b32 v{base+d}, 0, v{t+15}, vcc
            """)
    a(f"""
    v_and_b32 v{t+14}, 1, v{i2}
    v_lshl_add_u32 v{t+14}, v{g0}, 2, v{t+14}
    v_lshl_add_u32 v{t+15}, v{g1}, 4, v{t+14}
    v_lshl_add_u32 v{t+15}, v{hi}, 3, v{t+15}
    v_lshlrev_b32 v{t+15}, 6, v{t+15}
    v_lshl_add_u32 v{t+15}, v{i3}, 4, v{t+15}
    v_add_u32 v58, s{sT+1}, v{t+15}
    v_lshl_add_u32 v{t+15}, v{g1}, 3, v{t+14}
    v_lshlrev_b32 v{t+15}, 6, v{t+15}
    v_lshl_add_u32 v{t+15}, v{hi}, 5, v{t+15}
    v_lshl_add_u32 v{t+15}, v{i3}, 3, v{t+15}
    v_add_u32 v59, s{sT+1}, v{t+15}
    v_and_b32 v{x}, 7, v{i}
    v_lshlrev_b32 v{x}, 10, v{x}
    v_lshl_add_u32 v{x}, v{g}, 5, v{x}
    v_lshl_add_u32 v{x}, v{hi}, 4, v{x}
    s_lshl_b32 s{sT+2}, s{sW}, 7
    v_add_u32 v60, s{sT+2}, v{x}
    v_mov_b32 v{IDX}, v{t+11}
    """)
    for k in range(4): a(f"v_mov_b32 v{64+k}, -1")

def chain_prologue(a, P):
    WS = sr(S_WS, 4)
    a(f"""
    s_mov_b32 s{sS}, 0
    s_lshl_b32 s{sT}, s{sH}, 2
    s_add_u32 s{sT}, s{sT}, s{sW}
    s_lshl_b32 s{sKV}, s{sT}, 12
    s_add_u32 s{sKV}, s{sKV}, {WS_KV}
    s_lshl_b32 s{sKM}, s{sT}, 11
    s_add_u32 s{sKM}, s{sKM}, {WS_KM}
    s_mov_b32 s{sH1}, {WS_H1}
    s_mov_b32 s{sH1+1}, {WS_H1 + 65536}
    s_mov_b32 s{sH1+2}, {WS_H1 + 2*65536}
    s_mov_b32 s{sH1+3}, {WS_H1 + 3*65536}
    s_lshl_b32 s{sT}, s{sW}, 5
    s_add_u32 s{sT}, s{sT}, s{sH}
    s_lshl_b32 s{sT}, s{sT}, 11
    s_add_u32 s{sH1l}, s{sT}, {WS_H1}
    s_mov_b32 s{sTAG}, 0
    s_mov_b32 s{sIMw}, {WS_IMG + 8192}
    s_mov_b32 s{sIMr}, {WS_IMG + 16384}
    s_mov_b32 s{sIMl}, {WS_IMG}
    s_mov_b32 s{sIML}, {WS_IMG}
    s_mov_b32 s{sKMv}, {WS_DUMMY}
    s_mov_b32 s{sC}, 0x3e0293ee
    s_mov_b32 s{sC+1}, 0x3e0293ee
    """)
    a(f"""
    buffer_store_dwordx4 v[64:67], v{L16}, {WS}, s{sH1l} offen
    buffer_store_dwordx4 v[64:67], v{L16}, {WS}, s{sH1l} offen offset:1024
    buffer_store_dword v64, v{A_IMS}, {WS}, s{sIMw} offen
    buffer_store_dword v64, v{A_IMS}, {WS}, s{sIMr} offen
    buffer_load_dwordx4 {vr(MA,4)}, v60, {sr(S_M0,4)}, 0 offen
    buffer_load_dwordx4 {vr(MA+16,4)}, v60, {sr(S_M0,4)}, 0 offen offset:512
    """, vm='init')
    a(f"""
    s_barrier
    """) if False else None
    for w in range(3): a(f"s_cmp_eq_u32 s{sW}, {w}\ns_cbranch_scc1 L_cp_{w}")
    a("s_branch L_cp_3")

UNITS = [(m, k) for m in 'vkq' for k in range(8)] + [('o', u) for u in range(8)]
sLB, sO1, sHB, sHO = sT + 4, sT + 5, sT + 6, sT + 7
def issue_unit(a, u):
    kind, x = UNITS[u]
    if kind == 'o': base, off, step, voff, S = sHO, 64 * (x & 1) * 1024 + 256 * (x >> 1), 16 * 1024, 57, S_WO
    else: base, off, step, voff, S = sHB, x << 19, 16 * 8192, 56, {'q': S_WQ, 'k': S_WK, 'v': S_WV}[kind]
    for i in range(4):
        a(f"s_add_u32 m0, s{sLB}, {(u % 8) * 4096 + i * 1024}")
        a(f"s_add_u32 s{sO1}, s{base}, {off + i * step}")
        a(f"buffer_load_dwordx4 v{voff}, {sr(S,4)}, s{sO1} offen lds", vm=('u', u))

def chain_first_dma(a):
    a(f"""
    v_bfe_u32 v96, v0, 2, 4
    v_and_b32 v97, 3, v0
    s_lshl_b32 s{sT+2}, s{sW}, 6
    v_lshlrev_b32 v97, 4, v97
    v_add_u32 v97, s{sT+2}, v97
    v_lshl_add_u32 v56, v96, 13, v97
    v_lshl_add_u32 v57, v96, 10, v97
    s_lshl_b32 s{sLB}, s{sW}, 15
    s_add_u32 s{sLB}, s{sLB}, {L_W}
    s_lshl_b32 s{sHB}, s{sH}, 8
    s_lshl_b32 s{sHO}, s{sH}, 17
    """)
    for u in range(8): issue_unit(a, u)

def chain_prologue_w(a, P, w, vm0):
    WS = sr(S_WS, 4)
    a.label(f'L_cp_{w}')
    a.vm = list(vm0); a.lg = []
    PK4 = 64
    def consume(u):
        kind, x = UNITS[u]
        a.wait(vm=('u', u))
        base = (u % 8) * 4096
        sig = ((x - w) & 3) | (x & 4)
        final = u >= 28
        for half in range(2):
            if final: k, dst = 'v', 28 + 16 * half
            elif kind in 'qk':
                uu = 2 * half + (kind == 'k')
                k, dst = ('v', PK4 + 8 * uu) if sig == 4 else wqk_reg(sig, uu)
            elif kind == 'v': k, dst = wv_reg(sig, half)
            else: k, dst = wo_reg(x >> 1, 2 * (x & 1) + half)
            for p in range(4):
                if kind == 'o': off, ad = base + (32 * half + 16 * (p >> 1) + 2 * (p & 1)) * 64, 59
                else: off, ad = base + (32 * (p >> 1) + 2 * (p & 1)) * 64 + 8 * half, 58
                a(f"ds_read_b64_tr_b16 {vr(dst + 2*p, 2, k)}, v{ad} offset:{off}")
        a.wait(lg='all')
        if final:
            for i in range(4): a(f"ds_write_b128 v{A_W}, {vr(28 + 16*(i>>1) + 4*(i&1),4)} offset:{base + 1024*i}")
            a.wait(lg='all')
    for u in range(32):
        consume(u)
        if u + 8 < 32: issue_unit(a, u + 8)
        if u == 8:
            for r in list(range(MA, MA + 4)) + list(range(MA + 16, MA + 20)): a(f"v_min_u32 v{r}, -2, v{r}")
            a("s_barrier")
            if w == 0:
                a(f"s_mov_b64 exec, 1\nv_mov_b32 v28, 1")
                a(f"buffer_atomic_add v28, off, {sr(S_DBG,4)}, 0 offset:{DBG_CBAR}", vm='at')
                a("s_mov_b64 exec, -1")
        if u == 27:
            for sg, src in ((0, ST), (4, PK4)):
                for uu in range(4):
                    for hf in range(2): a(f"ds_write_b128 v{A_W}, {vr(src + 8*uu + 4*hf,4)} offset:{lw_qk(sg, uu) + 1024*hf}")
                a.wait(lg='all')
    if P.get('stat'): a("s_memrealtime s[100:101]")
    a(f"s_mov_b32 s{sSPIN}, 0\ns_mov_b32 m0, {L_KV + 4096*w}")
    if w == 0:
        a.label(f'L_c_w0')
        a(f"""
        buffer_load_dwordx4 v[28:31], off, {sr(S_DBG,4)}, 0 sc1
        s_add_u32 s{sSPIN}, s{sSPIN}, 1
        s_cmp_gt_u32 s{sSPIN}, {SPIN_MAX}
        s_cbranch_scc1 L_exit
        """)
        a.wait(vm='all')
        a(f"""
        v_min_u32 v28, v{28 + DBG_CBAR // 4}, v{28 + DBG_KV0 // 4}
        v_cmp_gt_u32 vcc, 32, v28
        s_cbranch_vccnz L_c_w0
        """)
    a("s_barrier")
    for k in range(4): a(f"buffer_load_dwordx4 {vr(KX+4*k,4)}, v{L16}, {WS}, s{sKV} offen offset:{1024*k} sc1")
    a(f"s_add_u32 s{sKV}, s{sKV}, 0x80000\ns_mov_b32 s{sFL}, {DBG_KVC}\ns_mov_b32 s{sSPIN}, 0")
    for l in idle_work():
        if not l.startswith('ds_'): a(l)
    a.wait(vm='all', lg='all')
    if P.get('stat'): a("s_memtime s[64:65]\ns_waitcnt lgkmcnt(0)")
    a(f"s_branch L_step_{w}")

def idle_work():
    L = [f"ds_read_b128 {vr(ST + 8*u + 4*hf, 4)}, v{A_W} offset:{lw_qk(0, u) + 1024*hf}" for u in range(4) for hf in range(2)]
    L += [f"v_mov_b64 {vr(Q0+i,2)}, 0" for i in range(0, 24, 2)]
    L += [f"v_mov_b32 v{ONE+i}, 0x3f803f80" for i in range(4)]
    return L

DEF = dict(b1=4, nL=10, nB2=6, nv1=2, nv2=2, nvA=4, earlyL=0, dH1=[30, 52, 74, 96], dE=[52, 30, 8, 0], pE=18, inGap=[0, 0, 0, 1], nPre=[0, 0, 0, 0],
           dS=[-1, -1], kw=1, dma0=14, nE=3, dT=0, stg=1)
def chain_step(a, P0, w):
    P = dict(DEF); P.update(P0)
    allow = P.get('stamps', [])
    used = []
    def stamp(k):
        if k in allow:
            a(f"s_memtime s[{72+2*len(used)}:{73+2*len(used)}]"); used.append(k)
    WS = sr(S_WS, 4)
    acc = [Q0, K0, Q1, K1]
    lb = lambda s: f"L_{s}_{w}"
    own = 2048 * w
    oth = lambda q: 2048 * ((w + q) & 3)
    T0 = MA + 28
    ldE = f"buffer_load_dwordx4 {vr(MA,4)}, v{L16}, {WS}, s{sIMl} offen sc1"
    ldL = f"buffer_load_dwordx4 {vr(MA+16,4)}, v{L16}, {WS}, s{sIML} offen sc1"
    chkE = f"v_max3_u32 v{T0}, v{MA}, v{MA+1}, v{MA+2}\nv_max_u32 v{T0}, v{T0}, v{MA+3}\nv_cmp_eq_u32 vcc, -1, v{T0}"
    chkL = [f"v_max3_u32 v{T0}, v{MA+16}, v{MA+17}, v{MA+18}", f"v_max3_u32 v{T0}, v{T0}, v{MA+19}, v{FLV}", f"v_cmp_eq_u32 vcc, -1, v{T0}"]
    ldF = f"buffer_load_dword v{FLV}, off, {sr(S_DBG,4)}, s{sFL} sc1"
    cvF = [f"v_subrev_u32 v{FLV}, 32, v{FLV}", f"v_ashrrev_i32 v{FLV}, 31, v{FLV}"]
    dwE = f"ds_write_b128 v{L16}, {vr(MA,4)} offset:{L_MEM + own}"
    dwL = f"ds_write_b128 v{L16}, {vr(MA+16,4)} offset:{L_MEM + own + 1024}"
    cv = lambda d, s0: f"v_cvt_pk_bf16_f32 v{d}, v{s0}, v{s0+1}"
    z2 = lambda r: f"v_mov_b64 {vr(r,2)}, 0"
    ror8 = lambda d, s0, bm: f"v_mov_b32_dpp v{d}, v{s0} row_ror:8 row_mask:0xf bank_mask:{bm}"
    mf32 = lambda D, A, B, C: a(f"v_mfma_f32_16x16x32_bf16 {vr(D,4)}, {vr(A,4)}, {vr(B,4)}, {vr(C,4) if C is not None else 0}")
    mf16 = lambda D, A, B, C: a(f"v_mfma_f32_16x16x16_bf16 {vr(D,4)}, {vr(A,2)}, {vr(B,2)}, {vr(C,4) if C is not None else 0}")
    def wdelay(n):
        while P['kw'] and n >= 8:
            mf32(MA + 24, F, F, None); a("s_nop 2"); mf32(MA + 4, F, F, None); a("s_nop 2"); n -= 8
        nops(a, n)
    a.label(lb('top'))
    a("s_waitcnt vmcnt(0)")
    a.vm = []; a.lg = []
    stamp(0)
    if P['earlyL']: a(ldL, vm='L2')
    a(chkE)
    a(dwE, lg='we')
    a(f"s_cbranch_vccnz {lb('f1')}")
    if not P['earlyL']: a(ldL, vm='L2')
    a.label(lb('go'))
    stamp(14)
    KVF = P.get('kvf', 'sc1')
    dma = [f"buffer_load_dwordx4 v{L16}, {WS}, s{sKV} offen offset:{1024*k} {KVF} lds" for k in range(4)]
    mrd = lambda s: f"ds_read_b128 {vr(MA+4*s,4)}, v{L16} offset:{L_MEM + oth(s & 3) + 1024*(s>>2)}"
    r2 = [f"ds_read_b128 {vr(ST + 8*u + 4*hf, 4)}, v{A_W} offset:{lw_qk(4, u) + 1024*hf}" for u in range(4) for hf in range(2)]
    r3 = [f"ds_read_b128 {vr(ST + 8*k + 4*hf, 4)}, v{A_W} offset:{lw_wo(2,k) + 1024*hf}" for k in range(4) for hf in range(2)]
    vq = [(V0 + 4 * tau, MA + 4 * s, wv_reg(s, tau)) for s in range(8) for tau in range(2)]
    qk = lambda s: [(acc[u], MA + 4 * s, wqk_reg(s, u)) for u in range(4)]
    sA = qk(0) + [vq.pop(0), vq.pop(0)]
    for k in range(P['b1']): smf(a, *sA.pop(0))
    a.wait(lg='all')
    a("s_barrier")
    stamp(1)
    a(mrd(1), lg=('ma', 1)); a(mrd(2), lg=('ma', 2))
    smf(a, *sA.pop(0))
    a(mrd(3), lg=('ma', 3))
    while sA: smf(a, *sA.pop(0))
    if not P.get('nokm'): a(f"buffer_store_dwordx4 {vr(MA+20,4)}, v{L16}, {WS}, s{sKMv} offen offset:1024 sc1", vm='km')
    a(r2.pop(0), lg='r2'); a(r2.pop(0), lg='r2')
    seq = qk(1) + qk(2) + qk(3) + [vq.pop(0) for _ in range(P['nv1'])]
    i4 = len(seq); seq += qk(4) + [vq.pop(0) for _ in range(P['nv2'])]
    i5 = len(seq); seq += qk(5)
    i6 = len(seq); q6, q7 = qk(6), qk(7)
    seq += [q6[0], q6[1], q7[0], q7[1], q6[2], q6[3], q7[2], q7[3]]
    nL, nB2 = P['nL'], P['nB2']
    assert i4 >= nL + 4 and nL + nB2 <= i5
    KVST = 0 if P.get('kvfix') else 0x80000
    for n, q in enumerate(seq):
        if n == 0: a.wait(lg=('ma', 1))
        if n == 4: a.wait(lg=('ma', 3))
        if n == nL:
            stamp(2)
            a.wait(vm='L2'); a(dwL, lg='wl'); a(chkL[0])
        if n == nL + nB2:
            a.wait(lg='wl'); a("s_barrier"); stamp(3); a(mrd(5), lg=('ma', 5))
        if n == i4 and 'r2' in a.lg: a.wait(lg='r2')
        if n == i5: a.wait(lg=('ma', 5))
        if n == i6: a.wait(lg=('ma', 7))
        smf(a, *q)
        if n == nL + nB2: a(mrd(6), lg=('ma', 6)); a(mrd(7), lg=('ma', 7))
        elif r2: a(r2.pop(0), lg='r2')
        elif n > i4 and n > nL + nB2 and r3: a(r3.pop(0), lg='r3')
        if n >= max(P['dma0'] + w * P['stg'], nL + 4) and (n - P['dma0'] - w * P['stg']) % 4 == 0 and dma:
            a(dma.pop(0), vm='dma')
            if not dma: a(f"s_add_u32 s{sKV}, s{sKV}, {KVST}")
        if n == nL: a(chkL[1])
        if n == nL + 1: a(chkL[2])
        if n == nL + 3:
            a(f"s_cbranch_vccnz {lb('rL')}"); a.label(lb('bL'))
        if n == nL + 4: a(f"s_add_u32 s{sFL}, s{sS}, 2\ns_lshr_b32 s{sFL}, s{sFL}, 3")
        if n == nL + 5: a(f"s_min_u32 s{sFL}, s{sFL}, 7\ns_lshl2_add_u32 s{sFL}, s{sFL}, {DBG_KVC}")
        if n == i6 + 2: a(ldF, vm='fl')
        if n == i6 + 4: a(cv(Q0, Q0))
        if n == i6 + 5: a(cv(Q0 + 1, Q0 + 2))
        if n == i6 + 6: a(cv(Q0 + 2, K0))
    assert not r3 and not dma and not r2
    stamp(4)
    a(cv(Q0 + 3, K0 + 2))
    a("s_nop 0")
    a(cv(Q1, Q1))
    mf32(K0, Q0, F, None)
    a(cv(Q1 + 1, Q1 + 2)); a(cv(Q1 + 2, K1)); a(cv(Q1 + 3, K1 + 2))
    a("s_nop 1")
    mf32(K1, Q1, F, None)
    X = Q0
    a(cv(X, K0)); a(cv(X + 1, K0 + 2))
    smf(a, *vq.pop(0))
    a("s_nop 0"); a(f"buffer_store_dword v{NEG1}, v{A_IMS}, {WS}, s{sIMr} offen", vm='rs'); a("s_nop 1")
    a(cv(X + 2, K1)); a(cv(X + 3, K1 + 2))
    a("s_nop 1")
    S1, S2, SM = Q1, K0, K1
    mf32(SM, X, X, None); mf32(S2, KX + 4, X, None); mf32(S1, KX, X, None)
    for r in range(2): a(ror8(SM + r, SM + 2 + r, '0xc'))
    smf(a, *vq.pop(0))
    a("s_nop 0")
    a(f"ds_write2_b32 v{A_SMW}, v{SM}, v{SM+1} offset0:0 offset1:32")
    a("s_nop 1")
    for r in range(4): a(ror8(S1 + r, S2 + r, '0xc'))
    smf(a, *vq.pop(0))
    a(f"ds_write_b128 v{L16}, {vr(S1,4)} offset:{L_S + own}")
    stamp(5)
    for k in range(P['nvA']):
        smf(a, *vq.pop(0))
        if k == min(w * P['stg'], P['nvA'] - 1) and not P.get('nokm'): a(f"buffer_store_dwordx4 {vr(X,4)}, v{L16}, {WS}, s{sKM} offen sc1", vm='km')
    a.wait(lg='all')
    a("s_barrier")
    stamp(6)
    R1, R2, R3, RM = K0, KX, KX + 4, K1
    a(f"ds_read_b128 {vr(RM,4)}, v{L16} offset:{L_SM}", lg='rm')
    a(f"ds_read_b128 {vr(R1,4)}, v{L16} offset:{L_S + oth(1)}", lg='r1')
    smf(a, *vq.pop(0))
    a(f"ds_read_b128 {vr(R2,4)}, v{L16} offset:{L_S + oth(2)}", lg='r2')
    a(f"ds_read_b128 {vr(R3,4)}, v{L16} offset:{L_S + oth(3)}", lg='r3')
    while vq: smf(a, *vq.pop(0))
    pka = lambda d, s0: f"v_pk_add_f32 {vr(d,2)}, {vr(d,2)}, {vr(s0,2)}"
    a.wait(lg='r1')
    a(f"v_add_f32 v{RM}, v{RM}, v{RM+1}\nv_add_f32 v{RM+2}, v{RM+2}, v{RM+3}")
    a(f"v_add_f32 v{S1}, v{S1}, v{R1}\nv_add_f32 v{S1+1}, v{S1+1}, v{R1+1}")
    a(pka(S1 + 2, R1 + 2))
    a.wait(lg='r2')
    a(pka(S1, R2)); a(pka(S1 + 2, R2 + 2))
    a(f"v_add_f32 v{RM}, v{RM}, v{RM+2}")
    a.wait(lg='all')
    stamp(7)
    a(pka(S1, R3)); a(pka(S1 + 2, R3 + 2))
    m0, m1 = K0, K0 + 1
    a(f"v_max3_f32 v{m0}, v{RM}, v{S1}, v{S1+1}")
    a(f"v_max3_f32 v{m0}, v{m0}, v{S1+2}, v{S1+3}")
    a(cv(V0, V0)); a(cv(V0 + 1, V0 + 2))
    a(f"v_max_f32_dpp v{m1}, v{m0}, v{m0} row_ror:8 row_mask:0xf bank_mask:0xf")
    a(f"v_max_f32_dpp v{m0}, v{m0}, v{m0} row_ror:8 row_mask:0xf bank_mask:0xf")
    a(cv(V0 + 2, V1)); a(cv(V0 + 3, V1 + 2))
    a(f"v_permlane32_swap_b32 v{m0}, v{m1}")
    a(f"v_max_f32 v{m0+2}, v{m0}, v{m1}")
    a(f"v_max_f32 v{m0+3}, v{m0}, v{m1}")
    a(f"v_permlane32_swap_b32 v{V0}, v{V0+1}")
    a(f"v_permlane32_swap_b32 v{V0+2}, v{V0+3}")
    a(f"v_permlane16_swap_b32 v{m0+2}, v{m0+3}")
    a(f"v_max_f32 v{m0}, v{m0+2}, v{m0+3}")
    a(f"v_mul_f32 v{m0}, s{sC}, v{m0}")
    a(f"v_fma_f32 v{RM}, v{RM}, s{sC}, -v{m0}")
    pkf = lambda r: f"v_pk_fma_f32 {vr(r,2)}, {vr(r,2)}, {sr(sC,2)}, {vr(m0,2)} op_sel_hi:[1,1,0] neg_lo:[0,0,1] neg_hi:[0,0,1]"
    BX, BM = K0, K1 + 2
    O0, O1, L = KX, V1, Q0
    a(f"v_exp_f32 v{RM}, v{RM}")
    a(pkf(S1)); a(pkf(S1 + 2))
    a(ror8(RM + 1, RM, '0xf'))
    a(cv(BM, RM)); a(cv(BM + 1, RM))
    a(f"v_exp_f32 v{S1}, v{S1}\nv_exp_f32 v{S1+1}, v{S1+1}")
    mf16(O0, V0, BM, None)
    a(f"v_exp_f32 v{S1+2}, v{S1+2}\nv_exp_f32 v{S1+3}, v{S1+3}")
    a(cv(BX, S1)); a(cv(BX + 1, S1 + 2))
    mf16(O1, V0 + 2, BM, None)
    a(ror8(BX + 2, BX, '0xf')); a(ror8(BX + 3, BX + 1, '0xf'))
    AC = [Q1, KX, V1, ONE]
    OW = KX + 4
    a(z2(AC[0])); a(z2(AC[0] + 2))
    mf32(O0, VX, BX, O0)
    stamp(8)
    mf32(O1, VX + 4, BX, O1)
    mf16(L, BM, HZ, None)
    a(cv(OW, O0)); a(cv(OW + 1, O0 + 2))
    a(z2(AC[1]))
    a(cv(OW + 2, O1)); a(cv(OW + 3, O1 + 2))
    mf32(L, BX, ONE, L)
    a(f"s_cmp_eq_u32 s{sS}, 63")
    a(f"ds_write_b128 v{A_OW}, {vr(OW,4)} offset:{L_O + own}")
    stamp(9)
    for r in range(4): a(ror8(OW + r, OW + r, '0xc'))
    a(z2(AC[1] + 2)); a(z2(AC[2])); a(z2(AC[2] + 2))
    for r in range(4): a(f"v_rcp_f32 v{L+r}, v{L+r}")
    a(z2(AC[3])); a(z2(AC[3] + 2))
    smf(a, AC[0], OW, wo_reg(0, w))
    a(f"s_cbranch_scc1 L_last")
    a.wait(lg='all')
    a("s_barrier")
    stamp(10)
    ks = [(w + q) & 3 for q in range(1, 4)]
    OA = {ks[0]: VX, ks[1]: VX + 4, ks[2]: K1, w: OW}
    oard = lambda k: a(f"ds_read_b128 {vr(OA[k],4)}, v{A_O} offset:{L_O + 2048*k}", lg=('oa', k))
    r4 = [f"ds_read_b128 {vr(MA + 8*k + 4*hf, 4)}, v{A_W} offset:{lw_wo(3,k) + 1024*hf}" for k in [w] + ks for hf in range(2)]
    g2 = lambda T, k: smf(a, AC[T], OA[k], wo_reg(T, k))
    mul = lambda T, r: a(f"v_mul_f32 v{AC[T]+r}, v{AC[T]+r}, v{L+r}")
    def cvt(T, r):
        a(cv(AC[T] + r, AC[T] + 2 * r))
        if r == 1: a(f"v_bfi_b32 v{AC[T]}, 1, s{sTAG}, v{AC[T]}")
    sto = lambda T: f"buffer_store_dwordx2 {vr(AC[T],2)}, v{A_H1S}, {WS}, s{sH1+T} offen"
    rd4 = lambda: a(r4.pop(0), lg='r4')
    oard(ks[0]); oard(ks[1])
    g2(1, w); oard(ks[2]); rd4()
    g2(2, w); rd4()
    mf32(K0, F, F, None); rd4()
    a.wait(lg=('oa', ks[0])); g2(0, ks[0]); stamp(20); rd4()
    a.wait(lg=('oa', ks[1])); g2(0, ks[1]); rd4()
    a.wait(lg=('oa', ks[2])); g2(0, ks[2]); rd4()
    g2(1, ks[0]); rd4()
    g2(1, ks[1]); rd4(); mul(0, 0)
    g2(1, ks[2]); mul(0, 1); mul(0, 2); mul(0, 3); cvt(0, 0); cvt(0, 1)
    g2(2, ks[0]); a("s_nop 0"); a(sto(0), vm='h1')
    for r in range(4): mul(1, r)
    cvt(1, 0); cvt(1, 1)
    g2(2, ks[1]); a("s_nop 0"); a(sto(1), vm='h1')
    stamp(21)
    g2(2, ks[2])
    a.wait(lg='all')
    g2(3, w)
    a(f"s_add_u32 s{sIMl}, s{sIMw}, {1024*w}\ns_add_u32 s{sIML}, s{sIMw}, {4096+1024*w}")
    g2(3, ks[0]); a(f"s_add_u32 s{sS}, s{sS}, 1\ns_mov_b32 s{sKMv}, s{sKM}"); mul(2, 0)
    g2(3, ks[1]); mul(2, 1)
    g2(3, ks[2]); mul(2, 2); mul(2, 3); cvt(2, 0); cvt(2, 1)
    dS = P['dS']
    a("s_nop 1")
    if dS[0] < 0: a(sto(2), vm='h1')
    c = AC[3]
    a(f"v_pk_mul_f32 {vr(c,2)}, {vr(c,2)}, {vr(L,2)}\nv_pk_mul_f32 {vr(c+2,2)}, {vr(c+2,2)}, {vr(L+2,2)}")
    cvt(3, 0); cvt(3, 1)
    a(f"s_add_u32 s{sKM}, s{sKM}, 0x40000\ns_nop 0")
    if dS[1] < 0: a(sto(3), vm='h1')
    stamp(11)
    HA = KX
    ld1 = [f"buffer_load_dwordx4 {vr(HA+4*c_,4)}, v{L16}, {WS}, s{sH1l} offen offset:{1024*c_} sc1" for c_ in range(2)]
    HD, T1 = MA + 8, MA + 12
    idle = [f"v_mov_b64 {vr(MA+20,2)}, {vr(V0,2)}", f"v_mov_b64 {vr(MA+22,2)}, {vr(V0+2,2)}"] + idle_work()
    late = [l for l in idle if l.startswith(f"v_mov_b64 v[{V1}:") or l.startswith(f"v_mov_b64 v[{V1+2}:") or l.startswith("v_mov_b32")]
    dsq = [l for l in idle if l.startswith('ds_')]
    idle = [l for l in idle if l not in late and l not in dsq]
    ev = [(max(dS[k], 0), k, [(sto(2 + k) if dS[k] >= 0 else None, 'h1')]) for k in range(2)]
    ev.append((P['dH1'][w], -1 if w < 2 else 2, [(ld1[0], 'H0'), (ld1[1], 'H1')]))
    pos = 0; nst = 0
    for (tpos, _, ops) in sorted(ev):
        while pos < tpos:
            if idle and tpos - pos > 2: a(idle.pop(0)); pos += 1
            elif dsq and nst == 2 and tpos - pos >= 6:
                if P['kw']: mf32(MA + 24 if len(dsq) & 1 else MA + 4, F, F, None); a("s_nop 1")
                else: a("s_nop 2")
                a(dsq.pop(0), lg='pre'); pos += 4
            else: wdelay(tpos - pos); pos = tpos
        for (o, tag) in ops:
            if o: a(o, vm=tag); pos += 1
            if tag == 'h1':
                nst += 1
                if nst == 2: idle += late
    for l in dsq + idle: a(l, lg='pre')
    dE = P['dE'][w]; pE = P['pE']; nPre = P['nPre'][w]; inGap = P['inGap'][w]
    eq = ['E0', 'E1', 'E2'][:P['nE']]; nE = len(eq)
    for k in range(nPre):
        wdelay(dE if k == 0 else pE); a(ldE, vm=eq.pop(0))
    nH0 = len(a.vm) - 1 - a.vm.index('H0')
    a(f"s_waitcnt vmcnt({nH0})")
    a.label(lb('a1'))
    stamp(12)
    mf32(HD, SEL, HA, None)
    a(f"v_bitop3_b32 v{T1}, v{HA}, v{HA+2}, s{sTAG} bitop3:0x7e")
    a.wait(vm='H1')
    mf32(HD, SEL, HA + 4, HD)
    a(f"v_bitop3_b32 v{T1+1}, v{HA+4}, v{HA+6}, s{sTAG} bitop3:0x7e\nv_bitop3_b32 v{T1}, v{T1}, v{T1+1}, 1 bitop3:0xa8\nv_cmp_ne_u32 vcc, 0, v{T1}")
    if inGap and eq:
        a("s_nop 1"); a(ldE, vm=eq.pop(0)); a("s_nop 0")
    else: a("s_nop 3")
    dpa = lambda r, n: f"v_add_f32_dpp v{r}, v{r}, v{r} row_ror:{n} row_mask:0xf bank_mask:0xf"
    a(dpa(HD, 4)); a(dpa(HD + 1, 4)); a("s_nop 0"); a(dpa(HD, 8)); a(dpa(HD + 1, 8))
    a(cv(HD, HD))
    a(f"s_cbranch_vccnz {lb('r1')}")
    a(f"buffer_store_dword v{HD}, v{A_IMS}, {WS}, s{sIMw} offen", vm='im')
    stamp(13)
    if inGap and eq: a(ldE, vm=eq.pop(0))
    misc = [f"ds_read_b128 {vr(KX+4*k,4)}, v{L16} offset:{L_KV + 4096*w + 1024*k}" for k in range(4)]
    misc += [f"s_mov_b32 s{sIMw}, s{sIMr}", f"s_add_u32 s{sIMr}, s{sIMr}, 0x2000", f"s_and_b32 s{sIMr}, s{sIMr}, 0xffff7fff",
             f"s_xor_b32 s{sTAG}, s{sTAG}, 1"] + cvF
    def delay(n):
        while n > 0 and misc: a(misc.pop(0), lg='pre'); n -= 1
        wdelay(n)
    while eq:
        delay(dE if len(eq) == nE else pE); a(ldE, vm=eq.pop(0))
    delay(len(misc))
    if used:
        a("s_waitcnt lgkmcnt(0)")
        if P.get('trace'):
            a("s_nop 7")
            for k in range(len(used)): a(f"v_mov_b32 v{MA+8+k}, s{72+2*k}")
            a(f"s_lshl_b32 s{sT}, s{sH}, 12\ns_lshl_b32 s{sT+1}, s{sS}, 4\ns_add_u32 s{sT}, s{sT}, s{sT+1}\ns_add_u32 s{sT}, s{sT}, {WS_STAMP + 65536 + 1024*w}\ns_mov_b64 exec, 1")
            a(f"buffer_store_dwordx4 {vr(MA+8,4)}, v{L16}, {WS}, s{sT} offen", vm='tr')
            a("s_mov_b64 exec, -1")
        else:
            for k in range(1, len(used)):
                a(f"s_sub_u32 s{sT}, s{72+2*k}, s{70+2*k}\ns_add_u32 s{88+k}, s{88+k}, s{sT}")
    if w == 0: wdelay(P['dT'])
    if P.get('stat'):
        a(f"s_cmp_lg_u32 s{sS}, 3\ns_cbranch_scc1 {lb('top')}\ns_memtime s[68:69]\ns_memrealtime s[62:63]\ns_mov_b32 s70, 0\ns_mov_b32 s71, 0")
        for k in range(8): a(f"s_mov_b32 s{88+k}, 0")
    young = lambda t: len(a.vm) - 1 - a.vm.index(t)
    eL = P['earlyL']
    ns = [young(f'E{k}') + k + (eL if k else 0) for k in range(nE)]
    a.lines[a.lines.index(lb('top') + ':') + 1] = f"s_waitcnt vmcnt({ns[0]}) lgkmcnt(0)"
    a(f"s_branch {lb('top')}")
    end_main = len(a.lines)
    cnt = lambda r, v: (f"s_add_u32 s{r}, s{r}, {v}\n" if P.get('stat') else '')
    spin = f"s_add_u32 s{sSPIN}, s{sSPIN}, 1\ns_cmp_gt_u32 s{sSPIN}, {SPIN_MAX}\ns_cbranch_scc1 L_exit\n"
    for k in range(1, nE + 1):
        a.label(lb(f'f{k}'))
        a(ldE); a(cnt(71, 1) + f"s_waitcnt vmcnt({ns[k] if k < nE else nE - 1})"); a(chkE); a(dwE)
        a(f"s_cbranch_vccnz {lb(f'f{k+1}')}")
        a(ldL); a(f"s_branch {lb('go')}")
    a.label(lb(f'f{nE+1}'))
    a(spin + f"s_branch {lb(f'f{nE}')}")
    a.label(lb('rL'))
    a(ldF); a(f"s_cmp_eq_u32 s{sS}, 0\ns_cbranch_scc1 {lb('rL0')}"); a(ldL)
    a.label(lb('rL0'))
    a(cnt(71, 65536) + spin + "s_waitcnt vmcnt(0)")
    a(dwL); a('\n'.join(cvF))
    a('\n'.join(chkL))
    a(f"s_waitcnt lgkmcnt(0)\ns_cbranch_vccnz {lb('rL')}\ns_branch {lb('bL')}")
    a.label(lb('r1'))
    a(ld1[0]); a(ld1[1])
    a(cnt(70, 1) + spin + f"s_waitcnt vmcnt(0)\ns_branch {lb('a1')}")
    a.label(lb('step'))
    a(dwE)
    a(f"s_branch {lb('go')}")
    return end_main, None
```

```python
from asmlib import *
from chain import WS_KV, WS_KM, WS_SIZE, DBG_KVC, DBG_KV0, DBG_GO, S_WS, S_DBG, sH, sW, nops

WS_A = 50 << 20
WS_CNT = WS_A + (64 << 10)
WS_PART = 64 << 20
H_GW = 131072
H_E = H_GW + 1024
H_C = H_E + 1024
S_X, S_W1, S_W2, S_WO, S_OUT = 8, 12, 16, 20, 28
sB = 34
sX0, sWo1, sWo2, sStI, sStS, sSlot, sCnt, sSeg, sSpin, sJ = 35, 36, 37, 38, 39, 40, 41, 42, 43, 44
sA, sA2, sA3, sA4 = 45, 46, 47, 48
sWoo = 49
sM = 50
P_LRE, P_LIM, P_LDT, P_DSK, P_GW, P_CRE, P_CIM = 58, 62, 64, 66, 68, 70, 72
LANE, L16, VX_, VW, VW2, XA, WA, BA, GA, VKV, G, VN, HH, VKM, VVM, WOA, MX = 0, 1, 2, 3, 4, 5, 7, 11, 13, 14, 15, 16, 17, 18, 19, 20, 28
T = 29
KF, VF, FR = 32, 96, 160
QF, SS, HF = 160, 224, 240
HSPIN = 400000
LOG2E = 0x3fb8aa3b
def mf(a, D, A, B, C): a(f"v_mfma_f32_32x32x16_bf16 {D}, {A}, {B}, {C}")
WS = sr(S_WS, 4)

S_PF = 52
P_WQ, P_WK, P_WV = 74, 76, 78
sPH = 56
def h_ptrs(a):
    a(f"""
    s_load_dwordx2 {sr(S_X,2)}, s[0:1], 0
    s_load_dwordx2 {sr(P_WK,2)}, s[0:1], 96
    s_load_dwordx2 {sr(P_WV,2)}, s[0:1], 104
    s_load_dwordx2 {sr(S_WO,2)}, s[0:1], 112
    s_load_dwordx2 {sr(S_PF,2)}, s[0:1], 88
    s_mov_b32 s{S_X+2}, 2097152
    s_mov_b32 s{S_X+3}, 0x20000
    s_mov_b32 s{S_WO+2}, 4194304
    s_mov_b32 s{S_WO+3}, 0x20000
    s_mov_b32 s{S_OUT+2}, 4194304
    s_mov_b32 s{S_OUT+3}, 0x20000
    s_mov_b32 s{S_W1+2}, 4194304
    s_mov_b32 s{S_W1+3}, 0x20000
    s_mov_b32 s{S_W2+2}, 4194304
    s_mov_b32 s{S_W2+3}, 0x20000
    s_mov_b32 s{S_PF+2}, 4194304
    s_mov_b32 s{S_PF+3}, 0x20000
    """)
PFW, PFO = 253, 254
def h_prefetch(a, sR):
    a(f"""
    s_mov_b64 {sr(S_W1,2)}, {sr(P_WK,2)}
    s_mov_b64 {sr(S_W2,2)}, {sr(P_WV,2)}
    s_mul_i32 s{sPH}, s{sR}, {32*9363}
    s_lshr_b32 s{sPH}, s{sPH}, 16
    s_lshl_b32 s{sA}, s{sPH}, 8
    s_lshl_b32 s{sA2}, s3, 17
    s_add_u32 s{sA}, s{sA}, s{sA2}
    v_lshrrev_b32 v1, 4, v0
    v_and_b32 v2, 15, v0
    v_cmp_gt_u32 vcc, 12, v2
    v_lshlrev_b32 v2, 7, v2
    v_lshl_add_u32 v1, v1, 13, v2
    v_add_u32 v1, s{sA}, v1
    v_bfrev_b32 v2, 1
    v_cndmask_b32 v{PFW}, v2, v1, vcc
    s_lshl_b32 s{sA}, s3, 14
    v_lshlrev_b32 v1, 7, v0
    v_cmp_gt_u32 vcc, 128, v0
    buffer_load_dword v255, v{PFW}, {sr(S_W2,4)}, 0 offen
    v_add_u32 v3, s{sA}, v1
    buffer_load_dword v255, v{PFW}, {sr(S_W1,4)}, 0 offen
    v_cndmask_b32 v3, v2, v3, vcc
    buffer_load_dword v255, v3, {sr(S_X,4)}, 0 offen
    s_load_dwordx2 {sr(S_OUT,2)}, s[0:1], 136
    s_load_dwordx2 {sr(P_LRE,2)}, s[0:1], 8
    s_load_dwordx2 {sr(P_LIM,2)}, s[0:1], 16
    s_load_dwordx2 {sr(P_LDT,2)}, s[0:1], 56
    s_load_dwordx2 {sr(P_DSK,2)}, s[0:1], 64
    s_load_dwordx2 {sr(P_GW,2)}, s[0:1], 128
    s_waitcnt lgkmcnt(0)
    s_load_dwordx2 {sr(P_CRE,2)}, s[0:1], 40
    s_load_dwordx2 {sr(P_CIM,2)}, s[0:1], 48
    s_cmp_ge_u32 s{sW}, 2
    s_cbranch_scc1 L_h_hi
    s_mov_b64 {sr(S_W2,2)}, {sr(S_PF,2)}
    s_mov_b32 s{sStI}, {4*8192}
    s_mov_b32 s{sStS}, {32*8192}
    s_branch L_h_sel
    """)
    a.label('L_h_hi')
    a(f"""
    s_mov_b64 {sr(S_W1,2)}, {sr(P_WV,2)}
    s_mov_b32 s{S_W2+2}, 524288
    s_mov_b32 s{sStI}, 0x10000000
    s_mov_b32 s{sStS}, 64
    s_cmp_eq_u32 s{sW}, 3
    s_cbranch_scc1 L_h_w3
    s_load_dwordx2 {sr(S_W2,2)}, s[0:1], 24
    s_branch L_h_sel
    """)
    a.label('L_h_w3')
    a(f"s_load_dwordx2 {sr(S_W2,2)}, s[0:1], 32")
    a.label('L_h_sel')
    a("s_waitcnt lgkmcnt(0)")
    return 3

def h_once(a):
    a(f"v_and_b32 v{LANE}, 63, v0")
    t = 32
    a(f"""
    v_lshlrev_b32 v{L16}, 4, v{LANE}
    v_and_b32 v{VN}, 31, v{LANE}
    v_lshrrev_b32 v{HH}, 5, v{LANE}
    v_lshrrev_b32 v{t}, 2, v{LANE}              ; r = lane>>2
    v_lshrrev_b32 v{t+1}, 4, v{LANE}            ; lane>>4
    v_and_b32 v{t+2}, 3, v{LANE}                ; c
    v_xor_b32 v{t+3}, v{t+2}, v{t+1}
    v_lshlrev_b32 v{t+3}, 4, v{t+3}
    v_lshl_add_u32 v{VX_}, v{t}, 10, v{t+3}
    v_and_b32 v{t+3}, 15, v{LANE}
    v_lshlrev_b32 v{t+4}, 2, v{t+1}
    v_xor_b32 v{t+3}, v{t+3}, v{t+4}
    v_lshlrev_b32 v{t+3}, 4, v{t+3}
    v_lshl_add_u32 v{VW}, v{t+1}, 13, v{t+3}
    s_cmp_ge_u32 s{sW}, 2
    s_cselect_b64 vcc, -1, 0
    v_cndmask_b32 v{VW2}, v{VW}, v{VX_}, vcc
    v_bfe_u32 v{t+5}, v{LANE}, 2, 1             ; h'
    v_bfe_u32 v{t+6}, v{LANE}, 3, 1             ; t
    v_bfe_u32 v{t+7}, v{LANE}, 4, 1             ; n>>4
    v_lshl_add_u32 v{t+8}, v{t+7}, 2, v{t+2}
    v_lshl_add_u32 v{t+8}, v{t+5}, 3, v{t+8}    ; i = 8h' + 4(n>>4) + (n&3)
    v_lshl_add_u32 v{t+9}, v{HH}, 5, v{t+8}
    v_lshlrev_b32 v{t+9}, 4, v{t+9}
    v_lshl_add_u32 v{VKV}, v{t+6}, 10, v{t+9}
    v_lshl_add_u32 v{t+9}, v{HH}, 4, v{t+8}
    v_lshlrev_b32 v{t+9}, 4, v{t+9}
    v_lshl_add_u32 v{t+9}, v{t+6}, 3, v{t+9}
    v_add_u32 v{VVM}, 1024, v{t+9}
    v_and_b32 v{t+9}, 7, v{LANE}
    v_lshl_add_u32 v{t+9}, v{HH}, 5, v{t+9}
    v_add_u32 v{t+9}, 8, v{t+9}
    v_lshlrev_b32 v{VKM}, 4, v{t+9}
    s_waitcnt lgkmcnt(0)
    """)

def xaddr(a, row, base_s, dst):
    a(f"""
    v_bfe_u32 v{T}, v{row}, 2, 2
    v_xor_b32 v{T}, v{T}, v{HH}
    v_lshlrev_b32 v{T}, 4, v{T}
    v_lshl_add_u32 v{T}, v{row}, 6, v{T}
    v_add_u32 v{dst}, {base_s}, v{T}
    v_xor_b32 v{dst+1}, 32, v{dst}
    """)

OPT = {}
sXC, sClr = 57, 3
def dma_part(part, kind):
    G_ = []
    for i in range(4):
        o = (16384 if part == 'B' else 0) + 1024 * i
        L = [f"s_add_u32 m0, s{sSlot}, {o}"]
        if kind == 'wo': L += [f"s_add_u32 s{sA}, s{sWoo}, {o}", f"buffer_load_dwordx4 v{WOA + i}, {sr(S_WO,4)}, s{sA} offen lds"]
        elif part == 'A': L += [f"s_add_u32 s{sA}, s{sXC}, {(i >> 1) * 131072 + (i & 1) * 16384}", f"buffer_load_dwordx4 v{VX_}, {sr(S_X,4)}, s{sA} offen lds"]
        elif kind == 'p1': L += [f"s_add_u32 s{sA}, s{sWo1}, {4*8192*i}", f"buffer_load_dwordx4 v{VW}, {sr(S_W1,4)}, s{sA} offen lds"]
        else: L += [f"s_mov_b32 s{sA2}, s{sWo2}" if i == 0 else f"s_add_u32 s{sA2}, s{sA2}, s{sStI}", f"buffer_load_dwordx4 v{VW2}, {sr(S_W2,4)}, s{sA2} offen lds"]
        G_.append(L)
    if part == 'A' and kind != 'wo': G_[-1] += [f"s_add_u32 s{sXC}, s{sXC}, 64", f"s_and_b32 s{sXC}, s{sXC}, 0xfffffbff"]
    if part == 'B':
        G_[-1] += [{'p1': f"s_add_u32 s{sWo1}, s{sWo1}, {32*8192}", 'p2': f"s_add_u32 s{sWo2}, s{sWo2}, s{sStS}", 'wo': f"s_add_u32 s{sWoo}, s{sWoo}, 32768"}[kind]]
        G_[-1] += [f"s_add_u32 s{sSlot}, s{sSlot}, 32768", f"s_and_b32 s{sSlot}, s{sSlot}, 0x1ffff"]
    return G_

def frag_reads(p, k, fs):
    b = FR + 40 * fs
    L = [f"ds_read_b128 {vr(b + 4*j, 4)}, v{XA + k} offset:{2048*j}" for j in range(2)]
    for m in range(2 if p == 1 else 1):
        for tau in range(4):
            for pp in range(2):
                L.append(f"ds_read_b64_tr_b16 {vr(b + 8 + 16*m + 4*tau + 2*pp, 2)}, v{WA + tau} offset:{8192*m + (16*k + 4*pp)*256}")
    if p == 2:
        L.append(f"ds_read_b128 {vr(b + 24, 4)}, v{BA + k}")
        L.append(f"ds_read_b128 {vr(b + 28, 4)}, v{GA} offset:{32*k}")
    return L
def mfmas(p, fs):
    b = FR + 40 * fs
    L = []
    x = lambda j: vr(b + 4 * j, 4)
    for tau in range(4):
        for j in range(2):
            D = ar(64 * j + 16 * tau, 16); L.append((D, vr(b + 8 + 4 * tau, 4), x(j), D))
    if p == 1:
        for tau in range(4):
            for j in range(2):
                D = ar(128 + 64 * j + 16 * tau, 16); L.append((D, x(j), vr(b + 24 + 4 * tau, 4), D))
    else:
        for q in range(2):
            for j in range(2):
                D = ar(128 + 32 * q + 16 * j, 16); L.append((D, vr(b + 24 + 4 * q, 4), x(j), D))
    return L
def adv_addr(p):
    L = []
    regs_ = [XA, XA + 1] + [WA + t for t in range(4)] + ([BA, BA + 1] if p == 2 else [])
    for r in regs_: L += [f"v_add_u32 v{r}, 0x8000, v{r}", f"v_and_b32 v{r}, 0x1ffff, v{r}"]
    if p == 2: L.append(f"v_add_u32 v{GA}, 64, v{GA}")
    return L

def stage_loop(a, name, p, kB, kA, n):
    if n != 1:
        a(f"s_mov_b32 s{sCnt}, {n}")
        a.label(name)
    a("s_waitcnt lgkmcnt(0)")
    rd = frag_reads(p, 1, 1); av = adv_addr(p); dg = dma_part('B', kB)
    M = mfmas(p, 0); q = len(M) // 4
    for i, m in enumerate(M):
        mf(a, *m)
        for _ in range(2):
            if rd: a(rd.pop(0))
        if i % q == 1:
            for l in dg.pop(0): a(l)
        elif not rd:
            for _ in range(5):
                if av: a(av.pop(0))
    assert not rd and not av and not dg
    a(f"s_waitcnt vmcnt({18 if p == 1 else 16}) lgkmcnt(0)\ns_barrier")
    rd = frag_reads(p, 0, 0); dg = dma_part('A', kA)
    M = mfmas(p, 1)
    for i, m in enumerate(M):
        mf(a, *m)
        for _ in range(2):
            if rd: a(rd.pop(0))
        if i % q == 1:
            for l in dg.pop(0): a(l)
        if p == 1 and i == 11: a(f"buffer_store_dwordx4 v[44:47], v{L16}, {WS}, s{sClr} offen sc1\ns_add_u32 s{sClr}, s{sClr}, 1024")
        if p == 1 and i == 12: a(f"s_and_b32 s{sA}, s{sClr}, 0x1fff\ns_cselect_b32 s{sA}, 0, {(4 << 18) - 8192}\ns_add_u32 s{sClr}, s{sClr}, s{sA}")
        if i == len(M) - 1 and n != 1: a(f"s_sub_u32 s{sCnt}, s{sCnt}, 1\ns_cmp_lg_u32 s{sCnt}, 0")
    assert not rd and not dg
    if n != 1: a(f"s_cbranch_scc1 {name}")

SLEEP = [4]
def poll_fail(a, back, sl=None):
    a(f"s_add_u32 s{sSpin}, s{sSpin}, 1\ns_cmp_gt_u32 s{sSpin}, {HSPIN}\ns_cbranch_scc1 L_end\ns_sleep {sl or SLEEP[0]}\ns_branch {back}")

def unpack8(a, dst, src):
    for j in range(4):
        a(f"v_lshlrev_b32 v{dst+2*j}, 16, v{src+j}\nv_and_b32 v{dst+2*j+1}, 0xffff0000, v{src+j}")

def pw(a, LR, LI, A2, B2, n, cnt, tmp):
    for j in range(cnt):
        if n is None: a(f"v_exp_f32 v{tmp+j}, v{A2+j}\nv_fract_f32 v{LI+j}, v{B2+j}")
        else: a(f"v_mul_f32 v{tmp+j}, {n}, v{A2+j}\nv_mul_f32 v{LI+j}, {n}, v{B2+j}\nv_exp_f32 v{tmp+j}, v{tmp+j}\nv_fract_f32 v{LI+j}, v{LI+j}")
    for j in range(cnt): a(f"v_cos_f32 v{LR+j}, v{LI+j}\nv_sin_f32 v{LI+j}, v{LI+j}")
    a("s_nop 0")
    for j in range(cnt): a(f"v_mul_f32 v{LR+j}, v{LR+j}, v{tmp+j}\nv_mul_f32 v{LI+j}, v{LI+j}, v{tmp+j}")

def dtprep(a, A2, B2, DT, cnt):
    for j in range(cnt): a(f"v_mul_f32 v{DT+j}, {LOG2E}, v{DT+j}")
    for j in range(cnt): a(f"v_exp_f32 v{DT+j}, v{DT+j}")
    a("s_nop 0")
    for j in range(cnt): a(f"v_cvt_pk_bf16_f32 v{DT+j}, v{DT+j}, v{DT+j}")
    for j in range(cnt): a(f"v_and_b32 v{DT+j}, 0xffff0000, v{DT+j}")
    for j in range(cnt):
        a(f"v_mul_f32 v{A2+j}, v{DT+j}, v{A2+j}\nv_mul_f32 v{B2+j}, v{DT+j}, v{B2+j}")
        a(f"v_mul_f32 v{A2+j}, {LOG2E}, v{A2+j}\nv_mul_f32 v{B2+j}, 0.15915494, v{B2+j}")

def h_static(a):
    t = 32
    a(f"""
    v_bfe_u32 v{t}, v{LANE}, 2, 1
    v_bfe_u32 v{t+1}, v{LANE}, 3, 2
    v_and_b32 v{t+2}, 3, v{LANE}
    v_lshl_add_u32 v{t+3}, v{t+1}, 2, v{t+2}
    v_lshl_add_u32 v{t+3}, v{t}, 4, v{t+3}
    s_lshl_b32 s{sA}, s{sW}, 12
    """)
    xaddr(a, t + 3, f"s{sA}", XA)
    a(f"""
    v_bfe_u32 v{t+4}, v{LANE}, 2, 2             ; r'
    v_bfe_u32 v{t+5}, v{LANE}, 4, 1             ; half
    v_and_b32 v{t+6}, 1, v{LANE}
    v_bfe_u32 v{t+7}, v{LANE}, 1, 1
    v_lshl_add_u32 v{t+8}, v{t+5}, 1, v{t+7}
    v_lshl_add_u32 v{t+8}, v{t+6}, 2, v{t+8}
    v_lshlrev_b32 v{t+8}, 3, v{t+8}
    v_lshl_add_u32 v{t+9}, v{HH}, 3, v{t+4}
    v_lshl_add_u32 v{t+8}, v{t+9}, 8, v{t+8}
    v_lshl_add_u32 v{t+8}, v{t+4}, 6, v{t+8}
    v_add_u32 v{WA}, 16384, v{t+8}
    """)
    for tau in range(1, 4): a(f"v_xor_b32 v{WA+tau}, {64*tau}, v{WA}")
    for i in range(4): a(f"v_xor_b32 v{WOA+i}, {64*i}, v{L16}")
    for i in range(4): a(f"v_mov_b32 v{t+12+i}, -1")
    for i in range(256): a(f"v_accvgpr_write_b32 a{i}, 0")

def helper_task(a, P):
    DBG = sr(S_DBG, 4)
    SLEEP[0] = P.get('sleep', 4); OPT.clear(); OPT.update(P)
    def hs(k, alt=0):
        if P.get('alt') and not alt:
            if k in (4, 5, 6): return
            k = {2: 5, 3: 6}.get(k, k)
        if P.get('stat'): a(f"{'s_memtime' if P.get('hcyc') else 's_memrealtime'} s[{74+2*k}:{75+2*k}]")
    a.label('L_h_task')
    hs(0)
    t = 32
    a(f"""
    s_lshl_b32 s{sSeg}, s{sB}, 3
    s_add_u32 s{sSeg}, s{sSeg}, s{sW}
    s_lshl_b32 s{sXC}, s{sSeg}, 15
    s_lshl_b32 s{sWo1}, s{sH}, 8
    s_and_b32 s{sA}, s{sW}, 1
    s_lshl_b32 s{sA}, s{sA}, 17
    s_add_u32 s{sWo1}, s{sWo1}, s{sA}
    s_lshl_b32 s{sA}, s{sH}, 14
    s_cmp_ge_u32 s{sW}, 2
    s_cselect_b32 s{sWo2}, s{sA}, s{sWo1}
    s_lshl_b32 s{sSlot}, s{sW}, 12
    s_lshl_b32 s{sWoo}, s{sH}, 17
    s_add_u32 s{sWoo}, s{sWoo}, s{sSlot}
    s_mov_b32 s{sSpin}, 0
    """)
    NE = P.get('nearly', 2)
    if P.get('pfw'): a("s_waitcnt vmcnt(0)"); hs(0)
    a(f"""
    s_sub_u32 s{sA3}, s{sB}, 2
    s_cmp_ge_u32 s{sA3}, 5
    s_cbranch_scc1 L_h_nt
    s_lshl_b32 s{sA}, s{sW}, 6
    v_add_u32 v{T}, s{sA}, v{LANE}
    v_lshlrev_b32 v{T+1}, 7, v{T}
    s_cmp_eq_u32 s{sA3}, 4
    s_cbranch_scc1 L_h_t6
    v_lshrrev_b32 v{T+2}, 1, v{T}
    v_and_b32 v{T}, 128, v{T+1}
    v_lshl_add_u32 v{T}, v{T+2}, 13, v{T}
    s_lshl_b32 s{sA}, s{sA3}, 20
    s_lshl_b32 s{sA2}, s{sH}, 8
    s_add_u32 s{sA}, s{sA}, s{sA2}
    buffer_load_dword v255, v{T}, {sr(S_PF,4)}, s{sA} offen
    s_lshl_b32 s{sA}, s{sA3}, 15
    s_lshl_b32 s{sA2}, s{sH}, 17
    s_add_u32 s{sA}, s{sA}, s{sA2}
    buffer_load_dword v255, v{T+1}, {sr(S_WO,4)}, s{sA} offen
    s_branch L_h_nt
    """)
    a.label('L_h_t6')
    a(f"""
    v_lshlrev_b32 v{T+2}, 7, v{LANE}
    s_lshl_b32 s{sA}, s{sH}, 14
    buffer_load_dword v255, v{T+2}, {sr(S_W2,4)}, s{sA} offen
    s_add_u32 s{sA}, s{sA}, 8192
    buffer_load_dword v255, v{T+2}, {sr(S_W2,4)}, s{sA} offen
    v_and_b32 v{T+1}, 0x3fff, v{T+1}
    s_lshl_b32 s{sA}, s{sH}, 14
    v_add_u32 v{T+1}, s{sA}, v{T+1}
    global_load_dword v255, v{T+1}, {sr(P_CRE,2)}
    global_load_dword v255, v{T+1}, {sr(P_CIM,2)}
    """)
    a.label('L_h_nt')
    for st in range(4):
        for g_ in dma_part('A', 'p1') + (dma_part('B', 'p1') if st < 3 else []):
            for l in g_: a(l)
    a(f"""
    s_lshl_b32 s{sA}, s{sSeg}, 18
    s_lshl_b32 s{sA2}, s{sH}, 13
    s_add_u32 s{sA}, s{sA}, s{sA2}
    s_add_u32 s{sClr}, s{sA}, {WS_KM}
    """)
    a(f"""
    s_lshl_b32 s{sA}, s{sB}, 5
    s_add_u32 s{sA}, s{sA}, s{sH}
    s_lshl_b32 s{sA}, s{sA}, 7
    s_add_u32 s{sA}, s{sA}, {WS_A}
    s_mov_b64 exec, 0xff
    buffer_store_dwordx4 {vr(t+12,4)}, v{L16}, {WS}, s{sA} offen sc1
    s_mov_b64 exec, -1
    s_lshl_b32 s{sA}, s{sH}, 2
    s_add_u32 s{sA}, s{sA}, s{sSeg}
    s_lshl_b32 s{sA}, s{sA}, 7
    s_add_u32 s{sA}, s{sA}, {WS_CNT}
    s_cmp_lt_u32 s{sH}, 2
    s_cselect_b32 s{sA}, s{sA}, 0x70000000
    v_mov_b32 v{t+16}, 0
    s_mov_b64 exec, 1
    buffer_store_dword v{t+16}, v{t+16}, {WS}, s{sA} offen sc1
    s_mov_b64 exec, -1
    global_load_dwordx4 {vr(t+20,4)}, v{L16}, {sr(P_GW,2)}
    """)
    a(f"s_cmp_lt_u32 s{sB}, {NE}\ns_cbranch_scc1 L_h_go")
    a(f"v_lshlrev_b32 v{T}, 7, v{LANE}\ns_and_b32 s{sA2}, s{sXC}, 0xfffffc00\ns_waitcnt vmcnt(0)")
    for k in range(8 if P.get('xt', 1) else 0): a(f"s_add_u32 s{sA}, s{sA2}, {(k >> 2) * 131072 + (k & 3) * 8192}\nbuffer_load_dword v255, v{T}, {sr(S_X,4)}, s{sA} offen")
    a(f"s_cmp_lg_u32 s{sW}, 0\ns_cbranch_scc1 L_h_go")
    a.label('L_h_w0')
    a(f"buffer_load_dword v{T}, off, {DBG}, 0 offset:{DBG_GO} sc1\ns_waitcnt vmcnt(0)\nv_cmp_eq_u32 vcc, 0, v{T}\ns_cbranch_vccz L_h_go")
    poll_fail(a, 'L_h_w0', 8)
    a.label('L_h_go')
    a(f"s_waitcnt vmcnt({20 + 3})\ns_barrier")
    hs(1)
    for l in frag_reads(1, 0, 0): a(l)
    if P.get('alt'):
        stage_loop(a, 'L_h_p1x', 1, 'p1', 'x', 4); hs(2, 1)
        stage_loop(a, 'L_h_p1y', 1, 'p1', 'x', 4); hs(3, 1)
        stage_loop(a, 'L_h_p1a', 1, 'p1', 'x', 5); hs(4, 1)
    else: stage_loop(a, 'L_h_p1a', 1, 'p1', 'x', 13)
    a(f"v_add_u32 v{T}, {H_GW}, v{L16}\nds_write_b128 v{T}, {vr(t+20,4)}")
    stage_loop(a, 'L_h_p1b', 1, 'p2', 'x', 3)
    hs(2)
    a(f"""
    s_lshl_b32 s{sA3}, s{sSeg}, 19
    s_lshl_b32 s{sA2}, s{sH}, 14
    s_add_u32 s{sA3}, s{sA3}, s{sA2}
    s_add_u32 s{sA3}, s{sA3}, {WS_KV}
    s_waitcnt lgkmcnt(0)
    s_nop 7
    """)
    TM = 240
    def kv_store(j, m, tau):
        dst = (KF if m == 0 else VF) + 32 * j + 8 * tau
        a(f"s_add_u32 s{sA}, s{sA3}, {j * (4 << 19) + 4096 * tau}")
        for u in range(2): a(f"buffer_store_dwordx4 {vr(dst+4*u,4)}, v{VKV}, {WS}, s{sA} offen offset:{2048*m + 256*u} sc1")
    def signal(tag, off, so, nv):
        a(f"""
        s_waitcnt vmcnt({nv})
        s_barrier
        s_cmp_lg_u32 s{sW}, 0
        s_cbranch_scc1 L_h_ns{tag}
        s_lshl_b32 s{sA}, s{sB}, 2
        v_mov_b32 v{T}, 1
        s_mov_b64 exec, 1
        buffer_atomic_add v{T}, off, {DBG}, {so} offset:{off} {'sc0' if tag == 'b' else ''}
        """)
        if tag == 'b': a(f"s_waitcnt vmcnt(0)\nv_cmp_eq_u32 vcc, 31, v{T}\ns_cbranch_vccz L_h_ng\nbuffer_store_dword v{T}, off, {DBG}, 0 offset:{DBG_GO} sc1"); a.label('L_h_ng')
        a("s_mov_b64 exec, -1")
        a.label(f'L_h_ns{tag}')
    for j in range(2):
        for m in range(2):
            for tau in range(4):
                src = 128 * m + 64 * j + 16 * tau; dst = (KF if m == 0 else VF) + 32 * j + 8 * tau
                for r in range(16): a(f"v_accvgpr_read_b32 v{TM+r}, a{src+r}")
                for r in range(8): a(f"v_cvt_pk_bf16_f32 v{dst+r}, v{TM+2*r}, v{TM+2*r+1}")
                a(f"s_cmp_lg_u32 s{sB}, 0\ns_cbranch_scc1 L_h_sk{j}{m}{tau}")
                kv_store(j, m, tau)
                a.label(f'L_h_sk{j}{m}{tau}')
    a(f"s_cmp_lg_u32 s{sB}, 0\ns_cbranch_scc1 L_h_nsa")
    signal('a', DBG_KV0, '0', 16)
    for i in range(192): a(f"v_accvgpr_write_b32 a{i}, 0")
    a(f"s_lshl_b32 s{sA}, s{sW}, 12")
    xaddr(a, VN, f"s{sA}", XA)
    a(f"""
    v_bfe_u32 v{TM}, v{LANE}, 2, 1
    v_bfe_u32 v{TM+1}, v{LANE}, 3, 1
    v_and_b32 v{TM+2}, 3, v{LANE}
    v_lshl_add_u32 v{TM+2}, v{TM+1}, 2, v{TM+2}
    v_lshl_add_u32 v{TM+2}, v{TM}, 3, v{TM+2}      ; ch
    v_bfe_u32 v{TM+3}, v{LANE}, 4, 1
    v_lshlrev_b32 v{TM+3}, 12, v{TM+3}
    v_add_u32 v{TM+3}, 24576, v{TM+3}
    v_lshlrev_b32 v{GA}, 4, v{HH}
    v_add_u32 v{GA}, {H_GW}, v{GA}
    """)
    xaddr(a, TM + 2, f"v{TM+3}", BA)
    a(f"s_cmp_lg_u32 s{sB}, 0\ns_cbranch_scc1 L_h_nsb")
    signal('b', DBG_KVC, f"s{sA}", 0)
    hs(3)
    for l in frag_reads(2, 0, 0): a(l)
    a(f"s_lshl_b32 s{sA4}, s{sB}, 1\ns_sub_i32 s{sA4}, s{sA4}, 3\ns_max_i32 s{sA4}, s{sA4}, 1\ns_cmp_eq_u32 s{sB}, 7\ns_cselect_b32 s{sA4}, 1, s{sA4}\ns_sub_u32 s{sJ}, 12, s{sA4}")
    stage_loop(a, 'L_h_p20', 2, 'p2', 'x', f"s{sA4}")
    a(f"s_cmp_eq_u32 s{sB}, 0\ns_cbranch_scc1 L_h_nsc")
    for j in range(2):
        for m in range(2):
            for tau in range(4): kv_store(j, m, tau)
    signal('c', DBG_KVC, f"s{sA}", 0)
    stage_loop(a, 'L_h_p2a', 2, 'p2', 'x', f"s{sJ}")
    stage_loop(a, 'L_h_p2c', 2, 'p2', 'wo', 1)
    stage_loop(a, 'L_h_p2b', 2, 'wo', 'wo', 3)
    for g_ in dma_part('B', 'wo'):
        for l in g_: a(l)
    hs(4)
    a("s_waitcnt lgkmcnt(0)\ns_nop 7")
    PK = 128 + 0
    for j in range(2):
        for tau in range(4):
            src = 64 * j + 16 * tau; dst = QF + 32 * j + 8 * tau
            for r in range(16): a(f"v_accvgpr_read_b32 v{TM+r}, a{src+r}")
            for r in range(8): a(f"v_cvt_pk_bf16_f32 v{dst+r}, v{TM+2*r}, v{TM+2*r+1}")
    a(f"""
    v_bfe_u32 v{T}, v{LANE}, 2, 1
    v_bfe_u32 v{T+1}, v{LANE}, 3, 1
    v_and_b32 v{T+2}, 0x13, v{LANE}
    v_lshl_add_u32 v{T+2}, v{T+1}, 2, v{T+2}
    v_lshl_add_u32 v{T+2}, v{T}, 3, v{T+2}
    v_lshlrev_b32 v{T+2}, 10, v{T+2}
    s_lshl_b32 s{sA}, s{sH}, 5
    v_lshl_add_u32 v{T+1}, v{HH}, 4, s{sA}
    v_add_u32 v{T+2}, v{T+2}, v{T+1}
    """)
    for j in range(2):
        for k in range(8):
            D = vr(SS + 16 * j, 16)
            mf(a, D, vr(KF + 32 * j + 4 * k, 4), vr(QF + 32 * j + 4 * k, 4), D if k else 0)
            tile = 8 * j + k
            a(f"global_load_dwordx4 {ar(8*tile,4)}, v{T+2}, {sr(P_CRE,2)}\nglobal_load_dwordx4 {ar(8*tile+4,4)}, v{T+2}, {sr(P_CIM,2)}")
            a(f"v_add_u32 v{T+2}, 32768, v{T+2}")
    RI = 32
    for r in range(32): a(f"v_accvgpr_read_b32 v{RI+r}, a{128+r}")
    a(f"v_accvgpr_read_b32 v{G}, a160\nv_accvgpr_read_b32 v{MX}, a176")
    A2, B2, LR, LI = 64, 72, 80, 88
    a(f"global_load_dwordx4 {vr(LR,4)}, v{T+1}, {sr(P_LRE,2)}\nglobal_load_dwordx4 {vr(LR+4,4)}, v{T+1}, {sr(P_LIM,2)}\nglobal_load_dwordx4 {vr(LI,4)}, v{T+1}, {sr(P_LDT,2)}")
    for r in (G, MX): a(f"v_mul_f32 v{r}, 0xbfb8aa3b, v{r}")
    for r in (G, MX): a(f"v_exp_f32 v{r}, v{r}")
    a("s_nop 0")
    for r in (G, MX): a(f"v_add_f32 v{r}, 1.0, v{r}")
    for r in (G, MX): a(f"v_rcp_f32 v{r}, v{r}")
    a(f"v_lshlrev_b32 v{T}, 4, v{HH}\nv_sub_u32 v{T}, v{VN}, v{T}\nv_mov_b32 v{T+2}, 0xff800000")
    for r in range(16):
        a(f"v_cmp_le_i32 vcc, {r}, v{T}\ns_nop 1")
        for j in range(2): a(f"v_cndmask_b32 v{SS+16*j+r}, v{T+2}, v{SS+16*j+r}, vcc")
    PQ, PV, PS, PH, PG = 128, 160, 192, 208, 216
    for r in range(32): a(f"v_accvgpr_write_b32 a{PQ+r}, v{QF+32+r}\nv_accvgpr_write_b32 a{PV+r}, v{VF+32+r}")
    for r in range(16): a(f"v_accvgpr_write_b32 a{PS+r}, v{SS+16+r}")
    a(f"v_accvgpr_write_b32 a{PG}, v{MX}")
    CA, CB, CD = 192, 193, 194
    a(f"""
    v_and_b32 v{T}, 15, v{LANE}
    s_lshl_b32 s{sA}, s{sH}, 5
    v_lshl_add_u32 v{T+2}, v{T}, 1, s{sA}
    global_load_ushort v{CA}, v{T+2}, {sr(P_LRE,2)}
    global_load_ushort v{CB}, v{T+2}, {sr(P_LIM,2)}
    global_load_ushort v{CD}, v{T+2}, {sr(P_LDT,2)}
    s_waitcnt vmcnt(0)
    """)
    TT, LE, LM = 128, 136, 144
    unpack8(a, LE, LR); unpack8(a, LM, LR + 4); unpack8(a, TT, LI)
    for j in range(8): a(f"v_mov_b32 v{A2+j}, v{LE+j}\nv_mov_b32 v{B2+j}, v{LM+j}")
    dtprep(a, A2, B2, TT, 8)
    pw(a, LR, LI, A2, B2, None, 8, TT)
    for j in range(8):
        a(f"""
        v_mul_f32 v{TT}, v{LE+j}, v{LE+j}
        v_fmac_f32 v{TT}, v{LM+j}, v{LM+j}
        v_rcp_f32 v{TT}, v{TT}
        v_add_f32 v{TT+1}, -1.0, v{LR+j}
        v_mul_f32 v{TT+2}, v{TT+1}, v{LE+j}
        v_fmac_f32 v{TT+2}, v{LI+j}, v{LM+j}
        v_mul_f32 v{TT+3}, v{LI+j}, v{LE+j}
        v_fma_f32 v{TT+3}, -v{TT+1}, v{LM+j}, v{TT+3}
        v_mul_f32 v{LE+j}, v{TT+2}, v{TT}
        v_mul_f32 v{LM+j}, v{TT+3}, v{TT}
        """)
    for d in (1, 2, 4, 8):
        dp = f"row_shr:{d} row_mask:0xf bank_mask:0xf bound_ctrl:1"
        for j in range(2):
            R, I = RI + 16 * j, RI + 16 * j + 8
            for c in range(8): a(f"v_mov_b32 v{TT+c}, v{R+c}")
            for c in range(8): a(f"v_fmac_f32_dpp v{R+c}, v{R+c}, v{LR+c} {dp}")
            for c in range(8): a(f"v_fmac_f32_dpp v{R+c}, -v{I+c}, v{LI+c} {dp}")
            for c in range(8): a(f"v_fmac_f32_dpp v{I+c}, v{I+c}, v{LR+c} {dp}")
            for c in range(8): a(f"v_fmac_f32_dpp v{I+c}, v{TT+c}, v{LI+c} {dp}")
        if d < 8:
            for c in range(8):
                a(f"v_mul_f32 v{TT}, v{LI+c}, v{LI+c}\nv_add_f32 v{TT+1}, v{LR+c}, v{LR+c}\nv_fma_f32 v{LR+c}, v{LR+c}, v{LR+c}, -v{TT}\nv_mul_f32 v{LI+c}, v{TT+1}, v{LI+c}")
    a(f"v_and_b32 v{T+2}, 15, v{LANE}\nv_add_u32 v{T+2}, 1, v{T+2}\nv_cvt_f32_u32 v{T+2}, v{T+2}")
    pw(a, LR, LI, A2, B2, f"v{T+2}", 8, TT)
    dp = "row_bcast:15 row_mask:0xa bank_mask:0xf"
    for j in range(2):
        R, I = RI + 16 * j, RI + 16 * j + 8
        for c in range(8): a(f"v_fmac_f32_dpp v{R+c}, v{R+c}, v{LR+c} {dp}")
        for c in range(8): a(f"v_fmac_f32_dpp v{R+c}, -v{I+c}, v{LI+c} {dp}")
        for c in range(8): a(f"v_fmac_f32_dpp v{I+c}, v{I+c}, v{LR+c} {dp}")
        for c in range(8): a(f"v_fmac_f32_dpp v{I+c}, v{R+c}, v{LI+c} {dp}")
    a(f"""
    s_lshl_b32 s{sA}, s{sW}, 7
    s_add_u32 s{sA}, s{sA}, {H_E}
    v_lshl_add_u32 v{T+2}, v{HH}, 5, s{sA}
    s_mov_b32 exec_lo, 0x80000000
    s_mov_b32 exec_hi, 0x80000000
    """)
    for j in range(2):
        for q in range(4): a(f"ds_write_b128 v{T+2}, {vr(RI + 16*j + 4*q, 4)} offset:{512*j + 64*(q>>1) + 16*(q&1)}")
    a("s_mov_b64 exec, -1")
    a(f"v_lshlrev_b32 v{CA}, 16, v{CA}\nv_lshlrev_b32 v{CB}, 16, v{CB}\nv_lshlrev_b32 v{CD}, 16, v{CD}")
    dtprep(a, CA, CB, CD, 1)
    U, W_ = 196, 198
    pw(a, U, U + 1, CA, CB, "0x42000000", 1, CD)
    pw(a, W_, W_ + 1, CA, CB, "0x43800000", 1, CD)
    a(f"v_add_u32 v{T+2}, 1, v{VN}\nv_cvt_f32_u32 v{T+2}, v{T+2}")
    pw(a, LR, LI, A2, B2, f"v{T+2}", 8, TT)
    EE = 200
    a(f"v_lshlrev_b32 v{T}, 2, v{T}\nv_add_u32 v{T+2}, {H_E}, v{T}\ns_waitcnt lgkmcnt(0)\ns_barrier")
    for s_ in range(8): a(f"ds_read2_b32 {vr(EE+2*s_,2)}, v{T+2} offset0:{32*s_} offset1:{32*s_+16}")
    AC_ = 216
    def cmac(M_, Er):
        a(f"""
        v_fma_f32 v{AC_+2}, v{M_}, v{AC_}, v{Er}
        v_fma_f32 v{AC_+3}, v{M_}, v{AC_+1}, v{Er+1}
        v_fma_f32 v{AC_+2}, -v{M_+1}, v{AC_+1}, v{AC_+2}
        v_fma_f32 v{AC_+1}, v{M_+1}, v{AC_}, v{AC_+3}
        v_mov_b32 v{AC_}, v{AC_+2}
        """)
    a(f"s_waitcnt lgkmcnt(0)\nv_mov_b32 v{AC_}, v{EE}\nv_mov_b32 v{AC_+1}, v{EE+1}")
    for s_ in range(1, 8): cmac(U, EE + 2 * s_)
    a(f"""
    v_min_u32 v{AC_}, -2, v{AC_}
    v_min_u32 v{AC_+1}, -2, v{AC_+1}
    v_lshlrev_b32 v{T+1}, 1, v{T}
    s_lshl_b32 s{sA3}, s{sH}, 7
    s_add_u32 s{sA3}, s{sA3}, {WS_A}
    s_lshl_b32 s{sA}, s{sB}, 12
    s_add_u32 s{sA}, s{sA}, s{sA3}
    s_cmp_eq_u32 s{sW}, 0
    s_cselect_b32 s{sA}, s{sA}, 0x70000000
    buffer_store_dwordx2 {vr(AC_,2)}, v{T+1}, {WS}, s{sA} offen sc1
    v_and_b32 v{T+2}, 7, v{LANE}
    v_cmp_gt_u32 {sr(sM,2)}, s{sB}, v{T+2}
    v_lshlrev_b32 v{T+2}, 2, v{T+2}
    v_mov_b32 v{AC_}, 0
    v_mov_b32 v{AC_+1}, 0
    s_mov_b32 s{sCnt}, 0
    """)
    a.label('L_h_wk')
    a(f"""
    buffer_load_dword v{AC_+2}, v{T+2}, {DBG}, 0 offen offset:{DBG_KVC} sc1
    s_waitcnt vmcnt(0)
    v_cmp_gt_u32 vcc, 32, v{AC_+2}
    s_and_b64 vcc, vcc, {sr(sM,2)}
    s_cbranch_vccz L_h_wa
    """)
    poll_fail(a, 'L_h_wk')
    a.label('L_h_wa')
    a(f"""
    s_cmp_ge_u32 s{sCnt}, s{sB}
    s_cbranch_scc1 L_h_wd
    buffer_load_dwordx2 {vr(220,2)}, v{T+1}, {WS}, s{sA3} offen sc1
    s_waitcnt vmcnt(0)
    v_max_u32 v{AC_+2}, v220, v221
    v_cmp_eq_u32 vcc, -1, v{AC_+2}
    s_cbranch_vccz L_h_wb
    """)
    poll_fail(a, 'L_h_wa')
    a.label('L_h_wb')
    cmac(W_, 220)
    a(f"s_add_u32 s{sCnt}, s{sCnt}, 1\ns_add_u32 s{sA3}, s{sA3}, 4096\ns_branch L_h_wa")
    a.label('L_h_wd')
    a(f"s_lshl_b32 s{sA}, s{sW}, 10\ns_add_u32 s{sA}, s{sA}, {H_C}\nv_add_u32 v{T+2}, s{sA}, v{T}")
    for s_ in range(8):
        a(f"ds_write2_b32 v{T+2}, v{AC_}, v{AC_+1} offset0:{32*s_} offset1:{32*s_+16}")
        if s_ < 7: cmac(U, EE + 2 * s_)
    a(f"""
    s_lshl_b32 s{sA2}, s{sW}, 7
    s_add_u32 s{sA}, s{sA}, s{sA2}
    v_lshl_add_u32 v{T+2}, v{HH}, 5, s{sA}
    s_waitcnt lgkmcnt(0)
    """)
    CC = 192
    for j in range(2):
        for q in range(4): a(f"ds_read_b128 {vr(CC + 16*j + 4*q, 4)}, v{T+2} offset:{512*j + 64*(q>>1) + 16*(q&1)}")
    a(f"v_add_f32 v{T}, v{G}, v{G}\nv_add_f32 v{T+1}, v{MX}, v{MX}\ns_waitcnt lgkmcnt(0)")
    for j in range(2):
        R, I, cr, ci = RI + 16 * j, RI + 16 * j + 8, CC + 16 * j, CC + 16 * j + 8
        for c in range(8):
            a(f"""
            v_fmac_f32 v{R+c}, v{LR+c}, v{cr+c}
            v_fmac_f32 v{I+c}, v{LR+c}, v{ci+c}
            v_fma_f32 v{R+c}, -v{LI+c}, v{ci+c}, v{R+c}
            v_fmac_f32 v{I+c}, v{LI+c}, v{cr+c}
            v_mul_f32 v{cr+c}, v{R+c}, v{LE+c}
            v_mul_f32 v{ci+c}, v{R+c}, v{LM+c}
            v_fma_f32 v{cr+c}, -v{I+c}, v{LM+c}, v{cr+c}
            v_fmac_f32 v{ci+c}, v{I+c}, v{LE+c}
            v_mul_f32 v{cr+c}, v{cr+c}, v{T+j}
            v_mul_f32_e64 v{ci+c}, -v{ci+c}, v{T+j}
            """)
        for r in range(8): a(f"v_cvt_pk_bf16_f32 v{HF+8*j+r}, v{cr+2*r}, v{cr+2*r+1}")
    for r in range(8): a(f"v_accvgpr_write_b32 a{PH+r}, v{HF+8+r}")
    a(f"""
    v_bfe_u32 v{t+4}, v{LANE}, 2, 2
    v_bfe_u32 v{t+5}, v{LANE}, 4, 1
    v_and_b32 v{t+6}, 1, v{LANE}
    v_bfe_u32 v{t+7}, v{LANE}, 1, 1
    v_lshl_add_u32 v{t+8}, v{t+6}, 1, v{t+7}
    v_lshl_add_u32 v{t+8}, v{t+5}, 2, v{t+8}
    v_lshlrev_b32 v{t+8}, 3, v{t+8}
    v_lshl_add_u32 v{t+9}, v{HH}, 4, v{t+4}
    v_lshl_add_u32 v{t+8}, v{t+9}, 10, v{t+8}
    v_lshl_add_u32 v{WOA}, v{t+4}, 6, v{t+8}
    """)
    for tt in range(1, 4): a(f"v_xor_b32 v{WOA+tt}, {64*tt}, v{WOA}")
    for tt in range(4): a(f"v_add_u32 v{WOA+4+tt}, 0x10000, v{WOA+tt}")
    a(f"s_mov_b32 s{sJ}, 0")
    hs(5)
    a.label('L_h_seg')
    KMF, VMF, SM, PX, PM, OA_ = 32, 64, 80, 248, 128, 192
    a(f"v_max3_f32 v{MX}, v{SS}, v{SS+1}, v{SS+2}")
    for r in range(3, 15, 2): a(f"v_max3_f32 v{MX}, v{MX}, v{SS+r}, v{SS+r+1}")
    a(f"""
    v_max_f32 v{MX}, v{MX}, v{SS+15}
    s_lshl_b32 s{sA}, s{sSeg}, 18
    s_lshl_b32 s{sA2}, s{sH}, 13
    s_add_u32 s{sA}, s{sA}, s{sA2}
    s_add_u32 s{sA}, s{sA}, {WS_KM}
    s_add_u32 s{sA2}, s{sA}, 4096
    s_mov_b32 s{sA4}, 0x3e0293ee
    v_mov_b32 v{T+1}, 1024
    """)
    a.label('L_h_pr')
    a(f"""
    buffer_load_dword v{T}, v{T+1}, {WS}, s{sA} offen sc1
    s_waitcnt vmcnt(0)
    v_cmp_eq_u32 vcc, -1, v{T}
    s_cbranch_vccz L_h_ld
    """)
    a.label('L_h_pf')
    poll_fail(a, 'L_h_pr')
    a.label('L_h_ld')
    hs(6)
    for tau in range(4):
        S_ = sA if tau < 2 else sA2
        for u in range(2): a(f"buffer_load_dwordx4 {vr(KMF + 8*tau + 4*u, 4)}, v{VKM}, {WS}, s{S_} offen offset:{2048*(tau&1) + 256*u} sc1")
    for tau in range(4):
        S_ = sA if tau < 2 else sA2
        for u in range(2): a(f"buffer_load_dwordx2 {vr(VMF + 4*tau + 2*u, 2)}, v{VVM}, {WS}, s{S_} offen offset:{2048*(tau&1) + 512*u} sc1")
    a("s_waitcnt vmcnt(0)")
    ck = [f"v_max3_u32 v{T}, v{KMF}, v{KMF+1}, v{KMF+2}"] + [f"v_max3_u32 v{T}, v{T}, v{KMF+r}, v{KMF+r+1}" for r in range(3, 47, 2)] + [f"v_max_u32 v{T}, v{T}, v{KMF+47}", f"v_cmp_eq_u32 vcc, -1, v{T}"]
    for k in range(8):
        mf(a, vr(SM, 16), vr(KMF + 4 * k, 4), vr(QF + 4 * k, 4), vr(SM, 16) if k else 0)
        for _ in range(4):
            if ck: a(ck.pop(0))
    assert not ck
    a("s_cbranch_vccnz L_h_pf\ns_nop 11")
    a(f"""
    v_max3_f32 v{T}, v{MX}, v{SM}, v{SM+1}
    v_max3_f32 v{T}, v{T}, v{SM+2}, v{SM+3}
    v_mov_b32 v{T+1}, v{T}
    s_nop 1
    v_permlane32_swap_b32 v{T}, v{T+1}
    v_max_f32 v{T}, v{T}, v{T+1}
    v_mul_f32 v{T}, s{sA4}, v{T}
    """)
    ev = [SM + r for r in range(4)] + [SS + r for r in range(16)]
    for r in ev: a(f"v_fma_f32 v{r}, v{r}, s{sA4}, -v{T}")
    for r in ev: a(f"v_exp_f32 v{r}, v{r}")
    a(f"v_cvt_pk_bf16_f32 v{PM}, v{SM}, v{SM+1}\nv_cvt_pk_bf16_f32 v{PM+1}, v{SM}, v{SM+1}\nv_cvt_pk_bf16_f32 v{PM+2}, v{SM+2}, v{SM+3}\nv_cvt_pk_bf16_f32 v{PM+3}, v{SM+2}, v{SM+3}")
    for r in range(8): a(f"v_cvt_pk_bf16_f32 v{PX+r}, v{SS+2*r}, v{SS+2*r+1}")
    sm = [f"v_add_f32 v{T}, v{ev[0]}, v{ev[1]}"] + [f"v_add_f32 v{T}, v{T}, v{r}" for r in ev[2:]]
    sm += [f"v_mov_b32 v{T+1}, v{T}", f"v_sub_f32 v{T+2}, 1.0, v{G}", "s_nop 0", f"v_permlane32_swap_b32 v{T}, v{T+1}", f"v_add_f32 v{T}, v{T}, v{T+1}",
           f"v_rcp_f32 v{T}, v{T}", "s_nop 0", f"v_mul_f32 v{T}, v{T}, v{T+2}"]
    WF = 32
    wrd = lambda tile: [f"ds_read_b64_tr_b16 {vr(WF + 32*(tile&1) + 4*k + 2*pp, 2)}, v{WOA + 4*(k>>2) + (tile&3)} offset:{(32*((k>>1)&1) + 8*(k&1) + 4*pp)*1024 + 256*(tile>>2)}"
                        for k in range(8) for pp in range(2)]
    rd = wrd(0)
    OB = [192, 208, 132, 148]
    OB = [192, 208, 132, 80]
    def onorm(tau):
        L_ = [f"v_mul_f32 v{OB[tau]+r}, v{OB[tau]+r}, v{T}" for r in range(16)]
        L_ += [f"v_cvt_pk_bf16_f32 v{QF+8*tau+r}, v{OB[tau]+2*r}, v{OB[tau]+2*r+1}" for r in range(8)]
        return L_
    n = 0
    for tau in range(4):
        D = vr(OB[tau], 16)
        for k in range(3):
            if k == 0: mf(a, D, vr(VMF + 4 * tau, 4), vr(PM, 4), 0)
            else: mf(a, D, vr(VF + 8 * tau + 4 * (k - 1), 4), vr(PX + 4 * (k - 1), 4), D)
            for _ in range(2):
                if rd: a(rd.pop(0))
            if n == 6: sm += onorm(0)
            if n == 9: sm += onorm(1)
            for _ in range(6):
                if sm: a(sm.pop(0))
            n += 1
    for l in sm + onorm(2) + onorm(3): a(l)
    hs(7)
    a(f"""
    s_lshl_b32 s{sA}, s{sSeg}, 20
    s_lshl_b32 s{sA2}, s{sH}, 10
    s_add_u32 s{sA}, s{sA}, s{sA2}
    s_add_u32 s{sA}, s{sA}, {WS_PART}
    """)
    CT = 128
    def epi(tile):
        D = 192 + 16 * (tile & 1); c = CT + 8 * (tile & 1)
        L_ = []
        for u in range(2):
            L_ += [f"v_cvt_pk_bf16_f32 v{c+4*u+r}, v{D+8*u+2*r}, v{D+8*u+2*r+1}" for r in range(4)]
        for u in range(2):
            L_ += [f"buffer_store_dwordx4 {vr(c+4*u,4)}, v{L16}, {WS}, s{sA} offen sc1\ns_add_u32 s{sA}, s{sA}, 32768"]
        return L_
    for tile in range(16):
        D = vr(192 + 16 * (tile & 1), 16)
        rd = wrd(tile + 1) if tile < 15 else []
        ep = epi(tile - 1) if tile else []
        for k in range(10):
            if k == 2: a("s_waitcnt lgkmcnt(0)")
            if k < 2: mf(a, D, ar(8 * tile + 4 * k, 4), vr(HF + 4 * k, 4), D if k else 0)
            else: mf(a, D, vr(WF + 32 * (tile & 1) + 4 * (k - 2), 4), vr(QF + 4 * (k - 2), 4), D)
            if k >= 2:
                for _ in range(2):
                    if rd: a(rd.pop(0))
            if ep and k >= 6 and len(ep) <= 2: a(ep.pop(0))
            elif ep and k >= 1 and len(ep) > 2:
                a(ep.pop(0)); a(ep.pop(0))
        assert not ep and not rd
    a("s_nop 12")
    for l in epi(15): a(l)
    hs(8)
    SELR, XS, DS_ = 216, 208, 212
    a(f"""
    s_lshl_b32 s{sA3}, s{sSeg}, 15
    s_lshl_b32 s{sA2}, s{sH}, 5
    s_add_u32 s{sA3}, s{sA3}, s{sA2}
    v_lshlrev_b32 v{T+1}, 4, v{HH}
    v_lshl_add_u32 v{T+2}, v{VN}, 10, v{T+1}
    v_add_u32 v{T+1}, s{sA2}, v{T+1}
    s_lshl_b32 s{sA4}, s{sSeg}, 7
    s_add_u32 s{sA4}, s{sA4}, {WS_CNT}
    v_mov_b32 v220, 1
    v_mov_b32 v221, 0
    s_waitcnt vmcnt(0)
    s_mov_b64 exec, 1
    buffer_atomic_add v220, v221, {WS}, s{sA4} offen
    s_mov_b64 exec, -1
    buffer_load_dwordx4 {vr(XS,4)}, v{T+2}, {sr(S_X,4)}, s{sA3} offen
    global_load_dwordx4 {vr(DS_,4)}, v{T+1}, {sr(P_DSK,2)}
    v_bfe_u32 v{t}, v{LANE}, 2, 1
    v_bfe_u32 v{t+1}, v{LANE}, 3, 2
    v_and_b32 v{t+2}, 3, v{LANE}
    v_lshl_add_u32 v{t+1}, v{t+1}, 2, v{t+2}
    v_cmp_eq_u32 vcc, v{t}, v{HH}
    v_mov_b32 v{t+3}, 64
    s_mov_b32 s{sA2}, 0x3f80
    v_cndmask_b32 v{t+1}, v{t+3}, v{t+1}, vcc
    v_and_b32 v{t+2}, 1, v{t+1}
    v_lshlrev_b32 v{t+2}, 4, v{t+2}
    v_lshlrev_b32 v{t+2}, v{t+2}, s{sA2}
    v_lshrrev_b32 v{t+1}, 1, v{t+1}
    """)
    for d in range(4): a(f"v_cmp_eq_u32 vcc, {d}, v{t+1}\ns_nop 1\nv_cndmask_b32 v{SELR+d}, 0, v{t+2}, vcc")
    a(f"""
    s_lshl_b32 s{sA}, s{sSeg}, 20
    s_lshl_b32 s{sA2}, s{sH}, 15
    s_add_u32 s{sA}, s{sA}, s{sA2}
    s_add_u32 s{sA}, s{sA}, {WS_PART}
    s_lshl_b32 s{sA3}, s{sA3}, 1
    v_lshlrev_b32 v{T+2}, 1, v{T+2}
    s_waitcnt vmcnt(0)
    """)
    XU, DU = 224, 232
    unpack8(a, XU, XS); unpack8(a, DU, DS_)
    for r in range(8): a(f"v_mul_f32 v{XU+r}, v{XU+r}, v{DU+r}")
    a.label('L_h_wc')
    a(f"""
    buffer_load_dword v220, v221, {WS}, s{sA4} offen sc1
    s_waitcnt vmcnt(0)
    v_cmp_gt_u32 vcc, 32, v220
    s_cbranch_vccz L_h_rd
    """)
    poll_fail(a, 'L_h_wc')
    a.label('L_h_rd')
    hs(9)
    for k in range(32):
        a(f"buffer_load_dwordx4 {vr(32+4*k,4)}, v{L16}, {WS}, s{sA} offen offset:{1024*(k&3)} sc1")
        if k & 3 == 3: a(f"s_add_u32 s{sA}, s{sA}, 4096")
    for k in range(32):
        a(f"s_waitcnt vmcnt({31-k})")
        mf(a, vr(192, 16), vr(SELR, 4), vr(32 + 4 * k, 4), vr(192, 16) if k else 0)
    a("s_nop 12")
    for r in range(8): a(f"v_fmac_f32 v{192+r}, v{XU+r}, v{G}")
    a(f"""
    buffer_store_dwordx4 v[192:195], v{T+2}, {sr(S_OUT,4)}, s{sA3} offen
    buffer_store_dwordx4 v[196:199], v{T+2}, {sr(S_OUT,4)}, s{sA3} offen offset:16
    s_cmp_lg_u32 s{sJ}, 0
    s_cbranch_scc1 L_h_done
    s_mov_b32 s{sJ}, 1
    s_add_u32 s{sSeg}, s{sSeg}, 4
    """)
    for r in range(32): a(f"v_accvgpr_read_b32 v{QF+r}, a{PQ+r}\nv_accvgpr_read_b32 v{VF+r}, a{PV+r}")
    for r in range(16): a(f"v_accvgpr_read_b32 v{SS+r}, a{PS+r}")
    for r in range(8): a(f"v_accvgpr_read_b32 v{HF+r}, a{PH+r}")
    a(f"v_accvgpr_read_b32 v{G}, a{PG}\ns_branch L_h_seg")
    a.label('L_h_done')
    if P.get('stat'):
        a("s_waitcnt vmcnt(0)"); hs(10); a("s_waitcnt lgkmcnt(0)")
        for k in range(11): a(f"v_mov_b32 v{32+k}, s{74+2*k}")
        a(f"v_mov_b32 v43, s98\ns_lshl_b32 s{sA}, s{sB}, 5\ns_add_u32 s{sA}, s{sA}, s{sH}\ns_lshl_b32 s{sA}, s{sA}, 2\ns_add_u32 s{sA}, s{sA}, s{sW}\ns_lshl_b32 s{sA}, s{sA}, 6\ns_add_u32 s{sA}, s{sA}, {(49 << 20) + (512 << 10)}\ns_mov_b64 exec, 1")
        for q in range(3): a(f"buffer_store_dwordx4 {vr(32+4*q,4)}, v{L16}, {WS}, s{sA} offen offset:{16*q}")
        a("s_mov_b64 exec, -1")
    a(f"""
    s_cmp_lg_u32 s{sB}, 0
    s_cbranch_scc1 L_end
    s_mov_b32 s{sB}, 7
    s_waitcnt vmcnt(0)
    s_branch L_h_again
    """)

if __name__ == '__main__':
    a = Asm(); h_once(a); helper_task(a, {})
    errs, ins = check(a.lines, 'helper')
    for e in errs: print(e)
    print(len(ins), ins[-1]['t'])
```

```python
import sys, json
from asmlib import *
import chain, helper
from chain import *
KNAME = 'gated_mix__ssm_conv_s5__memory_aug_recurrent_mem_tr__prompt_kernel'
L_EL = {'c': 16384 - 16, 'h': 163840 - 16}
JUNK = {'c': 127, 'h': 255}

def ticket(a, tag, off_s):
    a(f"""
    s_cmp_lg_u32 s{sW}, 0
    s_cbranch_scc1 L_tk_{tag}
    s_mov_b64 exec, 1
    v_mov_b32 v126, 1
    buffer_atomic_add v126, off, {sr(S_DBG,4)}, {off_s} sc0
    s_mov_b64 exec, -1
    """)
    a.label(f'L_tk_{tag}')
def ticket_get(a, tag, nyoung):
    a(f"""
    v_mov_b32 v125, {L_EL[tag]}
    s_cmp_lg_u32 s{sW}, 0
    s_cbranch_scc1 L_tg_{tag}
    s_waitcnt vmcnt({nyoung})
    s_mov_b64 exec, 1
    ds_write_b32 v125, v126
    s_mov_b64 exec, -1
    s_waitcnt lgkmcnt(0)
    """)
    a.label(f'L_tg_{tag}')
    a(f"""
    s_barrier
    ds_read_b32 v126, v125
    s_waitcnt lgkmcnt(0)
    v_readfirstlane_b32 s{sT+1}, v126
    s_cmp_ge_u32 s{sT+1}, 32
    s_cbranch_scc1 L_end
    """)
def code_pref(a, lo, hi):
    a(f"s_getpc_b64 s[60:61]")
    a.label(f'L_pc_{lo}')
    a(f"v_lshlrev_b32 v1, 7, v0\nv_min_u32 v2, {hi}-L_pc_{lo}-4, v1\nglobal_load_dword v{JUNK[lo]}, v2, s[60:61]\nv_add_u32 v1, 0x8000, v1\nv_min_u32 v2, {hi}-L_pc_{lo}-4, v1\nglobal_load_dword v{JUNK[lo]}, v2, s[60:61]")

def build_kernel(P):
    a = Asm()
    a("s_cmp_ge_u32 s2, 256\ns_cbranch_scc1 L_end")
    srd(a, S_DBG, 144, 256); srd(a, S_WS, 152, WS_SIZE)
    if P.get('stat'): a("s_memtime s[96:97]\ns_memrealtime s[98:99]")
    a(f"""
    s_getreg_b32 s{sT}, hwreg(HW_REG_XCC_ID, 0, 3)
    v_lshrrev_b32 v1, 6, v0
    s_bfe_u32 s3, s2, 0x50003
    v_readfirstlane_b32 s{sW}, v1
    s_cmp_eq_u32 s{sT}, 0
    s_cbranch_scc1 L_chain
    """)
    if P.get('nohelp'): a("s_branch L_end")
    n0 = 0
    helper.h_ptrs(a)
    a(f"s_sub_u32 s{sT}, s{sT}, 1\ns_mul_i32 s57, s{sT}, 28\ns_add_u32 s57, s57, 64\ns_waitcnt lgkmcnt(0)")
    ticket(a, 'h', "s57")
    ny = helper.h_prefetch(a, sT)
    code_pref(a, 'h', 'L_chain')
    helper.h_once(a)
    a(f"s_mov_b32 s{helper.sB}, 0")
    a.label('L_h_again')
    helper.h_static(a)
    a(f"s_cmp_eq_u32 s{helper.sB}, 7\ns_cbranch_scc0 L_h_first\ns_barrier\ns_branch L_h_task")
    a.label('L_h_first')
    ticket_get(a, 'h', ny + 2)
    a(f"""
    s_lshl_b32 s{sT}, s{sT}, 5
    s_add_u32 s{sT}, s{sT}, s{sT+1}
    s_mul_i32 s{sH}, s{sT}, 9363
    s_lshr_b32 s{sH}, s{sH}, 16
    s_mul_i32 s{sT+1}, s{sH}, 7
    s_sub_u32 s{helper.sB}, s{sT}, s{sT+1}
    """)
    helper.helper_task(a, P)
    errs, _ = check(a.lines[n0:], 'helper')
    a.label('L_chain')
    n0 = len(a.lines)
    srd(a, S_WV, 104, 4194304); srd(a, S_WK, 96, 4194304); srd(a, S_WQ, 88, 4194304); srd(a, S_WO, 112, 4194304); srd(a, S_M0, 80, 8192)
    a("s_waitcnt lgkmcnt(0)")
    ticket(a, 'c', '0')
    a(f"""
    v_lshrrev_b32 v1, 1, v0
    v_and_b32 v2, 1, v0
    v_lshlrev_b32 v2, 7, v2
    v_lshl_add_u32 v1, v1, 13, v2
    s_lshl_b32 s{sT+2}, s3, 8
    buffer_load_dword v127, v1, {sr(S_WV,4)}, s{sT+2} offen
    s_add_u32 s{sT+2}, s{sT+2}, {128*8192}
    buffer_load_dword v127, v1, {sr(S_WV,4)}, s{sT+2} offen
    """)
    code_pref(a, 'c', 'L_end')
    ticket_get(a, 'c', 4)
    a(f"s_mov_b32 s{sH}, s{sT+1}")
    if P.get('stat'):
        for r in [70, 71] + list(range(88, 96)): a(f"s_mov_b32 s{r}, 0")
        a("s_memtime s[60:61]")
    a.lg = []; a.vm = []
    chain_first_dma(a)
    chain_setup(a)
    chain_prologue(a, P)
    e, _ = check(a.lines[n0:], 'cpro'); errs += e
    vm0 = list(a.vm)
    for w in range(4):
        n0 = len(a.lines)
        chain_prologue_w(a, P, w, vm0)
        e, _ = check(a.lines[n0:], f'cpro{w}'); errs += e
    for w in range(4):
        a(".p2align 6")
        n0 = len(a.lines)
        n1, _ = chain_step(a, P, w)
        e, ins = check(a.lines[n0:n1] * 2, f'loop{w}'); errs += e
        e, _ = check(a.lines[n1:], f'retry{w}'); errs += e
    a.label('L_last')
    a(f"buffer_store_dwordx4 {vr(V0,4)}, v{L16}, {sr(S_WS,4)}, s{sKM} offen offset:1024 sc1")
    a.label('L_exit')
    if P.get('stat'):
        a(f"""
        s_memtime s[66:67]
        s_memrealtime s[72:73]
        s_waitcnt lgkmcnt(0)
        s_mov_b32 s93, s72
        s_mov_b32 s94, s98
        s_mov_b32 s92, s100
        s_sub_u32 s91, s72, s62
        s_sub_u32 s88, s66, s96
        s_sub_u32 s66, s66, s68
        s_sub_u32 s64, s64, s96
        s_sub_u32 s95, s60, s96
        s_nop 7
        v_mov_b32 v24, s64
        v_mov_b32 v25, s66
        v_mov_b32 v26, s70
        v_mov_b32 v27, s71
        s_lshl_b32 s{sT}, s{sH}, 2
        s_add_u32 s{sT}, s{sT}, s{sW}
        s_lshl_b32 s{sT}, s{sT}, 6
        s_add_u32 s{sT}, s{sT}, {WS_STAMP}
        v_mov_b32 v28, 0
        buffer_store_dwordx4 v[24:27], v28, {sr(S_WS,4)}, s{sT} offen
        """)
        for k in range(8): a(f"v_mov_b32 v{32+k}, s{88+k}")
        a(f"buffer_store_dwordx4 v[32:35], v28, {sr(S_WS,4)}, s{sT} offen offset:16\nbuffer_store_dwordx4 v[36:39], v28, {sr(S_WS,4)}, s{sT} offen offset:32")
    a.label('L_end')
    return a, errs

def full_text(P):
    a, errs = build_kernel(P)
    ref = open('gated_mix__ssm_conv_s5__memory_aug_recurrent_mem_tr__prompt.s.ref').read()
    head = ref[:ref.index('; @launch')]
    txt = head + f"""; @launch grid=(256,1,1) block=(256,1,1) lds=163840
.amdgcn_target "amdgcn-amd-amdhsa--gfx950"
.text
.globl {KNAME}
.p2align 8
.type {KNAME},@function
{KNAME}:
{a.text()}    s_endpgm
.section .rodata,"a"
.p2align 6
.amdhsa_kernel {KNAME}
  .amdhsa_next_free_vgpr 512
  .amdhsa_next_free_sgpr 102
  .amdhsa_accum_offset 256
  .amdhsa_group_segment_fixed_size 0
  .amdhsa_kernarg_size 160
  .amdhsa_user_sgpr_count 2
  .amdhsa_user_sgpr_kernarg_segment_ptr 1
  .amdhsa_system_sgpr_workgroup_id_x 1
  .amdhsa_float_denorm_mode_32 3
.end_amdhsa_kernel
"""
    return txt, errs

if __name__ == '__main__':
    P = json.loads(sys.argv[2]) if len(sys.argv) > 2 else {}
    txt, errs = full_text(P)
    for e in errs: print('HAZ', e)
    out = sys.argv[1] if len(sys.argv) > 1 else 'gated_mix__ssm_conv_s5__memory_aug_recurrent_mem_tr__prompt.s'
    open(out, 'w').write(txt)
    print('wrote', out, len(txt))
```

```python
from asmlib import *

WS_KV = 0
WS_KM = 32 << 20
WS_H1 = 48 << 20
WS_IMG = WS_H1 + (512 << 10)
WS_FL = WS_IMG + (64 << 10)
WS_DUMMY = WS_IMG + (128 << 10)
WS_STAMP = 49 << 20
WS_SIZE = 268435456
DBG_XCNT = 0
DBG_CBAR = 4
DBG_KV0 = 12
DBG_KVC = 16
DBG_DN = 128
L_MEM, L_S, L_KV, L_W = 0, 8192, 16384, 32768
L_O = L_MEM
L_SM = L_S + 1024
L_MISC = L_S + 5120
S_WS, S_WQ, S_WK, S_WV, S_WO, S_DBG, S_M0 = 4, 8, 12, 16, 20, 24, 28
sH, sW, sS = 32, 33, 34
sKV, sKM, sH1l, sTAG, sIMl = 35, 36, 37, 38, 39
sH1 = 40
sIMw, sIMr, sFL, sSPIN = 44, 45, 46, 47
sIML, sKMv = 59, 58
sONE, sMLO, sFLn, sFG = 84, 86, 3, 2
sC = 48
sT = 50
IDX, L16, A_W, A_SMW, NEG1, A_O, A_H1S, A_IMS = 0, 1, 2, 3, 4, 5, 6, 7
A_OW, FLV, HZ = 8, 9, 10
F, SEL, ONE = 12, 16, 20
MA = 24
Q0, K0, Q1, K1, V0, V1 = 56, 60, 64, 68, 72, 76
KX, VX, ST = 80, 88, 96
RW = 128
SPIN_MAX = 200000

QK_A = {1: 0, 2: 1, 3: 2, 5: 3, 6: 4, 7: 5}
def wqk_reg(sig, u):
    if sig in (0, 4): return ('v', ST + 8 * u)
    return ('a', 32 * QK_A[sig] + 8 * u)
def wv_reg(sig, tau):
    if sig < 4: return ('a', 192 + 8 * (2 * sig + tau))
    return ('v', RW + 8 * (2 * (sig - 4) + tau))
def wo_reg(T, k2):
    if T < 2: return ('v', RW + 64 + 8 * (4 * T + k2))
    return ('v', (ST if T == 2 else MA) + 8 * k2)
def R8(r): return vr(r[1], 8, r[0])
def smf(a, D, A, B): a(f"v_smfmac_f32_16x16x64_bf16 {vr(D,4)}, {vr(A,4)}, {R8(B)}, v{IDX}")
def lw_qk(sig, u): return 8192 * (sig >> 2) + 4096 * (u & 1) + 2048 * (u >> 1)
def lw_wo(T, k2): return 16384 + 2048 * (4 * (T - 2) + k2)
def nops(a, n):
    while n > 0:
        k = min(n, 16); a(f"s_nop {k-1}"); n -= k

def srd(a, s, koff, size):
    a(f"s_load_dwordx2 {sr(s,2)}, s[0:1], {koff}")
    a(f"s_mov_b32 s{s+2}, {size}\ns_mov_b32 s{s+3}, 0x20000")

def chain_setup(a):
    t = 96
    lane, i, g, g1, g0, hi, i3, i2 = t + 1, t + 2, t + 3, t + 6, t + 7, t + 8, t + 9, t + 10
    x, y, z = t + 5, t + 12, t + 13
    a(f"""
    v_and_b32 v{lane}, 63, v0
    v_and_b32 v{i}, 15, v{lane}
    v_lshrrev_b32 v{g}, 4, v{lane}
    v_lshlrev_b32 v{L16}, 4, v{lane}
    v_lshrrev_b32 v{g1}, 1, v{g}
    v_and_b32 v{g0}, 1, v{g}
    v_lshrrev_b32 v{hi}, 3, v{i}
    v_and_b32 v{i3}, 3, v{i}
    v_lshrrev_b32 v{i2}, 2, v{i}
    s_lshl_b32 s{sT+1}, s{sW}, 15
    s_add_u32 s{sT+1}, s{sT+1}, {L_W}
    v_add_u32 v{A_W}, s{sT+1}, v{L16}
    v_lshl_add_u32 v{y}, v{hi}, 1, v{g0}
    v_and_b32 v{x}, 7, v{i}
    v_lshl_add_u32 v{x}, v{y}, 4, v{x}
    v_lshlrev_b32 v{x}, 4, v{x}
    v_add_u32 v{y}, s{sW}, v{y}
    v_and_b32 v{y}, 3, v{y}
    v_lshl_add_u32 v{x}, v{y}, 2, v{x}
    v_xor_b32 v{y}, 1, v{g1}
    v_lshl_add_u32 v{x}, v{y}, 11, v{x}
    v_add_u32 v{A_SMW}, {L_SM}, v{x}
    v_mov_b32 v{HZ}, 0x3f803f80
    v_mov_b32 v{HZ+1}, 0
    v_mov_b32 v{NEG1}, -1
    v_and_b32 v{A_O}, 0x37f, v{L16}
    v_lshlrev_b32 v{y}, 7, v{g0}
    v_or_b32 v{A_O}, v{A_O}, v{y}
    v_xor_b32 v{A_OW}, v{L16}, v{y}
    v_mov_b32 v{FLV}, 0
    v_cmp_lt_u32 vcc, 7, v{i}
    v_mov_b32 v{y}, 0x4444
    v_mov_b32 v{z}, 0xeeee
    v_cndmask_b32 v{t+11}, v{y}, v{z}, vcc
    """)
    a(f"""
    v_lshlrev_b32 v{x}, 2, v{g1}
    v_lshl_add_u32 v{x}, v{hi}, 1, v{x}
    v_add_u32 v{x}, v{x}, v{g0}
    v_lshlrev_b32 v{x}, 11, v{x}
    v_and_b32 v{y}, 7, v{i}
    v_lshl_add_u32 v{x}, v{y}, 3, v{x}
    s_lshl_b32 s{sT+2}, s{sW}, 14
    s_lshl_b32 s{sT+3}, s{sH}, 6
    s_add_u32 s{sT+2}, s{sT+2}, s{sT+3}
    v_add_u32 v{A_H1S}, s{sT+2}, v{x}
    """)
    a(f"""
    s_lshl_b32 s{sT+2}, s{sW}, 5
    s_add_u32 s{sT+2}, s{sT+2}, s{sH}
    s_lshl_b32 s{sT+2}, s{sT+2}, 6
    v_lshlrev_b32 v{x}, 4, v{g}
    v_lshl_add_u32 v{x}, v{i}, 2, v{x}
    v_add_u32 v{x}, s{sT+2}, v{x}
    v_cmp_gt_u32 vcc, 4, v{i}
    v_bfrev_b32 v{z}, 1
    s_nop 0
    v_cndmask_b32 v{A_IMS}, v{z}, v{x}, vcc
    """)
    a(f"""
    v_lshl_add_u32 v{x}, v{hi}, 2, v{i3}
    v_and_b32 v{y}, 1, v{i2}
    v_cmp_eq_u32 vcc, v{y}, v{g0}
    v_mov_b32 v{z}, 64
    s_nop 0
    v_cndmask_b32 v{x}, v{z}, v{x}, vcc
    v_and_b32 v{y}, 1, v{i}
    v_lshl_add_u32 v{t+14}, v{y}, 2, v{i2}
    v_cmp_gt_u32 vcc, 2, v{i3}
    s_mov_b32 s{sT+3}, 0x3f80
    s_nop 0
    v_cndmask_b32 v{t+14}, v{z}, v{t+14}, vcc
    """)
    for base, pos in ((F, x), (SEL, t + 14)):
        a(f"""
        v_and_b32 v{t+15}, 1, v{pos}
        v_lshlrev_b32 v{t+15}, 4, v{t+15}
        v_lshlrev_b32 v{t+15}, v{t+15}, s{sT+3}
        v_lshrrev_b32 v{t+16}, 1, v{pos}
        """)
        for d in range(4):
            a(f"""
            v_cmp_eq_u32 vcc, {d}, v{t+16}
            s_nop 1
            v_cndmask_b32 v{base+d}, 0, v{t+15}, vcc
            """)
    a(f"""
    v_and_b32 v{t+16}, 1, v{i2}
    v_lshl_add_u32 v{t+14}, v{g0}, 2, v{t+16}
    v_xor_b32 v{t+16}, s{sW}, v{t+16}
    v_lshlrev_b32 v{t+16}, 6, v{t+16}
    v_add_u32 v{t+16}, {L_W}, v{t+16}
    v_lshl_add_u32 v{t+15}, v{hi}, 3, v{t+14}
    v_lshl_add_u32 v{t+15}, v{t+15}, 8, v{t+16}
    v_lshl_add_u32 v{t+15}, v{g1}, 15, v{t+15}
    v_lshl_add_u32 v58, v{i3}, 4, v{t+15}
    v_add_u32 v61, 0x10000, v58
    v_lshl_add_u32 v{t+15}, v{g1}, 3, v{t+14}
    v_lshl_add_u32 v{t+15}, v{t+15}, 8, v{t+16}
    v_lshl_add_u32 v{t+15}, v{hi}, 5, v{t+15}
    v_lshl_add_u32 v59, v{i3}, 3, v{t+15}
    v_add_u32 v62, 0x10000, v59
    v_and_b32 v{x}, 7, v{i}
    v_lshlrev_b32 v{x}, 10, v{x}
    v_lshl_add_u32 v{x}, v{g}, 5, v{x}
    v_lshl_add_u32 v{x}, v{hi}, 4, v{x}
    s_lshl_b32 s{sT+2}, s{sW}, 7
    v_add_u32 v60, s{sT+2}, v{x}
    v_mov_b32 v{IDX}, v{t+11}
    """)
    for k in range(4): a(f"v_mov_b32 v{64+k}, -1")

def chain_prologue(a, P):
    WS = sr(S_WS, 4)
    a(f"""
    s_mov_b32 s{sS}, 0
    s_lshl_b32 s{sT}, s{sH}, 2
    s_add_u32 s{sT}, s{sT}, s{sW}
    s_lshl_b32 s{sKV}, s{sT}, 12
    s_add_u32 s{sKV}, s{sKV}, {WS_KV}
    s_lshl_b32 s{sKM}, s{sT}, 10
    s_mov_b32 s{sFLn}, {DBG_DN + DBG_KVC}
    s_add_u32 s{sKM}, s{sKM}, {WS_KM}
    s_mov_b32 s{sH1}, {WS_H1}
    s_mov_b32 s{sH1+1}, {WS_H1 + 65536}
    s_mov_b32 s{sH1+2}, {WS_H1 + 2*65536}
    s_mov_b32 s{sH1+3}, {WS_H1 + 3*65536}
    s_lshl_b32 s{sT}, s{sW}, 5
    s_add_u32 s{sT}, s{sT}, s{sH}
    s_lshl_b32 s{sT}, s{sT}, 11
    s_add_u32 s{sH1l}, s{sT}, {WS_H1}
    s_mov_b32 s{sTAG}, 0
    s_mov_b32 s{sIMw}, {WS_IMG + 8192}
    s_mov_b32 s{sIMr}, {WS_IMG + 16384}
    s_mov_b32 s{sIMl}, {WS_IMG}
    s_mov_b32 s{sIML}, {WS_IMG}
    s_mov_b32 s{sKMv}, {WS_DUMMY}
    s_and_b32 s{sT}, s{sW}, 1
    s_lshl_b32 s{sT}, s{sT}, 7
    s_lshl2_add_u32 s{sT+1}, s{sH}, s{sT}
    s_add_u32 s{sT+1}, s{sT+1}, {WS_FL}
    s_and_b32 s{sT}, s{sH}, 1
    s_lshl_b32 s{sT}, s{sT}, 7
    s_add_u32 s{sT}, s{sT}, {WS_FL}
    s_cmp_eq_u32 s{sW}, 3
    s_cselect_b32 s{sFG}, s{sT}, s{sT+1}
    s_mov_b32 s{sONE}, 0x3f803f80
    s_mov_b32 s{sONE+1}, 0x3f803f80
    s_mov_b32 s{sMLO}, 0x00ff00ff
    s_mov_b32 s{sMLO+1}, 0x00ff00ff
    s_mov_b32 s{sC}, 0x3e0293ee
    s_mov_b32 s{sC+1}, 0x3e0293ee
    """)
    a(f"""
    buffer_store_dwordx4 v[64:67], v{L16}, {WS}, s{sH1l} offen
    buffer_store_dwordx4 v[64:67], v{L16}, {WS}, s{sH1l} offen offset:1024
    buffer_store_dword v64, v{A_IMS}, {WS}, s{sIMw} offen
    buffer_store_dword v64, off, {WS}, s{sT+1}
    buffer_load_dwordx4 {vr(MA,4)}, v60, {sr(S_M0,4)}, 0 offen
    buffer_load_dwordx4 {vr(MA+16,4)}, v60, {sr(S_M0,4)}, 0 offen offset:512
    """, vm='init')
    a(f"""
    s_barrier
    """) if False else None
    for w in range(3): a(f"s_cmp_eq_u32 s{sW}, {w}\ns_cbranch_scc1 L_cp_{w}")
    a("s_branch L_cp_3")

UNITS = [(m, k) for m in 'vkq' for k in range(8)] + [('o', u) for u in range(8)]
sLB, sO1, sHB, sHO = sT + 4, sT + 5, sT + 6, sT + 7
PF = ['']
def issue_unit(a, u):
    kind, x = UNITS[u]
    if kind == 'o': base, off, step, voff, S = sHO, 64 * (x & 1) * 1024 + 256 * (x >> 1), 4 * 1024, 57, S_WO
    else: base, off, step, voff, S = sHB, x << 19, 4 * 8192, 56, {'q': S_WQ, 'k': S_WK, 'v': S_WV}[kind]
    for i in range(4):
        a(f"s_add_u32 m0, s{sLB}, {(u % 8) * 4096 + i * 1024}")
        a(f"s_add_u32 s{sO1}, s{base}, {off + i * step}")
        a(f"buffer_load_dwordx4 v{voff}, {sr(S,4)}, s{sO1} offen {PF[0]} lds", vm=('u', u))

def chain_first_dma(a):
    a(f"""
    v_bfe_u32 v96, v0, 4, 2
    v_and_b32 v97, 15, v0
    v_bfe_u32 v98, v0, 4, 1
    v_lshlrev_b32 v98, 2, v98
    v_xor_b32 v97, v97, v98
    v_lshlrev_b32 v97, 4, v97
    v_lshl_add_u32 v56, v96, 13, v97
    v_lshl_add_u32 v57, v96, 10, v97
    s_lshl_b32 s{sLB}, s{sW}, 15
    s_add_u32 s{sLB}, s{sLB}, {L_W}
    s_lshl_b32 s{sHB}, s{sH}, 8
    s_lshl_b32 s{sT+2}, s{sW}, 17
    s_add_u32 s{sHB}, s{sHB}, s{sT+2}
    s_lshl_b32 s{sHO}, s{sH}, 17
    s_lshl_b32 s{sT+2}, s{sW}, 14
    s_add_u32 s{sHO}, s{sHO}, s{sT+2}
    """)
    for u in range(8): issue_unit(a, u)

def chain_prologue_w(a, P, w, vm0):
    WS = sr(S_WS, 4)
    a.label(f'L_cp_{w}')
    a.vm = list(vm0); a.lg = []
    PK4 = 64
    def wb(u):
        for i in range(4): a(f"ds_write_b128 v{A_W}, {vr(28 + 16*(i>>1) + 4*(i&1),4)} offset:{(u % 8) * 4096 + 1024*i}")
    for u in range(32):
        kind, x = UNITS[u]
        a.wait(vm=('u', u))
        a("s_barrier")
        if u >= 1 and u + 7 < 32: issue_unit(a, u + 7)
        if u == 9:
            for r in list(range(MA, MA + 4)) + list(range(MA + 16, MA + 20)): a(f"v_min_u32 v{r}, -2, v{r}")
            if w == 0:
                a(f"s_mov_b64 exec, 1\nv_mov_b32 v28, 1")
                a(f"buffer_atomic_add v28, off, {sr(S_DBG,4)}, 0 offset:{DBG_CBAR + (DBG_DN if P.get('dn0', 1) else 0)}", vm='at')
                a("s_mov_b64 exec, -1")
        if u == P.get('uw', 25):
            a(f"s_getpc_b64 {sr(sT,2)}")
            a.label(f'L_cpc_{w}')
            a(f"v_lshlrev_b32 v63, 3, v{L16}\ns_mov_b32 s{sT+2}, {WS_IMG + 8192*w}")
            a(f"buffer_load_dword v36, v63, {WS}, s{sT+2} offen sc1", vm='w')
            a(f"v_and_b32 v37, 0x780, v63\nv_min_u32 v63, L_step_{w}-L_top_{w}, v63\nv_add_u32 v63, L_top_{w}-L_cpc_{w}, v63")
            a(f"buffer_load_dword v36, v37, {WS}, s{sH1l} offen sc1", vm='w')
            a(f"global_load_dword v36, v63, {sr(sT,2)}", vm='w')
        if u == 28:
            for sg, src in ((0, ST), (4, PK4)):
                for uu in range(4):
                    for hf in range(2): a(f"ds_write_b128 v{A_W}, {vr(src + 8*uu + 4*hf,4)} offset:{lw_qk(sg, uu) + 1024*hf}")
                a.wait(lg='all')
        fl0 = f"buffer_load_dword v36, off, {sr(S_DBG,4)}, 0 offset:{DBG_CBAR + 64} sc1\nbuffer_load_dword v37, off, {sr(S_DBG,4)}, 0 offset:{DBG_KV0 + (DBG_DN if P.get('dn0', 1) else 0)} sc1"
        if P.get('dn0', 1): fl0 = fl0.replace(f"offset:{DBG_CBAR + 64} ", f"offset:{DBG_CBAR + DBG_DN} ")
        else: fl0 = fl0.replace(f"offset:{DBG_CBAR + 64} ", f"offset:{DBG_CBAR} ")
        if u == 30 and w == 0: a(fl0, vm='f0')
        if u > 28: wb(u - 1)
        base = (u % 8) * 4096
        sig = ((x - w) & 3) | (x & 4)
        for half in range(2):
            if u >= 28: k, dst = 'v', 28 + 16 * half
            elif kind in 'qk':
                uu = 2 * half + (kind == 'k')
                k, dst = ('v', PK4 + 8 * uu) if sig == 4 else wqk_reg(sig, uu)
            elif kind == 'v': k, dst = wv_reg(sig, half)
            else: k, dst = wo_reg(x >> 1, 2 * (x & 1) + half)
            for p in range(4):
                if kind == 'o': off, ad = base + 32768 * (p >> 1) + 512 * (p & 1), (59, 62)[half]
                else: off, ad = base + 512 * (p & 1) + 8 * half, (58, 61)[p >> 1]
                a(f"ds_read_b64_tr_b16 {vr(dst + 2*p, 2, k)}, v{ad} offset:{off}")
        a.wait(lg='all')
    a("s_barrier")
    wb(31)
    a.wait(lg='all')
    if P.get('stat'): a("s_memrealtime s[100:101]")
    a(f"s_mov_b32 s{sSPIN}, 0\ns_mov_b32 m0, {L_KV + 4096*w}")
    if w == 0:
        a("s_branch L_c_w1")
        a.label(f'L_c_w0')
        a(f"""
        s_add_u32 s{sSPIN}, s{sSPIN}, 1
        s_cmp_gt_u32 s{sSPIN}, {SPIN_MAX}
        s_cbranch_scc1 L_exit
        s_sleep {P.get('slp0', 1)}
        """)
        a(fl0)
        a.label('L_c_w1')
        a.wait(vm='all')
        a(f"""
        v_min_u32 v36, v36, v37
        v_cmp_gt_u32 vcc, 32, v36
        s_cbranch_vccnz L_c_w0
        """)
    a("s_barrier")
    for k in range(4): a(f"buffer_load_dwordx4 {vr(KX+4*k,4)}, v{L16}, {WS}, s{sKV} offen offset:{1024*k} sc1")
    a(f"s_add_u32 s{sKV}, s{sKV}, 0x80000\ns_mov_b32 s{sFL}, {DBG_DN + DBG_KVC}\ns_mov_b32 s{sSPIN}, 0")
    for l in idle_work():
        if not l.startswith('ds_'): a(l)
    a.wait(vm='all', lg='all')
    if P.get('stat'): a("s_memtime s[64:65]\ns_waitcnt lgkmcnt(0)")
    a(f"s_branch L_step_{w}")

def idle_work():
    L = [f"ds_read_b128 {vr(ST + 8*u + 4*hf, 4)}, v{A_W} offset:{lw_qk(0, u) + 1024*hf}" for u in range(4) for hf in range(2)]
    L += [f"v_mov_b64 {vr(Q0+i,2)}, 0" for i in range(0, 24, 2)]
    return L

DEF = dict(b1=3, nL=9, nB2=5, nv1=2, nv2=1, nvA=5, sv=9, so=1, nr4=3, earlyL=0, dH1=[32, 44, 70, 84], dE=[24, 16, 0, 0], sync=0, fpos=-2, pp=[-1, 1, 3, 5, 7, 11], pE=18, inGap=[0, 0, 0, 1], nPre=[0, 0, 0, 0],
           dS=[-1, -1], kw=0, vmPos=None, mx=1, g2w=1, nd=0, ad=1, nrc=4, dma0=14, nE=3, dT=0, stg=1)
def pack_km():
    X = Q0
    L = [f"v_mov_b32_dpp v{X+2}, v{X} row_ror:8 row_mask:0xf bank_mask:0x3", f"v_mov_b32_dpp v{X+3}, v{X+1} row_ror:8 row_mask:0xf bank_mask:0x3",
         f"v_min_u32 v{ONE}, -2, v{X+2}", f"v_min_u32 v{ONE+1}, -2, v{X+3}"]
    for t in range(2):
        p = V0 + 2 * t
        L += [f"v_lshlrev_b32 v{X}, 16, v{p}", f"v_lshlrev_b32 v{X+1}, 16, v{p+1}", f"v_and_b32 v{p}, 0xffff0000, v{p}", f"v_and_b32 v{p+1}, 0xffff0000, v{p+1}",
              f"v_add_f32 v{X}, v{X}, v{X+1}", f"v_add_f32 v{X+1}, v{p}, v{p+1}", f"v_cvt_pk_bf16_f32 v{X}, v{X}, v{X+1}", f"v_min_u32 v{ONE+2+t}, -2, v{X}"]
    return L
def sync_tmp(P, w):
    if not P['sync']: return []
    if w == 3: return [f"v_bfe_u32 v{MA+24}, v{L16}, 2, 7"]
    if w < 2: return [f"v_mov_b32 v{MA+24}, s{sS}"]
    return []
LISTING = {}
def chain_step(a, P0, w):
    P = dict(DEF); P.update(P0)
    allow = P.get('stamps', [])
    used = []
    def stamp(k):
        if k in allow:
            a(f"s_memtime s[{72+2*len(used)}:{73+2*len(used)}]"); used.append(k)
    WS = sr(S_WS, 4)
    acc = [Q0, K0, Q1, K1]
    lb = lambda s: f"L_{s}_{w}"
    own = 2048 * w
    oth = lambda q: 2048 * ((w + q) & 3)
    T0 = MA + 28
    ldE = f"buffer_load_dwordx4 {vr(MA,4)}, v{L16}, {WS}, s{sIMl} offen sc1"
    ldL = f"buffer_load_dwordx4 {vr(MA+16,4)}, v{L16}, {WS}, s{sIML} offen sc1"
    chkE = f"v_max3_u32 v{T0}, v{MA}, v{MA+1}, v{MA+2}\nv_max_u32 v{T0}, v{T0}, v{MA+3}\nv_cmp_eq_u32 vcc, -1, v{T0}"
    chkL = [f"v_max3_u32 v{T0}, v{MA+16}, v{MA+17}, v{MA+18}", f"v_max3_u32 v{T0}, v{T0}, v{MA+19}, v{FLV}" if w == 0 else f"v_max_u32 v{T0}, v{T0}, v{MA+19}", f"v_cmp_eq_u32 vcc, -1, v{T0}"]
    ldF = f"buffer_load_dword v{FLV}, off, {sr(S_DBG,4)}, s{sFL} sc1"
    cvF = [f"v_subrev_u32 v{FLV}, 32, v{FLV}", f"v_ashrrev_i32 v{FLV}, 31, v{FLV}"]
    dwE = f"ds_write_b128 v{L16}, {vr(MA,4)} offset:{L_MEM + own}"
    dwL = f"ds_write_b128 v{L16}, {vr(MA+16,4)} offset:{L_MEM + own + 1024}"
    cv = lambda d, s0: f"v_cvt_pk_bf16_f32 v{d}, v{s0}, v{s0+1}"
    z2 = lambda r: f"v_mov_b64 {vr(r,2)}, 0"
    ror8 = lambda d, s0, bm: f"v_mov_b32_dpp v{d}, v{s0} row_ror:8 row_mask:0xf bank_mask:{bm}"
    mf32 = lambda D, A, B, C: a(f"v_mfma_f32_16x16x32_bf16 {vr(D,4)}, {vr(A,4)}, {vr(B,4)}, {vr(C,4) if C is not None else 0}")
    mf16 = lambda D, A, B, C: a(f"v_mfma_f32_16x16x16_bf16 {vr(D,4)}, {vr(A,2)}, {vr(B,2)}, {vr(C,4) if C is not None else 0}")
    def wdelay(n):
        while P['kw'] and n >= 8:
            mf32(MA + 24, F, F, None); a("s_nop 2"); mf32(MA + 4, F, F, None); a("s_nop 2"); n -= 8
        nops(a, n)
    a.label(lb('top'))
    a("s_waitcnt vmcnt(0)")
    a.vm = []; a.lg = []
    stamp(0)
    if P['earlyL']: a(ldL, vm='L2')
    a(chkE)
    a(dwE, lg='we')
    a(f"s_cbranch_vccnz {lb('f1')}")
    if not P['earlyL']: a(ldL, vm='L2')
    a.label(lb('go'))
    stamp(14)
    KVF = P.get('kvf', 'sc1')
    dma = [f"buffer_load_dwordx4 v{L16}, {WS}, s{sKV} offen offset:{1024*k} {KVF} lds" for k in range(4)]
    mrd = lambda s: f"ds_read_b128 {vr(MA+4*s,4)}, v{L16} offset:{L_MEM + oth(s & 3) + 1024*(s>>2)}"
    r2 = [f"ds_read_b128 {vr(ST + 8*u + 4*hf, 4)}, v{A_W} offset:{lw_qk(4, u) + 1024*hf}" for u in range(4) for hf in range(2)]
    r3 = [f"ds_read_b128 {vr(ST + 8*k + 4*hf, 4)}, v{A_W} offset:{lw_wo(2,k) + 1024*hf}" for k in range(4) for hf in range(2)]
    vq = [(V0 + 4 * tau, MA + 4 * s, wv_reg(s, tau)) for s in range(8) for tau in range(2)]
    qk = lambda s: [(acc[u], MA + 4 * s, wqk_reg(s, u)) for u in range(4)]
    sA = qk(0) + [vq.pop(0), vq.pop(0)]
    stV = f"buffer_store_dwordx4 {vr(ONE,4)}, v{L16}, {WS}, s{sKMv} offen sc1"
    for k in range(P['b1']):
        smf(a, *sA.pop(0))
        if k == P['sv']: a(stV, vm='km')
    a.wait(lg='all')
    a("s_barrier")
    stamp(1)
    a(mrd(1), lg=('ma', 1)); a(mrd(2), lg=('ma', 2))
    smf(a, *sA.pop(0))
    a(mrd(3), lg=('ma', 3))
    sync = P['sync']; TS = MA + 24
    prober = sync and w == 3; poster = sync and w < 2
    probe = f"buffer_load_dword v{FLV}, v{TS}, {WS}, s{sFG} offen sc1"
    post = f"s_mov_b64 exec, 1\nbuffer_store_dword v{TS}, off, {WS}, s{sFG}\ns_mov_b64 exec, -1"
    pp = list(P['pp']); npr = len(pp)
    def syncops(n):
        c = 0
        if poster and n == P['fpos']: a(post, vm='fg'); c = 2
        if prober and n in pp: a(probe, vm=('P', pp.index(n))); c = 1
        return c
    if P['sv'] == 9: a(stV, vm='km')
    syncops(-len(sA) - 1)
    while sA:
        smf(a, *sA.pop(0)); syncops(-len(sA) - 1)
    seq = qk(1) + qk(2) + qk(3) + [vq.pop(0) for _ in range(P['nv1'])]
    i4 = len(seq); seq += qk(4) + [vq.pop(0) for _ in range(P['nv2'])]
    i5 = len(seq); seq += qk(5)
    i6 = len(seq); q6, q7 = qk(6), qk(7)
    seq += [q6[0], q6[1], q7[0], q7[1], q6[2], q6[3], q7[2], q7[3]]
    nL, nB = P['nL'], P['nL'] + P['nB2']
    assert i4 >= nL + 4 and nB <= i5
    KVST = 0 if P.get('kvfix') else 0x80000
    ones = [f"v_mov_b64 {vr(ONE,2)}, {sr(sONE,2)}", f"v_mov_b64 {vr(ONE+2,2)}, {sr(sONE,2)}"]
    lastd = -99
    for n, q in enumerate(seq):
        if n == 0: a.wait(lg=('ma', 1))
        if n == 4: a.wait(lg=('ma', 3))
        if n == nL:
            stamp(2)
            a.wait(vm='L2'); a(dwL, lg='wl'); a(chkL[0])
            if prober: a.wait(vm=('P', 0)); a(f"v_subrev_u32 v{T0+1}, s{sS}, v{FLV}")
        if n == nB:
            a.wait(lg='all' if not r2 else 'wl'); a("s_barrier"); stamp(3); a(mrd(5), lg=('ma', 5))
        if n == i4 and 'r2' in a.lg: a.wait(lg='r2')
        if n == i5: a.wait(lg=('ma', 5))
        if n == i6: a.wait(lg=('ma', 7))
        smf(a, *q)
        cap = 2 - (n + 1 in (4, i5, i6)) - (n >= i6 + 4) - (n in (nL, nL + 1))
        if n == nB: a(mrd(6), lg=('ma', 6)); a(mrd(7), lg=('ma', 7)); cap = 0
        cap = max(cap - syncops(n), 1 if r2 else 0)
        if dma and cap and n > nB and n >= min(nB + 1 + w * P['stg'] + 4 * (4 - len(dma)), len(seq) - 1):
            a(dma.pop(0), vm='dma'); cap -= 1
        if r2 and cap and n + 1 != nL and not (nL <= n < nB): a(r2.pop(0), lg='r2'); cap -= 1
        elif r3 and cap and n > nB and n >= i4 + (8 - len(r3)) // 2: a(r3.pop(0), lg='r3'); cap -= 1
        if ones and cap and n >= i5 and P['sv'] == 9: a(ones.pop(0))
        if n == nL: a(chkL[1] if not prober else f"v_max3_u32 v{T0+1}, v{T0}, v{MA+19}, v{T0+1}")
        if n == nL + 1: a(chkL[2] if not prober else f"v_cmp_eq_u32 vcc, -1, v{T0+1}")
        if n == nL + 3:
            a(f"s_cbranch_vccnz {lb('p1' if prober else 'rL')}"); a.label(lb('bL'))
            if prober: assert len(a.vm) == npr - 1
        if n == i6 + 4: a(cv(Q0, Q0))
        if n == i6 + 5: a(cv(Q0 + 1, Q0 + 2))
        if n == i6 + 6: a(cv(Q0 + 2, K0))
    assert not r3 and not dma and not r2, (len(r2), len(r3), len(dma))
    stamp(4)
    a(cv(Q0 + 3, K0 + 2))
    a("s_nop 0")
    a(cv(Q1, Q1))
    mf32(K0, Q0, F, None)
    a(cv(Q1 + 1, Q1 + 2)); a(cv(Q1 + 2, K1)); a(cv(Q1 + 3, K1 + 2))
    a("s_nop 1")
    mf32(K1, Q1, F, None)
    X = Q0
    a(cv(X, K0)); a(cv(X + 1, K0 + 2))
    rsI = f"buffer_store_dword v{NEG1}, v{A_IMS}, {WS}, s{sIMr} offen"
    S1, S2, SM = Q1, K0, K1
    if not P['mx']:
        smf(a, *vq.pop(0))
        a("s_nop 0"); a(f"buffer_store_dword v{NEG1}, v{A_IMS}, {WS}, s{sIMr} offen", vm='rs'); a("s_nop 1")
        a(cv(X + 2, K1)); a(cv(X + 3, K1 + 2))
        a("s_nop 1")
        S1, S2, SM = Q1, K0, K1
        mf32(SM, X, X, None); mf32(S2, KX + 4, X, None); mf32(S1, KX, X, None)
        for r in range(2): a(ror8(SM + r, SM + 2 + r, '0xc'))
        smf(a, *vq.pop(0))
        a("s_nop 0")
        a(f"ds_write2_b32 v{A_SMW}, v{SM}, v{SM+1} offset0:0 offset1:32")
        a("s_nop 1")
        for r in range(4): a(ror8(S1 + r, S2 + r, '0xc'))
        smf(a, *vq.pop(0))
        a(f"ds_write_b128 v{L16}, {vr(S1,4)} offset:{L_S + own}")
    else:
        assert all(q[1] >= MA + 8 for q in vq)
        XL, XH = MA, MA + 4
        lo = lambda r: a(f"v_cndmask_b32 v{XL+r}, 0, v{X+r}, {sr(sMLO,2)}")
        hi = lambda r: a(f"v_mov_b32_dpp v{XH+r}, v{X+r} row_shr:8 row_mask:0xf bank_mask:0xf bound_ctrl:1")
        lo(0); lo(1); hi(0); hi(1); a("s_nop 0")
        a(cv(X + 2, K1)); a(cv(X + 3, K1 + 2))
        lo(2); lo(3)
        mf32(SM, X, X, None)
        hi(2); hi(3)
        mf32(S1, KX, XL, None)
        a("s_nop 0")
        mf32(S1, KX + 4, XH, S1)
        for r in range(2): a(ror8(SM + r, SM + 2 + r, '0xc'))
        dw2 = f"ds_write2_b32 v{A_SMW}, v{SM}, v{SM+1} offset0:0 offset1:32"
        dw4 = f"ds_write_b128 v{L16}, {vr(S1,4)} offset:{L_S + own}"
        smf(a, *vq.pop(0))
        if P['so'] == 0: a("s_nop 0"); a(dw2); a("s_nop 1"); a(dw4)
        elif P['so'] == 1: a("s_nop 0"); a(dw2); smf(a, *vq.pop(0)); a(dw4)
        else: smf(a, *vq.pop(0)); a(dw4); a(dw2)
    stamp(5)
    for k in range(P['nvA']):
        smf(a, *vq.pop(0))
        if k == 2 and w == 0: a(f"s_mov_b32 s{sFL}, s{sFLn}"); a(ldF, vm='fl')
        if P['sv'] == 20 and k == min(3 - w, P['nvA'] - 1): a(stV, vm='km')
        if k == (w & 1) + (2 if w >= 2 and P['sv'] == 20 else 0) and P['mx']: a(rsI, vm='rs')
    a.wait(lg='all')
    a("s_barrier")
    stamp(6)
    R1, R2, R3, RM = K0, KX, KX + 4, K1
    a(f"ds_read_b128 {vr(RM,4)}, v{L16} offset:{L_SM}", lg='rm')
    a(f"ds_read_b128 {vr(R1,4)}, v{L16} offset:{L_S + oth(1)}", lg='r1')
    smf(a, *vq.pop(0))
    a(f"ds_read_b128 {vr(R2,4)}, v{L16} offset:{L_S + oth(2)}", lg='r2')
    a(f"ds_read_b128 {vr(R3,4)}, v{L16} offset:{L_S + oth(3)}", lg='r3')
    while vq:
        smf(a, *vq.pop(0))
        if ones: a(ones.pop(0))
    assert not ones
    pka = lambda d, s0: f"v_pk_add_f32 {vr(d,2)}, {vr(d,2)}, {vr(s0,2)}"
    a.wait(lg='r1')
    a(f"v_add_f32 v{RM}, v{RM}, v{RM+1}\nv_add_f32 v{RM+2}, v{RM+2}, v{RM+3}")
    a(f"v_add_f32 v{S1}, v{S1}, v{R1}\nv_add_f32 v{S1+1}, v{S1+1}, v{R1+1}")
    a(pka(S1 + 2, R1 + 2))
    a(f"v_add_f32 v{RM}, v{RM}, v{RM+2}")
    if P['ad']:
        a.wait(lg='all')
        stamp(7)
        a(pka(R2, R3)); a(pka(R2 + 2, R3 + 2)); a(pka(S1, R2)); a(pka(S1 + 2, R2 + 2))
    else:
        a.wait(lg='r2')
        a(pka(S1, R2)); a(pka(S1 + 2, R2 + 2))
        a.wait(lg='all')
        stamp(7)
        a(pka(S1, R3)); a(pka(S1 + 2, R3 + 2))
    m0, m1 = K0, K0 + 1
    a(f"v_max3_f32 v{m0}, v{RM}, v{S1}, v{S1+1}")
    a(f"v_max3_f32 v{m0}, v{m0}, v{S1+2}, v{S1+3}")
    a(cv(V0, V0)); a(cv(V0 + 1, V0 + 2))
    a(f"v_max_f32_dpp v{m1}, v{m0}, v{m0} row_ror:8 row_mask:0xf bank_mask:0xf")
    a(f"v_max_f32_dpp v{m0}, v{m0}, v{m0} row_ror:8 row_mask:0xf bank_mask:0xf")
    a(cv(V0 + 2, V1)); a(cv(V0 + 3, V1 + 2))
    a(f"v_permlane32_swap_b32 v{m0}, v{m1}")
    a(f"v_max_f32 v{m0+2}, v{m0}, v{m1}")
    a(f"v_max_f32 v{m0+3}, v{m0}, v{m1}")
    a(f"v_permlane32_swap_b32 v{V0}, v{V0+1}")
    a(f"v_permlane32_swap_b32 v{V0+2}, v{V0+3}")
    a(f"v_permlane16_swap_b32 v{m0+2}, v{m0+3}")
    a(f"v_max_f32 v{m0}, v{m0+2}, v{m0+3}")
    a(f"v_mul_f32 v{m0}, s{sC}, v{m0}")
    a(f"v_fma_f32 v{RM}, v{RM}, s{sC}, -v{m0}")
    pkf = lambda r: f"v_pk_fma_f32 {vr(r,2)}, {vr(r,2)}, {sr(sC,2)}, {vr(m0,2)} op_sel_hi:[1,1,0] neg_lo:[0,0,1] neg_hi:[0,0,1]"
    ks = [(w + q) & 3 for q in range(1, 4)]
    r4 = [f"ds_read_b128 {vr(MA + 8*k + 4*hf, 4)}, v{A_W} offset:{lw_wo(3,k) + 1024*hf}" for k in [w] + ks for hf in range(2)]
    rd4 = lambda: a(r4.pop(0), lg='r4') if r4 else None
    BX, BM = K0, MA + 8 * ks[2] + 4
    O0, O1, L = KX, V1, K1
    a(f"v_exp_f32 v{RM}, v{RM}")
    a(pkf(S1)); a(pkf(S1 + 2))
    a(ror8(RM + 1, RM, '0xf'))
    a(cv(BM, RM)); a(cv(BM + 1, RM))
    a(f"v_exp_f32 v{S1}, v{S1}\nv_exp_f32 v{S1+1}, v{S1+1}")
    mf16(O0, V0, BM, None)
    a(f"v_exp_f32 v{S1+2}, v{S1+2}\nv_exp_f32 v{S1+3}, v{S1+3}")
    a(cv(BX, S1)); a(cv(BX + 1, S1 + 2))
    mf16(O1, V0 + 2, BM, None)
    a(ror8(BX + 2, BX, '0xf')); a(ror8(BX + 3, BX + 1, '0xf'))
    AC = [Q1, KX, V1, ONE]
    OW = KX + 4
    a(z2(AC[0])); a(z2(AC[0] + 2))
    mf32(O0, VX, BX, O0)
    stamp(8)
    if P['nr4'] >= 1: rd4()
    if P['nr4'] >= 4: rd4()
    mf32(O1, VX + 4, BX, O1)
    if P['nr4'] >= 2: rd4()
    if P['nr4'] >= 3: rd4()
    mf16(L, BM, HZ, None)
    a(cv(OW, O0)); a(cv(OW + 1, O0 + 2))
    a(z2(AC[1]))
    a(cv(OW + 2, O1)); a(cv(OW + 3, O1 + 2))
    mf32(L, BX, ONE, L)
    a(f"s_cmp_eq_u32 s{sS}, 63")
    a(f"ds_write_b128 v{A_OW}, {vr(OW,4)} offset:{L_O + own}")
    stamp(9)
    for r in range(4): a(ror8(OW + r, OW + r, '0xc'))
    a(z2(AC[1] + 2)); a(z2(AC[2])); a(z2(AC[2] + 2))
    rcp = lambda r: a(f"v_rcp_f32 v{L+r}, v{L+r}")
    for r in range(P['nrc']): rcp(r)
    smf(a, AC[0], OW, wo_reg(0, w))
    a.wait(lg='all')
    a("s_barrier")
    stamp(10)
    OA = {ks[0]: VX, ks[1]: VX + 4, ks[2]: K0, w: OW}
    oard = lambda k: a(f"ds_read_b128 {vr(OA[k],4)}, v{A_O} offset:{L_O + 2048*k}", lg=('oa', k))
    g2 = lambda T, k: smf(a, AC[T], OA[k], wo_reg(T, k))
    mul = lambda T, r: a(f"v_mul_f32 v{AC[T]+r}, v{AC[T]+r}, v{L+r}")
    def cvt(T, r):
        a(cv(AC[T] + r, AC[T] + 2 * r))
        if r == 1: a(f"v_bfi_b32 v{AC[T]}, 1, s{sTAG}, v{AC[T]}")
    sto = lambda T: f"buffer_store_dwordx2 {vr(AC[T],2)}, v{A_H1S}, {WS}, s{sH1+T} offen"
    oard(ks[0]); oard(ks[1])
    g2(1, w); oard(ks[2]); a(z2(AC[3]))
    g2(2, w); a(f"s_cbranch_scc1 L_last")
    a(z2(AC[3] + 2))
    for r in range(P['nrc'], 4): rcp(r)
    own3 = P['nr4'] >= 2 and P.get('own3', 1)
    if own3: a("s_nop 1"); g2(3, w)
    a.wait(lg=('oa', ks[0])); g2(0, ks[0]); stamp(20); rd4()
    a.wait(lg=('oa', ks[1])); g2(0, ks[1]); rd4()
    a.wait(lg=('oa', ks[2])); g2(0, ks[2]); rd4()
    g2(1, ks[0]); rd4()
    g2(1, ks[1]); rd4(); mul(0, 0)
    g2(1, ks[2]); rd4()
    mul(0, 1); mul(0, 2); mul(0, 3); cvt(0, 0); cvt(0, 1)
    g2(2, ks[0]); a("s_nop 0"); a(sto(0), vm='h1')
    while r4: rd4()
    for r in range(4): mul(1, r)
    cvt(1, 0); cvt(1, 1)
    g2(2, ks[1]); a("s_nop 0"); a(sto(1), vm='h1')
    stamp(21)
    g2(2, ks[2])
    a.wait(lg='all')
    if not own3: g2(3, w)
    a(f"s_add_u32 s{sIMl}, s{sIMw}, {1024*w}\ns_add_u32 s{sIML}, s{sIMw}, {4096+1024*w}")
    g2(3, ks[0]); a(f"s_add_u32 s{sS}, s{sS}, 1\ns_mov_b32 s{sKMv}, s{sKM}")
    if not own3: mul(2, 0)
    g2(3, ks[1]); mul(2, 1)
    g2(3, ks[2])
    if own3: mul(2, 0)
    mul(2, 2); mul(2, 3); cvt(2, 0); cvt(2, 1)
    dS = P['dS']
    a("s_nop 1")
    if dS[0] < 0: a(sto(2), vm='h1')
    c = AC[3]
    a(f"v_pk_mul_f32 {vr(c,2)}, {vr(c,2)}, {vr(L,2)}\nv_pk_mul_f32 {vr(c+2,2)}, {vr(c+2,2)}, {vr(L+2,2)}")
    cvt(3, 0); cvt(3, 1)
    a(f"s_add_u32 s{sKM}, s{sKM}, 0x20000\ns_add_u32 s{sKV}, s{sKV}, {KVST}")
    if dS[1] < 0: a(sto(3), vm='h1')
    stamp(11)
    HA = KX
    ld1 = [f"buffer_load_dwordx4 {vr(HA+4*c_,4)}, v{L16}, {WS}, s{sH1l} offen offset:{1024*c_} sc1" for c_ in range(2)]
    HD, T1 = MA + 8, MA + 12
    idle = idle_work()
    late = [l for l in idle if any(l.startswith(f"v_mov_b64 v[{r}:") for r in (Q0, Q0 + 2, V0, V0 + 2, V1, V1 + 2))]
    dsq = [l for l in idle if l.startswith('ds_')]
    idle = [l for l in idle if l not in late and l not in dsq]
    ev = [(max(dS[k], 0), k, [(sto(2 + k) if dS[k] >= 0 else None, 'h1')]) for k in range(2)]
    ev.append((P['dH1'][w], -1 if w < 2 else 2, [(ld1[0], 'H0'), (ld1[1], 'H1')]))
    pos = 0; nst = 0
    for (tpos, _, ops) in sorted(ev):
        while pos < tpos:
            if idle and tpos - pos > 2: a(idle.pop(0)); pos += 1
            elif dsq and nst == 2 and tpos - pos >= 6:
                if P['kw']: mf32(MA + 24 if len(dsq) & 1 else MA + 4, F, F, None); a("s_nop 1")
                else: a("s_nop 2")
                a(dsq.pop(0), lg='pre'); pos += 4
            else: wdelay(tpos - pos); pos = tpos
        for (o, tag) in ops:
            if o: a(o, vm=tag); pos += 1
            if tag == 'h1':
                nst += 1
                if nst == 2: idle += pack_km() + late
    for l in dsq + idle: a(l, lg='pre')
    dE = P['dE'][w]; pE = P['pE']; nPre = P['nPre'][w]; inGap = P['inGap'][w]
    eq = ['E0', 'E1', 'E2'][:P['nE']]; nE = len(eq)
    for k in range(nPre):
        wdelay(dE if k == 0 else pE); a(ldE, vm=eq.pop(0))
    nH0 = len(a.vm) - 1 - a.vm.index('H0')
    a(f"s_waitcnt vmcnt({nH0})")
    a.label(lb('a1'))
    stamp(12)
    mf32(HD, SEL, HA, None)
    a(f"v_bitop3_b32 v{T1}, v{HA}, v{HA+2}, s{sTAG} bitop3:0x7e")
    a.wait(vm='H1')
    mf32(HD, SEL, HA + 4, HD)
    a(f"v_bitop3_b32 v{T1+1}, v{HA+4}, v{HA+6}, s{sTAG} bitop3:0x7e\nv_bitop3_b32 v{T1}, v{T1}, v{T1+1}, 1 bitop3:0xa8\nv_cmp_ne_u32 vcc, 0, v{T1}")
    if inGap and eq:
        a("s_nop 1"); a(ldE, vm=eq.pop(0)); a("s_nop 0")
    else: a("s_nop 3")
    dpa = lambda r, n: f"v_add_f32_dpp v{r}, v{r}, v{r} row_ror:{n} row_mask:0xf bank_mask:0xf"
    a(dpa(HD, 4)); a(dpa(HD + 1, 4)); a("s_nop 0"); a(dpa(HD, 8)); a(dpa(HD + 1, 8))
    a(cv(HD, HD))
    a(f"s_cbranch_vccnz {lb('r1')}")
    a(f"buffer_store_dword v{HD}, v{A_IMS}, {WS}, s{sIMw} offen", vm='im')
    stamp(13)
    if inGap and eq: a(ldE, vm=eq.pop(0))
    misc = [f"ds_read_b128 {vr(KX+4*k,4)}, v{L16} offset:{L_KV + 4096*w + 1024*k}" for k in range(4)]
    misc += [f"s_mov_b32 s{sIMw}, s{sIMr}", f"s_add_u32 s{sIMr}, s{sIMr}, 0x2000", f"s_and_b32 s{sIMr}, s{sIMr}, 0xffff7fff",
             f"s_xor_b32 s{sTAG}, s{sTAG}, 1"]
    if w == 0: misc += cvF + [f"s_add_u32 s{sFLn}, s{sS}, 2", f"s_lshr_b32 s{sFLn}, s{sFLn}, 3", f"s_min_u32 s{sFLn}, s{sFLn}, 7", f"s_lshl2_add_u32 s{sFLn}, s{sFLn}, {DBG_DN + DBG_KVC}"]
    misc += sync_tmp(P, w)
    def delay(n):
        while n > 0 and misc: a(misc.pop(0), lg='pre'); n -= 1
        wdelay(n)
    while eq:
        delay(dE if len(eq) == nE else pE); a(ldE, vm=eq.pop(0))
    delay(len(misc))
    if P.get('pr'):
        i0 = a.lines.index(lb('top') + ':'); i0 = a.lines.index('s_barrier', i0) + 1
        body = a.lines[i0:]; a.lines = a.lines[:i0] + ["s_memtime s[72:73]"]; used = [0]; n = 0
        LISTING[w] = [l for l in body if not l.endswith(':')]
        for l in body:
            if not l.endswith(':'):
                if n in P['pr']: a.lines.append(f"s_memtime s[{72+2*len(used)}:{73+2*len(used)}]"); used.append(n)
                n += 1
            a.lines.append(l)
    if used:
        a("s_waitcnt lgkmcnt(0)")
        if P.get('trace'):
            a("s_nop 7")
            for k in range(len(used)): a(f"v_mov_b32 v{MA+8+k}, s{72+2*k}")
            a(f"s_lshl_b32 s{sT}, s{sH}, 12\ns_lshl_b32 s{sT+1}, s{sS}, 4\ns_add_u32 s{sT}, s{sT}, s{sT+1}\ns_add_u32 s{sT}, s{sT}, {WS_STAMP + 65536 + 1024*w}\ns_mov_b64 exec, 1")
            a(f"buffer_store_dwordx4 {vr(MA+8,4)}, v{L16}, {WS}, s{sT} offen", vm='tr')
            a("s_mov_b64 exec, -1")
        else:
            for k in range(1, len(used)):
                a(f"s_sub_u32 s{sT}, s{72+2*k}, s{70+2*k}\ns_add_u32 s{88+k}, s{88+k}, s{sT}")
    if w == 0: wdelay(P['dT'])
    if P.get('stat'):
        a(f"s_cmp_lg_u32 s{sS}, 3\ns_cbranch_scc1 {lb('top')}\ns_memtime s[68:69]\ns_memrealtime s[62:63]\ns_mov_b32 s70, 0\ns_mov_b32 s71, 0")
        for k in range(8): a(f"s_mov_b32 s{88+k}, 0")
    young = lambda t: len(a.vm) - 1 - a.vm.index(t)
    eL = P['earlyL']
    ns = [young(f'E{k}') + k + (eL if k else 0) for k in range(nE)]
    a.lines[a.lines.index(lb('top') + ':') + 1] = f"s_waitcnt vmcnt({ns[0]}) lgkmcnt(0)"
    a(f"s_branch {lb('top')}")
    end_main = len(a.lines)
    cnt = lambda r, v: (f"s_add_u32 s{r}, s{r}, {v}\n" if P.get('stat') else '')
    spin = f"s_add_u32 s{sSPIN}, s{sSPIN}, 1\ns_cmp_gt_u32 s{sSPIN}, {SPIN_MAX}\ns_cbranch_scc1 L_exit\n"
    for k in range(1, nE + 1):
        a.label(lb(f'f{k}'))
        a(ldE); a(cnt(71, 1) + f"s_waitcnt vmcnt({ns[k] if k < nE else nE - 1})"); a(chkE); a(dwE)
        a(f"s_cbranch_vccnz {lb(f'f{k+1}')}")
        a(ldL); a(f"s_branch {lb('go')}")
    a.label(lb(f'f{nE+1}'))
    a(spin + f"s_branch {lb(f'f{nE}')}")
    if prober:
        a.label(lb('p1'))
        a(probe); a(chkL[1]); a(chkL[2]); a(f"s_cbranch_vccnz {lb('rL')}")
        a. label(lb('p2'))
        for k in range(3):
            a(cnt(70, 65536) + f"s_waitcnt vmcnt({npr-1})\nv_cmp_ne_u32 vcc, s{sS}, v{FLV}"); a(probe); a(f"s_cbranch_vccz {lb('bL')}")
        a(spin + f"s_branch {lb('p2')}")
    a.label(lb('rL'))
    if w == 0: a(ldF)
    a(f"s_cmp_eq_u32 s{sS}, 0\ns_cbranch_scc1 {lb('rL0')}"); a(ldL)
    a.label(lb('rL0'))
    a(cnt(71, 65536) + spin + "s_waitcnt vmcnt(0)")
    a(dwL)
    if w == 0: a('\n'.join(cvF))
    a('\n'.join(chkL))
    a(f"s_waitcnt lgkmcnt(0)\ns_cbranch_vccnz {lb('rL')}\ns_branch {lb('p2' if prober else 'bL')}")
    a.label(lb('r1'))
    a(ld1[0]); a(ld1[1])
    a(cnt(70, 1) + spin + f"s_waitcnt vmcnt(0)\ns_branch {lb('a1')}")
    a.label(lb('step'))
    for l in sync_tmp(P, w): a(l)
    a(dwE)
    a(f"s_branch {lb('go')}")
    return end_main, None
```

```python
from asmlib import *
from chain import WS_KV, WS_KM, WS_SIZE, DBG_KVC, DBG_KV0, DBG_DN, S_WS, S_DBG, sH, sW, nops

WS_A = 50 << 20
WS_CNT = WS_A + (64 << 10)
WS_PART = 64 << 20
H_GW = 131072
H_E = H_GW + 1024
H_C = H_E + 1024
H_K = H_C + 4096
S_X, S_W1, S_W2, S_WO, S_OUT = 8, 12, 16, 20, 28
sB = 34
sX0, sWo1, sWo2, sStI, sStS, sSlot, sCnt, sSeg, sSpin, sJ = 35, 36, 37, 38, 39, 40, 41, 42, 43, 44
sA, sA2, sA3, sA4 = 45, 46, 47, 48
sWoo = 49
sM = 50
P_LRE, P_LIM, P_LDT, P_DSK, P_GW, P_CRE, P_CIM = 58, 62, 64, 66, 68, 70, 72
LANE, L16, VX_, VW, VW2, XA, WA, BA, GA, VKV, G, VN, HH, VKM, VVM, WOA, MX = 0, 1, 2, 3, 4, 5, 7, 11, 13, 14, 15, 16, 17, 18, 19, 20, 28
T = 29
KF, VF, FR = 32, 96, 160
QF, SS, HF = 160, 224, 240
HSPIN = 400000
LOG2E = 0x3fb8aa3b
def mf(a, D, A, B, C): a(f"v_mfma_f32_32x32x16_bf16 {D}, {A}, {B}, {C}")
WS = sr(S_WS, 4)

S_PF = 52
P_WQ, P_WK, P_WV = 74, 76, 78
sPH = 56
def h_ptrs(a):
    a(f"""
    s_load_dwordx2 {sr(S_X,2)}, s[0:1], 0
    s_load_dwordx2 {sr(P_WK,2)}, s[0:1], 96
    s_load_dwordx2 {sr(P_WV,2)}, s[0:1], 104
    s_load_dwordx2 {sr(S_WO,2)}, s[0:1], 112
    s_load_dwordx2 {sr(S_PF,2)}, s[0:1], 88
    s_mov_b32 s{S_X+2}, 2097152
    s_mov_b32 s{S_X+3}, 0x20000
    s_mov_b32 s{S_WO+2}, 4194304
    s_mov_b32 s{S_WO+3}, 0x20000
    s_mov_b32 s{S_OUT+2}, 4194304
    s_mov_b32 s{S_OUT+3}, 0x20000
    s_mov_b32 s{S_W1+2}, 4194304
    s_mov_b32 s{S_W1+3}, 0x20000
    s_mov_b32 s{S_W2+2}, 4194304
    s_mov_b32 s{S_W2+3}, 0x20000
    s_mov_b32 s{S_PF+2}, 4194304
    s_mov_b32 s{S_PF+3}, 0x20000
    """)
PFW, PFO = 253, 254
def h_prefetch(a, sR):
    a(f"""
    s_mov_b64 {sr(S_W1,2)}, {sr(P_WK,2)}
    s_mov_b64 {sr(S_W2,2)}, {sr(P_WV,2)}
    s_mul_i32 s{sPH}, s{sR}, {32*9363}
    s_lshr_b32 s{sPH}, s{sPH}, 16
    s_lshl_b32 s{sA}, s{sPH}, 8
    s_lshl_b32 s{sA2}, s3, 17
    s_add_u32 s{sA}, s{sA}, s{sA2}
    v_lshrrev_b32 v1, 4, v0
    v_and_b32 v2, 15, v0
    v_cmp_gt_u32 vcc, 12, v2
    v_lshlrev_b32 v2, 7, v2
    v_lshl_add_u32 v1, v1, 13, v2
    v_add_u32 v1, s{sA}, v1
    v_bfrev_b32 v2, 1
    v_cndmask_b32 v{PFW}, v2, v1, vcc
    s_lshl_b32 s{sA}, s3, 14
    v_lshlrev_b32 v1, 7, v0
    v_cmp_gt_u32 vcc, 128, v0
    buffer_load_dword v255, v{PFW}, {sr(S_W2,4)}, 0 offen
    v_add_u32 v3, s{sA}, v1
    buffer_load_dword v255, v{PFW}, {sr(S_W1,4)}, 0 offen
    v_cndmask_b32 v3, v2, v3, vcc
    buffer_load_dword v255, v3, {sr(S_X,4)}, 0 offen
    s_load_dwordx2 {sr(S_OUT,2)}, s[0:1], 136
    s_load_dwordx2 {sr(P_LRE,2)}, s[0:1], 8
    s_load_dwordx2 {sr(P_LIM,2)}, s[0:1], 16
    s_load_dwordx2 {sr(P_LDT,2)}, s[0:1], 56
    s_load_dwordx2 {sr(P_DSK,2)}, s[0:1], 64
    s_load_dwordx2 {sr(P_GW,2)}, s[0:1], 128
    s_waitcnt lgkmcnt(0)
    s_load_dwordx2 {sr(P_CRE,2)}, s[0:1], 40
    s_load_dwordx2 {sr(P_CIM,2)}, s[0:1], 48
    s_cmp_ge_u32 s{sW}, 2
    s_cbranch_scc1 L_h_hi
    s_mov_b64 {sr(S_W2,2)}, {sr(S_PF,2)}
    s_mov_b32 s{sStI}, {4*8192}
    s_mov_b32 s{sStS}, {32*8192}
    s_branch L_h_sel
    """)
    a.label('L_h_hi')
    a(f"""
    s_mov_b64 {sr(S_W1,2)}, {sr(P_WV,2)}
    s_mov_b32 s{S_W2+2}, 524288
    s_mov_b32 s{sStI}, 0x10000000
    s_mov_b32 s{sStS}, 64
    s_cmp_eq_u32 s{sW}, 3
    s_cbranch_scc1 L_h_w3
    s_load_dwordx2 {sr(S_W2,2)}, s[0:1], 24
    s_branch L_h_sel
    """)
    a.label('L_h_w3')
    a(f"s_load_dwordx2 {sr(S_W2,2)}, s[0:1], 32")
    a.label('L_h_sel')
    a("s_waitcnt lgkmcnt(0)")
    return 3

def h_once(a):
    a(f"v_and_b32 v{LANE}, 63, v0")
    t = 32
    a(f"""
    v_lshlrev_b32 v{L16}, 4, v{LANE}
    v_and_b32 v{VN}, 31, v{LANE}
    v_lshrrev_b32 v{HH}, 5, v{LANE}
    v_lshrrev_b32 v{t}, 2, v{LANE}              ; r = lane>>2
    v_lshrrev_b32 v{t+1}, 4, v{LANE}            ; lane>>4
    v_and_b32 v{t+2}, 3, v{LANE}                ; c
    v_xor_b32 v{t+3}, v{t+2}, v{t+1}
    v_lshlrev_b32 v{t+3}, 4, v{t+3}
    v_lshl_add_u32 v{VX_}, v{t}, 10, v{t+3}
    v_and_b32 v{t+3}, 15, v{LANE}
    v_lshlrev_b32 v{t+4}, 2, v{t+1}
    v_xor_b32 v{t+3}, v{t+3}, v{t+4}
    v_lshlrev_b32 v{t+3}, 4, v{t+3}
    v_lshl_add_u32 v{VW}, v{t+1}, 13, v{t+3}
    s_cmp_ge_u32 s{sW}, 2
    s_cselect_b64 vcc, -1, 0
    v_cndmask_b32 v{VW2}, v{VW}, v{VX_}, vcc
    v_bfe_u32 v{t+5}, v{LANE}, 2, 1             ; h'
    v_bfe_u32 v{t+6}, v{LANE}, 3, 1             ; t
    v_bfe_u32 v{t+7}, v{LANE}, 4, 1             ; n>>4
    v_lshl_add_u32 v{t+8}, v{t+7}, 2, v{t+2}
    v_lshl_add_u32 v{t+8}, v{t+5}, 3, v{t+8}    ; i = 8h' + 4(n>>4) + (n&3)
    v_lshl_add_u32 v{t+9}, v{HH}, 5, v{t+8}
    v_lshlrev_b32 v{t+9}, 4, v{t+9}
    v_lshl_add_u32 v{VKV}, v{t+6}, 10, v{t+9}
    v_lshl_add_u32 v{t+9}, v{HH}, 4, v{t+8}
    v_lshlrev_b32 v{t+9}, 4, v{t+9}
    v_lshl_add_u32 v{t+9}, v{t+6}, 2, v{t+9}
    s_lshl_b32 s{sA}, s{sW}, 12
    s_add_u32 s{sA}, s{sA}, {H_K}
    v_add3_u32 v{VVM}, v{t+9}, s{sA}, 8
    v_and_b32 v{t+9}, 7, v{LANE}
    v_lshl_add_u32 v{t+9}, v{HH}, 5, v{t+9}
    v_lshl_add_u32 v{VKM}, v{t+9}, 4, s{sA}
    s_waitcnt lgkmcnt(0)
    """)

def xaddr(a, row, base_s, dst):
    a(f"""
    v_bfe_u32 v{T}, v{row}, 2, 2
    v_xor_b32 v{T}, v{T}, v{HH}
    v_lshlrev_b32 v{T}, 4, v{T}
    v_lshl_add_u32 v{T}, v{row}, 6, v{T}
    v_add_u32 v{dst}, {base_s}, v{T}
    v_xor_b32 v{dst+1}, 32, v{dst}
    """)

OPT = {}
sXC, sClr = 57, 3
def dma_part(part, kind):
    G_ = []
    for i in range(4):
        o = (16384 if part == 'B' else 0) + 1024 * i
        L = [f"s_add_u32 m0, s{sSlot}, {o}"]
        if kind == 'wo': L += [f"s_add_u32 s{sA}, s{sWoo}, {o}", f"buffer_load_dwordx4 v{WOA + i}, {sr(S_WO,4)}, s{sA} offen lds"]
        elif part == 'A': L += [f"s_add_u32 s{sA}, s{sXC}, {(i >> 1) * 131072 + (i & 1) * 16384}", f"buffer_load_dwordx4 v{VX_}, {sr(S_X,4)}, s{sA} offen lds"]
        elif kind == 'p1': L += [f"s_add_u32 s{sA}, s{sWo1}, {4*8192*i}", f"buffer_load_dwordx4 v{VW}, {sr(S_W1,4)}, s{sA} offen lds"]
        else: L += [f"s_mov_b32 s{sA2}, s{sWo2}" if i == 0 else f"s_add_u32 s{sA2}, s{sA2}, s{sStI}", f"buffer_load_dwordx4 v{VW2}, {sr(S_W2,4)}, s{sA2} offen lds"]
        G_.append(L)
    if part == 'A' and kind != 'wo': G_[-1] += [f"s_add_u32 s{sXC}, s{sXC}, 64", f"s_and_b32 s{sXC}, s{sXC}, 0xfffffbff"]
    if part == 'B':
        G_[-1] += [{'p1': f"s_add_u32 s{sWo1}, s{sWo1}, {32*8192}", 'p2': f"s_add_u32 s{sWo2}, s{sWo2}, s{sStS}", 'wo': f"s_add_u32 s{sWoo}, s{sWoo}, 32768"}[kind]]
        G_[-1] += [f"s_add_u32 s{sSlot}, s{sSlot}, 32768", f"s_and_b32 s{sSlot}, s{sSlot}, 0x1ffff"]
    return G_

def frag_reads(p, k, fs):
    b = FR + 40 * fs
    L = [f"ds_read_b128 {vr(b + 4*j, 4)}, v{XA + k} offset:{2048*j}" for j in range(2)]
    for m in range(2 if p == 1 else 1):
        for tau in range(4):
            for pp in range(2):
                L.append(f"ds_read_b64_tr_b16 {vr(b + 8 + 16*m + 4*tau + 2*pp, 2)}, v{WA + tau} offset:{8192*m + (16*k + 4*pp)*256}")
    if p == 2:
        L.append(f"ds_read_b128 {vr(b + 24, 4)}, v{BA + k}")
        L.append(f"ds_read_b128 {vr(b + 28, 4)}, v{GA} offset:{32*k}")
    return L
def mfmas(p, fs):
    b = FR + 40 * fs
    L = []
    x = lambda j: vr(b + 4 * j, 4)
    for tau in range(4):
        for j in range(2):
            D = ar(64 * j + 16 * tau, 16); L.append((D, vr(b + 8 + 4 * tau, 4), x(j), D))
    if p == 1:
        for tau in range(4):
            for j in range(2):
                D = ar(128 + 64 * j + 16 * tau, 16); L.append((D, x(j), vr(b + 24 + 4 * tau, 4), D))
    else:
        for q in range(2):
            for j in range(2):
                D = ar(128 + 32 * q + 16 * j, 16); L.append((D, vr(b + 24 + 4 * q, 4), x(j), D))
    return L
def adv_addr(p):
    L = []
    regs_ = [XA, XA + 1] + [WA + t for t in range(4)] + ([BA, BA + 1] if p == 2 else [])
    for r in regs_: L += [f"v_add_u32 v{r}, 0x8000, v{r}", f"v_and_b32 v{r}, 0x1ffff, v{r}"]
    if p == 2: L.append(f"v_add_u32 v{GA}, 64, v{GA}")
    return L

def stage_loop(a, name, p, kB, kA, n):
    if n != 1:
        a(f"s_mov_b32 s{sCnt}, {n}")
        a.label(name)
    a("s_waitcnt lgkmcnt(0)")
    rd = frag_reads(p, 1, 1); av = adv_addr(p); dg = dma_part('B', kB)
    M = mfmas(p, 0); q = len(M) // 4
    for i, m in enumerate(M):
        mf(a, *m)
        for _ in range(2):
            if rd: a(rd.pop(0))
        if i % q == 1:
            for l in dg.pop(0): a(l)
        elif not rd:
            for _ in range(5):
                if av: a(av.pop(0))
    assert not rd and not av and not dg
    a(f"s_waitcnt vmcnt({18 if p == 1 else 16}) lgkmcnt(0)\ns_barrier")
    rd = frag_reads(p, 0, 0); dg = dma_part('A', kA)
    M = mfmas(p, 1)
    for i, m in enumerate(M):
        mf(a, *m)
        for _ in range(2):
            if rd: a(rd.pop(0))
        if i % q == 1:
            for l in dg.pop(0): a(l)
        if p == 1 and i == 11: a(f"buffer_store_dwordx4 v[44:47], v{L16}, {WS}, s{sClr} offen sc1\ns_add_u32 s{sClr}, s{sClr}, 1024")
        if p == 1 and i == 12: a(f"s_and_b32 s{sA}, s{sClr}, 0xfff\ns_cselect_b32 s{sA}, 0, s{sX0}\ns_cselect_b32 s{sX0}, s{sX0}, 0x20000000\ns_add_u32 s{sClr}, s{sClr}, s{sA}")
        if i == len(M) - 1 and n != 1: a(f"s_sub_u32 s{sCnt}, s{sCnt}, 1\ns_cmp_lg_u32 s{sCnt}, 0")
    assert not rd and not dg
    if n != 1: a(f"s_cbranch_scc1 {name}")

SLEEP = [4]
def poll_fail(a, back, sl=None):
    a(f"s_add_u32 s{sSpin}, s{sSpin}, 1\ns_cmp_gt_u32 s{sSpin}, {HSPIN}\ns_cbranch_scc1 L_end\ns_sleep {sl or SLEEP[0]}\ns_branch {back}")

def unpack8(a, dst, src):
    for j in range(4):
        a(f"v_lshlrev_b32 v{dst+2*j}, 16, v{src+j}\nv_and_b32 v{dst+2*j+1}, 0xffff0000, v{src+j}")

def pw(a, LR, LI, A2, B2, n, cnt, tmp):
    for j in range(cnt):
        if n is None: a(f"v_exp_f32 v{tmp+j}, v{A2+j}\nv_fract_f32 v{LI+j}, v{B2+j}")
        else: a(f"v_mul_f32 v{tmp+j}, {n}, v{A2+j}\nv_mul_f32 v{LI+j}, {n}, v{B2+j}\nv_exp_f32 v{tmp+j}, v{tmp+j}\nv_fract_f32 v{LI+j}, v{LI+j}")
    for j in range(cnt): a(f"v_cos_f32 v{LR+j}, v{LI+j}\nv_sin_f32 v{LI+j}, v{LI+j}")
    a("s_nop 0")
    for j in range(cnt): a(f"v_mul_f32 v{LR+j}, v{LR+j}, v{tmp+j}\nv_mul_f32 v{LI+j}, v{LI+j}, v{tmp+j}")

def dtprep(a, A2, B2, DT, cnt):
    for j in range(cnt): a(f"v_mul_f32 v{DT+j}, {LOG2E}, v{DT+j}")
    for j in range(cnt): a(f"v_exp_f32 v{DT+j}, v{DT+j}")
    a("s_nop 0")
    for j in range(cnt): a(f"v_cvt_pk_bf16_f32 v{DT+j}, v{DT+j}, v{DT+j}")
    for j in range(cnt): a(f"v_and_b32 v{DT+j}, 0xffff0000, v{DT+j}")
    for j in range(cnt):
        a(f"v_mul_f32 v{A2+j}, v{DT+j}, v{A2+j}\nv_mul_f32 v{B2+j}, v{DT+j}, v{B2+j}")
        a(f"v_mul_f32 v{A2+j}, {LOG2E}, v{A2+j}\nv_mul_f32 v{B2+j}, 0.15915494, v{B2+j}")

def h_static(a):
    t = 32
    a(f"""
    v_bfe_u32 v{t}, v{LANE}, 2, 1
    v_bfe_u32 v{t+1}, v{LANE}, 3, 2
    v_and_b32 v{t+2}, 3, v{LANE}
    v_lshl_add_u32 v{t+3}, v{t+1}, 2, v{t+2}
    v_lshl_add_u32 v{t+3}, v{t}, 4, v{t+3}
    s_lshl_b32 s{sA}, s{sW}, 12
    """)
    xaddr(a, t + 3, f"s{sA}", XA)
    a(f"""
    v_bfe_u32 v{t+4}, v{LANE}, 2, 2             ; r'
    v_bfe_u32 v{t+5}, v{LANE}, 4, 1             ; half
    v_and_b32 v{t+6}, 1, v{LANE}
    v_bfe_u32 v{t+7}, v{LANE}, 1, 1
    v_lshl_add_u32 v{t+8}, v{t+5}, 1, v{t+7}
    v_lshl_add_u32 v{t+8}, v{t+6}, 2, v{t+8}
    v_lshlrev_b32 v{t+8}, 3, v{t+8}
    v_lshl_add_u32 v{t+9}, v{HH}, 3, v{t+4}
    v_lshl_add_u32 v{t+8}, v{t+9}, 8, v{t+8}
    v_lshl_add_u32 v{t+8}, v{t+4}, 6, v{t+8}
    v_add_u32 v{WA}, 16384, v{t+8}
    """)
    for tau in range(1, 4): a(f"v_xor_b32 v{WA+tau}, {64*tau}, v{WA}")
    for i in range(4): a(f"v_xor_b32 v{WOA+i}, {64*i}, v{L16}")
    for i in range(4): a(f"v_mov_b32 v{t+12+i}, -1")
    for i in range(256): a(f"v_accvgpr_write_b32 a{i}, 0")

def helper_task(a, P):
    DBG = sr(S_DBG, 4)
    SLEEP[0] = P.get('sleep', 4); OPT.clear(); OPT.update(P)
    def hs(k, alt=0):
        if P.get('alt') and not alt:
            if k in (4, 5, 6): return
            k = {2: 5, 3: 6}.get(k, k)
        if P.get('stat'): a(f"{'s_memtime' if P.get('hcyc') else 's_memrealtime'} s[{74+2*k}:{75+2*k}]")
    a.label('L_h_task')
    hs(0)
    t = 32
    a(f"""
    s_lshl_b32 s{sSeg}, s{sB}, 3
    s_add_u32 s{sSeg}, s{sSeg}, s{sW}
    s_lshl_b32 s{sXC}, s{sSeg}, 15
    s_lshl_b32 s{sWo1}, s{sH}, 8
    s_and_b32 s{sA}, s{sW}, 1
    s_lshl_b32 s{sA}, s{sA}, 17
    s_add_u32 s{sWo1}, s{sWo1}, s{sA}
    s_lshl_b32 s{sA}, s{sH}, 14
    s_cmp_ge_u32 s{sW}, 2
    s_cselect_b32 s{sWo2}, s{sA}, s{sWo1}
    s_lshl_b32 s{sSlot}, s{sW}, 12
    s_lshl_b32 s{sWoo}, s{sH}, 17
    s_add_u32 s{sWoo}, s{sWoo}, s{sSlot}
    s_mov_b32 s{sSpin}, 0
    """)
    NE = P.get('nearly', 2)
    if P.get('pfw'): a("s_waitcnt vmcnt(0)"); hs(0)
    a(f"""
    s_sub_u32 s{sA3}, s{sB}, 2
    s_cmp_ge_u32 s{sA3}, 5
    s_cbranch_scc1 L_h_nt
    s_lshl_b32 s{sA}, s{sW}, 6
    v_add_u32 v{T}, s{sA}, v{LANE}
    v_lshlrev_b32 v{T+1}, 7, v{T}
    s_cmp_eq_u32 s{sA3}, 4
    s_cbranch_scc1 L_h_t6
    v_lshrrev_b32 v{T+2}, 1, v{T}
    v_and_b32 v{T}, 128, v{T+1}
    v_lshl_add_u32 v{T}, v{T+2}, 13, v{T}
    s_lshl_b32 s{sA}, s{sA3}, 20
    s_lshl_b32 s{sA2}, s{sH}, 8
    s_add_u32 s{sA}, s{sA}, s{sA2}
    buffer_load_dword v255, v{T}, {sr(S_PF,4)}, s{sA} offen
    s_lshl_b32 s{sA}, s{sA3}, 15
    s_lshl_b32 s{sA2}, s{sH}, 17
    s_add_u32 s{sA}, s{sA}, s{sA2}
    buffer_load_dword v255, v{T+1}, {sr(S_WO,4)}, s{sA} offen
    s_branch L_h_nt
    """)
    a.label('L_h_t6')
    a(f"""
    v_lshlrev_b32 v{T+2}, 7, v{LANE}
    s_lshl_b32 s{sA}, s{sH}, 14
    buffer_load_dword v255, v{T+2}, {sr(S_W2,4)}, s{sA} offen
    s_add_u32 s{sA}, s{sA}, 8192
    buffer_load_dword v255, v{T+2}, {sr(S_W2,4)}, s{sA} offen
    v_and_b32 v{T+1}, 0x3fff, v{T+1}
    s_lshl_b32 s{sA}, s{sH}, 14
    v_add_u32 v{T+1}, s{sA}, v{T+1}
    global_load_dword v255, v{T+1}, {sr(P_CRE,2)}
    global_load_dword v255, v{T+1}, {sr(P_CIM,2)}
    """)
    a.label('L_h_nt')
    for st in range(4):
        for g_ in dma_part('A', 'p1') + (dma_part('B', 'p1') if st < 3 else []):
            for l in g_: a(l)
    a(f"""
    s_lshl_b32 s{sA}, s{sSeg}, 17
    s_lshl_b32 s{sA2}, s{sH}, 12
    s_add_u32 s{sA}, s{sA}, s{sA2}
    s_add_u32 s{sClr}, s{sA}, {WS_KM}
    s_mov_b32 s{sX0}, {(4 << 17) - 4096}
    """)
    a(f"""
    s_lshl_b32 s{sA}, s{sB}, 5
    s_add_u32 s{sA}, s{sA}, s{sH}
    s_lshl_b32 s{sA}, s{sA}, 7
    s_add_u32 s{sA}, s{sA}, {WS_A}
    s_mov_b64 exec, 0xff
    buffer_store_dwordx4 {vr(t+12,4)}, v{L16}, {WS}, s{sA} offen sc1
    s_mov_b64 exec, -1
    s_lshl_b32 s{sA}, s{sH}, 2
    s_add_u32 s{sA}, s{sA}, s{sSeg}
    s_lshl_b32 s{sA}, s{sA}, 7
    s_add_u32 s{sA}, s{sA}, {WS_CNT}
    s_cmp_lt_u32 s{sH}, 2
    s_cselect_b32 s{sA}, s{sA}, 0x70000000
    v_mov_b32 v{t+16}, 0
    s_mov_b64 exec, 1
    buffer_store_dword v{t+16}, v{t+16}, {WS}, s{sA} offen sc1
    s_mov_b64 exec, -1
    global_load_dwordx4 {vr(t+20,4)}, v{L16}, {sr(P_GW,2)}
    """)
    a(f"s_cmp_lt_u32 s{sB}, {NE}\ns_cbranch_scc1 L_h_go")
    a(f"v_lshlrev_b32 v{T}, 7, v{LANE}\ns_and_b32 s{sA2}, s{sXC}, 0xfffffc00\ns_waitcnt vmcnt(0)")
    for k in range(8 if P.get('xt', 1) else 0): a(f"s_add_u32 s{sA}, s{sA2}, {(k >> 2) * 131072 + (k & 3) * 8192}\nbuffer_load_dword v255, v{T}, {sr(S_X,4)}, s{sA} offen")
    a(f"s_sub_i32 s{sA3}, s{sB}, {P.get('lag', 2)}\ns_max_i32 s{sA3}, s{sA3}, 0\ns_cmp_eq_u32 s{sB}, 7\ns_cselect_b32 s{sA3}, 0, s{sA3}\ns_lshl_b32 s{sA3}, s{sA3}, 2")
    a(f"s_cmp_lg_u32 s{sW}, 0\ns_cbranch_scc1 L_h_go")
    a.label('L_h_w0')
    a(f"buffer_load_dword v{T}, off, {DBG}, s{sA3} offset:{DBG_DN + DBG_KVC} sc1\ns_waitcnt vmcnt(0)\nv_cmp_eq_u32 vcc, 0, v{T}\ns_cbranch_vccz L_h_go")
    poll_fail(a, 'L_h_w0', 8)
    a.label('L_h_go')
    a(f"s_waitcnt vmcnt({20 + 3})\ns_barrier")
    hs(1)
    for l in frag_reads(1, 0, 0): a(l)
    if P.get('alt'):
        stage_loop(a, 'L_h_p1x', 1, 'p1', 'x', 4); hs(2, 1)
        stage_loop(a, 'L_h_p1y', 1, 'p1', 'x', 4); hs(3, 1)
        stage_loop(a, 'L_h_p1a', 1, 'p1', 'x', 5); hs(4, 1)
    else: stage_loop(a, 'L_h_p1a', 1, 'p1', 'x', 13)
    a(f"v_add_u32 v{T}, {H_GW}, v{L16}\nds_write_b128 v{T}, {vr(t+20,4)}")
    stage_loop(a, 'L_h_p1b', 1, 'p2', 'x', 3)
    hs(2)
    a(f"""
    s_lshl_b32 s{sA3}, s{sSeg}, 19
    s_lshl_b32 s{sA2}, s{sH}, 14
    s_add_u32 s{sA3}, s{sA3}, s{sA2}
    s_add_u32 s{sA3}, s{sA3}, {WS_KV}
    s_waitcnt lgkmcnt(0)
    s_nop 7
    """)
    TM = 240
    def kv_store(j, m, tau):
        dst = (KF if m == 0 else VF) + 32 * j + 8 * tau
        a(f"s_add_u32 s{sA}, s{sA3}, {j * (4 << 19) + 4096 * tau}")
        for u in range(2): a(f"buffer_store_dwordx4 {vr(dst+4*u,4)}, v{VKV}, {WS}, s{sA} offen offset:{2048*m + 256*u} sc1")
    def signal(tag, off, so, nv):
        a(f"""
        s_waitcnt vmcnt({nv})
        s_barrier
        s_cmp_lg_u32 s{sW}, 0
        s_cbranch_scc1 L_h_ns{tag}
        s_lshl_b32 s{sA}, s{sB}, 2
        v_mov_b32 v{T}, 1
        s_mov_b64 exec, 1
        buffer_atomic_add v{T}, off, {DBG}, {so} offset:{off} sc0
        v_mov_b32 v{T+1}, 32
        s_waitcnt vmcnt(0)
        v_cmp_eq_u32 vcc, 31, v{T}
        s_cbranch_vccz L_h_ng{tag}
        buffer_store_dword v{T+1}, off, {DBG}, {so} offset:{off + DBG_DN} sc1
        """)
        a.label(f'L_h_ng{tag}')
        a("s_mov_b64 exec, -1")
        a.label(f'L_h_ns{tag}')
    for j in range(2):
        for m in range(2):
            for tau in range(4):
                src = 128 * m + 64 * j + 16 * tau; dst = (KF if m == 0 else VF) + 32 * j + 8 * tau
                for r in range(16): a(f"v_accvgpr_read_b32 v{TM+r}, a{src+r}")
                for r in range(8): a(f"v_cvt_pk_bf16_f32 v{dst+r}, v{TM+2*r}, v{TM+2*r+1}")
                if j == 0:
                    a(f"s_cmp_lg_u32 s{sB}, 0\ns_cbranch_scc1 L_h_sk{j}{m}{tau}")
                    kv_store(j, m, tau)
                    a.label(f'L_h_sk{j}{m}{tau}')
    a(f"s_cmp_lg_u32 s{sB}, 0\ns_cbranch_scc1 L_h_nj1")
    signal('a', DBG_KV0, '0', 0)
    a("s_barrier")
    for m in range(2):
        for tau in range(4): kv_store(1, m, tau)
    a.label('L_h_nj1')
    for i in range(192): a(f"v_accvgpr_write_b32 a{i}, 0")
    a(f"s_lshl_b32 s{sA}, s{sW}, 12")
    xaddr(a, VN, f"s{sA}", XA)
    a(f"""
    v_bfe_u32 v{TM}, v{LANE}, 2, 1
    v_bfe_u32 v{TM+1}, v{LANE}, 3, 1
    v_and_b32 v{TM+2}, 3, v{LANE}
    v_lshl_add_u32 v{TM+2}, v{TM+1}, 2, v{TM+2}
    v_lshl_add_u32 v{TM+2}, v{TM}, 3, v{TM+2}      ; ch
    v_bfe_u32 v{TM+3}, v{LANE}, 4, 1
    v_lshlrev_b32 v{TM+3}, 12, v{TM+3}
    v_add_u32 v{TM+3}, 24576, v{TM+3}
    v_lshlrev_b32 v{GA}, 4, v{HH}
    v_add_u32 v{GA}, {H_GW}, v{GA}
    """)
    xaddr(a, TM + 2, f"v{TM+3}", BA)
    a(f"s_cmp_lg_u32 s{sB}, 0\ns_cbranch_scc1 L_h_nsb")
    signal('b', DBG_KVC, f"s{sA}", 0)
    hs(3)
    for l in frag_reads(2, 0, 0): a(l)
    a(f"s_lshl_b32 s{sA4}, s{sB}, 1\ns_and_b32 s{sA4}, s{sA4}, {2 if P.get('lag', 2) == 2 else 14}\ns_sub_i32 s{sA4}, s{sA4}, {-1 if P.get('lag', 2) == 2 else 3}\ns_max_i32 s{sA4}, s{sA4}, 1\ns_cmp_eq_u32 s{sB}, 7\ns_cselect_b32 s{sA4}, 1, s{sA4}\ns_sub_u32 s{sJ}, 12, s{sA4}")
    stage_loop(a, 'L_h_p20', 2, 'p2', 'x', f"s{sA4}")
    a(f"s_cmp_eq_u32 s{sB}, 0\ns_cbranch_scc1 L_h_nsc")
    for j in range(2):
        for m in range(2):
            for tau in range(4): kv_store(j, m, tau)
    signal('c', DBG_KVC, f"s{sA}", 0)
    stage_loop(a, 'L_h_p2a', 2, 'p2', 'x', f"s{sJ}")
    stage_loop(a, 'L_h_p2c', 2, 'p2', 'wo', 1)
    stage_loop(a, 'L_h_p2b', 2, 'wo', 'wo', 3)
    for g_ in dma_part('B', 'wo'):
        for l in g_: a(l)
    hs(4)
    a("s_waitcnt lgkmcnt(0)\ns_nop 7")
    PK = 128 + 0
    for j in range(2):
        for tau in range(4):
            src = 64 * j + 16 * tau; dst = QF + 32 * j + 8 * tau
            for r in range(16): a(f"v_accvgpr_read_b32 v{TM+r}, a{src+r}")
            for r in range(8): a(f"v_cvt_pk_bf16_f32 v{dst+r}, v{TM+2*r}, v{TM+2*r+1}")
    a(f"""
    v_bfe_u32 v{T}, v{LANE}, 2, 1
    v_bfe_u32 v{T+1}, v{LANE}, 3, 1
    v_and_b32 v{T+2}, 0x13, v{LANE}
    v_lshl_add_u32 v{T+2}, v{T+1}, 2, v{T+2}
    v_lshl_add_u32 v{T+2}, v{T}, 3, v{T+2}
    v_lshlrev_b32 v{T+2}, 10, v{T+2}
    s_lshl_b32 s{sA}, s{sH}, 5
    v_lshl_add_u32 v{T+1}, v{HH}, 4, s{sA}
    v_add_u32 v{T+2}, v{T+2}, v{T+1}
    """)
    for j in range(2):
        for k in range(8):
            D = vr(SS + 16 * j, 16)
            mf(a, D, vr(KF + 32 * j + 4 * k, 4), vr(QF + 32 * j + 4 * k, 4), D if k else 0)
            tile = 8 * j + k
            a(f"global_load_dwordx4 {ar(8*tile,4)}, v{T+2}, {sr(P_CRE,2)}\nglobal_load_dwordx4 {ar(8*tile+4,4)}, v{T+2}, {sr(P_CIM,2)}")
            a(f"v_add_u32 v{T+2}, 32768, v{T+2}")
    RI = 32
    for r in range(32): a(f"v_accvgpr_read_b32 v{RI+r}, a{128+r}")
    a(f"v_accvgpr_read_b32 v{G}, a160\nv_accvgpr_read_b32 v{MX}, a176")
    A2, B2, LR, LI = 64, 72, 80, 88
    a(f"global_load_dwordx4 {vr(LR,4)}, v{T+1}, {sr(P_LRE,2)}\nglobal_load_dwordx4 {vr(LR+4,4)}, v{T+1}, {sr(P_LIM,2)}\nglobal_load_dwordx4 {vr(LI,4)}, v{T+1}, {sr(P_LDT,2)}")
    for r in (G, MX): a(f"v_mul_f32 v{r}, 0xbfb8aa3b, v{r}")
    for r in (G, MX): a(f"v_exp_f32 v{r}, v{r}")
    a("s_nop 0")
    for r in (G, MX): a(f"v_add_f32 v{r}, 1.0, v{r}")
    for r in (G, MX): a(f"v_rcp_f32 v{r}, v{r}")
    a(f"v_lshlrev_b32 v{T}, 4, v{HH}\nv_sub_u32 v{T}, v{VN}, v{T}\nv_mov_b32 v{T+2}, 0xff800000")
    for r in range(16):
        a(f"v_cmp_le_i32 vcc, {r}, v{T}\ns_nop 1")
        for j in range(2): a(f"v_cndmask_b32 v{SS+16*j+r}, v{T+2}, v{SS+16*j+r}, vcc")
    PQ, PV, PS, PH, PG = 128, 160, 192, 208, 216
    for r in range(32): a(f"v_accvgpr_write_b32 a{PQ+r}, v{QF+32+r}\nv_accvgpr_write_b32 a{PV+r}, v{VF+32+r}")
    for r in range(16): a(f"v_accvgpr_write_b32 a{PS+r}, v{SS+16+r}")
    a(f"v_accvgpr_write_b32 a{PG}, v{MX}")
    CA, CB, CD = 192, 193, 194
    a(f"""
    v_and_b32 v{T}, 15, v{LANE}
    s_lshl_b32 s{sA}, s{sH}, 5
    v_lshl_add_u32 v{T+2}, v{T}, 1, s{sA}
    global_load_ushort v{CA}, v{T+2}, {sr(P_LRE,2)}
    global_load_ushort v{CB}, v{T+2}, {sr(P_LIM,2)}
    global_load_ushort v{CD}, v{T+2}, {sr(P_LDT,2)}
    s_waitcnt vmcnt(0)
    """)
    TT, LE, LM = 128, 136, 144
    unpack8(a, LE, LR); unpack8(a, LM, LR + 4); unpack8(a, TT, LI)
    for j in range(8): a(f"v_mov_b32 v{A2+j}, v{LE+j}\nv_mov_b32 v{B2+j}, v{LM+j}")
    dtprep(a, A2, B2, TT, 8)
    pw(a, LR, LI, A2, B2, None, 8, TT)
    for j in range(8):
        a(f"""
        v_mul_f32 v{TT}, v{LE+j}, v{LE+j}
        v_fmac_f32 v{TT}, v{LM+j}, v{LM+j}
        v_rcp_f32 v{TT}, v{TT}
        v_add_f32 v{TT+1}, -1.0, v{LR+j}
        v_mul_f32 v{TT+2}, v{TT+1}, v{LE+j}
        v_fmac_f32 v{TT+2}, v{LI+j}, v{LM+j}
        v_mul_f32 v{TT+3}, v{LI+j}, v{LE+j}
        v_fma_f32 v{TT+3}, -v{TT+1}, v{LM+j}, v{TT+3}
        v_mul_f32 v{LE+j}, v{TT+2}, v{TT}
        v_mul_f32 v{LM+j}, v{TT+3}, v{TT}
        """)
    for d in (1, 2, 4, 8):
        dp = f"row_shr:{d} row_mask:0xf bank_mask:0xf bound_ctrl:1"
        for j in range(2):
            R, I = RI + 16 * j, RI + 16 * j + 8
            for c in range(8): a(f"v_mov_b32 v{TT+c}, v{R+c}")
            for c in range(8): a(f"v_fmac_f32_dpp v{R+c}, v{R+c}, v{LR+c} {dp}")
            for c in range(8): a(f"v_fmac_f32_dpp v{R+c}, -v{I+c}, v{LI+c} {dp}")
            for c in range(8): a(f"v_fmac_f32_dpp v{I+c}, v{I+c}, v{LR+c} {dp}")
            for c in range(8): a(f"v_fmac_f32_dpp v{I+c}, v{TT+c}, v{LI+c} {dp}")
        if d < 8:
            for c in range(8):
                a(f"v_mul_f32 v{TT}, v{LI+c}, v{LI+c}\nv_add_f32 v{TT+1}, v{LR+c}, v{LR+c}\nv_fma_f32 v{LR+c}, v{LR+c}, v{LR+c}, -v{TT}\nv_mul_f32 v{LI+c}, v{TT+1}, v{LI+c}")
    a(f"v_and_b32 v{T+2}, 15, v{LANE}\nv_add_u32 v{T+2}, 1, v{T+2}\nv_cvt_f32_u32 v{T+2}, v{T+2}")
    pw(a, LR, LI, A2, B2, f"v{T+2}", 8, TT)
    dp = "row_bcast:15 row_mask:0xa bank_mask:0xf"
    for j in range(2):
        R, I = RI + 16 * j, RI + 16 * j + 8
        for c in range(8): a(f"v_fmac_f32_dpp v{R+c}, v{R+c}, v{LR+c} {dp}")
        for c in range(8): a(f"v_fmac_f32_dpp v{R+c}, -v{I+c}, v{LI+c} {dp}")
        for c in range(8): a(f"v_fmac_f32_dpp v{I+c}, v{I+c}, v{LR+c} {dp}")
        for c in range(8): a(f"v_fmac_f32_dpp v{I+c}, v{R+c}, v{LI+c} {dp}")
    a(f"""
    s_lshl_b32 s{sA}, s{sW}, 7
    s_add_u32 s{sA}, s{sA}, {H_E}
    v_lshl_add_u32 v{T+2}, v{HH}, 5, s{sA}
    s_mov_b32 exec_lo, 0x80000000
    s_mov_b32 exec_hi, 0x80000000
    """)
    for j in range(2):
        for q in range(4): a(f"ds_write_b128 v{T+2}, {vr(RI + 16*j + 4*q, 4)} offset:{512*j + 64*(q>>1) + 16*(q&1)}")
    a("s_mov_b64 exec, -1")
    a(f"v_lshlrev_b32 v{CA}, 16, v{CA}\nv_lshlrev_b32 v{CB}, 16, v{CB}\nv_lshlrev_b32 v{CD}, 16, v{CD}")
    dtprep(a, CA, CB, CD, 1)
    U, W_ = 196, 198
    pw(a, U, U + 1, CA, CB, "0x42000000", 1, CD)
    pw(a, W_, W_ + 1, CA, CB, "0x43800000", 1, CD)
    a(f"v_add_u32 v{T+2}, 1, v{VN}\nv_cvt_f32_u32 v{T+2}, v{T+2}")
    pw(a, LR, LI, A2, B2, f"v{T+2}", 8, TT)
    EE = 200
    a(f"v_lshlrev_b32 v{T}, 2, v{T}\nv_add_u32 v{T+2}, {H_E}, v{T}\ns_waitcnt lgkmcnt(0)\ns_barrier")
    for s_ in range(8): a(f"ds_read2_b32 {vr(EE+2*s_,2)}, v{T+2} offset0:{32*s_} offset1:{32*s_+16}")
    AC_ = 216
    def cmac(M_, Er):
        a(f"""
        v_fma_f32 v{AC_+2}, v{M_}, v{AC_}, v{Er}
        v_fma_f32 v{AC_+3}, v{M_}, v{AC_+1}, v{Er+1}
        v_fma_f32 v{AC_+2}, -v{M_+1}, v{AC_+1}, v{AC_+2}
        v_fma_f32 v{AC_+1}, v{M_+1}, v{AC_}, v{AC_+3}
        v_mov_b32 v{AC_}, v{AC_+2}
        """)
    a(f"s_waitcnt lgkmcnt(0)\nv_mov_b32 v{AC_}, v{EE}\nv_mov_b32 v{AC_+1}, v{EE+1}")
    for s_ in range(1, 8): cmac(U, EE + 2 * s_)
    a(f"""
    v_min_u32 v{AC_}, -2, v{AC_}
    v_min_u32 v{AC_+1}, -2, v{AC_+1}
    v_lshlrev_b32 v{T+1}, 1, v{T}
    s_lshl_b32 s{sA3}, s{sH}, 7
    s_add_u32 s{sA3}, s{sA3}, {WS_A}
    s_lshl_b32 s{sA}, s{sB}, 12
    s_add_u32 s{sA}, s{sA}, s{sA3}
    s_cmp_eq_u32 s{sW}, 0
    s_cselect_b32 s{sA}, s{sA}, 0x70000000
    buffer_store_dwordx2 {vr(AC_,2)}, v{T+1}, {WS}, s{sA} offen sc1
    v_and_b32 v{T+2}, 7, v{LANE}
    v_cmp_gt_u32 {sr(sM,2)}, s{sB}, v{T+2}
    v_lshlrev_b32 v{T+2}, 2, v{T+2}
    v_mov_b32 v{AC_}, 0
    v_mov_b32 v{AC_+1}, 0
    s_mov_b32 s{sCnt}, 0
    """)
    a.label('L_h_wk')
    a(f"""
    buffer_load_dword v{AC_+2}, v{T+2}, {DBG}, 0 offen offset:{DBG_DN + DBG_KVC} sc1
    s_waitcnt vmcnt(0)
    v_cmp_gt_u32 vcc, 32, v{AC_+2}
    s_and_b64 vcc, vcc, {sr(sM,2)}
    s_cbranch_vccz L_h_wa
    """)
    poll_fail(a, 'L_h_wk')
    a.label('L_h_wa')
    a(f"""
    s_cmp_ge_u32 s{sCnt}, s{sB}
    s_cbranch_scc1 L_h_wd
    buffer_load_dwordx2 {vr(220,2)}, v{T+1}, {WS}, s{sA3} offen sc1
    s_waitcnt vmcnt(0)
    v_max_u32 v{AC_+2}, v220, v221
    v_cmp_eq_u32 vcc, -1, v{AC_+2}
    s_cbranch_vccz L_h_wb
    """)
    poll_fail(a, 'L_h_wa')
    a.label('L_h_wb')
    cmac(W_, 220)
    a(f"s_add_u32 s{sCnt}, s{sCnt}, 1\ns_add_u32 s{sA3}, s{sA3}, 4096\ns_branch L_h_wa")
    a.label('L_h_wd')
    a(f"s_lshl_b32 s{sA}, s{sW}, 10\ns_add_u32 s{sA}, s{sA}, {H_C}\nv_add_u32 v{T+2}, s{sA}, v{T}")
    for s_ in range(8):
        a(f"ds_write2_b32 v{T+2}, v{AC_}, v{AC_+1} offset0:{32*s_} offset1:{32*s_+16}")
        if s_ < 7: cmac(U, EE + 2 * s_)
    a(f"""
    s_lshl_b32 s{sA2}, s{sW}, 7
    s_add_u32 s{sA}, s{sA}, s{sA2}
    v_lshl_add_u32 v{T+2}, v{HH}, 5, s{sA}
    s_waitcnt lgkmcnt(0)
    """)
    CC = 192
    for j in range(2):
        for q in range(4): a(f"ds_read_b128 {vr(CC + 16*j + 4*q, 4)}, v{T+2} offset:{512*j + 64*(q>>1) + 16*(q&1)}")
    a(f"v_add_f32 v{T}, v{G}, v{G}\nv_add_f32 v{T+1}, v{MX}, v{MX}\ns_waitcnt lgkmcnt(0)")
    for j in range(2):
        R, I, cr, ci = RI + 16 * j, RI + 16 * j + 8, CC + 16 * j, CC + 16 * j + 8
        for c in range(8):
            a(f"""
            v_fmac_f32 v{R+c}, v{LR+c}, v{cr+c}
            v_fmac_f32 v{I+c}, v{LR+c}, v{ci+c}
            v_fma_f32 v{R+c}, -v{LI+c}, v{ci+c}, v{R+c}
            v_fmac_f32 v{I+c}, v{LI+c}, v{cr+c}
            v_mul_f32 v{cr+c}, v{R+c}, v{LE+c}
            v_mul_f32 v{ci+c}, v{R+c}, v{LM+c}
            v_fma_f32 v{cr+c}, -v{I+c}, v{LM+c}, v{cr+c}
            v_fmac_f32 v{ci+c}, v{I+c}, v{LE+c}
            v_mul_f32 v{cr+c}, v{cr+c}, v{T+j}
            v_mul_f32_e64 v{ci+c}, -v{ci+c}, v{T+j}
            """)
        for r in range(8): a(f"v_cvt_pk_bf16_f32 v{HF+8*j+r}, v{cr+2*r}, v{cr+2*r+1}")
    for r in range(8): a(f"v_accvgpr_write_b32 a{PH+r}, v{HF+8+r}")
    a(f"""
    v_bfe_u32 v{t+4}, v{LANE}, 2, 2
    v_bfe_u32 v{t+5}, v{LANE}, 4, 1
    v_and_b32 v{t+6}, 1, v{LANE}
    v_bfe_u32 v{t+7}, v{LANE}, 1, 1
    v_lshl_add_u32 v{t+8}, v{t+6}, 1, v{t+7}
    v_lshl_add_u32 v{t+8}, v{t+5}, 2, v{t+8}
    v_lshlrev_b32 v{t+8}, 3, v{t+8}
    v_lshl_add_u32 v{t+9}, v{HH}, 4, v{t+4}
    v_lshl_add_u32 v{t+8}, v{t+9}, 10, v{t+8}
    v_lshl_add_u32 v{WOA}, v{t+4}, 6, v{t+8}
    """)
    for tt in range(1, 4): a(f"v_xor_b32 v{WOA+tt}, {64*tt}, v{WOA}")
    for tt in range(4): a(f"v_add_u32 v{WOA+4+tt}, 0x10000, v{WOA+tt}")
    a(f"s_mov_b32 s{sJ}, 0")
    hs(5)
    a.label('L_h_seg')
    KMF, VMF, SM, PX, PM, OA_ = 32, 64, 80, 248, 128, 192
    a(f"v_max3_f32 v{MX}, v{SS}, v{SS+1}, v{SS+2}")
    for r in range(3, 15, 2): a(f"v_max3_f32 v{MX}, v{MX}, v{SS+r}, v{SS+r+1}")
    a(f"""
    v_max_f32 v{MX}, v{MX}, v{SS+15}
    s_lshl_b32 s{sA}, s{sSeg}, 17
    s_lshl_b32 s{sA2}, s{sH}, 12
    s_add_u32 s{sA}, s{sA}, s{sA2}
    s_add_u32 s{sA}, s{sA}, {WS_KM}
    s_cmp_eq_u32 s{sSeg}, 0
    s_cselect_b32 s{sA2}, 0, {1 << 17}
    s_sub_u32 s{sA2}, s{sA}, s{sA2}
    s_mov_b32 s{sA4}, 0x3e0293ee
    s_lshl_b32 s{sA3}, s{sW}, 12
    s_add_u32 s{sA3}, s{sA3}, {H_K}
    v_add_u32 v{T+1}, s{sA3}, v{L16}
    v_add_u32 v{T+2}, 2048, v{VKM}
    """)
    for tau in range(4): a(f"v_mov_b64 {vr(VMF + 4*tau + 2, 2)}, 0")
    a(f"v_mov_b64 {vr(PM+2,2)}, 0")
    a.label('L_h_pr')
    a(f"""
    buffer_load_dword v{T}, off, {WS}, s{sA2} sc1
    s_waitcnt vmcnt(0)
    v_cmp_eq_u32 vcc, -1, v{T}
    s_cbranch_vccz L_h_ld
    """)
    poll_fail(a, 'L_h_pr')
    a.label('L_h_pf')
    a(f"s_add_u32 s{sSpin}, s{sSpin}, 1\ns_cmp_gt_u32 s{sSpin}, {HSPIN}\ns_cbranch_scc1 L_end")
    a.label('L_h_ld')
    LD = 192
    for k in range(4): a(f"buffer_load_dwordx4 {vr(LD + 4*k, 4)}, v{L16}, {WS}, s{sA} offen offset:{1024*k} sc1")
    a("s_waitcnt vmcnt(0)")
    hs(6)
    for k in range(4): a(f"ds_write_b128 v{T+1}, {vr(LD + 4*k, 4)} offset:{1024*k}")
    a(f"v_max3_u32 v{T}, v{LD}, v{LD+1}, v{LD+2}")
    for r in range(3, 15, 2): a(f"v_max3_u32 v{T}, v{T}, v{LD+r}, v{LD+r+1}")
    a(f"v_max_u32 v{T}, v{T}, v{LD+15}\nv_cmp_eq_u32 vcc, -1, v{T}\ns_cbranch_vccnz L_h_pf")
    for k in range(8):
        o = ((k >> 1) & 1) * 128 + (k & 1) * 32
        a(f"ds_read2_b64 {vr(KMF + 4*k, 4)}, v{VKM if k < 4 else T+2} offset0:{o} offset1:{o+16}")
    for tau in range(4): a(f"ds_read2st64_b32 {vr(VMF + 4*tau, 2)}, v{VVM} offset0:{4*tau} offset1:{4*tau+2}")
    for k in range(8):
        a(f"s_waitcnt lgkmcnt({11-k})")
        mf(a, vr(SM, 16), vr(KMF + 4 * k, 4), vr(QF + 4 * k, 4), vr(SM, 16) if k else 0)
    a("s_waitcnt lgkmcnt(0)\ns_nop 11")
    a(f"""
    v_max3_f32 v{T}, v{MX}, v{SM}, v{SM+1}
    v_max3_f32 v{T}, v{T}, v{SM+2}, v{SM+3}
    v_mov_b32 v{T+1}, v{T}
    s_nop 1
    v_permlane32_swap_b32 v{T}, v{T+1}
    v_max_f32 v{T}, v{T}, v{T+1}
    v_mul_f32 v{T}, s{sA4}, v{T}
    """)
    ev = [SM + r for r in range(4)] + [SS + r for r in range(16)]
    for r in ev: a(f"v_fma_f32 v{r}, v{r}, s{sA4}, -v{T}")
    for r in ev: a(f"v_exp_f32 v{r}, v{r}")
    a(f"v_cvt_pk_bf16_f32 v{PM}, v{SM}, v{SM+1}\nv_cvt_pk_bf16_f32 v{PM+1}, v{SM+2}, v{SM+3}")
    for r in range(8): a(f"v_cvt_pk_bf16_f32 v{PX+r}, v{SS+2*r}, v{SS+2*r+1}")
    sm = [f"v_add_f32 v{T}, v{ev[0]}, v{ev[1]}"] + [f"v_add_f32 v{T}, v{T}, v{r}" for r in ev[2:]]
    sm += [f"v_mov_b32 v{T+1}, v{T}", f"v_sub_f32 v{T+2}, 1.0, v{G}", "s_nop 0", f"v_permlane32_swap_b32 v{T}, v{T+1}", f"v_add_f32 v{T}, v{T}, v{T+1}",
           f"v_rcp_f32 v{T}, v{T}", "s_nop 0", f"v_mul_f32 v{T}, v{T}, v{T+2}"]
    WF = 32
    wrd = lambda tile: [f"ds_read_b64_tr_b16 {vr(WF + 32*(tile&1) + 4*k + 2*pp, 2)}, v{WOA + 4*(k>>2) + (tile&3)} offset:{(32*((k>>1)&1) + 8*(k&1) + 4*pp)*1024 + 256*(tile>>2)}"
                        for k in range(8) for pp in range(2)]
    rd = wrd(0)
    OB = [192, 208, 132, 148]
    OB = [192, 208, 132, 80]
    def onorm(tau):
        L_ = [f"v_mul_f32 v{OB[tau]+r}, v{OB[tau]+r}, v{T}" for r in range(16)]
        L_ += [f"v_cvt_pk_bf16_f32 v{QF+8*tau+r}, v{OB[tau]+2*r}, v{OB[tau]+2*r+1}" for r in range(8)]
        return L_
    n = 0
    for tau in range(4):
        D = vr(OB[tau], 16)
        for k in range(3):
            if k == 0: mf(a, D, vr(VMF + 4 * tau, 4), vr(PM, 4), 0)
            else: mf(a, D, vr(VF + 8 * tau + 4 * (k - 1), 4), vr(PX + 4 * (k - 1), 4), D)
            for _ in range(2):
                if rd: a(rd.pop(0))
            if n == 6: sm += onorm(0)
            if n == 9: sm += onorm(1)
            for _ in range(6):
                if sm: a(sm.pop(0))
            n += 1
    for l in sm + onorm(2) + onorm(3): a(l)
    hs(7)
    a(f"""
    s_lshl_b32 s{sA}, s{sSeg}, 20
    s_lshl_b32 s{sA2}, s{sH}, 10
    s_add_u32 s{sA}, s{sA}, s{sA2}
    s_add_u32 s{sA}, s{sA}, {WS_PART}
    """)
    CT = 128
    def epi(tile):
        D = 192 + 16 * (tile & 1); c = CT + 8 * (tile & 1)
        L_ = []
        for u in range(2):
            L_ += [f"v_cvt_pk_bf16_f32 v{c+4*u+r}, v{D+8*u+2*r}, v{D+8*u+2*r+1}" for r in range(4)]
        for u in range(2):
            L_ += [f"buffer_store_dwordx4 {vr(c+4*u,4)}, v{L16}, {WS}, s{sA} offen sc1\ns_add_u32 s{sA}, s{sA}, 32768"]
        return L_
    for tile in range(16):
        D = vr(192 + 16 * (tile & 1), 16)
        rd = wrd(tile + 1) if tile < 15 else []
        ep = epi(tile - 1) if tile else []
        for k in range(10):
            if k == 2: a("s_waitcnt lgkmcnt(0)")
            if k < 2: mf(a, D, ar(8 * tile + 4 * k, 4), vr(HF + 4 * k, 4), D if k else 0)
            else: mf(a, D, vr(WF + 32 * (tile & 1) + 4 * (k - 2), 4), vr(QF + 4 * (k - 2), 4), D)
            if k >= 2:
                for _ in range(2):
                    if rd: a(rd.pop(0))
            if ep and k >= 6 and len(ep) <= 2: a(ep.pop(0))
            elif ep and k >= 1 and len(ep) > 2:
                a(ep.pop(0)); a(ep.pop(0))
        assert not ep and not rd
    a("s_nop 12")
    for l in epi(15): a(l)
    hs(8)
    a(f"""
    s_lshl_b32 s{sA4}, s{sSeg}, 7
    s_add_u32 s{sA4}, s{sA4}, {WS_CNT}
    v_mov_b32 v220, 1
    s_cmp_lg_u32 s{sJ}, 0
    s_cbranch_scc1 L_h_sg
    """)
    for r in range(32): a(f"v_accvgpr_read_b32 v{QF+r}, a{PQ+r}\nv_accvgpr_read_b32 v{VF+r}, a{PV+r}")
    for r in range(16): a(f"v_accvgpr_read_b32 v{SS+r}, a{PS+r}")
    for r in range(8): a(f"v_accvgpr_read_b32 v{HF+r}, a{PH+r}")
    a.label('L_h_sg')
    a(f"""
    v_accvgpr_read_b32 v{T}, a{PG}
    v_accvgpr_write_b32 a{PG}, v{G}
    s_xor_b32 s{sSeg}, s{sSeg}, 4
    s_add_u32 s{sJ}, s{sJ}, 1
    v_mov_b32 v{G}, v{T}
    s_waitcnt vmcnt(0)
    s_mov_b64 exec, 1
    buffer_atomic_add v220, off, {WS}, s{sA4}
    s_mov_b64 exec, -1
    s_cmp_eq_u32 s{sJ}, 1
    s_cbranch_scc1 L_h_seg
    """)
    SELR, XS, DS_ = 216, 208, 212
    XU, DU = 224, 232
    a(f"""
    s_lshl_b32 s{sA2}, s{sH}, 5
    v_lshlrev_b32 v{T+1}, 4, v{HH}
    v_lshl_add_u32 v{T+2}, v{VN}, 10, v{T+1}
    v_add_u32 v{T+1}, s{sA2}, v{T+1}
    global_load_dwordx4 {vr(DS_,4)}, v{T+1}, {sr(P_DSK,2)}
    v_lshlrev_b32 v{MX}, 1, v{T+2}
    v_bfe_u32 v{t}, v{LANE}, 2, 1
    v_bfe_u32 v{t+1}, v{LANE}, 3, 2
    v_and_b32 v{t+2}, 3, v{LANE}
    v_lshl_add_u32 v{t+1}, v{t+1}, 2, v{t+2}
    v_cmp_eq_u32 vcc, v{t}, v{HH}
    v_mov_b32 v{t+3}, 64
    s_mov_b32 s{sA2}, 0x3f80
    v_cndmask_b32 v{t+1}, v{t+3}, v{t+1}, vcc
    v_and_b32 v{t+2}, 1, v{t+1}
    v_lshlrev_b32 v{t+2}, 4, v{t+2}
    v_lshlrev_b32 v{t+2}, v{t+2}, s{sA2}
    v_lshrrev_b32 v{t+1}, 1, v{t+1}
    """)
    for d in range(4): a(f"v_cmp_eq_u32 vcc, {d}, v{t+1}\ns_nop 1\nv_cndmask_b32 v{SELR+d}, 0, v{t+2}, vcc")
    a.label('L_h_red')
    a(f"""
    s_lshl_b32 s{sA3}, s{sSeg}, 15
    s_lshl_b32 s{sA2}, s{sH}, 5
    s_add_u32 s{sA3}, s{sA3}, s{sA2}
    buffer_load_dwordx4 {vr(XS,4)}, v{T+2}, {sr(S_X,4)}, s{sA3} offen
    s_lshl_b32 s{sA4}, s{sSeg}, 7
    s_add_u32 s{sA4}, s{sA4}, {WS_CNT}
    s_lshl_b32 s{sA}, s{sSeg}, 20
    s_lshl_b32 s{sA2}, s{sH}, 15
    s_add_u32 s{sA}, s{sA}, s{sA2}
    s_add_u32 s{sA}, s{sA}, {WS_PART}
    s_lshl_b32 s{sA3}, s{sA3}, 1
    """)
    a.label('L_h_wc')
    a(f"""
    buffer_load_dword v220, off, {WS}, s{sA4} sc1
    s_waitcnt vmcnt(0)
    v_cmp_gt_u32 vcc, 32, v220
    s_cbranch_vccz L_h_rd
    """)
    poll_fail(a, 'L_h_wc', P.get('slc', 2))
    a.label('L_h_rd')
    hs(9)
    for k in range(32):
        a(f"buffer_load_dwordx4 {vr(32+4*k,4)}, v{L16}, {WS}, s{sA} offen offset:{1024*(k&3)} sc1")
        if k & 3 == 3: a(f"s_add_u32 s{sA}, s{sA}, 4096")
    unpack8(a, XU, XS); unpack8(a, DU, DS_)
    for r in range(8): a(f"v_mul_f32 v{XU+r}, v{XU+r}, v{DU+r}")
    for k in range(32):
        a(f"s_waitcnt vmcnt({31-k})")
        mf(a, vr(192, 16), vr(SELR, 4), vr(32 + 4 * k, 4), vr(192, 16) if k else 0)
    a("s_nop 12")
    for r in range(8): a(f"v_fmac_f32 v{192+r}, v{XU+r}, v{G}")
    OF = P.get('of', '')
    a(f"""
    buffer_store_dwordx4 v[192:195], v{MX}, {sr(S_OUT,4)}, s{sA3} offen {OF}
    buffer_store_dwordx4 v[196:199], v{MX}, {sr(S_OUT,4)}, s{sA3} offen offset:16 {OF}
    v_accvgpr_read_b32 v{G}, a{PG}
    s_xor_b32 s{sSeg}, s{sSeg}, 4
    s_add_u32 s{sJ}, s{sJ}, 1
    s_cmp_eq_u32 s{sJ}, 3
    s_cbranch_scc1 L_h_red
    """)
    a.label('L_h_done')
    if P.get('stat'):
        a("s_waitcnt vmcnt(0)"); hs(10); a("s_waitcnt lgkmcnt(0)")
        for k in range(11): a(f"v_mov_b32 v{32+k}, s{74+2*k}")
        a(f"v_mov_b32 v43, s98\ns_lshl_b32 s{sA}, s{sB}, 5\ns_add_u32 s{sA}, s{sA}, s{sH}\ns_lshl_b32 s{sA}, s{sA}, 2\ns_add_u32 s{sA}, s{sA}, s{sW}\ns_lshl_b32 s{sA}, s{sA}, 6\ns_add_u32 s{sA}, s{sA}, {(49 << 20) + (512 << 10)}\ns_mov_b64 exec, 1")
        for q in range(3): a(f"buffer_store_dwordx4 {vr(32+4*q,4)}, v{L16}, {WS}, s{sA} offen offset:{16*q}")
        a("s_mov_b64 exec, -1")
    a(f"""
    s_cmp_lg_u32 s{sB}, 0
    s_cbranch_scc1 L_end
    s_mov_b32 s{sB}, 7
    s_waitcnt vmcnt(0)
    s_branch L_h_again
    """)

if __name__ == '__main__':
    a = Asm(); h_once(a); helper_task(a, {})
    errs, ins = check(a.lines, 'helper')
    for e in errs: print(e)
    print(len(ins), ins[-1]['t'])
```

```python
import sys, json
from asmlib import *
import chain, helper
from chain import *
KNAME = 'gated_mix__ssm_conv_s5__memory_aug_recurrent_mem_tr__prompt_kernel'
L_EL = {'c': 16384 - 16, 'h': 163840 - 16}
JUNK = {'c': 127, 'h': 255}

def ticket(a, tag, off_s):
    a(f"""
    s_cmp_lg_u32 s{sW}, 0
    s_cbranch_scc1 L_tk_{tag}
    s_mov_b64 exec, 1
    v_mov_b32 v126, 1
    buffer_atomic_add v126, off, {sr(S_DBG,4)}, {off_s} sc0
    s_mov_b64 exec, -1
    """)
    a.label(f'L_tk_{tag}')
def ticket_get(a, tag, nyoung):
    a(f"""
    v_mov_b32 v125, {L_EL[tag]}
    s_cmp_lg_u32 s{sW}, 0
    s_cbranch_scc1 L_tg_{tag}
    s_waitcnt vmcnt({nyoung})
    s_mov_b64 exec, 1
    ds_write_b32 v125, v126
    s_mov_b64 exec, -1
    s_waitcnt lgkmcnt(0)
    """)
    a.label(f'L_tg_{tag}')
    a(f"""
    s_barrier
    ds_read_b32 v126, v125
    s_waitcnt lgkmcnt(0)
    v_readfirstlane_b32 s{sT+1}, v126
    s_cmp_ge_u32 s{sT+1}, 32
    s_cbranch_scc1 L_end
    """)
def code_pref(a, lo, hi):
    a(f"s_getpc_b64 s[60:61]")
    a.label(f'L_pc_{lo}')
    a(f"v_lshlrev_b32 v1, 7, v0\nv_min_u32 v2, {hi}-L_pc_{lo}-4, v1\nglobal_load_dword v{JUNK[lo]}, v2, s[60:61]\nv_add_u32 v1, 0x8000, v1\nv_min_u32 v2, {hi}-L_pc_{lo}-4, v1\nglobal_load_dword v{JUNK[lo]}, v2, s[60:61]")

def build_kernel(P):
    a = Asm()
    a("s_cmp_ge_u32 s2, 256\ns_cbranch_scc1 L_end")
    srd(a, S_DBG, 144, 256); srd(a, S_WS, 152, WS_SIZE)
    if P.get('stat'): a("s_memtime s[96:97]\ns_memrealtime s[98:99]")
    a(f"""
    s_getreg_b32 s{sT}, hwreg(HW_REG_XCC_ID, 0, 3)
    v_lshrrev_b32 v1, 6, v0
    s_bfe_u32 s3, s2, 0x50003
    v_readfirstlane_b32 s{sW}, v1
    s_cmp_eq_u32 s{sT}, 0
    s_cbranch_scc1 L_chain
    """)
    if P.get('nohelp'): a("s_branch L_end")
    n0 = 0
    helper.h_ptrs(a)
    a(f"s_sub_u32 s{sT}, s{sT}, 1\ns_mul_i32 s56, s{sT}, 43\ns_lshr_b32 s56, s56, 7\ns_mul_i32 s57, s56, -188\ns_lshl_b32 s56, s{sT}, 6\ns_add_u32 s57, s57, s56\ns_add_u32 s57, s57, 112\ns_waitcnt lgkmcnt(0)")
    ticket(a, 'h', "s57")
    ny = helper.h_prefetch(a, sT)
    code_pref(a, 'h', 'L_chain')
    helper.h_once(a)
    a(f"s_mov_b32 s{helper.sB}, 0")
    a.label('L_h_again')
    helper.h_static(a)
    a(f"s_cmp_eq_u32 s{helper.sB}, 7\ns_cbranch_scc0 L_h_first\ns_barrier\ns_branch L_h_task")
    a.label('L_h_first')
    ticket_get(a, 'h', ny + 2)
    a(f"""
    s_lshl_b32 s{sT}, s{sT}, 5
    s_add_u32 s{sT}, s{sT}, s{sT+1}
    s_mul_i32 s{sH}, s{sT}, 9363
    s_lshr_b32 s{sH}, s{sH}, 16
    s_mul_i32 s{sT+1}, s{sH}, 7
    s_sub_u32 s{helper.sB}, s{sT}, s{sT+1}
    """)
    helper.helper_task(a, P)
    errs, _ = check(a.lines[n0:], 'helper')
    a.label('L_chain')
    n0 = len(a.lines)
    srd(a, S_WV, 104, 4194304); srd(a, S_WK, 96, 4194304); srd(a, S_WQ, 88, 4194304); srd(a, S_WO, 112, 4194304); srd(a, S_M0, 80, 8192)
    a("s_waitcnt lgkmcnt(0)")
    ticket(a, 'c', '0')
    a(f"""
    v_lshrrev_b32 v1, 1, v0
    v_and_b32 v2, 1, v0
    v_lshlrev_b32 v2, 7, v2
    v_lshl_add_u32 v1, v1, 13, v2
    s_lshl_b32 s{sT+2}, s3, 8
    buffer_load_dword v127, v1, {sr(S_WV,4)}, s{sT+2} offen
    s_add_u32 s{sT+2}, s{sT+2}, {128*8192}
    buffer_load_dword v127, v1, {sr(S_WV,4)}, s{sT+2} offen
    """)
    code_pref(a, 'c', 'L_end')
    ticket_get(a, 'c', 4)
    a(f"s_mov_b32 s{sH}, s{sT+1}")
    if P.get('stat'):
        for r in [70, 71] + list(range(88, 96)): a(f"s_mov_b32 s{r}, 0")
        a("s_memtime s[60:61]")
    a.lg = []; a.vm = []
    chain.PF[0] = P.get('pf', 'sc1')
    chain_first_dma(a)
    chain_setup(a)
    chain_prologue(a, P)
    e, _ = check(a.lines[n0:], 'cpro'); errs += e
    vm0 = list(a.vm)
    for w in range(4):
        n0 = len(a.lines)
        chain_prologue_w(a, P, w, vm0)
        e, _ = check(a.lines[n0:], f'cpro{w}'); errs += e
    for w in range(4):
        a(".p2align 6")
        n0 = len(a.lines)
        n1, _ = chain_step(a, P, w)
        e, ins = check(a.lines[n0:n1] * 2, f'loop{w}'); errs += e
        e, _ = check(a.lines[n1:], f'retry{w}'); errs += e
    a.label('L_last')
    for l in pack_km(): a(l)
    a(f"buffer_store_dwordx4 {vr(ONE,4)}, v{L16}, {sr(S_WS,4)}, s{sKM} offen sc1")
    a.label('L_exit')
    if P.get('stat'):
        a("s_memtime s[66:67]\ns_memrealtime s[72:73]\ns_waitcnt lgkmcnt(0)\ns_nop 7")
        for k in range(8): a(f"v_mov_b32 v{40+k}, s{88+k}")
        a(f"""
        s_mov_b32 s93, s72
        s_mov_b32 s94, s98
        s_mov_b32 s92, s100
        s_sub_u32 s91, s72, s62
        s_sub_u32 s88, s66, s96
        s_sub_u32 s66, s66, s68
        s_sub_u32 s64, s64, s96
        s_sub_u32 s95, s60, s96
        v_mov_b32 v24, s64
        v_mov_b32 v25, s66
        v_mov_b32 v26, s70
        v_mov_b32 v27, s71
        s_lshl_b32 s{sT}, s{sH}, 2
        s_add_u32 s{sT}, s{sT}, s{sW}
        s_lshl_b32 s{sT}, s{sT}, 7
        s_add_u32 s{sT}, s{sT}, {WS_STAMP}
        v_mov_b32 v28, 0
        buffer_store_dwordx4 v[24:27], v28, {sr(S_WS,4)}, s{sT} offen
        """)
        for k in range(8): a(f"v_mov_b32 v{32+k}, s{88+k}")
        for q in range(4): a(f"buffer_store_dwordx4 {vr(32+4*q,4)}, v28, {sr(S_WS,4)}, s{sT} offen offset:{16+16*q}")
    a.label('L_end')
    return a, errs

def full_text(P):
    a, errs = build_kernel(P)
    ref = open('gated_mix__ssm_conv_s5__memory_aug_recurrent_mem_tr__prompt.s.ref').read()
    head = ref[:ref.index('; @launch')]
    txt = head + f"""; @launch grid=(256,1,1) block=(256,1,1) lds=163840
.amdgcn_target "amdgcn-amd-amdhsa--gfx950"
.text
.globl {KNAME}
.p2align 8
.type {KNAME},@function
{KNAME}:
{a.text()}    s_endpgm
.section .rodata,"a"
.p2align 6
.amdhsa_kernel {KNAME}
  .amdhsa_next_free_vgpr 512
  .amdhsa_next_free_sgpr 102
  .amdhsa_accum_offset 256
  .amdhsa_group_segment_fixed_size 0
  .amdhsa_kernarg_size 160
  .amdhsa_user_sgpr_count 2
  .amdhsa_user_sgpr_kernarg_segment_ptr 1
  .amdhsa_system_sgpr_workgroup_id_x 1
  .amdhsa_float_denorm_mode_32 3
.end_amdhsa_kernel
"""
    return txt, errs

if __name__ == '__main__':
    P = json.loads(sys.argv[2]) if len(sys.argv) > 2 else {}
    txt, errs = full_text(P)
    for e in errs: print('HAZ', e)
    out = sys.argv[1] if len(sys.argv) > 1 else 'gated_mix__ssm_conv_s5__memory_aug_recurrent_mem_tr__prompt.s'
    open(out, 'w').write(txt)
    print('wrote', out, len(txt))
```

```python
from asmlib import *

WS_KV = 65536
WS_KM = (34 << 20) + 65536
WS_H1 = 48 << 20
WS_IMG = WS_H1 + (512 << 10)
WS_FL = WS_IMG + (64 << 10)
WS_DUMMY = WS_IMG + (128 << 10)
WS_STAMP = 49 << 20
WS_SIZE = 268435456
DBG_XCNT = 0
DBG_CBAR = 4
DBG_KV0 = 12
DBG_KVC = 16
DBG_DN = 128
L_MEM, L_S, L_KV, L_W = 0, 8192, 16384, 32768
L_O = L_MEM
L_SM = L_S + 1024
L_MISC = L_S + 5120
S_WS, S_WQ, S_WK, S_WV, S_WO, S_DBG, S_M0 = 4, 8, 12, 16, 20, 24, 28
sH, sW, sS = 32, 33, 34
sKV, sKM, sH1l, sTAG, sIMl = 35, 36, 37, 38, 39
sH1 = 40
sIMw, sIMr, sFL, sSPIN = 44, 45, 46, 47
sIML, sKMv = 59, 58
sONE, sMLO, sFLn, sFG, sFM = 84, 86, 3, 2, 54
sC = 48
sT = 50
IDX, L16, A_W, A_SMW, NEG1, A_O, A_H1S, A_IMS = 0, 1, 2, 3, 4, 5, 6, 7
A_OW, FLV, HZ = 8, 9, 10
F, SEL, ONE = 12, 16, 20
MA = 24
Q0, K0, Q1, K1, V0, V1 = 56, 60, 64, 68, 72, 76
KX, VX, ST = 80, 88, 96
RW = 128
SPIN_MAX = 200000

QK_A = {1: 0, 2: 1, 3: 2, 5: 3, 6: 4, 7: 5}
def wqk_reg(sig, u):
    if sig in (0, 4): return ('v', ST + 8 * u)
    return ('a', 32 * QK_A[sig] + 8 * u)
def wv_reg(sig, tau):
    if sig < 4: return ('a', 192 + 8 * (2 * sig + tau))
    return ('v', RW + 8 * (2 * (sig - 4) + tau))
def wo_reg(T, k2):
    if T < 2: return ('v', RW + 64 + 8 * (4 * T + k2))
    return ('v', (ST if T == 2 else MA) + 8 * k2)
def R8(r): return vr(r[1], 8, r[0])
def smf(a, D, A, B): a(f"v_smfmac_f32_16x16x64_bf16 {vr(D,4)}, {vr(A,4)}, {R8(B)}, v{IDX}")
def lw_qk(sig, u): return 8192 * (sig >> 2) + 4096 * (u & 1) + 2048 * (u >> 1)
def lw_wo(T, k2): return 16384 + 2048 * (4 * (T - 2) + k2)
def nops(a, n):
    while n > 0:
        k = min(n, 16); a(f"s_nop {k-1}"); n -= k

def srd(a, s, koff, size):
    a(f"s_load_dwordx2 {sr(s,2)}, s[0:1], {koff}")
    a(f"s_mov_b32 s{s+2}, {size}\ns_mov_b32 s{s+3}, 0x20000")

def chain_setup(a):
    t = 96
    lane, i, g, g1, g0, hi, i3, i2 = t + 1, t + 2, t + 3, t + 6, t + 7, t + 8, t + 9, t + 10
    x, y, z = t + 5, t + 12, t + 13
    a(f"""
    v_and_b32 v{lane}, 63, v0
    v_and_b32 v{i}, 15, v{lane}
    v_lshrrev_b32 v{g}, 4, v{lane}
    v_lshlrev_b32 v{L16}, 4, v{lane}
    v_lshrrev_b32 v{g1}, 1, v{g}
    v_and_b32 v{g0}, 1, v{g}
    v_lshrrev_b32 v{hi}, 3, v{i}
    v_and_b32 v{i3}, 3, v{i}
    v_lshrrev_b32 v{i2}, 2, v{i}
    s_lshl_b32 s{sT+1}, s{sW}, 15
    s_add_u32 s{sT+1}, s{sT+1}, {L_W}
    v_add_u32 v{A_W}, s{sT+1}, v{L16}
    v_lshl_add_u32 v{y}, v{hi}, 1, v{g0}
    v_and_b32 v{x}, 7, v{i}
    v_lshl_add_u32 v{x}, v{y}, 4, v{x}
    v_lshlrev_b32 v{x}, 4, v{x}
    v_add_u32 v{y}, s{sW}, v{y}
    v_and_b32 v{y}, 3, v{y}
    v_lshl_add_u32 v{x}, v{y}, 2, v{x}
    v_xor_b32 v{y}, 1, v{g1}
    v_lshl_add_u32 v{x}, v{y}, 11, v{x}
    v_add_u32 v{A_SMW}, {L_SM}, v{x}
    v_mov_b32 v{HZ}, 0x3f803f80
    v_mov_b32 v{HZ+1}, 0
    v_mov_b32 v{NEG1}, -1
    v_and_b32 v{A_O}, 0x37f, v{L16}
    v_lshlrev_b32 v{y}, 7, v{g0}
    v_or_b32 v{A_O}, v{A_O}, v{y}
    v_xor_b32 v{A_OW}, v{L16}, v{y}
    v_mov_b32 v{FLV}, 0
    v_cmp_lt_u32 vcc, 7, v{i}
    v_mov_b32 v{y}, 0x4444
    v_mov_b32 v{z}, 0xeeee
    v_cndmask_b32 v{t+11}, v{y}, v{z}, vcc
    """)
    a(f"""
    v_lshlrev_b32 v{x}, 2, v{g1}
    v_lshl_add_u32 v{x}, v{hi}, 1, v{x}
    v_add_u32 v{x}, v{x}, v{g0}
    v_lshlrev_b32 v{x}, 11, v{x}
    v_and_b32 v{y}, 7, v{i}
    v_lshl_add_u32 v{x}, v{y}, 3, v{x}
    s_lshl_b32 s{sT+2}, s{sW}, 14
    s_lshl_b32 s{sT+3}, s{sH}, 6
    s_add_u32 s{sT+2}, s{sT+2}, s{sT+3}
    v_add_u32 v{A_H1S}, s{sT+2}, v{x}
    """)
    a(f"""
    s_lshl_b32 s{sT+2}, s{sW}, 5
    s_add_u32 s{sT+2}, s{sT+2}, s{sH}
    s_lshl_b32 s{sT+2}, s{sT+2}, 6
    v_lshlrev_b32 v{x}, 4, v{g}
    v_lshl_add_u32 v{x}, v{i}, 2, v{x}
    v_add_u32 v{x}, s{sT+2}, v{x}
    v_cmp_gt_u32 vcc, 4, v{i}
    v_bfrev_b32 v{z}, 1
    s_nop 0
    v_cndmask_b32 v{A_IMS}, v{z}, v{x}, vcc
    """)
    a(f"""
    v_lshl_add_u32 v{x}, v{hi}, 2, v{i3}
    v_and_b32 v{y}, 1, v{i2}
    v_cmp_eq_u32 vcc, v{y}, v{g0}
    v_mov_b32 v{z}, 64
    s_nop 0
    v_cndmask_b32 v{x}, v{z}, v{x}, vcc
    v_and_b32 v{y}, 1, v{i}
    v_lshl_add_u32 v{t+14}, v{y}, 2, v{i2}
    v_cmp_gt_u32 vcc, 2, v{i3}
    s_mov_b32 s{sT+3}, 0x3f80
    s_nop 0
    v_cndmask_b32 v{t+14}, v{z}, v{t+14}, vcc
    """)
    for base, pos in ((F, x), (SEL, t + 14)):
        a(f"""
        v_and_b32 v{t+15}, 1, v{pos}
        v_lshlrev_b32 v{t+15}, 4, v{t+15}
        v_lshlrev_b32 v{t+15}, v{t+15}, s{sT+3}
        v_lshrrev_b32 v{t+16}, 1, v{pos}
        """)
        for d in range(4):
            a(f"""
            v_cmp_eq_u32 vcc, {d}, v{t+16}
            s_nop 1
            v_cndmask_b32 v{base+d}, 0, v{t+15}, vcc
            """)
    a(f"""
    v_and_b32 v{t+16}, 1, v{i2}
    v_lshl_add_u32 v{t+14}, v{g0}, 2, v{t+16}
    v_xor_b32 v{t+16}, s{sW}, v{t+16}
    v_lshlrev_b32 v{t+16}, 6, v{t+16}
    v_add_u32 v{t+16}, {L_W}, v{t+16}
    v_lshl_add_u32 v{t+15}, v{hi}, 3, v{t+14}
    v_lshl_add_u32 v{t+15}, v{t+15}, 8, v{t+16}
    v_lshl_add_u32 v{t+15}, v{g1}, 15, v{t+15}
    v_lshl_add_u32 v58, v{i3}, 4, v{t+15}
    v_add_u32 v61, 0x10000, v58
    v_lshl_add_u32 v{t+15}, v{g1}, 3, v{t+14}
    v_lshl_add_u32 v{t+15}, v{t+15}, 8, v{t+16}
    v_lshl_add_u32 v{t+15}, v{hi}, 5, v{t+15}
    v_lshl_add_u32 v59, v{i3}, 3, v{t+15}
    v_add_u32 v62, 0x10000, v59
    v_and_b32 v{x}, 7, v{i}
    v_lshlrev_b32 v{x}, 10, v{x}
    v_lshl_add_u32 v{x}, v{g}, 5, v{x}
    v_lshl_add_u32 v{x}, v{hi}, 4, v{x}
    s_lshl_b32 s{sT+2}, s{sW}, 7
    v_add_u32 v60, s{sT+2}, v{x}
    v_mov_b32 v{IDX}, v{t+11}
    """)
    for k in range(4): a(f"v_mov_b32 v{64+k}, -1")

def chain_prologue(a, P):
    WS = sr(S_WS, 4)
    a(f"""
    s_mov_b32 s{sS}, 0
    s_lshl_b32 s{sT}, s{sH}, 2
    s_add_u32 s{sT}, s{sT}, s{sW}
    s_lshl_b32 s{sKV}, s{sT}, 12
    s_add_u32 s{sKV}, s{sKV}, {WS_KV}
    s_lshl_b32 s{sKM}, s{sT}, 10
    s_mov_b32 s{sFLn}, {DBG_DN + DBG_KV0}
    s_add_u32 s{sKM}, s{sKM}, {WS_KM}
    s_mov_b32 s{sH1}, {WS_H1}
    s_mov_b32 s{sH1+1}, {WS_H1 + 65536}
    s_mov_b32 s{sH1+2}, {WS_H1 + 2*65536}
    s_mov_b32 s{sH1+3}, {WS_H1 + 3*65536}
    s_lshl_b32 s{sT}, s{sW}, 5
    s_add_u32 s{sT}, s{sT}, s{sH}
    s_lshl_b32 s{sT}, s{sT}, 11
    s_add_u32 s{sH1l}, s{sT}, {WS_H1}
    s_mov_b32 s{sTAG}, 0
    s_mov_b32 s{sIMw}, {WS_IMG + 8192}
    s_mov_b32 s{sIMr}, {WS_IMG + 16384}
    s_mov_b32 s{sIMl}, {WS_IMG}
    s_mov_b32 s{sIML}, {WS_IMG}
    s_mov_b32 s{sKMv}, 0x70000000
    s_and_b32 s{sT}, s{sW}, 1
    s_lshl_b32 s{sT}, s{sT}, 7
    s_lshl2_add_u32 s{sT+1}, s{sH}, s{sT}
    s_add_u32 s{sT+1}, s{sT+1}, {WS_FL}
    s_and_b32 s{sT}, s{sH}, 1
    s_lshl_b32 s{sT}, s{sT}, 7
    s_add_u32 s{sT}, s{sT}, {WS_FL}
    s_cmp_eq_u32 s{sW}, 3
    s_cselect_b32 s{sFG}, s{sT}, s{sT+1}
    s_mov_b32 s{sONE}, 0x3f803f80
    s_mov_b32 s{sONE+1}, 0x3f803f80
    s_mov_b32 s{sMLO}, 0x00ff00ff
    s_mov_b32 s{sMLO+1}, 0x00ff00ff
    s_mov_b32 s{sC}, 0x3e0293ee
    s_mov_b32 s{sC+1}, 0x3e0293ee
    """)
    a(f"""
    buffer_store_dwordx4 v[64:67], v{L16}, {WS}, s{sH1l} offen
    buffer_store_dwordx4 v[64:67], v{L16}, {WS}, s{sH1l} offen offset:1024
    buffer_store_dword v64, v{A_IMS}, {WS}, s{sIMw} offen
    buffer_store_dword v64, off, {WS}, s{sT+1}
    buffer_load_dwordx4 {vr(MA,4)}, v60, {sr(S_M0,4)}, 0 offen
    buffer_load_dwordx4 {vr(MA+16,4)}, v60, {sr(S_M0,4)}, 0 offen offset:512
    """, vm='init')
    a(f"""
    s_barrier
    """) if False else None
    for w in range(3): a(f"s_cmp_eq_u32 s{sW}, {w}\ns_cbranch_scc1 L_cp_{w}")
    a("s_branch L_cp_3")

UNITS = [(m, k) for m in 'vkq' for k in range(8)] + [('o', u) for u in range(8)]
sLB, sO1, sHB, sHO = sT + 4, sT + 5, sT + 6, sT + 7
PF = ['']
def issue_unit(a, u):
    kind, x = UNITS[u]
    if kind == 'o': base, off, step, voff, S = sHO, 64 * (x & 1) * 1024 + 256 * (x >> 1), 4 * 1024, 57, S_WO
    else: base, off, step, voff, S = sHB, x << 19, 4 * 8192, 56, {'q': S_WQ, 'k': S_WK, 'v': S_WV}[kind]
    for i in range(4):
        a(f"s_add_u32 m0, s{sLB}, {(u % 8) * 4096 + i * 1024}")
        a(f"s_add_u32 s{sO1}, s{base}, {off + i * step}")
        a(f"buffer_load_dwordx4 v{voff}, {sr(S,4)}, s{sO1} offen {PF[0]} lds", vm=('u', u))

def chain_first_dma(a):
    a(f"""
    v_bfe_u32 v96, v0, 4, 2
    v_and_b32 v97, 15, v0
    v_bfe_u32 v98, v0, 4, 1
    v_lshlrev_b32 v98, 2, v98
    v_xor_b32 v97, v97, v98
    v_lshlrev_b32 v97, 4, v97
    v_lshl_add_u32 v56, v96, 13, v97
    v_lshl_add_u32 v57, v96, 10, v97
    s_lshl_b32 s{sLB}, s{sW}, 15
    s_add_u32 s{sLB}, s{sLB}, {L_W}
    s_lshl_b32 s{sHB}, s{sH}, 8
    s_lshl_b32 s{sT+2}, s{sW}, 17
    s_add_u32 s{sHB}, s{sHB}, s{sT+2}
    s_lshl_b32 s{sHO}, s{sH}, 17
    s_lshl_b32 s{sT+2}, s{sW}, 14
    s_add_u32 s{sHO}, s{sHO}, s{sT+2}
    """)
    for u in range(8): issue_unit(a, u)

def chain_prologue_w(a, P, w, vm0):
    WS = sr(S_WS, 4)
    a.label(f'L_cp_{w}')
    a.vm = list(vm0); a.lg = []
    PK4 = 64
    def wb(u):
        for i in range(4): a(f"ds_write_b128 v{A_W}, {vr(28 + 16*(i>>1) + 4*(i&1),4)} offset:{(u % 8) * 4096 + 1024*i}")
    for u in range(32):
        kind, x = UNITS[u]
        a.wait(vm=('u', u))
        a("s_barrier")
        if u >= 1 and u + 7 < 32: issue_unit(a, u + 7)
        if u == 9:
            for r in list(range(MA, MA + 4)) + list(range(MA + 16, MA + 20)): a(f"v_min_u32 v{r}, -2, v{r}")
            if w == 0:
                a(f"s_mov_b64 exec, 1\nv_mov_b32 v28, 1")
                a(f"buffer_atomic_add v28, off, {sr(S_DBG,4)}, 0 offset:{DBG_CBAR + (DBG_DN if P.get('dn0', 0) else 0)}", vm='at')
                a("s_mov_b64 exec, -1")
        if P.get('nb') and u == P['nb']:
            a(f"s_add_u32 s{sT+2}, s{sH}, 1\ns_and_b32 s{sT+2}, s{sT+2}, 31\ns_lshl_b32 s{sT+2}, s{sT+2}, 17\ns_add_u32 s{sT+2}, s{sT+2}, {32768*w + (0 if P.get('nba') else 512)}")
            if P.get('nba'):
                a(f"v_lshlrev_b32 v63, 3, v{L16}")
                for k in range(4): a(f"buffer_load_dword v36, v63, {sr(S_WO,4)}, s{sT+2} offen sc1\ns_add_u32 s{sT+2}, s{sT+2}, 8192", vm='w')
            else:
                a(f"v_lshlrev_b32 v63, 3, v{L16}\nv_and_b32 v37, 0x180, v63\nv_and_b32 v63, 0x1e00, v63\nv_lshl_add_u32 v63, v63, 1, v37")
                for k in range(2): a(f"buffer_load_dword v36, v63, {sr(S_WO,4)}, s{sT+2} offen sc1\ns_add_u32 s{sT+2}, s{sT+2}, 16384", vm='w')
        if u == P.get('uw', 25):
            a(f"s_getpc_b64 {sr(sT,2)}")
            a.label(f'L_cpc_{w}')
            a(f"v_lshlrev_b32 v63, 3, v{L16}\ns_mov_b32 s{sT+2}, {WS_IMG + 8192*w}")
            a(f"buffer_load_dword v36, v63, {WS}, s{sT+2} offen sc1", vm='w')
            a(f"v_and_b32 v37, 0x780, v63\nv_min_u32 v63, L_step_{w}-L_top_{w}, v63\nv_add_u32 v63, L_top_{w}-L_cpc_{w}, v63")
            a(f"buffer_load_dword v36, v37, {WS}, s{sH1l} offen sc1", vm='w')
            a(f"global_load_dword v36, v63, {sr(sT,2)}", vm='w')
            if P.get('tlb', 1) and w < 2:
                a(f"s_mov_b32 s{sT+2}, {(WS_KV if w == 0 else WS_KM) - 4096}")
                a(f"buffer_load_dword v36, off, {WS}, s{sT+2} sc1", vm='w')
        if u == 28:
            for sg, src in ((0, ST), (4, PK4)):
                for uu in range(4):
                    for hf in range(2): a(f"ds_write_b128 v{A_W}, {vr(src + 8*uu + 4*hf,4)} offset:{lw_qk(sg, uu) + 1024*hf}")
                a.wait(lg='all')
        fl0 = f"buffer_load_dword v36, off, {sr(S_DBG,4)}, 0 offset:{DBG_CBAR + 64} sc1\nbuffer_load_dword v37, off, {sr(S_DBG,4)}, 0 offset:{DBG_KV0 + (DBG_DN if P.get('dn0', 0) else 0)} sc1"
        if P.get('dn0', 0): fl0 = fl0.replace(f"offset:{DBG_CBAR + 64} ", f"offset:{DBG_CBAR + DBG_DN} ")
        else: fl0 = fl0.replace(f"offset:{DBG_CBAR + 64} ", f"offset:{DBG_CBAR} ")
        if u == 30 and w == 0: a(fl0, vm='f0')
        if u > 28: wb(u - 1)
        base = (u % 8) * 4096
        sig = ((x - w) & 3) | (x & 4)
        for half in range(2):
            if u >= 28: k, dst = 'v', 28 + 16 * half
            elif kind in 'qk':
                uu = 2 * half + (kind == 'k')
                k, dst = ('v', PK4 + 8 * uu) if sig == 4 else wqk_reg(sig, uu)
            elif kind == 'v': k, dst = wv_reg(sig, half)
            else: k, dst = wo_reg(x >> 1, 2 * (x & 1) + half)
            for p in range(4):
                if kind == 'o': off, ad = base + 32768 * (p >> 1) + 512 * (p & 1), (59, 62)[half]
                else: off, ad = base + 512 * (p & 1) + 8 * half, (58, 61)[p >> 1]
                a(f"ds_read_b64_tr_b16 {vr(dst + 2*p, 2, k)}, v{ad} offset:{off}")
        a.wait(lg='all')
    a("s_barrier")
    wb(31)
    a.wait(lg='all')
    if P.get('stat') or P.get('dbgt'): a("s_memrealtime s[100:101]")
    a(f"s_mov_b32 s{sSPIN}, 0\ns_mov_b32 m0, {L_KV + 4096*w}")
    if w == 0:
        a("s_branch L_c_w1")
        a.label(f'L_c_w0')
        a(f"""
        s_add_u32 s{sSPIN}, s{sSPIN}, 1
        s_cmp_gt_u32 s{sSPIN}, {SPIN_MAX}
        s_cbranch_scc1 L_exit
        s_sleep {P.get('slp0', 4)}
        """)
        a(fl0)
        a.label('L_c_w1')
        a.wait(vm='all')
        a(f"""
        v_min_u32 v36, v36, v37
        v_cmp_gt_u32 vcc, 32, v36
        s_cbranch_vccnz L_c_w0
        """)
    a("s_barrier")
    for k in range(4): a(f"buffer_load_dwordx4 {vr(KX+4*k,4)}, v{L16}, {WS}, s{sKV} offen offset:{1024*k} sc1")
    a(f"s_add_u32 s{sKV}, s{sKV}, 0x80000\ns_mov_b32 s{sFL}, {DBG_DN + DBG_KV0}\ns_mov_b64 {sr(sFM,2)}, 0\nv_mov_b32 v{FLV}, 32\ns_mov_b32 s{sSPIN}, 0")
    for l in idle_work():
        if not l.startswith('ds_'): a(l)
    a.wait(lg='all')
    if P.get('stat'): a("s_memrealtime s[64:65]\ns_waitcnt lgkmcnt(0)")
    a(f"s_branch L_step_{w}")

def idle_work():
    L = [f"ds_read_b128 {vr(ST + 8*u + 4*hf, 4)}, v{A_W} offset:{lw_qk(0, u) + 1024*hf}" for u in range(4) for hf in range(2)]
    L += [f"v_mov_b64 {vr(Q0+i,2)}, 0" for i in range(0, 24, 2)]
    return L

DEF = dict(b1=3, nL=10, nB2=5, nv1=3, nv2=0, nvA=5, sv=9, so=1, nr4=3, earlyL=0, dH1=[38, 50, 76, 90], dE=[24, 16, 0, 0], dwf=0, cs=0, g2v=0, dup=1, c1=0, lb1=0, svp=[-1, 0, 2, 4], dp=None, sync=0, fpos=-2, pp=[-1, 1, 3, 5, 7, 11], pE=18, inGap=[0, 0, 0, 1], nPre=[0, 0, 0, 0],
           dS=[-1, -1], kw=0, vmPos=None, mx=1, g2w=1, nd=0, ad=1, nrc=4, dma0=14, nE=3, dT=0, stg=1)
def pack_km():
    X = Q0
    L = [f"v_mov_b32_dpp v{X+2}, v{X} row_ror:8 row_mask:0xf bank_mask:0x3", f"v_mov_b32_dpp v{X+3}, v{X+1} row_ror:8 row_mask:0xf bank_mask:0x3",
         f"v_min_u32 v{ONE}, -2, v{X+2}", f"v_min_u32 v{ONE+1}, -2, v{X+3}"]
    for t in range(2):
        p = V0 + 2 * t
        L += [f"v_lshlrev_b32 v{X}, 16, v{p}", f"v_lshlrev_b32 v{X+1}, 16, v{p+1}", f"v_and_b32 v{p}, 0xffff0000, v{p}", f"v_and_b32 v{p+1}, 0xffff0000, v{p+1}",
              f"v_add_f32 v{X}, v{X}, v{X+1}", f"v_add_f32 v{X+1}, v{p}, v{p+1}", f"v_cvt_pk_bf16_f32 v{X}, v{X}, v{X+1}", f"v_min_u32 v{ONE+2+t}, -2, v{X}"]
    return L
def sync_tmp(P, w):
    if not P['sync']: return []
    if w == 3: return [f"v_bfe_u32 v{MA+24}, v{L16}, 2, 7"]
    if w < 2: return [f"v_mov_b32 v{MA+24}, s{sS}"]
    return []
LASTV = []
def chain_last(a):
    for q in LASTV: smf(a, *q)
    a("s_nop 7")
    for d, s0 in ((V0, V0), (V0 + 1, V0 + 2), (V0 + 2, V1), (V0 + 3, V1 + 2)): a(f"v_cvt_pk_bf16_f32 v{d}, v{s0}, v{s0+1}")
    L = pack_km()
    for l in L[:2]: a(l)
    a(f"v_permlane32_swap_b32 v{V0}, v{V0+1}\nv_permlane32_swap_b32 v{V0+2}, v{V0+3}")
    for l in L[2:]: a(l)
    a(f"buffer_store_dwordx4 {vr(ONE,4)}, v{L16}, {sr(S_WS,4)}, s{sKM} offen sc1")
LISTING = {}
def chain_step(a, P0, w):
    P = dict(DEF); P.update(P0)
    allow = P.get('stamps', [])
    used = []
    def stamp(k):
        if k in allow:
            a(f"s_memtime s[{72+2*len(used)}:{73+2*len(used)}]"); used.append(k)
    WS = sr(S_WS, 4)
    acc = [Q0, K0, Q1, K1]
    lb = lambda s: f"L_{s}_{w}"
    own = 2048 * w
    oth = lambda q: 2048 * ((w + q) & 3)
    T0 = MA + 28
    ldE = f"buffer_load_dwordx4 {vr(MA,4)}, v{L16}, {WS}, s{sIMl} offen sc1"
    ldL = f"buffer_load_dwordx4 {vr(MA+16,4)}, v{L16}, {WS}, s{sIML} offen sc1"
    chkE = f"v_max3_u32 v{T0}, v{MA}, v{MA+1}, v{MA+2}\nv_max_u32 v{T0}, v{T0}, v{MA+3}\nv_cmp_eq_u32 vcc, -1, v{T0}"
    chkL = [f"v_max3_u32 v{T0}, v{MA+16}, v{MA+17}, v{MA+18}", f"v_max_u32 v{T0}, v{T0}, v{MA+19}", f"v_cmp_eq_u32 vcc, -1, v{T0}"]
    if P['c1']:
        chkE = f"v_cmp_eq_u32 vcc, -1, v{MA+3}"
        chkL = ["s_nop 0", "s_nop 0", f"v_cmp_eq_u32 vcc, -1, v{MA+19}"]
    ldF = f"buffer_load_dword v{FLV}, off, {sr(S_DBG,4)}, s{sFL} sc1"
    cvF = [f"v_subrev_u32 v{FLV}, 32, v{FLV}", f"v_ashrrev_i32 v{FLV}, 31, v{FLV}"]
    dwE = f"ds_write_b128 v{L16}, {vr(MA,4)} offset:{L_MEM + own}"
    dwL = f"ds_write_b128 v{L16}, {vr(MA+16,4)} offset:{L_MEM + own + 1024}"
    cv = lambda d, s0: f"v_cvt_pk_bf16_f32 v{d}, v{s0}, v{s0+1}"
    z2 = lambda r: f"v_mov_b64 {vr(r,2)}, 0"
    ror8 = lambda d, s0, bm: f"v_mov_b32_dpp v{d}, v{s0} row_ror:8 row_mask:0xf bank_mask:{bm}"
    mf32 = lambda D, A, B, C: a(f"v_mfma_f32_16x16x32_bf16 {vr(D,4)}, {vr(A,4)}, {vr(B,4)}, {vr(C,4) if C is not None else 0}")
    mf16 = lambda D, A, B, C: a(f"v_mfma_f32_16x16x16_bf16 {vr(D,4)}, {vr(A,2)}, {vr(B,2)}, {vr(C,4) if C is not None else 0}")
    def wdelay(n):
        while P['kw'] and n >= 8:
            mf32(MA + 24, F, F, None); a("s_nop 2"); mf32(MA + 4, F, F, None); a("s_nop 2"); n -= 8
        nops(a, n)
    a.label(lb('top'))
    a("s_waitcnt vmcnt(0)")
    a.vm = []; a.lg = []
    stamp(0)
    EB = MA + 20 if P['dwf'] else MA
    ldB = ldE.replace(vr(MA, 4), vr(EB, 4))
    if P['dwf']:
        a(dwE, lg='we'); a(chkE); a(ldL, vm='L2')
        a(f"s_cbranch_vccnz {lb('f1')}")
    else:
        if P['earlyL']: a(ldL, vm='L2')
        a(chkE)
        a(dwE, lg='we')
        a(f"s_cbranch_vccnz {lb('f1')}")
        if not P['earlyL']: a(ldL, vm='L2')
    a.label(lb('go'))
    igo = len(a.lines)
    stamp(14)
    KVF = P.get('kvf', 'sc1')
    dma = [f"buffer_load_dwordx4 v{L16}, {WS}, s{sKV} offen offset:{1024*k} {KVF} lds" for k in range(4)]
    mrd = lambda s: f"ds_read_b128 {vr(MA+4*s,4)}, v{L16} offset:{L_MEM + oth(s & 3) + 1024*(s>>2)}"
    r2 = [f"ds_read_b128 {vr(ST + 8*u + 4*hf, 4)}, v{A_W} offset:{lw_qk(4, u) + 1024*hf}" for u in range(4) for hf in range(2)]
    r3 = [f"ds_read_b128 {vr(ST + 8*k + 4*hf, 4)}, v{A_W} offset:{lw_wo(2,k) + 1024*hf}" for k in range(4) for hf in range(2)]
    vq = [(V0 + 4 * tau, MA + 4 * s, wv_reg(s, tau)) for s in range(8) for tau in range(2)]
    qk = lambda s: [(acc[u], MA + 4 * s, wqk_reg(s, u)) for u in range(4)]
    sA = qk(0) + [vq.pop(0), vq.pop(0)]
    stV = f"buffer_store_dwordx4 {vr(ONE,4)}, v{L16}, {WS}, s{sKMv} offen sc1"
    for k in range(P['b1']):
        smf(a, *sA.pop(0))
        if k == P['sv']: a(stV, vm='km')
    a.wait(lg='all')
    a("s_barrier")
    stamp(1)
    a(mrd(1), lg=('ma', 1)); a(mrd(2), lg=('ma', 2))
    smf(a, *sA.pop(0))
    a(mrd(3), lg=('ma', 3))
    sync = P['sync']; TS = MA + 24
    prober = sync and w == 3; poster = sync and w < 2
    probe = f"buffer_load_dword v{FLV}, v{TS}, {WS}, s{sFG} offen sc1"
    post = f"s_mov_b64 exec, 1\nbuffer_store_dword v{TS}, off, {WS}, s{sFG}\ns_mov_b64 exec, -1"
    pp = list(P['pp']); npr = len(pp)
    def syncops(n):
        c = 0
        if poster and n == P['fpos']: a(post, vm='fg'); c = 2
        if prober and n in pp: a(probe, vm=('P', pp.index(n))); c = 1
        return c
    svp = P['svp'][w]
    if P['sv'] == 9 and svp < 0: a(stV, vm='km')
    syncops(-len(sA) - 1)
    while sA:
        smf(a, *sA.pop(0)); syncops(-len(sA) - 1)
    dupA = a.lines[igo:]
    a.label(lb('go2'))
    seq = qk(1) + qk(2) + qk(3) + [vq.pop(0) for _ in range(P['nv1'])]
    i4 = len(seq); seq += qk(4) + [vq.pop(0) for _ in range(P['nv2'])]
    i5 = len(seq); seq += qk(5)
    i6 = len(seq); q6, q7 = qk(6), qk(7)
    seq += [q6[0], q6[1], q7[0], q7[1], q6[2], q6[3], q7[2], q7[3]]
    nL, nB = P['nL'], P['nL'] + P['nB2']
    assert i4 >= nL + 4 and nB <= i5
    KVST = 0 if P.get('kvfix') else 0x80000
    ones = [f"v_mov_b64 {vr(ONE,2)}, {sr(sONE,2)}", f"v_mov_b64 {vr(ONE+2,2)}, {sr(sONE,2)}"]
    lastd = -99
    for n, q in enumerate(seq):
        if n == 0: a.wait(lg=('ma', 1))
        if n == 4: a.wait(lg=('ma', 3))
        if n == nL:
            stamp(2)
            a.wait(vm='L2'); a(dwL, lg='wl')
            if not P['c1']: a(chkL[0])
            if prober: a.wait(vm=('P', 0)); a(f"v_subrev_u32 v{T0+1}, s{sS}, v{FLV}")
        if n == nB:
            a.wait(lg='all' if not r2 else 'wl'); a("s_barrier"); stamp(3); a(mrd(5), lg=('ma', 5))
        if n == i4 and 'r2' in a.lg: a.wait(lg='r2')
        if n == i5: a.wait(lg=('ma', 5))
        if n == i6: a.wait(lg=('ma', 7))
        smf(a, *q)
        cap = 2 - (n + 1 in (4, i5, i6)) - (n >= i6 + 4) - (n in (nL, nL + 1))
        if n == nB: a(mrd(6), lg=('ma', 6)); a(mrd(7), lg=('ma', 7)); cap = 0
        if P['sv'] == 9 and n == svp: a(stV, vm='km')
        cap = max(cap - syncops(n), 1 if r2 else 0)
        dp = P['dp']
        if dp:
            if dma and dp[4 - len(dma)] < 100 and n >= dp[4 - len(dma)] + w and n != nB: a(dma.pop(0), vm='dma'); cap = max(cap - 1, 1 if r2 else 0)
        elif dma and cap and n > nB and n >= min(nB + 1 + w * P['stg'] + 4 * (4 - len(dma)), len(seq) - 1):
            a(dma.pop(0), vm='dma'); cap -= 1
        if r2 and cap and n + 1 != nL and not (nL <= n < nB): a(r2.pop(0), lg='r2'); cap -= 1
        elif r3 and cap and n > nB and n >= i4 + (8 - len(r3)) // 2: a(r3.pop(0), lg='r3'); cap -= 1
        if ones and cap and n >= i5 and P['sv'] == 9: a(ones.pop(0))
        if n == nL: a(chkL[1] if not prober else f"v_max3_u32 v{T0+1}, v{T0}, v{MA+19}, v{T0+1}")
        if n == nL + 1: a(chkL[2] if not prober else f"v_cmp_eq_u32 vcc, -1, v{T0+1}")
        if n == nL + 3:
            a(f"s_cbranch_vccnz {lb('p1' if prober else 'rL')}"); a.label(lb('bL'))
            if prober: assert len(a.vm) == npr - 1
        if n == i6 + 4: a(cv(Q0, Q0))
        if n == i6 + 5: a(cv(Q0 + 1, Q0 + 2))
        if n == i6 + 6: a(cv(Q0 + 2, K0))
    assert not r3 and not r2, (len(r2), len(r3), len(dma))
    stamp(4)
    a(cv(Q0 + 3, K0 + 2))
    a("s_nop 0")
    a(cv(Q1, Q1))
    mf32(K0, Q0, F, None)
    a(cv(Q1 + 1, Q1 + 2)); a(cv(Q1 + 2, K1)); a(cv(Q1 + 3, K1 + 2))
    a("s_nop 1")
    mf32(K1, Q1, F, None)
    X = Q0
    a(cv(X, K0)); a(cv(X + 1, K0 + 2))
    rsI = f"buffer_store_dword v{NEG1}, v{A_IMS}, {WS}, s{sIMr} offen"
    S1, S2, SM = Q1, K0, K1
    if not P['mx']:
        smf(a, *vq.pop(0))
        a("s_nop 0"); a(f"buffer_store_dword v{NEG1}, v{A_IMS}, {WS}, s{sIMr} offen", vm='rs'); a("s_nop 1")
        a(cv(X + 2, K1)); a(cv(X + 3, K1 + 2))
        a("s_nop 1")
        S1, S2, SM = Q1, K0, K1
        mf32(SM, X, X, None); mf32(S2, KX + 4, X, None); mf32(S1, KX, X, None)
        for r in range(2): a(ror8(SM + r, SM + 2 + r, '0xc'))
        smf(a, *vq.pop(0))
        a("s_nop 0")
        a(f"ds_write2_b32 v{A_SMW}, v{SM}, v{SM+1} offset0:0 offset1:32")
        a("s_nop 1")
        for r in range(4): a(ror8(S1 + r, S2 + r, '0xc'))
        smf(a, *vq.pop(0))
        a(f"ds_write_b128 v{L16}, {vr(S1,4)} offset:{L_S + own}")
    else:
        assert all(q[1] >= MA + 8 for q in vq)
        XL, XH = MA, MA + 4
        lo = lambda r: a(f"v_cndmask_b32 v{XL+r}, 0, v{X+r}, {sr(sMLO,2)}")
        hi = lambda r: a(f"v_mov_b32_dpp v{XH+r}, v{X+r} row_shr:8 row_mask:0xf bank_mask:0xf bound_ctrl:1")
        lo(0); lo(1); hi(0); hi(1); a("s_nop 0")
        a(cv(X + 2, K1)); a(cv(X + 3, K1 + 2))
        lo(2); lo(3)
        mf32(SM, X, X, None)
        hi(2); hi(3)
        mf32(S1, KX, XL, None)
        a("s_nop 0")
        mf32(S1, KX + 4, XH, S1)
        for r in range(2): a(ror8(SM + r, SM + 2 + r, '0xc'))
        dw2 = f"ds_write2_b32 v{A_SMW}, v{SM}, v{SM+1} offset0:0 offset1:32"
        dw4 = f"ds_write_b128 v{L16}, {vr(S1,4)} offset:{L_S + own}"
        smf(a, *vq.pop(0))
        if P['so'] == 0: a("s_nop 0"); a(dw2); a("s_nop 1"); a(dw4)
        elif P['so'] == 1: a("s_nop 0"); a(dw2); smf(a, *vq.pop(0)); a(dw4)
        else: smf(a, *vq.pop(0)); a(dw4); a(dw2)
    stamp(5)
    for k in range(P['nvA']):
        smf(a, *vq.pop(0))
        if k == P['nvA'] - 3: a(f"s_cmp_eq_u32 s{sS}, 63")
        if k == P['nvA'] - 2:
            a("s_cbranch_scc1 L_last"); LASTV[:] = list(vq)
        if k == 1 and w == 0:
            if P.get('fsk', 1):
                a(f"s_mov_b64 exec, {sr(sFM,2)}"); a(ldF, vm='fl'); a("s_mov_b64 exec, -1")
            else: a(ldF, vm='fl')
        if dma and dp[4 - len(dma)] == 100 and k == w + 1: a(dma.pop(0), vm='dma')
        if P['sv'] == 20 and k == min(3 - w, P['nvA'] - 1): a(stV, vm='km')
        if k == (w & 1) + (2 if w >= 2 and P['sv'] == 20 else 0) and P['mx']: a(rsI, vm='rs')
    a.wait(lg='all')
    a("s_barrier")
    stamp(6)
    R1, R2, R3, RM = K0, KX, KX + 4, K1
    a(f"ds_read_b128 {vr(RM,4)}, v{L16} offset:{L_SM}", lg='rm')
    a(f"ds_read_b128 {vr(R1,4)}, v{L16} offset:{L_S + oth(1)}", lg='r1')
    smf(a, *vq.pop(0))
    a(f"ds_read_b128 {vr(R2,4)}, v{L16} offset:{L_S + oth(2)}", lg='r2')
    a(f"ds_read_b128 {vr(R3,4)}, v{L16} offset:{L_S + oth(3)}", lg='r3')
    while vq:
        smf(a, *vq.pop(0))
        if dma and len(vq) <= max(2 - w, 0): a(dma.pop(0), vm='dma')
        if ones: a(ones.pop(0))
    assert not ones and not dma
    pka = lambda d, s0: f"v_pk_add_f32 {vr(d,2)}, {vr(d,2)}, {vr(s0,2)}"
    a.wait(lg='r1')
    a(f"v_add_f32 v{RM}, v{RM}, v{RM+1}\nv_add_f32 v{RM+2}, v{RM+2}, v{RM+3}")
    a(f"v_add_f32 v{S1}, v{S1}, v{R1}\nv_add_f32 v{S1+1}, v{S1+1}, v{R1+1}")
    a(pka(S1 + 2, R1 + 2))
    a(f"v_add_f32 v{RM}, v{RM}, v{RM+2}")
    if P['ad']:
        a.wait(lg='all')
        stamp(7)
        a(pka(R2, R3)); a(pka(R2 + 2, R3 + 2)); a(pka(S1, R2)); a(pka(S1 + 2, R2 + 2))
    else:
        a.wait(lg='r2')
        a(pka(S1, R2)); a(pka(S1 + 2, R2 + 2))
        a.wait(lg='all')
        stamp(7)
        a(pka(S1, R3)); a(pka(S1 + 2, R3 + 2))
    m0, m1 = K0, K0 + 1
    a(f"v_max3_f32 v{m0}, v{RM}, v{S1}, v{S1+1}")
    a(f"v_max3_f32 v{m0}, v{m0}, v{S1+2}, v{S1+3}")
    a(cv(V0, V0)); a(cv(V0 + 1, V0 + 2))
    a(f"v_max_f32_dpp v{m1}, v{m0}, v{m0} row_ror:8 row_mask:0xf bank_mask:0xf")
    a(f"v_max_f32_dpp v{m0}, v{m0}, v{m0} row_ror:8 row_mask:0xf bank_mask:0xf")
    a(cv(V0 + 2, V1)); a(cv(V0 + 3, V1 + 2))
    a(f"v_permlane32_swap_b32 v{m0}, v{m1}")
    a(f"v_max_f32 v{m0+2}, v{m0}, v{m1}")
    a(f"v_max_f32 v{m0+3}, v{m0}, v{m1}")
    a(f"v_permlane32_swap_b32 v{V0}, v{V0+1}")
    a(f"v_permlane32_swap_b32 v{V0+2}, v{V0+3}")
    a(f"v_permlane16_swap_b32 v{m0+2}, v{m0+3}")
    a(f"v_max_f32 v{m0}, v{m0+2}, v{m0+3}")
    a(f"v_mul_f32 v{m0}, s{sC}, v{m0}")
    a(f"v_fma_f32 v{RM}, v{RM}, s{sC}, -v{m0}")
    pkf = lambda r: f"v_pk_fma_f32 {vr(r,2)}, {vr(r,2)}, {sr(sC,2)}, {vr(m0,2)} op_sel_hi:[1,1,0] neg_lo:[0,0,1] neg_hi:[0,0,1]"
    ks = [(w + q) & 3 for q in range(1, 4)]
    r4 = [f"ds_read_b128 {vr(MA + 8*k + 4*hf, 4)}, v{A_W} offset:{lw_wo(3,k) + 1024*hf}" for k in [w] + ks for hf in range(2)]
    rd4 = lambda: a(r4.pop(0), lg='r4') if r4 else None
    BX, BM = K0, MA + 8 * ks[2] + 4
    O0, O1, L = KX, V1, K1
    a(f"v_exp_f32 v{RM}, v{RM}")
    a(pkf(S1)); a(pkf(S1 + 2))
    a(ror8(RM + 1, RM, '0xf'))
    a(cv(BM, RM)); a(cv(BM + 1, RM))
    a(f"v_exp_f32 v{S1}, v{S1}\nv_exp_f32 v{S1+1}, v{S1+1}")
    mf16(O0, V0, BM, None)
    a(f"v_exp_f32 v{S1+2}, v{S1+2}\nv_exp_f32 v{S1+3}, v{S1+3}")
    a(cv(BX, S1)); a(cv(BX + 1, S1 + 2))
    mf16(O1, V0 + 2, BM, None)
    a(ror8(BX + 2, BX, '0xf')); a(ror8(BX + 3, BX + 1, '0xf'))
    AC = [Q1, KX, V1, ONE]
    OW = KX + 4
    a(z2(AC[0])); a(z2(AC[0] + 2))
    mf32(O0, VX, BX, O0)
    stamp(8)
    if P['nr4'] >= 1: rd4()
    if P['nr4'] >= 4: rd4()
    mf32(O1, VX + 4, BX, O1)
    if P['nr4'] >= 2: rd4()
    if P['nr4'] >= 3: rd4()
    mf16(L, BM, HZ, None)
    a(cv(OW, O0)); a(cv(OW + 1, O0 + 2))
    a(z2(AC[1]))
    a(cv(OW + 2, O1)); a(cv(OW + 3, O1 + 2))
    mf32(L, BX, ONE, L)
    a("s_nop 0")
    a(f"ds_write_b128 v{A_OW}, {vr(OW,4)} offset:{L_O + own}")
    stamp(9)
    for r in range(4): a(ror8(OW + r, OW + r, '0xc'))
    a(z2(AC[1] + 2)); a(z2(AC[2])); a(z2(AC[2] + 2))
    rcp = lambda r: a(f"v_rcp_f32 v{L+r}, v{L+r}")
    for r in range(P['nrc']): rcp(r)
    smf(a, AC[0], OW, wo_reg(0, w))
    a.wait(lg='all')
    a("s_barrier")
    stamp(10)
    OA = {ks[0]: VX, ks[1]: VX + 4, ks[2]: K0, w: OW}
    oard = lambda k: a(f"ds_read_b128 {vr(OA[k],4)}, v{A_O} offset:{L_O + 2048*k}", lg=('oa', k))
    g2 = lambda T, k: smf(a, AC[T], OA[k], wo_reg(T, k))
    mul = lambda T, r: a(f"v_mul_f32 v{AC[T]+r}, v{AC[T]+r}, v{L+r}")
    def cvt(T, r):
        a(cv(AC[T] + r, AC[T] + 2 * r))
        if r == 1: a(f"v_bfi_b32 v{AC[T]}, 1, s{sTAG}, v{AC[T]}")
    sto = lambda T: f"buffer_store_dwordx2 {vr(AC[T],2)}, v{A_H1S}, {WS}, s{sH1+T} offen"
    oard(ks[0]); oard(ks[1])
    g2(1, w); oard(ks[2]); a(z2(AC[3]))
    g2(2, w)
    a(z2(AC[3] + 2))
    for r in range(P['nrc'], 4): rcp(r)
    own3 = P['nr4'] >= 2 and P.get('own3', 1)
    if own3: a("s_nop 1"); g2(3, w)
    a.wait(lg=('oa', ks[0])); g2(0, ks[0]); stamp(20); rd4()
    a.wait(lg=('oa', ks[1])); g2(0, ks[1]); rd4()
    a.wait(lg=('oa', ks[2])); g2(0, ks[2]); rd4()
    g2(1, ks[0]); rd4()
    g2(1, ks[1]); rd4(); mul(0, 0)
    g2(1, ks[2]); rd4()
    mul(0, 1); mul(0, 2); mul(0, 3); cvt(0, 0); cvt(0, 1)
    assert not r4 or P['g2v'] == 0
    pkm = lambda T: a(f"v_pk_mul_f32 {vr(AC[T],2)}, {vr(AC[T],2)}, {vr(L,2)}\nv_pk_mul_f32 {vr(AC[T]+2,2)}, {vr(AC[T]+2,2)}, {vr(L+2,2)}")
    if P['g2v'] == 0:
        g2(2, ks[0]); a("s_nop 0"); a(sto(0), vm='h1')
        while r4: rd4()
        for r in range(4): mul(1, r)
        cvt(1, 0); cvt(1, 1)
        g2(2, ks[1]); a("s_nop 0"); a(sto(1), vm='h1')
    elif P['g2v'] == 1:
        a("s_nop 1"); a(sto(0), vm='h1')
        pkm(1); cvt(1, 0); cvt(1, 1)
        g2(2, ks[0]); a("s_nop 0"); a(sto(1), vm='h1')
        g2(2, ks[1])
    else:
        pkm(1); cvt(1, 0); cvt(1, 1)
        g2(2, ks[0]); a("s_nop 0"); a(sto(0), vm='h1'); a(sto(1), vm='h1')
        g2(2, ks[1])
    stamp(21)
    g2(2, ks[2])
    a.wait(lg='all')
    if not own3: g2(3, w)
    a(f"s_add_u32 s{sIMl}, s{sIMw}, {1024*w}\ns_add_u32 s{sIML}, s{sIMw}, {4096+1024*w}")
    g2(3, ks[0]); a(f"s_add_u32 s{sS}, s{sS}, 1\ns_mov_b32 s{sKMv}, s{sKM}")
    if not own3: mul(2, 0)
    g2(3, ks[1]); mul(2, 1)
    g2(3, ks[2])
    if own3: mul(2, 0)
    mul(2, 2); mul(2, 3); cvt(2, 0); cvt(2, 1)
    dS = P['dS']
    a("s_nop 1")
    if dS[0] < 0: a(sto(2), vm='h1')
    c = AC[3]
    a(f"v_pk_mul_f32 {vr(c,2)}, {vr(c,2)}, {vr(L,2)}\nv_pk_mul_f32 {vr(c+2,2)}, {vr(c+2,2)}, {vr(L+2,2)}")
    cvt(3, 0); cvt(3, 1)
    a(f"s_add_u32 s{sKM}, s{sKM}, 0x20000\ns_add_u32 s{sKV}, s{sKV}, {KVST}")
    if dS[1] < 0: a(sto(3), vm='h1')
    stamp(11)
    HA = KX
    ld1 = [f"buffer_load_dwordx4 {vr(HA+4*c_,4)}, v{L16}, {WS}, s{sH1l} offen offset:{1024*c_} sc1" for c_ in range(2)]
    HD, T1 = MA + 8, MA + 12
    idle = idle_work()
    late = [l for l in idle if any(l.startswith(f"v_mov_b64 v[{r}:") for r in (Q0, Q0 + 2, V0, V0 + 2, V1, V1 + 2))]
    dsq = [l for l in idle if l.startswith('ds_')]
    idle = [l for l in idle if l not in late and l not in dsq]
    ev = [(max(dS[k], 0), k, [(sto(2 + k) if dS[k] >= 0 else None, 'h1')]) for k in range(2)]
    ev.append((P['dH1'][w], -1 if w < 2 else 2, [(ld1[0], 'H0'), (ld1[1], 'H1')]))
    pos = 0; nst = 0
    for (tpos, _, ops) in sorted(ev):
        while pos < tpos:
            if idle and tpos - pos > 2: a(idle.pop(0)); pos += 1
            elif dsq and nst == 2 and tpos - pos >= 6:
                if P['kw']: mf32(MA + 24 if len(dsq) & 1 else MA + 4, F, F, None); a("s_nop 1")
                else: a("s_nop 2")
                a(dsq.pop(0), lg='pre'); pos += 4
            else: wdelay(tpos - pos); pos = tpos
        for (o, tag) in ops:
            if o: a(o, vm=tag); pos += 1
            if tag == 'h1':
                nst += 1
                if nst == 2: idle += pack_km() + late
    for l in dsq + idle: a(l, lg='pre')
    dE = P['dE'][w]; pE = P['pE']; nPre = P['nPre'][w]; inGap = P['inGap'][w]
    eq = ['E0', 'E1', 'E2', 'E3', 'E4'][:P['nE']]; nE = len(eq)
    for k in range(nPre):
        wdelay(dE if k == 0 else pE); a(ldE if eq[0] == 'E0' else ldB, vm=eq.pop(0))
    nH0 = len(a.vm) - 1 - a.vm.index('H0')
    a(f"s_waitcnt vmcnt({nH0})")
    a.label(lb('a1'))
    stamp(12)
    mf32(HD, SEL, HA, None)
    a(f"v_bitop3_b32 v{T1}, v{HA}, v{HA+2}, s{sTAG} bitop3:0x7e")
    a.wait(vm='H1')
    mf32(HD, SEL, HA + 4, HD)
    a(f"v_bitop3_b32 v{T1+1}, v{HA+4}, v{HA+6}, s{sTAG} bitop3:0x7e\nv_bitop3_b32 v{T1}, v{T1}, v{T1+1}, 1 bitop3:0xa8\nv_cmp_ne_u32 vcc, 0, v{T1}")
    if inGap and eq:
        a("s_nop 1"); a(ldE if eq[0] == 'E0' else ldB, vm=eq.pop(0)); a("s_nop 0")
    else: a("s_nop 3")
    dpa = lambda r, n: f"v_add_f32_dpp v{r}, v{r}, v{r} row_ror:{n} row_mask:0xf bank_mask:0xf"
    a(dpa(HD, 4)); a(dpa(HD + 1, 4)); a("s_nop 0"); a(dpa(HD, 8)); a(dpa(HD + 1, 8))
    a(cv(HD, HD))
    if P['cs']:
        a(f"s_cmp_eq_u64 vcc, 0\ns_cselect_b32 s{sT+2}, s{sIMw}, 0x70000000")
        a(f"buffer_store_dword v{HD}, v{A_IMS}, {WS}, s{sT+2} offen", vm='im')
        if eq and (inGap or (len(eq) == nE and dE == 0)): a(ldE if eq[0] == 'E0' else ldB, vm=eq.pop(0))
        a(f"s_cbranch_vccnz {lb('r1')}")
        dE = max(dE - 4, 0)
    else:
        a(f"s_cbranch_vccnz {lb('r1')}")
        a(f"buffer_store_dword v{HD}, v{A_IMS}, {WS}, s{sIMw} offen", vm='im')
        if inGap and eq: a(ldE if eq[0] == 'E0' else ldB, vm=eq.pop(0))
    stamp(13)
    misc = [f"ds_read_b128 {vr(KX+4*k,4)}, v{L16} offset:{L_KV + 4096*w + 1024*k}" for k in range(4)]
    misc += [f"s_mov_b32 s{sIMw}, s{sIMr}", f"s_add_u32 s{sIMr}, s{sIMr}, 0x2000", f"s_and_b32 s{sIMr}, s{sIMr}, 0xffff7fff",
             f"s_xor_b32 s{sTAG}, s{sTAG}, 1"]
    if w == 0: misc = [f"v_cmp_gt_u32 vcc, 32, v{FLV}"] + misc + [f"s_cbranch_vccnz {lb('rF')}\n{lb('bF')}:", f"s_add_u32 s{sFLn}, s{sS}, 2", f"s_lshr_b32 s{sFLn}, s{sFLn}, 3", f"s_min_u32 s{sFLn}, s{sFLn}, 7", f"s_lshl2_add_u32 s{sFLn}, s{sFLn}, {DBG_DN + DBG_KVC}",
                     f"s_cmp_lt_u32 s{sS}, 2", f"s_cselect_b32 s{sFLn}, {DBG_DN + DBG_KV0}, s{sFLn}",
                     f"s_cmp_lg_u32 s{sFL}, s{sFLn}", f"s_cselect_b64 {sr(sFM,2)}, -1, 0", f"s_mov_b32 s{sFL}, s{sFLn}"]
    misc += sync_tmp(P, w)
    def delay(n):
        while n > 0 and misc: a(misc.pop(0), lg='pre'); n -= 1
        wdelay(n)
    while eq:
        delay(dE if len(eq) == nE else pE); a(ldE if eq[0] == 'E0' else ldB, vm=eq.pop(0))
    delay(len(misc))
    if P.get('pr'):
        i0 = a.lines.index(lb('top') + ':'); i0 = a.lines.index('s_barrier', i0) + 1
        body = a.lines[i0:]; a.lines = a.lines[:i0] + ["s_memtime s[72:73]"]; used = [0]; n = 0
        LISTING[w] = [l for l in body if not l.endswith(':')]
        for l in body:
            if not l.endswith(':'):
                if n in P['pr']: a.lines.append(f"s_memtime s[{72+2*len(used)}:{73+2*len(used)}]"); used.append(n)
                n += 1
            a.lines.append(l)
    if used:
        a("s_waitcnt lgkmcnt(0)")
        if P.get('trace'):
            a("s_nop 7")
            for k in range(len(used)): a(f"v_mov_b32 v{MA+8+k}, s{72+2*k}")
            a(f"s_lshl_b32 s{sT}, s{sH}, 12\ns_lshl_b32 s{sT+1}, s{sS}, 4\ns_add_u32 s{sT}, s{sT}, s{sT+1}\ns_add_u32 s{sT}, s{sT}, {WS_STAMP + 65536 + 1024*w}\ns_mov_b64 exec, 1")
            a(f"buffer_store_dwordx4 {vr(MA+8,4)}, v{L16}, {WS}, s{sT} offen", vm='tr')
            a("s_mov_b64 exec, -1")
        else:
            for k in range(1, len(used)):
                a(f"s_sub_u32 s{sT}, s{72+2*k}, s{70+2*k}\ns_add_u32 s{88+k}, s{88+k}, s{sT}")
    if w == 0: wdelay(P['dT'])
    if P.get('stat'):
        a(f"s_cmp_lg_u32 s{sS}, 3\ns_cbranch_scc1 {lb('top')}\ns_memtime s[68:69]\ns_memrealtime s[62:63]\ns_mov_b32 s70, 0\ns_mov_b32 s71, 0")
        for k in range(8): a(f"s_mov_b32 s{88+k}, 0")
    young = lambda t: len(a.vm) - 1 - a.vm.index(t)
    eL = 1 if P['dwf'] else P['earlyL']
    ns = [young(f'E{k}') + k + (eL if k else 0) for k in range(nE)]
    a.lines[a.lines.index(lb('top') + ':') + 1] = f"s_waitcnt vmcnt({ns[0]}) lgkmcnt(0)"
    a(f"s_branch {lb('top')}")
    end_main = len(a.lines)
    cnt = lambda r, v: (f"s_add_u32 s{r}, s{r}, {v}\n" if P.get('stat') else '')
    spin = f"s_add_u32 s{sSPIN}, s{sSPIN}, 1\ns_cmp_gt_u32 s{sSPIN}, {SPIN_MAX}\ns_cbranch_scc1 L_exit\n"
    for k in range(1, nE + 1):
        a.label(lb(f'f{k}'))
        late = P['lb1'] and k == 1
        if P['lb1'] and k == 2: a(ldB)
        if not late: a(ldB)
        a(f"s_waitcnt vmcnt({(ns[k] if k < nE else nE - 1) - (1 if late else 0)})")
        if P['dwf']: a(f"v_mov_b64 {vr(MA,2)}, {vr(EB,2)}\nv_mov_b64 {vr(MA+2,2)}, {vr(EB+2,2)}\ns_nop 0"); a(dwE); a(chkE)
        else: a(chkE); a(cnt(71, 1) or 's_nop 0'); a(dwE)
        a(f"s_cbranch_vccnz {lb(f'f{k+1}')}")
        a(ldL)
        if P['dup'] and k == 1:
            a.lines += dupA; a(f"s_branch {lb('go2')}")
        else: a(f"s_branch {lb('go')}")
    a.label(lb(f'f{nE+1}'))
    a(spin + f"s_branch {lb(f'f{nE}')}")
    if prober:
        a.label(lb('p1'))
        a(probe); a(chkL[1]); a(chkL[2]); a(f"s_cbranch_vccnz {lb('rL')}")
        a. label(lb('p2'))
        for k in range(3):
            a(cnt(70, 65536) + f"s_waitcnt vmcnt({npr-1})\nv_cmp_ne_u32 vcc, s{sS}, v{FLV}"); a(probe); a(f"s_cbranch_vccz {lb('bL')}")
        a(spin + f"s_branch {lb('p2')}")
    a.label(lb('rL'))
    a(ldL)
    a(cnt(71, 65536) + spin + "s_waitcnt vmcnt(0)")
    a(dwL)
    a('\n'.join(chkL))
    a(f"s_waitcnt lgkmcnt(0)\ns_cbranch_vccnz {lb('rL')}\ns_branch {lb('p2' if prober else 'bL')}")
    if w == 0:
        a.label(lb('rF'))
        a(ldF); a(spin + f"s_waitcnt vmcnt(0)\nv_cmp_gt_u32 vcc, 32, v{FLV}\ns_cbranch_vccnz {lb('rF')}\ns_branch {lb('bF')}")
    a.label(lb('r1'))
    a(ld1[0]); a(ld1[1])
    a(cnt(70, 1) + spin + f"s_waitcnt vmcnt(0)\ns_branch {lb('a1')}")
    a.label(lb('step'))
    for l in sync_tmp(P, w): a(l)
    a(dwE)
    a(f"s_branch {lb('go')}")
    return end_main, None
```

```python
from asmlib import *
from chain import WS_KV, WS_KM, WS_SIZE, DBG_KVC, DBG_KV0, DBG_DN, S_WS, S_DBG, sH, sW, nops

WS_A = 50 << 20
WS_CNT = WS_A + (64 << 10)
WS_ST = 52 << 20
DBG_ST = 8
WS_PART = 64 << 20
H_GW = 131072
H_E = H_GW + 1024
H_C = H_E + 1024
H_K = H_C + 4096
S_X, S_W1, S_W2, S_WO, S_OUT = 8, 12, 16, 20, 28
sB = 34
sX0, sWo1, sWo2, sStI, sStS, sSlot, sCnt, sSeg, sSpin, sJ = 35, 36, 37, 38, 39, 40, 41, 42, 43, 44
sA, sA2, sA3, sA4 = 45, 46, 47, 48
sWoo = 49
sM = 50
P_LRE, P_LIM, P_LDT, P_DSK, P_GW, P_CRE, P_CIM = 58, 62, 64, 66, 68, 70, 72
LANE, L16, VX_, VW, VW2, XA, WA, BA, GA, VKV, G, VN, HH, VKM, VVM, WOA, MX = 0, 1, 2, 3, 4, 5, 7, 11, 13, 14, 15, 16, 17, 18, 19, 20, 28
T = 29
KF, VF, FR = 32, 96, 160
QF, SS, HF = 160, 224, 240
HSPIN = 400000
LOG2E = 0x3fb8aa3b
def mf(a, D, A, B, C): a(f"v_mfma_f32_32x32x16_bf16 {D}, {A}, {B}, {C}")
WS = sr(S_WS, 4)

S_PF = 52
P_WQ, P_WK, P_WV = 74, 76, 78
sPH = 56
def h_ptrs(a):
    a(f"""
    s_load_dwordx2 {sr(S_X,2)}, s[0:1], 0
    s_load_dwordx2 {sr(P_WK,2)}, s[0:1], 96
    s_load_dwordx2 {sr(P_WV,2)}, s[0:1], 104
    s_load_dwordx2 {sr(S_WO,2)}, s[0:1], 112
    s_load_dwordx2 {sr(S_PF,2)}, s[0:1], 88
    s_mov_b32 s{S_X+2}, 2097152
    s_mov_b32 s{S_X+3}, 0x20000
    s_mov_b32 s{S_WO+2}, 4194304
    s_mov_b32 s{S_WO+3}, 0x20000
    s_mov_b32 s{S_OUT+2}, 4194304
    s_mov_b32 s{S_OUT+3}, 0x20000
    s_mov_b32 s{S_W1+2}, 4194304
    s_mov_b32 s{S_W1+3}, 0x20000
    s_mov_b32 s{S_W2+2}, 4194304
    s_mov_b32 s{S_W2+3}, 0x20000
    s_mov_b32 s{S_PF+2}, 4194304
    s_mov_b32 s{S_PF+3}, 0x20000
    """)
PFW, PFO = 253, 254
def h_prefetch(a, sR):
    a(f"""
    s_mov_b64 {sr(S_W1,2)}, {sr(P_WK,2)}
    s_mov_b64 {sr(S_W2,2)}, {sr(P_WV,2)}
    s_mul_i32 s{sPH}, s{sR}, {32*9363}
    s_lshr_b32 s{sPH}, s{sPH}, 16
    s_lshl_b32 s{sA}, s{sPH}, 8
    s_lshl_b32 s{sA2}, s3, 17
    s_add_u32 s{sA}, s{sA}, s{sA2}
    v_lshrrev_b32 v1, 4, v0
    v_and_b32 v2, 15, v0
    v_cmp_gt_u32 vcc, 12, v2
    v_lshlrev_b32 v2, 7, v2
    v_lshl_add_u32 v1, v1, 13, v2
    v_add_u32 v1, s{sA}, v1
    v_bfrev_b32 v2, 1
    v_cndmask_b32 v{PFW}, v2, v1, vcc
    s_lshl_b32 s{sA}, s3, 14
    v_lshlrev_b32 v1, 7, v0
    v_cmp_gt_u32 vcc, 128, v0
    buffer_load_dword v255, v{PFW}, {sr(S_W2,4)}, 0 offen
    v_add_u32 v3, s{sA}, v1
    buffer_load_dword v255, v{PFW}, {sr(S_W1,4)}, 0 offen
    v_cndmask_b32 v3, v2, v3, vcc
    buffer_load_dword v255, v3, {sr(S_X,4)}, 0 offen
    s_load_dwordx2 {sr(S_OUT,2)}, s[0:1], 136
    s_load_dwordx2 {sr(P_LRE,2)}, s[0:1], 8
    s_load_dwordx2 {sr(P_LIM,2)}, s[0:1], 16
    s_load_dwordx2 {sr(P_LDT,2)}, s[0:1], 56
    s_load_dwordx2 {sr(P_DSK,2)}, s[0:1], 64
    s_load_dwordx2 {sr(P_GW,2)}, s[0:1], 128
    s_waitcnt lgkmcnt(0)
    s_load_dwordx2 {sr(P_CRE,2)}, s[0:1], 40
    s_load_dwordx2 {sr(P_CIM,2)}, s[0:1], 48
    s_cmp_ge_u32 s{sW}, 2
    s_cbranch_scc1 L_h_hi
    s_mov_b64 {sr(S_W2,2)}, {sr(S_PF,2)}
    s_mov_b32 s{sStI}, {4*8192}
    s_mov_b32 s{sStS}, {32*8192}
    s_branch L_h_sel
    """)
    a.label('L_h_hi')
    a(f"""
    s_mov_b64 {sr(S_W1,2)}, {sr(P_WV,2)}
    s_mov_b32 s{S_W2+2}, 524288
    s_mov_b32 s{sStI}, 0x10000000
    s_mov_b32 s{sStS}, 64
    s_cmp_eq_u32 s{sW}, 3
    s_cbranch_scc1 L_h_w3
    s_load_dwordx2 {sr(S_W2,2)}, s[0:1], 24
    s_branch L_h_sel
    """)
    a.label('L_h_w3')
    a(f"s_load_dwordx2 {sr(S_W2,2)}, s[0:1], 32")
    a.label('L_h_sel')
    a("s_waitcnt lgkmcnt(0)")
    return 3

def h_once(a):
    a(f"v_and_b32 v{LANE}, 63, v0")
    t = 32
    a(f"""
    v_lshlrev_b32 v{L16}, 4, v{LANE}
    v_and_b32 v{VN}, 31, v{LANE}
    v_lshrrev_b32 v{HH}, 5, v{LANE}
    v_lshrrev_b32 v{t}, 2, v{LANE}              ; r = lane>>2
    v_lshrrev_b32 v{t+1}, 4, v{LANE}            ; lane>>4
    v_and_b32 v{t+2}, 3, v{LANE}                ; c
    v_xor_b32 v{t+3}, v{t+2}, v{t+1}
    v_lshlrev_b32 v{t+3}, 4, v{t+3}
    v_lshl_add_u32 v{VX_}, v{t}, 10, v{t+3}
    v_and_b32 v{t+3}, 15, v{LANE}
    v_lshlrev_b32 v{t+4}, 2, v{t+1}
    v_xor_b32 v{t+3}, v{t+3}, v{t+4}
    v_lshlrev_b32 v{t+3}, 4, v{t+3}
    v_lshl_add_u32 v{VW}, v{t+1}, 13, v{t+3}
    s_cmp_ge_u32 s{sW}, 2
    s_cselect_b64 vcc, -1, 0
    v_cndmask_b32 v{VW2}, v{VW}, v{VX_}, vcc
    v_bfe_u32 v{t+5}, v{LANE}, 2, 1             ; h'
    v_bfe_u32 v{t+6}, v{LANE}, 3, 1             ; t
    v_bfe_u32 v{t+7}, v{LANE}, 4, 1             ; n>>4
    v_lshl_add_u32 v{t+8}, v{t+7}, 2, v{t+2}
    v_lshl_add_u32 v{t+8}, v{t+5}, 3, v{t+8}    ; i = 8h' + 4(n>>4) + (n&3)
    v_lshl_add_u32 v{t+9}, v{HH}, 5, v{t+8}
    v_lshlrev_b32 v{t+9}, 4, v{t+9}
    v_lshl_add_u32 v{VKV}, v{t+6}, 10, v{t+9}
    v_lshl_add_u32 v{t+9}, v{HH}, 4, v{t+8}
    v_lshlrev_b32 v{t+9}, 4, v{t+9}
    v_lshl_add_u32 v{t+9}, v{t+6}, 2, v{t+9}
    s_lshl_b32 s{sA}, s{sW}, 12
    s_add_u32 s{sA}, s{sA}, {H_K}
    v_add3_u32 v{VVM}, v{t+9}, s{sA}, 8
    v_and_b32 v{t+9}, 7, v{LANE}
    v_lshl_add_u32 v{t+9}, v{HH}, 5, v{t+9}
    v_lshl_add_u32 v{VKM}, v{t+9}, 4, s{sA}
    s_waitcnt lgkmcnt(0)
    """)

def xaddr(a, row, base_s, dst):
    a(f"""
    v_bfe_u32 v{T}, v{row}, 2, 2
    v_xor_b32 v{T}, v{T}, v{HH}
    v_lshlrev_b32 v{T}, 4, v{T}
    v_lshl_add_u32 v{T}, v{row}, 6, v{T}
    v_add_u32 v{dst}, {base_s}, v{T}
    v_xor_b32 v{dst+1}, 32, v{dst}
    """)

OPT = {}
sXC, sClr, sMode = 57, 3, 2
def dma_part(part, kind):
    G_ = []
    for i in range(4):
        o = (16384 if part == 'B' else 0) + 1024 * i
        L = [f"s_add_u32 m0, s{sSlot}, {o}"]
        if kind == 'wo': L += [f"s_add_u32 s{sA}, s{sWoo}, {o}", f"buffer_load_dwordx4 v{WOA + i}, {sr(S_WO,4)}, s{sA} offen lds"]
        elif part == 'A': L += [f"s_add_u32 s{sA}, s{sXC}, {(i >> 1) * 131072 + (i & 1) * 16384}", f"buffer_load_dwordx4 v{VX_}, {sr(S_X,4)}, s{sA} offen lds"]
        elif kind == 'p1': L += [f"s_add_u32 s{sA}, s{sWo1}, {4*8192*i}", f"buffer_load_dwordx4 v{VW}, {sr(S_W1,4)}, s{sA} offen lds"]
        else: L += [f"s_mov_b32 s{sA2}, s{sWo2}" if i == 0 else f"s_add_u32 s{sA2}, s{sA2}, s{sStI}", f"buffer_load_dwordx4 v{VW2}, {sr(S_W2,4)}, s{sA2} offen lds"]
        G_.append(L)
    if part == 'A' and kind != 'wo': G_[-1] += [f"s_add_u32 s{sXC}, s{sXC}, 64", f"s_and_b32 s{sXC}, s{sXC}, 0xfffffbff"]
    if part == 'B':
        G_[-1] += [{'p1': f"s_add_u32 s{sWo1}, s{sWo1}, {32*8192}", 'p2': f"s_add_u32 s{sWo2}, s{sWo2}, s{sStS}", 'wo': f"s_add_u32 s{sWoo}, s{sWoo}, 32768"}[kind]]
        G_[-1] += [f"s_add_u32 s{sSlot}, s{sSlot}, 32768", f"s_and_b32 s{sSlot}, s{sSlot}, 0x1ffff"]
    return G_

def frag_reads(p, k, fs, nj=2):
    b = FR + 40 * fs
    L = [f"ds_read_b128 {vr(b + 4*j, 4)}, v{XA + k} offset:{2048*j}" for j in range(nj)]
    for m in range(2 if p == 1 else 1):
        for tau in range(4):
            for pp in range(2):
                L.append(f"ds_read_b64_tr_b16 {vr(b + 8 + 16*m + 4*tau + 2*pp, 2)}, v{WA + tau} offset:{8192*m + (16*k + 4*pp)*256}")
    if p == 2:
        L.append(f"ds_read_b128 {vr(b + 24, 4)}, v{BA + k}")
        L.append(f"ds_read_b128 {vr(b + 28, 4)}, v{GA} offset:{32*k}")
    return L
def mfmas(p, fs, nj=2):
    b = FR + 40 * fs
    L = []
    x = lambda j: vr(b + 4 * j, 4)
    for tau in range(4):
        for j in range(nj):
            D = ar(64 * j + 16 * tau, 16); L.append((D, vr(b + 8 + 4 * tau, 4), x(j), D))
    if p == 1:
        for tau in range(4):
            for j in range(nj):
                D = ar(128 + 64 * j + 16 * tau, 16); L.append((D, x(j), vr(b + 24 + 4 * tau, 4), D))
    else:
        for q in range(2):
            for j in range(2):
                D = ar(128 + 32 * q + 16 * j, 16); L.append((D, vr(b + 24 + 4 * q, 4), x(j), D))
    return L
def adv_addr(p):
    L = []
    regs_ = [XA, XA + 1] + [WA + t for t in range(4)] + ([BA, BA + 1] if p == 2 else [])
    for r in regs_: L += [f"v_add_u32 v{r}, 0x8000, v{r}", f"v_and_b32 v{r}, 0x1ffff, v{r}"]
    if p == 2: L.append(f"v_add_u32 v{GA}, 64, v{GA}")
    return L

def stage_loop(a, name, p, kB, kA, n, nj=2):
    if n != 1:
        a(f"s_mov_b32 s{sCnt}, {n}")
        a.label(name)
    a("s_waitcnt lgkmcnt(0)")
    rd = frag_reads(p, 1, 1, nj); av = adv_addr(p); dg = dma_part('B', kB)
    M = mfmas(p, 0, nj); q = len(M) // 4
    for i, m in enumerate(M):
        mf(a, *m)
        for _ in range(2 if nj == 2 else (2 if i & 1 else 5)):
            if rd: a(rd.pop(0))
        if i % q == 1:
            for l in dg.pop(0): a(l)
        elif not rd:
            for _ in range(5 if nj == 2 else 6):
                if av: a(av.pop(0))
    assert not rd and not av and not dg
    a(f"s_waitcnt vmcnt({18 if p == 1 else 16}) lgkmcnt(0)\ns_barrier")
    rd = frag_reads(p, 0, 0, nj); dg = dma_part('A', kA)
    M = mfmas(p, 1, nj)
    for i, m in enumerate(M):
        mf(a, *m)
        for _ in range(2 if nj == 2 else (2 if i & 1 else 5)):
            if rd: a(rd.pop(0))
        if i % q == 1:
            for l in dg.pop(0): a(l)
        if p == 1 and i == (11 if nj == 2 else 4): a(f"buffer_store_dwordx4 v[44:47], v{L16}, {WS}, s{sClr} offen sc1\ns_add_u32 s{sClr}, s{sClr}, 1024")
        if p == 1 and i == (12 if nj == 2 else 6): a(f"s_and_b32 s{sA}, s{sClr}, 0xfff\ns_cselect_b32 s{sA}, 0, s{sX0}\ns_cselect_b32 s{sX0}, s{sX0}, 0x20000000\ns_add_u32 s{sClr}, s{sClr}, s{sA}")
        if i == len(M) - 1 and n != 1: a(f"s_sub_u32 s{sCnt}, s{sCnt}, 1\ns_cmp_lg_u32 s{sCnt}, 0")
    assert not rd and not dg
    if n != 1: a(f"s_cbranch_scc1 {name}")

SLEEP = [4]
def poll_fail(a, back, sl=None):
    a(f"s_add_u32 s{sSpin}, s{sSpin}, 1\ns_cmp_gt_u32 s{sSpin}, {HSPIN}\ns_cbranch_scc1 L_end\ns_sleep {sl or SLEEP[0]}\ns_branch {back}")

def unpack8(a, dst, src):
    for j in range(4):
        a(f"v_lshlrev_b32 v{dst+2*j}, 16, v{src+j}\nv_and_b32 v{dst+2*j+1}, 0xffff0000, v{src+j}")

def pw(a, LR, LI, A2, B2, n, cnt, tmp):
    for j in range(cnt):
        if n is None: a(f"v_exp_f32 v{tmp+j}, v{A2+j}\nv_fract_f32 v{LI+j}, v{B2+j}")
        else: a(f"v_mul_f32 v{tmp+j}, {n}, v{A2+j}\nv_mul_f32 v{LI+j}, {n}, v{B2+j}\nv_exp_f32 v{tmp+j}, v{tmp+j}\nv_fract_f32 v{LI+j}, v{LI+j}")
    for j in range(cnt): a(f"v_cos_f32 v{LR+j}, v{LI+j}\nv_sin_f32 v{LI+j}, v{LI+j}")
    a("s_nop 0")
    for j in range(cnt): a(f"v_mul_f32 v{LR+j}, v{LR+j}, v{tmp+j}\nv_mul_f32 v{LI+j}, v{LI+j}, v{tmp+j}")

def dtprep(a, A2, B2, DT, cnt):
    for j in range(cnt): a(f"v_mul_f32 v{DT+j}, {LOG2E}, v{DT+j}")
    for j in range(cnt): a(f"v_exp_f32 v{DT+j}, v{DT+j}")
    a("s_nop 0")
    for j in range(cnt): a(f"v_cvt_pk_bf16_f32 v{DT+j}, v{DT+j}, v{DT+j}")
    for j in range(cnt): a(f"v_and_b32 v{DT+j}, 0xffff0000, v{DT+j}")
    for j in range(cnt):
        a(f"v_mul_f32 v{A2+j}, v{DT+j}, v{A2+j}\nv_mul_f32 v{B2+j}, v{DT+j}, v{B2+j}")
        a(f"v_mul_f32 v{A2+j}, {LOG2E}, v{A2+j}\nv_mul_f32 v{B2+j}, 0.15915494, v{B2+j}")

def h_static(a):
    t = 32
    a(f"""
    v_bfe_u32 v{t}, v{LANE}, 2, 1
    v_bfe_u32 v{t+1}, v{LANE}, 3, 2
    v_and_b32 v{t+2}, 3, v{LANE}
    v_lshl_add_u32 v{t+3}, v{t+1}, 2, v{t+2}
    v_lshl_add_u32 v{t+3}, v{t}, 4, v{t+3}
    s_lshl_b32 s{sA}, s{sW}, 12
    """)
    xaddr(a, t + 3, f"s{sA}", XA)
    a(f"""
    v_bfe_u32 v{t+4}, v{LANE}, 2, 2             ; r'
    v_bfe_u32 v{t+5}, v{LANE}, 4, 1             ; half
    v_and_b32 v{t+6}, 1, v{LANE}
    v_bfe_u32 v{t+7}, v{LANE}, 1, 1
    v_lshl_add_u32 v{t+8}, v{t+5}, 1, v{t+7}
    v_lshl_add_u32 v{t+8}, v{t+6}, 2, v{t+8}
    v_lshlrev_b32 v{t+8}, 3, v{t+8}
    v_lshl_add_u32 v{t+9}, v{HH}, 3, v{t+4}
    v_lshl_add_u32 v{t+8}, v{t+9}, 8, v{t+8}
    v_lshl_add_u32 v{t+8}, v{t+4}, 6, v{t+8}
    v_add_u32 v{WA}, 16384, v{t+8}
    """)
    for tau in range(1, 4): a(f"v_xor_b32 v{WA+tau}, {64*tau}, v{WA}")
    for i in range(4): a(f"v_xor_b32 v{WOA+i}, {64*i}, v{L16}")
    for i in range(4): a(f"v_mov_b32 v{t+12+i}, -1")
    for i in range(256): a(f"v_accvgpr_write_b32 a{i}, 0")

def helper_task(a, P):
    DBG = sr(S_DBG, 4)
    SLEEP[0] = P.get('sleep', 4); OPT.clear(); OPT.update(P)
    def hs(k, alt=0):
        if P.get('alt') and not alt:
            if k in (4, 5, 6): return
            k = {2: 5, 3: 6}.get(k, k)
        if P.get('stat'): a(f"{'s_memtime' if P.get('hcyc') else 's_memrealtime'} s[{74+2*k}:{75+2*k}]")
    a.label('L_h_task')
    hs(0)
    t = 32
    a(f"""
    s_lshl_b32 s{sSeg}, s{sB}, 3
    s_cmp_eq_u32 s{sMode}, 2
    s_cselect_b32 s{sSeg}, 4, s{sSeg}
    s_add_u32 s{sSeg}, s{sSeg}, s{sW}
    s_lshl_b32 s{sXC}, s{sSeg}, 15
    s_lshl_b32 s{sWo1}, s{sH}, 8
    s_and_b32 s{sA}, s{sW}, 1
    s_lshl_b32 s{sA}, s{sA}, 17
    s_add_u32 s{sWo1}, s{sWo1}, s{sA}
    s_lshl_b32 s{sA}, s{sH}, 14
    s_cmp_ge_u32 s{sW}, 2
    s_cselect_b32 s{sWo2}, s{sA}, s{sWo1}
    s_lshl_b32 s{sSlot}, s{sW}, 12
    s_lshl_b32 s{sWoo}, s{sH}, 17
    s_add_u32 s{sWoo}, s{sWoo}, s{sSlot}
    s_mov_b32 s{sSpin}, 0
    """)
    NE = P.get('nearly', 2)
    if P.get('pfw'): a("s_waitcnt vmcnt(0)"); hs(0)
    a(f"""
    s_sub_u32 s{sA3}, s{sB}, 1
    s_cmp_ge_u32 s{sA3}, 5
    s_cbranch_scc1 L_h_nt
    s_sub_u32 s{sA3}, s{sB}, 2
    {'s_waitcnt vmcnt(0)' if P.get('w1', 1) else ''}
    {'s_sleep %d' % P.get('s1', 0) if P.get('s1', 0) else ''}
    s_lshl_b32 s{sA}, s{sW}, 6
    v_add_u32 v{T}, s{sA}, v{LANE}
    v_lshlrev_b32 v{T+1}, 7, v{T}
    s_cmp_eq_u32 s{sB}, 1
    s_cbranch_scc1 L_h_t6
    v_lshrrev_b32 v{T+2}, 1, v{T}
    v_and_b32 v{T}, 128, v{T+1}
    v_lshl_add_u32 v{T}, v{T+2}, 13, v{T}
    s_lshl_b32 s{sA}, s{sA3}, 20
    s_lshl_b32 s{sA2}, s{sH}, 8
    s_add_u32 s{sA}, s{sA}, s{sA2}
    buffer_load_dword v255, v{T}, {sr(S_PF,4)}, s{sA} offen
    {'s_waitcnt vmcnt(0)' if P.get('w2', 1) else ''}
    s_lshl_b32 s{sA}, s{sA3}, 15
    s_lshl_b32 s{sA2}, s{sH}, 17
    s_add_u32 s{sA}, s{sA}, s{sA2}
    buffer_load_dword v255, v{T+1}, {sr(S_WO,4)}, s{sA} offen
    {'s_waitcnt vmcnt(0)' if P.get('w3', 1) else ''}
    s_branch L_h_nt
    """)
    a.label('L_h_t6')
    a(f"""
    v_lshlrev_b32 v{T+2}, 7, v{LANE}
    s_lshl_b32 s{sA}, s{sH}, 14
    buffer_load_dword v255, v{T+2}, {sr(S_W2,4)}, s{sA} offen
    s_add_u32 s{sA}, s{sA}, 8192
    buffer_load_dword v255, v{T+2}, {sr(S_W2,4)}, s{sA} offen
    v_and_b32 v{T+1}, 0x3fff, v{T+1}
    s_lshl_b32 s{sA}, s{sH}, 14
    v_add_u32 v{T+1}, s{sA}, v{T+1}
    global_load_dword v255, v{T+1}, {sr(P_CRE,2)}
    global_load_dword v255, v{T+1}, {sr(P_CIM,2)}
    """)
    a.label('L_h_nt')
    for st in range(4):
        for g_ in dma_part('A', 'p1') + (dma_part('B', 'p1') if st < 3 else []):
            for l in g_: a(l)
    a(f"""
    s_lshl_b32 s{sA}, s{sSeg}, 17
    s_lshl_b32 s{sA2}, s{sH}, 12
    s_add_u32 s{sA}, s{sA}, s{sA2}
    s_add_u32 s{sClr}, s{sA}, {WS_KM}
    s_cmp_eq_u32 s{sMode}, 2
    s_cselect_b32 s{sClr}, 0x70000000, s{sClr}
    s_mov_b32 s{sX0}, {(4 << 17) - 4096}
    """)
    a(f"""
    s_lshl_b32 s{sA}, s{sB}, 5
    s_add_u32 s{sA}, s{sA}, s{sH}
    s_lshl_b32 s{sA}, s{sA}, 7
    s_add_u32 s{sA}, s{sA}, {WS_A}
    s_mov_b64 exec, 0xff
    buffer_store_dwordx4 {vr(t+12,4)}, v{L16}, {WS}, s{sA} offen sc1
    s_mov_b64 exec, -1
    s_lshl_b32 s{sA}, s{sH}, 2
    s_add_u32 s{sA}, s{sA}, s{sSeg}
    s_lshl_b32 s{sA}, s{sA}, 7
    s_add_u32 s{sA}, s{sA}, {WS_CNT}
    s_add_u32 s{sA2}, s{sH}, s{sMode}
    s_cmp_eq_u32 s{sMode}, 1
    s_cselect_b32 s{sA2}, s{sH}, s{sA2}
    s_cmp_lt_u32 s{sA2}, 2
    s_cselect_b32 s{sA}, s{sA}, 0x70000000
    v_mov_b32 v{t+16}, 0
    s_mov_b64 exec, 1
    buffer_store_dword v{t+16}, v{t+16}, {WS}, s{sA} offen sc1
    s_mov_b64 exec, -1
    global_load_dwordx4 {vr(t+20,4)}, v{L16}, {sr(P_GW,2)}
    """)
    a(f"""
    s_cmp_lg_u32 s{sB}, 7
    s_cbranch_scc1 L_h_n7
    s_add_u32 s{sA}, s{sSeg}, 4
    s_lshl_b32 s{sA}, s{sA}, 20
    s_lshl_b32 s{sA2}, s{sH}, 15
    s_add_u32 s{sA}, s{sA}, s{sA2}
    s_add_u32 s{sA}, s{sA}, {WS_PART}
    s_mov_b32 s{sCnt}, 8
    """)
    a.label('L_h_c7')
    for k in range(4): a(f"buffer_store_dwordx4 v[44:47], v{L16}, {WS}, s{sA} offen offset:{1024*k} sc1")
    a(f"s_add_u32 s{sA}, s{sA}, 4096\ns_sub_u32 s{sCnt}, s{sCnt}, 1\ns_cmp_lg_u32 s{sCnt}, 0\ns_cbranch_scc1 L_h_c7")
    a.label('L_h_n7')
    a(f"s_cmp_lt_u32 s{sB}, {NE}\ns_cbranch_scc1 L_h_go\ns_cmp_eq_u32 s{sMode}, 2\ns_cbranch_scc1 L_h_go")
    a(f"v_lshlrev_b32 v{T}, 7, v{LANE}\ns_and_b32 s{sA2}, s{sXC}, 0xfffffc00\ns_waitcnt vmcnt(0)")
    for k in range(8 if P.get('xt', 1) else 0): a(f"s_add_u32 s{sA}, s{sA2}, {(k >> 2) * 131072 + (k & 3) * 8192}\nbuffer_load_dword v255, v{T}, {sr(S_X,4)}, s{sA} offen")
    a(f"s_sub_i32 s{sA3}, s{sB}, {P.get('lag', 2)}\ns_max_i32 s{sA3}, s{sA3}, 0\ns_cmp_eq_u32 s{sB}, 7\ns_cselect_b32 s{sA3}, 0, s{sA3}\ns_lshl_b32 s{sA3}, s{sA3}, 2")
    a(f"s_cmp_lg_u32 s{sW}, 0\ns_cbranch_scc1 L_h_go")
    a.label('L_h_w0')
    a(f"buffer_load_dword v{T}, off, {DBG}, s{sA3} offset:{DBG_DN + DBG_KVC} sc1\ns_waitcnt vmcnt(0)\nv_cmp_eq_u32 vcc, 0, v{T}\ns_cbranch_vccz L_h_go")
    poll_fail(a, 'L_h_w0', 8)
    a.label('L_h_go')
    a(f"s_waitcnt vmcnt({20 + 3})\ns_barrier")
    hs(1)
    for l in frag_reads(1, 0, 0): a(l)
    gw = f"v_add_u32 v{T}, {H_GW}, v{L16}\nds_write_b128 v{T}, {vr(t+20,4)}"
    a(f"s_cmp_eq_u32 s{sMode}, 0\ns_cbranch_scc1 L_h_full")
    stage_loop(a, 'L_h_q1a', 1, 'p1', 'x', 13, 1)
    a(gw)
    stage_loop(a, 'L_h_q1b', 1, 'p2', 'x', 3, 1)
    a("s_branch L_h_e1")
    a.label('L_h_full')
    stage_loop(a, 'L_h_p1a', 1, 'p1', 'x', 13)
    a(gw)
    stage_loop(a, 'L_h_p1b', 1, 'p2', 'x', 3)
    a.label('L_h_e1')
    hs(2)
    a(f"""
    s_lshl_b32 s{sA3}, s{sSeg}, 19
    s_lshl_b32 s{sA2}, s{sH}, 14
    s_add_u32 s{sA3}, s{sA3}, s{sA2}
    s_add_u32 s{sA3}, s{sA3}, {WS_KV}
    s_waitcnt lgkmcnt(0)
    s_nop 7
    """)
    TM = 240
    def kv_store(j, m, tau):
        dst = (KF if m == 0 else VF) + 32 * j + 8 * tau
        a(f"s_add_u32 s{sA}, s{sA3}, {j * (4 << 19) + 4096 * tau}")
        for u in range(2): a(f"buffer_store_dwordx4 {vr(dst+4*u,4)}, v{VKV}, {WS}, s{sA} offen offset:{2048*m + 256*u} sc1")
    def signal(tag, off, so, nv):
        a(f"""
        s_waitcnt vmcnt({nv})
        s_barrier
        s_cmp_lg_u32 s{sW}, 0
        s_cbranch_scc1 L_h_ns{tag}
        s_lshl_b32 s{sA}, s{sB}, 2
        v_mov_b32 v{T}, 1
        s_mov_b64 exec, 1
        buffer_atomic_add v{T}, off, {DBG}, {so} offset:{off} sc0
        v_mov_b32 v{T+1}, 32
        s_waitcnt vmcnt(0)
        v_cmp_eq_u32 vcc, 31, v{T}
        s_cbranch_vccz L_h_ng{tag}
        buffer_store_dword v{T+1}, off, {DBG}, {so} offset:{off + DBG_DN} sc1
        """)
        a.label(f'L_h_ng{tag}')
        a("s_mov_b64 exec, -1")
        a.label(f'L_h_ns{tag}')
    for j in range(2):
        for m in range(2):
            for tau in range(4):
                src = 128 * m + 64 * j + 16 * tau; dst = (KF if m == 0 else VF) + 32 * j + 8 * tau
                for r in range(16): a(f"v_accvgpr_read_b32 v{TM+r}, a{src+r}")
                for r in range(8): a(f"v_cvt_pk_bf16_f32 v{dst+r}, v{TM+2*r}, v{TM+2*r+1}")
                if j == 0:
                    a(f"s_cmp_eq_u32 s{sMode}, 0\ns_cbranch_scc1 L_h_sk{j}{m}{tau}")
                    kv_store(j, m, tau)
                    a.label(f'L_h_sk{j}{m}{tau}')
        if j == 0:
            a(f"s_cmp_eq_u32 s{sMode}, 0\ns_cbranch_scc1 L_h_j1\ns_lshl_b32 s{sA2}, s{sMode}, 2")
            signal('a', DBG_KV0 - 4, f"s{sA2}", 0)
            a(f"s_cmp_eq_u32 s{sMode}, 1\ns_cbranch_scc1 L_h_nj1\ns_mov_b32 s{sMode}, 0\ns_waitcnt vmcnt(0) lgkmcnt(0)\ns_branch L_h_again")
            a.label('L_h_j1')
    a.label('L_h_nj1')
    for i in range(192): a(f"v_accvgpr_write_b32 a{i}, 0")
    a(f"s_lshl_b32 s{sA}, s{sW}, 12")
    xaddr(a, VN, f"s{sA}", XA)
    a(f"""
    v_bfe_u32 v{TM}, v{LANE}, 2, 1
    v_bfe_u32 v{TM+1}, v{LANE}, 3, 1
    v_and_b32 v{TM+2}, 3, v{LANE}
    v_lshl_add_u32 v{TM+2}, v{TM+1}, 2, v{TM+2}
    v_lshl_add_u32 v{TM+2}, v{TM}, 3, v{TM+2}      ; ch
    v_bfe_u32 v{TM+3}, v{LANE}, 4, 1
    v_lshlrev_b32 v{TM+3}, 12, v{TM+3}
    v_add_u32 v{TM+3}, 24576, v{TM+3}
    v_lshlrev_b32 v{GA}, 4, v{HH}
    v_add_u32 v{GA}, {H_GW}, v{GA}
    """)
    xaddr(a, TM + 2, f"v{TM+3}", BA)
    hs(3)
    for l in frag_reads(2, 0, 0): a(l)
    a(f"s_lshl_b32 s{sA4}, s{sB}, 1\ns_and_b32 s{sA4}, s{sA4}, {2 if P.get('lag', 2) == 2 else 14}\ns_sub_i32 s{sA4}, s{sA4}, {-1 if P.get('lag', 2) == 2 else 3}\ns_max_i32 s{sA4}, s{sA4}, 1\ns_cmp_eq_u32 s{sB}, 7\ns_cselect_b32 s{sA4}, 1, s{sA4}\ns_sub_u32 s{sJ}, 12, s{sA4}")
    stage_loop(a, 'L_h_p20', 2, 'p2', 'x', f"s{sA4}")
    a(f"s_cmp_eq_u32 s{sMode}, 0\ns_cbranch_scc1 L_h_st\ns_cmp_lg_u32 s{sW}, 0\ns_cbranch_scc1 L_h_l1")
    a.label('L_h_l0')
    a(f"buffer_load_dword v{T}, off, {DBG}, 0 offset:{DBG_DN + DBG_KVC} sc1\ns_waitcnt vmcnt(0)\nv_cmp_eq_u32 vcc, 0, v{T}\ns_cbranch_vccz L_h_l1")
    poll_fail(a, 'L_h_l0', 8)
    a.label('L_h_l1')
    a("s_barrier")
    n0 = len(a.lines)
    for m in range(2):
        for tau in range(4): kv_store(1, m, tau)
    a.lines[n0:] = [l.replace('buffer_store', 'buffer_load') for l in a.lines[n0:]]
    a(f"s_mov_b32 s{sMode}, 0\ns_branch L_h_nsc")
    a.label('L_h_st')
    for j in range(2):
        for m in range(2):
            for tau in range(4): kv_store(j, m, tau)
    signal('c', DBG_KVC, f"s{sA}", 0)
    stage_loop(a, 'L_h_p2a', 2, 'p2', 'x', f"s{sJ}")
    stage_loop(a, 'L_h_p2c', 2, 'p2', 'wo', 1)
    stage_loop(a, 'L_h_p2b', 2, 'wo', 'wo', 3)
    for g_ in dma_part('B', 'wo'):
        for l in g_: a(l)
    hs(4)
    a("s_waitcnt lgkmcnt(0)\ns_nop 7")
    PK = 128 + 0
    for j in range(2):
        for tau in range(4):
            src = 64 * j + 16 * tau; dst = QF + 32 * j + 8 * tau
            for r in range(16): a(f"v_accvgpr_read_b32 v{TM+r}, a{src+r}")
            for r in range(8): a(f"v_cvt_pk_bf16_f32 v{dst+r}, v{TM+2*r}, v{TM+2*r+1}")
    a(f"""
    v_bfe_u32 v{T}, v{LANE}, 2, 1
    v_bfe_u32 v{T+1}, v{LANE}, 3, 1
    v_and_b32 v{T+2}, 0x13, v{LANE}
    v_lshl_add_u32 v{T+2}, v{T+1}, 2, v{T+2}
    v_lshl_add_u32 v{T+2}, v{T}, 3, v{T+2}
    v_lshlrev_b32 v{T+2}, 10, v{T+2}
    s_lshl_b32 s{sA}, s{sH}, 5
    v_lshl_add_u32 v{T+1}, v{HH}, 4, s{sA}
    v_add_u32 v{T+2}, v{T+2}, v{T+1}
    """)
    for j in range(2):
        for k in range(8):
            D = vr(SS + 16 * j, 16)
            mf(a, D, vr(KF + 32 * j + 4 * k, 4), vr(QF + 32 * j + 4 * k, 4), D if k else 0)
            tile = 8 * j + k
            a(f"global_load_dwordx4 {ar(8*tile,4)}, v{T+2}, {sr(P_CRE,2)}\nglobal_load_dwordx4 {ar(8*tile+4,4)}, v{T+2}, {sr(P_CIM,2)}")
            a(f"v_add_u32 v{T+2}, 32768, v{T+2}")
    RI = 32
    for r in range(32): a(f"v_accvgpr_read_b32 v{RI+r}, a{128+r}")
    a(f"v_accvgpr_read_b32 v{G}, a160\nv_accvgpr_read_b32 v{MX}, a176")
    A2, B2, LR, LI = 64, 72, 80, 88
    a(f"global_load_dwordx4 {vr(LR,4)}, v{T+1}, {sr(P_LRE,2)}\nglobal_load_dwordx4 {vr(LR+4,4)}, v{T+1}, {sr(P_LIM,2)}\nglobal_load_dwordx4 {vr(LI,4)}, v{T+1}, {sr(P_LDT,2)}")
    for r in (G, MX): a(f"v_mul_f32 v{r}, 0xbfb8aa3b, v{r}")
    for r in (G, MX): a(f"v_exp_f32 v{r}, v{r}")
    a("s_nop 0")
    for r in (G, MX): a(f"v_add_f32 v{r}, 1.0, v{r}")
    for r in (G, MX): a(f"v_rcp_f32 v{r}, v{r}")
    a(f"v_lshlrev_b32 v{T}, 4, v{HH}\nv_sub_u32 v{T}, v{VN}, v{T}\nv_mov_b32 v{T+2}, 0xff800000")
    for r in range(16):
        a(f"v_cmp_le_i32 vcc, {r}, v{T}\ns_nop 1")
        for j in range(2): a(f"v_cndmask_b32 v{SS+16*j+r}, v{T+2}, v{SS+16*j+r}, vcc")
    PQ, PV, PS, PH, PG = 128, 160, 192, 208, 216
    for r in range(32): a(f"v_accvgpr_write_b32 a{PQ+r}, v{QF+32+r}\nv_accvgpr_write_b32 a{PV+r}, v{VF+32+r}")
    for r in range(16): a(f"v_accvgpr_write_b32 a{PS+r}, v{SS+16+r}")
    a(f"v_accvgpr_write_b32 a{PG}, v{MX}")
    CA, CB, CD = 192, 193, 194
    a(f"""
    v_and_b32 v{T}, 15, v{LANE}
    s_lshl_b32 s{sA}, s{sH}, 5
    v_lshl_add_u32 v{T+2}, v{T}, 1, s{sA}
    global_load_ushort v{CA}, v{T+2}, {sr(P_LRE,2)}
    global_load_ushort v{CB}, v{T+2}, {sr(P_LIM,2)}
    global_load_ushort v{CD}, v{T+2}, {sr(P_LDT,2)}
    s_waitcnt vmcnt(0)
    """)
    TT, LE, LM = 128, 136, 144
    unpack8(a, LE, LR); unpack8(a, LM, LR + 4); unpack8(a, TT, LI)
    for j in range(8): a(f"v_mov_b32 v{A2+j}, v{LE+j}\nv_mov_b32 v{B2+j}, v{LM+j}")
    dtprep(a, A2, B2, TT, 8)
    pw(a, LR, LI, A2, B2, None, 8, TT)
    for j in range(8):
        a(f"""
        v_mul_f32 v{TT}, v{LE+j}, v{LE+j}
        v_fmac_f32 v{TT}, v{LM+j}, v{LM+j}
        v_rcp_f32 v{TT}, v{TT}
        v_add_f32 v{TT+1}, -1.0, v{LR+j}
        v_mul_f32 v{TT+2}, v{TT+1}, v{LE+j}
        v_fmac_f32 v{TT+2}, v{LI+j}, v{LM+j}
        v_mul_f32 v{TT+3}, v{LI+j}, v{LE+j}
        v_fma_f32 v{TT+3}, -v{TT+1}, v{LM+j}, v{TT+3}
        v_mul_f32 v{LE+j}, v{TT+2}, v{TT}
        v_mul_f32 v{LM+j}, v{TT+3}, v{TT}
        """)
    for d in (1, 2, 4, 8):
        dp = f"row_shr:{d} row_mask:0xf bank_mask:0xf bound_ctrl:1"
        for j in range(2):
            R, I = RI + 16 * j, RI + 16 * j + 8
            for c in range(8): a(f"v_mov_b32 v{TT+c}, v{R+c}")
            for c in range(8): a(f"v_fmac_f32_dpp v{R+c}, v{R+c}, v{LR+c} {dp}")
            for c in range(8): a(f"v_fmac_f32_dpp v{R+c}, -v{I+c}, v{LI+c} {dp}")
            for c in range(8): a(f"v_fmac_f32_dpp v{I+c}, v{I+c}, v{LR+c} {dp}")
            for c in range(8): a(f"v_fmac_f32_dpp v{I+c}, v{TT+c}, v{LI+c} {dp}")
        if d < 8:
            for c in range(8):
                a(f"v_mul_f32 v{TT}, v{LI+c}, v{LI+c}\nv_add_f32 v{TT+1}, v{LR+c}, v{LR+c}\nv_fma_f32 v{LR+c}, v{LR+c}, v{LR+c}, -v{TT}\nv_mul_f32 v{LI+c}, v{TT+1}, v{LI+c}")
    a(f"v_and_b32 v{T+2}, 15, v{LANE}\nv_add_u32 v{T+2}, 1, v{T+2}\nv_cvt_f32_u32 v{T+2}, v{T+2}")
    pw(a, LR, LI, A2, B2, f"v{T+2}", 8, TT)
    dp = "row_bcast:15 row_mask:0xa bank_mask:0xf"
    for j in range(2):
        R, I = RI + 16 * j, RI + 16 * j + 8
        for c in range(8): a(f"v_fmac_f32_dpp v{R+c}, v{R+c}, v{LR+c} {dp}")
        for c in range(8): a(f"v_fmac_f32_dpp v{R+c}, -v{I+c}, v{LI+c} {dp}")
        for c in range(8): a(f"v_fmac_f32_dpp v{I+c}, v{I+c}, v{LR+c} {dp}")
        for c in range(8): a(f"v_fmac_f32_dpp v{I+c}, v{R+c}, v{LI+c} {dp}")
    a(f"""
    s_lshl_b32 s{sA}, s{sW}, 7
    s_add_u32 s{sA}, s{sA}, {H_E}
    v_lshl_add_u32 v{T+2}, v{HH}, 5, s{sA}
    s_mov_b32 exec_lo, 0x80000000
    s_mov_b32 exec_hi, 0x80000000
    """)
    for j in range(2):
        for q in range(4): a(f"ds_write_b128 v{T+2}, {vr(RI + 16*j + 4*q, 4)} offset:{512*j + 64*(q>>1) + 16*(q&1)}")
    a("s_mov_b64 exec, -1")
    a(f"v_lshlrev_b32 v{CA}, 16, v{CA}\nv_lshlrev_b32 v{CB}, 16, v{CB}\nv_lshlrev_b32 v{CD}, 16, v{CD}")
    dtprep(a, CA, CB, CD, 1)
    U, W_ = 196, 198
    pw(a, U, U + 1, CA, CB, "0x42000000", 1, CD)
    pw(a, W_, W_ + 1, CA, CB, "0x43800000", 1, CD)
    a(f"v_add_u32 v{T+2}, 1, v{VN}\nv_cvt_f32_u32 v{T+2}, v{T+2}")
    pw(a, LR, LI, A2, B2, f"v{T+2}", 8, TT)
    EE = 200
    a(f"v_lshlrev_b32 v{T}, 2, v{T}\nv_add_u32 v{T+2}, {H_E}, v{T}\ns_waitcnt lgkmcnt(0)\ns_barrier")
    for s_ in range(8): a(f"ds_read2_b32 {vr(EE+2*s_,2)}, v{T+2} offset0:{32*s_} offset1:{32*s_+16}")
    AC_ = 216
    def cmac(M_, Er):
        a(f"""
        v_fma_f32 v{AC_+2}, v{M_}, v{AC_}, v{Er}
        v_fma_f32 v{AC_+3}, v{M_}, v{AC_+1}, v{Er+1}
        v_fma_f32 v{AC_+2}, -v{M_+1}, v{AC_+1}, v{AC_+2}
        v_fma_f32 v{AC_+1}, v{M_+1}, v{AC_}, v{AC_+3}
        v_mov_b32 v{AC_}, v{AC_+2}
        """)
    a(f"s_waitcnt lgkmcnt(0)\nv_mov_b32 v{AC_}, v{EE}\nv_mov_b32 v{AC_+1}, v{EE+1}")
    for s_ in range(1, 8): cmac(U, EE + 2 * s_)
    a(f"""
    v_min_u32 v{AC_}, -2, v{AC_}
    v_min_u32 v{AC_+1}, -2, v{AC_+1}
    v_lshlrev_b32 v{T+1}, 1, v{T}
    s_lshl_b32 s{sA3}, s{sH}, 7
    s_add_u32 s{sA3}, s{sA3}, {WS_A}
    s_lshl_b32 s{sA}, s{sB}, 12
    s_add_u32 s{sA}, s{sA}, s{sA3}
    s_cmp_eq_u32 s{sW}, 0
    s_cselect_b32 s{sA}, s{sA}, 0x70000000
    buffer_store_dwordx2 {vr(AC_,2)}, v{T+1}, {WS}, s{sA} offen sc1
    v_and_b32 v{T+2}, 7, v{LANE}
    v_cmp_ge_u32 {sr(sM,2)}, s{sB}, v{T+2}
    v_lshlrev_b32 v{T+2}, 2, v{T+2}
    v_mov_b32 v{AC_}, 0
    v_mov_b32 v{AC_+1}, 0
    s_mov_b32 s{sCnt}, 0
    """)
    a.label('L_h_wk')
    a(f"""
    buffer_load_dword v{AC_+2}, v{T+2}, {DBG}, 0 offen offset:{DBG_DN + DBG_KV0} sc1
    s_waitcnt vmcnt(0)
    v_cmp_gt_u32 vcc, 32, v{AC_+2}
    s_and_b64 vcc, vcc, {sr(sM,2)}
    s_cbranch_vccz L_h_wa
    """)
    poll_fail(a, 'L_h_wk')
    a.label('L_h_wa')
    a(f"""
    s_cmp_ge_u32 s{sCnt}, s{sB}
    s_cbranch_scc1 L_h_wd
    buffer_load_dwordx2 {vr(220,2)}, v{T+1}, {WS}, s{sA3} offen sc1
    s_waitcnt vmcnt(0)
    v_max_u32 v{AC_+2}, v220, v221
    v_cmp_eq_u32 vcc, -1, v{AC_+2}
    s_cbranch_vccz L_h_wb
    """)
    poll_fail(a, 'L_h_wa')
    a.label('L_h_wb')
    cmac(W_, 220)
    a(f"s_add_u32 s{sCnt}, s{sCnt}, 1\ns_add_u32 s{sA3}, s{sA3}, 4096\ns_branch L_h_wa")
    a.label('L_h_wd')
    a(f"s_lshl_b32 s{sA}, s{sW}, 10\ns_add_u32 s{sA}, s{sA}, {H_C}\nv_add_u32 v{T+2}, s{sA}, v{T}")
    for s_ in range(8):
        a(f"ds_write2_b32 v{T+2}, v{AC_}, v{AC_+1} offset0:{32*s_} offset1:{32*s_+16}")
        if s_ < 7: cmac(U, EE + 2 * s_)
    a(f"""
    s_lshl_b32 s{sA2}, s{sW}, 7
    s_add_u32 s{sA}, s{sA}, s{sA2}
    v_lshl_add_u32 v{T+2}, v{HH}, 5, s{sA}
    s_waitcnt lgkmcnt(0)
    """)
    CC = 192
    for j in range(2):
        for q in range(4): a(f"ds_read_b128 {vr(CC + 16*j + 4*q, 4)}, v{T+2} offset:{512*j + 64*(q>>1) + 16*(q&1)}")
    a(f"v_add_f32 v{T}, v{G}, v{G}\nv_add_f32 v{T+1}, v{MX}, v{MX}\ns_waitcnt lgkmcnt(0)")
    for j in range(2):
        R, I, cr, ci = RI + 16 * j, RI + 16 * j + 8, CC + 16 * j, CC + 16 * j + 8
        for c in range(8):
            a(f"""
            v_fmac_f32 v{R+c}, v{LR+c}, v{cr+c}
            v_fmac_f32 v{I+c}, v{LR+c}, v{ci+c}
            v_fma_f32 v{R+c}, -v{LI+c}, v{ci+c}, v{R+c}
            v_fmac_f32 v{I+c}, v{LI+c}, v{cr+c}
            v_mul_f32 v{cr+c}, v{R+c}, v{LE+c}
            v_mul_f32 v{ci+c}, v{R+c}, v{LM+c}
            v_fma_f32 v{cr+c}, -v{I+c}, v{LM+c}, v{cr+c}
            v_fmac_f32 v{ci+c}, v{I+c}, v{LE+c}
            v_mul_f32 v{cr+c}, v{cr+c}, v{T+j}
            v_mul_f32_e64 v{ci+c}, -v{ci+c}, v{T+j}
            """)
        for r in range(8): a(f"v_cvt_pk_bf16_f32 v{HF+8*j+r}, v{cr+2*r}, v{cr+2*r+1}")
    for r in range(8): a(f"v_accvgpr_write_b32 a{PH+r}, v{HF+8+r}")
    a(f"""
    v_bfe_u32 v{t+4}, v{LANE}, 2, 2
    v_bfe_u32 v{t+5}, v{LANE}, 4, 1
    v_and_b32 v{t+6}, 1, v{LANE}
    v_bfe_u32 v{t+7}, v{LANE}, 1, 1
    v_lshl_add_u32 v{t+8}, v{t+6}, 1, v{t+7}
    v_lshl_add_u32 v{t+8}, v{t+5}, 2, v{t+8}
    v_lshlrev_b32 v{t+8}, 3, v{t+8}
    v_lshl_add_u32 v{t+9}, v{HH}, 4, v{t+4}
    v_lshl_add_u32 v{t+8}, v{t+9}, 10, v{t+8}
    v_lshl_add_u32 v{WOA}, v{t+4}, 6, v{t+8}
    """)
    for tt in range(1, 4): a(f"v_xor_b32 v{WOA+tt}, {64*tt}, v{WOA}")
    for tt in range(4): a(f"v_add_u32 v{WOA+4+tt}, 0x10000, v{WOA+tt}")
    a(f"s_mov_b32 s{sJ}, 0")
    MINI = P.get('mini', 1)
    if MINI:
        a(f"""
        s_cmp_lg_u32 s{sB}, 7
        s_cbranch_scc1 L_h_nsd
        s_lshl_b32 s{sA2}, s{sW}, 5
        s_add_u32 s{sA2}, s{sA2}, s{sH}
        s_mul_i32 s{sA2}, s{sA2}, {23*1024}
        s_add_u32 s{sA2}, s{sA2}, {WS_ST}
        """)
        for q in range(23):
            a(f"buffer_store_dwordx4 {ar(128+4*q,4)}, v{L16}, {WS}, s{sA2} offen offset:{1024*(q&3)} sc1")
            if q & 3 == 3: a(f"s_add_u32 s{sA2}, s{sA2}, 4096")
        signal('d', DBG_ST, '0', 0)
    hs(5)
    a.label('L_h_seg')
    KMF, VMF, SM, PX, PM, OA_ = 32, 64, 80, 248, 128, 192
    a(f"v_max3_f32 v{MX}, v{SS}, v{SS+1}, v{SS+2}")
    for r in range(3, 15, 2): a(f"v_max3_f32 v{MX}, v{MX}, v{SS+r}, v{SS+r+1}")
    a(f"""
    v_max_f32 v{MX}, v{MX}, v{SS+15}
    s_lshl_b32 s{sA}, s{sSeg}, 17
    s_lshl_b32 s{sA2}, s{sH}, 12
    s_add_u32 s{sA}, s{sA}, s{sA2}
    s_add_u32 s{sA}, s{sA}, {WS_KM}
    s_cmp_lt_u32 s{sSeg}, 48
    s_cselect_b32 s{sA2}, {P.get('pm', 7)}, {P.get('pm6', 3)}
    s_cmp_lt_u32 s{sSeg}, 56
    s_cselect_b32 s{sA2}, s{sA2}, {P.get('pm7', 1)}
    s_cmp_lt_u32 s{sSeg}, 60
    s_cselect_b32 s{sA2}, s{sA2}, 0
    s_or_b32 s{sA2}, s{sA2}, s{sSeg}
    s_min_u32 s{sA2}, s{sA2}, 62
    s_sub_i32 s{sA2}, s{sA2}, s{sSeg}
    s_lshl_b32 s{sA2}, s{sA2}, 17
    s_add_u32 s{sA2}, s{sA}, s{sA2}
    s_mov_b32 s{sA4}, 0x3e0293ee
    s_lshl_b32 s{sA3}, s{sW}, 12
    s_add_u32 s{sA3}, s{sA3}, {H_K}
    v_add_u32 v{T+1}, s{sA3}, v{L16}
    v_add_u32 v{T+2}, 2048, v{VKM}
    """)
    for tau in range(4): a(f"v_mov_b64 {vr(VMF + 4*tau + 2, 2)}, 0")
    a(f"v_mov_b64 {vr(PM+2,2)}, 0")
    a.label('L_h_pr')
    a(f"""
    buffer_load_dword v{T}, off, {WS}, s{sA2} offset:3072 sc1
    s_waitcnt vmcnt(0)
    v_cmp_eq_u32 vcc, -1, v{T}
    s_cbranch_vccz L_h_ld
    """)
    poll_fail(a, 'L_h_pr')
    a.label('L_h_pf')
    a(f"s_add_u32 s{sSpin}, s{sSpin}, 1\ns_cmp_gt_u32 s{sSpin}, {HSPIN}\ns_cbranch_scc1 L_end")
    a.label('L_h_ld')
    LD = 192
    for k in range(4): a(f"buffer_load_dwordx4 {vr(LD + 4*k, 4)}, v{L16}, {WS}, s{sA} offen offset:{1024*k} sc1")
    a("s_waitcnt vmcnt(0)")
    hs(6)
    for k in range(4): a(f"ds_write_b128 v{T+1}, {vr(LD + 4*k, 4)} offset:{1024*k}")
    a(f"v_max3_u32 v{T}, v{LD}, v{LD+1}, v{LD+2}")
    for r in range(3, 15, 2): a(f"v_max3_u32 v{T}, v{T}, v{LD+r}, v{LD+r+1}")
    a(f"v_max_u32 v{T}, v{T}, v{LD+15}\nv_cmp_eq_u32 vcc, -1, v{T}\ns_cbranch_vccnz L_h_pf")
    for k in range(8):
        o = ((k >> 1) & 1) * 128 + (k & 1) * 32
        a(f"ds_read2_b64 {vr(KMF + 4*k, 4)}, v{VKM if k < 4 else T+2} offset0:{o} offset1:{o+16}")
    for tau in range(4): a(f"ds_read2st64_b32 {vr(VMF + 4*tau, 2)}, v{VVM} offset0:{4*tau} offset1:{4*tau+2}")
    for k in range(8):
        a(f"s_waitcnt lgkmcnt({11-k})")
        mf(a, vr(SM, 16), vr(KMF + 4 * k, 4), vr(QF + 4 * k, 4), vr(SM, 16) if k else 0)
    a("s_waitcnt lgkmcnt(0)\ns_nop 11")
    a(f"""
    v_max3_f32 v{T}, v{MX}, v{SM}, v{SM+1}
    v_max3_f32 v{T}, v{T}, v{SM+2}, v{SM+3}
    v_mov_b32 v{T+1}, v{T}
    s_nop 1
    v_permlane32_swap_b32 v{T}, v{T+1}
    v_max_f32 v{T}, v{T}, v{T+1}
    v_mul_f32 v{T}, s{sA4}, v{T}
    """)
    ev = [SM + r for r in range(4)] + [SS + r for r in range(16)]
    for r in ev: a(f"v_fma_f32 v{r}, v{r}, s{sA4}, -v{T}")
    for r in ev: a(f"v_exp_f32 v{r}, v{r}")
    a(f"v_cvt_pk_bf16_f32 v{PM}, v{SM}, v{SM+1}\nv_cvt_pk_bf16_f32 v{PM+1}, v{SM+2}, v{SM+3}")
    for r in range(8): a(f"v_cvt_pk_bf16_f32 v{PX+r}, v{SS+2*r}, v{SS+2*r+1}")
    sm = [f"v_add_f32 v{T}, v{ev[0]}, v{ev[1]}"] + [f"v_add_f32 v{T}, v{T}, v{r}" for r in ev[2:]]
    sm += [f"v_mov_b32 v{T+1}, v{T}", f"v_sub_f32 v{T+2}, 1.0, v{G}", "s_nop 0", f"v_permlane32_swap_b32 v{T}, v{T+1}", f"v_add_f32 v{T}, v{T}, v{T+1}",
           f"v_rcp_f32 v{T}, v{T}", "s_nop 0", f"v_mul_f32 v{T}, v{T}, v{T+2}"]
    WF = 32
    wrd = lambda tile: [f"ds_read_b64_tr_b16 {vr(WF + 32*(tile&1) + 4*k + 2*pp, 2)}, v{WOA + 4*(k>>2) + (tile&3)} offset:{(32*((k>>1)&1) + 8*(k&1) + 4*pp)*1024 + 256*(tile>>2)}"
                        for k in range(8) for pp in range(2)]
    rd = wrd(0)
    OB = [192, 208, 132, 148]
    OB = [192, 208, 132, 80]
    def onorm(tau):
        L_ = [f"v_mul_f32 v{OB[tau]+r}, v{OB[tau]+r}, v{T}" for r in range(16)]
        L_ += [f"v_cvt_pk_bf16_f32 v{QF+8*tau+r}, v{OB[tau]+2*r}, v{OB[tau]+2*r+1}" for r in range(8)]
        return L_
    n = 0
    for tau in range(4):
        D = vr(OB[tau], 16)
        for k in range(3):
            if k == 0: mf(a, D, vr(VMF + 4 * tau, 4), vr(PM, 4), 0)
            else: mf(a, D, vr(VF + 8 * tau + 4 * (k - 1), 4), vr(PX + 4 * (k - 1), 4), D)
            for _ in range(2):
                if rd: a(rd.pop(0))
            if n == 6: sm += onorm(0)
            if n == 9: sm += onorm(1)
            for _ in range(6):
                if sm: a(sm.pop(0))
            n += 1
    for l in sm + onorm(2) + onorm(3): a(l)
    hs(7)
    a(f"""
    s_lshl_b32 s{sA}, s{sSeg}, 20
    s_lshl_b32 s{sA2}, s{sH}, 10
    s_add_u32 s{sA}, s{sA}, s{sA2}
    s_add_u32 s{sA}, s{sA}, {WS_PART}
    """)
    CT = 128
    def epi(tile):
        D = 192 + 16 * (tile & 1); c = CT + 8 * (tile & 1)
        L_ = []
        for u in range(2):
            L_ += [f"v_cvt_pk_bf16_f32 v{c+4*u+r}, v{D+8*u+2*r}, v{D+8*u+2*r+1}\nv_min_u32 v{c+4*u+r}, -2, v{c+4*u+r}" for r in range(4)]
        for u in range(2):
            L_ += [f"buffer_store_dwordx4 {vr(c+4*u,4)}, v{L16}, {WS}, s{sA} offen sc1\ns_add_u32 s{sA}, s{sA}, 32768"]
        return L_
    for tile in range(16):
        D = vr(192 + 16 * (tile & 1), 16)
        rd = wrd(tile + 1) if tile < 15 else []
        ep = epi(tile - 1) if tile else []
        for k in range(10):
            if k == 2: a("s_waitcnt lgkmcnt(0)")
            if k < 2: mf(a, D, ar(8 * tile + 4 * k, 4), vr(HF + 4 * k, 4), D if k else 0)
            else: mf(a, D, vr(WF + 32 * (tile & 1) + 4 * (k - 2), 4), vr(QF + 4 * (k - 2), 4), D)
            if k >= 2:
                for _ in range(2):
                    if rd: a(rd.pop(0))
            if ep and k >= 6 and len(ep) <= 2: a(ep.pop(0))
            elif ep and k >= 1 and len(ep) > 2:
                a(ep.pop(0)); a(ep.pop(0))
        assert not ep and not rd
    a("s_nop 12")
    for l in epi(15): a(l)
    hs(8)
    a(f"""
    s_lshl_b32 s{sA4}, s{sSeg}, 7
    s_add_u32 s{sA4}, s{sA4}, {WS_CNT}
    v_mov_b32 v220, 1
    """)
    if MINI: a(f"s_cmp_eq_u32 s{sB}, 7\ns_cselect_b32 s{sJ}, 3, s{sJ}\ns_cbranch_scc1 L_h_s7")
    a(f"s_cmp_lg_u32 s{sJ}, 0\ns_cbranch_scc1 L_h_sg")
    for r in range(32): a(f"v_accvgpr_read_b32 v{QF+r}, a{PQ+r}\nv_accvgpr_read_b32 v{VF+r}, a{PV+r}")
    for r in range(16): a(f"v_accvgpr_read_b32 v{SS+r}, a{PS+r}")
    for r in range(8): a(f"v_accvgpr_read_b32 v{HF+r}, a{PH+r}")
    a.label('L_h_sg')
    a(f"""
    v_accvgpr_read_b32 v{T}, a{PG}
    v_accvgpr_write_b32 a{PG}, v{G}
    s_xor_b32 s{sSeg}, s{sSeg}, 4
    s_add_u32 s{sJ}, s{sJ}, 1
    v_mov_b32 v{G}, v{T}
    L_h_s7:
    s_waitcnt vmcnt(0)
    s_mov_b64 exec, 1
    buffer_atomic_add v220, off, {WS}, s{sA4}
    s_mov_b64 exec, -1
    s_cmp_eq_u32 s{sJ}, 1
    s_cbranch_scc1 L_h_seg
    """)
    SELR, XS, DS_ = 216, 208, 212
    XU, DU = 224, 232
    def red_prep(SELR, DS_):
        a(f"""
        s_lshl_b32 s{sA2}, s{sH}, 5
        v_lshlrev_b32 v{T+1}, 4, v{HH}
        v_lshl_add_u32 v{T+2}, v{VN}, 10, v{T+1}
        v_add_u32 v{T+1}, s{sA2}, v{T+1}
        global_load_dwordx4 {vr(DS_,4)}, v{T+1}, {sr(P_DSK,2)}
        v_lshlrev_b32 v{MX}, 1, v{T+2}
        v_bfe_u32 v{t}, v{LANE}, 2, 1
        v_bfe_u32 v{t+1}, v{LANE}, 3, 2
        v_and_b32 v{t+2}, 3, v{LANE}
        v_lshl_add_u32 v{t+1}, v{t+1}, 2, v{t+2}
        v_cmp_eq_u32 vcc, v{t}, v{HH}
        v_mov_b32 v{t+3}, 64
        s_mov_b32 s{sA2}, 0x3f80
        v_cndmask_b32 v{t+1}, v{t+3}, v{t+1}, vcc
        v_and_b32 v{t+2}, 1, v{t+1}
        v_lshlrev_b32 v{t+2}, 4, v{t+2}
        v_lshlrev_b32 v{t+2}, v{t+2}, s{sA2}
        v_lshrrev_b32 v{t+1}, 1, v{t+1}
        """)
        for d in range(4): a(f"v_cmp_eq_u32 vcc, {d}, v{t+1}\ns_nop 1\nv_cndmask_b32 v{SELR+d}, 0, v{t+2}, vcc")
    red_prep(SELR, DS_)
    a.label('L_h_red')
    a(f"""
    s_lshl_b32 s{sA3}, s{sSeg}, 15
    s_lshl_b32 s{sA2}, s{sH}, 5
    s_add_u32 s{sA3}, s{sA3}, s{sA2}
    buffer_load_dwordx4 {vr(XS,4)}, v{T+2}, {sr(S_X,4)}, s{sA3} offen
    s_lshl_b32 s{sA4}, s{sSeg}, 7
    s_add_u32 s{sA4}, s{sA4}, {WS_CNT}
    s_lshl_b32 s{sA}, s{sSeg}, 20
    s_lshl_b32 s{sA2}, s{sH}, 15
    s_add_u32 s{sA}, s{sA}, s{sA2}
    s_add_u32 s{sA}, s{sA}, {WS_PART}
    s_lshl_b32 s{sA3}, s{sA3}, 1
    s_cmp_ge_u32 s{sSeg}, {60 if P.get('sg', 1) else 64}
    s_cbranch_scc1 L_h_rd
    """)
    a.label('L_h_wc')
    a(f"""
    buffer_load_dword v220, off, {WS}, s{sA4} sc1
    s_waitcnt vmcnt(0)
    v_cmp_gt_u32 vcc, 32, v220
    s_cbranch_vccz L_h_rd
    """)
    poll_fail(a, 'L_h_wc', P.get('slc', 2))
    a.label('L_h_rf')
    a(f"s_add_u32 s{sSpin}, s{sSpin}, 1\ns_cmp_gt_u32 s{sSpin}, {HSPIN}\ns_cbranch_scc1 L_end")
    a.label('L_h_rd')
    hs(9)
    for k in range(32):
        if k & 3 == 0: a(f"s_add_u32 s{sA2}, s{sA}, {1024*k}")
        a(f"buffer_load_dwordx4 {vr(32+4*k,4)}, v{L16}, {WS}, s{sA2} offen offset:{1024*(k&3)} sc1")
    a("s_waitcnt vmcnt(32)")
    unpack8(a, XU, XS); unpack8(a, DU, DS_)
    for r in range(8): a(f"v_mul_f32 v{XU+r}, v{XU+r}, v{DU+r}")
    a(f"v_mov_b32 v{T}, 0")
    for k in range(32):
        a(f"s_waitcnt vmcnt({31-k})")
        mf(a, vr(192, 16), vr(SELR, 4), vr(32 + 4 * k, 4), vr(192, 16) if k else 0)
        a(f"v_max3_u32 v{T}, v{T}, v{32+4*k}, v{33+4*k}\nv_max3_u32 v{T}, v{T}, v{34+4*k}, v{35+4*k}")
    a(f"v_cmp_eq_u32 vcc, -1, v{T}\ns_cbranch_vccnz L_h_rf\ns_nop 7")
    for r in range(8): a(f"v_fmac_f32 v{192+r}, v{XU+r}, v{G}")
    OF = P.get('of', '')
    a(f"""
    buffer_store_dwordx4 v[192:195], v{MX}, {sr(S_OUT,4)}, s{sA3} offen {OF}
    buffer_store_dwordx4 v[196:199], v{MX}, {sr(S_OUT,4)}, s{sA3} offen offset:16 {OF}
    v_accvgpr_read_b32 v{G}, a{PG}
    s_xor_b32 s{sSeg}, s{sSeg}, 4
    s_add_u32 s{sJ}, s{sJ}, 1
    s_cmp_eq_u32 s{sJ}, 3
    s_cbranch_scc1 L_h_red
    """)
    a.label('L_h_done')
    if P.get('stat'):
        a("s_waitcnt vmcnt(0)"); hs(10); a("s_waitcnt lgkmcnt(0)")
        for k in range(11): a(f"v_mov_b32 v{32+k}, s{74+2*k}")
        a(f"v_mov_b32 v43, s98\ns_lshl_b32 s{sA}, s{sB}, 5\ns_add_u32 s{sA}, s{sA}, s{sH}\ns_lshl_b32 s{sA}, s{sA}, 2\ns_add_u32 s{sA}, s{sA}, s{sW}\ns_lshl_b32 s{sA}, s{sA}, 6\ns_add_u32 s{sA}, s{sA}, {(49 << 20) + (512 << 10)}\ns_mov_b64 exec, 1")
        for q in range(3): a(f"buffer_store_dwordx4 {vr(32+4*q,4)}, v{L16}, {WS}, s{sA} offen offset:{16*q}")
        a("s_mov_b64 exec, -1")
    a(f"""
    s_cmp_lg_u32 s{sB}, 0
    s_cbranch_scc1 {'L_h_mini' if MINI else 'L_end'}
    s_mov_b32 s{sB}, 7
    s_waitcnt vmcnt(0)
    s_branch L_h_again
    """)
    if not MINI: return
    a.label('L_h_mini')
    a(f"""
    s_sub_u32 s{sA3}, s{sB}, 2
    s_cmp_ge_u32 s{sA3}, 4
    s_cbranch_scc1 L_end
    s_add_u32 s{sSeg}, s{sB}, 58
    s_add_u32 s{sB}, s{sB}, 6
    s_mov_b32 s{sSpin}, 0
    s_lshl_b32 s{sA}, s{sW}, 8
    """)
    AQ, AV, AH, AC_2 = 128, 160, 192, 200
    for i in range(8): a(f"v_add_u32 v{WOA+i}, s{sA}, v{WOA+i}")
    for tt in range(4):
        for k in range(8):
            for pp in range(2): a(f"ds_read_b64_tr_b16 {ar(32*tt + 4*k + 2*pp, 2)}, v{WOA + 4*(k>>2) + tt} offset:{(32*((k>>1)&1) + 8*(k&1) + 4*pp)*1024}")
    a(f"""
    v_bfe_u32 v{T}, v{LANE}, 2, 1
    v_bfe_u32 v{T+1}, v{LANE}, 3, 1
    v_and_b32 v{T+2}, 0x13, v{LANE}
    v_lshl_add_u32 v{T+2}, v{T+1}, 2, v{T+2}
    v_lshl_add_u32 v{T+2}, v{T}, 3, v{T+2}
    v_lshlrev_b32 v{T+2}, 10, v{T+2}
    s_lshl_b32 s{sA}, s{sH}, 5
    s_lshl_b32 s{sA2}, s{sW}, 17
    s_add_u32 s{sA}, s{sA}, s{sA2}
    v_lshl_add_u32 v{T+1}, v{HH}, 4, s{sA}
    v_add_u32 v{T+2}, v{T+2}, v{T+1}
    """)
    for tt in range(4):
        a(f"global_load_dwordx4 {ar(AC_2+8*tt,4)}, v{T+2}, {sr(P_CRE,2)}\nglobal_load_dwordx4 {ar(AC_2+8*tt+4,4)}, v{T+2}, {sr(P_CIM,2)}")
        if tt < 3: a(f"v_add_u32 v{T+2}, 32768, v{T+2}")
    SELM, XM = 20, 24
    a("s_waitcnt lgkmcnt(0)")
    red_prep(SELM, 244)
    a(f"""
    s_lshl_b32 s{sWoo}, s{sSeg}, 15
    s_lshl_b32 s{sA2}, s{sH}, 5
    s_add_u32 s{sWoo}, s{sWoo}, s{sA2}
    buffer_load_dwordx4 v[240:243], v{T+2}, {sr(S_X,4)}, s{sWoo} offen
    s_lshl_b32 s{sWoo}, s{sWoo}, 1
    s_lshl_b32 s{sA}, s{sW}, 4
    v_add_u32 v{VKV}, s{sA}, v{MX}
    s_cmp_lg_u32 s{sW}, 0
    s_cbranch_scc1 L_m_st
    """)
    a.label('L_m_w0')
    a(f"buffer_load_dword v{T}, off, {DBG}, 0 offset:{DBG_DN + DBG_ST} sc1\ns_waitcnt vmcnt(0)\nv_cmp_eq_u32 vcc, 0, v{T}\ns_cbranch_vccz L_m_st")
    poll_fail(a, 'L_m_w0', 16)
    a.label('L_m_st')
    a(f"""
    s_waitcnt vmcnt(0)
    s_barrier
    s_lshl_b32 s{sA2}, s{sA3}, 5
    s_add_u32 s{sA2}, s{sA2}, s{sH}
    s_mul_i32 s{sA2}, s{sA2}, {23*1024}
    s_add_u32 s{sA2}, s{sA2}, {WS_ST}
    """)
    for q in range(23):
        dst = ar(AQ + 4 * q, 4) if q < 16 else vr(SS + 4 * (q - 16), 4) if q < 20 else ar(AH + 4 * (q - 20), 4) if q < 22 else vr(248, 4)
        a(f"buffer_load_dwordx4 {dst}, v{L16}, {WS}, s{sA2} offen offset:{1024*(q&3)} sc1")
        if q & 3 == 3: a(f"s_add_u32 s{sA2}, s{sA2}, 4096")
    unpack8(a, 32, 240); unpack8(a, 40, 244)
    for r in range(8): a(f"v_mul_f32 v{32+r}, v{32+r}, v{40+r}")
    a(f"s_bitcmp1_b32 s{sW}, 0\ns_cselect_b64 vcc, -1, 0\ns_mov_b32 s{sA4}, 0x3e0293ee\ns_waitcnt vmcnt(0)\nv_mov_b32 v{G}, v248")
    for r in range(4): a(f"v_cndmask_b32 v{XM+r}, v{32+r}, v{36+r}, vcc")
    for r in range(4): a(f"v_mul_f32 v{XM+r}, v{XM+r}, v{G}")
    LX = XA
    a(f"v_max3_f32 v{MX}, v{SS}, v{SS+1}, v{SS+2}")
    for r in range(3, 15, 2): a(f"v_max3_f32 v{MX}, v{MX}, v{SS+r}, v{SS+r+1}")
    a(f"""
    v_max_f32 v{MX}, v{MX}, v{SS+15}
    v_mov_b32 v{T+1}, v{MX}
    s_nop 1
    v_permlane32_swap_b32 v{MX}, v{T+1}
    v_max_f32 v{MX}, v{MX}, v{T+1}
    v_mul_f32 v{T}, s{sA4}, v{MX}
    """)
    for r in range(16): a(f"v_fma_f32 v{SS+r}, v{SS+r}, s{sA4}, -v{T}")
    for r in range(16): a(f"v_exp_f32 v{SS+r}, v{SS+r}")
    for r in range(8): a(f"v_cvt_pk_bf16_f32 v{248+r}, v{SS+2*r}, v{SS+2*r+1}")
    a(f"v_add_f32 v{LX}, v{SS}, v{SS+1}")
    for r in range(2, 16): a(f"v_add_f32 v{LX}, v{LX}, v{SS+r}")
    for tau in range(4):
        for u in range(2): mf(a, vr(32 + 16 * tau, 16), ar(AV + 8 * tau + 4 * u, 4), vr(248 + 4 * u, 4), vr(32 + 16 * tau, 16) if u else 0)
    a("s_nop 12")
    for r in range(32): a(f"v_cvt_pk_bf16_f32 v{96+r}, v{32+2*r}, v{33+2*r}")
    YC, YX = 96, 160
    a("s_nop 1")
    for tt in range(4):
        for k in range(8): mf(a, vr(YX + 16 * tt, 16), ar(32 * tt + 4 * k, 4), vr(96 + 4 * k, 4), vr(YX + 16 * tt, 16) if k else 0)
    a("s_nop 7")
    for tt in range(4):
        for k in range(2): mf(a, vr(YC + 16 * tt, 16), ar(AC_2 + 8 * tt + 4 * k, 4), ar(AH + 4 * k, 4), vr(YC + 16 * tt, 16) if k else 0)
    PMm, LDm = 240, 244
    a(f"""
    s_lshl_b32 s{sA}, s{sSeg}, 17
    s_lshl_b32 s{sA2}, s{sH}, 12
    s_add_u32 s{sA}, s{sA}, s{sA2}
    s_add_u32 s{sA}, s{sA}, {WS_KM}
    s_cmp_eq_u32 s{sSeg}, 63
    s_cselect_b32 s{sA2}, {1 << 17}, 0
    s_sub_u32 s{sA2}, s{sA}, s{sA2}
    s_lshl_b32 s{sA3}, s{sW}, 10
    s_add_u32 s{sA}, s{sA}, s{sA3}
    s_add_u32 s{sA3}, s{sA3}, {H_K}
    v_add_u32 v{XA+1}, s{sA3}, v{L16}
    s_lshl_b32 s{sA3}, s{sW}, 12
    v_subrev_u32 v{VKM}, s{sA3}, v{VKM}
    v_subrev_u32 v{VVM}, s{sA3}, v{VVM}
    v_add_u32 v{T+2}, 2048, v{VKM}
    v_sub_f32 v{G}, 1.0, v{G}
    s_lshl_b32 s{sWo1}, s{sSeg}, 20
    s_add_u32 s{sWo1}, s{sWo1}, {WS_PART}
    s_lshl_b32 s{sA3}, s{sH}, 15
    s_add_u32 s{sWo2}, s{sWo1}, s{sA3}
    s_lshl_b32 s{sA3}, s{sW}, 13
    s_add_u32 s{sWo2}, s{sWo2}, s{sA3}
    s_add_u32 s{sSlot}, s{sWo2}, 4096
    s_lshl_b32 s{sA3}, s{sH}, 10
    s_add_u32 s{sWo1}, s{sWo1}, s{sA3}
    s_lshl_b32 s{sA3}, s{sW}, 18
    s_add_u32 s{sWo1}, s{sWo1}, s{sA3}
    """)
    for tau in range(4): a(f"v_mov_b64 {vr(VMF + 4*tau + 2, 2)}, 0")
    a(f"v_mov_b64 {vr(PMm+2,2)}, 0")
    hs(5)
    a.label('L_m_pr')
    a(f"buffer_load_dword v{T}, off, {WS}, s{sA2} offset:3072 sc1\ns_waitcnt vmcnt(0)\nv_cmp_eq_u32 vcc, -1, v{T}\ns_cbranch_vccz L_m_ld")
    poll_fail(a, 'L_m_pr', 2)
    a.label('L_m_pf')
    a(f"s_add_u32 s{sSpin}, s{sSpin}, 1\ns_cmp_gt_u32 s{sSpin}, {HSPIN}\ns_cbranch_scc1 L_end")
    a.label('L_m_ld')
    a(f"""
    buffer_load_dwordx4 {vr(LDm,4)}, v{L16}, {WS}, s{sA} offen sc1
    s_waitcnt vmcnt(0)
    ds_write_b128 v{XA+1}, {vr(LDm,4)}
    v_max3_u32 v{T}, v{LDm}, v{LDm+1}, v{LDm+2}
    v_max_u32 v{T}, v{T}, v{LDm+3}
    v_cmp_eq_u32 vcc, -1, v{T}
    s_cbranch_vccnz L_m_pf
    s_waitcnt lgkmcnt(0)
    s_barrier
    """)
    for k in range(8):
        o = ((k >> 1) & 1) * 128 + (k & 1) * 32
        a(f"ds_read2_b64 {vr(KMF + 4*k, 4)}, v{VKM if k < 4 else T+2} offset0:{o} offset1:{o+16}")
    for tau in range(4): a(f"ds_read2st64_b32 {vr(VMF + 4*tau, 2)}, v{VVM} offset0:{4*tau} offset1:{4*tau+2}")
    for k in range(8):
        a(f"s_waitcnt lgkmcnt({11-k})")
        mf(a, vr(SM, 16), vr(KMF + 4 * k, 4), ar(AQ + 4 * k, 4), vr(SM, 16) if k else 0)
    hs(6)
    a(f"""
    s_waitcnt lgkmcnt(0)
    s_nop 11
    v_max3_f32 v{T}, v{MX}, v{SM}, v{SM+1}
    v_max3_f32 v{T}, v{T}, v{SM+2}, v{SM+3}
    v_mov_b32 v{T+1}, v{T}
    s_nop 1
    v_permlane32_swap_b32 v{T}, v{T+1}
    v_max_f32 v{T}, v{T}, v{T+1}
    v_mul_f32 v{T}, s{sA4}, v{T}
    """)
    for r in [SM, SM + 1, SM + 2, SM + 3, MX]: a(f"v_fma_f32 v{r}, v{r}, s{sA4}, -v{T}")
    for r in [SM, SM + 1, SM + 2, SM + 3, MX]: a(f"v_exp_f32 v{r}, v{r}")
    a(f"""
    v_add_f32 v{T}, v{SM}, v{SM+1}
    v_add_f32 v{T+1}, v{SM+2}, v{SM+3}
    v_fmac_f32 v{T}, v{LX}, v{MX}
    v_add_f32 v{T}, v{T}, v{T+1}
    v_mov_b32 v{T+1}, v{T}
    s_nop 1
    v_permlane32_swap_b32 v{T}, v{T+1}
    v_add_f32 v{T}, v{T}, v{T+1}
    v_rcp_f32 v{T}, v{T}
    s_nop 0
    v_mul_f32 v{T}, v{T}, v{G}
    """)
    for r in range(4): a(f"v_mul_f32 v{SM+r}, v{SM+r}, v{T}")
    a(f"v_cvt_pk_bf16_f32 v{PMm}, v{SM}, v{SM+1}\nv_cvt_pk_bf16_f32 v{PMm+1}, v{SM+2}, v{SM+3}\nv_mul_f32 v{MX}, v{MX}, v{T}")
    OBm = [32, 48, 80, 224]; OF = 160
    fm = [f"v_fmac_f32 v{YC+r}, v{YX+r}, v{MX}" for r in range(64)]
    a(fm.pop(0))
    for tau in range(4):
        mf(a, vr(OBm[tau], 16), vr(VMF + 4 * tau, 4), vr(PMm, 4), 0)
        for _ in range(6): a(fm.pop(0))
    for _ in range(7): a(fm.pop(0))
    cvo = lambda tau: [f"v_cvt_pk_bf16_f32 v{OF+8*tau+r}, v{OBm[tau]+2*r}, v{OBm[tau]+2*r+1}" for r in range(8)]
    for l in cvo(0): a(l)
    fill = cvo(1) + cvo(2) + cvo(3) + fm
    a(fill.pop(0)); a(fill.pop(0))
    CTm = 32
    def epim(tt):
        L_ = [f"v_cvt_pk_bf16_f32 v{CTm+8*tt+r}, v{YC+16*tt+2*r}, v{YC+16*tt+2*r+1}\nv_min_u32 v{CTm+8*tt+r}, -2, v{CTm+8*tt+r}" for r in range(8)]
        L_ += [f"buffer_store_dwordx4 {vr(CTm+8*tt+4*u,4)}, v{L16}, {WS}, s{sWo1} offen sc1\ns_add_u32 s{sWo1}, s{sWo1}, 32768" for u in range(2)]
        return L_
    order = [(tt, k) for k in range(8) for tt in range(2)] + [(2, k) for k in range(8)] + [(3, k) for k in range(8)]
    ep = []
    for n, (tt, k) in enumerate(order):
        mf(a, vr(YC + 16 * tt, 16), ar(32 * tt + 4 * k, 4), vr(OF + 4 * k, 4), vr(YC + 16 * tt, 16))
        for _ in range(6):
            if fill: a(fill.pop(0))
        if n == 17: ep += epim(0) + epim(1)
        if n == 25: ep += epim(2)
        for _ in range(3):
            if ep: a(ep.pop(0))
    assert not fill and not ep
    a("s_nop 12")
    for l in epim(3): a(l)
    hs(8)
    a(f"s_lshl_b32 s{sA3}, s{sW}, 11\ns_add_u32 s{sA3}, s{sA3}, {H_K + 4096}\nv_add_u32 v{T+1}, s{sA3}, v{L16}")
    a(f"s_lshl_b32 s{sA3}, s{sW}, 10\ns_add_u32 s{sA3}, s{sA3}, {H_K + 4096}\nv_add_u32 v{T+2}, s{sA3}, v{L16}")
    a(f"v_and_b32 v{MX}, 7, v{LANE}\nv_lshlrev_b32 v{MX}, 10, v{MX}")
    a(f"s_waitcnt vmcnt({P.get('mdr', 0)})")
    if P.get('mg', 0): a("s_branch L_m_rd")
    a.label('L_m_rf')
    a(f"""
    s_mov_b64 exec, 0xff
    buffer_load_dword v{T}, v{MX}, {WS}, s{sWo2} offen offset:1020 sc1
    s_add_u32 s{sSpin}, s{sSpin}, 1
    s_cmp_gt_u32 s{sSpin}, {HSPIN}
    s_cbranch_scc1 L_end
    s_waitcnt vmcnt(0)
    v_cmp_eq_u32 vcc, -1, v{T}
    s_mov_b64 exec, -1
    s_cbranch_vccz L_m_rd
    s_sleep {P.get('msl', 1)}
    s_branch L_m_rf
    """)
    a.label('L_m_rd')
    hs(9)
    for k in range(8): a(f"buffer_load_dwordx4 {vr(96+4*k,4)}, v{L16}, {WS}, s{sWo2 if k < 4 else sSlot} offen offset:{1024*(k&3)} sc1")
    a(f"v_mov_b32 v{T}, 0")
    for k in range(8):
        a(f"s_waitcnt vmcnt({7-k})")
        mf(a, vr(64, 16), vr(SELM, 4), vr(96 + 4 * k, 4), vr(64, 16) if k else 0)
        a(f"v_max3_u32 v{T}, v{T}, v{96+4*k}, v{97+4*k}\nv_max3_u32 v{T}, v{T}, v{98+4*k}, v{99+4*k}")
    a(f"""
    v_cmp_eq_u32 vcc, -1, v{T}
    s_cbranch_vccnz L_m_rf
    s_nop 7
    ds_write_b128 v{T+1}, v[64:67]
    ds_write_b128 v{T+1}, v[68:71] offset:1024
    s_waitcnt lgkmcnt(0)
    s_barrier
    s_cmp_ge_u32 s{sW}, 2
    s_cbranch_scc1 L_m_fin
    """)
    for k in range(4): a(f"ds_read_b128 {vr(96+4*k,4)}, v{T+2} offset:{2048*k}")
    for k in range(4):
        a(f"s_waitcnt lgkmcnt({3-k})")
        a(f"v_pk_add_f32 {vr(XM,2)}, {vr(XM,2)}, {vr(96+4*k,2)}\nv_pk_add_f32 {vr(XM+2,2)}, {vr(XM+2,2)}, {vr(98+4*k,2)}")
    a(f"buffer_store_dwordx4 {vr(XM,4)}, v{VKV}, {sr(S_OUT,4)}, s{sWoo} offen")
    a.label('L_m_fin')
    a("s_branch L_h_done" if P.get('stat') else "s_branch L_hend" if P.get('dbgt') else "s_branch L_end")

if __name__ == '__main__':
    a = Asm(); h_once(a); helper_task(a, {})
    errs, ins = check(a.lines, 'helper')
    for e in errs: print(e)
    print(len(ins), ins[-1]['t'])
```

```python
import sys, json
from asmlib import *
import chain, helper
from chain import *
KNAME = 'gated_mix__ssm_conv_s5__memory_aug_recurrent_mem_tr__prompt_kernel'
L_EL = {'c': 16384 - 16, 'h': 163840 - 16}
JUNK = {'c': 127, 'h': 255}

def ticket(a, tag, off_s):
    a(f"""
    s_cmp_lg_u32 s{sW}, 0
    s_cbranch_scc1 L_tk_{tag}
    s_mov_b64 exec, 1
    v_mov_b32 v126, 1
    buffer_atomic_add v126, off, {sr(S_DBG,4)}, {off_s} sc0
    s_mov_b64 exec, -1
    """)
    a.label(f'L_tk_{tag}')
def ticket_get(a, tag, nyoung):
    a(f"""
    v_mov_b32 v125, {L_EL[tag]}
    s_cmp_lg_u32 s{sW}, 0
    s_cbranch_scc1 L_tg_{tag}
    s_waitcnt vmcnt({nyoung})
    s_mov_b64 exec, 1
    ds_write_b32 v125, v126
    s_mov_b64 exec, -1
    s_waitcnt lgkmcnt(0)
    """)
    a.label(f'L_tg_{tag}')
    a(f"""
    s_barrier
    ds_read_b32 v126, v125
    s_waitcnt lgkmcnt(0)
    v_readfirstlane_b32 s{sT+1}, v126
    s_cmp_ge_u32 s{sT+1}, 32
    s_cbranch_scc1 L_end
    """)
def code_pref(a, lo, hi):
    a(f"s_getpc_b64 s[60:61]")
    a.label(f'L_pc_{lo}')
    a(f"v_lshlrev_b32 v1, 7, v0\nv_min_u32 v2, {hi}-L_pc_{lo}-4, v1\nglobal_load_dword v{JUNK[lo]}, v2, s[60:61]\nv_add_u32 v1, 0x8000, v1\nv_min_u32 v2, {hi}-L_pc_{lo}-4, v1\nglobal_load_dword v{JUNK[lo]}, v2, s[60:61]")

def build_kernel(P):
    a = Asm()
    a("s_cmp_ge_u32 s2, 256\ns_cbranch_scc1 L_end")
    srd(a, S_DBG, 144, 256); srd(a, S_WS, 152, WS_SIZE)
    if P.get('stat'): a("s_memtime s[96:97]\ns_memrealtime s[98:99]")
    a(f"""
    s_getreg_b32 s{sT}, hwreg(HW_REG_XCC_ID, 0, 3)
    v_lshrrev_b32 v1, 6, v0
    s_bfe_u32 s3, s2, 0x50003
    v_readfirstlane_b32 s{sW}, v1
    s_cmp_eq_u32 s{sT}, 0
    s_cbranch_scc1 L_chain
    """)
    if P.get('nohelp'): a("s_branch L_end")
    n0 = 0
    helper.h_ptrs(a)
    a(f"s_sub_u32 s{sT}, s{sT}, 1\ns_mul_i32 s56, s{sT}, 43\ns_lshr_b32 s56, s56, 7\ns_mul_i32 s57, s56, -188\ns_lshl_b32 s56, s{sT}, 6\ns_add_u32 s57, s57, s56\ns_add_u32 s57, s57, 112\ns_waitcnt lgkmcnt(0)")
    ticket(a, 'h', "s57")
    ny = helper.h_prefetch(a, sT)
    code_pref(a, 'h', 'L_chain')
    helper.h_once(a)
    a(f"s_mov_b32 s{helper.sB}, 0")
    a.label('L_h_again')
    helper.h_static(a)
    a(f"s_cmp_lg_u32 s{helper.sB}, 0\ns_cbranch_scc0 L_h_first\ns_barrier\ns_branch L_h_task")
    a.label('L_h_first')
    ticket_get(a, 'h', ny + 2)
    a(f"""
    s_lshl_b32 s{sT}, s{sT}, 5
    s_add_u32 s{sT}, s{sT}, s{sT+1}
    s_mul_i32 s{sH}, s{sT}, 9363
    s_lshr_b32 s{sH}, s{sH}, 16
    s_mul_i32 s{sT+1}, s{sH}, 7
    s_sub_u32 s{helper.sB}, s{sT}, s{sT+1}
    s_cmp_eq_u32 s{helper.sB}, 0
    s_cselect_b32 s{helper.sMode}, 1, 0
    s_cmp_eq_u32 s{helper.sB}, 6
    s_cselect_b32 s{helper.sMode}, 2, s{helper.sMode}
    """)
    helper.helper_task(a, P)
    errs, _ = check(a.lines[n0:], 'helper')
    a.label('L_chain')
    n0 = len(a.lines)
    srd(a, S_WV, 104, 4194304); srd(a, S_WK, 96, 4194304); srd(a, S_WQ, 88, 4194304); srd(a, S_WO, 112, 4194304); srd(a, S_M0, 80, 8192)
    a("s_waitcnt lgkmcnt(0)")
    ticket(a, 'c', '0')
    a(f"""
    v_lshrrev_b32 v1, 1, v0
    v_and_b32 v2, 1, v0
    v_lshlrev_b32 v2, 7, v2
    v_lshl_add_u32 v1, v1, 13, v2
    s_lshl_b32 s{sT+2}, s3, 8
    buffer_load_dword v127, v1, {sr(S_WV,4)}, s{sT+2} offen
    s_add_u32 s{sT+2}, s{sT+2}, {128*8192 if P.get('cpf', 1) == 2 else 0x10000000}
    buffer_load_dword v127, v1, {sr(S_WV,4)}, s{sT+2} offen
    """)
    code_pref(a, 'c', 'L_end')
    ticket_get(a, 'c', 4)
    a(f"s_mov_b32 s{sH}, s{sT+1}")
    if P.get('stat'):
        for r in [70, 71] + list(range(88, 96)): a(f"s_mov_b32 s{r}, 0")
        a("s_memtime s[60:61]")
    a.lg = []; a.vm = []
    chain.PF[0] = P.get('pf', 'sc1')
    chain_first_dma(a)
    chain_setup(a)
    chain_prologue(a, P)
    e, _ = check(a.lines[n0:], 'cpro'); errs += e
    vm0 = list(a.vm)
    for w in range(4):
        n0 = len(a.lines)
        chain_prologue_w(a, P, w, vm0)
        e, _ = check(a.lines[n0:], f'cpro{w}'); errs += e
    for w in range(4):
        a(".p2align 6")
        n0 = len(a.lines)
        n1, _ = chain_step(a, P, w)
        e, ins = check(a.lines[n0:n1] * 2, f'loop{w}'); errs += e
        e, _ = check(a.lines[n1:], f'retry{w}'); errs += e
    a.label('L_last')
    n0 = len(a.lines)
    chain_last(a)
    e, _ = check(a.lines[n0:], 'last'); errs += e
    a.label('L_exit')
    if P.get('stat'):
        a("s_memtime s[66:67]\ns_memrealtime s[72:73]\ns_waitcnt lgkmcnt(0)\ns_nop 7")
        for k in range(8): a(f"v_mov_b32 v{40+k}, s{88+k}")
        a(f"""
        s_mov_b32 s93, s72
        s_mov_b32 s94, s98
        s_mov_b32 s92, s100
        s_sub_u32 s91, s72, s62
        s_sub_u32 s88, s66, s96
        s_sub_u32 s66, s66, s68
        s_mov_b32 s90, s62
        s_sub_u32 s95, s60, s96
        v_mov_b32 v24, s64
        v_mov_b32 v25, s66
        v_mov_b32 v26, s70
        v_mov_b32 v27, s71
        s_lshl_b32 s{sT}, s{sH}, 2
        s_add_u32 s{sT}, s{sT}, s{sW}
        s_lshl_b32 s{sT}, s{sT}, 7
        s_add_u32 s{sT}, s{sT}, {WS_STAMP}
        v_mov_b32 v28, 0
        buffer_store_dwordx4 v[24:27], v28, {sr(S_WS,4)}, s{sT} offen
        """)
        for k in range(8): a(f"v_mov_b32 v{32+k}, s{88+k}")
        for q in range(4): a(f"buffer_store_dwordx4 {vr(32+4*q,4)}, v28, {sr(S_WS,4)}, s{sT} offen offset:{16+16*q}")
    a.label('L_end')
    return a, errs

def full_text(P):
    a, errs = build_kernel(P)
    ref = open('gated_mix__ssm_conv_s5__memory_aug_recurrent_mem_tr__prompt.s.ref').read()
    head = ref[:ref.index('; @launch')]
    txt = head + f"""; @launch grid=(256,1,1) block=(256,1,1) lds=163840
.amdgcn_target "amdgcn-amd-amdhsa--gfx950"
.text
.globl {KNAME}
.p2align 8
.type {KNAME},@function
{KNAME}:
{a.text()}    s_endpgm
.section .rodata,"a"
.p2align 6
.amdhsa_kernel {KNAME}
  .amdhsa_next_free_vgpr 512
  .amdhsa_next_free_sgpr 102
  .amdhsa_accum_offset 256
  .amdhsa_group_segment_fixed_size 0
  .amdhsa_kernarg_size 160
  .amdhsa_user_sgpr_count 2
  .amdhsa_user_sgpr_kernarg_segment_ptr 1
  .amdhsa_system_sgpr_workgroup_id_x 1
  .amdhsa_float_denorm_mode_32 3
.end_amdhsa_kernel
"""
    return txt, errs

if __name__ == '__main__':
    P = json.loads(sys.argv[2]) if len(sys.argv) > 2 else {}
    txt, errs = full_text(P)
    for e in errs: print('HAZ', e)
    out = sys.argv[1] if len(sys.argv) > 1 else 'gated_mix__ssm_conv_s5__memory_aug_recurrent_mem_tr__prompt.s'
    open(out, 'w').write(txt)
    print('wrote', out, len(txt))
```

```python
import sys, json
from asmlib import *
import chain, helper
from chain import *
KNAME = 'gated_mix__ssm_conv_s5__memory_aug_recurrent_mem_tr__prompt_kernel'
L_EL = {'c': 16384 - 16, 'h': 163840 - 16}
JUNK = {'c': 127, 'h': 255}

def ticket(a, tag, off_s):
    a(f"""
    s_cmp_lg_u32 s{sW}, 0
    s_cbranch_scc1 L_tk_{tag}
    s_mov_b64 exec, 1
    v_mov_b32 v126, 1
    buffer_atomic_add v126, off, {sr(S_DBG,4)}, {off_s} sc0
    s_mov_b64 exec, -1
    """)
    a.label(f'L_tk_{tag}')
def ticket_get(a, tag, nyoung):
    a(f"""
    v_mov_b32 v125, {L_EL[tag]}
    s_cmp_lg_u32 s{sW}, 0
    s_cbranch_scc1 L_tg_{tag}
    s_waitcnt vmcnt({nyoung})
    s_mov_b64 exec, 1
    ds_write_b32 v125, v126
    s_mov_b64 exec, -1
    s_waitcnt lgkmcnt(0)
    """)
    a.label(f'L_tg_{tag}')
    a(f"""
    s_barrier
    ds_read_b32 v126, v125
    s_waitcnt lgkmcnt(0)
    v_readfirstlane_b32 s{sT+1}, v126
    s_cmp_ge_u32 s{sT+1}, 32
    s_cbranch_scc1 L_end
    """)
def code_pref(a, lo, hi):
    a(f"s_getpc_b64 s[60:61]")
    a.label(f'L_pc_{lo}')
    a(f"v_lshlrev_b32 v1, 7, v0\nv_min_u32 v2, {hi}-L_pc_{lo}-4, v1\nglobal_load_dword v{JUNK[lo]}, v2, s[60:61]\nv_add_u32 v1, 0x8000, v1\nv_min_u32 v2, {hi}-L_pc_{lo}-4, v1\nglobal_load_dword v{JUNK[lo]}, v2, s[60:61]")

def build_kernel(P):
    a = Asm()
    a("s_cmp_ge_u32 s2, 256\ns_cbranch_scc1 L_end")
    srd(a, S_DBG, 144, 256); srd(a, S_WS, 152, WS_SIZE)
    if P.get('stat') or P.get('dbgt'): a("s_memtime s[96:97]\ns_memrealtime s[98:99]")
    a(f"""
    s_getreg_b32 s{sT}, hwreg(HW_REG_XCC_ID, 0, 3)
    v_lshrrev_b32 v1, 6, v0
    s_bfe_u32 s3, s2, 0x50003
    v_readfirstlane_b32 s{sW}, v1
    s_cmp_eq_u32 s{sT}, 0
    s_cbranch_scc1 L_chain
    """)
    if P.get('nohelp'): a("s_branch L_end")
    n0 = 0
    helper.h_ptrs(a)
    a(f"s_sub_u32 s{sT}, s{sT}, 1\ns_mul_i32 s56, s{sT}, 43\ns_lshr_b32 s56, s56, 7\ns_mul_i32 s57, s56, -188\ns_lshl_b32 s56, s{sT}, 6\ns_add_u32 s57, s57, s56\ns_add_u32 s57, s57, 112\ns_waitcnt lgkmcnt(0)")
    ticket(a, 'h', "s57")
    ny = helper.h_prefetch(a, sT)
    code_pref(a, 'h', 'L_chain')
    helper.h_once(a)
    a(f"s_mov_b32 s{helper.sB}, 0")
    a.label('L_h_again')
    helper.h_static(a)
    a(f"s_cmp_lg_u32 s{helper.sB}, 0\ns_cbranch_scc0 L_h_first\ns_barrier\ns_branch L_h_task")
    a.label('L_h_first')
    ticket_get(a, 'h', ny + 2)
    a(f"""
    s_lshl_b32 s{sT}, s{sT}, 5
    s_add_u32 s{sT}, s{sT}, s{sT+1}
    s_mul_i32 s{sH}, s{sT}, 9363
    s_lshr_b32 s{sH}, s{sH}, 16
    s_mul_i32 s{sT+1}, s{sH}, 7
    s_sub_u32 s{helper.sB}, s{sT}, s{sT+1}
    s_cmp_eq_u32 s{helper.sB}, 0
    s_cselect_b32 s{helper.sMode}, 1, 0
    s_cmp_eq_u32 s{helper.sB}, 6
    s_cselect_b32 s{helper.sMode}, 2, s{helper.sMode}
    """)
    helper.helper_task(a, P)
    errs, _ = check(a.lines[n0:], 'helper')
    a.label('L_chain')
    n0 = len(a.lines)
    srd(a, S_WV, 104, 4194304); srd(a, S_WK, 96, 4194304); srd(a, S_WQ, 88, 4194304); srd(a, S_WO, 112, 4194304); srd(a, S_M0, 80, 8192)
    a("s_waitcnt lgkmcnt(0)")
    ticket(a, 'c', '0')
    a(f"""
    v_lshrrev_b32 v1, 1, v0
    v_and_b32 v2, 1, v0
    v_lshlrev_b32 v2, 7, v2
    v_lshl_add_u32 v1, v1, 13, v2
    s_lshl_b32 s{sT+2}, s3, 8
    buffer_load_dword v127, v1, {sr(S_WV,4)}, s{sT+2} offen
    s_add_u32 s{sT+2}, s{sT+2}, {128*8192 if P.get('cpf', 1) == 2 else 0x10000000}
    buffer_load_dword v127, v1, {sr(S_WV,4)}, s{sT+2} offen
    """)
    code_pref(a, 'c', 'L_end')
    ticket_get(a, 'c', 4)
    a(f"s_mov_b32 s{sH}, s{sT+1}")
    if P.get('stat'):
        for r in [70, 71] + list(range(88, 96)): a(f"s_mov_b32 s{r}, 0")
        a("s_memtime s[60:61]")
    a.lg = []; a.vm = []
    chain.PF[0] = P.get('pf', 'sc1')
    chain_first_dma(a)
    chain_setup(a)
    chain_prologue(a, P)
    e, _ = check(a.lines[n0:], 'cpro'); errs += e
    vm0 = list(a.vm)
    for w in range(4):
        n0 = len(a.lines)
        chain_prologue_w(a, P, w, vm0)
        e, _ = check(a.lines[n0:], f'cpro{w}'); errs += e
    for w in range(4):
        a(".p2align 6")
        n0 = len(a.lines)
        n1, _ = chain_step(a, P, w)
        e, ins = check(a.lines[n0:n1] * 2, f'loop{w}'); errs += e
        e, _ = check(a.lines[n1:], f'retry{w}'); errs += e
    a.label('L_last')
    n0 = len(a.lines)
    chain_last(a)
    e, _ = check(a.lines[n0:], 'last'); errs += e
    a.label('L_exit')
    if P.get('stat'):
        a("s_memtime s[66:67]\ns_memrealtime s[72:73]\ns_waitcnt lgkmcnt(0)\ns_nop 7")
        for k in range(8): a(f"v_mov_b32 v{40+k}, s{88+k}")
        a(f"""
        s_mov_b32 s93, s72
        s_mov_b32 s94, s98
        s_mov_b32 s92, s100
        s_sub_u32 s91, s72, s62
        s_sub_u32 s88, s66, s96
        s_sub_u32 s66, s66, s68
        s_mov_b32 s90, s62
        s_sub_u32 s95, s60, s96
        v_mov_b32 v24, s64
        v_mov_b32 v25, s66
        v_mov_b32 v26, s70
        v_mov_b32 v27, s71
        s_lshl_b32 s{sT}, s{sH}, 2
        s_add_u32 s{sT}, s{sT}, s{sW}
        s_lshl_b32 s{sT}, s{sT}, 7
        s_add_u32 s{sT}, s{sT}, {WS_STAMP}
        v_mov_b32 v28, 0
        buffer_store_dwordx4 v[24:27], v28, {sr(S_WS,4)}, s{sT} offen
        """)
        for k in range(8): a(f"v_mov_b32 v{32+k}, s{88+k}")
        for q in range(4): a(f"buffer_store_dwordx4 {vr(32+4*q,4)}, v28, {sr(S_WS,4)}, s{sT} offen offset:{16+16*q}")
    if P.get('dbgt'):
        a(f"""
        s_memtime s[66:67]
        s_memrealtime s[72:73]
        s_waitcnt lgkmcnt(0)
        s_sub_u32 s66, s66, s96
        s_sub_u32 s72, s72, s98
        s_sub_u32 s100, s100, s98
        s_mov_b64 exec, 1
        v_mov_b32 v24, s100
        v_mov_b32 v25, s72
        v_mov_b32 v26, s66
        buffer_atomic_umax v24, off, {sr(S_DBG,4)}, 0 offset:48
        buffer_atomic_umax v25, off, {sr(S_DBG,4)}, 0 offset:52
        buffer_atomic_umax v26, off, {sr(S_DBG,4)}, 0 offset:60
        s_branch L_end
        L_hend:
        s_waitcnt vmcnt(0)
        s_memrealtime s[72:73]
        s_waitcnt lgkmcnt(0)
        s_sub_u32 s72, s72, s98
        s_mov_b64 exec, 1
        v_mov_b32 v25, s72
        buffer_atomic_umax v25, off, {sr(S_DBG,4)}, 0 offset:56
        """)
    a.label('L_end')
    return a, errs

def full_text(P):
    a, errs = build_kernel(P)
    ref = open('gated_mix__ssm_conv_s5__memory_aug_recurrent_mem_tr__prompt.s.ref').read()
    head = ref[:ref.index('; @launch')]
    txt = head + f"""; @launch grid=(256,1,1) block=(256,1,1) lds=163840
.amdgcn_target "amdgcn-amd-amdhsa--gfx950"
.text
.globl {KNAME}
.p2align 8
.type {KNAME},@function
{KNAME}:
{a.text()}    s_endpgm
.section .rodata,"a"
.p2align 6
.amdhsa_kernel {KNAME}
  .amdhsa_next_free_vgpr 512
  .amdhsa_next_free_sgpr 102
  .amdhsa_accum_offset 256
  .amdhsa_group_segment_fixed_size 0
  .amdhsa_kernarg_size 160
  .amdhsa_user_sgpr_count 2
  .amdhsa_user_sgpr_kernarg_segment_ptr 1
  .amdhsa_system_sgpr_workgroup_id_x 1
  .amdhsa_float_denorm_mode_32 3
.end_amdhsa_kernel
"""
    return txt, errs

if __name__ == '__main__':
    P = json.loads(sys.argv[2]) if len(sys.argv) > 2 else {}
    txt, errs = full_text(P)
    for e in errs: print('HAZ', e)
    out = sys.argv[1] if len(sys.argv) > 1 else 'gated_mix__ssm_conv_s5__memory_aug_recurrent_mem_tr__prompt.s'
    open(out, 'w').write(txt)
    print('wrote', out, len(txt))
```

```python
from asmlib import *

WS_KV = 65536
WS_KM = (34 << 20) + 65536
WS_H1 = 48 << 20
WS_IMG = WS_H1 + (512 << 10)
WS_FL = WS_IMG + (64 << 10)
WS_DUMMY = WS_IMG + (128 << 10)
WS_STAMP = 49 << 20
WS_SIZE = 268435456
DBG_XCNT = 0
DBG_CBAR = 4
DBG_KV0 = 12
DBG_KVC = 16
DBG_DN = 128
L_MEM, L_S, L_KV, L_W = 0, 8192, 16384, 32768
L_O = L_MEM
L_SM = L_S + 1024
L_MISC = L_S + 5120
S_WS, S_WQ, S_WK, S_WV, S_WO, S_DBG, S_M0 = 4, 8, 12, 16, 20, 24, 28
sH, sW, sS = 32, 33, 34
sKV, sKM, sH1l, sTAG, sIMl = 35, 36, 37, 38, 39
sH1 = 40
sIMw, sIMr, sFL, sSPIN = 44, 45, 46, 47
sIML, sKMv = 59, 58
sONE, sMLO, sFLn, sFG, sFM = 84, 86, 3, 2, 54
sC = 48
sT = 50
IDX, L16, A_W, A_SMW, NEG1, A_O, A_H1S, A_IMS = 0, 1, 2, 3, 4, 5, 6, 7
A_OW, FLV, HZ = 8, 9, 10
F, SEL, ONE = 12, 16, 20
MA = 24
Q0, K0, Q1, K1, V0, V1 = 56, 60, 64, 68, 72, 76
KX, VX, ST = 80, 88, 96
RW = 128
SPIN_MAX = 200000

QK_A = {1: 0, 2: 1, 3: 2, 5: 3, 6: 4, 7: 5}
def wqk_reg(sig, u):
    if sig in (0, 4): return ('v', ST + 8 * u)
    return ('a', 32 * QK_A[sig] + 8 * u)
def wv_reg(sig, tau):
    if sig < 4: return ('a', 192 + 8 * (2 * sig + tau))
    return ('v', RW + 8 * (2 * (sig - 4) + tau))
def wo_reg(T, k2):
    if T < 2: return ('v', RW + 64 + 8 * (4 * T + k2))
    return ('v', (ST if T == 2 else MA) + 8 * k2)
def R8(r): return vr(r[1], 8, r[0])
def smf(a, D, A, B): a(f"v_smfmac_f32_16x16x64_bf16 {vr(D,4)}, {vr(A,4)}, {R8(B)}, v{IDX}")
def lw_qk(sig, u): return 8192 * (sig >> 2) + 4096 * (u & 1) + 2048 * (u >> 1)
def lw_wo(T, k2): return 16384 + 2048 * (4 * (T - 2) + k2)
def nops(a, n):
    while n > 0:
        k = min(n, 16); a(f"s_nop {k-1}"); n -= k

def srd(a, s, koff, size):
    a(f"s_load_dwordx2 {sr(s,2)}, s[0:1], {koff}")
    a(f"s_mov_b32 s{s+2}, {size}\ns_mov_b32 s{s+3}, 0x20000")

def chain_setup(a):
    t = 96
    lane, i, g, g1, g0, hi, i3, i2 = t + 1, t + 2, t + 3, t + 6, t + 7, t + 8, t + 9, t + 10
    x, y, z = t + 5, t + 12, t + 13
    a(f"""
    v_and_b32 v{lane}, 63, v0
    v_and_b32 v{i}, 15, v{lane}
    v_lshrrev_b32 v{g}, 4, v{lane}
    v_lshlrev_b32 v{L16}, 4, v{lane}
    v_lshrrev_b32 v{g1}, 1, v{g}
    v_and_b32 v{g0}, 1, v{g}
    v_lshrrev_b32 v{hi}, 3, v{i}
    v_and_b32 v{i3}, 3, v{i}
    v_lshrrev_b32 v{i2}, 2, v{i}
    s_lshl_b32 s{sT+1}, s{sW}, 15
    s_add_u32 s{sT+1}, s{sT+1}, {L_W}
    v_add_u32 v{A_W}, s{sT+1}, v{L16}
    v_lshl_add_u32 v{y}, v{hi}, 1, v{g0}
    v_and_b32 v{x}, 7, v{i}
    v_lshl_add_u32 v{x}, v{y}, 4, v{x}
    v_lshlrev_b32 v{x}, 4, v{x}
    v_add_u32 v{y}, s{sW}, v{y}
    v_and_b32 v{y}, 3, v{y}
    v_lshl_add_u32 v{x}, v{y}, 2, v{x}
    v_xor_b32 v{y}, 1, v{g1}
    v_lshl_add_u32 v{x}, v{y}, 11, v{x}
    v_add_u32 v{A_SMW}, {L_SM}, v{x}
    v_mov_b32 v{HZ}, 0x3f803f80
    v_mov_b32 v{HZ+1}, 0
    v_mov_b32 v{NEG1}, -1
    v_and_b32 v{A_O}, 0x37f, v{L16}
    v_lshlrev_b32 v{y}, 7, v{g0}
    v_or_b32 v{A_O}, v{A_O}, v{y}
    v_xor_b32 v{A_OW}, v{L16}, v{y}
    v_mov_b32 v{FLV}, 0
    v_cmp_lt_u32 vcc, 7, v{i}
    v_mov_b32 v{y}, 0x4444
    v_mov_b32 v{z}, 0xeeee
    v_cndmask_b32 v{t+11}, v{y}, v{z}, vcc
    """)
    a(f"""
    v_lshlrev_b32 v{x}, 2, v{g1}
    v_lshl_add_u32 v{x}, v{hi}, 1, v{x}
    v_add_u32 v{x}, v{x}, v{g0}
    v_lshlrev_b32 v{x}, 11, v{x}
    v_and_b32 v{y}, 7, v{i}
    v_lshl_add_u32 v{x}, v{y}, 3, v{x}
    s_lshl_b32 s{sT+2}, s{sW}, 14
    s_lshl_b32 s{sT+3}, s{sH}, 6
    s_add_u32 s{sT+2}, s{sT+2}, s{sT+3}
    v_add_u32 v{A_H1S}, s{sT+2}, v{x}
    """)
    a(f"""
    s_lshl_b32 s{sT+2}, s{sW}, 5
    s_add_u32 s{sT+2}, s{sT+2}, s{sH}
    s_lshl_b32 s{sT+2}, s{sT+2}, 6
    v_lshlrev_b32 v{x}, 4, v{g}
    v_lshl_add_u32 v{x}, v{i}, 2, v{x}
    v_add_u32 v{x}, s{sT+2}, v{x}
    v_cmp_gt_u32 vcc, 4, v{i}
    v_bfrev_b32 v{z}, 1
    s_nop 0
    v_cndmask_b32 v{A_IMS}, v{z}, v{x}, vcc
    """)
    a(f"""
    v_lshl_add_u32 v{x}, v{hi}, 2, v{i3}
    v_and_b32 v{y}, 1, v{i2}
    v_cmp_eq_u32 vcc, v{y}, v{g0}
    v_mov_b32 v{z}, 64
    s_nop 0
    v_cndmask_b32 v{x}, v{z}, v{x}, vcc
    v_and_b32 v{y}, 1, v{i}
    v_lshl_add_u32 v{t+14}, v{y}, 2, v{i2}
    v_cmp_gt_u32 vcc, 2, v{i3}
    s_mov_b32 s{sT+3}, 0x3f80
    s_nop 0
    v_cndmask_b32 v{t+14}, v{z}, v{t+14}, vcc
    """)
    for base, pos in ((F, x), (SEL, t + 14)):
        a(f"""
        v_and_b32 v{t+15}, 1, v{pos}
        v_lshlrev_b32 v{t+15}, 4, v{t+15}
        v_lshlrev_b32 v{t+15}, v{t+15}, s{sT+3}
        v_lshrrev_b32 v{t+16}, 1, v{pos}
        """)
        for d in range(4):
            a(f"""
            v_cmp_eq_u32 vcc, {d}, v{t+16}
            s_nop 1
            v_cndmask_b32 v{base+d}, 0, v{t+15}, vcc
            """)
    a(f"""
    v_and_b32 v{t+16}, 1, v{i2}
    v_lshl_add_u32 v{t+14}, v{g0}, 2, v{t+16}
    v_xor_b32 v{t+16}, s{sW}, v{t+16}
    v_lshlrev_b32 v{t+16}, 6, v{t+16}
    v_add_u32 v{t+16}, {L_W}, v{t+16}
    v_lshl_add_u32 v{t+15}, v{hi}, 3, v{t+14}
    v_lshl_add_u32 v{t+15}, v{t+15}, 8, v{t+16}
    v_lshl_add_u32 v{t+15}, v{g1}, 15, v{t+15}
    v_lshl_add_u32 v58, v{i3}, 4, v{t+15}
    v_add_u32 v61, 0x10000, v58
    v_lshl_add_u32 v{t+15}, v{g1}, 3, v{t+14}
    v_lshl_add_u32 v{t+15}, v{t+15}, 8, v{t+16}
    v_lshl_add_u32 v{t+15}, v{hi}, 5, v{t+15}
    v_lshl_add_u32 v59, v{i3}, 3, v{t+15}
    v_add_u32 v62, 0x10000, v59
    v_and_b32 v{x}, 7, v{i}
    v_lshlrev_b32 v{x}, 10, v{x}
    v_lshl_add_u32 v{x}, v{g}, 5, v{x}
    v_lshl_add_u32 v{x}, v{hi}, 4, v{x}
    s_lshl_b32 s{sT+2}, s{sW}, 7
    v_add_u32 v60, s{sT+2}, v{x}
    v_mov_b32 v{IDX}, v{t+11}
    """)
    for k in range(4): a(f"v_mov_b32 v{64+k}, -1")

def chain_prologue(a, P):
    WS = sr(S_WS, 4)
    a(f"""
    s_mov_b32 s{sS}, 0
    s_lshl_b32 s{sT}, s{sH}, 2
    s_add_u32 s{sT}, s{sT}, s{sW}
    s_lshl_b32 s{sKV}, s{sT}, 12
    s_add_u32 s{sKV}, s{sKV}, {WS_KV}
    s_lshl_b32 s{sKM}, s{sT}, 10
    s_mov_b32 s{sFLn}, {DBG_DN + DBG_KV0}
    s_add_u32 s{sKM}, s{sKM}, {WS_KM}
    s_mov_b32 s{sH1}, {WS_H1}
    s_mov_b32 s{sH1+1}, {WS_H1 + 65536}
    s_mov_b32 s{sH1+2}, {WS_H1 + 2*65536}
    s_mov_b32 s{sH1+3}, {WS_H1 + 3*65536}
    s_lshl_b32 s{sT}, s{sW}, 5
    s_add_u32 s{sT}, s{sT}, s{sH}
    s_lshl_b32 s{sT}, s{sT}, 11
    s_add_u32 s{sH1l}, s{sT}, {WS_H1}
    s_mov_b32 s{sTAG}, 0
    s_mov_b32 s{sIMw}, {WS_IMG + 8192}
    s_mov_b32 s{sIMr}, {WS_IMG + 16384}
    s_mov_b32 s{sIMl}, {WS_IMG}
    s_mov_b32 s{sIML}, {WS_IMG}
    s_mov_b32 s{sKMv}, 0x70000000
    s_and_b32 s{sT}, s{sW}, 1
    s_lshl_b32 s{sT}, s{sT}, 7
    s_lshl2_add_u32 s{sT+1}, s{sH}, s{sT}
    s_add_u32 s{sT+1}, s{sT+1}, {WS_FL}
    s_and_b32 s{sT}, s{sH}, 1
    s_lshl_b32 s{sT}, s{sT}, 7
    s_add_u32 s{sT}, s{sT}, {WS_FL}
    s_cmp_eq_u32 s{sW}, 3
    s_cselect_b32 s{sFG}, s{sT}, s{sT+1}
    s_mov_b32 s{sONE}, 0x3f803f80
    s_mov_b32 s{sONE+1}, 0x3f803f80
    s_mov_b32 s{sMLO}, 0x00ff00ff
    s_mov_b32 s{sMLO+1}, 0x00ff00ff
    s_mov_b32 s{sC}, 0x3e0293ee
    s_mov_b32 s{sC+1}, 0x3e0293ee
    """)
    a(f"""
    buffer_store_dwordx4 v[64:67], v{L16}, {WS}, s{sH1l} offen
    buffer_store_dwordx4 v[64:67], v{L16}, {WS}, s{sH1l} offen offset:1024
    buffer_store_dword v64, v{A_IMS}, {WS}, s{sIMw} offen
    buffer_store_dword v64, off, {WS}, s{sT+1}
    buffer_load_dwordx4 {vr(MA,4)}, v60, {sr(S_M0,4)}, 0 offen
    buffer_load_dwordx4 {vr(MA+16,4)}, v60, {sr(S_M0,4)}, 0 offen offset:512
    """, vm='init')
    a(f"""
    s_barrier
    """) if False else None
    for w in range(3): a(f"s_cmp_eq_u32 s{sW}, {w}\ns_cbranch_scc1 L_cp_{w}")
    a("s_branch L_cp_3")

UNITS = []; SLOT = {}; ISSUE = {}
def plan_units(P):
    L = [(m, k) for m in P.get('mord', 'vkq') for k in range(8)]
    if P.get('ilv', 0):
        U = []
        for i in range(8): U += L[3 * i:3 * i + 3] + [('o', i)]
    else: U = L + [('o', u) for u in range(8)]
    UNITS[:] = U; SLOT.clear(); ISSUE.clear()
    fin = lambda u: U[u][0] == 'o' and U[u][1] >= 4
    free = list(range(8)); nxt = 0
    for it in range(-1, 32):
        if it >= 1 and not fin(it - 1): free.append(SLOT[it - 1])
        ISSUE[it] = []
        if it == 0: continue
        while nxt < 32:
            if fin(nxt):
                if U[nxt][1] not in free: break
                s = U[nxt][1]
            else:
                soon = [U[v][1] for v in range(nxt + 1, min(nxt + 8, 32)) if fin(v)]
                c = [x for x in free if x not in soon]
                if not c: break
                s = c[0]
            free.remove(s); SLOT[nxt] = s; ISSUE[it].append(nxt); nxt += 1
    assert nxt == 32
sLB, sO1, sHB, sHO = sT + 4, sT + 5, sT + 6, sT + 7
PF = ['']
def issue_unit(a, u):
    kind, x = UNITS[u]
    if kind == 'o': base, off, step, voff, S = sHO, 64 * (x & 1) * 1024 + 256 * (x >> 1), 4 * 1024, 57, S_WO
    else: base, off, step, voff, S = sHB, x << 19, 4 * 8192, 56, {'q': S_WQ, 'k': S_WK, 'v': S_WV}[kind]
    for i in range(4):
        a(f"s_add_u32 m0, s{sLB}, {SLOT[u] * 4096 + i * 1024}")
        a(f"s_add_u32 s{sO1}, s{base}, {off + i * step}")
        a(f"buffer_load_dwordx4 v{voff}, {sr(S,4)}, s{sO1} offen {PF[0]} lds", vm=('u', u))

def chain_first_dma(a):
    a(f"""
    v_bfe_u32 v96, v0, 4, 2
    v_and_b32 v97, 15, v0
    v_bfe_u32 v98, v0, 4, 1
    v_lshlrev_b32 v98, 2, v98
    v_xor_b32 v97, v97, v98
    v_lshlrev_b32 v97, 4, v97
    v_lshl_add_u32 v56, v96, 13, v97
    v_lshl_add_u32 v57, v96, 10, v97
    s_lshl_b32 s{sLB}, s{sW}, 15
    s_add_u32 s{sLB}, s{sLB}, {L_W}
    s_lshl_b32 s{sHB}, s{sH}, 8
    s_lshl_b32 s{sT+2}, s{sW}, 17
    s_add_u32 s{sHB}, s{sHB}, s{sT+2}
    s_lshl_b32 s{sHO}, s{sH}, 17
    s_lshl_b32 s{sT+2}, s{sW}, 14
    s_add_u32 s{sHO}, s{sHO}, s{sT+2}
    """)
    for u in ISSUE[-1]: issue_unit(a, u)

def chain_prologue_w(a, P, w, vm0):
    WS = sr(S_WS, 4)
    a.label(f'L_cp_{w}')
    a.vm = list(vm0); a.lg = []
    if not P.get('sync'): a(f"s_and_b32 s{sFG}, s{sH}, 3\ns_cmp_eq_u32 s{sH}, 31\ns_cselect_b32 s{sFG}, 1, s{sFG}")
    a(f"s_getpc_b64 s[82:83]")
    a.label(f'L_cp0_{w}')
    a(f"v_lshlrev_b32 v39, 3, v{L16}\nv_min_u32 v39, L_cpe_{w}-L_cp0_{w}, v39")
    PK4 = 64
    def wb(u):
        for i in range(4): a(f"ds_write_b128 v{A_W}, {vr(28 + 16*(i>>1) + 4*(i&1),4)} offset:{SLOT[u] * 4096 + 1024*i}")
    for u in range(32):
        kind, x = UNITS[u]
        a.wait(vm=('u', u))
        fw = P.get('fw', 0)
        if fw and ISSUE[u] and u <= P.get('fwe', 20):
            a(f"s_cmp_eq_u32 s{sFG}, 1\ns_cbranch_scc1 L_fw_{w}_{u}\ns_waitcnt vmcnt({max(len(a.vm) - fw, 0)})")
            a.label(f'L_fw_{w}_{u}')
        a("s_barrier")
        for v in ISSUE[u]: issue_unit(a, v)
        if P.get('ct', 0) and u % P.get('ct', 0) == 0 and u < 28: a("global_load_dword v36, v39, s[82:83] sc1", vm='c')
        if u == 9:
            for r in list(range(MA, MA + 4)) + list(range(MA + 16, MA + 20)): a(f"v_min_u32 v{r}, -2, v{r}")
            if w == 0:
                a(f"s_mov_b64 exec, 1\nv_mov_b32 v38, 1")
                a(f"buffer_atomic_add v38, off, {sr(S_DBG,4)}, 0 offset:{DBG_CBAR + (DBG_DN if P.get('dn0', 0) else 0)}", vm='at')
                a("s_mov_b64 exec, -1")
        if P.get('nb') and u == P['nb']:
            a(f"s_add_u32 s{sT+2}, s{sH}, 1\ns_and_b32 s{sT+2}, s{sT+2}, 31\ns_lshl_b32 s{sT+2}, s{sT+2}, 17\ns_add_u32 s{sT+2}, s{sT+2}, {32768*w + (0 if P.get('nba') else 512)}")
            if P.get('nba'):
                a(f"v_lshlrev_b32 v63, 3, v{L16}")
                for k in range(4): a(f"buffer_load_dword v36, v63, {sr(S_WO,4)}, s{sT+2} offen sc1\ns_add_u32 s{sT+2}, s{sT+2}, 8192", vm='w')
            else:
                a(f"v_lshlrev_b32 v63, 3, v{L16}\nv_and_b32 v37, 0x180, v63\nv_and_b32 v63, 0x1e00, v63\nv_lshl_add_u32 v63, v63, 1, v37")
                for k in range(2): a(f"buffer_load_dword v36, v63, {sr(S_WO,4)}, s{sT+2} offen sc1\ns_add_u32 s{sT+2}, s{sT+2}, 16384", vm='w')
        if u == P.get('uw', 25):
            a(f"s_getpc_b64 {sr(sT,2)}")
            a.label(f'L_cpc_{w}')
            a(f"v_lshlrev_b32 v63, 3, v{L16}\ns_mov_b32 s{sT+2}, {WS_IMG + 8192*w}")
            a(f"buffer_load_dword v36, v63, {WS}, s{sT+2} offen sc1", vm='w')
            a(f"v_and_b32 v37, 0x780, v63\nv_min_u32 v63, L_step_{w}-L_top_{w}, v63\nv_add_u32 v63, L_top_{w}-L_cpc_{w}, v63")
            a(f"buffer_load_dword v36, v37, {WS}, s{sH1l} offen sc1", vm='w')
            a(f"global_load_dword v36, v63, {sr(sT,2)}", vm='w')
            if P.get('tlb', 1) and w < 2:
                a(f"s_mov_b32 s{sT+2}, {(WS_KV if w == 0 else WS_KM) - 4096}")
                a(f"buffer_load_dword v36, off, {WS}, s{sT+2} sc1", vm='w')
        fin = lambda v: UNITS[v][0] == 'o' and UNITS[v][1] >= 4
        if u == 1 + max(v for v in range(32) if not fin(v)):
            for sg, src in ((0, ST), (4, PK4)):
                for uu in range(4):
                    for hf in range(2): a(f"ds_write_b128 v{A_W}, {vr(src + 8*uu + 4*hf,4)} offset:{lw_qk(sg, uu) + 1024*hf}")
                a.wait(lg='all')
        fl0 = f"buffer_load_dword v36, off, {sr(S_DBG,4)}, 0 offset:{DBG_CBAR + 64} sc1\nbuffer_load_dword v37, off, {sr(S_DBG,4)}, 0 offset:{DBG_KV0 + (DBG_DN if P.get('dn0', 0) else 0)} sc1"
        if P.get('dn0', 0): fl0 = fl0.replace(f"offset:{DBG_CBAR + 64} ", f"offset:{DBG_CBAR + DBG_DN} ")
        else: fl0 = fl0.replace(f"offset:{DBG_CBAR + 64} ", f"offset:{DBG_CBAR} ")
        if u == 30 and P.get('dlyc'): a(f"s_sleep {P['dlyc']}")
        if u == 30 and w == 0: a(fl0, vm='f0')
        if u and fin(u - 1): wb(u - 1)
        base = SLOT[u] * 4096
        sig = ((x - w) & 3) | (x & 4)
        for half in range(2):
            if fin(u): k, dst = 'v', 28 + 16 * half
            elif kind in 'qk':
                uu = 2 * half + (kind == 'k')
                k, dst = ('v', PK4 + 8 * uu) if sig == 4 else wqk_reg(sig, uu)
            elif kind == 'v': k, dst = wv_reg(sig, half)
            else: k, dst = wo_reg(x >> 1, 2 * (x & 1) + half)
            for p in range(4):
                if kind == 'o': off, ad = base + 32768 * (p >> 1) + 512 * (p & 1), (59, 62)[half]
                else: off, ad = base + 512 * (p & 1) + 8 * half, (58, 61)[p >> 1]
                a(f"ds_read_b64_tr_b16 {vr(dst + 2*p, 2, k)}, v{ad} offset:{off}")
        a.wait(lg='all')
    a("s_barrier")
    wb(31)
    a.wait(lg='all')
    if P.get('stat') or P.get('dbgt'): a("s_memrealtime s[100:101]")
    a(f"s_mov_b32 s{sSPIN}, 0\ns_mov_b32 m0, {L_KV + 4096*w}")
    if w == 0:
        a("s_branch L_c_w1")
        a.label(f'L_c_w0')
        a(f"""
        s_add_u32 s{sSPIN}, s{sSPIN}, 1
        s_cmp_gt_u32 s{sSPIN}, {SPIN_MAX}
        s_cbranch_scc1 L_exit
        s_sleep {P.get('slp0', 4)}
        """)
        a(fl0)
        a.label('L_c_w1')
        a.wait(vm='all')
        a(f"""
        v_lshrrev_b32 v37, {0 if P.get('dn0', 0) else 1}, v37
        v_min_u32 v36, v36, v37
        v_cmp_gt_u32 vcc, 32, v36
        s_cbranch_vccnz L_c_w0
        """)
    a("s_barrier")
    for k in range(4): a(f"buffer_load_dwordx4 {vr(KX+4*k,4)}, v{L16}, {WS}, s{sKV} offen offset:{1024*k} sc1")
    a(f"s_add_u32 s{sKV}, s{sKV}, 0x80000\ns_mov_b32 s{sFL}, {DBG_DN + DBG_KV0}\ns_mov_b64 {sr(sFM,2)}, 0\nv_mov_b32 v{FLV}, 32\ns_mov_b32 s{sSPIN}, 0")
    for l in idle_work():
        if not l.startswith('ds_'): a(l)
    a.wait(lg='all')
    if P.get('stat'): a("s_memrealtime s[64:65]\ns_waitcnt lgkmcnt(0)")
    a.label(f'L_cpe_{w}')
    a(f"s_branch L_step_{w}")

def idle_work():
    L = [f"ds_read_b128 {vr(ST + 8*u + 4*hf, 4)}, v{A_W} offset:{lw_qk(0, u) + 1024*hf}" for u in range(4) for hf in range(2)]
    L += [f"v_mov_b64 {vr(Q0+i,2)}, 0" for i in range(0, 24, 2)]
    return L

DEF = dict(b1=3, nL=10, nB2=5, nv1=3, nv2=0, nvA=5, sv=9, so=1, nr4=3, earlyL=0, dH1=[38, 50, 76, 90], dE=[24, 16, 0, 0], dwf=0, cs=0, g2v=0, dup=0, c1=0, lb1=0, svp=[-1, 0, 2, 4], dp=None, sync=0, fpos=-2, pp=[-1, 1, 3, 5, 7, 11], pE=20, inGap=[0, 0, 0, 1], nPre=[0, 0, 0, 0],
           dS=[-1, -1], kw=0, vmPos=None, mx=1, g2w=1, nd=0, ad=1, nrc=4, dma0=14, nE=3, dT=0, stg=1)
def pack_km():
    X = Q0
    L = [f"v_mov_b32_dpp v{X+2}, v{X} row_ror:8 row_mask:0xf bank_mask:0x3", f"v_mov_b32_dpp v{X+3}, v{X+1} row_ror:8 row_mask:0xf bank_mask:0x3",
         f"v_min_u32 v{ONE}, -2, v{X+2}", f"v_min_u32 v{ONE+1}, -2, v{X+3}"]
    for t in range(2):
        p = V0 + 2 * t
        L += [f"v_lshlrev_b32 v{X}, 16, v{p}", f"v_lshlrev_b32 v{X+1}, 16, v{p+1}", f"v_and_b32 v{p}, 0xffff0000, v{p}", f"v_and_b32 v{p+1}, 0xffff0000, v{p+1}",
              f"v_add_f32 v{X}, v{X}, v{X+1}", f"v_add_f32 v{X+1}, v{p}, v{p+1}", f"v_cvt_pk_bf16_f32 v{X}, v{X}, v{X+1}", f"v_min_u32 v{ONE+2+t}, -2, v{X}"]
    return L
def sync_tmp(P, w):
    if not P['sync']: return []
    if w == 3: return [f"v_bfe_u32 v{MA+24}, v{L16}, 2, 7"]
    if w < 2: return [f"v_mov_b32 v{MA+24}, s{sS}"]
    return []
LASTV = []
def chain_last(a):
    for q in LASTV: smf(a, *q)
    a("s_nop 7")
    for d, s0 in ((V0, V0), (V0 + 1, V0 + 2), (V0 + 2, V1), (V0 + 3, V1 + 2)): a(f"v_cvt_pk_bf16_f32 v{d}, v{s0}, v{s0+1}")
    L = pack_km()
    for l in L[:2]: a(l)
    a(f"v_permlane32_swap_b32 v{V0}, v{V0+1}\nv_permlane32_swap_b32 v{V0+2}, v{V0+3}")
    for l in L[2:]: a(l)
    a(f"buffer_store_dwordx4 {vr(ONE,4)}, v{L16}, {sr(S_WS,4)}, s{sKM} offen sc1")
LISTING = {}
def chain_step(a, P0, w):
    P = dict(DEF); P.update(P0)
    allow = P.get('stamps', [])
    used = []
    def stamp(k):
        if k in allow:
            a(f"s_memtime s[{72+2*len(used)}:{73+2*len(used)}]"); used.append(k)
    WS = sr(S_WS, 4)
    acc = [Q0, K0, Q1, K1]
    lb = lambda s: f"L_{s}_{w}"
    own = 2048 * w
    oth = lambda q: 2048 * ((w + q) & 3)
    T0 = MA + 28
    ldE = f"buffer_load_dwordx4 {vr(MA,4)}, v{L16}, {WS}, s{sIMl} offen sc1"
    ldL = f"buffer_load_dwordx4 {vr(MA+16,4)}, v{L16}, {WS}, s{sIML} offen sc1"
    chkE = f"v_max3_u32 v{T0}, v{MA}, v{MA+1}, v{MA+2}\nv_max_u32 v{T0}, v{T0}, v{MA+3}\nv_cmp_eq_u32 vcc, -1, v{T0}"
    chkL = [f"v_max3_u32 v{T0}, v{MA+16}, v{MA+17}, v{MA+18}", f"v_max_u32 v{T0}, v{T0}, v{MA+19}", f"v_cmp_eq_u32 vcc, -1, v{T0}"]
    if P['c1']:
        chkE = f"v_cmp_eq_u32 vcc, -1, v{MA+3}"
        chkL = ["s_nop 0", "s_nop 0", f"v_cmp_eq_u32 vcc, -1, v{MA+19}"]
    ldF = f"buffer_load_dword v{FLV}, off, {sr(S_DBG,4)}, s{sFL} sc1"
    cvF = [f"v_subrev_u32 v{FLV}, 32, v{FLV}", f"v_ashrrev_i32 v{FLV}, 31, v{FLV}"]
    dwE = f"ds_write_b128 v{L16}, {vr(MA,4)} offset:{L_MEM + own}"
    dwL = f"ds_write_b128 v{L16}, {vr(MA+16,4)} offset:{L_MEM + own + 1024}"
    cv = lambda d, s0: f"v_cvt_pk_bf16_f32 v{d}, v{s0}, v{s0+1}"
    z2 = lambda r: f"v_mov_b64 {vr(r,2)}, 0"
    ror8 = lambda d, s0, bm: f"v_mov_b32_dpp v{d}, v{s0} row_ror:8 row_mask:0xf bank_mask:{bm}"
    mf32 = lambda D, A, B, C: a(f"v_mfma_f32_16x16x32_bf16 {vr(D,4)}, {vr(A,4)}, {vr(B,4)}, {vr(C,4) if C is not None else 0}")
    mf16 = lambda D, A, B, C: a(f"v_mfma_f32_16x16x16_bf16 {vr(D,4)}, {vr(A,2)}, {vr(B,2)}, {vr(C,4) if C is not None else 0}")
    def wdelay(n):
        while P['kw'] and n >= 8:
            mf32(MA + 24, F, F, None); a("s_nop 2"); mf32(MA + 4, F, F, None); a("s_nop 2"); n -= 8
        nops(a, n)
    a.label(lb('top'))
    a("s_waitcnt vmcnt(0)")
    a.vm = []; a.lg = []
    stamp(0)
    EB = MA + 20 if P['dwf'] else MA
    ldB = ldE.replace(vr(MA, 4), vr(EB, 4))
    if P['dwf']:
        a(dwE, lg='we'); a(chkE); a(ldL, vm='L2')
        a(f"s_cbranch_vccnz {lb('f1')}")
    else:
        if P['earlyL']: a(ldL, vm='L2')
        a(chkE)
        a(dwE, lg='we')
        a(f"s_cbranch_vccnz {lb('f1')}")
        if not P['earlyL']: a(ldL, vm='L2')
    a.label(lb('go'))
    igo = len(a.lines)
    stamp(14)
    KVF = P.get('kvf', 'sc1')
    dma = [f"buffer_load_dwordx4 v{L16}, {WS}, s{sKV} offen offset:{1024*k} {KVF} lds" for k in range(4)]
    mrd = lambda s: f"ds_read_b128 {vr(MA+4*s,4)}, v{L16} offset:{L_MEM + oth(s & 3) + 1024*(s>>2)}"
    r2 = [f"ds_read_b128 {vr(ST + 8*u + 4*hf, 4)}, v{A_W} offset:{lw_qk(4, u) + 1024*hf}" for u in range(4) for hf in range(2)]
    r3 = [f"ds_read_b128 {vr(ST + 8*k + 4*hf, 4)}, v{A_W} offset:{lw_wo(2,k) + 1024*hf}" for k in range(4) for hf in range(2)]
    vq = [(V0 + 4 * tau, MA + 4 * s, wv_reg(s, tau)) for s in range(8) for tau in range(2)]
    qk = lambda s: [(acc[u], MA + 4 * s, wqk_reg(s, u)) for u in range(4)]
    sA = qk(0) + [vq.pop(0), vq.pop(0)]
    stV = f"buffer_store_dwordx4 {vr(ONE,4)}, v{L16}, {WS}, s{sKMv} offen sc1"
    for k in range(P['b1']):
        smf(a, *sA.pop(0))
        if k == P['sv']: a(stV, vm='km')
    a.wait(lg='all')
    a("s_barrier")
    stamp(1)
    a(mrd(1), lg=('ma', 1)); a(mrd(2), lg=('ma', 2))
    smf(a, *sA.pop(0))
    a(mrd(3), lg=('ma', 3))
    sync = P['sync']; TS = MA + 24
    prober = sync and w == 3; poster = sync and w < 2
    probe = f"buffer_load_dword v{FLV}, v{TS}, {WS}, s{sFG} offen sc1"
    post = f"s_mov_b64 exec, 1\nbuffer_store_dword v{TS}, off, {WS}, s{sFG}\ns_mov_b64 exec, -1"
    pp = list(P['pp']); npr = len(pp)
    def syncops(n):
        c = 0
        if poster and n == P['fpos']: a(post, vm='fg'); c = 2
        if prober and n in pp: a(probe, vm=('P', pp.index(n))); c = 1
        return c
    svp = P['svp'][w]
    if P['sv'] == 9 and svp < 0: a(stV, vm='km')
    syncops(-len(sA) - 1)
    while sA:
        smf(a, *sA.pop(0)); syncops(-len(sA) - 1)
    dupA = a.lines[igo:]
    a.label(lb('go2'))
    seq = qk(1) + qk(2) + qk(3) + [vq.pop(0) for _ in range(P['nv1'])]
    i4 = len(seq); seq += qk(4) + [vq.pop(0) for _ in range(P['nv2'])]
    i5 = len(seq); seq += qk(5)
    i6 = len(seq); q6, q7 = qk(6), qk(7)
    seq += [q6[0], q6[1], q7[0], q7[1], q6[2], q6[3], q7[2], q7[3]]
    nL, nB = P['nL'], P['nL'] + P['nB2']
    assert i4 >= nL + 4 and nB <= i5
    KVST = 0 if P.get('kvfix') else 0x80000
    ones = [f"v_mov_b64 {vr(ONE,2)}, {sr(sONE,2)}", f"v_mov_b64 {vr(ONE+2,2)}, {sr(sONE,2)}"]
    lastd = -99
    for n, q in enumerate(seq):
        if n == 0: a.wait(lg=('ma', 1))
        if n == 4: a.wait(lg=('ma', 3))
        if n == nL:
            stamp(2)
            a.wait(vm='L2'); a(dwL, lg='wl')
            if not P['c1']: a(chkL[0])
            if prober: a.wait(vm=('P', 0)); a(f"v_subrev_u32 v{T0+1}, s{sS}, v{FLV}")
        if n == nB:
            a.wait(lg='all' if not r2 else 'wl'); a("s_barrier"); stamp(3); a(mrd(5), lg=('ma', 5))
        if n == i4 and 'r2' in a.lg: a.wait(lg='r2')
        if n == i5: a.wait(lg=('ma', 5))
        if n == i6: a.wait(lg=('ma', 7))
        smf(a, *q)
        cap = 2 - (n + 1 in (4, i5, i6)) - (n >= i6 + 4) - (n in (nL, nL + 1))
        if n == nB: a(mrd(6), lg=('ma', 6)); a(mrd(7), lg=('ma', 7)); cap = 0
        if P['sv'] == 9 and n == svp: a(stV, vm='km')
        cap = max(cap - syncops(n), 1 if r2 else 0)
        dp = P['dp']
        if dp:
            if dma and dp[4 - len(dma)] < 100 and n >= dp[4 - len(dma)] + w and n != nB: a(dma.pop(0), vm='dma'); cap = max(cap - 1, 1 if r2 else 0)
        elif dma and cap and n > nB and n >= min(nB + 1 + w * P['stg'] + 4 * (4 - len(dma)), len(seq) - 1):
            a(dma.pop(0), vm='dma'); cap -= 1
        if r2 and cap and n + 1 != nL and not (nL <= n < nB): a(r2.pop(0), lg='r2'); cap -= 1
        elif r3 and cap and n > nB and n >= i4 + (8 - len(r3)) // 2: a(r3.pop(0), lg='r3'); cap -= 1
        if ones and cap and n >= i5 and P['sv'] == 9: a(ones.pop(0))
        if n == nL: a(chkL[1] if not prober else f"v_max3_u32 v{T0+1}, v{T0}, v{MA+19}, v{T0+1}")
        if n == nL + 1: a(chkL[2] if not prober else f"v_cmp_eq_u32 vcc, -1, v{T0+1}")
        if n == nL + 3:
            a(f"s_cbranch_vccnz {lb('p1' if prober else 'rL')}"); a.label(lb('bL'))
            if prober: assert len(a.vm) == npr - 1
        if n == i6 + 4: a(cv(Q0, Q0))
        if n == i6 + 5: a(cv(Q0 + 1, Q0 + 2))
        if n == i6 + 6: a(cv(Q0 + 2, K0))
    assert not r3 and not r2, (len(r2), len(r3), len(dma))
    stamp(4)
    a(cv(Q0 + 3, K0 + 2))
    a("s_nop 0")
    a(cv(Q1, Q1))
    mf32(K0, Q0, F, None)
    a(cv(Q1 + 1, Q1 + 2)); a(cv(Q1 + 2, K1)); a(cv(Q1 + 3, K1 + 2))
    a("s_nop 1")
    mf32(K1, Q1, F, None)
    X = Q0
    a(cv(X, K0)); a(cv(X + 1, K0 + 2))
    rsI = f"buffer_store_dword v{NEG1}, v{A_IMS}, {WS}, s{sIMr} offen"
    S1, S2, SM = Q1, K0, K1
    if not P['mx']:
        smf(a, *vq.pop(0))
        a("s_nop 0"); a(f"buffer_store_dword v{NEG1}, v{A_IMS}, {WS}, s{sIMr} offen", vm='rs'); a("s_nop 1")
        a(cv(X + 2, K1)); a(cv(X + 3, K1 + 2))
        a("s_nop 1")
        S1, S2, SM = Q1, K0, K1
        mf32(SM, X, X, None); mf32(S2, KX + 4, X, None); mf32(S1, KX, X, None)
        for r in range(2): a(ror8(SM + r, SM + 2 + r, '0xc'))
        smf(a, *vq.pop(0))
        a("s_nop 0")
        a(f"ds_write2_b32 v{A_SMW}, v{SM}, v{SM+1} offset0:0 offset1:32")
        a("s_nop 1")
        for r in range(4): a(ror8(S1 + r, S2 + r, '0xc'))
        smf(a, *vq.pop(0))
        a(f"ds_write_b128 v{L16}, {vr(S1,4)} offset:{L_S + own}")
    else:
        assert all(q[1] >= MA + 8 for q in vq)
        XL, XH = MA, MA + 4
        lo = lambda r: a(f"v_cndmask_b32 v{XL+r}, 0, v{X+r}, {sr(sMLO,2)}")
        hi = lambda r: a(f"v_mov_b32_dpp v{XH+r}, v{X+r} row_shr:8 row_mask:0xf bank_mask:0xf bound_ctrl:1")
        lo(0); lo(1); hi(0); hi(1); a("s_nop 0")
        a(cv(X + 2, K1)); a(cv(X + 3, K1 + 2))
        lo(2); lo(3)
        mf32(SM, X, X, None)
        hi(2); hi(3)
        mf32(S1, KX, XL, None)
        a("s_nop 0")
        mf32(S1, KX + 4, XH, S1)
        for r in range(2): a(ror8(SM + r, SM + 2 + r, '0xc'))
        dw2 = f"ds_write2_b32 v{A_SMW}, v{SM}, v{SM+1} offset0:0 offset1:32"
        dw4 = f"ds_write_b128 v{L16}, {vr(S1,4)} offset:{L_S + own}"
        smf(a, *vq.pop(0))
        if P['so'] == 0: a("s_nop 0"); a(dw2); a("s_nop 1"); a(dw4)
        elif P['so'] == 1: a("s_nop 0"); a(dw2); smf(a, *vq.pop(0)); a(dw4)
        else: smf(a, *vq.pop(0)); a(dw4); a(dw2)
    stamp(5)
    for k in range(P['nvA']):
        smf(a, *vq.pop(0))
        if k == P['nvA'] - 3: a(f"s_cmp_eq_u32 s{sS}, 63")
        if k == P['nvA'] - 2:
            a("s_cbranch_scc1 L_last"); LASTV[:] = list(vq)
        if k == 1 and w == 0:
            if P.get('fsk', 1):
                a(f"s_mov_b64 exec, {sr(sFM,2)}"); a(ldF, vm='fl'); a("s_mov_b64 exec, -1")
            else: a(ldF, vm='fl')
        if dma and dp[4 - len(dma)] == 100 and k == w + 1: a(dma.pop(0), vm='dma')
        if P['sv'] == 20 and k == min(3 - w, P['nvA'] - 1): a(stV, vm='km')
        if k == (w & 1) + (2 if w >= 2 and P['sv'] == 20 else 0) and P['mx']: a(rsI, vm='rs')
    a.wait(lg='all')
    a("s_barrier")
    stamp(6)
    R1, R2, R3, RM = K0, KX, KX + 4, K1
    a(f"ds_read_b128 {vr(RM,4)}, v{L16} offset:{L_SM}", lg='rm')
    a(f"ds_read_b128 {vr(R1,4)}, v{L16} offset:{L_S + oth(1)}", lg='r1')
    smf(a, *vq.pop(0))
    a(f"ds_read_b128 {vr(R2,4)}, v{L16} offset:{L_S + oth(2)}", lg='r2')
    a(f"ds_read_b128 {vr(R3,4)}, v{L16} offset:{L_S + oth(3)}", lg='r3')
    while vq:
        smf(a, *vq.pop(0))
        if dma and len(vq) <= max(2 - w, 0): a(dma.pop(0), vm='dma')
        if ones: a(ones.pop(0))
    assert not ones and not dma
    pka = lambda d, s0: f"v_pk_add_f32 {vr(d,2)}, {vr(d,2)}, {vr(s0,2)}"
    a.wait(lg='r1')
    a(f"v_add_f32 v{RM}, v{RM}, v{RM+1}\nv_add_f32 v{RM+2}, v{RM+2}, v{RM+3}")
    a(f"v_add_f32 v{S1}, v{S1}, v{R1}\nv_add_f32 v{S1+1}, v{S1+1}, v{R1+1}")
    a(pka(S1 + 2, R1 + 2))
    a(f"v_add_f32 v{RM}, v{RM}, v{RM+2}")
    if P['ad']:
        a.wait(lg='all')
        stamp(7)
        a(pka(R2, R3)); a(pka(R2 + 2, R3 + 2)); a(pka(S1, R2)); a(pka(S1 + 2, R2 + 2))
    else:
        a.wait(lg='r2')
        a(pka(S1, R2)); a(pka(S1 + 2, R2 + 2))
        a.wait(lg='all')
        stamp(7)
        a(pka(S1, R3)); a(pka(S1 + 2, R3 + 2))
    m0, m1 = K0, K0 + 1
    a(f"v_max3_f32 v{m0}, v{RM}, v{S1}, v{S1+1}")
    a(f"v_max3_f32 v{m0}, v{m0}, v{S1+2}, v{S1+3}")
    a(cv(V0, V0)); a(cv(V0 + 1, V0 + 2))
    a(f"v_max_f32_dpp v{m1}, v{m0}, v{m0} row_ror:8 row_mask:0xf bank_mask:0xf")
    a(f"v_max_f32_dpp v{m0}, v{m0}, v{m0} row_ror:8 row_mask:0xf bank_mask:0xf")
    a(cv(V0 + 2, V1)); a(cv(V0 + 3, V1 + 2))
    a(f"v_permlane32_swap_b32 v{m0}, v{m1}")
    a(f"v_max_f32 v{m0+2}, v{m0}, v{m1}")
    a(f"v_max_f32 v{m0+3}, v{m0}, v{m1}")
    a(f"v_permlane32_swap_b32 v{V0}, v{V0+1}")
    a(f"v_permlane32_swap_b32 v{V0+2}, v{V0+3}")
    a(f"v_permlane16_swap_b32 v{m0+2}, v{m0+3}")
    a(f"v_max_f32 v{m0}, v{m0+2}, v{m0+3}")
    a(f"v_mul_f32 v{m0}, s{sC}, v{m0}")
    a(f"v_fma_f32 v{RM}, v{RM}, s{sC}, -v{m0}")
    pkf = lambda r: f"v_pk_fma_f32 {vr(r,2)}, {vr(r,2)}, {sr(sC,2)}, {vr(m0,2)} op_sel_hi:[1,1,0] neg_lo:[0,0,1] neg_hi:[0,0,1]"
    ks = [(w + q) & 3 for q in range(1, 4)]
    r4 = [f"ds_read_b128 {vr(MA + 8*k + 4*hf, 4)}, v{A_W} offset:{lw_wo(3,k) + 1024*hf}" for k in [w] + ks for hf in range(2)]
    rd4 = lambda: a(r4.pop(0), lg='r4') if r4 else None
    BX, BM = K0, MA + 8 * ks[2] + 4
    O0, O1, L = KX, V1, K1
    a(f"v_exp_f32 v{RM}, v{RM}")
    a(pkf(S1)); a(pkf(S1 + 2))
    a(ror8(RM + 1, RM, '0xf'))
    a(cv(BM, RM)); a(cv(BM + 1, RM))
    a(f"v_exp_f32 v{S1}, v{S1}\nv_exp_f32 v{S1+1}, v{S1+1}")
    mf16(O0, V0, BM, None)
    a(f"v_exp_f32 v{S1+2}, v{S1+2}\nv_exp_f32 v{S1+3}, v{S1+3}")
    a(cv(BX, S1)); a(cv(BX + 1, S1 + 2))
    mf16(O1, V0 + 2, BM, None)
    a(ror8(BX + 2, BX, '0xf')); a(ror8(BX + 3, BX + 1, '0xf'))
    AC = [Q1, KX, V1, ONE]
    OW = KX + 4
    a(z2(AC[0])); a(z2(AC[0] + 2))
    mf32(O0, VX, BX, O0)
    stamp(8)
    if P['nr4'] >= 1: rd4()
    if P['nr4'] >= 4: rd4()
    mf32(O1, VX + 4, BX, O1)
    if P['nr4'] >= 2: rd4()
    if P['nr4'] >= 3: rd4()
    mf16(L, BM, HZ, None)
    a(cv(OW, O0)); a(cv(OW + 1, O0 + 2))
    a(z2(AC[1]))
    a(cv(OW + 2, O1)); a(cv(OW + 3, O1 + 2))
    mf32(L, BX, ONE, L)
    a("s_nop 0")
    a(f"ds_write_b128 v{A_OW}, {vr(OW,4)} offset:{L_O + own}")
    stamp(9)
    for r in range(4): a(ror8(OW + r, OW + r, '0xc'))
    a(z2(AC[1] + 2)); a(z2(AC[2])); a(z2(AC[2] + 2))
    rcp = lambda r: a(f"v_rcp_f32 v{L+r}, v{L+r}")
    for r in range(P['nrc']): rcp(r)
    smf(a, AC[0], OW, wo_reg(0, w))
    a.wait(lg='all')
    a("s_barrier")
    stamp(10)
    OA = {ks[0]: VX, ks[1]: VX + 4, ks[2]: K0, w: OW}
    oard = lambda k: a(f"ds_read_b128 {vr(OA[k],4)}, v{A_O} offset:{L_O + 2048*k}", lg=('oa', k))
    g2 = lambda T, k: smf(a, AC[T], OA[k], wo_reg(T, k))
    mul = lambda T, r: a(f"v_mul_f32 v{AC[T]+r}, v{AC[T]+r}, v{L+r}")
    def cvt(T, r):
        a(cv(AC[T] + r, AC[T] + 2 * r))
        if r == 1: a(f"v_bfi_b32 v{AC[T]}, 1, s{sTAG}, v{AC[T]}")
    sto = lambda T: f"buffer_store_dwordx2 {vr(AC[T],2)}, v{A_H1S}, {WS}, s{sH1+T} offen"
    oard(ks[0]); oard(ks[1])
    g2(1, w); oard(ks[2]); a(z2(AC[3]))
    g2(2, w)
    a(z2(AC[3] + 2))
    for r in range(P['nrc'], 4): rcp(r)
    own3 = P['nr4'] >= 2 and P.get('own3', 1)
    if own3: a("s_nop 1"); g2(3, w)
    a.wait(lg=('oa', ks[0])); g2(0, ks[0]); stamp(20); rd4()
    a.wait(lg=('oa', ks[1])); g2(0, ks[1]); rd4()
    a.wait(lg=('oa', ks[2])); g2(0, ks[2]); rd4()
    g2(1, ks[0]); rd4()
    g2(1, ks[1]); rd4(); mul(0, 0)
    g2(1, ks[2]); rd4()
    mul(0, 1); mul(0, 2); mul(0, 3); cvt(0, 0); cvt(0, 1)
    assert not r4 or P['g2v'] == 0
    pkm = lambda T: a(f"v_pk_mul_f32 {vr(AC[T],2)}, {vr(AC[T],2)}, {vr(L,2)}\nv_pk_mul_f32 {vr(AC[T]+2,2)}, {vr(AC[T]+2,2)}, {vr(L+2,2)}")
    if P['g2v'] == 0:
        g2(2, ks[0]); a("s_nop 0"); a(sto(0), vm='h1')
        while r4: rd4()
        for r in range(4): mul(1, r)
        cvt(1, 0); cvt(1, 1)
        g2(2, ks[1]); a("s_nop 0"); a(sto(1), vm='h1')
    elif P['g2v'] == 1:
        a("s_nop 1"); a(sto(0), vm='h1')
        pkm(1); cvt(1, 0); cvt(1, 1)
        g2(2, ks[0]); a("s_nop 0"); a(sto(1), vm='h1')
        g2(2, ks[1])
    else:
        pkm(1); cvt(1, 0); cvt(1, 1)
        g2(2, ks[0]); a("s_nop 0"); a(sto(0), vm='h1'); a(sto(1), vm='h1')
        g2(2, ks[1])
    stamp(21)
    g2(2, ks[2])
    a.wait(lg='all')
    if not own3: g2(3, w)
    a(f"s_add_u32 s{sIMl}, s{sIMw}, {1024*w}\ns_add_u32 s{sIML}, s{sIMw}, {4096+1024*w}")
    g2(3, ks[0]); a(f"s_add_u32 s{sS}, s{sS}, 1\ns_mov_b32 s{sKMv}, s{sKM}")
    if not own3: mul(2, 0)
    g2(3, ks[1]); mul(2, 1)
    g2(3, ks[2])
    if own3: mul(2, 0)
    mul(2, 2); mul(2, 3); cvt(2, 0); cvt(2, 1)
    dS = P['dS']
    a("s_nop 1")
    if dS[0] < 0: a(sto(2), vm='h1')
    c = AC[3]
    a(f"v_pk_mul_f32 {vr(c,2)}, {vr(c,2)}, {vr(L,2)}\nv_pk_mul_f32 {vr(c+2,2)}, {vr(c+2,2)}, {vr(L+2,2)}")
    cvt(3, 0); cvt(3, 1)
    a(f"s_add_u32 s{sKM}, s{sKM}, 0x20000\ns_add_u32 s{sKV}, s{sKV}, {KVST}")
    if dS[1] < 0: a(sto(3), vm='h1')
    stamp(11)
    HA = KX
    ld1 = [f"buffer_load_dwordx4 {vr(HA+4*c_,4)}, v{L16}, {WS}, s{sH1l} offen offset:{1024*c_} sc1" for c_ in range(2)]
    HD, T1 = MA + 8, MA + 12
    idle = idle_work()
    late = [l for l in idle if any(l.startswith(f"v_mov_b64 v[{r}:") for r in (Q0, Q0 + 2, V0, V0 + 2, V1, V1 + 2))]
    dsq = [l for l in idle if l.startswith('ds_')]
    idle = [l for l in idle if l not in late and l not in dsq]
    ev = [(max(dS[k], 0), k, [(sto(2 + k) if dS[k] >= 0 else None, 'h1')]) for k in range(2)]
    ev.append((P['dH1'][w], -1 if w < 2 else 2, [(ld1[0], 'H0'), (ld1[1], 'H1')]))
    pos = 0; nst = 0
    for (tpos, _, ops) in sorted(ev):
        while pos < tpos:
            if idle and tpos - pos > 2: a(idle.pop(0)); pos += 1
            elif dsq and nst == 2 and tpos - pos >= 6:
                if P['kw']: mf32(MA + 24 if len(dsq) & 1 else MA + 4, F, F, None); a("s_nop 1")
                else: a("s_nop 2")
                a(dsq.pop(0), lg='pre'); pos += 4
            else: wdelay(tpos - pos); pos = tpos
        for (o, tag) in ops:
            if o: a(o, vm=tag); pos += 1
            if tag == 'h1':
                nst += 1
                if nst == 2: idle += pack_km() + late
    for l in dsq + idle: a(l, lg='pre')
    dE = P['dE'][w]; pE = P['pE']; nPre = P['nPre'][w]; inGap = P['inGap'][w]
    eq = ['E0', 'E1', 'E2', 'E3', 'E4'][:P['nE']]; nE = len(eq)
    for k in range(nPre):
        wdelay(dE if k == 0 else pE); a(ldE if eq[0] == 'E0' else ldB, vm=eq.pop(0))
    nH0 = len(a.vm) - 1 - a.vm.index('H0')
    a(f"s_waitcnt vmcnt({nH0})")
    a.label(lb('a1'))
    stamp(12)
    mf32(HD, SEL, HA, None)
    a(f"v_bitop3_b32 v{T1}, v{HA}, v{HA+2}, s{sTAG} bitop3:0x7e")
    a.wait(vm='H1')
    mf32(HD, SEL, HA + 4, HD)
    a(f"v_bitop3_b32 v{T1+1}, v{HA+4}, v{HA+6}, s{sTAG} bitop3:0x7e\nv_bitop3_b32 v{T1}, v{T1}, v{T1+1}, 1 bitop3:0xa8\nv_cmp_ne_u32 vcc, 0, v{T1}")
    if inGap and eq:
        a("s_nop 1"); a(ldE if eq[0] == 'E0' else ldB, vm=eq.pop(0)); a("s_nop 0")
    else: a("s_nop 3")
    dpa = lambda r, n: f"v_add_f32_dpp v{r}, v{r}, v{r} row_ror:{n} row_mask:0xf bank_mask:0xf"
    a(dpa(HD, 4)); a(dpa(HD + 1, 4)); a("s_nop 0"); a(dpa(HD, 8)); a(dpa(HD + 1, 8))
    a(cv(HD, HD))
    if P['cs']:
        a(f"s_cmp_eq_u64 vcc, 0\ns_cselect_b32 s{sT+2}, s{sIMw}, 0x70000000")
        a(f"buffer_store_dword v{HD}, v{A_IMS}, {WS}, s{sT+2} offen", vm='im')
        if eq and (inGap or (len(eq) == nE and dE == 0)): a(ldE if eq[0] == 'E0' else ldB, vm=eq.pop(0))
        a(f"s_cbranch_vccnz {lb('r1')}")
        dE = max(dE - 4, 0)
    else:
        a(f"s_cbranch_vccnz {lb('r1')}")
        a(f"buffer_store_dword v{HD}, v{A_IMS}, {WS}, s{sIMw} offen", vm='im')
        if inGap and eq: a(ldE if eq[0] == 'E0' else ldB, vm=eq.pop(0))
    stamp(13)
    misc = [f"ds_read_b128 {vr(KX+4*k,4)}, v{L16} offset:{L_KV + 4096*w + 1024*k}" for k in range(4)]
    misc += [f"s_mov_b32 s{sIMw}, s{sIMr}", f"s_add_u32 s{sIMr}, s{sIMr}, 0x2000", f"s_and_b32 s{sIMr}, s{sIMr}, 0xffff7fff",
             f"s_xor_b32 s{sTAG}, s{sTAG}, 1"]
    if P.get('nod', 1): misc += [f"s_cmp_eq_u32 s{sS}, 63", f"s_cselect_b32 s{sKV}, 0x70000000, s{sKV}"]
    if w == 0: misc = [f"v_cmp_gt_u32 vcc, 32, v{FLV}"] + misc + [f"s_cbranch_vccnz {lb('rF')}\n{lb('bF')}:", f"s_add_u32 s{sFLn}, s{sS}, 2", f"s_lshr_b32 s{sFLn}, s{sFLn}, 3", f"s_min_u32 s{sFLn}, s{sFLn}, 7", f"s_lshl2_add_u32 s{sFLn}, s{sFLn}, {DBG_DN + DBG_KVC}",
                     f"s_cmp_lt_u32 s{sS}, 2", f"s_cselect_b32 s{sFLn}, {DBG_DN + DBG_KV0}, s{sFLn}",
                     f"s_cmp_lg_u32 s{sFL}, s{sFLn}", f"s_cselect_b64 {sr(sFM,2)}, -1, 0", f"s_mov_b32 s{sFL}, s{sFLn}"]
    misc += sync_tmp(P, w)
    def delay(n):
        while n > 0 and misc: a(misc.pop(0), lg='pre'); n -= 1
        wdelay(n)
    while eq:
        delay(dE if len(eq) == nE else pE); a(ldE if eq[0] == 'E0' else ldB, vm=eq.pop(0))
    delay(len(misc))
    if P.get('pr'):
        i0 = a.lines.index(lb('top') + ':'); i0 = a.lines.index('s_barrier', i0) + 1
        body = a.lines[i0:]; a.lines = a.lines[:i0] + ["s_memtime s[72:73]"]; used = [0]; n = 0
        LISTING[w] = [l for l in body if not l.endswith(':')]
        for l in body:
            if not l.endswith(':'):
                if n in P['pr']: a.lines.append(f"s_memtime s[{72+2*len(used)}:{73+2*len(used)}]"); used.append(n)
                n += 1
            a.lines.append(l)
    if used:
        a("s_waitcnt lgkmcnt(0)")
        if P.get('trace'):
            a("s_nop 7")
            for k in range(len(used)): a(f"v_mov_b32 v{MA+8+k}, s{72+2*k}")
            a(f"s_lshl_b32 s{sT}, s{sH}, 12\ns_lshl_b32 s{sT+1}, s{sS}, 4\ns_add_u32 s{sT}, s{sT}, s{sT+1}\ns_add_u32 s{sT}, s{sT}, {WS_STAMP + 65536 + 1024*w}\ns_mov_b64 exec, 1")
            a(f"buffer_store_dwordx4 {vr(MA+8,4)}, v{L16}, {WS}, s{sT} offen", vm='tr')
            a("s_mov_b64 exec, -1")
        else:
            for k in range(1, len(used)):
                a(f"s_sub_u32 s{sT}, s{72+2*k}, s{70+2*k}\ns_add_u32 s{88+k}, s{88+k}, s{sT}")
    if w == 0: wdelay(P['dT'])
    if P.get('stat'):
        a(f"s_cmp_lg_u32 s{sS}, 3\ns_cbranch_scc1 {lb('top')}\ns_memtime s[68:69]\ns_memrealtime s[62:63]\ns_mov_b32 s70, 0\ns_mov_b32 s71, 0")
        for k in range(8): a(f"s_mov_b32 s{88+k}, 0")
    young = lambda t: len(a.vm) - 1 - a.vm.index(t)
    eL = 1 if P['dwf'] else P['earlyL']
    ns = [young(f'E{k}') + k + (eL if k else 0) for k in range(nE)]
    a.lines[a.lines.index(lb('top') + ':') + 1] = f"s_waitcnt vmcnt({ns[0]}) lgkmcnt(0)"
    a(f"s_branch {lb('top')}")
    end_main = len(a.lines)
    if w == 0:
        a.label('L_last'); chain_last(a); a("s_branch L_exit" if P.get('stat') or P.get('dbgt') else "s_endpgm")
    cnt = lambda r, v: (f"s_add_u32 s{r}, s{r}, {v}\n" if P.get('stat') else '')
    spin = f"s_add_u32 s{sSPIN}, s{sSPIN}, 1\ns_cmp_gt_u32 s{sSPIN}, {SPIN_MAX}\ns_cbranch_scc1 L_exit\n"
    for k in range(1, nE + 1):
        a.label(lb(f'f{k}'))
        late = P['lb1'] and k == 1
        if P['lb1'] and k == 2: a(ldB)
        if P.get('fpad') and k >= P.get('fpk', 1): nops(a, P['fpad'])
        if not late: a(ldB)
        a(f"s_waitcnt vmcnt({(ns[k] if k < nE else nE - 1) - (1 if late else 0)})")
        if P['dwf']: a(f"v_mov_b64 {vr(MA,2)}, {vr(EB,2)}\nv_mov_b64 {vr(MA+2,2)}, {vr(EB+2,2)}\ns_nop 0"); a(dwE); a(chkE)
        else: a(chkE); a(cnt(71, 1) or 's_nop 0'); a(dwE)
        a(f"s_cbranch_vccnz {lb(f'f{k+1}')}")
        a(ldL)
        if P['dup'] and k == 1:
            a.lines += dupA; a(f"s_branch {lb('go2')}")
        else: a(f"s_branch {lb('go')}")
    a.label(lb(f'f{nE+1}'))
    a(spin + f"s_branch {lb(f'f{nE}')}")
    if prober:
        a.label(lb('p1'))
        a(probe); a(chkL[1]); a(chkL[2]); a(f"s_cbranch_vccnz {lb('rL')}")
        a. label(lb('p2'))
        for k in range(3):
            a(cnt(70, 65536) + f"s_waitcnt vmcnt({npr-1})\nv_cmp_ne_u32 vcc, s{sS}, v{FLV}"); a(probe); a(f"s_cbranch_vccz {lb('bL')}")
        a(spin + f"s_branch {lb('p2')}")
    a.label(lb('rL'))
    a(ldL)
    a(cnt(71, 65536) + spin + "s_waitcnt vmcnt(0)")
    a(dwL)
    a('\n'.join(chkL))
    a(f"s_waitcnt lgkmcnt(0)\ns_cbranch_vccnz {lb('rL')}\ns_branch {lb('p2' if prober else 'bL')}")
    if w == 0:
        a.label(lb('rF'))
        a(ldF); a(spin + f"s_waitcnt vmcnt(0)\nv_cmp_gt_u32 vcc, 32, v{FLV}\ns_cbranch_vccnz {lb('rF')}\ns_branch {lb('bF')}")
    a.label(lb('r1'))
    a(ld1[0]); a(ld1[1])
    a(cnt(70, 1) + spin + f"s_waitcnt vmcnt(0)\ns_branch {lb('a1')}")
    a.label(lb('step'))
    for l in sync_tmp(P, w): a(l)
    a(dwE)
    a(f"s_branch {lb('go')}")
    return end_main, None
```

```python
from asmlib import *
from chain import WS_KV, WS_KM, WS_SIZE, DBG_KVC, DBG_KV0, DBG_DN, S_WS, S_DBG, sH, sW, nops

WS_A = 50 << 20
WS_CNT = WS_A + (64 << 10)
WS_ST = 52 << 20
DBG_ST = 8
WS_PART = 64 << 20
H_GW = 131072
H_E = H_GW + 1024
H_C = H_E + 1024
H_K = H_C + 4096
S_X, S_W1, S_W2, S_WO, S_OUT = 8, 12, 16, 20, 28
sB = 34
sX0, sWo1, sWo2, sStI, sStS, sSlot, sCnt, sSeg, sSpin, sJ = 35, 36, 37, 38, 39, 40, 41, 42, 43, 44
sA, sA2, sA3, sA4 = 45, 46, 47, 48
sWoo = 49
sM = 50
P_LRE, P_LIM, P_LDT, P_DSK, P_GW, P_CRE, P_CIM = 58, 62, 64, 66, 68, 70, 72
LANE, L16, VX_, VW, VW2, XA, WA, BA, GA, VKV, G, VN, HH, VKM, VVM, WOA, MX = 0, 1, 2, 3, 4, 5, 7, 11, 13, 14, 15, 16, 17, 18, 19, 20, 28
T = 29
KF, VF, FR = 32, 96, 160
QF, SS, HF = 160, 224, 240
HSPIN = 400000
LOG2E = 0x3fb8aa3b
def mf(a, D, A, B, C): a(f"v_mfma_f32_32x32x16_bf16 {D}, {A}, {B}, {C}")
WS = sr(S_WS, 4)

S_PF = 52
P_WQ, P_WK, P_WV = 74, 76, 78
sPH = 56
def h_ptrs(a):
    a(f"""
    s_load_dwordx2 {sr(S_X,2)}, s[0:1], 0
    s_load_dwordx2 {sr(P_WK,2)}, s[0:1], 96
    s_load_dwordx2 {sr(P_WV,2)}, s[0:1], 104
    s_load_dwordx2 {sr(S_WO,2)}, s[0:1], 112
    s_load_dwordx2 {sr(S_PF,2)}, s[0:1], 88
    s_mov_b32 s{S_X+2}, 2097152
    s_mov_b32 s{S_X+3}, 0x20000
    s_mov_b32 s{S_WO+2}, 4194304
    s_mov_b32 s{S_WO+3}, 0x20000
    s_mov_b32 s{S_OUT+2}, 4194304
    s_mov_b32 s{S_OUT+3}, 0x20000
    s_mov_b32 s{S_W1+2}, 4194304
    s_mov_b32 s{S_W1+3}, 0x20000
    s_mov_b32 s{S_W2+2}, 4194304
    s_mov_b32 s{S_W2+3}, 0x20000
    s_mov_b32 s{S_PF+2}, 4194304
    s_mov_b32 s{S_PF+3}, 0x20000
    """)
PFW, PFO = 253, 254
def h_prefetch(a, sR):
    a(f"""
    s_mov_b64 {sr(S_W1,2)}, {sr(P_WK,2)}
    s_mov_b64 {sr(S_W2,2)}, {sr(P_WV,2)}
    s_mul_i32 s{sPH}, s{sR}, {32*9363}
    s_lshr_b32 s{sPH}, s{sPH}, 16
    s_lshl_b32 s{sA}, s{sPH}, 8
    s_lshl_b32 s{sA2}, s3, 17
    s_add_u32 s{sA}, s{sA}, s{sA2}
    v_lshrrev_b32 v1, 4, v0
    v_and_b32 v2, 15, v0
    v_cmp_gt_u32 vcc, 12, v2
    v_lshlrev_b32 v2, 7, v2
    v_lshl_add_u32 v1, v1, 13, v2
    v_add_u32 v1, s{sA}, v1
    v_bfrev_b32 v2, 1
    v_cndmask_b32 v{PFW}, v2, v1, vcc
    s_lshl_b32 s{sA}, s3, 14
    v_lshlrev_b32 v1, 7, v0
    v_cmp_gt_u32 vcc, 128, v0
    buffer_load_dword v255, v{PFW}, {sr(S_W2,4)}, 0 offen
    v_add_u32 v3, s{sA}, v1
    buffer_load_dword v255, v{PFW}, {sr(S_W1,4)}, 0 offen
    v_cndmask_b32 v3, v2, v3, vcc
    buffer_load_dword v255, v3, {sr(S_X,4)}, 0 offen
    s_load_dwordx2 {sr(S_OUT,2)}, s[0:1], 136
    s_load_dwordx2 {sr(P_LRE,2)}, s[0:1], 8
    s_load_dwordx2 {sr(P_LIM,2)}, s[0:1], 16
    s_load_dwordx2 {sr(P_LDT,2)}, s[0:1], 56
    s_load_dwordx2 {sr(P_DSK,2)}, s[0:1], 64
    s_load_dwordx2 {sr(P_GW,2)}, s[0:1], 128
    s_waitcnt lgkmcnt(0)
    s_load_dwordx2 {sr(P_CRE,2)}, s[0:1], 40
    s_load_dwordx2 {sr(P_CIM,2)}, s[0:1], 48
    s_cmp_ge_u32 s{sW}, 2
    s_cbranch_scc1 L_h_hi
    s_mov_b64 {sr(S_W2,2)}, {sr(S_PF,2)}
    s_mov_b32 s{sStI}, {4*8192}
    s_mov_b32 s{sStS}, {32*8192}
    s_branch L_h_sel
    """)
    a.label('L_h_hi')
    a(f"""
    s_mov_b64 {sr(S_W1,2)}, {sr(P_WV,2)}
    s_mov_b32 s{S_W2+2}, 524288
    s_mov_b32 s{sStI}, 0x10000000
    s_mov_b32 s{sStS}, 64
    s_cmp_eq_u32 s{sW}, 3
    s_cbranch_scc1 L_h_w3
    s_load_dwordx2 {sr(S_W2,2)}, s[0:1], 24
    s_branch L_h_sel
    """)
    a.label('L_h_w3')
    a(f"s_load_dwordx2 {sr(S_W2,2)}, s[0:1], 32")
    a.label('L_h_sel')
    a("s_waitcnt lgkmcnt(0)")
    return 3

def h_once(a):
    a(f"v_and_b32 v{LANE}, 63, v0")
    t = 32
    a(f"""
    v_lshlrev_b32 v{L16}, 4, v{LANE}
    v_and_b32 v{VN}, 31, v{LANE}
    v_lshrrev_b32 v{HH}, 5, v{LANE}
    v_lshrrev_b32 v{t}, 2, v{LANE}              ; r = lane>>2
    v_lshrrev_b32 v{t+1}, 4, v{LANE}            ; lane>>4
    v_and_b32 v{t+2}, 3, v{LANE}                ; c
    v_xor_b32 v{t+3}, v{t+2}, v{t+1}
    v_lshlrev_b32 v{t+3}, 4, v{t+3}
    v_lshl_add_u32 v{VX_}, v{t}, 10, v{t+3}
    v_and_b32 v{t+3}, 15, v{LANE}
    v_lshlrev_b32 v{t+4}, 2, v{t+1}
    v_xor_b32 v{t+3}, v{t+3}, v{t+4}
    v_lshlrev_b32 v{t+3}, 4, v{t+3}
    v_lshl_add_u32 v{VW}, v{t+1}, 13, v{t+3}
    s_cmp_ge_u32 s{sW}, 2
    s_cselect_b64 vcc, -1, 0
    v_cndmask_b32 v{VW2}, v{VW}, v{VX_}, vcc
    v_bfe_u32 v{t+5}, v{LANE}, 2, 1             ; h'
    v_bfe_u32 v{t+6}, v{LANE}, 3, 1             ; t
    v_bfe_u32 v{t+7}, v{LANE}, 4, 1             ; n>>4
    v_lshl_add_u32 v{t+8}, v{t+7}, 2, v{t+2}
    v_lshl_add_u32 v{t+8}, v{t+5}, 3, v{t+8}    ; i = 8h' + 4(n>>4) + (n&3)
    v_lshl_add_u32 v{t+9}, v{HH}, 5, v{t+8}
    v_lshlrev_b32 v{t+9}, 4, v{t+9}
    v_lshl_add_u32 v{VKV}, v{t+6}, 10, v{t+9}
    v_lshl_add_u32 v{t+9}, v{HH}, 4, v{t+8}
    v_lshlrev_b32 v{t+9}, 4, v{t+9}
    v_lshl_add_u32 v{t+9}, v{t+6}, 2, v{t+9}
    s_lshl_b32 s{sA}, s{sW}, 12
    s_add_u32 s{sA}, s{sA}, {H_K}
    v_add3_u32 v{VVM}, v{t+9}, s{sA}, 8
    v_and_b32 v{t+9}, 7, v{LANE}
    v_lshl_add_u32 v{t+9}, v{HH}, 5, v{t+9}
    v_lshl_add_u32 v{VKM}, v{t+9}, 4, s{sA}
    s_waitcnt lgkmcnt(0)
    """)

def xaddr(a, row, base_s, dst):
    a(f"""
    v_bfe_u32 v{T}, v{row}, 2, 2
    v_xor_b32 v{T}, v{T}, v{HH}
    v_lshlrev_b32 v{T}, 4, v{T}
    v_lshl_add_u32 v{T}, v{row}, 6, v{T}
    v_add_u32 v{dst}, {base_s}, v{T}
    v_xor_b32 v{dst+1}, 32, v{dst}
    """)

OPT = {}
sXC, sClr, sMode = 57, 3, 2
def dma_part(part, kind):
    G_ = []
    for i in range(4):
        o = (16384 if part == 'B' else 0) + 1024 * i
        L = [f"s_add_u32 m0, s{sSlot}, {o}"]
        if kind == 'wo': L += [f"s_add_u32 s{sA}, s{sWoo}, {o}", f"buffer_load_dwordx4 v{WOA + i}, {sr(S_WO,4)}, s{sA} offen lds"]
        elif part == 'A': L += [f"s_add_u32 s{sA}, s{sXC}, {(i >> 1) * 131072 + (i & 1) * 16384}", f"buffer_load_dwordx4 v{VX_}, {sr(S_X,4)}, s{sA} offen lds"]
        elif kind == 'p1': L += [f"s_add_u32 s{sA}, s{sWo1}, {4*8192*i}", f"buffer_load_dwordx4 v{VW}, {sr(S_W1,4)}, s{sA} offen lds"]
        else: L += [f"s_mov_b32 s{sA2}, s{sWo2}" if i == 0 else f"s_add_u32 s{sA2}, s{sA2}, s{sStI}", f"buffer_load_dwordx4 v{VW2}, {sr(S_W2,4)}, s{sA2} offen lds"]
        G_.append(L)
    if part == 'A' and kind != 'wo': G_[-1] += [f"s_add_u32 s{sXC}, s{sXC}, 64", f"s_and_b32 s{sXC}, s{sXC}, 0xfffffbff"]
    if part == 'B':
        G_[-1] += [{'p1': f"s_add_u32 s{sWo1}, s{sWo1}, {32*8192}", 'p2': f"s_add_u32 s{sWo2}, s{sWo2}, s{sStS}", 'wo': f"s_add_u32 s{sWoo}, s{sWoo}, 32768"}[kind]]
        G_[-1] += [f"s_add_u32 s{sSlot}, s{sSlot}, 32768", f"s_and_b32 s{sSlot}, s{sSlot}, 0x1ffff"]
    return G_

def frag_reads(p, k, fs, nj=2):
    b = FR + 40 * fs
    L = [f"ds_read_b128 {vr(b + 4*j, 4)}, v{XA + k} offset:{2048*j}" for j in range(nj)]
    for m in range(2 if p == 1 else 1):
        for tau in range(4):
            for pp in range(2):
                L.append(f"ds_read_b64_tr_b16 {vr(b + 8 + 16*m + 4*tau + 2*pp, 2)}, v{WA + tau} offset:{8192*m + (16*k + 4*pp)*256}")
    if p == 2:
        L.append(f"ds_read_b128 {vr(b + 24, 4)}, v{BA + k}")
        L.append(f"ds_read_b128 {vr(b + 28, 4)}, v{GA} offset:{32*k}")
    return L
def mfmas(p, fs, nj=2):
    b = FR + 40 * fs
    L = []
    x = lambda j: vr(b + 4 * j, 4)
    for tau in range(4):
        for j in range(nj):
            D = ar(64 * j + 16 * tau, 16); L.append((D, vr(b + 8 + 4 * tau, 4), x(j), D))
    if p == 1:
        for tau in range(4):
            for j in range(nj):
                D = ar(128 + 64 * j + 16 * tau, 16); L.append((D, x(j), vr(b + 24 + 4 * tau, 4), D))
    else:
        for q in range(2):
            for j in range(2):
                D = ar(128 + 32 * q + 16 * j, 16); L.append((D, vr(b + 24 + 4 * q, 4), x(j), D))
    return L
def adv_addr(p):
    L = []
    regs_ = [XA, XA + 1] + [WA + t for t in range(4)] + ([BA, BA + 1] if p == 2 else [])
    for r in regs_: L += [f"v_add_u32 v{r}, 0x8000, v{r}", f"v_and_b32 v{r}, 0x1ffff, v{r}"]
    if p == 2: L.append(f"v_add_u32 v{GA}, 64, v{GA}")
    return L

def stage_loop(a, name, p, kB, kA, n, nj=2):
    if n != 1:
        a(f"s_mov_b32 s{sCnt}, {n}")
        a.label(name)
    a("s_waitcnt lgkmcnt(0)")
    rd = frag_reads(p, 1, 1, nj); av = adv_addr(p); dg = dma_part('B', kB)
    M = mfmas(p, 0, nj); q = len(M) // 4
    for i, m in enumerate(M):
        mf(a, *m)
        for _ in range(2 if nj == 2 else (2 if i & 1 else 5)):
            if rd: a(rd.pop(0))
        if i % q == 1:
            for l in dg.pop(0): a(l)
        elif not rd:
            for _ in range(5 if nj == 2 else 6):
                if av: a(av.pop(0))
    assert not rd and not av and not dg
    a(f"s_waitcnt vmcnt({18 if p == 1 else 16}) lgkmcnt(0)\ns_barrier")
    rd = frag_reads(p, 0, 0, nj); dg = dma_part('A', kA)
    M = mfmas(p, 1, nj)
    for i, m in enumerate(M):
        mf(a, *m)
        for _ in range(2 if nj == 2 else (2 if i & 1 else 5)):
            if rd: a(rd.pop(0))
        if i % q == 1:
            for l in dg.pop(0): a(l)
        if p == 1 and i == (11 if nj == 2 else 4): a(f"buffer_store_dwordx4 v[44:47], v{L16}, {WS}, s{sClr} offen sc1\ns_add_u32 s{sClr}, s{sClr}, 1024")
        if p == 1 and i == (12 if nj == 2 else 6): a(f"s_and_b32 s{sA}, s{sClr}, 0xfff\ns_cselect_b32 s{sA}, 0, s{sX0}\ns_cselect_b32 s{sX0}, s{sX0}, 0x20000000\ns_add_u32 s{sClr}, s{sClr}, s{sA}")
        if i == len(M) - 1 and n != 1: a(f"s_sub_u32 s{sCnt}, s{sCnt}, 1\ns_cmp_lg_u32 s{sCnt}, 0")
    assert not rd and not dg
    if n != 1: a(f"s_cbranch_scc1 {name}")

SLEEP = [4]
def poll_fail(a, back, sl=None):
    a(f"s_add_u32 s{sSpin}, s{sSpin}, 1\ns_cmp_gt_u32 s{sSpin}, {HSPIN}\ns_cbranch_scc1 L_end\ns_sleep {sl or SLEEP[0]}\ns_branch {back}")

def unpack8(a, dst, src):
    for j in range(4):
        a(f"v_lshlrev_b32 v{dst+2*j}, 16, v{src+j}\nv_and_b32 v{dst+2*j+1}, 0xffff0000, v{src+j}")

def pw(a, LR, LI, A2, B2, n, cnt, tmp):
    for j in range(cnt):
        if n is None: a(f"v_exp_f32 v{tmp+j}, v{A2+j}\nv_fract_f32 v{LI+j}, v{B2+j}")
        else: a(f"v_mul_f32 v{tmp+j}, {n}, v{A2+j}\nv_mul_f32 v{LI+j}, {n}, v{B2+j}\nv_exp_f32 v{tmp+j}, v{tmp+j}\nv_fract_f32 v{LI+j}, v{LI+j}")
    for j in range(cnt): a(f"v_cos_f32 v{LR+j}, v{LI+j}\nv_sin_f32 v{LI+j}, v{LI+j}")
    a("s_nop 0")
    for j in range(cnt): a(f"v_mul_f32 v{LR+j}, v{LR+j}, v{tmp+j}\nv_mul_f32 v{LI+j}, v{LI+j}, v{tmp+j}")

def dtprep(a, A2, B2, DT, cnt):
    for j in range(cnt): a(f"v_mul_f32 v{DT+j}, {LOG2E}, v{DT+j}")
    for j in range(cnt): a(f"v_exp_f32 v{DT+j}, v{DT+j}")
    a("s_nop 0")
    for j in range(cnt): a(f"v_cvt_pk_bf16_f32 v{DT+j}, v{DT+j}, v{DT+j}")
    for j in range(cnt): a(f"v_and_b32 v{DT+j}, 0xffff0000, v{DT+j}")
    for j in range(cnt):
        a(f"v_mul_f32 v{A2+j}, v{DT+j}, v{A2+j}\nv_mul_f32 v{B2+j}, v{DT+j}, v{B2+j}")
        a(f"v_mul_f32 v{A2+j}, {LOG2E}, v{A2+j}\nv_mul_f32 v{B2+j}, 0.15915494, v{B2+j}")

def h_static(a):
    t = 32
    a(f"""
    v_bfe_u32 v{t}, v{LANE}, 2, 1
    v_bfe_u32 v{t+1}, v{LANE}, 3, 2
    v_and_b32 v{t+2}, 3, v{LANE}
    v_lshl_add_u32 v{t+3}, v{t+1}, 2, v{t+2}
    v_lshl_add_u32 v{t+3}, v{t}, 4, v{t+3}
    s_lshl_b32 s{sA}, s{sW}, 12
    """)
    xaddr(a, t + 3, f"s{sA}", XA)
    a(f"""
    v_bfe_u32 v{t+4}, v{LANE}, 2, 2             ; r'
    v_bfe_u32 v{t+5}, v{LANE}, 4, 1             ; half
    v_and_b32 v{t+6}, 1, v{LANE}
    v_bfe_u32 v{t+7}, v{LANE}, 1, 1
    v_lshl_add_u32 v{t+8}, v{t+5}, 1, v{t+7}
    v_lshl_add_u32 v{t+8}, v{t+6}, 2, v{t+8}
    v_lshlrev_b32 v{t+8}, 3, v{t+8}
    v_lshl_add_u32 v{t+9}, v{HH}, 3, v{t+4}
    v_lshl_add_u32 v{t+8}, v{t+9}, 8, v{t+8}
    v_lshl_add_u32 v{t+8}, v{t+4}, 6, v{t+8}
    v_add_u32 v{WA}, 16384, v{t+8}
    """)
    for tau in range(1, 4): a(f"v_xor_b32 v{WA+tau}, {64*tau}, v{WA}")
    for i in range(4): a(f"v_xor_b32 v{WOA+i}, {64*i}, v{L16}")
    for i in range(4): a(f"v_mov_b32 v{t+12+i}, -1")
    for i in range(256): a(f"v_accvgpr_write_b32 a{i}, 0")

def helper_task(a, P):
    DBG = sr(S_DBG, 4)
    SLEEP[0] = P.get('sleep', 4); OPT.clear(); OPT.update(P)
    def hs(k, alt=0):
        if P.get('alt') and not alt:
            if k in (4, 5, 6): return
            k = {2: 5, 3: 6}.get(k, k)
        if P.get('stat'): a(f"{'s_memtime' if P.get('hcyc') else 's_memrealtime'} s[{74+2*k}:{75+2*k}]")
    def signal(tag, off, so, nv, last='31'):
        a(f"""
        s_waitcnt vmcnt({nv})
        s_barrier
        s_cmp_lg_u32 s{sW}, 0
        s_cbranch_scc1 L_h_ns{tag}
        s_lshl_b32 s{sA}, s{sB}, 2
        v_mov_b32 v{T}, 1
        s_mov_b64 exec, 1
        buffer_atomic_add v{T}, off, {DBG}, {so} offset:{off} sc0
        v_mov_b32 v{T+1}, 32
        s_waitcnt vmcnt(0)
        v_cmp_eq_u32 vcc, {last}, v{T}
        s_cbranch_vccz L_h_ng{tag}
        buffer_store_dword v{T+1}, off, {DBG}, {so} offset:{off + DBG_DN} sc1
        """)
        a.label(f'L_h_ng{tag}')
        a("s_mov_b64 exec, -1")
        a.label(f'L_h_ns{tag}')
    a.label('L_h_task')
    hs(0)
    t = 32
    a(f"""
    s_lshl_b32 s{sSeg}, s{sB}, 3
    s_cmp_eq_u32 s{sMode}, 2
    s_cselect_b32 s{sSeg}, 4, s{sSeg}
    s_add_u32 s{sSeg}, s{sSeg}, s{sW}
    s_lshl_b32 s{sXC}, s{sSeg}, 15
    s_lshl_b32 s{sWo1}, s{sH}, 8
    s_and_b32 s{sA}, s{sW}, 1
    s_lshl_b32 s{sA}, s{sA}, 17
    s_add_u32 s{sWo1}, s{sWo1}, s{sA}
    s_lshl_b32 s{sA}, s{sH}, 14
    s_cmp_ge_u32 s{sW}, 2
    s_cselect_b32 s{sWo2}, s{sA}, s{sWo1}
    s_lshl_b32 s{sSlot}, s{sW}, 12
    s_lshl_b32 s{sWoo}, s{sH}, 17
    s_add_u32 s{sWoo}, s{sWoo}, s{sSlot}
    s_mov_b32 s{sSpin}, 0
    """)
    NE = P.get('nearly', 2)
    if P.get('pfw'): a("s_waitcnt vmcnt(0)"); hs(0)
    a(f"""
    s_sub_u32 s{sA3}, s{sB}, 1
    s_cmp_ge_u32 s{sA3}, 5
    s_cbranch_scc1 L_h_nt
    s_sub_u32 s{sA3}, s{sB}, 2
    {'s_waitcnt vmcnt(0)' if P.get('w1', 1) else ''}
    {'s_sleep %d' % P.get('s1', 0) if P.get('s1', 0) else ''}
    s_lshl_b32 s{sA}, s{sW}, 6
    v_add_u32 v{T}, s{sA}, v{LANE}
    v_lshlrev_b32 v{T+1}, 7, v{T}
    s_cmp_eq_u32 s{sB}, 1
    s_cbranch_scc1 L_h_t6
    v_lshrrev_b32 v{T+2}, 1, v{T}
    v_and_b32 v{T}, 128, v{T+1}
    v_lshl_add_u32 v{T}, v{T+2}, 13, v{T}
    s_lshl_b32 s{sA}, s{sA3}, 20
    s_lshl_b32 s{sA2}, s{sH}, 8
    s_add_u32 s{sA}, s{sA}, s{sA2}
    buffer_load_dword v255, v{T}, {sr(S_PF,4)}, s{sA} offen
    {'s_waitcnt vmcnt(0)' if P.get('w2', 1) else ''}
    s_lshl_b32 s{sA}, s{sA3}, 15
    s_lshl_b32 s{sA2}, s{sH}, 17
    s_add_u32 s{sA}, s{sA}, s{sA2}
    buffer_load_dword v255, v{T+1}, {sr(S_WO,4)}, s{sA} offen
    {'s_waitcnt vmcnt(0)' if P.get('w3', 1) else ''}
    s_branch L_h_nt
    """)
    a.label('L_h_t6')
    a(f"""
    v_lshlrev_b32 v{T+2}, 7, v{LANE}
    s_lshl_b32 s{sA}, s{sH}, 14
    buffer_load_dword v255, v{T+2}, {sr(S_W2,4)}, s{sA} offen
    s_add_u32 s{sA}, s{sA}, 8192
    buffer_load_dword v255, v{T+2}, {sr(S_W2,4)}, s{sA} offen
    v_and_b32 v{T+1}, 0x3fff, v{T+1}
    s_lshl_b32 s{sA}, s{sH}, 14
    v_add_u32 v{T+1}, s{sA}, v{T+1}
    global_load_dword v255, v{T+1}, {sr(P_CRE,2)}
    global_load_dword v255, v{T+1}, {sr(P_CIM,2)}
    """)
    a.label('L_h_nt')
    a(f"""
    s_cmp_lg_u32 s{sB}, 2
    s_cbranch_scc1 L_h_nse
    s_lshl_b32 s{sA}, s{sW}, 17
    s_lshl_b32 s{sA2}, s{sH}, 12
    s_add_u32 s{sA}, s{sA}, s{sA2}
    s_add_u32 s{sA}, s{sA}, {WS_KM}
    s_add_u32 s{sA2}, s{sA}, {4 << 17}
    """)
    for k in range(8): a(f"buffer_store_dwordx4 v[44:47], v{L16}, {WS}, s{sA if k < 4 else sA2} offen offset:{1024*(k&3)} sc1")
    signal('e', DBG_KV0, '0', 0, '63')
    for st in range(4):
        for g_ in dma_part('A', 'p1') + (dma_part('B', 'p1') if st < 3 else []):
            for l in g_: a(l)
    a(f"""
    s_lshl_b32 s{sA}, s{sSeg}, 17
    s_lshl_b32 s{sA2}, s{sH}, 12
    s_add_u32 s{sA}, s{sA}, s{sA2}
    s_add_u32 s{sClr}, s{sA}, {WS_KM}
    s_cmp_ge_u32 s{sMode}, 1
    s_cselect_b32 s{sClr}, 0x70000000, s{sClr}
    s_mov_b32 s{sX0}, {(4 << 17) - 4096}
    """)
    a(f"""
    s_lshl_b32 s{sA}, s{sB}, 5
    s_add_u32 s{sA}, s{sA}, s{sH}
    s_lshl_b32 s{sA}, s{sA}, 7
    s_add_u32 s{sA}, s{sA}, {WS_A}
    s_mov_b64 exec, 0xff
    buffer_store_dwordx4 {vr(t+12,4)}, v{L16}, {WS}, s{sA} offen sc1
    s_mov_b64 exec, -1
    s_lshl_b32 s{sA}, s{sH}, 2
    s_add_u32 s{sA}, s{sA}, s{sSeg}
    s_lshl_b32 s{sA}, s{sA}, 7
    s_add_u32 s{sA}, s{sA}, {WS_CNT}
    s_add_u32 s{sA2}, s{sH}, s{sMode}
    s_cmp_eq_u32 s{sMode}, 1
    s_cselect_b32 s{sA2}, s{sH}, s{sA2}
    s_cmp_lt_u32 s{sA2}, 2
    s_cselect_b32 s{sA}, s{sA}, 0x70000000
    v_mov_b32 v{t+16}, 0
    s_mov_b64 exec, 1
    buffer_store_dword v{t+16}, v{t+16}, {WS}, s{sA} offen sc1
    s_mov_b64 exec, -1
    global_load_dwordx4 {vr(t+20,4)}, v{L16}, {sr(P_GW,2)}
    """)
    a(f"""
    s_cmp_lg_u32 s{sB}, 7
    s_cbranch_scc1 L_h_n7
    s_add_u32 s{sA}, s{sSeg}, 4
    s_lshl_b32 s{sA}, s{sA}, 20
    s_lshl_b32 s{sA2}, s{sH}, 15
    s_add_u32 s{sA}, s{sA}, s{sA2}
    s_add_u32 s{sA}, s{sA}, {WS_PART}
    s_mov_b32 s{sCnt}, 8
    """)
    a.label('L_h_c7')
    for k in range(4): a(f"buffer_store_dwordx4 v[44:47], v{L16}, {WS}, s{sA} offen offset:{1024*k} sc1")
    a(f"s_add_u32 s{sA}, s{sA}, 4096\ns_sub_u32 s{sCnt}, s{sCnt}, 1\ns_cmp_lg_u32 s{sCnt}, 0\ns_cbranch_scc1 L_h_c7")
    a.label('L_h_n7')
    a(f"s_cmp_lt_u32 s{sB}, {NE}\ns_cbranch_scc1 L_h_go\ns_cmp_eq_u32 s{sMode}, 2\ns_cbranch_scc1 L_h_go")
    a(f"v_lshlrev_b32 v{T}, 7, v{LANE}\ns_and_b32 s{sA2}, s{sXC}, 0xfffffc00\ns_waitcnt vmcnt(0)")
    for k in range(8 if P.get('xt', 1) else 0): a(f"s_add_u32 s{sA}, s{sA2}, {(k >> 2) * 131072 + (k & 3) * 8192}\nbuffer_load_dword v255, v{T}, {sr(S_X,4)}, s{sA} offen")
    a(f"s_sub_i32 s{sA3}, s{sB}, {P.get('lag', 2)}\ns_max_i32 s{sA3}, s{sA3}, 0\ns_cmp_eq_u32 s{sB}, 7\ns_cselect_b32 s{sA3}, 0, s{sA3}\ns_lshl_b32 s{sA3}, s{sA3}, 2")
    a(f"s_cmp_lg_u32 s{sW}, 0\ns_cbranch_scc1 L_h_go")
    a.label('L_h_w0')
    a(f"buffer_load_dword v{T}, off, {DBG}, s{sA3} offset:{DBG_DN + DBG_KVC} sc1\ns_waitcnt vmcnt(0)\nv_cmp_eq_u32 vcc, 0, v{T}\ns_cbranch_vccz L_h_go")
    poll_fail(a, 'L_h_w0', 8)
    a.label('L_h_go')
    a(f"s_waitcnt vmcnt({20 + 3})\ns_barrier")
    hs(1)
    for l in frag_reads(1, 0, 0): a(l)
    gw = f"v_add_u32 v{T}, {H_GW}, v{L16}\nds_write_b128 v{T}, {vr(t+20,4)}"
    a(f"s_cmp_eq_u32 s{sMode}, 0\ns_cbranch_scc1 L_h_full")
    if P.get('alt'):
        stage_loop(a, 'L_h_q1x', 1, 'p1', 'x', 4, 1); hs(2, 1)
        stage_loop(a, 'L_h_q1y', 1, 'p1', 'x', 4, 1); hs(3, 1)
        stage_loop(a, 'L_h_q1a', 1, 'p1', 'x', 5, 1); hs(4, 1)
    else: stage_loop(a, 'L_h_q1a', 1, 'p1', 'x', 13, 1)
    a(gw)
    stage_loop(a, 'L_h_q1b', 1, 'p2', 'x', 3, 1)
    a("s_branch L_h_e1")
    a.label('L_h_full')
    stage_loop(a, 'L_h_p1a', 1, 'p1', 'x', 13)
    a(gw)
    stage_loop(a, 'L_h_p1b', 1, 'p2', 'x', 3)
    a.label('L_h_e1')
    hs(2)
    a(f"""
    s_lshl_b32 s{sA3}, s{sSeg}, 19
    s_lshl_b32 s{sA2}, s{sH}, 14
    s_add_u32 s{sA3}, s{sA3}, s{sA2}
    s_add_u32 s{sA3}, s{sA3}, {WS_KV}
    s_waitcnt lgkmcnt(0)
    s_nop 7
    """)
    TM = 240
    def kv_store(j, m, tau):
        dst = (KF if m == 0 else VF) + 32 * j + 8 * tau
        a(f"s_add_u32 s{sA}, s{sA3}, {j * (4 << 19) + 4096 * tau}")
        for u in range(2): a(f"buffer_store_dwordx4 {vr(dst+4*u,4)}, v{VKV}, {WS}, s{sA} offen offset:{2048*m + 256*u} sc1")
    for j in range(2):
        for m in range(2):
            for tau in range(4):
                src = 128 * m + 64 * j + 16 * tau; dst = (KF if m == 0 else VF) + 32 * j + 8 * tau
                for r in range(16): a(f"v_accvgpr_read_b32 v{TM+r}, a{src+r}")
                for r in range(8): a(f"v_cvt_pk_bf16_f32 v{dst+r}, v{TM+2*r}, v{TM+2*r+1}")
                if j == 0:
                    a(f"s_cmp_eq_u32 s{sMode}, 0\ns_cbranch_scc1 L_h_sk{j}{m}{tau}")
                    kv_store(j, m, tau)
                    a.label(f'L_h_sk{j}{m}{tau}')
        if j == 0:
            a(f"s_cmp_eq_u32 s{sMode}, 0\ns_cbranch_scc1 L_h_j1\ns_lshl_b32 s{sA2}, s{sMode}, 2\ns_cmp_eq_u32 s{sMode}, 1\ns_cselect_b32 s{sA4}, 63, 31")
            if P.get('dlyh'): a(f"s_sleep {P['dlyh']}")
            signal('a', DBG_KV0 - 4, f"s{sA2}", 0, f"s{sA4}")
            a(f"s_cmp_eq_u32 s{sMode}, 1\ns_cbranch_scc1 L_h_nj1\ns_mov_b32 s{sMode}, 0\ns_waitcnt vmcnt(0) lgkmcnt(0)\ns_branch L_h_again")
            a.label('L_h_j1')
    a.label('L_h_nj1')
    for i in range(192): a(f"v_accvgpr_write_b32 a{i}, 0")
    a(f"s_lshl_b32 s{sA}, s{sW}, 12")
    xaddr(a, VN, f"s{sA}", XA)
    a(f"""
    v_bfe_u32 v{TM}, v{LANE}, 2, 1
    v_bfe_u32 v{TM+1}, v{LANE}, 3, 1
    v_and_b32 v{TM+2}, 3, v{LANE}
    v_lshl_add_u32 v{TM+2}, v{TM+1}, 2, v{TM+2}
    v_lshl_add_u32 v{TM+2}, v{TM}, 3, v{TM+2}      ; ch
    v_bfe_u32 v{TM+3}, v{LANE}, 4, 1
    v_lshlrev_b32 v{TM+3}, 12, v{TM+3}
    v_add_u32 v{TM+3}, 24576, v{TM+3}
    v_lshlrev_b32 v{GA}, 4, v{HH}
    v_add_u32 v{GA}, {H_GW}, v{GA}
    """)
    xaddr(a, TM + 2, f"v{TM+3}", BA)
    hs(3)
    for l in frag_reads(2, 0, 0): a(l)
    a(f"s_lshl_b32 s{sA4}, s{sB}, 1\ns_and_b32 s{sA4}, s{sA4}, {2 if P.get('lag', 2) == 2 else 14}\ns_sub_i32 s{sA4}, s{sA4}, {-1 if P.get('lag', 2) == 2 else 3}\ns_max_i32 s{sA4}, s{sA4}, 1\ns_cmp_eq_u32 s{sB}, 7\ns_cselect_b32 s{sA4}, 1, s{sA4}\ns_sub_u32 s{sJ}, 12, s{sA4}")
    stage_loop(a, 'L_h_p20', 2, 'p2', 'x', f"s{sA4}")
    a(f"s_cmp_eq_u32 s{sMode}, 0\ns_cbranch_scc1 L_h_st\ns_cmp_lg_u32 s{sW}, 0\ns_cbranch_scc1 L_h_l1")
    a.label('L_h_l0')
    a(f"buffer_load_dword v{T}, off, {DBG}, 0 offset:{DBG_DN + DBG_KVC} sc1\ns_waitcnt vmcnt(0)\nv_cmp_eq_u32 vcc, 0, v{T}\ns_cbranch_vccz L_h_l1")
    poll_fail(a, 'L_h_l0', 8)
    a.label('L_h_l1')
    a("s_barrier")
    n0 = len(a.lines)
    for m in range(2):
        for tau in range(4): kv_store(1, m, tau)
    a.lines[n0:] = [l.replace('buffer_store', 'buffer_load') for l in a.lines[n0:]]
    a(f"s_mov_b32 s{sMode}, 0\ns_branch L_h_nsc")
    a.label('L_h_st')
    for j in range(2):
        for m in range(2):
            for tau in range(4): kv_store(j, m, tau)
    signal('c', DBG_KVC, f"s{sA}", 0)
    stage_loop(a, 'L_h_p2a', 2, 'p2', 'x', f"s{sJ}")
    stage_loop(a, 'L_h_p2c', 2, 'p2', 'wo', 1)
    stage_loop(a, 'L_h_p2b', 2, 'wo', 'wo', 3)
    for g_ in dma_part('B', 'wo'):
        for l in g_: a(l)
    hs(4)
    a("s_waitcnt lgkmcnt(0)\ns_nop 7")
    PK = 128 + 0
    for j in range(2):
        for tau in range(4):
            src = 64 * j + 16 * tau; dst = QF + 32 * j + 8 * tau
            for r in range(16): a(f"v_accvgpr_read_b32 v{TM+r}, a{src+r}")
            for r in range(8): a(f"v_cvt_pk_bf16_f32 v{dst+r}, v{TM+2*r}, v{TM+2*r+1}")
    a(f"""
    v_bfe_u32 v{T}, v{LANE}, 2, 1
    v_bfe_u32 v{T+1}, v{LANE}, 3, 1
    v_and_b32 v{T+2}, 0x13, v{LANE}
    v_lshl_add_u32 v{T+2}, v{T+1}, 2, v{T+2}
    v_lshl_add_u32 v{T+2}, v{T}, 3, v{T+2}
    v_lshlrev_b32 v{T+2}, 10, v{T+2}
    s_lshl_b32 s{sA}, s{sH}, 5
    v_lshl_add_u32 v{T+1}, v{HH}, 4, s{sA}
    v_add_u32 v{T+2}, v{T+2}, v{T+1}
    """)
    for j in range(2):
        for k in range(8):
            D = vr(SS + 16 * j, 16)
            mf(a, D, vr(KF + 32 * j + 4 * k, 4), vr(QF + 32 * j + 4 * k, 4), D if k else 0)
            tile = 8 * j + k
            a(f"global_load_dwordx4 {ar(8*tile,4)}, v{T+2}, {sr(P_CRE,2)}\nglobal_load_dwordx4 {ar(8*tile+4,4)}, v{T+2}, {sr(P_CIM,2)}")
            a(f"v_add_u32 v{T+2}, 32768, v{T+2}")
    RI = 32
    for r in range(32): a(f"v_accvgpr_read_b32 v{RI+r}, a{128+r}")
    a(f"v_accvgpr_read_b32 v{G}, a160\nv_accvgpr_read_b32 v{MX}, a176")
    A2, B2, LR, LI = 64, 72, 80, 88
    a(f"global_load_dwordx4 {vr(LR,4)}, v{T+1}, {sr(P_LRE,2)}\nglobal_load_dwordx4 {vr(LR+4,4)}, v{T+1}, {sr(P_LIM,2)}\nglobal_load_dwordx4 {vr(LI,4)}, v{T+1}, {sr(P_LDT,2)}")
    for r in (G, MX): a(f"v_mul_f32 v{r}, 0xbfb8aa3b, v{r}")
    for r in (G, MX): a(f"v_exp_f32 v{r}, v{r}")
    a("s_nop 0")
    for r in (G, MX): a(f"v_add_f32 v{r}, 1.0, v{r}")
    for r in (G, MX): a(f"v_rcp_f32 v{r}, v{r}")
    a(f"v_lshlrev_b32 v{T}, 4, v{HH}\nv_sub_u32 v{T}, v{VN}, v{T}\nv_mov_b32 v{T+2}, 0xff800000")
    for r in range(16):
        a(f"v_cmp_le_i32 vcc, {r}, v{T}\ns_nop 1")
        for j in range(2): a(f"v_cndmask_b32 v{SS+16*j+r}, v{T+2}, v{SS+16*j+r}, vcc")
    PQ, PV, PS, PH, PG = 128, 160, 192, 208, 216
    for r in range(32): a(f"v_accvgpr_write_b32 a{PQ+r}, v{QF+32+r}\nv_accvgpr_write_b32 a{PV+r}, v{VF+32+r}")
    for r in range(16): a(f"v_accvgpr_write_b32 a{PS+r}, v{SS+16+r}")
    a(f"v_accvgpr_write_b32 a{PG}, v{MX}")
    CA, CB, CD = 192, 193, 194
    a(f"""
    v_and_b32 v{T}, 15, v{LANE}
    s_lshl_b32 s{sA}, s{sH}, 5
    v_lshl_add_u32 v{T+2}, v{T}, 1, s{sA}
    global_load_ushort v{CA}, v{T+2}, {sr(P_LRE,2)}
    global_load_ushort v{CB}, v{T+2}, {sr(P_LIM,2)}
    global_load_ushort v{CD}, v{T+2}, {sr(P_LDT,2)}
    s_waitcnt vmcnt(0)
    """)
    TT, LE, LM = 128, 136, 144
    unpack8(a, LE, LR); unpack8(a, LM, LR + 4); unpack8(a, TT, LI)
    for j in range(8): a(f"v_mov_b32 v{A2+j}, v{LE+j}\nv_mov_b32 v{B2+j}, v{LM+j}")
    dtprep(a, A2, B2, TT, 8)
    pw(a, LR, LI, A2, B2, None, 8, TT)
    for j in range(8):
        a(f"""
        v_mul_f32 v{TT}, v{LE+j}, v{LE+j}
        v_fmac_f32 v{TT}, v{LM+j}, v{LM+j}
        v_rcp_f32 v{TT}, v{TT}
        v_add_f32 v{TT+1}, -1.0, v{LR+j}
        v_mul_f32 v{TT+2}, v{TT+1}, v{LE+j}
        v_fmac_f32 v{TT+2}, v{LI+j}, v{LM+j}
        v_mul_f32 v{TT+3}, v{LI+j}, v{LE+j}
        v_fma_f32 v{TT+3}, -v{TT+1}, v{LM+j}, v{TT+3}
        v_mul_f32 v{LE+j}, v{TT+2}, v{TT}
        v_mul_f32 v{LM+j}, v{TT+3}, v{TT}
        """)
    for d in (1, 2, 4, 8):
        dp = f"row_shr:{d} row_mask:0xf bank_mask:0xf bound_ctrl:1"
        for j in range(2):
            R, I = RI + 16 * j, RI + 16 * j + 8
            for c in range(8): a(f"v_mov_b32 v{TT+c}, v{R+c}")
            for c in range(8): a(f"v_fmac_f32_dpp v{R+c}, v{R+c}, v{LR+c} {dp}")
            for c in range(8): a(f"v_fmac_f32_dpp v{R+c}, -v{I+c}, v{LI+c} {dp}")
            for c in range(8): a(f"v_fmac_f32_dpp v{I+c}, v{I+c}, v{LR+c} {dp}")
            for c in range(8): a(f"v_fmac_f32_dpp v{I+c}, v{TT+c}, v{LI+c} {dp}")
        if d < 8:
            for c in range(8):
                a(f"v_mul_f32 v{TT}, v{LI+c}, v{LI+c}\nv_add_f32 v{TT+1}, v{LR+c}, v{LR+c}\nv_fma_f32 v{LR+c}, v{LR+c}, v{LR+c}, -v{TT}\nv_mul_f32 v{LI+c}, v{TT+1}, v{LI+c}")
    a(f"v_and_b32 v{T+2}, 15, v{LANE}\nv_add_u32 v{T+2}, 1, v{T+2}\nv_cvt_f32_u32 v{T+2}, v{T+2}")
    pw(a, LR, LI, A2, B2, f"v{T+2}", 8, TT)
    dp = "row_bcast:15 row_mask:0xa bank_mask:0xf"
    for j in range(2):
        R, I = RI + 16 * j, RI + 16 * j + 8
        for c in range(8): a(f"v_fmac_f32_dpp v{R+c}, v{R+c}, v{LR+c} {dp}")
        for c in range(8): a(f"v_fmac_f32_dpp v{R+c}, -v{I+c}, v{LI+c} {dp}")
        for c in range(8): a(f"v_fmac_f32_dpp v{I+c}, v{I+c}, v{LR+c} {dp}")
        for c in range(8): a(f"v_fmac_f32_dpp v{I+c}, v{R+c}, v{LI+c} {dp}")
    a(f"""
    s_lshl_b32 s{sA}, s{sW}, 7
    s_add_u32 s{sA}, s{sA}, {H_E}
    v_lshl_add_u32 v{T+2}, v{HH}, 5, s{sA}
    s_mov_b32 exec_lo, 0x80000000
    s_mov_b32 exec_hi, 0x80000000
    """)
    for j in range(2):
        for q in range(4): a(f"ds_write_b128 v{T+2}, {vr(RI + 16*j + 4*q, 4)} offset:{512*j + 64*(q>>1) + 16*(q&1)}")
    a("s_mov_b64 exec, -1")
    a(f"v_lshlrev_b32 v{CA}, 16, v{CA}\nv_lshlrev_b32 v{CB}, 16, v{CB}\nv_lshlrev_b32 v{CD}, 16, v{CD}")
    dtprep(a, CA, CB, CD, 1)
    U, W_ = 196, 198
    pw(a, U, U + 1, CA, CB, "0x42000000", 1, CD)
    pw(a, W_, W_ + 1, CA, CB, "0x43800000", 1, CD)
    a(f"v_add_u32 v{T+2}, 1, v{VN}\nv_cvt_f32_u32 v{T+2}, v{T+2}")
    pw(a, LR, LI, A2, B2, f"v{T+2}", 8, TT)
    EE = 200
    a(f"v_lshlrev_b32 v{T}, 2, v{T}\nv_add_u32 v{T+2}, {H_E}, v{T}\ns_waitcnt lgkmcnt(0)\ns_barrier")
    for s_ in range(8): a(f"ds_read2_b32 {vr(EE+2*s_,2)}, v{T+2} offset0:{32*s_} offset1:{32*s_+16}")
    AC_ = 216
    def cmac(M_, Er):
        a(f"""
        v_fma_f32 v{AC_+2}, v{M_}, v{AC_}, v{Er}
        v_fma_f32 v{AC_+3}, v{M_}, v{AC_+1}, v{Er+1}
        v_fma_f32 v{AC_+2}, -v{M_+1}, v{AC_+1}, v{AC_+2}
        v_fma_f32 v{AC_+1}, v{M_+1}, v{AC_}, v{AC_+3}
        v_mov_b32 v{AC_}, v{AC_+2}
        """)
    a(f"s_waitcnt lgkmcnt(0)\nv_mov_b32 v{AC_}, v{EE}\nv_mov_b32 v{AC_+1}, v{EE+1}")
    for s_ in range(1, 8): cmac(U, EE + 2 * s_)
    a(f"""
    v_min_u32 v{AC_}, -2, v{AC_}
    v_min_u32 v{AC_+1}, -2, v{AC_+1}
    v_lshlrev_b32 v{T+1}, 1, v{T}
    s_lshl_b32 s{sA3}, s{sH}, 7
    s_add_u32 s{sA3}, s{sA3}, {WS_A}
    s_lshl_b32 s{sA}, s{sB}, 12
    s_add_u32 s{sA}, s{sA}, s{sA3}
    s_cmp_eq_u32 s{sW}, 0
    s_cselect_b32 s{sA}, s{sA}, 0x70000000
    buffer_store_dwordx2 {vr(AC_,2)}, v{T+1}, {WS}, s{sA} offen sc1
    v_and_b32 v{T+2}, 7, v{LANE}
    v_cmp_ge_u32 {sr(sM,2)}, s{sB}, v{T+2}
    v_lshlrev_b32 v{T+2}, 2, v{T+2}
    v_mov_b32 v{AC_}, 0
    v_mov_b32 v{AC_+1}, 0
    s_mov_b32 s{sCnt}, 0
    """)
    a.label('L_h_wk')
    a(f"""
    buffer_load_dword v{AC_+2}, v{T+2}, {DBG}, 0 offen offset:{DBG_DN + DBG_KV0} sc1
    s_waitcnt vmcnt(0)
    v_cmp_gt_u32 vcc, 32, v{AC_+2}
    s_and_b64 vcc, vcc, {sr(sM,2)}
    s_cbranch_vccz L_h_wa
    """)
    poll_fail(a, 'L_h_wk')
    a.label('L_h_wa')
    a(f"""
    s_cmp_ge_u32 s{sCnt}, s{sB}
    s_cbranch_scc1 L_h_wd
    buffer_load_dwordx2 {vr(220,2)}, v{T+1}, {WS}, s{sA3} offen sc1
    s_waitcnt vmcnt(0)
    v_max_u32 v{AC_+2}, v220, v221
    v_cmp_eq_u32 vcc, -1, v{AC_+2}
    s_cbranch_vccz L_h_wb
    """)
    poll_fail(a, 'L_h_wa')
    a.label('L_h_wb')
    cmac(W_, 220)
    a(f"s_add_u32 s{sCnt}, s{sCnt}, 1\ns_add_u32 s{sA3}, s{sA3}, 4096\ns_branch L_h_wa")
    a.label('L_h_wd')
    a(f"s_lshl_b32 s{sA}, s{sW}, 10\ns_add_u32 s{sA}, s{sA}, {H_C}\nv_add_u32 v{T+2}, s{sA}, v{T}")
    for s_ in range(8):
        a(f"ds_write2_b32 v{T+2}, v{AC_}, v{AC_+1} offset0:{32*s_} offset1:{32*s_+16}")
        if s_ < 7: cmac(U, EE + 2 * s_)
    a(f"""
    s_lshl_b32 s{sA2}, s{sW}, 7
    s_add_u32 s{sA}, s{sA}, s{sA2}
    v_lshl_add_u32 v{T+2}, v{HH}, 5, s{sA}
    s_waitcnt lgkmcnt(0)
    """)
    CC = 192
    for j in range(2):
        for q in range(4): a(f"ds_read_b128 {vr(CC + 16*j + 4*q, 4)}, v{T+2} offset:{512*j + 64*(q>>1) + 16*(q&1)}")
    a(f"v_add_f32 v{T}, v{G}, v{G}\nv_add_f32 v{T+1}, v{MX}, v{MX}\ns_waitcnt lgkmcnt(0)")
    for j in range(2):
        R, I, cr, ci = RI + 16 * j, RI + 16 * j + 8, CC + 16 * j, CC + 16 * j + 8
        for c in range(8):
            a(f"""
            v_fmac_f32 v{R+c}, v{LR+c}, v{cr+c}
            v_fmac_f32 v{I+c}, v{LR+c}, v{ci+c}
            v_fma_f32 v{R+c}, -v{LI+c}, v{ci+c}, v{R+c}
            v_fmac_f32 v{I+c}, v{LI+c}, v{cr+c}
            v_mul_f32 v{cr+c}, v{R+c}, v{LE+c}
            v_mul_f32 v{ci+c}, v{R+c}, v{LM+c}
            v_fma_f32 v{cr+c}, -v{I+c}, v{LM+c}, v{cr+c}
            v_fmac_f32 v{ci+c}, v{I+c}, v{LE+c}
            v_mul_f32 v{cr+c}, v{cr+c}, v{T+j}
            v_mul_f32_e64 v{ci+c}, -v{ci+c}, v{T+j}
            """)
        for r in range(8): a(f"v_cvt_pk_bf16_f32 v{HF+8*j+r}, v{cr+2*r}, v{cr+2*r+1}")
    for r in range(8): a(f"v_accvgpr_write_b32 a{PH+r}, v{HF+8+r}")
    a(f"""
    v_bfe_u32 v{t+4}, v{LANE}, 2, 2
    v_bfe_u32 v{t+5}, v{LANE}, 4, 1
    v_and_b32 v{t+6}, 1, v{LANE}
    v_bfe_u32 v{t+7}, v{LANE}, 1, 1
    v_lshl_add_u32 v{t+8}, v{t+6}, 1, v{t+7}
    v_lshl_add_u32 v{t+8}, v{t+5}, 2, v{t+8}
    v_lshlrev_b32 v{t+8}, 3, v{t+8}
    v_lshl_add_u32 v{t+9}, v{HH}, 4, v{t+4}
    v_lshl_add_u32 v{t+8}, v{t+9}, 10, v{t+8}
    v_lshl_add_u32 v{WOA}, v{t+4}, 6, v{t+8}
    """)
    for tt in range(1, 4): a(f"v_xor_b32 v{WOA+tt}, {64*tt}, v{WOA}")
    for tt in range(4): a(f"v_add_u32 v{WOA+4+tt}, 0x10000, v{WOA+tt}")
    a(f"s_mov_b32 s{sJ}, 0")
    MINI = P.get('mini', 1)
    if MINI:
        a(f"""
        s_cmp_lg_u32 s{sB}, 7
        s_cbranch_scc1 L_h_nsd
        s_lshl_b32 s{sA2}, s{sW}, 5
        s_add_u32 s{sA2}, s{sA2}, s{sH}
        s_mul_i32 s{sA2}, s{sA2}, {23*1024}
        s_add_u32 s{sA2}, s{sA2}, {WS_ST}
        """)
        for q in range(23):
            a(f"buffer_store_dwordx4 {ar(128+4*q,4)}, v{L16}, {WS}, s{sA2} offen offset:{1024*(q&3)} sc1")
            if q & 3 == 3: a(f"s_add_u32 s{sA2}, s{sA2}, 4096")
        signal('d', DBG_ST, '0', 0)
    hs(5)
    a.label('L_h_seg')
    KMF, VMF, SM, PX, PM, OA_ = 32, 64, 80, 248, 128, 192
    a(f"v_max3_f32 v{MX}, v{SS}, v{SS+1}, v{SS+2}")
    for r in range(3, 15, 2): a(f"v_max3_f32 v{MX}, v{MX}, v{SS+r}, v{SS+r+1}")
    a(f"""
    v_max_f32 v{MX}, v{MX}, v{SS+15}
    s_lshl_b32 s{sA}, s{sSeg}, 17
    s_lshl_b32 s{sA2}, s{sH}, 12
    s_add_u32 s{sA}, s{sA}, s{sA2}
    s_add_u32 s{sA}, s{sA}, {WS_KM}
    s_cmp_lt_u32 s{sSeg}, 48
    s_cselect_b32 s{sA2}, {P.get('pm', 7)}, {P.get('pm6', 3)}
    s_cmp_lt_u32 s{sSeg}, 56
    s_cselect_b32 s{sA2}, s{sA2}, {P.get('pm7', 1)}
    s_cmp_lt_u32 s{sSeg}, 60
    s_cselect_b32 s{sA2}, s{sA2}, 0
    s_or_b32 s{sA2}, s{sA2}, s{sSeg}
    s_min_u32 s{sA2}, s{sA2}, 62
    s_sub_i32 s{sA2}, s{sA2}, s{sSeg}
    s_lshl_b32 s{sA2}, s{sA2}, 17
    s_add_u32 s{sA2}, s{sA}, s{sA2}
    s_mov_b32 s{sA4}, 0x3e0293ee
    s_lshl_b32 s{sA3}, s{sW}, 12
    s_add_u32 s{sA3}, s{sA3}, {H_K}
    v_add_u32 v{T+1}, s{sA3}, v{L16}
    v_add_u32 v{T+2}, 2048, v{VKM}
    """)
    for tau in range(4): a(f"v_mov_b64 {vr(VMF + 4*tau + 2, 2)}, 0")
    a(f"v_mov_b64 {vr(PM+2,2)}, 0")
    a.label('L_h_pr')
    a(f"""
    buffer_load_dword v{T}, off, {WS}, s{sA2} offset:3072 sc1
    s_waitcnt vmcnt(0)
    v_cmp_eq_u32 vcc, -1, v{T}
    s_cbranch_vccz L_h_ld
    """)
    poll_fail(a, 'L_h_pr')
    a.label('L_h_pf')
    a(f"s_add_u32 s{sSpin}, s{sSpin}, 1\ns_cmp_gt_u32 s{sSpin}, {HSPIN}\ns_cbranch_scc1 L_end")
    a.label('L_h_ld')
    LD = 192
    for k in range(4): a(f"buffer_load_dwordx4 {vr(LD + 4*k, 4)}, v{L16}, {WS}, s{sA} offen offset:{1024*k} sc1")
    a("s_waitcnt vmcnt(0)")
    hs(6)
    for k in range(4): a(f"ds_write_b128 v{T+1}, {vr(LD + 4*k, 4)} offset:{1024*k}")
    a(f"v_max3_u32 v{T}, v{LD}, v{LD+1}, v{LD+2}")
    for r in range(3, 15, 2): a(f"v_max3_u32 v{T}, v{T}, v{LD+r}, v{LD+r+1}")
    a(f"v_max_u32 v{T}, v{T}, v{LD+15}\nv_cmp_eq_u32 vcc, -1, v{T}\ns_cbranch_vccnz L_h_pf")
    for k in range(8):
        o = ((k >> 1) & 1) * 128 + (k & 1) * 32
        a(f"ds_read2_b64 {vr(KMF + 4*k, 4)}, v{VKM if k < 4 else T+2} offset0:{o} offset1:{o+16}")
    for tau in range(4): a(f"ds_read2st64_b32 {vr(VMF + 4*tau, 2)}, v{VVM} offset0:{4*tau} offset1:{4*tau+2}")
    for k in range(8):
        a(f"s_waitcnt lgkmcnt({11-k})")
        mf(a, vr(SM, 16), vr(KMF + 4 * k, 4), vr(QF + 4 * k, 4), vr(SM, 16) if k else 0)
    a("s_waitcnt lgkmcnt(0)\ns_nop 11")
    a(f"""
    v_max3_f32 v{T}, v{MX}, v{SM}, v{SM+1}
    v_max3_f32 v{T}, v{T}, v{SM+2}, v{SM+3}
    v_mov_b32 v{T+1}, v{T}
    s_nop 1
    v_permlane32_swap_b32 v{T}, v{T+1}
    v_max_f32 v{T}, v{T}, v{T+1}
    v_mul_f32 v{T}, s{sA4}, v{T}
    """)
    ev = [SM + r for r in range(4)] + [SS + r for r in range(16)]
    for r in ev: a(f"v_fma_f32 v{r}, v{r}, s{sA4}, -v{T}")
    for r in ev: a(f"v_exp_f32 v{r}, v{r}")
    a(f"v_cvt_pk_bf16_f32 v{PM}, v{SM}, v{SM+1}\nv_cvt_pk_bf16_f32 v{PM+1}, v{SM+2}, v{SM+3}")
    for r in range(8): a(f"v_cvt_pk_bf16_f32 v{PX+r}, v{SS+2*r}, v{SS+2*r+1}")
    sm = [f"v_add_f32 v{T}, v{ev[0]}, v{ev[1]}"] + [f"v_add_f32 v{T}, v{T}, v{r}" for r in ev[2:]]
    sm += [f"v_mov_b32 v{T+1}, v{T}", f"v_sub_f32 v{T+2}, 1.0, v{G}", "s_nop 0", f"v_permlane32_swap_b32 v{T}, v{T+1}", f"v_add_f32 v{T}, v{T}, v{T+1}",
           f"v_rcp_f32 v{T}, v{T}", "s_nop 0", f"v_mul_f32 v{T}, v{T}, v{T+2}"]
    WF = 32
    wrd = lambda tile: [f"ds_read_b64_tr_b16 {vr(WF + 32*(tile&1) + 4*k + 2*pp, 2)}, v{WOA + 4*(k>>2) + (tile&3)} offset:{(32*((k>>1)&1) + 8*(k&1) + 4*pp)*1024 + 256*(tile>>2)}"
                        for k in range(8) for pp in range(2)]
    rd = wrd(0)
    OB = [192, 208, 132, 148]
    OB = [192, 208, 132, 80]
    def onorm(tau):
        L_ = [f"v_mul_f32 v{OB[tau]+r}, v{OB[tau]+r}, v{T}" for r in range(16)]
        L_ += [f"v_cvt_pk_bf16_f32 v{QF+8*tau+r}, v{OB[tau]+2*r}, v{OB[tau]+2*r+1}" for r in range(8)]
        return L_
    n = 0
    for tau in range(4):
        D = vr(OB[tau], 16)
        for k in range(3):
            if k == 0: mf(a, D, vr(VMF + 4 * tau, 4), vr(PM, 4), 0)
            else: mf(a, D, vr(VF + 8 * tau + 4 * (k - 1), 4), vr(PX + 4 * (k - 1), 4), D)
            for _ in range(2):
                if rd: a(rd.pop(0))
            if n == 6: sm += onorm(0)
            if n == 9: sm += onorm(1)
            for _ in range(6):
                if sm: a(sm.pop(0))
            n += 1
    for l in sm + onorm(2) + onorm(3): a(l)
    hs(7)
    a(f"""
    s_lshl_b32 s{sA}, s{sSeg}, 20
    s_lshl_b32 s{sA2}, s{sH}, 10
    s_add_u32 s{sA}, s{sA}, s{sA2}
    s_add_u32 s{sA}, s{sA}, {WS_PART}
    """)
    CT = 128
    def epi(tile):
        D = 192 + 16 * (tile & 1); c = CT + 8 * (tile & 1)
        L_ = []
        for u in range(2):
            L_ += [f"v_cvt_pk_bf16_f32 v{c+4*u+r}, v{D+8*u+2*r}, v{D+8*u+2*r+1}\nv_min_u32 v{c+4*u+r}, -2, v{c+4*u+r}" for r in range(4)]
        for u in range(2):
            L_ += [f"buffer_store_dwordx4 {vr(c+4*u,4)}, v{L16}, {WS}, s{sA} offen sc1\ns_add_u32 s{sA}, s{sA}, 32768"]
        return L_
    for tile in range(16):
        D = vr(192 + 16 * (tile & 1), 16)
        rd = wrd(tile + 1) if tile < 15 else []
        ep = epi(tile - 1) if tile else []
        for k in range(10):
            if k == 2: a("s_waitcnt lgkmcnt(0)")
            if k < 2: mf(a, D, ar(8 * tile + 4 * k, 4), vr(HF + 4 * k, 4), D if k else 0)
            else: mf(a, D, vr(WF + 32 * (tile & 1) + 4 * (k - 2), 4), vr(QF + 4 * (k - 2), 4), D)
            if k >= 2:
                for _ in range(2):
                    if rd: a(rd.pop(0))
            if ep and k >= 6 and len(ep) <= 2: a(ep.pop(0))
            elif ep and k >= 1 and len(ep) > 2:
                a(ep.pop(0)); a(ep.pop(0))
        assert not ep and not rd
    a("s_nop 12")
    for l in epi(15): a(l)
    hs(8)
    a(f"""
    s_lshl_b32 s{sA4}, s{sSeg}, 7
    s_add_u32 s{sA4}, s{sA4}, {WS_CNT}
    v_mov_b32 v220, 1
    """)
    if MINI: a(f"s_cmp_eq_u32 s{sB}, 7\ns_cselect_b32 s{sJ}, 3, s{sJ}\ns_cbranch_scc1 L_h_s7")
    a(f"s_cmp_lg_u32 s{sJ}, 0\ns_cbranch_scc1 L_h_sg")
    for r in range(32): a(f"v_accvgpr_read_b32 v{QF+r}, a{PQ+r}\nv_accvgpr_read_b32 v{VF+r}, a{PV+r}")
    for r in range(16): a(f"v_accvgpr_read_b32 v{SS+r}, a{PS+r}")
    for r in range(8): a(f"v_accvgpr_read_b32 v{HF+r}, a{PH+r}")
    a.label('L_h_sg')
    a(f"""
    v_accvgpr_read_b32 v{T}, a{PG}
    v_accvgpr_write_b32 a{PG}, v{G}
    s_xor_b32 s{sSeg}, s{sSeg}, 4
    s_add_u32 s{sJ}, s{sJ}, 1
    v_mov_b32 v{G}, v{T}
    L_h_s7:
    s_waitcnt vmcnt(0)
    s_mov_b64 exec, 1
    buffer_atomic_add v220, off, {WS}, s{sA4}
    s_mov_b64 exec, -1
    s_cmp_eq_u32 s{sJ}, 1
    s_cbranch_scc1 L_h_seg
    """)
    SELR, XS, DS_ = 216, 208, 212
    XU, DU = 224, 232
    def red_prep(SELR, DS_):
        a(f"""
        s_lshl_b32 s{sA2}, s{sH}, 5
        v_lshlrev_b32 v{T+1}, 4, v{HH}
        v_lshl_add_u32 v{T+2}, v{VN}, 10, v{T+1}
        v_add_u32 v{T+1}, s{sA2}, v{T+1}
        global_load_dwordx4 {vr(DS_,4)}, v{T+1}, {sr(P_DSK,2)}
        v_lshlrev_b32 v{MX}, 1, v{T+2}
        v_bfe_u32 v{t}, v{LANE}, 2, 1
        v_bfe_u32 v{t+1}, v{LANE}, 3, 2
        v_and_b32 v{t+2}, 3, v{LANE}
        v_lshl_add_u32 v{t+1}, v{t+1}, 2, v{t+2}
        v_cmp_eq_u32 vcc, v{t}, v{HH}
        v_mov_b32 v{t+3}, 64
        s_mov_b32 s{sA2}, 0x3f80
        v_cndmask_b32 v{t+1}, v{t+3}, v{t+1}, vcc
        v_and_b32 v{t+2}, 1, v{t+1}
        v_lshlrev_b32 v{t+2}, 4, v{t+2}
        v_lshlrev_b32 v{t+2}, v{t+2}, s{sA2}
        v_lshrrev_b32 v{t+1}, 1, v{t+1}
        """)
        for d in range(4): a(f"v_cmp_eq_u32 vcc, {d}, v{t+1}\ns_nop 1\nv_cndmask_b32 v{SELR+d}, 0, v{t+2}, vcc")
    red_prep(SELR, DS_)
    a.label('L_h_red')
    a(f"""
    s_lshl_b32 s{sA3}, s{sSeg}, 15
    s_lshl_b32 s{sA2}, s{sH}, 5
    s_add_u32 s{sA3}, s{sA3}, s{sA2}
    buffer_load_dwordx4 {vr(XS,4)}, v{T+2}, {sr(S_X,4)}, s{sA3} offen
    s_lshl_b32 s{sA4}, s{sSeg}, 7
    s_add_u32 s{sA4}, s{sA4}, {WS_CNT}
    s_lshl_b32 s{sA}, s{sSeg}, 20
    s_lshl_b32 s{sA2}, s{sH}, 15
    s_add_u32 s{sA}, s{sA}, s{sA2}
    s_add_u32 s{sA}, s{sA}, {WS_PART}
    s_lshl_b32 s{sA3}, s{sA3}, 1
    s_cmp_ge_u32 s{sSeg}, {60 if P.get('sg', 1) else 64}
    s_cbranch_scc1 L_h_rd
    """)
    a.label('L_h_wc')
    a(f"""
    buffer_load_dword v220, off, {WS}, s{sA4} sc1
    s_waitcnt vmcnt(0)
    v_cmp_gt_u32 vcc, 32, v220
    s_cbranch_vccz L_h_rd
    """)
    poll_fail(a, 'L_h_wc', P.get('slc', 2))
    a.label('L_h_rf')
    a(f"s_add_u32 s{sSpin}, s{sSpin}, 1\ns_cmp_gt_u32 s{sSpin}, {HSPIN}\ns_cbranch_scc1 L_end")
    a.label('L_h_rd')
    hs(9)
    for k in range(32):
        if k & 3 == 0: a(f"s_add_u32 s{sA2}, s{sA}, {1024*k}")
        a(f"buffer_load_dwordx4 {vr(32+4*k,4)}, v{L16}, {WS}, s{sA2} offen offset:{1024*(k&3)} sc1")
    a("s_waitcnt vmcnt(32)")
    unpack8(a, XU, XS); unpack8(a, DU, DS_)
    for r in range(8): a(f"v_mul_f32 v{XU+r}, v{XU+r}, v{DU+r}")
    a(f"v_mov_b32 v{T}, 0")
    for k in range(32):
        a(f"s_waitcnt vmcnt({31-k})")
        mf(a, vr(192, 16), vr(SELR, 4), vr(32 + 4 * k, 4), vr(192, 16) if k else 0)
        a(f"v_max3_u32 v{T}, v{T}, v{32+4*k}, v{33+4*k}\nv_max3_u32 v{T}, v{T}, v{34+4*k}, v{35+4*k}")
    a(f"v_cmp_eq_u32 vcc, -1, v{T}\ns_cbranch_vccnz L_h_rf\ns_nop 7")
    for r in range(8): a(f"v_fmac_f32 v{192+r}, v{XU+r}, v{G}")
    OF = P.get('of', '')
    a(f"""
    buffer_store_dwordx4 v[192:195], v{MX}, {sr(S_OUT,4)}, s{sA3} offen {OF}
    buffer_store_dwordx4 v[196:199], v{MX}, {sr(S_OUT,4)}, s{sA3} offen offset:16 {OF}
    v_accvgpr_read_b32 v{G}, a{PG}
    s_xor_b32 s{sSeg}, s{sSeg}, 4
    s_add_u32 s{sJ}, s{sJ}, 1
    s_cmp_eq_u32 s{sJ}, 3
    s_cbranch_scc1 L_h_red
    """)
    a.label('L_h_done')
    if P.get('stat'):
        a("s_waitcnt vmcnt(0)"); hs(10); a("s_waitcnt lgkmcnt(0)")
        for k in range(11): a(f"v_mov_b32 v{32+k}, s{74+2*k}")
        a(f"v_mov_b32 v43, s98\ns_lshl_b32 s{sA}, s{sB}, 5\ns_add_u32 s{sA}, s{sA}, s{sH}\ns_lshl_b32 s{sA}, s{sA}, 2\ns_add_u32 s{sA}, s{sA}, s{sW}\ns_lshl_b32 s{sA}, s{sA}, 6\ns_add_u32 s{sA}, s{sA}, {(49 << 20) + (512 << 10)}\ns_mov_b64 exec, 1")
        for q in range(3): a(f"buffer_store_dwordx4 {vr(32+4*q,4)}, v{L16}, {WS}, s{sA} offen offset:{16*q}")
        a("s_mov_b64 exec, -1")
    a(f"""
    s_cmp_lg_u32 s{sB}, 0
    s_cbranch_scc1 {'L_h_mini' if MINI else 'L_end'}
    s_mov_b32 s{sB}, 7
    s_waitcnt vmcnt(0)
    s_branch L_h_again
    """)
    if not MINI: return
    a.label('L_h_mini')
    a(f"""
    s_sub_u32 s{sA3}, s{sB}, 2
    s_cmp_ge_u32 s{sA3}, 4
    s_cbranch_scc1 L_end
    s_add_u32 s{sSeg}, s{sB}, 58
    s_add_u32 s{sB}, s{sB}, 6
    s_mov_b32 s{sSpin}, 0
    s_lshl_b32 s{sA}, s{sW}, 8
    """)
    AQ, AV, AH, AC_2 = 128, 160, 192, 200
    for i in range(8): a(f"v_add_u32 v{WOA+i}, s{sA}, v{WOA+i}")
    for tt in range(4):
        for k in range(8):
            for pp in range(2): a(f"ds_read_b64_tr_b16 {ar(32*tt + 4*k + 2*pp, 2)}, v{WOA + 4*(k>>2) + tt} offset:{(32*((k>>1)&1) + 8*(k&1) + 4*pp)*1024}")
    a(f"""
    v_bfe_u32 v{T}, v{LANE}, 2, 1
    v_bfe_u32 v{T+1}, v{LANE}, 3, 1
    v_and_b32 v{T+2}, 0x13, v{LANE}
    v_lshl_add_u32 v{T+2}, v{T+1}, 2, v{T+2}
    v_lshl_add_u32 v{T+2}, v{T}, 3, v{T+2}
    v_lshlrev_b32 v{T+2}, 10, v{T+2}
    s_lshl_b32 s{sA}, s{sH}, 5
    s_lshl_b32 s{sA2}, s{sW}, 17
    s_add_u32 s{sA}, s{sA}, s{sA2}
    v_lshl_add_u32 v{T+1}, v{HH}, 4, s{sA}
    v_add_u32 v{T+2}, v{T+2}, v{T+1}
    """)
    for tt in range(4):
        a(f"global_load_dwordx4 {ar(AC_2+8*tt,4)}, v{T+2}, {sr(P_CRE,2)}\nglobal_load_dwordx4 {ar(AC_2+8*tt+4,4)}, v{T+2}, {sr(P_CIM,2)}")
        if tt < 3: a(f"v_add_u32 v{T+2}, 32768, v{T+2}")
    SELM, XM = 20, 24
    a("s_waitcnt lgkmcnt(0)")
    red_prep(SELM, 244)
    a(f"""
    s_lshl_b32 s{sWoo}, s{sSeg}, 15
    s_lshl_b32 s{sA2}, s{sH}, 5
    s_add_u32 s{sWoo}, s{sWoo}, s{sA2}
    buffer_load_dwordx4 v[240:243], v{T+2}, {sr(S_X,4)}, s{sWoo} offen
    s_lshl_b32 s{sWoo}, s{sWoo}, 1
    s_lshl_b32 s{sA}, s{sW}, 4
    v_add_u32 v{VKV}, s{sA}, v{MX}
    s_cmp_lg_u32 s{sW}, 0
    s_cbranch_scc1 L_m_st
    """)
    a.label('L_m_w0')
    a(f"buffer_load_dword v{T}, off, {DBG}, 0 offset:{DBG_DN + DBG_ST} sc1\ns_waitcnt vmcnt(0)\nv_cmp_eq_u32 vcc, 0, v{T}\ns_cbranch_vccz L_m_st")
    poll_fail(a, 'L_m_w0', 16)
    a.label('L_m_st')
    a(f"""
    s_waitcnt vmcnt(0)
    s_barrier
    s_lshl_b32 s{sA2}, s{sA3}, 5
    s_add_u32 s{sA2}, s{sA2}, s{sH}
    s_mul_i32 s{sA2}, s{sA2}, {23*1024}
    s_add_u32 s{sA2}, s{sA2}, {WS_ST}
    """)
    for q in range(23):
        dst = ar(AQ + 4 * q, 4) if q < 16 else vr(SS + 4 * (q - 16), 4) if q < 20 else ar(AH + 4 * (q - 20), 4) if q < 22 else vr(248, 4)
        a(f"buffer_load_dwordx4 {dst}, v{L16}, {WS}, s{sA2} offen offset:{1024*(q&3)} sc1")
        if q & 3 == 3: a(f"s_add_u32 s{sA2}, s{sA2}, 4096")
    unpack8(a, 32, 240); unpack8(a, 40, 244)
    for r in range(8): a(f"v_mul_f32 v{32+r}, v{32+r}, v{40+r}")
    a(f"s_bitcmp1_b32 s{sW}, 0\ns_cselect_b64 vcc, -1, 0\ns_mov_b32 s{sA4}, 0x3e0293ee\ns_waitcnt vmcnt(0)\nv_mov_b32 v{G}, v248")
    for r in range(4): a(f"v_cndmask_b32 v{XM+r}, v{32+r}, v{36+r}, vcc")
    for r in range(4): a(f"v_mul_f32 v{XM+r}, v{XM+r}, v{G}")
    LX = XA
    a(f"v_max3_f32 v{MX}, v{SS}, v{SS+1}, v{SS+2}")
    for r in range(3, 15, 2): a(f"v_max3_f32 v{MX}, v{MX}, v{SS+r}, v{SS+r+1}")
    a(f"""
    v_max_f32 v{MX}, v{MX}, v{SS+15}
    v_mov_b32 v{T+1}, v{MX}
    s_nop 1
    v_permlane32_swap_b32 v{MX}, v{T+1}
    v_max_f32 v{MX}, v{MX}, v{T+1}
    v_mul_f32 v{T}, s{sA4}, v{MX}
    """)
    for r in range(16): a(f"v_fma_f32 v{SS+r}, v{SS+r}, s{sA4}, -v{T}")
    for r in range(16): a(f"v_exp_f32 v{SS+r}, v{SS+r}")
    for r in range(8): a(f"v_cvt_pk_bf16_f32 v{248+r}, v{SS+2*r}, v{SS+2*r+1}")
    a(f"v_add_f32 v{LX}, v{SS}, v{SS+1}")
    for r in range(2, 16): a(f"v_add_f32 v{LX}, v{LX}, v{SS+r}")
    for tau in range(4):
        for u in range(2): mf(a, vr(32 + 16 * tau, 16), ar(AV + 8 * tau + 4 * u, 4), vr(248 + 4 * u, 4), vr(32 + 16 * tau, 16) if u else 0)
    a("s_nop 12")
    for r in range(32): a(f"v_cvt_pk_bf16_f32 v{96+r}, v{32+2*r}, v{33+2*r}")
    YC, YX = 96, 160
    a("s_nop 1")
    for tt in range(4):
        for k in range(8): mf(a, vr(YX + 16 * tt, 16), ar(32 * tt + 4 * k, 4), vr(96 + 4 * k, 4), vr(YX + 16 * tt, 16) if k else 0)
    a("s_nop 7")
    for tt in range(4):
        for k in range(2): mf(a, vr(YC + 16 * tt, 16), ar(AC_2 + 8 * tt + 4 * k, 4), ar(AH + 4 * k, 4), vr(YC + 16 * tt, 16) if k else 0)
    PMm, LDm = 240, 244
    a(f"""
    s_lshl_b32 s{sA}, s{sSeg}, 17
    s_lshl_b32 s{sA2}, s{sH}, 12
    s_add_u32 s{sA}, s{sA}, s{sA2}
    s_add_u32 s{sA}, s{sA}, {WS_KM}
    s_cmp_ge_u32 s{sSeg}, {P.get('mfp', 63)}
    s_cselect_b32 s{sA2}, {1 << 17}, 0
    s_sub_u32 s{sA2}, s{sA}, s{sA2}
    s_lshl_b32 s{sA3}, s{sW}, 10
    s_add_u32 s{sA}, s{sA}, s{sA3}
    s_add_u32 s{sA3}, s{sA3}, {H_K}
    v_add_u32 v{XA+1}, s{sA3}, v{L16}
    s_lshl_b32 s{sA3}, s{sW}, 12
    v_subrev_u32 v{VKM}, s{sA3}, v{VKM}
    v_subrev_u32 v{VVM}, s{sA3}, v{VVM}
    v_add_u32 v{T+2}, 2048, v{VKM}
    v_sub_f32 v{G}, 1.0, v{G}
    s_lshl_b32 s{sWo1}, s{sSeg}, 20
    s_add_u32 s{sWo1}, s{sWo1}, {WS_PART}
    s_lshl_b32 s{sA3}, s{sH}, 15
    s_add_u32 s{sWo2}, s{sWo1}, s{sA3}
    s_lshl_b32 s{sA3}, s{sW}, 13
    s_add_u32 s{sWo2}, s{sWo2}, s{sA3}
    s_add_u32 s{sSlot}, s{sWo2}, 4096
    s_lshl_b32 s{sA3}, s{sH}, 10
    s_add_u32 s{sWo1}, s{sWo1}, s{sA3}
    s_lshl_b32 s{sA3}, s{sW}, 18
    s_add_u32 s{sWo1}, s{sWo1}, s{sA3}
    """)
    for tau in range(4): a(f"v_mov_b64 {vr(VMF + 4*tau + 2, 2)}, 0")
    a(f"v_mov_b64 {vr(PMm+2,2)}, 0")
    a("s_getpc_b64 s[60:61]")
    a.label('L_m_pc')
    a(f"v_lshlrev_b32 v{T}, 3, v{L16}\nv_min_u32 v{T}, L_m_fin-L_m_pc, v{T}\nglobal_load_dword v{T}, v{T}, s[60:61]")
    hs(5)
    a.label('L_m_pr')
    a(f"buffer_load_dword v{T}, off, {WS}, s{sA2} offset:3072 sc1\ns_waitcnt vmcnt(0)\nv_cmp_eq_u32 vcc, -1, v{T}\ns_cbranch_vccz L_m_ld")
    poll_fail(a, 'L_m_pr', P.get('mps', 2))
    a.label('L_m_pf')
    a(f"s_add_u32 s{sSpin}, s{sSpin}, 1\ns_cmp_gt_u32 s{sSpin}, {HSPIN}\ns_cbranch_scc1 L_end")
    a.label('L_m_ld')
    a(f"""
    buffer_load_dwordx4 {vr(LDm,4)}, v{L16}, {WS}, s{sA} offen sc1
    s_waitcnt vmcnt(0)
    ds_write_b128 v{XA+1}, {vr(LDm,4)}
    v_max3_u32 v{T}, v{LDm}, v{LDm+1}, v{LDm+2}
    v_max_u32 v{T}, v{T}, v{LDm+3}
    v_cmp_eq_u32 vcc, -1, v{T}
    s_cbranch_vccnz L_m_pf
    s_waitcnt lgkmcnt(0)
    s_barrier
    """)
    for k in range(8):
        o = ((k >> 1) & 1) * 128 + (k & 1) * 32
        a(f"ds_read2_b64 {vr(KMF + 4*k, 4)}, v{VKM if k < 4 else T+2} offset0:{o} offset1:{o+16}")
    for tau in range(4): a(f"ds_read2st64_b32 {vr(VMF + 4*tau, 2)}, v{VVM} offset0:{4*tau} offset1:{4*tau+2}")
    for k in range(8):
        a(f"s_waitcnt lgkmcnt({11-k})")
        mf(a, vr(SM, 16), vr(KMF + 4 * k, 4), ar(AQ + 4 * k, 4), vr(SM, 16) if k else 0)
    hs(6)
    a(f"""
    s_waitcnt lgkmcnt(0)
    s_nop 11
    v_max3_f32 v{T}, v{MX}, v{SM}, v{SM+1}
    v_max3_f32 v{T}, v{T}, v{SM+2}, v{SM+3}
    v_mov_b32 v{T+1}, v{T}
    s_nop 1
    v_permlane32_swap_b32 v{T}, v{T+1}
    v_max_f32 v{T}, v{T}, v{T+1}
    v_mul_f32 v{T}, s{sA4}, v{T}
    """)
    for r in [SM, SM + 1, SM + 2, SM + 3, MX]: a(f"v_fma_f32 v{r}, v{r}, s{sA4}, -v{T}")
    for r in [SM, SM + 1, SM + 2, SM + 3, MX]: a(f"v_exp_f32 v{r}, v{r}")
    a(f"""
    v_add_f32 v{T}, v{SM}, v{SM+1}
    v_add_f32 v{T+1}, v{SM+2}, v{SM+3}
    v_fmac_f32 v{T}, v{LX}, v{MX}
    v_add_f32 v{T}, v{T}, v{T+1}
    v_mov_b32 v{T+1}, v{T}
    s_nop 1
    v_permlane32_swap_b32 v{T}, v{T+1}
    v_add_f32 v{T}, v{T}, v{T+1}
    v_rcp_f32 v{T}, v{T}
    s_nop 0
    v_mul_f32 v{T}, v{T}, v{G}
    """)
    for r in range(4): a(f"v_mul_f32 v{SM+r}, v{SM+r}, v{T}")
    a(f"v_cvt_pk_bf16_f32 v{PMm}, v{SM}, v{SM+1}\nv_cvt_pk_bf16_f32 v{PMm+1}, v{SM+2}, v{SM+3}\nv_mul_f32 v{MX}, v{MX}, v{T}")
    OBm = [32, 48, 80, 224]; OF = 160
    fm = [f"v_fmac_f32 v{YC+r}, v{YX+r}, v{MX}" for r in range(64)]
    a(fm.pop(0))
    for tau in range(4):
        mf(a, vr(OBm[tau], 16), vr(VMF + 4 * tau, 4), vr(PMm, 4), 0)
        for _ in range(6): a(fm.pop(0))
    for _ in range(7): a(fm.pop(0))
    cvo = lambda tau: [f"v_cvt_pk_bf16_f32 v{OF+8*tau+r}, v{OBm[tau]+2*r}, v{OBm[tau]+2*r+1}" for r in range(8)]
    for l in cvo(0): a(l)
    fill = cvo(1) + cvo(2) + cvo(3) + fm
    a(fill.pop(0)); a(fill.pop(0))
    CTm = 32
    def epim(tt):
        L_ = [f"v_cvt_pk_bf16_f32 v{CTm+8*tt+r}, v{YC+16*tt+2*r}, v{YC+16*tt+2*r+1}\nv_min_u32 v{CTm+8*tt+r}, -2, v{CTm+8*tt+r}" for r in range(8)]
        L_ += [f"buffer_store_dwordx4 {vr(CTm+8*tt+4*u,4)}, v{L16}, {WS}, s{sWo1} offen sc1\ns_add_u32 s{sWo1}, s{sWo1}, 32768" for u in range(2)]
        return L_
    order = [(tt, k) for k in range(8) for tt in range(2)] + [(2, k) for k in range(8)] + [(3, k) for k in range(8)]
    ep = []
    for n, (tt, k) in enumerate(order):
        mf(a, vr(YC + 16 * tt, 16), ar(32 * tt + 4 * k, 4), vr(OF + 4 * k, 4), vr(YC + 16 * tt, 16))
        for _ in range(6):
            if fill: a(fill.pop(0))
        if n == 17: ep += epim(0) + epim(1)
        if n == 25: ep += epim(2)
        for _ in range(3):
            if ep: a(ep.pop(0))
    assert not fill and not ep
    a("s_nop 12")
    for l in epim(3): a(l)
    hs(8)
    a(f"s_lshl_b32 s{sA3}, s{sW}, 11\ns_add_u32 s{sA3}, s{sA3}, {H_K + 4096}\nv_add_u32 v{T+1}, s{sA3}, v{L16}")
    a(f"s_lshl_b32 s{sA3}, s{sW}, 10\ns_add_u32 s{sA3}, s{sA3}, {H_K + 4096}\nv_add_u32 v{T+2}, s{sA3}, v{L16}")
    a(f"v_and_b32 v{MX}, 7, v{LANE}\nv_lshlrev_b32 v{MX}, 10, v{MX}")
    a(f"s_waitcnt vmcnt({P.get('mdr', 0)})")
    a(f"""
    s_cmp_ge_u32 s{sSeg}, {P.get('mth', 60)}
    s_cbranch_scc1 {'L_m_rd' if P.get('mg', 0) else 'L_m_rf'}
    s_barrier
    s_cmp_lg_u32 s{sW}, 0
    s_cbranch_scc1 L_m_c1
    s_lshl_b32 s{sA4}, s{sSeg}, 7
    s_add_u32 s{sA4}, s{sA4}, {WS_CNT}
    v_mov_b32 v{T}, 1
    s_mov_b64 exec, 1
    buffer_atomic_add v{T}, off, {WS}, s{sA4}
    s_mov_b64 exec, -1
    """)
    a.label('L_m_c0')
    a(f"buffer_load_dword v{T}, off, {WS}, s{sA4} sc1\ns_waitcnt vmcnt(0)\nv_cmp_gt_u32 vcc, 32, v{T}\ns_cbranch_vccz L_m_c1")
    poll_fail(a, 'L_m_c0', P.get('slc', 2))
    a.label('L_m_c1')
    a("s_barrier\ns_branch L_m_rd")
    a.label('L_m_rf')
    a(f"""
    s_mov_b64 exec, 0xff
    buffer_load_dword v{T}, v{MX}, {WS}, s{sWo2} offen offset:1020 sc1
    s_add_u32 s{sSpin}, s{sSpin}, 1
    s_cmp_gt_u32 s{sSpin}, {HSPIN}
    s_cbranch_scc1 L_end
    s_waitcnt vmcnt(0)
    v_cmp_eq_u32 vcc, -1, v{T}
    s_mov_b64 exec, -1
    s_cbranch_vccz L_m_rd
    s_sleep {P.get('msl', 1)}
    s_branch L_m_rf
    """)
    a.label('L_m_rd')
    hs(9)
    for k in range(8): a(f"buffer_load_dwordx4 {vr(96+4*k,4)}, v{L16}, {WS}, s{sWo2 if k < 4 else sSlot} offen offset:{1024*(k&3)} sc1")
    a(f"v_mov_b32 v{T}, 0")
    for k in range(8):
        a(f"s_waitcnt vmcnt({7-k})")
        mf(a, vr(64, 16), vr(SELM, 4), vr(96 + 4 * k, 4), vr(64, 16) if k else 0)
        a(f"v_max3_u32 v{T}, v{T}, v{96+4*k}, v{97+4*k}\nv_max3_u32 v{T}, v{T}, v{98+4*k}, v{99+4*k}")
    a(f"""
    v_cmp_eq_u32 vcc, -1, v{T}
    s_cbranch_vccnz L_m_rf
    s_nop 7
    ds_write_b128 v{T+1}, v[64:67]
    ds_write_b128 v{T+1}, v[68:71] offset:1024
    s_waitcnt lgkmcnt(0)
    s_barrier
    s_cmp_ge_u32 s{sW}, 2
    s_cbranch_scc1 L_m_fin
    """)
    for k in range(4): a(f"ds_read_b128 {vr(96+4*k,4)}, v{T+2} offset:{2048*k}")
    for k in range(4):
        a(f"s_waitcnt lgkmcnt({3-k})")
        a(f"v_pk_add_f32 {vr(XM,2)}, {vr(XM,2)}, {vr(96+4*k,2)}\nv_pk_add_f32 {vr(XM+2,2)}, {vr(XM+2,2)}, {vr(98+4*k,2)}")
    a(f"buffer_store_dwordx4 {vr(XM,4)}, v{VKV}, {sr(S_OUT,4)}, s{sWoo} offen")
    a.label('L_m_fin')
    a("s_branch L_h_done" if P.get('stat') else "s_branch L_hend" if P.get('dbgt') else "s_branch L_end")

if __name__ == '__main__':
    a = Asm(); h_once(a); helper_task(a, {})
    errs, ins = check(a.lines, 'helper')
    for e in errs: print(e)
    print(len(ins), ins[-1]['t'])
```

```python
import sys, json
from asmlib import *
import chain, helper
from chain import *
KNAME = 'gated_mix__ssm_conv_s5__memory_aug_recurrent_mem_tr__prompt_kernel'
L_EL = {'c': 16384 - 16, 'h': 163840 - 16}
JUNK = {'c': 127, 'h': 255}

def ticket(a, tag, off_s):
    a(f"""
    s_cmp_lg_u32 s{sW}, 0
    s_cbranch_scc1 L_tk_{tag}
    s_mov_b64 exec, 1
    v_mov_b32 v126, 1
    buffer_atomic_add v126, off, {sr(S_DBG,4)}, {off_s} sc0
    s_mov_b64 exec, -1
    """)
    a.label(f'L_tk_{tag}')
def ticket_get(a, tag, nyoung):
    a(f"""
    v_mov_b32 v125, {L_EL[tag]}
    s_cmp_lg_u32 s{sW}, 0
    s_cbranch_scc1 L_tg_{tag}
    s_waitcnt vmcnt({nyoung})
    s_mov_b64 exec, 1
    ds_write_b32 v125, v126
    s_mov_b64 exec, -1
    s_waitcnt lgkmcnt(0)
    """)
    a.label(f'L_tg_{tag}')
    a(f"""
    s_barrier
    ds_read_b32 v126, v125
    s_waitcnt lgkmcnt(0)
    v_readfirstlane_b32 s{sT+1}, v126
    s_cmp_ge_u32 s{sT+1}, 32
    s_cbranch_scc1 L_end
    """)
def code_pref(a, lo, hi, n=2):
    if not n: return 0
    a(f"s_getpc_b64 s[60:61]")
    a.label(f'L_pc_{lo}')
    a("v_lshlrev_b32 v1, 7, v0")
    for k in range(n):
        if k: a("v_add_u32 v1, 0x8000, v1")
        a(f"v_min_u32 v2, {hi}-L_pc_{lo}-4, v1\nglobal_load_dword v{JUNK[lo]}, v2, s[60:61]")
    return n

def build_kernel(P):
    a = Asm()
    a("s_cmp_ge_u32 s2, 256\ns_cbranch_scc1 L_end")
    srd(a, S_DBG, 144, 256); srd(a, S_WS, 152, WS_SIZE)
    if P.get('stat') or P.get('dbgt'): a("s_memtime s[96:97]\ns_memrealtime s[98:99]")
    a(f"""
    s_getreg_b32 s{sT}, hwreg(HW_REG_XCC_ID, 0, 3)
    v_lshrrev_b32 v1, 6, v0
    s_bfe_u32 s3, s2, 0x50003
    s_xor_b32 s{sT}, s{sT}, {P.get('xc', 3)}
    v_readfirstlane_b32 s{sW}, v1
    s_cmp_eq_u32 s{sT}, 0
    s_cbranch_scc0 L_helper
    """)
    n0 = 0; errs = []
    srd(a, S_WV, 104, 4194304); srd(a, S_WK, 96, 4194304); srd(a, S_WQ, 88, 4194304); srd(a, S_WO, 112, 4194304); srd(a, S_M0, 80, 8192)
    a("s_waitcnt lgkmcnt(0)")
    ticket(a, 'c', '0')
    a(f"""
    v_lshrrev_b32 v1, 1, v0
    v_and_b32 v2, 1, v0
    v_lshlrev_b32 v2, 7, v2
    v_lshl_add_u32 v1, v1, 13, v2
    s_lshl_b32 s{sT+2}, s3, 8
    buffer_load_dword v127, v1, {sr(S_WV,4)}, s{sT+2} offen
    """)
    if not P.get('cpf', 0): a.lines.pop()
    ncp = code_pref(a, 'c', 'L_top_0', P.get('ccp', 0))
    ticket_get(a, 'c', ncp + (1 if P.get('cpf', 0) else 0))
    a(f"s_mov_b32 s{sH}, s{sT+1}")
    if P.get('stat'):
        for r in [70, 71] + list(range(88, 96)): a(f"s_mov_b32 s{r}, 0")
        a("s_memtime s[60:61]")
    a.lg = []; a.vm = []
    chain.PF[0] = P.get('pf', 'sc1')
    plan_units(P)
    chain_first_dma(a)
    chain_setup(a)
    chain_prologue(a, P)
    e, _ = check(a.lines[n0:], 'cpro'); errs += e
    vm0 = list(a.vm)
    for w in range(4):
        n0 = len(a.lines)
        chain_prologue_w(a, P, w, vm0)
        e, _ = check(a.lines[n0:], f'cpro{w}'); errs += e
    for w in range(4):
        a(".p2align 6")
        n0 = len(a.lines)
        n1, _ = chain_step(a, P, w)
        e, ins = check(a.lines[n0:n1] * 2, f'loop{w}'); errs += e
        e, _ = check(a.lines[n1:], f'retry{w}'); errs += e
    a.label('L_exit')
    if P.get('stat'):
        a("s_memtime s[66:67]\ns_memrealtime s[72:73]\ns_waitcnt lgkmcnt(0)\ns_nop 7")
        for k in range(8): a(f"v_mov_b32 v{40+k}, s{88+k}")
        a(f"""
        s_mov_b32 s93, s72
        s_mov_b32 s94, s98
        s_mov_b32 s92, s100
        s_sub_u32 s91, s72, s62
        s_sub_u32 s88, s66, s96
        s_sub_u32 s66, s66, s68
        s_mov_b32 s90, s62
        s_sub_u32 s95, s60, s96
        v_mov_b32 v24, s64
        v_mov_b32 v25, s66
        v_mov_b32 v26, s70
        v_mov_b32 v27, s71
        s_lshl_b32 s{sT}, s{sH}, 2
        s_add_u32 s{sT}, s{sT}, s{sW}
        s_lshl_b32 s{sT}, s{sT}, 7
        s_add_u32 s{sT}, s{sT}, {WS_STAMP}
        v_mov_b32 v28, 0
        buffer_store_dwordx4 v[24:27], v28, {sr(S_WS,4)}, s{sT} offen
        """)
        for k in range(8): a(f"v_mov_b32 v{32+k}, s{88+k}")
        for q in range(4): a(f"buffer_store_dwordx4 {vr(32+4*q,4)}, v28, {sr(S_WS,4)}, s{sT} offen offset:{16+16*q}")
    if P.get('dbgt'):
        a(f"""
        s_memtime s[66:67]
        s_memrealtime s[72:73]
        s_waitcnt lgkmcnt(0)
        s_sub_u32 s66, s66, s96
        s_sub_u32 s72, s72, s98
        s_sub_u32 s100, s100, s98
        s_mov_b64 exec, 1
        v_mov_b32 v24, s100
        v_mov_b32 v25, s72
        v_mov_b32 v26, s66
        buffer_atomic_umax v24, off, {sr(S_DBG,4)}, 0 offset:48
        buffer_atomic_umax v25, off, {sr(S_DBG,4)}, 0 offset:52
        buffer_atomic_umax v26, off, {sr(S_DBG,4)}, 0 offset:60
        s_branch L_end
        L_hend:
        s_waitcnt vmcnt(0)
        s_memrealtime s[72:73]
        s_waitcnt lgkmcnt(0)
        s_sub_u32 s72, s72, s98
        s_mov_b64 exec, 1
        v_mov_b32 v25, s72
        buffer_atomic_umax v25, off, {sr(S_DBG,4)}, 0 offset:56
        """)
    a("s_endpgm")
    a(".p2align 6")
    a.label('L_helper')
    if P.get('nohelp'): a("s_branch L_end")
    n0 = len(a.lines)
    helper.h_ptrs(a)
    a(f"s_sub_u32 s{sT}, s{sT}, 1\ns_mul_i32 s56, s{sT}, 43\ns_lshr_b32 s56, s56, 7\ns_mul_i32 s57, s56, -188\ns_lshl_b32 s56, s{sT}, 6\ns_add_u32 s57, s57, s56\ns_add_u32 s57, s57, 112\ns_waitcnt lgkmcnt(0)")
    ticket(a, 'h', "s57")
    ny = helper.h_prefetch(a, sT)
    code_pref(a, 'h', 'L_end')
    helper.h_once(a)
    a(f"s_mov_b32 s{helper.sB}, 0")
    a.label('L_h_again')
    helper.h_static(a)
    a(f"s_cmp_lg_u32 s{helper.sB}, 0\ns_cbranch_scc0 L_h_first\ns_barrier\ns_branch L_h_task")
    a.label('L_h_first')
    ticket_get(a, 'h', ny + 2)
    a(f"""
    s_lshl_b32 s{sT}, s{sT}, 5
    s_add_u32 s{sT}, s{sT}, s{sT+1}
    s_mul_i32 s{sH}, s{sT}, 9363
    s_lshr_b32 s{sH}, s{sH}, 16
    s_mul_i32 s{sT+1}, s{sH}, 7
    s_sub_u32 s{helper.sB}, s{sT}, s{sT+1}
    s_cmp_eq_u32 s{helper.sB}, 0
    s_cselect_b32 s{helper.sMode}, 1, 0
    s_cmp_eq_u32 s{helper.sB}, 6
    s_cselect_b32 s{helper.sMode}, 2, s{helper.sMode}
    """)
    helper.helper_task(a, P)
    e, _ = check(a.lines[n0:], 'helper'); errs += e
    a.label('L_end')
    return a, errs

def full_text(P):
    a, errs = build_kernel(P)
    ref = open('gated_mix__ssm_conv_s5__memory_aug_recurrent_mem_tr__prompt.s.ref').read()
    head = ref[:ref.index('; @launch')]
    txt = head + f"""; @launch grid=(256,1,1) block=(256,1,1) lds=163840
.amdgcn_target "amdgcn-amd-amdhsa--gfx950"
.text
.globl {KNAME}
.p2align 8
.type {KNAME},@function
{KNAME}:
{a.text()}    s_endpgm
.section .rodata,"a"
.p2align 6
.amdhsa_kernel {KNAME}
  .amdhsa_next_free_vgpr 512
  .amdhsa_next_free_sgpr 102
  .amdhsa_accum_offset 256
  .amdhsa_group_segment_fixed_size 0
  .amdhsa_kernarg_size 160
  .amdhsa_user_sgpr_count 2
  .amdhsa_user_sgpr_kernarg_segment_ptr 1
  .amdhsa_system_sgpr_workgroup_id_x 1
  .amdhsa_float_denorm_mode_32 3
.end_amdhsa_kernel
"""
    return txt, errs

if __name__ == '__main__':
    P = json.loads(sys.argv[2]) if len(sys.argv) > 2 else {}
    txt, errs = full_text(P)
    for e in errs: print('HAZ', e)
    out = sys.argv[1] if len(sys.argv) > 1 else 'gated_mix__ssm_conv_s5__memory_aug_recurrent_mem_tr__prompt.s'
    open(out, 'w').write(txt)
    print('wrote', out, len(txt))
```

```python
from asmlib import *
from chain import WS_KV, WS_KM, WS_SIZE, DBG_KVC, DBG_KV0, DBG_DN, S_WS, S_DBG, sH, sW, nops

WS_A = 50 << 20
WS_CNT = WS_A + (64 << 10)
WS_ST = 52 << 20
DBG_ST = 8
WS_PART = 64 << 20
H_GW = 131072
H_E = H_GW + 1024
H_C = H_E + 1024
H_K = H_C + 4096
S_X, S_W1, S_W2, S_WO, S_OUT = 8, 12, 16, 20, 28
sB = 34
sX0, sWo1, sWo2, sStI, sStS, sSlot, sCnt, sSeg, sSpin, sJ = 35, 36, 37, 38, 39, 40, 41, 42, 43, 44
sA, sA2, sA3, sA4 = 45, 46, 47, 48
sWoo = 49
sM = 50
P_LRE, P_LIM, P_LDT, P_DSK, P_GW, P_CRE, P_CIM = 58, 62, 64, 66, 68, 70, 72
LANE, L16, VX_, VW, VW2, XA, WA, BA, GA, VKV, G, VN, HH, VKM, VVM, WOA, MX = 0, 1, 2, 3, 4, 5, 7, 11, 13, 14, 15, 16, 17, 18, 19, 20, 28
T = 29
KF, VF, FR = 32, 96, 160
QF, SS, HF = 160, 224, 240
HSPIN = 400000
LOG2E = 0x3fb8aa3b
def mf(a, D, A, B, C): a(f"v_mfma_f32_32x32x16_bf16 {D}, {A}, {B}, {C}")
WS = sr(S_WS, 4)

S_PF = 52
P_WQ, P_WK, P_WV = 74, 76, 78
sPH = 56
def h_ptrs(a):
    a(f"""
    s_load_dwordx2 {sr(S_X,2)}, s[0:1], 0
    s_load_dwordx2 {sr(P_WK,2)}, s[0:1], 96
    s_load_dwordx2 {sr(P_WV,2)}, s[0:1], 104
    s_load_dwordx2 {sr(S_WO,2)}, s[0:1], 112
    s_load_dwordx2 {sr(S_PF,2)}, s[0:1], 88
    s_mov_b32 s{S_X+2}, 2097152
    s_mov_b32 s{S_X+3}, 0x20000
    s_mov_b32 s{S_WO+2}, 4194304
    s_mov_b32 s{S_WO+3}, 0x20000
    s_mov_b32 s{S_OUT+2}, 4194304
    s_mov_b32 s{S_OUT+3}, 0x20000
    s_mov_b32 s{S_W1+2}, 4194304
    s_mov_b32 s{S_W1+3}, 0x20000
    s_mov_b32 s{S_W2+2}, 4194304
    s_mov_b32 s{S_W2+3}, 0x20000
    s_mov_b32 s{S_PF+2}, 4194304
    s_mov_b32 s{S_PF+3}, 0x20000
    """)
PFW, PFO = 253, 254
def h_prefetch(a, sR):
    a(f"""
    s_mov_b64 {sr(S_W1,2)}, {sr(P_WK,2)}
    s_mov_b64 {sr(S_W2,2)}, {sr(P_WV,2)}
    s_mul_i32 s{sPH}, s{sR}, {32*10923}
    s_lshr_b32 s{sPH}, s{sPH}, 16
    s_cmp_eq_u32 s{sR}, 6
    s_cselect_b32 s3, 0x200, s3
    s_lshl_b32 s{sA}, s{sPH}, 8
    s_lshl_b32 s{sA2}, s3, 17
    s_add_u32 s{sA}, s{sA}, s{sA2}
    v_lshrrev_b32 v1, 4, v0
    v_and_b32 v2, 15, v0
    v_cmp_gt_u32 vcc, 12, v2
    v_lshlrev_b32 v2, 7, v2
    v_lshl_add_u32 v1, v1, 13, v2
    v_add_u32 v1, s{sA}, v1
    v_bfrev_b32 v2, 1
    v_cndmask_b32 v{PFW}, v2, v1, vcc
    s_lshl_b32 s{sA}, s3, 14
    v_lshlrev_b32 v1, 7, v0
    v_cmp_gt_u32 vcc, 128, v0
    buffer_load_dword v255, v{PFW}, {sr(S_W2,4)}, 0 offen
    v_add_u32 v3, s{sA}, v1
    buffer_load_dword v255, v{PFW}, {sr(S_W1,4)}, 0 offen
    v_cndmask_b32 v3, v2, v3, vcc
    buffer_load_dword v255, v3, {sr(S_X,4)}, 0 offen
    s_load_dwordx2 {sr(S_OUT,2)}, s[0:1], 136
    s_load_dwordx2 {sr(P_LRE,2)}, s[0:1], 8
    s_load_dwordx2 {sr(P_LIM,2)}, s[0:1], 16
    s_load_dwordx2 {sr(P_LDT,2)}, s[0:1], 56
    s_load_dwordx2 {sr(P_DSK,2)}, s[0:1], 64
    s_load_dwordx2 {sr(P_GW,2)}, s[0:1], 128
    s_waitcnt lgkmcnt(0)
    s_load_dwordx2 {sr(P_CRE,2)}, s[0:1], 40
    s_load_dwordx2 {sr(P_CIM,2)}, s[0:1], 48
    s_cmp_ge_u32 s{sW}, 2
    s_cbranch_scc1 L_h_hi
    s_mov_b64 {sr(S_W2,2)}, {sr(S_PF,2)}
    s_mov_b32 s{sStI}, {4*8192}
    s_mov_b32 s{sStS}, {32*8192}
    s_branch L_h_sel
    """)
    a.label('L_h_hi')
    a(f"""
    s_mov_b64 {sr(S_W1,2)}, {sr(P_WV,2)}
    s_mov_b32 s{S_W2+2}, 524288
    s_mov_b32 s{sStI}, 0x10000000
    s_mov_b32 s{sStS}, 64
    s_cmp_eq_u32 s{sW}, 3
    s_cbranch_scc1 L_h_w3
    s_load_dwordx2 {sr(S_W2,2)}, s[0:1], 24
    s_branch L_h_sel
    """)
    a.label('L_h_w3')
    a(f"s_load_dwordx2 {sr(S_W2,2)}, s[0:1], 32")
    a.label('L_h_sel')
    a("s_waitcnt lgkmcnt(0)")
    return 3

def h_once(a):
    a(f"v_and_b32 v{LANE}, 63, v0")
    t = 32
    a(f"""
    v_lshlrev_b32 v{L16}, 4, v{LANE}
    v_and_b32 v{VN}, 31, v{LANE}
    v_lshrrev_b32 v{HH}, 5, v{LANE}
    v_lshrrev_b32 v{t}, 2, v{LANE}              ; r = lane>>2
    v_lshrrev_b32 v{t+1}, 4, v{LANE}            ; lane>>4
    v_and_b32 v{t+2}, 3, v{LANE}                ; c
    v_xor_b32 v{t+3}, v{t+2}, v{t+1}
    v_lshlrev_b32 v{t+3}, 4, v{t+3}
    v_lshl_add_u32 v{VX_}, v{t}, 10, v{t+3}
    v_and_b32 v{t+3}, 15, v{LANE}
    v_lshlrev_b32 v{t+4}, 2, v{t+1}
    v_xor_b32 v{t+3}, v{t+3}, v{t+4}
    v_lshlrev_b32 v{t+3}, 4, v{t+3}
    v_lshl_add_u32 v{VW}, v{t+1}, 13, v{t+3}
    s_cmp_ge_u32 s{sW}, 2
    s_cselect_b64 vcc, -1, 0
    v_cndmask_b32 v{VW2}, v{VW}, v{VX_}, vcc
    v_bfe_u32 v{t+5}, v{LANE}, 2, 1             ; h'
    v_bfe_u32 v{t+6}, v{LANE}, 3, 1             ; t
    v_bfe_u32 v{t+7}, v{LANE}, 4, 1             ; n>>4
    v_lshl_add_u32 v{t+8}, v{t+7}, 2, v{t+2}
    v_lshl_add_u32 v{t+8}, v{t+5}, 3, v{t+8}    ; i = 8h' + 4(n>>4) + (n&3)
    v_lshl_add_u32 v{t+9}, v{HH}, 5, v{t+8}
    v_lshlrev_b32 v{t+9}, 4, v{t+9}
    v_lshl_add_u32 v{VKV}, v{t+6}, 10, v{t+9}
    v_lshl_add_u32 v{t+9}, v{HH}, 4, v{t+8}
    v_lshlrev_b32 v{t+9}, 4, v{t+9}
    v_lshl_add_u32 v{t+9}, v{t+6}, 2, v{t+9}
    s_lshl_b32 s{sA}, s{sW}, 12
    s_add_u32 s{sA}, s{sA}, {H_K}
    v_add3_u32 v{VVM}, v{t+9}, s{sA}, 8
    v_and_b32 v{t+9}, 7, v{LANE}
    v_lshl_add_u32 v{t+9}, v{HH}, 5, v{t+9}
    v_lshl_add_u32 v{VKM}, v{t+9}, 4, s{sA}
    s_waitcnt lgkmcnt(0)
    """)

def xaddr(a, row, base_s, dst):
    a(f"""
    v_bfe_u32 v{T}, v{row}, 2, 2
    v_xor_b32 v{T}, v{T}, v{HH}
    v_lshlrev_b32 v{T}, 4, v{T}
    v_lshl_add_u32 v{T}, v{row}, 6, v{T}
    v_add_u32 v{dst}, {base_s}, v{T}
    v_xor_b32 v{dst+1}, 32, v{dst}
    """)

OPT = {}
sXC, sClr, sMode = 57, 3, 2
def dma_part(part, kind):
    G_ = []
    for i in range(4):
        o = (16384 if part == 'B' else 0) + 1024 * i
        L = [f"s_add_u32 m0, s{sSlot}, {o}"]
        if kind == 'wo': L += [f"s_add_u32 s{sA}, s{sWoo}, {o}", f"buffer_load_dwordx4 v{WOA + i}, {sr(S_WO,4)}, s{sA} offen lds"]
        elif part == 'A': L += [f"s_add_u32 s{sA}, s{sXC}, {(i >> 1) * 131072 + (i & 1) * 16384}", f"buffer_load_dwordx4 v{VX_}, {sr(S_X,4)}, s{sA} offen lds"]
        elif kind == 'p1': L += [f"s_add_u32 s{sA}, s{sWo1}, {4*8192*i}", f"buffer_load_dwordx4 v{VW}, {sr(S_W1,4)}, s{sA} offen lds"]
        else: L += [f"s_mov_b32 s{sA2}, s{sWo2}" if i == 0 else f"s_add_u32 s{sA2}, s{sA2}, s{sStI}", f"buffer_load_dwordx4 v{VW2}, {sr(S_W2,4)}, s{sA2} offen lds"]
        G_.append(L)
    if part == 'A' and kind != 'wo': G_[-1] += [f"s_add_u32 s{sXC}, s{sXC}, 64", f"s_and_b32 s{sXC}, s{sXC}, 0xfffffbff"]
    if part == 'B':
        G_[-1] += [{'p1': f"s_add_u32 s{sWo1}, s{sWo1}, {32*8192}", 'p2': f"s_add_u32 s{sWo2}, s{sWo2}, s{sStS}", 'wo': f"s_add_u32 s{sWoo}, s{sWoo}, 32768"}[kind]]
        G_[-1] += [f"s_add_u32 s{sSlot}, s{sSlot}, 32768", f"s_and_b32 s{sSlot}, s{sSlot}, 0x1ffff"]
    return G_

def frag_reads(p, k, fs, nj=2):
    b = FR + 40 * fs
    L = [f"ds_read_b128 {vr(b + 4*j, 4)}, v{XA + k} offset:{2048*j}" for j in range(nj)]
    for m in range(2 if p == 1 else 1):
        for tau in range(4):
            for pp in range(2):
                L.append(f"ds_read_b64_tr_b16 {vr(b + 8 + 16*m + 4*tau + 2*pp, 2)}, v{WA + tau} offset:{8192*m + (16*k + 4*pp)*256}")
    if p == 2:
        L.append(f"ds_read_b128 {vr(b + 24, 4)}, v{BA + k}")
        L.append(f"ds_read_b128 {vr(b + 28, 4)}, v{GA} offset:{32*k}")
    return L
def mfmas(p, fs, nj=2):
    b = FR + 40 * fs
    L = []
    x = lambda j: vr(b + 4 * j, 4)
    for tau in range(4):
        for j in range(nj):
            D = ar(64 * j + 16 * tau, 16); L.append((D, vr(b + 8 + 4 * tau, 4), x(j), D))
    if p == 1:
        for tau in range(4):
            for j in range(nj):
                D = ar(128 + 64 * j + 16 * tau, 16); L.append((D, x(j), vr(b + 24 + 4 * tau, 4), D))
    else:
        for q in range(2):
            for j in range(2):
                D = ar(128 + 32 * q + 16 * j, 16); L.append((D, vr(b + 24 + 4 * q, 4), x(j), D))
    return L
def adv_addr(p):
    L = []
    regs_ = [XA, XA + 1] + [WA + t for t in range(4)] + ([BA, BA + 1] if p == 2 else [])
    for r in regs_: L += [f"v_add_u32 v{r}, 0x8000, v{r}", f"v_and_b32 v{r}, 0x1ffff, v{r}"]
    if p == 2: L.append(f"v_add_u32 v{GA}, 64, v{GA}")
    return L

def stage_loop(a, name, p, kB, kA, n, nj=2):
    if n != 1:
        a(f"s_mov_b32 s{sCnt}, {n}")
        a.label(name)
    a("s_waitcnt lgkmcnt(0)")
    rd = frag_reads(p, 1, 1, nj); av = adv_addr(p); dg = dma_part('B', kB)
    M = mfmas(p, 0, nj); q = len(M) // 4
    for i, m in enumerate(M):
        mf(a, *m)
        for _ in range(2 if nj == 2 else (2 if i & 1 else 5)):
            if rd: a(rd.pop(0))
        if i % q == 1:
            for l in dg.pop(0): a(l)
        elif not rd:
            for _ in range(5 if nj == 2 else 6):
                if av: a(av.pop(0))
    assert not rd and not av and not dg
    a(f"s_waitcnt vmcnt({18 if p == 1 else 16}) lgkmcnt(0)\ns_barrier")
    rd = frag_reads(p, 0, 0, nj); dg = dma_part('A', kA)
    M = mfmas(p, 1, nj)
    for i, m in enumerate(M):
        mf(a, *m)
        for _ in range(2 if nj == 2 else (2 if i & 1 else 5)):
            if rd: a(rd.pop(0))
        if i % q == 1:
            for l in dg.pop(0): a(l)
        if p == 1 and i == (11 if nj == 2 else 4): a(f"buffer_store_dwordx4 v[44:47], v{L16}, {WS}, s{sClr} offen sc1\ns_add_u32 s{sClr}, s{sClr}, 1024")
        if p == 1 and i == (12 if nj == 2 else 6): a(f"s_and_b32 s{sA}, s{sClr}, 0xfff\ns_cselect_b32 s{sA}, 0, s{sX0}\ns_cselect_b32 s{sX0}, s{sX0}, 0x20000000\ns_add_u32 s{sClr}, s{sClr}, s{sA}")
        if i == len(M) - 1 and n != 1: a(f"s_sub_u32 s{sCnt}, s{sCnt}, 1\ns_cmp_lg_u32 s{sCnt}, 0")
    assert not rd and not dg
    if n != 1: a(f"s_cbranch_scc1 {name}")

SLEEP = [4]
def poll_fail(a, back, sl=None):
    a(f"s_add_u32 s{sSpin}, s{sSpin}, 1\ns_cmp_gt_u32 s{sSpin}, {HSPIN}\ns_cbranch_scc1 L_end\ns_sleep {sl or SLEEP[0]}\ns_branch {back}")

def unpack8(a, dst, src):
    for j in range(4):
        a(f"v_lshlrev_b32 v{dst+2*j}, 16, v{src+j}\nv_and_b32 v{dst+2*j+1}, 0xffff0000, v{src+j}")

def pw(a, LR, LI, A2, B2, n, cnt, tmp):
    for j in range(cnt):
        if n is None: a(f"v_exp_f32 v{tmp+j}, v{A2+j}\nv_fract_f32 v{LI+j}, v{B2+j}")
        else: a(f"v_mul_f32 v{tmp+j}, {n}, v{A2+j}\nv_mul_f32 v{LI+j}, {n}, v{B2+j}\nv_exp_f32 v{tmp+j}, v{tmp+j}\nv_fract_f32 v{LI+j}, v{LI+j}")
    for j in range(cnt): a(f"v_cos_f32 v{LR+j}, v{LI+j}\nv_sin_f32 v{LI+j}, v{LI+j}")
    a("s_nop 0")
    for j in range(cnt): a(f"v_mul_f32 v{LR+j}, v{LR+j}, v{tmp+j}\nv_mul_f32 v{LI+j}, v{LI+j}, v{tmp+j}")

def dtprep(a, A2, B2, DT, cnt):
    for j in range(cnt): a(f"v_mul_f32 v{DT+j}, {LOG2E}, v{DT+j}")
    for j in range(cnt): a(f"v_exp_f32 v{DT+j}, v{DT+j}")
    a("s_nop 0")
    for j in range(cnt): a(f"v_cvt_pk_bf16_f32 v{DT+j}, v{DT+j}, v{DT+j}")
    for j in range(cnt): a(f"v_and_b32 v{DT+j}, 0xffff0000, v{DT+j}")
    for j in range(cnt):
        a(f"v_mul_f32 v{A2+j}, v{DT+j}, v{A2+j}\nv_mul_f32 v{B2+j}, v{DT+j}, v{B2+j}")
        a(f"v_mul_f32 v{A2+j}, {LOG2E}, v{A2+j}\nv_mul_f32 v{B2+j}, 0.15915494, v{B2+j}")

def h_static(a):
    t = 32
    a(f"""
    v_bfe_u32 v{t}, v{LANE}, 2, 1
    v_bfe_u32 v{t+1}, v{LANE}, 3, 2
    v_and_b32 v{t+2}, 3, v{LANE}
    v_lshl_add_u32 v{t+3}, v{t+1}, 2, v{t+2}
    v_lshl_add_u32 v{t+3}, v{t}, 4, v{t+3}
    s_lshl_b32 s{sA}, s{sW}, 12
    """)
    xaddr(a, t + 3, f"s{sA}", XA)
    a(f"""
    v_bfe_u32 v{t+4}, v{LANE}, 2, 2             ; r'
    v_bfe_u32 v{t+5}, v{LANE}, 4, 1             ; half
    v_and_b32 v{t+6}, 1, v{LANE}
    v_bfe_u32 v{t+7}, v{LANE}, 1, 1
    v_lshl_add_u32 v{t+8}, v{t+5}, 1, v{t+7}
    v_lshl_add_u32 v{t+8}, v{t+6}, 2, v{t+8}
    v_lshlrev_b32 v{t+8}, 3, v{t+8}
    v_lshl_add_u32 v{t+9}, v{HH}, 3, v{t+4}
    v_lshl_add_u32 v{t+8}, v{t+9}, 8, v{t+8}
    v_lshl_add_u32 v{t+8}, v{t+4}, 6, v{t+8}
    v_add_u32 v{WA}, 16384, v{t+8}
    """)
    for tau in range(1, 4): a(f"v_xor_b32 v{WA+tau}, {64*tau}, v{WA}")
    for i in range(4): a(f"v_xor_b32 v{WOA+i}, {64*i}, v{L16}")
    for i in range(4): a(f"v_mov_b32 v{t+12+i}, -1")
    for i in range(256): a(f"v_accvgpr_write_b32 a{i}, 0")

def helper_task(a, P):
    DBG = sr(S_DBG, 4)
    SLEEP[0] = P.get('sleep', 4); OPT.clear(); OPT.update(P)
    def hs(k, alt=0):
        if P.get('alt') and not alt:
            if k in (4, 5, 6): return
            k = {2: 5, 3: 6}.get(k, k)
        if P.get('stat'): a(f"{'s_memtime' if P.get('hcyc') else 's_memrealtime'} s[{74+2*k}:{75+2*k}]")
    def signal(tag, off, so, nv, last='31'):
        a(f"""
        s_waitcnt vmcnt({nv})
        s_barrier
        s_cmp_lg_u32 s{sW}, 0
        s_cbranch_scc1 L_h_ns{tag}
        s_lshl_b32 s{sA}, s{sB}, 2
        v_mov_b32 v{T}, 1
        s_mov_b64 exec, 1
        buffer_atomic_add v{T}, off, {DBG}, {so} offset:{off} sc0
        v_mov_b32 v{T+1}, 32
        s_waitcnt vmcnt(0)
        v_cmp_eq_u32 vcc, {last}, v{T}
        s_cbranch_vccz L_h_ng{tag}
        buffer_store_dword v{T+1}, off, {DBG}, {so} offset:{off + DBG_DN} sc1
        """)
        a.label(f'L_h_ng{tag}')
        a("s_mov_b64 exec, -1")
        a.label(f'L_h_ns{tag}')
    a.label('L_h_task')
    hs(0)
    t = 32
    a(f"""
    s_lshl_b32 s{sSeg}, s{sB}, 3
    s_cmp_eq_u32 s{sMode}, 2
    s_cselect_b32 s{sSeg}, 4, s{sSeg}
    s_add_u32 s{sSeg}, s{sSeg}, s{sW}
    s_lshl_b32 s{sXC}, s{sSeg}, 15
    s_lshl_b32 s{sWo1}, s{sH}, 8
    s_and_b32 s{sA}, s{sW}, 1
    s_lshl_b32 s{sA}, s{sA}, 17
    s_add_u32 s{sWo1}, s{sWo1}, s{sA}
    s_lshl_b32 s{sA}, s{sH}, 14
    s_cmp_ge_u32 s{sW}, 2
    s_cselect_b32 s{sWo2}, s{sA}, s{sWo1}
    s_lshl_b32 s{sSlot}, s{sW}, 12
    s_lshl_b32 s{sWoo}, s{sH}, 17
    s_add_u32 s{sWoo}, s{sWoo}, s{sSlot}
    s_mov_b32 s{sSpin}, 0
    """)
    NE = P.get('nearly', 2)
    if P.get('pfw'): a("s_waitcnt vmcnt(0)"); hs(0)
    a(f"""
    s_cmp_lg_u32 s{sB}, 8
    s_cbranch_scc1 L_h_nse
    v_lshlrev_b32 v{T+2}, 7, v{LANE}
    s_lshl_b32 s{sA}, s{sH}, 14
    buffer_load_dword v255, v{T+2}, {sr(S_W2,4)}, s{sA} offen
    s_add_u32 s{sA2}, s{sA}, 8192
    buffer_load_dword v255, v{T+2}, {sr(S_W2,4)}, s{sA2} offen
    s_and_b32 s{sA2}, s{sW}, 1
    s_lshl_b32 s{sA2}, s{sA2}, 13
    s_add_u32 s{sA}, s{sA}, s{sA2}
    v_add_u32 v{T+2}, s{sA}, v{T+2}
    global_load_dword v255, v{T+2}, {sr(P_CRE,2)}
    global_load_dword v255, v{T+2}, {sr(P_CIM,2)}
    s_lshl_b32 s{sA}, s{sW}, 17
    s_lshl_b32 s{sA2}, s{sH}, 12
    s_add_u32 s{sA}, s{sA}, s{sA2}
    s_add_u32 s{sA}, s{sA}, {WS_KM}
    s_add_u32 s{sA2}, s{sA}, {4 << 17}
    """)
    for k in range(8): a(f"buffer_store_dwordx4 v[44:47], v{L16}, {WS}, s{sA if k < 4 else sA2} offen offset:{1024*(k&3)} sc1")
    signal('e', DBG_KV0, '0', 0, '63')
    a(f"""
    s_cmp_eq_u32 s{sB}, 8
    s_cselect_b32 s{sA3}, 5, s{sB}
    s_cselect_b32 s{sA2}, 4, 3
    s_sub_u32 s{sA3}, s{sA3}, 2
    s_cmp_ge_u32 s{sA3}, s{sA2}
    s_cbranch_scc1 L_h_nt
    s_waitcnt vmcnt(0)
    s_lshl_b32 s{sA}, s{sW}, 6
    v_add_u32 v{T}, s{sA}, v{LANE}
    v_lshlrev_b32 v{T+1}, 7, v{T}
    v_lshrrev_b32 v{T+2}, 1, v{T}
    v_and_b32 v{T}, 128, v{T+1}
    v_lshl_add_u32 v{T}, v{T+2}, 13, v{T}
    s_lshl_b32 s{sA}, s{sA3}, 20
    s_lshl_b32 s{sA2}, s{sH}, 8
    s_add_u32 s{sA}, s{sA}, s{sA2}
    buffer_load_dword v255, v{T}, {sr(S_PF,4)}, s{sA} offen
    s_waitcnt vmcnt(0)
    s_lshl_b32 s{sA}, s{sA3}, 15
    s_lshl_b32 s{sA2}, s{sH}, 17
    s_add_u32 s{sA}, s{sA}, s{sA2}
    buffer_load_dword v255, v{T+1}, {sr(S_WO,4)}, s{sA} offen
    s_waitcnt vmcnt(0)
    s_cmp_lg_u32 s{sB}, 8
    s_cbranch_scc1 L_h_nt
    s_lshl_b32 s{sA}, s{sH}, 16
    buffer_load_dword v255, v{T+1}, {sr(S_X,4)}, s{sA} offen
    s_add_u32 s{sA}, s{sA}, 32768
    buffer_load_dword v255, v{T+1}, {sr(S_X,4)}, s{sA} offen
    s_add_u32 s{sA}, s{sW}, 56
    s_lshl_b32 s{sA}, s{sA}, 20
    s_lshl_b32 s{sA2}, s{sH}, 15
    s_add_u32 s{sA}, s{sA}, s{sA2}
    s_add_u32 s{sA}, s{sA}, {WS_PART}
    s_mov_b32 s{sCnt}, 8
    """)
    if P.get('r8w'):
        a(f"s_cmp_lg_u32 s{sW}, 0\ns_cbranch_scc1 L_h_c6")
        a.label('L_h_c5')
        a(f"buffer_load_dword v{T}, off, {DBG}, 0 offset:{DBG_DN + DBG_KVC + 4 * (P['r8w'] - 1)} sc1\ns_waitcnt vmcnt(0)\nv_cmp_eq_u32 vcc, 0, v{T}\ns_cbranch_vccz L_h_c6")
        poll_fail(a, 'L_h_c5', 16)
        a.label('L_h_c6')
        a("s_barrier")
    a.label('L_h_c7')
    if P.get('r8s'): a("s_waitcnt vmcnt(0)")
    a(f"s_add_u32 s{sA2}, s{sA}, {4 << 20}")
    for k in range(8): a(f"buffer_store_dwordx4 v[44:47], v{L16}, {WS}, s{sA if k < 4 else sA2} offen offset:{1024*(k&3)} sc1")
    a(f"s_add_u32 s{sA}, s{sA}, 4096\ns_sub_u32 s{sCnt}, s{sCnt}, 1\ns_cmp_lg_u32 s{sCnt}, 0\ns_cbranch_scc1 L_h_c7")
    signal('f', DBG_KVC + 28, '0', 0, '63')
    a("s_branch L_end")
    a.label('L_h_nt')
    for st in range(4):
        for g_ in dma_part('A', 'p1') + (dma_part('B', 'p1') if st < 3 else []):
            for l in g_: a(l)
    a(f"""
    s_lshl_b32 s{sA}, s{sSeg}, 17
    s_lshl_b32 s{sA2}, s{sH}, 12
    s_add_u32 s{sA}, s{sA}, s{sA2}
    s_add_u32 s{sClr}, s{sA}, {WS_KM}
    s_cmp_ge_u32 s{sMode}, 1
    s_cselect_b32 s{sClr}, 0x70000000, s{sClr}
    s_mov_b32 s{sX0}, {(4 << 17) - 4096}
    """)
    a(f"""
    s_lshl_b32 s{sA}, s{sB}, 5
    s_add_u32 s{sA}, s{sA}, s{sH}
    s_lshl_b32 s{sA}, s{sA}, 7
    s_add_u32 s{sA}, s{sA}, {WS_A}
    s_mov_b64 exec, 0xff
    buffer_store_dwordx4 {vr(t+12,4)}, v{L16}, {WS}, s{sA} offen sc1
    s_mov_b64 exec, -1
    s_lshl_b32 s{sA}, s{sH}, 2
    s_add_u32 s{sA}, s{sA}, s{sSeg}
    s_lshl_b32 s{sA}, s{sA}, 7
    s_add_u32 s{sA}, s{sA}, {WS_CNT}
    s_add_u32 s{sA2}, s{sH}, s{sMode}
    s_cmp_eq_u32 s{sMode}, 1
    s_cselect_b32 s{sA2}, s{sH}, s{sA2}
    s_cmp_lt_u32 s{sA2}, 2
    s_cselect_b32 s{sA}, s{sA}, 0x70000000
    v_mov_b32 v{t+16}, 0
    s_mov_b64 exec, 1
    buffer_store_dword v{t+16}, v{t+16}, {WS}, s{sA} offen sc1
    s_mov_b64 exec, -1
    global_load_dwordx4 {vr(t+20,4)}, v{L16}, {sr(P_GW,2)}
    """)
    a(f"s_cmp_lt_u32 s{sB}, {NE}\ns_cbranch_scc1 L_h_go\ns_cmp_eq_u32 s{sMode}, 2\ns_cbranch_scc1 L_h_go")
    a(f"v_lshlrev_b32 v{T}, 7, v{LANE}\ns_and_b32 s{sA2}, s{sXC}, 0xfffffc00\ns_cmp_ge_u32 s{sB}, 6\ns_cbranch_scc1 L_h_x2\ns_waitcnt vmcnt(0)")
    a.label('L_h_x2')
    for k in range(8 if P.get('xt', 1) else 0): a(f"s_add_u32 s{sA}, s{sA2}, {(k >> 2) * 131072 + (k & 3) * 8192}\nbuffer_load_dword v255, v{T}, {sr(S_X,4)}, s{sA} offen")
    a(f"s_sub_i32 s{sA3}, s{sB}, {P.get('lag', 2)}\ns_max_i32 s{sA3}, s{sA3}, 0\ns_lshl_b32 s{sA3}, s{sA3}, 2\ns_cmp_ge_u32 s{sB}, 6\ns_cbranch_scc1 L_h_go")
    a(f"s_cmp_lg_u32 s{sW}, 0\ns_cbranch_scc1 L_h_go")
    a.label('L_h_w0')
    a(f"buffer_load_dword v{T}, off, {DBG}, s{sA3} offset:{DBG_DN + DBG_KVC} sc1\ns_waitcnt vmcnt(0)\nv_cmp_eq_u32 vcc, 0, v{T}\ns_cbranch_vccz L_h_go")
    poll_fail(a, 'L_h_w0', 8)
    a.label('L_h_go')
    a(f"s_waitcnt vmcnt({20 + 3})\ns_barrier")
    hs(1)
    for l in frag_reads(1, 0, 0): a(l)
    gw = f"v_add_u32 v{T}, {H_GW}, v{L16}\nds_write_b128 v{T}, {vr(t+20,4)}"
    a(f"s_cmp_eq_u32 s{sMode}, 0\ns_cbranch_scc1 L_h_full")
    if P.get('alt'):
        stage_loop(a, 'L_h_q1x', 1, 'p1', 'x', 4, 1); hs(2, 1)
        stage_loop(a, 'L_h_q1y', 1, 'p1', 'x', 4, 1); hs(3, 1)
        stage_loop(a, 'L_h_q1a', 1, 'p1', 'x', 5, 1); hs(4, 1)
    else: stage_loop(a, 'L_h_q1a', 1, 'p1', 'x', 13, 1)
    a(gw)
    stage_loop(a, 'L_h_q1b', 1, 'p2', 'x', 3, 1)
    a("s_branch L_h_e1")
    a.label('L_h_full')
    stage_loop(a, 'L_h_p1a', 1, 'p1', 'x', 13)
    a(gw)
    stage_loop(a, 'L_h_p1b', 1, 'p2', 'x', 3)
    a.label('L_h_e1')
    hs(2)
    a(f"""
    s_lshl_b32 s{sA3}, s{sSeg}, 19
    s_lshl_b32 s{sA2}, s{sH}, 14
    s_add_u32 s{sA3}, s{sA3}, s{sA2}
    s_add_u32 s{sA3}, s{sA3}, {WS_KV}
    s_waitcnt lgkmcnt(0)
    s_nop 7
    """)
    TM = 240
    def kv_store(j, m, tau):
        dst = (KF if m == 0 else VF) + 32 * j + 8 * tau
        a(f"s_add_u32 s{sA}, s{sA3}, {j * (4 << 19) + 4096 * tau}")
        for u in range(2): a(f"buffer_store_dwordx4 {vr(dst+4*u,4)}, v{VKV}, {WS}, s{sA} offen offset:{2048*m + 256*u} sc1")
    for j in range(2):
        for m in range(2):
            for tau in range(4):
                src = 128 * m + 64 * j + 16 * tau; dst = (KF if m == 0 else VF) + 32 * j + 8 * tau
                for r in range(16): a(f"v_accvgpr_read_b32 v{TM+r}, a{src+r}")
                for r in range(8): a(f"v_cvt_pk_bf16_f32 v{dst+r}, v{TM+2*r}, v{TM+2*r+1}")
                if j == 0:
                    a(f"s_cmp_eq_u32 s{sMode}, 0\ns_cbranch_scc1 L_h_sk{j}{m}{tau}")
                    kv_store(j, m, tau)
                    a.label(f'L_h_sk{j}{m}{tau}')
        if j == 0:
            a(f"s_cmp_eq_u32 s{sMode}, 0\ns_cbranch_scc1 L_h_j1\ns_lshl_b32 s{sA2}, s{sMode}, 2\ns_cmp_eq_u32 s{sMode}, 1\ns_cselect_b32 s{sA4}, 63, 31")
            if P.get('dlyh'): a(f"s_sleep {P['dlyh']}")
            signal('a', DBG_KV0 - 4, f"s{sA2}", 0, f"s{sA4}")
            a(f"s_cmp_eq_u32 s{sMode}, 1\ns_cbranch_scc1 L_h_nj1\ns_mov_b32 s{sMode}, 0\ns_waitcnt vmcnt(0) lgkmcnt(0)\ns_branch L_h_again")
            a.label('L_h_j1')
    a.label('L_h_nj1')
    for i in range(192): a(f"v_accvgpr_write_b32 a{i}, 0")
    a(f"s_lshl_b32 s{sA}, s{sW}, 12")
    xaddr(a, VN, f"s{sA}", XA)
    a(f"""
    v_bfe_u32 v{TM}, v{LANE}, 2, 1
    v_bfe_u32 v{TM+1}, v{LANE}, 3, 1
    v_and_b32 v{TM+2}, 3, v{LANE}
    v_lshl_add_u32 v{TM+2}, v{TM+1}, 2, v{TM+2}
    v_lshl_add_u32 v{TM+2}, v{TM}, 3, v{TM+2}      ; ch
    v_bfe_u32 v{TM+3}, v{LANE}, 4, 1
    v_lshlrev_b32 v{TM+3}, 12, v{TM+3}
    v_add_u32 v{TM+3}, 24576, v{TM+3}
    v_lshlrev_b32 v{GA}, 4, v{HH}
    v_add_u32 v{GA}, {H_GW}, v{GA}
    """)
    xaddr(a, TM + 2, f"v{TM+3}", BA)
    hs(3)
    for l in frag_reads(2, 0, 0): a(l)
    a(f"s_lshl_b32 s{sA4}, s{sB}, 1\ns_and_b32 s{sA4}, s{sA4}, {2 if P.get('lag', 2) == 2 else 14}\ns_sub_i32 s{sA4}, s{sA4}, {-1 if P.get('lag', 2) == 2 else 3}\ns_max_i32 s{sA4}, s{sA4}, 1\ns_cmp_ge_u32 s{sB}, 6\ns_cselect_b32 s{sA4}, 1, s{sA4}\ns_sub_u32 s{sJ}, 12, s{sA4}")
    stage_loop(a, 'L_h_p20', 2, 'p2', 'x', f"s{sA4}")
    a(f"s_cmp_eq_u32 s{sMode}, 0\ns_cbranch_scc1 L_h_st\ns_cmp_lg_u32 s{sW}, 0\ns_cbranch_scc1 L_h_l1")
    a.label('L_h_l0')
    a(f"buffer_load_dword v{T}, off, {DBG}, 0 offset:{DBG_DN + DBG_KVC} sc1\ns_waitcnt vmcnt(0)\nv_cmp_eq_u32 vcc, 0, v{T}\ns_cbranch_vccz L_h_l1")
    poll_fail(a, 'L_h_l0', 8)
    a.label('L_h_l1')
    a("s_barrier")
    n0 = len(a.lines)
    for m in range(2):
        for tau in range(4): kv_store(1, m, tau)
    a.lines[n0:] = [l.replace('buffer_store', 'buffer_load') for l in a.lines[n0:]]
    a(f"s_mov_b32 s{sMode}, 0\ns_branch L_h_nsc")
    a.label('L_h_st')
    for j in range(2):
        for m in range(2):
            for tau in range(4): kv_store(j, m, tau)
    a(f"s_cmp_eq_u32 s{sB}, 7\ns_cselect_b32 s{sA4}, 63, 31")
    signal('c', DBG_KVC, f"s{sA}", 0, f"s{sA4}")
    stage_loop(a, 'L_h_p2a', 2, 'p2', 'x', f"s{sJ}")
    stage_loop(a, 'L_h_p2c', 2, 'p2', 'wo', 1)
    stage_loop(a, 'L_h_p2b', 2, 'wo', 'wo', 3)
    for g_ in dma_part('B', 'wo'):
        for l in g_: a(l)
    hs(4)
    a("s_waitcnt lgkmcnt(0)\ns_nop 7")
    PK = 128 + 0
    for j in range(2):
        for tau in range(4):
            src = 64 * j + 16 * tau; dst = QF + 32 * j + 8 * tau
            for r in range(16): a(f"v_accvgpr_read_b32 v{TM+r}, a{src+r}")
            for r in range(8): a(f"v_cvt_pk_bf16_f32 v{dst+r}, v{TM+2*r}, v{TM+2*r+1}")
    a(f"""
    v_bfe_u32 v{T}, v{LANE}, 2, 1
    v_bfe_u32 v{T+1}, v{LANE}, 3, 1
    v_and_b32 v{T+2}, 0x13, v{LANE}
    v_lshl_add_u32 v{T+2}, v{T+1}, 2, v{T+2}
    v_lshl_add_u32 v{T+2}, v{T}, 3, v{T+2}
    v_lshlrev_b32 v{T+2}, 10, v{T+2}
    s_lshl_b32 s{sA}, s{sH}, 5
    v_lshl_add_u32 v{T+1}, v{HH}, 4, s{sA}
    s_lshl_b32 s{sA}, s{sW}, 17
    v_add3_u32 v{BA}, v{T+2}, v{T+1}, s{sA}
    """)
    for j in range(2):
        for k in range(8):
            D = vr(SS + 16 * j, 16)
            mf(a, D, vr(KF + 32 * j + 4 * k, 4), vr(QF + 32 * j + 4 * k, 4), D if k else 0)
    RI = 32
    for r in range(32): a(f"v_accvgpr_read_b32 v{RI+r}, a{128+r}")
    a(f"v_accvgpr_read_b32 v{G}, a160\nv_accvgpr_read_b32 v{MX}, a176")
    A2, B2, LR, LI = 64, 72, 80, 88
    a(f"global_load_dwordx4 {vr(LR,4)}, v{T+1}, {sr(P_LRE,2)}\nglobal_load_dwordx4 {vr(LR+4,4)}, v{T+1}, {sr(P_LIM,2)}\nglobal_load_dwordx4 {vr(LI,4)}, v{T+1}, {sr(P_LDT,2)}")
    for r in (G, MX): a(f"v_mul_f32 v{r}, 0xbfb8aa3b, v{r}")
    for r in (G, MX): a(f"v_exp_f32 v{r}, v{r}")
    a("s_nop 0")
    for r in (G, MX): a(f"v_add_f32 v{r}, 1.0, v{r}")
    for r in (G, MX): a(f"v_rcp_f32 v{r}, v{r}")
    a(f"v_lshlrev_b32 v{T}, 4, v{HH}\nv_sub_u32 v{T}, v{VN}, v{T}\nv_mov_b32 v{T+2}, 0xff800000")
    for r in range(16):
        a(f"v_cmp_le_i32 vcc, {r}, v{T}\ns_nop 1")
        for j in range(2): a(f"v_cndmask_b32 v{SS+16*j+r}, v{T+2}, v{SS+16*j+r}, vcc")
    PQ, PV, PS, PH, PG = 128, 160, 192, 208, 216
    for r in range(32): a(f"v_accvgpr_write_b32 a{PQ+r}, v{QF+32+r}\nv_accvgpr_write_b32 a{PV+r}, v{VF+32+r}")
    for r in range(16): a(f"v_accvgpr_write_b32 a{PS+r}, v{SS+16+r}")
    a(f"v_accvgpr_write_b32 a{PG}, v{MX}")
    CA, CB, CD = 192, 193, 194
    a(f"""
    v_and_b32 v{T}, 15, v{LANE}
    s_lshl_b32 s{sA}, s{sH}, 5
    v_lshl_add_u32 v{T+2}, v{T}, 1, s{sA}
    global_load_ushort v{CA}, v{T+2}, {sr(P_LRE,2)}
    global_load_ushort v{CB}, v{T+2}, {sr(P_LIM,2)}
    global_load_ushort v{CD}, v{T+2}, {sr(P_LDT,2)}
    """)
    ACW = 220
    for tt in range(4):
        a(f"global_load_dwordx4 {ar(ACW+8*tt,4)}, v{BA}, {sr(P_CRE,2)}\nglobal_load_dwordx4 {ar(ACW+8*tt+4,4)}, v{BA}, {sr(P_CIM,2)}")
        if tt < 3: a(f"v_add_u32 v{BA}, 32768, v{BA}")
    a(f"s_lshl_b32 s{sA}, s{sW}, 12\nv_add_u32 v{BA+1}, {H_K}, v{L16}\nv_add_u32 v{GA}, s{sA}, v{BA+1}\ns_waitcnt vmcnt(8)")
    def c_put(r):
        for tt in range(4): a(f"ds_write_b128 v{GA}, {ar(ACW+8*tt+4*r,4)} offset:{1024*tt}")
    def c_get(r):
        for tile in range(16): a(f"ds_read_b128 {ar(8*tile+4*r,4)}, v{BA+1} offset:{1024*tile}")
    TT, LE, LM = 128, 136, 144
    unpack8(a, LE, LR); unpack8(a, LM, LR + 4); unpack8(a, TT, LI)
    for j in range(8): a(f"v_mov_b32 v{A2+j}, v{LE+j}\nv_mov_b32 v{B2+j}, v{LM+j}")
    dtprep(a, A2, B2, TT, 8)
    pw(a, LR, LI, A2, B2, None, 8, TT)
    for j in range(8):
        a(f"""
        v_mul_f32 v{TT}, v{LE+j}, v{LE+j}
        v_fmac_f32 v{TT}, v{LM+j}, v{LM+j}
        v_rcp_f32 v{TT}, v{TT}
        v_add_f32 v{TT+1}, -1.0, v{LR+j}
        v_mul_f32 v{TT+2}, v{TT+1}, v{LE+j}
        v_fmac_f32 v{TT+2}, v{LI+j}, v{LM+j}
        v_mul_f32 v{TT+3}, v{LI+j}, v{LE+j}
        v_fma_f32 v{TT+3}, -v{TT+1}, v{LM+j}, v{TT+3}
        v_mul_f32 v{LE+j}, v{TT+2}, v{TT}
        v_mul_f32 v{LM+j}, v{TT+3}, v{TT}
        """)
    for d in (1, 2, 4, 8):
        dp = f"row_shr:{d} row_mask:0xf bank_mask:0xf bound_ctrl:1"
        for j in range(2):
            R, I = RI + 16 * j, RI + 16 * j + 8
            for c in range(8): a(f"v_mov_b32 v{TT+c}, v{R+c}")
            for c in range(8): a(f"v_fmac_f32_dpp v{R+c}, v{R+c}, v{LR+c} {dp}")
            for c in range(8): a(f"v_fmac_f32_dpp v{R+c}, -v{I+c}, v{LI+c} {dp}")
            for c in range(8): a(f"v_fmac_f32_dpp v{I+c}, v{I+c}, v{LR+c} {dp}")
            for c in range(8): a(f"v_fmac_f32_dpp v{I+c}, v{TT+c}, v{LI+c} {dp}")
        if d < 8:
            for c in range(8):
                a(f"v_mul_f32 v{TT}, v{LI+c}, v{LI+c}\nv_add_f32 v{TT+1}, v{LR+c}, v{LR+c}\nv_fma_f32 v{LR+c}, v{LR+c}, v{LR+c}, -v{TT}\nv_mul_f32 v{LI+c}, v{TT+1}, v{LI+c}")
    a(f"v_and_b32 v{T+2}, 15, v{LANE}\nv_add_u32 v{T+2}, 1, v{T+2}\nv_cvt_f32_u32 v{T+2}, v{T+2}")
    pw(a, LR, LI, A2, B2, f"v{T+2}", 8, TT)
    dp = "row_bcast:15 row_mask:0xa bank_mask:0xf"
    for j in range(2):
        R, I = RI + 16 * j, RI + 16 * j + 8
        for c in range(8): a(f"v_fmac_f32_dpp v{R+c}, v{R+c}, v{LR+c} {dp}")
        for c in range(8): a(f"v_fmac_f32_dpp v{R+c}, -v{I+c}, v{LI+c} {dp}")
        for c in range(8): a(f"v_fmac_f32_dpp v{I+c}, v{I+c}, v{LR+c} {dp}")
        for c in range(8): a(f"v_fmac_f32_dpp v{I+c}, v{R+c}, v{LI+c} {dp}")
    a(f"""
    s_lshl_b32 s{sA}, s{sW}, 7
    s_add_u32 s{sA}, s{sA}, {H_E}
    v_lshl_add_u32 v{T+2}, v{HH}, 5, s{sA}
    s_mov_b32 exec_lo, 0x80000000
    s_mov_b32 exec_hi, 0x80000000
    """)
    for j in range(2):
        for q in range(4): a(f"ds_write_b128 v{T+2}, {vr(RI + 16*j + 4*q, 4)} offset:{512*j + 64*(q>>1) + 16*(q&1)}")
    a("s_mov_b64 exec, -1")
    a(f"v_lshlrev_b32 v{CA}, 16, v{CA}\nv_lshlrev_b32 v{CB}, 16, v{CB}\nv_lshlrev_b32 v{CD}, 16, v{CD}")
    dtprep(a, CA, CB, CD, 1)
    U, W_ = 196, 198
    pw(a, U, U + 1, CA, CB, "0x42000000", 1, CD)
    pw(a, W_, W_ + 1, CA, CB, "0x43800000", 1, CD)
    a(f"v_add_u32 v{T+2}, 1, v{VN}\nv_cvt_f32_u32 v{T+2}, v{T+2}")
    pw(a, LR, LI, A2, B2, f"v{T+2}", 8, TT)
    EE = 200
    a(f"v_lshlrev_b32 v{T}, 2, v{T}\nv_add_u32 v{T+2}, {H_E}, v{T}\ns_waitcnt vmcnt(0)")
    c_put(0); a("s_waitcnt lgkmcnt(0)\ns_barrier")
    c_get(0); a("s_waitcnt lgkmcnt(0)\ns_barrier")
    c_put(1); a("s_waitcnt lgkmcnt(0)\ns_barrier")
    c_get(1); a("s_waitcnt lgkmcnt(0)\ns_barrier")
    for s_ in range(8): a(f"ds_read2_b32 {vr(EE+2*s_,2)}, v{T+2} offset0:{32*s_} offset1:{32*s_+16}")
    AC_ = 216
    def cmac(M_, Er):
        a(f"""
        v_fma_f32 v{AC_+2}, v{M_}, v{AC_}, v{Er}
        v_fma_f32 v{AC_+3}, v{M_}, v{AC_+1}, v{Er+1}
        v_fma_f32 v{AC_+2}, -v{M_+1}, v{AC_+1}, v{AC_+2}
        v_fma_f32 v{AC_+1}, v{M_+1}, v{AC_}, v{AC_+3}
        v_mov_b32 v{AC_}, v{AC_+2}
        """)
    a(f"s_waitcnt lgkmcnt(0)\nv_mov_b32 v{AC_}, v{EE}\nv_mov_b32 v{AC_+1}, v{EE+1}")
    for s_ in range(1, 8): cmac(U, EE + 2 * s_)
    a(f"""
    v_min_u32 v{AC_}, -2, v{AC_}
    v_min_u32 v{AC_+1}, -2, v{AC_+1}
    v_lshlrev_b32 v{T+1}, 1, v{T}
    s_lshl_b32 s{sA3}, s{sH}, 7
    s_add_u32 s{sA3}, s{sA3}, {WS_A}
    s_lshl_b32 s{sA}, s{sB}, 12
    s_add_u32 s{sA}, s{sA}, s{sA3}
    s_cmp_eq_u32 s{sW}, 0
    s_cselect_b32 s{sA}, s{sA}, 0x70000000
    buffer_store_dwordx2 {vr(AC_,2)}, v{T+1}, {WS}, s{sA} offen sc1
    v_and_b32 v{T+2}, 7, v{LANE}
    v_cmp_ge_u32 {sr(sM,2)}, s{sB}, v{T+2}
    v_lshlrev_b32 v{T+2}, 2, v{T+2}
    v_mov_b32 v{AC_}, 0
    v_mov_b32 v{AC_+1}, 0
    s_mov_b32 s{sCnt}, 0
    """)
    a.label('L_h_wk')
    a(f"""
    buffer_load_dword v{AC_+2}, v{T+2}, {DBG}, 0 offen offset:{DBG_DN + DBG_KV0} sc1
    s_waitcnt vmcnt(0)
    v_cmp_gt_u32 vcc, 32, v{AC_+2}
    s_and_b64 vcc, vcc, {sr(sM,2)}
    s_cbranch_vccz L_h_wa
    """)
    poll_fail(a, 'L_h_wk')
    a.label('L_h_wa')
    a(f"""
    s_cmp_ge_u32 s{sCnt}, s{sB}
    s_cbranch_scc1 L_h_wd
    buffer_load_dwordx2 {vr(220,2)}, v{T+1}, {WS}, s{sA3} offen sc1
    s_waitcnt vmcnt(0)
    v_max_u32 v{AC_+2}, v220, v221
    v_cmp_eq_u32 vcc, -1, v{AC_+2}
    s_cbranch_vccz L_h_wb
    """)
    poll_fail(a, 'L_h_wa')
    a.label('L_h_wb')
    cmac(W_, 220)
    a(f"s_add_u32 s{sCnt}, s{sCnt}, 1\ns_add_u32 s{sA3}, s{sA3}, 4096\ns_branch L_h_wa")
    a.label('L_h_wd')
    a(f"s_lshl_b32 s{sA}, s{sW}, 10\ns_add_u32 s{sA}, s{sA}, {H_C}\nv_add_u32 v{T+2}, s{sA}, v{T}")
    for s_ in range(8):
        a(f"ds_write2_b32 v{T+2}, v{AC_}, v{AC_+1} offset0:{32*s_} offset1:{32*s_+16}")
        if s_ < 7: cmac(U, EE + 2 * s_)
    a(f"""
    s_lshl_b32 s{sA2}, s{sW}, 7
    s_add_u32 s{sA}, s{sA}, s{sA2}
    v_lshl_add_u32 v{T+2}, v{HH}, 5, s{sA}
    s_waitcnt lgkmcnt(0)
    """)
    CC = 192
    for j in range(2):
        for q in range(4): a(f"ds_read_b128 {vr(CC + 16*j + 4*q, 4)}, v{T+2} offset:{512*j + 64*(q>>1) + 16*(q&1)}")
    a(f"v_add_f32 v{T}, v{G}, v{G}\nv_add_f32 v{T+1}, v{MX}, v{MX}\ns_waitcnt lgkmcnt(0)")
    for j in range(2):
        R, I, cr, ci = RI + 16 * j, RI + 16 * j + 8, CC + 16 * j, CC + 16 * j + 8
        for c in range(8):
            a(f"""
            v_fmac_f32 v{R+c}, v{LR+c}, v{cr+c}
            v_fmac_f32 v{I+c}, v{LR+c}, v{ci+c}
            v_fma_f32 v{R+c}, -v{LI+c}, v{ci+c}, v{R+c}
            v_fmac_f32 v{I+c}, v{LI+c}, v{cr+c}
            v_mul_f32 v{cr+c}, v{R+c}, v{LE+c}
            v_mul_f32 v{ci+c}, v{R+c}, v{LM+c}
            v_fma_f32 v{cr+c}, -v{I+c}, v{LM+c}, v{cr+c}
            v_fmac_f32 v{ci+c}, v{I+c}, v{LE+c}
            v_mul_f32 v{cr+c}, v{cr+c}, v{T+j}
            v_mul_f32_e64 v{ci+c}, -v{ci+c}, v{T+j}
            """)
        for r in range(8): a(f"v_cvt_pk_bf16_f32 v{HF+8*j+r}, v{cr+2*r}, v{cr+2*r+1}")
    for r in range(8): a(f"v_accvgpr_write_b32 a{PH+r}, v{HF+8+r}")
    a(f"""
    v_bfe_u32 v{t+4}, v{LANE}, 2, 2
    v_bfe_u32 v{t+5}, v{LANE}, 4, 1
    v_and_b32 v{t+6}, 1, v{LANE}
    v_bfe_u32 v{t+7}, v{LANE}, 1, 1
    v_lshl_add_u32 v{t+8}, v{t+6}, 1, v{t+7}
    v_lshl_add_u32 v{t+8}, v{t+5}, 2, v{t+8}
    v_lshlrev_b32 v{t+8}, 3, v{t+8}
    v_lshl_add_u32 v{t+9}, v{HH}, 4, v{t+4}
    v_lshl_add_u32 v{t+8}, v{t+9}, 10, v{t+8}
    v_lshl_add_u32 v{WOA}, v{t+4}, 6, v{t+8}
    """)
    for tt in range(1, 4): a(f"v_xor_b32 v{WOA+tt}, {64*tt}, v{WOA}")
    for tt in range(4): a(f"v_add_u32 v{WOA+4+tt}, 0x10000, v{WOA+tt}")
    a(f"s_mov_b32 s{sJ}, 0")
    MINI = P.get('mini', 1)
    if MINI:
        a(f"""
        s_cmp_lg_u32 s{sB}, 7
        s_cbranch_scc1 L_h_nsd
        s_lshl_b32 s{sA2}, s{sW}, 5
        s_add_u32 s{sA2}, s{sA2}, s{sH}
        s_mul_i32 s{sA2}, s{sA2}, {23*1024}
        s_add_u32 s{sA2}, s{sA2}, {WS_ST}
        """)
        for q in range(23):
            a(f"buffer_store_dwordx4 {ar(128+4*q,4)}, v{L16}, {WS}, s{sA2} offen offset:{1024*(q&3)} sc1")
            if q & 3 == 3: a(f"s_add_u32 s{sA2}, s{sA2}, 4096")
        signal('d', DBG_ST, '0', 0)
    hs(5)
    a.label('L_h_seg')
    KMF, VMF, SM, PX, PM, OA_ = 32, 64, 80, 248, 128, 192
    a(f"v_max3_f32 v{MX}, v{SS}, v{SS+1}, v{SS+2}")
    for r in range(3, 15, 2): a(f"v_max3_f32 v{MX}, v{MX}, v{SS+r}, v{SS+r+1}")
    a(f"""
    v_max_f32 v{MX}, v{MX}, v{SS+15}
    s_lshl_b32 s{sA}, s{sSeg}, 17
    s_lshl_b32 s{sA2}, s{sH}, 12
    s_add_u32 s{sA}, s{sA}, s{sA2}
    s_add_u32 s{sA}, s{sA}, {WS_KM}
    s_sub_u32 s{sA2}, s{sSeg}, {P.get('pm0', 0)}
    s_cmp_lt_u32 s{sA2}, {48 - P.get('pm0', 0)}
    s_cselect_b32 s{sA2}, {P.get('pm', 7)}, {P.get('pm6', 3)}
    s_cmp_lt_u32 s{sSeg}, 56
    s_cselect_b32 s{sA2}, s{sA2}, {P.get('pm7', 3)}
    s_cmp_lt_u32 s{sSeg}, 60
    s_cselect_b32 s{sA2}, s{sA2}, 0
    s_or_b32 s{sA2}, s{sA2}, s{sSeg}
    s_min_u32 s{sA2}, s{sA2}, 62
    s_sub_i32 s{sA2}, s{sA2}, s{sSeg}
    s_lshl_b32 s{sA2}, s{sA2}, 17
    s_add_u32 s{sA2}, s{sA}, s{sA2}
    s_mov_b32 s{sA4}, 0x3e0293ee
    s_lshl_b32 s{sA3}, s{sW}, 12
    s_add_u32 s{sA3}, s{sA3}, {H_K}
    v_add_u32 v{T+1}, s{sA3}, v{L16}
    v_add_u32 v{T+2}, 2048, v{VKM}
    """)
    for tau in range(4): a(f"v_mov_b64 {vr(VMF + 4*tau + 2, 2)}, 0")
    a(f"v_mov_b64 {vr(PM+2,2)}, 0")
    a.label('L_h_pr')
    a(f"""
    buffer_load_dword v{T}, off, {WS}, s{sA2} offset:3072 sc1
    s_waitcnt vmcnt(0)
    v_cmp_eq_u32 vcc, -1, v{T}
    s_cbranch_vccz L_h_ld
    """)
    poll_fail(a, 'L_h_pr')
    a.label('L_h_pf')
    a(f"s_add_u32 s{sSpin}, s{sSpin}, 1\ns_cmp_gt_u32 s{sSpin}, {HSPIN}\ns_cbranch_scc1 L_end")
    a.label('L_h_ld')
    LD = 192
    for k in range(4): a(f"buffer_load_dwordx4 {vr(LD + 4*k, 4)}, v{L16}, {WS}, s{sA} offen offset:{1024*k} sc1")
    a("s_waitcnt vmcnt(0)")
    hs(6)
    for k in range(4): a(f"ds_write_b128 v{T+1}, {vr(LD + 4*k, 4)} offset:{1024*k}")
    a(f"v_max3_u32 v{T}, v{LD}, v{LD+1}, v{LD+2}")
    for r in range(3, 15, 2): a(f"v_max3_u32 v{T}, v{T}, v{LD+r}, v{LD+r+1}")
    a(f"v_max_u32 v{T}, v{T}, v{LD+15}\nv_cmp_eq_u32 vcc, -1, v{T}\ns_cbranch_vccnz L_h_pf")
    for k in range(8):
        o = ((k >> 1) & 1) * 128 + (k & 1) * 32
        a(f"ds_read2_b64 {vr(KMF + 4*k, 4)}, v{VKM if k < 4 else T+2} offset0:{o} offset1:{o+16}")
    for tau in range(4): a(f"ds_read2st64_b32 {vr(VMF + 4*tau, 2)}, v{VVM} offset0:{4*tau} offset1:{4*tau+2}")
    for k in range(8):
        a(f"s_waitcnt lgkmcnt({11-k})")
        mf(a, vr(SM, 16), vr(KMF + 4 * k, 4), vr(QF + 4 * k, 4), vr(SM, 16) if k else 0)
    a("s_waitcnt lgkmcnt(0)\ns_nop 11")
    a(f"""
    v_max3_f32 v{T}, v{MX}, v{SM}, v{SM+1}
    v_max3_f32 v{T}, v{T}, v{SM+2}, v{SM+3}
    v_mov_b32 v{T+1}, v{T}
    s_nop 1
    v_permlane32_swap_b32 v{T}, v{T+1}
    v_max_f32 v{T}, v{T}, v{T+1}
    v_mul_f32 v{T}, s{sA4}, v{T}
    """)
    ev = [SM + r for r in range(4)] + [SS + r for r in range(16)]
    for r in ev: a(f"v_fma_f32 v{r}, v{r}, s{sA4}, -v{T}")
    for r in ev: a(f"v_exp_f32 v{r}, v{r}")
    a(f"v_cvt_pk_bf16_f32 v{PM}, v{SM}, v{SM+1}\nv_cvt_pk_bf16_f32 v{PM+1}, v{SM+2}, v{SM+3}")
    for r in range(8): a(f"v_cvt_pk_bf16_f32 v{PX+r}, v{SS+2*r}, v{SS+2*r+1}")
    sm = [f"v_add_f32 v{T}, v{ev[0]}, v{ev[1]}"] + [f"v_add_f32 v{T}, v{T}, v{r}" for r in ev[2:]]
    sm += [f"v_mov_b32 v{T+1}, v{T}", f"v_sub_f32 v{T+2}, 1.0, v{G}", "s_nop 0", f"v_permlane32_swap_b32 v{T}, v{T+1}", f"v_add_f32 v{T}, v{T}, v{T+1}",
           f"v_rcp_f32 v{T}, v{T}", "s_nop 0", f"v_mul_f32 v{T}, v{T}, v{T+2}"]
    WF = 32
    wrd = lambda tile: [f"ds_read_b64_tr_b16 {vr(WF + 32*(tile&1) + 4*k + 2*pp, 2)}, v{WOA + 4*(k>>2) + (tile&3)} offset:{(32*((k>>1)&1) + 8*(k&1) + 4*pp)*1024 + 256*(tile>>2)}"
                        for k in range(8) for pp in range(2)]
    rd = wrd(0)
    OB = [192, 208, 132, 148]
    OB = [192, 208, 132, 80]
    def onorm(tau):
        L_ = [f"v_mul_f32 v{OB[tau]+r}, v{OB[tau]+r}, v{T}" for r in range(16)]
        L_ += [f"v_cvt_pk_bf16_f32 v{QF+8*tau+r}, v{OB[tau]+2*r}, v{OB[tau]+2*r+1}" for r in range(8)]
        return L_
    n = 0
    for tau in range(4):
        D = vr(OB[tau], 16)
        for k in range(3):
            if k == 0: mf(a, D, vr(VMF + 4 * tau, 4), vr(PM, 4), 0)
            else: mf(a, D, vr(VF + 8 * tau + 4 * (k - 1), 4), vr(PX + 4 * (k - 1), 4), D)
            for _ in range(2):
                if rd: a(rd.pop(0))
            if n == 6: sm += onorm(0)
            if n == 9: sm += onorm(1)
            for _ in range(6):
                if sm: a(sm.pop(0))
            n += 1
    for l in sm + onorm(2) + onorm(3): a(l)
    hs(7)
    a(f"""
    s_lshl_b32 s{sA}, s{sSeg}, 20
    s_lshl_b32 s{sA2}, s{sH}, 10
    s_add_u32 s{sA}, s{sA}, s{sA2}
    s_add_u32 s{sA}, s{sA}, {WS_PART}
    """)
    CT = 128
    def epi(tile):
        D = 192 + 16 * (tile & 1); c = CT + 8 * (tile & 1)
        L_ = []
        for u in range(2):
            L_ += [f"v_cvt_pk_bf16_f32 v{c+4*u+r}, v{D+8*u+2*r}, v{D+8*u+2*r+1}\nv_min_u32 v{c+4*u+r}, -2, v{c+4*u+r}" for r in range(4)]
        for u in range(2):
            L_ += [f"buffer_store_dwordx4 {vr(c+4*u,4)}, v{L16}, {WS}, s{sA} offen sc1\ns_add_u32 s{sA}, s{sA}, 32768"]
        return L_
    for tile in range(16):
        D = vr(192 + 16 * (tile & 1), 16)
        rd = wrd(tile + 1) if tile < 15 else []
        ep = epi(tile - 1) if tile else []
        for k in range(10):
            if k == 2: a("s_waitcnt lgkmcnt(0)")
            if k < 2: mf(a, D, ar(8 * tile + 4 * k, 4), vr(HF + 4 * k, 4), D if k else 0)
            else: mf(a, D, vr(WF + 32 * (tile & 1) + 4 * (k - 2), 4), vr(QF + 4 * (k - 2), 4), D)
            if k >= 2:
                for _ in range(2):
                    if rd: a(rd.pop(0))
            if ep and k >= 6 and len(ep) <= 2: a(ep.pop(0))
            elif ep and k >= 1 and len(ep) > 2:
                a(ep.pop(0)); a(ep.pop(0))
        assert not ep and not rd
    a("s_nop 12")
    for l in epi(15): a(l)
    hs(8)
    a(f"""
    s_lshl_b32 s{sA4}, s{sSeg}, 7
    s_add_u32 s{sA4}, s{sA4}, {WS_CNT}
    v_mov_b32 v220, 1
    """)
    if MINI: a(f"s_cmp_eq_u32 s{sB}, 7\ns_cselect_b32 s{sJ}, 3, s{sJ}\ns_cbranch_scc1 L_h_s7")
    a(f"s_cmp_lg_u32 s{sJ}, 0\ns_cbranch_scc1 L_h_sg")
    for r in range(32): a(f"v_accvgpr_read_b32 v{QF+r}, a{PQ+r}\nv_accvgpr_read_b32 v{VF+r}, a{PV+r}")
    for r in range(16): a(f"v_accvgpr_read_b32 v{SS+r}, a{PS+r}")
    for r in range(8): a(f"v_accvgpr_read_b32 v{HF+r}, a{PH+r}")
    a.label('L_h_sg')
    a(f"""
    v_accvgpr_read_b32 v{T}, a{PG}
    v_accvgpr_write_b32 a{PG}, v{G}
    s_xor_b32 s{sSeg}, s{sSeg}, 4
    s_add_u32 s{sJ}, s{sJ}, 1
    v_mov_b32 v{G}, v{T}
    L_h_s7:
    s_waitcnt vmcnt(0)
    s_mov_b64 exec, 1
    buffer_atomic_add v220, off, {WS}, s{sA4}
    s_mov_b64 exec, -1
    s_cmp_eq_u32 s{sJ}, 1
    s_cbranch_scc1 L_h_seg
    """)
    SELR, XS, DS_ = 216, 208, 212
    XU, DU = 224, 232
    def red_prep(SELR, DS_):
        a(f"""
        s_lshl_b32 s{sA2}, s{sH}, 5
        v_lshlrev_b32 v{T+1}, 4, v{HH}
        v_lshl_add_u32 v{T+2}, v{VN}, 10, v{T+1}
        v_add_u32 v{T+1}, s{sA2}, v{T+1}
        global_load_dwordx4 {vr(DS_,4)}, v{T+1}, {sr(P_DSK,2)}
        v_lshlrev_b32 v{MX}, 1, v{T+2}
        v_bfe_u32 v{t}, v{LANE}, 2, 1
        v_bfe_u32 v{t+1}, v{LANE}, 3, 2
        v_and_b32 v{t+2}, 3, v{LANE}
        v_lshl_add_u32 v{t+1}, v{t+1}, 2, v{t+2}
        v_cmp_eq_u32 vcc, v{t}, v{HH}
        v_mov_b32 v{t+3}, 64
        s_mov_b32 s{sA2}, 0x3f80
        v_cndmask_b32 v{t+1}, v{t+3}, v{t+1}, vcc
        v_and_b32 v{t+2}, 1, v{t+1}
        v_lshlrev_b32 v{t+2}, 4, v{t+2}
        v_lshlrev_b32 v{t+2}, v{t+2}, s{sA2}
        v_lshrrev_b32 v{t+1}, 1, v{t+1}
        """)
        for d in range(4): a(f"v_cmp_eq_u32 vcc, {d}, v{t+1}\ns_nop 1\nv_cndmask_b32 v{SELR+d}, 0, v{t+2}, vcc")
    red_prep(SELR, DS_)
    a.label('L_h_red')
    a(f"""
    s_lshl_b32 s{sA3}, s{sSeg}, 15
    s_lshl_b32 s{sA2}, s{sH}, 5
    s_add_u32 s{sA3}, s{sA3}, s{sA2}
    buffer_load_dwordx4 {vr(XS,4)}, v{T+2}, {sr(S_X,4)}, s{sA3} offen
    s_lshl_b32 s{sA4}, s{sSeg}, 7
    s_add_u32 s{sA4}, s{sA4}, {WS_CNT}
    s_lshl_b32 s{sA}, s{sSeg}, 20
    s_lshl_b32 s{sA2}, s{sH}, 15
    s_add_u32 s{sA}, s{sA}, s{sA2}
    s_add_u32 s{sA}, s{sA}, {WS_PART}
    s_lshl_b32 s{sA3}, s{sA3}, 1
    v_lshlrev_b32 v221, 10, v{VN}
    s_cmp_ge_u32 s{sSeg}, {56 if P.get('sg', 1) else 64}
    s_cbranch_scc1 L_h_rf
    """)
    a.label('L_h_wc')
    a(f"""
    buffer_load_dword v220, off, {WS}, s{sA4} sc1
    s_waitcnt vmcnt(0)
    v_cmp_gt_u32 vcc, 32, v220
    s_cbranch_vccz L_h_rd
    """)
    poll_fail(a, 'L_h_wc', P.get('slc', 2))
    a.label('L_h_rf')
    a(f"""
    s_mov_b64 exec, 0xffffffff
    buffer_load_dword v220, v221, {WS}, s{sA} offen offset:1020 sc1
    s_add_u32 s{sSpin}, s{sSpin}, 1
    s_cmp_gt_u32 s{sSpin}, {HSPIN}
    s_cbranch_scc1 L_end
    s_waitcnt vmcnt(0)
    v_cmp_eq_u32 vcc, -1, v220
    s_mov_b64 exec, -1
    s_cbranch_vccz L_h_rd
    s_sleep 2
    s_branch L_h_rf
    """)
    a.label('L_h_rd')
    hs(9)
    for k in range(32):
        if k & 3 == 0: a(f"s_add_u32 s{sA2}, s{sA}, {1024*k}")
        a(f"buffer_load_dwordx4 {vr(32+4*k,4)}, v{L16}, {WS}, s{sA2} offen offset:{1024*(k&3)} sc1")
    a("s_waitcnt vmcnt(32)")
    unpack8(a, XU, XS); unpack8(a, DU, DS_)
    for r in range(8): a(f"v_mul_f32 v{XU+r}, v{XU+r}, v{DU+r}")
    a(f"v_mov_b32 v{T}, 0")
    for k in range(32):
        a(f"s_waitcnt vmcnt({31-k})")
        mf(a, vr(192, 16), vr(SELR, 4), vr(32 + 4 * k, 4), vr(192, 16) if k else 0)
        a(f"v_max3_u32 v{T}, v{T}, v{32+4*k}, v{33+4*k}\nv_max3_u32 v{T}, v{T}, v{34+4*k}, v{35+4*k}")
    a(f"v_cmp_eq_u32 vcc, -1, v{T}\ns_cbranch_vccnz L_h_rf\ns_nop 7")
    for r in range(8): a(f"v_fmac_f32 v{192+r}, v{XU+r}, v{G}")
    OF = P.get('of', '')
    a(f"""
    buffer_store_dwordx4 v[192:195], v{MX}, {sr(S_OUT,4)}, s{sA3} offen {OF}
    buffer_store_dwordx4 v[196:199], v{MX}, {sr(S_OUT,4)}, s{sA3} offen offset:16 {OF}
    v_accvgpr_read_b32 v{G}, a{PG}
    s_xor_b32 s{sSeg}, s{sSeg}, 4
    s_add_u32 s{sJ}, s{sJ}, 1
    s_cmp_eq_u32 s{sJ}, 3
    s_cbranch_scc1 L_h_red
    """)
    a.label('L_h_done')
    if P.get('stat'):
        a("s_waitcnt vmcnt(0)"); hs(10); a("s_waitcnt lgkmcnt(0)")
        for k in range(11): a(f"v_mov_b32 v{32+k}, s{74+2*k}")
        a(f"v_mov_b32 v43, s98\ns_lshl_b32 s{sA}, s{sB}, 5\ns_add_u32 s{sA}, s{sA}, s{sH}\ns_lshl_b32 s{sA}, s{sA}, 2\ns_add_u32 s{sA}, s{sA}, s{sW}\ns_lshl_b32 s{sA}, s{sA}, 6\ns_add_u32 s{sA}, s{sA}, {(49 << 20) + (512 << 10)}\ns_mov_b64 exec, 1")
        for q in range(3): a(f"buffer_store_dwordx4 {vr(32+4*q,4)}, v{L16}, {WS}, s{sA} offen offset:{16*q}")
        a("s_mov_b64 exec, -1")
    a(f"""
    s_cmp_ge_u32 s{sB}, 2
    s_cbranch_scc1 {'L_h_mini' if MINI else 'L_end'}
    {'s_sub_u32 s%d, 7, s%d' % (sB, sB) if P.get('r2', 0) else 's_add_u32 s%d, s%d, 6' % (sB, sB)}
    s_waitcnt vmcnt(0)
    s_branch L_h_again
    """)
    if not MINI: return
    a.label('L_h_mini')
    a(f"""
    s_sub_u32 s{sA3}, s{sB}, 2
    s_cmp_ge_u32 s{sA3}, 4
    s_cbranch_scc1 L_end
    s_add_u32 s{sSeg}, s{sB}, 58
    s_add_u32 s{sB}, s{sB}, 6
    s_mov_b32 s{sSpin}, 0
    s_lshl_b32 s{sA}, s{sW}, 8
    """)
    AQ, AV, AH, AC_2 = 128, 160, 192, ACW
    for i in range(8): a(f"v_add_u32 v{WOA+i}, s{sA}, v{WOA+i}")
    for tt in range(4):
        for k in range(8):
            for pp in range(2): a(f"ds_read_b64_tr_b16 {ar(32*tt + 4*k + 2*pp, 2)}, v{WOA + 4*(k>>2) + tt} offset:{(32*((k>>1)&1) + 8*(k&1) + 4*pp)*1024}")
    SELM, XM = 20, 24
    a("s_waitcnt lgkmcnt(0)")
    red_prep(SELM, 244)
    a(f"""
    s_lshl_b32 s{sWoo}, s{sSeg}, 15
    s_lshl_b32 s{sA2}, s{sH}, 5
    s_add_u32 s{sWoo}, s{sWoo}, s{sA2}
    buffer_load_dwordx4 v[240:243], v{T+2}, {sr(S_X,4)}, s{sWoo} offen
    s_lshl_b32 s{sWoo}, s{sWoo}, 1
    s_lshl_b32 s{sA}, s{sW}, 4
    v_add_u32 v{VKV}, s{sA}, v{MX}
    s_cmp_lg_u32 s{sW}, 0
    s_cbranch_scc1 L_m_st
    """)
    a.label('L_m_w0')
    a(f"buffer_load_dword v{T}, off, {DBG}, 0 offset:{DBG_DN + DBG_ST} sc1\ns_waitcnt vmcnt(0)\nv_cmp_eq_u32 vcc, 0, v{T}\ns_cbranch_vccz L_m_st")
    poll_fail(a, 'L_m_w0', 16)
    a.label('L_m_st')
    a(f"""
    s_waitcnt vmcnt(0)
    s_barrier
    s_lshl_b32 s{sA2}, s{sA3}, 5
    s_add_u32 s{sA2}, s{sA2}, s{sH}
    s_mul_i32 s{sA2}, s{sA2}, {23*1024}
    s_add_u32 s{sA2}, s{sA2}, {WS_ST}
    """)
    for q in range(23):
        dst = ar(AQ + 4 * q, 4) if q < 16 else vr(SS + 4 * (q - 16), 4) if q < 20 else ar(AH + 4 * (q - 20), 4) if q < 22 else vr(248, 4)
        a(f"buffer_load_dwordx4 {dst}, v{L16}, {WS}, s{sA2} offen offset:{1024*(q&3)} sc1")
        if q & 3 == 3: a(f"s_add_u32 s{sA2}, s{sA2}, 4096")
    unpack8(a, 32, 240); unpack8(a, 40, 244)
    for r in range(8): a(f"v_mul_f32 v{32+r}, v{32+r}, v{40+r}")
    a(f"s_bitcmp1_b32 s{sW}, 0\ns_cselect_b64 vcc, -1, 0\ns_mov_b32 s{sA4}, 0x3e0293ee\ns_waitcnt vmcnt(0)\nv_mov_b32 v{G}, v248")
    for r in range(4): a(f"v_cndmask_b32 v{XM+r}, v{32+r}, v{36+r}, vcc")
    for r in range(4): a(f"v_mul_f32 v{XM+r}, v{XM+r}, v{G}")
    LX = XA
    a(f"v_max3_f32 v{MX}, v{SS}, v{SS+1}, v{SS+2}")
    for r in range(3, 15, 2): a(f"v_max3_f32 v{MX}, v{MX}, v{SS+r}, v{SS+r+1}")
    a(f"""
    v_max_f32 v{MX}, v{MX}, v{SS+15}
    v_mov_b32 v{T+1}, v{MX}
    s_nop 1
    v_permlane32_swap_b32 v{MX}, v{T+1}
    v_max_f32 v{MX}, v{MX}, v{T+1}
    v_mul_f32 v{T}, s{sA4}, v{MX}
    """)
    for r in range(16): a(f"v_fma_f32 v{SS+r}, v{SS+r}, s{sA4}, -v{T}")
    for r in range(16): a(f"v_exp_f32 v{SS+r}, v{SS+r}")
    for r in range(8): a(f"v_cvt_pk_bf16_f32 v{248+r}, v{SS+2*r}, v{SS+2*r+1}")
    a(f"v_add_f32 v{LX}, v{SS}, v{SS+1}")
    for r in range(2, 16): a(f"v_add_f32 v{LX}, v{LX}, v{SS+r}")
    for tau in range(4):
        for u in range(2): mf(a, vr(32 + 16 * tau, 16), ar(AV + 8 * tau + 4 * u, 4), vr(248 + 4 * u, 4), vr(32 + 16 * tau, 16) if u else 0)
    a("s_nop 12")
    for r in range(32): a(f"v_cvt_pk_bf16_f32 v{96+r}, v{32+2*r}, v{33+2*r}")
    YC, YX = 96, 160
    a("s_nop 1")
    for tt in range(4):
        for k in range(8): mf(a, vr(YX + 16 * tt, 16), ar(32 * tt + 4 * k, 4), vr(96 + 4 * k, 4), vr(YX + 16 * tt, 16) if k else 0)
    a("s_nop 7")
    for tt in range(4):
        for k in range(2): mf(a, vr(YC + 16 * tt, 16), ar(AC_2 + 8 * tt + 4 * k, 4), ar(AH + 4 * k, 4), vr(YC + 16 * tt, 16) if k else 0)
    PMm, LDm = 240, 244
    a(f"""
    s_lshl_b32 s{sA}, s{sSeg}, 17
    s_lshl_b32 s{sA2}, s{sH}, 12
    s_add_u32 s{sA}, s{sA}, s{sA2}
    s_add_u32 s{sA}, s{sA}, {WS_KM}
    s_cmp_ge_u32 s{sSeg}, {P.get('mfp', 63)}
    s_cselect_b32 s{sA2}, {1 << 17}, 0
    s_sub_u32 s{sA2}, s{sA}, s{sA2}
    s_lshl_b32 s{sA3}, s{sW}, 10
    s_add_u32 s{sA}, s{sA}, s{sA3}
    s_add_u32 s{sA3}, s{sA3}, {H_K}
    v_add_u32 v{XA+1}, s{sA3}, v{L16}
    s_lshl_b32 s{sA3}, s{sW}, 12
    v_subrev_u32 v{VKM}, s{sA3}, v{VKM}
    v_subrev_u32 v{VVM}, s{sA3}, v{VVM}
    v_add_u32 v{T+2}, 2048, v{VKM}
    v_sub_f32 v{G}, 1.0, v{G}
    s_lshl_b32 s{sWo1}, s{sSeg}, 20
    s_add_u32 s{sWo1}, s{sWo1}, {WS_PART}
    s_lshl_b32 s{sA3}, s{sH}, 15
    s_add_u32 s{sWo2}, s{sWo1}, s{sA3}
    s_lshl_b32 s{sA3}, s{sW}, 13
    s_add_u32 s{sWo2}, s{sWo2}, s{sA3}
    s_add_u32 s{sSlot}, s{sWo2}, 4096
    s_lshl_b32 s{sA3}, s{sH}, 10
    s_add_u32 s{sWo1}, s{sWo1}, s{sA3}
    s_lshl_b32 s{sA3}, s{sW}, 18
    s_add_u32 s{sWo1}, s{sWo1}, s{sA3}
    """)
    for tau in range(4): a(f"v_mov_b64 {vr(VMF + 4*tau + 2, 2)}, 0")
    a(f"v_mov_b64 {vr(PMm+2,2)}, 0")
    a("s_getpc_b64 s[60:61]")
    a.label('L_m_pc')
    a(f"v_lshlrev_b32 v{T}, 3, v{L16}\nv_min_u32 v{T}, L_m_fin-L_m_pc, v{T}\nglobal_load_dword v{T}, v{T}, s[60:61]")
    hs(5)
    a.label('L_m_pr')
    a(f"buffer_load_dword v{T}, off, {WS}, s{sA2} offset:3072 sc1\ns_waitcnt vmcnt(0)\nv_cmp_eq_u32 vcc, -1, v{T}\ns_cbranch_vccz L_m_ld")
    poll_fail(a, 'L_m_pr', P.get('mps', 2))
    a.label('L_m_pf')
    a(f"s_add_u32 s{sSpin}, s{sSpin}, 1\ns_cmp_gt_u32 s{sSpin}, {HSPIN}\ns_cbranch_scc1 L_end")
    a.label('L_m_ld')
    a(f"""
    buffer_load_dwordx4 {vr(LDm,4)}, v{L16}, {WS}, s{sA} offen sc1
    s_waitcnt vmcnt(0)
    ds_write_b128 v{XA+1}, {vr(LDm,4)}
    v_max3_u32 v{T}, v{LDm}, v{LDm+1}, v{LDm+2}
    v_max_u32 v{T}, v{T}, v{LDm+3}
    v_cmp_eq_u32 vcc, -1, v{T}
    s_cbranch_vccnz L_m_pf
    s_waitcnt lgkmcnt(0)
    s_barrier
    """)
    for k in range(8):
        o = ((k >> 1) & 1) * 128 + (k & 1) * 32
        a(f"ds_read2_b64 {vr(KMF + 4*k, 4)}, v{VKM if k < 4 else T+2} offset0:{o} offset1:{o+16}")
    for tau in range(4): a(f"ds_read2st64_b32 {vr(VMF + 4*tau, 2)}, v{VVM} offset0:{4*tau} offset1:{4*tau+2}")
    for k in range(8):
        a(f"s_waitcnt lgkmcnt({11-k})")
        mf(a, vr(SM, 16), vr(KMF + 4 * k, 4), ar(AQ + 4 * k, 4), vr(SM, 16) if k else 0)
    hs(6)
    a(f"""
    s_waitcnt lgkmcnt(0)
    s_nop 11
    v_max3_f32 v{T}, v{MX}, v{SM}, v{SM+1}
    v_max3_f32 v{T}, v{T}, v{SM+2}, v{SM+3}
    v_mov_b32 v{T+1}, v{T}
    s_nop 1
    v_permlane32_swap_b32 v{T}, v{T+1}
    v_max_f32 v{T}, v{T}, v{T+1}
    v_mul_f32 v{T}, s{sA4}, v{T}
    """)
    for r in [SM, SM + 1, SM + 2, SM + 3, MX]: a(f"v_fma_f32 v{r}, v{r}, s{sA4}, -v{T}")
    for r in [SM, SM + 1, SM + 2, SM + 3, MX]: a(f"v_exp_f32 v{r}, v{r}")
    a(f"""
    v_add_f32 v{T}, v{SM}, v{SM+1}
    v_add_f32 v{T+1}, v{SM+2}, v{SM+3}
    v_fmac_f32 v{T}, v{LX}, v{MX}
    v_add_f32 v{T}, v{T}, v{T+1}
    v_mov_b32 v{T+1}, v{T}
    s_nop 1
    v_permlane32_swap_b32 v{T}, v{T+1}
    v_add_f32 v{T}, v{T}, v{T+1}
    v_rcp_f32 v{T}, v{T}
    s_nop 0
    v_mul_f32 v{T}, v{T}, v{G}
    """)
    for r in range(4): a(f"v_mul_f32 v{SM+r}, v{SM+r}, v{T}")
    a(f"v_cvt_pk_bf16_f32 v{PMm}, v{SM}, v{SM+1}\nv_cvt_pk_bf16_f32 v{PMm+1}, v{SM+2}, v{SM+3}\nv_mul_f32 v{MX}, v{MX}, v{T}")
    OBm = [32, 48, 80, 224]; OF = 160
    fm = [f"v_fmac_f32 v{YC+r}, v{YX+r}, v{MX}" for r in range(64)]
    a(fm.pop(0))
    for tau in range(4):
        mf(a, vr(OBm[tau], 16), vr(VMF + 4 * tau, 4), vr(PMm, 4), 0)
        for _ in range(6): a(fm.pop(0))
    for _ in range(7): a(fm.pop(0))
    cvo = lambda tau: [f"v_cvt_pk_bf16_f32 v{OF+8*tau+r}, v{OBm[tau]+2*r}, v{OBm[tau]+2*r+1}" for r in range(8)]
    for l in cvo(0): a(l)
    fill = cvo(1) + cvo(2) + cvo(3) + fm
    a(fill.pop(0)); a(fill.pop(0))
    CTm = 32
    def epim(tt):
        L_ = [f"v_cvt_pk_bf16_f32 v{CTm+8*tt+r}, v{YC+16*tt+2*r}, v{YC+16*tt+2*r+1}\nv_min_u32 v{CTm+8*tt+r}, -2, v{CTm+8*tt+r}" for r in range(8)]
        L_ += [f"buffer_store_dwordx4 {vr(CTm+8*tt+4*u,4)}, v{L16}, {WS}, s{sWo1} offen sc1\ns_add_u32 s{sWo1}, s{sWo1}, 32768" for u in range(2)]
        return L_
    order = [(tt, k) for k in range(8) for tt in range(2)] + [(2, k) for k in range(8)] + [(3, k) for k in range(8)]
    ep = []
    for n, (tt, k) in enumerate(order):
        mf(a, vr(YC + 16 * tt, 16), ar(32 * tt + 4 * k, 4), vr(OF + 4 * k, 4), vr(YC + 16 * tt, 16))
        for _ in range(6):
            if fill: a(fill.pop(0))
        if n == 17: ep += epim(0) + epim(1)
        if n == 25: ep += epim(2)
        for _ in range(3):
            if ep: a(ep.pop(0))
    assert not fill and not ep
    a("s_nop 12")
    for l in epim(3): a(l)
    hs(8)
    a(f"s_lshl_b32 s{sA3}, s{sW}, 11\ns_add_u32 s{sA3}, s{sA3}, {H_K + 4096}\nv_add_u32 v{T+1}, s{sA3}, v{L16}")
    a(f"s_lshl_b32 s{sA3}, s{sW}, 10\ns_add_u32 s{sA3}, s{sA3}, {H_K + 4096}\nv_add_u32 v{T+2}, s{sA3}, v{L16}")
    a(f"v_and_b32 v{MX}, 7, v{LANE}\nv_lshlrev_b32 v{MX}, 10, v{MX}")
    a(f"s_waitcnt vmcnt({P.get('mdr', 0)})")
    a(f"""
    s_cmp_ge_u32 s{sSeg}, {P.get('mth', 60)}
    s_cbranch_scc1 {'L_m_rd' if P.get('mg', 0) else 'L_m_rf'}
    s_barrier
    s_cmp_lg_u32 s{sW}, 0
    s_cbranch_scc1 L_m_c1
    s_lshl_b32 s{sA4}, s{sSeg}, 7
    s_add_u32 s{sA4}, s{sA4}, {WS_CNT}
    v_mov_b32 v{T}, 1
    s_mov_b64 exec, 1
    buffer_atomic_add v{T}, off, {WS}, s{sA4}
    s_mov_b64 exec, -1
    """)
    a.label('L_m_c0')
    a(f"buffer_load_dword v{T}, off, {WS}, s{sA4} sc1\ns_waitcnt vmcnt(0)\nv_cmp_gt_u32 vcc, 32, v{T}\ns_cbranch_vccz L_m_c1")
    poll_fail(a, 'L_m_c0', P.get('slc', 2))
    a.label('L_m_c1')
    a("s_barrier\ns_branch L_m_rd")
    a.label('L_m_rf')
    a(f"""
    s_mov_b64 exec, 0xff
    buffer_load_dword v{T}, v{MX}, {WS}, s{sWo2} offen offset:1020 sc1
    s_add_u32 s{sSpin}, s{sSpin}, 1
    s_cmp_gt_u32 s{sSpin}, {HSPIN}
    s_cbranch_scc1 L_end
    s_waitcnt vmcnt(0)
    v_cmp_eq_u32 vcc, -1, v{T}
    s_mov_b64 exec, -1
    s_cbranch_vccz L_m_rd
    s_sleep {P.get('msl', 1)}
    s_branch L_m_rf
    """)
    a.label('L_m_rd')
    hs(9)
    for k in range(8): a(f"buffer_load_dwordx4 {vr(96+4*k,4)}, v{L16}, {WS}, s{sWo2 if k < 4 else sSlot} offen offset:{1024*(k&3)} sc1")
    a(f"v_mov_b32 v{T}, 0")
    for k in range(8):
        a(f"s_waitcnt vmcnt({7-k})")
        mf(a, vr(64, 16), vr(SELM, 4), vr(96 + 4 * k, 4), vr(64, 16) if k else 0)
        a(f"v_max3_u32 v{T}, v{T}, v{96+4*k}, v{97+4*k}\nv_max3_u32 v{T}, v{T}, v{98+4*k}, v{99+4*k}")
    a(f"""
    v_cmp_eq_u32 vcc, -1, v{T}
    s_cbranch_vccnz L_m_rf
    s_nop 7
    ds_write_b128 v{T+1}, v[64:67]
    ds_write_b128 v{T+1}, v[68:71] offset:1024
    s_waitcnt lgkmcnt(0)
    s_barrier
    s_cmp_ge_u32 s{sW}, 2
    s_cbranch_scc1 L_m_fin
    """)
    for k in range(4): a(f"ds_read_b128 {vr(96+4*k,4)}, v{T+2} offset:{2048*k}")
    for k in range(4):
        a(f"s_waitcnt lgkmcnt({3-k})")
        a(f"v_pk_add_f32 {vr(XM,2)}, {vr(XM,2)}, {vr(96+4*k,2)}\nv_pk_add_f32 {vr(XM+2,2)}, {vr(XM+2,2)}, {vr(98+4*k,2)}")
    a(f"buffer_store_dwordx4 {vr(XM,4)}, v{VKV}, {sr(S_OUT,4)}, s{sWoo} offen")
    a.label('L_m_fin')
    a("s_branch L_h_done" if P.get('stat') else "s_branch L_hend" if P.get('dbgt') else "s_branch L_end")

if __name__ == '__main__':
    a = Asm(); h_once(a); helper_task(a, {})
    errs, ins = check(a.lines, 'helper')
    for e in errs: print(e)
    print(len(ins), ins[-1]['t'])
```

```python
import sys, json
from asmlib import *
import chain, helper
from chain import *
KNAME = 'gated_mix__ssm_conv_s5__memory_aug_recurrent_mem_tr__prompt_kernel'
L_EL = {'c': 16384 - 16, 'h': 163840 - 16}
JUNK = {'c': 127, 'h': 255}

def ticket(a, tag, off_s):
    a(f"""
    s_cmp_lg_u32 s{sW}, 0
    s_cbranch_scc1 L_tk_{tag}
    s_mov_b64 exec, 1
    v_mov_b32 v126, 1
    buffer_atomic_add v126, off, {sr(S_DBG,4)}, {off_s} sc0
    s_mov_b64 exec, -1
    """)
    a.label(f'L_tk_{tag}')
def ticket_get(a, tag, nyoung):
    a(f"""
    v_mov_b32 v125, {L_EL[tag]}
    s_cmp_lg_u32 s{sW}, 0
    s_cbranch_scc1 L_tg_{tag}
    s_waitcnt vmcnt({nyoung})
    s_mov_b64 exec, 1
    ds_write_b32 v125, v126
    s_mov_b64 exec, -1
    s_waitcnt lgkmcnt(0)
    """)
    a.label(f'L_tg_{tag}')
    a(f"""
    s_barrier
    ds_read_b32 v126, v125
    s_waitcnt lgkmcnt(0)
    v_readfirstlane_b32 s{sT+1}, v126
    s_cmp_ge_u32 s{sT+1}, 32
    s_cbranch_scc1 L_end
    """)
def code_pref(a, lo, hi, n=2):
    if not n: return 0
    a(f"s_getpc_b64 s[60:61]")
    a.label(f'L_pc_{lo}')
    a("v_lshlrev_b32 v1, 7, v0")
    for k in range(n):
        if k: a("v_add_u32 v1, 0x8000, v1")
        a(f"v_min_u32 v2, {hi}-L_pc_{lo}-4, v1\nglobal_load_dword v{JUNK[lo]}, v2, s[60:61]")
    return n

def build_kernel(P):
    a = Asm()
    a("s_cmp_ge_u32 s2, 256\ns_cbranch_scc1 L_end")
    srd(a, S_DBG, 144, 256); srd(a, S_WS, 152, WS_SIZE)
    if P.get('stat') or P.get('dbgt') or P.get('spinT'): a("s_memtime s[96:97]\ns_memrealtime s[98:99]")
    a(f"""
    s_getreg_b32 s{sT}, hwreg(HW_REG_XCC_ID, 0, 3)
    v_lshrrev_b32 v1, 6, v0
    s_bfe_u32 s3, s2, 0x50003
    s_xor_b32 s{sT}, s{sT}, {P.get('xc', 3)}
    v_readfirstlane_b32 s{sW}, v1
    s_cmp_eq_u32 s{sT}, 0
    s_cbranch_scc0 L_helper
    """)
    n0 = 0; errs = []
    srd(a, S_WV, 104, 4194304); srd(a, S_WK, 96, 4194304); srd(a, S_WQ, 88, 4194304); srd(a, S_WO, 112, 4194304); srd(a, S_M0, 80, 8192)
    a("s_waitcnt lgkmcnt(0)")
    ticket(a, 'c', '0')
    a(f"""
    v_lshrrev_b32 v1, 1, v0
    v_and_b32 v2, 1, v0
    v_lshlrev_b32 v2, 7, v2
    v_lshl_add_u32 v1, v1, 13, v2
    s_lshl_b32 s{sT+2}, s3, 8
    buffer_load_dword v127, v1, {sr(S_WV,4)}, s{sT+2} offen
    """)
    if not P.get('cpf', 0): a.lines.pop()
    ncp = code_pref(a, 'c', 'L_top_0', P.get('ccp', 0))
    ticket_get(a, 'c', ncp + (1 if P.get('cpf', 0) else 0))
    a(f"s_mov_b32 s{sH}, s{sT+1}")
    if P.get('stat'):
        for r in [70, 71] + list(range(88, 96)): a(f"s_mov_b32 s{r}, 0")
        a("s_memtime s[60:61]")
    a.lg = []; a.vm = []
    chain.PF[0] = P.get('pf', 'sc1')
    plan_units(P)
    if P.get('pu') == -1: a("s_memrealtime s[100:101]")
    chain_first_dma(a)
    chain_setup(a)
    chain_prologue(a, P)
    e, _ = check(a.lines[n0:], 'cpro'); errs += e
    vm0 = list(a.vm)
    for w in range(4):
        n0 = len(a.lines)
        chain_prologue_w(a, P, w, vm0)
        e, _ = check(a.lines[n0:], f'cpro{w}'); errs += e
    for w in range(4):
        a(".p2align 6")
        n0 = len(a.lines)
        n1, _ = chain_step(a, P, w)
        e, ins = check(a.lines[n0:n1] * 2, f'loop{w}'); errs += e
        e, _ = check(a.lines[n1:], f'retry{w}'); errs += e
    a.label('L_exit')
    if P.get('stat'):
        a("s_memtime s[66:67]\ns_memrealtime s[72:73]\ns_waitcnt lgkmcnt(0)\ns_nop 7")
        for k in range(8): a(f"v_mov_b32 v{40+k}, s{88+k}")
        a(f"""
        s_mov_b32 s93, s72
        s_mov_b32 s94, s98
        s_mov_b32 s92, s100
        s_sub_u32 s91, s72, s62
        s_sub_u32 s88, s66, s96
        s_sub_u32 s66, s66, s68
        s_mov_b32 s90, s62
        s_sub_u32 s95, s60, s96
        v_mov_b32 v24, s64
        v_mov_b32 v25, s66
        v_mov_b32 v26, s70
        v_mov_b32 v27, s71
        s_lshl_b32 s{sT}, s{sH}, 2
        s_add_u32 s{sT}, s{sT}, s{sW}
        s_lshl_b32 s{sT}, s{sT}, 7
        s_add_u32 s{sT}, s{sT}, {WS_STAMP}
        v_mov_b32 v28, 0
        buffer_store_dwordx4 v[24:27], v28, {sr(S_WS,4)}, s{sT} offen
        """)
        for k in range(8): a(f"v_mov_b32 v{32+k}, s{88+k}")
        for q in range(4): a(f"buffer_store_dwordx4 {vr(32+4*q,4)}, v28, {sr(S_WS,4)}, s{sT} offen offset:{16+16*q}")
    if P.get('dbgt'):
        a(f"""
        s_memtime s[66:67]
        s_memrealtime s[72:73]
        s_waitcnt lgkmcnt(0)
        s_sub_u32 s66, s66, s96
        s_sub_u32 s72, s72, s98
        s_sub_u32 s100, s100, s98
        s_mov_b64 exec, 1
        v_mov_b32 v24, s100
        v_mov_b32 v25, s72
        v_mov_b32 v26, s66
        buffer_atomic_umax v24, off, {sr(S_DBG,4)}, 0 offset:48
        buffer_atomic_umax v25, off, {sr(S_DBG,4)}, 0 offset:52
        buffer_atomic_umax v26, off, {sr(S_DBG,4)}, 0 offset:60
        s_branch L_end
        L_hend:
        s_waitcnt vmcnt(0)
        s_memrealtime s[72:73]
        s_waitcnt lgkmcnt(0)
        s_sub_u32 s72, s72, s98
        s_mov_b64 exec, 1
        v_mov_b32 v25, s72
        buffer_atomic_umax v25, off, {sr(S_DBG,4)}, 0 offset:56
        """)
    a("s_endpgm")
    a(".p2align 6")
    a.label('L_helper')
    if P.get('nohelp'): a("s_branch L_end")
    n0 = len(a.lines)
    helper.h_ptrs(a)
    a(f"s_sub_u32 s{sT}, s{sT}, 2\ns_min_u32 s{sT}, s{sT}, 6\ns_mul_i32 s56, s{sT}, 43\ns_lshr_b32 s56, s56, 7\ns_mul_i32 s57, s56, -188\ns_lshl_b32 s56, s{sT}, 6\ns_add_u32 s57, s57, s56\ns_add_u32 s57, s57, 112\ns_waitcnt lgkmcnt(0)")
    ticket(a, 'h', "s57")
    ny = helper.h_prefetch(a, sT)
    code_pref(a, 'h', 'L_end')
    helper.h_once(a)
    a(f"s_mov_b32 s{helper.sB}, 0")
    a.label('L_h_again')
    helper.h_static(a)
    a(f"s_cmp_lg_u32 s{helper.sB}, 0\ns_cbranch_scc0 L_h_first\ns_barrier\ns_branch L_h_task")
    a.label('L_h_first')
    ticket_get(a, 'h', ny + 2)
    a(f"""
    s_lshl_b32 s57, s{sT}, 5
    s_add_u32 s57, s57, s{sT+1}
    s_mul_i32 s{sH}, s57, 10923
    s_lshr_b32 s{sH}, s{sH}, 16
    s_mul_i32 s56, s{sH}, 6
    s_sub_u32 s{helper.sB}, s57, s56
    s_cmp_eq_u32 s{sT}, 6
    s_cselect_b32 s{sH}, s{sT+1}, s{sH}
    s_cselect_b32 s{helper.sB}, 8, s{helper.sB}
    s_cmp_eq_u32 s{helper.sB}, 0
    s_cselect_b32 s{helper.sMode}, 1, 0
    s_cmp_eq_u32 s{helper.sB}, 5
    s_cselect_b32 s{helper.sMode}, 2, s{helper.sMode}
    """)
    helper.helper_task(a, P)
    e, _ = check(a.lines[n0:], 'helper'); errs += e
    a.label('L_end')
    return a, errs

def full_text(P):
    a, errs = build_kernel(P)
    ref = open('gated_mix__ssm_conv_s5__memory_aug_recurrent_mem_tr__prompt.s.ref').read()
    head = ref[:ref.index('; @launch')]
    txt = head + f"""; @launch grid=(256,1,1) block=(256,1,1) lds=163840
.amdgcn_target "amdgcn-amd-amdhsa--gfx950"
.text
.globl {KNAME}
.p2align 8
.type {KNAME},@function
{KNAME}:
{a.text()}    s_endpgm
.section .rodata,"a"
.p2align 6
.amdhsa_kernel {KNAME}
  .amdhsa_next_free_vgpr 512
  .amdhsa_next_free_sgpr 102
  .amdhsa_accum_offset 256
  .amdhsa_group_segment_fixed_size 0
  .amdhsa_kernarg_size 160
  .amdhsa_user_sgpr_count 2
  .amdhsa_user_sgpr_kernarg_segment_ptr 1
  .amdhsa_system_sgpr_workgroup_id_x 1
  .amdhsa_float_denorm_mode_32 3
.end_amdhsa_kernel
"""
    return txt, errs

if __name__ == '__main__':
    P = json.loads(sys.argv[2]) if len(sys.argv) > 2 else {}
    txt, errs = full_text(P)
    for e in errs: print('HAZ', e)
    out = sys.argv[1] if len(sys.argv) > 1 else 'gated_mix__ssm_conv_s5__memory_aug_recurrent_mem_tr__prompt.s'
    open(out, 'w').write(txt)
    print('wrote', out, len(txt))
```

```python
from asmlib import *

WS_KV = 65536
WS_KM = (34 << 20) + 65536
WS_H1 = 48 << 20
WS_IMG = WS_H1 + (512 << 10)
WS_FL = WS_IMG + (64 << 10)
WS_DUMMY = WS_IMG + (128 << 10)
WS_STAMP = 49 << 20
WS_SIZE = 268435456
DBG_XCNT = 0
DBG_CBAR = 4
DBG_KV0 = 12
DBG_KVC = 16
DBG_DN = 128
L_MEM, L_S, L_KV, L_W = 0, 8192, 16384, 32768
L_O = L_MEM
L_SM = L_S + 1024
L_MISC = L_S + 5120
S_WS, S_WQ, S_WK, S_WV, S_WO, S_DBG, S_M0 = 4, 8, 12, 16, 20, 24, 28
sH, sW, sS = 32, 33, 34
sKV, sKM, sH1l, sTAG, sIMl = 35, 36, 37, 38, 39
sH1 = 40
sIMw, sIMr, sFL, sSPIN = 44, 45, 46, 47
sIML, sKMv = 59, 58
sONE, sMLO, sFLn, sFG, sFM = 84, 86, 3, 2, 54
sC = 48
sT = 50
IDX, L16, A_W, A_SMW, NEG1, A_O, A_H1S, A_IMS = 0, 1, 2, 3, 4, 5, 6, 7
A_OW, FLV, HZ = 8, 9, 10
F, SEL, ONE = 12, 16, 20
MA = 24
Q0, K0, Q1, K1, V0, V1 = 56, 60, 64, 68, 72, 76
KX, VX, ST = 80, 88, 96
RW = 128
SPIN_MAX = 200000

QK_A = {1: 0, 2: 1, 3: 2, 5: 3, 6: 4, 7: 5}
def wqk_reg(sig, u):
    if sig in (0, 4): return ('v', ST + 8 * u)
    return ('a', 32 * QK_A[sig] + 8 * u)
def wv_reg(sig, tau):
    if sig < 4: return ('a', 192 + 8 * (2 * sig + tau))
    return ('v', RW + 8 * (2 * (sig - 4) + tau))
def wo_reg(T, k2):
    if T < 2: return ('v', RW + 64 + 8 * (4 * T + k2))
    return ('v', (ST if T == 2 else MA) + 8 * k2)
def R8(r): return vr(r[1], 8, r[0])
def smf(a, D, A, B): a(f"v_smfmac_f32_16x16x64_bf16 {vr(D,4)}, {vr(A,4)}, {R8(B)}, v{IDX}")
def lw_qk(sig, u): return 8192 * (sig >> 2) + 4096 * (u & 1) + 2048 * (u >> 1)
def lw_wo(T, k2): return 16384 + 2048 * (4 * (T - 2) + k2)
def nops(a, n):
    while n > 0:
        k = min(n, 16); a(f"s_nop {k-1}"); n -= k

def srd(a, s, koff, size):
    a(f"s_load_dwordx2 {sr(s,2)}, s[0:1], {koff}")
    a(f"s_mov_b32 s{s+2}, {size}\ns_mov_b32 s{s+3}, 0x20000")

def chain_setup(a):
    t = 96
    lane, i, g, g1, g0, hi, i3, i2 = t + 1, t + 2, t + 3, t + 6, t + 7, t + 8, t + 9, t + 10
    x, y, z = t + 5, t + 12, t + 13
    a(f"""
    v_and_b32 v{lane}, 63, v0
    v_and_b32 v{i}, 15, v{lane}
    v_lshrrev_b32 v{g}, 4, v{lane}
    v_lshlrev_b32 v{L16}, 4, v{lane}
    v_lshrrev_b32 v{g1}, 1, v{g}
    v_and_b32 v{g0}, 1, v{g}
    v_lshrrev_b32 v{hi}, 3, v{i}
    v_and_b32 v{i3}, 3, v{i}
    v_lshrrev_b32 v{i2}, 2, v{i}
    s_lshl_b32 s{sT+1}, s{sW}, 15
    s_add_u32 s{sT+1}, s{sT+1}, {L_W}
    v_add_u32 v{A_W}, s{sT+1}, v{L16}
    v_lshl_add_u32 v{y}, v{hi}, 1, v{g0}
    v_and_b32 v{x}, 7, v{i}
    v_lshl_add_u32 v{x}, v{y}, 4, v{x}
    v_lshlrev_b32 v{x}, 4, v{x}
    v_add_u32 v{y}, s{sW}, v{y}
    v_and_b32 v{y}, 3, v{y}
    v_lshl_add_u32 v{x}, v{y}, 2, v{x}
    v_xor_b32 v{y}, 1, v{g1}
    v_lshl_add_u32 v{x}, v{y}, 11, v{x}
    v_add_u32 v{A_SMW}, {L_SM}, v{x}
    v_mov_b32 v{HZ}, 0x3f803f80
    v_mov_b32 v{HZ+1}, 0
    v_mov_b32 v{NEG1}, -1
    v_and_b32 v{A_O}, 0x37f, v{L16}
    v_lshlrev_b32 v{y}, 7, v{g0}
    v_or_b32 v{A_O}, v{A_O}, v{y}
    v_xor_b32 v{A_OW}, v{L16}, v{y}
    v_mov_b32 v{FLV}, 0
    v_cmp_lt_u32 vcc, 7, v{i}
    v_mov_b32 v{y}, 0x4444
    v_mov_b32 v{z}, 0xeeee
    v_cndmask_b32 v{t+11}, v{y}, v{z}, vcc
    """)
    a(f"""
    v_lshlrev_b32 v{x}, 2, v{g1}
    v_lshl_add_u32 v{x}, v{hi}, 1, v{x}
    v_add_u32 v{x}, v{x}, v{g0}
    v_lshlrev_b32 v{x}, 11, v{x}
    v_and_b32 v{y}, 7, v{i}
    v_lshl_add_u32 v{x}, v{y}, 3, v{x}
    s_lshl_b32 s{sT+2}, s{sW}, 14
    s_lshl_b32 s{sT+3}, s{sH}, 6
    s_add_u32 s{sT+2}, s{sT+2}, s{sT+3}
    v_add_u32 v{A_H1S}, s{sT+2}, v{x}
    """)
    a(f"""
    s_lshl_b32 s{sT+2}, s{sW}, 5
    s_add_u32 s{sT+2}, s{sT+2}, s{sH}
    s_lshl_b32 s{sT+2}, s{sT+2}, 6
    v_lshlrev_b32 v{x}, 4, v{g}
    v_lshl_add_u32 v{x}, v{i}, 2, v{x}
    v_add_u32 v{x}, s{sT+2}, v{x}
    v_cmp_gt_u32 vcc, 4, v{i}
    v_bfrev_b32 v{z}, 1
    s_nop 0
    v_cndmask_b32 v{A_IMS}, v{z}, v{x}, vcc
    """)
    a(f"""
    v_lshl_add_u32 v{x}, v{hi}, 2, v{i3}
    v_and_b32 v{y}, 1, v{i2}
    v_cmp_eq_u32 vcc, v{y}, v{g0}
    v_mov_b32 v{z}, 64
    s_nop 0
    v_cndmask_b32 v{x}, v{z}, v{x}, vcc
    v_and_b32 v{y}, 1, v{i}
    v_lshl_add_u32 v{t+14}, v{y}, 2, v{i2}
    v_cmp_gt_u32 vcc, 2, v{i3}
    s_mov_b32 s{sT+3}, 0x3f80
    s_nop 0
    v_cndmask_b32 v{t+14}, v{z}, v{t+14}, vcc
    """)
    for base, pos in ((F, x), (SEL, t + 14)):
        a(f"""
        v_and_b32 v{t+15}, 1, v{pos}
        v_lshlrev_b32 v{t+15}, 4, v{t+15}
        v_lshlrev_b32 v{t+15}, v{t+15}, s{sT+3}
        v_lshrrev_b32 v{t+16}, 1, v{pos}
        """)
        for d in range(4):
            a(f"""
            v_cmp_eq_u32 vcc, {d}, v{t+16}
            s_nop 1
            v_cndmask_b32 v{base+d}, 0, v{t+15}, vcc
            """)
    a(f"""
    v_and_b32 v{t+16}, 1, v{i2}
    v_lshl_add_u32 v{t+14}, v{g0}, 2, v{t+16}
    v_xor_b32 v{t+16}, s{sW}, v{t+16}
    v_lshlrev_b32 v{t+16}, 6, v{t+16}
    v_add_u32 v{t+16}, {L_W}, v{t+16}
    v_lshl_add_u32 v{t+15}, v{hi}, 3, v{t+14}
    v_lshl_add_u32 v{t+15}, v{t+15}, 8, v{t+16}
    v_lshl_add_u32 v{t+15}, v{g1}, 15, v{t+15}
    v_lshl_add_u32 v58, v{i3}, 4, v{t+15}
    v_add_u32 v61, 0x10000, v58
    v_lshl_add_u32 v{t+15}, v{g1}, 3, v{t+14}
    v_lshl_add_u32 v{t+15}, v{t+15}, 8, v{t+16}
    v_lshl_add_u32 v{t+15}, v{hi}, 5, v{t+15}
    v_lshl_add_u32 v59, v{i3}, 3, v{t+15}
    v_add_u32 v62, 0x10000, v59
    v_and_b32 v{x}, 7, v{i}
    v_lshlrev_b32 v{x}, 10, v{x}
    v_lshl_add_u32 v{x}, v{g}, 5, v{x}
    v_lshl_add_u32 v{x}, v{hi}, 4, v{x}
    s_lshl_b32 s{sT+2}, s{sW}, 7
    v_add_u32 v60, s{sT+2}, v{x}
    v_mov_b32 v{IDX}, v{t+11}
    """)
    for k in range(4): a(f"v_mov_b32 v{64+k}, -1")

def chain_prologue(a, P):
    WS = sr(S_WS, 4)
    a(f"""
    s_mov_b32 s{sS}, 0
    s_lshl_b32 s{sT}, s{sH}, 2
    s_add_u32 s{sT}, s{sT}, s{sW}
    s_lshl_b32 s{sKV}, s{sT}, 12
    s_add_u32 s{sKV}, s{sKV}, {WS_KV}
    s_lshl_b32 s{sKM}, s{sT}, 10
    s_mov_b32 s{sFLn}, {DBG_DN + DBG_KV0}
    s_add_u32 s{sKM}, s{sKM}, {WS_KM}
    s_mov_b32 s{sH1}, {WS_H1}
    s_mov_b32 s{sH1+1}, {WS_H1 + 65536}
    s_mov_b32 s{sH1+2}, {WS_H1 + 2*65536}
    s_mov_b32 s{sH1+3}, {WS_H1 + 3*65536}
    s_lshl_b32 s{sT}, s{sW}, 5
    s_add_u32 s{sT}, s{sT}, s{sH}
    s_lshl_b32 s{sT}, s{sT}, 11
    s_add_u32 s{sH1l}, s{sT}, {WS_H1}
    s_mov_b32 s{sTAG}, 0
    s_mov_b32 s{sIMw}, {WS_IMG + 8192}
    s_mov_b32 s{sIMr}, {WS_IMG + 16384}
    s_mov_b32 s{sIMl}, {WS_IMG}
    s_mov_b32 s{sIML}, {WS_IMG}
    s_mov_b32 s{sKMv}, 0x70000000
    s_and_b32 s{sT}, s{sW}, 1
    s_lshl_b32 s{sT}, s{sT}, 7
    s_lshl2_add_u32 s{sT+1}, s{sH}, s{sT}
    s_add_u32 s{sT+1}, s{sT+1}, {WS_FL}
    s_and_b32 s{sT}, s{sH}, 1
    s_lshl_b32 s{sT}, s{sT}, 7
    s_add_u32 s{sT}, s{sT}, {WS_FL}
    s_cmp_eq_u32 s{sW}, 3
    s_cselect_b32 s{sFG}, s{sT}, s{sT+1}
    s_mov_b32 s{sONE}, 0x3f803f80
    s_mov_b32 s{sONE+1}, 0x3f803f80
    s_mov_b32 s{sMLO}, 0x00ff00ff
    s_mov_b32 s{sMLO+1}, 0x00ff00ff
    s_mov_b32 s{sC}, 0x3e0293ee
    s_mov_b32 s{sC+1}, 0x3e0293ee
    """)
    a(f"""
    buffer_store_dwordx4 v[64:67], v{L16}, {WS}, s{sH1l} offen
    buffer_store_dwordx4 v[64:67], v{L16}, {WS}, s{sH1l} offen offset:1024
    buffer_store_dword v64, v{A_IMS}, {WS}, s{sIMw} offen
    buffer_store_dword v64, off, {WS}, s{sT+1}
    buffer_load_dwordx4 {vr(MA,4)}, v60, {sr(S_M0,4)}, 0 offen
    buffer_load_dwordx4 {vr(MA+16,4)}, v60, {sr(S_M0,4)}, 0 offen offset:512
    """, vm='init')
    a(f"""
    s_barrier
    """) if False else None
    for w in range(3): a(f"s_cmp_eq_u32 s{sW}, {w}\ns_cbranch_scc1 L_cp_{w}")
    a("s_branch L_cp_3")

UNITS = []; SLOT = {}; ISSUE = {}
def plan_units(P):
    L = [(m, k) for m in P.get('mord', 'vkq') for k in range(8)]
    if P.get('ilv', 0):
        U = []
        for i in range(8): U += L[3 * i:3 * i + 3] + [('o', i)]
    else: U = L + [('o', u) for u in range(8)]
    UNITS[:] = U; SLOT.clear(); ISSUE.clear()
    fin = lambda u: U[u][0] == 'o' and U[u][1] >= 4
    free = list(range(8)); nxt = 0
    for it in range(-1, 32):
        if it >= 1 and not fin(it - 1): free.append(SLOT[it - 1])
        ISSUE[it] = []
        if it == 0: continue
        while nxt < 32:
            if fin(nxt):
                if U[nxt][1] not in free: break
                s = U[nxt][1]
            else:
                soon = [U[v][1] for v in range(nxt + 1, min(nxt + 8, 32)) if fin(v)]
                c = [x for x in free if x not in soon]
                if not c: break
                s = c[0]
            free.remove(s); SLOT[nxt] = s; ISSUE[it].append(nxt); nxt += 1
    assert nxt == 32
sLB, sO1, sHB, sHO = sT + 4, sT + 5, sT + 6, sT + 7
PF = ['']
def issue_unit(a, u):
    kind, x = UNITS[u]
    if kind == 'o': base, off, step, voff, S = sHO, 64 * (x & 1) * 1024 + 256 * (x >> 1), 4 * 1024, 57, S_WO
    else: base, off, step, voff, S = sHB, x << 19, 4 * 8192, 56, {'q': S_WQ, 'k': S_WK, 'v': S_WV}[kind]
    for i in range(4):
        a(f"s_add_u32 m0, s{sLB}, {SLOT[u] * 4096 + i * 1024}")
        a(f"s_add_u32 s{sO1}, s{base}, {off + i * step}")
        a(f"buffer_load_dwordx4 v{voff}, {sr(S,4)}, s{sO1} offen {PF[0]} lds", vm=('u', u))

def chain_first_dma(a):
    a(f"""
    v_bfe_u32 v96, v0, 4, 2
    v_and_b32 v97, 15, v0
    v_bfe_u32 v98, v0, 4, 1
    v_lshlrev_b32 v98, 2, v98
    v_xor_b32 v97, v97, v98
    v_lshlrev_b32 v97, 4, v97
    v_lshl_add_u32 v56, v96, 13, v97
    v_lshl_add_u32 v57, v96, 10, v97
    s_lshl_b32 s{sLB}, s{sW}, 15
    s_add_u32 s{sLB}, s{sLB}, {L_W}
    s_lshl_b32 s{sHB}, s{sH}, 8
    s_lshl_b32 s{sT+2}, s{sW}, 17
    s_add_u32 s{sHB}, s{sHB}, s{sT+2}
    s_lshl_b32 s{sHO}, s{sH}, 17
    s_lshl_b32 s{sT+2}, s{sW}, 14
    s_add_u32 s{sHO}, s{sHO}, s{sT+2}
    """)
    for u in ISSUE[-1]: issue_unit(a, u)

def chain_prologue_w(a, P, w, vm0):
    WS = sr(S_WS, 4)
    a.label(f'L_cp_{w}')
    a.vm = list(vm0); a.lg = []
    if not P.get('sync'): a(f"s_and_b32 s{sFG}, s{sH}, 3\ns_cmp_eq_u32 s{sH}, 31\ns_cselect_b32 s{sFG}, 1, s{sFG}")
    a(f"s_getpc_b64 s[82:83]")
    a.label(f'L_cp0_{w}')
    a(f"v_lshlrev_b32 v39, 3, v{L16}\nv_min_u32 v39, L_cpe_{w}-L_cp0_{w}, v39")
    PK4 = 64
    def wb(u):
        for i in range(4): a(f"ds_write_b128 v{A_W}, {vr(28 + 16*(i>>1) + 4*(i&1),4)} offset:{SLOT[u] * 4096 + 1024*i}")
    for u in range(32):
        kind, x = UNITS[u]
        a.wait(vm=('u', u))
        fw = P.get('fw', 0)
        if fw and ISSUE[u] and u <= P.get('fwe', 20):
            a(f"s_cmp_eq_u32 s{sFG}, 1\ns_cbranch_scc1 L_fw_{w}_{u}\ns_waitcnt vmcnt({max(len(a.vm) - fw, 0)})")
            a.label(f'L_fw_{w}_{u}')
        a("s_barrier")
        for v in ISSUE[u]: issue_unit(a, v)
        if P.get('ct', 0) and u % P.get('ct', 0) == 0 and u < 28: a("global_load_dword v36, v39, s[82:83] sc1", vm='c')
        if u == 9:
            for r in list(range(MA, MA + 4)) + list(range(MA + 16, MA + 20)): a(f"v_min_u32 v{r}, -2, v{r}")
            if w == 0:
                a(f"s_mov_b64 exec, 1\nv_mov_b32 v38, 1")
                a(f"buffer_atomic_add v38, off, {sr(S_DBG,4)}, 0 offset:{DBG_CBAR + (DBG_DN if P.get('dn0', 0) else 0)}", vm='at')
                a("s_mov_b64 exec, -1")
        if P.get('nb') and u == P['nb']:
            a(f"s_add_u32 s{sT+2}, s{sH}, 1\ns_and_b32 s{sT+2}, s{sT+2}, 31\ns_lshl_b32 s{sT+2}, s{sT+2}, 17\ns_add_u32 s{sT+2}, s{sT+2}, {32768*w + (0 if P.get('nba') else 512)}")
            if P.get('nba'):
                a(f"v_lshlrev_b32 v63, 3, v{L16}")
                for k in range(4): a(f"buffer_load_dword v36, v63, {sr(S_WO,4)}, s{sT+2} offen sc1\ns_add_u32 s{sT+2}, s{sT+2}, 8192", vm='w')
            else:
                a(f"v_lshlrev_b32 v63, 3, v{L16}\nv_and_b32 v37, 0x180, v63\nv_and_b32 v63, 0x1e00, v63\nv_lshl_add_u32 v63, v63, 1, v37")
                for k in range(2): a(f"buffer_load_dword v36, v63, {sr(S_WO,4)}, s{sT+2} offen sc1\ns_add_u32 s{sT+2}, s{sT+2}, 16384", vm='w')
        if u == P.get('uw', 25):
            a(f"s_getpc_b64 {sr(sT,2)}")
            a.label(f'L_cpc_{w}')
            a(f"v_lshlrev_b32 v63, 3, v{L16}\ns_mov_b32 s{sT+2}, {WS_IMG + 8192*w}")
            a(f"buffer_load_dword v36, v63, {WS}, s{sT+2} offen sc1", vm='w')
            a(f"v_and_b32 v37, 0x780, v63\nv_min_u32 v63, L_step_{w}-L_top_{w}, v63\nv_add_u32 v63, L_top_{w}-L_cpc_{w}, v63")
            a(f"buffer_load_dword v36, v37, {WS}, s{sH1l} offen sc1", vm='w')
            a(f"global_load_dword v36, v63, {sr(sT,2)}", vm='w')
            if P.get('tlb', 1) and w < 2:
                a(f"s_mov_b32 s{sT+2}, {(WS_KV if w == 0 else WS_KM) - 4096}")
                a(f"buffer_load_dword v36, off, {WS}, s{sT+2} sc1", vm='w')
        fin = lambda v: UNITS[v][0] == 'o' and UNITS[v][1] >= 4
        if u == 1 + max(v for v in range(32) if not fin(v)):
            for sg, src in ((0, ST), (4, PK4)):
                for uu in range(4):
                    for hf in range(2): a(f"ds_write_b128 v{A_W}, {vr(src + 8*uu + 4*hf,4)} offset:{lw_qk(sg, uu) + 1024*hf}")
                a.wait(lg='all')
        fl0 = f"buffer_load_dword v36, off, {sr(S_DBG,4)}, 0 offset:{DBG_CBAR + 64} sc1\nbuffer_load_dword v37, off, {sr(S_DBG,4)}, 0 offset:{DBG_KV0 + (DBG_DN if P.get('dn0', 0) else 0)} sc1"
        if P.get('dn0', 0): fl0 = fl0.replace(f"offset:{DBG_CBAR + 64} ", f"offset:{DBG_CBAR + DBG_DN} ")
        else: fl0 = fl0.replace(f"offset:{DBG_CBAR + 64} ", f"offset:{DBG_CBAR} ")
        if u == 30 and P.get('dlyc'): a(f"s_sleep {P['dlyc']}")
        if u == 30 and w == 0: a(fl0, vm='f0')
        if u and fin(u - 1): wb(u - 1)
        base = SLOT[u] * 4096
        sig = ((x - w) & 3) | (x & 4)
        for half in range(2):
            if fin(u): k, dst = 'v', 28 + 16 * half
            elif kind in 'qk':
                uu = 2 * half + (kind == 'k')
                k, dst = ('v', PK4 + 8 * uu) if sig == 4 else wqk_reg(sig, uu)
            elif kind == 'v': k, dst = wv_reg(sig, half)
            else: k, dst = wo_reg(x >> 1, 2 * (x & 1) + half)
            for p in range(4):
                if kind == 'o': off, ad = base + 32768 * (p >> 1) + 512 * (p & 1), (59, 62)[half]
                else: off, ad = base + 512 * (p & 1) + 8 * half, (58, 61)[p >> 1]
                a(f"ds_read_b64_tr_b16 {vr(dst + 2*p, 2, k)}, v{ad} offset:{off}")
        a.wait(lg='all')
    a("s_barrier")
    wb(31)
    a.wait(lg='all')
    if P.get('stat') or P.get('dbgt'): a("s_memrealtime s[100:101]")
    a(f"s_mov_b32 s{sSPIN}, 0\ns_mov_b32 m0, {L_KV + 4096*w}")
    if w == 0:
        a("s_branch L_c_w1")
        a.label(f'L_c_w0')
        a(f"""
        s_add_u32 s{sSPIN}, s{sSPIN}, 1
        s_cmp_gt_u32 s{sSPIN}, {SPIN_MAX}
        s_cbranch_scc1 L_exit
        s_sleep {P.get('slp0', 4)}
        """)
        a(fl0)
        a.label('L_c_w1')
        a.wait(vm='all')
        a(f"""
        v_lshrrev_b32 v37, {0 if P.get('dn0', 0) else 1}, v37
        v_min_u32 v36, v36, v37
        v_cmp_gt_u32 vcc, 32, v36
        s_cbranch_vccnz L_c_w0
        """)
    a("s_barrier")
    for k in range(4): a(f"buffer_load_dwordx4 {vr(KX+4*k,4)}, v{L16}, {WS}, s{sKV} offen offset:{1024*k} sc1")
    a(f"s_add_u32 s{sKV}, s{sKV}, 0x80000\ns_mov_b32 s{sFL}, {DBG_DN + DBG_KV0}\ns_mov_b64 {sr(sFM,2)}, 0\nv_mov_b32 v{FLV}, 32\ns_mov_b32 s{sSPIN}, 0")
    for l in idle_work():
        if not l.startswith('ds_'): a(l)
    a.wait(lg='all')
    if P.get('stat'): a("s_memrealtime s[64:65]\ns_waitcnt lgkmcnt(0)")
    a.label(f'L_cpe_{w}')
    a(f"s_branch L_step_{w}")

def idle_work():
    L = [f"ds_read_b128 {vr(ST + 8*u + 4*hf, 4)}, v{A_W} offset:{lw_qk(0, u) + 1024*hf}" for u in range(4) for hf in range(2)]
    L += [f"v_mov_b64 {vr(Q0+i,2)}, 0" for i in range(0, 24, 2)]
    return L

DEF = dict(b1=3, nL=10, nB2=5, nv1=3, nv2=0, nvA=5, sv=9, so=1, nr4=3, earlyL=0, dH1=[38, 50, 76, 90], dE=[24, 16, 0, 0], dwf=0, cs=0, g2v=0, dup=0, c1=0, lb1=0, svp=[-1, 0, 2, 4], dp=None, sync=0, fpos=-2, pp=[-1, 1, 3, 5, 7, 11], pE=20, inGap=[0, 0, 0, 1], nPre=[0, 0, 0, 0],
           dS=[-1, -1], kw=0, vmPos=None, mx=1, g2w=1, nd=0, ad=1, nrc=4, dma0=14, nE=3, dT=0, stg=1)
def pack_km():
    X = Q0
    L = [f"v_mov_b32_dpp v{X+2}, v{X} row_ror:8 row_mask:0xf bank_mask:0x3", f"v_mov_b32_dpp v{X+3}, v{X+1} row_ror:8 row_mask:0xf bank_mask:0x3",
         f"v_min_u32 v{ONE}, -2, v{X+2}", f"v_min_u32 v{ONE+1}, -2, v{X+3}"]
    for t in range(2):
        p = V0 + 2 * t
        L += [f"v_lshlrev_b32 v{X}, 16, v{p}", f"v_lshlrev_b32 v{X+1}, 16, v{p+1}", f"v_and_b32 v{p}, 0xffff0000, v{p}", f"v_and_b32 v{p+1}, 0xffff0000, v{p+1}",
              f"v_add_f32 v{X}, v{X}, v{X+1}", f"v_add_f32 v{X+1}, v{p}, v{p+1}", f"v_cvt_pk_bf16_f32 v{X}, v{X}, v{X+1}", f"v_min_u32 v{ONE+2+t}, -2, v{X}"]
    return L
def sync_tmp(P, w):
    if not P['sync']: return []
    if w == 3: return [f"v_bfe_u32 v{MA+24}, v{L16}, 2, 7"]
    if w < 2: return [f"v_mov_b32 v{MA+24}, s{sS}"]
    return []
LASTV = []
def chain_last(a):
    for q in LASTV: smf(a, *q)
    a("s_nop 7")
    for d, s0 in ((V0, V0), (V0 + 1, V0 + 2), (V0 + 2, V1), (V0 + 3, V1 + 2)): a(f"v_cvt_pk_bf16_f32 v{d}, v{s0}, v{s0+1}")
    L = pack_km()
    for l in L[:2]: a(l)
    a(f"v_permlane32_swap_b32 v{V0}, v{V0+1}\nv_permlane32_swap_b32 v{V0+2}, v{V0+3}")
    for l in L[2:]: a(l)
    a(f"buffer_store_dwordx4 {vr(ONE,4)}, v{L16}, {sr(S_WS,4)}, s{sKM} offen sc1")
LISTING = {}
def chain_step(a, P0, w):
    P = dict(DEF); P.update(P0)
    allow = P.get('stamps', [])
    used = []
    def stamp(k):
        if k in allow:
            a(f"s_memtime s[{72+2*len(used)}:{73+2*len(used)}]"); used.append(k)
    WS = sr(S_WS, 4)
    acc = [Q0, K0, Q1, K1]
    lb = lambda s: f"L_{s}_{w}"
    own = 2048 * w
    oth = lambda q: 2048 * ((w + q) & 3)
    T0 = MA + 28
    ldE = f"buffer_load_dwordx4 {vr(MA,4)}, v{L16}, {WS}, s{sIMl} offen sc1"
    ldL = f"buffer_load_dwordx4 {vr(MA+16,4)}, v{L16}, {WS}, s{sIML} offen sc1"
    chkE = f"v_max3_u32 v{T0}, v{MA}, v{MA+1}, v{MA+2}\nv_max_u32 v{T0}, v{T0}, v{MA+3}\nv_cmp_eq_u32 vcc, -1, v{T0}"
    chkL = [f"v_max3_u32 v{T0}, v{MA+16}, v{MA+17}, v{MA+18}", f"v_max_u32 v{T0}, v{T0}, v{MA+19}", f"v_cmp_eq_u32 vcc, -1, v{T0}"]
    if P['c1']:
        chkE = f"v_cmp_eq_u32 vcc, -1, v{MA+3}"
        chkL = ["s_nop 0", "s_nop 0", f"v_cmp_eq_u32 vcc, -1, v{MA+19}"]
    ldF = f"buffer_load_dword v{FLV}, off, {sr(S_DBG,4)}, s{sFL} sc1"
    cvF = [f"v_subrev_u32 v{FLV}, 32, v{FLV}", f"v_ashrrev_i32 v{FLV}, 31, v{FLV}"]
    dwE = f"ds_write_b128 v{L16}, {vr(MA,4)} offset:{L_MEM + own}"
    dwL = f"ds_write_b128 v{L16}, {vr(MA+16,4)} offset:{L_MEM + own + 1024}"
    cv = lambda d, s0: f"v_cvt_pk_bf16_f32 v{d}, v{s0}, v{s0+1}"
    z2 = lambda r: f"v_mov_b64 {vr(r,2)}, 0"
    ror8 = lambda d, s0, bm: f"v_mov_b32_dpp v{d}, v{s0} row_ror:8 row_mask:0xf bank_mask:{bm}"
    mf32 = lambda D, A, B, C: a(f"v_mfma_f32_16x16x32_bf16 {vr(D,4)}, {vr(A,4)}, {vr(B,4)}, {vr(C,4) if C is not None else 0}")
    mf16 = lambda D, A, B, C: a(f"v_mfma_f32_16x16x16_bf16 {vr(D,4)}, {vr(A,2)}, {vr(B,2)}, {vr(C,4) if C is not None else 0}")
    def wdelay(n):
        while P['kw'] and n >= 8:
            mf32(MA + 24, F, F, None); a("s_nop 2"); mf32(MA + 4, F, F, None); a("s_nop 2"); n -= 8
        nops(a, n)
    a.label(lb('top'))
    a("s_waitcnt vmcnt(0)")
    a.vm = []; a.lg = []
    stamp(0)
    EB = MA + 20 if P['dwf'] else MA
    ldB = ldE.replace(vr(MA, 4), vr(EB, 4))
    if P['dwf']:
        a(dwE, lg='we'); a(chkE); a(ldL, vm='L2')
        a(f"s_cbranch_vccnz {lb('f1')}")
    else:
        if P['earlyL']: a(ldL, vm='L2')
        a(chkE)
        a(dwE, lg='we')
        a(f"s_cbranch_vccnz {lb('f1')}")
        if not P['earlyL']: a(ldL, vm='L2')
    a.label(lb('go'))
    igo = len(a.lines)
    stamp(14)
    KVF = P.get('kvf', 'sc1')
    dma = [f"buffer_load_dwordx4 v{L16}, {WS}, s{sKV} offen offset:{1024*k} {KVF} lds" for k in range(4)]
    mrd = lambda s: f"ds_read_b128 {vr(MA+4*s,4)}, v{L16} offset:{L_MEM + oth(s & 3) + 1024*(s>>2)}"
    r2 = [f"ds_read_b128 {vr(ST + 8*u + 4*hf, 4)}, v{A_W} offset:{lw_qk(4, u) + 1024*hf}" for u in range(4) for hf in range(2)]
    r3 = [f"ds_read_b128 {vr(ST + 8*k + 4*hf, 4)}, v{A_W} offset:{lw_wo(2,k) + 1024*hf}" for k in range(4) for hf in range(2)]
    vq = [(V0 + 4 * tau, MA + 4 * s, wv_reg(s, tau)) for s in range(8) for tau in range(2)]
    qk = lambda s: [(acc[u], MA + 4 * s, wqk_reg(s, u)) for u in range(4)]
    sA = qk(0) + [vq.pop(0), vq.pop(0)]
    stV = f"buffer_store_dwordx4 {vr(ONE,4)}, v{L16}, {WS}, s{sKMv} offen sc1"
    for k in range(P['b1']):
        smf(a, *sA.pop(0))
        if k == P['sv']: a(stV, vm='km')
    a.wait(lg='all')
    a("s_barrier")
    stamp(1)
    a(mrd(1), lg=('ma', 1)); a(mrd(2), lg=('ma', 2))
    smf(a, *sA.pop(0))
    a(mrd(3), lg=('ma', 3))
    sync = P['sync']; TS = MA + 24
    prober = sync and w == 3; poster = sync and w < 2
    probe = f"buffer_load_dword v{FLV}, v{TS}, {WS}, s{sFG} offen sc1"
    post = f"s_mov_b64 exec, 1\nbuffer_store_dword v{TS}, off, {WS}, s{sFG}\ns_mov_b64 exec, -1"
    pp = list(P['pp']); npr = len(pp)
    def syncops(n):
        c = 0
        if poster and n == P['fpos']: a(post, vm='fg'); c = 2
        if prober and n in pp: a(probe, vm=('P', pp.index(n))); c = 1
        return c
    svp = P['svp'][w]
    if P['sv'] == 9 and svp < 0: a(stV, vm='km')
    syncops(-len(sA) - 1)
    while sA:
        smf(a, *sA.pop(0)); syncops(-len(sA) - 1)
    dupA = a.lines[igo:]
    a.label(lb('go2'))
    seq = qk(1) + qk(2) + qk(3) + [vq.pop(0) for _ in range(P['nv1'])]
    i4 = len(seq); seq += qk(4) + [vq.pop(0) for _ in range(P['nv2'])]
    i5 = len(seq); seq += qk(5)
    i6 = len(seq); q6, q7 = qk(6), qk(7)
    seq += [q6[0], q6[1], q7[0], q7[1], q6[2], q6[3], q7[2], q7[3]]
    nL, nB = P['nL'], P['nL'] + P['nB2']
    assert i4 >= nL + 4 and nB <= i5
    KVST = 0 if P.get('kvfix') else 0x80000
    ones = [f"v_mov_b64 {vr(ONE,2)}, {sr(sONE,2)}", f"v_mov_b64 {vr(ONE+2,2)}, {sr(sONE,2)}"]
    lastd = -99
    for n, q in enumerate(seq):
        if n == 0: a.wait(lg=('ma', 1))
        if n == 4: a.wait(lg=('ma', 3))
        if n == nL:
            stamp(2)
            a.wait(vm='L2'); a(dwL, lg='wl')
            if not P['c1']: a(chkL[0])
            if prober: a.wait(vm=('P', 0)); a(f"v_subrev_u32 v{T0+1}, s{sS}, v{FLV}")
        if n == nB:
            a.wait(lg='all' if not r2 else 'wl'); a("s_barrier"); stamp(3); a(mrd(5), lg=('ma', 5))
        if n == i4 and 'r2' in a.lg: a.wait(lg='r2')
        if n == i5: a.wait(lg=('ma', 5))
        if n == i6: a.wait(lg=('ma', 7))
        smf(a, *q)
        cap = 2 - (n + 1 in (4, i5, i6)) - (n >= i6 + 4) - (n in (nL, nL + 1))
        if n == nB: a(mrd(6), lg=('ma', 6)); a(mrd(7), lg=('ma', 7)); cap = 0
        if P['sv'] == 9 and n == svp: a(stV, vm='km')
        cap = max(cap - syncops(n), 1 if r2 else 0)
        dp = P['dp']
        if dp:
            if dma and dp[4 - len(dma)] < 100 and n >= dp[4 - len(dma)] + w and n != nB: a(dma.pop(0), vm='dma'); cap = max(cap - 1, 1 if r2 else 0)
        elif dma and cap and n > nB and n >= min(nB + 1 + w * P['stg'] + 4 * (4 - len(dma)), len(seq) - 1):
            a(dma.pop(0), vm='dma'); cap -= 1
        if r2 and cap and n + 1 != nL and not (nL <= n < nB): a(r2.pop(0), lg='r2'); cap -= 1
        elif r3 and cap and n > nB and n >= i4 + (8 - len(r3)) // 2: a(r3.pop(0), lg='r3'); cap -= 1
        if ones and cap and n >= i5 and P['sv'] == 9: a(ones.pop(0))
        if n == nL: a(chkL[1] if not prober else f"v_max3_u32 v{T0+1}, v{T0}, v{MA+19}, v{T0+1}")
        if n == nL + 1: a(chkL[2] if not prober else f"v_cmp_eq_u32 vcc, -1, v{T0+1}")
        if n == nL + 3:
            a(f"s_cbranch_vccnz {lb('p1' if prober else 'rL')}"); a.label(lb('bL'))
            if prober: assert len(a.vm) == npr - 1
        if n == i6 + 4: a(cv(Q0, Q0))
        if n == i6 + 5: a(cv(Q0 + 1, Q0 + 2))
        if n == i6 + 6: a(cv(Q0 + 2, K0))
    assert not r3 and not r2, (len(r2), len(r3), len(dma))
    stamp(4)
    a(cv(Q0 + 3, K0 + 2))
    a("s_nop 0")
    a(cv(Q1, Q1))
    mf32(K0, Q0, F, None)
    a(cv(Q1 + 1, Q1 + 2)); a(cv(Q1 + 2, K1)); a(cv(Q1 + 3, K1 + 2))
    a("s_nop 1")
    mf32(K1, Q1, F, None)
    X = Q0
    a(cv(X, K0)); a(cv(X + 1, K0 + 2))
    rsI = f"buffer_store_dword v{NEG1}, v{A_IMS}, {WS}, s{sIMr} offen"
    S1, S2, SM = Q1, K0, K1
    if not P['mx']:
        smf(a, *vq.pop(0))
        a("s_nop 0"); a(f"buffer_store_dword v{NEG1}, v{A_IMS}, {WS}, s{sIMr} offen", vm='rs'); a("s_nop 1")
        a(cv(X + 2, K1)); a(cv(X + 3, K1 + 2))
        a("s_nop 1")
        S1, S2, SM = Q1, K0, K1
        mf32(SM, X, X, None); mf32(S2, KX + 4, X, None); mf32(S1, KX, X, None)
        for r in range(2): a(ror8(SM + r, SM + 2 + r, '0xc'))
        smf(a, *vq.pop(0))
        a("s_nop 0")
        a(f"ds_write2_b32 v{A_SMW}, v{SM}, v{SM+1} offset0:0 offset1:32")
        a("s_nop 1")
        for r in range(4): a(ror8(S1 + r, S2 + r, '0xc'))
        smf(a, *vq.pop(0))
        a(f"ds_write_b128 v{L16}, {vr(S1,4)} offset:{L_S + own}")
    else:
        assert all(q[1] >= MA + 8 for q in vq)
        XL, XH = MA, MA + 4
        lo = lambda r: a(f"v_cndmask_b32 v{XL+r}, 0, v{X+r}, {sr(sMLO,2)}")
        hi = lambda r: a(f"v_mov_b32_dpp v{XH+r}, v{X+r} row_shr:8 row_mask:0xf bank_mask:0xf bound_ctrl:1")
        lo(0); lo(1); hi(0); hi(1); a("s_nop 0")
        a(cv(X + 2, K1)); a(cv(X + 3, K1 + 2))
        lo(2); lo(3)
        mf32(SM, X, X, None)
        hi(2); hi(3)
        mf32(S1, KX, XL, None)
        a("s_nop 0")
        mf32(S1, KX + 4, XH, S1)
        for r in range(2): a(ror8(SM + r, SM + 2 + r, '0xc'))
        dw2 = f"ds_write2_b32 v{A_SMW}, v{SM}, v{SM+1} offset0:0 offset1:32"
        dw4 = f"ds_write_b128 v{L16}, {vr(S1,4)} offset:{L_S + own}"
        smf(a, *vq.pop(0))
        if P['so'] == 0: a("s_nop 0"); a(dw2); a("s_nop 1"); a(dw4)
        elif P['so'] == 1: a("s_nop 0"); a(dw2); smf(a, *vq.pop(0)); a(dw4)
        else: smf(a, *vq.pop(0)); a(dw4); a(dw2)
    stamp(5)
    for k in range(P['nvA']):
        smf(a, *vq.pop(0))
        if k == P['nvA'] - 3: a(f"s_cmp_eq_u32 s{sS}, 63")
        if k == P['nvA'] - 2:
            a("s_cbranch_scc1 L_last"); LASTV[:] = list(vq)
        if k == 1 and w == 0:
            if P.get('fsk', 1):
                a(f"s_mov_b64 exec, {sr(sFM,2)}"); a(ldF, vm='fl'); a("s_mov_b64 exec, -1")
            else: a(ldF, vm='fl')
        if dma and dp[4 - len(dma)] == 100 and k == w + 1: a(dma.pop(0), vm='dma')
        if P['sv'] == 20 and k == min(3 - w, P['nvA'] - 1): a(stV, vm='km')
        if k == (w & 1) + (2 if w >= 2 and P['sv'] == 20 else 0) and P['mx']: a(rsI, vm='rs')
    a.wait(lg='all')
    a("s_barrier")
    stamp(6)
    R1, R2, R3, RM = K0, KX, KX + 4, K1
    a(f"ds_read_b128 {vr(RM,4)}, v{L16} offset:{L_SM}", lg='rm')
    a(f"ds_read_b128 {vr(R1,4)}, v{L16} offset:{L_S + oth(1)}", lg='r1')
    smf(a, *vq.pop(0))
    a(f"ds_read_b128 {vr(R2,4)}, v{L16} offset:{L_S + oth(2)}", lg='r2')
    a(f"ds_read_b128 {vr(R3,4)}, v{L16} offset:{L_S + oth(3)}", lg='r3')
    while vq:
        smf(a, *vq.pop(0))
        if dma and len(vq) <= max(2 - w, 0): a(dma.pop(0), vm='dma')
        if ones: a(ones.pop(0))
    assert not ones and not dma
    pka = lambda d, s0: f"v_pk_add_f32 {vr(d,2)}, {vr(d,2)}, {vr(s0,2)}"
    a.wait(lg='r1')
    a(f"v_add_f32 v{RM}, v{RM}, v{RM+1}\nv_add_f32 v{RM+2}, v{RM+2}, v{RM+3}")
    a(f"v_add_f32 v{S1}, v{S1}, v{R1}\nv_add_f32 v{S1+1}, v{S1+1}, v{R1+1}")
    a(pka(S1 + 2, R1 + 2))
    a(f"v_add_f32 v{RM}, v{RM}, v{RM+2}")
    if P['ad']:
        a.wait(lg='all')
        stamp(7)
        a(pka(R2, R3)); a(pka(R2 + 2, R3 + 2)); a(pka(S1, R2)); a(pka(S1 + 2, R2 + 2))
    else:
        a.wait(lg='r2')
        a(pka(S1, R2)); a(pka(S1 + 2, R2 + 2))
        a.wait(lg='all')
        stamp(7)
        a(pka(S1, R3)); a(pka(S1 + 2, R3 + 2))
    m0, m1 = K0, K0 + 1
    a(f"v_max3_f32 v{m0}, v{RM}, v{S1}, v{S1+1}")
    a(f"v_max3_f32 v{m0}, v{m0}, v{S1+2}, v{S1+3}")
    a(cv(V0, V0)); a(cv(V0 + 1, V0 + 2))
    a(f"v_max_f32_dpp v{m1}, v{m0}, v{m0} row_ror:8 row_mask:0xf bank_mask:0xf")
    a(f"v_max_f32_dpp v{m0}, v{m0}, v{m0} row_ror:8 row_mask:0xf bank_mask:0xf")
    a(cv(V0 + 2, V1)); a(cv(V0 + 3, V1 + 2))
    a(f"v_permlane32_swap_b32 v{m0}, v{m1}")
    a(f"v_max_f32 v{m0+2}, v{m0}, v{m1}")
    a(f"v_max_f32 v{m0+3}, v{m0}, v{m1}")
    a(f"v_permlane32_swap_b32 v{V0}, v{V0+1}")
    a(f"v_permlane32_swap_b32 v{V0+2}, v{V0+3}")
    a(f"v_permlane16_swap_b32 v{m0+2}, v{m0+3}")
    a(f"v_max_f32 v{m0}, v{m0+2}, v{m0+3}")
    a(f"v_mul_f32 v{m0}, s{sC}, v{m0}")
    a(f"v_fma_f32 v{RM}, v{RM}, s{sC}, -v{m0}")
    pkf = lambda r: f"v_pk_fma_f32 {vr(r,2)}, {vr(r,2)}, {sr(sC,2)}, {vr(m0,2)} op_sel_hi:[1,1,0] neg_lo:[0,0,1] neg_hi:[0,0,1]"
    ks = [(w + q) & 3 for q in range(1, 4)]
    r4 = [f"ds_read_b128 {vr(MA + 8*k + 4*hf, 4)}, v{A_W} offset:{lw_wo(3,k) + 1024*hf}" for k in [w] + ks for hf in range(2)]
    rd4 = lambda: a(r4.pop(0), lg='r4') if r4 else None
    BX, BM = K0, MA + 8 * ks[2] + 4
    O0, O1, L = KX, V1, K1
    a(f"v_exp_f32 v{RM}, v{RM}")
    a(pkf(S1)); a(pkf(S1 + 2))
    a(ror8(RM + 1, RM, '0xf'))
    a(cv(BM, RM)); a(cv(BM + 1, RM))
    a(f"v_exp_f32 v{S1}, v{S1}\nv_exp_f32 v{S1+1}, v{S1+1}")
    mf16(O0, V0, BM, None)
    a(f"v_exp_f32 v{S1+2}, v{S1+2}\nv_exp_f32 v{S1+3}, v{S1+3}")
    a(cv(BX, S1)); a(cv(BX + 1, S1 + 2))
    mf16(O1, V0 + 2, BM, None)
    a(ror8(BX + 2, BX, '0xf')); a(ror8(BX + 3, BX + 1, '0xf'))
    AC = [Q1, KX, V1, ONE]
    OW = KX + 4
    a(z2(AC[0])); a(z2(AC[0] + 2))
    mf32(O0, VX, BX, O0)
    stamp(8)
    if P['nr4'] >= 1: rd4()
    if P['nr4'] >= 4: rd4()
    mf32(O1, VX + 4, BX, O1)
    if P['nr4'] >= 2: rd4()
    if P['nr4'] >= 3: rd4()
    mf16(L, BM, HZ, None)
    a(cv(OW, O0)); a(cv(OW + 1, O0 + 2))
    a(z2(AC[1])); a(z2(AC[1] + 2))
    a(cv(OW + 2, O1)); a(cv(OW + 3, O1 + 2))
    mf32(L, BX, ONE, L)
    a("s_nop 0")
    a(f"ds_write_b128 v{A_OW}, {vr(OW,4)} offset:{L_O + own}")
    stamp(9)
    for r in range(4): a(ror8(OW + r, OW + r, '0xc'))
    a(z2(AC[2])); a(z2(AC[2] + 2))
    if P.get('z3', 1): a(z2(AC[3]))
    rcp = lambda r: a(f"v_rcp_f32 v{L+r}, v{L+r}")
    for r in range(P['nrc']): rcp(r)
    smf(a, AC[0], OW, wo_reg(0, w))
    a.wait(lg='all')
    a("s_barrier")
    stamp(10)
    OA = {ks[0]: VX, ks[1]: VX + 4, ks[2]: K0, w: OW}
    oard = lambda k: a(f"ds_read_b128 {vr(OA[k],4)}, v{A_O} offset:{L_O + 2048*k}", lg=('oa', k))
    g2 = lambda T, k: smf(a, AC[T], OA[k], wo_reg(T, k))
    mul = lambda T, r: a(f"v_mul_f32 v{AC[T]+r}, v{AC[T]+r}, v{L+r}")
    def cvt(T, r):
        a(cv(AC[T] + r, AC[T] + 2 * r))
        if r == 1: a(f"v_bfi_b32 v{AC[T]}, 1, s{sTAG}, v{AC[T]}")
    sto = lambda T: f"buffer_store_dwordx2 {vr(AC[T],2)}, v{A_H1S}, {WS}, s{sH1+T} offen"
    oard(ks[0]); oard(ks[1])
    g2(1, w); oard(ks[2]); a(z2(AC[3] + (2 if P.get('z3', 1) else 0)))
    g2(2, w)
    if not P.get('z3', 1): a(z2(AC[3] + 2))
    for r in range(P['nrc'], 4): rcp(r)
    own3 = P['nr4'] >= 2 and P.get('own3', 1)
    if own3: a("s_nop 1"); g2(3, w)
    a.wait(lg=('oa', ks[0])); g2(0, ks[0]); stamp(20); rd4()
    a.wait(lg=('oa', ks[1])); g2(0, ks[1]); rd4()
    a.wait(lg=('oa', ks[2])); g2(0, ks[2]); rd4()
    g2(1, ks[0]); rd4()
    g2(1, ks[1]); rd4(); mul(0, 0)
    g2(1, ks[2]); rd4()
    mul(0, 1); mul(0, 2); mul(0, 3); cvt(0, 0); cvt(0, 1)
    assert not r4 or P['g2v'] == 0
    pkm = lambda T: a(f"v_pk_mul_f32 {vr(AC[T],2)}, {vr(AC[T],2)}, {vr(L,2)}\nv_pk_mul_f32 {vr(AC[T]+2,2)}, {vr(AC[T]+2,2)}, {vr(L+2,2)}")
    if P['g2v'] == 0:
        g2(2, ks[0]); a("s_nop 0"); a(sto(0), vm='h1')
        while r4: rd4()
        for r in range(4): mul(1, r)
        cvt(1, 0); cvt(1, 1)
        g2(2, ks[1]); a("s_nop 0"); a(sto(1), vm='h1')
    elif P['g2v'] == 1:
        a("s_nop 1"); a(sto(0), vm='h1')
        pkm(1); cvt(1, 0); cvt(1, 1)
        g2(2, ks[0]); a("s_nop 0"); a(sto(1), vm='h1')
        g2(2, ks[1])
    else:
        pkm(1); cvt(1, 0); cvt(1, 1)
        g2(2, ks[0]); a("s_nop 0"); a(sto(0), vm='h1'); a(sto(1), vm='h1')
        g2(2, ks[1])
    stamp(21)
    g2(2, ks[2])
    a.wait(lg='all')
    if not own3: g2(3, w)
    a(f"s_add_u32 s{sIMl}, s{sIMw}, {1024*w}\ns_add_u32 s{sIML}, s{sIMw}, {4096+1024*w}")
    g2(3, ks[0]); a(f"s_add_u32 s{sS}, s{sS}, 1\ns_mov_b32 s{sKMv}, s{sKM}")
    if not own3: mul(2, 0)
    g2(3, ks[1]); mul(2, 1)
    g2(3, ks[2])
    if own3: mul(2, 0)
    mul(2, 2); mul(2, 3); cvt(2, 0); cvt(2, 1)
    dS = P['dS']
    a("s_nop 1")
    if dS[0] < 0: a(sto(2), vm='h1')
    c = AC[3]
    a(f"v_pk_mul_f32 {vr(c,2)}, {vr(c,2)}, {vr(L,2)}\nv_pk_mul_f32 {vr(c+2,2)}, {vr(c+2,2)}, {vr(L+2,2)}")
    cvt(3, 0); cvt(3, 1)
    a(f"s_add_u32 s{sKM}, s{sKM}, 0x20000\ns_add_u32 s{sKV}, s{sKV}, {KVST}")
    if dS[1] < 0: a(sto(3), vm='h1')
    stamp(11)
    HA = KX
    ld1 = [f"buffer_load_dwordx4 {vr(HA+4*c_,4)}, v{L16}, {WS}, s{sH1l} offen offset:{1024*c_} sc1" for c_ in range(2)]
    HD, T1 = MA + 8, MA + 12
    idle = idle_work()
    late = [l for l in idle if any(l.startswith(f"v_mov_b64 v[{r}:") for r in (Q0, Q0 + 2, V0, V0 + 2, V1, V1 + 2))]
    dsq = [l for l in idle if l.startswith('ds_')]
    idle = [l for l in idle if l not in late and l not in dsq]
    ev = [(max(dS[k], 0), k, [(sto(2 + k) if dS[k] >= 0 else None, 'h1')]) for k in range(2)]
    ev.append((P['dH1'][w], -1 if w < 2 else 2, [(ld1[0], 'H0'), (ld1[1], 'H1')]))
    pos = 0; nst = 0
    for (tpos, _, ops) in sorted(ev):
        while pos < tpos:
            if idle and tpos - pos > 2: a(idle.pop(0)); pos += 1
            elif dsq and nst == 2 and tpos - pos >= 6:
                if P['kw']: mf32(MA + 24 if len(dsq) & 1 else MA + 4, F, F, None); a("s_nop 1")
                else: a("s_nop 2")
                a(dsq.pop(0), lg='pre'); pos += 4
            else: wdelay(tpos - pos); pos = tpos
        for (o, tag) in ops:
            if o: a(o, vm=tag); pos += 1
            if tag == 'h1':
                nst += 1
                if nst == 2: idle += pack_km() + late
    for l in dsq + idle: a(l, lg='pre')
    dE = P['dE'][w]; pE = P['pE']; nPre = P['nPre'][w]; inGap = P['inGap'][w]
    eq = ['E0', 'E1', 'E2', 'E3', 'E4'][:P['nE']]; nE = len(eq)
    for k in range(nPre):
        wdelay(dE if k == 0 else pE); a(ldE if eq[0] == 'E0' else ldB, vm=eq.pop(0))
    nH0 = len(a.vm) - 1 - a.vm.index('H0')
    a(f"s_waitcnt vmcnt({nH0})")
    a.label(lb('a1'))
    stamp(12)
    mf32(HD, SEL, HA, None)
    a(f"v_bitop3_b32 v{T1}, v{HA}, v{HA+2}, s{sTAG} bitop3:0x7e")
    a.wait(vm='H1')
    mf32(HD, SEL, HA + 4, HD)
    a(f"v_bitop3_b32 v{T1+1}, v{HA+4}, v{HA+6}, s{sTAG} bitop3:0x7e\nv_bitop3_b32 v{T1}, v{T1}, v{T1+1}, 1 bitop3:0xa8\nv_cmp_ne_u32 vcc, 0, v{T1}")
    if inGap and eq:
        a("s_nop 1"); a(ldE if eq[0] == 'E0' else ldB, vm=eq.pop(0)); a("s_nop 0")
    else: a("s_nop 3")
    dpa = lambda r, n: f"v_add_f32_dpp v{r}, v{r}, v{r} row_ror:{n} row_mask:0xf bank_mask:0xf"
    a(dpa(HD, 4)); a(dpa(HD + 1, 4)); a("s_nop 0"); a(dpa(HD, 8)); a(dpa(HD + 1, 8))
    a(cv(HD, HD))
    if P['cs']:
        a(f"s_cmp_eq_u64 vcc, 0\ns_cselect_b32 s{sT+2}, s{sIMw}, 0x70000000")
        a(f"buffer_store_dword v{HD}, v{A_IMS}, {WS}, s{sT+2} offen", vm='im')
        if eq and (inGap or (len(eq) == nE and dE == 0)): a(ldE if eq[0] == 'E0' else ldB, vm=eq.pop(0))
        a(f"s_cbranch_vccnz {lb('r1')}")
        dE = max(dE - 4, 0)
    else:
        a(f"s_cbranch_vccnz {lb('r1')}")
        a(f"buffer_store_dword v{HD}, v{A_IMS}, {WS}, s{sIMw} offen", vm='im')
        if inGap and eq: a(ldE if eq[0] == 'E0' else ldB, vm=eq.pop(0))
    stamp(13)
    misc = [f"ds_read_b128 {vr(KX+4*k,4)}, v{L16} offset:{L_KV + 4096*w + 1024*k}" for k in range(4)]
    misc += [f"s_mov_b32 s{sIMw}, s{sIMr}", f"s_add_u32 s{sIMr}, s{sIMr}, 0x2000", f"s_and_b32 s{sIMr}, s{sIMr}, 0xffff7fff",
             f"s_xor_b32 s{sTAG}, s{sTAG}, 1"]
    if P.get('nod', 1): misc += [f"s_cmp_eq_u32 s{sS}, 63", f"s_cselect_b32 s{sKV}, 0x70000000, s{sKV}"]
    if w == 0: misc = [f"v_cmp_gt_u32 vcc, 32, v{FLV}"] + misc + [f"s_cbranch_vccnz {lb('rF')}\n{lb('bF')}:", f"s_add_u32 s{sFLn}, s{sS}, 2", f"s_lshr_b32 s{sFLn}, s{sFLn}, 3", f"s_min_u32 s{sFLn}, s{sFLn}, 7", f"s_lshl2_add_u32 s{sFLn}, s{sFLn}, {DBG_DN + DBG_KVC}",
                     f"s_cmp_lt_u32 s{sS}, 2", f"s_cselect_b32 s{sFLn}, {DBG_DN + DBG_KV0}, s{sFLn}",
                     f"s_cmp_lg_u32 s{sFL}, s{sFLn}", f"s_cselect_b64 {sr(sFM,2)}, -1, 0", f"s_mov_b32 s{sFL}, s{sFLn}"]
    misc += sync_tmp(P, w)
    def delay(n):
        while n > 0 and misc: a(misc.pop(0), lg='pre'); n -= 1
        wdelay(n)
    while eq:
        delay(dE if len(eq) == nE else pE); a(ldE if eq[0] == 'E0' else ldB, vm=eq.pop(0))
    delay(len(misc))
    if P.get('pr'):
        i0 = a.lines.index(lb('top') + ':'); i0 = a.lines.index('s_barrier', i0) + 1
        body = a.lines[i0:]; a.lines = a.lines[:i0] + ["s_memtime s[72:73]"]; used = [0]; n = 0
        LISTING[w] = [l for l in body if not l.endswith(':')]
        for l in body:
            if not l.endswith(':'):
                if n in P['pr']: a.lines.append(f"s_memtime s[{72+2*len(used)}:{73+2*len(used)}]"); used.append(n)
                n += 1
            a.lines.append(l)
    if used:
        a("s_waitcnt lgkmcnt(0)")
        if P.get('trace'):
            a("s_nop 7")
            for k in range(len(used)): a(f"v_mov_b32 v{MA+8+k}, s{72+2*k}")
            a(f"s_lshl_b32 s{sT}, s{sH}, 12\ns_lshl_b32 s{sT+1}, s{sS}, 4\ns_add_u32 s{sT}, s{sT}, s{sT+1}\ns_add_u32 s{sT}, s{sT}, {WS_STAMP + 65536 + 1024*w}\ns_mov_b64 exec, 1")
            a(f"buffer_store_dwordx4 {vr(MA+8,4)}, v{L16}, {WS}, s{sT} offen", vm='tr')
            a("s_mov_b64 exec, -1")
        else:
            for k in range(1, len(used)):
                a(f"s_sub_u32 s{sT}, s{72+2*k}, s{70+2*k}\ns_add_u32 s{88+k}, s{88+k}, s{sT}")
    if w == 0: wdelay(P['dT'])
    if P.get('stat'):
        a(f"s_cmp_lg_u32 s{sS}, 3\ns_cbranch_scc1 {lb('top')}\ns_memtime s[68:69]\ns_memrealtime s[62:63]\ns_mov_b32 s70, 0\ns_mov_b32 s71, 0")
        for k in range(8): a(f"s_mov_b32 s{88+k}, 0")
    young = lambda t: len(a.vm) - 1 - a.vm.index(t)
    eL = 1 if P['dwf'] else P['earlyL']
    ns = [young(f'E{k}') + k + (eL if k else 0) for k in range(nE)]
    a.lines[a.lines.index(lb('top') + ':') + 1] = f"s_waitcnt vmcnt({ns[0]}) lgkmcnt(0)"
    a(f"s_branch {lb('top')}")
    end_main = len(a.lines)
    if w == 0:
        a.label('L_last'); chain_last(a); a("s_branch L_exit" if P.get('stat') or P.get('dbgt') else "s_endpgm")
    cnt = lambda r, v: (f"s_add_u32 s{r}, s{r}, {v}\n" if P.get('stat') else '')
    spin = f"s_add_u32 s{sSPIN}, s{sSPIN}, 1\ns_cmp_gt_u32 s{sSPIN}, {SPIN_MAX}\ns_cbranch_scc1 L_exit\n"
    for k in range(1, nE + 1):
        a.label(lb(f'f{k}'))
        late = P['lb1'] and k == 1
        if P['lb1'] and k == 2: a(ldB)
        if P.get('fpad') and k >= P.get('fpk', 1): nops(a, P['fpad'])
        if not late: a(ldB)
        a(f"s_waitcnt vmcnt({(ns[k] if k < nE else nE - 1) - (1 if late else 0)})")
        if P['dwf']: a(f"v_mov_b64 {vr(MA,2)}, {vr(EB,2)}\nv_mov_b64 {vr(MA+2,2)}, {vr(EB+2,2)}\ns_nop 0"); a(dwE); a(chkE)
        else: a(chkE); a(cnt(71, 1) or 's_nop 0'); a(dwE)
        a(f"s_cbranch_vccnz {lb(f'f{k+1}')}")
        a(ldL)
        if P['dup'] and k == 1:
            a.lines += dupA; a(f"s_branch {lb('go2')}")
        else: a(f"s_branch {lb('go')}")
    a.label(lb(f'f{nE+1}'))
    a(spin + f"s_branch {lb(f'f{nE}')}")
    if prober:
        a.label(lb('p1'))
        a(probe); a(chkL[1]); a(chkL[2]); a(f"s_cbranch_vccnz {lb('rL')}")
        a. label(lb('p2'))
        for k in range(3):
            a(cnt(70, 65536) + f"s_waitcnt vmcnt({npr-1})\nv_cmp_ne_u32 vcc, s{sS}, v{FLV}"); a(probe); a(f"s_cbranch_vccz {lb('bL')}")
        a(spin + f"s_branch {lb('p2')}")
    a.label(lb('rL'))
    a(ldL)
    a(cnt(71, 65536) + spin + "s_waitcnt vmcnt(0)")
    a(dwL)
    a('\n'.join(chkL))
    a(f"s_waitcnt lgkmcnt(0)\ns_cbranch_vccnz {lb('rL')}\ns_branch {lb('p2' if prober else 'bL')}")
    if w == 0:
        a.label(lb('rF'))
        a(ldF); a(spin + f"s_waitcnt vmcnt(0)\nv_cmp_gt_u32 vcc, 32, v{FLV}\ns_cbranch_vccnz {lb('rF')}\ns_branch {lb('bF')}")
    a.label(lb('r1'))
    a(ld1[0]); a(ld1[1])
    a(cnt(70, 1) + spin + f"s_waitcnt vmcnt(0)\ns_branch {lb('a1')}")
    a.label(lb('step'))
    for l in sync_tmp(P, w): a(l)
    a(dwE)
    a(f"s_branch {lb('go')}")
    return end_main, None
```

```python
from asmlib import *
from chain import WS_KV, WS_KM, WS_SIZE, DBG_KVC, DBG_KV0, DBG_DN, S_WS, S_DBG, sH, sW, nops

WS_A = 50 << 20
WS_CNT = WS_A + (64 << 10)
WS_ST = 52 << 20
DBG_ST = 8
WS_PART = 64 << 20
H_GW = 131072
H_E = H_GW + 1024
H_C = H_E + 1024
H_K = H_C + 4096
S_X, S_W1, S_W2, S_WO, S_OUT = 8, 12, 16, 20, 28
sB = 34
sX0, sWo1, sWo2, sStI, sStS, sSlot, sCnt, sSeg, sSpin, sJ = 35, 36, 37, 38, 39, 40, 41, 42, 43, 44
sA, sA2, sA3, sA4 = 45, 46, 47, 48
sWoo = 49
sM = 50
P_LRE, P_LIM, P_LDT, P_DSK, P_GW, P_CRE, P_CIM = 58, 62, 64, 66, 68, 70, 72
LANE, L16, VX_, VW, VW2, XA, WA, BA, GA, VKV, G, VN, HH, VKM, VVM, WOA, MX = 0, 1, 2, 3, 4, 5, 7, 11, 13, 14, 15, 16, 17, 18, 19, 20, 28
T = 29
KF, VF, FR = 32, 96, 160
QF, SS, HF = 160, 224, 240
HSPIN = 400000
LOG2E = 0x3fb8aa3b
def mf(a, D, A, B, C): a(f"v_mfma_f32_32x32x16_bf16 {D}, {A}, {B}, {C}")
WS = sr(S_WS, 4)

S_PF = 52
P_WQ, P_WK, P_WV = 74, 76, 78
sPH = 56
def h_ptrs(a):
    a(f"""
    s_load_dwordx2 {sr(S_X,2)}, s[0:1], 0
    s_load_dwordx2 {sr(P_WK,2)}, s[0:1], 96
    s_load_dwordx2 {sr(P_WV,2)}, s[0:1], 104
    s_load_dwordx2 {sr(S_WO,2)}, s[0:1], 112
    s_load_dwordx2 {sr(S_PF,2)}, s[0:1], 88
    s_mov_b32 s{S_X+2}, 2097152
    s_mov_b32 s{S_X+3}, 0x20000
    s_mov_b32 s{S_WO+2}, 4194304
    s_mov_b32 s{S_WO+3}, 0x20000
    s_mov_b32 s{S_OUT+2}, 4194304
    s_mov_b32 s{S_OUT+3}, 0x20000
    s_mov_b32 s{S_W1+2}, 4194304
    s_mov_b32 s{S_W1+3}, 0x20000
    s_mov_b32 s{S_W2+2}, 4194304
    s_mov_b32 s{S_W2+3}, 0x20000
    s_mov_b32 s{S_PF+2}, 4194304
    s_mov_b32 s{S_PF+3}, 0x20000
    """)
PFW, PFO = 253, 254
def h_prefetch(a, sR):
    a(f"""
    s_mov_b64 {sr(S_W1,2)}, {sr(P_WK,2)}
    s_mov_b64 {sr(S_W2,2)}, {sr(P_WV,2)}
    s_mul_i32 s{sPH}, s{sR}, {32*10923}
    s_lshr_b32 s{sPH}, s{sPH}, 16
    s_cmp_eq_u32 s{sR}, 6
    s_cselect_b32 s3, 0x200, s3
    s_lshl_b32 s{sA}, s{sPH}, 8
    s_lshl_b32 s{sA2}, s3, 17
    s_add_u32 s{sA}, s{sA}, s{sA2}
    v_lshrrev_b32 v1, 4, v0
    v_and_b32 v2, 15, v0
    v_cmp_gt_u32 vcc, 12, v2
    v_lshlrev_b32 v2, 7, v2
    v_lshl_add_u32 v1, v1, 13, v2
    v_add_u32 v1, s{sA}, v1
    v_bfrev_b32 v2, 1
    v_cndmask_b32 v{PFW}, v2, v1, vcc
    s_lshl_b32 s{sA}, s3, 14
    v_lshlrev_b32 v1, 7, v0
    v_cmp_gt_u32 vcc, 128, v0
    buffer_load_dword v255, v{PFW}, {sr(S_W2,4)}, 0 offen
    v_add_u32 v3, s{sA}, v1
    buffer_load_dword v255, v{PFW}, {sr(S_W1,4)}, 0 offen
    v_cndmask_b32 v3, v2, v3, vcc
    buffer_load_dword v255, v3, {sr(S_X,4)}, 0 offen
    s_load_dwordx2 {sr(S_OUT,2)}, s[0:1], 136
    s_load_dwordx2 {sr(P_LRE,2)}, s[0:1], 8
    s_load_dwordx2 {sr(P_LIM,2)}, s[0:1], 16
    s_load_dwordx2 {sr(P_LDT,2)}, s[0:1], 56
    s_load_dwordx2 {sr(P_DSK,2)}, s[0:1], 64
    s_load_dwordx2 {sr(P_GW,2)}, s[0:1], 128
    s_waitcnt lgkmcnt(0)
    s_load_dwordx2 {sr(P_CRE,2)}, s[0:1], 40
    s_load_dwordx2 {sr(P_CIM,2)}, s[0:1], 48
    s_cmp_ge_u32 s{sW}, 2
    s_cbranch_scc1 L_h_hi
    s_mov_b64 {sr(S_W2,2)}, {sr(S_PF,2)}
    s_mov_b32 s{sStI}, {4*8192}
    s_mov_b32 s{sStS}, {32*8192}
    s_branch L_h_sel
    """)
    a.label('L_h_hi')
    a(f"""
    s_mov_b64 {sr(S_W1,2)}, {sr(P_WV,2)}
    s_mov_b32 s{S_W2+2}, 524288
    s_mov_b32 s{sStI}, 0x10000000
    s_mov_b32 s{sStS}, 64
    s_cmp_eq_u32 s{sW}, 3
    s_cbranch_scc1 L_h_w3
    s_load_dwordx2 {sr(S_W2,2)}, s[0:1], 24
    s_branch L_h_sel
    """)
    a.label('L_h_w3')
    a(f"s_load_dwordx2 {sr(S_W2,2)}, s[0:1], 32")
    a.label('L_h_sel')
    a("s_waitcnt lgkmcnt(0)")
    return 3

def h_once(a):
    a(f"v_and_b32 v{LANE}, 63, v0")
    t = 32
    a(f"""
    v_lshlrev_b32 v{L16}, 4, v{LANE}
    v_and_b32 v{VN}, 31, v{LANE}
    v_lshrrev_b32 v{HH}, 5, v{LANE}
    v_lshrrev_b32 v{t}, 2, v{LANE}              ; r = lane>>2
    v_lshrrev_b32 v{t+1}, 4, v{LANE}            ; lane>>4
    v_and_b32 v{t+2}, 3, v{LANE}                ; c
    v_xor_b32 v{t+3}, v{t+2}, v{t+1}
    v_lshlrev_b32 v{t+3}, 4, v{t+3}
    v_lshl_add_u32 v{VX_}, v{t}, 10, v{t+3}
    v_and_b32 v{t+3}, 15, v{LANE}
    v_lshlrev_b32 v{t+4}, 2, v{t+1}
    v_xor_b32 v{t+3}, v{t+3}, v{t+4}
    v_lshlrev_b32 v{t+3}, 4, v{t+3}
    v_lshl_add_u32 v{VW}, v{t+1}, 13, v{t+3}
    s_cmp_ge_u32 s{sW}, 2
    s_cselect_b64 vcc, -1, 0
    v_cndmask_b32 v{VW2}, v{VW}, v{VX_}, vcc
    v_bfe_u32 v{t+5}, v{LANE}, 2, 1             ; h'
    v_bfe_u32 v{t+6}, v{LANE}, 3, 1             ; t
    v_bfe_u32 v{t+7}, v{LANE}, 4, 1             ; n>>4
    v_lshl_add_u32 v{t+8}, v{t+7}, 2, v{t+2}
    v_lshl_add_u32 v{t+8}, v{t+5}, 3, v{t+8}    ; i = 8h' + 4(n>>4) + (n&3)
    v_lshl_add_u32 v{t+9}, v{HH}, 5, v{t+8}
    v_lshlrev_b32 v{t+9}, 4, v{t+9}
    v_lshl_add_u32 v{VKV}, v{t+6}, 10, v{t+9}
    v_lshl_add_u32 v{t+9}, v{HH}, 4, v{t+8}
    v_lshlrev_b32 v{t+9}, 4, v{t+9}
    v_lshl_add_u32 v{t+9}, v{t+6}, 2, v{t+9}
    s_lshl_b32 s{sA}, s{sW}, 12
    s_add_u32 s{sA}, s{sA}, {H_K}
    v_add3_u32 v{VVM}, v{t+9}, s{sA}, 8
    v_and_b32 v{t+9}, 7, v{LANE}
    v_lshl_add_u32 v{t+9}, v{HH}, 5, v{t+9}
    v_lshl_add_u32 v{VKM}, v{t+9}, 4, s{sA}
    s_waitcnt lgkmcnt(0)
    """)

def xaddr(a, row, base_s, dst):
    a(f"""
    v_bfe_u32 v{T}, v{row}, 2, 2
    v_xor_b32 v{T}, v{T}, v{HH}
    v_lshlrev_b32 v{T}, 4, v{T}
    v_lshl_add_u32 v{T}, v{row}, 6, v{T}
    v_add_u32 v{dst}, {base_s}, v{T}
    v_xor_b32 v{dst+1}, 32, v{dst}
    """)

OPT = {}
sXC, sClr, sMode = 57, 3, 2
def dma_part(part, kind):
    G_ = []
    for i in range(4):
        o = (16384 if part == 'B' else 0) + 1024 * i
        L = [f"s_add_u32 m0, s{sSlot}, {o}"]
        if kind == 'wo': L += [f"s_add_u32 s{sA}, s{sWoo}, {o}", f"buffer_load_dwordx4 v{WOA + i}, {sr(S_WO,4)}, s{sA} offen lds"]
        elif part == 'A': L += [f"s_add_u32 s{sA}, s{sXC}, {(i >> 1) * 131072 + (i & 1) * 16384}", f"buffer_load_dwordx4 v{VX_}, {sr(S_X,4)}, s{sA} offen lds"]
        elif kind == 'p1': L += [f"s_add_u32 s{sA}, s{sWo1}, {4*8192*i}", f"buffer_load_dwordx4 v{VW}, {sr(S_W1,4)}, s{sA} offen lds"]
        else: L += [f"s_mov_b32 s{sA2}, s{sWo2}" if i == 0 else f"s_add_u32 s{sA2}, s{sA2}, s{sStI}", f"buffer_load_dwordx4 v{VW2}, {sr(S_W2,4)}, s{sA2} offen lds"]
        G_.append(L)
    if part == 'A' and kind != 'wo': G_[-1] += [f"s_add_u32 s{sXC}, s{sXC}, 64", f"s_and_b32 s{sXC}, s{sXC}, 0xfffffbff"]
    if part == 'B':
        G_[-1] += [{'p1': f"s_add_u32 s{sWo1}, s{sWo1}, {32*8192}", 'p2': f"s_add_u32 s{sWo2}, s{sWo2}, s{sStS}", 'wo': f"s_add_u32 s{sWoo}, s{sWoo}, 32768"}[kind]]
        G_[-1] += [f"s_add_u32 s{sSlot}, s{sSlot}, 32768", f"s_and_b32 s{sSlot}, s{sSlot}, 0x1ffff"]
    return G_

def frag_reads(p, k, fs, nj=2):
    b = FR + 40 * fs
    L = [f"ds_read_b128 {vr(b + 4*j, 4)}, v{XA + k} offset:{2048*j}" for j in range(nj)]
    for m in range(2 if p == 1 else 1):
        for tau in range(4):
            for pp in range(2):
                L.append(f"ds_read_b64_tr_b16 {vr(b + 8 + 16*m + 4*tau + 2*pp, 2)}, v{WA + tau} offset:{8192*m + (16*k + 4*pp)*256}")
    if p == 2:
        L.append(f"ds_read_b128 {vr(b + 24, 4)}, v{BA + k}")
        L.append(f"ds_read_b128 {vr(b + 28, 4)}, v{GA} offset:{32*k}")
    return L
def mfmas(p, fs, nj=2):
    b = FR + 40 * fs
    L = []
    x = lambda j: vr(b + 4 * j, 4)
    for tau in range(4):
        for j in range(nj):
            D = ar(64 * j + 16 * tau, 16); L.append((D, vr(b + 8 + 4 * tau, 4), x(j), D))
    if p == 1:
        for tau in range(4):
            for j in range(nj):
                D = ar(128 + 64 * j + 16 * tau, 16); L.append((D, x(j), vr(b + 24 + 4 * tau, 4), D))
    else:
        for q in range(2):
            for j in range(2):
                D = ar(128 + 32 * q + 16 * j, 16); L.append((D, vr(b + 24 + 4 * q, 4), x(j), D))
    return L
def adv_addr(p):
    L = []
    regs_ = [XA, XA + 1] + [WA + t for t in range(4)] + ([BA, BA + 1] if p == 2 else [])
    for r in regs_: L += [f"v_add_u32 v{r}, 0x8000, v{r}", f"v_and_b32 v{r}, 0x1ffff, v{r}"]
    if p == 2: L.append(f"v_add_u32 v{GA}, 64, v{GA}")
    return L

def stage_loop(a, name, p, kB, kA, n, nj=2):
    if n != 1:
        a(f"s_mov_b32 s{sCnt}, {n}")
        a.label(name)
    a("s_waitcnt lgkmcnt(0)")
    rd = frag_reads(p, 1, 1, nj); av = adv_addr(p); dg = dma_part('B', kB)
    M = mfmas(p, 0, nj); q = len(M) // 4
    for i, m in enumerate(M):
        mf(a, *m)
        for _ in range(2 if nj == 2 else (2 if i & 1 else 5)):
            if rd: a(rd.pop(0))
        if i % q == 1:
            for l in dg.pop(0): a(l)
        elif not rd:
            for _ in range(5 if nj == 2 else 6):
                if av: a(av.pop(0))
    assert not rd and not av and not dg
    a(f"s_waitcnt vmcnt({18 if p == 1 else 16}) lgkmcnt(0)\ns_barrier")
    rd = frag_reads(p, 0, 0, nj); dg = dma_part('A', kA)
    M = mfmas(p, 1, nj)
    for i, m in enumerate(M):
        mf(a, *m)
        for _ in range(2 if nj == 2 else (2 if i & 1 else 5)):
            if rd: a(rd.pop(0))
        if i % q == 1:
            for l in dg.pop(0): a(l)
        if p == 1 and i == (11 if nj == 2 else 4): a(f"buffer_store_dwordx4 v[44:47], v{L16}, {WS}, s{sClr} offen sc1\ns_add_u32 s{sClr}, s{sClr}, 1024")
        if p == 1 and i == (12 if nj == 2 else 6): a(f"s_and_b32 s{sA}, s{sClr}, 0xfff\ns_cselect_b32 s{sA}, 0, s{sX0}\ns_cselect_b32 s{sX0}, s{sX0}, 0x20000000\ns_add_u32 s{sClr}, s{sClr}, s{sA}")
        if i == len(M) - 1 and n != 1: a(f"s_sub_u32 s{sCnt}, s{sCnt}, 1\ns_cmp_lg_u32 s{sCnt}, 0")
    assert not rd and not dg
    if n != 1: a(f"s_cbranch_scc1 {name}")

SLEEP = [4]
def poll_fail(a, back, sl=None):
    a(f"s_add_u32 s{sSpin}, s{sSpin}, 1\ns_cmp_gt_u32 s{sSpin}, {HSPIN}\ns_cbranch_scc1 L_end\ns_sleep {sl or SLEEP[0]}\ns_branch {back}")

def unpack8(a, dst, src):
    for j in range(4):
        a(f"v_lshlrev_b32 v{dst+2*j}, 16, v{src+j}\nv_and_b32 v{dst+2*j+1}, 0xffff0000, v{src+j}")

def pw(a, LR, LI, A2, B2, n, cnt, tmp):
    for j in range(cnt):
        if n is None: a(f"v_exp_f32 v{tmp+j}, v{A2+j}\nv_fract_f32 v{LI+j}, v{B2+j}")
        else: a(f"v_mul_f32 v{tmp+j}, {n}, v{A2+j}\nv_mul_f32 v{LI+j}, {n}, v{B2+j}\nv_exp_f32 v{tmp+j}, v{tmp+j}\nv_fract_f32 v{LI+j}, v{LI+j}")
    for j in range(cnt): a(f"v_cos_f32 v{LR+j}, v{LI+j}\nv_sin_f32 v{LI+j}, v{LI+j}")
    a("s_nop 0")
    for j in range(cnt): a(f"v_mul_f32 v{LR+j}, v{LR+j}, v{tmp+j}\nv_mul_f32 v{LI+j}, v{LI+j}, v{tmp+j}")

def dtprep(a, A2, B2, DT, cnt):
    for j in range(cnt): a(f"v_mul_f32 v{DT+j}, {LOG2E}, v{DT+j}")
    for j in range(cnt): a(f"v_exp_f32 v{DT+j}, v{DT+j}")
    a("s_nop 0")
    for j in range(cnt): a(f"v_cvt_pk_bf16_f32 v{DT+j}, v{DT+j}, v{DT+j}")
    for j in range(cnt): a(f"v_and_b32 v{DT+j}, 0xffff0000, v{DT+j}")
    for j in range(cnt):
        a(f"v_mul_f32 v{A2+j}, v{DT+j}, v{A2+j}\nv_mul_f32 v{B2+j}, v{DT+j}, v{B2+j}")
        a(f"v_mul_f32 v{A2+j}, {LOG2E}, v{A2+j}\nv_mul_f32 v{B2+j}, 0.15915494, v{B2+j}")

def h_static(a):
    t = 32
    a(f"""
    v_bfe_u32 v{t}, v{LANE}, 2, 1
    v_bfe_u32 v{t+1}, v{LANE}, 3, 2
    v_and_b32 v{t+2}, 3, v{LANE}
    v_lshl_add_u32 v{t+3}, v{t+1}, 2, v{t+2}
    v_lshl_add_u32 v{t+3}, v{t}, 4, v{t+3}
    s_lshl_b32 s{sA}, s{sW}, 12
    """)
    xaddr(a, t + 3, f"s{sA}", XA)
    a(f"""
    v_bfe_u32 v{t+4}, v{LANE}, 2, 2             ; r'
    v_bfe_u32 v{t+5}, v{LANE}, 4, 1             ; half
    v_and_b32 v{t+6}, 1, v{LANE}
    v_bfe_u32 v{t+7}, v{LANE}, 1, 1
    v_lshl_add_u32 v{t+8}, v{t+5}, 1, v{t+7}
    v_lshl_add_u32 v{t+8}, v{t+6}, 2, v{t+8}
    v_lshlrev_b32 v{t+8}, 3, v{t+8}
    v_lshl_add_u32 v{t+9}, v{HH}, 3, v{t+4}
    v_lshl_add_u32 v{t+8}, v{t+9}, 8, v{t+8}
    v_lshl_add_u32 v{t+8}, v{t+4}, 6, v{t+8}
    v_add_u32 v{WA}, 16384, v{t+8}
    """)
    for tau in range(1, 4): a(f"v_xor_b32 v{WA+tau}, {64*tau}, v{WA}")
    for i in range(4): a(f"v_xor_b32 v{WOA+i}, {64*i}, v{L16}")
    for i in range(4): a(f"v_mov_b32 v{t+12+i}, -1")
    for i in range(256): a(f"v_accvgpr_write_b32 a{i}, 0")

def helper_task(a, P):
    DBG = sr(S_DBG, 4)
    SLEEP[0] = P.get('sleep', 4); OPT.clear(); OPT.update(P)
    def hs(k, alt=0):
        if P.get('alt') and not alt:
            if k in (4, 5, 6): return
            k = {2: 5, 3: 6}.get(k, k)
        if P.get('stat'): a(f"{'s_memtime' if P.get('hcyc') else 's_memrealtime'} s[{74+2*k}:{75+2*k}]")
    def signal(tag, off, so, nv, last='31'):
        a(f"""
        s_waitcnt vmcnt({nv})
        s_barrier
        s_cmp_lg_u32 s{sW}, 0
        s_cbranch_scc1 L_h_ns{tag}
        s_lshl_b32 s{sA}, s{sB}, 2
        v_mov_b32 v{T}, 1
        s_mov_b64 exec, 1
        buffer_atomic_add v{T}, off, {DBG}, {so} offset:{off} sc0
        v_mov_b32 v{T+1}, 32
        s_waitcnt vmcnt(0)
        v_cmp_eq_u32 vcc, {last}, v{T}
        s_cbranch_vccz L_h_ng{tag}
        buffer_store_dword v{T+1}, off, {DBG}, {so} offset:{off + DBG_DN} sc1
        """)
        a.label(f'L_h_ng{tag}')
        a("s_mov_b64 exec, -1")
        a.label(f'L_h_ns{tag}')
    a.label('L_h_task')
    hs(0)
    t = 32
    a(f"""
    s_lshl_b32 s{sSeg}, s{sB}, 3
    s_cmp_eq_u32 s{sMode}, 2
    s_cselect_b32 s{sSeg}, 4, s{sSeg}
    s_add_u32 s{sSeg}, s{sSeg}, s{sW}
    s_lshl_b32 s{sXC}, s{sSeg}, 15
    s_lshl_b32 s{sWo1}, s{sH}, 8
    s_and_b32 s{sA}, s{sW}, 1
    s_lshl_b32 s{sA}, s{sA}, 17
    s_add_u32 s{sWo1}, s{sWo1}, s{sA}
    s_lshl_b32 s{sA}, s{sH}, 14
    s_cmp_ge_u32 s{sW}, 2
    s_cselect_b32 s{sWo2}, s{sA}, s{sWo1}
    s_lshl_b32 s{sSlot}, s{sW}, 12
    s_lshl_b32 s{sWoo}, s{sH}, 17
    s_add_u32 s{sWoo}, s{sWoo}, s{sSlot}
    s_mov_b32 s{sSpin}, 0
    """)
    NE = P.get('nearly', 2)
    if P.get('pfw'): a("s_waitcnt vmcnt(0)"); hs(0)
    a(f"""
    s_cmp_lg_u32 s{sB}, 8
    s_cbranch_scc1 L_h_nse
    v_lshlrev_b32 v{T+2}, 7, v{LANE}
    s_lshl_b32 s{sA}, s{sH}, 14
    buffer_load_dword v255, v{T+2}, {sr(S_W2,4)}, s{sA} offen
    s_add_u32 s{sA2}, s{sA}, 8192
    buffer_load_dword v255, v{T+2}, {sr(S_W2,4)}, s{sA2} offen
    s_and_b32 s{sA2}, s{sW}, 1
    s_lshl_b32 s{sA2}, s{sA2}, 13
    s_add_u32 s{sA}, s{sA}, s{sA2}
    v_add_u32 v{T+2}, s{sA}, v{T+2}
    global_load_dword v255, v{T+2}, {sr(P_CRE,2)}
    global_load_dword v255, v{T+2}, {sr(P_CIM,2)}
    s_lshl_b32 s{sA}, s{sW}, 17
    s_lshl_b32 s{sA2}, s{sH}, 12
    s_add_u32 s{sA}, s{sA}, s{sA2}
    s_add_u32 s{sA}, s{sA}, {WS_KM}
    s_add_u32 s{sA2}, s{sA}, {4 << 17}
    """)
    for k in range(8): a(f"buffer_store_dwordx4 v[44:47], v{L16}, {WS}, s{sA if k < 4 else sA2} offen offset:{1024*(k&3)} sc1")
    signal('e', DBG_KV0, '0', 0, '63')
    a(f"""
    s_cmp_eq_u32 s{sB}, 8
    s_cselect_b32 s{sA3}, 5, s{sB}
    s_cselect_b32 s{sA2}, 4, 3
    s_sub_u32 s{sA3}, s{sA3}, 2
    s_cmp_ge_u32 s{sA3}, s{sA2}
    s_cbranch_scc1 L_h_nt
    s_waitcnt vmcnt(0)
    s_lshl_b32 s{sA}, s{sW}, 6
    v_add_u32 v{T}, s{sA}, v{LANE}
    v_lshlrev_b32 v{T+1}, 7, v{T}
    v_lshrrev_b32 v{T+2}, 1, v{T}
    v_and_b32 v{T}, 128, v{T+1}
    v_lshl_add_u32 v{T}, v{T+2}, 13, v{T}
    s_lshl_b32 s{sA}, s{sA3}, 20
    s_lshl_b32 s{sA2}, s{sH}, 8
    s_add_u32 s{sA}, s{sA}, s{sA2}
    buffer_load_dword v255, v{T}, {sr(S_PF,4)}, s{sA} offen
    s_waitcnt vmcnt(0)
    s_lshl_b32 s{sA}, s{sA3}, 15
    s_lshl_b32 s{sA2}, s{sH}, 17
    s_add_u32 s{sA}, s{sA}, s{sA2}
    buffer_load_dword v255, v{T+1}, {sr(S_WO,4)}, s{sA} offen
    s_waitcnt vmcnt(0)
    s_cmp_lg_u32 s{sB}, 8
    s_cbranch_scc1 L_h_nt
    s_lshl_b32 s{sA}, s{sH}, 16
    buffer_load_dword v255, v{T+1}, {sr(S_X,4)}, s{sA} offen
    s_add_u32 s{sA}, s{sA}, 32768
    buffer_load_dword v255, v{T+1}, {sr(S_X,4)}, s{sA} offen
    s_add_u32 s{sA}, s{sW}, 56
    s_lshl_b32 s{sA}, s{sA}, 20
    s_lshl_b32 s{sA2}, s{sH}, 15
    s_add_u32 s{sA}, s{sA}, s{sA2}
    s_add_u32 s{sA}, s{sA}, {WS_PART}
    s_mov_b32 s{sCnt}, 8
    """)
    if P.get('r8w'):
        a(f"s_cmp_lg_u32 s{sW}, 0\ns_cbranch_scc1 L_h_c6")
        a.label('L_h_c5')
        a(f"buffer_load_dword v{T}, off, {DBG}, 0 offset:{DBG_DN + DBG_KVC + 4 * (P['r8w'] - 1)} sc1\ns_waitcnt vmcnt(0)\nv_cmp_eq_u32 vcc, 0, v{T}\ns_cbranch_vccz L_h_c6")
        poll_fail(a, 'L_h_c5', 16)
        a.label('L_h_c6')
        a("s_barrier")
    a.label('L_h_c7')
    if P.get('r8s'): a("s_waitcnt vmcnt(0)")
    a(f"s_add_u32 s{sA2}, s{sA}, {4 << 20}")
    for k in range(8): a(f"buffer_store_dwordx4 v[44:47], v{L16}, {WS}, s{sA if k < 4 else sA2} offen offset:{1024*(k&3)} sc1")
    a(f"s_add_u32 s{sA}, s{sA}, 4096\ns_sub_u32 s{sCnt}, s{sCnt}, 1\ns_cmp_lg_u32 s{sCnt}, 0\ns_cbranch_scc1 L_h_c7")
    signal('f', DBG_KVC + 28, '0', 0, '63')
    if P.get('spinT'):
        a(f"s_cmp_lg_u32 s{sH}, 0\ns_cbranch_scc1 L_end\ns_cmp_lg_u32 s{sW}, 0\ns_cbranch_scc1 L_end")
        a.label('L_spinT')
        a(f"s_sleep 1\ns_memrealtime s[72:73]\ns_waitcnt lgkmcnt(0)\ns_sub_u32 s72, s72, s98\ns_cmp_lt_u32 s72, {P['spinT']*100}\ns_cbranch_scc1 L_spinT")
    a("s_branch L_end")
    a.label('L_h_nt')
    for st in range(4):
        for g_ in dma_part('A', 'p1') + (dma_part('B', 'p1') if st < 3 else []):
            for l in g_: a(l)
    a(f"""
    s_lshl_b32 s{sA}, s{sSeg}, 17
    s_lshl_b32 s{sA2}, s{sH}, 12
    s_add_u32 s{sA}, s{sA}, s{sA2}
    s_add_u32 s{sClr}, s{sA}, {WS_KM}
    s_cmp_ge_u32 s{sMode}, 1
    s_cselect_b32 s{sClr}, 0x70000000, s{sClr}
    s_mov_b32 s{sX0}, {(4 << 17) - 4096}
    """)
    a(f"""
    s_lshl_b32 s{sA}, s{sB}, 5
    s_add_u32 s{sA}, s{sA}, s{sH}
    s_lshl_b32 s{sA}, s{sA}, 7
    s_add_u32 s{sA}, s{sA}, {WS_A}
    s_mov_b64 exec, 0xff
    buffer_store_dwordx4 {vr(t+12,4)}, v{L16}, {WS}, s{sA} offen sc1
    s_mov_b64 exec, -1
    s_lshl_b32 s{sA}, s{sH}, 2
    s_add_u32 s{sA}, s{sA}, s{sSeg}
    s_lshl_b32 s{sA}, s{sA}, 7
    s_add_u32 s{sA}, s{sA}, {WS_CNT}
    s_add_u32 s{sA2}, s{sH}, s{sMode}
    s_cmp_eq_u32 s{sMode}, 1
    s_cselect_b32 s{sA2}, s{sH}, s{sA2}
    s_cmp_lt_u32 s{sA2}, 2
    s_cselect_b32 s{sA}, s{sA}, 0x70000000
    v_mov_b32 v{t+16}, 0
    s_mov_b64 exec, 1
    buffer_store_dword v{t+16}, v{t+16}, {WS}, s{sA} offen sc1
    s_mov_b64 exec, -1
    global_load_dwordx4 {vr(t+20,4)}, v{L16}, {sr(P_GW,2)}
    """)
    a(f"s_cmp_lt_u32 s{sB}, {NE}\ns_cbranch_scc1 L_h_go\ns_cmp_eq_u32 s{sMode}, 2\ns_cbranch_scc1 L_h_go")
    a(f"v_lshlrev_b32 v{T}, 7, v{LANE}\ns_and_b32 s{sA2}, s{sXC}, 0xfffffc00\ns_cmp_ge_u32 s{sB}, 6\ns_cbranch_scc1 L_h_x2\ns_waitcnt vmcnt(0)")
    a.label('L_h_x2')
    for k in range(8 if P.get('xt', 1) else 0): a(f"s_add_u32 s{sA}, s{sA2}, {(k >> 2) * 131072 + (k & 3) * 8192}\nbuffer_load_dword v255, v{T}, {sr(S_X,4)}, s{sA} offen")
    a(f"s_sub_i32 s{sA3}, s{sB}, {P.get('lag', 2)}\ns_max_i32 s{sA3}, s{sA3}, 0\ns_lshl_b32 s{sA3}, s{sA3}, 2\ns_cmp_ge_u32 s{sB}, 6\ns_cbranch_scc1 L_h_go")
    a(f"s_cmp_lg_u32 s{sW}, 0\ns_cbranch_scc1 L_h_go")
    a.label('L_h_w0')
    a(f"buffer_load_dword v{T}, off, {DBG}, s{sA3} offset:{DBG_DN + DBG_KVC} sc1\ns_waitcnt vmcnt(0)\nv_cmp_eq_u32 vcc, 0, v{T}\ns_cbranch_vccz L_h_go")
    poll_fail(a, 'L_h_w0', 8)
    a.label('L_h_go')
    a(f"s_waitcnt vmcnt({20 + 3})\ns_barrier")
    hs(1)
    for l in frag_reads(1, 0, 0): a(l)
    gw = f"v_add_u32 v{T}, {H_GW}, v{L16}\nds_write_b128 v{T}, {vr(t+20,4)}"
    a(f"s_cmp_eq_u32 s{sMode}, 0\ns_cbranch_scc1 L_h_full")
    if P.get('alt'):
        stage_loop(a, 'L_h_q1x', 1, 'p1', 'x', 4, 1); hs(2, 1)
        stage_loop(a, 'L_h_q1y', 1, 'p1', 'x', 4, 1); hs(3, 1)
        stage_loop(a, 'L_h_q1a', 1, 'p1', 'x', 5, 1); hs(4, 1)
    else: stage_loop(a, 'L_h_q1a', 1, 'p1', 'x', 13, 1)
    a(gw)
    stage_loop(a, 'L_h_q1b', 1, 'p2', 'x', 3, 1)
    a("s_branch L_h_e1")
    a.label('L_h_full')
    stage_loop(a, 'L_h_p1a', 1, 'p1', 'x', 13)
    a(gw)
    stage_loop(a, 'L_h_p1b', 1, 'p2', 'x', 3)
    a.label('L_h_e1')
    hs(2)
    a(f"""
    s_lshl_b32 s{sA3}, s{sSeg}, 19
    s_lshl_b32 s{sA2}, s{sH}, 14
    s_add_u32 s{sA3}, s{sA3}, s{sA2}
    s_add_u32 s{sA3}, s{sA3}, {WS_KV}
    s_waitcnt lgkmcnt(0)
    s_nop 7
    """)
    TM = 240
    def kv_store(j, m, tau):
        dst = (KF if m == 0 else VF) + 32 * j + 8 * tau
        a(f"s_add_u32 s{sA}, s{sA3}, {j * (4 << 19) + 4096 * tau}")
        for u in range(2): a(f"buffer_store_dwordx4 {vr(dst+4*u,4)}, v{VKV}, {WS}, s{sA} offen offset:{2048*m + 256*u} sc1")
    for j in range(2):
        for m in range(2):
            for tau in range(4):
                src = 128 * m + 64 * j + 16 * tau; dst = (KF if m == 0 else VF) + 32 * j + 8 * tau
                for r in range(16): a(f"v_accvgpr_read_b32 v{TM+r}, a{src+r}")
                for r in range(8): a(f"v_cvt_pk_bf16_f32 v{dst+r}, v{TM+2*r}, v{TM+2*r+1}")
                if j == 0:
                    a(f"s_cmp_eq_u32 s{sMode}, 0\ns_cbranch_scc1 L_h_sk{j}{m}{tau}")
                    kv_store(j, m, tau)
                    a.label(f'L_h_sk{j}{m}{tau}')
        if j == 0:
            a(f"s_cmp_eq_u32 s{sMode}, 0\ns_cbranch_scc1 L_h_j1\ns_lshl_b32 s{sA2}, s{sMode}, 2\ns_cmp_eq_u32 s{sMode}, 1\ns_cselect_b32 s{sA4}, 63, 31")
            if P.get('dlyh'): a(f"s_sleep {P['dlyh']}")
            signal('a', DBG_KV0 - 4, f"s{sA2}", 0, f"s{sA4}")
            a(f"s_cmp_eq_u32 s{sMode}, 1\ns_cbranch_scc1 L_h_nj1\ns_mov_b32 s{sMode}, 0\ns_waitcnt vmcnt(0) lgkmcnt(0)\ns_branch L_h_again")
            a.label('L_h_j1')
    a.label('L_h_nj1')
    for i in range(192): a(f"v_accvgpr_write_b32 a{i}, 0")
    a(f"s_lshl_b32 s{sA}, s{sW}, 12")
    xaddr(a, VN, f"s{sA}", XA)
    a(f"""
    v_bfe_u32 v{TM}, v{LANE}, 2, 1
    v_bfe_u32 v{TM+1}, v{LANE}, 3, 1
    v_and_b32 v{TM+2}, 3, v{LANE}
    v_lshl_add_u32 v{TM+2}, v{TM+1}, 2, v{TM+2}
    v_lshl_add_u32 v{TM+2}, v{TM}, 3, v{TM+2}      ; ch
    v_bfe_u32 v{TM+3}, v{LANE}, 4, 1
    v_lshlrev_b32 v{TM+3}, 12, v{TM+3}
    v_add_u32 v{TM+3}, 24576, v{TM+3}
    v_lshlrev_b32 v{GA}, 4, v{HH}
    v_add_u32 v{GA}, {H_GW}, v{GA}
    """)
    xaddr(a, TM + 2, f"v{TM+3}", BA)
    hs(3)
    for l in frag_reads(2, 0, 0): a(l)
    a(f"s_lshl_b32 s{sA4}, s{sB}, 1\ns_and_b32 s{sA4}, s{sA4}, {2 if P.get('lag', 2) == 2 else 14}\ns_sub_i32 s{sA4}, s{sA4}, {-1 if P.get('lag', 2) == 2 else 3}\ns_max_i32 s{sA4}, s{sA4}, 1\ns_cmp_ge_u32 s{sB}, 6\ns_cselect_b32 s{sA4}, 1, s{sA4}\ns_sub_u32 s{sJ}, 12, s{sA4}")
    stage_loop(a, 'L_h_p20', 2, 'p2', 'x', f"s{sA4}")
    a(f"s_cmp_eq_u32 s{sMode}, 0\ns_cbranch_scc1 L_h_st\ns_cmp_lg_u32 s{sW}, 0\ns_cbranch_scc1 L_h_l1")
    a.label('L_h_l0')
    a(f"buffer_load_dword v{T}, off, {DBG}, 0 offset:{DBG_DN + DBG_KVC} sc1\ns_waitcnt vmcnt(0)\nv_cmp_eq_u32 vcc, 0, v{T}\ns_cbranch_vccz L_h_l1")
    poll_fail(a, 'L_h_l0', 8)
    a.label('L_h_l1')
    a("s_barrier")
    n0 = len(a.lines)
    for m in range(2):
        for tau in range(4): kv_store(1, m, tau)
    a.lines[n0:] = [l.replace('buffer_store', 'buffer_load') for l in a.lines[n0:]]
    a(f"s_mov_b32 s{sMode}, 0\ns_branch L_h_nsc")
    a.label('L_h_st')
    for j in range(2):
        for m in range(2):
            for tau in range(4): kv_store(j, m, tau)
    a(f"s_cmp_eq_u32 s{sB}, 7\ns_cselect_b32 s{sA4}, 63, 31")
    signal('c', DBG_KVC, f"s{sA}", 0, f"s{sA4}")
    stage_loop(a, 'L_h_p2a', 2, 'p2', 'x', f"s{sJ}")
    stage_loop(a, 'L_h_p2c', 2, 'p2', 'wo', 1)
    stage_loop(a, 'L_h_p2b', 2, 'wo', 'wo', 3)
    for g_ in dma_part('B', 'wo'):
        for l in g_: a(l)
    hs(4)
    a("s_waitcnt lgkmcnt(0)\ns_nop 7")
    PK = 128 + 0
    for j in range(2):
        for tau in range(4):
            src = 64 * j + 16 * tau; dst = QF + 32 * j + 8 * tau
            for r in range(16): a(f"v_accvgpr_read_b32 v{TM+r}, a{src+r}")
            for r in range(8): a(f"v_cvt_pk_bf16_f32 v{dst+r}, v{TM+2*r}, v{TM+2*r+1}")
    a(f"""
    v_bfe_u32 v{T}, v{LANE}, 2, 1
    v_bfe_u32 v{T+1}, v{LANE}, 3, 1
    v_and_b32 v{T+2}, 0x13, v{LANE}
    v_lshl_add_u32 v{T+2}, v{T+1}, 2, v{T+2}
    v_lshl_add_u32 v{T+2}, v{T}, 3, v{T+2}
    v_lshlrev_b32 v{T+2}, 10, v{T+2}
    s_lshl_b32 s{sA}, s{sH}, 5
    v_lshl_add_u32 v{T+1}, v{HH}, 4, s{sA}
    s_lshl_b32 s{sA}, s{sW}, 17
    v_add3_u32 v{BA}, v{T+2}, v{T+1}, s{sA}
    """)
    for j in range(2):
        for k in range(8):
            D = vr(SS + 16 * j, 16)
            mf(a, D, vr(KF + 32 * j + 4 * k, 4), vr(QF + 32 * j + 4 * k, 4), D if k else 0)
    RI = 32
    for r in range(32): a(f"v_accvgpr_read_b32 v{RI+r}, a{128+r}")
    a(f"v_accvgpr_read_b32 v{G}, a160\nv_accvgpr_read_b32 v{MX}, a176")
    A2, B2, LR, LI = 64, 72, 80, 88
    a(f"global_load_dwordx4 {vr(LR,4)}, v{T+1}, {sr(P_LRE,2)}\nglobal_load_dwordx4 {vr(LR+4,4)}, v{T+1}, {sr(P_LIM,2)}\nglobal_load_dwordx4 {vr(LI,4)}, v{T+1}, {sr(P_LDT,2)}")
    for r in (G, MX): a(f"v_mul_f32 v{r}, 0xbfb8aa3b, v{r}")
    for r in (G, MX): a(f"v_exp_f32 v{r}, v{r}")
    a("s_nop 0")
    for r in (G, MX): a(f"v_add_f32 v{r}, 1.0, v{r}")
    for r in (G, MX): a(f"v_rcp_f32 v{r}, v{r}")
    a(f"v_lshlrev_b32 v{T}, 4, v{HH}\nv_sub_u32 v{T}, v{VN}, v{T}\nv_mov_b32 v{T+2}, 0xff800000")
    for r in range(16):
        a(f"v_cmp_le_i32 vcc, {r}, v{T}\ns_nop 1")
        for j in range(2): a(f"v_cndmask_b32 v{SS+16*j+r}, v{T+2}, v{SS+16*j+r}, vcc")
    PQ, PV, PS, PH, PG = 128, 160, 192, 208, 216
    for r in range(32): a(f"v_accvgpr_write_b32 a{PQ+r}, v{QF+32+r}\nv_accvgpr_write_b32 a{PV+r}, v{VF+32+r}")
    for r in range(16): a(f"v_accvgpr_write_b32 a{PS+r}, v{SS+16+r}")
    a(f"v_accvgpr_write_b32 a{PG}, v{MX}")
    CA, CB, CD = 192, 193, 194
    a(f"""
    v_and_b32 v{T}, 15, v{LANE}
    s_lshl_b32 s{sA}, s{sH}, 5
    v_lshl_add_u32 v{T+2}, v{T}, 1, s{sA}
    global_load_ushort v{CA}, v{T+2}, {sr(P_LRE,2)}
    global_load_ushort v{CB}, v{T+2}, {sr(P_LIM,2)}
    global_load_ushort v{CD}, v{T+2}, {sr(P_LDT,2)}
    """)
    ACW = 220
    for tt in range(4):
        a(f"global_load_dwordx4 {ar(ACW+8*tt,4)}, v{BA}, {sr(P_CRE,2)}\nglobal_load_dwordx4 {ar(ACW+8*tt+4,4)}, v{BA}, {sr(P_CIM,2)}")
        if tt < 3: a(f"v_add_u32 v{BA}, 32768, v{BA}")
    a(f"s_lshl_b32 s{sA}, s{sW}, 12\nv_add_u32 v{BA+1}, {H_K}, v{L16}\nv_add_u32 v{GA}, s{sA}, v{BA+1}\ns_waitcnt vmcnt(8)")
    def c_put(r):
        for tt in range(4): a(f"ds_write_b128 v{GA}, {ar(ACW+8*tt+4*r,4)} offset:{1024*tt}")
    def c_get(r):
        for tile in range(16): a(f"ds_read_b128 {ar(8*tile+4*r,4)}, v{BA+1} offset:{1024*tile}")
    TT, LE, LM = 128, 136, 144
    unpack8(a, LE, LR); unpack8(a, LM, LR + 4); unpack8(a, TT, LI)
    for j in range(8): a(f"v_mov_b32 v{A2+j}, v{LE+j}\nv_mov_b32 v{B2+j}, v{LM+j}")
    dtprep(a, A2, B2, TT, 8)
    pw(a, LR, LI, A2, B2, None, 8, TT)
    for j in range(8):
        a(f"""
        v_mul_f32 v{TT}, v{LE+j}, v{LE+j}
        v_fmac_f32 v{TT}, v{LM+j}, v{LM+j}
        v_rcp_f32 v{TT}, v{TT}
        v_add_f32 v{TT+1}, -1.0, v{LR+j}
        v_mul_f32 v{TT+2}, v{TT+1}, v{LE+j}
        v_fmac_f32 v{TT+2}, v{LI+j}, v{LM+j}
        v_mul_f32 v{TT+3}, v{LI+j}, v{LE+j}
        v_fma_f32 v{TT+3}, -v{TT+1}, v{LM+j}, v{TT+3}
        v_mul_f32 v{LE+j}, v{TT+2}, v{TT}
        v_mul_f32 v{LM+j}, v{TT+3}, v{TT}
        """)
    for d in (1, 2, 4, 8):
        dp = f"row_shr:{d} row_mask:0xf bank_mask:0xf bound_ctrl:1"
        for j in range(2):
            R, I = RI + 16 * j, RI + 16 * j + 8
            for c in range(8): a(f"v_mov_b32 v{TT+c}, v{R+c}")
            for c in range(8): a(f"v_fmac_f32_dpp v{R+c}, v{R+c}, v{LR+c} {dp}")
            for c in range(8): a(f"v_fmac_f32_dpp v{R+c}, -v{I+c}, v{LI+c} {dp}")
            for c in range(8): a(f"v_fmac_f32_dpp v{I+c}, v{I+c}, v{LR+c} {dp}")
            for c in range(8): a(f"v_fmac_f32_dpp v{I+c}, v{TT+c}, v{LI+c} {dp}")
        if d < 8:
            for c in range(8):
                a(f"v_mul_f32 v{TT}, v{LI+c}, v{LI+c}\nv_add_f32 v{TT+1}, v{LR+c}, v{LR+c}\nv_fma_f32 v{LR+c}, v{LR+c}, v{LR+c}, -v{TT}\nv_mul_f32 v{LI+c}, v{TT+1}, v{LI+c}")
    a(f"v_and_b32 v{T+2}, 15, v{LANE}\nv_add_u32 v{T+2}, 1, v{T+2}\nv_cvt_f32_u32 v{T+2}, v{T+2}")
    pw(a, LR, LI, A2, B2, f"v{T+2}", 8, TT)
    dp = "row_bcast:15 row_mask:0xa bank_mask:0xf"
    for j in range(2):
        R, I = RI + 16 * j, RI + 16 * j + 8
        for c in range(8): a(f"v_fmac_f32_dpp v{R+c}, v{R+c}, v{LR+c} {dp}")
        for c in range(8): a(f"v_fmac_f32_dpp v{R+c}, -v{I+c}, v{LI+c} {dp}")
        for c in range(8): a(f"v_fmac_f32_dpp v{I+c}, v{I+c}, v{LR+c} {dp}")
        for c in range(8): a(f"v_fmac_f32_dpp v{I+c}, v{R+c}, v{LI+c} {dp}")
    a(f"""
    s_lshl_b32 s{sA}, s{sW}, 7
    s_add_u32 s{sA}, s{sA}, {H_E}
    v_lshl_add_u32 v{T+2}, v{HH}, 5, s{sA}
    s_mov_b32 exec_lo, 0x80000000
    s_mov_b32 exec_hi, 0x80000000
    """)
    for j in range(2):
        for q in range(4): a(f"ds_write_b128 v{T+2}, {vr(RI + 16*j + 4*q, 4)} offset:{512*j + 64*(q>>1) + 16*(q&1)}")
    a("s_mov_b64 exec, -1")
    a(f"v_lshlrev_b32 v{CA}, 16, v{CA}\nv_lshlrev_b32 v{CB}, 16, v{CB}\nv_lshlrev_b32 v{CD}, 16, v{CD}")
    dtprep(a, CA, CB, CD, 1)
    U, W_ = 196, 198
    pw(a, U, U + 1, CA, CB, "0x42000000", 1, CD)
    pw(a, W_, W_ + 1, CA, CB, "0x43800000", 1, CD)
    a(f"v_add_u32 v{T+2}, 1, v{VN}\nv_cvt_f32_u32 v{T+2}, v{T+2}")
    pw(a, LR, LI, A2, B2, f"v{T+2}", 8, TT)
    EE = 200
    a(f"v_lshlrev_b32 v{T}, 2, v{T}\nv_add_u32 v{T+2}, {H_E}, v{T}\ns_waitcnt vmcnt(0)")
    c_put(0); a("s_waitcnt lgkmcnt(0)\ns_barrier")
    c_get(0); a("s_waitcnt lgkmcnt(0)\ns_barrier")
    c_put(1); a("s_waitcnt lgkmcnt(0)\ns_barrier")
    c_get(1); a("s_waitcnt lgkmcnt(0)\ns_barrier")
    for s_ in range(8): a(f"ds_read2_b32 {vr(EE+2*s_,2)}, v{T+2} offset0:{32*s_} offset1:{32*s_+16}")
    AC_ = 216
    def cmac(M_, Er):
        a(f"""
        v_fma_f32 v{AC_+2}, v{M_}, v{AC_}, v{Er}
        v_fma_f32 v{AC_+3}, v{M_}, v{AC_+1}, v{Er+1}
        v_fma_f32 v{AC_+2}, -v{M_+1}, v{AC_+1}, v{AC_+2}
        v_fma_f32 v{AC_+1}, v{M_+1}, v{AC_}, v{AC_+3}
        v_mov_b32 v{AC_}, v{AC_+2}
        """)
    a(f"s_waitcnt lgkmcnt(0)\nv_mov_b32 v{AC_}, v{EE}\nv_mov_b32 v{AC_+1}, v{EE+1}")
    for s_ in range(1, 8): cmac(U, EE + 2 * s_)
    a(f"""
    v_min_u32 v{AC_}, -2, v{AC_}
    v_min_u32 v{AC_+1}, -2, v{AC_+1}
    v_lshlrev_b32 v{T+1}, 1, v{T}
    s_lshl_b32 s{sA3}, s{sH}, 7
    s_add_u32 s{sA3}, s{sA3}, {WS_A}
    s_lshl_b32 s{sA}, s{sB}, 12
    s_add_u32 s{sA}, s{sA}, s{sA3}
    s_cmp_eq_u32 s{sW}, 0
    s_cselect_b32 s{sA}, s{sA}, 0x70000000
    buffer_store_dwordx2 {vr(AC_,2)}, v{T+1}, {WS}, s{sA} offen sc1
    v_and_b32 v{T+2}, 7, v{LANE}
    v_cmp_ge_u32 {sr(sM,2)}, s{sB}, v{T+2}
    v_lshlrev_b32 v{T+2}, 2, v{T+2}
    v_mov_b32 v{AC_}, 0
    v_mov_b32 v{AC_+1}, 0
    s_mov_b32 s{sCnt}, 0
    """)
    a.label('L_h_wk')
    a(f"""
    buffer_load_dword v{AC_+2}, v{T+2}, {DBG}, 0 offen offset:{DBG_DN + DBG_KV0} sc1
    s_waitcnt vmcnt(0)
    v_cmp_gt_u32 vcc, 32, v{AC_+2}
    s_and_b64 vcc, vcc, {sr(sM,2)}
    s_cbranch_vccz L_h_wa
    """)
    poll_fail(a, 'L_h_wk')
    a.label('L_h_wa')
    a(f"""
    s_cmp_ge_u32 s{sCnt}, s{sB}
    s_cbranch_scc1 L_h_wd
    buffer_load_dwordx2 {vr(220,2)}, v{T+1}, {WS}, s{sA3} offen sc1
    s_waitcnt vmcnt(0)
    v_max_u32 v{AC_+2}, v220, v221
    v_cmp_eq_u32 vcc, -1, v{AC_+2}
    s_cbranch_vccz L_h_wb
    """)
    poll_fail(a, 'L_h_wa')
    a.label('L_h_wb')
    cmac(W_, 220)
    a(f"s_add_u32 s{sCnt}, s{sCnt}, 1\ns_add_u32 s{sA3}, s{sA3}, 4096\ns_branch L_h_wa")
    a.label('L_h_wd')
    a(f"s_lshl_b32 s{sA}, s{sW}, 10\ns_add_u32 s{sA}, s{sA}, {H_C}\nv_add_u32 v{T+2}, s{sA}, v{T}")
    for s_ in range(8):
        a(f"ds_write2_b32 v{T+2}, v{AC_}, v{AC_+1} offset0:{32*s_} offset1:{32*s_+16}")
        if s_ < 7: cmac(U, EE + 2 * s_)
    a(f"""
    s_lshl_b32 s{sA2}, s{sW}, 7
    s_add_u32 s{sA}, s{sA}, s{sA2}
    v_lshl_add_u32 v{T+2}, v{HH}, 5, s{sA}
    s_waitcnt lgkmcnt(0)
    """)
    CC = 192
    for j in range(2):
        for q in range(4): a(f"ds_read_b128 {vr(CC + 16*j + 4*q, 4)}, v{T+2} offset:{512*j + 64*(q>>1) + 16*(q&1)}")
    a(f"v_add_f32 v{T}, v{G}, v{G}\nv_add_f32 v{T+1}, v{MX}, v{MX}\ns_waitcnt lgkmcnt(0)")
    for j in range(2):
        R, I, cr, ci = RI + 16 * j, RI + 16 * j + 8, CC + 16 * j, CC + 16 * j + 8
        for c in range(8):
            a(f"""
            v_fmac_f32 v{R+c}, v{LR+c}, v{cr+c}
            v_fmac_f32 v{I+c}, v{LR+c}, v{ci+c}
            v_fma_f32 v{R+c}, -v{LI+c}, v{ci+c}, v{R+c}
            v_fmac_f32 v{I+c}, v{LI+c}, v{cr+c}
            v_mul_f32 v{cr+c}, v{R+c}, v{LE+c}
            v_mul_f32 v{ci+c}, v{R+c}, v{LM+c}
            v_fma_f32 v{cr+c}, -v{I+c}, v{LM+c}, v{cr+c}
            v_fmac_f32 v{ci+c}, v{I+c}, v{LE+c}
            v_mul_f32 v{cr+c}, v{cr+c}, v{T+j}
            v_mul_f32_e64 v{ci+c}, -v{ci+c}, v{T+j}
            """)
        for r in range(8): a(f"v_cvt_pk_bf16_f32 v{HF+8*j+r}, v{cr+2*r}, v{cr+2*r+1}")
    for r in range(8): a(f"v_accvgpr_write_b32 a{PH+r}, v{HF+8+r}")
    a(f"""
    v_bfe_u32 v{t+4}, v{LANE}, 2, 2
    v_bfe_u32 v{t+5}, v{LANE}, 4, 1
    v_and_b32 v{t+6}, 1, v{LANE}
    v_bfe_u32 v{t+7}, v{LANE}, 1, 1
    v_lshl_add_u32 v{t+8}, v{t+6}, 1, v{t+7}
    v_lshl_add_u32 v{t+8}, v{t+5}, 2, v{t+8}
    v_lshlrev_b32 v{t+8}, 3, v{t+8}
    v_lshl_add_u32 v{t+9}, v{HH}, 4, v{t+4}
    v_lshl_add_u32 v{t+8}, v{t+9}, 10, v{t+8}
    v_lshl_add_u32 v{WOA}, v{t+4}, 6, v{t+8}
    """)
    for tt in range(1, 4): a(f"v_xor_b32 v{WOA+tt}, {64*tt}, v{WOA}")
    for tt in range(4): a(f"v_add_u32 v{WOA+4+tt}, 0x10000, v{WOA+tt}")
    a(f"s_mov_b32 s{sJ}, 0")
    MINI = P.get('mini', 1)
    if MINI:
        a(f"""
        s_cmp_lg_u32 s{sB}, 7
        s_cbranch_scc1 L_h_nsd
        s_lshl_b32 s{sA2}, s{sW}, 5
        s_add_u32 s{sA2}, s{sA2}, s{sH}
        s_mul_i32 s{sA2}, s{sA2}, {23*1024}
        s_add_u32 s{sA2}, s{sA2}, {WS_ST}
        """)
        for q in range(23):
            a(f"buffer_store_dwordx4 {ar(128+4*q,4)}, v{L16}, {WS}, s{sA2} offen offset:{1024*(q&3)} sc1")
            if q & 3 == 3: a(f"s_add_u32 s{sA2}, s{sA2}, 4096")
        signal('d', DBG_ST, '0', 0)
    hs(5)
    a.label('L_h_seg')
    KMF, VMF, SM, PX, PM, OA_ = 32, 64, 80, 248, 128, 192
    a(f"v_max3_f32 v{MX}, v{SS}, v{SS+1}, v{SS+2}")
    for r in range(3, 15, 2): a(f"v_max3_f32 v{MX}, v{MX}, v{SS+r}, v{SS+r+1}")
    a(f"""
    v_max_f32 v{MX}, v{MX}, v{SS+15}
    s_lshl_b32 s{sA}, s{sSeg}, 17
    s_lshl_b32 s{sA2}, s{sH}, 12
    s_add_u32 s{sA}, s{sA}, s{sA2}
    s_add_u32 s{sA}, s{sA}, {WS_KM}
    s_sub_u32 s{sA2}, s{sSeg}, {P.get('pm0', 0)}
    s_cmp_lt_u32 s{sA2}, {48 - P.get('pm0', 0)}
    s_cselect_b32 s{sA2}, {P.get('pm', 7)}, {P.get('pm6', 3)}
    s_cmp_lt_u32 s{sSeg}, 56
    s_cselect_b32 s{sA2}, s{sA2}, {P.get('pm7', 3)}
    s_cmp_lt_u32 s{sSeg}, 60
    s_cselect_b32 s{sA2}, s{sA2}, 0
    s_or_b32 s{sA2}, s{sA2}, s{sSeg}
    s_min_u32 s{sA2}, s{sA2}, 62
    s_sub_i32 s{sA2}, s{sA2}, s{sSeg}
    s_lshl_b32 s{sA2}, s{sA2}, 17
    s_add_u32 s{sA2}, s{sA}, s{sA2}
    s_mov_b32 s{sA4}, 0x3e0293ee
    s_lshl_b32 s{sA3}, s{sW}, 12
    s_add_u32 s{sA3}, s{sA3}, {H_K}
    v_add_u32 v{T+1}, s{sA3}, v{L16}
    v_add_u32 v{T+2}, 2048, v{VKM}
    """)
    for tau in range(4): a(f"v_mov_b64 {vr(VMF + 4*tau + 2, 2)}, 0")
    a(f"v_mov_b64 {vr(PM+2,2)}, 0")
    a.label('L_h_pr')
    a(f"""
    buffer_load_dword v{T}, off, {WS}, s{sA2} offset:3072 sc1
    s_waitcnt vmcnt(0)
    v_cmp_eq_u32 vcc, -1, v{T}
    s_cbranch_vccz L_h_ld
    """)
    poll_fail(a, 'L_h_pr')
    a.label('L_h_pf')
    a(f"s_add_u32 s{sSpin}, s{sSpin}, 1\ns_cmp_gt_u32 s{sSpin}, {HSPIN}\ns_cbranch_scc1 L_end")
    a.label('L_h_ld')
    LD = 192
    for k in range(4): a(f"buffer_load_dwordx4 {vr(LD + 4*k, 4)}, v{L16}, {WS}, s{sA} offen offset:{1024*k} sc1")
    a("s_waitcnt vmcnt(0)")
    hs(6)
    for k in range(4): a(f"ds_write_b128 v{T+1}, {vr(LD + 4*k, 4)} offset:{1024*k}")
    a(f"v_max3_u32 v{T}, v{LD}, v{LD+1}, v{LD+2}")
    for r in range(3, 15, 2): a(f"v_max3_u32 v{T}, v{T}, v{LD+r}, v{LD+r+1}")
    a(f"v_max_u32 v{T}, v{T}, v{LD+15}\nv_cmp_eq_u32 vcc, -1, v{T}\ns_cbranch_vccnz L_h_pf")
    for k in range(8):
        o = ((k >> 1) & 1) * 128 + (k & 1) * 32
        a(f"ds_read2_b64 {vr(KMF + 4*k, 4)}, v{VKM if k < 4 else T+2} offset0:{o} offset1:{o+16}")
    for tau in range(4): a(f"ds_read2st64_b32 {vr(VMF + 4*tau, 2)}, v{VVM} offset0:{4*tau} offset1:{4*tau+2}")
    for k in range(8):
        a(f"s_waitcnt lgkmcnt({11-k})")
        mf(a, vr(SM, 16), vr(KMF + 4 * k, 4), vr(QF + 4 * k, 4), vr(SM, 16) if k else 0)
    a("s_waitcnt lgkmcnt(0)\ns_nop 11")
    a(f"""
    v_max3_f32 v{T}, v{MX}, v{SM}, v{SM+1}
    v_max3_f32 v{T}, v{T}, v{SM+2}, v{SM+3}
    v_mov_b32 v{T+1}, v{T}
    s_nop 1
    v_permlane32_swap_b32 v{T}, v{T+1}
    v_max_f32 v{T}, v{T}, v{T+1}
    v_mul_f32 v{T}, s{sA4}, v{T}
    """)
    ev = [SM + r for r in range(4)] + [SS + r for r in range(16)]
    for r in ev: a(f"v_fma_f32 v{r}, v{r}, s{sA4}, -v{T}")
    for r in ev: a(f"v_exp_f32 v{r}, v{r}")
    a(f"v_cvt_pk_bf16_f32 v{PM}, v{SM}, v{SM+1}\nv_cvt_pk_bf16_f32 v{PM+1}, v{SM+2}, v{SM+3}")
    for r in range(8): a(f"v_cvt_pk_bf16_f32 v{PX+r}, v{SS+2*r}, v{SS+2*r+1}")
    sm = [f"v_add_f32 v{T}, v{ev[0]}, v{ev[1]}"] + [f"v_add_f32 v{T}, v{T}, v{r}" for r in ev[2:]]
    sm += [f"v_mov_b32 v{T+1}, v{T}", f"v_sub_f32 v{T+2}, 1.0, v{G}", "s_nop 0", f"v_permlane32_swap_b32 v{T}, v{T+1}", f"v_add_f32 v{T}, v{T}, v{T+1}",
           f"v_rcp_f32 v{T}, v{T}", "s_nop 0", f"v_mul_f32 v{T}, v{T}, v{T+2}"]
    WF = 32
    wrd = lambda tile: [f"ds_read_b64_tr_b16 {vr(WF + 32*(tile&1) + 4*k + 2*pp, 2)}, v{WOA + 4*(k>>2) + (tile&3)} offset:{(32*((k>>1)&1) + 8*(k&1) + 4*pp)*1024 + 256*(tile>>2)}"
                        for k in range(8) for pp in range(2)]
    rd = wrd(0)
    OB = [192, 208, 132, 148]
    OB = [192, 208, 132, 80]
    def onorm(tau):
        L_ = [f"v_mul_f32 v{OB[tau]+r}, v{OB[tau]+r}, v{T}" for r in range(16)]
        L_ += [f"v_cvt_pk_bf16_f32 v{QF+8*tau+r}, v{OB[tau]+2*r}, v{OB[tau]+2*r+1}" for r in range(8)]
        return L_
    n = 0
    for tau in range(4):
        D = vr(OB[tau], 16)
        for k in range(3):
            if k == 0: mf(a, D, vr(VMF + 4 * tau, 4), vr(PM, 4), 0)
            else: mf(a, D, vr(VF + 8 * tau + 4 * (k - 1), 4), vr(PX + 4 * (k - 1), 4), D)
            for _ in range(2):
                if rd: a(rd.pop(0))
            if n == 6: sm += onorm(0)
            if n == 9: sm += onorm(1)
            for _ in range(6):
                if sm: a(sm.pop(0))
            n += 1
    for l in sm + onorm(2) + onorm(3): a(l)
    hs(7)
    a(f"""
    s_lshl_b32 s{sA}, s{sSeg}, 20
    s_lshl_b32 s{sA2}, s{sH}, 10
    s_add_u32 s{sA}, s{sA}, s{sA2}
    s_add_u32 s{sA}, s{sA}, {WS_PART}
    """)
    CT = 128
    def epi(tile):
        D = 192 + 16 * (tile & 1); c = CT + 8 * (tile & 1)
        L_ = []
        for u in range(2):
            L_ += [f"v_cvt_pk_bf16_f32 v{c+4*u+r}, v{D+8*u+2*r}, v{D+8*u+2*r+1}\nv_min_u32 v{c+4*u+r}, -2, v{c+4*u+r}" for r in range(4)]
        for u in range(2):
            L_ += [f"buffer_store_dwordx4 {vr(c+4*u,4)}, v{L16}, {WS}, s{sA} offen sc1\ns_add_u32 s{sA}, s{sA}, 32768"]
        return L_
    for tile in range(16):
        D = vr(192 + 16 * (tile & 1), 16)
        rd = wrd(tile + 1) if tile < 15 else []
        ep = epi(tile - 1) if tile else []
        for k in range(10):
            if k == 2: a("s_waitcnt lgkmcnt(0)")
            if k < 2: mf(a, D, ar(8 * tile + 4 * k, 4), vr(HF + 4 * k, 4), D if k else 0)
            else: mf(a, D, vr(WF + 32 * (tile & 1) + 4 * (k - 2), 4), vr(QF + 4 * (k - 2), 4), D)
            if k >= 2:
                for _ in range(2):
                    if rd: a(rd.pop(0))
            if ep and k >= 6 and len(ep) <= 2: a(ep.pop(0))
            elif ep and k >= 1 and len(ep) > 2:
                a(ep.pop(0)); a(ep.pop(0))
        assert not ep and not rd
    a("s_nop 12")
    for l in epi(15): a(l)
    hs(8)
    a(f"""
    s_lshl_b32 s{sA4}, s{sSeg}, 7
    s_add_u32 s{sA4}, s{sA4}, {WS_CNT}
    v_mov_b32 v220, 1
    """)
    if MINI: a(f"s_cmp_eq_u32 s{sB}, 7\ns_cselect_b32 s{sJ}, 3, s{sJ}\ns_cbranch_scc1 L_h_s7")
    a(f"s_cmp_lg_u32 s{sJ}, 0\ns_cbranch_scc1 L_h_sg")
    for r in range(32): a(f"v_accvgpr_read_b32 v{QF+r}, a{PQ+r}\nv_accvgpr_read_b32 v{VF+r}, a{PV+r}")
    for r in range(16): a(f"v_accvgpr_read_b32 v{SS+r}, a{PS+r}")
    for r in range(8): a(f"v_accvgpr_read_b32 v{HF+r}, a{PH+r}")
    a.label('L_h_sg')
    a(f"""
    v_accvgpr_read_b32 v{T}, a{PG}
    v_accvgpr_write_b32 a{PG}, v{G}
    s_xor_b32 s{sSeg}, s{sSeg}, 4
    s_add_u32 s{sJ}, s{sJ}, 1
    v_mov_b32 v{G}, v{T}
    L_h_s7:
    s_waitcnt vmcnt(0)
    s_mov_b64 exec, 1
    buffer_atomic_add v220, off, {WS}, s{sA4}
    s_mov_b64 exec, -1
    s_cmp_eq_u32 s{sJ}, 1
    s_cbranch_scc1 L_h_seg
    """)
    SELR, XS, DS_ = 216, 208, 212
    XU, DU = 224, 232
    def red_prep(SELR, DS_):
        a(f"""
        s_lshl_b32 s{sA2}, s{sH}, 5
        v_lshlrev_b32 v{T+1}, 4, v{HH}
        v_lshl_add_u32 v{T+2}, v{VN}, 10, v{T+1}
        v_add_u32 v{T+1}, s{sA2}, v{T+1}
        global_load_dwordx4 {vr(DS_,4)}, v{T+1}, {sr(P_DSK,2)}
        v_lshlrev_b32 v{MX}, 1, v{T+2}
        v_bfe_u32 v{t}, v{LANE}, 2, 1
        v_bfe_u32 v{t+1}, v{LANE}, 3, 2
        v_and_b32 v{t+2}, 3, v{LANE}
        v_lshl_add_u32 v{t+1}, v{t+1}, 2, v{t+2}
        v_cmp_eq_u32 vcc, v{t}, v{HH}
        v_mov_b32 v{t+3}, 64
        s_mov_b32 s{sA2}, 0x3f80
        v_cndmask_b32 v{t+1}, v{t+3}, v{t+1}, vcc
        v_and_b32 v{t+2}, 1, v{t+1}
        v_lshlrev_b32 v{t+2}, 4, v{t+2}
        v_lshlrev_b32 v{t+2}, v{t+2}, s{sA2}
        v_lshrrev_b32 v{t+1}, 1, v{t+1}
        """)
        for d in range(4): a(f"v_cmp_eq_u32 vcc, {d}, v{t+1}\ns_nop 1\nv_cndmask_b32 v{SELR+d}, 0, v{t+2}, vcc")
    red_prep(SELR, DS_)
    a.label('L_h_red')
    a(f"""
    s_lshl_b32 s{sA3}, s{sSeg}, 15
    s_lshl_b32 s{sA2}, s{sH}, 5
    s_add_u32 s{sA3}, s{sA3}, s{sA2}
    buffer_load_dwordx4 {vr(XS,4)}, v{T+2}, {sr(S_X,4)}, s{sA3} offen
    s_lshl_b32 s{sA4}, s{sSeg}, 7
    s_add_u32 s{sA4}, s{sA4}, {WS_CNT}
    s_lshl_b32 s{sA}, s{sSeg}, 20
    s_lshl_b32 s{sA2}, s{sH}, 15
    s_add_u32 s{sA}, s{sA}, s{sA2}
    s_add_u32 s{sA}, s{sA}, {WS_PART}
    s_lshl_b32 s{sA3}, s{sA3}, 1
    v_lshlrev_b32 v221, 10, v{VN}
    s_cmp_ge_u32 s{sSeg}, {56 if P.get('sg', 1) else 64}
    s_cbranch_scc1 L_h_rf
    """)
    a.label('L_h_wc')
    a(f"""
    buffer_load_dword v220, off, {WS}, s{sA4} sc1
    s_waitcnt vmcnt(0)
    v_cmp_gt_u32 vcc, 32, v220
    s_cbranch_vccz L_h_rd
    """)
    poll_fail(a, 'L_h_wc', P.get('slc', 2))
    a.label('L_h_rf')
    a(f"""
    s_mov_b64 exec, 0xffffffff
    buffer_load_dword v220, v221, {WS}, s{sA} offen offset:1020 sc1
    s_add_u32 s{sSpin}, s{sSpin}, 1
    s_cmp_gt_u32 s{sSpin}, {HSPIN}
    s_cbranch_scc1 L_end
    s_waitcnt vmcnt(0)
    v_cmp_eq_u32 vcc, -1, v220
    s_mov_b64 exec, -1
    s_cbranch_vccz L_h_rd
    s_sleep 2
    s_branch L_h_rf
    """)
    a.label('L_h_rd')
    hs(9)
    for k in range(32):
        if k & 3 == 0: a(f"s_add_u32 s{sA2}, s{sA}, {1024*k}")
        a(f"buffer_load_dwordx4 {vr(32+4*k,4)}, v{L16}, {WS}, s{sA2} offen offset:{1024*(k&3)} sc1")
    a("s_waitcnt vmcnt(32)")
    unpack8(a, XU, XS); unpack8(a, DU, DS_)
    for r in range(8): a(f"v_mul_f32 v{XU+r}, v{XU+r}, v{DU+r}")
    a(f"v_mov_b32 v{T}, 0")
    for k in range(32):
        a(f"s_waitcnt vmcnt({31-k})")
        mf(a, vr(192, 16), vr(SELR, 4), vr(32 + 4 * k, 4), vr(192, 16) if k else 0)
        a(f"v_max3_u32 v{T}, v{T}, v{32+4*k}, v{33+4*k}\nv_max3_u32 v{T}, v{T}, v{34+4*k}, v{35+4*k}")
    a(f"v_cmp_eq_u32 vcc, -1, v{T}\ns_cbranch_vccnz L_h_rf\ns_nop 7")
    for r in range(8): a(f"v_fmac_f32 v{192+r}, v{XU+r}, v{G}")
    OF = P.get('of', '')
    a(f"""
    buffer_store_dwordx4 v[192:195], v{MX}, {sr(S_OUT,4)}, s{sA3} offen {OF}
    buffer_store_dwordx4 v[196:199], v{MX}, {sr(S_OUT,4)}, s{sA3} offen offset:16 {OF}
    v_accvgpr_read_b32 v{G}, a{PG}
    s_xor_b32 s{sSeg}, s{sSeg}, 4
    s_add_u32 s{sJ}, s{sJ}, 1
    s_cmp_eq_u32 s{sJ}, 3
    s_cbranch_scc1 L_h_red
    """)
    a.label('L_h_done')
    if P.get('stat'):
        a("s_waitcnt vmcnt(0)"); hs(10); a("s_waitcnt lgkmcnt(0)")
        for k in range(11): a(f"v_mov_b32 v{32+k}, s{74+2*k}")
        a(f"v_mov_b32 v43, s98\ns_lshl_b32 s{sA}, s{sB}, 5\ns_add_u32 s{sA}, s{sA}, s{sH}\ns_lshl_b32 s{sA}, s{sA}, 2\ns_add_u32 s{sA}, s{sA}, s{sW}\ns_lshl_b32 s{sA}, s{sA}, 6\ns_add_u32 s{sA}, s{sA}, {(49 << 20) + (512 << 10)}\ns_mov_b64 exec, 1")
        for q in range(3): a(f"buffer_store_dwordx4 {vr(32+4*q,4)}, v{L16}, {WS}, s{sA} offen offset:{16*q}")
        a("s_mov_b64 exec, -1")
    a(f"""
    s_cmp_ge_u32 s{sB}, 2
    s_cbranch_scc1 {'L_h_mini' if MINI else 'L_end'}
    {'s_sub_u32 s%d, 7, s%d' % (sB, sB) if P.get('r2', 0) else 's_add_u32 s%d, s%d, 6' % (sB, sB)}
    s_waitcnt vmcnt(0)
    s_branch L_h_again
    """)
    if not MINI: return
    a.label('L_h_mini')
    a(f"""
    s_sub_u32 s{sA3}, s{sB}, 2
    s_cmp_ge_u32 s{sA3}, 4
    s_cbranch_scc1 L_end
    s_add_u32 s{sSeg}, s{sB}, 58
    s_add_u32 s{sB}, s{sB}, 6
    s_mov_b32 s{sSpin}, 0
    s_lshl_b32 s{sA}, s{sW}, 8
    """)
    AQ, AV, AH, AC_2 = 128, 160, 192, ACW
    for i in range(8): a(f"v_add_u32 v{WOA+i}, s{sA}, v{WOA+i}")
    for tt in range(4):
        for k in range(8):
            for pp in range(2): a(f"ds_read_b64_tr_b16 {ar(32*tt + 4*k + 2*pp, 2)}, v{WOA + 4*(k>>2) + tt} offset:{(32*((k>>1)&1) + 8*(k&1) + 4*pp)*1024}")
    SELM, XM = 20, 24
    a("s_waitcnt lgkmcnt(0)")
    red_prep(SELM, 244)
    a(f"""
    s_lshl_b32 s{sWoo}, s{sSeg}, 15
    s_lshl_b32 s{sA2}, s{sH}, 5
    s_add_u32 s{sWoo}, s{sWoo}, s{sA2}
    buffer_load_dwordx4 v[240:243], v{T+2}, {sr(S_X,4)}, s{sWoo} offen
    s_lshl_b32 s{sWoo}, s{sWoo}, 1
    s_lshl_b32 s{sA}, s{sW}, 4
    v_add_u32 v{VKV}, s{sA}, v{MX}
    s_cmp_lg_u32 s{sW}, 0
    s_cbranch_scc1 L_m_st
    """)
    a.label('L_m_w0')
    a(f"buffer_load_dword v{T}, off, {DBG}, 0 offset:{DBG_DN + DBG_ST} sc1\ns_waitcnt vmcnt(0)\nv_cmp_eq_u32 vcc, 0, v{T}\ns_cbranch_vccz L_m_st")
    poll_fail(a, 'L_m_w0', 16)
    a.label('L_m_st')
    a(f"""
    s_waitcnt vmcnt(0)
    s_barrier
    s_lshl_b32 s{sA2}, s{sA3}, 5
    s_add_u32 s{sA2}, s{sA2}, s{sH}
    s_mul_i32 s{sA2}, s{sA2}, {23*1024}
    s_add_u32 s{sA2}, s{sA2}, {WS_ST}
    """)
    for q in range(23):
        dst = ar(AQ + 4 * q, 4) if q < 16 else vr(SS + 4 * (q - 16), 4) if q < 20 else ar(AH + 4 * (q - 20), 4) if q < 22 else vr(248, 4)
        a(f"buffer_load_dwordx4 {dst}, v{L16}, {WS}, s{sA2} offen offset:{1024*(q&3)} sc1")
        if q & 3 == 3: a(f"s_add_u32 s{sA2}, s{sA2}, 4096")
    unpack8(a, 32, 240); unpack8(a, 40, 244)
    for r in range(8): a(f"v_mul_f32 v{32+r}, v{32+r}, v{40+r}")
    a(f"s_bitcmp1_b32 s{sW}, 0\ns_cselect_b64 vcc, -1, 0\ns_mov_b32 s{sA4}, 0x3e0293ee\ns_waitcnt vmcnt(0)\nv_mov_b32 v{G}, v248")
    for r in range(4): a(f"v_cndmask_b32 v{XM+r}, v{32+r}, v{36+r}, vcc")
    for r in range(4): a(f"v_mul_f32 v{XM+r}, v{XM+r}, v{G}")
    LX = XA
    a(f"v_max3_f32 v{MX}, v{SS}, v{SS+1}, v{SS+2}")
    for r in range(3, 15, 2): a(f"v_max3_f32 v{MX}, v{MX}, v{SS+r}, v{SS+r+1}")
    a(f"""
    v_max_f32 v{MX}, v{MX}, v{SS+15}
    v_mov_b32 v{T+1}, v{MX}
    s_nop 1
    v_permlane32_swap_b32 v{MX}, v{T+1}
    v_max_f32 v{MX}, v{MX}, v{T+1}
    v_mul_f32 v{T}, s{sA4}, v{MX}
    """)
    for r in range(16): a(f"v_fma_f32 v{SS+r}, v{SS+r}, s{sA4}, -v{T}")
    for r in range(16): a(f"v_exp_f32 v{SS+r}, v{SS+r}")
    for r in range(8): a(f"v_cvt_pk_bf16_f32 v{248+r}, v{SS+2*r}, v{SS+2*r+1}")
    a(f"v_add_f32 v{LX}, v{SS}, v{SS+1}")
    for r in range(2, 16): a(f"v_add_f32 v{LX}, v{LX}, v{SS+r}")
    for tau in range(4):
        for u in range(2): mf(a, vr(32 + 16 * tau, 16), ar(AV + 8 * tau + 4 * u, 4), vr(248 + 4 * u, 4), vr(32 + 16 * tau, 16) if u else 0)
    a("s_nop 12")
    for r in range(32): a(f"v_cvt_pk_bf16_f32 v{96+r}, v{32+2*r}, v{33+2*r}")
    YC, YX = 96, 160
    a("s_nop 1")
    for tt in range(4):
        for k in range(8): mf(a, vr(YX + 16 * tt, 16), ar(32 * tt + 4 * k, 4), vr(96 + 4 * k, 4), vr(YX + 16 * tt, 16) if k else 0)
    a("s_nop 7")
    for tt in range(4):
        for k in range(2): mf(a, vr(YC + 16 * tt, 16), ar(AC_2 + 8 * tt + 4 * k, 4), ar(AH + 4 * k, 4), vr(YC + 16 * tt, 16) if k else 0)
    PMm, LDm = 240, 244
    a(f"""
    s_lshl_b32 s{sA}, s{sSeg}, 17
    s_lshl_b32 s{sA2}, s{sH}, 12
    s_add_u32 s{sA}, s{sA}, s{sA2}
    s_add_u32 s{sA}, s{sA}, {WS_KM}
    s_cmp_ge_u32 s{sSeg}, {P.get('mfp', 63)}
    s_cselect_b32 s{sA2}, {1 << 17}, 0
    s_sub_u32 s{sA2}, s{sA}, s{sA2}
    s_lshl_b32 s{sA3}, s{sW}, 10
    s_add_u32 s{sA}, s{sA}, s{sA3}
    s_add_u32 s{sA3}, s{sA3}, {H_K}
    v_add_u32 v{XA+1}, s{sA3}, v{L16}
    s_lshl_b32 s{sA3}, s{sW}, 12
    v_subrev_u32 v{VKM}, s{sA3}, v{VKM}
    v_subrev_u32 v{VVM}, s{sA3}, v{VVM}
    v_add_u32 v{T+2}, 2048, v{VKM}
    v_sub_f32 v{G}, 1.0, v{G}
    s_lshl_b32 s{sWo1}, s{sSeg}, 20
    s_add_u32 s{sWo1}, s{sWo1}, {WS_PART}
    s_lshl_b32 s{sA3}, s{sH}, 15
    s_add_u32 s{sWo2}, s{sWo1}, s{sA3}
    s_lshl_b32 s{sA3}, s{sW}, 13
    s_add_u32 s{sWo2}, s{sWo2}, s{sA3}
    s_add_u32 s{sSlot}, s{sWo2}, 4096
    s_lshl_b32 s{sA3}, s{sH}, 10
    s_add_u32 s{sWo1}, s{sWo1}, s{sA3}
    s_lshl_b32 s{sA3}, s{sW}, 18
    s_add_u32 s{sWo1}, s{sWo1}, s{sA3}
    """)
    for tau in range(4): a(f"v_mov_b64 {vr(VMF + 4*tau + 2, 2)}, 0")
    a(f"v_mov_b64 {vr(PMm+2,2)}, 0")
    a("s_getpc_b64 s[60:61]")
    a.label('L_m_pc')
    a(f"v_lshlrev_b32 v{T}, 3, v{L16}\nv_min_u32 v{T}, L_m_fin-L_m_pc, v{T}\nglobal_load_dword v{T}, v{T}, s[60:61]")
    hs(5)
    a.label('L_m_pr')
    a(f"buffer_load_dword v{T}, off, {WS}, s{sA2} offset:3072 sc1\ns_waitcnt vmcnt(0)\nv_cmp_eq_u32 vcc, -1, v{T}\ns_cbranch_vccz L_m_ld")
    poll_fail(a, 'L_m_pr', P.get('mps', 2))
    a.label('L_m_pf')
    a(f"s_add_u32 s{sSpin}, s{sSpin}, 1\ns_cmp_gt_u32 s{sSpin}, {HSPIN}\ns_cbranch_scc1 L_end")
    a.label('L_m_ld')
    a(f"""
    buffer_load_dwordx4 {vr(LDm,4)}, v{L16}, {WS}, s{sA} offen sc1
    s_waitcnt vmcnt(0)
    ds_write_b128 v{XA+1}, {vr(LDm,4)}
    v_max3_u32 v{T}, v{LDm}, v{LDm+1}, v{LDm+2}
    v_max_u32 v{T}, v{T}, v{LDm+3}
    v_cmp_eq_u32 vcc, -1, v{T}
    s_cbranch_vccnz L_m_pf
    s_waitcnt lgkmcnt(0)
    s_barrier
    """)
    for k in range(8):
        o = ((k >> 1) & 1) * 128 + (k & 1) * 32
        a(f"ds_read2_b64 {vr(KMF + 4*k, 4)}, v{VKM if k < 4 else T+2} offset0:{o} offset1:{o+16}")
    for tau in range(4): a(f"ds_read2st64_b32 {vr(VMF + 4*tau, 2)}, v{VVM} offset0:{4*tau} offset1:{4*tau+2}")
    for k in range(8):
        a(f"s_waitcnt lgkmcnt({11-k})")
        mf(a, vr(SM, 16), vr(KMF + 4 * k, 4), ar(AQ + 4 * k, 4), vr(SM, 16) if k else 0)
    hs(6)
    a(f"""
    s_waitcnt lgkmcnt(0)
    s_nop 11
    v_max3_f32 v{T}, v{MX}, v{SM}, v{SM+1}
    v_max3_f32 v{T}, v{T}, v{SM+2}, v{SM+3}
    v_mov_b32 v{T+1}, v{T}
    s_nop 1
    v_permlane32_swap_b32 v{T}, v{T+1}
    v_max_f32 v{T}, v{T}, v{T+1}
    v_mul_f32 v{T}, s{sA4}, v{T}
    """)
    for r in [SM, SM + 1, SM + 2, SM + 3, MX]: a(f"v_fma_f32 v{r}, v{r}, s{sA4}, -v{T}")
    for r in [SM, SM + 1, SM + 2, SM + 3, MX]: a(f"v_exp_f32 v{r}, v{r}")
    a(f"""
    v_add_f32 v{T}, v{SM}, v{SM+1}
    v_add_f32 v{T+1}, v{SM+2}, v{SM+3}
    v_fmac_f32 v{T}, v{LX}, v{MX}
    v_add_f32 v{T}, v{T}, v{T+1}
    v_mov_b32 v{T+1}, v{T}
    s_nop 1
    v_permlane32_swap_b32 v{T}, v{T+1}
    v_add_f32 v{T}, v{T}, v{T+1}
    v_rcp_f32 v{T}, v{T}
    s_nop 0
    v_mul_f32 v{T}, v{T}, v{G}
    """)
    for r in range(4): a(f"v_mul_f32 v{SM+r}, v{SM+r}, v{T}")
    a(f"v_cvt_pk_bf16_f32 v{PMm}, v{SM}, v{SM+1}\nv_cvt_pk_bf16_f32 v{PMm+1}, v{SM+2}, v{SM+3}\nv_mul_f32 v{MX}, v{MX}, v{T}")
    OBm = [32, 48, 80, 224]; OF = 160
    fm = [f"v_fmac_f32 v{YC+r}, v{YX+r}, v{MX}" for r in range(64)]
    a(fm.pop(0))
    for tau in range(4):
        mf(a, vr(OBm[tau], 16), vr(VMF + 4 * tau, 4), vr(PMm, 4), 0)
        for _ in range(6): a(fm.pop(0))
    for _ in range(7): a(fm.pop(0))
    cvo = lambda tau: [f"v_cvt_pk_bf16_f32 v{OF+8*tau+r}, v{OBm[tau]+2*r}, v{OBm[tau]+2*r+1}" for r in range(8)]
    for l in cvo(0): a(l)
    fill = cvo(1) + cvo(2) + cvo(3) + fm
    a(fill.pop(0)); a(fill.pop(0))
    CTm = 32
    def epim(tt):
        L_ = [f"v_cvt_pk_bf16_f32 v{CTm+8*tt+r}, v{YC+16*tt+2*r}, v{YC+16*tt+2*r+1}\nv_min_u32 v{CTm+8*tt+r}, -2, v{CTm+8*tt+r}" for r in range(8)]
        L_ += [f"buffer_store_dwordx4 {vr(CTm+8*tt+4*u,4)}, v{L16}, {WS}, s{sWo1} offen sc1\ns_add_u32 s{sWo1}, s{sWo1}, 32768" for u in range(2)]
        return L_
    order = [(tt, k) for k in range(8) for tt in range(2)] + [(2, k) for k in range(8)] + [(3, k) for k in range(8)]
    ep = []
    for n, (tt, k) in enumerate(order):
        mf(a, vr(YC + 16 * tt, 16), ar(32 * tt + 4 * k, 4), vr(OF + 4 * k, 4), vr(YC + 16 * tt, 16))
        for _ in range(6):
            if fill: a(fill.pop(0))
        if n == 17: ep += epim(0) + epim(1)
        if n == 25: ep += epim(2)
        for _ in range(3):
            if ep: a(ep.pop(0))
    assert not fill and not ep
    a("s_nop 12")
    for l in epim(3): a(l)
    hs(8)
    a(f"s_lshl_b32 s{sA3}, s{sW}, 11\ns_add_u32 s{sA3}, s{sA3}, {H_K + 4096}\nv_add_u32 v{T+1}, s{sA3}, v{L16}")
    a(f"s_lshl_b32 s{sA3}, s{sW}, 10\ns_add_u32 s{sA3}, s{sA3}, {H_K + 4096}\nv_add_u32 v{T+2}, s{sA3}, v{L16}")
    a(f"v_and_b32 v{MX}, 7, v{LANE}\nv_lshlrev_b32 v{MX}, 10, v{MX}")
    a(f"s_waitcnt vmcnt({P.get('mdr', 0)})")
    a(f"""
    s_cmp_ge_u32 s{sSeg}, {P.get('mth', 60)}
    s_cbranch_scc1 {'L_m_rd' if P.get('mg', 0) else 'L_m_rf'}
    s_barrier
    s_cmp_lg_u32 s{sW}, 0
    s_cbranch_scc1 L_m_c1
    s_lshl_b32 s{sA4}, s{sSeg}, 7
    s_add_u32 s{sA4}, s{sA4}, {WS_CNT}
    v_mov_b32 v{T}, 1
    s_mov_b64 exec, 1
    buffer_atomic_add v{T}, off, {WS}, s{sA4}
    s_mov_b64 exec, -1
    """)
    a.label('L_m_c0')
    a(f"buffer_load_dword v{T}, off, {WS}, s{sA4} sc1\ns_waitcnt vmcnt(0)\nv_cmp_gt_u32 vcc, 32, v{T}\ns_cbranch_vccz L_m_c1")
    poll_fail(a, 'L_m_c0', P.get('slc', 2))
    a.label('L_m_c1')
    a("s_barrier\ns_branch L_m_rd")
    a.label('L_m_rf')
    a(f"""
    s_mov_b64 exec, 0xff
    buffer_load_dword v{T}, v{MX}, {WS}, s{sWo2} offen offset:1020 sc1
    s_add_u32 s{sSpin}, s{sSpin}, 1
    s_cmp_gt_u32 s{sSpin}, {HSPIN}
    s_cbranch_scc1 L_end
    s_waitcnt vmcnt(0)
    v_cmp_eq_u32 vcc, -1, v{T}
    s_mov_b64 exec, -1
    s_cbranch_vccz L_m_rd
    s_sleep {P.get('msl', 1)}
    s_branch L_m_rf
    """)
    a.label('L_m_rd')
    hs(9)
    for k in range(8): a(f"buffer_load_dwordx4 {vr(96+4*k,4)}, v{L16}, {WS}, s{sWo2 if k < 4 else sSlot} offen offset:{1024*(k&3)} sc1")
    a(f"v_mov_b32 v{T}, 0")
    for k in range(8):
        a(f"s_waitcnt vmcnt({7-k})")
        mf(a, vr(64, 16), vr(SELM, 4), vr(96 + 4 * k, 4), vr(64, 16) if k else 0)
        a(f"v_max3_u32 v{T}, v{T}, v{96+4*k}, v{97+4*k}\nv_max3_u32 v{T}, v{T}, v{98+4*k}, v{99+4*k}")
    a(f"""
    v_cmp_eq_u32 vcc, -1, v{T}
    s_cbranch_vccnz L_m_rf
    s_nop 7
    ds_write_b128 v{T+1}, v[64:67]
    ds_write_b128 v{T+1}, v[68:71] offset:1024
    s_waitcnt lgkmcnt(0)
    s_barrier
    s_cmp_ge_u32 s{sW}, 2
    s_cbranch_scc1 L_m_fin
    """)
    for k in range(4): a(f"ds_read_b128 {vr(96+4*k,4)}, v{T+2} offset:{2048*k}")
    for k in range(4):
        a(f"s_waitcnt lgkmcnt({3-k})")
        a(f"v_pk_add_f32 {vr(XM,2)}, {vr(XM,2)}, {vr(96+4*k,2)}\nv_pk_add_f32 {vr(XM+2,2)}, {vr(XM+2,2)}, {vr(98+4*k,2)}")
    a(f"buffer_store_dwordx4 {vr(XM,4)}, v{VKV}, {sr(S_OUT,4)}, s{sWoo} offen")
    a.label('L_m_fin')
    a("s_branch L_h_done" if P.get('stat') else "s_branch L_hend" if P.get('dbgt') else "s_branch L_end")

if __name__ == '__main__':
    a = Asm(); h_once(a); helper_task(a, {})
    errs, ins = check(a.lines, 'helper')
    for e in errs: print(e)
    print(len(ins), ins[-1]['t'])
```

```python
from asmlib import *

WS_KV = 65536
WS_KM = (34 << 20) + 65536
WS_H1 = 48 << 20
WS_IMG = WS_H1 + (512 << 10)
WS_FL = WS_IMG + (64 << 10)
WS_DUMMY = WS_IMG + (128 << 10)
WS_STAMP = 49 << 20
WS_SIZE = 268435456
DBG_XCNT = 0
DBG_CBAR = 4
DBG_KV0 = 12
DBG_KVC = 16
DBG_DN = 128
L_MEM, L_S, L_KV, L_W = 0, 8192, 16384, 32768
L_O = L_MEM + 1024
L_SM = L_S + 1024
L_MISC = L_S + 5120
S_WS, S_WQ, S_WK, S_WV, S_WO, S_DBG, S_M0 = 4, 8, 12, 16, 20, 24, 28
sH, sW, sS = 32, 33, 34
sKV, sKM, sH1l, sTAG, sIMl = 35, 36, 37, 38, 39
sH1 = 40
sIMw, sIMr, sFL, sSPIN = 44, 45, 46, 47
sIML, sKMv = 59, 58
sONE, sMLO, sFLn, sFG, sFM, sLX = 84, 86, 3, 2, 54, 56
sC = 48
sT = 50
IDX, L16, A_W, A_SMW, NEG1, A_O, A_H1S, A_IMS = 0, 1, 2, 3, 4, 5, 6, 7
A_OW, FLV, HZ = 8, 9, 10
F, SEL, ONE = 12, 16, 20
MA = 24
Q0, K0, Q1, K1, V0, V1 = 56, 60, 64, 68, 72, 76
KX, VX, ST = 80, 88, 96
RW = 128
SPIN_MAX = 1000000

QK_A = {1: 0, 2: 1, 3: 2, 5: 3, 6: 4, 7: 5}
def wqk_reg(sig, u):
    if sig in (0, 4): return ('v', ST + 8 * u)
    return ('a', 32 * QK_A[sig] + 8 * u)
def wv_reg(sig, tau):
    if sig < 4: return ('a', 192 + 8 * (2 * sig + tau))
    return ('v', RW + 8 * (2 * (sig - 4) + tau))
def wo_reg(T, k2):
    if T < 2: return ('v', RW + 64 + 8 * (4 * T + k2))
    return ('v', (ST if T == 2 else MA) + 8 * k2)
def R8(r): return vr(r[1], 8, r[0])
def smf(a, D, A, B): a(f"v_smfmac_f32_16x16x64_bf16 {vr(D,4)}, {vr(A,4)}, {R8(B)}, v{IDX}")
def lw_qk(sig, u): return 8192 * (sig >> 2) + 4096 * (u & 1) + 2048 * (u >> 1)
def lw_wo(T, k2): return 16384 + 2048 * (4 * (T - 2) + k2)
def nops(a, n):
    while n > 0:
        k = min(n, 16); a(f"s_nop {k-1}"); n -= k

def srd(a, s, koff, size):
    a(f"s_load_dwordx2 {sr(s,2)}, s[0:1], {koff}")
    a(f"s_mov_b32 s{s+2}, {size}\ns_mov_b32 s{s+3}, 0x20000")

def chain_setup(a):
    t = 96
    lane, i, g, g1, g0, hi, i3, i2 = t + 1, t + 2, t + 3, t + 6, t + 7, t + 8, t + 9, t + 10
    x, y, z = t + 5, t + 12, t + 13
    a(f"""
    v_and_b32 v{lane}, 63, v0
    v_and_b32 v{i}, 15, v{lane}
    v_lshrrev_b32 v{g}, 4, v{lane}
    v_lshlrev_b32 v{L16}, 4, v{lane}
    v_lshrrev_b32 v{g1}, 1, v{g}
    v_and_b32 v{g0}, 1, v{g}
    v_lshrrev_b32 v{hi}, 3, v{i}
    v_and_b32 v{i3}, 3, v{i}
    v_lshrrev_b32 v{i2}, 2, v{i}
    s_lshl_b32 s{sT+1}, s{sW}, 15
    s_add_u32 s{sT+1}, s{sT+1}, {L_W}
    v_add_u32 v{A_W}, s{sT+1}, v{L16}
    v_lshl_add_u32 v{y}, v{hi}, 1, v{g0}
    v_and_b32 v{x}, 7, v{i}
    v_lshl_add_u32 v{x}, v{y}, 4, v{x}
    v_lshlrev_b32 v{x}, 4, v{x}
    v_add_u32 v{y}, s{sW}, v{y}
    v_and_b32 v{y}, 3, v{y}
    v_lshl_add_u32 v{x}, v{y}, 2, v{x}
    v_xor_b32 v{y}, 1, v{g1}
    v_lshl_add_u32 v{x}, v{y}, 11, v{x}
    v_add_u32 v{A_SMW}, {L_SM}, v{x}
    v_mov_b32 v{HZ}, 0x3f803f80
    v_mov_b32 v{HZ+1}, 0
    v_mov_b32 v{NEG1}, -1
    v_and_b32 v{A_O}, 0x37f, v{L16}
    v_lshlrev_b32 v{y}, 7, v{g0}
    v_or_b32 v{A_O}, v{A_O}, v{y}
    v_xor_b32 v{A_OW}, v{L16}, v{y}
    v_mov_b32 v{FLV}, 0
    v_cmp_lt_u32 vcc, 7, v{i}
    v_mov_b32 v{y}, 0x4444
    v_mov_b32 v{z}, 0xeeee
    v_cndmask_b32 v{t+11}, v{y}, v{z}, vcc
    """)
    a(f"""
    v_lshlrev_b32 v{x}, 2, v{g1}
    v_lshl_add_u32 v{x}, v{hi}, 1, v{x}
    v_add_u32 v{x}, v{x}, v{g0}
    v_lshlrev_b32 v{x}, 11, v{x}
    v_and_b32 v{y}, 7, v{i}
    v_lshl_add_u32 v{x}, v{y}, 3, v{x}
    s_lshl_b32 s{sT+2}, s{sW}, 14
    s_lshl_b32 s{sT+3}, s{sH}, 6
    s_add_u32 s{sT+2}, s{sT+2}, s{sT+3}
    v_add_u32 v{A_H1S}, s{sT+2}, v{x}
    """)
    a(f"""
    s_lshl_b32 s{sT+2}, s{sW}, 5
    s_add_u32 s{sT+2}, s{sT+2}, s{sH}
    s_lshl_b32 s{sT+2}, s{sT+2}, 6
    v_lshlrev_b32 v{x}, 4, v{g}
    v_lshl_add_u32 v{x}, v{i}, 2, v{x}
    v_add_u32 v{x}, s{sT+2}, v{x}
    v_cmp_gt_u32 vcc, 4, v{i}
    v_bfrev_b32 v{z}, 1
    s_nop 0
    v_cndmask_b32 v{A_IMS}, v{z}, v{x}, vcc
    """)
    a(f"""
    v_lshl_add_u32 v{x}, v{hi}, 2, v{i3}
    v_and_b32 v{y}, 1, v{i2}
    v_cmp_eq_u32 vcc, v{y}, v{g0}
    v_mov_b32 v{z}, 64
    s_nop 0
    v_cndmask_b32 v{x}, v{z}, v{x}, vcc
    v_and_b32 v{y}, 1, v{i}
    v_lshl_add_u32 v{t+14}, v{y}, 2, v{i2}
    v_cmp_gt_u32 vcc, 2, v{i3}
    s_mov_b32 s{sT+3}, 0x3f80
    s_nop 0
    v_cndmask_b32 v{t+14}, v{z}, v{t+14}, vcc
    """)
    for base, pos in ((F, x), (SEL, t + 14)):
        a(f"""
        v_and_b32 v{t+15}, 1, v{pos}
        v_lshlrev_b32 v{t+15}, 4, v{t+15}
        v_lshlrev_b32 v{t+15}, v{t+15}, s{sT+3}
        v_lshrrev_b32 v{t+16}, 1, v{pos}
        """)
        for d in range(4):
            a(f"""
            v_cmp_eq_u32 vcc, {d}, v{t+16}
            s_nop 1
            v_cndmask_b32 v{base+d}, 0, v{t+15}, vcc
            """)
    a(f"""
    v_and_b32 v{t+16}, 1, v{i2}
    v_lshl_add_u32 v{t+14}, v{g0}, 2, v{t+16}
    v_xor_b32 v{t+16}, s{sW}, v{t+16}
    v_lshlrev_b32 v{t+16}, 6, v{t+16}
    v_add_u32 v{t+16}, {L_W}, v{t+16}
    v_lshl_add_u32 v{t+15}, v{hi}, 3, v{t+14}
    v_lshl_add_u32 v{t+15}, v{t+15}, 8, v{t+16}
    v_lshl_add_u32 v{t+15}, v{g1}, 15, v{t+15}
    v_lshl_add_u32 v58, v{i3}, 4, v{t+15}
    v_add_u32 v61, 0x10000, v58
    v_lshl_add_u32 v{t+15}, v{g1}, 3, v{t+14}
    v_lshl_add_u32 v{t+15}, v{t+15}, 8, v{t+16}
    v_lshl_add_u32 v{t+15}, v{hi}, 5, v{t+15}
    v_lshl_add_u32 v59, v{i3}, 3, v{t+15}
    v_add_u32 v62, 0x10000, v59
    v_and_b32 v{x}, 7, v{i}
    v_lshlrev_b32 v{x}, 10, v{x}
    v_lshl_add_u32 v{x}, v{g}, 5, v{x}
    v_lshl_add_u32 v{x}, v{hi}, 4, v{x}
    s_lshl_b32 s{sT+2}, s{sW}, 7
    v_add_u32 v60, s{sT+2}, v{x}
    v_mov_b32 v{IDX}, v{t+11}
    """)
    for k in range(4): a(f"v_mov_b32 v{64+k}, -1")

def chain_prologue(a, P):
    WS = sr(S_WS, 4)
    a(f"""
    s_mov_b32 s{sS}, 0
    s_lshl_b32 s{sT}, s{sH}, 2
    s_add_u32 s{sT}, s{sT}, s{sW}
    s_lshl_b32 s{sKV}, s{sT}, 12
    s_add_u32 s{sKV}, s{sKV}, {WS_KV}
    s_lshl_b32 s{sKM}, s{sT}, 10
    s_mov_b32 s{sFLn}, {DBG_DN + DBG_KV0}
    s_add_u32 s{sKM}, s{sKM}, {WS_KM}
    s_mov_b32 s{sH1}, {WS_H1}
    s_mov_b32 s{sH1+1}, {WS_H1 + 65536}
    s_mov_b32 s{sH1+2}, {WS_H1 + 2*65536}
    s_mov_b32 s{sH1+3}, {WS_H1 + 3*65536}
    s_lshl_b32 s{sT}, s{sW}, 5
    s_add_u32 s{sT}, s{sT}, s{sH}
    s_lshl_b32 s{sT}, s{sT}, 11
    s_add_u32 s{sH1l}, s{sT}, {WS_H1}
    s_mov_b32 s{sTAG}, 0
    s_mov_b32 s{sIMw}, {WS_IMG + 8192}
    s_mov_b32 s{sIMr}, {WS_IMG + 16384}
    s_mov_b32 s{sIMl}, {WS_IMG}
    s_mov_b32 s{sIML}, {WS_IMG}
    s_mov_b32 s{sKMv}, 0x70000000
    s_and_b32 s{sT}, s{sW}, 1
    s_lshl_b32 s{sT}, s{sT}, 7
    s_lshl2_add_u32 s{sT+1}, s{sH}, s{sT}
    s_add_u32 s{sT+1}, s{sT+1}, {WS_FL}
    s_and_b32 s{sT}, s{sH}, 1
    s_lshl_b32 s{sT}, s{sT}, 7
    s_add_u32 s{sT}, s{sT}, {WS_FL}
    s_cmp_eq_u32 s{sW}, 3
    s_cselect_b32 s{sFG}, s{sT}, s{sT+1}
    s_mov_b32 s{sONE}, 0x3f803f80
    s_mov_b32 s{sONE+1}, 0x3f803f80
    s_mov_b32 s{sMLO}, 0x00ff00ff
    s_mov_b32 s{sMLO+1}, 0x00ff00ff
    s_mov_b32 s{sC}, 0x3e0293ee
    s_mov_b32 s{sC+1}, 0x3e0293ee
    """)
    a(f"""
    buffer_store_dwordx4 v[64:67], v{L16}, {WS}, s{sH1l} offen
    buffer_store_dwordx4 v[64:67], v{L16}, {WS}, s{sH1l} offen offset:1024
    buffer_store_dword v64, v{A_IMS}, {WS}, s{sIMw} offen
    buffer_store_dword v64, off, {WS}, s{sT+1}
    v_xor_b32 v63, {256 if P.get('sw', 2) else 0}, v60
    buffer_load_dwordx4 {vr(MA,4)}, v63, {sr(S_M0,4)}, 0 offen
    buffer_load_dwordx4 {vr(MA+16,4)}, v{63 if P.get('sw', 2) == 2 else 60}, {sr(S_M0,4)}, 0 offen offset:512
    """, vm='init')
    a(f"""
    s_barrier
    """) if False else None
    for w in range(3): a(f"s_cmp_eq_u32 s{sW}, {w}\ns_cbranch_scc1 L_cp_{w}")
    a("s_branch L_cp_3")

UNITS = []; SLOT = {}; ISSUE = {}
def plan_units(P):
    L = [(m, k) for m in P.get('mord', 'vkq') for k in range(8)]
    if P.get('ilv', 0):
        U = []
        for i in range(8): U += L[3 * i:3 * i + 3] + [('o', i)]
    else: U = L + [('o', u) for u in range(8)]
    UNITS[:] = U; SLOT.clear(); ISSUE.clear()
    fin = lambda u: U[u][0] == 'o' and U[u][1] >= 4
    free = list(range(8)); nxt = 0
    for it in range(-1, 32):
        if it >= 1 and not fin(it - 1): free.append(SLOT[it - 1])
        ISSUE[it] = []
        if it == 0: continue
        while nxt < 32:
            if fin(nxt):
                if U[nxt][1] not in free: break
                s = U[nxt][1]
            else:
                soon = [U[v][1] for v in range(nxt + 1, min(nxt + 8, 32)) if fin(v)]
                c = [x for x in free if x not in soon]
                if not c: break
                s = c[0]
            free.remove(s); SLOT[nxt] = s; ISSUE[it].append(nxt); nxt += 1
    assert nxt == 32
sLB, sO1, sHB, sHO = sT + 4, sT + 5, sT + 6, sT + 7
PF = ['']
def issue_unit(a, u):
    kind, x = UNITS[u]
    if kind == 'o': base, off, step, voff, S = sHO, 64 * (x & 1) * 1024 + 256 * (x >> 1), 4 * 1024, 57, S_WO
    else: base, off, step, voff, S = sHB, x << 19, 4 * 8192, 56, {'q': S_WQ, 'k': S_WK, 'v': S_WV}[kind]
    for i in range(4):
        a(f"s_add_u32 m0, s{sLB}, {SLOT[u] * 4096 + i * 1024}")
        a(f"s_add_u32 s{sO1}, s{base}, {off + i * step}")
        a(f"buffer_load_dwordx4 v{voff}, {sr(S,4)}, s{sO1} offen {PF[0]} lds", vm=('u', u))

def chain_first_dma(a):
    a(f"""
    v_bfe_u32 v96, v0, 4, 2
    v_and_b32 v97, 15, v0
    v_bfe_u32 v98, v0, 4, 1
    v_lshlrev_b32 v98, 2, v98
    v_xor_b32 v97, v97, v98
    v_lshlrev_b32 v97, 4, v97
    v_lshl_add_u32 v56, v96, 13, v97
    v_lshl_add_u32 v57, v96, 10, v97
    s_lshl_b32 s{sLB}, s{sW}, 15
    s_add_u32 s{sLB}, s{sLB}, {L_W}
    s_lshl_b32 s{sHB}, s{sH}, 8
    s_lshl_b32 s{sT+2}, s{sW}, 17
    s_add_u32 s{sHB}, s{sHB}, s{sT+2}
    s_lshl_b32 s{sHO}, s{sH}, 17
    s_lshl_b32 s{sT+2}, s{sW}, 14
    s_add_u32 s{sHO}, s{sHO}, s{sT+2}
    """)
    for u in ISSUE[-1]: issue_unit(a, u)

def chain_prologue_w(a, P, w, vm0):
    WS = sr(S_WS, 4)
    a.label(f'L_cp_{w}')
    a.vm = list(vm0); a.lg = []
    if not P.get('sync'): a(f"s_and_b32 s{sFG}, s{sH}, 3\ns_cmp_eq_u32 s{sH}, 31\ns_cselect_b32 s{sFG}, 1, s{sFG}")
    a(f"s_getpc_b64 s[82:83]")
    a.label(f'L_cp0_{w}')
    a(f"v_lshlrev_b32 v39, 3, v{L16}\nv_min_u32 v39, L_cpe_{w}-L_cp0_{w}, v39")
    PK4 = 64
    def wb(u):
        for i in range(4): a(f"ds_write_b128 v{A_W}, {vr(28 + 16*(i>>1) + 4*(i&1),4)} offset:{SLOT[u] * 4096 + 1024*i}")
    for u in range(32):
        kind, x = UNITS[u]
        a.wait(vm=('u', u))
        fw = P.get('fw', 0)
        if fw and ISSUE[u] and u <= P.get('fwe', 20):
            a(f"s_cmp_eq_u32 s{sFG}, 1\ns_cbranch_scc1 L_fw_{w}_{u}\ns_waitcnt vmcnt({max(len(a.vm) - fw, 0)})")
            a.label(f'L_fw_{w}_{u}')
        a("s_barrier")
        if P.get('pu') == u: a("s_memrealtime s[100:101]")
        for v in ISSUE[u]: issue_unit(a, v)
        if P.get('ct', 0) and u % P.get('ct', 0) == 0 and u < 28: a("global_load_dword v36, v39, s[82:83] sc1", vm='c')
        if u == 9:
            for r in list(range(MA, MA + 4)) + list(range(MA + 16, MA + 20)): a(f"v_min_u32 v{r}, -2, v{r}")
            if w == 0:
                a(f"s_mov_b64 exec, 1\nv_mov_b32 v38, 1")
                a(f"buffer_atomic_add v38, off, {sr(S_DBG,4)}, 0 offset:{DBG_CBAR + (DBG_DN if P.get('dn0', 0) else 0)}", vm='at')
                a("s_mov_b64 exec, -1")
        if P.get('nb') and u == P['nb']:
            a(f"s_add_u32 s{sT+2}, s{sH}, 1\ns_and_b32 s{sT+2}, s{sT+2}, 31\ns_lshl_b32 s{sT+2}, s{sT+2}, 17\ns_add_u32 s{sT+2}, s{sT+2}, {32768*w + (0 if P.get('nba') else 512)}")
            if P.get('nba'):
                a(f"v_lshlrev_b32 v63, 3, v{L16}")
                for k in range(4): a(f"buffer_load_dword v36, v63, {sr(S_WO,4)}, s{sT+2} offen sc1\ns_add_u32 s{sT+2}, s{sT+2}, 8192", vm='w')
            else:
                a(f"v_lshlrev_b32 v63, 3, v{L16}\nv_and_b32 v37, 0x180, v63\nv_and_b32 v63, 0x1e00, v63\nv_lshl_add_u32 v63, v63, 1, v37")
                for k in range(2): a(f"buffer_load_dword v36, v63, {sr(S_WO,4)}, s{sT+2} offen sc1\ns_add_u32 s{sT+2}, s{sT+2}, 16384", vm='w')
        if u == P.get('uw', 25):
            a(f"s_getpc_b64 {sr(sT,2)}")
            a.label(f'L_cpc_{w}')
            a(f"v_lshlrev_b32 v63, 3, v{L16}\ns_mov_b32 s{sT+2}, {WS_IMG + 8192*w}")
            a(f"buffer_load_dword v36, v63, {WS}, s{sT+2} offen sc1", vm='w')
            a(f"v_and_b32 v37, 0x780, v63\nv_min_u32 v63, L_step_{w}-L_top_{w}, v63\nv_add_u32 v63, L_top_{w}-L_cpc_{w}, v63")
            a(f"buffer_load_dword v36, v37, {WS}, s{sH1l} offen sc1", vm='w')
            a(f"global_load_dword v36, v63, {sr(sT,2)}", vm='w')
            if P.get('tlb', 1) and w < 2:
                a(f"s_mov_b32 s{sT+2}, {(WS_KV if w == 0 else WS_KM) - 4096}")
                a(f"buffer_load_dword v36, off, {WS}, s{sT+2} sc1", vm='w')
        fin = lambda v: UNITS[v][0] == 'o' and UNITS[v][1] >= 4
        if u == 1 + max(v for v in range(32) if not fin(v)):
            for sg, src in ((0, ST), (4, PK4)):
                for uu in range(4):
                    for hf in range(2): a(f"ds_write_b128 v{A_W}, {vr(src + 8*uu + 4*hf,4)} offset:{lw_qk(sg, uu) + 1024*hf}")
                a.wait(lg='all')
        fl0 = f"buffer_load_dword v36, off, {sr(S_DBG,4)}, 0 offset:{DBG_CBAR + 64} sc1\nbuffer_load_dword v37, off, {sr(S_DBG,4)}, 0 offset:{DBG_KV0 + (DBG_DN if P.get('dn0', 0) else 0)} sc1"
        if P.get('dn0', 0): fl0 = fl0.replace(f"offset:{DBG_CBAR + 64} ", f"offset:{DBG_CBAR + DBG_DN} ")
        else: fl0 = fl0.replace(f"offset:{DBG_CBAR + 64} ", f"offset:{DBG_CBAR} ")
        if u == 30 and P.get('dlyc'): a(f"s_sleep {P['dlyc']}")
        if u == 30 and w == 0: a(fl0, vm='f0')
        if u and fin(u - 1): wb(u - 1)
        base = SLOT[u] * 4096
        sig = ((x - w - (2 if P.get('sw', 2) > (x >> 2) else 0)) & 3) | (x & 4)
        for half in range(2):
            if fin(u): k, dst = 'v', 28 + 16 * half
            elif kind in 'qk':
                uu = 2 * half + (kind == 'k')
                k, dst = ('v', PK4 + 8 * uu) if sig == 4 else wqk_reg(sig, uu)
            elif kind == 'v': k, dst = wv_reg(sig, half)
            else: k, dst = wo_reg(x >> 1, 2 * (x & 1) + half)
            for p in range(4):
                if kind == 'o': off, ad = base + 32768 * (p >> 1) + 512 * (p & 1), (59, 62)[half]
                else: off, ad = base + 512 * (p & 1) + 8 * half, (58, 61)[p >> 1]
                a(f"ds_read_b64_tr_b16 {vr(dst + 2*p, 2, k)}, v{ad} offset:{off}")
        a.wait(lg='all')
    a("s_barrier")
    wb(31)
    a.wait(lg='all')
    if (P.get('stat') or P.get('dbgt')) and P.get('pu') is None: a("s_memrealtime s[100:101]")
    a(f"s_mov_b32 s{sSPIN}, 0\ns_mov_b32 m0, {L_KV + 4096*w}")
    if w == 0:
        a("s_branch L_c_w1")
        a.label(f'L_c_w0')
        a(f"""
        s_add_u32 s{sSPIN}, s{sSPIN}, 1
        s_cmp_gt_u32 s{sSPIN}, {SPIN_MAX}
        s_cbranch_scc1 L_exit
        s_sleep {P.get('slp0', 4)}
        """)
        a(fl0)
        a.label('L_c_w1')
        a.wait(vm='all')
        a(f"""
        v_lshrrev_b32 v37, {0 if P.get('dn0', 0) else 1}, v37
        v_min_u32 v36, v36, v37
        v_cmp_gt_u32 vcc, 32, v36
        s_cbranch_vccnz L_c_w0
        """)
    a("s_barrier")
    for k in range(4): a(f"buffer_load_dwordx4 {vr(KX+4*k,4)}, v{L16}, {WS}, s{sKV} offen offset:{1024*k} sc1")
    a(f"s_add_u32 s{sKV}, s{sKV}, 0x80000\ns_mov_b32 s{sFL}, {DBG_DN + DBG_KV0}\ns_mov_b64 {sr(sFM,2)}, 0\nv_mov_b32 v{FLV}, 32\ns_mov_b32 s{sSPIN}, 0")
    for l in idle_work():
        if not l.startswith('ds_'): a(l)
    a.wait(lg='all')
    if P.get('stat'): a("s_memrealtime s[64:65]\ns_waitcnt lgkmcnt(0)")
    a.label(f'L_cpe_{w}')
    a(f"s_branch L_step_{w}")

def idle_work():
    L = [f"ds_read_b128 {vr(ST + 8*u + 4*hf, 4)}, v{A_W} offset:{lw_qk(0, u) + 1024*hf}" for u in range(4) for hf in range(2)]
    L += [f"v_mov_b64 {vr(Q0+i,2)}, 0" for i in range(0, 24, 2)]
    return L

DEF = dict(b1=3, nL=10, nB2=5, nv1=3, nv2=0, nvA=5, sv=9, so=1, nr4=3, earlyL=0, dH1=[26, 42, 64, 78], dE=[32, 16, 0, 0], h2=[28, 28, 28, 28], dwf=0, cs=0, g2v=0, dup=1, c1=0, lb1=0, svp=[-1, 0, 2, 4], dp=None, sync=0, fpos=-2, pp=[-1, 1, 3, 5, 7, 11], pE=20, inGap=[0, 0, 0, 1], nPre=[0, 0, 0, 0],
           dS=[-1, -1], kw=0, vmPos=None, mx=1, g2w=1, nd=0, ad=1, nrc=4, dma0=14, nE=3, dT=0, stg=1)
def pack_km():
    X = Q0
    L = [f"v_mov_b32_dpp v{X+2}, v{X} row_ror:8 row_mask:0xf bank_mask:0x3", f"v_mov_b32_dpp v{X+3}, v{X+1} row_ror:8 row_mask:0xf bank_mask:0x3",
         f"v_min_u32 v{ONE}, -2, v{X+2}", f"v_min_u32 v{ONE+1}, -2, v{X+3}"]
    for t in range(2):
        p = V0 + 2 * t
        L += [f"v_lshlrev_b32 v{X}, 16, v{p}", f"v_lshlrev_b32 v{X+1}, 16, v{p+1}", f"v_and_b32 v{p}, 0xffff0000, v{p}", f"v_and_b32 v{p+1}, 0xffff0000, v{p+1}",
              f"v_add_f32 v{X}, v{X}, v{X+1}", f"v_add_f32 v{X+1}, v{p}, v{p+1}", f"v_cvt_pk_bf16_f32 v{X}, v{X}, v{X+1}", f"v_min_u32 v{ONE+2+t}, -2, v{X}"]
    return L
def sync_tmp(P, w):
    if not P['sync']: return []
    if w == 3: return [f"v_bfe_u32 v{MA+24}, v{L16}, 2, 7"]
    if w < 2: return [f"v_mov_b32 v{MA+24}, s{sS}"]
    return []
LASTV = []
def chain_last(a):
    for q in LASTV: smf(a, *q)
    a("s_nop 7")
    for d, s0 in ((V0, V0), (V0 + 1, V0 + 2), (V0 + 2, V1), (V0 + 3, V1 + 2)): a(f"v_cvt_pk_bf16_f32 v{d}, v{s0}, v{s0+1}")
    L = pack_km()
    for l in L[:2]: a(l)
    a(f"v_permlane32_swap_b32 v{V0}, v{V0+1}\nv_permlane32_swap_b32 v{V0+2}, v{V0+3}")
    for l in L[2:]: a(l)
    a(f"buffer_store_dwordx4 {vr(ONE,4)}, v{L16}, {sr(S_WS,4)}, s{sKM} offen sc1")
LISTING = {}
def chain_step(a, P0, w):
    P = dict(DEF); P.update(P0)
    allow = P.get('stamps', [])
    used = []
    def stamp(k):
        if k in allow:
            a(f"s_memtime s[{72+2*len(used)}:{73+2*len(used)}]"); used.append(k)
    WS = sr(S_WS, 4)
    acc = [Q0, K0, Q1, K1]
    lb = lambda s: f"L_{s}_{w}"
    own = 2048 * w
    oth = lambda q: 2048 * ((w + q) & 3)
    T0 = MA + 28
    ldE = f"buffer_load_dwordx4 {vr(MA,4)}, v{L16}, {WS}, s{sIMl} offen sc1"
    ldL = f"buffer_load_dwordx4 {vr(MA+16,4)}, v{L16}, {WS}, s{sIML} offen sc1"
    chkE = f"v_max3_u32 v{T0}, v{MA}, v{MA+1}, v{MA+2}\nv_max_u32 v{T0}, v{T0}, v{MA+3}\nv_cmp_eq_u32 vcc, -1, v{T0}"
    chkL = [f"v_max3_u32 v{T0}, v{MA+16}, v{MA+17}, v{MA+18}", f"v_max_u32 v{T0}, v{T0}, v{MA+19}", f"v_cmp_eq_u32 vcc, -1, v{T0}"]
    if P['c1']:
        chkE = f"v_cmp_eq_u32 vcc, -1, v{MA+3}"
        chkL = ["s_nop 0", "s_nop 0", f"v_cmp_eq_u32 vcc, -1, v{MA+19}"]
    ldF = f"buffer_load_dword v{FLV}, off, {sr(S_DBG,4)}, s{sFL} sc1"
    cvF = [f"v_subrev_u32 v{FLV}, 32, v{FLV}", f"v_ashrrev_i32 v{FLV}, 31, v{FLV}"]
    dwE = f"ds_write_b128 v{L16}, {vr(MA,4)} offset:{L_MEM + own}"
    dwL = f"ds_write_b128 v{L16}, {vr(MA+16,4)} offset:{L_MEM + own + 1024}"
    cv = lambda d, s0: f"v_cvt_pk_bf16_f32 v{d}, v{s0}, v{s0+1}"
    z2 = lambda r: f"v_mov_b64 {vr(r,2)}, 0"
    ror8 = lambda d, s0, bm: f"v_mov_b32_dpp v{d}, v{s0} row_ror:8 row_mask:0xf bank_mask:{bm}"
    mf32 = lambda D, A, B, C: a(f"v_mfma_f32_16x16x32_bf16 {vr(D,4)}, {vr(A,4)}, {vr(B,4)}, {vr(C,4) if C is not None else 0}")
    mf16 = lambda D, A, B, C: a(f"v_mfma_f32_16x16x16_bf16 {vr(D,4)}, {vr(A,2)}, {vr(B,2)}, {vr(C,4) if C is not None else 0}")
    def wdelay(n):
        while P['kw'] and n >= 8:
            mf32(MA + 24, F, F, None); a("s_nop 2"); mf32(MA + 4, F, F, None); a("s_nop 2"); n -= 8
        nops(a, n)
    a.label(lb('top'))
    a("s_waitcnt vmcnt(0)")
    a.vm = []; a.lg = []
    stamp(0)
    EB = MA + 20 if P['dwf'] else MA
    ldB = ldE.replace(vr(MA, 4), vr(EB, 4))
    if P['dwf']:
        a(dwE, lg='we'); a(chkE); a(ldL, vm='L2')
        a(f"s_cbranch_vccnz {lb('f1')}")
    else:
        if P['earlyL']: a(ldL, vm='L2')
        a(chkE)
        a(dwE, lg='we')
        a(f"s_cbranch_vccnz {lb('f1')}")
        if not P['earlyL'] and not P.get('lateL'): a(ldL, vm='L2')
    a.label(lb('go'))
    igo = len(a.lines)
    stamp(14)
    KVF = P.get('kvf', 'sc1')
    dma = [f"buffer_load_dwordx4 v{L16}, {WS}, s{sKV} offen offset:{1024*k} {KVF} lds" for k in range(4)]
    mrd = lambda s: f"ds_read_b128 {vr(MA+4*s,4)}, v{L16} offset:{L_MEM + oth(s & 3) + 1024*(s>>2)}"
    r2 = [f"ds_read_b128 {vr(ST + 8*u + 4*hf, 4)}, v{A_W} offset:{lw_qk(4, u) + 1024*hf}" for u in range(4) for hf in range(2)]
    r3 = [f"ds_read_b128 {vr(ST + 8*k + 4*hf, 4)}, v{A_W} offset:{lw_wo(2,k) + 1024*hf}" for k in range(4) for hf in range(2)]
    vq = [(V0 + 4 * tau, MA + 4 * s, wv_reg(s, tau)) for s in range(8) for tau in range(2)]
    qk = lambda s: [(acc[u], MA + 4 * s, wqk_reg(s, u)) for u in range(4)]
    sA = qk(0) + [vq.pop(0), vq.pop(0)]
    stV = f"buffer_store_dwordx4 {vr(ONE,4)}, v{L16}, {WS}, s{sKMv} offen sc1"
    for k in range(P['b1']):
        smf(a, *sA.pop(0))
        if k == P['sv']: a(stV, vm='km')
        if P.get('lateL') == k + 2: a(f"s_mov_b64 exec, {sr(sLX,2)}"); a(ldL, vm='L2'); a("s_mov_b64 exec, -1")
    a.wait(lg='all')
    a("s_barrier")
    stamp(1)
    a(mrd(1), lg=('ma', 1)); a(mrd(2), lg=('ma', 2))
    smf(a, *sA.pop(0))
    a(mrd(3), lg=('ma', 3))
    if P.get('lateL') == 1: a(f"s_mov_b64 exec, {sr(sLX,2)}"); a(ldL, vm='L2'); a("s_mov_b64 exec, -1")
    sync = P['sync']; TS = MA + 24
    prober = sync and w == 3; poster = sync and w < 2
    probe = f"buffer_load_dword v{FLV}, v{TS}, {WS}, s{sFG} offen sc1"
    post = f"s_mov_b64 exec, 1\nbuffer_store_dword v{TS}, off, {WS}, s{sFG}\ns_mov_b64 exec, -1"
    pp = list(P['pp']); npr = len(pp)
    def syncops(n):
        c = 0
        if poster and n == P['fpos']: a(post, vm='fg'); c = 2
        if prober and n in pp: a(probe, vm=('P', pp.index(n))); c = 1
        return c
    svp = P['svp'][w]
    if P['sv'] == 9 and svp < 0: a(stV, vm='km')
    syncops(-len(sA) - 1)
    while sA:
        smf(a, *sA.pop(0)); syncops(-len(sA) - 1)
    dupA = a.lines[igo:]
    a.label(lb('go2'))
    seq = qk(1) + qk(2) + qk(3) + [vq.pop(0) for _ in range(P['nv1'])]
    i4 = len(seq); seq += qk(4) + [vq.pop(0) for _ in range(P['nv2'])]
    i5 = len(seq); seq += qk(5)
    i6 = len(seq); q6, q7 = qk(6), qk(7)
    seq += [q6[0], q6[1], q7[0], q7[1], q6[2], q6[3], q7[2], q7[3]]
    nL, nB = P['nL'], P['nL'] + P['nB2']
    assert i4 >= nL + 4 and nB <= i5
    KVST = 0 if P.get('kvfix') else 0x80000
    ones = [f"v_mov_b64 {vr(ONE,2)}, {sr(sONE,2)}", f"v_mov_b64 {vr(ONE+2,2)}, {sr(sONE,2)}"]
    lastd = -99
    for n, q in enumerate(seq):
        if n == 0: a.wait(lg=('ma', 1))
        if n == 4: a.wait(lg=('ma', 3))
        if n == nL:
            stamp(2)
            a.wait(vm='L2'); a(dwL, lg='wl')
            if not P['c1']: a(chkL[0])
            if prober: a.wait(vm=('P', 0)); a(f"v_subrev_u32 v{T0+1}, s{sS}, v{FLV}")
        if n == nB:
            a.wait(lg='all' if not r2 else 'wl'); a("s_barrier"); stamp(3); a(mrd(5), lg=('ma', 5))
        if n == i4 and 'r2' in a.lg: a.wait(lg='r2')
        if n == i5: a.wait(lg=('ma', 5))
        if n == i6: a.wait(lg=('ma', 7))
        smf(a, *q)
        cap = 2 - (n + 1 in (4, i5, i6)) - (n >= i6 + 4) - (n in (nL, nL + 1))
        if n == nB: a(mrd(6), lg=('ma', 6)); a(mrd(7), lg=('ma', 7)); cap = 0
        if P['sv'] == 9 and n == svp: a(stV, vm='km')
        cap = max(cap - syncops(n), 1 if r2 else 0)
        dp = P['dp']
        if dp:
            if dma and dp[4 - len(dma)] < 100 and n >= dp[4 - len(dma)] + w and n != nB: a(dma.pop(0), vm='dma'); cap = max(cap - 1, 1 if r2 else 0)
        elif dma and cap and n > nB and n >= min(nB + 1 + w * P['stg'] + 4 * (4 - len(dma)), len(seq) - 1):
            a(dma.pop(0), vm='dma'); cap -= 1
        if r2 and cap and n + 1 != nL and not (nL <= n < nB): a(r2.pop(0), lg='r2'); cap -= 1
        elif r3 and cap and n > nB and n >= i4 + (8 - len(r3)) // 2: a(r3.pop(0), lg='r3'); cap -= 1
        if ones and cap and n >= i5 and P['sv'] == 9: a(ones.pop(0))
        if n == nL: a(chkL[1] if not prober else f"v_max3_u32 v{T0+1}, v{T0}, v{MA+19}, v{T0+1}")
        if n == nL + 1: a(chkL[2] if not prober else f"v_cmp_eq_u32 vcc, -1, v{T0+1}")
        if n == nL + 3:
            a(f"s_cbranch_vccnz {lb('p1' if prober else 'rL')}"); a.label(lb('bL'))
            if prober: assert len(a.vm) == npr - 1
        if n == i6 + 4: a(cv(Q0, Q0))
        if n == i6 + 5: a(cv(Q0 + 1, Q0 + 2))
        if n == i6 + 6: a(cv(Q0 + 2, K0))
    assert not r3 and not r2, (len(r2), len(r3), len(dma))
    stamp(4)
    a(cv(Q0 + 3, K0 + 2))
    a("s_nop 0")
    a(cv(Q1, Q1))
    mf32(K0, Q0, F, None)
    a(cv(Q1 + 1, Q1 + 2)); a(cv(Q1 + 2, K1)); a(cv(Q1 + 3, K1 + 2))
    a("s_nop 1")
    mf32(K1, Q1, F, None)
    X = Q0
    a(cv(X, K0)); a(cv(X + 1, K0 + 2))
    rsI = f"buffer_store_dword v{NEG1}, v{A_IMS}, {WS}, s{sIMr} offen"
    S1, S2, SM = Q1, K0, K1
    if not P['mx']:
        smf(a, *vq.pop(0))
        a("s_nop 0"); a(f"buffer_store_dword v{NEG1}, v{A_IMS}, {WS}, s{sIMr} offen", vm='rs'); a("s_nop 1")
        a(cv(X + 2, K1)); a(cv(X + 3, K1 + 2))
        a("s_nop 1")
        S1, S2, SM = Q1, K0, K1
        mf32(SM, X, X, None); mf32(S2, KX + 4, X, None); mf32(S1, KX, X, None)
        for r in range(2): a(ror8(SM + r, SM + 2 + r, '0xc'))
        smf(a, *vq.pop(0))
        a("s_nop 0")
        a(f"ds_write2_b32 v{A_SMW}, v{SM}, v{SM+1} offset0:0 offset1:32")
        a("s_nop 1")
        for r in range(4): a(ror8(S1 + r, S2 + r, '0xc'))
        smf(a, *vq.pop(0))
        a(f"ds_write_b128 v{L16}, {vr(S1,4)} offset:{L_S + own}")
    else:
        assert all(q[1] >= MA + 8 for q in vq)
        XL, XH = MA, MA + 4
        lo = lambda r: a(f"v_cndmask_b32 v{XL+r}, 0, v{X+r}, {sr(sMLO,2)}")
        hi = lambda r: a(f"v_mov_b32_dpp v{XH+r}, v{X+r} row_shr:8 row_mask:0xf bank_mask:0xf bound_ctrl:1")
        lo(0); lo(1); hi(0); hi(1); a("s_nop 0")
        a(cv(X + 2, K1)); a(cv(X + 3, K1 + 2))
        lo(2); lo(3)
        mf32(SM, X, X, None)
        hi(2); hi(3)
        mf32(S1, KX, XL, None)
        a("s_nop 0")
        mf32(S1, KX + 4, XH, S1)
        for r in range(2): a(ror8(SM + r, SM + 2 + r, '0xc'))
        dw2 = f"ds_write2_b32 v{A_SMW}, v{SM}, v{SM+1} offset0:0 offset1:32"
        dw4 = f"ds_write_b128 v{L16}, {vr(S1,4)} offset:{L_S + own}"
        smf(a, *vq.pop(0))
        if P['so'] == 0: a("s_nop 0"); a(dw2); a("s_nop 1"); a(dw4)
        elif P['so'] == 1: a("s_nop 0"); a(dw2); smf(a, *vq.pop(0)); a(dw4)
        else: smf(a, *vq.pop(0)); a(dw4); a(dw2)
    stamp(5)
    for k in range(P['nvA']):
        smf(a, *vq.pop(0))
        if k == P['nvA'] - 3: a(f"s_cmp_eq_u32 s{sS}, 63")
        if k == P['nvA'] - 2:
            a("s_cbranch_scc1 L_last"); LASTV[:] = list(vq)
        if k == 1 and w == 0:
            if P.get('fsk', 1):
                a(f"s_mov_b64 exec, {sr(sFM,2)}"); a(ldF, vm='fl'); a("s_mov_b64 exec, -1")
            else: a(ldF, vm='fl')
        if dma and dp[4 - len(dma)] == 100 and k == w + 1: a(dma.pop(0), vm='dma')
        if P['sv'] == 20 and k == min(3 - w, P['nvA'] - 1): a(stV, vm='km')
        if k == (w & 1) + (2 if w >= 2 and P['sv'] == 20 else 0) and P['mx']: a(rsI, vm='rs')
    a.wait(lg='all')
    a("s_barrier")
    stamp(6)
    R1, R2, R3, RM = K0, KX, KX + 4, K1
    a(f"ds_read_b128 {vr(RM,4)}, v{L16} offset:{L_SM}", lg='rm')
    a(f"ds_read_b128 {vr(R1,4)}, v{L16} offset:{L_S + oth(1)}", lg='r1')
    smf(a, *vq.pop(0))
    a(f"ds_read_b128 {vr(R2,4)}, v{L16} offset:{L_S + oth(2)}", lg='r2')
    a(f"ds_read_b128 {vr(R3,4)}, v{L16} offset:{L_S + oth(3)}", lg='r3')
    while vq:
        smf(a, *vq.pop(0))
        if dma and len(vq) <= max(2 - w, 0): a(dma.pop(0), vm='dma')
        if ones: a(ones.pop(0))
    assert not ones and not dma
    for _ in range(P.get('npd', 0)): mf16(MA, F, F, None)
    pka = lambda d, s0: f"v_pk_add_f32 {vr(d,2)}, {vr(d,2)}, {vr(s0,2)}"
    a.wait(lg='r1')
    a(f"v_add_f32 v{RM}, v{RM}, v{RM+1}\nv_add_f32 v{RM+2}, v{RM+2}, v{RM+3}")
    a(f"v_add_f32 v{S1}, v{S1}, v{R1}\nv_add_f32 v{S1+1}, v{S1+1}, v{R1+1}")
    a(pka(S1 + 2, R1 + 2))
    a(f"v_add_f32 v{RM}, v{RM}, v{RM+2}")
    if P['ad']:
        a.wait(lg='all')
        stamp(7)
        a(pka(R2, R3)); a(pka(R2 + 2, R3 + 2)); a(pka(S1, R2)); a(pka(S1 + 2, R2 + 2))
    else:
        a.wait(lg='r2')
        a(pka(S1, R2)); a(pka(S1 + 2, R2 + 2))
        a.wait(lg='all')
        stamp(7)
        a(pka(S1, R3)); a(pka(S1 + 2, R3 + 2))
    m0, m1 = K0, K0 + 1
    a(f"v_max3_f32 v{m0}, v{RM}, v{S1}, v{S1+1}")
    a(f"v_max3_f32 v{m0}, v{m0}, v{S1+2}, v{S1+3}")
    a(cv(V0, V0)); a(cv(V0 + 1, V0 + 2))
    a(f"v_max_f32_dpp v{m1}, v{m0}, v{m0} row_ror:8 row_mask:0xf bank_mask:0xf")
    a(f"v_max_f32_dpp v{m0}, v{m0}, v{m0} row_ror:8 row_mask:0xf bank_mask:0xf")
    a(cv(V0 + 2, V1)); a(cv(V0 + 3, V1 + 2))
    a(f"v_permlane32_swap_b32 v{m0}, v{m1}")
    a(f"v_max_f32 v{m0+2}, v{m0}, v{m1}")
    a(f"v_max_f32 v{m0+3}, v{m0}, v{m1}")
    a(f"v_permlane32_swap_b32 v{V0}, v{V0+1}")
    a(f"v_permlane32_swap_b32 v{V0+2}, v{V0+3}")
    a(f"v_permlane16_swap_b32 v{m0+2}, v{m0+3}")
    a(f"v_max_f32 v{m0}, v{m0+2}, v{m0+3}")
    a(f"v_mul_f32 v{m0}, s{sC}, v{m0}")
    a(f"v_fma_f32 v{RM}, v{RM}, s{sC}, -v{m0}")
    pkf = lambda r: f"v_pk_fma_f32 {vr(r,2)}, {vr(r,2)}, {sr(sC,2)}, {vr(m0,2)} op_sel_hi:[1,1,0] neg_lo:[0,0,1] neg_hi:[0,0,1]"
    ks = [(w + q) & 3 for q in range(1, 4)]
    r4 = [f"ds_read_b128 {vr(MA + 8*k + 4*hf, 4)}, v{A_W} offset:{lw_wo(3,k) + 1024*hf}" for k in [w] + ks for hf in range(2)]
    rd4 = lambda: a(r4.pop(0), lg='r4') if r4 else None
    BX, BM = K0, MA + 8 * ks[2] + 4
    O0, O1, L = KX, V1, K1
    a(f"v_exp_f32 v{RM}, v{RM}")
    a(pkf(S1)); a(pkf(S1 + 2))
    a(ror8(RM + 1, RM, '0xf'))
    a(cv(BM, RM)); a(cv(BM + 1, RM))
    a(f"v_exp_f32 v{S1}, v{S1}\nv_exp_f32 v{S1+1}, v{S1+1}")
    mf16(O0, V0, BM, None)
    a(f"v_exp_f32 v{S1+2}, v{S1+2}\nv_exp_f32 v{S1+3}, v{S1+3}")
    a(cv(BX, S1)); a(cv(BX + 1, S1 + 2))
    mf16(O1, V0 + 2, BM, None)
    a(ror8(BX + 2, BX, '0xf')); a(ror8(BX + 3, BX + 1, '0xf'))
    AC = [Q1, KX, V1, ONE]
    OW = KX + 4
    a(z2(AC[0])); a(z2(AC[0] + 2))
    mf32(O0, VX, BX, O0)
    stamp(8)
    if P['nr4'] >= 1: rd4()
    if P['nr4'] >= 4: rd4()
    mf32(O1, VX + 4, BX, O1)
    if P['nr4'] >= 2: rd4()
    if P['nr4'] >= 3: rd4()
    mf16(L, BM, HZ, None)
    a(cv(OW, O0)); a(cv(OW + 1, O0 + 2))
    a(z2(AC[1])); a(z2(AC[1] + 2))
    a(cv(OW + 2, O1)); a(cv(OW + 3, O1 + 2))
    mf32(L, BX, ONE, L)
    a("s_nop 0")
    a(f"ds_write_b128 v{A_OW}, {vr(OW,4)} offset:{L_O + own}")
    stamp(9)
    for r in range(4): a(ror8(OW + r, OW + r, '0xc'))
    a(z2(AC[2])); a(z2(AC[2] + 2))
    if P.get('z3', 1): a(z2(AC[3]))
    rcp = lambda r: a(f"v_rcp_f32 v{L+r}, v{L+r}")
    for r in range(P['nrc']): rcp(r)
    smf(a, AC[0], OW, wo_reg(0, w))
    a.wait(lg='all')
    a("s_barrier")
    stamp(10)
    OA = {ks[0]: VX, ks[1]: VX + 4, ks[2]: K0, w: OW}
    oard = lambda k: a(f"ds_read_b128 {vr(OA[k],4)}, v{A_O} offset:{L_O + 2048*k}", lg=('oa', k))
    g2 = lambda T, k: smf(a, AC[T], OA[k], wo_reg(T, k))
    mul = lambda T, r: a(f"v_mul_f32 v{AC[T]+r}, v{AC[T]+r}, v{L+r}")
    def cvt(T, r):
        a(cv(AC[T] + r, AC[T] + 2 * r))
        if r == 1: a(f"v_bfi_b32 v{AC[T]}, 1, s{sTAG}, v{AC[T]}")
    sto = lambda T: f"buffer_store_dwordx2 {vr(AC[T],2)}, v{A_H1S}, {WS}, s{sH1+T} offen"
    oard(ks[0]); oard(ks[1])
    g2(1, w); oard(ks[2]); a(z2(AC[3] + (2 if P.get('z3', 1) else 0)))
    g2(2, w)
    if not P.get('z3', 1): a(z2(AC[3] + 2))
    for r in range(P['nrc'], 4): rcp(r)
    own3 = P['nr4'] >= 2 and P.get('own3', 1)
    if own3: a("s_nop 1"); g2(3, w)
    a.wait(lg=('oa', ks[0])); g2(0, ks[0]); stamp(20); rd4()
    a.wait(lg=('oa', ks[1])); g2(0, ks[1]); rd4()
    a.wait(lg=('oa', ks[2])); g2(0, ks[2]); rd4()
    g2(1, ks[0]); rd4()
    if P['g2v'] >= 3:
        rd4(); a("s_nop 1")
        for r in range(4): mul(0, r)
        cvt(0, 0); cvt(0, 1)
        g2(1, ks[1]); a("s_nop 0"); a(sto(0), vm='h1')
        g2(1, ks[2]); g2(2, ks[0])
        if P['g2v'] == 3: g2(2, ks[1])
        else: a("s_nop 3")
        for r in range(4): mul(1, r)
        cvt(1, 0); cvt(1, 1)
        if P['g2v'] == 4: g2(2, ks[1]); a("s_nop 0"); a(sto(1), vm='h1')
    else:
        g2(1, ks[1]); rd4(); mul(0, 0)
        g2(1, ks[2]); rd4()
        mul(0, 1); mul(0, 2); mul(0, 3); cvt(0, 0); cvt(0, 1)
    assert not r4 or P['g2v'] == 0
    pkm = lambda T: a(f"v_pk_mul_f32 {vr(AC[T],2)}, {vr(AC[T],2)}, {vr(L,2)}\nv_pk_mul_f32 {vr(AC[T]+2,2)}, {vr(AC[T]+2,2)}, {vr(L+2,2)}")
    if P['g2v'] == 0:
        g2(2, ks[0]); a("s_nop 0"); a(sto(0), vm='h1')
        while r4: rd4()
        for r in range(4): mul(1, r)
        cvt(1, 0); cvt(1, 1)
        g2(2, ks[1]); a("s_nop 0"); a(sto(1), vm='h1')
    elif P['g2v'] == 1:
        a("s_nop 1"); a(sto(0), vm='h1')
        pkm(1); cvt(1, 0); cvt(1, 1)
        g2(2, ks[0]); a("s_nop 0"); a(sto(1), vm='h1')
        g2(2, ks[1])
    elif P['g2v'] == 2:
        pkm(1); cvt(1, 0); cvt(1, 1)
        g2(2, ks[0]); a("s_nop 0"); a(sto(0), vm='h1'); a(sto(1), vm='h1')
        g2(2, ks[1])
    stamp(21)
    g2(2, ks[2])
    if P['g2v'] == 3: a("s_nop 0"); a(sto(1), vm='h1')
    a.wait(lg='all')
    if not own3: g2(3, w)
    a(f"s_add_u32 s{sIMl}, s{sIMw}, {1024*(w ^ (2 if P.get('sw', 2) else 0))}\ns_add_u32 s{sIML}, s{sIMw}, {4096+1024*(w ^ (2 if P.get('sw', 2) == 2 else 0))}")
    g2(3, ks[0]); a(f"s_add_u32 s{sS}, s{sS}, 1\ns_mov_b32 s{sKMv}, s{sKM}")
    if not own3: mul(2, 0)
    g2(3, ks[1]); mul(2, 1)
    g2(3, ks[2])
    if own3: mul(2, 0)
    mul(2, 2); mul(2, 3); cvt(2, 0); cvt(2, 1)
    dS = P['dS']
    a("s_nop 1")
    if dS[0] < 0: a(sto(2), vm='h1')
    c = AC[3]
    a(f"v_pk_mul_f32 {vr(c,2)}, {vr(c,2)}, {vr(L,2)}\nv_pk_mul_f32 {vr(c+2,2)}, {vr(c+2,2)}, {vr(L+2,2)}")
    cvt(3, 0); cvt(3, 1)
    a(f"s_add_u32 s{sKM}, s{sKM}, 0x20000\ns_add_u32 s{sKV}, s{sKV}, {KVST}")
    if dS[1] < 0: a(sto(3), vm='h1')
    stamp(11)
    HA = KX
    ld1 = [f"buffer_load_dwordx4 {vr(HA+4*c_,4)}, v{L16}, {WS}, s{sH1l} offen offset:{1024*c_} sc1" for c_ in range(2)]
    HD, T1 = MA + 8, MA + 12
    idle = idle_work()
    late = [l for l in idle if any(l.startswith(f"v_mov_b64 v[{r}:") for r in (Q0, Q0 + 2, V0, V0 + 2, V1, V1 + 2))]
    dsq = [l for l in idle if l.startswith('ds_')]
    idle = [l for l in idle if l not in late and l not in dsq]
    ev = [(max(dS[k], 0), k, [(sto(2 + k) if dS[k] >= 0 else None, 'h1')]) for k in range(2)]
    ev.append((P['dH1'][w], -1 if w < 2 else 2, [(ld1[0], 'H0'), (ld1[1], 'H1')]))
    h2 = P.get('h2', [0, 0, 0, 0])[w]; HB = MA + 20
    if h2: ev.append((P['dH1'][w] + h2, 3, [(ld1[c_].replace(vr(HA + 4 * c_, 4), vr(HB + 4 * c_, 4)), f'B{c_}') for c_ in range(2)]))
    pos = 0; nst = 0
    for (tpos, _, ops) in sorted(ev):
        while pos < tpos:
            if idle and tpos - pos > 2: a(idle.pop(0)); pos += 1
            elif dsq and nst == 2 and tpos - pos >= 6:
                if P['kw']: mf32(MA + 24 if len(dsq) & 1 else MA + 4, F, F, None); a("s_nop 1")
                else: a("s_nop 2")
                a(dsq.pop(0), lg='pre'); pos += 4
            else: wdelay(tpos - pos); pos = tpos
        for (o, tag) in ops:
            if o: a(o, vm=tag); pos += 1
            if tag == 'h1':
                nst += 1
                if nst == 2: idle += pack_km() + late
    for l in dsq + idle: a(l, lg='pre')
    dE = P['dE'][w]; pE = P['pE']; nPre = P['nPre'][w]; inGap = P['inGap'][w]
    eq = ['E0', 'E1', 'E2', 'E3', 'E4'][:P['nE']]; nE = len(eq)
    for k in range(nPre):
        wdelay(dE if k == 0 else pE); a(ldE if eq[0] == 'E0' else ldB, vm=eq.pop(0))
    nH0 = len(a.vm) - 1 - a.vm.index('H0')
    a(f"s_waitcnt vmcnt({nH0})")
    a.label(lb('a1'))
    stamp(12)
    mf32(HD, SEL, HA, None)
    a(f"v_bitop3_b32 v{T1}, v{HA}, v{HA+2}, s{sTAG} bitop3:0x7e")
    a.wait(vm='H1')
    mf32(HD, SEL, HA + 4, HD)
    a(f"v_bitop3_b32 v{T1+1}, v{HA+4}, v{HA+6}, s{sTAG} bitop3:0x7e\nv_bitop3_b32 v{T1}, v{T1}, v{T1+1}, 1 bitop3:0xa8\nv_cmp_ne_u32 vcc, 0, v{T1}")
    if inGap and eq:
        a("s_nop 1"); a(ldE if eq[0] == 'E0' else ldB, vm=eq.pop(0)); a("s_nop 0")
    else: a("s_nop 3")
    dpa = lambda r, n: f"v_add_f32_dpp v{r}, v{r}, v{r} row_ror:{n} row_mask:0xf bank_mask:0xf"
    a(dpa(HD, 4)); a(dpa(HD + 1, 4)); a("s_nop 0"); a(dpa(HD, 8)); a(dpa(HD + 1, 8))
    a(cv(HD, HD))
    if P['cs']:
        a(f"s_cmp_eq_u64 vcc, 0\ns_cselect_b32 s{sT+2}, s{sIMw}, 0x70000000")
        a(f"buffer_store_dword v{HD}, v{A_IMS}, {WS}, s{sT+2} offen", vm='im')
        if eq and (inGap or (len(eq) == nE and dE == 0)): a(ldE if eq[0] == 'E0' else ldB, vm=eq.pop(0))
        a(f"s_cbranch_vccnz {lb('r1')}")
        dE = max(dE - 4, 0)
    else:
        nB1 = len(a.vm) - 1 - a.vm.index('B1') if h2 else 0
        a(f"s_cbranch_vccnz {lb('r2' if h2 else 'r1')}")
        a(f"buffer_store_dword v{HD}, v{A_IMS}, {WS}, s{sIMw} offen", vm='im')
        a.label(lb('a2'))
        if inGap and eq: a(ldE if eq[0] == 'E0' else ldB, vm=eq.pop(0))
    stamp(13)
    misc = [f"ds_read_b128 {vr(KX+4*k,4)}, v{L16} offset:{L_KV + 4096*w + 1024*k}" for k in range(4)]
    misc += [f"s_mov_b32 s{sIMw}, s{sIMr}", f"s_add_u32 s{sIMr}, s{sIMr}, 0x2000", f"s_and_b32 s{sIMr}, s{sIMr}, 0xffff7fff",
             f"s_xor_b32 s{sTAG}, s{sTAG}, 1"]
    if P.get('lateL'): misc += [f"s_mov_b64 {sr(sLX,2)}, -1"]
    if P.get('nod', 1): misc += [f"s_cmp_eq_u32 s{sS}, 63", f"s_cselect_b32 s{sKV}, 0x70000000, s{sKV}"]
    if w == 0: misc = [f"v_cmp_gt_u32 vcc, 32, v{FLV}"] + misc + [f"s_cbranch_vccnz {lb('rF')}\n{lb('bF')}:", f"s_add_u32 s{sFLn}, s{sS}, 2", f"s_lshr_b32 s{sFLn}, s{sFLn}, 3", f"s_min_u32 s{sFLn}, s{sFLn}, 7", f"s_lshl2_add_u32 s{sFLn}, s{sFLn}, {DBG_DN + DBG_KVC}",
                     f"s_cmp_lt_u32 s{sS}, 2", f"s_cselect_b32 s{sFLn}, {DBG_DN + DBG_KV0}, s{sFLn}",
                     f"s_cmp_lg_u32 s{sFL}, s{sFLn}", f"s_cselect_b64 {sr(sFM,2)}, -1, 0", f"s_mov_b32 s{sFL}, s{sFLn}"]
    misc += sync_tmp(P, w)
    def delay(n):
        while n > 0 and misc: a(misc.pop(0), lg='pre'); n -= 1
        wdelay(n)
    while eq:
        delay(dE if len(eq) == nE else pE); a(ldE if eq[0] == 'E0' else ldB, vm=eq.pop(0))
    delay(len(misc))
    if P.get('pr'):
        i0 = a.lines.index(lb('top') + ':'); i0 = a.lines.index('s_barrier', i0) + 1
        body = a.lines[i0:]; a.lines = a.lines[:i0] + ["s_memtime s[72:73]"]; used = [0]; n = 0
        LISTING[w] = [l for l in body if not l.endswith(':')]
        for l in body:
            if not l.endswith(':'):
                if n in P['pr']: a.lines.append(f"s_memtime s[{72+2*len(used)}:{73+2*len(used)}]"); used.append(n)
                n += 1
            a.lines.append(l)
    if used:
        a("s_waitcnt lgkmcnt(0)")
        if P.get('trace'):
            a("s_nop 7")
            for k in range(len(used)): a(f"v_mov_b32 v{MA+8+k}, s{72+2*k}")
            a(f"s_lshl_b32 s{sT}, s{sH}, 12\ns_lshl_b32 s{sT+1}, s{sS}, 4\ns_add_u32 s{sT}, s{sT}, s{sT+1}\ns_add_u32 s{sT}, s{sT}, {WS_STAMP + 65536 + 1024*w}\ns_mov_b64 exec, 1")
            a(f"buffer_store_dwordx4 {vr(MA+8,4)}, v{L16}, {WS}, s{sT} offen", vm='tr')
            a("s_mov_b64 exec, -1")
        else:
            for k in range(1, len(used)):
                a(f"s_sub_u32 s{sT}, s{72+2*k}, s{70+2*k}\ns_add_u32 s{88+k}, s{88+k}, s{sT}")
    if w == 0: wdelay(P['dT'])
    if P.get('stat'):
        a(f"s_cmp_lg_u32 s{sS}, 3\ns_cbranch_scc1 {lb('top')}\ns_memtime s[68:69]\ns_memrealtime s[62:63]\ns_mov_b32 s70, 0\ns_mov_b32 s71, 0")
        for k in range(8): a(f"s_mov_b32 s{88+k}, 0")
    young = lambda t: len(a.vm) - 1 - a.vm.index(t)
    eL = 1 if P['dwf'] else P['earlyL']
    ns = [young(f'E{k}') + k + (eL if k else 0) for k in range(nE)]
    a.lines[a.lines.index(lb('top') + ':') + 1] = f"s_waitcnt vmcnt({ns[0]}) lgkmcnt(0)"
    a(f"s_branch {lb('top')}")
    end_main = len(a.lines)
    if w == 0:
        a.label('L_last'); chain_last(a); a("s_branch L_exit" if P.get('stat') or P.get('dbgt') else "s_endpgm")
    cnt = lambda r, v: (f"s_add_u32 s{r}, s{r}, {v}\n" if P.get('stat') else '')
    spin = f"s_add_u32 s{sSPIN}, s{sSPIN}, 1\ns_cmp_gt_u32 s{sSPIN}, {SPIN_MAX}\ns_cbranch_scc1 L_exit\n"
    for k in range(1, nE + 1):
        a.label(lb(f'f{k}'))
        late = P['lb1'] and k == 1
        if P['lb1'] and k == 2: a(ldB)
        if P.get('fpad') and k >= P.get('fpk', 1): nops(a, P['fpad'])
        if not late: a(ldB)
        a(f"s_waitcnt vmcnt({(ns[k] if k < nE else nE - 1) - (1 if late else 0)})")
        if P['dwf']: a(f"v_mov_b64 {vr(MA,2)}, {vr(EB,2)}\nv_mov_b64 {vr(MA+2,2)}, {vr(EB+2,2)}\ns_nop 0"); a(dwE); a(chkE)
        else: a(chkE); a(cnt(71, 1) or 's_nop 0'); a(dwE)
        a(f"s_cbranch_vccnz {lb(f'f{k+1}')}")
        if not P.get('lateL'): a(ldL)
        if P['dup'] and k == 1:
            a.lines += dupA; a(f"s_branch {lb('go2')}")
        else: a(f"s_branch {lb('go')}")
    a.label(lb(f'f{nE+1}'))
    a(spin + f"s_branch {lb(f'f{nE}')}")
    if prober:
        a.label(lb('p1'))
        a(probe); a(chkL[1]); a(chkL[2]); a(f"s_cbranch_vccnz {lb('rL')}")
        a. label(lb('p2'))
        for k in range(3):
            a(cnt(70, 65536) + f"s_waitcnt vmcnt({npr-1})\nv_cmp_ne_u32 vcc, s{sS}, v{FLV}"); a(probe); a(f"s_cbranch_vccz {lb('bL')}")
        a(spin + f"s_branch {lb('p2')}")
    a.label(lb('rL'))
    a(ldL)
    a(cnt(71, 65536) + spin + "s_waitcnt vmcnt(0)")
    a(dwL)
    a('\n'.join(chkL))
    a(f"s_waitcnt lgkmcnt(0)\ns_cbranch_vccnz {lb('rL')}\ns_branch {lb('p2' if prober else 'bL')}")
    if w == 0:
        a.label(lb('rF'))
        a(ldF); a(spin + f"s_waitcnt vmcnt(0)\nv_cmp_gt_u32 vcc, 32, v{FLV}\ns_cbranch_vccnz {lb('rF')}\ns_branch {lb('bF')}")
    if h2:
        a.label(lb('r2'))
        a(f"s_waitcnt vmcnt({nB1})")
        mf32(HD, SEL, HB, None)
        a(f"v_bitop3_b32 v{T1}, v{HB}, v{HB+2}, s{sTAG} bitop3:0x7e\nv_bitop3_b32 v{T1+1}, v{HB+4}, v{HB+6}, s{sTAG} bitop3:0x7e")
        mf32(HD, SEL, HB + 4, HD)
        a(f"v_bitop3_b32 v{T1}, v{T1}, v{T1+1}, 1 bitop3:0xa8\nv_cmp_ne_u32 vcc, 0, v{T1}\n" + (cnt(70, 65536) or 's_nop 0\n') + "s_nop 3")
        a(dpa(HD, 4)); a(dpa(HD + 1, 4)); a("s_nop 0"); a(dpa(HD, 8)); a(dpa(HD + 1, 8))
        a(cv(HD, HD))
        a(f"s_cbranch_vccnz {lb('r1')}")
        a(f"buffer_store_dword v{HD}, v{A_IMS}, {WS}, s{sIMw} offen")
        a(f"s_branch {lb('a2')}")
    a.label(lb('r1'))
    a(ld1[0]); a(ld1[1])
    a(cnt(70, 1) + spin + f"s_waitcnt vmcnt(0)\ns_branch {lb('a1')}")
    a.label(lb('step'))
    if P.get('lateL'): a(f"s_mov_b64 {sr(sLX,2)}, 0")
    for l in sync_tmp(P, w): a(l)
    a(dwE)
    a(f"s_branch {lb('go')}")
    return end_main, None
```

```python
from asmlib import *
from chain import WS_KV, WS_KM, WS_SIZE, DBG_KVC, DBG_KV0, DBG_DN, S_WS, S_DBG, sH, sW, nops

WS_A = 50 << 20
WS_CNT = WS_A + (64 << 10)
WS_ST = 52 << 20
DBG_ST = 8
WS_PART = 64 << 20
H_GW = 131072
H_E = H_GW + 1024
H_C = H_E + 1024
H_K = H_C + 4096
S_X, S_W1, S_W2, S_WO, S_OUT = 8, 12, 16, 20, 28
sB = 34
sX0, sWo1, sWo2, sStI, sStS, sSlot, sCnt, sSeg, sSpin, sJ = 35, 36, 37, 38, 39, 40, 41, 42, 43, 44
sA, sA2, sA3, sA4 = 45, 46, 47, 48
sWoo = 49
sM = 50
P_LRE, P_LIM, P_LDT, P_DSK, P_GW, P_CRE, P_CIM = 58, 62, 64, 66, 68, 70, 72
LANE, L16, VX_, VW, VW2, XA, WA, BA, GA, VKV, G, VN, HH, VKM, VVM, WOA, MX = 0, 1, 2, 3, 4, 5, 7, 11, 13, 14, 15, 16, 17, 18, 19, 20, 28
T = 29
KF, VF, FR = 32, 96, 160
QF, SS, HF = 160, 224, 240
HSPIN = 1000000
LOG2E = 0x3fb8aa3b
def mf(a, D, A, B, C): a(f"v_mfma_f32_32x32x16_bf16 {D}, {A}, {B}, {C}")
WS = sr(S_WS, 4)

S_PF = 52
P_WQ, P_WK, P_WV = 74, 76, 78
sPH = 56
def h_ptrs(a):
    a(f"""
    s_load_dwordx2 {sr(S_X,2)}, s[0:1], 0
    s_load_dwordx2 {sr(P_WK,2)}, s[0:1], 96
    s_load_dwordx2 {sr(P_WV,2)}, s[0:1], 104
    s_load_dwordx2 {sr(S_WO,2)}, s[0:1], 112
    s_load_dwordx2 {sr(S_PF,2)}, s[0:1], 88
    s_mov_b32 s{S_X+2}, 2097152
    s_mov_b32 s{S_X+3}, 0x20000
    s_mov_b32 s{S_WO+2}, 4194304
    s_mov_b32 s{S_WO+3}, 0x20000
    s_mov_b32 s{S_OUT+2}, 4194304
    s_mov_b32 s{S_OUT+3}, 0x20000
    s_mov_b32 s{S_W1+2}, 4194304
    s_mov_b32 s{S_W1+3}, 0x20000
    s_mov_b32 s{S_W2+2}, 4194304
    s_mov_b32 s{S_W2+3}, 0x20000
    s_mov_b32 s{S_PF+2}, 4194304
    s_mov_b32 s{S_PF+3}, 0x20000
    """)
PFW, PFO = 253, 254
def h_prefetch(a, sR):
    a(f"""
    s_mov_b64 {sr(S_W1,2)}, {sr(P_WK,2)}
    s_mov_b64 {sr(S_W2,2)}, {sr(P_WV,2)}
    s_mul_i32 s{sPH}, s{sR}, {32*10923}
    s_lshr_b32 s{sPH}, s{sPH}, 16
    s_cmp_eq_u32 s{sR}, 6
    s_cselect_b32 s3, 0x200, s3
    s_lshl_b32 s{sA}, s{sPH}, 8
    s_lshl_b32 s{sA2}, s3, 17
    s_add_u32 s{sA}, s{sA}, s{sA2}
    v_lshrrev_b32 v1, 4, v0
    v_and_b32 v2, 15, v0
    v_cmp_gt_u32 vcc, 12, v2
    v_lshlrev_b32 v2, 7, v2
    v_lshl_add_u32 v1, v1, 13, v2
    v_add_u32 v1, s{sA}, v1
    v_bfrev_b32 v2, 1
    v_cndmask_b32 v{PFW}, v2, v1, vcc
    s_lshl_b32 s{sA}, s3, 14
    v_lshlrev_b32 v1, 7, v0
    v_cmp_gt_u32 vcc, 128, v0
    buffer_load_dword v255, v{PFW}, {sr(S_W2,4)}, 0 offen
    v_add_u32 v3, s{sA}, v1
    buffer_load_dword v255, v{PFW}, {sr(S_W1,4)}, 0 offen
    v_cndmask_b32 v3, v2, v3, vcc
    buffer_load_dword v255, v3, {sr(S_X,4)}, 0 offen
    s_load_dwordx2 {sr(S_OUT,2)}, s[0:1], 136
    s_load_dwordx2 {sr(P_LRE,2)}, s[0:1], 8
    s_load_dwordx2 {sr(P_LIM,2)}, s[0:1], 16
    s_load_dwordx2 {sr(P_LDT,2)}, s[0:1], 56
    s_load_dwordx2 {sr(P_DSK,2)}, s[0:1], 64
    s_load_dwordx2 {sr(P_GW,2)}, s[0:1], 128
    s_waitcnt lgkmcnt(0)
    s_load_dwordx2 {sr(P_CRE,2)}, s[0:1], 40
    s_load_dwordx2 {sr(P_CIM,2)}, s[0:1], 48
    s_cmp_ge_u32 s{sW}, 2
    s_cbranch_scc1 L_h_hi
    s_mov_b64 {sr(S_W2,2)}, {sr(S_PF,2)}
    s_mov_b32 s{sStI}, {4*8192}
    s_mov_b32 s{sStS}, {32*8192}
    s_branch L_h_sel
    """)
    a.label('L_h_hi')
    a(f"""
    s_mov_b64 {sr(S_W1,2)}, {sr(P_WV,2)}
    s_mov_b32 s{S_W2+2}, 524288
    s_mov_b32 s{sStI}, 0x10000000
    s_mov_b32 s{sStS}, 64
    s_cmp_eq_u32 s{sW}, 3
    s_cbranch_scc1 L_h_w3
    s_load_dwordx2 {sr(S_W2,2)}, s[0:1], 24
    s_branch L_h_sel
    """)
    a.label('L_h_w3')
    a(f"s_load_dwordx2 {sr(S_W2,2)}, s[0:1], 32")
    a.label('L_h_sel')
    a("s_waitcnt lgkmcnt(0)")
    return 3

def h_once(a):
    a(f"v_and_b32 v{LANE}, 63, v0")
    t = 32
    a(f"""
    v_lshlrev_b32 v{L16}, 4, v{LANE}
    v_and_b32 v{VN}, 31, v{LANE}
    v_lshrrev_b32 v{HH}, 5, v{LANE}
    v_lshrrev_b32 v{t}, 2, v{LANE}              ; r = lane>>2
    v_lshrrev_b32 v{t+1}, 4, v{LANE}            ; lane>>4
    v_and_b32 v{t+2}, 3, v{LANE}                ; c
    v_xor_b32 v{t+3}, v{t+2}, v{t+1}
    v_lshlrev_b32 v{t+3}, 4, v{t+3}
    v_lshl_add_u32 v{VX_}, v{t}, 10, v{t+3}
    v_and_b32 v{t+3}, 15, v{LANE}
    v_lshlrev_b32 v{t+4}, 2, v{t+1}
    v_xor_b32 v{t+3}, v{t+3}, v{t+4}
    v_lshlrev_b32 v{t+3}, 4, v{t+3}
    v_lshl_add_u32 v{VW}, v{t+1}, 13, v{t+3}
    s_cmp_ge_u32 s{sW}, 2
    s_cselect_b64 vcc, -1, 0
    v_cndmask_b32 v{VW2}, v{VW}, v{VX_}, vcc
    v_bfe_u32 v{t+5}, v{LANE}, 2, 1             ; h'
    v_bfe_u32 v{t+6}, v{LANE}, 3, 1             ; t
    v_bfe_u32 v{t+7}, v{LANE}, 4, 1             ; n>>4
    v_lshl_add_u32 v{t+8}, v{t+7}, 2, v{t+2}
    v_lshl_add_u32 v{t+8}, v{t+5}, 3, v{t+8}    ; i = 8h' + 4(n>>4) + (n&3)
    v_lshl_add_u32 v{t+9}, v{HH}, 5, v{t+8}
    v_lshlrev_b32 v{t+9}, 4, v{t+9}
    v_lshl_add_u32 v{VKV}, v{t+6}, 10, v{t+9}
    v_lshl_add_u32 v{t+9}, v{HH}, 4, v{t+8}
    v_lshlrev_b32 v{t+9}, 4, v{t+9}
    v_lshl_add_u32 v{t+9}, v{t+6}, 2, v{t+9}
    s_lshl_b32 s{sA}, s{sW}, 12
    s_add_u32 s{sA}, s{sA}, {H_K}
    v_add3_u32 v{VVM}, v{t+9}, s{sA}, 8
    v_and_b32 v{t+9}, 7, v{LANE}
    v_lshl_add_u32 v{t+9}, v{HH}, 5, v{t+9}
    v_lshl_add_u32 v{VKM}, v{t+9}, 4, s{sA}
    s_waitcnt lgkmcnt(0)
    """)

def xaddr(a, row, base_s, dst):
    a(f"""
    v_bfe_u32 v{T}, v{row}, 2, 2
    v_xor_b32 v{T}, v{T}, v{HH}
    v_lshlrev_b32 v{T}, 4, v{T}
    v_lshl_add_u32 v{T}, v{row}, 6, v{T}
    v_add_u32 v{dst}, {base_s}, v{T}
    v_xor_b32 v{dst+1}, 32, v{dst}
    """)

OPT = {}
sXC, sClr, sMode = 57, 3, 2
def dma_part(part, kind):
    G_ = []
    for i in range(4):
        o = (16384 if part == 'B' else 0) + 1024 * i
        L = [f"s_add_u32 m0, s{sSlot}, {o}"]
        if kind == 'wo': L += [f"s_add_u32 s{sA}, s{sWoo}, {o}", f"buffer_load_dwordx4 v{WOA + i}, {sr(S_WO,4)}, s{sA} offen lds"]
        elif part == 'A': L += [f"s_add_u32 s{sA}, s{sXC}, {(i >> 1) * 131072 + (i & 1) * 16384}", f"buffer_load_dwordx4 v{VX_}, {sr(S_X,4)}, s{sA} offen lds"]
        elif kind == 'p1': L += [f"s_add_u32 s{sA}, s{sWo1}, {4*8192*i}", f"buffer_load_dwordx4 v{VW}, {sr(S_W1,4)}, s{sA} offen lds"]
        else: L += [f"s_mov_b32 s{sA2}, s{sWo2}" if i == 0 else f"s_add_u32 s{sA2}, s{sA2}, s{sStI}", f"buffer_load_dwordx4 v{VW2}, {sr(S_W2,4)}, s{sA2} offen lds"]
        G_.append(L)
    if part == 'A' and kind != 'wo': G_[-1] += [f"s_add_u32 s{sXC}, s{sXC}, 64", f"s_and_b32 s{sXC}, s{sXC}, 0xfffffbff"]
    if part == 'B':
        G_[-1] += [{'p1': f"s_add_u32 s{sWo1}, s{sWo1}, {32*8192}", 'p2': f"s_add_u32 s{sWo2}, s{sWo2}, s{sStS}", 'wo': f"s_add_u32 s{sWoo}, s{sWoo}, 32768"}[kind]]
        G_[-1] += [f"s_add_u32 s{sSlot}, s{sSlot}, 32768", f"s_and_b32 s{sSlot}, s{sSlot}, 0x1ffff"]
    return G_

def frag_reads(p, k, fs, nj=2):
    b = FR + 40 * fs
    L = [f"ds_read_b128 {vr(b + 4*j, 4)}, v{XA + k} offset:{2048*j}" for j in range(nj)]
    for m in range(2 if p == 1 else 1):
        for tau in range(4):
            for pp in range(2):
                L.append(f"ds_read_b64_tr_b16 {vr(b + 8 + 16*m + 4*tau + 2*pp, 2)}, v{WA + tau} offset:{8192*m + (16*k + 4*pp)*256}")
    if p == 2:
        L.append(f"ds_read_b128 {vr(b + 24, 4)}, v{BA + k}")
        L.append(f"ds_read_b128 {vr(b + 28, 4)}, v{GA} offset:{32*k}")
    return L
def mfmas(p, fs, nj=2):
    b = FR + 40 * fs
    L = []
    x = lambda j: vr(b + 4 * j, 4)
    for tau in range(4):
        for j in range(nj):
            D = ar(64 * j + 16 * tau, 16); L.append((D, vr(b + 8 + 4 * tau, 4), x(j), D))
    if p == 1:
        for tau in range(4):
            for j in range(nj):
                D = ar(128 + 64 * j + 16 * tau, 16); L.append((D, x(j), vr(b + 24 + 4 * tau, 4), D))
    else:
        for q in range(2):
            for j in range(2):
                D = ar(128 + 32 * q + 16 * j, 16); L.append((D, vr(b + 24 + 4 * q, 4), x(j), D))
    return L
def adv_addr(p):
    L = []
    regs_ = [XA, XA + 1] + [WA + t for t in range(4)] + ([BA, BA + 1] if p == 2 else [])
    for r in regs_: L += [f"v_add_u32 v{r}, 0x8000, v{r}", f"v_and_b32 v{r}, 0x1ffff, v{r}"]
    if p == 2: L.append(f"v_add_u32 v{GA}, 64, v{GA}")
    return L

def stage_loop(a, name, p, kB, kA, n, nj=2):
    if n != 1:
        a(f"s_mov_b32 s{sCnt}, {n}")
        a.label(name)
    a("s_waitcnt lgkmcnt(0)")
    rd = frag_reads(p, 1, 1, nj); av = adv_addr(p); dg = dma_part('B', kB)
    M = mfmas(p, 0, nj); q = len(M) // 4
    for i, m in enumerate(M):
        mf(a, *m)
        for _ in range(2 if nj == 2 else (2 if i & 1 else 5)):
            if rd: a(rd.pop(0))
        if i % q == 1:
            for l in dg.pop(0): a(l)
        elif not rd:
            for _ in range(5 if nj == 2 else 6):
                if av: a(av.pop(0))
    assert not rd and not av and not dg
    a(f"s_waitcnt vmcnt({18 if p == 1 else 16}) lgkmcnt(0)\ns_barrier")
    rd = frag_reads(p, 0, 0, nj); dg = dma_part('A', kA)
    M = mfmas(p, 1, nj)
    for i, m in enumerate(M):
        mf(a, *m)
        for _ in range(2 if nj == 2 else (2 if i & 1 else 5)):
            if rd: a(rd.pop(0))
        if i % q == 1:
            for l in dg.pop(0): a(l)
        if p == 1 and i == (11 if nj == 2 else 4): a(f"buffer_store_dwordx4 v[44:47], v{L16}, {WS}, s{sClr} offen sc1\ns_add_u32 s{sClr}, s{sClr}, 1024")
        if p == 1 and i == (12 if nj == 2 else 6): a(f"s_and_b32 s{sA}, s{sClr}, 0xfff\ns_cselect_b32 s{sA}, 0, s{sX0}\ns_cselect_b32 s{sX0}, s{sX0}, 0x20000000\ns_add_u32 s{sClr}, s{sClr}, s{sA}")
        if i == len(M) - 1 and n != 1: a(f"s_sub_u32 s{sCnt}, s{sCnt}, 1\ns_cmp_lg_u32 s{sCnt}, 0")
    assert not rd and not dg
    if n != 1: a(f"s_cbranch_scc1 {name}")

SLEEP = [4]
def poll_fail(a, back, sl=None):
    a(f"s_add_u32 s{sSpin}, s{sSpin}, 1\ns_cmp_gt_u32 s{sSpin}, {HSPIN}\ns_cbranch_scc1 L_end\ns_sleep {sl or SLEEP[0]}\ns_branch {back}")

def unpack8(a, dst, src):
    for j in range(4):
        a(f"v_lshlrev_b32 v{dst+2*j}, 16, v{src+j}\nv_and_b32 v{dst+2*j+1}, 0xffff0000, v{src+j}")

def pw(a, LR, LI, A2, B2, n, cnt, tmp):
    for j in range(cnt):
        if n is None: a(f"v_exp_f32 v{tmp+j}, v{A2+j}\nv_fract_f32 v{LI+j}, v{B2+j}")
        else: a(f"v_mul_f32 v{tmp+j}, {n}, v{A2+j}\nv_mul_f32 v{LI+j}, {n}, v{B2+j}\nv_exp_f32 v{tmp+j}, v{tmp+j}\nv_fract_f32 v{LI+j}, v{LI+j}")
    for j in range(cnt): a(f"v_cos_f32 v{LR+j}, v{LI+j}\nv_sin_f32 v{LI+j}, v{LI+j}")
    a("s_nop 0")
    for j in range(cnt): a(f"v_mul_f32 v{LR+j}, v{LR+j}, v{tmp+j}\nv_mul_f32 v{LI+j}, v{LI+j}, v{tmp+j}")

def dtprep(a, A2, B2, DT, cnt):
    for j in range(cnt): a(f"v_mul_f32 v{DT+j}, {LOG2E}, v{DT+j}")
    for j in range(cnt): a(f"v_exp_f32 v{DT+j}, v{DT+j}")
    a("s_nop 0")
    for j in range(cnt): a(f"v_cvt_pk_bf16_f32 v{DT+j}, v{DT+j}, v{DT+j}")
    for j in range(cnt): a(f"v_and_b32 v{DT+j}, 0xffff0000, v{DT+j}")
    for j in range(cnt):
        a(f"v_mul_f32 v{A2+j}, v{DT+j}, v{A2+j}\nv_mul_f32 v{B2+j}, v{DT+j}, v{B2+j}")
        a(f"v_mul_f32 v{A2+j}, {LOG2E}, v{A2+j}\nv_mul_f32 v{B2+j}, 0.15915494, v{B2+j}")

def h_static(a):
    t = 32
    a(f"""
    v_bfe_u32 v{t}, v{LANE}, 2, 1
    v_bfe_u32 v{t+1}, v{LANE}, 3, 2
    v_and_b32 v{t+2}, 3, v{LANE}
    v_lshl_add_u32 v{t+3}, v{t+1}, 2, v{t+2}
    v_lshl_add_u32 v{t+3}, v{t}, 4, v{t+3}
    s_lshl_b32 s{sA}, s{sW}, 12
    """)
    xaddr(a, t + 3, f"s{sA}", XA)
    a(f"""
    v_bfe_u32 v{t+4}, v{LANE}, 2, 2             ; r'
    v_bfe_u32 v{t+5}, v{LANE}, 4, 1             ; half
    v_and_b32 v{t+6}, 1, v{LANE}
    v_bfe_u32 v{t+7}, v{LANE}, 1, 1
    v_lshl_add_u32 v{t+8}, v{t+5}, 1, v{t+7}
    v_lshl_add_u32 v{t+8}, v{t+6}, 2, v{t+8}
    v_lshlrev_b32 v{t+8}, 3, v{t+8}
    v_lshl_add_u32 v{t+9}, v{HH}, 3, v{t+4}
    v_lshl_add_u32 v{t+8}, v{t+9}, 8, v{t+8}
    v_lshl_add_u32 v{t+8}, v{t+4}, 6, v{t+8}
    v_add_u32 v{WA}, 16384, v{t+8}
    """)
    for tau in range(1, 4): a(f"v_xor_b32 v{WA+tau}, {64*tau}, v{WA}")
    for i in range(4): a(f"v_xor_b32 v{WOA+i}, {64*i}, v{L16}")
    for i in range(4): a(f"v_mov_b32 v{t+12+i}, -1")
    for i in range(256): a(f"v_accvgpr_write_b32 a{i}, 0")

def helper_task(a, P):
    DBG = sr(S_DBG, 4)
    SLEEP[0] = P.get('sleep', 4); OPT.clear(); OPT.update(P)
    def hs(k, alt=0):
        if P.get('alt') and not alt:
            if k in (4, 5, 6): return
            k = {2: 5, 3: 6}.get(k, k)
        if P.get('stat'): a(f"{'s_memtime' if P.get('hcyc') else 's_memrealtime'} s[{74+2*k}:{75+2*k}]")
    def signal(tag, off, so, nv, last='31'):
        a(f"""
        s_waitcnt vmcnt({nv})
        s_barrier
        s_cmp_lg_u32 s{sW}, 0
        s_cbranch_scc1 L_h_ns{tag}
        s_lshl_b32 s{sA}, s{sB}, 2
        v_mov_b32 v{T}, 1
        s_mov_b64 exec, 1
        buffer_atomic_add v{T}, off, {DBG}, {so} offset:{off} sc0
        v_mov_b32 v{T+1}, 32
        s_waitcnt vmcnt(0)
        v_cmp_eq_u32 vcc, {last}, v{T}
        s_cbranch_vccz L_h_ng{tag}
        buffer_store_dword v{T+1}, off, {DBG}, {so} offset:{off + DBG_DN} sc1
        """)
        a.label(f'L_h_ng{tag}')
        a("s_mov_b64 exec, -1")
        a.label(f'L_h_ns{tag}')
    a.label('L_h_task')
    hs(0)
    t = 32
    a(f"""
    s_lshl_b32 s{sSeg}, s{sB}, 3
    s_cmp_eq_u32 s{sMode}, 2
    s_cselect_b32 s{sSeg}, 4, s{sSeg}
    s_add_u32 s{sSeg}, s{sSeg}, s{sW}
    s_lshl_b32 s{sXC}, s{sSeg}, 15
    s_lshl_b32 s{sWo1}, s{sH}, 8
    s_and_b32 s{sA}, s{sW}, 1
    s_lshl_b32 s{sA}, s{sA}, 17
    s_add_u32 s{sWo1}, s{sWo1}, s{sA}
    s_lshl_b32 s{sA}, s{sH}, 14
    s_cmp_ge_u32 s{sW}, 2
    s_cselect_b32 s{sWo2}, s{sA}, s{sWo1}
    s_lshl_b32 s{sSlot}, s{sW}, 12
    s_lshl_b32 s{sWoo}, s{sH}, 17
    s_add_u32 s{sWoo}, s{sWoo}, s{sSlot}
    s_mov_b32 s{sSpin}, 0
    """)
    NE = P.get('nearly', 2)
    if P.get('pfw'): a("s_waitcnt vmcnt(0)"); hs(0)
    a(f"""
    s_cmp_lg_u32 s{sB}, 8
    s_cbranch_scc1 L_h_nse
    v_lshlrev_b32 v{T+2}, 7, v{LANE}
    s_lshl_b32 s{sA}, s{sH}, 14
    buffer_load_dword v255, v{T+2}, {sr(S_W2,4)}, s{sA} offen
    s_add_u32 s{sA2}, s{sA}, 8192
    buffer_load_dword v255, v{T+2}, {sr(S_W2,4)}, s{sA2} offen
    s_and_b32 s{sA2}, s{sW}, 1
    s_lshl_b32 s{sA2}, s{sA2}, 13
    s_add_u32 s{sA}, s{sA}, s{sA2}
    v_add_u32 v{T+2}, s{sA}, v{T+2}
    global_load_dword v255, v{T+2}, {sr(P_CRE,2)}
    global_load_dword v255, v{T+2}, {sr(P_CIM,2)}
    s_lshl_b32 s{sA}, s{sW}, 17
    s_lshl_b32 s{sA2}, s{sH}, 12
    s_add_u32 s{sA}, s{sA}, s{sA2}
    s_add_u32 s{sA}, s{sA}, {WS_KM}
    s_add_u32 s{sA2}, s{sA}, {4 << 17}
    """)
    for k in range(8): a(f"buffer_store_dwordx4 v[44:47], v{L16}, {WS}, s{sA if k < 4 else sA2} offen offset:{1024*(k&3)} sc1")
    signal('e', DBG_KV0, '0', 0, '63')
    a(f"""
    s_cmp_eq_u32 s{sB}, 8
    s_cselect_b32 s{sA3}, 5, s{sB}
    s_cselect_b32 s{sA2}, 4, 3
    s_sub_u32 s{sA3}, s{sA3}, 2
    s_cmp_ge_u32 s{sA3}, s{sA2}
    s_cbranch_scc1 L_h_nt
    s_waitcnt vmcnt(0)
    s_lshl_b32 s{sA}, s{sW}, 6
    v_add_u32 v{T}, s{sA}, v{LANE}
    v_lshlrev_b32 v{T+1}, 7, v{T}
    v_lshrrev_b32 v{T+2}, 1, v{T}
    v_and_b32 v{T}, 128, v{T+1}
    v_lshl_add_u32 v{T}, v{T+2}, 13, v{T}
    s_lshl_b32 s{sA}, s{sA3}, 20
    s_lshl_b32 s{sA2}, s{sH}, 8
    s_add_u32 s{sA}, s{sA}, s{sA2}
    buffer_load_dword v255, v{T}, {sr(S_PF,4)}, s{sA} offen
    s_waitcnt vmcnt(0)
    s_lshl_b32 s{sA}, s{sA3}, 15
    s_lshl_b32 s{sA2}, s{sH}, 17
    s_add_u32 s{sA}, s{sA}, s{sA2}
    buffer_load_dword v255, v{T+1}, {sr(S_WO,4)}, s{sA} offen
    s_waitcnt vmcnt(0)
    s_cmp_lg_u32 s{sB}, 8
    s_cbranch_scc1 L_h_nt
    s_lshl_b32 s{sA}, s{sH}, 16
    buffer_load_dword v255, v{T+1}, {sr(S_X,4)}, s{sA} offen
    s_add_u32 s{sA}, s{sA}, 32768
    buffer_load_dword v255, v{T+1}, {sr(S_X,4)}, s{sA} offen
    s_add_u32 s{sA}, s{sW}, 56
    s_lshl_b32 s{sA}, s{sA}, 20
    s_lshl_b32 s{sA2}, s{sH}, 15
    s_add_u32 s{sA}, s{sA}, s{sA2}
    s_add_u32 s{sA}, s{sA}, {WS_PART}
    s_mov_b32 s{sCnt}, 8
    """)
    if P.get('r8w'):
        a(f"s_cmp_lg_u32 s{sW}, 0\ns_cbranch_scc1 L_h_c6")
        a.label('L_h_c5')
        a(f"buffer_load_dword v{T}, off, {DBG}, 0 offset:{DBG_DN + DBG_KVC + 4 * (P['r8w'] - 1)} sc1\ns_waitcnt vmcnt(0)\nv_cmp_eq_u32 vcc, 0, v{T}\ns_cbranch_vccz L_h_c6")
        poll_fail(a, 'L_h_c5', 16)
        a.label('L_h_c6')
        a("s_barrier")
    a.label('L_h_c7')
    if P.get('r8s'): a("s_waitcnt vmcnt(0)")
    a(f"s_add_u32 s{sA2}, s{sA}, {4 << 20}")
    for k in range(8): a(f"buffer_store_dwordx4 v[44:47], v{L16}, {WS}, s{sA if k < 4 else sA2} offen offset:{1024*(k&3)} sc1")
    a(f"s_add_u32 s{sA}, s{sA}, 4096\ns_sub_u32 s{sCnt}, s{sCnt}, 1\ns_cmp_lg_u32 s{sCnt}, 0\ns_cbranch_scc1 L_h_c7")
    signal('f', DBG_KVC + 28, '0', 0, '63')
    if P.get('spinT'):
        a(f"s_cmp_lg_u32 s{sH}, 0\ns_cbranch_scc1 L_end\ns_cmp_lg_u32 s{sW}, 0\ns_cbranch_scc1 L_end")
        a.label('L_spinT')
        a(f"s_sleep 1\ns_memrealtime s[72:73]\ns_waitcnt lgkmcnt(0)\ns_sub_u32 s72, s72, s98\ns_cmp_lt_u32 s72, {P['spinT']*100}\ns_cbranch_scc1 L_spinT")
    a("s_branch L_end")
    a.label('L_h_nt')
    for st in range(4):
        for g_ in dma_part('A', 'p1') + (dma_part('B', 'p1') if st < 3 else []):
            for l in g_: a(l)
    a(f"""
    s_lshl_b32 s{sA}, s{sSeg}, 17
    s_lshl_b32 s{sA2}, s{sH}, 12
    s_add_u32 s{sA}, s{sA}, s{sA2}
    s_add_u32 s{sClr}, s{sA}, {WS_KM}
    s_cmp_ge_u32 s{sMode}, 1
    s_cselect_b32 s{sClr}, 0x70000000, s{sClr}
    s_mov_b32 s{sX0}, {(4 << 17) - 4096}
    """)
    a(f"""
    s_lshl_b32 s{sA}, s{sB}, 5
    s_add_u32 s{sA}, s{sA}, s{sH}
    s_lshl_b32 s{sA}, s{sA}, 7
    s_add_u32 s{sA}, s{sA}, {WS_A}
    s_mov_b64 exec, 0xff
    buffer_store_dwordx4 {vr(t+12,4)}, v{L16}, {WS}, s{sA} offen sc1
    s_mov_b64 exec, -1
    s_lshl_b32 s{sA}, s{sH}, 2
    s_add_u32 s{sA}, s{sA}, s{sSeg}
    s_lshl_b32 s{sA}, s{sA}, 7
    s_add_u32 s{sA}, s{sA}, {WS_CNT}
    s_add_u32 s{sA2}, s{sH}, s{sMode}
    s_cmp_eq_u32 s{sMode}, 1
    s_cselect_b32 s{sA2}, s{sH}, s{sA2}
    s_cmp_lt_u32 s{sA2}, 2
    s_cselect_b32 s{sA}, s{sA}, 0x70000000
    v_mov_b32 v{t+16}, 0
    s_mov_b64 exec, 1
    buffer_store_dword v{t+16}, v{t+16}, {WS}, s{sA} offen sc1
    s_mov_b64 exec, -1
    global_load_dwordx4 {vr(t+20,4)}, v{L16}, {sr(P_GW,2)}
    """)
    a(f"s_cmp_lt_u32 s{sB}, {NE}\ns_cbranch_scc1 L_h_go\ns_cmp_eq_u32 s{sMode}, 2\ns_cbranch_scc1 L_h_go")
    a(f"v_lshlrev_b32 v{T}, 7, v{LANE}\ns_and_b32 s{sA2}, s{sXC}, 0xfffffc00\ns_cmp_ge_u32 s{sB}, 6\ns_cbranch_scc1 L_h_x2\ns_waitcnt vmcnt(0)")
    a.label('L_h_x2')
    for k in range(8 if P.get('xt', 1) else 0): a(f"s_add_u32 s{sA}, s{sA2}, {(k >> 2) * 131072 + (k & 3) * 8192}\nbuffer_load_dword v255, v{T}, {sr(S_X,4)}, s{sA} offen")
    a(f"s_sub_i32 s{sA3}, s{sB}, {P.get('lag', 2)}\ns_max_i32 s{sA3}, s{sA3}, 0\ns_lshl_b32 s{sA3}, s{sA3}, 2\ns_cmp_ge_u32 s{sB}, 6\ns_cbranch_scc1 L_h_go")
    a(f"s_cmp_lg_u32 s{sW}, 0\ns_cbranch_scc1 L_h_go")
    a.label('L_h_w0')
    a(f"buffer_load_dword v{T}, off, {DBG}, s{sA3} offset:{DBG_DN + DBG_KVC} sc1\ns_waitcnt vmcnt(0)\nv_cmp_eq_u32 vcc, 0, v{T}\ns_cbranch_vccz L_h_go")
    poll_fail(a, 'L_h_w0', 8)
    a.label('L_h_go')
    a(f"s_waitcnt vmcnt({20 + 3})\ns_barrier")
    hs(1)
    for l in frag_reads(1, 0, 0): a(l)
    gw = f"v_add_u32 v{T}, {H_GW}, v{L16}\nds_write_b128 v{T}, {vr(t+20,4)}"
    a(f"s_cmp_eq_u32 s{sMode}, 0\ns_cbranch_scc1 L_h_full")
    if P.get('alt'):
        stage_loop(a, 'L_h_q1x', 1, 'p1', 'x', 4, 1); hs(2, 1)
        stage_loop(a, 'L_h_q1y', 1, 'p1', 'x', 4, 1); hs(3, 1)
        stage_loop(a, 'L_h_q1a', 1, 'p1', 'x', 5, 1); hs(4, 1)
    else: stage_loop(a, 'L_h_q1a', 1, 'p1', 'x', 13, 1)
    a(gw)
    stage_loop(a, 'L_h_q1b', 1, 'p2', 'x', 3, 1)
    a("s_branch L_h_e1")
    a.label('L_h_full')
    stage_loop(a, 'L_h_p1a', 1, 'p1', 'x', 13)
    a(gw)
    stage_loop(a, 'L_h_p1b', 1, 'p2', 'x', 3)
    a.label('L_h_e1')
    hs(2)
    a(f"""
    s_lshl_b32 s{sA3}, s{sSeg}, 19
    s_lshl_b32 s{sA2}, s{sH}, 14
    s_add_u32 s{sA3}, s{sA3}, s{sA2}
    s_add_u32 s{sA3}, s{sA3}, {WS_KV}
    s_waitcnt lgkmcnt(0)
    s_nop 7
    """)
    TM = 240
    def kv_store(j, m, tau):
        dst = (KF if m == 0 else VF) + 32 * j + 8 * tau
        a(f"s_add_u32 s{sA}, s{sA3}, {j * (4 << 19) + 4096 * tau}")
        for u in range(2): a(f"buffer_store_dwordx4 {vr(dst+4*u,4)}, v{VKV}, {WS}, s{sA} offen offset:{2048*m + 256*u} sc1")
    for j in range(2):
        for m in range(2):
            for tau in range(4):
                src = 128 * m + 64 * j + 16 * tau; dst = (KF if m == 0 else VF) + 32 * j + 8 * tau
                for r in range(16): a(f"v_accvgpr_read_b32 v{TM+r}, a{src+r}")
                for r in range(8): a(f"v_cvt_pk_bf16_f32 v{dst+r}, v{TM+2*r}, v{TM+2*r+1}")
                if j == 0:
                    a(f"s_cmp_eq_u32 s{sMode}, 0\ns_cbranch_scc1 L_h_sk{j}{m}{tau}")
                    kv_store(j, m, tau)
                    a.label(f'L_h_sk{j}{m}{tau}')
        if j == 0:
            a(f"s_cmp_eq_u32 s{sMode}, 0\ns_cbranch_scc1 L_h_j1\ns_lshl_b32 s{sA2}, s{sMode}, 2\ns_cmp_eq_u32 s{sMode}, 1\ns_cselect_b32 s{sA4}, 63, 31")
            if P.get('dlyh'): a(f"s_sleep {P['dlyh']}")
            signal('a', DBG_KV0 - 4, f"s{sA2}", 0, f"s{sA4}")
            a(f"s_cmp_eq_u32 s{sMode}, 1\ns_cbranch_scc1 L_h_nj1\ns_mov_b32 s{sMode}, 0\ns_waitcnt vmcnt(0) lgkmcnt(0)\ns_branch L_h_again")
            a.label('L_h_j1')
    a.label('L_h_nj1')
    for i in range(192): a(f"v_accvgpr_write_b32 a{i}, 0")
    a(f"s_lshl_b32 s{sA}, s{sW}, 12")
    xaddr(a, VN, f"s{sA}", XA)
    a(f"""
    v_bfe_u32 v{TM}, v{LANE}, 2, 1
    v_bfe_u32 v{TM+1}, v{LANE}, 3, 1
    v_and_b32 v{TM+2}, 3, v{LANE}
    v_lshl_add_u32 v{TM+2}, v{TM+1}, 2, v{TM+2}
    v_lshl_add_u32 v{TM+2}, v{TM}, 3, v{TM+2}      ; ch
    v_bfe_u32 v{TM+3}, v{LANE}, 4, 1
    v_lshlrev_b32 v{TM+3}, 12, v{TM+3}
    v_add_u32 v{TM+3}, 24576, v{TM+3}
    v_lshlrev_b32 v{GA}, 4, v{HH}
    v_add_u32 v{GA}, {H_GW}, v{GA}
    """)
    xaddr(a, TM + 2, f"v{TM+3}", BA)
    hs(3)
    for l in frag_reads(2, 0, 0): a(l)
    a(f"s_lshl_b32 s{sA4}, s{sB}, 1\ns_and_b32 s{sA4}, s{sA4}, {2 if P.get('lag', 2) == 2 else 14}\ns_sub_i32 s{sA4}, s{sA4}, {-1 if P.get('lag', 2) == 2 else 3}\ns_max_i32 s{sA4}, s{sA4}, 1\ns_cmp_ge_u32 s{sB}, 6\ns_cselect_b32 s{sA4}, 1, s{sA4}\ns_sub_u32 s{sJ}, 12, s{sA4}")
    stage_loop(a, 'L_h_p20', 2, 'p2', 'x', f"s{sA4}")
    a(f"s_cmp_eq_u32 s{sMode}, 0\ns_cbranch_scc1 L_h_st\ns_cmp_lg_u32 s{sW}, 0\ns_cbranch_scc1 L_h_l1")
    a.label('L_h_l0')
    a(f"buffer_load_dword v{T}, off, {DBG}, 0 offset:{DBG_DN + DBG_KVC} sc1\ns_waitcnt vmcnt(0)\nv_cmp_eq_u32 vcc, 0, v{T}\ns_cbranch_vccz L_h_l1")
    poll_fail(a, 'L_h_l0', 8)
    a.label('L_h_l1')
    a("s_barrier")
    n0 = len(a.lines)
    for m in range(2):
        for tau in range(4): kv_store(1, m, tau)
    a.lines[n0:] = [l.replace('buffer_store', 'buffer_load') for l in a.lines[n0:]]
    a(f"s_mov_b32 s{sMode}, 0\ns_branch L_h_nsc")
    a.label('L_h_st')
    for j in range(2):
        for m in range(2):
            for tau in range(4): kv_store(j, m, tau)
    a(f"s_cmp_eq_u32 s{sB}, 7\ns_cselect_b32 s{sA4}, 63, 31")
    signal('c', DBG_KVC, f"s{sA}", 0, f"s{sA4}")
    stage_loop(a, 'L_h_p2a', 2, 'p2', 'x', f"s{sJ}")
    stage_loop(a, 'L_h_p2c', 2, 'p2', 'wo', 1)
    stage_loop(a, 'L_h_p2b', 2, 'wo', 'wo', 3)
    for g_ in dma_part('B', 'wo'):
        for l in g_: a(l)
    hs(4)
    a("s_waitcnt lgkmcnt(0)\ns_nop 7")
    PK = 128 + 0
    for j in range(2):
        for tau in range(4):
            src = 64 * j + 16 * tau; dst = QF + 32 * j + 8 * tau
            for r in range(16): a(f"v_accvgpr_read_b32 v{TM+r}, a{src+r}")
            for r in range(8): a(f"v_cvt_pk_bf16_f32 v{dst+r}, v{TM+2*r}, v{TM+2*r+1}")
    a(f"""
    v_bfe_u32 v{T}, v{LANE}, 2, 1
    v_bfe_u32 v{T+1}, v{LANE}, 3, 1
    v_and_b32 v{T+2}, 0x13, v{LANE}
    v_lshl_add_u32 v{T+2}, v{T+1}, 2, v{T+2}
    v_lshl_add_u32 v{T+2}, v{T}, 3, v{T+2}
    v_lshlrev_b32 v{T+2}, 10, v{T+2}
    s_lshl_b32 s{sA}, s{sH}, 5
    v_lshl_add_u32 v{T+1}, v{HH}, 4, s{sA}
    s_lshl_b32 s{sA}, s{sW}, 17
    v_add3_u32 v{BA}, v{T+2}, v{T+1}, s{sA}
    """)
    for j in range(2):
        for k in range(8):
            D = vr(SS + 16 * j, 16)
            mf(a, D, vr(KF + 32 * j + 4 * k, 4), vr(QF + 32 * j + 4 * k, 4), D if k else 0)
    RI = 32
    for r in range(32): a(f"v_accvgpr_read_b32 v{RI+r}, a{128+r}")
    a(f"v_accvgpr_read_b32 v{G}, a160\nv_accvgpr_read_b32 v{MX}, a176")
    A2, B2, LR, LI = 64, 72, 80, 88
    a(f"global_load_dwordx4 {vr(LR,4)}, v{T+1}, {sr(P_LRE,2)}\nglobal_load_dwordx4 {vr(LR+4,4)}, v{T+1}, {sr(P_LIM,2)}\nglobal_load_dwordx4 {vr(LI,4)}, v{T+1}, {sr(P_LDT,2)}")
    for r in (G, MX): a(f"v_mul_f32 v{r}, 0xbfb8aa3b, v{r}")
    for r in (G, MX): a(f"v_exp_f32 v{r}, v{r}")
    a("s_nop 0")
    for r in (G, MX): a(f"v_add_f32 v{r}, 1.0, v{r}")
    for r in (G, MX): a(f"v_rcp_f32 v{r}, v{r}")
    a(f"v_lshlrev_b32 v{T}, 4, v{HH}\nv_sub_u32 v{T}, v{VN}, v{T}\nv_mov_b32 v{T+2}, 0xff800000")
    for r in range(16):
        a(f"v_cmp_le_i32 vcc, {r}, v{T}\ns_nop 1")
        for j in range(2): a(f"v_cndmask_b32 v{SS+16*j+r}, v{T+2}, v{SS+16*j+r}, vcc")
    PQ, PV, PS, PH, PG = 128, 160, 192, 208, 216
    for r in range(32): a(f"v_accvgpr_write_b32 a{PQ+r}, v{QF+32+r}\nv_accvgpr_write_b32 a{PV+r}, v{VF+32+r}")
    for r in range(16): a(f"v_accvgpr_write_b32 a{PS+r}, v{SS+16+r}")
    a(f"v_accvgpr_write_b32 a{PG}, v{MX}")
    CA, CB, CD = 192, 193, 194
    a(f"""
    v_and_b32 v{T}, 15, v{LANE}
    s_lshl_b32 s{sA}, s{sH}, 5
    v_lshl_add_u32 v{T+2}, v{T}, 1, s{sA}
    global_load_ushort v{CA}, v{T+2}, {sr(P_LRE,2)}
    global_load_ushort v{CB}, v{T+2}, {sr(P_LIM,2)}
    global_load_ushort v{CD}, v{T+2}, {sr(P_LDT,2)}
    """)
    ACW = 220
    for tt in range(4):
        a(f"global_load_dwordx4 {ar(ACW+8*tt,4)}, v{BA}, {sr(P_CRE,2)}\nglobal_load_dwordx4 {ar(ACW+8*tt+4,4)}, v{BA}, {sr(P_CIM,2)}")
        if tt < 3: a(f"v_add_u32 v{BA}, 32768, v{BA}")
    a(f"s_lshl_b32 s{sA}, s{sW}, 12\nv_add_u32 v{BA+1}, {H_K}, v{L16}\nv_add_u32 v{GA}, s{sA}, v{BA+1}\ns_waitcnt vmcnt(8)")
    def c_put(r):
        for tt in range(4): a(f"ds_write_b128 v{GA}, {ar(ACW+8*tt+4*r,4)} offset:{1024*tt}")
    def c_get(r):
        for tile in range(16): a(f"ds_read_b128 {ar(8*tile+4*r,4)}, v{BA+1} offset:{1024*tile}")
    TT, LE, LM = 128, 136, 144
    unpack8(a, LE, LR); unpack8(a, LM, LR + 4); unpack8(a, TT, LI)
    for j in range(8): a(f"v_mov_b32 v{A2+j}, v{LE+j}\nv_mov_b32 v{B2+j}, v{LM+j}")
    dtprep(a, A2, B2, TT, 8)
    pw(a, LR, LI, A2, B2, None, 8, TT)
    for j in range(8):
        a(f"""
        v_mul_f32 v{TT}, v{LE+j}, v{LE+j}
        v_fmac_f32 v{TT}, v{LM+j}, v{LM+j}
        v_rcp_f32 v{TT}, v{TT}
        v_add_f32 v{TT+1}, -1.0, v{LR+j}
        v_mul_f32 v{TT+2}, v{TT+1}, v{LE+j}
        v_fmac_f32 v{TT+2}, v{LI+j}, v{LM+j}
        v_mul_f32 v{TT+3}, v{LI+j}, v{LE+j}
        v_fma_f32 v{TT+3}, -v{TT+1}, v{LM+j}, v{TT+3}
        v_mul_f32 v{LE+j}, v{TT+2}, v{TT}
        v_mul_f32 v{LM+j}, v{TT+3}, v{TT}
        """)
    for d in (1, 2, 4, 8):
        dp = f"row_shr:{d} row_mask:0xf bank_mask:0xf bound_ctrl:1"
        for j in range(2):
            R, I = RI + 16 * j, RI + 16 * j + 8
            for c in range(8): a(f"v_mov_b32 v{TT+c}, v{R+c}")
            for c in range(8): a(f"v_fmac_f32_dpp v{R+c}, v{R+c}, v{LR+c} {dp}")
            for c in range(8): a(f"v_fmac_f32_dpp v{R+c}, -v{I+c}, v{LI+c} {dp}")
            for c in range(8): a(f"v_fmac_f32_dpp v{I+c}, v{I+c}, v{LR+c} {dp}")
            for c in range(8): a(f"v_fmac_f32_dpp v{I+c}, v{TT+c}, v{LI+c} {dp}")
        if d < 8:
            for c in range(8):
                a(f"v_mul_f32 v{TT}, v{LI+c}, v{LI+c}\nv_add_f32 v{TT+1}, v{LR+c}, v{LR+c}\nv_fma_f32 v{LR+c}, v{LR+c}, v{LR+c}, -v{TT}\nv_mul_f32 v{LI+c}, v{TT+1}, v{LI+c}")
    a(f"v_and_b32 v{T+2}, 15, v{LANE}\nv_add_u32 v{T+2}, 1, v{T+2}\nv_cvt_f32_u32 v{T+2}, v{T+2}")
    pw(a, LR, LI, A2, B2, f"v{T+2}", 8, TT)
    dp = "row_bcast:15 row_mask:0xa bank_mask:0xf"
    for j in range(2):
        R, I = RI + 16 * j, RI + 16 * j + 8
        for c in range(8): a(f"v_fmac_f32_dpp v{R+c}, v{R+c}, v{LR+c} {dp}")
        for c in range(8): a(f"v_fmac_f32_dpp v{R+c}, -v{I+c}, v{LI+c} {dp}")
        for c in range(8): a(f"v_fmac_f32_dpp v{I+c}, v{I+c}, v{LR+c} {dp}")
        for c in range(8): a(f"v_fmac_f32_dpp v{I+c}, v{R+c}, v{LI+c} {dp}")
    a(f"""
    s_lshl_b32 s{sA}, s{sW}, 7
    s_add_u32 s{sA}, s{sA}, {H_E}
    v_lshl_add_u32 v{T+2}, v{HH}, 5, s{sA}
    s_mov_b32 exec_lo, 0x80000000
    s_mov_b32 exec_hi, 0x80000000
    """)
    for j in range(2):
        for q in range(4): a(f"ds_write_b128 v{T+2}, {vr(RI + 16*j + 4*q, 4)} offset:{512*j + 64*(q>>1) + 16*(q&1)}")
    a("s_mov_b64 exec, -1")
    a(f"v_lshlrev_b32 v{CA}, 16, v{CA}\nv_lshlrev_b32 v{CB}, 16, v{CB}\nv_lshlrev_b32 v{CD}, 16, v{CD}")
    dtprep(a, CA, CB, CD, 1)
    U, W_ = 196, 198
    pw(a, U, U + 1, CA, CB, "0x42000000", 1, CD)
    pw(a, W_, W_ + 1, CA, CB, "0x43800000", 1, CD)
    a(f"v_add_u32 v{T+2}, 1, v{VN}\nv_cvt_f32_u32 v{T+2}, v{T+2}")
    pw(a, LR, LI, A2, B2, f"v{T+2}", 8, TT)
    EE = 200
    a(f"v_lshlrev_b32 v{T}, 2, v{T}\nv_add_u32 v{T+2}, {H_E}, v{T}\ns_waitcnt vmcnt(0)")
    c_put(0); a("s_waitcnt lgkmcnt(0)\ns_barrier")
    c_get(0); a("s_waitcnt lgkmcnt(0)\ns_barrier")
    c_put(1); a("s_waitcnt lgkmcnt(0)\ns_barrier")
    c_get(1); a("s_waitcnt lgkmcnt(0)\ns_barrier")
    for s_ in range(8): a(f"ds_read2_b32 {vr(EE+2*s_,2)}, v{T+2} offset0:{32*s_} offset1:{32*s_+16}")
    AC_ = 216
    def cmac(M_, Er):
        a(f"""
        v_fma_f32 v{AC_+2}, v{M_}, v{AC_}, v{Er}
        v_fma_f32 v{AC_+3}, v{M_}, v{AC_+1}, v{Er+1}
        v_fma_f32 v{AC_+2}, -v{M_+1}, v{AC_+1}, v{AC_+2}
        v_fma_f32 v{AC_+1}, v{M_+1}, v{AC_}, v{AC_+3}
        v_mov_b32 v{AC_}, v{AC_+2}
        """)
    a(f"s_waitcnt lgkmcnt(0)\nv_mov_b32 v{AC_}, v{EE}\nv_mov_b32 v{AC_+1}, v{EE+1}")
    for s_ in range(1, 8): cmac(U, EE + 2 * s_)
    a(f"""
    v_min_u32 v{AC_}, -2, v{AC_}
    v_min_u32 v{AC_+1}, -2, v{AC_+1}
    v_lshlrev_b32 v{T+1}, 1, v{T}
    s_lshl_b32 s{sA3}, s{sH}, 7
    s_add_u32 s{sA3}, s{sA3}, {WS_A}
    s_lshl_b32 s{sA}, s{sB}, 12
    s_add_u32 s{sA}, s{sA}, s{sA3}
    s_cmp_eq_u32 s{sW}, 0
    s_cselect_b32 s{sA}, s{sA}, 0x70000000
    buffer_store_dwordx2 {vr(AC_,2)}, v{T+1}, {WS}, s{sA} offen sc1
    v_and_b32 v{T+2}, 7, v{LANE}
    v_cmp_ge_u32 {sr(sM,2)}, s{sB}, v{T+2}
    v_lshlrev_b32 v{T+2}, 2, v{T+2}
    v_mov_b32 v{AC_}, 0
    v_mov_b32 v{AC_+1}, 0
    s_mov_b32 s{sCnt}, 0
    """)
    a.label('L_h_wk')
    a(f"""
    buffer_load_dword v{AC_+2}, v{T+2}, {DBG}, 0 offen offset:{DBG_DN + DBG_KV0} sc1
    s_waitcnt vmcnt(0)
    v_cmp_gt_u32 vcc, 32, v{AC_+2}
    s_and_b64 vcc, vcc, {sr(sM,2)}
    s_cbranch_vccz L_h_wa
    """)
    poll_fail(a, 'L_h_wk')
    a.label('L_h_wa')
    a(f"""
    s_cmp_ge_u32 s{sCnt}, s{sB}
    s_cbranch_scc1 L_h_wd
    buffer_load_dwordx2 {vr(220,2)}, v{T+1}, {WS}, s{sA3} offen sc1
    s_waitcnt vmcnt(0)
    v_max_u32 v{AC_+2}, v220, v221
    v_cmp_eq_u32 vcc, -1, v{AC_+2}
    s_cbranch_vccz L_h_wb
    """)
    poll_fail(a, 'L_h_wa')
    a.label('L_h_wb')
    cmac(W_, 220)
    a(f"s_add_u32 s{sCnt}, s{sCnt}, 1\ns_add_u32 s{sA3}, s{sA3}, 4096\ns_branch L_h_wa")
    a.label('L_h_wd')
    a(f"s_lshl_b32 s{sA}, s{sW}, 10\ns_add_u32 s{sA}, s{sA}, {H_C}\nv_add_u32 v{T+2}, s{sA}, v{T}")
    for s_ in range(8):
        a(f"ds_write2_b32 v{T+2}, v{AC_}, v{AC_+1} offset0:{32*s_} offset1:{32*s_+16}")
        if s_ < 7: cmac(U, EE + 2 * s_)
    a(f"""
    s_lshl_b32 s{sA2}, s{sW}, 7
    s_add_u32 s{sA}, s{sA}, s{sA2}
    v_lshl_add_u32 v{T+2}, v{HH}, 5, s{sA}
    s_waitcnt lgkmcnt(0)
    """)
    CC = 192
    for j in range(2):
        for q in range(4): a(f"ds_read_b128 {vr(CC + 16*j + 4*q, 4)}, v{T+2} offset:{512*j + 64*(q>>1) + 16*(q&1)}")
    a(f"v_add_f32 v{T}, v{G}, v{G}\nv_add_f32 v{T+1}, v{MX}, v{MX}\ns_waitcnt lgkmcnt(0)")
    for j in range(2):
        R, I, cr, ci = RI + 16 * j, RI + 16 * j + 8, CC + 16 * j, CC + 16 * j + 8
        for c in range(8):
            a(f"""
            v_fmac_f32 v{R+c}, v{LR+c}, v{cr+c}
            v_fmac_f32 v{I+c}, v{LR+c}, v{ci+c}
            v_fma_f32 v{R+c}, -v{LI+c}, v{ci+c}, v{R+c}
            v_fmac_f32 v{I+c}, v{LI+c}, v{cr+c}
            v_mul_f32 v{cr+c}, v{R+c}, v{LE+c}
            v_mul_f32 v{ci+c}, v{R+c}, v{LM+c}
            v_fma_f32 v{cr+c}, -v{I+c}, v{LM+c}, v{cr+c}
            v_fmac_f32 v{ci+c}, v{I+c}, v{LE+c}
            v_mul_f32 v{cr+c}, v{cr+c}, v{T+j}
            v_mul_f32_e64 v{ci+c}, -v{ci+c}, v{T+j}
            """)
        for r in range(8): a(f"v_cvt_pk_bf16_f32 v{HF+8*j+r}, v{cr+2*r}, v{cr+2*r+1}")
    for r in range(8): a(f"v_accvgpr_write_b32 a{PH+r}, v{HF+8+r}")
    a(f"""
    v_bfe_u32 v{t+4}, v{LANE}, 2, 2
    v_bfe_u32 v{t+5}, v{LANE}, 4, 1
    v_and_b32 v{t+6}, 1, v{LANE}
    v_bfe_u32 v{t+7}, v{LANE}, 1, 1
    v_lshl_add_u32 v{t+8}, v{t+6}, 1, v{t+7}
    v_lshl_add_u32 v{t+8}, v{t+5}, 2, v{t+8}
    v_lshlrev_b32 v{t+8}, 3, v{t+8}
    v_lshl_add_u32 v{t+9}, v{HH}, 4, v{t+4}
    v_lshl_add_u32 v{t+8}, v{t+9}, 10, v{t+8}
    v_lshl_add_u32 v{WOA}, v{t+4}, 6, v{t+8}
    """)
    for tt in range(1, 4): a(f"v_xor_b32 v{WOA+tt}, {64*tt}, v{WOA}")
    for tt in range(4): a(f"v_add_u32 v{WOA+4+tt}, 0x10000, v{WOA+tt}")
    a(f"s_mov_b32 s{sJ}, 0")
    MINI = P.get('mini', 1)
    if MINI:
        a(f"""
        s_cmp_lg_u32 s{sB}, 7
        s_cbranch_scc1 L_h_nsd
        s_lshl_b32 s{sA2}, s{sW}, 5
        s_add_u32 s{sA2}, s{sA2}, s{sH}
        s_mul_i32 s{sA2}, s{sA2}, {23*1024}
        s_add_u32 s{sA2}, s{sA2}, {WS_ST}
        """)
        for q in range(23):
            a(f"buffer_store_dwordx4 {ar(128+4*q,4)}, v{L16}, {WS}, s{sA2} offen offset:{1024*(q&3)} sc1")
            if q & 3 == 3: a(f"s_add_u32 s{sA2}, s{sA2}, 4096")
        signal('d', DBG_ST, '0', 0)
    hs(5)
    a.label('L_h_seg')
    KMF, VMF, SM, PX, PM, OA_ = 32, 64, 80, 248, 128, 192
    a(f"v_max3_f32 v{MX}, v{SS}, v{SS+1}, v{SS+2}")
    for r in range(3, 15, 2): a(f"v_max3_f32 v{MX}, v{MX}, v{SS+r}, v{SS+r+1}")
    a(f"""
    v_max_f32 v{MX}, v{MX}, v{SS+15}
    s_lshl_b32 s{sA}, s{sSeg}, 17
    s_lshl_b32 s{sA2}, s{sH}, 12
    s_add_u32 s{sA}, s{sA}, s{sA2}
    s_add_u32 s{sA}, s{sA}, {WS_KM}
    s_sub_u32 s{sA2}, s{sSeg}, {P.get('pm0', 0)}
    s_cmp_lt_u32 s{sA2}, {48 - P.get('pm0', 0)}
    s_cselect_b32 s{sA2}, {P.get('pm', 7)}, {P.get('pm6', 3)}
    s_cmp_lt_u32 s{sSeg}, 56
    s_cselect_b32 s{sA2}, s{sA2}, {P.get('pm7', 3)}
    s_cmp_lt_u32 s{sSeg}, 60
    s_cselect_b32 s{sA2}, s{sA2}, 0
    s_or_b32 s{sA2}, s{sA2}, s{sSeg}
    s_min_u32 s{sA2}, s{sA2}, 62
    s_sub_i32 s{sA2}, s{sA2}, s{sSeg}
    s_lshl_b32 s{sA2}, s{sA2}, 17
    s_add_u32 s{sA2}, s{sA}, s{sA2}
    s_mov_b32 s{sA4}, 0x3e0293ee
    s_lshl_b32 s{sA3}, s{sW}, 12
    s_add_u32 s{sA3}, s{sA3}, {H_K}
    v_add_u32 v{T+1}, s{sA3}, v{L16}
    v_add_u32 v{T+2}, 2048, v{VKM}
    """)
    for tau in range(4): a(f"v_mov_b64 {vr(VMF + 4*tau + 2, 2)}, 0")
    a(f"v_mov_b64 {vr(PM+2,2)}, 0")
    a.label('L_h_pr')
    a(f"""
    buffer_load_dword v{T}, off, {WS}, s{sA2} offset:3072 sc1
    s_waitcnt vmcnt(0)
    v_cmp_eq_u32 vcc, -1, v{T}
    s_cbranch_vccz L_h_ld
    """)
    poll_fail(a, 'L_h_pr')
    a.label('L_h_pf')
    a(f"s_add_u32 s{sSpin}, s{sSpin}, 1\ns_cmp_gt_u32 s{sSpin}, {HSPIN}\ns_cbranch_scc1 L_end")
    a.label('L_h_ld')
    LD = 192
    for k in range(4): a(f"buffer_load_dwordx4 {vr(LD + 4*k, 4)}, v{L16}, {WS}, s{sA} offen offset:{1024*k} sc1")
    a("s_waitcnt vmcnt(0)")
    hs(6)
    for k in range(4): a(f"ds_write_b128 v{T+1}, {vr(LD + 4*k, 4)} offset:{1024*k}")
    a(f"v_max3_u32 v{T}, v{LD}, v{LD+1}, v{LD+2}")
    for r in range(3, 15, 2): a(f"v_max3_u32 v{T}, v{T}, v{LD+r}, v{LD+r+1}")
    a(f"v_max_u32 v{T}, v{T}, v{LD+15}\nv_cmp_eq_u32 vcc, -1, v{T}\ns_cbranch_vccnz L_h_pf")
    for k in range(8):
        o = ((k >> 1) & 1) * 128 + (k & 1) * 32
        a(f"ds_read2_b64 {vr(KMF + 4*k, 4)}, v{VKM if k < 4 else T+2} offset0:{o} offset1:{o+16}")
    for tau in range(4): a(f"ds_read2st64_b32 {vr(VMF + 4*tau, 2)}, v{VVM} offset0:{4*tau} offset1:{4*tau+2}")
    for k in range(8):
        a(f"s_waitcnt lgkmcnt({11-k})")
        mf(a, vr(SM, 16), vr(KMF + 4 * k, 4), vr(QF + 4 * k, 4), vr(SM, 16) if k else 0)
    a("s_waitcnt lgkmcnt(0)\ns_nop 11")
    a(f"""
    v_max3_f32 v{T}, v{MX}, v{SM}, v{SM+1}
    v_max3_f32 v{T}, v{T}, v{SM+2}, v{SM+3}
    v_mov_b32 v{T+1}, v{T}
    s_nop 1
    v_permlane32_swap_b32 v{T}, v{T+1}
    v_max_f32 v{T}, v{T}, v{T+1}
    v_mul_f32 v{T}, s{sA4}, v{T}
    """)
    ev = [SM + r for r in range(4)] + [SS + r for r in range(16)]
    for r in ev: a(f"v_fma_f32 v{r}, v{r}, s{sA4}, -v{T}")
    for r in ev: a(f"v_exp_f32 v{r}, v{r}")
    a(f"v_cvt_pk_bf16_f32 v{PM}, v{SM}, v{SM+1}\nv_cvt_pk_bf16_f32 v{PM+1}, v{SM+2}, v{SM+3}")
    for r in range(8): a(f"v_cvt_pk_bf16_f32 v{PX+r}, v{SS+2*r}, v{SS+2*r+1}")
    sm = [f"v_add_f32 v{T}, v{ev[0]}, v{ev[1]}"] + [f"v_add_f32 v{T}, v{T}, v{r}" for r in ev[2:]]
    sm += [f"v_mov_b32 v{T+1}, v{T}", f"v_sub_f32 v{T+2}, 1.0, v{G}", "s_nop 0", f"v_permlane32_swap_b32 v{T}, v{T+1}", f"v_add_f32 v{T}, v{T}, v{T+1}",
           f"v_rcp_f32 v{T}, v{T}", "s_nop 0", f"v_mul_f32 v{T}, v{T}, v{T+2}"]
    WF = 32
    wrd = lambda tile: [f"ds_read_b64_tr_b16 {vr(WF + 32*(tile&1) + 4*k + 2*pp, 2)}, v{WOA + 4*(k>>2) + (tile&3)} offset:{(32*((k>>1)&1) + 8*(k&1) + 4*pp)*1024 + 256*(tile>>2)}"
                        for k in range(8) for pp in range(2)]
    rd = wrd(0)
    OB = [192, 208, 132, 148]
    OB = [192, 208, 132, 80]
    def onorm(tau):
        L_ = [f"v_mul_f32 v{OB[tau]+r}, v{OB[tau]+r}, v{T}" for r in range(16)]
        L_ += [f"v_cvt_pk_bf16_f32 v{QF+8*tau+r}, v{OB[tau]+2*r}, v{OB[tau]+2*r+1}" for r in range(8)]
        return L_
    n = 0
    for tau in range(4):
        D = vr(OB[tau], 16)
        for k in range(3):
            if k == 0: mf(a, D, vr(VMF + 4 * tau, 4), vr(PM, 4), 0)
            else: mf(a, D, vr(VF + 8 * tau + 4 * (k - 1), 4), vr(PX + 4 * (k - 1), 4), D)
            for _ in range(2):
                if rd: a(rd.pop(0))
            if n == 6: sm += onorm(0)
            if n == 9: sm += onorm(1)
            for _ in range(6):
                if sm: a(sm.pop(0))
            n += 1
    for l in sm + onorm(2) + onorm(3): a(l)
    hs(7)
    a(f"""
    s_lshl_b32 s{sA}, s{sSeg}, 20
    s_lshl_b32 s{sA2}, s{sH}, 10
    s_add_u32 s{sA}, s{sA}, s{sA2}
    s_add_u32 s{sA}, s{sA}, {WS_PART}
    """)
    CT = 128
    def epi(tile):
        D = 192 + 16 * (tile & 1); c = CT + 8 * (tile & 1)
        L_ = []
        for u in range(2):
            L_ += [f"v_cvt_pk_bf16_f32 v{c+4*u+r}, v{D+8*u+2*r}, v{D+8*u+2*r+1}\nv_min_u32 v{c+4*u+r}, -2, v{c+4*u+r}" for r in range(4)]
        for u in range(2):
            L_ += [f"buffer_store_dwordx4 {vr(c+4*u,4)}, v{L16}, {WS}, s{sA} offen sc1\ns_add_u32 s{sA}, s{sA}, 32768"]
        return L_
    for tile in range(16):
        D = vr(192 + 16 * (tile & 1), 16)
        rd = wrd(tile + 1) if tile < 15 else []
        ep = epi(tile - 1) if tile else []
        for k in range(10):
            if k == 2: a("s_waitcnt lgkmcnt(0)")
            if k < 2: mf(a, D, ar(8 * tile + 4 * k, 4), vr(HF + 4 * k, 4), D if k else 0)
            else: mf(a, D, vr(WF + 32 * (tile & 1) + 4 * (k - 2), 4), vr(QF + 4 * (k - 2), 4), D)
            if k >= 2:
                for _ in range(2):
                    if rd: a(rd.pop(0))
            if ep and k >= 6 and len(ep) <= 2: a(ep.pop(0))
            elif ep and k >= 1 and len(ep) > 2:
                a(ep.pop(0)); a(ep.pop(0))
        assert not ep and not rd
    a("s_nop 12")
    for l in epi(15): a(l)
    hs(8)
    a(f"""
    s_lshl_b32 s{sA4}, s{sSeg}, 7
    s_add_u32 s{sA4}, s{sA4}, {WS_CNT}
    v_mov_b32 v220, 1
    """)
    if MINI: a(f"s_cmp_eq_u32 s{sB}, 7\ns_cselect_b32 s{sJ}, 3, s{sJ}\ns_cbranch_scc1 L_h_s7")
    a(f"s_cmp_lg_u32 s{sJ}, 0\ns_cbranch_scc1 L_h_sg")
    for r in range(32): a(f"v_accvgpr_read_b32 v{QF+r}, a{PQ+r}\nv_accvgpr_read_b32 v{VF+r}, a{PV+r}")
    for r in range(16): a(f"v_accvgpr_read_b32 v{SS+r}, a{PS+r}")
    for r in range(8): a(f"v_accvgpr_read_b32 v{HF+r}, a{PH+r}")
    a.label('L_h_sg')
    a(f"""
    v_accvgpr_read_b32 v{T}, a{PG}
    v_accvgpr_write_b32 a{PG}, v{G}
    s_xor_b32 s{sSeg}, s{sSeg}, 4
    s_add_u32 s{sJ}, s{sJ}, 1
    v_mov_b32 v{G}, v{T}
    {'' if P.get('sg', 1) else 'L_h_s7:'}
    s_waitcnt vmcnt(0)
    s_mov_b64 exec, 1
    buffer_atomic_add v220, off, {WS}, s{sA4}
    s_mov_b64 exec, -1
    s_cmp_eq_u32 s{sJ}, 1
    s_cbranch_scc1 L_h_seg
    {'L_h_s7:' if P.get('sg', 1) else ''}
    s_waitcnt vmcnt(0)
    """)
    SELR, XS, DS_ = 216, 208, 212
    XU, DU = 224, 232
    def red_prep(SELR, DS_):
        a(f"""
        s_lshl_b32 s{sA2}, s{sH}, 5
        v_lshlrev_b32 v{T+1}, 4, v{HH}
        v_lshl_add_u32 v{T+2}, v{VN}, 10, v{T+1}
        v_add_u32 v{T+1}, s{sA2}, v{T+1}
        global_load_dwordx4 {vr(DS_,4)}, v{T+1}, {sr(P_DSK,2)}
        v_lshlrev_b32 v{MX}, 1, v{T+2}
        v_bfe_u32 v{t}, v{LANE}, 2, 1
        v_bfe_u32 v{t+1}, v{LANE}, 3, 2
        v_and_b32 v{t+2}, 3, v{LANE}
        v_lshl_add_u32 v{t+1}, v{t+1}, 2, v{t+2}
        v_cmp_eq_u32 vcc, v{t}, v{HH}
        v_mov_b32 v{t+3}, 64
        s_mov_b32 s{sA2}, 0x3f80
        v_cndmask_b32 v{t+1}, v{t+3}, v{t+1}, vcc
        v_and_b32 v{t+2}, 1, v{t+1}
        v_lshlrev_b32 v{t+2}, 4, v{t+2}
        v_lshlrev_b32 v{t+2}, v{t+2}, s{sA2}
        v_lshrrev_b32 v{t+1}, 1, v{t+1}
        """)
        for d in range(4): a(f"v_cmp_eq_u32 vcc, {d}, v{t+1}\ns_nop 1\nv_cndmask_b32 v{SELR+d}, 0, v{t+2}, vcc")
    red_prep(SELR, DS_)
    a.label('L_h_red')
    a(f"""
    s_lshl_b32 s{sA3}, s{sSeg}, 15
    s_lshl_b32 s{sA2}, s{sH}, 5
    s_add_u32 s{sA3}, s{sA3}, s{sA2}
    buffer_load_dwordx4 {vr(XS,4)}, v{T+2}, {sr(S_X,4)}, s{sA3} offen
    s_lshl_b32 s{sA4}, s{sSeg}, 7
    s_add_u32 s{sA4}, s{sA4}, {WS_CNT}
    s_lshl_b32 s{sA}, s{sSeg}, 20
    s_lshl_b32 s{sA2}, s{sH}, 15
    s_add_u32 s{sA}, s{sA}, s{sA2}
    s_add_u32 s{sA}, s{sA}, {WS_PART}
    s_lshl_b32 s{sA3}, s{sA3}, 1
    v_lshlrev_b32 v221, 10, v{VN}
    s_cmp_ge_u32 s{sSeg}, {56 if P.get('sg', 1) else 64}
    s_cbranch_scc1 L_h_rf
    """)
    a.label('L_h_wc')
    a(f"""
    buffer_load_dword v220, off, {WS}, s{sA4} sc1
    s_waitcnt vmcnt(0)
    v_cmp_gt_u32 vcc, 32, v220
    s_cbranch_vccz L_h_rd
    """)
    poll_fail(a, 'L_h_wc', P.get('slc', 2))
    a.label('L_h_rf')
    a(f"""
    s_mov_b64 exec, 0xffffffff
    buffer_load_dword v220, v221, {WS}, s{sA} offen offset:1020 sc1
    s_add_u32 s{sSpin}, s{sSpin}, 1
    s_cmp_gt_u32 s{sSpin}, {HSPIN}
    s_cbranch_scc1 L_end
    s_waitcnt vmcnt(0)
    v_cmp_eq_u32 vcc, -1, v220
    s_mov_b64 exec, -1
    s_cbranch_vccz L_h_rd
    s_sleep 2
    s_branch L_h_rf
    """)
    a.label('L_h_rd')
    hs(9)
    for k in range(32):
        if k & 3 == 0: a(f"s_add_u32 s{sA2}, s{sA}, {1024*k}")
        a(f"buffer_load_dwordx4 {vr(32+4*k,4)}, v{L16}, {WS}, s{sA2} offen offset:{1024*(k&3)} sc1")
    a("s_waitcnt vmcnt(32)")
    unpack8(a, XU, XS); unpack8(a, DU, DS_)
    for r in range(8): a(f"v_mul_f32 v{XU+r}, v{XU+r}, v{DU+r}")
    a(f"v_mov_b32 v{T}, 0")
    for k in range(32):
        a(f"s_waitcnt vmcnt({31-k})")
        mf(a, vr(192, 16), vr(SELR, 4), vr(32 + 4 * k, 4), vr(192, 16) if k else 0)
        a(f"v_max3_u32 v{T}, v{T}, v{32+4*k}, v{33+4*k}\nv_max3_u32 v{T}, v{T}, v{34+4*k}, v{35+4*k}")
    a(f"v_cmp_eq_u32 vcc, -1, v{T}\ns_cbranch_vccnz L_h_rf\ns_nop 7")
    for r in range(8): a(f"v_fmac_f32 v{192+r}, v{XU+r}, v{G}")
    OF = P.get('of', '')
    a(f"""
    buffer_store_dwordx4 v[192:195], v{MX}, {sr(S_OUT,4)}, s{sA3} offen {OF}
    buffer_store_dwordx4 v[196:199], v{MX}, {sr(S_OUT,4)}, s{sA3} offen offset:16 {OF}
    v_accvgpr_read_b32 v{G}, a{PG}
    s_xor_b32 s{sSeg}, s{sSeg}, 4
    s_add_u32 s{sJ}, s{sJ}, 1
    s_cmp_eq_u32 s{sJ}, 3
    s_cbranch_scc1 L_h_red
    """)
    a.label('L_h_done')
    if P.get('stat'):
        a("s_waitcnt vmcnt(0)"); hs(10); a("s_waitcnt lgkmcnt(0)")
        for k in range(11): a(f"v_mov_b32 v{32+k}, s{74+2*k}")
        a(f"v_mov_b32 v43, s98\ns_lshl_b32 s{sA}, s{sB}, 5\ns_add_u32 s{sA}, s{sA}, s{sH}\ns_lshl_b32 s{sA}, s{sA}, 2\ns_add_u32 s{sA}, s{sA}, s{sW}\ns_lshl_b32 s{sA}, s{sA}, 6\ns_add_u32 s{sA}, s{sA}, {(49 << 20) + (512 << 10)}\ns_mov_b64 exec, 1")
        for q in range(3): a(f"buffer_store_dwordx4 {vr(32+4*q,4)}, v{L16}, {WS}, s{sA} offen offset:{16*q}")
        a("s_mov_b64 exec, -1")
    a(f"""
    s_cmp_ge_u32 s{sB}, 2
    s_cbranch_scc1 {'L_h_mini' if MINI else 'L_end'}
    {'s_sub_u32 s%d, 7, s%d' % (sB, sB) if P.get('r2', 0) else 's_add_u32 s%d, s%d, 6' % (sB, sB)}
    s_waitcnt vmcnt(0)
    s_branch L_h_again
    """)
    if not MINI: return
    a.label('L_h_mini')
    a(f"""
    s_sub_u32 s{sA3}, s{sB}, 2
    s_cmp_ge_u32 s{sA3}, 4
    s_cbranch_scc1 L_end
    s_add_u32 s{sSeg}, s{sB}, 58
    s_add_u32 s{sB}, s{sB}, 6
    s_mov_b32 s{sSpin}, 0
    s_lshl_b32 s{sA}, s{sW}, 8
    """)
    AQ, AV, AH, AC_2 = 128, 160, 192, ACW
    for i in range(8): a(f"v_add_u32 v{WOA+i}, s{sA}, v{WOA+i}")
    for tt in range(4):
        for k in range(8):
            for pp in range(2): a(f"ds_read_b64_tr_b16 {ar(32*tt + 4*k + 2*pp, 2)}, v{WOA + 4*(k>>2) + tt} offset:{(32*((k>>1)&1) + 8*(k&1) + 4*pp)*1024}")
    SELM, XM = 20, 24
    a("s_waitcnt lgkmcnt(0)")
    red_prep(SELM, 244)
    a(f"""
    s_lshl_b32 s{sWoo}, s{sSeg}, 15
    s_lshl_b32 s{sA2}, s{sH}, 5
    s_add_u32 s{sWoo}, s{sWoo}, s{sA2}
    buffer_load_dwordx4 v[240:243], v{T+2}, {sr(S_X,4)}, s{sWoo} offen
    s_lshl_b32 s{sWoo}, s{sWoo}, 1
    s_lshl_b32 s{sA}, s{sW}, 4
    v_add_u32 v{VKV}, s{sA}, v{MX}
    s_cmp_lg_u32 s{sW}, 0
    s_cbranch_scc1 L_m_st
    """)
    a.label('L_m_w0')
    a(f"buffer_load_dword v{T}, off, {DBG}, 0 offset:{DBG_DN + DBG_ST} sc1\ns_waitcnt vmcnt(0)\nv_cmp_eq_u32 vcc, 0, v{T}\ns_cbranch_vccz L_m_st")
    poll_fail(a, 'L_m_w0', 16)
    a.label('L_m_st')
    a(f"""
    s_waitcnt vmcnt(0)
    s_barrier
    s_lshl_b32 s{sA2}, s{sA3}, 5
    s_add_u32 s{sA2}, s{sA2}, s{sH}
    s_mul_i32 s{sA2}, s{sA2}, {23*1024}
    s_add_u32 s{sA2}, s{sA2}, {WS_ST}
    """)
    for q in range(23):
        dst = ar(AQ + 4 * q, 4) if q < 16 else vr(SS + 4 * (q - 16), 4) if q < 20 else ar(AH + 4 * (q - 20), 4) if q < 22 else vr(248, 4)
        a(f"buffer_load_dwordx4 {dst}, v{L16}, {WS}, s{sA2} offen offset:{1024*(q&3)} sc1")
        if q & 3 == 3: a(f"s_add_u32 s{sA2}, s{sA2}, 4096")
    unpack8(a, 32, 240); unpack8(a, 40, 244)
    for r in range(8): a(f"v_mul_f32 v{32+r}, v{32+r}, v{40+r}")
    a(f"s_bitcmp1_b32 s{sW}, 0\ns_cselect_b64 vcc, -1, 0\ns_mov_b32 s{sA4}, 0x3e0293ee\ns_waitcnt vmcnt(0)\nv_mov_b32 v{G}, v248")
    for r in range(4): a(f"v_cndmask_b32 v{XM+r}, v{32+r}, v{36+r}, vcc")
    for r in range(4): a(f"v_mul_f32 v{XM+r}, v{XM+r}, v{G}")
    LX = XA
    a(f"v_max3_f32 v{MX}, v{SS}, v{SS+1}, v{SS+2}")
    for r in range(3, 15, 2): a(f"v_max3_f32 v{MX}, v{MX}, v{SS+r}, v{SS+r+1}")
    a(f"""
    v_max_f32 v{MX}, v{MX}, v{SS+15}
    v_mov_b32 v{T+1}, v{MX}
    s_nop 1
    v_permlane32_swap_b32 v{MX}, v{T+1}
    v_max_f32 v{MX}, v{MX}, v{T+1}
    v_mul_f32 v{T}, s{sA4}, v{MX}
    """)
    for r in range(16): a(f"v_fma_f32 v{SS+r}, v{SS+r}, s{sA4}, -v{T}")
    for r in range(16): a(f"v_exp_f32 v{SS+r}, v{SS+r}")
    for r in range(8): a(f"v_cvt_pk_bf16_f32 v{248+r}, v{SS+2*r}, v{SS+2*r+1}")
    a(f"v_add_f32 v{LX}, v{SS}, v{SS+1}")
    for r in range(2, 16): a(f"v_add_f32 v{LX}, v{LX}, v{SS+r}")
    for tau in range(4):
        for u in range(2): mf(a, vr(32 + 16 * tau, 16), ar(AV + 8 * tau + 4 * u, 4), vr(248 + 4 * u, 4), vr(32 + 16 * tau, 16) if u else 0)
    a("s_nop 12")
    for r in range(32): a(f"v_cvt_pk_bf16_f32 v{96+r}, v{32+2*r}, v{33+2*r}")
    YC, YX = 96, 160
    a("s_nop 1")
    for tt in range(4):
        for k in range(8): mf(a, vr(YX + 16 * tt, 16), ar(32 * tt + 4 * k, 4), vr(96 + 4 * k, 4), vr(YX + 16 * tt, 16) if k else 0)
    a("s_nop 7")
    for tt in range(4):
        for k in range(2): mf(a, vr(YC + 16 * tt, 16), ar(AC_2 + 8 * tt + 4 * k, 4), ar(AH + 4 * k, 4), vr(YC + 16 * tt, 16) if k else 0)
    PMm, LDm = 240, 244
    a(f"""
    s_lshl_b32 s{sA}, s{sSeg}, 17
    s_lshl_b32 s{sA2}, s{sH}, 12
    s_add_u32 s{sA}, s{sA}, s{sA2}
    s_add_u32 s{sA}, s{sA}, {WS_KM}
    s_cmp_ge_u32 s{sSeg}, {P.get('mfp', 63)}
    s_cselect_b32 s{sA2}, {1 << 17}, 0
    s_sub_u32 s{sA2}, s{sA}, s{sA2}
    s_lshl_b32 s{sA3}, s{sW}, 10
    s_add_u32 s{sA}, s{sA}, s{sA3}
    s_add_u32 s{sA3}, s{sA3}, {H_K}
    v_add_u32 v{XA+1}, s{sA3}, v{L16}
    s_lshl_b32 s{sA3}, s{sW}, 12
    v_subrev_u32 v{VKM}, s{sA3}, v{VKM}
    v_subrev_u32 v{VVM}, s{sA3}, v{VVM}
    v_add_u32 v{T+2}, 2048, v{VKM}
    v_sub_f32 v{G}, 1.0, v{G}
    s_lshl_b32 s{sWo1}, s{sSeg}, 20
    s_add_u32 s{sWo1}, s{sWo1}, {WS_PART}
    s_lshl_b32 s{sA3}, s{sH}, 15
    s_add_u32 s{sWo2}, s{sWo1}, s{sA3}
    s_lshl_b32 s{sA3}, s{sW}, 13
    s_add_u32 s{sWo2}, s{sWo2}, s{sA3}
    s_add_u32 s{sSlot}, s{sWo2}, 4096
    s_lshl_b32 s{sA3}, s{sH}, 10
    s_add_u32 s{sWo1}, s{sWo1}, s{sA3}
    s_lshl_b32 s{sA3}, s{sW}, 18
    s_add_u32 s{sWo1}, s{sWo1}, s{sA3}
    """)
    for tau in range(4): a(f"v_mov_b64 {vr(VMF + 4*tau + 2, 2)}, 0")
    a(f"v_mov_b64 {vr(PMm+2,2)}, 0")
    a("s_getpc_b64 s[60:61]")
    a.label('L_m_pc')
    a(f"v_lshlrev_b32 v{T}, 3, v{L16}\nv_min_u32 v{T}, L_m_fin-L_m_pc, v{T}\nglobal_load_dword v{T}, v{T}, s[60:61]")
    hs(5)
    a.label('L_m_pr')
    a(f"buffer_load_dword v{T}, off, {WS}, s{sA2} offset:3072 sc1\ns_waitcnt vmcnt(0)\nv_cmp_eq_u32 vcc, -1, v{T}\ns_cbranch_vccz L_m_ld")
    poll_fail(a, 'L_m_pr', P.get('mps', 2))
    a.label('L_m_pf')
    a(f"s_add_u32 s{sSpin}, s{sSpin}, 1\ns_cmp_gt_u32 s{sSpin}, {HSPIN}\ns_cbranch_scc1 L_end")
    a.label('L_m_ld')
    a(f"""
    buffer_load_dwordx4 {vr(LDm,4)}, v{L16}, {WS}, s{sA} offen sc1
    s_waitcnt vmcnt(0)
    ds_write_b128 v{XA+1}, {vr(LDm,4)}
    v_max3_u32 v{T}, v{LDm}, v{LDm+1}, v{LDm+2}
    v_max_u32 v{T}, v{T}, v{LDm+3}
    v_cmp_eq_u32 vcc, -1, v{T}
    s_cbranch_vccnz L_m_pf
    s_waitcnt lgkmcnt(0)
    s_barrier
    """)
    for k in range(8):
        o = ((k >> 1) & 1) * 128 + (k & 1) * 32
        a(f"ds_read2_b64 {vr(KMF + 4*k, 4)}, v{VKM if k < 4 else T+2} offset0:{o} offset1:{o+16}")
    for tau in range(4): a(f"ds_read2st64_b32 {vr(VMF + 4*tau, 2)}, v{VVM} offset0:{4*tau} offset1:{4*tau+2}")
    for k in range(8):
        a(f"s_waitcnt lgkmcnt({11-k})")
        mf(a, vr(SM, 16), vr(KMF + 4 * k, 4), ar(AQ + 4 * k, 4), vr(SM, 16) if k else 0)
    hs(6)
    a(f"""
    s_waitcnt lgkmcnt(0)
    s_nop 11
    v_max3_f32 v{T}, v{MX}, v{SM}, v{SM+1}
    v_max3_f32 v{T}, v{T}, v{SM+2}, v{SM+3}
    v_mov_b32 v{T+1}, v{T}
    s_nop 1
    v_permlane32_swap_b32 v{T}, v{T+1}
    v_max_f32 v{T}, v{T}, v{T+1}
    v_mul_f32 v{T}, s{sA4}, v{T}
    """)
    for r in [SM, SM + 1, SM + 2, SM + 3, MX]: a(f"v_fma_f32 v{r}, v{r}, s{sA4}, -v{T}")
    for r in [SM, SM + 1, SM + 2, SM + 3, MX]: a(f"v_exp_f32 v{r}, v{r}")
    a(f"""
    v_add_f32 v{T}, v{SM}, v{SM+1}
    v_add_f32 v{T+1}, v{SM+2}, v{SM+3}
    v_fmac_f32 v{T}, v{LX}, v{MX}
    v_add_f32 v{T}, v{T}, v{T+1}
    v_mov_b32 v{T+1}, v{T}
    s_nop 1
    v_permlane32_swap_b32 v{T}, v{T+1}
    v_add_f32 v{T}, v{T}, v{T+1}
    v_rcp_f32 v{T}, v{T}
    s_nop 0
    v_mul_f32 v{T}, v{T}, v{G}
    """)
    for r in range(4): a(f"v_mul_f32 v{SM+r}, v{SM+r}, v{T}")
    a(f"v_cvt_pk_bf16_f32 v{PMm}, v{SM}, v{SM+1}\nv_cvt_pk_bf16_f32 v{PMm+1}, v{SM+2}, v{SM+3}\nv_mul_f32 v{MX}, v{MX}, v{T}")
    OBm = [32, 48, 80, 224]; OF = 160
    fm = [f"v_fmac_f32 v{YC+r}, v{YX+r}, v{MX}" for r in range(64)]
    a(fm.pop(0))
    for tau in range(4):
        mf(a, vr(OBm[tau], 16), vr(VMF + 4 * tau, 4), vr(PMm, 4), 0)
        for _ in range(6): a(fm.pop(0))
    for _ in range(7): a(fm.pop(0))
    cvo = lambda tau: [f"v_cvt_pk_bf16_f32 v{OF+8*tau+r}, v{OBm[tau]+2*r}, v{OBm[tau]+2*r+1}" for r in range(8)]
    for l in cvo(0): a(l)
    fill = cvo(1) + cvo(2) + cvo(3) + fm
    a(fill.pop(0)); a(fill.pop(0))
    CTm = 32
    def epim(tt):
        L_ = [f"v_cvt_pk_bf16_f32 v{CTm+8*tt+r}, v{YC+16*tt+2*r}, v{YC+16*tt+2*r+1}\nv_min_u32 v{CTm+8*tt+r}, -2, v{CTm+8*tt+r}" for r in range(8)]
        L_ += [f"buffer_store_dwordx4 {vr(CTm+8*tt+4*u,4)}, v{L16}, {WS}, s{sWo1} offen sc1\ns_add_u32 s{sWo1}, s{sWo1}, 32768" for u in range(2)]
        return L_
    order = [(tt, k) for k in range(8) for tt in range(2)] + [(2, k) for k in range(8)] + [(3, k) for k in range(8)]
    ep = []
    for n, (tt, k) in enumerate(order):
        mf(a, vr(YC + 16 * tt, 16), ar(32 * tt + 4 * k, 4), vr(OF + 4 * k, 4), vr(YC + 16 * tt, 16))
        for _ in range(6):
            if fill: a(fill.pop(0))
        if n == 17: ep += epim(0) + epim(1)
        if n == 25: ep += epim(2)
        for _ in range(3):
            if ep: a(ep.pop(0))
    assert not fill and not ep
    a("s_nop 12")
    for l in epim(3): a(l)
    hs(8)
    a(f"s_lshl_b32 s{sA3}, s{sW}, 11\ns_add_u32 s{sA3}, s{sA3}, {H_K + 4096}\nv_add_u32 v{T+1}, s{sA3}, v{L16}")
    a(f"s_lshl_b32 s{sA3}, s{sW}, 10\ns_add_u32 s{sA3}, s{sA3}, {H_K + 4096}\nv_add_u32 v{T+2}, s{sA3}, v{L16}")
    a(f"v_and_b32 v{MX}, 7, v{LANE}\nv_lshlrev_b32 v{MX}, 10, v{MX}")
    a(f"s_waitcnt vmcnt({P.get('mdr', 0)})")
    a(f"""
    s_cmp_ge_u32 s{sSeg}, {P.get('mth', 60)}
    s_cbranch_scc1 {'L_m_rd' if P.get('mg', 0) else 'L_m_rf'}
    s_barrier
    s_cmp_lg_u32 s{sW}, 0
    s_cbranch_scc1 L_m_c1
    s_lshl_b32 s{sA4}, s{sSeg}, 7
    s_add_u32 s{sA4}, s{sA4}, {WS_CNT}
    v_mov_b32 v{T}, 1
    s_mov_b64 exec, 1
    buffer_atomic_add v{T}, off, {WS}, s{sA4}
    s_mov_b64 exec, -1
    """)
    a.label('L_m_c0')
    a(f"buffer_load_dword v{T}, off, {WS}, s{sA4} sc1\ns_waitcnt vmcnt(0)\nv_cmp_gt_u32 vcc, 32, v{T}\ns_cbranch_vccz L_m_c1")
    poll_fail(a, 'L_m_c0', P.get('slc', 2))
    a.label('L_m_c1')
    a("s_barrier\ns_branch L_m_rd")
    a.label('L_m_rf')
    a(f"""
    s_mov_b64 exec, 0xff
    buffer_load_dword v{T}, v{MX}, {WS}, s{sWo2} offen offset:1020 sc1
    s_add_u32 s{sSpin}, s{sSpin}, 1
    s_cmp_gt_u32 s{sSpin}, {HSPIN}
    s_cbranch_scc1 L_end
    s_waitcnt vmcnt(0)
    v_cmp_eq_u32 vcc, -1, v{T}
    s_mov_b64 exec, -1
    s_cbranch_vccz L_m_rd
    s_sleep {P.get('msl', 1)}
    s_branch L_m_rf
    """)
    a.label('L_m_rd')
    hs(9)
    for k in range(8): a(f"buffer_load_dwordx4 {vr(96+4*k,4)}, v{L16}, {WS}, s{sWo2 if k < 4 else sSlot} offen offset:{1024*(k&3)} sc1")
    a(f"v_mov_b32 v{T}, 0")
    for k in range(8):
        a(f"s_waitcnt vmcnt({7-k})")
        mf(a, vr(64, 16), vr(SELM, 4), vr(96 + 4 * k, 4), vr(64, 16) if k else 0)
        a(f"v_max3_u32 v{T}, v{T}, v{96+4*k}, v{97+4*k}\nv_max3_u32 v{T}, v{T}, v{98+4*k}, v{99+4*k}")
    a(f"""
    v_cmp_eq_u32 vcc, -1, v{T}
    s_cbranch_vccnz L_m_rf
    s_nop 7
    ds_write_b128 v{T+1}, v[64:67]
    ds_write_b128 v{T+1}, v[68:71] offset:1024
    s_waitcnt lgkmcnt(0)
    s_barrier
    s_cmp_ge_u32 s{sW}, 2
    s_cbranch_scc1 L_m_fin
    """)
    for k in range(4): a(f"ds_read_b128 {vr(96+4*k,4)}, v{T+2} offset:{2048*k}")
    for k in range(4):
        a(f"s_waitcnt lgkmcnt({3-k})")
        a(f"v_pk_add_f32 {vr(XM,2)}, {vr(XM,2)}, {vr(96+4*k,2)}\nv_pk_add_f32 {vr(XM+2,2)}, {vr(XM+2,2)}, {vr(98+4*k,2)}")
    a(f"buffer_store_dwordx4 {vr(XM,4)}, v{VKV}, {sr(S_OUT,4)}, s{sWoo} offen")
    a.label('L_m_fin')
    a("s_branch L_h_done" if P.get('stat') else "s_branch L_hend" if P.get('dbgt') else "s_branch L_end")

if __name__ == '__main__':
    a = Asm(); h_once(a); helper_task(a, {})
    errs, ins = check(a.lines, 'helper')
    for e in errs: print(e)
    print(len(ins), ins[-1]['t'])
```

```python
from asmlib import *

WS_KV = 65536
WS_KM = (34 << 20) + 65536
WS_H1 = 48 << 20
WS_IMG = WS_H1 + (512 << 10)
WS_FL = WS_IMG + (64 << 10)
WS_H1B = WS_H1 + (256 << 10)
WS_IMB = WS_IMG + (128 << 10)
DBG_ARM = 132
ARM_ALL = {0: 32, 1: 64}
WS_STAMP = 49 << 20
WS_SIZE = 268435456
DBG_XCNT = 0
DBG_CBAR = 4
DBG_KV0 = 12
DBG_KVC = 16
DBG_DN = 128
L_MEM, L_S, L_KV, L_W = 0, 8192, 16384, 32768
L_O = L_MEM + 1024
L_SM = L_S + 1024
L_MISC = L_S + 5120
S_WS, S_WQ, S_WK, S_WV, S_WO, S_DBG, S_M0 = 4, 8, 12, 16, 20, 24, 28
sH, sW, sS = 32, 33, 34
sKV, sKM, sH1l, sTAG, sIMl = 35, 36, 37, 38, 39
sH1 = 40
sIMw, sIMr, sFL, sSPIN = 44, 45, 46, 47
sIML, sKMv = 59, 58
sONE, sMLO, sFLn, sRB, sFM, sLX = 84, 86, 3, 2, 54, 56
sFG = 80
sC = 48
sT = 50
IDX, L16, A_W, A_SMW, NEG1, A_O, A_H1S, A_IMS = 0, 1, 2, 3, 4, 5, 6, 7
A_OW, FLV, HZ = 8, 9, 10
F, SEL, ONE = 12, 16, 20
MA = 24
Q0, K0, Q1, K1, V0, V1 = 56, 60, 64, 68, 72, 76
KX, VX, ST = 80, 88, 96
RW = 128
SPIN_MAX = 1000000

QK_A = {1: 0, 2: 1, 3: 2, 5: 3, 6: 4, 7: 5}
def wqk_reg(sig, u):
    if sig in (0, 4): return ('v', ST + 8 * u)
    return ('a', 32 * QK_A[sig] + 8 * u)
def wv_reg(sig, tau):
    if sig < 4: return ('a', 192 + 8 * (2 * sig + tau))
    return ('v', RW + 8 * (2 * (sig - 4) + tau))
def wo_reg(T, k2):
    if T < 2: return ('v', RW + 64 + 8 * (4 * T + k2))
    return ('v', (ST if T == 2 else MA) + 8 * k2)
def R8(r): return vr(r[1], 8, r[0])
def smf(a, D, A, B): a(f"v_smfmac_f32_16x16x64_bf16 {vr(D,4)}, {vr(A,4)}, {R8(B)}, v{IDX}")
def lw_qk(sig, u): return 8192 * (sig >> 2) + 4096 * (u & 1) + 2048 * (u >> 1)
def lw_wo(T, k2): return 16384 + 2048 * (4 * (T - 2) + k2)
def nops(a, n):
    while n > 0:
        k = min(n, 16); a(f"s_nop {k-1}"); n -= k

def srd(a, s, koff, size):
    a(f"s_load_dwordx2 {sr(s,2)}, s[0:1], {koff}")
    a(f"s_mov_b32 s{s+2}, {size}\ns_mov_b32 s{s+3}, 0x20000")

def chain_setup(a):
    t = 96
    lane, i, g, g1, g0, hi, i3, i2 = t + 1, t + 2, t + 3, t + 6, t + 7, t + 8, t + 9, t + 10
    x, y, z = t + 5, t + 12, t + 13
    a(f"""
    v_and_b32 v{lane}, 63, v0
    v_and_b32 v{i}, 15, v{lane}
    v_lshrrev_b32 v{g}, 4, v{lane}
    v_lshlrev_b32 v{L16}, 4, v{lane}
    v_lshrrev_b32 v{g1}, 1, v{g}
    v_and_b32 v{g0}, 1, v{g}
    v_lshrrev_b32 v{hi}, 3, v{i}
    v_and_b32 v{i3}, 3, v{i}
    v_lshrrev_b32 v{i2}, 2, v{i}
    s_lshl_b32 s{sT+1}, s{sW}, 15
    s_add_u32 s{sT+1}, s{sT+1}, {L_W}
    v_add_u32 v{A_W}, s{sT+1}, v{L16}
    v_lshl_add_u32 v{y}, v{hi}, 1, v{g0}
    v_and_b32 v{x}, 7, v{i}
    v_lshl_add_u32 v{x}, v{y}, 4, v{x}
    v_lshlrev_b32 v{x}, 4, v{x}
    v_add_u32 v{y}, s{sW}, v{y}
    v_and_b32 v{y}, 3, v{y}
    v_lshl_add_u32 v{x}, v{y}, 2, v{x}
    v_xor_b32 v{y}, 1, v{g1}
    v_lshl_add_u32 v{x}, v{y}, 11, v{x}
    v_add_u32 v{A_SMW}, {L_SM}, v{x}
    v_mov_b32 v{HZ}, 0x3f803f80
    v_mov_b32 v{HZ+1}, 0
    v_mov_b32 v{NEG1}, -1
    v_and_b32 v{A_O}, 0x37f, v{L16}
    v_lshlrev_b32 v{y}, 7, v{g0}
    v_or_b32 v{A_O}, v{A_O}, v{y}
    v_xor_b32 v{A_OW}, v{L16}, v{y}
    v_mov_b32 v{FLV}, 0
    v_cmp_lt_u32 vcc, 7, v{i}
    v_mov_b32 v{y}, 0x4444
    v_mov_b32 v{z}, 0xeeee
    v_cndmask_b32 v{t+11}, v{y}, v{z}, vcc
    """)
    a(f"""
    v_lshlrev_b32 v{x}, 2, v{g1}
    v_lshl_add_u32 v{x}, v{hi}, 1, v{x}
    v_add_u32 v{x}, v{x}, v{g0}
    v_lshlrev_b32 v{x}, 11, v{x}
    v_and_b32 v{y}, 7, v{i}
    v_lshl_add_u32 v{x}, v{y}, 3, v{x}
    s_lshl_b32 s{sT+2}, s{sW}, 14
    s_lshl_b32 s{sT+3}, s{sH}, 6
    s_add_u32 s{sT+2}, s{sT+2}, s{sT+3}
    v_add_u32 v{A_H1S}, s{sT+2}, v{x}
    """)
    a(f"""
    s_lshl_b32 s{sT+2}, s{sW}, 5
    s_add_u32 s{sT+2}, s{sT+2}, s{sH}
    s_lshl_b32 s{sT+2}, s{sT+2}, 6
    v_lshlrev_b32 v{x}, 4, v{g}
    v_lshl_add_u32 v{x}, v{i}, 2, v{x}
    v_add_u32 v{x}, s{sT+2}, v{x}
    v_cmp_gt_u32 vcc, 4, v{i}
    v_bfrev_b32 v{z}, 1
    s_nop 0
    v_cndmask_b32 v{A_IMS}, v{z}, v{x}, vcc
    """)
    a(f"""
    v_lshl_add_u32 v{x}, v{hi}, 2, v{i3}
    v_and_b32 v{y}, 1, v{i2}
    v_cmp_eq_u32 vcc, v{y}, v{g0}
    v_mov_b32 v{z}, 64
    s_nop 0
    v_cndmask_b32 v{x}, v{z}, v{x}, vcc
    v_and_b32 v{y}, 1, v{i}
    v_lshl_add_u32 v{t+14}, v{y}, 2, v{i2}
    v_cmp_gt_u32 vcc, 2, v{i3}
    s_mov_b32 s{sT+3}, 0x3f80
    s_nop 0
    v_cndmask_b32 v{t+14}, v{z}, v{t+14}, vcc
    """)
    for base, pos in ((F, x), (SEL, t + 14)):
        a(f"""
        v_and_b32 v{t+15}, 1, v{pos}
        v_lshlrev_b32 v{t+15}, 4, v{t+15}
        v_lshlrev_b32 v{t+15}, v{t+15}, s{sT+3}
        v_lshrrev_b32 v{t+16}, 1, v{pos}
        """)
        for d in range(4):
            a(f"""
            v_cmp_eq_u32 vcc, {d}, v{t+16}
            s_nop 1
            v_cndmask_b32 v{base+d}, 0, v{t+15}, vcc
            """)
    a(f"""
    v_and_b32 v{t+16}, 1, v{i2}
    v_lshl_add_u32 v{t+14}, v{g0}, 2, v{t+16}
    v_lshl_add_u32 v{t+16}, v{g0}, 1, v{t+16}
    v_xor_b32 v{t+16}, s{sW}, v{t+16}
    v_lshlrev_b32 v{t+16}, 6, v{t+16}
    v_add_u32 v{t+16}, {L_W}, v{t+16}
    v_lshl_add_u32 v{t+15}, v{hi}, 3, v{t+14}
    v_lshl_add_u32 v{t+15}, v{t+15}, 8, v{t+16}
    v_lshl_add_u32 v{t+15}, v{g1}, 15, v{t+15}
    v_lshl_add_u32 v58, v{i3}, 4, v{t+15}
    v_add_u32 v61, 0x10000, v58
    v_lshl_add_u32 v{t+15}, v{g1}, 3, v{t+14}
    v_lshl_add_u32 v{t+15}, v{t+15}, 8, v{t+16}
    v_lshl_add_u32 v{t+15}, v{hi}, 5, v{t+15}
    v_lshl_add_u32 v59, v{i3}, 3, v{t+15}
    v_add_u32 v62, 0x10000, v59
    v_and_b32 v{x}, 7, v{i}
    v_lshlrev_b32 v{x}, 10, v{x}
    v_lshl_add_u32 v{x}, v{g}, 5, v{x}
    v_lshl_add_u32 v{x}, v{hi}, 4, v{x}
    s_lshl_b32 s{sT+2}, s{sW}, 7
    v_add_u32 v60, s{sT+2}, v{x}
    v_mov_b32 v{IDX}, v{t+11}
    """)
    for k in range(4): a(f"v_mov_b32 v{64+k}, -1")

def chain_prologue(a, P):
    WS = sr(S_WS, 4)
    a(f"""
    s_mov_b32 s{sS}, 0
    s_lshl_b32 s{sT}, s{sH}, 2
    s_add_u32 s{sT}, s{sT}, s{sW}
    s_lshl_b32 s{sKV}, s{sT}, 12
    s_add_u32 s{sKV}, s{sKV}, {WS_KV}
    s_lshl_b32 s{sKM}, s{sT}, 10
    s_mov_b32 s{sFLn}, {DBG_DN + DBG_KV0}
    s_add_u32 s{sKM}, s{sKM}, {WS_KM}
    s_mov_b32 s{sH1}, {WS_H1}
    s_mov_b32 s{sH1+1}, {WS_H1 + 65536}
    s_mov_b32 s{sH1+2}, {WS_H1 + 2*65536}
    s_mov_b32 s{sH1+3}, {WS_H1 + 3*65536}
    s_lshl_b32 s{sT}, s{sW}, 5
    s_add_u32 s{sT}, s{sT}, s{sH}
    s_lshl_b32 s{sT}, s{sT}, 11
    s_add_u32 s{sH1l}, s{sT}, {WS_H1}
    s_mov_b32 s{sTAG}, 0
    s_mov_b32 s{sIMw}, {WS_IMG + 8192}
    s_mov_b32 s{sIMr}, {WS_IMG + 16384}
    s_mov_b32 s{sIMl}, {WS_IMG}
    s_mov_b32 s{sIML}, {WS_IMG}
    s_mov_b32 s{sKMv}, 0x70000000
    s_mov_b32 s{sONE}, 0x3f803f80
    s_mov_b32 s{sONE+1}, 0x3f803f80
    s_mov_b32 s{sMLO}, 0x00ff00ff
    s_mov_b32 s{sMLO+1}, 0x00ff00ff
    s_mov_b32 s{sC}, 0x3e0293ee
    s_mov_b32 s{sC+1}, 0x3e0293ee
    """)
    if P.get('tb', 1):
        a(f"s_cmp_lg_u32 s{sRB}, 0\ns_cbranch_scc1 L_c_b0\ns_mov_b32 s{sS}, 1\ns_add_u32 s{sKV}, s{sKV}, 0x80000\ns_add_u32 s{sKM}, s{sKM}, 0x20000\ns_branch L_c_b1")
        a.label('L_c_b0')
        for r in (sH1, sH1 + 1, sH1 + 2, sH1 + 3, sIMr): a(f"s_mov_b32 s{r}, 0x70000000")
        a(f"s_add_u32 s{sH1l}, s{sH1l}, {WS_H1B - WS_H1}\ns_mov_b32 s{sIMw}, {WS_IMB}")
        for k in range(4): a(f"buffer_store_dwordx4 v[64:67], v{L16}, {WS}, s{sKV} offen offset:{1024*k} sc1"); a.vm.pop()
        a.label('L_c_b1')
    a(f"""
    buffer_store_dwordx4 v[64:67], v{L16}, {WS}, s{sH1l} offen sc1
    buffer_store_dwordx4 v[64:67], v{L16}, {WS}, s{sH1l} offen offset:1024 sc1
    buffer_store_dword v64, v{A_IMS}, {WS}, s{sIMw} offen sc1
    v_xor_b32 v63, {256 if P.get('sw', 2) else 0}, v60
    buffer_load_dwordx4 {vr(MA,4)}, v63, {sr(S_M0,4)}, 0 offen
    buffer_load_dwordx4 {vr(MA+16,4)}, v{63 if P.get('sw', 2) == 2 else 60}, {sr(S_M0,4)}, 0 offen offset:512
    """, vm='init')
    for w in range(3): a(f"s_cmp_eq_u32 s{sW}, {w}\ns_cbranch_scc1 L_cp_{w}")
    a("s_branch L_cp_3")

UNITS = []; SLOT = {}; ISSUE = {}
def plan_units(P):
    L = [(m, k) for m in P.get('mord', 'vkq') for k in range(8)]
    if P.get('ilv', 0):
        U = []
        for i in range(8): U += L[3 * i:3 * i + 3] + [('o', i)]
    else: U = L + [('o', u) for u in range(8)]
    UNITS[:] = U; SLOT.clear(); ISSUE.clear()
    fin = lambda u: U[u][0] == 'o' and U[u][1] >= 4
    free = list(range(8)); nxt = 0
    for it in range(-1, 32):
        if it >= 1 and not fin(it - 1): free.append(SLOT[it - 1])
        ISSUE[it] = []
        if it == 0: continue
        while nxt < 32:
            if fin(nxt):
                if U[nxt][1] not in free: break
                s = U[nxt][1]
            else:
                soon = [U[v][1] for v in range(nxt + 1, min(nxt + 8, 32)) if fin(v)]
                c = [x for x in free if x not in soon]
                if not c: break
                s = c[0]
            free.remove(s); SLOT[nxt] = s; ISSUE[it].append(nxt); nxt += 1
    assert nxt == 32
sLB, sO1, sHB, sHO = sT + 4, sT + 5, sT + 6, sT + 7
PF = ['']
def issue_one(a, u, i):
    kind, x = UNITS[u]
    if kind == 'o': base, off, step, voff, S = sHO, 64 * (x & 1) * 1024 + 256 * (x >> 1), 4 * 1024, 57, S_WO
    else: base, off, step, voff, S = sHB, x << 19, 4 * 8192, 56, {'q': S_WQ, 'k': S_WK, 'v': S_WV}[kind]
    a(f"s_add_u32 m0, s{sLB}, {SLOT[u] * 4096 + i * 1024}")
    a(f"s_add_u32 s{sO1}, s{base}, {off + i * step}")
    a(f"buffer_load_dwordx4 v{voff - 4 * (i & 1)}, {sr(S,4)}, s{sO1} offen {PF[0]} lds", vm=('u', u))
def issue_unit(a, u):
    for i in range(4): issue_one(a, u, i)

def chain_first_dma(a):
    a(f"""
    v_bfe_u32 v96, v0, 4, 2
    v_and_b32 v97, 15, v0
    v_bfe_u32 v98, v0, 4, 1
    v_lshlrev_b32 v98, 2, v98
    v_xor_b32 v97, v97, v98
    v_lshlrev_b32 v97, 4, v97
    v_lshl_add_u32 v56, v96, 13, v97
    v_lshl_add_u32 v57, v96, 10, v97
    v_xor_b32 v52, 128, v56
    v_xor_b32 v53, 128, v57
    s_lshl_b32 s{sLB}, s{sW}, 15
    s_add_u32 s{sLB}, s{sLB}, {L_W}
    s_lshl_b32 s{sHB}, s{sH}, 8
    s_lshl_b32 s{sT+2}, s{sW}, 17
    s_add_u32 s{sHB}, s{sHB}, s{sT+2}
    s_lshl_b32 s{sHO}, s{sH}, 17
    s_lshl_b32 s{sT+2}, s{sW}, 14
    s_add_u32 s{sHO}, s{sHO}, s{sT+2}
    """)
    for u in ISSUE[-1]: issue_unit(a, u)

def chain_prologue_w(a, P, w, vm0):
    WS = sr(S_WS, 4)
    a.label(f'L_cp_{w}')
    a.vm = list(vm0); a.lg = []
    TB = P.get('tb', 1); ALL = 32
    PK4 = 64
    def wb(u):
        for i in range(4): a(f"ds_write_b128 v{A_W}, {vr(28 + 16*(i>>1) + 4*(i&1),4)} offset:{SLOT[u] * 4096 + 1024*i}")
    for u in range(32):
        kind, x = UNITS[u]
        a.wait(vm=('u', u))
        a("s_barrier")
        if u == P.get('ek', 30) - 6: a(f"s_lshl_b32 s{sT+2}, s{sRB}, 12\nbuffer_load_dword v39, off, {sr(S_DBG,4)}, s{sT+2} offset:{DBG_KV0} sc1", vm='fe')
        if P.get('pu') == u: a("s_memrealtime s[100:101]")
        dq = [(v, i) for v in ISSUE[u] for i in range(4)]
        if u == 9:
            for r in list(range(MA, MA + 4)) + list(range(MA + 16, MA + 20)): a(f"v_min_u32 v{r}, -2, v{r}")
            if w == 0:
                a(f"s_cmp_lg_u32 s{sRB}, 0\ns_cselect_b32 s{sT+2}, {DBG_ARM}, {DBG_CBAR}\ns_mov_b64 exec, 1\nv_mov_b32 v38, 1")
                a(f"buffer_atomic_add v38, off, {sr(S_DBG,4)}, s{sT+2}", vm='at')
                a("s_mov_b64 exec, -1")
        if u == P.get('uw', 25):
            a(f"s_getpc_b64 {sr(sT,2)}")
            a.label(f'L_cpc_{w}')
            a(f"v_lshlrev_b32 v63, 3, v{L16}\ns_cmp_lg_u32 s{sRB}, 0\ns_cselect_b32 s{sT+2}, s{sIMr}, {WS_IMG + 8192*w}\ns_cselect_b32 s{sT+3}, s{sIMr}, s{sH1l}")
            a(f"buffer_load_dword v36, v63, {WS}, s{sT+2} offen sc1", vm='w')
            a(f"v_and_b32 v37, 0x780, v63\nv_min_u32 v63, L_step_{w}-L_top_{w}, v63\nv_add_u32 v63, L_top_{w}-L_cpc_{w}, v63")
            a(f"buffer_load_dword v36, v37, {WS}, s{sT+3} offen sc1", vm='w')
            a(f"global_load_dword v36, v63, {sr(sT,2)}", vm='w')
            if P.get('tlb', 1) and w < 2:
                a(f"s_mov_b32 s{sT+2}, {(WS_KV if w == 0 else WS_KM) - 4096}")
                a(f"buffer_load_dword v36, off, {WS}, s{sT+2} sc1", vm='w')
        fin = lambda v: UNITS[v][0] == 'o' and UNITS[v][1] >= 4
        if u == 1 + max(v for v in range(32) if not fin(v)):
            for sg, src in ((0, ST), (4, PK4)):
                for uu in range(4):
                    for hf in range(2): a(f"ds_write_b128 v{A_W}, {vr(src + 8*uu + 4*hf,4)} offset:{lw_qk(sg, uu) + 1024*hf}")
                a.wait(lg='all')
        fl0 = f"s_mul_i32 s{sT}, s{sRB}, {DBG_ARM - DBG_CBAR}\ns_mul_i32 s{sT+1}, s{sRB}, {DBG_ARM - DBG_KV0}\nbuffer_load_dword v36, off, {sr(S_DBG,4)}, s{sT} offset:{DBG_CBAR} sc1\nbuffer_load_dword v37, off, {sr(S_DBG,4)}, s{sT+1} offset:{DBG_KV0} sc1"
        if u == 30 and P.get('dlyc'): a(f"s_sleep {P['dlyc']}")
        kvl = lambda so: '\n'.join(f"buffer_load_dwordx4 {vr(KX+4*k,4)}, v{L16}, {WS}, s{so} offen offset:{1024*k} sc1" for k in range(4))
        sw = P.get('sw', 2)
        m1l = f"buffer_load_dwordx4 v[64:67], v{L16}, {WS}, s{sIMl} offen sc1\nbuffer_load_dwordx4 v[68:71], v{L16}, {WS}, s{sIML} offen sc1"
        m1a = f"s_mov_b32 s{sIMl}, {WS_IMB + 1024*(w ^ (2 if sw else 0))}\ns_mov_b32 s{sIML}, {WS_IMB + 4096 + 1024*(w ^ (2 if sw == 2 else 0))}"
        ek = P.get('ek', 30)
        if u == ek:
            a.wait(vm='fe'); a(f"v_readfirstlane_b32 s{sT+3}, v39")
            a(f"s_cmp_ge_u32 s{sT+3}, {ALL}\ns_cselect_b32 s{sT+2}, s{sKV}, 0x70000000"); a(kvl(sT + 2), vm='kv')
            if TB:
                a(m1a); a(f"s_cselect_b32 s{sIMl}, s{sIMl}, s{sT+2}\ns_cselect_b32 s{sIML}, s{sIML}, s{sT+2}"); a(m1l, vm='kv')
        if u == 30 and w == 0: a(fl0, vm='f0')
        if u and fin(u - 1): wb(u - 1)
        base = SLOT[u] * 4096
        sig = ((x - w - (2 if P.get('sw', 2) > (x >> 2) else 0)) & 3) | (x & 4)
        for half in range(2):
            if fin(u): k, dst = 'v', 28 + 16 * half
            elif kind in 'qk':
                uu = 2 * half + (kind == 'k')
                k, dst = ('v', PK4 + 8 * uu) if sig == 4 else wqk_reg(sig, uu)
            elif kind == 'v': k, dst = wv_reg(sig, half)
            else: k, dst = wo_reg(x >> 1, 2 * (x & 1) + half)
            for p in range(4):
                if kind == 'o': off, ad = base + 32768 * (p >> 1) + 512 * (p & 1), (59, 62)[half]
                else: off, ad = base + 512 * (p & 1) + 8 * half, (58, 61)[p >> 1]
                a(f"ds_read_b64_tr_b16 {vr(dst + 2*p, 2, k)}, v{ad} offset:{off}")
                if p & 1 and dq: issue_one(a, *dq.pop(0))
        while dq: issue_one(a, *dq.pop(0))
        if P.get('pw') and P.get('pw0', 8) <= u < 31:
            for k in range(P['pw']): a(f"v_smfmac_f32_16x16x64_bf16 v[48:51], v[24:27], a[{192 + 8 * (k & 7)}:{199 + 8 * (k & 7)}], v0" if u < 28 else f"v_smfmac_f32_16x16x64_bf16 v[72:75], v[24:27], a[{192 + 8 * (k & 7)}:{199 + 8 * (k & 7)}], v0")
        a.wait(lg='all')
    a("s_barrier")
    wb(31)
    a.wait(lg='all')
    if (P.get('stat') or P.get('dbgt')) and P.get('pu') is None: a("s_memrealtime s[100:101]")
    a(f"s_mov_b32 s{sSPIN}, 0\ns_mov_b32 m0, {L_KV + 4096*w}")
    if w == 0:
        a(f"s_lshl_b32 s{sT+2}, s{sRB}, 5\ns_add_u32 s{sT+2}, s{sT+2}, 32\ns_branch L_c_w1")
        a.label(f'L_c_w0')
        a(f"""
        s_add_u32 s{sSPIN}, s{sSPIN}, 1
        s_cmp_gt_u32 s{sSPIN}, {SPIN_MAX}
        s_cbranch_scc1 L_exit
        s_sleep {P.get('slp0', 4)}
        """)
        a(fl0)
        a.label('L_c_w1')
        a.wait(vm='all')
        a(f"""
        v_cmp_gt_u32 vcc, 32, v36
        s_cbranch_vccnz L_c_w0
        v_cmp_gt_u32 vcc, s{sT+2}, v37
        s_cbranch_vccnz L_c_w0
        """)
    a("s_barrier")
    if ek < 32: a(f"s_cmp_ge_u32 s{sT+3}, {ALL}\ns_cbranch_scc1 L_c_kv_{w}")
    if TB: a(f"s_cmp_lg_u32 s{sRB}, 0\ns_cbranch_scc1 L_c_m{5 if P.get('bd') else 2}_{w}")
    a(kvl(sKV))
    if TB:
        a.label(f'L_c_m1_{w}')
        a(m1a); a(f"s_sleep {P.get('aps', 4)}"); a(m1l)
        a(f"s_add_u32 s{sSPIN}, s{sSPIN}, 1\ns_cmp_gt_u32 s{sSPIN}, {SPIN_MAX}\ns_cbranch_scc1 L_exit")
    a.label(f'L_c_kv_{w}')
    if TB:
        a(f"""
        s_cmp_lg_u32 s{sRB}, 0
        s_cbranch_scc1 L_c_m3_{w}
        s_waitcnt vmcnt(0)
        v_max3_u32 v36, v64, v65, v66
        v_max3_u32 v37, v67, v68, v69
        v_max3_u32 v36, v36, v70, v71
        v_max_u32 v36, v36, v37
        v_cmp_eq_u32 vcc, -1, v36
        v_mov_b64 {vr(MA,2)}, v[64:65]
        v_mov_b64 {vr(MA+2,2)}, v[66:67]
        v_mov_b64 {vr(MA+16,2)}, v[68:69]
        v_mov_b64 {vr(MA+18,2)}, v[70:71]
        s_cbranch_vccnz L_c_m1_{w}
        s_branch L_c_m4_{w}
        """)
        a.label(f'L_c_m2_{w}')
        a(f"""
        s_add_u32 s{sSPIN}, s{sSPIN}, 1
        s_cmp_gt_u32 s{sSPIN}, {SPIN_MAX}
        s_cbranch_scc1 L_end
        s_sleep {P.get('bps', 4)}
        buffer_load_dword v36, off, {WS}, s{sKV} offset:4092 sc1
        s_waitcnt vmcnt(0)
        v_cmp_eq_u32 vcc, -1, v36
        s_cbranch_vccnz L_c_m2_{w}
        """)
        a.label(f'L_c_m5_{w}')
        a(kvl(sKV))
        a.label(f'L_c_m3_{w}')
        a(f"s_waitcnt vmcnt(0)\nv_max3_u32 v36, v{KX}, v{KX+1}, v{KX+2}")
        for r in range(3, 15, 2): a(f"v_max3_u32 v36, v36, v{KX+r}, v{KX+r+1}")
        a(f"v_max_u32 v36, v36, v{KX+15}\nv_cmp_eq_u32 vcc, -1, v36\ns_cbranch_vccnz L_c_m2_{w}\ns_mov_b32 s{sKV}, 0x70000000")
        a.label(f'L_c_m4_{w}')
    a(f"s_add_u32 s{sKV}, s{sKV}, 0x80000\ns_mov_b32 s{sFL}, {DBG_DN + DBG_KV0}\ns_mov_b64 {sr(sFM,2)}, 0\nv_mov_b32 v{FLV}, 32\ns_mov_b32 s{sSPIN}, 0")
    for l in idle_work():
        if not l.startswith('ds_'): a(l)
    a.wait(lg='all')
    if P.get('stat'): a("s_memrealtime s[64:65]\ns_waitcnt lgkmcnt(0)")
    a.label(f'L_cpe_{w}')
    a(f"s_branch L_step_{w}")

def idle_work():
    L = [f"ds_read_b128 {vr(ST + 8*u + 4*hf, 4)}, v{A_W} offset:{lw_qk(0, u) + 1024*hf}" for u in range(4) for hf in range(2)]
    L += [f"v_mov_b64 {vr(Q0+i,2)}, 0" for i in range(0, 24, 2)]
    return L

DEF = dict(b1=3, nL=10, nB2=5, nv1=3, nv2=0, nvA=5, sv=9, so=1, nr4=3, earlyL=0, dH1=[26, 42, 64, 78], dE=[32, 16, 0, 0], h2=[28, 28, 28, 28], dwf=0, cs=0, g2v=0, dup=1, c1=0, lb1=0, svp=[-1, 0, 2, 4], dp=None, sync=0, fpos=-2, pp=[-1, 1, 3, 5, 7, 11], pE=20, inGap=[0, 0, 0, 1], nPre=[0, 0, 0, 0],
           dS=[-1, -1], kw=0, vmPos=None, mx=1, g2w=1, nd=0, ad=1, nrc=4, dma0=14, nE=3, dT=0, stg=1)
def pack_km():
    X = Q0
    L = [f"v_mov_b32_dpp v{X+2}, v{X} row_ror:8 row_mask:0xf bank_mask:0x3", f"v_mov_b32_dpp v{X+3}, v{X+1} row_ror:8 row_mask:0xf bank_mask:0x3",
         f"v_min_u32 v{ONE}, -2, v{X+2}", f"v_min_u32 v{ONE+1}, -2, v{X+3}"]
    for t in range(2):
        p = V0 + 2 * t
        L += [f"v_lshlrev_b32 v{X}, 16, v{p}", f"v_lshlrev_b32 v{X+1}, 16, v{p+1}", f"v_and_b32 v{p}, 0xffff0000, v{p}", f"v_and_b32 v{p+1}, 0xffff0000, v{p+1}",
              f"v_add_f32 v{X}, v{X}, v{X+1}", f"v_add_f32 v{X+1}, v{p}, v{p+1}", f"v_cvt_pk_bf16_f32 v{X}, v{X}, v{X+1}", f"v_min_u32 v{ONE+2+t}, -2, v{X}"]
    return L
def sync_tmp(P, w):
    if not P['sync']: return []
    if w == 3: return [f"v_bfe_u32 v{MA+24}, v{L16}, 2, 7"]
    if w < 2: return [f"v_mov_b32 v{MA+24}, s{sS}"]
    return []
def b_tail(a, P):
    WS = sr(S_WS, 4); HB, HD, T1 = MA + 20, MA + 8, MA + 12
    a.label('L_btail')
    if P.get('stat'): a("s_memrealtime s[66:67]")
    for T, r in enumerate([Q1, KX, V1, ONE]): a(f"s_mov_b32 s{sT}, {WS_H1B + 65536*T}\nbuffer_store_dwordx2 {vr(r,2)}, v{A_H1S}, {WS}, s{sT} offen sc1")
    for l in pack_km(): a(l)
    a(f"buffer_store_dwordx4 {vr(ONE,4)}, v{L16}, {WS}, s{sKMv} offen sc1\ns_waitcnt vmcnt(0)")
    if P.get('stat'): a("s_memrealtime s[68:69]")
    a.label('L_bt1')
    a(f"""
    s_sleep {P.get('bsl', 2)}
    buffer_load_dwordx4 {vr(HB,4)}, v{L16}, {WS}, s{sH1l} offen sc1
    buffer_load_dwordx4 {vr(HB+4,4)}, v{L16}, {WS}, s{sH1l} offen offset:1024 sc1
    s_add_u32 s{sSPIN}, s{sSPIN}, 1
    s_cmp_gt_u32 s{sSPIN}, {SPIN_MAX}
    s_cbranch_scc1 L_end
    s_waitcnt vmcnt(0)
    v_mfma_f32_16x16x32_bf16 {vr(HD,4)}, {vr(SEL,4)}, {vr(HB,4)}, 0
    v_or_b32 v{T1}, v{HB}, v{HB+2}
    v_or3_b32 v{T1}, v{T1}, v{HB+4}, v{HB+6}
    v_mfma_f32_16x16x32_bf16 {vr(HD,4)}, {vr(SEL,4)}, {vr(HB+4,4)}, {vr(HD,4)}
    v_and_b32 v{T1}, 1, v{T1}
    v_cmp_ne_u32 vcc, 0, v{T1}
    s_nop 4
    """)
    for n in (4, 8):
        for r in (HD, HD + 1): a(f"v_add_f32_dpp v{r}, v{r}, v{r} row_ror:{n} row_mask:0xf bank_mask:0xf")
        a("s_nop 0")
    a(f"""
    v_cvt_pk_bf16_f32 v{HD}, v{HD}, v{HD+1}
    s_cbranch_vccnz L_bt1
    buffer_store_dword v{HD}, v{A_IMS}, {WS}, s{sIMw} offen sc1
    """)
    if P.get('stat'):
        a("s_memrealtime s[70:71]\ns_waitcnt lgkmcnt(0)")
        for k, r in enumerate([100, 64, 66, 68, 70, sSPIN]): a(f"v_mov_b32 v{56+k}, s{r}")
        a(f"s_lshl_b32 s{sT}, s{sH}, 2\ns_add_u32 s{sT}, s{sT}, s{sW}\ns_lshl_b32 s{sT}, s{sT}, 5\ns_add_u32 s{sT}, s{sT}, {WS_STAMP + (768 << 10)}\ns_mov_b64 exec, 1")
        a(f"buffer_store_dwordx4 v[56:59], v{L16}, {WS}, s{sT} offen\nbuffer_store_dwordx4 v[60:63], v{L16}, {WS}, s{sT} offen offset:16\ns_mov_b64 exec, -1")
    a(f"""
    v_lshrrev_b32 v0, 4, v{L16}
    s_mov_b32 s80, 4
    s_mov_b32 s{sT}, 1
    s_waitcnt vmcnt(0) lgkmcnt(0)
    s_branch L_helper2
    """)
LASTV = []
def chain_last(a):
    for q in LASTV: smf(a, *q)
    a("s_nop 7")
    for d, s0 in ((V0, V0), (V0 + 1, V0 + 2), (V0 + 2, V1), (V0 + 3, V1 + 2)): a(f"v_cvt_pk_bf16_f32 v{d}, v{s0}, v{s0+1}")
    L = pack_km()
    for l in L[:2]: a(l)
    a(f"v_permlane32_swap_b32 v{V0}, v{V0+1}\nv_permlane32_swap_b32 v{V0+2}, v{V0+3}")
    for l in L[2:]: a(l)
    a(f"buffer_store_dwordx4 {vr(ONE,4)}, v{L16}, {sr(S_WS,4)}, s{sKM} offen sc1")
LISTING = {}
def chain_step(a, P0, w):
    P = dict(DEF); P.update(P0)
    allow = P.get('stamps', [])
    used = []
    def stamp(k):
        if k in allow:
            a(f"s_memtime s[{72+2*len(used)}:{73+2*len(used)}]"); used.append(k)
            if P.get('rt'): a(f"s_memrealtime s[{72+2*len(used)}:{73+2*len(used)}]"); used.append(k)
    WS = sr(S_WS, 4)
    acc = [Q0, K0, Q1, K1]
    lb = lambda s: f"L_{s}_{w}"
    own = 2048 * w
    oth = lambda q: 2048 * ((w + q) & 3)
    T0 = MA + 28
    ldE = f"buffer_load_dwordx4 {vr(MA,4)}, v{L16}, {WS}, s{sIMl} offen sc1"
    ldL = f"buffer_load_dwordx4 {vr(MA+16,4)}, v{L16}, {WS}, s{sIML} offen sc1"
    chkE = f"v_max3_u32 v{T0}, v{MA}, v{MA+1}, v{MA+2}\nv_max_u32 v{T0}, v{T0}, v{MA+3}\nv_cmp_eq_u32 vcc, -1, v{T0}"
    chkL = [f"v_max3_u32 v{T0}, v{MA+16}, v{MA+17}, v{MA+18}", f"v_max_u32 v{T0}, v{T0}, v{MA+19}", f"v_cmp_eq_u32 vcc, -1, v{T0}"]
    if P['c1']:
        chkE = f"v_cmp_eq_u32 vcc, -1, v{MA+3}"
        chkL = ["s_nop 0", "s_nop 0", f"v_cmp_eq_u32 vcc, -1, v{MA+19}"]
    ldF = f"buffer_load_dword v{FLV}, off, {sr(S_DBG,4)}, s{sFL} sc1"
    cvF = [f"v_subrev_u32 v{FLV}, 32, v{FLV}", f"v_ashrrev_i32 v{FLV}, 31, v{FLV}"]
    dwE = f"ds_write_b128 v{L16}, {vr(MA,4)} offset:{L_MEM + own}"
    dwL = f"ds_write_b128 v{L16}, {vr(MA+16,4)} offset:{L_MEM + own + 1024}"
    cv = lambda d, s0: f"v_cvt_pk_bf16_f32 v{d}, v{s0}, v{s0+1}"
    z2 = lambda r: f"v_mov_b64 {vr(r,2)}, 0"
    ror8 = lambda d, s0, bm: f"v_mov_b32_dpp v{d}, v{s0} row_ror:8 row_mask:0xf bank_mask:{bm}"
    mf32 = lambda D, A, B, C: a(f"v_mfma_f32_16x16x32_bf16 {vr(D,4)}, {vr(A,4)}, {vr(B,4)}, {vr(C,4) if C is not None else 0}")
    mf16 = lambda D, A, B, C: a(f"v_mfma_f32_16x16x16_bf16 {vr(D,4)}, {vr(A,2)}, {vr(B,2)}, {vr(C,4) if C is not None else 0}")
    def wdelay(n):
        while P['kw'] and n >= 8:
            mf32(MA + 24, F, F, None); a("s_nop 2"); mf32(MA + 4, F, F, None); a("s_nop 2"); n -= 8
        nops(a, n)
    a.label(lb('top'))
    a("s_waitcnt vmcnt(0)")
    a.vm = []; a.lg = []
    stamp(0)
    EB = MA + 20 if P['dwf'] else MA
    ldB = ldE.replace(vr(MA, 4), vr(EB, 4))
    if P['dwf']:
        a(dwE, lg='we'); a(chkE); a(ldL, vm='L2')
        a(f"s_cbranch_vccnz {lb('f1')}")
    else:
        if P['earlyL']: a(ldL, vm='L2')
        a(chkE)
        a(dwE, lg='we')
        a(f"s_cbranch_vccnz {lb('f1')}")
        if not P['earlyL'] and not P.get('lateL'): a(ldL, vm='L2')
    a.label(lb('go'))
    igo = len(a.lines)
    stamp(14)
    KVF = P.get('kvf', 'sc1')
    dma = [f"buffer_load_dwordx4 v{L16}, {WS}, s{sKV} offen offset:{1024*k} {KVF} lds" for k in range(4)]
    mrd = lambda s: f"ds_read_b128 {vr(MA+4*s,4)}, v{L16} offset:{L_MEM + oth(s & 3) + 1024*(s>>2)}"
    r2 = [f"ds_read_b128 {vr(ST + 8*u + 4*hf, 4)}, v{A_W} offset:{lw_qk(4, u) + 1024*hf}" for u in range(4) for hf in range(2)]
    r3 = [f"ds_read_b128 {vr(ST + 8*k + 4*hf, 4)}, v{A_W} offset:{lw_wo(2,k) + 1024*hf}" for k in range(4) for hf in range(2)]
    vq = [(V0 + 4 * tau, MA + 4 * s, wv_reg(s, tau)) for s in range(8) for tau in range(2)]
    qk = lambda s: [(acc[u], MA + 4 * s, wqk_reg(s, u)) for u in range(4)]
    sA = qk(0) + [vq.pop(0), vq.pop(0)]
    stV = f"buffer_store_dwordx4 {vr(ONE,4)}, v{L16}, {WS}, s{sKMv} offen sc1"
    for k in range(P['b1']):
        smf(a, *sA.pop(0))
        if k == P['sv']: a(stV, vm='km')
        if P.get('lateL') == k + 2: a(f"s_mov_b64 exec, {sr(sLX,2)}"); a(ldL, vm='L2'); a("s_mov_b64 exec, -1")
    a.wait(lg='all')
    a("s_barrier")
    stamp(1)
    a(mrd(1), lg=('ma', 1)); a(mrd(2), lg=('ma', 2))
    smf(a, *sA.pop(0))
    a(mrd(3), lg=('ma', 3))
    if P.get('lateL') == 1: a(f"s_mov_b64 exec, {sr(sLX,2)}"); a(ldL, vm='L2'); a("s_mov_b64 exec, -1")
    sync = P['sync']; TS = MA + 24
    prober = sync and w == 3; poster = sync and w < 2
    probe = f"buffer_load_dword v{FLV}, v{TS}, {WS}, s{sFG} offen sc1"
    post = f"s_mov_b64 exec, 1\nbuffer_store_dword v{TS}, off, {WS}, s{sFG}\ns_mov_b64 exec, -1"
    pp = list(P['pp']); npr = len(pp)
    def syncops(n):
        c = 0
        if poster and n == P['fpos']: a(post, vm='fg'); c = 2
        if prober and n in pp: a(probe, vm=('P', pp.index(n))); c = 1
        return c
    svp = P['svp'][w]
    if P['sv'] == 9 and svp < 0: a(stV, vm='km')
    syncops(-len(sA) - 1)
    while sA:
        smf(a, *sA.pop(0)); syncops(-len(sA) - 1)
    dupA = a.lines[igo:]
    a.label(lb('go2'))
    seq = qk(1) + qk(2) + qk(3) + [vq.pop(0) for _ in range(P['nv1'])]
    i4 = len(seq); seq += qk(4) + [vq.pop(0) for _ in range(P['nv2'])]
    i5 = len(seq); seq += qk(5)
    i6 = len(seq); q6, q7 = qk(6), qk(7)
    seq += [q6[0], q6[1], q7[0], q7[1], q6[2], q6[3], q7[2], q7[3]]
    nL, nB = P['nL'], P['nL'] + P['nB2']
    assert i4 >= nL + 4 and nB <= i5
    KVST = 0 if P.get('kvfix') else 0x80000
    ones = [f"v_mov_b64 {vr(ONE,2)}, {sr(sONE,2)}", f"v_mov_b64 {vr(ONE+2,2)}, {sr(sONE,2)}"]
    lastd = -99
    for n, q in enumerate(seq):
        if n == 0: a.wait(lg=('ma', 1))
        if n == 4: a.wait(lg=('ma', 3))
        if n == nL:
            stamp(2)
            a.wait(vm='L2'); a(dwL, lg='wl')
            if not P['c1']: a(chkL[0])
            if prober: a.wait(vm=('P', 0)); a(f"v_subrev_u32 v{T0+1}, s{sS}, v{FLV}")
        if n == nB:
            a.wait(lg='all' if not r2 else 'wl'); a("s_barrier"); stamp(3); a(mrd(5), lg=('ma', 5))
        if n == i4 and 'r2' in a.lg: a.wait(lg='r2')
        if n == i5: a.wait(lg=('ma', 5))
        if n == i6: a.wait(lg=('ma', 7))
        smf(a, *q)
        cap = 2 - (n + 1 in (4, i5, i6)) - (n >= i6 + 4) - (n in (nL, nL + 1))
        if n == nB: a(mrd(6), lg=('ma', 6)); a(mrd(7), lg=('ma', 7)); cap = 0
        if P['sv'] == 9 and n == svp: a(stV, vm='km')
        cap = max(cap - syncops(n), 1 if r2 else 0)
        dp = P['dp']
        if dp:
            if dma and dp[4 - len(dma)] < 100 and n >= dp[4 - len(dma)] + w and n != nB: a(dma.pop(0), vm='dma'); cap = max(cap - 1, 1 if r2 else 0)
        elif dma and cap and n > nB and n >= min(nB + 1 + w * P['stg'] + 4 * (4 - len(dma)), len(seq) - 1):
            a(dma.pop(0), vm='dma'); cap -= 1
        if r2 and cap and n + 1 != nL and not (nL <= n < nB): a(r2.pop(0), lg='r2'); cap -= 1
        elif r3 and cap and n > nB and n >= i4 + (8 - len(r3)) // 2: a(r3.pop(0), lg='r3'); cap -= 1
        if ones and cap and n >= i5 and P['sv'] == 9: a(ones.pop(0))
        if n == nL: a(chkL[1] if not prober else f"v_max3_u32 v{T0+1}, v{T0}, v{MA+19}, v{T0+1}")
        if n == nL + 1: a(chkL[2] if not prober else f"v_cmp_eq_u32 vcc, -1, v{T0+1}")
        if n == nL + 3:
            a(f"s_cbranch_vccnz {lb('p1' if prober else 'rL')}"); a.label(lb('bL'))
            if prober: assert len(a.vm) == npr - 1
        if n == i6 + 4: a(cv(Q0, Q0))
        if n == i6 + 5: a(cv(Q0 + 1, Q0 + 2))
        if n == i6 + 6: a(cv(Q0 + 2, K0))
    assert not r3 and not r2, (len(r2), len(r3), len(dma))
    stamp(4)
    a(cv(Q0 + 3, K0 + 2))
    a("s_nop 0")
    a(cv(Q1, Q1))
    mf32(K0, Q0, F, None)
    a(cv(Q1 + 1, Q1 + 2)); a(cv(Q1 + 2, K1)); a(cv(Q1 + 3, K1 + 2))
    a("s_nop 1")
    mf32(K1, Q1, F, None)
    X = Q0
    a(cv(X, K0)); a(cv(X + 1, K0 + 2))
    rsI = f"buffer_store_dword v{NEG1}, v{A_IMS}, {WS}, s{sIMr} offen"
    S1, S2, SM = Q1, K0, K1
    if not P['mx']:
        smf(a, *vq.pop(0))
        a("s_nop 0"); a(f"buffer_store_dword v{NEG1}, v{A_IMS}, {WS}, s{sIMr} offen", vm='rs'); a("s_nop 1")
        a(cv(X + 2, K1)); a(cv(X + 3, K1 + 2))
        a("s_nop 1")
        S1, S2, SM = Q1, K0, K1
        mf32(SM, X, X, None); mf32(S2, KX + 4, X, None); mf32(S1, KX, X, None)
        for r in range(2): a(ror8(SM + r, SM + 2 + r, '0xc'))
        smf(a, *vq.pop(0))
        a("s_nop 0")
        a(f"ds_write2_b32 v{A_SMW}, v{SM}, v{SM+1} offset0:0 offset1:32")
        a("s_nop 1")
        for r in range(4): a(ror8(S1 + r, S2 + r, '0xc'))
        smf(a, *vq.pop(0))
        a(f"ds_write_b128 v{L16}, {vr(S1,4)} offset:{L_S + own}")
    else:
        assert all(q[1] >= MA + 8 for q in vq)
        XL, XH = MA, MA + 4
        lo = lambda r: a(f"v_cndmask_b32 v{XL+r}, 0, v{X+r}, {sr(sMLO,2)}")
        hi = lambda r: a(f"v_mov_b32_dpp v{XH+r}, v{X+r} row_shr:8 row_mask:0xf bank_mask:0xf bound_ctrl:1")
        lo(0); lo(1); hi(0); hi(1); a("s_nop 0")
        a(cv(X + 2, K1)); a(cv(X + 3, K1 + 2))
        lo(2); lo(3)
        mf32(SM, X, X, None)
        hi(2); hi(3)
        mf32(S1, KX, XL, None)
        a("s_nop 0")
        mf32(S1, KX + 4, XH, S1)
        for r in range(2): a(ror8(SM + r, SM + 2 + r, '0xc'))
        dw2 = f"ds_write2_b32 v{A_SMW}, v{SM}, v{SM+1} offset0:0 offset1:32"
        dw4 = f"ds_write_b128 v{L16}, {vr(S1,4)} offset:{L_S + own}"
        smf(a, *vq.pop(0))
        if P['so'] == 0: a("s_nop 0"); a(dw2); a("s_nop 1"); a(dw4)
        elif P['so'] == 1: a("s_nop 0"); a(dw2); smf(a, *vq.pop(0)); a(dw4)
        else: smf(a, *vq.pop(0)); a(dw4); a(dw2)
    stamp(5)
    for k in range(P['nvA']):
        smf(a, *vq.pop(0))
        if k == P['nvA'] - 3: a(f"s_cmp_eq_u32 s{sS}, 63")
        if k == P['nvA'] - 2:
            a("s_cbranch_scc1 L_last"); LASTV[:] = list(vq)
        if k == 1 and w == 0:
            if P.get('fsk', 1):
                a(f"s_mov_b64 exec, {sr(sFM,2)}"); a(ldF, vm='fl'); a("s_mov_b64 exec, -1")
            else: a(ldF, vm='fl')
        if dma and dp[4 - len(dma)] == 100 and k == w + 1: a(dma.pop(0), vm='dma')
        if P['sv'] == 20 and k == min(3 - w, P['nvA'] - 1): a(stV, vm='km')
        if k == (w & 1) + (2 if w >= 2 and P['sv'] == 20 else 0) and P['mx']: a(rsI, vm='rs')
    a.wait(lg='all')
    a("s_barrier")
    stamp(6)
    R1, R2, R3, RM = K0, KX, KX + 4, K1
    a(f"ds_read_b128 {vr(RM,4)}, v{L16} offset:{L_SM}", lg='rm')
    a(f"ds_read_b128 {vr(R1,4)}, v{L16} offset:{L_S + oth(1)}", lg='r1')
    smf(a, *vq.pop(0))
    a(f"ds_read_b128 {vr(R2,4)}, v{L16} offset:{L_S + oth(2)}", lg='r2')
    a(f"ds_read_b128 {vr(R3,4)}, v{L16} offset:{L_S + oth(3)}", lg='r3')
    while vq:
        smf(a, *vq.pop(0))
        if dma and len(vq) <= max(2 - w, 0): a(dma.pop(0), vm='dma')
        if ones: a(ones.pop(0))
    assert not ones and not dma
    for _ in range(P.get('npd', 0)): mf16(MA, F, F, None)
    pka = lambda d, s0: f"v_pk_add_f32 {vr(d,2)}, {vr(d,2)}, {vr(s0,2)}"
    a.wait(lg='r1')
    a(f"v_add_f32 v{RM}, v{RM}, v{RM+1}\nv_add_f32 v{RM+2}, v{RM+2}, v{RM+3}")
    a(f"v_add_f32 v{S1}, v{S1}, v{R1}\nv_add_f32 v{S1+1}, v{S1+1}, v{R1+1}")
    a(pka(S1 + 2, R1 + 2))
    a(f"v_add_f32 v{RM}, v{RM}, v{RM+2}")
    if P['ad']:
        a.wait(lg='all')
        stamp(7)
        a(pka(R2, R3)); a(pka(R2 + 2, R3 + 2)); a(pka(S1, R2)); a(pka(S1 + 2, R2 + 2))
    else:
        a.wait(lg='r2')
        a(pka(S1, R2)); a(pka(S1 + 2, R2 + 2))
        a.wait(lg='all')
        stamp(7)
        a(pka(S1, R3)); a(pka(S1 + 2, R3 + 2))
    m0, m1 = K0, K0 + 1
    a(f"v_max3_f32 v{m0}, v{RM}, v{S1}, v{S1+1}")
    a(f"v_max3_f32 v{m0}, v{m0}, v{S1+2}, v{S1+3}")
    a(cv(V0, V0)); a(cv(V0 + 1, V0 + 2))
    a(f"v_max_f32_dpp v{m1}, v{m0}, v{m0} row_ror:8 row_mask:0xf bank_mask:0xf")
    a(f"v_max_f32_dpp v{m0}, v{m0}, v{m0} row_ror:8 row_mask:0xf bank_mask:0xf")
    a(cv(V0 + 2, V1)); a(cv(V0 + 3, V1 + 2))
    a(f"v_permlane32_swap_b32 v{m0}, v{m1}")
    a(f"v_max_f32 v{m0+2}, v{m0}, v{m1}")
    a(f"v_max_f32 v{m0+3}, v{m0}, v{m1}")
    a(f"v_permlane32_swap_b32 v{V0}, v{V0+1}")
    a(f"v_permlane32_swap_b32 v{V0+2}, v{V0+3}")
    a(f"v_permlane16_swap_b32 v{m0+2}, v{m0+3}")
    a(f"v_max_f32 v{m0}, v{m0+2}, v{m0+3}")
    a(f"v_mul_f32 v{m0}, s{sC}, v{m0}")
    a(f"v_fma_f32 v{RM}, v{RM}, s{sC}, -v{m0}")
    pkf = lambda r: f"v_pk_fma_f32 {vr(r,2)}, {vr(r,2)}, {sr(sC,2)}, {vr(m0,2)} op_sel_hi:[1,1,0] neg_lo:[0,0,1] neg_hi:[0,0,1]"
    ks = [(w + q) & 3 for q in range(1, 4)]
    r4 = [f"ds_read_b128 {vr(MA + 8*k + 4*hf, 4)}, v{A_W} offset:{lw_wo(3,k) + 1024*hf}" for k in [w] + ks for hf in range(2)]
    rd4 = lambda: a(r4.pop(0), lg='r4') if r4 else None
    BX, BM = K0, MA + 8 * ks[2] + 4
    O0, O1, L = KX, V1, K1
    a(f"v_exp_f32 v{RM}, v{RM}")
    a(pkf(S1)); a(pkf(S1 + 2))
    a(ror8(RM + 1, RM, '0xf'))
    a(cv(BM, RM)); a(cv(BM + 1, RM))
    a(f"v_exp_f32 v{S1}, v{S1}\nv_exp_f32 v{S1+1}, v{S1+1}")
    mf16(O0, V0, BM, None)
    a(f"v_exp_f32 v{S1+2}, v{S1+2}\nv_exp_f32 v{S1+3}, v{S1+3}")
    a(cv(BX, S1)); a(cv(BX + 1, S1 + 2))
    mf16(O1, V0 + 2, BM, None)
    a(ror8(BX + 2, BX, '0xf')); a(ror8(BX + 3, BX + 1, '0xf'))
    AC = [Q1, KX, V1, ONE]
    OW = KX + 4
    a(z2(AC[0])); a(z2(AC[0] + 2))
    mf32(O0, VX, BX, O0)
    stamp(8)
    if P['nr4'] >= 1: rd4()
    if P['nr4'] >= 4: rd4()
    mf32(O1, VX + 4, BX, O1)
    if P['nr4'] >= 2: rd4()
    if P['nr4'] >= 3: rd4()
    mf16(L, BM, HZ, None)
    a(cv(OW, O0)); a(cv(OW + 1, O0 + 2))
    a(z2(AC[1])); a(z2(AC[1] + 2))
    a(cv(OW + 2, O1)); a(cv(OW + 3, O1 + 2))
    mf32(L, BX, ONE, L)
    a("s_nop 0")
    a(f"ds_write_b128 v{A_OW}, {vr(OW,4)} offset:{L_O + own}")
    stamp(9)
    for r in range(4): a(ror8(OW + r, OW + r, '0xc'))
    a(z2(AC[2])); a(z2(AC[2] + 2))
    if P.get('z3', 1): a(z2(AC[3]))
    rcp = lambda r: a(f"v_rcp_f32 v{L+r}, v{L+r}")
    for r in range(P['nrc']): rcp(r)
    smf(a, AC[0], OW, wo_reg(0, w))
    a.wait(lg='all')
    a("s_barrier")
    stamp(10)
    OA = {ks[0]: VX, ks[1]: VX + 4, ks[2]: K0, w: OW}
    oard = lambda k: a(f"ds_read_b128 {vr(OA[k],4)}, v{A_O} offset:{L_O + 2048*k}", lg=('oa', k))
    g2 = lambda T, k: smf(a, AC[T], OA[k], wo_reg(T, k))
    mul = lambda T, r: a(f"v_mul_f32 v{AC[T]+r}, v{AC[T]+r}, v{L+r}")
    def cvt(T, r):
        a(cv(AC[T] + r, AC[T] + 2 * r))
        if r == 1: a(f"v_bfi_b32 v{AC[T]}, 1, s{sTAG}, v{AC[T]}")
    sto = lambda T: f"buffer_store_dwordx2 {vr(AC[T],2)}, v{A_H1S}, {WS}, s{sH1+T} offen"
    oard(ks[0]); oard(ks[1])
    g2(1, w); oard(ks[2]); a(z2(AC[3] + (2 if P.get('z3', 1) else 0)))
    g2(2, w)
    if not P.get('z3', 1): a(z2(AC[3] + 2))
    for r in range(P['nrc'], 4): rcp(r)
    own3 = P['nr4'] >= 2 and P.get('own3', 1)
    if own3: a("s_nop 1"); g2(3, w)
    a.wait(lg=('oa', ks[0])); g2(0, ks[0]); stamp(20); rd4()
    a.wait(lg=('oa', ks[1])); g2(0, ks[1]); rd4()
    a.wait(lg=('oa', ks[2])); g2(0, ks[2]); rd4()
    g2(1, ks[0]); rd4()
    if P['g2v'] >= 3:
        rd4(); a("s_nop 1")
        for r in range(4): mul(0, r)
        cvt(0, 0); cvt(0, 1)
        g2(1, ks[1]); a("s_nop 0"); a(sto(0), vm='h1')
        g2(1, ks[2]); g2(2, ks[0])
        if P['g2v'] == 3: g2(2, ks[1])
        else: a("s_nop 3")
        for r in range(4): mul(1, r)
        cvt(1, 0); cvt(1, 1)
        if P['g2v'] == 4: g2(2, ks[1]); a("s_nop 0"); a(sto(1), vm='h1')
    else:
        g2(1, ks[1]); rd4(); mul(0, 0)
        g2(1, ks[2]); rd4()
        mul(0, 1); mul(0, 2); mul(0, 3); cvt(0, 0); cvt(0, 1)
    assert not r4 or P['g2v'] == 0
    pkm = lambda T: a(f"v_pk_mul_f32 {vr(AC[T],2)}, {vr(AC[T],2)}, {vr(L,2)}\nv_pk_mul_f32 {vr(AC[T]+2,2)}, {vr(AC[T]+2,2)}, {vr(L+2,2)}")
    if P['g2v'] == 0:
        g2(2, ks[0]); a("s_nop 0"); a(sto(0), vm='h1')
        while r4: rd4()
        for r in range(4): mul(1, r)
        cvt(1, 0); cvt(1, 1)
        g2(2, ks[1]); a("s_nop 0"); a(sto(1), vm='h1')
    elif P['g2v'] == 1:
        a("s_nop 1"); a(sto(0), vm='h1')
        pkm(1); cvt(1, 0); cvt(1, 1)
        g2(2, ks[0]); a("s_nop 0"); a(sto(1), vm='h1')
        g2(2, ks[1])
    elif P['g2v'] == 2:
        pkm(1); cvt(1, 0); cvt(1, 1)
        g2(2, ks[0]); a("s_nop 0"); a(sto(0), vm='h1'); a(sto(1), vm='h1')
        g2(2, ks[1])
    stamp(21)
    g2(2, ks[2])
    if P['g2v'] == 3: a("s_nop 0"); a(sto(1), vm='h1')
    a.wait(lg='all')
    if not own3: g2(3, w)
    a(f"s_add_u32 s{sIMl}, s{sIMw}, {1024*(w ^ (2 if P.get('sw', 2) else 0))}\ns_add_u32 s{sIML}, s{sIMw}, {4096+1024*(w ^ (2 if P.get('sw', 2) == 2 else 0))}")
    g2(3, ks[0]); a(f"s_add_u32 s{sS}, s{sS}, 1\ns_mov_b32 s{sKMv}, s{sKM}")
    if not own3: mul(2, 0)
    g2(3, ks[1]); mul(2, 1)
    g2(3, ks[2])
    if own3: mul(2, 0)
    mul(2, 2); mul(2, 3); cvt(2, 0); cvt(2, 1)
    dS = P['dS']
    a(f"s_add_u32 s{sKM}, s{sKM}, 0x20000\ns_add_u32 s{sKV}, s{sKV}, {KVST}")
    if dS[0] < 0: a(sto(2), vm='h1')
    c = AC[3]
    a(f"v_pk_mul_f32 {vr(c,2)}, {vr(c,2)}, {vr(L,2)}\nv_pk_mul_f32 {vr(c+2,2)}, {vr(c+2,2)}, {vr(L+2,2)}")
    cvt(3, 0); cvt(3, 1)
    a(f"s_cmp_lg_u32 s{sRB}, 0\ns_nop 0")
    if dS[1] < 0: a(sto(3), vm='h1')
    stamp(11)
    HA = KX
    ld1 = [f"buffer_load_dwordx4 {vr(HA+4*c_,4)}, v{L16}, {WS}, s{sH1l} offen offset:{1024*c_} sc1" for c_ in range(2)]
    HD, T1 = MA + 8, MA + 12
    idle = idle_work()
    late = [l for l in idle if any(l.startswith(f"v_mov_b64 v[{r}:") for r in (Q0, Q0 + 2, V0, V0 + 2, V1, V1 + 2))]
    dsq = [l for l in idle if l.startswith('ds_')]
    idle = [l for l in idle if l not in late and l not in dsq]
    ev = [(max(dS[k], 0), k, [(sto(2 + k) if dS[k] >= 0 else None, 'h1')]) for k in range(2)]
    ev.append((P['dH1'][w], -1 if w < 2 else 2, [(ld1[0], 'H0'), (ld1[1], 'H1')]))
    h2 = P.get('h2', [0, 0, 0, 0])[w]; HB = MA + 20
    if h2: ev.append((P['dH1'][w] + h2, 3, [(ld1[c_].replace(vr(HA + 4 * c_, 4), vr(HB + 4 * c_, 4)), f'B{c_}') for c_ in range(2)]))
    pos = 0; nst = 0
    if P.get('tb', 1):
        assert dS == [-1, -1]
        safe = [l for l in idle if any(l.startswith(f"v_mov_b64 v[{r}:") for r in (K0, K0 + 2, K1, K1 + 2))]
        idle = [l for l in idle if l not in safe]
        nb = 0 if w < 2 else 4
        for l in safe[:nb] + ["s_cbranch_scc1 L_btail"] + safe[nb:]: a(l)
        pos = 7
    for (tpos, _, ops) in sorted(ev):
        while pos < tpos:
            if idle and tpos - pos > 2: a(idle.pop(0)); pos += 1
            elif dsq and nst == 2 and tpos - pos >= 6:
                if P['kw']: mf32(MA + 24 if len(dsq) & 1 else MA + 4, F, F, None); a("s_nop 1")
                else: a("s_nop 2")
                a(dsq.pop(0), lg='pre'); pos += 4
            else: wdelay(tpos - pos); pos = tpos
        for (o, tag) in ops:
            if o: a(o, vm=tag); pos += 1
            if tag == 'h1':
                nst += 1
                if nst == 2: idle += pack_km() + late
    for l in dsq + idle: a(l, lg='pre')
    dE = P['dE'][w]; pE = P['pE']; nPre = P['nPre'][w]; inGap = P['inGap'][w]
    eq = ['E0', 'E1', 'E2', 'E3', 'E4'][:P['nE']]; nE = len(eq)
    for k in range(nPre):
        wdelay(dE if k == 0 else pE); a(ldE if eq[0] == 'E0' else ldB, vm=eq.pop(0))
    nH0 = len(a.vm) - 1 - a.vm.index('H0')
    a(f"s_waitcnt vmcnt({nH0})")
    a.label(lb('a1'))
    stamp(12)
    mf32(HD, SEL, HA, None)
    a(f"v_bitop3_b32 v{T1}, v{HA}, v{HA+2}, s{sTAG} bitop3:0x7e")
    a.wait(vm='H1')
    mf32(HD, SEL, HA + 4, HD)
    a(f"v_bitop3_b32 v{T1+1}, v{HA+4}, v{HA+6}, s{sTAG} bitop3:0x7e\nv_bitop3_b32 v{T1}, v{T1}, v{T1+1}, 1 bitop3:0xa8\nv_cmp_ne_u32 vcc, 0, v{T1}")
    if inGap and eq:
        a("s_nop 1"); a(ldE if eq[0] == 'E0' else ldB, vm=eq.pop(0)); a("s_nop 0")
    else: a("s_nop 3")
    dpa = lambda r, n: f"v_add_f32_dpp v{r}, v{r}, v{r} row_ror:{n} row_mask:0xf bank_mask:0xf"
    a(dpa(HD, 4)); a(dpa(HD + 1, 4)); a("s_nop 0"); a(dpa(HD, 8)); a(dpa(HD + 1, 8))
    a(cv(HD, HD))
    if P['cs']:
        a(f"s_cmp_eq_u64 vcc, 0\ns_cselect_b32 s{sT+2}, s{sIMw}, 0x70000000")
        a(f"buffer_store_dword v{HD}, v{A_IMS}, {WS}, s{sT+2} offen", vm='im')
        if eq and (inGap or (len(eq) == nE and dE == 0)): a(ldE if eq[0] == 'E0' else ldB, vm=eq.pop(0))
        a(f"s_cbranch_vccnz {lb('r1')}")
        dE = max(dE - 4, 0)
    else:
        nB1 = len(a.vm) - 1 - a.vm.index('B1') if h2 else 0
        a(f"s_cbranch_vccnz {lb('r2' if h2 else 'r1')}")
        a(f"buffer_store_dword v{HD}, v{A_IMS}, {WS}, s{sIMw} offen", vm='im')
        a.label(lb('a2'))
        if inGap and eq: a(ldE if eq[0] == 'E0' else ldB, vm=eq.pop(0))
    stamp(13)
    misc = [f"ds_read_b128 {vr(KX+4*k,4)}, v{L16} offset:{L_KV + 4096*w + 1024*k}" for k in range(4)]
    misc += [f"s_mov_b32 s{sIMw}, s{sIMr}", f"s_add_u32 s{sIMr}, s{sIMr}, 0x2000", f"s_and_b32 s{sIMr}, s{sIMr}, 0xffff7fff",
             f"s_xor_b32 s{sTAG}, s{sTAG}, 1"]
    if P.get('lateL'): misc += [f"s_mov_b64 {sr(sLX,2)}, -1"]
    if P.get('nod', 1): misc += [f"s_cmp_eq_u32 s{sS}, 63", f"s_cselect_b32 s{sKV}, 0x70000000, s{sKV}"]
    if w == 0: misc = [f"v_cmp_gt_u32 vcc, 32, v{FLV}"] + misc + [f"s_cbranch_vccnz {lb('rF')}\n{lb('bF')}:", f"s_add_u32 s{sFLn}, s{sS}, 2", f"s_lshr_b32 s{sFLn}, s{sFLn}, 3", f"s_min_u32 s{sFLn}, s{sFLn}, 7", f"s_lshl2_add_u32 s{sFLn}, s{sFLn}, {DBG_DN + DBG_KVC}",
                     f"s_cmp_lt_u32 s{sS}, 2", f"s_cselect_b32 s{sFLn}, {DBG_DN + DBG_KV0}, s{sFLn}",
                     f"s_cmp_lg_u32 s{sFL}, s{sFLn}", f"s_cselect_b64 {sr(sFM,2)}, -1, 0", f"s_mov_b32 s{sFL}, s{sFLn}"]
    misc += sync_tmp(P, w)
    def delay(n):
        while n > 0 and misc: a(misc.pop(0), lg='pre'); n -= 1
        wdelay(n)
    while eq:
        delay(dE if len(eq) == nE else pE); a(ldE if eq[0] == 'E0' else ldB, vm=eq.pop(0))
    delay(len(misc))
    if P.get('pr'):
        i0 = a.lines.index(lb('top') + ':'); i0 = a.lines.index('s_barrier', i0) + 1
        body = a.lines[i0:]; a.lines = a.lines[:i0] + ["s_memtime s[72:73]"]; used = [0]; n = 0
        LISTING[w] = [l for l in body if not l.endswith(':')]
        for l in body:
            if not l.endswith(':'):
                if n in P['pr']: a.lines.append(f"s_memtime s[{72+2*len(used)}:{73+2*len(used)}]"); used.append(n)
                n += 1
            a.lines.append(l)
    if used:
        a("s_waitcnt lgkmcnt(0)")
        if P.get('trace'):
            a("s_nop 7")
            for k in range(len(used)): a(f"v_mov_b32 v{MA+8+k}, s{72+2*k}")
            a(f"s_lshl_b32 s{sT}, s{sH}, 12\ns_lshl_b32 s{sT+1}, s{sS}, 4\ns_add_u32 s{sT}, s{sT}, s{sT+1}\ns_add_u32 s{sT}, s{sT}, {WS_STAMP + 65536 + 1024*w}\ns_mov_b64 exec, 1")
            a(f"buffer_store_dwordx4 {vr(MA+8,4)}, v{L16}, {WS}, s{sT} offen", vm='tr')
            a("s_mov_b64 exec, -1")
        else:
            for k in range(1, len(used)):
                a(f"s_sub_u32 s{sT}, s{72+2*k}, s{70+2*k}\ns_add_u32 s{88+k}, s{88+k}, s{sT}")
    if w == 0: wdelay(P['dT'])
    if P.get('stat'):
        a(f"s_cmp_lg_u32 s{sS}, 3\ns_cbranch_scc1 {lb('top')}\ns_memtime s[68:69]\ns_memrealtime s[62:63]\ns_mov_b32 s70, 0\ns_mov_b32 s71, 0")
        for k in range(8): a(f"s_mov_b32 s{88+k}, 0")
    young = lambda t: len(a.vm) - 1 - a.vm.index(t)
    eL = 1 if P['dwf'] else P['earlyL']
    ns = [young(f'E{k}') + k + (eL if k else 0) for k in range(nE)]
    a.lines[a.lines.index(lb('top') + ':') + 1] = f"s_waitcnt vmcnt({ns[0]}) lgkmcnt(0)"
    a(f"s_branch {lb('top')}")
    end_main = len(a.lines)
    if w == 0:
        a.label('L_last'); chain_last(a); a("s_branch L_exit" if P.get('stat') or P.get('dbgt') else "s_endpgm")
    cnt = lambda r, v: (f"s_add_u32 s{r}, s{r}, {v}\n" if P.get('stat') else '')
    spin = f"s_add_u32 s{sSPIN}, s{sSPIN}, 1\ns_cmp_gt_u32 s{sSPIN}, {SPIN_MAX}\ns_cbranch_scc1 L_exit\n"
    for k in range(1, nE + 1):
        a.label(lb(f'f{k}'))
        late = P['lb1'] and k == 1
        if P['lb1'] and k == 2: a(ldB)
        if P.get('fpad') and k >= P.get('fpk', 1): nops(a, P['fpad'])
        if not late: a(ldB)
        a(f"s_waitcnt vmcnt({(ns[k] if k < nE else nE - 1) - (1 if late else 0)})")
        if P['dwf']: a(f"v_mov_b64 {vr(MA,2)}, {vr(EB,2)}\nv_mov_b64 {vr(MA+2,2)}, {vr(EB+2,2)}\ns_nop 0"); a(dwE); a(chkE)
        else: a(chkE); a(cnt(71, 1) or 's_nop 0'); a(dwE)
        a(f"s_cbranch_vccnz {lb(f'f{k+1}')}")
        if not P.get('lateL'): a(ldL)
        if P['dup'] and k == 1:
            a.lines += dupA; a(f"s_branch {lb('go2')}")
        else: a(f"s_branch {lb('go')}")
    a.label(lb(f'f{nE+1}'))
    a(spin + f"s_branch {lb(f'f{nE}')}")
    if prober:
        a.label(lb('p1'))
        a(probe); a(chkL[1]); a(chkL[2]); a(f"s_cbranch_vccnz {lb('rL')}")
        a. label(lb('p2'))
        for k in range(3):
            a(cnt(70, 65536) + f"s_waitcnt vmcnt({npr-1})\nv_cmp_ne_u32 vcc, s{sS}, v{FLV}"); a(probe); a(f"s_cbranch_vccz {lb('bL')}")
        a(spin + f"s_branch {lb('p2')}")
    a.label(lb('rL'))
    a(ldL)
    a(cnt(71, 65536) + spin + "s_waitcnt vmcnt(0)")
    a(dwL)
    a('\n'.join(chkL))
    a(f"s_waitcnt lgkmcnt(0)\ns_cbranch_vccnz {lb('rL')}\ns_branch {lb('p2' if prober else 'bL')}")
    if w == 0:
        a.label(lb('rF'))
        a(ldF); a(spin + f"s_waitcnt vmcnt(0)\nv_cmp_gt_u32 vcc, 32, v{FLV}\ns_cbranch_vccnz {lb('rF')}\ns_branch {lb('bF')}")
    if h2:
        a.label(lb('r2'))
        a(f"s_waitcnt vmcnt({nB1})")
        mf32(HD, SEL, HB, None)
        a(f"v_bitop3_b32 v{T1}, v{HB}, v{HB+2}, s{sTAG} bitop3:0x7e\nv_bitop3_b32 v{T1+1}, v{HB+4}, v{HB+6}, s{sTAG} bitop3:0x7e")
        mf32(HD, SEL, HB + 4, HD)
        a(f"v_bitop3_b32 v{T1}, v{T1}, v{T1+1}, 1 bitop3:0xa8\nv_cmp_ne_u32 vcc, 0, v{T1}\n" + (cnt(70, 65536) or 's_nop 0\n') + "s_nop 3")
        a(dpa(HD, 4)); a(dpa(HD + 1, 4)); a("s_nop 0"); a(dpa(HD, 8)); a(dpa(HD + 1, 8))
        a(cv(HD, HD))
        a(f"s_cbranch_vccnz {lb('r1')}")
        a(f"buffer_store_dword v{HD}, v{A_IMS}, {WS}, s{sIMw} offen")
        a(f"s_branch {lb('a2')}")
    a.label(lb('r1'))
    a(ld1[0]); a(ld1[1])
    a(cnt(70, 1) + spin + f"s_waitcnt vmcnt(0)\ns_branch {lb('a1')}")
    a.label(lb('step'))
    if P.get('lateL'): a(f"s_mov_b64 {sr(sLX,2)}, 0")
    for l in sync_tmp(P, w): a(l)
    a(dwE)
    a(f"s_branch {lb('go')}")
    return end_main, None
```

```python
from asmlib import *
from chain import WS_KV, WS_KM, WS_SIZE, DBG_KVC, DBG_KV0, DBG_DN, DBG_ARM, ARM_ALL, S_WS, S_DBG, sH, sW, nops

WS_A = 50 << 20
WS_CNT = WS_A + (64 << 10)
WS_ST = 52 << 20
DBG_ST = 8
WS_PART = 64 << 20
H_GW = 131072
H_E = H_GW + 1024
H_C = H_E + 1024
H_K = H_C + 4096
S_X, S_W1, S_W2, S_WO, S_OUT = 8, 12, 16, 20, 28
sB = 34
sX0, sWo1, sWo2, sStI, sStS, sSlot, sCnt, sSeg, sSpin, sJ = 35, 36, 37, 38, 39, 40, 41, 42, 43, 44
sA, sA2, sA3, sA4 = 45, 46, 47, 48
sWoo = 49
sM = 50
P_LRE, P_LIM, P_LDT, P_DSK, P_GW, P_CRE, P_CIM = 58, 62, 64, 66, 68, 70, 72
LANE, L16, VX_, VW, VW2, XA, WA, BA, GA, VKV, G, VN, HH, VKM, VVM, WOA, MX = 0, 1, 2, 3, 4, 5, 7, 11, 13, 14, 15, 16, 17, 18, 19, 20, 28
T = 29
KF, VF, FR = 32, 96, 160
QF, SS, HF = 160, 224, 240
HSPIN = 1000000
LOG2E = 0x3fb8aa3b
def mf(a, D, A, B, C): a(f"v_mfma_f32_32x32x16_bf16 {D}, {A}, {B}, {C}")
WS = sr(S_WS, 4)

S_PF = 52
P_WQ, P_WK, P_WV = 74, 76, 78
sPH = 56
def h_ptrs(a):
    a(f"""
    s_load_dwordx2 {sr(S_X,2)}, s[0:1], 0
    s_load_dwordx2 {sr(P_WK,2)}, s[0:1], 96
    s_load_dwordx2 {sr(P_WV,2)}, s[0:1], 104
    s_load_dwordx2 {sr(S_WO,2)}, s[0:1], 112
    s_load_dwordx2 {sr(S_PF,2)}, s[0:1], 88
    s_mov_b32 s{S_X+2}, 2097152
    s_mov_b32 s{S_X+3}, 0x20000
    s_mov_b32 s{S_WO+2}, 4194304
    s_mov_b32 s{S_WO+3}, 0x20000
    s_mov_b32 s{S_OUT+2}, 4194304
    s_mov_b32 s{S_OUT+3}, 0x20000
    s_mov_b32 s{S_W1+2}, 4194304
    s_mov_b32 s{S_W1+3}, 0x20000
    s_mov_b32 s{S_W2+2}, 4194304
    s_mov_b32 s{S_W2+3}, 0x20000
    s_mov_b32 s{S_PF+2}, 4194304
    s_mov_b32 s{S_PF+3}, 0x20000
    """)
PFW, PFO = 253, 254
def h_prefetch(a, sR):
    a(f"""
    s_mov_b64 {sr(S_W1,2)}, {sr(P_WK,2)}
    s_mov_b64 {sr(S_W2,2)}, {sr(P_WV,2)}
    s_mul_i32 s{sPH}, s{sR}, {32*10923}
    s_lshr_b32 s{sPH}, s{sPH}, 16
    s_cmp_eq_u32 s{sR}, 6
    s_cselect_b32 s3, 0x200, s3
    s_lshl_b32 s{sA}, s{sPH}, 8
    s_lshl_b32 s{sA2}, s3, 17
    s_add_u32 s{sA}, s{sA}, s{sA2}
    v_lshrrev_b32 v1, 4, v0
    v_and_b32 v2, 15, v0
    v_cmp_gt_u32 vcc, 12, v2
    v_lshlrev_b32 v2, 7, v2
    v_lshl_add_u32 v1, v1, 13, v2
    v_add_u32 v1, s{sA}, v1
    v_bfrev_b32 v2, 1
    v_cndmask_b32 v{PFW}, v2, v1, vcc
    s_lshl_b32 s{sA}, s3, 14
    v_lshlrev_b32 v1, 7, v0
    v_cmp_gt_u32 vcc, 128, v0
    buffer_load_dword v255, v{PFW}, {sr(S_W2,4)}, 0 offen
    v_add_u32 v3, s{sA}, v1
    buffer_load_dword v255, v{PFW}, {sr(S_W1,4)}, 0 offen
    v_cndmask_b32 v3, v2, v3, vcc
    buffer_load_dword v255, v3, {sr(S_X,4)}, 0 offen
    s_load_dwordx2 {sr(S_OUT,2)}, s[0:1], 136
    s_load_dwordx2 {sr(P_LRE,2)}, s[0:1], 8
    s_load_dwordx2 {sr(P_LIM,2)}, s[0:1], 16
    s_load_dwordx2 {sr(P_LDT,2)}, s[0:1], 56
    s_load_dwordx2 {sr(P_DSK,2)}, s[0:1], 64
    s_load_dwordx2 {sr(P_GW,2)}, s[0:1], 128
    s_waitcnt lgkmcnt(0)
    s_load_dwordx2 {sr(P_CRE,2)}, s[0:1], 40
    s_load_dwordx2 {sr(P_CIM,2)}, s[0:1], 48
    s_cmp_ge_u32 s{sW}, 2
    s_cbranch_scc1 L_h_hi
    s_mov_b64 {sr(S_W2,2)}, {sr(S_PF,2)}
    s_mov_b32 s{sStI}, {4*8192}
    s_mov_b32 s{sStS}, {32*8192}
    s_branch L_h_sel
    """)
    a.label('L_h_hi')
    a(f"""
    s_mov_b64 {sr(S_W1,2)}, {sr(P_WV,2)}
    s_mov_b32 s{S_W2+2}, 524288
    s_mov_b32 s{sStI}, 0x10000000
    s_mov_b32 s{sStS}, 64
    s_cmp_eq_u32 s{sW}, 3
    s_cbranch_scc1 L_h_w3
    s_load_dwordx2 {sr(S_W2,2)}, s[0:1], 24
    s_branch L_h_sel
    """)
    a.label('L_h_w3')
    a(f"s_load_dwordx2 {sr(S_W2,2)}, s[0:1], 32")
    a.label('L_h_sel')
    a("s_waitcnt lgkmcnt(0)")
    return 3

def h_once(a):
    a(f"v_and_b32 v{LANE}, 63, v0")
    t = 32
    a(f"""
    v_lshlrev_b32 v{L16}, 4, v{LANE}
    v_and_b32 v{VN}, 31, v{LANE}
    v_lshrrev_b32 v{HH}, 5, v{LANE}
    v_lshrrev_b32 v{t}, 2, v{LANE}              ; r = lane>>2
    v_lshrrev_b32 v{t+1}, 4, v{LANE}            ; lane>>4
    v_and_b32 v{t+2}, 3, v{LANE}                ; c
    v_xor_b32 v{t+3}, v{t+2}, v{t+1}
    v_lshlrev_b32 v{t+3}, 4, v{t+3}
    v_lshl_add_u32 v{VX_}, v{t}, 10, v{t+3}
    v_and_b32 v{t+3}, 15, v{LANE}
    v_lshlrev_b32 v{t+4}, 2, v{t+1}
    v_xor_b32 v{t+3}, v{t+3}, v{t+4}
    v_lshlrev_b32 v{t+3}, 4, v{t+3}
    v_lshl_add_u32 v{VW}, v{t+1}, 13, v{t+3}
    s_cmp_ge_u32 s{sW}, 2
    s_cselect_b64 vcc, -1, 0
    v_cndmask_b32 v{VW2}, v{VW}, v{VX_}, vcc
    v_bfe_u32 v{t+5}, v{LANE}, 2, 1             ; h'
    v_bfe_u32 v{t+6}, v{LANE}, 3, 1             ; t
    v_bfe_u32 v{t+7}, v{LANE}, 4, 1             ; n>>4
    v_lshl_add_u32 v{t+8}, v{t+7}, 2, v{t+2}
    v_lshl_add_u32 v{t+8}, v{t+5}, 3, v{t+8}    ; i = 8h' + 4(n>>4) + (n&3)
    v_lshl_add_u32 v{t+9}, v{HH}, 5, v{t+8}
    v_lshlrev_b32 v{t+9}, 4, v{t+9}
    v_lshl_add_u32 v{VKV}, v{t+6}, 10, v{t+9}
    v_lshl_add_u32 v{t+9}, v{HH}, 4, v{t+8}
    v_lshlrev_b32 v{t+9}, 4, v{t+9}
    v_lshl_add_u32 v{t+9}, v{t+6}, 2, v{t+9}
    s_lshl_b32 s{sA}, s{sW}, 12
    s_add_u32 s{sA}, s{sA}, {H_K}
    v_add3_u32 v{VVM}, v{t+9}, s{sA}, 8
    v_and_b32 v{t+9}, 7, v{LANE}
    v_lshl_add_u32 v{t+9}, v{HH}, 5, v{t+9}
    v_lshl_add_u32 v{VKM}, v{t+9}, 4, s{sA}
    s_waitcnt lgkmcnt(0)
    """)

def xaddr(a, row, base_s, dst):
    a(f"""
    v_bfe_u32 v{T}, v{row}, 2, 2
    v_xor_b32 v{T}, v{T}, v{HH}
    v_lshlrev_b32 v{T}, 4, v{T}
    v_lshl_add_u32 v{T}, v{row}, 6, v{T}
    v_add_u32 v{dst}, {base_s}, v{T}
    v_xor_b32 v{dst+1}, 32, v{dst}
    """)

OPT = {}
sXC, sClr, sMode = 57, 3, 2
def dma_part(part, kind):
    G_ = []
    for i in range(2 if kind == 'xh' else 4):
        o = (16384 if part == 'B' else 0) + 1024 * i
        L = [f"s_add_u32 m0, s{sSlot}, {o}"]
        if kind == 'wo': L += [f"s_add_u32 s{sA}, s{sWoo}, {o}", f"buffer_load_dwordx4 v{WOA + i}, {sr(S_WO,4)}, s{sA} offen lds"]
        elif part == 'A': L += [f"s_add_u32 s{sA}, s{sXC}, {(i >> 1) * 131072 + (i & 1) * 16384}", f"buffer_load_dwordx4 v{VX_}, {sr(S_X,4)}, s{sA} offen lds"]
        elif kind == 'p1': L += [f"s_add_u32 s{sA}, s{sWo1}, {4*8192*i}", f"buffer_load_dwordx4 v{VW}, {sr(S_W1,4)}, s{sA} offen lds"]
        else: L += [f"s_mov_b32 s{sA2}, s{sWo2}" if i == 0 else f"s_add_u32 s{sA2}, s{sA2}, s{sStI}", f"buffer_load_dwordx4 v{VW2}, {sr(S_W2,4)}, s{sA2} offen lds"]
        G_.append(L)
    if part == 'A' and kind != 'wo': G_[-1] += [f"s_add_u32 s{sXC}, s{sXC}, 64", f"s_and_b32 s{sXC}, s{sXC}, 0xfffffbff"]
    if part == 'B':
        G_[-1] += [{'p1': f"s_add_u32 s{sWo1}, s{sWo1}, {32*8192}", 'p2': f"s_add_u32 s{sWo2}, s{sWo2}, s{sStS}", 'wo': f"s_add_u32 s{sWoo}, s{sWoo}, 32768"}[kind]]
        G_[-1] += [f"s_add_u32 s{sSlot}, s{sSlot}, 32768", f"s_and_b32 s{sSlot}, s{sSlot}, 0x1ffff"]
    return G_

def frag_reads(p, k, fs, nj=2):
    b = FR + 40 * fs
    L = [f"ds_read_b128 {vr(b + 4*j, 4)}, v{XA + k} offset:{2048*j}" for j in range(nj)]
    for m in range(2 if p == 1 else 1):
        for tau in range(4):
            for pp in range(2):
                L.append(f"ds_read_b64_tr_b16 {vr(b + 8 + 16*m + 4*tau + 2*pp, 2)}, v{WA + tau} offset:{8192*m + (16*k + 4*pp)*256}")
    if p == 2:
        L.append(f"ds_read_b128 {vr(b + 24, 4)}, v{BA + k}")
        L.append(f"ds_read_b128 {vr(b + 28, 4)}, v{GA} offset:{32*k}")
    return L
def mfmas(p, fs, nj=2):
    b = FR + 40 * fs
    L = []
    x = lambda j: vr(b + 4 * j, 4)
    for tau in range(4):
        for j in range(nj):
            D = ar(64 * j + 16 * tau, 16); L.append((D, vr(b + 8 + 4 * tau, 4), x(j), D))
    if p == 1:
        for tau in range(4):
            for j in range(nj):
                D = ar(128 + 64 * j + 16 * tau, 16); L.append((D, x(j), vr(b + 24 + 4 * tau, 4), D))
    else:
        for q in range(2):
            for j in range(2):
                D = ar(128 + 32 * q + 16 * j, 16); L.append((D, vr(b + 24 + 4 * q, 4), x(j), D))
    return L
def adv_addr(p):
    L = []
    regs_ = [XA, XA + 1] + [WA + t for t in range(4)] + ([BA, BA + 1] if p == 2 else [])
    for r in regs_: L += [f"v_add_u32 v{r}, 0x8000, v{r}", f"v_and_b32 v{r}, 0x1ffff, v{r}"]
    if p == 2: L.append(f"v_add_u32 v{GA}, 64, v{GA}")
    return L

def stage_loop(a, name, p, kB, kA, n, nj=2, vmn=None):
    if n != 1:
        a(f"s_mov_b32 s{sCnt}, {n}")
        a.label(name)
    a("s_waitcnt lgkmcnt(0)")
    rd = frag_reads(p, 1, 1, nj); av = adv_addr(p); dg = dma_part('B', kB)
    M = mfmas(p, 0, nj); q = len(M) // 4
    for i, m in enumerate(M):
        mf(a, *m)
        for _ in range(2 if nj == 2 else (2 if i & 1 else 5)):
            if rd: a(rd.pop(0))
        if i % q == 1:
            for l in dg.pop(0): a(l)
        elif not rd:
            for _ in range(5 if nj == 2 else 6):
                if av: a(av.pop(0))
    assert not rd and not av and not dg
    a(f"s_waitcnt vmcnt({vmn or (18 if p == 1 else 16)}) lgkmcnt(0)\ns_barrier")
    rd = frag_reads(p, 0, 0, nj); dg = dma_part('A', kA)
    M = mfmas(p, 1, nj)
    for i, m in enumerate(M):
        mf(a, *m)
        for _ in range(2 if nj == 2 else (2 if i & 1 else 5)):
            if rd: a(rd.pop(0))
        if i % q == 1 and dg:
            for l in dg.pop(0): a(l)
        if p == 1 and i == (11 if nj == 2 else 99): a(f"buffer_store_dwordx4 v[44:47], v{L16}, {WS}, s{sClr} offen sc1\ns_add_u32 s{sClr}, s{sClr}, 1024")
        if p == 1 and i == (12 if nj == 2 else 99): a(f"s_and_b32 s{sA}, s{sClr}, 0xfff\ns_cselect_b32 s{sA}, 0, s{sX0}\ns_cselect_b32 s{sX0}, s{sX0}, 0x20000000\ns_add_u32 s{sClr}, s{sClr}, s{sA}")
        if i == len(M) - 1 and n != 1: a(f"s_sub_u32 s{sCnt}, s{sCnt}, 1\ns_cmp_lg_u32 s{sCnt}, 0")
    assert not rd and not dg
    if n != 1: a(f"s_cbranch_scc1 {name}")

SLEEP = [4]
def poll_fail(a, back, sl=None):
    a(f"s_add_u32 s{sSpin}, s{sSpin}, 1\ns_cmp_gt_u32 s{sSpin}, {HSPIN}\ns_cbranch_scc1 L_end\ns_sleep {sl or SLEEP[0]}\ns_branch {back}")

def unpack8(a, dst, src):
    for j in range(4):
        a(f"v_lshlrev_b32 v{dst+2*j}, 16, v{src+j}\nv_and_b32 v{dst+2*j+1}, 0xffff0000, v{src+j}")

def pw(a, LR, LI, A2, B2, n, cnt, tmp):
    for j in range(cnt):
        if n is None: a(f"v_exp_f32 v{tmp+j}, v{A2+j}\nv_fract_f32 v{LI+j}, v{B2+j}")
        else: a(f"v_mul_f32 v{tmp+j}, {n}, v{A2+j}\nv_mul_f32 v{LI+j}, {n}, v{B2+j}\nv_exp_f32 v{tmp+j}, v{tmp+j}\nv_fract_f32 v{LI+j}, v{LI+j}")
    for j in range(cnt): a(f"v_cos_f32 v{LR+j}, v{LI+j}\nv_sin_f32 v{LI+j}, v{LI+j}")
    a("s_nop 0")
    for j in range(cnt): a(f"v_mul_f32 v{LR+j}, v{LR+j}, v{tmp+j}\nv_mul_f32 v{LI+j}, v{LI+j}, v{tmp+j}")

def dtprep(a, A2, B2, DT, cnt):
    for j in range(cnt): a(f"v_mul_f32 v{DT+j}, {LOG2E}, v{DT+j}")
    for j in range(cnt): a(f"v_exp_f32 v{DT+j}, v{DT+j}")
    a("s_nop 0")
    for j in range(cnt): a(f"v_cvt_pk_bf16_f32 v{DT+j}, v{DT+j}, v{DT+j}")
    for j in range(cnt): a(f"v_and_b32 v{DT+j}, 0xffff0000, v{DT+j}")
    for j in range(cnt):
        a(f"v_mul_f32 v{A2+j}, v{DT+j}, v{A2+j}\nv_mul_f32 v{B2+j}, v{DT+j}, v{B2+j}")
        a(f"v_mul_f32 v{A2+j}, {LOG2E}, v{A2+j}\nv_mul_f32 v{B2+j}, 0.15915494, v{B2+j}")

def h_static(a):
    t = 32
    a(f"""
    v_bfe_u32 v{t}, v{LANE}, 2, 1
    v_bfe_u32 v{t+1}, v{LANE}, 3, 2
    v_and_b32 v{t+2}, 3, v{LANE}
    v_lshl_add_u32 v{t+3}, v{t+1}, 2, v{t+2}
    v_lshl_add_u32 v{t+3}, v{t}, 4, v{t+3}
    s_lshl_b32 s{sA}, s{sW}, 12
    """)
    xaddr(a, t + 3, f"s{sA}", XA)
    a(f"""
    v_bfe_u32 v{t+4}, v{LANE}, 2, 2             ; r'
    v_bfe_u32 v{t+5}, v{LANE}, 4, 1             ; half
    v_and_b32 v{t+6}, 1, v{LANE}
    v_bfe_u32 v{t+7}, v{LANE}, 1, 1
    v_lshl_add_u32 v{t+8}, v{t+5}, 1, v{t+7}
    v_lshl_add_u32 v{t+8}, v{t+6}, 2, v{t+8}
    v_lshlrev_b32 v{t+8}, 3, v{t+8}
    v_lshl_add_u32 v{t+9}, v{HH}, 3, v{t+4}
    v_lshl_add_u32 v{t+8}, v{t+9}, 8, v{t+8}
    v_lshl_add_u32 v{t+8}, v{t+4}, 6, v{t+8}
    v_add_u32 v{WA}, 16384, v{t+8}
    """)
    for tau in range(1, 4): a(f"v_xor_b32 v{WA+tau}, {64*tau}, v{WA}")
    for i in range(4): a(f"v_xor_b32 v{WOA+i}, {64*i}, v{L16}")
    for i in range(4): a(f"v_mov_b32 v{t+12+i}, -1")
    for i in range(256): a(f"v_accvgpr_write_b32 a{i}, 0")

def helper_task(a, P):
    DBG = sr(S_DBG, 4)
    SLEEP[0] = P.get('sleep', 4); OPT.clear(); OPT.update(P)
    def hs(k, alt=0):
        if P.get('alt') and not alt:
            if k in (4, 5, 6): return
            k = {2: 5, 3: 6}.get(k, k)
        if P.get('stat'): a(f"{'s_memtime' if P.get('hcyc') else 's_memrealtime'} s[{74+2*k}:{75+2*k}]")
    def signal(tag, off, so, nv, last='31', inc=1):
        a(f"""
        s_waitcnt vmcnt({nv})
        s_barrier
        s_cmp_lg_u32 s{sW}, 0
        s_cbranch_scc1 L_h_ns{tag}
        s_lshl_b32 s{sA}, s{sB}, 2
        v_mov_b32 v{T}, {inc}
        s_mov_b64 exec, 1
        buffer_atomic_add v{T}, off, {DBG}, {so} offset:{off} sc0
        v_mov_b32 v{T+1}, 32
        s_waitcnt vmcnt(0)
        v_cmp_eq_u32 vcc, {last}, v{T}
        s_cbranch_vccz L_h_ng{tag}
        buffer_store_dword v{T+1}, off, {DBG}, {so} offset:{off + DBG_DN} sc1
        """)
        a.label(f'L_h_ng{tag}')
        a("s_mov_b64 exec, -1")
        a.label(f'L_h_ns{tag}')
    a.label('L_h_task')
    hs(0)
    t = 32
    a(f"""
    s_lshl_b32 s{sSeg}, s{sB}, 3
    s_cmp_eq_u32 s{sMode}, 2
    s_cselect_b32 s{sSeg}, 4, s{sSeg}
    s_add_u32 s{sSeg}, s{sSeg}, s{sW}
    s_lshl_b32 s{sXC}, s{sSeg}, 15
    s_lshl_b32 s{sWo1}, s{sH}, 8
    s_and_b32 s{sA}, s{sW}, 1
    s_lshl_b32 s{sA}, s{sA}, 17
    s_add_u32 s{sWo1}, s{sWo1}, s{sA}
    s_lshl_b32 s{sA}, s{sH}, 14
    s_cmp_ge_u32 s{sW}, 2
    s_cselect_b32 s{sWo2}, s{sA}, s{sWo1}
    s_lshl_b32 s{sSlot}, s{sW}, 12
    s_lshl_b32 s{sWoo}, s{sH}, 17
    s_add_u32 s{sWoo}, s{sWoo}, s{sSlot}
    s_mov_b32 s{sSpin}, 0
    """)
    NE = P.get('nearly', 2)
    if P.get('pfw'): a("s_waitcnt vmcnt(0)"); hs(0)
    a(f"""
    s_cmp_lg_u32 s{sB}, 8
    s_cbranch_scc1 L_h_nse
    v_lshlrev_b32 v{T+2}, 7, v{LANE}
    s_lshl_b32 s{sA}, s{sH}, 14
    buffer_load_dword v255, v{T+2}, {sr(S_W2,4)}, s{sA} offen
    s_add_u32 s{sA2}, s{sA}, 8192
    buffer_load_dword v255, v{T+2}, {sr(S_W2,4)}, s{sA2} offen
    s_and_b32 s{sA2}, s{sW}, 1
    s_lshl_b32 s{sA2}, s{sA2}, 13
    s_add_u32 s{sA}, s{sA}, s{sA2}
    v_add_u32 v{T+2}, s{sA}, v{T+2}
    global_load_dword v255, v{T+2}, {sr(P_CRE,2)}
    global_load_dword v255, v{T+2}, {sr(P_CIM,2)}
    s_lshl_b32 s{sA}, s{sW}, 17
    s_lshl_b32 s{sA2}, s{sH}, 12
    s_add_u32 s{sA}, s{sA}, s{sA2}
    s_add_u32 s{sA}, s{sA}, {WS_KM}
    s_add_u32 s{sA2}, s{sA}, {4 << 17}
    """)
    for k in range(8): a(f"buffer_store_dwordx4 v[44:47], v{L16}, {WS}, s{sA if k < 4 else sA2} offen offset:{1024*(k&3)} sc1")
    signal('e', DBG_ARM, '0', 0, '-1')
    a(f"""
    s_cmp_eq_u32 s{sB}, 8
    s_cselect_b32 s{sA3}, 5, s{sB}
    s_cselect_b32 s{sA2}, 4, {P.get('nq', 0) if P.get('tb', 1) else 3}
    s_sub_u32 s{sA3}, s{sA3}, 2
    s_cmp_ge_u32 s{sA3}, s{sA2}
    s_cbranch_scc1 L_h_nt
    s_waitcnt vmcnt(0)
    s_lshl_b32 s{sA}, s{sW}, 6
    v_add_u32 v{T}, s{sA}, v{LANE}
    v_lshlrev_b32 v{T+1}, 7, v{T}
    v_lshrrev_b32 v{T+2}, 1, v{T}
    v_and_b32 v{T}, 128, v{T+1}
    v_lshl_add_u32 v{T}, v{T+2}, 13, v{T}
    s_lshl_b32 s{sA}, s{sA3}, 20
    s_lshl_b32 s{sA2}, s{sH}, 8
    s_add_u32 s{sA}, s{sA}, s{sA2}
    buffer_load_dword v255, v{T}, {sr(S_PF,4)}, s{sA} offen
    s_waitcnt vmcnt(0)
    s_lshl_b32 s{sA}, s{sA3}, 15
    s_lshl_b32 s{sA2}, s{sH}, 17
    s_add_u32 s{sA}, s{sA}, s{sA2}
    buffer_load_dword v255, v{T+1}, {sr(S_WO,4)}, s{sA} offen
    s_waitcnt vmcnt(0)
    s_cmp_lg_u32 s{sB}, 8
    s_cbranch_scc1 L_h_nt
    s_lshl_b32 s{sA}, s{sH}, 16
    buffer_load_dword v255, v{T+1}, {sr(S_X,4)}, s{sA} offen
    s_add_u32 s{sA}, s{sA}, 32768
    buffer_load_dword v255, v{T+1}, {sr(S_X,4)}, s{sA} offen
    """)
    if P.get('spinT'):
        a(f"s_cmp_lg_u32 s{sH}, 0\ns_cbranch_scc1 L_end\ns_cmp_lg_u32 s{sW}, 0\ns_cbranch_scc1 L_end")
        a.label('L_spinT')
        a(f"s_sleep 1\ns_memrealtime s[72:73]\ns_waitcnt lgkmcnt(0)\ns_sub_u32 s72, s72, s98\ns_cmp_lt_u32 s72, {P['spinT']*100}\ns_cbranch_scc1 L_spinT")
    a("s_branch L_end")
    a.label('L_h_nt')
    a(f"s_cmp_eq_u32 s{sMode}, 0\ns_cbranch_scc1 L_h_d2")
    for kA, lab in (('xh', 'L_h_d2'), ('x', 'L_h_d3')):
        for st in range(4):
            for g_ in dma_part('A', kA) + (dma_part('B', 'p1') if st < 3 else []):
                for l in g_: a(l)
        if kA == 'xh': a("s_branch L_h_d3")
        a.label(lab)
    a(f"""
    s_lshl_b32 s{sA}, s{sSeg}, 17
    s_lshl_b32 s{sA2}, s{sH}, 12
    s_add_u32 s{sA}, s{sA}, s{sA2}
    s_add_u32 s{sClr}, s{sA}, {WS_KM}
    s_cmp_ge_u32 s{sMode}, 1
    s_cselect_b32 s{sClr}, 0x70000000, s{sClr}
    s_mov_b32 s{sX0}, {(4 << 17) - 4096}
    """)
    a(f"""
    s_lshl_b32 s{sA}, s{sB}, 5
    s_add_u32 s{sA}, s{sA}, s{sH}
    s_lshl_b32 s{sA}, s{sA}, 7
    s_add_u32 s{sA}, s{sA}, {WS_A}
    s_mov_b64 exec, 0xff
    buffer_store_dwordx4 {vr(t+12,4)}, v{L16}, {WS}, s{sA} offen sc1
    s_mov_b64 exec, -1
    s_lshl_b32 s{sA}, s{sH}, 2
    s_add_u32 s{sA}, s{sA}, s{sSeg}
    s_lshl_b32 s{sA}, s{sA}, 7
    s_add_u32 s{sA}, s{sA}, {WS_CNT}
    s_add_u32 s{sA2}, s{sH}, s{sMode}
    s_cmp_eq_u32 s{sMode}, 1
    s_cselect_b32 s{sA2}, s{sH}, s{sA2}
    s_cmp_lt_u32 s{sA2}, 2
    s_cselect_b32 s{sA}, s{sA}, 0x70000000
    v_mov_b32 v{t+16}, 0
    s_mov_b64 exec, 1
    buffer_store_dword v{t+16}, v{t+16}, {WS}, s{sA} offen sc1
    s_mov_b64 exec, -1
    global_load_dwordx4 {vr(t+20,4)}, v{L16}, {sr(P_GW,2)}
    """)
    a(f"s_cmp_lt_u32 s{sB}, {NE}\ns_cbranch_scc1 L_h_go\ns_cmp_eq_u32 s{sMode}, 2\ns_cbranch_scc1 L_h_go")
    a(f"v_lshlrev_b32 v{T}, 7, v{LANE}\ns_and_b32 s{sA2}, s{sXC}, 0xfffffc00\ns_cmp_ge_u32 s{sB}, 6\ns_cbranch_scc1 L_h_x2\ns_waitcnt vmcnt(0)")
    a.label('L_h_x2')
    for k in range(8 if P.get('xt', 1) else 0): a(f"s_add_u32 s{sA}, s{sA2}, {(k >> 2) * 131072 + (k & 3) * 8192}\nbuffer_load_dword v255, v{T}, {sr(S_X,4)}, s{sA} offen")
    a(f"""
    s_cmp_lg_u32 s{sB}, 4
    s_cbranch_scc1 L_h_n7
    s_add_u32 s{sA}, s{sW}, 56
    s_lshl_b32 s{sA}, s{sA}, 20
    s_lshl_b32 s{sA2}, s{sH}, 15
    s_add_u32 s{sA}, s{sA}, s{sA2}
    s_add_u32 s{sA}, s{sA}, {WS_PART}
    s_mov_b32 s{sCnt}, 8
    """)
    if P.get('r8w'):
        a(f"s_cmp_lg_u32 s{sW}, 0\ns_cbranch_scc1 L_h_c6")
        a.label('L_h_c5')
        a(f"buffer_load_dword v{T}, off, {DBG}, 0 offset:{DBG_DN + DBG_KVC + 4 * (P['r8w'] - 1)} sc1\ns_waitcnt vmcnt(0)\nv_cmp_eq_u32 vcc, 0, v{T}\ns_cbranch_vccz L_h_c6")
        poll_fail(a, 'L_h_c5', 16)
        a.label('L_h_c6')
        a("s_barrier")
    a.label('L_h_c7')
    if P.get('r8s'): a("s_waitcnt vmcnt(0)")
    a(f"s_add_u32 s{sA2}, s{sA}, {4 << 20}")
    for k in range(8): a(f"buffer_store_dwordx4 v[44:47], v{L16}, {WS}, s{sA if k < 4 else sA2} offen offset:{1024*(k&3)} sc1")
    a(f"s_add_u32 s{sA}, s{sA}, 4096\ns_sub_u32 s{sCnt}, s{sCnt}, 1\ns_cmp_lg_u32 s{sCnt}, 0\ns_cbranch_scc1 L_h_c7")
    a.label('L_h_n7')
    a(f"s_sub_i32 s{sA3}, s{sB}, {P.get('lag', 2)}\ns_max_i32 s{sA3}, s{sA3}, 0\ns_lshl_b32 s{sA3}, s{sA3}, 2\ns_cmp_ge_u32 s{sB}, 6\ns_cbranch_scc1 L_h_go")
    a(f"s_cmp_lg_u32 s{sW}, 0\ns_cbranch_scc1 L_h_go")
    a.label('L_h_w0')
    a(f"buffer_load_dword v{T}, off, {DBG}, s{sA3} offset:{DBG_DN + DBG_KVC} sc1\ns_waitcnt vmcnt(0)\nv_cmp_eq_u32 vcc, 0, v{T}\ns_cbranch_vccz L_h_go")
    poll_fail(a, 'L_h_w0', 8)
    a.label('L_h_go')
    a(f"s_waitcnt vmcnt({14 + 3})\ns_barrier")
    hs(1)
    for l in frag_reads(1, 0, 0): a(l)
    gw = f"v_add_u32 v{T}, {H_GW}, v{L16}\nds_write_b128 v{T}, {vr(t+20,4)}"
    a(f"s_cmp_eq_u32 s{sMode}, 0\ns_cbranch_scc1 L_h_full")
    stage_loop(a, 'L_h_q1a', 1, 'p1', 'xh', 12, 1, 12)
    stage_loop(a, 'L_h_q1c', 1, 'p1', 'x', 1, 1, 12)
    a(gw)
    kv0 = f"buffer_load_dword v{G}, off, {DBG}, 0 offset:{DBG_ARM} sc1"
    a(f"v_mov_b32 v{G}, 64\ns_add_u32 s{sA}, s{sW}, s{sMode}\ns_cmp_lg_u32 s{sA}, 1\ns_cbranch_scc1 L_h_a1"); a(kv0)
    a.label('L_h_a1')
    stage_loop(a, 'L_h_q1b', 1, 'p2', 'x', 3, 1, 14)
    a.label('L_h_a0')
    a(f"v_cmp_gt_u32 vcc, {ARM_ALL[P.get('tb', 1)]}, v{G}\ns_cbranch_vccz L_h_e1"); a(kv0); a("s_waitcnt vmcnt(0)")
    poll_fail(a, 'L_h_a0', 4)
    a.label('L_h_full')
    stage_loop(a, 'L_h_p1a', 1, 'p1', 'x', 13)
    a(gw)
    stage_loop(a, 'L_h_p1b', 1, 'p2', 'x', 3)
    a.label('L_h_e1')
    hs(2)
    a(f"""
    s_lshl_b32 s{sA3}, s{sSeg}, 19
    s_lshl_b32 s{sA2}, s{sH}, 14
    s_add_u32 s{sA3}, s{sA3}, s{sA2}
    s_add_u32 s{sA3}, s{sA3}, {WS_KV}
    s_waitcnt lgkmcnt(0)
    s_nop 7
    """)
    TM = 240
    def kv_store(j, m, tau):
        dst = (KF if m == 0 else VF) + 32 * j + 8 * tau
        a(f"s_add_u32 s{sA}, s{sA3}, {j * (4 << 19) + 4096 * tau}")
        for u in range(2): a(f"buffer_store_dwordx4 {vr(dst+4*u,4)}, v{VKV}, {WS}, s{sA} offen offset:{2048*m + 256*u} sc1")
    for j in range(2):
        for m in range(2):
            for tau in range(4):
                src = 128 * m + 64 * j + 16 * tau; dst = (KF if m == 0 else VF) + 32 * j + 8 * tau
                for r in range(16): a(f"v_accvgpr_read_b32 v{TM+r}, a{src+r}")
                for r in range(8): a(f"v_cvt_pk_bf16_f32 v{dst+r}, v{TM+2*r}, v{TM+2*r+1}")
                if j == 0:
                    a(f"s_cmp_eq_u32 s{sMode}, 0\ns_cbranch_scc1 L_h_sk{j}{m}{tau}")
                    kv_store(j, m, tau)
                    a.label(f'L_h_sk{j}{m}{tau}')
        if j == 0:
            a(f"s_cmp_eq_u32 s{sMode}, 0\ns_cbranch_scc1 L_h_j1\ns_lshl_b32 s{sA2}, s{sMode}, 2")
            if P.get('dlyh'): a(f"s_sleep {P['dlyh']}")
            signal('a', DBG_KV0 - 4, f"s{sA2}", 0)
            a(f"s_cmp_eq_u32 s{sMode}, 1\ns_cbranch_scc1 L_h_nj1\ns_mov_b32 s{sMode}, 0\ns_waitcnt vmcnt(0) lgkmcnt(0)\ns_branch L_h_again")
            a.label('L_h_j1')
    a.label('L_h_nj1')
    for i in range(192): a(f"v_accvgpr_write_b32 a{i}, 0")
    a(f"s_lshl_b32 s{sA}, s{sW}, 12")
    xaddr(a, VN, f"s{sA}", XA)
    a(f"""
    v_bfe_u32 v{TM}, v{LANE}, 2, 1
    v_bfe_u32 v{TM+1}, v{LANE}, 3, 1
    v_and_b32 v{TM+2}, 3, v{LANE}
    v_lshl_add_u32 v{TM+2}, v{TM+1}, 2, v{TM+2}
    v_lshl_add_u32 v{TM+2}, v{TM}, 3, v{TM+2}      ; ch
    v_bfe_u32 v{TM+3}, v{LANE}, 4, 1
    v_lshlrev_b32 v{TM+3}, 12, v{TM+3}
    v_add_u32 v{TM+3}, 24576, v{TM+3}
    v_lshlrev_b32 v{GA}, 4, v{HH}
    v_add_u32 v{GA}, {H_GW}, v{GA}
    """)
    xaddr(a, TM + 2, f"v{TM+3}", BA)
    hs(3)
    for l in frag_reads(2, 0, 0): a(l)
    a(f"s_lshl_b32 s{sA4}, s{sB}, 1\ns_and_b32 s{sA4}, s{sA4}, {2 if P.get('lag', 2) == 2 else 14}\ns_sub_i32 s{sA4}, s{sA4}, {-1 if P.get('lag', 2) == 2 else 3}\ns_max_i32 s{sA4}, s{sA4}, 1\ns_cmp_ge_u32 s{sB}, 6\ns_cselect_b32 s{sA4}, 1, s{sA4}\ns_sub_u32 s{sJ}, 12, s{sA4}")
    stage_loop(a, 'L_h_p20', 2, 'p2', 'x', f"s{sA4}")
    a(f"s_cmp_eq_u32 s{sMode}, 0\ns_cbranch_scc1 L_h_st\ns_cmp_lg_u32 s{sW}, 0\ns_cbranch_scc1 L_h_l1")
    a.label('L_h_l0')
    a(f"buffer_load_dword v{T}, off, {DBG}, 0 offset:{DBG_DN + DBG_KVC} sc1\ns_waitcnt vmcnt(0)\nv_cmp_eq_u32 vcc, 0, v{T}\ns_cbranch_vccz L_h_l1")
    poll_fail(a, 'L_h_l0', 8)
    a.label('L_h_l1')
    a("s_barrier")
    n0 = len(a.lines)
    for m in range(2):
        for tau in range(4): kv_store(1, m, tau)
    a.lines[n0:] = [l.replace('buffer_store', 'buffer_load') for l in a.lines[n0:]]
    a(f"s_mov_b32 s{sMode}, 0\ns_branch L_h_nsc")
    a.label('L_h_st')
    for j in range(2):
        for m in range(2):
            for tau in range(4): kv_store(j, m, tau)
    signal('c', DBG_KVC, f"s{sA}", 0)
    stage_loop(a, 'L_h_p2a', 2, 'p2', 'x', f"s{sJ}")
    stage_loop(a, 'L_h_p2c', 2, 'p2', 'wo', 1)
    stage_loop(a, 'L_h_p2b', 2, 'wo', 'wo', 3)
    for g_ in dma_part('B', 'wo'):
        for l in g_: a(l)
    hs(4)
    a("s_waitcnt lgkmcnt(0)\ns_nop 7")
    PK = 128 + 0
    for j in range(2):
        for tau in range(4):
            src = 64 * j + 16 * tau; dst = QF + 32 * j + 8 * tau
            for r in range(16): a(f"v_accvgpr_read_b32 v{TM+r}, a{src+r}")
            for r in range(8): a(f"v_cvt_pk_bf16_f32 v{dst+r}, v{TM+2*r}, v{TM+2*r+1}")
    a(f"""
    v_bfe_u32 v{T}, v{LANE}, 2, 1
    v_bfe_u32 v{T+1}, v{LANE}, 3, 1
    v_and_b32 v{T+2}, 0x13, v{LANE}
    v_lshl_add_u32 v{T+2}, v{T+1}, 2, v{T+2}
    v_lshl_add_u32 v{T+2}, v{T}, 3, v{T+2}
    v_lshlrev_b32 v{T+2}, 10, v{T+2}
    s_lshl_b32 s{sA}, s{sH}, 5
    v_lshl_add_u32 v{T+1}, v{HH}, 4, s{sA}
    s_lshl_b32 s{sA}, s{sW}, 17
    v_add3_u32 v{BA}, v{T+2}, v{T+1}, s{sA}
    """)
    for j in range(2):
        for k in range(8):
            D = vr(SS + 16 * j, 16)
            mf(a, D, vr(KF + 32 * j + 4 * k, 4), vr(QF + 32 * j + 4 * k, 4), D if k else 0)
    RI = 32
    for r in range(32): a(f"v_accvgpr_read_b32 v{RI+r}, a{128+r}")
    a(f"v_accvgpr_read_b32 v{G}, a160\nv_accvgpr_read_b32 v{MX}, a176")
    A2, B2, LR, LI = 64, 72, 80, 88
    a(f"global_load_dwordx4 {vr(LR,4)}, v{T+1}, {sr(P_LRE,2)}\nglobal_load_dwordx4 {vr(LR+4,4)}, v{T+1}, {sr(P_LIM,2)}\nglobal_load_dwordx4 {vr(LI,4)}, v{T+1}, {sr(P_LDT,2)}")
    for r in (G, MX): a(f"v_mul_f32 v{r}, 0xbfb8aa3b, v{r}")
    for r in (G, MX): a(f"v_exp_f32 v{r}, v{r}")
    a("s_nop 0")
    for r in (G, MX): a(f"v_add_f32 v{r}, 1.0, v{r}")
    for r in (G, MX): a(f"v_rcp_f32 v{r}, v{r}")
    a(f"v_lshlrev_b32 v{T}, 4, v{HH}\nv_sub_u32 v{T}, v{VN}, v{T}\nv_mov_b32 v{T+2}, 0xff800000")
    for r in range(16):
        a(f"v_cmp_le_i32 vcc, {r}, v{T}\ns_nop 1")
        for j in range(2): a(f"v_cndmask_b32 v{SS+16*j+r}, v{T+2}, v{SS+16*j+r}, vcc")
    PQ, PV, PS, PH, PG = 128, 160, 192, 208, 216
    for r in range(32): a(f"v_accvgpr_write_b32 a{PQ+r}, v{QF+32+r}\nv_accvgpr_write_b32 a{PV+r}, v{VF+32+r}")
    for r in range(16): a(f"v_accvgpr_write_b32 a{PS+r}, v{SS+16+r}")
    a(f"v_accvgpr_write_b32 a{PG}, v{MX}")
    CA, CB, CD = 192, 193, 194
    a(f"""
    v_and_b32 v{T}, 15, v{LANE}
    s_lshl_b32 s{sA}, s{sH}, 5
    v_lshl_add_u32 v{T+2}, v{T}, 1, s{sA}
    global_load_ushort v{CA}, v{T+2}, {sr(P_LRE,2)}
    global_load_ushort v{CB}, v{T+2}, {sr(P_LIM,2)}
    global_load_ushort v{CD}, v{T+2}, {sr(P_LDT,2)}
    """)
    ACW = 220
    for tt in range(4):
        a(f"global_load_dwordx4 {ar(ACW+8*tt,4)}, v{BA}, {sr(P_CRE,2)}\nglobal_load_dwordx4 {ar(ACW+8*tt+4,4)}, v{BA}, {sr(P_CIM,2)}")
        if tt < 3: a(f"v_add_u32 v{BA}, 32768, v{BA}")
    a(f"s_lshl_b32 s{sA}, s{sW}, 12\nv_add_u32 v{BA+1}, {H_K}, v{L16}\nv_add_u32 v{GA}, s{sA}, v{BA+1}\ns_waitcnt vmcnt(8)")
    def c_put(r):
        for tt in range(4): a(f"ds_write_b128 v{GA}, {ar(ACW+8*tt+4*r,4)} offset:{1024*tt}")
    def c_get(r):
        for tile in range(16): a(f"ds_read_b128 {ar(8*tile+4*r,4)}, v{BA+1} offset:{1024*tile}")
    TT, LE, LM = 128, 136, 144
    unpack8(a, LE, LR); unpack8(a, LM, LR + 4); unpack8(a, TT, LI)
    for j in range(8): a(f"v_mov_b32 v{A2+j}, v{LE+j}\nv_mov_b32 v{B2+j}, v{LM+j}")
    dtprep(a, A2, B2, TT, 8)
    pw(a, LR, LI, A2, B2, None, 8, TT)
    for j in range(8):
        a(f"""
        v_mul_f32 v{TT}, v{LE+j}, v{LE+j}
        v_fmac_f32 v{TT}, v{LM+j}, v{LM+j}
        v_rcp_f32 v{TT}, v{TT}
        v_add_f32 v{TT+1}, -1.0, v{LR+j}
        v_mul_f32 v{TT+2}, v{TT+1}, v{LE+j}
        v_fmac_f32 v{TT+2}, v{LI+j}, v{LM+j}
        v_mul_f32 v{TT+3}, v{LI+j}, v{LE+j}
        v_fma_f32 v{TT+3}, -v{TT+1}, v{LM+j}, v{TT+3}
        v_mul_f32 v{LE+j}, v{TT+2}, v{TT}
        v_mul_f32 v{LM+j}, v{TT+3}, v{TT}
        """)
    for d in (1, 2, 4, 8):
        dp = f"row_shr:{d} row_mask:0xf bank_mask:0xf bound_ctrl:1"
        for j in range(2):
            R, I = RI + 16 * j, RI + 16 * j + 8
            for c in range(8): a(f"v_mov_b32 v{TT+c}, v{R+c}")
            for c in range(8): a(f"v_fmac_f32_dpp v{R+c}, v{R+c}, v{LR+c} {dp}")
            for c in range(8): a(f"v_fmac_f32_dpp v{R+c}, -v{I+c}, v{LI+c} {dp}")
            for c in range(8): a(f"v_fmac_f32_dpp v{I+c}, v{I+c}, v{LR+c} {dp}")
            for c in range(8): a(f"v_fmac_f32_dpp v{I+c}, v{TT+c}, v{LI+c} {dp}")
        if d < 8:
            for c in range(8):
                a(f"v_mul_f32 v{TT}, v{LI+c}, v{LI+c}\nv_add_f32 v{TT+1}, v{LR+c}, v{LR+c}\nv_fma_f32 v{LR+c}, v{LR+c}, v{LR+c}, -v{TT}\nv_mul_f32 v{LI+c}, v{TT+1}, v{LI+c}")
    a(f"v_and_b32 v{T+2}, 15, v{LANE}\nv_add_u32 v{T+2}, 1, v{T+2}\nv_cvt_f32_u32 v{T+2}, v{T+2}")
    pw(a, LR, LI, A2, B2, f"v{T+2}", 8, TT)
    dp = "row_bcast:15 row_mask:0xa bank_mask:0xf"
    for j in range(2):
        R, I = RI + 16 * j, RI + 16 * j + 8
        for c in range(8): a(f"v_fmac_f32_dpp v{R+c}, v{R+c}, v{LR+c} {dp}")
        for c in range(8): a(f"v_fmac_f32_dpp v{R+c}, -v{I+c}, v{LI+c} {dp}")
        for c in range(8): a(f"v_fmac_f32_dpp v{I+c}, v{I+c}, v{LR+c} {dp}")
        for c in range(8): a(f"v_fmac_f32_dpp v{I+c}, v{R+c}, v{LI+c} {dp}")
    a(f"""
    s_lshl_b32 s{sA}, s{sW}, 7
    s_add_u32 s{sA}, s{sA}, {H_E}
    v_lshl_add_u32 v{T+2}, v{HH}, 5, s{sA}
    s_mov_b32 exec_lo, 0x80000000
    s_mov_b32 exec_hi, 0x80000000
    """)
    for j in range(2):
        for q in range(4): a(f"ds_write_b128 v{T+2}, {vr(RI + 16*j + 4*q, 4)} offset:{512*j + 64*(q>>1) + 16*(q&1)}")
    a("s_mov_b64 exec, -1")
    a(f"v_lshlrev_b32 v{CA}, 16, v{CA}\nv_lshlrev_b32 v{CB}, 16, v{CB}\nv_lshlrev_b32 v{CD}, 16, v{CD}")
    dtprep(a, CA, CB, CD, 1)
    U, W_ = 196, 198
    pw(a, U, U + 1, CA, CB, "0x42000000", 1, CD)
    pw(a, W_, W_ + 1, CA, CB, "0x43800000", 1, CD)
    a(f"v_add_u32 v{T+2}, 1, v{VN}\nv_cvt_f32_u32 v{T+2}, v{T+2}")
    pw(a, LR, LI, A2, B2, f"v{T+2}", 8, TT)
    EE = 200
    a(f"v_lshlrev_b32 v{T}, 2, v{T}\nv_add_u32 v{T+2}, {H_E}, v{T}\ns_waitcnt vmcnt(0)")
    c_put(0); a("s_waitcnt lgkmcnt(0)\ns_barrier")
    c_get(0); a("s_waitcnt lgkmcnt(0)\ns_barrier")
    c_put(1); a("s_waitcnt lgkmcnt(0)\ns_barrier")
    c_get(1); a("s_waitcnt lgkmcnt(0)\ns_barrier")
    for s_ in range(8): a(f"ds_read2_b32 {vr(EE+2*s_,2)}, v{T+2} offset0:{32*s_} offset1:{32*s_+16}")
    AC_ = 216
    def cmac(M_, Er):
        a(f"""
        v_fma_f32 v{AC_+2}, v{M_}, v{AC_}, v{Er}
        v_fma_f32 v{AC_+3}, v{M_}, v{AC_+1}, v{Er+1}
        v_fma_f32 v{AC_+2}, -v{M_+1}, v{AC_+1}, v{AC_+2}
        v_fma_f32 v{AC_+1}, v{M_+1}, v{AC_}, v{AC_+3}
        v_mov_b32 v{AC_}, v{AC_+2}
        """)
    a(f"s_waitcnt lgkmcnt(0)\nv_mov_b32 v{AC_}, v{EE}\nv_mov_b32 v{AC_+1}, v{EE+1}")
    for s_ in range(1, 8): cmac(U, EE + 2 * s_)
    a(f"""
    v_min_u32 v{AC_}, -2, v{AC_}
    v_min_u32 v{AC_+1}, -2, v{AC_+1}
    v_lshlrev_b32 v{T+1}, 1, v{T}
    s_lshl_b32 s{sA3}, s{sH}, 7
    s_add_u32 s{sA3}, s{sA3}, {WS_A}
    s_lshl_b32 s{sA}, s{sB}, 12
    s_add_u32 s{sA}, s{sA}, s{sA3}
    s_cmp_eq_u32 s{sW}, 0
    s_cselect_b32 s{sA}, s{sA}, 0x70000000
    buffer_store_dwordx2 {vr(AC_,2)}, v{T+1}, {WS}, s{sA} offen sc1
    v_and_b32 v{T+2}, 7, v{LANE}
    v_cmp_ge_u32 {sr(sM,2)}, s{sB}, v{T+2}
    v_lshlrev_b32 v{T+2}, 2, v{T+2}
    v_mov_b32 v{AC_}, 0
    v_mov_b32 v{AC_+1}, 0
    s_mov_b32 s{sCnt}, 0
    """)
    a.label('L_h_wk')
    a(f"""
    buffer_load_dword v{AC_+2}, v{T+2}, {DBG}, 0 offen offset:{DBG_DN + DBG_KV0} sc1
    s_waitcnt vmcnt(0)
    v_cmp_gt_u32 vcc, 32, v{AC_+2}
    s_and_b64 vcc, vcc, {sr(sM,2)}
    s_cbranch_vccz L_h_wa
    """)
    poll_fail(a, 'L_h_wk')
    a.label('L_h_wa')
    a(f"""
    s_cmp_ge_u32 s{sCnt}, s{sB}
    s_cbranch_scc1 L_h_wd
    buffer_load_dwordx2 {vr(220,2)}, v{T+1}, {WS}, s{sA3} offen sc1
    s_waitcnt vmcnt(0)
    v_max_u32 v{AC_+2}, v220, v221
    v_cmp_eq_u32 vcc, -1, v{AC_+2}
    s_cbranch_vccz L_h_wb
    """)
    poll_fail(a, 'L_h_wa')
    a.label('L_h_wb')
    cmac(W_, 220)
    a(f"s_add_u32 s{sCnt}, s{sCnt}, 1\ns_add_u32 s{sA3}, s{sA3}, 4096\ns_branch L_h_wa")
    a.label('L_h_wd')
    a(f"s_lshl_b32 s{sA}, s{sW}, 10\ns_add_u32 s{sA}, s{sA}, {H_C}\nv_add_u32 v{T+2}, s{sA}, v{T}")
    for s_ in range(8):
        a(f"ds_write2_b32 v{T+2}, v{AC_}, v{AC_+1} offset0:{32*s_} offset1:{32*s_+16}")
        if s_ < 7: cmac(U, EE + 2 * s_)
    a(f"""
    s_lshl_b32 s{sA2}, s{sW}, 7
    s_add_u32 s{sA}, s{sA}, s{sA2}
    v_lshl_add_u32 v{T+2}, v{HH}, 5, s{sA}
    s_waitcnt lgkmcnt(0)
    """)
    CC = 192
    for j in range(2):
        for q in range(4): a(f"ds_read_b128 {vr(CC + 16*j + 4*q, 4)}, v{T+2} offset:{512*j + 64*(q>>1) + 16*(q&1)}")
    a(f"v_add_f32 v{T}, v{G}, v{G}\nv_add_f32 v{T+1}, v{MX}, v{MX}\ns_waitcnt lgkmcnt(0)")
    for j in range(2):
        R, I, cr, ci = RI + 16 * j, RI + 16 * j + 8, CC + 16 * j, CC + 16 * j + 8
        for c in range(8):
            a(f"""
            v_fmac_f32 v{R+c}, v{LR+c}, v{cr+c}
            v_fmac_f32 v{I+c}, v{LR+c}, v{ci+c}
            v_fma_f32 v{R+c}, -v{LI+c}, v{ci+c}, v{R+c}
            v_fmac_f32 v{I+c}, v{LI+c}, v{cr+c}
            v_mul_f32 v{cr+c}, v{R+c}, v{LE+c}
            v_mul_f32 v{ci+c}, v{R+c}, v{LM+c}
            v_fma_f32 v{cr+c}, -v{I+c}, v{LM+c}, v{cr+c}
            v_fmac_f32 v{ci+c}, v{I+c}, v{LE+c}
            v_mul_f32 v{cr+c}, v{cr+c}, v{T+j}
            v_mul_f32_e64 v{ci+c}, -v{ci+c}, v{T+j}
            """)
        for r in range(8): a(f"v_cvt_pk_bf16_f32 v{HF+8*j+r}, v{cr+2*r}, v{cr+2*r+1}")
    for r in range(8): a(f"v_accvgpr_write_b32 a{PH+r}, v{HF+8+r}")
    a(f"""
    v_bfe_u32 v{t+4}, v{LANE}, 2, 2
    v_bfe_u32 v{t+5}, v{LANE}, 4, 1
    v_and_b32 v{t+6}, 1, v{LANE}
    v_bfe_u32 v{t+7}, v{LANE}, 1, 1
    v_lshl_add_u32 v{t+8}, v{t+6}, 1, v{t+7}
    v_lshl_add_u32 v{t+8}, v{t+5}, 2, v{t+8}
    v_lshlrev_b32 v{t+8}, 3, v{t+8}
    v_lshl_add_u32 v{t+9}, v{HH}, 4, v{t+4}
    v_lshl_add_u32 v{t+8}, v{t+9}, 10, v{t+8}
    v_lshl_add_u32 v{WOA}, v{t+4}, 6, v{t+8}
    """)
    for tt in range(1, 4): a(f"v_xor_b32 v{WOA+tt}, {64*tt}, v{WOA}")
    for tt in range(4): a(f"v_add_u32 v{WOA+4+tt}, 0x10000, v{WOA+tt}")
    a(f"s_mov_b32 s{sJ}, 0")
    MINI = P.get('mini', 1)
    if MINI:
        a(f"""
        s_cmp_lg_u32 s{sB}, 7
        s_cbranch_scc1 L_h_nsd
        s_lshl_b32 s{sA2}, s{sW}, 5
        s_add_u32 s{sA2}, s{sA2}, s{sH}
        s_mul_i32 s{sA2}, s{sA2}, {23*1024}
        s_add_u32 s{sA2}, s{sA2}, {WS_ST}
        """)
        for q in range(23):
            a(f"buffer_store_dwordx4 {ar(128+4*q,4)}, v{L16}, {WS}, s{sA2} offen offset:{1024*(q&3)} sc1")
            if q & 3 == 3: a(f"s_add_u32 s{sA2}, s{sA2}, 4096")
        signal('d', DBG_ST, '0', 0)
    hs(5)
    a.label('L_h_seg')
    KMF, VMF, SM, PX, PM, OA_ = 32, 64, 80, 248, 128, 192
    a(f"v_max3_f32 v{MX}, v{SS}, v{SS+1}, v{SS+2}")
    for r in range(3, 15, 2): a(f"v_max3_f32 v{MX}, v{MX}, v{SS+r}, v{SS+r+1}")
    a(f"""
    v_max_f32 v{MX}, v{MX}, v{SS+15}
    s_lshl_b32 s{sA}, s{sSeg}, 17
    s_lshl_b32 s{sA2}, s{sH}, 12
    s_add_u32 s{sA}, s{sA}, s{sA2}
    s_add_u32 s{sA}, s{sA}, {WS_KM}
    s_sub_u32 s{sA2}, s{sSeg}, {P.get('pm0', 0)}
    s_cmp_lt_u32 s{sA2}, {48 - P.get('pm0', 0)}
    s_cselect_b32 s{sA2}, {P.get('pm', 7)}, {P.get('pm6', 3)}
    s_cmp_lt_u32 s{sSeg}, 56
    s_cselect_b32 s{sA2}, s{sA2}, {P.get('pm7', 3)}
    s_cmp_lt_u32 s{sSeg}, 60
    s_cselect_b32 s{sA2}, s{sA2}, 0
    s_or_b32 s{sA2}, s{sA2}, s{sSeg}
    s_min_u32 s{sA2}, s{sA2}, 62
    s_sub_i32 s{sA2}, s{sA2}, s{sSeg}
    s_lshl_b32 s{sA2}, s{sA2}, 17
    s_add_u32 s{sA2}, s{sA}, s{sA2}
    s_mov_b32 s{sA4}, 0x3e0293ee
    s_lshl_b32 s{sA3}, s{sW}, 12
    s_add_u32 s{sA3}, s{sA3}, {H_K}
    v_add_u32 v{T+1}, s{sA3}, v{L16}
    v_add_u32 v{T+2}, 2048, v{VKM}
    """)
    for tau in range(4): a(f"v_mov_b64 {vr(VMF + 4*tau + 2, 2)}, 0")
    a(f"v_mov_b64 {vr(PM+2,2)}, 0")
    a.label('L_h_pr')
    a(f"""
    buffer_load_dword v{T}, off, {WS}, s{sA2} offset:3072 sc1
    s_waitcnt vmcnt(0)
    v_cmp_eq_u32 vcc, -1, v{T}
    s_cbranch_vccz L_h_ld
    """)
    poll_fail(a, 'L_h_pr')
    a.label('L_h_pf')
    a(f"s_add_u32 s{sSpin}, s{sSpin}, 1\ns_cmp_gt_u32 s{sSpin}, {HSPIN}\ns_cbranch_scc1 L_end")
    a.label('L_h_ld')
    LD = 192
    for k in range(4): a(f"buffer_load_dwordx4 {vr(LD + 4*k, 4)}, v{L16}, {WS}, s{sA} offen offset:{1024*k} sc1")
    a("s_waitcnt vmcnt(0)")
    hs(6)
    for k in range(4): a(f"ds_write_b128 v{T+1}, {vr(LD + 4*k, 4)} offset:{1024*k}")
    a(f"v_max3_u32 v{T}, v{LD}, v{LD+1}, v{LD+2}")
    for r in range(3, 15, 2): a(f"v_max3_u32 v{T}, v{T}, v{LD+r}, v{LD+r+1}")
    a(f"v_max_u32 v{T}, v{T}, v{LD+15}\nv_cmp_eq_u32 vcc, -1, v{T}\ns_cbranch_vccnz L_h_pf")
    for k in range(8):
        o = ((k >> 1) & 1) * 128 + (k & 1) * 32
        a(f"ds_read2_b64 {vr(KMF + 4*k, 4)}, v{VKM if k < 4 else T+2} offset0:{o} offset1:{o+16}")
    for tau in range(4): a(f"ds_read2st64_b32 {vr(VMF + 4*tau, 2)}, v{VVM} offset0:{4*tau} offset1:{4*tau+2}")
    for k in range(8):
        a(f"s_waitcnt lgkmcnt({11-k})")
        mf(a, vr(SM, 16), vr(KMF + 4 * k, 4), vr(QF + 4 * k, 4), vr(SM, 16) if k else 0)
    a("s_waitcnt lgkmcnt(0)\ns_nop 11")
    a(f"""
    v_max3_f32 v{T}, v{MX}, v{SM}, v{SM+1}
    v_max3_f32 v{T}, v{T}, v{SM+2}, v{SM+3}
    v_mov_b32 v{T+1}, v{T}
    s_nop 1
    v_permlane32_swap_b32 v{T}, v{T+1}
    v_max_f32 v{T}, v{T}, v{T+1}
    v_mul_f32 v{T}, s{sA4}, v{T}
    """)
    ev = [SM + r for r in range(4)] + [SS + r for r in range(16)]
    for r in ev: a(f"v_fma_f32 v{r}, v{r}, s{sA4}, -v{T}")
    for r in ev: a(f"v_exp_f32 v{r}, v{r}")
    a(f"v_cvt_pk_bf16_f32 v{PM}, v{SM}, v{SM+1}\nv_cvt_pk_bf16_f32 v{PM+1}, v{SM+2}, v{SM+3}")
    for r in range(8): a(f"v_cvt_pk_bf16_f32 v{PX+r}, v{SS+2*r}, v{SS+2*r+1}")
    sm = [f"v_add_f32 v{T}, v{ev[0]}, v{ev[1]}"] + [f"v_add_f32 v{T}, v{T}, v{r}" for r in ev[2:]]
    sm += [f"v_mov_b32 v{T+1}, v{T}", f"v_sub_f32 v{T+2}, 1.0, v{G}", "s_nop 0", f"v_permlane32_swap_b32 v{T}, v{T+1}", f"v_add_f32 v{T}, v{T}, v{T+1}",
           f"v_rcp_f32 v{T}, v{T}", "s_nop 0", f"v_mul_f32 v{T}, v{T}, v{T+2}"]
    WF = 32
    wrd = lambda tile: [f"ds_read_b64_tr_b16 {vr(WF + 32*(tile&1) + 4*k + 2*pp, 2)}, v{WOA + 4*(k>>2) + (tile&3)} offset:{(32*((k>>1)&1) + 8*(k&1) + 4*pp)*1024 + 256*(tile>>2)}"
                        for k in range(8) for pp in range(2)]
    rd = wrd(0)
    OB = [192, 208, 132, 148]
    OB = [192, 208, 132, 80]
    def onorm(tau):
        L_ = [f"v_mul_f32 v{OB[tau]+r}, v{OB[tau]+r}, v{T}" for r in range(16)]
        L_ += [f"v_cvt_pk_bf16_f32 v{QF+8*tau+r}, v{OB[tau]+2*r}, v{OB[tau]+2*r+1}" for r in range(8)]
        return L_
    n = 0
    for tau in range(4):
        D = vr(OB[tau], 16)
        for k in range(3):
            if k == 0: mf(a, D, vr(VMF + 4 * tau, 4), vr(PM, 4), 0)
            else: mf(a, D, vr(VF + 8 * tau + 4 * (k - 1), 4), vr(PX + 4 * (k - 1), 4), D)
            for _ in range(2):
                if rd: a(rd.pop(0))
            if n == 6: sm += onorm(0)
            if n == 9: sm += onorm(1)
            for _ in range(6):
                if sm: a(sm.pop(0))
            n += 1
    for l in sm + onorm(2) + onorm(3): a(l)
    hs(7)
    a(f"""
    s_lshl_b32 s{sA}, s{sSeg}, 20
    s_lshl_b32 s{sA2}, s{sH}, 10
    s_add_u32 s{sA}, s{sA}, s{sA2}
    s_add_u32 s{sA}, s{sA}, {WS_PART}
    """)
    CT = 128
    def epi(tile):
        D = 192 + 16 * (tile & 1); c = CT + 8 * (tile & 1)
        L_ = []
        for u in range(2):
            L_ += [f"v_cvt_pk_bf16_f32 v{c+4*u+r}, v{D+8*u+2*r}, v{D+8*u+2*r+1}\nv_min_u32 v{c+4*u+r}, -2, v{c+4*u+r}" for r in range(4)]
        for u in range(2):
            L_ += [f"buffer_store_dwordx4 {vr(c+4*u,4)}, v{L16}, {WS}, s{sA} offen sc1\ns_add_u32 s{sA}, s{sA}, 32768"]
        return L_
    for tile in range(16):
        D = vr(192 + 16 * (tile & 1), 16)
        rd = wrd(tile + 1) if tile < 15 else []
        ep = epi(tile - 1) if tile else []
        for k in range(10):
            if k == 2: a("s_waitcnt lgkmcnt(0)")
            if k < 2: mf(a, D, ar(8 * tile + 4 * k, 4), vr(HF + 4 * k, 4), D if k else 0)
            else: mf(a, D, vr(WF + 32 * (tile & 1) + 4 * (k - 2), 4), vr(QF + 4 * (k - 2), 4), D)
            if k >= 2:
                for _ in range(2):
                    if rd: a(rd.pop(0))
            if ep and k >= 6 and len(ep) <= 2: a(ep.pop(0))
            elif ep and k >= 1 and len(ep) > 2:
                a(ep.pop(0)); a(ep.pop(0))
        assert not ep and not rd
    a("s_nop 12")
    for l in epi(15): a(l)
    hs(8)
    a(f"""
    s_lshl_b32 s{sA4}, s{sSeg}, 7
    s_add_u32 s{sA4}, s{sA4}, {WS_CNT}
    v_mov_b32 v220, 1
    """)
    if MINI: a(f"s_cmp_eq_u32 s{sB}, 7\ns_cselect_b32 s{sJ}, 3, s{sJ}\ns_cbranch_scc1 L_h_s7")
    a(f"s_cmp_lg_u32 s{sJ}, 0\ns_cbranch_scc1 L_h_sg")
    for r in range(32): a(f"v_accvgpr_read_b32 v{QF+r}, a{PQ+r}\nv_accvgpr_read_b32 v{VF+r}, a{PV+r}")
    for r in range(16): a(f"v_accvgpr_read_b32 v{SS+r}, a{PS+r}")
    for r in range(8): a(f"v_accvgpr_read_b32 v{HF+r}, a{PH+r}")
    a.label('L_h_sg')
    a(f"""
    v_accvgpr_read_b32 v{T}, a{PG}
    v_accvgpr_write_b32 a{PG}, v{G}
    s_xor_b32 s{sSeg}, s{sSeg}, 4
    s_add_u32 s{sJ}, s{sJ}, 1
    v_mov_b32 v{G}, v{T}
    {'' if P.get('sg', 1) else 'L_h_s7:'}
    s_waitcnt vmcnt(0)
    s_mov_b64 exec, 1
    buffer_atomic_add v220, off, {WS}, s{sA4}
    s_mov_b64 exec, -1
    s_cmp_eq_u32 s{sJ}, 1
    s_cbranch_scc1 L_h_seg
    {'L_h_s7:' if P.get('sg', 1) else ''}
    s_waitcnt vmcnt(0)
    """)
    SELR, XS, DS_ = 216, 208, 212
    XU, DU = 224, 232
    def red_prep(SELR, DS_):
        a(f"""
        s_lshl_b32 s{sA2}, s{sH}, 5
        v_lshlrev_b32 v{T+1}, 4, v{HH}
        v_lshl_add_u32 v{T+2}, v{VN}, 10, v{T+1}
        v_add_u32 v{T+1}, s{sA2}, v{T+1}
        global_load_dwordx4 {vr(DS_,4)}, v{T+1}, {sr(P_DSK,2)}
        v_lshlrev_b32 v{MX}, 1, v{T+2}
        v_bfe_u32 v{t}, v{LANE}, 2, 1
        v_bfe_u32 v{t+1}, v{LANE}, 3, 2
        v_and_b32 v{t+2}, 3, v{LANE}
        v_lshl_add_u32 v{t+1}, v{t+1}, 2, v{t+2}
        v_cmp_eq_u32 vcc, v{t}, v{HH}
        v_mov_b32 v{t+3}, 64
        s_mov_b32 s{sA2}, 0x3f80
        v_cndmask_b32 v{t+1}, v{t+3}, v{t+1}, vcc
        v_and_b32 v{t+2}, 1, v{t+1}
        v_lshlrev_b32 v{t+2}, 4, v{t+2}
        v_lshlrev_b32 v{t+2}, v{t+2}, s{sA2}
        v_lshrrev_b32 v{t+1}, 1, v{t+1}
        """)
        for d in range(4): a(f"v_cmp_eq_u32 vcc, {d}, v{t+1}\ns_nop 1\nv_cndmask_b32 v{SELR+d}, 0, v{t+2}, vcc")
    red_prep(SELR, DS_)
    a.label('L_h_red')
    a(f"""
    s_lshl_b32 s{sA3}, s{sSeg}, 15
    s_lshl_b32 s{sA2}, s{sH}, 5
    s_add_u32 s{sA3}, s{sA3}, s{sA2}
    buffer_load_dwordx4 {vr(XS,4)}, v{T+2}, {sr(S_X,4)}, s{sA3} offen
    s_lshl_b32 s{sA4}, s{sSeg}, 7
    s_add_u32 s{sA4}, s{sA4}, {WS_CNT}
    s_lshl_b32 s{sA}, s{sSeg}, 20
    s_lshl_b32 s{sA2}, s{sH}, 15
    s_add_u32 s{sA}, s{sA}, s{sA2}
    s_add_u32 s{sA}, s{sA}, {WS_PART}
    s_lshl_b32 s{sA3}, s{sA3}, 1
    v_lshlrev_b32 v221, 10, v{VN}
    s_cmp_ge_u32 s{sSeg}, {56 if P.get('sg', 1) else 64}
    s_cbranch_scc1 L_h_rf
    """)
    a.label('L_h_wc')
    a(f"""
    buffer_load_dword v220, off, {WS}, s{sA4} sc1
    s_waitcnt vmcnt(0)
    v_cmp_gt_u32 vcc, 32, v220
    s_cbranch_vccz L_h_rd
    """)
    poll_fail(a, 'L_h_wc', P.get('slc', 2))
    a.label('L_h_rf')
    a(f"""
    s_mov_b64 exec, 0xffffffff
    buffer_load_dword v220, v221, {WS}, s{sA} offen offset:1020 sc1
    s_add_u32 s{sSpin}, s{sSpin}, 1
    s_cmp_gt_u32 s{sSpin}, {HSPIN}
    s_cbranch_scc1 L_end
    s_waitcnt vmcnt(0)
    v_cmp_eq_u32 vcc, -1, v220
    s_mov_b64 exec, -1
    s_cbranch_vccz L_h_rd
    s_sleep 2
    s_branch L_h_rf
    """)
    a.label('L_h_rd')
    hs(9)
    for k in range(32):
        if k & 3 == 0: a(f"s_add_u32 s{sA2}, s{sA}, {1024*k}")
        a(f"buffer_load_dwordx4 {vr(32+4*k,4)}, v{L16}, {WS}, s{sA2} offen offset:{1024*(k&3)} sc1")
    a("s_waitcnt vmcnt(32)")
    unpack8(a, XU, XS); unpack8(a, DU, DS_)
    for r in range(8): a(f"v_mul_f32 v{XU+r}, v{XU+r}, v{DU+r}")
    a(f"v_mov_b32 v{T}, 0")
    for k in range(32):
        a(f"s_waitcnt vmcnt({31-k})")
        mf(a, vr(192, 16), vr(SELR, 4), vr(32 + 4 * k, 4), vr(192, 16) if k else 0)
        a(f"v_max3_u32 v{T}, v{T}, v{32+4*k}, v{33+4*k}\nv_max3_u32 v{T}, v{T}, v{34+4*k}, v{35+4*k}")
    a(f"v_cmp_eq_u32 vcc, -1, v{T}\ns_cbranch_vccnz L_h_rf\ns_nop 7")
    for r in range(8): a(f"v_fmac_f32 v{192+r}, v{XU+r}, v{G}")
    OF = P.get('of', '')
    a(f"""
    buffer_store_dwordx4 v[192:195], v{MX}, {sr(S_OUT,4)}, s{sA3} offen {OF}
    buffer_store_dwordx4 v[196:199], v{MX}, {sr(S_OUT,4)}, s{sA3} offen offset:16 {OF}
    v_accvgpr_read_b32 v{G}, a{PG}
    s_xor_b32 s{sSeg}, s{sSeg}, 4
    s_add_u32 s{sJ}, s{sJ}, 1
    s_cmp_eq_u32 s{sJ}, 3
    s_cbranch_scc1 L_h_red
    """)
    a.label('L_h_done')
    if P.get('stat'):
        a("s_waitcnt vmcnt(0)"); hs(10); a("s_waitcnt lgkmcnt(0)")
        for k in range(11): a(f"v_mov_b32 v{32+k}, s{74+2*k}")
        a(f"v_mov_b32 v43, s98\ns_lshl_b32 s{sA}, s{sB}, 5\ns_add_u32 s{sA}, s{sA}, s{sH}\ns_lshl_b32 s{sA}, s{sA}, 2\ns_add_u32 s{sA}, s{sA}, s{sW}\ns_lshl_b32 s{sA}, s{sA}, 6\ns_add_u32 s{sA}, s{sA}, {(49 << 20) + (512 << 10)}\ns_mov_b64 exec, 1")
        for q in range(3): a(f"buffer_store_dwordx4 {vr(32+4*q,4)}, v{L16}, {WS}, s{sA} offen offset:{16*q}")
        a("s_mov_b64 exec, -1")
    a(f"""
    s_cmp_ge_u32 s{sB}, 2
    s_cbranch_scc1 {'L_h_mini' if MINI else 'L_end'}
    {'s_sub_u32 s%d, 7, s%d' % (sB, sB) if P.get('r2', 0) else 's_add_u32 s%d, s%d, 6' % (sB, sB)}
    s_waitcnt vmcnt(0)
    s_branch L_h_again
    """)
    if not MINI: return
    a.label('L_h_mini')
    a(f"""
    s_sub_u32 s{sA3}, s{sB}, 2
    s_cmp_ge_u32 s{sA3}, 4
    s_cbranch_scc1 L_end
    s_add_u32 s{sSeg}, s{sB}, 58
    s_add_u32 s{sB}, s{sB}, 6
    s_mov_b32 s{sSpin}, 0
    s_lshl_b32 s{sA}, s{sW}, 8
    """)
    AQ, AV, AH, AC_2 = 128, 160, 192, ACW
    for i in range(8): a(f"v_add_u32 v{WOA+i}, s{sA}, v{WOA+i}")
    for tt in range(4):
        for k in range(8):
            for pp in range(2): a(f"ds_read_b64_tr_b16 {ar(32*tt + 4*k + 2*pp, 2)}, v{WOA + 4*(k>>2) + tt} offset:{(32*((k>>1)&1) + 8*(k&1) + 4*pp)*1024}")
    SELM, XM = 20, 24
    a("s_waitcnt lgkmcnt(0)")
    red_prep(SELM, 244)
    a(f"""
    s_lshl_b32 s{sWoo}, s{sSeg}, 15
    s_lshl_b32 s{sA2}, s{sH}, 5
    s_add_u32 s{sWoo}, s{sWoo}, s{sA2}
    buffer_load_dwordx4 v[240:243], v{T+2}, {sr(S_X,4)}, s{sWoo} offen
    s_lshl_b32 s{sWoo}, s{sWoo}, 1
    s_lshl_b32 s{sA}, s{sW}, 4
    v_add_u32 v{VKV}, s{sA}, v{MX}
    s_cmp_lg_u32 s{sW}, 0
    s_cbranch_scc1 L_m_st
    """)
    a.label('L_m_w0')
    a(f"buffer_load_dword v{T}, off, {DBG}, 0 offset:{DBG_DN + DBG_ST} sc1\ns_waitcnt vmcnt(0)\nv_cmp_eq_u32 vcc, 0, v{T}\ns_cbranch_vccz L_m_st")
    poll_fail(a, 'L_m_w0', 16)
    a.label('L_m_st')
    a(f"""
    s_waitcnt vmcnt(0)
    s_barrier
    s_lshl_b32 s{sA2}, s{sA3}, 5
    s_add_u32 s{sA2}, s{sA2}, s{sH}
    s_mul_i32 s{sA2}, s{sA2}, {23*1024}
    s_add_u32 s{sA2}, s{sA2}, {WS_ST}
    """)
    for q in range(23):
        dst = ar(AQ + 4 * q, 4) if q < 16 else vr(SS + 4 * (q - 16), 4) if q < 20 else ar(AH + 4 * (q - 20), 4) if q < 22 else vr(248, 4)
        a(f"buffer_load_dwordx4 {dst}, v{L16}, {WS}, s{sA2} offen offset:{1024*(q&3)} sc1")
        if q & 3 == 3: a(f"s_add_u32 s{sA2}, s{sA2}, 4096")
    unpack8(a, 32, 240); unpack8(a, 40, 244)
    for r in range(8): a(f"v_mul_f32 v{32+r}, v{32+r}, v{40+r}")
    a(f"s_bitcmp1_b32 s{sW}, 0\ns_cselect_b64 vcc, -1, 0\ns_mov_b32 s{sA4}, 0x3e0293ee\ns_waitcnt vmcnt(0)\nv_mov_b32 v{G}, v248")
    for r in range(4): a(f"v_cndmask_b32 v{XM+r}, v{32+r}, v{36+r}, vcc")
    for r in range(4): a(f"v_mul_f32 v{XM+r}, v{XM+r}, v{G}")
    LX = XA
    a(f"v_max3_f32 v{MX}, v{SS}, v{SS+1}, v{SS+2}")
    for r in range(3, 15, 2): a(f"v_max3_f32 v{MX}, v{MX}, v{SS+r}, v{SS+r+1}")
    a(f"""
    v_max_f32 v{MX}, v{MX}, v{SS+15}
    v_mov_b32 v{T+1}, v{MX}
    s_nop 1
    v_permlane32_swap_b32 v{MX}, v{T+1}
    v_max_f32 v{MX}, v{MX}, v{T+1}
    v_mul_f32 v{T}, s{sA4}, v{MX}
    """)
    for r in range(16): a(f"v_fma_f32 v{SS+r}, v{SS+r}, s{sA4}, -v{T}")
    for r in range(16): a(f"v_exp_f32 v{SS+r}, v{SS+r}")
    for r in range(8): a(f"v_cvt_pk_bf16_f32 v{248+r}, v{SS+2*r}, v{SS+2*r+1}")
    a(f"v_add_f32 v{LX}, v{SS}, v{SS+1}")
    for r in range(2, 16): a(f"v_add_f32 v{LX}, v{LX}, v{SS+r}")
    for tau in range(4):
        for u in range(2): mf(a, vr(32 + 16 * tau, 16), ar(AV + 8 * tau + 4 * u, 4), vr(248 + 4 * u, 4), vr(32 + 16 * tau, 16) if u else 0)
    a("s_nop 12")
    for r in range(32): a(f"v_cvt_pk_bf16_f32 v{96+r}, v{32+2*r}, v{33+2*r}")
    YC, YX = 96, 160
    a("s_nop 1")
    for tt in range(4):
        for k in range(8): mf(a, vr(YX + 16 * tt, 16), ar(32 * tt + 4 * k, 4), vr(96 + 4 * k, 4), vr(YX + 16 * tt, 16) if k else 0)
    a("s_nop 7")
    for tt in range(4):
        for k in range(2): mf(a, vr(YC + 16 * tt, 16), ar(AC_2 + 8 * tt + 4 * k, 4), ar(AH + 4 * k, 4), vr(YC + 16 * tt, 16) if k else 0)
    PMm, LDm = 240, 244
    a(f"""
    s_lshl_b32 s{sA}, s{sSeg}, 17
    s_lshl_b32 s{sA2}, s{sH}, 12
    s_add_u32 s{sA}, s{sA}, s{sA2}
    s_add_u32 s{sA}, s{sA}, {WS_KM}
    s_cmp_ge_u32 s{sSeg}, {P.get('mfp', 63)}
    s_cselect_b32 s{sA2}, {1 << 17}, 0
    s_sub_u32 s{sA2}, s{sA}, s{sA2}
    s_lshl_b32 s{sA3}, s{sW}, 10
    s_add_u32 s{sA}, s{sA}, s{sA3}
    s_add_u32 s{sA3}, s{sA3}, {H_K}
    v_add_u32 v{XA+1}, s{sA3}, v{L16}
    s_lshl_b32 s{sA3}, s{sW}, 12
    v_subrev_u32 v{VKM}, s{sA3}, v{VKM}
    v_subrev_u32 v{VVM}, s{sA3}, v{VVM}
    v_add_u32 v{T+2}, 2048, v{VKM}
    v_sub_f32 v{G}, 1.0, v{G}
    s_lshl_b32 s{sWo1}, s{sSeg}, 20
    s_add_u32 s{sWo1}, s{sWo1}, {WS_PART}
    s_lshl_b32 s{sA3}, s{sH}, 15
    s_add_u32 s{sWo2}, s{sWo1}, s{sA3}
    s_lshl_b32 s{sA3}, s{sW}, 13
    s_add_u32 s{sWo2}, s{sWo2}, s{sA3}
    s_add_u32 s{sSlot}, s{sWo2}, 4096
    s_lshl_b32 s{sA3}, s{sH}, 10
    s_add_u32 s{sWo1}, s{sWo1}, s{sA3}
    s_lshl_b32 s{sA3}, s{sW}, 18
    s_add_u32 s{sWo1}, s{sWo1}, s{sA3}
    """)
    for tau in range(4): a(f"v_mov_b64 {vr(VMF + 4*tau + 2, 2)}, 0")
    a(f"v_mov_b64 {vr(PMm+2,2)}, 0")
    a("s_getpc_b64 s[60:61]")
    a.label('L_m_pc')
    a(f"v_lshlrev_b32 v{T}, 3, v{L16}\nv_min_u32 v{T}, L_m_fin-L_m_pc, v{T}\nglobal_load_dword v{T}, v{T}, s[60:61]")
    hs(5)
    a.label('L_m_pr')
    a(f"buffer_load_dword v{T}, off, {WS}, s{sA2} offset:3072 sc1\ns_waitcnt vmcnt(0)\nv_cmp_eq_u32 vcc, -1, v{T}\ns_cbranch_vccz L_m_ld")
    poll_fail(a, 'L_m_pr', P.get('mps', 2))
    a.label('L_m_pf')
    a(f"s_add_u32 s{sSpin}, s{sSpin}, 1\ns_cmp_gt_u32 s{sSpin}, {HSPIN}\ns_cbranch_scc1 L_end")
    a.label('L_m_ld')
    a(f"""
    buffer_load_dwordx4 {vr(LDm,4)}, v{L16}, {WS}, s{sA} offen sc1
    s_waitcnt vmcnt(0)
    ds_write_b128 v{XA+1}, {vr(LDm,4)}
    v_max3_u32 v{T}, v{LDm}, v{LDm+1}, v{LDm+2}
    v_max_u32 v{T}, v{T}, v{LDm+3}
    v_cmp_eq_u32 vcc, -1, v{T}
    s_cbranch_vccnz L_m_pf
    s_waitcnt lgkmcnt(0)
    s_barrier
    """)
    for k in range(8):
        o = ((k >> 1) & 1) * 128 + (k & 1) * 32
        a(f"ds_read2_b64 {vr(KMF + 4*k, 4)}, v{VKM if k < 4 else T+2} offset0:{o} offset1:{o+16}")
    for tau in range(4): a(f"ds_read2st64_b32 {vr(VMF + 4*tau, 2)}, v{VVM} offset0:{4*tau} offset1:{4*tau+2}")
    for k in range(8):
        a(f"s_waitcnt lgkmcnt({11-k})")
        mf(a, vr(SM, 16), vr(KMF + 4 * k, 4), ar(AQ + 4 * k, 4), vr(SM, 16) if k else 0)
    hs(6)
    a(f"""
    s_waitcnt lgkmcnt(0)
    s_nop 11
    v_max3_f32 v{T}, v{MX}, v{SM}, v{SM+1}
    v_max3_f32 v{T}, v{T}, v{SM+2}, v{SM+3}
    v_mov_b32 v{T+1}, v{T}
    s_nop 1
    v_permlane32_swap_b32 v{T}, v{T+1}
    v_max_f32 v{T}, v{T}, v{T+1}
    v_mul_f32 v{T}, s{sA4}, v{T}
    """)
    for r in [SM, SM + 1, SM + 2, SM + 3, MX]: a(f"v_fma_f32 v{r}, v{r}, s{sA4}, -v{T}")
    for r in [SM, SM + 1, SM + 2, SM + 3, MX]: a(f"v_exp_f32 v{r}, v{r}")
    a(f"""
    v_add_f32 v{T}, v{SM}, v{SM+1}
    v_add_f32 v{T+1}, v{SM+2}, v{SM+3}
    v_fmac_f32 v{T}, v{LX}, v{MX}
    v_add_f32 v{T}, v{T}, v{T+1}
    v_mov_b32 v{T+1}, v{T}
    s_nop 1
    v_permlane32_swap_b32 v{T}, v{T+1}
    v_add_f32 v{T}, v{T}, v{T+1}
    v_rcp_f32 v{T}, v{T}
    s_nop 0
    v_mul_f32 v{T}, v{T}, v{G}
    """)
    for r in range(4): a(f"v_mul_f32 v{SM+r}, v{SM+r}, v{T}")
    a(f"v_cvt_pk_bf16_f32 v{PMm}, v{SM}, v{SM+1}\nv_cvt_pk_bf16_f32 v{PMm+1}, v{SM+2}, v{SM+3}\nv_mul_f32 v{MX}, v{MX}, v{T}")
    OBm = [32, 48, 80, 224]; OF = 160
    fm = [f"v_fmac_f32 v{YC+r}, v{YX+r}, v{MX}" for r in range(64)]
    a(fm.pop(0))
    for tau in range(4):
        mf(a, vr(OBm[tau], 16), vr(VMF + 4 * tau, 4), vr(PMm, 4), 0)
        for _ in range(6): a(fm.pop(0))
    for _ in range(7): a(fm.pop(0))
    cvo = lambda tau: [f"v_cvt_pk_bf16_f32 v{OF+8*tau+r}, v{OBm[tau]+2*r}, v{OBm[tau]+2*r+1}" for r in range(8)]
    for l in cvo(0): a(l)
    fill = cvo(1) + cvo(2) + cvo(3) + fm
    a(fill.pop(0)); a(fill.pop(0))
    CTm = 32
    def epim(tt):
        L_ = [f"v_cvt_pk_bf16_f32 v{CTm+8*tt+r}, v{YC+16*tt+2*r}, v{YC+16*tt+2*r+1}\nv_min_u32 v{CTm+8*tt+r}, -2, v{CTm+8*tt+r}" for r in range(8)]
        L_ += [f"buffer_store_dwordx4 {vr(CTm+8*tt+4*u,4)}, v{L16}, {WS}, s{sWo1} offen sc1\ns_add_u32 s{sWo1}, s{sWo1}, 32768" for u in range(2)]
        return L_
    order = [(tt, k) for k in range(8) for tt in range(2)] + [(2, k) for k in range(8)] + [(3, k) for k in range(8)]
    ep = []
    for n, (tt, k) in enumerate(order):
        mf(a, vr(YC + 16 * tt, 16), ar(32 * tt + 4 * k, 4), vr(OF + 4 * k, 4), vr(YC + 16 * tt, 16))
        for _ in range(6):
            if fill: a(fill.pop(0))
        if n == 17: ep += epim(0) + epim(1)
        if n == 25: ep += epim(2)
        for _ in range(3):
            if ep: a(ep.pop(0))
    assert not fill and not ep
    a("s_nop 12")
    for l in epim(3): a(l)
    hs(8)
    a(f"s_lshl_b32 s{sA3}, s{sW}, 11\ns_add_u32 s{sA3}, s{sA3}, {H_K + 4096}\nv_add_u32 v{T+1}, s{sA3}, v{L16}")
    a(f"s_lshl_b32 s{sA3}, s{sW}, 10\ns_add_u32 s{sA3}, s{sA3}, {H_K + 4096}\nv_add_u32 v{T+2}, s{sA3}, v{L16}")
    a(f"v_and_b32 v{MX}, 7, v{LANE}\nv_lshlrev_b32 v{MX}, 10, v{MX}")
    a(f"s_waitcnt vmcnt({P.get('mdr', 0)})")
    a(f"""
    s_cmp_ge_u32 s{sSeg}, {P.get('mth', 60)}
    s_cbranch_scc1 {'L_m_rd' if P.get('mg', 0) else 'L_m_rf'}
    s_barrier
    s_cmp_lg_u32 s{sW}, 0
    s_cbranch_scc1 L_m_c1
    s_lshl_b32 s{sA4}, s{sSeg}, 7
    s_add_u32 s{sA4}, s{sA4}, {WS_CNT}
    v_mov_b32 v{T}, 1
    s_mov_b64 exec, 1
    buffer_atomic_add v{T}, off, {WS}, s{sA4}
    s_mov_b64 exec, -1
    """)
    a.label('L_m_c0')
    a(f"buffer_load_dword v{T}, off, {WS}, s{sA4} sc1\ns_waitcnt vmcnt(0)\nv_cmp_gt_u32 vcc, 32, v{T}\ns_cbranch_vccz L_m_c1")
    poll_fail(a, 'L_m_c0', P.get('slc', 2))
    a.label('L_m_c1')
    a("s_barrier\ns_branch L_m_rd")
    a.label('L_m_rf')
    a(f"""
    s_mov_b64 exec, 0xff
    buffer_load_dword v{T}, v{MX}, {WS}, s{sWo2} offen offset:1020 sc1
    s_add_u32 s{sSpin}, s{sSpin}, 1
    s_cmp_gt_u32 s{sSpin}, {HSPIN}
    s_cbranch_scc1 L_end
    s_waitcnt vmcnt(0)
    v_cmp_eq_u32 vcc, -1, v{T}
    s_mov_b64 exec, -1
    s_cbranch_vccz L_m_rd
    s_sleep {P.get('msl', 1)}
    s_branch L_m_rf
    """)
    a.label('L_m_rd')
    hs(9)
    for k in range(8): a(f"buffer_load_dwordx4 {vr(96+4*k,4)}, v{L16}, {WS}, s{sWo2 if k < 4 else sSlot} offen offset:{1024*(k&3)} sc1")
    a(f"v_mov_b32 v{T}, 0")
    for k in range(8):
        a(f"s_waitcnt vmcnt({7-k})")
        mf(a, vr(64, 16), vr(SELM, 4), vr(96 + 4 * k, 4), vr(64, 16) if k else 0)
        a(f"v_max3_u32 v{T}, v{T}, v{96+4*k}, v{97+4*k}\nv_max3_u32 v{T}, v{T}, v{98+4*k}, v{99+4*k}")
    a(f"""
    v_cmp_eq_u32 vcc, -1, v{T}
    s_cbranch_vccnz L_m_rf
    s_nop 7
    ds_write_b128 v{T+1}, v[64:67]
    ds_write_b128 v{T+1}, v[68:71] offset:1024
    s_waitcnt lgkmcnt(0)
    s_barrier
    s_cmp_ge_u32 s{sW}, 2
    s_cbranch_scc1 L_m_fin
    """)
    for k in range(4): a(f"ds_read_b128 {vr(96+4*k,4)}, v{T+2} offset:{2048*k}")
    for k in range(4):
        a(f"s_waitcnt lgkmcnt({3-k})")
        a(f"v_pk_add_f32 {vr(XM,2)}, {vr(XM,2)}, {vr(96+4*k,2)}\nv_pk_add_f32 {vr(XM+2,2)}, {vr(XM+2,2)}, {vr(98+4*k,2)}")
    a(f"buffer_store_dwordx4 {vr(XM,4)}, v{VKV}, {sr(S_OUT,4)}, s{sWoo} offen")
    a.label('L_m_fin')
    a("s_branch L_h_done" if P.get('stat') else "s_branch L_hend" if P.get('dbgt') else "s_branch L_end")

if __name__ == '__main__':
    a = Asm(); h_once(a); helper_task(a, {})
    errs, ins = check(a.lines, 'helper')
    for e in errs: print(e)
    print(len(ins), ins[-1]['t'])
```

```python
import sys, json
from asmlib import *
import chain, helper
from chain import *
KNAME = 'gated_mix__ssm_conv_s5__memory_aug_recurrent_mem_tr__prompt_kernel'
L_EL = {'c': 16384 - 16, 'h': 163840 - 16}
JUNK = {'c': 127, 'h': 255}

def ticket(a, tag, off_s):
    a(f"""
    s_cmp_lg_u32 s{sW}, 0
    s_cbranch_scc1 L_tk_{tag}
    s_mov_b64 exec, 1
    v_mov_b32 v126, 1
    buffer_atomic_add v126, off, {sr(S_DBG,4)}, {off_s} sc0
    s_mov_b64 exec, -1
    """)
    a.label(f'L_tk_{tag}')
def ticket_get(a, tag, nyoung):
    a(f"""
    v_mov_b32 v125, {L_EL[tag]}
    s_cmp_lg_u32 s{sW}, 0
    s_cbranch_scc1 L_tg_{tag}
    s_waitcnt vmcnt({nyoung})
    s_mov_b64 exec, 1
    ds_write_b32 v125, v126
    s_mov_b64 exec, -1
    s_waitcnt lgkmcnt(0)
    """)
    a.label(f'L_tg_{tag}')
    a(f"""
    s_barrier
    ds_read_b32 v126, v125
    s_waitcnt lgkmcnt(0)
    v_readfirstlane_b32 s{sT+1}, v126
    s_cmp_ge_u32 s{sT+1}, 32
    s_cbranch_scc1 L_end
    """)
def code_pref(a, lo, hi, n=2):
    if not n: return 0
    a(f"s_getpc_b64 s[60:61]")
    a.label(f'L_pc_{lo}')
    a("v_lshlrev_b32 v1, 7, v0")
    for k in range(n):
        if k: a("v_add_u32 v1, 0x8000, v1")
        a(f"v_min_u32 v2, {hi}-L_pc_{lo}-4, v1\nglobal_load_dword v{JUNK[lo]}, v2, s[60:61]")
    return n

def build_kernel(P):
    a = Asm()
    a("s_cmp_ge_u32 s2, 256\ns_cbranch_scc1 L_end")
    srd(a, S_DBG, 144, 256); srd(a, S_WS, 152, WS_SIZE)
    if P.get('stat') or P.get('dbgt') or P.get('spinT'): a("s_memtime s[96:97]\ns_memrealtime s[98:99]")
    a(f"""
    s_getreg_b32 s{sT}, hwreg(HW_REG_XCC_ID, 0, 3)
    v_lshrrev_b32 v1, 6, v0
    s_bfe_u32 s3, s2, 0x50003
    s_xor_b32 s{sT}, s{sT}, {P.get('xc', 3)}
    v_readfirstlane_b32 s{sW}, v1
    {'s_cmp_lt_u32 s2, 32' if P.get('far') else 's_cmp_eq_u32 s%d, 0' % sT}
    s_cbranch_scc0 L_helper
    """)
    n0 = 0; errs = []
    srd(a, S_WV, 104, 4194304); srd(a, S_WK, 96, 4194304); srd(a, S_WQ, 88, 4194304); srd(a, S_WO, 112, 4194304); srd(a, S_M0, 80, 8192)
    a("s_waitcnt lgkmcnt(0)")
    ticket(a, 'c', '0')
    a(f"""
    v_lshrrev_b32 v1, 1, v0
    v_and_b32 v2, 1, v0
    v_lshlrev_b32 v2, 7, v2
    v_lshl_add_u32 v1, v1, 13, v2
    s_lshl_b32 s{sT+2}, s3, 8
    buffer_load_dword v127, v1, {sr(S_WV,4)}, s{sT+2} offen
    """)
    if not P.get('cpf', 1): a.lines.pop()
    ncp = code_pref(a, 'c', 'L_top_0', P.get('ccp', 0))
    ticket_get(a, 'c', ncp + (1 if P.get('cpf', 1) else 0))
    a(f"s_mov_b32 s{sH}, s{sT+1}\ns_mov_b32 s{sRB}, 0")
    a.label('L_chain2')
    if P.get('stat'):
        for r in [70, 71] + list(range(88, 96)): a(f"s_mov_b32 s{r}, 0")
        a("s_memtime s[60:61]")
    a.lg = []; a.vm = []
    chain.PF[0] = P.get('pf', 'sc1')
    plan_units(P)
    if P.get('pu') == -1: a("s_memrealtime s[100:101]")
    chain_first_dma(a)
    chain_setup(a, P)
    chain_prologue(a, P)
    e, _ = check(a.lines[n0:], 'cpro'); errs += e
    vm0 = list(a.vm)
    for w in range(4):
        n0 = len(a.lines)
        chain_prologue_w(a, P, w, vm0)
        e, _ = check(a.lines[n0:], f'cpro{w}'); errs += e
    for w in range(4):
        a(".p2align 6")
        n0 = len(a.lines)
        n1, _ = chain_step(a, P, w)
        e, ins = check(a.lines[n0:n1] * 2, f'loop{w}'); errs += e
        e, _ = check(a.lines[n1:], f'retry{w}'); errs += e
    a.label('L_exit')
    if P.get('stat'):
        a("s_memtime s[66:67]\ns_memrealtime s[72:73]\ns_waitcnt lgkmcnt(0)\ns_nop 7")
        for k in range(8): a(f"v_mov_b32 v{40+k}, s{88+k}")
        a(f"""
        s_mov_b32 s93, s72
        s_mov_b32 s94, s98
        s_mov_b32 s92, s100
        s_sub_u32 s91, s72, s62
        s_sub_u32 s88, s66, s96
        s_sub_u32 s66, s66, s68
        s_mov_b32 s90, s62
        s_sub_u32 s95, s60, s96
        v_mov_b32 v24, s64
        v_mov_b32 v25, s66
        v_mov_b32 v26, s70
        v_mov_b32 v27, s71
        s_lshl_b32 s{sT}, s{sH}, 2
        s_add_u32 s{sT}, s{sT}, s{sW}
        s_lshl_b32 s{sT}, s{sT}, 7
        s_add_u32 s{sT}, s{sT}, {WS_STAMP}
        v_mov_b32 v28, 0
        buffer_store_dwordx4 v[24:27], v28, {sr(S_WS,4)}, s{sT} offen
        """)
        for k in range(8): a(f"v_mov_b32 v{32+k}, s{88+k}")
        for q in range(4): a(f"buffer_store_dwordx4 {vr(32+4*q,4)}, v28, {sr(S_WS,4)}, s{sT} offen offset:{16+16*q}")
    if P.get('dbgt'):
        a(f"""
        s_memtime s[66:67]
        s_memrealtime s[72:73]
        s_waitcnt lgkmcnt(0)
        s_sub_u32 s66, s66, s96
        s_sub_u32 s72, s72, s98
        s_sub_u32 s100, s100, s98
        s_mov_b64 exec, 1
        v_mov_b32 v24, s100
        v_mov_b32 v25, s72
        v_mov_b32 v26, s66
        buffer_atomic_umax v24, off, {sr(S_DBG,4)}, 0 offset:48
        buffer_atomic_umax v25, off, {sr(S_DBG,4)}, 0 offset:52
        buffer_atomic_umax v26, off, {sr(S_DBG,4)}, 0 offset:60
        s_branch L_end
        L_hend:
        s_waitcnt vmcnt(0)
        s_memrealtime s[72:73]
        s_waitcnt lgkmcnt(0)
        s_sub_u32 s72, s72, s98
        s_mov_b64 exec, 1
        v_mov_b32 v25, s72
        buffer_atomic_umax v25, off, {sr(S_DBG,4)}, 0 offset:56
        """)
    a("s_endpgm")
    if P.get('tb', 1):
        for w in range(4):
            a.lines += BBODY[w]
            e, _ = check(BBODY[w], f'bbody{w}'); errs += e
        n0 = len(a.lines)
        b_tail(a, P)
        a.label('L_bent')
        srd(a, S_WV, 104, 4194304); srd(a, S_WK, 96, 4194304); srd(a, S_WQ, 88, 4194304); srd(a, S_M0, 80, 8192)
        a(f"s_mov_b32 s{sRB}, 1\ns_waitcnt lgkmcnt(0)\ns_barrier\ns_branch L_chain2")
        e, _ = check(a.lines[n0:], 'btail'); errs += e
    a(".p2align 6")
    a.label('L_helper')
    a("s_mov_b32 s80, 0")
    a.label('L_helper2')
    if P.get('nohelp'): a("s_branch L_end")
    n0 = len(a.lines)
    helper.h_ptrs(a)
    a(f"s_sub_u32 s{sT}, s{sT}, 2\ns_min_u32 s{sT}, s{sT}, 6\ns_mul_i32 s56, s{sT}, 43\ns_lshr_b32 s56, s56, 7\ns_mul_i32 s57, s56, -188\ns_lshl_b32 s56, s{sT}, 6\ns_add_u32 s57, s57, s56\ns_add_u32 s57, s57, 112\ns_waitcnt lgkmcnt(0)")
    a("s_cmp_lg_u32 s80, 0\ns_cbranch_scc1 L_tk_h")
    ticket(a, 'h', "s57")
    ny = helper.h_prefetch(a, sT)
    a("s_getpc_b64 s[60:61]")
    a.label('L_pc_h')
    a("s_bfe_u32 s56, s2, 0x50003\ns_lshl_b32 s56, s56, 7\nv_lshlrev_b32 v1, 12, v0\nv_add_u32 v1, s56, v1\nv_min_u32 v2, L_end-L_chain2-4, v1\ns_sub_u32 s60, s60, L_pc_h-L_chain2\ns_subb_u32 s61, s61, 0\nglobal_load_dword v255, v2, s[60:61]")
    helper.h_once(a)
    a(f"s_mov_b32 s{helper.sB}, s80\ns_mov_b32 s{helper.sMode}, 0")
    a.label('L_h_again')
    helper.h_static(a)
    a(f"s_cmp_lg_u32 s{helper.sB}, 0\ns_cbranch_scc0 L_h_first\ns_barrier\ns_branch L_h_task")
    a.label('L_h_first')
    ticket_get(a, 'h', ny + 1)
    a(f"""
    s_lshl_b32 s57, s{sT}, 5
    s_add_u32 s57, s57, s{sT+1}
    s_mul_i32 s{sH}, s57, 10923
    s_lshr_b32 s{sH}, s{sH}, 16
    s_mul_i32 s56, s{sH}, 6
    s_sub_u32 s{helper.sB}, s57, s56
    s_cmp_eq_u32 s{sT}, 6
    s_cselect_b32 s{sH}, s{sT+1}, s{sH}
    s_cselect_b32 s{helper.sB}, 8, s{helper.sB}
    s_cmp_eq_u32 s{helper.sB}, 0
    s_cselect_b32 s{helper.sMode}, 1, 0
    s_cmp_eq_u32 s{helper.sB}, 5
    s_cselect_b32 s{helper.sMode}, 2, s{helper.sMode}
    """)
    if P.get('tb', 1): a(f"s_cmp_eq_u32 s{helper.sB}, 4\ns_cbranch_scc1 L_bent")
    helper.helper_task(a, P)
    e, _ = check(a.lines[n0:], 'helper'); errs += e
    a.label('L_end')
    if P.get('far'):
        i1 = a.lines.index('L_helper:')
        a.lines[:i1] = [l + ' sc1' if l.startswith('buffer_store') and 'sc1' not in l else l for l in a.lines[:i1]]
    return a, errs

def full_text(P):
    a, errs = build_kernel(P)
    ref = open('gated_mix__ssm_conv_s5__memory_aug_recurrent_mem_tr__prompt.s.ref').read()
    head = ref[:ref.index('; @launch')]
    txt = head + f"""; @launch grid=(256,1,1) block=(256,1,1) lds=163840
.amdgcn_target "amdgcn-amd-amdhsa--gfx950"
.text
.globl {KNAME}
.p2align 8
.type {KNAME},@function
{KNAME}:
{a.text()}    s_endpgm
.section .rodata,"a"
.p2align 6
.amdhsa_kernel {KNAME}
  .amdhsa_next_free_vgpr 512
  .amdhsa_next_free_sgpr 102
  .amdhsa_accum_offset 256
  .amdhsa_group_segment_fixed_size 0
  .amdhsa_kernarg_size 160
  .amdhsa_user_sgpr_count 2
  .amdhsa_user_sgpr_kernarg_segment_ptr 1
  .amdhsa_system_sgpr_workgroup_id_x 1
  .amdhsa_float_denorm_mode_32 3
.end_amdhsa_kernel
"""
    return txt, errs

if __name__ == '__main__':
    P = json.loads(sys.argv[2]) if len(sys.argv) > 2 else {}
    txt, errs = full_text(P)
    for e in errs: print('HAZ', e)
    out = sys.argv[1] if len(sys.argv) > 1 else 'gated_mix__ssm_conv_s5__memory_aug_recurrent_mem_tr__prompt.s'
    open(out, 'w').write(txt)
    print('wrote', out, len(txt))
```

```python
from asmlib import *
from chain import WS_IMB, WS_KV, WS_KM, WS_SIZE, DBG_KVC, DBG_KV0, DBG_DN, DBG_ARM, ARM_ALL, S_WS, S_DBG, sH, sW, nops

WS_A = 50 << 20
WS_CNT = WS_A + (64 << 10)
WS_ST = 52 << 20
DBG_ST = 8
WS_PART = 64 << 20
H_GW = 131072
H_E = H_GW + 1024
H_C = H_E + 1024
H_K = H_C + 4096
S_X, S_W1, S_W2, S_WO, S_OUT = 8, 12, 16, 20, 28
sB = 34
sX0, sWo1, sWo2, sStI, sStS, sSlot, sCnt, sSeg, sSpin, sJ = 35, 36, 37, 38, 39, 40, 41, 42, 43, 44
sA, sA2, sA3, sA4 = 45, 46, 47, 48
sWoo = 49
sM = 50
P_LRE, P_LIM, P_LDT, P_DSK, P_GW, P_CRE, P_CIM = 58, 62, 64, 66, 68, 70, 72
LANE, L16, VX_, VW, VW2, XA, WA, BA, GA, VKV, G, VN, HH, VKM, VVM, WOA, MX = 0, 1, 2, 3, 4, 5, 7, 11, 13, 14, 15, 16, 17, 18, 19, 20, 28
T = 29
KF, VF, FR = 32, 96, 160
QF, SS, HF = 160, 224, 240
HSPIN = 1000000
LOG2E = 0x3fb8aa3b
def mf(a, D, A, B, C): a(f"v_mfma_f32_32x32x16_bf16 {D}, {A}, {B}, {C}")
WS = sr(S_WS, 4)

S_PF = 52
P_WQ, P_WK, P_WV = 74, 76, 78
sPH = 56
def h_ptrs(a):
    a(f"""
    s_load_dwordx2 {sr(S_X,2)}, s[0:1], 0
    s_load_dwordx2 {sr(P_WK,2)}, s[0:1], 96
    s_load_dwordx2 {sr(P_WV,2)}, s[0:1], 104
    s_load_dwordx2 {sr(S_WO,2)}, s[0:1], 112
    s_load_dwordx2 {sr(S_PF,2)}, s[0:1], 88
    s_mov_b32 s{S_X+2}, 2097152
    s_mov_b32 s{S_X+3}, 0x20000
    s_mov_b32 s{S_WO+2}, 4194304
    s_mov_b32 s{S_WO+3}, 0x20000
    s_mov_b32 s{S_OUT+2}, 4194304
    s_mov_b32 s{S_OUT+3}, 0x20000
    s_mov_b32 s{S_W1+2}, 4194304
    s_mov_b32 s{S_W1+3}, 0x20000
    s_mov_b32 s{S_W2+2}, 4194304
    s_mov_b32 s{S_W2+3}, 0x20000
    s_mov_b32 s{S_PF+2}, 4194304
    s_mov_b32 s{S_PF+3}, 0x20000
    """)
PFW, PFO = 253, 254
def h_prefetch(a, sR):
    a(f"""
    s_mov_b64 {sr(S_W1,2)}, {sr(P_WK,2)}
    s_mov_b64 {sr(S_W2,2)}, {sr(P_WV,2)}
    s_mul_i32 s{sPH}, s{sR}, {32*10923}
    s_lshr_b32 s{sPH}, s{sPH}, 16
    s_cmp_eq_u32 s{sR}, 6
    s_cselect_b32 s3, 0x200, s3
    s_lshl_b32 s{sA}, s{sPH}, 8
    s_lshl_b32 s{sA2}, s3, 17
    s_add_u32 s{sA}, s{sA}, s{sA2}
    v_lshrrev_b32 v1, 4, v0
    v_and_b32 v2, 15, v0
    v_cmp_gt_u32 vcc, 12, v2
    v_lshlrev_b32 v2, 7, v2
    v_lshl_add_u32 v1, v1, 13, v2
    v_add_u32 v1, s{sA}, v1
    v_bfrev_b32 v2, 1
    v_cndmask_b32 v{PFW}, v2, v1, vcc
    s_lshl_b32 s{sA}, s3, 14
    v_lshlrev_b32 v1, 7, v0
    v_cmp_gt_u32 vcc, 128, v0
    buffer_load_dword v255, v{PFW}, {sr(S_W2,4)}, 0 offen
    v_add_u32 v3, s{sA}, v1
    buffer_load_dword v255, v{PFW}, {sr(S_W1,4)}, 0 offen
    v_cndmask_b32 v3, v2, v3, vcc
    buffer_load_dword v255, v3, {sr(S_X,4)}, 0 offen
    s_load_dwordx2 {sr(S_OUT,2)}, s[0:1], 136
    s_load_dwordx2 {sr(P_LRE,2)}, s[0:1], 8
    s_load_dwordx2 {sr(P_LIM,2)}, s[0:1], 16
    s_load_dwordx2 {sr(P_LDT,2)}, s[0:1], 56
    s_load_dwordx2 {sr(P_DSK,2)}, s[0:1], 64
    s_load_dwordx2 {sr(P_GW,2)}, s[0:1], 128
    s_waitcnt lgkmcnt(0)
    s_load_dwordx2 {sr(P_CRE,2)}, s[0:1], 40
    s_load_dwordx2 {sr(P_CIM,2)}, s[0:1], 48
    s_cmp_ge_u32 s{sW}, 2
    s_cbranch_scc1 L_h_hi
    s_mov_b64 {sr(S_W2,2)}, {sr(S_PF,2)}
    s_mov_b32 s{sStI}, {4*8192}
    s_mov_b32 s{sStS}, {32*8192}
    s_branch L_h_sel
    """)
    a.label('L_h_hi')
    a(f"""
    s_mov_b64 {sr(S_W1,2)}, {sr(P_WV,2)}
    s_mov_b32 s{S_W2+2}, 524288
    s_mov_b32 s{sStI}, 0x10000000
    s_mov_b32 s{sStS}, 64
    s_cmp_eq_u32 s{sW}, 3
    s_cbranch_scc1 L_h_w3
    s_load_dwordx2 {sr(S_W2,2)}, s[0:1], 24
    s_branch L_h_sel
    """)
    a.label('L_h_w3')
    a(f"s_load_dwordx2 {sr(S_W2,2)}, s[0:1], 32")
    a.label('L_h_sel')
    a("s_waitcnt lgkmcnt(0)")
    return 3

def h_once(a):
    a(f"v_and_b32 v{LANE}, 63, v0")
    t = 32
    a(f"""
    v_lshlrev_b32 v{L16}, 4, v{LANE}
    v_and_b32 v{VN}, 31, v{LANE}
    v_lshrrev_b32 v{HH}, 5, v{LANE}
    v_lshrrev_b32 v{t}, 2, v{LANE}              ; r = lane>>2
    v_lshrrev_b32 v{t+1}, 4, v{LANE}            ; lane>>4
    v_and_b32 v{t+2}, 3, v{LANE}                ; c
    v_xor_b32 v{t+3}, v{t+2}, v{t+1}
    v_lshlrev_b32 v{t+3}, 4, v{t+3}
    v_lshl_add_u32 v{VX_}, v{t}, 10, v{t+3}
    v_and_b32 v{t+3}, 15, v{LANE}
    v_lshlrev_b32 v{t+4}, 2, v{t+1}
    v_xor_b32 v{t+3}, v{t+3}, v{t+4}
    v_lshlrev_b32 v{t+3}, 4, v{t+3}
    v_lshl_add_u32 v{VW}, v{t+1}, 13, v{t+3}
    s_cmp_ge_u32 s{sW}, 2
    s_cselect_b64 vcc, -1, 0
    v_cndmask_b32 v{VW2}, v{VW}, v{VX_}, vcc
    v_bfe_u32 v{t+5}, v{LANE}, 2, 1             ; h'
    v_bfe_u32 v{t+6}, v{LANE}, 3, 1             ; t
    v_bfe_u32 v{t+7}, v{LANE}, 4, 1             ; n>>4
    v_lshl_add_u32 v{t+8}, v{t+7}, 2, v{t+2}
    v_lshl_add_u32 v{t+8}, v{t+5}, 3, v{t+8}    ; i = 8h' + 4(n>>4) + (n&3)
    v_lshl_add_u32 v{t+9}, v{HH}, 5, v{t+8}
    v_lshlrev_b32 v{t+9}, 4, v{t+9}
    v_lshl_add_u32 v{VKV}, v{t+6}, 10, v{t+9}
    v_lshl_add_u32 v{t+9}, v{HH}, 4, v{t+8}
    v_lshlrev_b32 v{t+9}, 4, v{t+9}
    v_lshl_add_u32 v{t+9}, v{t+6}, 2, v{t+9}
    s_lshl_b32 s{sA}, s{sW}, 12
    s_add_u32 s{sA}, s{sA}, {H_K}
    v_add3_u32 v{VVM}, v{t+9}, s{sA}, 8
    v_and_b32 v{t+9}, 7, v{LANE}
    v_lshl_add_u32 v{t+9}, v{HH}, 5, v{t+9}
    v_lshl_add_u32 v{VKM}, v{t+9}, 4, s{sA}
    s_waitcnt lgkmcnt(0)
    """)

def xaddr(a, row, base_s, dst):
    a(f"""
    v_bfe_u32 v{T}, v{row}, 2, 2
    v_xor_b32 v{T}, v{T}, v{HH}
    v_lshlrev_b32 v{T}, 4, v{T}
    v_lshl_add_u32 v{T}, v{row}, 6, v{T}
    v_add_u32 v{dst}, {base_s}, v{T}
    v_xor_b32 v{dst+1}, 32, v{dst}
    """)

OPT = {}
sXC, sClr, sMode = 57, 3, 2
def dma_part(part, kind):
    G_ = []
    for i in range(2 if kind == 'xh' else 4):
        o = (16384 if part == 'B' else 0) + 1024 * i
        L = [f"s_add_u32 m0, s{sSlot}, {o}"]
        if kind == 'wo': L += [f"s_add_u32 s{sA}, s{sWoo}, {o}", f"buffer_load_dwordx4 v{WOA + i}, {sr(S_WO,4)}, s{sA} offen lds"]
        elif part == 'A': L += [f"s_add_u32 s{sA}, s{sXC}, {(i >> 1) * 131072 + (i & 1) * 16384}", f"buffer_load_dwordx4 v{VX_}, {sr(S_X,4)}, s{sA} offen lds"]
        elif kind == 'p1': L += [f"s_add_u32 s{sA}, s{sWo1}, {4*8192*i}", f"buffer_load_dwordx4 v{VW}, {sr(S_W1,4)}, s{sA} offen lds"]
        else: L += [f"s_mov_b32 s{sA2}, s{sWo2}" if i == 0 else f"s_add_u32 s{sA2}, s{sA2}, s{sStI}", f"buffer_load_dwordx4 v{VW2}, {sr(S_W2,4)}, s{sA2} offen lds"]
        G_.append(L)
    if part == 'A' and kind != 'wo': G_[-1] += [f"s_add_u32 s{sXC}, s{sXC}, 64", f"s_and_b32 s{sXC}, s{sXC}, 0xfffffbff"]
    if part == 'B':
        G_[-1] += [{'p1': f"s_add_u32 s{sWo1}, s{sWo1}, {32*8192}", 'p2': f"s_add_u32 s{sWo2}, s{sWo2}, s{sStS}", 'wo': f"s_add_u32 s{sWoo}, s{sWoo}, 32768"}[kind]]
        G_[-1] += [f"s_add_u32 s{sSlot}, s{sSlot}, 32768", f"s_and_b32 s{sSlot}, s{sSlot}, 0x1ffff"]
    return G_

def frag_reads(p, k, fs, nj=2):
    b = FR + 40 * fs
    L = [f"ds_read_b128 {vr(b + 4*j, 4)}, v{XA + k} offset:{2048*j}" for j in range(nj)]
    for m in range(2 if p == 1 else 1):
        for tau in range(4):
            for pp in range(2):
                L.append(f"ds_read_b64_tr_b16 {vr(b + 8 + 16*m + 4*tau + 2*pp, 2)}, v{WA + tau} offset:{8192*m + (16*k + 4*pp)*256}")
    if p == 2:
        L.append(f"ds_read_b128 {vr(b + 24, 4)}, v{BA + k}")
        L.append(f"ds_read_b128 {vr(b + 28, 4)}, v{GA} offset:{32*k}")
    return L
def mfmas(p, fs, nj=2):
    b = FR + 40 * fs
    L = []
    x = lambda j: vr(b + 4 * j, 4)
    for tau in range(4):
        for j in range(nj):
            D = ar(64 * j + 16 * tau, 16); L.append((D, vr(b + 8 + 4 * tau, 4), x(j), D))
    if p == 1:
        for tau in range(4):
            for j in range(nj):
                D = ar(128 + 64 * j + 16 * tau, 16); L.append((D, x(j), vr(b + 24 + 4 * tau, 4), D))
    else:
        for q in range(2):
            for j in range(2):
                D = ar(128 + 32 * q + 16 * j, 16); L.append((D, vr(b + 24 + 4 * q, 4), x(j), D))
    return L
def adv_addr(p):
    L = []
    regs_ = [XA, XA + 1] + [WA + t for t in range(4)] + ([BA, BA + 1] if p == 2 else [])
    for r in regs_: L += [f"v_add_u32 v{r}, 0x8000, v{r}", f"v_and_b32 v{r}, 0x1ffff, v{r}"]
    if p == 2: L.append(f"v_add_u32 v{GA}, 64, v{GA}")
    return L

def stage_loop(a, name, p, kB, kA, n, nj=2, vmn=None):
    if n != 1:
        a(f"s_mov_b32 s{sCnt}, {n}")
        a.label(name)
    a("s_waitcnt lgkmcnt(0)")
    rd = frag_reads(p, 1, 1, nj); av = adv_addr(p); dg = dma_part('B', kB)
    M = mfmas(p, 0, nj); q = len(M) // 4
    for i, m in enumerate(M):
        mf(a, *m)
        for _ in range(2 if nj == 2 else (2 if i & 1 else 5)):
            if rd: a(rd.pop(0))
        if i % q == 1:
            for l in dg.pop(0): a(l)
        elif not rd:
            for _ in range(5 if nj == 2 else 6):
                if av: a(av.pop(0))
    assert not rd and not av and not dg
    a(f"s_waitcnt vmcnt({vmn or (18 if p == 1 else 16)}) lgkmcnt(0)\ns_barrier")
    rd = frag_reads(p, 0, 0, nj); dg = dma_part('A', kA)
    M = mfmas(p, 1, nj)
    for i, m in enumerate(M):
        mf(a, *m)
        for _ in range(2 if nj == 2 else (2 if i & 1 else 5)):
            if rd: a(rd.pop(0))
        if i % q == 1 and dg:
            for l in dg.pop(0): a(l)
        if p == 1 and i == (11 if nj == 2 else 99): a(f"buffer_store_dwordx4 v[44:47], v{L16}, {WS}, s{sClr} offen sc1\ns_add_u32 s{sClr}, s{sClr}, 1024")
        if p == 1 and i == (12 if nj == 2 else 99): a(f"s_and_b32 s{sA}, s{sClr}, 0xfff\ns_cselect_b32 s{sA}, 0, s{sX0}\ns_cselect_b32 s{sX0}, s{sX0}, 0x20000000\ns_add_u32 s{sClr}, s{sClr}, s{sA}")
        if i == len(M) - 1 and n != 1: a(f"s_sub_u32 s{sCnt}, s{sCnt}, 1\ns_cmp_lg_u32 s{sCnt}, 0")
    assert not rd and not dg
    if n != 1: a(f"s_cbranch_scc1 {name}")

SLEEP = [4]
def poll_fail(a, back, sl=None):
    a(f"s_add_u32 s{sSpin}, s{sSpin}, 1\ns_cmp_gt_u32 s{sSpin}, {HSPIN}\ns_cbranch_scc1 L_end\ns_sleep {sl or SLEEP[0]}\ns_branch {back}")

def unpack8(a, dst, src):
    for j in range(4):
        a(f"v_lshlrev_b32 v{dst+2*j}, 16, v{src+j}\nv_and_b32 v{dst+2*j+1}, 0xffff0000, v{src+j}")

def pw(a, LR, LI, A2, B2, n, cnt, tmp):
    for j in range(cnt):
        if n is None: a(f"v_exp_f32 v{tmp+j}, v{A2+j}\nv_fract_f32 v{LI+j}, v{B2+j}")
        else: a(f"v_mul_f32 v{tmp+j}, {n}, v{A2+j}\nv_mul_f32 v{LI+j}, {n}, v{B2+j}\nv_exp_f32 v{tmp+j}, v{tmp+j}\nv_fract_f32 v{LI+j}, v{LI+j}")
    for j in range(cnt): a(f"v_cos_f32 v{LR+j}, v{LI+j}\nv_sin_f32 v{LI+j}, v{LI+j}")
    a("s_nop 0")
    for j in range(cnt): a(f"v_mul_f32 v{LR+j}, v{LR+j}, v{tmp+j}\nv_mul_f32 v{LI+j}, v{LI+j}, v{tmp+j}")

def dtprep(a, A2, B2, DT, cnt):
    for j in range(cnt): a(f"v_mul_f32 v{DT+j}, {LOG2E}, v{DT+j}")
    for j in range(cnt): a(f"v_exp_f32 v{DT+j}, v{DT+j}")
    a("s_nop 0")
    for j in range(cnt): a(f"v_cvt_pk_bf16_f32 v{DT+j}, v{DT+j}, v{DT+j}")
    for j in range(cnt): a(f"v_and_b32 v{DT+j}, 0xffff0000, v{DT+j}")
    for j in range(cnt):
        a(f"v_mul_f32 v{A2+j}, v{DT+j}, v{A2+j}\nv_mul_f32 v{B2+j}, v{DT+j}, v{B2+j}")
        a(f"v_mul_f32 v{A2+j}, {LOG2E}, v{A2+j}\nv_mul_f32 v{B2+j}, 0.15915494, v{B2+j}")

def h_static(a):
    t = 32
    a(f"""
    v_bfe_u32 v{t}, v{LANE}, 2, 1
    v_bfe_u32 v{t+1}, v{LANE}, 3, 2
    v_and_b32 v{t+2}, 3, v{LANE}
    v_lshl_add_u32 v{t+3}, v{t+1}, 2, v{t+2}
    v_lshl_add_u32 v{t+3}, v{t}, 4, v{t+3}
    s_lshl_b32 s{sA}, s{sW}, 12
    """)
    xaddr(a, t + 3, f"s{sA}", XA)
    a(f"""
    v_bfe_u32 v{t+4}, v{LANE}, 2, 2             ; r'
    v_bfe_u32 v{t+5}, v{LANE}, 4, 1             ; half
    v_and_b32 v{t+6}, 1, v{LANE}
    v_bfe_u32 v{t+7}, v{LANE}, 1, 1
    v_lshl_add_u32 v{t+8}, v{t+5}, 1, v{t+7}
    v_lshl_add_u32 v{t+8}, v{t+6}, 2, v{t+8}
    v_lshlrev_b32 v{t+8}, 3, v{t+8}
    v_lshl_add_u32 v{t+9}, v{HH}, 3, v{t+4}
    v_lshl_add_u32 v{t+8}, v{t+9}, 8, v{t+8}
    v_lshl_add_u32 v{t+8}, v{t+4}, 6, v{t+8}
    v_add_u32 v{WA}, 16384, v{t+8}
    """)
    for tau in range(1, 4): a(f"v_xor_b32 v{WA+tau}, {64*tau}, v{WA}")
    for i in range(4): a(f"v_xor_b32 v{WOA+i}, {64*i}, v{L16}")
    for i in range(4): a(f"v_mov_b32 v{t+12+i}, -1")
    for i in range(256): a(f"v_accvgpr_write_b32 a{i}, 0")

def helper_task(a, P):
    DBG = sr(S_DBG, 4)
    SLEEP[0] = P.get('sleep', 4); OPT.clear(); OPT.update(P)
    def hs(k, alt=0):
        if P.get('alt') and not alt:
            if k in (4, 5, 6): return
            k = {2: 5, 3: 6}.get(k, k)
        if P.get('stat'): a(f"{'s_memtime' if P.get('hcyc') else 's_memrealtime'} s[{74+2*k}:{75+2*k}]")
    def signal(tag, off, so, nv, last='31', inc=1):
        a(f"""
        s_waitcnt vmcnt({nv})
        s_barrier
        s_cmp_lg_u32 s{sW}, 0
        s_cbranch_scc1 L_h_ns{tag}
        s_lshl_b32 s{sA}, s{sB}, 2
        v_mov_b32 v{T}, {inc}
        s_mov_b64 exec, 1
        buffer_atomic_add v{T}, off, {DBG}, {so} offset:{off} sc0
        v_mov_b32 v{T+1}, 32
        s_waitcnt vmcnt(0)
        v_cmp_eq_u32 vcc, {last}, v{T}
        s_cbranch_vccz L_h_ng{tag}
        buffer_store_dword v{T+1}, off, {DBG}, {so} offset:{off + DBG_DN} sc1
        """)
        a.label(f'L_h_ng{tag}')
        a("s_mov_b64 exec, -1")
        a.label(f'L_h_ns{tag}')
    a.label('L_h_task')
    hs(0)
    t = 32
    a(f"""
    s_lshl_b32 s{sSeg}, s{sB}, 3
    s_cmp_eq_u32 s{sMode}, 2
    s_cselect_b32 s{sSeg}, 4, s{sSeg}
    s_add_u32 s{sSeg}, s{sSeg}, s{sW}
    s_lshl_b32 s{sXC}, s{sSeg}, 15
    s_lshl_b32 s{sWo1}, s{sH}, 8
    s_and_b32 s{sA}, s{sW}, 1
    s_lshl_b32 s{sA}, s{sA}, 17
    s_add_u32 s{sWo1}, s{sWo1}, s{sA}
    s_lshl_b32 s{sA}, s{sH}, 14
    s_cmp_ge_u32 s{sW}, 2
    s_cselect_b32 s{sWo2}, s{sA}, s{sWo1}
    s_lshl_b32 s{sSlot}, s{sW}, 12
    s_lshl_b32 s{sWoo}, s{sH}, 17
    s_add_u32 s{sWoo}, s{sWoo}, s{sSlot}
    s_mov_b32 s{sSpin}, 0
    """)
    NE = P.get('nearly', 2)
    if P.get('pfw'): a("s_waitcnt vmcnt(0)"); hs(0)
    a(f"""
    s_cmp_lg_u32 s{sB}, 8
    s_cbranch_scc1 L_h_nse
    v_lshlrev_b32 v{T+2}, 7, v{LANE}
    s_lshl_b32 s{sA}, s{sH}, 14
    buffer_load_dword v255, v{T+2}, {sr(S_W2,4)}, s{sA} offen
    s_add_u32 s{sA2}, s{sA}, 8192
    buffer_load_dword v255, v{T+2}, {sr(S_W2,4)}, s{sA2} offen
    s_and_b32 s{sA2}, s{sW}, 1
    s_lshl_b32 s{sA2}, s{sA2}, 13
    s_add_u32 s{sA}, s{sA}, s{sA2}
    v_add_u32 v{T+2}, s{sA}, v{T+2}
    global_load_dword v255, v{T+2}, {sr(P_CRE,2)}
    global_load_dword v255, v{T+2}, {sr(P_CIM,2)}
    s_lshl_b32 s{sA}, s{sW}, 17
    s_lshl_b32 s{sA2}, s{sH}, 12
    s_add_u32 s{sA}, s{sA}, s{sA2}
    s_add_u32 s{sA}, s{sA}, {WS_KM}
    s_add_u32 s{sA2}, s{sA}, {4 << 17}
    """)
    for k in range(8): a(f"buffer_store_dwordx4 v[44:47], v{L16}, {WS}, s{sA if k < 4 else sA2} offen offset:{1024*(k&3)} sc1")
    signal('e', DBG_ARM, '0', 0, '-1')
    a(f"""
    s_cmp_eq_u32 s{sB}, 8
    s_cselect_b32 s{sA3}, 5, s{sB}
    s_cselect_b32 s{sA2}, 4, {P.get('nq', 0) if P.get('tb', 1) else 3}
    s_sub_u32 s{sA3}, s{sA3}, 2
    s_cmp_ge_u32 s{sA3}, s{sA2}
    s_cbranch_scc1 L_h_nt
    s_waitcnt vmcnt(0)
    s_lshl_b32 s{sA}, s{sW}, 6
    v_add_u32 v{T}, s{sA}, v{LANE}
    v_lshlrev_b32 v{T+1}, 7, v{T}
    v_lshrrev_b32 v{T+2}, 1, v{T}
    v_and_b32 v{T}, 128, v{T+1}
    v_lshl_add_u32 v{T}, v{T+2}, 13, v{T}
    s_lshl_b32 s{sA}, s{sA3}, 20
    s_lshl_b32 s{sA2}, s{sH}, 8
    s_add_u32 s{sA}, s{sA}, s{sA2}
    buffer_load_dword v255, v{T}, {sr(S_PF,4)}, s{sA} offen
    s_waitcnt vmcnt(0)
    s_lshl_b32 s{sA}, s{sA3}, 15
    s_lshl_b32 s{sA2}, s{sH}, 17
    s_add_u32 s{sA}, s{sA}, s{sA2}
    buffer_load_dword v255, v{T+1}, {sr(S_WO,4)}, s{sA} offen
    s_waitcnt vmcnt(0)
    s_cmp_lg_u32 s{sB}, 8
    s_cbranch_scc1 L_h_nt
    s_lshl_b32 s{sA}, s{sH}, 16
    buffer_load_dword v255, v{T+1}, {sr(S_X,4)}, s{sA} offen
    s_add_u32 s{sA}, s{sA}, 32768
    buffer_load_dword v255, v{T+1}, {sr(S_X,4)}, s{sA} offen
    """)
    if P.get('spinT'):
        a(f"s_cmp_lg_u32 s{sH}, 0\ns_cbranch_scc1 L_end\ns_cmp_lg_u32 s{sW}, 0\ns_cbranch_scc1 L_end")
        a(f"s_mov_b32 s74, {P['spinT']*100}")
        if P.get('ev'):
            a.label('L_ev0')
            a(f"s_sleep 4\nbuffer_load_dword v{T}, off, {DBG}, 0 offset:{DBG_ARM} sc1\ns_waitcnt vmcnt(0)\nv_cmp_gt_u32 vcc, {ARM_ALL[P.get('tb', 1)]}, v{T}\ns_cbranch_vccnz L_ev0")
            srd_, off_, bad = {'arm': (DBG, DBG_ARM, 0), 'kv0': (DBG, DBG_DN + DBG_KV0, 0), 'm1': (WS, WS_IMB + 8188, -1), 'km0': (WS, WS_KM, -1), 'km1': (WS, WS_KM + (1 << 17), -1), 'km2': (WS, WS_KM + (2 << 17), -1), 'km6': (WS, WS_KM + (6 << 17), -1), 'kvd': (WS, WS_KV + 16380, -1)}[P['ev']]
            a(f"s_mov_b32 s75, {off_}")
            a.label('L_ev1')
            a(f"s_sleep 2\nbuffer_load_dword v{T}, off, {srd_}, s75 sc1\ns_waitcnt vmcnt(0)\nv_cmp_eq_u32 vcc, {bad}, v{T}\ns_cbranch_vccnz L_ev1")
            a("s_memrealtime s[72:73]\ns_waitcnt lgkmcnt(0)\ns_sub_u32 s72, s72, s98\ns_add_u32 s74, s74, s72")
        a.label('L_spinT')
        a(f"s_sleep 1\ns_memrealtime s[72:73]\ns_waitcnt lgkmcnt(0)\ns_sub_u32 s72, s72, s98\ns_cmp_lt_u32 s72, s74\ns_cbranch_scc1 L_spinT")
    a("s_branch L_end")
    a.label('L_h_nt')
    a(f"s_cmp_eq_u32 s{sMode}, 0\ns_cbranch_scc1 L_h_d2")
    for kA, lab in (('xh', 'L_h_d2'), ('x', 'L_h_d3')):
        for st in range(4):
            for g_ in dma_part('A', kA) + (dma_part('B', 'p1') if st < 3 else []):
                for l in g_: a(l)
        if kA == 'xh': a("s_branch L_h_d3")
        a.label(lab)
    a(f"""
    s_lshl_b32 s{sA}, s{sSeg}, 17
    s_lshl_b32 s{sA2}, s{sH}, 12
    s_add_u32 s{sA}, s{sA}, s{sA2}
    s_add_u32 s{sClr}, s{sA}, {WS_KM}
    s_cmp_ge_u32 s{sMode}, 1
    s_cselect_b32 s{sClr}, 0x70000000, s{sClr}
    s_mov_b32 s{sX0}, {(4 << 17) - 4096}
    """)
    a(f"""
    s_lshl_b32 s{sA}, s{sB}, 5
    s_add_u32 s{sA}, s{sA}, s{sH}
    s_lshl_b32 s{sA}, s{sA}, 7
    s_add_u32 s{sA}, s{sA}, {WS_A}
    s_mov_b64 exec, 0xff
    buffer_store_dwordx4 {vr(t+12,4)}, v{L16}, {WS}, s{sA} offen sc1
    s_mov_b64 exec, -1
    s_lshl_b32 s{sA}, s{sH}, 2
    s_add_u32 s{sA}, s{sA}, s{sSeg}
    s_lshl_b32 s{sA}, s{sA}, 7
    s_add_u32 s{sA}, s{sA}, {WS_CNT}
    s_add_u32 s{sA2}, s{sH}, s{sMode}
    s_cmp_eq_u32 s{sMode}, 1
    s_cselect_b32 s{sA2}, s{sH}, s{sA2}
    s_cmp_lt_u32 s{sA2}, 2
    s_cselect_b32 s{sA}, s{sA}, 0x70000000
    v_mov_b32 v{t+16}, 0
    s_mov_b64 exec, 1
    buffer_store_dword v{t+16}, v{t+16}, {WS}, s{sA} offen sc1
    s_mov_b64 exec, -1
    global_load_dwordx4 {vr(t+20,4)}, v{L16}, {sr(P_GW,2)}
    """)
    a(f"s_cmp_lt_u32 s{sB}, {NE}\ns_cbranch_scc1 L_h_go\ns_cmp_eq_u32 s{sMode}, 2\ns_cbranch_scc1 L_h_go")
    a(f"v_lshlrev_b32 v{T}, 7, v{LANE}\ns_and_b32 s{sA2}, s{sXC}, 0xfffffc00\ns_cmp_ge_u32 s{sB}, 6\ns_cbranch_scc1 L_h_x2\ns_waitcnt vmcnt(0)")
    a.label('L_h_x2')
    for k in range(8 if P.get('xt', 1) else 0): a(f"s_add_u32 s{sA}, s{sA2}, {(k >> 2) * 131072 + (k & 3) * 8192}\nbuffer_load_dword v255, v{T}, {sr(S_X,4)}, s{sA} offen")
    a(f"""
    s_cmp_lg_u32 s{sB}, 4
    s_cbranch_scc1 L_h_n7
    s_add_u32 s{sA}, s{sW}, 56
    s_lshl_b32 s{sA}, s{sA}, 20
    s_lshl_b32 s{sA2}, s{sH}, 15
    s_add_u32 s{sA}, s{sA}, s{sA2}
    s_add_u32 s{sA}, s{sA}, {WS_PART}
    s_mov_b32 s{sCnt}, 8
    """)
    if P.get('r8w'):
        a(f"s_cmp_lg_u32 s{sW}, 0\ns_cbranch_scc1 L_h_c6")
        a.label('L_h_c5')
        a(f"buffer_load_dword v{T}, off, {DBG}, 0 offset:{DBG_DN + DBG_KVC + 4 * (P['r8w'] - 1)} sc1\ns_waitcnt vmcnt(0)\nv_cmp_eq_u32 vcc, 0, v{T}\ns_cbranch_vccz L_h_c6")
        poll_fail(a, 'L_h_c5', 16)
        a.label('L_h_c6')
        a("s_barrier")
    a.label('L_h_c7')
    if P.get('r8s'): a("s_waitcnt vmcnt(0)")
    a(f"s_add_u32 s{sA2}, s{sA}, {4 << 20}")
    for k in range(8): a(f"buffer_store_dwordx4 v[44:47], v{L16}, {WS}, s{sA if k < 4 else sA2} offen offset:{1024*(k&3)} sc1")
    a(f"s_add_u32 s{sA}, s{sA}, 4096\ns_sub_u32 s{sCnt}, s{sCnt}, 1\ns_cmp_lg_u32 s{sCnt}, 0\ns_cbranch_scc1 L_h_c7")
    a.label('L_h_n7')
    a(f"s_sub_i32 s{sA3}, s{sB}, {P.get('lag', 2)}\ns_max_i32 s{sA3}, s{sA3}, 0\ns_lshl_b32 s{sA3}, s{sA3}, 2\ns_cmp_ge_u32 s{sB}, 6\ns_cbranch_scc1 L_h_go")
    a(f"s_cmp_lg_u32 s{sW}, 0\ns_cbranch_scc1 L_h_go")
    a.label('L_h_w0')
    a(f"buffer_load_dword v{T}, off, {DBG}, s{sA3} offset:{DBG_DN + DBG_KVC} sc1\ns_waitcnt vmcnt(0)\nv_cmp_eq_u32 vcc, 0, v{T}\ns_cbranch_vccz L_h_go")
    poll_fail(a, 'L_h_w0', 8)
    a.label('L_h_go')
    a(f"s_waitcnt vmcnt({14 + 3})\ns_barrier")
    hs(1)
    for l in frag_reads(1, 0, 0): a(l)
    gw = f"v_add_u32 v{T}, {H_GW}, v{L16}\nds_write_b128 v{T}, {vr(t+20,4)}"
    a(f"s_cmp_eq_u32 s{sMode}, 0\ns_cbranch_scc1 L_h_full")
    stage_loop(a, 'L_h_q1a', 1, 'p1', 'xh', 12, 1, 12)
    stage_loop(a, 'L_h_q1c', 1, 'p1', 'x', 1, 1, 12)
    a(gw)
    kv0 = f"buffer_load_dword v{G}, off, {DBG}, 0 offset:{DBG_ARM} sc1"
    a(f"v_mov_b32 v{G}, 64\ns_add_u32 s{sA}, s{sW}, s{sMode}\ns_cmp_lg_u32 s{sA}, 1\ns_cbranch_scc1 L_h_a1"); a(kv0)
    a.label('L_h_a1')
    stage_loop(a, 'L_h_q1b', 1, 'p2', 'x', 3, 1, 14)
    a.label('L_h_a0')
    a(f"v_cmp_gt_u32 vcc, {ARM_ALL[P.get('tb', 1)]}, v{G}\ns_cbranch_vccz L_h_e1"); a(kv0); a("s_waitcnt vmcnt(0)")
    poll_fail(a, 'L_h_a0', 4)
    a.label('L_h_full')
    stage_loop(a, 'L_h_p1a', 1, 'p1', 'x', 13)
    a(gw)
    stage_loop(a, 'L_h_p1b', 1, 'p2', 'x', 3)
    a.label('L_h_e1')
    hs(2)
    a(f"""
    s_lshl_b32 s{sA3}, s{sSeg}, 19
    s_lshl_b32 s{sA2}, s{sH}, 14
    s_add_u32 s{sA3}, s{sA3}, s{sA2}
    s_add_u32 s{sA3}, s{sA3}, {WS_KV}
    s_waitcnt lgkmcnt(0)
    s_nop 7
    """)
    TM = 240
    def kv_store(j, m, tau):
        dst = (KF if m == 0 else VF) + 32 * j + 8 * tau
        a(f"s_add_u32 s{sA}, s{sA3}, {j * (4 << 19) + 4096 * tau}")
        for u in range(2): a(f"buffer_store_dwordx4 {vr(dst+4*u,4)}, v{VKV}, {WS}, s{sA} offen offset:{2048*m + 256*u} sc1")
    for j in range(2):
        for m in range(2):
            for tau in range(4):
                src = 128 * m + 64 * j + 16 * tau; dst = (KF if m == 0 else VF) + 32 * j + 8 * tau
                for r in range(16): a(f"v_accvgpr_read_b32 v{TM+r}, a{src+r}")
                for r in range(8): a(f"v_cvt_pk_bf16_f32 v{dst+r}, v{TM+2*r}, v{TM+2*r+1}")
                if j == 0:
                    a(f"s_cmp_eq_u32 s{sMode}, 0\ns_cbranch_scc1 L_h_sk{j}{m}{tau}")
                    kv_store(j, m, tau)
                    a.label(f'L_h_sk{j}{m}{tau}')
        if j == 0:
            a(f"s_cmp_eq_u32 s{sMode}, 0\ns_cbranch_scc1 L_h_j1\ns_lshl_b32 s{sA2}, s{sMode}, 2")
            if P.get('dlyh'): a(f"s_sleep {P['dlyh']}")
            signal('a', DBG_KV0 - 4, f"s{sA2}", 0)
            a(f"s_cmp_eq_u32 s{sMode}, 1\ns_cbranch_scc1 L_h_nj1\ns_mov_b32 s{sMode}, 0\ns_waitcnt vmcnt(0) lgkmcnt(0)\ns_branch L_h_again")
            a.label('L_h_j1')
    a.label('L_h_nj1')
    for i in range(192): a(f"v_accvgpr_write_b32 a{i}, 0")
    a(f"s_lshl_b32 s{sA}, s{sW}, 12")
    xaddr(a, VN, f"s{sA}", XA)
    a(f"""
    v_bfe_u32 v{TM}, v{LANE}, 2, 1
    v_bfe_u32 v{TM+1}, v{LANE}, 3, 1
    v_and_b32 v{TM+2}, 3, v{LANE}
    v_lshl_add_u32 v{TM+2}, v{TM+1}, 2, v{TM+2}
    v_lshl_add_u32 v{TM+2}, v{TM}, 3, v{TM+2}      ; ch
    v_bfe_u32 v{TM+3}, v{LANE}, 4, 1
    v_lshlrev_b32 v{TM+3}, 12, v{TM+3}
    v_add_u32 v{TM+3}, 24576, v{TM+3}
    v_lshlrev_b32 v{GA}, 4, v{HH}
    v_add_u32 v{GA}, {H_GW}, v{GA}
    """)
    xaddr(a, TM + 2, f"v{TM+3}", BA)
    hs(3)
    for l in frag_reads(2, 0, 0): a(l)
    a(f"s_lshl_b32 s{sA4}, s{sB}, 1\ns_and_b32 s{sA4}, s{sA4}, {2 if P.get('lag', 2) == 2 else 14}\ns_sub_i32 s{sA4}, s{sA4}, {-1 if P.get('lag', 2) == 2 else 3}\ns_max_i32 s{sA4}, s{sA4}, 1\ns_cmp_ge_u32 s{sB}, 6\ns_cselect_b32 s{sA4}, 1, s{sA4}\ns_sub_u32 s{sJ}, 12, s{sA4}")
    stage_loop(a, 'L_h_p20', 2, 'p2', 'x', f"s{sA4}")
    a(f"s_cmp_eq_u32 s{sMode}, 0\ns_cbranch_scc1 L_h_st\ns_cmp_lg_u32 s{sW}, 0\ns_cbranch_scc1 L_h_l1")
    a.label('L_h_l0')
    a(f"buffer_load_dword v{T}, off, {DBG}, 0 offset:{DBG_DN + DBG_KVC} sc1\ns_waitcnt vmcnt(0)\nv_cmp_eq_u32 vcc, 0, v{T}\ns_cbranch_vccz L_h_l1")
    poll_fail(a, 'L_h_l0', 8)
    a.label('L_h_l1')
    a("s_barrier")
    n0 = len(a.lines)
    for m in range(2):
        for tau in range(4): kv_store(1, m, tau)
    a.lines[n0:] = [l.replace('buffer_store', 'buffer_load') for l in a.lines[n0:]]
    a(f"s_mov_b32 s{sMode}, 0\ns_branch L_h_nsc")
    a.label('L_h_st')
    for j in range(2):
        for m in range(2):
            for tau in range(4): kv_store(j, m, tau)
    signal('c', DBG_KVC, f"s{sA}", 0)
    stage_loop(a, 'L_h_p2a', 2, 'p2', 'x', f"s{sJ}")
    stage_loop(a, 'L_h_p2c', 2, 'p2', 'wo', 1)
    stage_loop(a, 'L_h_p2b', 2, 'wo', 'wo', 3)
    for g_ in dma_part('B', 'wo'):
        for l in g_: a(l)
    hs(4)
    a("s_waitcnt lgkmcnt(0)\ns_nop 7")
    PK = 128 + 0
    for j in range(2):
        for tau in range(4):
            src = 64 * j + 16 * tau; dst = QF + 32 * j + 8 * tau
            for r in range(16): a(f"v_accvgpr_read_b32 v{TM+r}, a{src+r}")
            for r in range(8): a(f"v_cvt_pk_bf16_f32 v{dst+r}, v{TM+2*r}, v{TM+2*r+1}")
    a(f"""
    v_bfe_u32 v{T}, v{LANE}, 2, 1
    v_bfe_u32 v{T+1}, v{LANE}, 3, 1
    v_and_b32 v{T+2}, 0x13, v{LANE}
    v_lshl_add_u32 v{T+2}, v{T+1}, 2, v{T+2}
    v_lshl_add_u32 v{T+2}, v{T}, 3, v{T+2}
    v_lshlrev_b32 v{T+2}, 10, v{T+2}
    s_lshl_b32 s{sA}, s{sH}, 5
    v_lshl_add_u32 v{T+1}, v{HH}, 4, s{sA}
    s_lshl_b32 s{sA}, s{sW}, 17
    v_add3_u32 v{BA}, v{T+2}, v{T+1}, s{sA}
    """)
    for j in range(2):
        for k in range(8):
            D = vr(SS + 16 * j, 16)
            mf(a, D, vr(KF + 32 * j + 4 * k, 4), vr(QF + 32 * j + 4 * k, 4), D if k else 0)
    RI = 32
    for r in range(32): a(f"v_accvgpr_read_b32 v{RI+r}, a{128+r}")
    a(f"v_accvgpr_read_b32 v{G}, a160\nv_accvgpr_read_b32 v{MX}, a176")
    A2, B2, LR, LI = 64, 72, 80, 88
    a(f"global_load_dwordx4 {vr(LR,4)}, v{T+1}, {sr(P_LRE,2)}\nglobal_load_dwordx4 {vr(LR+4,4)}, v{T+1}, {sr(P_LIM,2)}\nglobal_load_dwordx4 {vr(LI,4)}, v{T+1}, {sr(P_LDT,2)}")
    for r in (G, MX): a(f"v_mul_f32 v{r}, 0xbfb8aa3b, v{r}")
    for r in (G, MX): a(f"v_exp_f32 v{r}, v{r}")
    a("s_nop 0")
    for r in (G, MX): a(f"v_add_f32 v{r}, 1.0, v{r}")
    for r in (G, MX): a(f"v_rcp_f32 v{r}, v{r}")
    a(f"v_lshlrev_b32 v{T}, 4, v{HH}\nv_sub_u32 v{T}, v{VN}, v{T}\nv_mov_b32 v{T+2}, 0xff800000")
    for r in range(16):
        a(f"v_cmp_le_i32 vcc, {r}, v{T}\ns_nop 1")
        for j in range(2): a(f"v_cndmask_b32 v{SS+16*j+r}, v{T+2}, v{SS+16*j+r}, vcc")
    PQ, PV, PS, PH, PG = 128, 160, 192, 208, 216
    for r in range(32): a(f"v_accvgpr_write_b32 a{PQ+r}, v{QF+32+r}\nv_accvgpr_write_b32 a{PV+r}, v{VF+32+r}")
    for r in range(16): a(f"v_accvgpr_write_b32 a{PS+r}, v{SS+16+r}")
    a(f"v_accvgpr_write_b32 a{PG}, v{MX}")
    CA, CB, CD = 192, 193, 194
    a(f"""
    v_and_b32 v{T}, 15, v{LANE}
    s_lshl_b32 s{sA}, s{sH}, 5
    v_lshl_add_u32 v{T+2}, v{T}, 1, s{sA}
    global_load_ushort v{CA}, v{T+2}, {sr(P_LRE,2)}
    global_load_ushort v{CB}, v{T+2}, {sr(P_LIM,2)}
    global_load_ushort v{CD}, v{T+2}, {sr(P_LDT,2)}
    """)
    ACW = 220
    for tt in range(4):
        a(f"global_load_dwordx4 {ar(ACW+8*tt,4)}, v{BA}, {sr(P_CRE,2)}\nglobal_load_dwordx4 {ar(ACW+8*tt+4,4)}, v{BA}, {sr(P_CIM,2)}")
        if tt < 3: a(f"v_add_u32 v{BA}, 32768, v{BA}")
    a(f"s_lshl_b32 s{sA}, s{sW}, 12\nv_add_u32 v{BA+1}, {H_K}, v{L16}\nv_add_u32 v{GA}, s{sA}, v{BA+1}\ns_waitcnt vmcnt(8)")
    def c_put(r):
        for tt in range(4): a(f"ds_write_b128 v{GA}, {ar(ACW+8*tt+4*r,4)} offset:{1024*tt}")
    def c_get(r):
        for tile in range(16): a(f"ds_read_b128 {ar(8*tile+4*r,4)}, v{BA+1} offset:{1024*tile}")
    TT, LE, LM = 128, 136, 144
    unpack8(a, LE, LR); unpack8(a, LM, LR + 4); unpack8(a, TT, LI)
    for j in range(8): a(f"v_mov_b32 v{A2+j}, v{LE+j}\nv_mov_b32 v{B2+j}, v{LM+j}")
    dtprep(a, A2, B2, TT, 8)
    pw(a, LR, LI, A2, B2, None, 8, TT)
    for j in range(8):
        a(f"""
        v_mul_f32 v{TT}, v{LE+j}, v{LE+j}
        v_fmac_f32 v{TT}, v{LM+j}, v{LM+j}
        v_rcp_f32 v{TT}, v{TT}
        v_add_f32 v{TT+1}, -1.0, v{LR+j}
        v_mul_f32 v{TT+2}, v{TT+1}, v{LE+j}
        v_fmac_f32 v{TT+2}, v{LI+j}, v{LM+j}
        v_mul_f32 v{TT+3}, v{LI+j}, v{LE+j}
        v_fma_f32 v{TT+3}, -v{TT+1}, v{LM+j}, v{TT+3}
        v_mul_f32 v{LE+j}, v{TT+2}, v{TT}
        v_mul_f32 v{LM+j}, v{TT+3}, v{TT}
        """)
    for d in (1, 2, 4, 8):
        dp = f"row_shr:{d} row_mask:0xf bank_mask:0xf bound_ctrl:1"
        for j in range(2):
            R, I = RI + 16 * j, RI + 16 * j + 8
            for c in range(8): a(f"v_mov_b32 v{TT+c}, v{R+c}")
            for c in range(8): a(f"v_fmac_f32_dpp v{R+c}, v{R+c}, v{LR+c} {dp}")
            for c in range(8): a(f"v_fmac_f32_dpp v{R+c}, -v{I+c}, v{LI+c} {dp}")
            for c in range(8): a(f"v_fmac_f32_dpp v{I+c}, v{I+c}, v{LR+c} {dp}")
            for c in range(8): a(f"v_fmac_f32_dpp v{I+c}, v{TT+c}, v{LI+c} {dp}")
        if d < 8:
            for c in range(8):
                a(f"v_mul_f32 v{TT}, v{LI+c}, v{LI+c}\nv_add_f32 v{TT+1}, v{LR+c}, v{LR+c}\nv_fma_f32 v{LR+c}, v{LR+c}, v{LR+c}, -v{TT}\nv_mul_f32 v{LI+c}, v{TT+1}, v{LI+c}")
    a(f"v_and_b32 v{T+2}, 15, v{LANE}\nv_add_u32 v{T+2}, 1, v{T+2}\nv_cvt_f32_u32 v{T+2}, v{T+2}")
    pw(a, LR, LI, A2, B2, f"v{T+2}", 8, TT)
    dp = "row_bcast:15 row_mask:0xa bank_mask:0xf"
    for j in range(2):
        R, I = RI + 16 * j, RI + 16 * j + 8
        for c in range(8): a(f"v_fmac_f32_dpp v{R+c}, v{R+c}, v{LR+c} {dp}")
        for c in range(8): a(f"v_fmac_f32_dpp v{R+c}, -v{I+c}, v{LI+c} {dp}")
        for c in range(8): a(f"v_fmac_f32_dpp v{I+c}, v{I+c}, v{LR+c} {dp}")
        for c in range(8): a(f"v_fmac_f32_dpp v{I+c}, v{R+c}, v{LI+c} {dp}")
    a(f"""
    s_lshl_b32 s{sA}, s{sW}, 7
    s_add_u32 s{sA}, s{sA}, {H_E}
    v_lshl_add_u32 v{T+2}, v{HH}, 5, s{sA}
    s_mov_b32 exec_lo, 0x80000000
    s_mov_b32 exec_hi, 0x80000000
    """)
    for j in range(2):
        for q in range(4): a(f"ds_write_b128 v{T+2}, {vr(RI + 16*j + 4*q, 4)} offset:{512*j + 64*(q>>1) + 16*(q&1)}")
    a("s_mov_b64 exec, -1")
    a(f"v_lshlrev_b32 v{CA}, 16, v{CA}\nv_lshlrev_b32 v{CB}, 16, v{CB}\nv_lshlrev_b32 v{CD}, 16, v{CD}")
    dtprep(a, CA, CB, CD, 1)
    U, W_ = 196, 198
    pw(a, U, U + 1, CA, CB, "0x42000000", 1, CD)
    pw(a, W_, W_ + 1, CA, CB, "0x43800000", 1, CD)
    a(f"v_add_u32 v{T+2}, 1, v{VN}\nv_cvt_f32_u32 v{T+2}, v{T+2}")
    pw(a, LR, LI, A2, B2, f"v{T+2}", 8, TT)
    EE = 200
    a(f"v_lshlrev_b32 v{T}, 2, v{T}\nv_add_u32 v{T+2}, {H_E}, v{T}\ns_waitcnt vmcnt(0)")
    c_put(0); a("s_waitcnt lgkmcnt(0)\ns_barrier")
    c_get(0); a("s_waitcnt lgkmcnt(0)\ns_barrier")
    c_put(1); a("s_waitcnt lgkmcnt(0)\ns_barrier")
    c_get(1); a("s_waitcnt lgkmcnt(0)\ns_barrier")
    for s_ in range(8): a(f"ds_read2_b32 {vr(EE+2*s_,2)}, v{T+2} offset0:{32*s_} offset1:{32*s_+16}")
    AC_ = 216
    def cmac(M_, Er):
        a(f"""
        v_fma_f32 v{AC_+2}, v{M_}, v{AC_}, v{Er}
        v_fma_f32 v{AC_+3}, v{M_}, v{AC_+1}, v{Er+1}
        v_fma_f32 v{AC_+2}, -v{M_+1}, v{AC_+1}, v{AC_+2}
        v_fma_f32 v{AC_+1}, v{M_+1}, v{AC_}, v{AC_+3}
        v_mov_b32 v{AC_}, v{AC_+2}
        """)
    a(f"s_waitcnt lgkmcnt(0)\nv_mov_b32 v{AC_}, v{EE}\nv_mov_b32 v{AC_+1}, v{EE+1}")
    for s_ in range(1, 8): cmac(U, EE + 2 * s_)
    a(f"""
    v_min_u32 v{AC_}, -2, v{AC_}
    v_min_u32 v{AC_+1}, -2, v{AC_+1}
    v_lshlrev_b32 v{T+1}, 1, v{T}
    s_lshl_b32 s{sA3}, s{sH}, 7
    s_add_u32 s{sA3}, s{sA3}, {WS_A}
    s_lshl_b32 s{sA}, s{sB}, 12
    s_add_u32 s{sA}, s{sA}, s{sA3}
    s_cmp_eq_u32 s{sW}, 0
    s_cselect_b32 s{sA}, s{sA}, 0x70000000
    buffer_store_dwordx2 {vr(AC_,2)}, v{T+1}, {WS}, s{sA} offen sc1
    v_and_b32 v{T+2}, 7, v{LANE}
    v_cmp_ge_u32 {sr(sM,2)}, s{sB}, v{T+2}
    v_lshlrev_b32 v{T+2}, 2, v{T+2}
    v_mov_b32 v{AC_}, 0
    v_mov_b32 v{AC_+1}, 0
    s_mov_b32 s{sCnt}, 0
    """)
    a.label('L_h_wk')
    a(f"""
    buffer_load_dword v{AC_+2}, v{T+2}, {DBG}, 0 offen offset:{DBG_DN + DBG_KV0} sc1
    s_waitcnt vmcnt(0)
    v_cmp_gt_u32 vcc, 32, v{AC_+2}
    s_and_b64 vcc, vcc, {sr(sM,2)}
    s_cbranch_vccz L_h_wa
    """)
    poll_fail(a, 'L_h_wk')
    a.label('L_h_wa')
    a(f"""
    s_cmp_ge_u32 s{sCnt}, s{sB}
    s_cbranch_scc1 L_h_wd
    buffer_load_dwordx2 {vr(220,2)}, v{T+1}, {WS}, s{sA3} offen sc1
    s_waitcnt vmcnt(0)
    v_max_u32 v{AC_+2}, v220, v221
    v_cmp_eq_u32 vcc, -1, v{AC_+2}
    s_cbranch_vccz L_h_wb
    """)
    poll_fail(a, 'L_h_wa')
    a.label('L_h_wb')
    cmac(W_, 220)
    a(f"s_add_u32 s{sCnt}, s{sCnt}, 1\ns_add_u32 s{sA3}, s{sA3}, 4096\ns_branch L_h_wa")
    a.label('L_h_wd')
    a(f"s_lshl_b32 s{sA}, s{sW}, 10\ns_add_u32 s{sA}, s{sA}, {H_C}\nv_add_u32 v{T+2}, s{sA}, v{T}")
    for s_ in range(8):
        a(f"ds_write2_b32 v{T+2}, v{AC_}, v{AC_+1} offset0:{32*s_} offset1:{32*s_+16}")
        if s_ < 7: cmac(U, EE + 2 * s_)
    a(f"""
    s_lshl_b32 s{sA2}, s{sW}, 7
    s_add_u32 s{sA}, s{sA}, s{sA2}
    v_lshl_add_u32 v{T+2}, v{HH}, 5, s{sA}
    s_waitcnt lgkmcnt(0)
    """)
    CC = 192
    for j in range(2):
        for q in range(4): a(f"ds_read_b128 {vr(CC + 16*j + 4*q, 4)}, v{T+2} offset:{512*j + 64*(q>>1) + 16*(q&1)}")
    a(f"v_add_f32 v{T}, v{G}, v{G}\nv_add_f32 v{T+1}, v{MX}, v{MX}\ns_waitcnt lgkmcnt(0)")
    for j in range(2):
        R, I, cr, ci = RI + 16 * j, RI + 16 * j + 8, CC + 16 * j, CC + 16 * j + 8
        for c in range(8):
            a(f"""
            v_fmac_f32 v{R+c}, v{LR+c}, v{cr+c}
            v_fmac_f32 v{I+c}, v{LR+c}, v{ci+c}
            v_fma_f32 v{R+c}, -v{LI+c}, v{ci+c}, v{R+c}
            v_fmac_f32 v{I+c}, v{LI+c}, v{cr+c}
            v_mul_f32 v{cr+c}, v{R+c}, v{LE+c}
            v_mul_f32 v{ci+c}, v{R+c}, v{LM+c}
            v_fma_f32 v{cr+c}, -v{I+c}, v{LM+c}, v{cr+c}
            v_fmac_f32 v{ci+c}, v{I+c}, v{LE+c}
            v_mul_f32 v{cr+c}, v{cr+c}, v{T+j}
            v_mul_f32_e64 v{ci+c}, -v{ci+c}, v{T+j}
            """)
        for r in range(8): a(f"v_cvt_pk_bf16_f32 v{HF+8*j+r}, v{cr+2*r}, v{cr+2*r+1}")
    for r in range(8): a(f"v_accvgpr_write_b32 a{PH+r}, v{HF+8+r}")
    a(f"""
    v_bfe_u32 v{t+4}, v{LANE}, 2, 2
    v_bfe_u32 v{t+5}, v{LANE}, 4, 1
    v_and_b32 v{t+6}, 1, v{LANE}
    v_bfe_u32 v{t+7}, v{LANE}, 1, 1
    v_lshl_add_u32 v{t+8}, v{t+6}, 1, v{t+7}
    v_lshl_add_u32 v{t+8}, v{t+5}, 2, v{t+8}
    v_lshlrev_b32 v{t+8}, 3, v{t+8}
    v_lshl_add_u32 v{t+9}, v{HH}, 4, v{t+4}
    v_lshl_add_u32 v{t+8}, v{t+9}, 10, v{t+8}
    v_lshl_add_u32 v{WOA}, v{t+4}, 6, v{t+8}
    """)
    for tt in range(1, 4): a(f"v_xor_b32 v{WOA+tt}, {64*tt}, v{WOA}")
    for tt in range(4): a(f"v_add_u32 v{WOA+4+tt}, 0x10000, v{WOA+tt}")
    a(f"s_mov_b32 s{sJ}, 0")
    MINI = P.get('mini', 1)
    if MINI:
        a(f"""
        s_cmp_lg_u32 s{sB}, 7
        s_cbranch_scc1 L_h_nsd
        s_lshl_b32 s{sA2}, s{sW}, 5
        s_add_u32 s{sA2}, s{sA2}, s{sH}
        s_mul_i32 s{sA2}, s{sA2}, {23*1024}
        s_add_u32 s{sA2}, s{sA2}, {WS_ST}
        """)
        for q in range(23):
            a(f"buffer_store_dwordx4 {ar(128+4*q,4)}, v{L16}, {WS}, s{sA2} offen offset:{1024*(q&3)} sc1")
            if q & 3 == 3: a(f"s_add_u32 s{sA2}, s{sA2}, 4096")
        signal('d', DBG_ST, '0', 0)
    hs(5)
    a.label('L_h_seg')
    KMF, VMF, SM, PX, PM, OA_ = 32, 64, 80, 248, 128, 192
    a(f"v_max3_f32 v{MX}, v{SS}, v{SS+1}, v{SS+2}")
    for r in range(3, 15, 2): a(f"v_max3_f32 v{MX}, v{MX}, v{SS+r}, v{SS+r+1}")
    a(f"""
    v_max_f32 v{MX}, v{MX}, v{SS+15}
    s_lshl_b32 s{sA}, s{sSeg}, 17
    s_lshl_b32 s{sA2}, s{sH}, 12
    s_add_u32 s{sA}, s{sA}, s{sA2}
    s_add_u32 s{sA}, s{sA}, {WS_KM}
    s_sub_u32 s{sA2}, s{sSeg}, {P.get('pm0', 0)}
    s_cmp_lt_u32 s{sA2}, {48 - P.get('pm0', 0)}
    s_cselect_b32 s{sA2}, {P.get('pm', 7)}, {P.get('pm6', 3)}
    s_cmp_lt_u32 s{sSeg}, 56
    s_cselect_b32 s{sA2}, s{sA2}, {P.get('pm7', 3)}
    s_cmp_lt_u32 s{sSeg}, 60
    s_cselect_b32 s{sA2}, s{sA2}, 0
    s_or_b32 s{sA2}, s{sA2}, s{sSeg}
    s_min_u32 s{sA2}, s{sA2}, 62
    s_sub_i32 s{sA2}, s{sA2}, s{sSeg}
    s_lshl_b32 s{sA2}, s{sA2}, 17
    s_add_u32 s{sA2}, s{sA}, s{sA2}
    s_mov_b32 s{sA4}, 0x3e0293ee
    s_lshl_b32 s{sA3}, s{sW}, 12
    s_add_u32 s{sA3}, s{sA3}, {H_K}
    v_add_u32 v{T+1}, s{sA3}, v{L16}
    v_add_u32 v{T+2}, 2048, v{VKM}
    """)
    for tau in range(4): a(f"v_mov_b64 {vr(VMF + 4*tau + 2, 2)}, 0")
    a(f"v_mov_b64 {vr(PM+2,2)}, 0")
    a.label('L_h_pr')
    a(f"""
    buffer_load_dword v{T}, off, {WS}, s{sA2} offset:3072 sc1
    s_waitcnt vmcnt(0)
    v_cmp_eq_u32 vcc, -1, v{T}
    s_cbranch_vccz L_h_ld
    """)
    poll_fail(a, 'L_h_pr')
    a.label('L_h_pf')
    a(f"s_add_u32 s{sSpin}, s{sSpin}, 1\ns_cmp_gt_u32 s{sSpin}, {HSPIN}\ns_cbranch_scc1 L_end")
    a.label('L_h_ld')
    LD = 192
    for k in range(4): a(f"buffer_load_dwordx4 {vr(LD + 4*k, 4)}, v{L16}, {WS}, s{sA} offen offset:{1024*k} sc1")
    a("s_waitcnt vmcnt(0)")
    hs(6)
    for k in range(4): a(f"ds_write_b128 v{T+1}, {vr(LD + 4*k, 4)} offset:{1024*k}")
    a(f"v_max3_u32 v{T}, v{LD}, v{LD+1}, v{LD+2}")
    for r in range(3, 15, 2): a(f"v_max3_u32 v{T}, v{T}, v{LD+r}, v{LD+r+1}")
    a(f"v_max_u32 v{T}, v{T}, v{LD+15}\nv_cmp_eq_u32 vcc, -1, v{T}\ns_cbranch_vccnz L_h_pf")
    for k in range(8):
        o = ((k >> 1) & 1) * 128 + (k & 1) * 32
        a(f"ds_read2_b64 {vr(KMF + 4*k, 4)}, v{VKM if k < 4 else T+2} offset0:{o} offset1:{o+16}")
    for tau in range(4): a(f"ds_read2st64_b32 {vr(VMF + 4*tau, 2)}, v{VVM} offset0:{4*tau} offset1:{4*tau+2}")
    for k in range(8):
        a(f"s_waitcnt lgkmcnt({11-k})")
        mf(a, vr(SM, 16), vr(KMF + 4 * k, 4), vr(QF + 4 * k, 4), vr(SM, 16) if k else 0)
    a("s_waitcnt lgkmcnt(0)\ns_nop 11")
    a(f"""
    v_max3_f32 v{T}, v{MX}, v{SM}, v{SM+1}
    v_max3_f32 v{T}, v{T}, v{SM+2}, v{SM+3}
    v_mov_b32 v{T+1}, v{T}
    s_nop 1
    v_permlane32_swap_b32 v{T}, v{T+1}
    v_max_f32 v{T}, v{T}, v{T+1}
    v_mul_f32 v{T}, s{sA4}, v{T}
    """)
    ev = [SM + r for r in range(4)] + [SS + r for r in range(16)]
    for r in ev: a(f"v_fma_f32 v{r}, v{r}, s{sA4}, -v{T}")
    for r in ev: a(f"v_exp_f32 v{r}, v{r}")
    a(f"v_cvt_pk_bf16_f32 v{PM}, v{SM}, v{SM+1}\nv_cvt_pk_bf16_f32 v{PM+1}, v{SM+2}, v{SM+3}")
    for r in range(8): a(f"v_cvt_pk_bf16_f32 v{PX+r}, v{SS+2*r}, v{SS+2*r+1}")
    sm = [f"v_add_f32 v{T}, v{ev[0]}, v{ev[1]}"] + [f"v_add_f32 v{T}, v{T}, v{r}" for r in ev[2:]]
    sm += [f"v_mov_b32 v{T+1}, v{T}", f"v_sub_f32 v{T+2}, 1.0, v{G}", "s_nop 0", f"v_permlane32_swap_b32 v{T}, v{T+1}", f"v_add_f32 v{T}, v{T}, v{T+1}",
           f"v_rcp_f32 v{T}, v{T}", "s_nop 0", f"v_mul_f32 v{T}, v{T}, v{T+2}"]
    WF = 32
    wrd = lambda tile: [f"ds_read_b64_tr_b16 {vr(WF + 32*(tile&1) + 4*k + 2*pp, 2)}, v{WOA + 4*(k>>2) + (tile&3)} offset:{(32*((k>>1)&1) + 8*(k&1) + 4*pp)*1024 + 256*(tile>>2)}"
                        for k in range(8) for pp in range(2)]
    rd = wrd(0)
    OB = [192, 208, 132, 148]
    OB = [192, 208, 132, 80]
    def onorm(tau):
        L_ = [f"v_mul_f32 v{OB[tau]+r}, v{OB[tau]+r}, v{T}" for r in range(16)]
        L_ += [f"v_cvt_pk_bf16_f32 v{QF+8*tau+r}, v{OB[tau]+2*r}, v{OB[tau]+2*r+1}" for r in range(8)]
        return L_
    n = 0
    for tau in range(4):
        D = vr(OB[tau], 16)
        for k in range(3):
            if k == 0: mf(a, D, vr(VMF + 4 * tau, 4), vr(PM, 4), 0)
            else: mf(a, D, vr(VF + 8 * tau + 4 * (k - 1), 4), vr(PX + 4 * (k - 1), 4), D)
            for _ in range(2):
                if rd: a(rd.pop(0))
            if n == 6: sm += onorm(0)
            if n == 9: sm += onorm(1)
            for _ in range(6):
                if sm: a(sm.pop(0))
            n += 1
    for l in sm + onorm(2) + onorm(3): a(l)
    hs(7)
    a(f"""
    s_lshl_b32 s{sA}, s{sSeg}, 20
    s_lshl_b32 s{sA2}, s{sH}, 10
    s_add_u32 s{sA}, s{sA}, s{sA2}
    s_add_u32 s{sA}, s{sA}, {WS_PART}
    """)
    CT = 128
    def epi(tile):
        D = 192 + 16 * (tile & 1); c = CT + 8 * (tile & 1)
        L_ = []
        for u in range(2):
            L_ += [f"v_cvt_pk_bf16_f32 v{c+4*u+r}, v{D+8*u+2*r}, v{D+8*u+2*r+1}\nv_min_u32 v{c+4*u+r}, -2, v{c+4*u+r}" for r in range(4)]
        for u in range(2):
            L_ += [f"buffer_store_dwordx4 {vr(c+4*u,4)}, v{L16}, {WS}, s{sA} offen sc1\ns_add_u32 s{sA}, s{sA}, 32768"]
        return L_
    for tile in range(16):
        D = vr(192 + 16 * (tile & 1), 16)
        rd = wrd(tile + 1) if tile < 15 else []
        ep = epi(tile - 1) if tile else []
        for k in range(10):
            if k == 2: a("s_waitcnt lgkmcnt(0)")
            if k < 2: mf(a, D, ar(8 * tile + 4 * k, 4), vr(HF + 4 * k, 4), D if k else 0)
            else: mf(a, D, vr(WF + 32 * (tile & 1) + 4 * (k - 2), 4), vr(QF + 4 * (k - 2), 4), D)
            if k >= 2:
                for _ in range(2):
                    if rd: a(rd.pop(0))
            if ep and k >= 6 and len(ep) <= 2: a(ep.pop(0))
            elif ep and k >= 1 and len(ep) > 2:
                a(ep.pop(0)); a(ep.pop(0))
        assert not ep and not rd
    a("s_nop 12")
    for l in epi(15): a(l)
    hs(8)
    a(f"""
    s_lshl_b32 s{sA4}, s{sSeg}, 7
    s_add_u32 s{sA4}, s{sA4}, {WS_CNT}
    v_mov_b32 v220, 1
    """)
    if MINI: a(f"s_cmp_eq_u32 s{sB}, 7\ns_cselect_b32 s{sJ}, 3, s{sJ}\ns_cbranch_scc1 L_h_s7")
    a(f"s_cmp_lg_u32 s{sJ}, 0\ns_cbranch_scc1 L_h_sg")
    for r in range(32): a(f"v_accvgpr_read_b32 v{QF+r}, a{PQ+r}\nv_accvgpr_read_b32 v{VF+r}, a{PV+r}")
    for r in range(16): a(f"v_accvgpr_read_b32 v{SS+r}, a{PS+r}")
    for r in range(8): a(f"v_accvgpr_read_b32 v{HF+r}, a{PH+r}")
    a.label('L_h_sg')
    a(f"""
    v_accvgpr_read_b32 v{T}, a{PG}
    v_accvgpr_write_b32 a{PG}, v{G}
    s_xor_b32 s{sSeg}, s{sSeg}, 4
    s_add_u32 s{sJ}, s{sJ}, 1
    v_mov_b32 v{G}, v{T}
    {'' if P.get('sg', 1) else 'L_h_s7:'}
    s_waitcnt vmcnt(0)
    s_mov_b64 exec, 1
    buffer_atomic_add v220, off, {WS}, s{sA4}
    s_mov_b64 exec, -1
    s_cmp_eq_u32 s{sJ}, 1
    s_cbranch_scc1 L_h_seg
    {'L_h_s7:' if P.get('sg', 1) else ''}
    s_waitcnt vmcnt(0)
    """)
    SELR, XS, DS_ = 216, 208, 212
    XU, DU = 224, 232
    def red_prep(SELR, DS_):
        a(f"""
        s_lshl_b32 s{sA2}, s{sH}, 5
        v_lshlrev_b32 v{T+1}, 4, v{HH}
        v_lshl_add_u32 v{T+2}, v{VN}, 10, v{T+1}
        v_add_u32 v{T+1}, s{sA2}, v{T+1}
        global_load_dwordx4 {vr(DS_,4)}, v{T+1}, {sr(P_DSK,2)}
        v_lshlrev_b32 v{MX}, 1, v{T+2}
        v_bfe_u32 v{t}, v{LANE}, 2, 1
        v_bfe_u32 v{t+1}, v{LANE}, 3, 2
        v_and_b32 v{t+2}, 3, v{LANE}
        v_lshl_add_u32 v{t+1}, v{t+1}, 2, v{t+2}
        v_cmp_eq_u32 vcc, v{t}, v{HH}
        v_mov_b32 v{t+3}, 64
        s_mov_b32 s{sA2}, 0x3f80
        v_cndmask_b32 v{t+1}, v{t+3}, v{t+1}, vcc
        v_and_b32 v{t+2}, 1, v{t+1}
        v_lshlrev_b32 v{t+2}, 4, v{t+2}
        v_lshlrev_b32 v{t+2}, v{t+2}, s{sA2}
        v_lshrrev_b32 v{t+1}, 1, v{t+1}
        """)
        for d in range(4): a(f"v_cmp_eq_u32 vcc, {d}, v{t+1}\ns_nop 1\nv_cndmask_b32 v{SELR+d}, 0, v{t+2}, vcc")
    red_prep(SELR, DS_)
    a.label('L_h_red')
    a(f"""
    s_lshl_b32 s{sA3}, s{sSeg}, 15
    s_lshl_b32 s{sA2}, s{sH}, 5
    s_add_u32 s{sA3}, s{sA3}, s{sA2}
    buffer_load_dwordx4 {vr(XS,4)}, v{T+2}, {sr(S_X,4)}, s{sA3} offen
    s_lshl_b32 s{sA4}, s{sSeg}, 7
    s_add_u32 s{sA4}, s{sA4}, {WS_CNT}
    s_lshl_b32 s{sA}, s{sSeg}, 20
    s_lshl_b32 s{sA2}, s{sH}, 15
    s_add_u32 s{sA}, s{sA}, s{sA2}
    s_add_u32 s{sA}, s{sA}, {WS_PART}
    s_lshl_b32 s{sA3}, s{sA3}, 1
    v_lshlrev_b32 v221, 10, v{VN}
    s_cmp_ge_u32 s{sSeg}, {56 if P.get('sg', 1) else 64}
    s_cbranch_scc1 L_h_rf
    """)
    a.label('L_h_wc')
    a(f"""
    buffer_load_dword v220, off, {WS}, s{sA4} sc1
    s_waitcnt vmcnt(0)
    v_cmp_gt_u32 vcc, 32, v220
    s_cbranch_vccz L_h_rd
    """)
    poll_fail(a, 'L_h_wc', P.get('slc', 2))
    a.label('L_h_rf')
    a(f"""
    s_mov_b64 exec, 0xffffffff
    buffer_load_dword v220, v221, {WS}, s{sA} offen offset:1020 sc1
    s_add_u32 s{sSpin}, s{sSpin}, 1
    s_cmp_gt_u32 s{sSpin}, {HSPIN}
    s_cbranch_scc1 L_end
    s_waitcnt vmcnt(0)
    v_cmp_eq_u32 vcc, -1, v220
    s_mov_b64 exec, -1
    s_cbranch_vccz L_h_rd
    s_sleep 2
    s_branch L_h_rf
    """)
    a.label('L_h_rd')
    hs(9)
    for k in range(32):
        if k & 3 == 0: a(f"s_add_u32 s{sA2}, s{sA}, {1024*k}")
        a(f"buffer_load_dwordx4 {vr(32+4*k,4)}, v{L16}, {WS}, s{sA2} offen offset:{1024*(k&3)} sc1")
    a("s_waitcnt vmcnt(32)")
    unpack8(a, XU, XS); unpack8(a, DU, DS_)
    for r in range(8): a(f"v_mul_f32 v{XU+r}, v{XU+r}, v{DU+r}")
    a(f"v_mov_b32 v{T}, 0")
    for k in range(32):
        a(f"s_waitcnt vmcnt({31-k})")
        mf(a, vr(192, 16), vr(SELR, 4), vr(32 + 4 * k, 4), vr(192, 16) if k else 0)
        a(f"v_max3_u32 v{T}, v{T}, v{32+4*k}, v{33+4*k}\nv_max3_u32 v{T}, v{T}, v{34+4*k}, v{35+4*k}")
    a(f"v_cmp_eq_u32 vcc, -1, v{T}\ns_cbranch_vccnz L_h_rf\ns_nop 7")
    for r in range(8): a(f"v_fmac_f32 v{192+r}, v{XU+r}, v{G}")
    OF = P.get('of', '')
    a(f"""
    buffer_store_dwordx4 v[192:195], v{MX}, {sr(S_OUT,4)}, s{sA3} offen {OF}
    buffer_store_dwordx4 v[196:199], v{MX}, {sr(S_OUT,4)}, s{sA3} offen offset:16 {OF}
    v_accvgpr_read_b32 v{G}, a{PG}
    s_xor_b32 s{sSeg}, s{sSeg}, 4
    s_add_u32 s{sJ}, s{sJ}, 1
    s_cmp_eq_u32 s{sJ}, 3
    s_cbranch_scc1 L_h_red
    """)
    a.label('L_h_done')
    if P.get('stat'):
        a("s_waitcnt vmcnt(0)"); hs(10); a("s_waitcnt lgkmcnt(0)")
        for k in range(11): a(f"v_mov_b32 v{32+k}, s{74+2*k}")
        a(f"v_mov_b32 v43, s98\ns_lshl_b32 s{sA}, s{sB}, 5\ns_add_u32 s{sA}, s{sA}, s{sH}\ns_lshl_b32 s{sA}, s{sA}, 2\ns_add_u32 s{sA}, s{sA}, s{sW}\ns_lshl_b32 s{sA}, s{sA}, 6\ns_add_u32 s{sA}, s{sA}, {(49 << 20) + (512 << 10)}\ns_mov_b64 exec, 1")
        for q in range(3): a(f"buffer_store_dwordx4 {vr(32+4*q,4)}, v{L16}, {WS}, s{sA} offen offset:{16*q}")
        a("s_mov_b64 exec, -1")
    a(f"""
    s_cmp_ge_u32 s{sB}, 2
    s_cbranch_scc1 {'L_h_mini' if MINI else 'L_end'}
    {'s_sub_u32 s%d, 7, s%d' % (sB, sB) if P.get('r2', 0) else 's_add_u32 s%d, s%d, 6' % (sB, sB)}
    s_waitcnt vmcnt(0)
    s_branch L_h_again
    """)
    if not MINI: return
    a.label('L_h_mini')
    a(f"""
    s_sub_u32 s{sA3}, s{sB}, 2
    s_cmp_ge_u32 s{sA3}, 4
    s_cbranch_scc1 L_end
    s_add_u32 s{sSeg}, s{sB}, 58
    s_add_u32 s{sB}, s{sB}, 6
    s_mov_b32 s{sSpin}, 0
    s_lshl_b32 s{sA}, s{sW}, 8
    """)
    AQ, AV, AH, AC_2 = 128, 160, 192, ACW
    for i in range(8): a(f"v_add_u32 v{WOA+i}, s{sA}, v{WOA+i}")
    for tt in range(4):
        for k in range(8):
            for pp in range(2): a(f"ds_read_b64_tr_b16 {ar(32*tt + 4*k + 2*pp, 2)}, v{WOA + 4*(k>>2) + tt} offset:{(32*((k>>1)&1) + 8*(k&1) + 4*pp)*1024}")
    SELM, XM = 20, 24
    a("s_waitcnt lgkmcnt(0)")
    red_prep(SELM, 244)
    a(f"""
    s_lshl_b32 s{sWoo}, s{sSeg}, 15
    s_lshl_b32 s{sA2}, s{sH}, 5
    s_add_u32 s{sWoo}, s{sWoo}, s{sA2}
    buffer_load_dwordx4 v[240:243], v{T+2}, {sr(S_X,4)}, s{sWoo} offen
    s_lshl_b32 s{sWoo}, s{sWoo}, 1
    s_lshl_b32 s{sA}, s{sW}, 4
    v_add_u32 v{VKV}, s{sA}, v{MX}
    s_cmp_lg_u32 s{sW}, 0
    s_cbranch_scc1 L_m_st
    """)
    a.label('L_m_w0')
    a(f"buffer_load_dword v{T}, off, {DBG}, 0 offset:{DBG_DN + DBG_ST} sc1\ns_waitcnt vmcnt(0)\nv_cmp_eq_u32 vcc, 0, v{T}\ns_cbranch_vccz L_m_st")
    poll_fail(a, 'L_m_w0', 16)
    a.label('L_m_st')
    a(f"""
    s_waitcnt vmcnt(0)
    s_barrier
    s_lshl_b32 s{sA2}, s{sA3}, 5
    s_add_u32 s{sA2}, s{sA2}, s{sH}
    s_mul_i32 s{sA2}, s{sA2}, {23*1024}
    s_add_u32 s{sA2}, s{sA2}, {WS_ST}
    """)
    for q in range(23):
        dst = ar(AQ + 4 * q, 4) if q < 16 else vr(SS + 4 * (q - 16), 4) if q < 20 else ar(AH + 4 * (q - 20), 4) if q < 22 else vr(248, 4)
        a(f"buffer_load_dwordx4 {dst}, v{L16}, {WS}, s{sA2} offen offset:{1024*(q&3)} sc1")
        if q & 3 == 3: a(f"s_add_u32 s{sA2}, s{sA2}, 4096")
    unpack8(a, 32, 240); unpack8(a, 40, 244)
    for r in range(8): a(f"v_mul_f32 v{32+r}, v{32+r}, v{40+r}")
    a(f"s_bitcmp1_b32 s{sW}, 0\ns_cselect_b64 vcc, -1, 0\ns_mov_b32 s{sA4}, 0x3e0293ee\ns_waitcnt vmcnt(0)\nv_mov_b32 v{G}, v248")
    for r in range(4): a(f"v_cndmask_b32 v{XM+r}, v{32+r}, v{36+r}, vcc")
    for r in range(4): a(f"v_mul_f32 v{XM+r}, v{XM+r}, v{G}")
    LX = XA
    a(f"v_max3_f32 v{MX}, v{SS}, v{SS+1}, v{SS+2}")
    for r in range(3, 15, 2): a(f"v_max3_f32 v{MX}, v{MX}, v{SS+r}, v{SS+r+1}")
    a(f"""
    v_max_f32 v{MX}, v{MX}, v{SS+15}
    v_mov_b32 v{T+1}, v{MX}
    s_nop 1
    v_permlane32_swap_b32 v{MX}, v{T+1}
    v_max_f32 v{MX}, v{MX}, v{T+1}
    v_mul_f32 v{T}, s{sA4}, v{MX}
    """)
    for r in range(16): a(f"v_fma_f32 v{SS+r}, v{SS+r}, s{sA4}, -v{T}")
    for r in range(16): a(f"v_exp_f32 v{SS+r}, v{SS+r}")
    for r in range(8): a(f"v_cvt_pk_bf16_f32 v{248+r}, v{SS+2*r}, v{SS+2*r+1}")
    a(f"v_add_f32 v{LX}, v{SS}, v{SS+1}")
    for r in range(2, 16): a(f"v_add_f32 v{LX}, v{LX}, v{SS+r}")
    for tau in range(4):
        for u in range(2): mf(a, vr(32 + 16 * tau, 16), ar(AV + 8 * tau + 4 * u, 4), vr(248 + 4 * u, 4), vr(32 + 16 * tau, 16) if u else 0)
    a("s_nop 12")
    for r in range(32): a(f"v_cvt_pk_bf16_f32 v{96+r}, v{32+2*r}, v{33+2*r}")
    YC, YX = 96, 160
    a("s_nop 1")
    for tt in range(4):
        for k in range(8): mf(a, vr(YX + 16 * tt, 16), ar(32 * tt + 4 * k, 4), vr(96 + 4 * k, 4), vr(YX + 16 * tt, 16) if k else 0)
    a("s_nop 7")
    for tt in range(4):
        for k in range(2): mf(a, vr(YC + 16 * tt, 16), ar(AC_2 + 8 * tt + 4 * k, 4), ar(AH + 4 * k, 4), vr(YC + 16 * tt, 16) if k else 0)
    PMm, LDm = 240, 244
    a(f"""
    s_lshl_b32 s{sA}, s{sSeg}, 17
    s_lshl_b32 s{sA2}, s{sH}, 12
    s_add_u32 s{sA}, s{sA}, s{sA2}
    s_add_u32 s{sA}, s{sA}, {WS_KM}
    s_cmp_ge_u32 s{sSeg}, {P.get('mfp', 63)}
    s_cselect_b32 s{sA2}, {1 << 17}, 0
    s_sub_u32 s{sA2}, s{sA}, s{sA2}
    s_lshl_b32 s{sA3}, s{sW}, 10
    s_add_u32 s{sA}, s{sA}, s{sA3}
    s_add_u32 s{sA3}, s{sA3}, {H_K}
    v_add_u32 v{XA+1}, s{sA3}, v{L16}
    s_lshl_b32 s{sA3}, s{sW}, 12
    v_subrev_u32 v{VKM}, s{sA3}, v{VKM}
    v_subrev_u32 v{VVM}, s{sA3}, v{VVM}
    v_add_u32 v{T+2}, 2048, v{VKM}
    v_sub_f32 v{G}, 1.0, v{G}
    s_lshl_b32 s{sWo1}, s{sSeg}, 20
    s_add_u32 s{sWo1}, s{sWo1}, {WS_PART}
    s_lshl_b32 s{sA3}, s{sH}, 15
    s_add_u32 s{sWo2}, s{sWo1}, s{sA3}
    s_lshl_b32 s{sA3}, s{sW}, 13
    s_add_u32 s{sWo2}, s{sWo2}, s{sA3}
    s_add_u32 s{sSlot}, s{sWo2}, 4096
    s_lshl_b32 s{sA3}, s{sH}, 10
    s_add_u32 s{sWo1}, s{sWo1}, s{sA3}
    s_lshl_b32 s{sA3}, s{sW}, 18
    s_add_u32 s{sWo1}, s{sWo1}, s{sA3}
    """)
    for tau in range(4): a(f"v_mov_b64 {vr(VMF + 4*tau + 2, 2)}, 0")
    a(f"v_mov_b64 {vr(PMm+2,2)}, 0")
    a("s_getpc_b64 s[60:61]")
    a.label('L_m_pc')
    a(f"v_lshlrev_b32 v{T}, 3, v{L16}\nv_min_u32 v{T}, L_m_fin-L_m_pc, v{T}\nglobal_load_dword v{T}, v{T}, s[60:61]")
    hs(5)
    a.label('L_m_pr')
    a(f"buffer_load_dword v{T}, off, {WS}, s{sA2} offset:3072 sc1\ns_waitcnt vmcnt(0)\nv_cmp_eq_u32 vcc, -1, v{T}\ns_cbranch_vccz L_m_ld")
    poll_fail(a, 'L_m_pr', P.get('mps', 2))
    a.label('L_m_pf')
    a(f"s_add_u32 s{sSpin}, s{sSpin}, 1\ns_cmp_gt_u32 s{sSpin}, {HSPIN}\ns_cbranch_scc1 L_end")
    a.label('L_m_ld')
    a(f"""
    buffer_load_dwordx4 {vr(LDm,4)}, v{L16}, {WS}, s{sA} offen sc1
    s_waitcnt vmcnt(0)
    ds_write_b128 v{XA+1}, {vr(LDm,4)}
    v_max3_u32 v{T}, v{LDm}, v{LDm+1}, v{LDm+2}
    v_max_u32 v{T}, v{T}, v{LDm+3}
    v_cmp_eq_u32 vcc, -1, v{T}
    s_cbranch_vccnz L_m_pf
    s_waitcnt lgkmcnt(0)
    s_barrier
    """)
    for k in range(8):
        o = ((k >> 1) & 1) * 128 + (k & 1) * 32
        a(f"ds_read2_b64 {vr(KMF + 4*k, 4)}, v{VKM if k < 4 else T+2} offset0:{o} offset1:{o+16}")
    for tau in range(4): a(f"ds_read2st64_b32 {vr(VMF + 4*tau, 2)}, v{VVM} offset0:{4*tau} offset1:{4*tau+2}")
    for k in range(8):
        a(f"s_waitcnt lgkmcnt({11-k})")
        mf(a, vr(SM, 16), vr(KMF + 4 * k, 4), ar(AQ + 4 * k, 4), vr(SM, 16) if k else 0)
    hs(6)
    a(f"""
    s_waitcnt lgkmcnt(0)
    s_nop 11
    v_max3_f32 v{T}, v{MX}, v{SM}, v{SM+1}
    v_max3_f32 v{T}, v{T}, v{SM+2}, v{SM+3}
    v_mov_b32 v{T+1}, v{T}
    s_nop 1
    v_permlane32_swap_b32 v{T}, v{T+1}
    v_max_f32 v{T}, v{T}, v{T+1}
    v_mul_f32 v{T}, s{sA4}, v{T}
    """)
    for r in [SM, SM + 1, SM + 2, SM + 3, MX]: a(f"v_fma_f32 v{r}, v{r}, s{sA4}, -v{T}")
    for r in [SM, SM + 1, SM + 2, SM + 3, MX]: a(f"v_exp_f32 v{r}, v{r}")
    a(f"""
    v_add_f32 v{T}, v{SM}, v{SM+1}
    v_add_f32 v{T+1}, v{SM+2}, v{SM+3}
    v_fmac_f32 v{T}, v{LX}, v{MX}
    v_add_f32 v{T}, v{T}, v{T+1}
    v_mov_b32 v{T+1}, v{T}
    s_nop 1
    v_permlane32_swap_b32 v{T}, v{T+1}
    v_add_f32 v{T}, v{T}, v{T+1}
    v_rcp_f32 v{T}, v{T}
    s_nop 0
    v_mul_f32 v{T}, v{T}, v{G}
    """)
    for r in range(4): a(f"v_mul_f32 v{SM+r}, v{SM+r}, v{T}")
    a(f"v_cvt_pk_bf16_f32 v{PMm}, v{SM}, v{SM+1}\nv_cvt_pk_bf16_f32 v{PMm+1}, v{SM+2}, v{SM+3}\nv_mul_f32 v{MX}, v{MX}, v{T}")
    OBm = [32, 48, 80, 224]; OF = 160
    fm = [f"v_fmac_f32 v{YC+r}, v{YX+r}, v{MX}" for r in range(64)]
    a(fm.pop(0))
    for tau in range(4):
        mf(a, vr(OBm[tau], 16), vr(VMF + 4 * tau, 4), vr(PMm, 4), 0)
        for _ in range(6): a(fm.pop(0))
    for _ in range(7): a(fm.pop(0))
    cvo = lambda tau: [f"v_cvt_pk_bf16_f32 v{OF+8*tau+r}, v{OBm[tau]+2*r}, v{OBm[tau]+2*r+1}" for r in range(8)]
    for l in cvo(0): a(l)
    fill = cvo(1) + cvo(2) + cvo(3) + fm
    a(fill.pop(0)); a(fill.pop(0))
    CTm = 32
    def epim(tt):
        L_ = [f"v_cvt_pk_bf16_f32 v{CTm+8*tt+r}, v{YC+16*tt+2*r}, v{YC+16*tt+2*r+1}\nv_min_u32 v{CTm+8*tt+r}, -2, v{CTm+8*tt+r}" for r in range(8)]
        L_ += [f"buffer_store_dwordx4 {vr(CTm+8*tt+4*u,4)}, v{L16}, {WS}, s{sWo1} offen sc1\ns_add_u32 s{sWo1}, s{sWo1}, 32768" for u in range(2)]
        return L_
    order = [(tt, k) for k in range(8) for tt in range(2)] + [(2, k) for k in range(8)] + [(3, k) for k in range(8)]
    ep = []
    for n, (tt, k) in enumerate(order):
        mf(a, vr(YC + 16 * tt, 16), ar(32 * tt + 4 * k, 4), vr(OF + 4 * k, 4), vr(YC + 16 * tt, 16))
        for _ in range(6):
            if fill: a(fill.pop(0))
        if n == 17: ep += epim(0) + epim(1)
        if n == 25: ep += epim(2)
        for _ in range(3):
            if ep: a(ep.pop(0))
    assert not fill and not ep
    a("s_nop 12")
    for l in epim(3): a(l)
    hs(8)
    a(f"s_lshl_b32 s{sA3}, s{sW}, 11\ns_add_u32 s{sA3}, s{sA3}, {H_K + 4096}\nv_add_u32 v{T+1}, s{sA3}, v{L16}")
    a(f"s_lshl_b32 s{sA3}, s{sW}, 10\ns_add_u32 s{sA3}, s{sA3}, {H_K + 4096}\nv_add_u32 v{T+2}, s{sA3}, v{L16}")
    a(f"v_and_b32 v{MX}, 7, v{LANE}\nv_lshlrev_b32 v{MX}, 10, v{MX}")
    a(f"s_waitcnt vmcnt({P.get('mdr', 0)})")
    a(f"""
    s_cmp_ge_u32 s{sSeg}, {P.get('mth', 60)}
    s_cbranch_scc1 {'L_m_rd' if P.get('mg', 0) else 'L_m_rf'}
    s_barrier
    s_cmp_lg_u32 s{sW}, 0
    s_cbranch_scc1 L_m_c1
    s_lshl_b32 s{sA4}, s{sSeg}, 7
    s_add_u32 s{sA4}, s{sA4}, {WS_CNT}
    v_mov_b32 v{T}, 1
    s_mov_b64 exec, 1
    buffer_atomic_add v{T}, off, {WS}, s{sA4}
    s_mov_b64 exec, -1
    """)
    a.label('L_m_c0')
    a(f"buffer_load_dword v{T}, off, {WS}, s{sA4} sc1\ns_waitcnt vmcnt(0)\nv_cmp_gt_u32 vcc, 32, v{T}\ns_cbranch_vccz L_m_c1")
    poll_fail(a, 'L_m_c0', P.get('slc', 2))
    a.label('L_m_c1')
    a("s_barrier\ns_branch L_m_rd")
    a.label('L_m_rf')
    a(f"""
    s_mov_b64 exec, 0xff
    buffer_load_dword v{T}, v{MX}, {WS}, s{sWo2} offen offset:1020 sc1
    s_add_u32 s{sSpin}, s{sSpin}, 1
    s_cmp_gt_u32 s{sSpin}, {HSPIN}
    s_cbranch_scc1 L_end
    s_waitcnt vmcnt(0)
    v_cmp_eq_u32 vcc, -1, v{T}
    s_mov_b64 exec, -1
    s_cbranch_vccz L_m_rd
    s_sleep {P.get('msl', 1)}
    s_branch L_m_rf
    """)
    a.label('L_m_rd')
    hs(9)
    for k in range(8): a(f"buffer_load_dwordx4 {vr(96+4*k,4)}, v{L16}, {WS}, s{sWo2 if k < 4 else sSlot} offen offset:{1024*(k&3)} sc1")
    a(f"v_mov_b32 v{T}, 0")
    for k in range(8):
        a(f"s_waitcnt vmcnt({7-k})")
        mf(a, vr(64, 16), vr(SELM, 4), vr(96 + 4 * k, 4), vr(64, 16) if k else 0)
        a(f"v_max3_u32 v{T}, v{T}, v{96+4*k}, v{97+4*k}\nv_max3_u32 v{T}, v{T}, v{98+4*k}, v{99+4*k}")
    a(f"""
    v_cmp_eq_u32 vcc, -1, v{T}
    s_cbranch_vccnz L_m_rf
    s_nop 7
    ds_write_b128 v{T+1}, v[64:67]
    ds_write_b128 v{T+1}, v[68:71] offset:1024
    s_waitcnt lgkmcnt(0)
    s_barrier
    s_cmp_ge_u32 s{sW}, 2
    s_cbranch_scc1 L_m_fin
    """)
    for k in range(4): a(f"ds_read_b128 {vr(96+4*k,4)}, v{T+2} offset:{2048*k}")
    for k in range(4):
        a(f"s_waitcnt lgkmcnt({3-k})")
        a(f"v_pk_add_f32 {vr(XM,2)}, {vr(XM,2)}, {vr(96+4*k,2)}\nv_pk_add_f32 {vr(XM+2,2)}, {vr(XM+2,2)}, {vr(98+4*k,2)}")
    a(f"buffer_store_dwordx4 {vr(XM,4)}, v{VKV}, {sr(S_OUT,4)}, s{sWoo} offen")
    a.label('L_m_fin')
    a("s_branch L_h_done" if P.get('stat') else "s_branch L_hend" if P.get('dbgt') else "s_branch L_end")

if __name__ == '__main__':
    a = Asm(); h_once(a); helper_task(a, {})
    errs, ins = check(a.lines, 'helper')
    for e in errs: print(e)
    print(len(ins), ins[-1]['t'])
```

```python
from asmlib import *
from chain import WS_IMB, WS_KV, WS_KM, WS_SIZE, DBG_KVC, DBG_KV0, DBG_DN, DBG_ARM, ARM_ALL, S_WS, S_DBG, sH, sW, nops

WS_A = 50 << 20
WS_CNT = WS_A + (64 << 10)
WS_ST = 52 << 20
DBG_ST = 8
WS_PART = 64 << 20
H_GW = 131072
H_E = H_GW + 1024
H_C = H_E + 1024
H_K = H_C + 4096
S_X, S_W1, S_W2, S_WO, S_OUT = 8, 12, 16, 20, 28
sB = 34
sX0, sWo1, sWo2, sStI, sStS, sSlot, sCnt, sSeg, sSpin, sJ = 35, 36, 37, 38, 39, 40, 41, 42, 43, 44
sA, sA2, sA3, sA4 = 45, 46, 47, 48
sWoo = 49
sM = 50
P_LRE, P_LIM, P_LDT, P_DSK, P_GW, P_CRE, P_CIM = 58, 62, 64, 66, 68, 70, 72
LANE, L16, VX_, VW, VW2, XA, WA, BA, GA, VKV, G, VN, HH, VKM, VVM, WOA, MX = 0, 1, 2, 3, 4, 5, 7, 11, 13, 14, 15, 16, 17, 18, 19, 20, 28
T = 29
KF, VF, FR = 32, 96, 160
QF, SS, HF = 160, 224, 240
HSPIN = 1000000
LOG2E = 0x3fb8aa3b
def mf(a, D, A, B, C): a(f"v_mfma_f32_32x32x16_bf16 {D}, {A}, {B}, {C}")
WS = sr(S_WS, 4)

S_PF = 52
P_WQ, P_WK, P_WV = 74, 76, 78
sPH = 56
def h_ptrs(a):
    a(f"""
    s_load_dwordx2 {sr(S_X,2)}, s[0:1], 0
    s_load_dwordx2 {sr(P_WK,2)}, s[0:1], 96
    s_load_dwordx2 {sr(P_WV,2)}, s[0:1], 104
    s_load_dwordx2 {sr(S_WO,2)}, s[0:1], 112
    s_load_dwordx2 {sr(S_PF,2)}, s[0:1], 88
    s_mov_b32 s{S_X+2}, 2097152
    s_mov_b32 s{S_X+3}, 0x20000
    s_mov_b32 s{S_WO+2}, 4194304
    s_mov_b32 s{S_WO+3}, 0x20000
    s_mov_b32 s{S_OUT+2}, 4194304
    s_mov_b32 s{S_OUT+3}, 0x20000
    s_mov_b32 s{S_W1+2}, 4194304
    s_mov_b32 s{S_W1+3}, 0x20000
    s_mov_b32 s{S_W2+2}, 4194304
    s_mov_b32 s{S_W2+3}, 0x20000
    s_mov_b32 s{S_PF+2}, 4194304
    s_mov_b32 s{S_PF+3}, 0x20000
    """)
PFW, PFO = 253, 254
def h_prefetch(a, sR):
    a(f"""
    s_mov_b64 {sr(S_W1,2)}, {sr(P_WK,2)}
    s_mov_b64 {sr(S_W2,2)}, {sr(P_WV,2)}
    s_mul_i32 s{sPH}, s{sR}, {32*10923}
    s_lshr_b32 s{sPH}, s{sPH}, 16
    s_cmp_eq_u32 s{sR}, 6
    s_cselect_b32 s3, 0x200, s3
    s_lshl_b32 s{sA}, s{sPH}, 8
    s_lshl_b32 s{sA2}, s3, 17
    s_add_u32 s{sA}, s{sA}, s{sA2}
    v_lshrrev_b32 v1, 4, v0
    v_and_b32 v2, 15, v0
    v_cmp_gt_u32 vcc, 12, v2
    v_lshlrev_b32 v2, 7, v2
    v_lshl_add_u32 v1, v1, 13, v2
    v_add_u32 v1, s{sA}, v1
    v_bfrev_b32 v2, 1
    v_cndmask_b32 v{PFW}, v2, v1, vcc
    s_lshl_b32 s{sA}, s3, 14
    v_lshlrev_b32 v1, 7, v0
    v_cmp_gt_u32 vcc, 128, v0
    buffer_load_dword v255, v{PFW}, {sr(S_W2,4)}, 0 offen
    v_add_u32 v3, s{sA}, v1
    buffer_load_dword v255, v{PFW}, {sr(S_W1,4)}, 0 offen
    v_cndmask_b32 v3, v2, v3, vcc
    buffer_load_dword v255, v3, {sr(S_X,4)}, 0 offen
    s_load_dwordx2 {sr(S_OUT,2)}, s[0:1], 136
    s_load_dwordx2 {sr(P_LRE,2)}, s[0:1], 8
    s_load_dwordx2 {sr(P_LIM,2)}, s[0:1], 16
    s_load_dwordx2 {sr(P_LDT,2)}, s[0:1], 56
    s_load_dwordx2 {sr(P_DSK,2)}, s[0:1], 64
    s_load_dwordx2 {sr(P_GW,2)}, s[0:1], 128
    s_waitcnt lgkmcnt(0)
    s_load_dwordx2 {sr(P_CRE,2)}, s[0:1], 40
    s_load_dwordx2 {sr(P_CIM,2)}, s[0:1], 48
    s_cmp_ge_u32 s{sW}, 2
    s_cbranch_scc1 L_h_hi
    s_mov_b64 {sr(S_W2,2)}, {sr(S_PF,2)}
    s_mov_b32 s{sStI}, {4*8192}
    s_mov_b32 s{sStS}, {32*8192}
    s_branch L_h_sel
    """)
    a.label('L_h_hi')
    a(f"""
    s_mov_b64 {sr(S_W1,2)}, {sr(P_WV,2)}
    s_mov_b32 s{S_W2+2}, 524288
    s_mov_b32 s{sStI}, 0x10000000
    s_mov_b32 s{sStS}, 64
    s_cmp_eq_u32 s{sW}, 3
    s_cbranch_scc1 L_h_w3
    s_load_dwordx2 {sr(S_W2,2)}, s[0:1], 24
    s_branch L_h_sel
    """)
    a.label('L_h_w3')
    a(f"s_load_dwordx2 {sr(S_W2,2)}, s[0:1], 32")
    a.label('L_h_sel')
    a("s_waitcnt lgkmcnt(0)")
    return 3

def h_once(a):
    a(f"v_and_b32 v{LANE}, 63, v0")
    t = 32
    a(f"""
    v_lshlrev_b32 v{L16}, 4, v{LANE}
    v_and_b32 v{VN}, 31, v{LANE}
    v_lshrrev_b32 v{HH}, 5, v{LANE}
    v_lshrrev_b32 v{t}, 2, v{LANE}              ; r = lane>>2
    v_lshrrev_b32 v{t+1}, 4, v{LANE}            ; lane>>4
    v_and_b32 v{t+2}, 3, v{LANE}                ; c
    v_xor_b32 v{t+3}, v{t+2}, v{t+1}
    v_lshlrev_b32 v{t+3}, 4, v{t+3}
    v_lshl_add_u32 v{VX_}, v{t}, 10, v{t+3}
    v_and_b32 v{t+3}, 15, v{LANE}
    v_lshlrev_b32 v{t+4}, 2, v{t+1}
    v_xor_b32 v{t+3}, v{t+3}, v{t+4}
    v_lshlrev_b32 v{t+3}, 4, v{t+3}
    v_lshl_add_u32 v{VW}, v{t+1}, 13, v{t+3}
    s_cmp_ge_u32 s{sW}, 2
    s_cselect_b64 vcc, -1, 0
    v_cndmask_b32 v{VW2}, v{VW}, v{VX_}, vcc
    v_bfe_u32 v{t+5}, v{LANE}, 2, 1             ; h'
    v_bfe_u32 v{t+6}, v{LANE}, 3, 1             ; t
    v_bfe_u32 v{t+7}, v{LANE}, 4, 1             ; n>>4
    v_lshl_add_u32 v{t+8}, v{t+7}, 2, v{t+2}
    v_lshl_add_u32 v{t+8}, v{t+5}, 3, v{t+8}    ; i = 8h' + 4(n>>4) + (n&3)
    v_lshl_add_u32 v{t+9}, v{HH}, 5, v{t+8}
    v_lshlrev_b32 v{t+9}, 4, v{t+9}
    v_lshl_add_u32 v{VKV}, v{t+6}, 10, v{t+9}
    v_lshl_add_u32 v{t+9}, v{HH}, 4, v{t+8}
    v_lshlrev_b32 v{t+9}, 4, v{t+9}
    v_lshl_add_u32 v{t+9}, v{t+6}, 2, v{t+9}
    s_lshl_b32 s{sA}, s{sW}, 12
    s_add_u32 s{sA}, s{sA}, {H_K}
    v_add3_u32 v{VVM}, v{t+9}, s{sA}, 8
    v_and_b32 v{t+9}, 7, v{LANE}
    v_lshl_add_u32 v{t+9}, v{HH}, 5, v{t+9}
    v_lshl_add_u32 v{VKM}, v{t+9}, 4, s{sA}
    s_waitcnt lgkmcnt(0)
    """)

def xaddr(a, row, base_s, dst):
    a(f"""
    v_bfe_u32 v{T}, v{row}, 2, 2
    v_xor_b32 v{T}, v{T}, v{HH}
    v_lshlrev_b32 v{T}, 4, v{T}
    v_lshl_add_u32 v{T}, v{row}, 6, v{T}
    v_add_u32 v{dst}, {base_s}, v{T}
    v_xor_b32 v{dst+1}, 32, v{dst}
    """)

OPT = {}
sXC, sClr, sMode = 57, 3, 2
def dma_part(part, kind):
    G_ = []
    for i in range(2 if kind == 'xh' else 4):
        o = (16384 if part == 'B' else 0) + 1024 * i
        L = [f"s_add_u32 m0, s{sSlot}, {o}"]
        if kind == 'wo': L += [f"s_add_u32 s{sA}, s{sWoo}, {o}", f"buffer_load_dwordx4 v{WOA + i}, {sr(S_WO,4)}, s{sA} offen lds"]
        elif part == 'A': L += [f"s_add_u32 s{sA}, s{sXC}, {(i >> 1) * 131072 + (i & 1) * 16384}", f"buffer_load_dwordx4 v{VX_}, {sr(S_X,4)}, s{sA} offen lds"]
        elif kind == 'p1': L += [f"s_add_u32 s{sA}, s{sWo1}, {4*8192*i}", f"buffer_load_dwordx4 v{VW}, {sr(S_W1,4)}, s{sA} offen lds"]
        else: L += [f"s_mov_b32 s{sA2}, s{sWo2}" if i == 0 else f"s_add_u32 s{sA2}, s{sA2}, s{sStI}", f"buffer_load_dwordx4 v{VW2}, {sr(S_W2,4)}, s{sA2} offen lds"]
        G_.append(L)
    if part == 'A' and kind != 'wo': G_[-1] += [f"s_add_u32 s{sXC}, s{sXC}, 64", f"s_and_b32 s{sXC}, s{sXC}, 0xfffffbff"]
    if part == 'B':
        G_[-1] += [{'p1': f"s_add_u32 s{sWo1}, s{sWo1}, {32*8192}", 'p2': f"s_add_u32 s{sWo2}, s{sWo2}, s{sStS}", 'wo': f"s_add_u32 s{sWoo}, s{sWoo}, 32768"}[kind]]
        G_[-1] += [f"s_add_u32 s{sSlot}, s{sSlot}, 32768", f"s_and_b32 s{sSlot}, s{sSlot}, 0x1ffff"]
    return G_

def frag_reads(p, k, fs, nj=2):
    b = FR + 40 * fs
    L = [f"ds_read_b128 {vr(b + 4*j, 4)}, v{XA + k} offset:{2048*j}" for j in range(nj)]
    for m in range(2 if p == 1 else 1):
        for tau in range(4):
            for pp in range(2):
                L.append(f"ds_read_b64_tr_b16 {vr(b + 8 + 16*m + 4*tau + 2*pp, 2)}, v{WA + tau} offset:{8192*m + (16*k + 4*pp)*256}")
    if p == 2:
        L.append(f"ds_read_b128 {vr(b + 24, 4)}, v{BA + k}")
        L.append(f"ds_read_b128 {vr(b + 28, 4)}, v{GA} offset:{32*k}")
    return L
def mfmas(p, fs, nj=2):
    b = FR + 40 * fs
    L = []
    x = lambda j: vr(b + 4 * j, 4)
    for tau in range(4):
        for j in range(nj):
            D = ar(64 * j + 16 * tau, 16); L.append((D, vr(b + 8 + 4 * tau, 4), x(j), D))
    if p == 1:
        for tau in range(4):
            for j in range(nj):
                D = ar(128 + 64 * j + 16 * tau, 16); L.append((D, x(j), vr(b + 24 + 4 * tau, 4), D))
    else:
        for q in range(2):
            for j in range(2):
                D = ar(128 + 32 * q + 16 * j, 16); L.append((D, vr(b + 24 + 4 * q, 4), x(j), D))
    return L
def adv_addr(p):
    L = []
    regs_ = [XA, XA + 1] + [WA + t for t in range(4)] + ([BA, BA + 1] if p == 2 else [])
    for r in regs_: L += [f"v_add_u32 v{r}, 0x8000, v{r}", f"v_and_b32 v{r}, 0x1ffff, v{r}"]
    if p == 2: L.append(f"v_add_u32 v{GA}, 64, v{GA}")
    return L

def stage_loop(a, name, p, kB, kA, n, nj=2, vmn=None):
    if n != 1:
        a(f"s_mov_b32 s{sCnt}, {n}")
        a.label(name)
    a("s_waitcnt lgkmcnt(0)")
    rd = frag_reads(p, 1, 1, nj); av = adv_addr(p); dg = dma_part('B', kB)
    M = mfmas(p, 0, nj); q = len(M) // 4
    for i, m in enumerate(M):
        mf(a, *m)
        for _ in range(2 if nj == 2 else (2 if i & 1 else 5)):
            if rd: a(rd.pop(0))
        if i % q == 1:
            for l in dg.pop(0): a(l)
        elif not rd:
            for _ in range(5 if nj == 2 else 6):
                if av: a(av.pop(0))
    assert not rd and not av and not dg
    a(f"s_waitcnt vmcnt({vmn or (18 if p == 1 else 16)}) lgkmcnt(0)\ns_barrier")
    rd = frag_reads(p, 0, 0, nj); dg = dma_part('A', kA)
    M = mfmas(p, 1, nj)
    for i, m in enumerate(M):
        mf(a, *m)
        for _ in range(2 if nj == 2 else (2 if i & 1 else 5)):
            if rd: a(rd.pop(0))
        if i % q == 1 and dg:
            for l in dg.pop(0): a(l)
        if p == 1 and i == (11 if nj == 2 else 99): a(f"buffer_store_dwordx4 v[44:47], v{L16}, {WS}, s{sClr} offen sc1\ns_add_u32 s{sClr}, s{sClr}, 1024")
        if p == 1 and i == (12 if nj == 2 else 99): a(f"s_and_b32 s{sA}, s{sClr}, 0xfff\ns_cselect_b32 s{sA}, 0, s{sX0}\ns_cselect_b32 s{sX0}, s{sX0}, 0x20000000\ns_add_u32 s{sClr}, s{sClr}, s{sA}")
        if i == len(M) - 1 and n != 1: a(f"s_sub_u32 s{sCnt}, s{sCnt}, 1\ns_cmp_lg_u32 s{sCnt}, 0")
    assert not rd and not dg
    if n != 1: a(f"s_cbranch_scc1 {name}")

SLEEP = [4]
def poll_fail(a, back, sl=None):
    a(f"s_add_u32 s{sSpin}, s{sSpin}, 1\ns_cmp_gt_u32 s{sSpin}, {HSPIN}\ns_cbranch_scc1 L_end\ns_sleep {sl or SLEEP[0]}\ns_branch {back}")

def unpack8(a, dst, src):
    for j in range(4):
        a(f"v_lshlrev_b32 v{dst+2*j}, 16, v{src+j}\nv_and_b32 v{dst+2*j+1}, 0xffff0000, v{src+j}")

def pw(a, LR, LI, A2, B2, n, cnt, tmp):
    for j in range(cnt):
        if n is None: a(f"v_exp_f32 v{tmp+j}, v{A2+j}\nv_fract_f32 v{LI+j}, v{B2+j}")
        else: a(f"v_mul_f32 v{tmp+j}, {n}, v{A2+j}\nv_mul_f32 v{LI+j}, {n}, v{B2+j}\nv_exp_f32 v{tmp+j}, v{tmp+j}\nv_fract_f32 v{LI+j}, v{LI+j}")
    for j in range(cnt): a(f"v_cos_f32 v{LR+j}, v{LI+j}\nv_sin_f32 v{LI+j}, v{LI+j}")
    a("s_nop 0")
    for j in range(cnt): a(f"v_mul_f32 v{LR+j}, v{LR+j}, v{tmp+j}\nv_mul_f32 v{LI+j}, v{LI+j}, v{tmp+j}")

def dtprep(a, A2, B2, DT, cnt):
    for j in range(cnt): a(f"v_mul_f32 v{DT+j}, {LOG2E}, v{DT+j}")
    for j in range(cnt): a(f"v_exp_f32 v{DT+j}, v{DT+j}")
    a("s_nop 0")
    for j in range(cnt): a(f"v_cvt_pk_bf16_f32 v{DT+j}, v{DT+j}, v{DT+j}")
    for j in range(cnt): a(f"v_and_b32 v{DT+j}, 0xffff0000, v{DT+j}")
    for j in range(cnt):
        a(f"v_mul_f32 v{A2+j}, v{DT+j}, v{A2+j}\nv_mul_f32 v{B2+j}, v{DT+j}, v{B2+j}")
        a(f"v_mul_f32 v{A2+j}, {LOG2E}, v{A2+j}\nv_mul_f32 v{B2+j}, 0.15915494, v{B2+j}")

def h_static(a):
    t = 32
    a(f"""
    v_bfe_u32 v{t}, v{LANE}, 2, 1
    v_bfe_u32 v{t+1}, v{LANE}, 3, 2
    v_and_b32 v{t+2}, 3, v{LANE}
    v_lshl_add_u32 v{t+3}, v{t+1}, 2, v{t+2}
    v_lshl_add_u32 v{t+3}, v{t}, 4, v{t+3}
    s_lshl_b32 s{sA}, s{sW}, 12
    """)
    xaddr(a, t + 3, f"s{sA}", XA)
    a(f"""
    v_bfe_u32 v{t+4}, v{LANE}, 2, 2             ; r'
    v_bfe_u32 v{t+5}, v{LANE}, 4, 1             ; half
    v_and_b32 v{t+6}, 1, v{LANE}
    v_bfe_u32 v{t+7}, v{LANE}, 1, 1
    v_lshl_add_u32 v{t+8}, v{t+5}, 1, v{t+7}
    v_lshl_add_u32 v{t+8}, v{t+6}, 2, v{t+8}
    v_lshlrev_b32 v{t+8}, 3, v{t+8}
    v_lshl_add_u32 v{t+9}, v{HH}, 3, v{t+4}
    v_lshl_add_u32 v{t+8}, v{t+9}, 8, v{t+8}
    v_lshl_add_u32 v{t+8}, v{t+4}, 6, v{t+8}
    v_add_u32 v{WA}, 16384, v{t+8}
    """)
    for tau in range(1, 4): a(f"v_xor_b32 v{WA+tau}, {64*tau}, v{WA}")
    for i in range(4): a(f"v_xor_b32 v{WOA+i}, {64*i}, v{L16}")
    for i in range(4): a(f"v_mov_b32 v{t+12+i}, -1")
    for i in range(256): a(f"v_accvgpr_write_b32 a{i}, 0")

def helper_task(a, P):
    DBG = sr(S_DBG, 4)
    SLEEP[0] = P.get('sleep', 4); OPT.clear(); OPT.update(P)
    def hs(k, alt=0):
        if P.get('alt') and not alt:
            if k in (4, 5, 6): return
            k = {2: 5, 3: 6}.get(k, k)
        if P.get('stat'): a(f"{'s_memtime' if P.get('hcyc') else 's_memrealtime'} s[{74+2*k}:{75+2*k}]")
    def signal(tag, off, so, nv, last='31', inc=1):
        a(f"""
        s_waitcnt vmcnt({nv})
        s_barrier
        s_cmp_lg_u32 s{sW}, 0
        s_cbranch_scc1 L_h_ns{tag}
        s_lshl_b32 s{sA}, s{sB}, 2
        v_mov_b32 v{T}, {inc}
        s_mov_b64 exec, 1
        buffer_atomic_add v{T}, off, {DBG}, {so} offset:{off} sc0
        v_mov_b32 v{T+1}, 32
        s_waitcnt vmcnt(0)
        v_cmp_eq_u32 vcc, {last}, v{T}
        s_cbranch_vccz L_h_ng{tag}
        buffer_store_dword v{T+1}, off, {DBG}, {so} offset:{off + DBG_DN} sc1
        """)
        a.label(f'L_h_ng{tag}')
        a("s_mov_b64 exec, -1")
        a.label(f'L_h_ns{tag}')
    a.label('L_h_task')
    hs(0)
    t = 32
    a(f"""
    s_lshl_b32 s{sSeg}, s{sB}, 3
    s_cmp_eq_u32 s{sMode}, 2
    s_cselect_b32 s{sSeg}, 4, s{sSeg}
    s_add_u32 s{sSeg}, s{sSeg}, s{sW}
    s_lshl_b32 s{sXC}, s{sSeg}, 15
    s_lshl_b32 s{sWo1}, s{sH}, 8
    s_and_b32 s{sA}, s{sW}, 1
    s_lshl_b32 s{sA}, s{sA}, 17
    s_add_u32 s{sWo1}, s{sWo1}, s{sA}
    s_lshl_b32 s{sA}, s{sH}, 14
    s_cmp_ge_u32 s{sW}, 2
    s_cselect_b32 s{sWo2}, s{sA}, s{sWo1}
    s_lshl_b32 s{sSlot}, s{sW}, 12
    s_lshl_b32 s{sWoo}, s{sH}, 17
    s_add_u32 s{sWoo}, s{sWoo}, s{sSlot}
    s_mov_b32 s{sSpin}, 0
    """)
    NE = P.get('nearly', 2)
    if P.get('pfw'): a("s_waitcnt vmcnt(0)"); hs(0)
    a(f"""
    s_cmp_lg_u32 s{sB}, 8
    s_cbranch_scc1 L_h_nse
    v_lshlrev_b32 v{T+2}, 7, v{LANE}
    s_lshl_b32 s{sA}, s{sH}, 14
    buffer_load_dword v255, v{T+2}, {sr(S_W2,4)}, s{sA} offen
    s_add_u32 s{sA2}, s{sA}, 8192
    buffer_load_dword v255, v{T+2}, {sr(S_W2,4)}, s{sA2} offen
    s_and_b32 s{sA2}, s{sW}, 1
    s_lshl_b32 s{sA2}, s{sA2}, 13
    s_add_u32 s{sA}, s{sA}, s{sA2}
    v_add_u32 v{T+2}, s{sA}, v{T+2}
    global_load_dword v255, v{T+2}, {sr(P_CRE,2)}
    global_load_dword v255, v{T+2}, {sr(P_CIM,2)}
    s_lshl_b32 s{sA}, s{sW}, 17
    s_lshl_b32 s{sA2}, s{sH}, 12
    s_add_u32 s{sA}, s{sA}, s{sA2}
    s_add_u32 s{sA}, s{sA}, {WS_KM}
    s_add_u32 s{sA2}, s{sA}, {4 << 17}
    """)
    for k in range(8): a(f"buffer_store_dwordx4 v[44:47], v{L16}, {WS}, s{sA if k < 4 else sA2} offen offset:{1024*(k&3)} sc1")
    signal('e', DBG_ARM, '0', 0, '-1')
    a(f"""
    s_cmp_eq_u32 s{sB}, 8
    s_cselect_b32 s{sA3}, 5, s{sB}
    s_cselect_b32 s{sA2}, 4, {P.get('nq', 0) if P.get('tb', 1) else 3}
    s_sub_u32 s{sA3}, s{sA3}, 2
    s_cmp_ge_u32 s{sA3}, s{sA2}
    s_cbranch_scc1 L_h_nt
    s_waitcnt vmcnt(0)
    s_lshl_b32 s{sA}, s{sW}, 6
    v_add_u32 v{T}, s{sA}, v{LANE}
    v_lshlrev_b32 v{T+1}, 7, v{T}
    v_lshrrev_b32 v{T+2}, 1, v{T}
    v_and_b32 v{T}, 128, v{T+1}
    v_lshl_add_u32 v{T}, v{T+2}, 13, v{T}
    s_lshl_b32 s{sA}, s{sA3}, 20
    s_lshl_b32 s{sA2}, s{sH}, 8
    s_add_u32 s{sA}, s{sA}, s{sA2}
    buffer_load_dword v255, v{T}, {sr(S_PF,4)}, s{sA} offen
    s_waitcnt vmcnt(0)
    s_lshl_b32 s{sA}, s{sA3}, 15
    s_lshl_b32 s{sA2}, s{sH}, 17
    s_add_u32 s{sA}, s{sA}, s{sA2}
    buffer_load_dword v255, v{T+1}, {sr(S_WO,4)}, s{sA} offen
    s_waitcnt vmcnt(0)
    s_cmp_lg_u32 s{sB}, 8
    s_cbranch_scc1 L_h_nt
    s_lshl_b32 s{sA}, s{sH}, 16
    buffer_load_dword v255, v{T+1}, {sr(S_X,4)}, s{sA} offen
    s_add_u32 s{sA}, s{sA}, 32768
    buffer_load_dword v255, v{T+1}, {sr(S_X,4)}, s{sA} offen
    """)
    if P.get('spinT'):
        a(f"s_cmp_lg_u32 s{sH}, 0\ns_cbranch_scc1 L_end\ns_cmp_lg_u32 s{sW}, 0\ns_cbranch_scc1 L_end")
        a(f"s_mov_b32 s74, {P['spinT']*100}")
        if P.get('ev'):
            a.label('L_ev0')
            a(f"s_sleep 4\nbuffer_load_dword v{T}, off, {DBG}, 0 offset:{DBG_ARM} sc1\ns_waitcnt vmcnt(0)\nv_cmp_gt_u32 vcc, {ARM_ALL[P.get('tb', 1)]}, v{T}\ns_cbranch_vccnz L_ev0")
            if P['ev'].startswith('km'):
                n_ = int(P['ev'][2:]); srd_, off_, bad = WS, WS_KM + (n_ << 17), -1
                if n_ >= 8:
                    a.label('L_ev2')
                    a(f"s_sleep 16\nbuffer_load_dword v{T}, off, {DBG}, 0 offset:{DBG_DN + DBG_KVC + 4 * (n_ >> 3)} sc1\ns_waitcnt vmcnt(0)\nv_cmp_eq_u32 vcc, 0, v{T}\ns_cbranch_vccnz L_ev2")
            elif P['ev'].startswith('dn'): srd_, off_, bad = DBG, DBG_DN + DBG_KVC + 4 * int(P['ev'][2:]), 0
            else: srd_, off_, bad = {'arm': (DBG, DBG_ARM, 0), 'kv0': (DBG, DBG_DN + DBG_KV0, 0), 'm1': (WS, WS_IMB + 8188, -1), 'kvd': (WS, WS_KV + 16380, -1)}[P['ev']]
            a(f"s_mov_b32 s75, {off_}")
            a.label('L_ev1')
            a(f"s_sleep 2\nbuffer_load_dword v{T}, off, {srd_}, s75 sc1\ns_waitcnt vmcnt(0)\nv_cmp_eq_u32 vcc, {bad}, v{T}\ns_cbranch_vccnz L_ev1")
            a("s_memrealtime s[72:73]\ns_waitcnt lgkmcnt(0)\ns_sub_u32 s72, s72, s98\ns_add_u32 s74, s74, s72")
        a.label('L_spinT')
        a(f"s_sleep 1\ns_memrealtime s[72:73]\ns_waitcnt lgkmcnt(0)\ns_sub_u32 s72, s72, s98\ns_cmp_lt_u32 s72, s74\ns_cbranch_scc1 L_spinT")
    a("s_branch L_end")
    a.label('L_h_nt')
    a(f"s_cmp_eq_u32 s{sMode}, 0\ns_cbranch_scc1 L_h_d2")
    for kA, lab in (('xh', 'L_h_d2'), ('x', 'L_h_d3')):
        for st in range(4):
            for g_ in dma_part('A', kA) + (dma_part('B', 'p1') if st < 3 else []):
                for l in g_: a(l)
        if kA == 'xh': a("s_branch L_h_d3")
        a.label(lab)
    a(f"""
    s_lshl_b32 s{sA}, s{sSeg}, 17
    s_lshl_b32 s{sA2}, s{sH}, 12
    s_add_u32 s{sA}, s{sA}, s{sA2}
    s_add_u32 s{sClr}, s{sA}, {WS_KM}
    s_cmp_ge_u32 s{sMode}, 1
    s_cselect_b32 s{sClr}, 0x70000000, s{sClr}
    s_mov_b32 s{sX0}, {(4 << 17) - 4096}
    """)
    a(f"""
    s_lshl_b32 s{sA}, s{sB}, 5
    s_add_u32 s{sA}, s{sA}, s{sH}
    s_lshl_b32 s{sA}, s{sA}, 7
    s_add_u32 s{sA}, s{sA}, {WS_A}
    s_mov_b64 exec, 0xff
    buffer_store_dwordx4 {vr(t+12,4)}, v{L16}, {WS}, s{sA} offen sc1
    s_mov_b64 exec, -1
    s_lshl_b32 s{sA}, s{sH}, 2
    s_add_u32 s{sA}, s{sA}, s{sSeg}
    s_lshl_b32 s{sA}, s{sA}, 7
    s_add_u32 s{sA}, s{sA}, {WS_CNT}
    s_add_u32 s{sA2}, s{sH}, s{sMode}
    s_cmp_eq_u32 s{sMode}, 1
    s_cselect_b32 s{sA2}, s{sH}, s{sA2}
    s_cmp_lt_u32 s{sA2}, 2
    s_cselect_b32 s{sA}, s{sA}, 0x70000000
    v_mov_b32 v{t+16}, 0
    s_mov_b64 exec, 1
    buffer_store_dword v{t+16}, v{t+16}, {WS}, s{sA} offen sc1
    s_mov_b64 exec, -1
    global_load_dwordx4 {vr(t+20,4)}, v{L16}, {sr(P_GW,2)}
    """)
    a(f"s_cmp_lt_u32 s{sB}, {NE}\ns_cbranch_scc1 L_h_go\ns_cmp_eq_u32 s{sMode}, 2\ns_cbranch_scc1 L_h_go")
    a(f"v_lshlrev_b32 v{T}, 7, v{LANE}\ns_and_b32 s{sA2}, s{sXC}, 0xfffffc00\ns_cmp_ge_u32 s{sB}, 6\ns_cbranch_scc1 L_h_x2\ns_waitcnt vmcnt(0)")
    a.label('L_h_x2')
    for k in range(8 if P.get('xt', 1) else 0): a(f"s_add_u32 s{sA}, s{sA2}, {(k >> 2) * 131072 + (k & 3) * 8192}\nbuffer_load_dword v255, v{T}, {sr(S_X,4)}, s{sA} offen")
    a(f"""
    s_cmp_lg_u32 s{sB}, 4
    s_cbranch_scc1 L_h_n7
    s_add_u32 s{sA}, s{sW}, 56
    s_lshl_b32 s{sA}, s{sA}, 20
    s_lshl_b32 s{sA2}, s{sH}, 15
    s_add_u32 s{sA}, s{sA}, s{sA2}
    s_add_u32 s{sA}, s{sA}, {WS_PART}
    s_mov_b32 s{sCnt}, 8
    """)
    if P.get('r8w'):
        a(f"s_cmp_lg_u32 s{sW}, 0\ns_cbranch_scc1 L_h_c6")
        a.label('L_h_c5')
        a(f"buffer_load_dword v{T}, off, {DBG}, 0 offset:{DBG_DN + DBG_KVC + 4 * (P['r8w'] - 1)} sc1\ns_waitcnt vmcnt(0)\nv_cmp_eq_u32 vcc, 0, v{T}\ns_cbranch_vccz L_h_c6")
        poll_fail(a, 'L_h_c5', 16)
        a.label('L_h_c6')
        a("s_barrier")
    a.label('L_h_c7')
    if P.get('r8s'): a("s_waitcnt vmcnt(0)")
    a(f"s_add_u32 s{sA2}, s{sA}, {4 << 20}")
    for k in range(8): a(f"buffer_store_dwordx4 v[44:47], v{L16}, {WS}, s{sA if k < 4 else sA2} offen offset:{1024*(k&3)} sc1")
    a(f"s_add_u32 s{sA}, s{sA}, 4096\ns_sub_u32 s{sCnt}, s{sCnt}, 1\ns_cmp_lg_u32 s{sCnt}, 0\ns_cbranch_scc1 L_h_c7")
    a.label('L_h_n7')
    a(f"s_sub_i32 s{sA3}, s{sB}, {P.get('lag', 2)}\ns_max_i32 s{sA3}, s{sA3}, 0\ns_lshl_b32 s{sA3}, s{sA3}, 2\ns_cmp_ge_u32 s{sB}, 6\ns_cbranch_scc1 L_h_go")
    a(f"s_cmp_lg_u32 s{sW}, 0\ns_cbranch_scc1 L_h_go")
    a.label('L_h_w0')
    a(f"buffer_load_dword v{T}, off, {DBG}, s{sA3} offset:{DBG_DN + DBG_KVC} sc1\ns_waitcnt vmcnt(0)\nv_cmp_eq_u32 vcc, 0, v{T}\ns_cbranch_vccz L_h_go")
    poll_fail(a, 'L_h_w0', 8)
    a.label('L_h_go')
    a(f"s_waitcnt vmcnt({14 + 3})\ns_barrier")
    hs(1)
    for l in frag_reads(1, 0, 0): a(l)
    gw = f"v_add_u32 v{T}, {H_GW}, v{L16}\nds_write_b128 v{T}, {vr(t+20,4)}"
    a(f"s_cmp_eq_u32 s{sMode}, 0\ns_cbranch_scc1 L_h_full")
    stage_loop(a, 'L_h_q1a', 1, 'p1', 'xh', 12, 1, 12)
    stage_loop(a, 'L_h_q1c', 1, 'p1', 'x', 1, 1, 12)
    a(gw)
    kv0 = f"buffer_load_dword v{G}, off, {DBG}, 0 offset:{DBG_ARM} sc1"
    a(f"v_mov_b32 v{G}, 64\ns_add_u32 s{sA}, s{sW}, s{sMode}\ns_cmp_lg_u32 s{sA}, 1\ns_cbranch_scc1 L_h_a1"); a(kv0)
    a.label('L_h_a1')
    stage_loop(a, 'L_h_q1b', 1, 'p2', 'x', 3, 1, 14)
    a.label('L_h_a0')
    a(f"v_cmp_gt_u32 vcc, {ARM_ALL[P.get('tb', 1)]}, v{G}\ns_cbranch_vccz L_h_e1"); a(kv0); a("s_waitcnt vmcnt(0)")
    poll_fail(a, 'L_h_a0', 4)
    a.label('L_h_full')
    stage_loop(a, 'L_h_p1a', 1, 'p1', 'x', 13)
    a(gw)
    stage_loop(a, 'L_h_p1b', 1, 'p2', 'x', 3)
    a.label('L_h_e1')
    hs(2)
    a(f"""
    s_lshl_b32 s{sA3}, s{sSeg}, 19
    s_lshl_b32 s{sA2}, s{sH}, 14
    s_add_u32 s{sA3}, s{sA3}, s{sA2}
    s_add_u32 s{sA3}, s{sA3}, {WS_KV}
    s_waitcnt lgkmcnt(0)
    s_nop 7
    """)
    TM = 240
    def kv_store(j, m, tau):
        dst = (KF if m == 0 else VF) + 32 * j + 8 * tau
        a(f"s_add_u32 s{sA}, s{sA3}, {j * (4 << 19) + 4096 * tau}")
        for u in range(2): a(f"buffer_store_dwordx4 {vr(dst+4*u,4)}, v{VKV}, {WS}, s{sA} offen offset:{2048*m + 256*u} sc1")
    for j in range(2):
        for m in range(2):
            for tau in range(4):
                src = 128 * m + 64 * j + 16 * tau; dst = (KF if m == 0 else VF) + 32 * j + 8 * tau
                for r in range(16): a(f"v_accvgpr_read_b32 v{TM+r}, a{src+r}")
                for r in range(8): a(f"v_cvt_pk_bf16_f32 v{dst+r}, v{TM+2*r}, v{TM+2*r+1}")
                if j == 0:
                    a(f"s_cmp_eq_u32 s{sMode}, 0\ns_cbranch_scc1 L_h_sk{j}{m}{tau}")
                    kv_store(j, m, tau)
                    a.label(f'L_h_sk{j}{m}{tau}')
        if j == 0:
            a(f"s_cmp_eq_u32 s{sMode}, 0\ns_cbranch_scc1 L_h_j1\ns_lshl_b32 s{sA2}, s{sMode}, 2")
            if P.get('dlyh'): a(f"s_sleep {P['dlyh']}")
            signal('a', DBG_KV0 - 4, f"s{sA2}", 0)
            a(f"s_cmp_eq_u32 s{sMode}, 1\ns_cbranch_scc1 L_h_nj1\ns_mov_b32 s{sMode}, 0\ns_waitcnt vmcnt(0) lgkmcnt(0)\ns_branch L_h_again")
            a.label('L_h_j1')
    a.label('L_h_nj1')
    for i in range(192): a(f"v_accvgpr_write_b32 a{i}, 0")
    a(f"s_lshl_b32 s{sA}, s{sW}, 12")
    xaddr(a, VN, f"s{sA}", XA)
    a(f"""
    v_bfe_u32 v{TM}, v{LANE}, 2, 1
    v_bfe_u32 v{TM+1}, v{LANE}, 3, 1
    v_and_b32 v{TM+2}, 3, v{LANE}
    v_lshl_add_u32 v{TM+2}, v{TM+1}, 2, v{TM+2}
    v_lshl_add_u32 v{TM+2}, v{TM}, 3, v{TM+2}      ; ch
    v_bfe_u32 v{TM+3}, v{LANE}, 4, 1
    v_lshlrev_b32 v{TM+3}, 12, v{TM+3}
    v_add_u32 v{TM+3}, 24576, v{TM+3}
    v_lshlrev_b32 v{GA}, 4, v{HH}
    v_add_u32 v{GA}, {H_GW}, v{GA}
    """)
    xaddr(a, TM + 2, f"v{TM+3}", BA)
    hs(3)
    for l in frag_reads(2, 0, 0): a(l)
    a(f"s_lshl_b32 s{sA4}, s{sB}, 1\ns_and_b32 s{sA4}, s{sA4}, {2 if P.get('lag', 2) == 2 else 14}\ns_sub_i32 s{sA4}, s{sA4}, {-1 if P.get('lag', 2) == 2 else 3}\ns_max_i32 s{sA4}, s{sA4}, 1\ns_cmp_ge_u32 s{sB}, 6\ns_cselect_b32 s{sA4}, 1, s{sA4}\ns_sub_u32 s{sJ}, 12, s{sA4}")
    stage_loop(a, 'L_h_p20', 2, 'p2', 'x', f"s{sA4}")
    a(f"s_cmp_eq_u32 s{sMode}, 0\ns_cbranch_scc1 L_h_st\ns_cmp_lg_u32 s{sW}, 0\ns_cbranch_scc1 L_h_l1")
    a.label('L_h_l0')
    a(f"buffer_load_dword v{T}, off, {DBG}, 0 offset:{DBG_DN + DBG_KVC} sc1\ns_waitcnt vmcnt(0)\nv_cmp_eq_u32 vcc, 0, v{T}\ns_cbranch_vccz L_h_l1")
    poll_fail(a, 'L_h_l0', 8)
    a.label('L_h_l1')
    a("s_barrier")
    n0 = len(a.lines)
    for m in range(2):
        for tau in range(4): kv_store(1, m, tau)
    a.lines[n0:] = [l.replace('buffer_store', 'buffer_load') for l in a.lines[n0:]]
    a(f"s_mov_b32 s{sMode}, 0\ns_branch L_h_nsc")
    a.label('L_h_st')
    for j in range(2):
        for m in range(2):
            for tau in range(4): kv_store(j, m, tau)
    signal('c', DBG_KVC, f"s{sA}", 0)
    stage_loop(a, 'L_h_p2a', 2, 'p2', 'x', f"s{sJ}")
    stage_loop(a, 'L_h_p2c', 2, 'p2', 'wo', 1)
    stage_loop(a, 'L_h_p2b', 2, 'wo', 'wo', 3)
    for g_ in dma_part('B', 'wo'):
        for l in g_: a(l)
    hs(4)
    a("s_waitcnt lgkmcnt(0)\ns_nop 7")
    PK = 128 + 0
    for j in range(2):
        for tau in range(4):
            src = 64 * j + 16 * tau; dst = QF + 32 * j + 8 * tau
            for r in range(16): a(f"v_accvgpr_read_b32 v{TM+r}, a{src+r}")
            for r in range(8): a(f"v_cvt_pk_bf16_f32 v{dst+r}, v{TM+2*r}, v{TM+2*r+1}")
    a(f"""
    v_bfe_u32 v{T}, v{LANE}, 2, 1
    v_bfe_u32 v{T+1}, v{LANE}, 3, 1
    v_and_b32 v{T+2}, 0x13, v{LANE}
    v_lshl_add_u32 v{T+2}, v{T+1}, 2, v{T+2}
    v_lshl_add_u32 v{T+2}, v{T}, 3, v{T+2}
    v_lshlrev_b32 v{T+2}, 10, v{T+2}
    s_lshl_b32 s{sA}, s{sH}, 5
    v_lshl_add_u32 v{T+1}, v{HH}, 4, s{sA}
    s_lshl_b32 s{sA}, s{sW}, 17
    v_add3_u32 v{BA}, v{T+2}, v{T+1}, s{sA}
    """)
    for j in range(2):
        for k in range(8):
            D = vr(SS + 16 * j, 16)
            mf(a, D, vr(KF + 32 * j + 4 * k, 4), vr(QF + 32 * j + 4 * k, 4), D if k else 0)
    RI = 32
    for r in range(32): a(f"v_accvgpr_read_b32 v{RI+r}, a{128+r}")
    a(f"v_accvgpr_read_b32 v{G}, a160\nv_accvgpr_read_b32 v{MX}, a176")
    A2, B2, LR, LI = 64, 72, 80, 88
    a(f"global_load_dwordx4 {vr(LR,4)}, v{T+1}, {sr(P_LRE,2)}\nglobal_load_dwordx4 {vr(LR+4,4)}, v{T+1}, {sr(P_LIM,2)}\nglobal_load_dwordx4 {vr(LI,4)}, v{T+1}, {sr(P_LDT,2)}")
    for r in (G, MX): a(f"v_mul_f32 v{r}, 0xbfb8aa3b, v{r}")
    for r in (G, MX): a(f"v_exp_f32 v{r}, v{r}")
    a("s_nop 0")
    for r in (G, MX): a(f"v_add_f32 v{r}, 1.0, v{r}")
    for r in (G, MX): a(f"v_rcp_f32 v{r}, v{r}")
    a(f"v_lshlrev_b32 v{T}, 4, v{HH}\nv_sub_u32 v{T}, v{VN}, v{T}\nv_mov_b32 v{T+2}, 0xff800000")
    for r in range(16):
        a(f"v_cmp_le_i32 vcc, {r}, v{T}\ns_nop 1")
        for j in range(2): a(f"v_cndmask_b32 v{SS+16*j+r}, v{T+2}, v{SS+16*j+r}, vcc")
    PQ, PV, PS, PH, PG = 128, 160, 192, 208, 216
    for r in range(32): a(f"v_accvgpr_write_b32 a{PQ+r}, v{QF+32+r}\nv_accvgpr_write_b32 a{PV+r}, v{VF+32+r}")
    for r in range(16): a(f"v_accvgpr_write_b32 a{PS+r}, v{SS+16+r}")
    a(f"v_accvgpr_write_b32 a{PG}, v{MX}")
    CA, CB, CD = 192, 193, 194
    a(f"""
    v_and_b32 v{T}, 15, v{LANE}
    s_lshl_b32 s{sA}, s{sH}, 5
    v_lshl_add_u32 v{T+2}, v{T}, 1, s{sA}
    global_load_ushort v{CA}, v{T+2}, {sr(P_LRE,2)}
    global_load_ushort v{CB}, v{T+2}, {sr(P_LIM,2)}
    global_load_ushort v{CD}, v{T+2}, {sr(P_LDT,2)}
    """)
    ACW = 220
    for tt in range(4):
        a(f"global_load_dwordx4 {ar(ACW+8*tt,4)}, v{BA}, {sr(P_CRE,2)}\nglobal_load_dwordx4 {ar(ACW+8*tt+4,4)}, v{BA}, {sr(P_CIM,2)}")
        if tt < 3: a(f"v_add_u32 v{BA}, 32768, v{BA}")
    a(f"s_lshl_b32 s{sA}, s{sW}, 12\nv_add_u32 v{BA+1}, {H_K}, v{L16}\nv_add_u32 v{GA}, s{sA}, v{BA+1}\ns_waitcnt vmcnt(8)")
    def c_put(r):
        for tt in range(4): a(f"ds_write_b128 v{GA}, {ar(ACW+8*tt+4*r,4)} offset:{1024*tt}")
    def c_get(r):
        for tile in range(16): a(f"ds_read_b128 {ar(8*tile+4*r,4)}, v{BA+1} offset:{1024*tile}")
    TT, LE, LM = 128, 136, 144
    unpack8(a, LE, LR); unpack8(a, LM, LR + 4); unpack8(a, TT, LI)
    for j in range(8): a(f"v_mov_b32 v{A2+j}, v{LE+j}\nv_mov_b32 v{B2+j}, v{LM+j}")
    dtprep(a, A2, B2, TT, 8)
    pw(a, LR, LI, A2, B2, None, 8, TT)
    for j in range(8):
        a(f"""
        v_mul_f32 v{TT}, v{LE+j}, v{LE+j}
        v_fmac_f32 v{TT}, v{LM+j}, v{LM+j}
        v_rcp_f32 v{TT}, v{TT}
        v_add_f32 v{TT+1}, -1.0, v{LR+j}
        v_mul_f32 v{TT+2}, v{TT+1}, v{LE+j}
        v_fmac_f32 v{TT+2}, v{LI+j}, v{LM+j}
        v_mul_f32 v{TT+3}, v{LI+j}, v{LE+j}
        v_fma_f32 v{TT+3}, -v{TT+1}, v{LM+j}, v{TT+3}
        v_mul_f32 v{LE+j}, v{TT+2}, v{TT}
        v_mul_f32 v{LM+j}, v{TT+3}, v{TT}
        """)
    for d in (1, 2, 4, 8):
        dp = f"row_shr:{d} row_mask:0xf bank_mask:0xf bound_ctrl:1"
        for j in range(2):
            R, I = RI + 16 * j, RI + 16 * j + 8
            for c in range(8): a(f"v_mov_b32 v{TT+c}, v{R+c}")
            for c in range(8): a(f"v_fmac_f32_dpp v{R+c}, v{R+c}, v{LR+c} {dp}")
            for c in range(8): a(f"v_fmac_f32_dpp v{R+c}, -v{I+c}, v{LI+c} {dp}")
            for c in range(8): a(f"v_fmac_f32_dpp v{I+c}, v{I+c}, v{LR+c} {dp}")
            for c in range(8): a(f"v_fmac_f32_dpp v{I+c}, v{TT+c}, v{LI+c} {dp}")
        if d < 8:
            for c in range(8):
                a(f"v_mul_f32 v{TT}, v{LI+c}, v{LI+c}\nv_add_f32 v{TT+1}, v{LR+c}, v{LR+c}\nv_fma_f32 v{LR+c}, v{LR+c}, v{LR+c}, -v{TT}\nv_mul_f32 v{LI+c}, v{TT+1}, v{LI+c}")
    a(f"v_and_b32 v{T+2}, 15, v{LANE}\nv_add_u32 v{T+2}, 1, v{T+2}\nv_cvt_f32_u32 v{T+2}, v{T+2}")
    pw(a, LR, LI, A2, B2, f"v{T+2}", 8, TT)
    dp = "row_bcast:15 row_mask:0xa bank_mask:0xf"
    for j in range(2):
        R, I = RI + 16 * j, RI + 16 * j + 8
        for c in range(8): a(f"v_fmac_f32_dpp v{R+c}, v{R+c}, v{LR+c} {dp}")
        for c in range(8): a(f"v_fmac_f32_dpp v{R+c}, -v{I+c}, v{LI+c} {dp}")
        for c in range(8): a(f"v_fmac_f32_dpp v{I+c}, v{I+c}, v{LR+c} {dp}")
        for c in range(8): a(f"v_fmac_f32_dpp v{I+c}, v{R+c}, v{LI+c} {dp}")
    a(f"""
    s_lshl_b32 s{sA}, s{sW}, 7
    s_add_u32 s{sA}, s{sA}, {H_E}
    v_lshl_add_u32 v{T+2}, v{HH}, 5, s{sA}
    s_mov_b32 exec_lo, 0x80000000
    s_mov_b32 exec_hi, 0x80000000
    """)
    for j in range(2):
        for q in range(4): a(f"ds_write_b128 v{T+2}, {vr(RI + 16*j + 4*q, 4)} offset:{512*j + 64*(q>>1) + 16*(q&1)}")
    a("s_mov_b64 exec, -1")
    a(f"v_lshlrev_b32 v{CA}, 16, v{CA}\nv_lshlrev_b32 v{CB}, 16, v{CB}\nv_lshlrev_b32 v{CD}, 16, v{CD}")
    dtprep(a, CA, CB, CD, 1)
    U, W_ = 196, 198
    pw(a, U, U + 1, CA, CB, "0x42000000", 1, CD)
    pw(a, W_, W_ + 1, CA, CB, "0x43800000", 1, CD)
    a(f"v_add_u32 v{T+2}, 1, v{VN}\nv_cvt_f32_u32 v{T+2}, v{T+2}")
    pw(a, LR, LI, A2, B2, f"v{T+2}", 8, TT)
    EE = 200
    a(f"v_lshlrev_b32 v{T}, 2, v{T}\nv_add_u32 v{T+2}, {H_E}, v{T}\ns_waitcnt vmcnt(0)")
    c_put(0); a("s_waitcnt lgkmcnt(0)\ns_barrier")
    c_get(0); a("s_waitcnt lgkmcnt(0)\ns_barrier")
    c_put(1); a("s_waitcnt lgkmcnt(0)\ns_barrier")
    c_get(1); a("s_waitcnt lgkmcnt(0)\ns_barrier")
    for s_ in range(8): a(f"ds_read2_b32 {vr(EE+2*s_,2)}, v{T+2} offset0:{32*s_} offset1:{32*s_+16}")
    AC_ = 216
    def cmac(M_, Er):
        a(f"""
        v_fma_f32 v{AC_+2}, v{M_}, v{AC_}, v{Er}
        v_fma_f32 v{AC_+3}, v{M_}, v{AC_+1}, v{Er+1}
        v_fma_f32 v{AC_+2}, -v{M_+1}, v{AC_+1}, v{AC_+2}
        v_fma_f32 v{AC_+1}, v{M_+1}, v{AC_}, v{AC_+3}
        v_mov_b32 v{AC_}, v{AC_+2}
        """)
    a(f"s_waitcnt lgkmcnt(0)\nv_mov_b32 v{AC_}, v{EE}\nv_mov_b32 v{AC_+1}, v{EE+1}")
    for s_ in range(1, 8): cmac(U, EE + 2 * s_)
    a(f"""
    v_min_u32 v{AC_}, -2, v{AC_}
    v_min_u32 v{AC_+1}, -2, v{AC_+1}
    v_lshlrev_b32 v{T+1}, 1, v{T}
    s_lshl_b32 s{sA3}, s{sH}, 7
    s_add_u32 s{sA3}, s{sA3}, {WS_A}
    s_lshl_b32 s{sA}, s{sB}, 12
    s_add_u32 s{sA}, s{sA}, s{sA3}
    s_cmp_eq_u32 s{sW}, 0
    s_cselect_b32 s{sA}, s{sA}, 0x70000000
    buffer_store_dwordx2 {vr(AC_,2)}, v{T+1}, {WS}, s{sA} offen sc1
    v_and_b32 v{T+2}, 7, v{LANE}
    v_cmp_ge_u32 {sr(sM,2)}, s{sB}, v{T+2}
    v_lshlrev_b32 v{T+2}, 2, v{T+2}
    v_mov_b32 v{AC_}, 0
    v_mov_b32 v{AC_+1}, 0
    s_mov_b32 s{sCnt}, 0
    """)
    a.label('L_h_wk')
    a(f"""
    buffer_load_dword v{AC_+2}, v{T+2}, {DBG}, 0 offen offset:{DBG_DN + DBG_KV0} sc1
    s_waitcnt vmcnt(0)
    v_cmp_gt_u32 vcc, 32, v{AC_+2}
    s_and_b64 vcc, vcc, {sr(sM,2)}
    s_cbranch_vccz L_h_wa
    """)
    poll_fail(a, 'L_h_wk')
    a.label('L_h_wa')
    a(f"""
    s_cmp_ge_u32 s{sCnt}, s{sB}
    s_cbranch_scc1 L_h_wd
    buffer_load_dwordx2 {vr(220,2)}, v{T+1}, {WS}, s{sA3} offen sc1
    s_waitcnt vmcnt(0)
    v_max_u32 v{AC_+2}, v220, v221
    v_cmp_eq_u32 vcc, -1, v{AC_+2}
    s_cbranch_vccz L_h_wb
    """)
    poll_fail(a, 'L_h_wa')
    a.label('L_h_wb')
    cmac(W_, 220)
    a(f"s_add_u32 s{sCnt}, s{sCnt}, 1\ns_add_u32 s{sA3}, s{sA3}, 4096\ns_branch L_h_wa")
    a.label('L_h_wd')
    a(f"s_lshl_b32 s{sA}, s{sW}, 10\ns_add_u32 s{sA}, s{sA}, {H_C}\nv_add_u32 v{T+2}, s{sA}, v{T}")
    for s_ in range(8):
        a(f"ds_write2_b32 v{T+2}, v{AC_}, v{AC_+1} offset0:{32*s_} offset1:{32*s_+16}")
        if s_ < 7: cmac(U, EE + 2 * s_)
    a(f"""
    s_lshl_b32 s{sA2}, s{sW}, 7
    s_add_u32 s{sA}, s{sA}, s{sA2}
    v_lshl_add_u32 v{T+2}, v{HH}, 5, s{sA}
    s_waitcnt lgkmcnt(0)
    """)
    CC = 192
    for j in range(2):
        for q in range(4): a(f"ds_read_b128 {vr(CC + 16*j + 4*q, 4)}, v{T+2} offset:{512*j + 64*(q>>1) + 16*(q&1)}")
    a(f"v_add_f32 v{T}, v{G}, v{G}\nv_add_f32 v{T+1}, v{MX}, v{MX}\ns_waitcnt lgkmcnt(0)")
    for j in range(2):
        R, I, cr, ci = RI + 16 * j, RI + 16 * j + 8, CC + 16 * j, CC + 16 * j + 8
        for c in range(8):
            a(f"""
            v_fmac_f32 v{R+c}, v{LR+c}, v{cr+c}
            v_fmac_f32 v{I+c}, v{LR+c}, v{ci+c}
            v_fma_f32 v{R+c}, -v{LI+c}, v{ci+c}, v{R+c}
            v_fmac_f32 v{I+c}, v{LI+c}, v{cr+c}
            v_mul_f32 v{cr+c}, v{R+c}, v{LE+c}
            v_mul_f32 v{ci+c}, v{R+c}, v{LM+c}
            v_fma_f32 v{cr+c}, -v{I+c}, v{LM+c}, v{cr+c}
            v_fmac_f32 v{ci+c}, v{I+c}, v{LE+c}
            v_mul_f32 v{cr+c}, v{cr+c}, v{T+j}
            v_mul_f32_e64 v{ci+c}, -v{ci+c}, v{T+j}
            """)
        for r in range(8): a(f"v_cvt_pk_bf16_f32 v{HF+8*j+r}, v{cr+2*r}, v{cr+2*r+1}")
    for r in range(8): a(f"v_accvgpr_write_b32 a{PH+r}, v{HF+8+r}")
    a(f"""
    v_bfe_u32 v{t+4}, v{LANE}, 2, 2
    v_bfe_u32 v{t+5}, v{LANE}, 4, 1
    v_and_b32 v{t+6}, 1, v{LANE}
    v_bfe_u32 v{t+7}, v{LANE}, 1, 1
    v_lshl_add_u32 v{t+8}, v{t+6}, 1, v{t+7}
    v_lshl_add_u32 v{t+8}, v{t+5}, 2, v{t+8}
    v_lshlrev_b32 v{t+8}, 3, v{t+8}
    v_lshl_add_u32 v{t+9}, v{HH}, 4, v{t+4}
    v_lshl_add_u32 v{t+8}, v{t+9}, 10, v{t+8}
    v_lshl_add_u32 v{WOA}, v{t+4}, 6, v{t+8}
    """)
    for tt in range(1, 4): a(f"v_xor_b32 v{WOA+tt}, {64*tt}, v{WOA}")
    for tt in range(4): a(f"v_add_u32 v{WOA+4+tt}, 0x10000, v{WOA+tt}")
    a(f"s_mov_b32 s{sJ}, 0")
    MINI = P.get('mini', 1)
    if MINI:
        a(f"""
        s_cmp_lg_u32 s{sB}, 7
        s_cbranch_scc1 L_h_nsd
        s_lshl_b32 s{sA2}, s{sW}, 5
        s_add_u32 s{sA2}, s{sA2}, s{sH}
        s_mul_i32 s{sA2}, s{sA2}, {23*1024}
        s_add_u32 s{sA2}, s{sA2}, {WS_ST}
        """)
        for q in range(23):
            a(f"buffer_store_dwordx4 {ar(128+4*q,4)}, v{L16}, {WS}, s{sA2} offen offset:{1024*(q&3)} sc1")
            if q & 3 == 3: a(f"s_add_u32 s{sA2}, s{sA2}, 4096")
        signal('d', DBG_ST, '0', 0)
    hs(5)
    a.label('L_h_seg')
    KMF, VMF, SM, PX, PM, OA_ = 32, 64, 80, 248, 128, 192
    a(f"v_max3_f32 v{MX}, v{SS}, v{SS+1}, v{SS+2}")
    for r in range(3, 15, 2): a(f"v_max3_f32 v{MX}, v{MX}, v{SS+r}, v{SS+r+1}")
    a(f"""
    v_max_f32 v{MX}, v{MX}, v{SS+15}
    s_lshl_b32 s{sA}, s{sSeg}, 17
    s_lshl_b32 s{sA2}, s{sH}, 12
    s_add_u32 s{sA}, s{sA}, s{sA2}
    s_add_u32 s{sA}, s{sA}, {WS_KM}
    s_sub_u32 s{sA2}, s{sSeg}, {P.get('pm0', 0)}
    s_cmp_lt_u32 s{sA2}, {48 - P.get('pm0', 0)}
    s_cselect_b32 s{sA2}, {P.get('pm', 7)}, {P.get('pm6', 3)}
    s_cmp_lt_u32 s{sSeg}, 56
    s_cselect_b32 s{sA2}, s{sA2}, {P.get('pm7', 3)}
    s_cmp_lt_u32 s{sSeg}, 60
    s_cselect_b32 s{sA2}, s{sA2}, 0
    s_or_b32 s{sA2}, s{sA2}, s{sSeg}
    s_min_u32 s{sA2}, s{sA2}, 62
    s_sub_i32 s{sA2}, s{sA2}, s{sSeg}
    s_lshl_b32 s{sA2}, s{sA2}, 17
    s_add_u32 s{sA2}, s{sA}, s{sA2}
    s_mov_b32 s{sA4}, 0x3e0293ee
    s_lshl_b32 s{sA3}, s{sW}, 12
    s_add_u32 s{sA3}, s{sA3}, {H_K}
    v_add_u32 v{T+1}, s{sA3}, v{L16}
    v_add_u32 v{T+2}, 2048, v{VKM}
    """)
    for tau in range(4): a(f"v_mov_b64 {vr(VMF + 4*tau + 2, 2)}, 0")
    a(f"v_mov_b64 {vr(PM+2,2)}, 0")
    a.label('L_h_pr')
    a(f"""
    buffer_load_dword v{T}, off, {WS}, s{sA2} offset:3072 sc1
    s_waitcnt vmcnt(0)
    v_cmp_eq_u32 vcc, -1, v{T}
    s_cbranch_vccz L_h_ld
    """)
    poll_fail(a, 'L_h_pr')
    a.label('L_h_pf')
    a(f"s_add_u32 s{sSpin}, s{sSpin}, 1\ns_cmp_gt_u32 s{sSpin}, {HSPIN}\ns_cbranch_scc1 L_end")
    a.label('L_h_ld')
    LD = 192
    for k in range(4): a(f"buffer_load_dwordx4 {vr(LD + 4*k, 4)}, v{L16}, {WS}, s{sA} offen offset:{1024*k} sc1")
    a("s_waitcnt vmcnt(0)")
    hs(6)
    for k in range(4): a(f"ds_write_b128 v{T+1}, {vr(LD + 4*k, 4)} offset:{1024*k}")
    a(f"v_max3_u32 v{T}, v{LD}, v{LD+1}, v{LD+2}")
    for r in range(3, 15, 2): a(f"v_max3_u32 v{T}, v{T}, v{LD+r}, v{LD+r+1}")
    a(f"v_max_u32 v{T}, v{T}, v{LD+15}\nv_cmp_eq_u32 vcc, -1, v{T}\ns_cbranch_vccnz L_h_pf")
    for k in range(8):
        o = ((k >> 1) & 1) * 128 + (k & 1) * 32
        a(f"ds_read2_b64 {vr(KMF + 4*k, 4)}, v{VKM if k < 4 else T+2} offset0:{o} offset1:{o+16}")
    for tau in range(4): a(f"ds_read2st64_b32 {vr(VMF + 4*tau, 2)}, v{VVM} offset0:{4*tau} offset1:{4*tau+2}")
    for k in range(8):
        a(f"s_waitcnt lgkmcnt({11-k})")
        mf(a, vr(SM, 16), vr(KMF + 4 * k, 4), vr(QF + 4 * k, 4), vr(SM, 16) if k else 0)
    a("s_waitcnt lgkmcnt(0)\ns_nop 11")
    a(f"""
    v_max3_f32 v{T}, v{MX}, v{SM}, v{SM+1}
    v_max3_f32 v{T}, v{T}, v{SM+2}, v{SM+3}
    v_mov_b32 v{T+1}, v{T}
    s_nop 1
    v_permlane32_swap_b32 v{T}, v{T+1}
    v_max_f32 v{T}, v{T}, v{T+1}
    v_mul_f32 v{T}, s{sA4}, v{T}
    """)
    ev = [SM + r for r in range(4)] + [SS + r for r in range(16)]
    for r in ev: a(f"v_fma_f32 v{r}, v{r}, s{sA4}, -v{T}")
    for r in ev: a(f"v_exp_f32 v{r}, v{r}")
    a(f"v_cvt_pk_bf16_f32 v{PM}, v{SM}, v{SM+1}\nv_cvt_pk_bf16_f32 v{PM+1}, v{SM+2}, v{SM+3}")
    for r in range(8): a(f"v_cvt_pk_bf16_f32 v{PX+r}, v{SS+2*r}, v{SS+2*r+1}")
    sm = [f"v_add_f32 v{T}, v{ev[0]}, v{ev[1]}"] + [f"v_add_f32 v{T}, v{T}, v{r}" for r in ev[2:]]
    sm += [f"v_mov_b32 v{T+1}, v{T}", f"v_sub_f32 v{T+2}, 1.0, v{G}", "s_nop 0", f"v_permlane32_swap_b32 v{T}, v{T+1}", f"v_add_f32 v{T}, v{T}, v{T+1}",
           f"v_rcp_f32 v{T}, v{T}", "s_nop 0", f"v_mul_f32 v{T}, v{T}, v{T+2}"]
    WF = 32
    wrd = lambda tile: [f"ds_read_b64_tr_b16 {vr(WF + 32*(tile&1) + 4*k + 2*pp, 2)}, v{WOA + 4*(k>>2) + (tile&3)} offset:{(32*((k>>1)&1) + 8*(k&1) + 4*pp)*1024 + 256*(tile>>2)}"
                        for k in range(8) for pp in range(2)]
    rd = wrd(0)
    OB = [192, 208, 132, 148]
    OB = [192, 208, 132, 80]
    def onorm(tau):
        L_ = [f"v_mul_f32 v{OB[tau]+r}, v{OB[tau]+r}, v{T}" for r in range(16)]
        L_ += [f"v_cvt_pk_bf16_f32 v{QF+8*tau+r}, v{OB[tau]+2*r}, v{OB[tau]+2*r+1}" for r in range(8)]
        return L_
    n = 0
    for tau in range(4):
        D = vr(OB[tau], 16)
        for k in range(3):
            if k == 0: mf(a, D, vr(VMF + 4 * tau, 4), vr(PM, 4), 0)
            else: mf(a, D, vr(VF + 8 * tau + 4 * (k - 1), 4), vr(PX + 4 * (k - 1), 4), D)
            for _ in range(2):
                if rd: a(rd.pop(0))
            if n == 6: sm += onorm(0)
            if n == 9: sm += onorm(1)
            for _ in range(6):
                if sm: a(sm.pop(0))
            n += 1
    for l in sm + onorm(2) + onorm(3): a(l)
    hs(7)
    a(f"""
    s_lshl_b32 s{sA}, s{sSeg}, 20
    s_lshl_b32 s{sA2}, s{sH}, 10
    s_add_u32 s{sA}, s{sA}, s{sA2}
    s_add_u32 s{sA}, s{sA}, {WS_PART}
    """)
    CT = 128
    def epi(tile):
        D = 192 + 16 * (tile & 1); c = CT + 8 * (tile & 1)
        L_ = []
        for u in range(2):
            L_ += [f"v_cvt_pk_bf16_f32 v{c+4*u+r}, v{D+8*u+2*r}, v{D+8*u+2*r+1}\nv_min_u32 v{c+4*u+r}, -2, v{c+4*u+r}" for r in range(4)]
        for u in range(2):
            L_ += [f"buffer_store_dwordx4 {vr(c+4*u,4)}, v{L16}, {WS}, s{sA} offen sc1\ns_add_u32 s{sA}, s{sA}, 32768"]
        return L_
    for tile in range(16):
        D = vr(192 + 16 * (tile & 1), 16)
        rd = wrd(tile + 1) if tile < 15 else []
        ep = epi(tile - 1) if tile else []
        for k in range(10):
            if k == 2: a("s_waitcnt lgkmcnt(0)")
            if k < 2: mf(a, D, ar(8 * tile + 4 * k, 4), vr(HF + 4 * k, 4), D if k else 0)
            else: mf(a, D, vr(WF + 32 * (tile & 1) + 4 * (k - 2), 4), vr(QF + 4 * (k - 2), 4), D)
            if k >= 2:
                for _ in range(2):
                    if rd: a(rd.pop(0))
            if ep and k >= 6 and len(ep) <= 2: a(ep.pop(0))
            elif ep and k >= 1 and len(ep) > 2:
                a(ep.pop(0)); a(ep.pop(0))
        assert not ep and not rd
    a("s_nop 12")
    for l in epi(15): a(l)
    hs(8)
    a(f"""
    s_lshl_b32 s{sA4}, s{sSeg}, 7
    s_add_u32 s{sA4}, s{sA4}, {WS_CNT}
    v_mov_b32 v220, 1
    """)
    if MINI: a(f"s_cmp_eq_u32 s{sB}, 7\ns_cselect_b32 s{sJ}, 3, s{sJ}\ns_cbranch_scc1 L_h_s7")
    a(f"s_cmp_lg_u32 s{sJ}, 0\ns_cbranch_scc1 L_h_sg")
    for r in range(32): a(f"v_accvgpr_read_b32 v{QF+r}, a{PQ+r}\nv_accvgpr_read_b32 v{VF+r}, a{PV+r}")
    for r in range(16): a(f"v_accvgpr_read_b32 v{SS+r}, a{PS+r}")
    for r in range(8): a(f"v_accvgpr_read_b32 v{HF+r}, a{PH+r}")
    a.label('L_h_sg')
    a(f"""
    v_accvgpr_read_b32 v{T}, a{PG}
    v_accvgpr_write_b32 a{PG}, v{G}
    s_xor_b32 s{sSeg}, s{sSeg}, 4
    s_add_u32 s{sJ}, s{sJ}, 1
    v_mov_b32 v{G}, v{T}
    {'' if P.get('sg', 1) else 'L_h_s7:'}
    s_waitcnt vmcnt(0)
    s_mov_b64 exec, 1
    buffer_atomic_add v220, off, {WS}, s{sA4}
    s_mov_b64 exec, -1
    s_cmp_eq_u32 s{sJ}, 1
    s_cbranch_scc1 L_h_seg
    {'L_h_s7:' if P.get('sg', 1) else ''}
    s_waitcnt vmcnt(0)
    """)
    SELR, XS, DS_ = 216, 208, 212
    XU, DU = 224, 232
    def red_prep(SELR, DS_):
        a(f"""
        s_lshl_b32 s{sA2}, s{sH}, 5
        v_lshlrev_b32 v{T+1}, 4, v{HH}
        v_lshl_add_u32 v{T+2}, v{VN}, 10, v{T+1}
        v_add_u32 v{T+1}, s{sA2}, v{T+1}
        global_load_dwordx4 {vr(DS_,4)}, v{T+1}, {sr(P_DSK,2)}
        v_lshlrev_b32 v{MX}, 1, v{T+2}
        v_bfe_u32 v{t}, v{LANE}, 2, 1
        v_bfe_u32 v{t+1}, v{LANE}, 3, 2
        v_and_b32 v{t+2}, 3, v{LANE}
        v_lshl_add_u32 v{t+1}, v{t+1}, 2, v{t+2}
        v_cmp_eq_u32 vcc, v{t}, v{HH}
        v_mov_b32 v{t+3}, 64
        s_mov_b32 s{sA2}, 0x3f80
        v_cndmask_b32 v{t+1}, v{t+3}, v{t+1}, vcc
        v_and_b32 v{t+2}, 1, v{t+1}
        v_lshlrev_b32 v{t+2}, 4, v{t+2}
        v_lshlrev_b32 v{t+2}, v{t+2}, s{sA2}
        v_lshrrev_b32 v{t+1}, 1, v{t+1}
        """)
        for d in range(4): a(f"v_cmp_eq_u32 vcc, {d}, v{t+1}\ns_nop 1\nv_cndmask_b32 v{SELR+d}, 0, v{t+2}, vcc")
    red_prep(SELR, DS_)
    a.label('L_h_red')
    a(f"""
    s_lshl_b32 s{sA3}, s{sSeg}, 15
    s_lshl_b32 s{sA2}, s{sH}, 5
    s_add_u32 s{sA3}, s{sA3}, s{sA2}
    buffer_load_dwordx4 {vr(XS,4)}, v{T+2}, {sr(S_X,4)}, s{sA3} offen
    s_lshl_b32 s{sA4}, s{sSeg}, 7
    s_add_u32 s{sA4}, s{sA4}, {WS_CNT}
    s_lshl_b32 s{sA}, s{sSeg}, 20
    s_lshl_b32 s{sA2}, s{sH}, 15
    s_add_u32 s{sA}, s{sA}, s{sA2}
    s_add_u32 s{sA}, s{sA}, {WS_PART}
    s_lshl_b32 s{sA3}, s{sA3}, 1
    v_lshlrev_b32 v221, 10, v{VN}
    s_cmp_ge_u32 s{sSeg}, {56 if P.get('sg', 1) else 64}
    s_cbranch_scc1 L_h_rf
    """)
    a.label('L_h_wc')
    a(f"""
    buffer_load_dword v220, off, {WS}, s{sA4} sc1
    s_waitcnt vmcnt(0)
    v_cmp_gt_u32 vcc, 32, v220
    s_cbranch_vccz L_h_rd
    """)
    poll_fail(a, 'L_h_wc', P.get('slc', 2))
    a.label('L_h_rf')
    a(f"""
    s_mov_b64 exec, 0xffffffff
    buffer_load_dword v220, v221, {WS}, s{sA} offen offset:1020 sc1
    s_add_u32 s{sSpin}, s{sSpin}, 1
    s_cmp_gt_u32 s{sSpin}, {HSPIN}
    s_cbranch_scc1 L_end
    s_waitcnt vmcnt(0)
    v_cmp_eq_u32 vcc, -1, v220
    s_mov_b64 exec, -1
    s_cbranch_vccz L_h_rd
    s_sleep 2
    s_branch L_h_rf
    """)
    a.label('L_h_rd')
    hs(9)
    for k in range(32):
        if k & 3 == 0: a(f"s_add_u32 s{sA2}, s{sA}, {1024*k}")
        a(f"buffer_load_dwordx4 {vr(32+4*k,4)}, v{L16}, {WS}, s{sA2} offen offset:{1024*(k&3)} sc1")
    a("s_waitcnt vmcnt(32)")
    unpack8(a, XU, XS); unpack8(a, DU, DS_)
    for r in range(8): a(f"v_mul_f32 v{XU+r}, v{XU+r}, v{DU+r}")
    a(f"v_mov_b32 v{T}, 0")
    for k in range(32):
        a(f"s_waitcnt vmcnt({31-k})")
        mf(a, vr(192, 16), vr(SELR, 4), vr(32 + 4 * k, 4), vr(192, 16) if k else 0)
        a(f"v_max3_u32 v{T}, v{T}, v{32+4*k}, v{33+4*k}\nv_max3_u32 v{T}, v{T}, v{34+4*k}, v{35+4*k}")
    a(f"v_cmp_eq_u32 vcc, -1, v{T}\ns_cbranch_vccnz L_h_rf\ns_nop 7")
    for r in range(8): a(f"v_fmac_f32 v{192+r}, v{XU+r}, v{G}")
    OF = P.get('of', '')
    a(f"""
    buffer_store_dwordx4 v[192:195], v{MX}, {sr(S_OUT,4)}, s{sA3} offen {OF}
    buffer_store_dwordx4 v[196:199], v{MX}, {sr(S_OUT,4)}, s{sA3} offen offset:16 {OF}
    v_accvgpr_read_b32 v{G}, a{PG}
    s_xor_b32 s{sSeg}, s{sSeg}, 4
    s_add_u32 s{sJ}, s{sJ}, 1
    s_cmp_eq_u32 s{sJ}, 3
    s_cbranch_scc1 L_h_red
    """)
    a.label('L_h_done')
    if P.get('stat'):
        a("s_waitcnt vmcnt(0)"); hs(10); a("s_waitcnt lgkmcnt(0)")
        for k in range(11): a(f"v_mov_b32 v{32+k}, s{74+2*k}")
        a(f"v_mov_b32 v43, s98\ns_lshl_b32 s{sA}, s{sB}, 5\ns_add_u32 s{sA}, s{sA}, s{sH}\ns_lshl_b32 s{sA}, s{sA}, 2\ns_add_u32 s{sA}, s{sA}, s{sW}\ns_lshl_b32 s{sA}, s{sA}, 6\ns_add_u32 s{sA}, s{sA}, {(49 << 20) + (512 << 10)}\ns_mov_b64 exec, 1")
        for q in range(3): a(f"buffer_store_dwordx4 {vr(32+4*q,4)}, v{L16}, {WS}, s{sA} offen offset:{16*q}")
        a("s_mov_b64 exec, -1")
    a(f"""
    s_cmp_ge_u32 s{sB}, 2
    s_cbranch_scc1 {'L_h_mini' if MINI else 'L_end'}
    {'s_sub_u32 s%d, 7, s%d' % (sB, sB) if P.get('r2', 0) else 's_add_u32 s%d, s%d, 6' % (sB, sB)}
    s_waitcnt vmcnt(0)
    s_branch L_h_again
    """)
    if not MINI: return
    a.label('L_h_mini')
    a(f"""
    s_sub_u32 s{sA3}, s{sB}, 2
    s_cmp_ge_u32 s{sA3}, 4
    s_cbranch_scc1 L_end
    s_add_u32 s{sSeg}, s{sB}, 58
    s_add_u32 s{sB}, s{sB}, 6
    s_mov_b32 s{sSpin}, 0
    s_lshl_b32 s{sA}, s{sW}, 8
    """)
    AQ, AV, AH, AC_2 = 128, 160, 192, ACW
    for i in range(8): a(f"v_add_u32 v{WOA+i}, s{sA}, v{WOA+i}")
    for tt in range(4):
        for k in range(8):
            for pp in range(2): a(f"ds_read_b64_tr_b16 {ar(32*tt + 4*k + 2*pp, 2)}, v{WOA + 4*(k>>2) + tt} offset:{(32*((k>>1)&1) + 8*(k&1) + 4*pp)*1024}")
    SELM, XM = 20, 24
    a("s_waitcnt lgkmcnt(0)")
    red_prep(SELM, 244)
    a(f"""
    s_lshl_b32 s{sWoo}, s{sSeg}, 15
    s_lshl_b32 s{sA2}, s{sH}, 5
    s_add_u32 s{sWoo}, s{sWoo}, s{sA2}
    buffer_load_dwordx4 v[240:243], v{T+2}, {sr(S_X,4)}, s{sWoo} offen
    s_lshl_b32 s{sWoo}, s{sWoo}, 1
    s_lshl_b32 s{sA}, s{sW}, 4
    v_add_u32 v{VKV}, s{sA}, v{MX}
    s_cmp_lg_u32 s{sW}, 0
    s_cbranch_scc1 L_m_st
    """)
    a.label('L_m_w0')
    a(f"buffer_load_dword v{T}, off, {DBG}, 0 offset:{DBG_DN + DBG_ST} sc1\ns_waitcnt vmcnt(0)\nv_cmp_eq_u32 vcc, 0, v{T}\ns_cbranch_vccz L_m_st")
    poll_fail(a, 'L_m_w0', 16)
    a.label('L_m_st')
    a(f"""
    s_waitcnt vmcnt(0)
    s_barrier
    s_lshl_b32 s{sA2}, s{sA3}, 5
    s_add_u32 s{sA2}, s{sA2}, s{sH}
    s_mul_i32 s{sA2}, s{sA2}, {23*1024}
    s_add_u32 s{sA2}, s{sA2}, {WS_ST}
    """)
    for q in range(23):
        dst = ar(AQ + 4 * q, 4) if q < 16 else vr(SS + 4 * (q - 16), 4) if q < 20 else ar(AH + 4 * (q - 20), 4) if q < 22 else vr(248, 4)
        a(f"buffer_load_dwordx4 {dst}, v{L16}, {WS}, s{sA2} offen offset:{1024*(q&3)} sc1")
        if q & 3 == 3: a(f"s_add_u32 s{sA2}, s{sA2}, 4096")
    unpack8(a, 32, 240); unpack8(a, 40, 244)
    for r in range(8): a(f"v_mul_f32 v{32+r}, v{32+r}, v{40+r}")
    a(f"s_bitcmp1_b32 s{sW}, 0\ns_cselect_b64 vcc, -1, 0\ns_mov_b32 s{sA4}, 0x3e0293ee\ns_waitcnt vmcnt(0)\nv_mov_b32 v{G}, v248")
    for r in range(4): a(f"v_cndmask_b32 v{XM+r}, v{32+r}, v{36+r}, vcc")
    for r in range(4): a(f"v_mul_f32 v{XM+r}, v{XM+r}, v{G}")
    LX = XA
    a(f"v_max3_f32 v{MX}, v{SS}, v{SS+1}, v{SS+2}")
    for r in range(3, 15, 2): a(f"v_max3_f32 v{MX}, v{MX}, v{SS+r}, v{SS+r+1}")
    a(f"""
    v_max_f32 v{MX}, v{MX}, v{SS+15}
    v_mov_b32 v{T+1}, v{MX}
    s_nop 1
    v_permlane32_swap_b32 v{MX}, v{T+1}
    v_max_f32 v{MX}, v{MX}, v{T+1}
    v_mul_f32 v{T}, s{sA4}, v{MX}
    """)
    for r in range(16): a(f"v_fma_f32 v{SS+r}, v{SS+r}, s{sA4}, -v{T}")
    for r in range(16): a(f"v_exp_f32 v{SS+r}, v{SS+r}")
    for r in range(8): a(f"v_cvt_pk_bf16_f32 v{248+r}, v{SS+2*r}, v{SS+2*r+1}")
    a(f"v_add_f32 v{LX}, v{SS}, v{SS+1}")
    for r in range(2, 16): a(f"v_add_f32 v{LX}, v{LX}, v{SS+r}")
    for tau in range(4):
        for u in range(2): mf(a, vr(32 + 16 * tau, 16), ar(AV + 8 * tau + 4 * u, 4), vr(248 + 4 * u, 4), vr(32 + 16 * tau, 16) if u else 0)
    a("s_nop 12")
    for r in range(32): a(f"v_cvt_pk_bf16_f32 v{96+r}, v{32+2*r}, v{33+2*r}")
    YC, YX = 96, 160
    a("s_nop 1")
    for tt in range(4):
        for k in range(8): mf(a, vr(YX + 16 * tt, 16), ar(32 * tt + 4 * k, 4), vr(96 + 4 * k, 4), vr(YX + 16 * tt, 16) if k else 0)
    a("s_nop 7")
    for tt in range(4):
        for k in range(2): mf(a, vr(YC + 16 * tt, 16), ar(AC_2 + 8 * tt + 4 * k, 4), ar(AH + 4 * k, 4), vr(YC + 16 * tt, 16) if k else 0)
    PMm, LDm = 240, 244
    a(f"""
    s_lshl_b32 s{sA}, s{sSeg}, 17
    s_lshl_b32 s{sA2}, s{sH}, 12
    s_add_u32 s{sA}, s{sA}, s{sA2}
    s_add_u32 s{sA}, s{sA}, {WS_KM}
    s_cmp_ge_u32 s{sSeg}, {P.get('mfp', 63)}
    s_cselect_b32 s{sA2}, {1 << 17}, 0
    s_sub_u32 s{sA2}, s{sA}, s{sA2}
    s_lshl_b32 s{sA3}, s{sW}, 10
    s_add_u32 s{sA}, s{sA}, s{sA3}
    s_add_u32 s{sA3}, s{sA3}, {H_K}
    v_add_u32 v{XA+1}, s{sA3}, v{L16}
    s_lshl_b32 s{sA3}, s{sW}, 12
    v_subrev_u32 v{VKM}, s{sA3}, v{VKM}
    v_subrev_u32 v{VVM}, s{sA3}, v{VVM}
    v_add_u32 v{T+2}, 2048, v{VKM}
    v_sub_f32 v{G}, 1.0, v{G}
    s_lshl_b32 s{sWo1}, s{sSeg}, 20
    s_add_u32 s{sWo1}, s{sWo1}, {WS_PART}
    s_lshl_b32 s{sA3}, s{sH}, 15
    s_add_u32 s{sWo2}, s{sWo1}, s{sA3}
    s_lshl_b32 s{sA3}, s{sW}, 13
    s_add_u32 s{sWo2}, s{sWo2}, s{sA3}
    s_add_u32 s{sSlot}, s{sWo2}, 4096
    s_lshl_b32 s{sA3}, s{sH}, 10
    s_add_u32 s{sWo1}, s{sWo1}, s{sA3}
    s_lshl_b32 s{sA3}, s{sW}, 18
    s_add_u32 s{sWo1}, s{sWo1}, s{sA3}
    """)
    for tau in range(4): a(f"v_mov_b64 {vr(VMF + 4*tau + 2, 2)}, 0")
    a(f"v_mov_b64 {vr(PMm+2,2)}, 0")
    a("s_getpc_b64 s[60:61]")
    a.label('L_m_pc')
    a(f"v_lshlrev_b32 v{T}, 3, v{L16}\nv_min_u32 v{T}, L_m_fin-L_m_pc, v{T}\nglobal_load_dword v{T}, v{T}, s[60:61]")
    hs(5)
    a.label('L_m_pr')
    a(f"buffer_load_dword v{T}, off, {WS}, s{sA2} offset:3072 sc1\ns_waitcnt vmcnt(0)\nv_cmp_eq_u32 vcc, -1, v{T}\ns_cbranch_vccz L_m_ld")
    poll_fail(a, 'L_m_pr', P.get('mps', 2))
    a.label('L_m_pf')
    a(f"s_add_u32 s{sSpin}, s{sSpin}, 1\ns_cmp_gt_u32 s{sSpin}, {HSPIN}\ns_cbranch_scc1 L_end")
    a.label('L_m_ld')
    a(f"""
    buffer_load_dwordx4 {vr(LDm,4)}, v{L16}, {WS}, s{sA} offen sc1
    s_waitcnt vmcnt(0)
    ds_write_b128 v{XA+1}, {vr(LDm,4)}
    v_max3_u32 v{T}, v{LDm}, v{LDm+1}, v{LDm+2}
    v_max_u32 v{T}, v{T}, v{LDm+3}
    v_cmp_eq_u32 vcc, -1, v{T}
    s_cbranch_vccnz L_m_pf
    s_waitcnt lgkmcnt(0)
    s_barrier
    """)
    for k in range(8):
        o = ((k >> 1) & 1) * 128 + (k & 1) * 32
        a(f"ds_read2_b64 {vr(KMF + 4*k, 4)}, v{VKM if k < 4 else T+2} offset0:{o} offset1:{o+16}")
    for tau in range(4): a(f"ds_read2st64_b32 {vr(VMF + 4*tau, 2)}, v{VVM} offset0:{4*tau} offset1:{4*tau+2}")
    for k in range(8):
        a(f"s_waitcnt lgkmcnt({11-k})")
        mf(a, vr(SM, 16), vr(KMF + 4 * k, 4), ar(AQ + 4 * k, 4), vr(SM, 16) if k else 0)
    hs(6)
    a(f"""
    s_waitcnt lgkmcnt(0)
    s_nop 11
    v_max3_f32 v{T}, v{MX}, v{SM}, v{SM+1}
    v_max3_f32 v{T}, v{T}, v{SM+2}, v{SM+3}
    v_mov_b32 v{T+1}, v{T}
    s_nop 1
    v_permlane32_swap_b32 v{T}, v{T+1}
    v_max_f32 v{T}, v{T}, v{T+1}
    v_mul_f32 v{T}, s{sA4}, v{T}
    """)
    for r in [SM, SM + 1, SM + 2, SM + 3, MX]: a(f"v_fma_f32 v{r}, v{r}, s{sA4}, -v{T}")
    for r in [SM, SM + 1, SM + 2, SM + 3, MX]: a(f"v_exp_f32 v{r}, v{r}")
    a(f"""
    v_add_f32 v{T}, v{SM}, v{SM+1}
    v_add_f32 v{T+1}, v{SM+2}, v{SM+3}
    v_fmac_f32 v{T}, v{LX}, v{MX}
    v_add_f32 v{T}, v{T}, v{T+1}
    v_mov_b32 v{T+1}, v{T}
    s_nop 1
    v_permlane32_swap_b32 v{T}, v{T+1}
    v_add_f32 v{T}, v{T}, v{T+1}
    v_rcp_f32 v{T}, v{T}
    s_nop 0
    v_mul_f32 v{T}, v{T}, v{G}
    """)
    for r in range(4): a(f"v_mul_f32 v{SM+r}, v{SM+r}, v{T}")
    a(f"v_cvt_pk_bf16_f32 v{PMm}, v{SM}, v{SM+1}\nv_cvt_pk_bf16_f32 v{PMm+1}, v{SM+2}, v{SM+3}\nv_mul_f32 v{MX}, v{MX}, v{T}")
    OBm = [32, 48, 80, 224]; OF = 160
    fm = [f"v_fmac_f32 v{YC+r}, v{YX+r}, v{MX}" for r in range(64)]
    a(fm.pop(0))
    for tau in range(4):
        mf(a, vr(OBm[tau], 16), vr(VMF + 4 * tau, 4), vr(PMm, 4), 0)
        for _ in range(6): a(fm.pop(0))
    for _ in range(7): a(fm.pop(0))
    cvo = lambda tau: [f"v_cvt_pk_bf16_f32 v{OF+8*tau+r}, v{OBm[tau]+2*r}, v{OBm[tau]+2*r+1}" for r in range(8)]
    for l in cvo(0): a(l)
    fill = cvo(1) + cvo(2) + cvo(3) + fm
    a(fill.pop(0)); a(fill.pop(0))
    CTm = 32
    def epim(tt):
        L_ = [f"v_cvt_pk_bf16_f32 v{CTm+8*tt+r}, v{YC+16*tt+2*r}, v{YC+16*tt+2*r+1}\nv_min_u32 v{CTm+8*tt+r}, -2, v{CTm+8*tt+r}" for r in range(8)]
        L_ += [f"buffer_store_dwordx4 {vr(CTm+8*tt+4*u,4)}, v{L16}, {WS}, s{sWo1} offen sc1\ns_add_u32 s{sWo1}, s{sWo1}, 32768" for u in range(2)]
        return L_
    order = [(tt, k) for k in range(8) for tt in range(2)] + [(2, k) for k in range(8)] + [(3, k) for k in range(8)]
    ep = []
    for n, (tt, k) in enumerate(order):
        mf(a, vr(YC + 16 * tt, 16), ar(32 * tt + 4 * k, 4), vr(OF + 4 * k, 4), vr(YC + 16 * tt, 16))
        for _ in range(6):
            if fill: a(fill.pop(0))
        if n == 17: ep += epim(0) + epim(1)
        if n == 25: ep += epim(2)
        for _ in range(3):
            if ep: a(ep.pop(0))
    assert not fill and not ep
    a("s_nop 12")
    for l in epim(3): a(l)
    hs(8)
    a(f"s_lshl_b32 s{sA3}, s{sW}, 11\ns_add_u32 s{sA3}, s{sA3}, {H_K + 4096}\nv_add_u32 v{T+1}, s{sA3}, v{L16}")
    a(f"s_lshl_b32 s{sA3}, s{sW}, 10\ns_add_u32 s{sA3}, s{sA3}, {H_K + 4096}\nv_add_u32 v{T+2}, s{sA3}, v{L16}")
    a(f"v_and_b32 v{MX}, 7, v{LANE}\nv_lshlrev_b32 v{MX}, 10, v{MX}")
    a(f"s_waitcnt vmcnt({P.get('mdr', 0)})")
    a(f"""
    s_cmp_ge_u32 s{sSeg}, {P.get('mth', 60)}
    s_cbranch_scc1 {'L_m_rd' if P.get('mg', 0) else 'L_m_rf'}
    s_barrier
    s_cmp_lg_u32 s{sW}, 0
    s_cbranch_scc1 L_m_c1
    s_lshl_b32 s{sA4}, s{sSeg}, 7
    s_add_u32 s{sA4}, s{sA4}, {WS_CNT}
    v_mov_b32 v{T}, 1
    s_mov_b64 exec, 1
    buffer_atomic_add v{T}, off, {WS}, s{sA4}
    s_mov_b64 exec, -1
    """)
    a.label('L_m_c0')
    a(f"buffer_load_dword v{T}, off, {WS}, s{sA4} sc1\ns_waitcnt vmcnt(0)\nv_cmp_gt_u32 vcc, 32, v{T}\ns_cbranch_vccz L_m_c1")
    poll_fail(a, 'L_m_c0', P.get('slc', 2))
    a.label('L_m_c1')
    a("s_barrier\ns_branch L_m_rd")
    a.label('L_m_rf')
    a(f"""
    s_mov_b64 exec, 0xff
    buffer_load_dword v{T}, v{MX}, {WS}, s{sWo2} offen offset:1020 sc1
    s_add_u32 s{sSpin}, s{sSpin}, 1
    s_cmp_gt_u32 s{sSpin}, {HSPIN}
    s_cbranch_scc1 L_end
    s_waitcnt vmcnt(0)
    v_cmp_eq_u32 vcc, -1, v{T}
    s_mov_b64 exec, -1
    s_cbranch_vccz L_m_rd
    s_sleep {P.get('msl', 1)}
    s_branch L_m_rf
    """)
    a.label('L_m_rd')
    hs(9)
    for k in range(8): a(f"buffer_load_dwordx4 {vr(96+4*k,4)}, v{L16}, {WS}, s{sWo2 if k < 4 else sSlot} offen offset:{1024*(k&3)} sc1")
    a(f"v_mov_b32 v{T}, 0")
    for k in range(8):
        a(f"s_waitcnt vmcnt({7-k})")
        mf(a, vr(64, 16), vr(SELM, 4), vr(96 + 4 * k, 4), vr(64, 16) if k else 0)
        a(f"v_max3_u32 v{T}, v{T}, v{96+4*k}, v{97+4*k}\nv_max3_u32 v{T}, v{T}, v{98+4*k}, v{99+4*k}")
    a(f"""
    v_cmp_eq_u32 vcc, -1, v{T}
    s_cbranch_vccnz L_m_rf
    s_nop 7
    ds_write_b128 v{T+1}, v[64:67]
    ds_write_b128 v{T+1}, v[68:71] offset:1024
    s_waitcnt lgkmcnt(0)
    s_barrier
    s_cmp_ge_u32 s{sW}, 2
    s_cbranch_scc1 L_m_fin
    """)
    for k in range(4): a(f"ds_read_b128 {vr(96+4*k,4)}, v{T+2} offset:{2048*k}")
    for k in range(4):
        a(f"s_waitcnt lgkmcnt({3-k})")
        a(f"v_pk_add_f32 {vr(XM,2)}, {vr(XM,2)}, {vr(96+4*k,2)}\nv_pk_add_f32 {vr(XM+2,2)}, {vr(XM+2,2)}, {vr(98+4*k,2)}")
    a(f"buffer_store_dwordx4 {vr(XM,4)}, v{VKV}, {sr(S_OUT,4)}, s{sWoo} offen")
    a.label('L_m_fin')
    a("s_branch L_h_done" if P.get('stat') else "s_branch L_hend" if P.get('dbgt') else "s_branch L_end")

if __name__ == '__main__':
    a = Asm(); h_once(a); helper_task(a, {})
    errs, ins = check(a.lines, 'helper')
    for e in errs: print(e)
    print(len(ins), ins[-1]['t'])
```

```python
from asmlib import *

WS_KV = 65536
WS_KM = (34 << 20) + 65536
WS_H1 = 48 << 20
WS_IMG = WS_H1 + (512 << 10)
WS_FL = WS_IMG + (64 << 10)
WS_H1B = WS_H1 + (256 << 10)
WS_IMB = WS_IMG + (128 << 10)
DBG_ARM = 132
ARM_ALL = {0: 32, 1: 64}
WS_STAMP = 49 << 20
WS_SIZE = 268435456
DBG_XCNT = 0
DBG_CBAR = 4
DBG_KV0 = 12
DBG_KVC = 16
DBG_DN = 128
L_MEM, L_S, L_KV, L_W = 0, 8192, 16384, 32768
L_O = L_MEM + 1024
L_SM = L_S + 1024
L_MISC = L_S + 5120
S_WS, S_WQ, S_WK, S_WV, S_WO, S_DBG, S_M0 = 4, 8, 12, 16, 20, 24, 28
sH, sW, sS = 32, 33, 34
sKV, sKM, sH1l, sTAG, sIMl = 35, 36, 37, 38, 39
sH1 = 40
sIMw, sIMr, sFL, sSPIN = 44, 45, 46, 47
sIML, sKMv = 59, 58
sONE, sMLO, sFLn, sRB, sFM, sLX = 84, 86, 3, 2, 54, 56
sFG, sKB = 80, 81
sC = 48
sT = 50
IDX, L16, A_W, A_SMW, NEG1, A_O, A_H1S, A_IMS = 0, 1, 2, 3, 4, 5, 6, 7
A_OW, FLV, HZ = 8, 9, 10
F, SEL, ONE = 12, 16, 20
MA = 24
Q0, K0, Q1, K1, V0, V1 = 56, 60, 64, 68, 72, 76
KX, VX, ST = 80, 88, 96
RW = 128
SPIN_MAX = 1000000

QK_A = {1: 0, 2: 1, 3: 2, 5: 3, 6: 4, 7: 5}
def wqk_reg(sig, u):
    if sig in (0, 4): return ('v', ST + 8 * u)
    return ('a', 32 * QK_A[sig] + 8 * u)
def wv_reg(sig, tau):
    if sig < 4: return ('a', 192 + 8 * (2 * sig + tau))
    return ('v', RW + 8 * (2 * (sig - 4) + tau))
def wo_reg(T, k2):
    if T < 2: return ('v', RW + 64 + 8 * (4 * T + k2))
    return ('v', (ST if T == 2 else MA) + 8 * k2)
def R8(r): return vr(r[1], 8, r[0])
def smf(a, D, A, B): a(f"v_smfmac_f32_16x16x64_bf16 {vr(D,4)}, {vr(A,4)}, {R8(B)}, v{IDX}")
def lw_qk(sig, u): return 8192 * (sig >> 2) + 4096 * (u & 1) + 2048 * (u >> 1)
def lw_wo(T, k2): return 16384 + 2048 * (4 * (T - 2) + k2)
def nops(a, n):
    while n > 0:
        k = min(n, 16); a(f"s_nop {k-1}"); n -= k

def srd(a, s, koff, size):
    a(f"s_load_dwordx2 {sr(s,2)}, s[0:1], {koff}")
    a(f"s_mov_b32 s{s+2}, {size}\ns_mov_b32 s{s+3}, 0x20000")

def chain_setup(a):
    t = 96
    lane, i, g, g1, g0, hi, i3, i2 = t + 1, t + 2, t + 3, t + 6, t + 7, t + 8, t + 9, t + 10
    x, y, z = t + 5, t + 12, t + 13
    a(f"""
    v_and_b32 v{lane}, 63, v0
    v_and_b32 v{i}, 15, v{lane}
    v_lshrrev_b32 v{g}, 4, v{lane}
    v_lshlrev_b32 v{L16}, 4, v{lane}
    v_lshrrev_b32 v{g1}, 1, v{g}
    v_and_b32 v{g0}, 1, v{g}
    v_lshrrev_b32 v{hi}, 3, v{i}
    v_and_b32 v{i3}, 3, v{i}
    v_lshrrev_b32 v{i2}, 2, v{i}
    s_lshl_b32 s{sT+1}, s{sW}, 15
    s_add_u32 s{sT+1}, s{sT+1}, {L_W}
    v_add_u32 v{A_W}, s{sT+1}, v{L16}
    v_lshl_add_u32 v{y}, v{hi}, 1, v{g0}
    v_and_b32 v{x}, 7, v{i}
    v_lshl_add_u32 v{x}, v{y}, 4, v{x}
    v_lshlrev_b32 v{x}, 4, v{x}
    v_add_u32 v{y}, s{sW}, v{y}
    v_and_b32 v{y}, 3, v{y}
    v_lshl_add_u32 v{x}, v{y}, 2, v{x}
    v_xor_b32 v{y}, 1, v{g1}
    v_lshl_add_u32 v{x}, v{y}, 11, v{x}
    v_add_u32 v{A_SMW}, {L_SM}, v{x}
    v_mov_b32 v{HZ}, 0x3f803f80
    v_mov_b32 v{HZ+1}, 0
    v_mov_b32 v{NEG1}, -1
    v_and_b32 v{A_O}, 0x37f, v{L16}
    v_lshlrev_b32 v{y}, 7, v{g0}
    v_or_b32 v{A_O}, v{A_O}, v{y}
    v_xor_b32 v{A_OW}, v{L16}, v{y}
    v_mov_b32 v{FLV}, 0
    v_cmp_lt_u32 vcc, 7, v{i}
    v_mov_b32 v{y}, 0x4444
    v_mov_b32 v{z}, 0xeeee
    v_cndmask_b32 v{t+11}, v{y}, v{z}, vcc
    """)
    a(f"""
    v_lshlrev_b32 v{x}, 2, v{g1}
    v_lshl_add_u32 v{x}, v{hi}, 1, v{x}
    v_add_u32 v{x}, v{x}, v{g0}
    v_lshlrev_b32 v{x}, 11, v{x}
    v_and_b32 v{y}, 7, v{i}
    v_lshl_add_u32 v{x}, v{y}, 3, v{x}
    s_lshl_b32 s{sT+2}, s{sW}, 14
    s_lshl_b32 s{sT+3}, s{sH}, 6
    s_add_u32 s{sT+2}, s{sT+2}, s{sT+3}
    v_add_u32 v{A_H1S}, s{sT+2}, v{x}
    """)
    a(f"""
    s_lshl_b32 s{sT+2}, s{sW}, 5
    s_add_u32 s{sT+2}, s{sT+2}, s{sH}
    s_lshl_b32 s{sT+2}, s{sT+2}, 6
    v_lshlrev_b32 v{x}, 4, v{g}
    v_lshl_add_u32 v{x}, v{i}, 2, v{x}
    v_add_u32 v{x}, s{sT+2}, v{x}
    v_cmp_gt_u32 vcc, 4, v{i}
    v_bfrev_b32 v{z}, 1
    s_nop 0
    v_cndmask_b32 v{A_IMS}, v{z}, v{x}, vcc
    """)
    a(f"""
    v_lshl_add_u32 v{x}, v{hi}, 2, v{i3}
    v_and_b32 v{y}, 1, v{i2}
    v_cmp_eq_u32 vcc, v{y}, v{g0}
    v_mov_b32 v{z}, 64
    s_nop 0
    v_cndmask_b32 v{x}, v{z}, v{x}, vcc
    v_and_b32 v{y}, 1, v{i}
    v_lshl_add_u32 v{t+14}, v{y}, 2, v{i2}
    v_cmp_gt_u32 vcc, 2, v{i3}
    s_mov_b32 s{sT+3}, 0x3f80
    s_nop 0
    v_cndmask_b32 v{t+14}, v{z}, v{t+14}, vcc
    """)
    for base, pos in ((F, x), (SEL, t + 14)):
        a(f"""
        v_and_b32 v{t+15}, 1, v{pos}
        v_lshlrev_b32 v{t+15}, 4, v{t+15}
        v_lshlrev_b32 v{t+15}, v{t+15}, s{sT+3}
        v_lshrrev_b32 v{t+16}, 1, v{pos}
        """)
        for d in range(4):
            a(f"""
            v_cmp_eq_u32 vcc, {d}, v{t+16}
            s_nop 1
            v_cndmask_b32 v{base+d}, 0, v{t+15}, vcc
            """)
    a(f"""
    v_and_b32 v{t+16}, 1, v{i2}
    v_lshl_add_u32 v{t+14}, v{g0}, 2, v{t+16}
    v_lshl_add_u32 v{t+16}, v{g0}, 1, v{t+16}
    v_xor_b32 v{t+16}, s{sW}, v{t+16}
    v_lshlrev_b32 v{t+16}, 6, v{t+16}
    v_add_u32 v{t+16}, {L_W}, v{t+16}
    v_lshl_add_u32 v{t+15}, v{hi}, 3, v{t+14}
    v_lshl_add_u32 v{t+15}, v{t+15}, 8, v{t+16}
    v_lshl_add_u32 v{t+15}, v{g1}, 15, v{t+15}
    v_lshl_add_u32 v58, v{i3}, 4, v{t+15}
    v_add_u32 v61, 0x10000, v58
    v_lshl_add_u32 v{t+15}, v{g1}, 3, v{t+14}
    v_lshl_add_u32 v{t+15}, v{t+15}, 8, v{t+16}
    v_lshl_add_u32 v{t+15}, v{hi}, 5, v{t+15}
    v_lshl_add_u32 v59, v{i3}, 3, v{t+15}
    v_add_u32 v62, 0x10000, v59
    v_and_b32 v{x}, 7, v{i}
    v_lshlrev_b32 v{x}, 10, v{x}
    v_lshl_add_u32 v{x}, v{g}, 5, v{x}
    v_lshl_add_u32 v{x}, v{hi}, 4, v{x}
    s_lshl_b32 s{sT+2}, s{sW}, 7
    v_add_u32 v60, s{sT+2}, v{x}
    v_mov_b32 v{IDX}, v{t+11}
    """)
    for k in range(4): a(f"v_mov_b32 v{64+k}, -1")

def chain_prologue(a, P):
    WS = sr(S_WS, 4)
    a(f"""
    s_mov_b32 s{sS}, 0
    s_lshl_b32 s{sT}, s{sH}, 2
    s_add_u32 s{sT}, s{sT}, s{sW}
    s_lshl_b32 s{sKV}, s{sT}, 12
    s_add_u32 s{sKV}, s{sKV}, {WS_KV}
    s_lshl_b32 s{sKM}, s{sT}, 10
    s_mov_b32 s{sFLn}, {DBG_DN + DBG_KV0}
    s_add_u32 s{sKM}, s{sKM}, {WS_KM}
    s_mov_b32 s{sH1}, {WS_H1}
    s_mov_b32 s{sH1+1}, {WS_H1 + 65536}
    s_mov_b32 s{sH1+2}, {WS_H1 + 2*65536}
    s_mov_b32 s{sH1+3}, {WS_H1 + 3*65536}
    s_lshl_b32 s{sT}, s{sW}, 5
    s_add_u32 s{sT}, s{sT}, s{sH}
    s_lshl_b32 s{sT}, s{sT}, 11
    s_add_u32 s{sH1l}, s{sT}, {WS_H1}
    s_mov_b32 s{sTAG}, 0
    s_mov_b32 s{sIMw}, {WS_IMG + 8192}
    s_mov_b32 s{sIMr}, {WS_IMG + 16384}
    s_mov_b32 s{sIMl}, {WS_IMG}
    s_mov_b32 s{sIML}, {WS_IMG}
    s_mov_b32 s{sKMv}, 0x70000000
    s_mov_b32 s{sONE}, 0x3f803f80
    s_mov_b32 s{sONE+1}, 0x3f803f80
    s_mov_b32 s{sMLO}, 0x00ff00ff
    s_mov_b32 s{sMLO+1}, 0x00ff00ff
    s_mov_b32 s{sC}, 0x3e0293ee
    s_mov_b32 s{sC+1}, 0x3e0293ee
    """)
    if P.get('tb', 1):
        a(f"s_cmp_lg_u32 s{sRB}, 0\ns_cbranch_scc1 L_c_b0\ns_mov_b32 s{sS}, 1\ns_add_u32 s{sKV}, s{sKV}, 0x80000\ns_add_u32 s{sKM}, s{sKM}, 0x20000\ns_branch L_c_b1")
        a.label('L_c_b0')
        for r in (sH1, sH1 + 1, sH1 + 2, sH1 + 3, sIMr): a(f"s_mov_b32 s{r}, 0x70000000")
        a(f"s_add_u32 s{sH1l}, s{sH1l}, {WS_H1B - WS_H1}\ns_mov_b32 s{sIMw}, {WS_IMB}")
        for k in range(4): a(f"buffer_store_dwordx4 v[64:67], v{L16}, {WS}, s{sKV} offen offset:{1024*k} sc1"); a.vm.pop()
        a.label('L_c_b1')
    a(f"""
    buffer_store_dwordx4 v[64:67], v{L16}, {WS}, s{sH1l} offen sc1
    buffer_store_dwordx4 v[64:67], v{L16}, {WS}, s{sH1l} offen offset:1024 sc1
    buffer_store_dword v64, v{A_IMS}, {WS}, s{sIMw} offen sc1
    v_xor_b32 v63, {256 if P.get('sw', 2) else 0}, v60
    buffer_load_dwordx4 {vr(MA,4)}, v63, {sr(S_M0,4)}, 0 offen
    buffer_load_dwordx4 {vr(MA+16,4)}, v{63 if P.get('sw', 2) == 2 else 60}, {sr(S_M0,4)}, 0 offen offset:512
    """, vm='init')
    for w in range(3): a(f"s_cmp_eq_u32 s{sW}, {w}\ns_cbranch_scc1 L_cp_{w}")
    a("s_branch L_cp_3")

UNITS = []; SLOT = {}; ISSUE = {}
def plan_units(P):
    L = [(m, k) for m in P.get('mord', 'vkq') for k in range(8)]
    if P.get('ilv', 0):
        U = []
        for i in range(8): U += L[3 * i:3 * i + 3] + [('o', i)]
    else: U = L + [('o', u) for u in range(8)]
    UNITS[:] = U; SLOT.clear(); ISSUE.clear()
    fin = lambda u: U[u][0] == 'o' and U[u][1] >= 4
    free = list(range(8)); nxt = 0
    for it in range(-1, 32):
        if it >= 1 and not fin(it - 1): free.append(SLOT[it - 1])
        ISSUE[it] = []
        if it == 0: continue
        while nxt < 32:
            if fin(nxt):
                if U[nxt][1] not in free: break
                s = U[nxt][1]
            else:
                soon = [U[v][1] for v in range(nxt + 1, min(nxt + 8, 32)) if fin(v)]
                c = [x for x in free if x not in soon]
                if not c: break
                s = c[0]
            free.remove(s); SLOT[nxt] = s; ISSUE[it].append(nxt); nxt += 1
    assert nxt == 32
sLB, sO1, sHB, sHO = sT + 4, sT + 5, sT + 6, sT + 7
PF = ['']
def issue_one(a, u, i):
    kind, x = UNITS[u]
    if kind == 'o': base, off, step, voff, S = sHO, 64 * (x & 1) * 1024 + 256 * (x >> 1), 4 * 1024, 57, S_WO
    else: base, off, step, voff, S = sHB, x << 19, 4 * 8192, 56, {'q': S_WQ, 'k': S_WK, 'v': S_WV}[kind]
    a(f"s_add_u32 m0, s{sLB}, {SLOT[u] * 4096 + i * 1024}")
    a(f"s_add_u32 s{sO1}, s{base}, {off + i * step}")
    a(f"buffer_load_dwordx4 v{voff - 4 * (i & 1)}, {sr(S,4)}, s{sO1} offen {PF[0]} lds", vm=('u', u))
def issue_unit(a, u):
    for i in range(4): issue_one(a, u, i)

def chain_first_dma(a):
    a(f"""
    v_bfe_u32 v96, v0, 4, 2
    v_and_b32 v97, 15, v0
    v_bfe_u32 v98, v0, 4, 1
    v_lshlrev_b32 v98, 2, v98
    v_xor_b32 v97, v97, v98
    v_lshlrev_b32 v97, 4, v97
    v_lshl_add_u32 v56, v96, 13, v97
    v_lshl_add_u32 v57, v96, 10, v97
    v_xor_b32 v52, 128, v56
    v_xor_b32 v53, 128, v57
    s_lshl_b32 s{sLB}, s{sW}, 15
    s_add_u32 s{sLB}, s{sLB}, {L_W}
    s_lshl_b32 s{sHB}, s{sH}, 8
    s_lshl_b32 s{sT+2}, s{sW}, 17
    s_add_u32 s{sHB}, s{sHB}, s{sT+2}
    s_lshl_b32 s{sHO}, s{sH}, 17
    s_lshl_b32 s{sT+2}, s{sW}, 14
    s_add_u32 s{sHO}, s{sHO}, s{sT+2}
    """)
    for u in ISSUE[-1]: issue_unit(a, u)

def chain_prologue_w(a, P, w, vm0):
    WS = sr(S_WS, 4)
    a.label(f'L_cp_{w}')
    a.vm = list(vm0); a.lg = []
    TB = P.get('tb', 1); ALL = 32
    PK4 = 64
    def wb(u):
        for i in range(4): a(f"ds_write_b128 v{A_W}, {vr(28 + 16*(i>>1) + 4*(i&1),4)} offset:{SLOT[u] * 4096 + 1024*i}")
    for u in range(32):
        kind, x = UNITS[u]
        a.wait(vm=('u', u))
        a("s_barrier")
        if u == P.get('ek', 30) - 6: a(f"s_lshl_b32 s{sT+2}, s{sRB}, 12\nbuffer_load_dword v39, off, {sr(S_DBG,4)}, s{sT+2} offset:{DBG_KV0} sc1", vm='fe')
        if P.get('pu') == u: a("s_memrealtime s[100:101]")
        dq = [(v, i) for v in ISSUE[u] for i in range(4)]
        if u == 9:
            for r in list(range(MA, MA + 4)) + list(range(MA + 16, MA + 20)): a(f"v_min_u32 v{r}, -2, v{r}")
            if w == 0:
                a(f"s_cmp_lg_u32 s{sRB}, 0\ns_cselect_b32 s{sT+2}, {DBG_ARM}, {DBG_CBAR}\ns_mov_b64 exec, 1\nv_mov_b32 v38, 1")
                a(f"buffer_atomic_add v38, off, {sr(S_DBG,4)}, s{sT+2}", vm='at')
                a("s_mov_b64 exec, -1")
        if u == P.get('uw', 25):
            a(f"s_getpc_b64 {sr(sT,2)}")
            a.label(f'L_cpc_{w}')
            a(f"v_lshlrev_b32 v63, 3, v{L16}\ns_cmp_lg_u32 s{sRB}, 0\ns_cselect_b32 s{sT+2}, s{sIMr}, {WS_IMG + 8192*w}\ns_cselect_b32 s{sT+3}, s{sIMr}, s{sH1l}")
            a(f"buffer_load_dword v36, v63, {WS}, s{sT+2} offen sc1", vm='w')
            a(f"v_and_b32 v37, 0x780, v63\nv_min_u32 v63, L_step_{w}-L_top_{w}, v63\nv_add_u32 v63, L_top_{w}-L_cpc_{w}, v63")
            a(f"buffer_load_dword v36, v37, {WS}, s{sT+3} offen sc1", vm='w')
            a(f"global_load_dword v36, v63, {sr(sT,2)}", vm='w')
            if P.get('tlb', 1) and w < 2:
                a(f"s_mov_b32 s{sT+2}, {(WS_KV if w == 0 else WS_KM) - 4096}")
                a(f"buffer_load_dword v36, off, {WS}, s{sT+2} sc1", vm='w')
        fin = lambda v: UNITS[v][0] == 'o' and UNITS[v][1] >= 4
        if u == 1 + max(v for v in range(32) if not fin(v)):
            for sg, src in ((0, ST), (4, PK4)):
                for uu in range(4):
                    for hf in range(2): a(f"ds_write_b128 v{A_W}, {vr(src + 8*uu + 4*hf,4)} offset:{lw_qk(sg, uu) + 1024*hf}")
                a.wait(lg='all')
        fl0 = f"s_mul_i32 s{sT}, s{sRB}, {DBG_ARM - DBG_CBAR}\ns_mul_i32 s{sT+1}, s{sRB}, {DBG_ARM - DBG_KV0}\nbuffer_load_dword v36, off, {sr(S_DBG,4)}, s{sT} offset:{DBG_CBAR} sc1\nbuffer_load_dword v37, off, {sr(S_DBG,4)}, s{sT+1} offset:{DBG_KV0} sc1"
        if u == 30 and P.get('dlyc'): a(f"s_sleep {P['dlyc']}")
        kvl = lambda so: '\n'.join(f"buffer_load_dwordx4 {vr(KX+4*k,4)}, v{L16}, {WS}, s{so} offen offset:{1024*k} sc1" for k in range(4))
        sw = P.get('sw', 2)
        m1l = f"buffer_load_dwordx4 v[64:67], v{L16}, {WS}, s{sIMl} offen sc1\nbuffer_load_dwordx4 v[68:71], v{L16}, {WS}, s{sIML} offen sc1"
        m1a = f"s_mov_b32 s{sIMl}, {WS_IMB + 1024*(w ^ (2 if sw else 0))}\ns_mov_b32 s{sIML}, {WS_IMB + 4096 + 1024*(w ^ (2 if sw == 2 else 0))}"
        ek = P.get('ek', 30)
        if u == ek:
            a.wait(vm='fe'); a(f"v_readfirstlane_b32 s{sT+3}, v39")
            a(f"s_cmp_ge_u32 s{sT+3}, {ALL}\ns_cselect_b32 s{sT+2}, s{sKV}, 0x70000000")
            if TB:
                a(m1a); a(f"s_cselect_b32 s{sIMl}, s{sIMl}, s{sT+2}\ns_cselect_b32 s{sIML}, s{sIML}, s{sT+2}\ns_cmp_lg_u32 s{sRB}, 0\ns_cselect_b32 s{sT+2}, s{sKV}, s{sT+2}")
            a(kvl(sT + 2), vm='kv')
            if TB: a(m1l, vm='kv')
        if u == 30 and w == 0: a(fl0, vm='f0')
        if u and fin(u - 1): wb(u - 1)
        base = SLOT[u] * 4096
        sig = ((x - w - (2 if P.get('sw', 2) > (x >> 2) else 0)) & 3) | (x & 4)
        for half in range(2):
            if fin(u): k, dst = 'v', 28 + 16 * half
            elif kind in 'qk':
                uu = 2 * half + (kind == 'k')
                k, dst = ('v', PK4 + 8 * uu) if sig == 4 else wqk_reg(sig, uu)
            elif kind == 'v': k, dst = wv_reg(sig, half)
            else: k, dst = wo_reg(x >> 1, 2 * (x & 1) + half)
            for p in range(4):
                if kind == 'o': off, ad = base + 32768 * (p >> 1) + 512 * (p & 1), (59, 62)[half]
                else: off, ad = base + 512 * (p & 1) + 8 * half, (58, 61)[p >> 1]
                a(f"ds_read_b64_tr_b16 {vr(dst + 2*p, 2, k)}, v{ad} offset:{off}")
                if p & 1 and dq: issue_one(a, *dq.pop(0))
        while dq: issue_one(a, *dq.pop(0))
        if P.get('pw') and P.get('pw0', 8) <= u < 31:
            for k in range(P['pw']): a(f"v_smfmac_f32_16x16x64_bf16 v[48:51], v[24:27], a[{192 + 8 * (k & 7)}:{199 + 8 * (k & 7)}], v0" if u < 28 else f"v_smfmac_f32_16x16x64_bf16 v[72:75], v[24:27], a[{192 + 8 * (k & 7)}:{199 + 8 * (k & 7)}], v0")
        a.wait(lg='all')
    a("s_barrier")
    wb(31)
    a.wait(lg='all')
    if (P.get('stat') or P.get('dbgt')) and P.get('pu') is None: a("s_memrealtime s[100:101]")
    a(f"s_mov_b32 s{sSPIN}, 0\ns_mov_b32 m0, {L_KV + 4096*w}")
    if w == 0:
        a(f"s_lshl_b32 s{sT+2}, s{sRB}, 5\ns_add_u32 s{sT+2}, s{sT+2}, 32\ns_branch L_c_w1")
        a.label(f'L_c_w0')
        a(f"""
        s_add_u32 s{sSPIN}, s{sSPIN}, 1
        s_cmp_gt_u32 s{sSPIN}, {SPIN_MAX}
        s_cbranch_scc1 L_exit
        s_sleep {P.get('slp0', 4)}
        """)
        a(fl0)
        a.label('L_c_w1')
        a.wait(vm='all')
        a(f"""
        v_cmp_gt_u32 vcc, 32, v36
        s_cbranch_vccnz L_c_w0
        v_cmp_gt_u32 vcc, s{sT+2}, v37
        s_cbranch_vccnz L_c_w0
        """)
    a("s_barrier")
    if ek < 32: a(f"s_cmp_ge_u32 s{sT+3}, {ALL}\ns_cbranch_scc1 L_c_kv_{w}")
    if TB: a(f"s_cmp_lg_u32 s{sRB}, 0\ns_cbranch_scc1 L_c_m3_{w}")
    a(kvl(sKV))
    if TB:
        a.label(f'L_c_m1_{w}')
        a(m1a); a(f"s_sleep {P.get('aps', 4)}"); a(m1l)
        a(f"s_add_u32 s{sSPIN}, s{sSPIN}, 1\ns_cmp_gt_u32 s{sSPIN}, {SPIN_MAX}\ns_cbranch_scc1 L_exit")
    a.label(f'L_c_kv_{w}')
    if TB:
        a(f"""
        s_cmp_lg_u32 s{sRB}, 0
        s_cbranch_scc1 L_c_m3_{w}
        s_waitcnt vmcnt(0)
        v_max3_u32 v36, v64, v65, v66
        v_max3_u32 v37, v67, v68, v69
        v_max3_u32 v36, v36, v70, v71
        v_max_u32 v36, v36, v37
        v_cmp_eq_u32 vcc, -1, v36
        v_mov_b64 {vr(MA,2)}, v[64:65]
        v_mov_b64 {vr(MA+2,2)}, v[66:67]
        v_mov_b64 {vr(MA+16,2)}, v[68:69]
        v_mov_b64 {vr(MA+18,2)}, v[70:71]
        s_cbranch_vccnz L_c_m1_{w}
        s_branch L_c_m4_{w}
        """)
        a.label(f'L_c_m2_{w}')
        a(f"""
        s_add_u32 s{sSPIN}, s{sSPIN}, 1
        s_cmp_gt_u32 s{sSPIN}, {SPIN_MAX}
        s_cbranch_scc1 L_end
        s_sleep {P.get('bps', 4)}
        buffer_load_dword v{FLV}, off, {WS}, s{sKB} offset:4092 sc1
        s_waitcnt vmcnt(0)
        v_cmp_eq_u32 vcc, -1, v{FLV}
        s_cbranch_vccnz L_c_m2_{w}
        """)
        a(f"s_branch L_c_m5_{w}")
        a.label(f'L_c_m7_{w}')
        a(f"s_add_u32 s{sSPIN}, s{sSPIN}, 1\ns_cmp_gt_u32 s{sSPIN}, {SPIN_MAX}\ns_cbranch_scc1 L_end\ns_sleep {P.get('bps', 4)}")
        a.label(f'L_c_m5_{w}')
        a(kvl(sKB))
        a.label(f'L_c_m6_{w}')
        a(f"s_waitcnt vmcnt(0)\nv_max3_u32 v{FLV}, v{KX}, v{KX+1}, v{KX+2}")
        for r in range(3, 15, 2): a(f"v_max3_u32 v{FLV}, v{FLV}, v{KX+r}, v{KX+r+1}")
        a(f"v_max_u32 v{FLV}, v{FLV}, v{KX+15}\nv_cmp_eq_u32 vcc, -1, v{FLV}\ns_cbranch_vccnz L_c_m{7 if P.get('bd') else 2}_{w}\ns_branch L_{'bk' if P.get('ba') else 'c_m4'}_{w}")
        a.label(f'L_c_m3_{w}')
        a(f"s_waitcnt vmcnt(0)\ns_mov_b32 s{sKB}, s{sKV}\ns_mov_b32 s{sKV}, 0x70000000")
        if not P.get('ba'): a(f"s_branch L_c_m6_{w}")
        a.label(f'L_c_m4_{w}')
    a(f"s_add_u32 s{sKV}, s{sKV}, 0x80000\ns_mov_b32 s{sFL}, {DBG_DN + DBG_KV0}\ns_mov_b64 {sr(sFM,2)}, 0\nv_mov_b32 v{FLV}, 32\ns_mov_b32 s{sSPIN}, 0")
    for l in idle_work():
        if not l.startswith('ds_'): a(l)
    a.wait(lg='all')
    if P.get('stat'): a("s_memrealtime s[64:65]\ns_waitcnt lgkmcnt(0)")
    a.label(f'L_cpe_{w}')
    a(f"s_branch L_step_{w}")

def idle_work():
    L = [f"ds_read_b128 {vr(ST + 8*u + 4*hf, 4)}, v{A_W} offset:{lw_qk(0, u) + 1024*hf}" for u in range(4) for hf in range(2)]
    L += [f"v_mov_b64 {vr(Q0+i,2)}, 0" for i in range(0, 24, 2)]
    return L

DEF = dict(b1=3, nL=10, nB2=5, nv1=3, nv2=0, nvA=5, sv=9, so=1, nr4=3, earlyL=0, dH1=[26, 42, 64, 78], dE=[32, 16, 0, 0], h2=[28, 28, 28, 28], dwf=0, cs=0, g2v=0, dup=1, c1=0, lb1=0, svp=[-1, 0, 2, 4], dp=None, sync=0, fpos=-2, pp=[-1, 1, 3, 5, 7, 11], pE=20, inGap=[0, 0, 0, 1], nPre=[0, 0, 0, 0],
           dS=[-1, -1], kw=0, vmPos=None, mx=1, g2w=1, nd=0, ad=1, nrc=4, dma0=14, nE=3, dT=0, stg=1)
def pack_km():
    X = Q0
    L = [f"v_mov_b32_dpp v{X+2}, v{X} row_ror:8 row_mask:0xf bank_mask:0x3", f"v_mov_b32_dpp v{X+3}, v{X+1} row_ror:8 row_mask:0xf bank_mask:0x3",
         f"v_min_u32 v{ONE}, -2, v{X+2}", f"v_min_u32 v{ONE+1}, -2, v{X+3}"]
    for t in range(2):
        p = V0 + 2 * t
        L += [f"v_lshlrev_b32 v{X}, 16, v{p}", f"v_lshlrev_b32 v{X+1}, 16, v{p+1}", f"v_and_b32 v{p}, 0xffff0000, v{p}", f"v_and_b32 v{p+1}, 0xffff0000, v{p+1}",
              f"v_add_f32 v{X}, v{X}, v{X+1}", f"v_add_f32 v{X+1}, v{p}, v{p+1}", f"v_cvt_pk_bf16_f32 v{X}, v{X}, v{X+1}", f"v_min_u32 v{ONE+2+t}, -2, v{X}"]
    return L
def sync_tmp(P, w):
    if not P['sync']: return []
    if w == 3: return [f"v_bfe_u32 v{MA+24}, v{L16}, 2, 7"]
    if w < 2: return [f"v_mov_b32 v{MA+24}, s{sS}"]
    return []
def b_tail(a, P):
    WS = sr(S_WS, 4); HB, HD, T1 = MA + 20, MA + 8, MA + 12
    a.label('L_btail')
    if P.get('stat'): a("s_memrealtime s[66:67]")
    for T, r in enumerate([Q1, KX, V1, ONE]): a(f"s_mov_b32 s{sT}, {WS_H1B + 65536*T}\nbuffer_store_dwordx2 {vr(r,2)}, v{A_H1S}, {WS}, s{sT} offen sc1")
    for l in pack_km(): a(l)
    a(f"buffer_store_dwordx4 {vr(ONE,4)}, v{L16}, {WS}, s{sKMv} offen sc1\ns_waitcnt vmcnt(0)")
    if P.get('stat'): a("s_memrealtime s[68:69]")
    a.label('L_bt1')
    a(f"""
    s_sleep {P.get('bsl', 2)}
    buffer_load_dwordx4 {vr(HB,4)}, v{L16}, {WS}, s{sH1l} offen sc1
    buffer_load_dwordx4 {vr(HB+4,4)}, v{L16}, {WS}, s{sH1l} offen offset:1024 sc1
    s_add_u32 s{sSPIN}, s{sSPIN}, 1
    s_cmp_gt_u32 s{sSPIN}, {SPIN_MAX}
    s_cbranch_scc1 L_end
    s_waitcnt vmcnt(0)
    v_mfma_f32_16x16x32_bf16 {vr(HD,4)}, {vr(SEL,4)}, {vr(HB,4)}, 0
    v_or_b32 v{T1}, v{HB}, v{HB+2}
    v_or3_b32 v{T1}, v{T1}, v{HB+4}, v{HB+6}
    v_mfma_f32_16x16x32_bf16 {vr(HD,4)}, {vr(SEL,4)}, {vr(HB+4,4)}, {vr(HD,4)}
    v_and_b32 v{T1}, 1, v{T1}
    v_cmp_ne_u32 vcc, 0, v{T1}
    s_nop 4
    """)
    for n in (4, 8):
        for r in (HD, HD + 1): a(f"v_add_f32_dpp v{r}, v{r}, v{r} row_ror:{n} row_mask:0xf bank_mask:0xf")
        a("s_nop 0")
    a(f"""
    v_cvt_pk_bf16_f32 v{HD}, v{HD}, v{HD+1}
    s_cbranch_vccnz L_bt1
    buffer_store_dword v{HD}, v{A_IMS}, {WS}, s{sIMw} offen sc1
    """)
    if P.get('stat'):
        a("s_memrealtime s[70:71]\ns_waitcnt lgkmcnt(0)")
        for k, r in enumerate([100, 64, 66, 68, 70, sSPIN]): a(f"v_mov_b32 v{56+k}, s{r}")
        a(f"s_lshl_b32 s{sT}, s{sH}, 2\ns_add_u32 s{sT}, s{sT}, s{sW}\ns_lshl_b32 s{sT}, s{sT}, 5\ns_add_u32 s{sT}, s{sT}, {WS_STAMP + (768 << 10)}\ns_mov_b64 exec, 1")
        a(f"buffer_store_dwordx4 v[56:59], v{L16}, {WS}, s{sT} offen\nbuffer_store_dwordx4 v[60:63], v{L16}, {WS}, s{sT} offen offset:16\ns_mov_b64 exec, -1")
    a(f"""
    v_lshrrev_b32 v0, 4, v{L16}
    s_mov_b32 s80, 4
    s_mov_b32 s{sT}, 1
    s_waitcnt vmcnt(0) lgkmcnt(0)
    s_branch L_helper2
    """)
LASTV = []
def chain_last(a):
    for q in LASTV: smf(a, *q)
    a("s_nop 7")
    for d, s0 in ((V0, V0), (V0 + 1, V0 + 2), (V0 + 2, V1), (V0 + 3, V1 + 2)): a(f"v_cvt_pk_bf16_f32 v{d}, v{s0}, v{s0+1}")
    L = pack_km()
    for l in L[:2]: a(l)
    a(f"v_permlane32_swap_b32 v{V0}, v{V0+1}\nv_permlane32_swap_b32 v{V0+2}, v{V0+3}")
    for l in L[2:]: a(l)
    a(f"buffer_store_dwordx4 {vr(ONE,4)}, v{L16}, {sr(S_WS,4)}, s{sKM} offen sc1")
LISTING = {}
def chain_step(a, P0, w):
    P = dict(DEF); P.update(P0)
    allow = P.get('stamps', [])
    used = []
    def stamp(k):
        if k in allow:
            a(f"s_memtime s[{72+2*len(used)}:{73+2*len(used)}]"); used.append(k)
            if P.get('rt'): a(f"s_memrealtime s[{72+2*len(used)}:{73+2*len(used)}]"); used.append(k)
    WS = sr(S_WS, 4)
    acc = [Q0, K0, Q1, K1]
    lb = lambda s: f"L_{s}_{w}"
    own = 2048 * w
    oth = lambda q: 2048 * ((w + q) & 3)
    T0 = MA + 28
    ldE = f"buffer_load_dwordx4 {vr(MA,4)}, v{L16}, {WS}, s{sIMl} offen sc1"
    ldL = f"buffer_load_dwordx4 {vr(MA+16,4)}, v{L16}, {WS}, s{sIML} offen sc1"
    chkE = f"v_max3_u32 v{T0}, v{MA}, v{MA+1}, v{MA+2}\nv_max_u32 v{T0}, v{T0}, v{MA+3}\nv_cmp_eq_u32 vcc, -1, v{T0}"
    chkL = [f"v_max3_u32 v{T0}, v{MA+16}, v{MA+17}, v{MA+18}", f"v_max_u32 v{T0}, v{T0}, v{MA+19}", f"v_cmp_eq_u32 vcc, -1, v{T0}"]
    if P['c1']:
        chkE = f"v_cmp_eq_u32 vcc, -1, v{MA+3}"
        chkL = ["s_nop 0", "s_nop 0", f"v_cmp_eq_u32 vcc, -1, v{MA+19}"]
    ldF = f"buffer_load_dword v{FLV}, off, {sr(S_DBG,4)}, s{sFL} sc1"
    cvF = [f"v_subrev_u32 v{FLV}, 32, v{FLV}", f"v_ashrrev_i32 v{FLV}, 31, v{FLV}"]
    dwE = f"ds_write_b128 v{L16}, {vr(MA,4)} offset:{L_MEM + own}"
    dwL = f"ds_write_b128 v{L16}, {vr(MA+16,4)} offset:{L_MEM + own + 1024}"
    cv = lambda d, s0: f"v_cvt_pk_bf16_f32 v{d}, v{s0}, v{s0+1}"
    z2 = lambda r: f"v_mov_b64 {vr(r,2)}, 0"
    ror8 = lambda d, s0, bm: f"v_mov_b32_dpp v{d}, v{s0} row_ror:8 row_mask:0xf bank_mask:{bm}"
    mf32 = lambda D, A, B, C: a(f"v_mfma_f32_16x16x32_bf16 {vr(D,4)}, {vr(A,4)}, {vr(B,4)}, {vr(C,4) if C is not None else 0}")
    mf16 = lambda D, A, B, C: a(f"v_mfma_f32_16x16x16_bf16 {vr(D,4)}, {vr(A,2)}, {vr(B,2)}, {vr(C,4) if C is not None else 0}")
    def wdelay(n):
        while P['kw'] and n >= 8:
            mf32(MA + 24, F, F, None); a("s_nop 2"); mf32(MA + 4, F, F, None); a("s_nop 2"); n -= 8
        nops(a, n)
    a.label(lb('top'))
    a("s_waitcnt vmcnt(0)")
    a.vm = []; a.lg = []
    stamp(0)
    EB = MA + 20 if P['dwf'] else MA
    ldB = ldE.replace(vr(MA, 4), vr(EB, 4))
    if P['dwf']:
        a(dwE, lg='we'); a(chkE); a(ldL, vm='L2')
        a(f"s_cbranch_vccnz {lb('f1')}")
    else:
        if P['earlyL']: a(ldL, vm='L2')
        a(chkE)
        a(dwE, lg='we')
        a(f"s_cbranch_vccnz {lb('f1')}")
        if not P['earlyL'] and not P.get('lateL'): a(ldL, vm='L2')
    a.label(lb('go'))
    igo = len(a.lines)
    stamp(14)
    KVF = P.get('kvf', 'sc1')
    dma = [f"buffer_load_dwordx4 v{L16}, {WS}, s{sKV} offen offset:{1024*k} {KVF} lds" for k in range(4)]
    mrd = lambda s: f"ds_read_b128 {vr(MA+4*s,4)}, v{L16} offset:{L_MEM + oth(s & 3) + 1024*(s>>2)}"
    r2 = [f"ds_read_b128 {vr(ST + 8*u + 4*hf, 4)}, v{A_W} offset:{lw_qk(4, u) + 1024*hf}" for u in range(4) for hf in range(2)]
    r3 = [f"ds_read_b128 {vr(ST + 8*k + 4*hf, 4)}, v{A_W} offset:{lw_wo(2,k) + 1024*hf}" for k in range(4) for hf in range(2)]
    vq = [(V0 + 4 * tau, MA + 4 * s, wv_reg(s, tau)) for s in range(8) for tau in range(2)]
    qk = lambda s: [(acc[u], MA + 4 * s, wqk_reg(s, u)) for u in range(4)]
    sA = qk(0) + [vq.pop(0), vq.pop(0)]
    stV = f"buffer_store_dwordx4 {vr(ONE,4)}, v{L16}, {WS}, s{sKMv} offen sc1"
    for k in range(P['b1']):
        smf(a, *sA.pop(0))
        if k == P['sv']: a(stV, vm='km')
        if P.get('lateL') == k + 2: a(f"s_mov_b64 exec, {sr(sLX,2)}"); a(ldL, vm='L2'); a("s_mov_b64 exec, -1")
    a.wait(lg='all')
    a("s_barrier")
    stamp(1)
    a(mrd(1), lg=('ma', 1)); a(mrd(2), lg=('ma', 2))
    smf(a, *sA.pop(0))
    a(mrd(3), lg=('ma', 3))
    if P.get('lateL') == 1: a(f"s_mov_b64 exec, {sr(sLX,2)}"); a(ldL, vm='L2'); a("s_mov_b64 exec, -1")
    sync = P['sync']; TS = MA + 24
    prober = sync and w == 3; poster = sync and w < 2
    probe = f"buffer_load_dword v{FLV}, v{TS}, {WS}, s{sFG} offen sc1"
    post = f"s_mov_b64 exec, 1\nbuffer_store_dword v{TS}, off, {WS}, s{sFG}\ns_mov_b64 exec, -1"
    pp = list(P['pp']); npr = len(pp)
    def syncops(n):
        c = 0
        if poster and n == P['fpos']: a(post, vm='fg'); c = 2
        if prober and n in pp: a(probe, vm=('P', pp.index(n))); c = 1
        return c
    svp = P['svp'][w]
    if P['sv'] == 9 and svp < 0: a(stV, vm='km')
    syncops(-len(sA) - 1)
    while sA:
        smf(a, *sA.pop(0)); syncops(-len(sA) - 1)
    dupA = a.lines[igo:]
    a.label(lb('go2'))
    seq = qk(1) + qk(2) + qk(3) + [vq.pop(0) for _ in range(P['nv1'])]
    i4 = len(seq); seq += qk(4) + [vq.pop(0) for _ in range(P['nv2'])]
    i5 = len(seq); seq += qk(5)
    i6 = len(seq); q6, q7 = qk(6), qk(7)
    seq += [q6[0], q6[1], q7[0], q7[1], q6[2], q6[3], q7[2], q7[3]]
    nL, nB = P['nL'], P['nL'] + P['nB2']
    assert i4 >= nL + 4 and nB <= i5
    KVST = 0 if P.get('kvfix') else 0x80000
    ones = [f"v_mov_b64 {vr(ONE,2)}, {sr(sONE,2)}", f"v_mov_b64 {vr(ONE+2,2)}, {sr(sONE,2)}"]
    bk = False
    for n, q in enumerate(seq):
        if n == 0: a.wait(lg=('ma', 1))
        if n == 4: a.wait(lg=('ma', 3))
        if n == nL:
            stamp(2)
            a.wait(vm='L2'); a(dwL, lg='wl')
            if not P['c1']: a(chkL[0])
            if prober: a.wait(vm=('P', 0)); a(f"v_subrev_u32 v{T0+1}, s{sS}, v{FLV}")
        if n == nB:
            a.wait(lg='all' if not r2 else 'wl'); a("s_barrier"); stamp(3); a(mrd(5), lg=('ma', 5))
        if n == i4 and 'r2' in a.lg: a.wait(lg='r2')
        if n == i5: a.wait(lg=('ma', 5))
        if n == i6: a.wait(lg=('ma', 7))
        smf(a, *q)
        cap = 2 - (n + 1 in (4, i5, i6)) - (n >= i6 + 4) - (n in (nL, nL + 1))
        if n == nB: a(mrd(6), lg=('ma', 6)); a(mrd(7), lg=('ma', 7)); cap = 0
        if P['sv'] == 9 and n == svp: a(stV, vm='km')
        cap = max(cap - syncops(n), 1 if r2 else 0)
        dp = P['dp']
        if dp:
            if dma and dp[4 - len(dma)] < 100 and n >= dp[4 - len(dma)] + w and n != nB: a(dma.pop(0), vm='dma'); cap = max(cap - 1, 1 if r2 else 0)
        elif dma and cap and n > nB and n >= min(nB + 1 + w * P['stg'] + 4 * (4 - len(dma)), len(seq) - 1):
            a(dma.pop(0), vm='dma'); cap -= 1
        if r2 and cap and n + 1 != nL and not (nL <= n < nB): a(r2.pop(0), lg='r2'); cap -= 1
        elif r3 and cap and n > nB and n >= i4 + (8 - len(r3)) // 2: a(r3.pop(0), lg='r3'); cap -= 1
        if ones and cap and n >= i5 and P['sv'] == 9: a(ones.pop(0))
        if n == nL: a(chkL[1] if not prober else f"v_max3_u32 v{T0+1}, v{T0}, v{MA+19}, v{T0+1}")
        if n == nL + 1: a(chkL[2] if not prober else f"v_cmp_eq_u32 vcc, -1, v{T0+1}")
        if n == nL + 3:
            a(f"s_cbranch_vccnz {lb('p1' if prober else 'rL')}"); a.label(lb('bL'))
            if prober: assert len(a.vm) == npr - 1
        if P.get('tb', 1) and P.get('ba') and n >= i6 and not bk:
            if cap == 2 or n == i6 + 3: a(f"s_cbranch_scc1 L_c_m6_{w}"); a.label(f'L_bk_{w}'); bk = True
        if P.get('tb', 1) and P.get('ba') and n == nL + 2: a(f"s_cmp_lg_u32 s{sRB}, 0")
        if n == i6 + 4: a(cv(Q0, Q0))
        if n == i6 + 5: a(cv(Q0 + 1, Q0 + 2))
        if n == i6 + 6: a(cv(Q0 + 2, K0))
    assert not r3 and not r2, (len(r2), len(r3), len(dma))
    stamp(4)
    a(cv(Q0 + 3, K0 + 2))
    a("s_nop 0")
    a(cv(Q1, Q1))
    mf32(K0, Q0, F, None)
    a(cv(Q1 + 1, Q1 + 2)); a(cv(Q1 + 2, K1)); a(cv(Q1 + 3, K1 + 2))
    a("s_nop 1")
    mf32(K1, Q1, F, None)
    X = Q0
    a(cv(X, K0)); a(cv(X + 1, K0 + 2))
    rsI = f"buffer_store_dword v{NEG1}, v{A_IMS}, {WS}, s{sIMr} offen"
    S1, S2, SM = Q1, K0, K1
    if not P['mx']:
        smf(a, *vq.pop(0))
        a("s_nop 0"); a(f"buffer_store_dword v{NEG1}, v{A_IMS}, {WS}, s{sIMr} offen", vm='rs'); a("s_nop 1")
        a(cv(X + 2, K1)); a(cv(X + 3, K1 + 2))
        a("s_nop 1")
        S1, S2, SM = Q1, K0, K1
        mf32(SM, X, X, None); mf32(S2, KX + 4, X, None); mf32(S1, KX, X, None)
        for r in range(2): a(ror8(SM + r, SM + 2 + r, '0xc'))
        smf(a, *vq.pop(0))
        a("s_nop 0")
        a(f"ds_write2_b32 v{A_SMW}, v{SM}, v{SM+1} offset0:0 offset1:32")
        a("s_nop 1")
        for r in range(4): a(ror8(S1 + r, S2 + r, '0xc'))
        smf(a, *vq.pop(0))
        a(f"ds_write_b128 v{L16}, {vr(S1,4)} offset:{L_S + own}")
    else:
        assert all(q[1] >= MA + 8 for q in vq)
        XL, XH = MA, MA + 4
        lo = lambda r: a(f"v_cndmask_b32 v{XL+r}, 0, v{X+r}, {sr(sMLO,2)}")
        hi = lambda r: a(f"v_mov_b32_dpp v{XH+r}, v{X+r} row_shr:8 row_mask:0xf bank_mask:0xf bound_ctrl:1")
        lo(0); lo(1); hi(0); hi(1); a("s_nop 0")
        a(cv(X + 2, K1)); a(cv(X + 3, K1 + 2))
        lo(2); lo(3)
        mf32(SM, X, X, None)
        hi(2); hi(3)
        mf32(S1, KX, XL, None)
        a("s_nop 0")
        mf32(S1, KX + 4, XH, S1)
        for r in range(2): a(ror8(SM + r, SM + 2 + r, '0xc'))
        dw2 = f"ds_write2_b32 v{A_SMW}, v{SM}, v{SM+1} offset0:0 offset1:32"
        dw4 = f"ds_write_b128 v{L16}, {vr(S1,4)} offset:{L_S + own}"
        smf(a, *vq.pop(0))
        if P['so'] == 0: a("s_nop 0"); a(dw2); a("s_nop 1"); a(dw4)
        elif P['so'] == 1: a("s_nop 0"); a(dw2); smf(a, *vq.pop(0)); a(dw4)
        else: smf(a, *vq.pop(0)); a(dw4); a(dw2)
    stamp(5)
    for k in range(P['nvA']):
        smf(a, *vq.pop(0))
        if k == P['nvA'] - 3: a(f"s_cmp_eq_u32 s{sS}, 63")
        if k == P['nvA'] - 2:
            a("s_cbranch_scc1 L_last"); LASTV[:] = list(vq)
        if k == 1 and w == 0:
            if P.get('fsk', 1):
                a(f"s_mov_b64 exec, {sr(sFM,2)}"); a(ldF, vm='fl'); a("s_mov_b64 exec, -1")
            else: a(ldF, vm='fl')
        if dma and dp[4 - len(dma)] == 100 and k == w + 1: a(dma.pop(0), vm='dma')
        if P['sv'] == 20 and k == min(3 - w, P['nvA'] - 1): a(stV, vm='km')
        if k == (w & 1) + (2 if w >= 2 and P['sv'] == 20 else 0) and P['mx']: a(rsI, vm='rs')
    a.wait(lg='all')
    a("s_barrier")
    stamp(6)
    R1, R2, R3, RM = K0, KX, KX + 4, K1
    a(f"ds_read_b128 {vr(RM,4)}, v{L16} offset:{L_SM}", lg='rm')
    a(f"ds_read_b128 {vr(R1,4)}, v{L16} offset:{L_S + oth(1)}", lg='r1')
    smf(a, *vq.pop(0))
    a(f"ds_read_b128 {vr(R2,4)}, v{L16} offset:{L_S + oth(2)}", lg='r2')
    a(f"ds_read_b128 {vr(R3,4)}, v{L16} offset:{L_S + oth(3)}", lg='r3')
    while vq:
        smf(a, *vq.pop(0))
        if dma and len(vq) <= max(2 - w, 0): a(dma.pop(0), vm='dma')
        if ones: a(ones.pop(0))
    assert not ones and not dma
    for _ in range(P.get('npd', 0)): mf16(MA, F, F, None)
    pka = lambda d, s0: f"v_pk_add_f32 {vr(d,2)}, {vr(d,2)}, {vr(s0,2)}"
    a.wait(lg='r1')
    a(f"v_add_f32 v{RM}, v{RM}, v{RM+1}\nv_add_f32 v{RM+2}, v{RM+2}, v{RM+3}")
    a(f"v_add_f32 v{S1}, v{S1}, v{R1}\nv_add_f32 v{S1+1}, v{S1+1}, v{R1+1}")
    a(pka(S1 + 2, R1 + 2))
    a(f"v_add_f32 v{RM}, v{RM}, v{RM+2}")
    if P['ad']:
        a.wait(lg='all')
        stamp(7)
        a(pka(R2, R3)); a(pka(R2 + 2, R3 + 2)); a(pka(S1, R2)); a(pka(S1 + 2, R2 + 2))
    else:
        a.wait(lg='r2')
        a(pka(S1, R2)); a(pka(S1 + 2, R2 + 2))
        a.wait(lg='all')
        stamp(7)
        a(pka(S1, R3)); a(pka(S1 + 2, R3 + 2))
    m0, m1 = K0, K0 + 1
    a(f"v_max3_f32 v{m0}, v{RM}, v{S1}, v{S1+1}")
    a(f"v_max3_f32 v{m0}, v{m0}, v{S1+2}, v{S1+3}")
    a(cv(V0, V0)); a(cv(V0 + 1, V0 + 2))
    a(f"v_max_f32_dpp v{m1}, v{m0}, v{m0} row_ror:8 row_mask:0xf bank_mask:0xf")
    a(f"v_max_f32_dpp v{m0}, v{m0}, v{m0} row_ror:8 row_mask:0xf bank_mask:0xf")
    a(cv(V0 + 2, V1)); a(cv(V0 + 3, V1 + 2))
    a(f"v_permlane32_swap_b32 v{m0}, v{m1}")
    a(f"v_max_f32 v{m0+2}, v{m0}, v{m1}")
    a(f"v_max_f32 v{m0+3}, v{m0}, v{m1}")
    a(f"v_permlane32_swap_b32 v{V0}, v{V0+1}")
    a(f"v_permlane32_swap_b32 v{V0+2}, v{V0+3}")
    a(f"v_permlane16_swap_b32 v{m0+2}, v{m0+3}")
    a(f"v_max_f32 v{m0}, v{m0+2}, v{m0+3}")
    a(f"v_mul_f32 v{m0}, s{sC}, v{m0}")
    a(f"v_fma_f32 v{RM}, v{RM}, s{sC}, -v{m0}")
    pkf = lambda r: f"v_pk_fma_f32 {vr(r,2)}, {vr(r,2)}, {sr(sC,2)}, {vr(m0,2)} op_sel_hi:[1,1,0] neg_lo:[0,0,1] neg_hi:[0,0,1]"
    ks = [(w + q) & 3 for q in range(1, 4)]
    r4 = [f"ds_read_b128 {vr(MA + 8*k + 4*hf, 4)}, v{A_W} offset:{lw_wo(3,k) + 1024*hf}" for k in [w] + ks for hf in range(2)]
    rd4 = lambda: a(r4.pop(0), lg='r4') if r4 else None
    BX, BM = K0, MA + 8 * ks[2] + 4
    O0, O1, L = KX, V1, K1
    a(f"v_exp_f32 v{RM}, v{RM}")
    a(pkf(S1)); a(pkf(S1 + 2))
    a(ror8(RM + 1, RM, '0xf'))
    a(cv(BM, RM)); a(cv(BM + 1, RM))
    a(f"v_exp_f32 v{S1}, v{S1}\nv_exp_f32 v{S1+1}, v{S1+1}")
    mf16(O0, V0, BM, None)
    a(f"v_exp_f32 v{S1+2}, v{S1+2}\nv_exp_f32 v{S1+3}, v{S1+3}")
    a(cv(BX, S1)); a(cv(BX + 1, S1 + 2))
    mf16(O1, V0 + 2, BM, None)
    a(ror8(BX + 2, BX, '0xf')); a(ror8(BX + 3, BX + 1, '0xf'))
    AC = [Q1, KX, V1, ONE]
    OW = KX + 4
    a(z2(AC[0])); a(z2(AC[0] + 2))
    mf32(O0, VX, BX, O0)
    stamp(8)
    if P['nr4'] >= 1: rd4()
    if P['nr4'] >= 4: rd4()
    mf32(O1, VX + 4, BX, O1)
    if P['nr4'] >= 2: rd4()
    if P['nr4'] >= 3: rd4()
    mf16(L, BM, HZ, None)
    a(cv(OW, O0)); a(cv(OW + 1, O0 + 2))
    a(z2(AC[1])); a(z2(AC[1] + 2))
    a(cv(OW + 2, O1)); a(cv(OW + 3, O1 + 2))
    mf32(L, BX, ONE, L)
    a("s_nop 0")
    a(f"ds_write_b128 v{A_OW}, {vr(OW,4)} offset:{L_O + own}")
    stamp(9)
    for r in range(4): a(ror8(OW + r, OW + r, '0xc'))
    a(z2(AC[2])); a(z2(AC[2] + 2))
    if P.get('z3', 1): a(z2(AC[3]))
    rcp = lambda r: a(f"v_rcp_f32 v{L+r}, v{L+r}")
    for r in range(P['nrc']): rcp(r)
    smf(a, AC[0], OW, wo_reg(0, w))
    a.wait(lg='all')
    a("s_barrier")
    stamp(10)
    OA = {ks[0]: VX, ks[1]: VX + 4, ks[2]: K0, w: OW}
    oard = lambda k: a(f"ds_read_b128 {vr(OA[k],4)}, v{A_O} offset:{L_O + 2048*k}", lg=('oa', k))
    g2 = lambda T, k: smf(a, AC[T], OA[k], wo_reg(T, k))
    mul = lambda T, r: a(f"v_mul_f32 v{AC[T]+r}, v{AC[T]+r}, v{L+r}")
    def cvt(T, r):
        a(cv(AC[T] + r, AC[T] + 2 * r))
        if r == 1: a(f"v_bfi_b32 v{AC[T]}, 1, s{sTAG}, v{AC[T]}")
    sto = lambda T: f"buffer_store_dwordx2 {vr(AC[T],2)}, v{A_H1S}, {WS}, s{sH1+T} offen"
    oard(ks[0]); oard(ks[1])
    g2(1, w); oard(ks[2]); a(z2(AC[3] + (2 if P.get('z3', 1) else 0)))
    g2(2, w)
    if not P.get('z3', 1): a(z2(AC[3] + 2))
    for r in range(P['nrc'], 4): rcp(r)
    own3 = P['nr4'] >= 2 and P.get('own3', 1)
    if own3: a("s_nop 1"); g2(3, w)
    a.wait(lg=('oa', ks[0])); g2(0, ks[0]); stamp(20); rd4()
    a.wait(lg=('oa', ks[1])); g2(0, ks[1]); rd4()
    a.wait(lg=('oa', ks[2])); g2(0, ks[2]); rd4()
    g2(1, ks[0]); rd4()
    if P['g2v'] >= 3:
        rd4(); a("s_nop 1")
        for r in range(4): mul(0, r)
        cvt(0, 0); cvt(0, 1)
        g2(1, ks[1]); a("s_nop 0"); a(sto(0), vm='h1')
        g2(1, ks[2]); g2(2, ks[0])
        if P['g2v'] == 3: g2(2, ks[1])
        else: a("s_nop 3")
        for r in range(4): mul(1, r)
        cvt(1, 0); cvt(1, 1)
        if P['g2v'] == 4: g2(2, ks[1]); a("s_nop 0"); a(sto(1), vm='h1')
    else:
        g2(1, ks[1]); rd4(); mul(0, 0)
        g2(1, ks[2]); rd4()
        mul(0, 1); mul(0, 2); mul(0, 3); cvt(0, 0); cvt(0, 1)
    assert not r4 or P['g2v'] == 0
    pkm = lambda T: a(f"v_pk_mul_f32 {vr(AC[T],2)}, {vr(AC[T],2)}, {vr(L,2)}\nv_pk_mul_f32 {vr(AC[T]+2,2)}, {vr(AC[T]+2,2)}, {vr(L+2,2)}")
    if P['g2v'] == 0:
        g2(2, ks[0]); a("s_nop 0"); a(sto(0), vm='h1')
        while r4: rd4()
        for r in range(4): mul(1, r)
        cvt(1, 0); cvt(1, 1)
        g2(2, ks[1]); a("s_nop 0"); a(sto(1), vm='h1')
    elif P['g2v'] == 1:
        a("s_nop 1"); a(sto(0), vm='h1')
        pkm(1); cvt(1, 0); cvt(1, 1)
        g2(2, ks[0]); a("s_nop 0"); a(sto(1), vm='h1')
        g2(2, ks[1])
    elif P['g2v'] == 2:
        pkm(1); cvt(1, 0); cvt(1, 1)
        g2(2, ks[0]); a("s_nop 0"); a(sto(0), vm='h1'); a(sto(1), vm='h1')
        g2(2, ks[1])
    stamp(21)
    g2(2, ks[2])
    if P['g2v'] == 3: a("s_nop 0"); a(sto(1), vm='h1')
    a.wait(lg='all')
    if not own3: g2(3, w)
    a(f"s_add_u32 s{sIMl}, s{sIMw}, {1024*(w ^ (2 if P.get('sw', 2) else 0))}\ns_add_u32 s{sIML}, s{sIMw}, {4096+1024*(w ^ (2 if P.get('sw', 2) == 2 else 0))}")
    g2(3, ks[0]); a(f"s_add_u32 s{sS}, s{sS}, 1\ns_mov_b32 s{sKMv}, s{sKM}")
    if not own3: mul(2, 0)
    g2(3, ks[1]); mul(2, 1)
    g2(3, ks[2])
    if own3: mul(2, 0)
    mul(2, 2); mul(2, 3); cvt(2, 0); cvt(2, 1)
    dS = P['dS']
    a(f"s_add_u32 s{sKM}, s{sKM}, 0x20000\ns_add_u32 s{sKV}, s{sKV}, {KVST}")
    if dS[0] < 0: a(sto(2), vm='h1')
    c = AC[3]
    a(f"v_pk_mul_f32 {vr(c,2)}, {vr(c,2)}, {vr(L,2)}\nv_pk_mul_f32 {vr(c+2,2)}, {vr(c+2,2)}, {vr(L+2,2)}")
    cvt(3, 0); cvt(3, 1)
    a(f"s_cmp_lg_u32 s{sRB}, 0\ns_nop 0")
    if dS[1] < 0: a(sto(3), vm='h1')
    stamp(11)
    HA = KX
    ld1 = [f"buffer_load_dwordx4 {vr(HA+4*c_,4)}, v{L16}, {WS}, s{sH1l} offen offset:{1024*c_} sc1" for c_ in range(2)]
    HD, T1 = MA + 8, MA + 12
    idle = idle_work()
    late = [l for l in idle if any(l.startswith(f"v_mov_b64 v[{r}:") for r in (Q0, Q0 + 2, V0, V0 + 2, V1, V1 + 2))]
    dsq = [l for l in idle if l.startswith('ds_')]
    idle = [l for l in idle if l not in late and l not in dsq]
    ev = [(max(dS[k], 0), k, [(sto(2 + k) if dS[k] >= 0 else None, 'h1')]) for k in range(2)]
    ev.append((P['dH1'][w], -1 if w < 2 else 2, [(ld1[0], 'H0'), (ld1[1], 'H1')]))
    h2 = P.get('h2', [0, 0, 0, 0])[w]; HB = MA + 20
    if h2: ev.append((P['dH1'][w] + h2, 3, [(ld1[c_].replace(vr(HA + 4 * c_, 4), vr(HB + 4 * c_, 4)), f'B{c_}') for c_ in range(2)]))
    pos = 0; nst = 0
    if P.get('tb', 1):
        assert dS == [-1, -1]
        safe = [l for l in idle if any(l.startswith(f"v_mov_b64 v[{r}:") for r in (K0, K0 + 2, K1, K1 + 2))]
        idle = [l for l in idle if l not in safe]
        nb = 0 if w < 2 else 4
        for l in safe[:nb] + ["s_cbranch_scc1 L_btail"] + safe[nb:]: a(l)
        pos = 7
    for (tpos, _, ops) in sorted(ev):
        while pos < tpos:
            if idle and tpos - pos > 2: a(idle.pop(0)); pos += 1
            elif dsq and nst == 2 and tpos - pos >= 6:
                if P['kw']: mf32(MA + 24 if len(dsq) & 1 else MA + 4, F, F, None); a("s_nop 1")
                else: a("s_nop 2")
                a(dsq.pop(0), lg='pre'); pos += 4
            else: wdelay(tpos - pos); pos = tpos
        for (o, tag) in ops:
            if o: a(o, vm=tag); pos += 1
            if tag == 'h1':
                nst += 1
                if nst == 2: idle += pack_km() + late
    for l in dsq + idle: a(l, lg='pre')
    dE = P['dE'][w]; pE = P['pE']; nPre = P['nPre'][w]; inGap = P['inGap'][w]
    eq = ['E0', 'E1', 'E2', 'E3', 'E4'][:P['nE']]; nE = len(eq)
    for k in range(nPre):
        wdelay(dE if k == 0 else pE); a(ldE if eq[0] == 'E0' else ldB, vm=eq.pop(0))
    nH0 = len(a.vm) - 1 - a.vm.index('H0')
    a(f"s_waitcnt vmcnt({nH0})")
    a.label(lb('a1'))
    stamp(12)
    mf32(HD, SEL, HA, None)
    a(f"v_bitop3_b32 v{T1}, v{HA}, v{HA+2}, s{sTAG} bitop3:0x7e")
    a.wait(vm='H1')
    mf32(HD, SEL, HA + 4, HD)
    a(f"v_bitop3_b32 v{T1+1}, v{HA+4}, v{HA+6}, s{sTAG} bitop3:0x7e\nv_bitop3_b32 v{T1}, v{T1}, v{T1+1}, 1 bitop3:0xa8\nv_cmp_ne_u32 vcc, 0, v{T1}")
    if inGap and eq:
        a("s_nop 1"); a(ldE if eq[0] == 'E0' else ldB, vm=eq.pop(0)); a("s_nop 0")
    else: a("s_nop 3")
    dpa = lambda r, n: f"v_add_f32_dpp v{r}, v{r}, v{r} row_ror:{n} row_mask:0xf bank_mask:0xf"
    a(dpa(HD, 4)); a(dpa(HD + 1, 4)); a("s_nop 0"); a(dpa(HD, 8)); a(dpa(HD + 1, 8))
    a(cv(HD, HD))
    if P['cs']:
        a(f"s_cmp_eq_u64 vcc, 0\ns_cselect_b32 s{sT+2}, s{sIMw}, 0x70000000")
        a(f"buffer_store_dword v{HD}, v{A_IMS}, {WS}, s{sT+2} offen", vm='im')
        if eq and (inGap or (len(eq) == nE and dE == 0)): a(ldE if eq[0] == 'E0' else ldB, vm=eq.pop(0))
        a(f"s_cbranch_vccnz {lb('r1')}")
        dE = max(dE - 4, 0)
    else:
        nB1 = len(a.vm) - 1 - a.vm.index('B1') if h2 else 0
        a(f"s_cbranch_vccnz {lb('r2' if h2 else 'r1')}")
        a(f"buffer_store_dword v{HD}, v{A_IMS}, {WS}, s{sIMw} offen", vm='im')
        a.label(lb('a2'))
        if inGap and eq: a(ldE if eq[0] == 'E0' else ldB, vm=eq.pop(0))
    stamp(13)
    misc = [f"ds_read_b128 {vr(KX+4*k,4)}, v{L16} offset:{L_KV + 4096*w + 1024*k}" for k in range(4)]
    misc += [f"s_mov_b32 s{sIMw}, s{sIMr}", f"s_add_u32 s{sIMr}, s{sIMr}, 0x2000", f"s_and_b32 s{sIMr}, s{sIMr}, 0xffff7fff",
             f"s_xor_b32 s{sTAG}, s{sTAG}, 1"]
    if P.get('lateL'): misc += [f"s_mov_b64 {sr(sLX,2)}, -1"]
    if P.get('nod', 1): misc += [f"s_cmp_eq_u32 s{sS}, 63", f"s_cselect_b32 s{sKV}, 0x70000000, s{sKV}"]
    if w == 0: misc = [f"v_cmp_gt_u32 vcc, 32, v{FLV}"] + misc + [f"s_cbranch_vccnz {lb('rF')}\n{lb('bF')}:", f"s_add_u32 s{sFLn}, s{sS}, 2", f"s_lshr_b32 s{sFLn}, s{sFLn}, 3", f"s_min_u32 s{sFLn}, s{sFLn}, 7", f"s_lshl2_add_u32 s{sFLn}, s{sFLn}, {DBG_DN + DBG_KVC}",
                     f"s_cmp_lt_u32 s{sS}, 2", f"s_cselect_b32 s{sFLn}, {DBG_DN + DBG_KV0}, s{sFLn}",
                     f"s_cmp_lg_u32 s{sFL}, s{sFLn}", f"s_cselect_b64 {sr(sFM,2)}, -1, 0", f"s_mov_b32 s{sFL}, s{sFLn}"]
    misc += sync_tmp(P, w)
    def delay(n):
        while n > 0 and misc: a(misc.pop(0), lg='pre'); n -= 1
        wdelay(n)
    while eq:
        delay(dE if len(eq) == nE else pE); a(ldE if eq[0] == 'E0' else ldB, vm=eq.pop(0))
    delay(len(misc))
    if P.get('pr'):
        i0 = a.lines.index(lb('top') + ':'); i0 = a.lines.index('s_barrier', i0) + 1
        body = a.lines[i0:]; a.lines = a.lines[:i0] + ["s_memtime s[72:73]"]; used = [0]; n = 0
        LISTING[w] = [l for l in body if not l.endswith(':')]
        for l in body:
            if not l.endswith(':'):
                if n in P['pr']: a.lines.append(f"s_memtime s[{72+2*len(used)}:{73+2*len(used)}]"); used.append(n)
                n += 1
            a.lines.append(l)
    if used:
        a("s_waitcnt lgkmcnt(0)")
        if P.get('trace'):
            a("s_nop 7")
            for k in range(len(used)): a(f"v_mov_b32 v{MA+8+k}, s{72+2*k}")
            a(f"s_lshl_b32 s{sT}, s{sH}, 12\ns_lshl_b32 s{sT+1}, s{sS}, 4\ns_add_u32 s{sT}, s{sT}, s{sT+1}\ns_add_u32 s{sT}, s{sT}, {WS_STAMP + 65536 + 1024*w}\ns_mov_b64 exec, 1")
            a(f"buffer_store_dwordx4 {vr(MA+8,4)}, v{L16}, {WS}, s{sT} offen", vm='tr')
            a("s_mov_b64 exec, -1")
        else:
            for k in range(1, len(used)):
                a(f"s_sub_u32 s{sT}, s{72+2*k}, s{70+2*k}\ns_add_u32 s{88+k}, s{88+k}, s{sT}")
    if w == 0: wdelay(P['dT'])
    if P.get('stat'):
        a(f"s_cmp_lg_u32 s{sS}, 3\ns_cbranch_scc1 {lb('top')}\ns_memtime s[68:69]\ns_memrealtime s[62:63]\ns_mov_b32 s70, 0\ns_mov_b32 s71, 0")
        for k in range(8): a(f"s_mov_b32 s{88+k}, 0")
    young = lambda t: len(a.vm) - 1 - a.vm.index(t)
    eL = 1 if P['dwf'] else P['earlyL']
    ns = [young(f'E{k}') + k + (eL if k else 0) for k in range(nE)]
    a.lines[a.lines.index(lb('top') + ':') + 1] = f"s_waitcnt vmcnt({ns[0]}) lgkmcnt(0)"
    a(f"s_branch {lb('top')}")
    end_main = len(a.lines)
    if w == 0:
        a.label('L_last'); chain_last(a); a("s_branch L_exit" if P.get('stat') or P.get('dbgt') else "s_endpgm")
    cnt = lambda r, v: (f"s_add_u32 s{r}, s{r}, {v}\n" if P.get('stat') else '')
    spin = f"s_add_u32 s{sSPIN}, s{sSPIN}, 1\ns_cmp_gt_u32 s{sSPIN}, {SPIN_MAX}\ns_cbranch_scc1 L_exit\n"
    for k in range(1, nE + 1):
        a.label(lb(f'f{k}'))
        late = P['lb1'] and k == 1
        if P['lb1'] and k == 2: a(ldB)
        if P.get('fpad') and k >= P.get('fpk', 1): nops(a, P['fpad'])
        if not late: a(ldB)
        a(f"s_waitcnt vmcnt({(ns[k] if k < nE else nE - 1) - (1 if late else 0)})")
        if P['dwf']: a(f"v_mov_b64 {vr(MA,2)}, {vr(EB,2)}\nv_mov_b64 {vr(MA+2,2)}, {vr(EB+2,2)}\ns_nop 0"); a(dwE); a(chkE)
        else: a(chkE); a(cnt(71, 1) or 's_nop 0'); a(dwE)
        a(f"s_cbranch_vccnz {lb(f'f{k+1}')}")
        if not P.get('lateL'): a(ldL)
        if P['dup'] and k == 1:
            a.lines += dupA; a(f"s_branch {lb('go2')}")
        else: a(f"s_branch {lb('go')}")
    a.label(lb(f'f{nE+1}'))
    a(spin + f"s_branch {lb(f'f{nE}')}")
    if prober:
        a.label(lb('p1'))
        a(probe); a(chkL[1]); a(chkL[2]); a(f"s_cbranch_vccnz {lb('rL')}")
        a. label(lb('p2'))
        for k in range(3):
            a(cnt(70, 65536) + f"s_waitcnt vmcnt({npr-1})\nv_cmp_ne_u32 vcc, s{sS}, v{FLV}"); a(probe); a(f"s_cbranch_vccz {lb('bL')}")
        a(spin + f"s_branch {lb('p2')}")
    a.label(lb('rL'))
    a(ldL)
    a(cnt(71, 65536) + spin + "s_waitcnt vmcnt(0)")
    a(dwL)
    a('\n'.join(chkL))
    a(f"s_waitcnt lgkmcnt(0)\ns_cbranch_vccnz {lb('rL')}\ns_branch {lb('p2' if prober else 'bL')}")
    if w == 0:
        a.label(lb('rF'))
        a(ldF); a(spin + f"s_waitcnt vmcnt(0)\nv_cmp_gt_u32 vcc, 32, v{FLV}\ns_cbranch_vccnz {lb('rF')}\ns_branch {lb('bF')}")
    if h2:
        a.label(lb('r2'))
        a(f"s_waitcnt vmcnt({nB1})")
        mf32(HD, SEL, HB, None)
        a(f"v_bitop3_b32 v{T1}, v{HB}, v{HB+2}, s{sTAG} bitop3:0x7e\nv_bitop3_b32 v{T1+1}, v{HB+4}, v{HB+6}, s{sTAG} bitop3:0x7e")
        mf32(HD, SEL, HB + 4, HD)
        a(f"v_bitop3_b32 v{T1}, v{T1}, v{T1+1}, 1 bitop3:0xa8\nv_cmp_ne_u32 vcc, 0, v{T1}\n" + (cnt(70, 65536) or 's_nop 0\n') + "s_nop 3")
        a(dpa(HD, 4)); a(dpa(HD + 1, 4)); a("s_nop 0"); a(dpa(HD, 8)); a(dpa(HD + 1, 8))
        a(cv(HD, HD))
        a(f"s_cbranch_vccnz {lb('r1')}")
        a(f"buffer_store_dword v{HD}, v{A_IMS}, {WS}, s{sIMw} offen")
        a(f"s_branch {lb('a2')}")
    a.label(lb('r1'))
    a(ld1[0]); a(ld1[1])
    a(cnt(70, 1) + spin + f"s_waitcnt vmcnt(0)\ns_branch {lb('a1')}")
    a.label(lb('step'))
    if P.get('lateL'): a(f"s_mov_b64 {sr(sLX,2)}, 0")
    for l in sync_tmp(P, w): a(l)
    a(dwE)
    a(f"s_branch {lb('go')}")
    return end_main, None
```

```python
from asmlib import *
from chain import WS_IMB, WS_KV, WS_KM, WS_SIZE, DBG_KVC, DBG_KV0, DBG_DN, DBG_ARM, ARM_ALL, S_WS, S_DBG, sH, sW, nops

WS_A = 50 << 20
WS_CNT = WS_A + (64 << 10)
WS_ST = 52 << 20
DBG_ST = 8
WS_PART = 64 << 20
H_GW = 131072
H_E = H_GW + 1024
H_C = H_E + 1024
H_K = H_C + 4096
S_X, S_W1, S_W2, S_WO, S_OUT = 8, 12, 16, 20, 28
sB = 34
sX0, sWo1, sWo2, sStI, sStS, sSlot, sCnt, sSeg, sSpin, sJ = 35, 36, 37, 38, 39, 40, 41, 42, 43, 44
sA, sA2, sA3, sA4 = 45, 46, 47, 48
sWoo = 49
sM = 50
P_LRE, P_LIM, P_LDT, P_DSK, P_GW, P_CRE, P_CIM = 58, 62, 64, 66, 68, 70, 72
LANE, L16, VX_, VW, VW2, XA, WA, BA, GA, VKV, G, VN, HH, VKM, VVM, WOA, MX = 0, 1, 2, 3, 4, 5, 7, 11, 13, 14, 15, 16, 17, 18, 19, 20, 28
T = 29
KF, VF, FR = 32, 96, 160
QF, SS, HF = 160, 224, 240
HSPIN = 1000000
LOG2E = 0x3fb8aa3b
def mf(a, D, A, B, C): a(f"v_mfma_f32_32x32x16_bf16 {D}, {A}, {B}, {C}")
WS = sr(S_WS, 4)

S_PF = 52
P_WQ, P_WK, P_WV = 74, 76, 78
sPH = 56
def h_ptrs(a):
    a(f"""
    s_load_dwordx2 {sr(S_X,2)}, s[0:1], 0
    s_load_dwordx2 {sr(P_WK,2)}, s[0:1], 96
    s_load_dwordx2 {sr(P_WV,2)}, s[0:1], 104
    s_load_dwordx2 {sr(S_WO,2)}, s[0:1], 112
    s_load_dwordx2 {sr(S_PF,2)}, s[0:1], 88
    s_mov_b32 s{S_X+2}, 2097152
    s_mov_b32 s{S_X+3}, 0x20000
    s_mov_b32 s{S_WO+2}, 4194304
    s_mov_b32 s{S_WO+3}, 0x20000
    s_mov_b32 s{S_OUT+2}, 4194304
    s_mov_b32 s{S_OUT+3}, 0x20000
    s_mov_b32 s{S_W1+2}, 4194304
    s_mov_b32 s{S_W1+3}, 0x20000
    s_mov_b32 s{S_W2+2}, 4194304
    s_mov_b32 s{S_W2+3}, 0x20000
    s_mov_b32 s{S_PF+2}, 4194304
    s_mov_b32 s{S_PF+3}, 0x20000
    """)
PFW, PFO = 253, 254
def h_prefetch(a, sR):
    a(f"""
    s_mov_b64 {sr(S_W1,2)}, {sr(P_WK,2)}
    s_mov_b64 {sr(S_W2,2)}, {sr(P_WV,2)}
    s_mul_i32 s{sPH}, s{sR}, {32*10923}
    s_lshr_b32 s{sPH}, s{sPH}, 16
    s_cmp_eq_u32 s{sR}, 6
    s_cselect_b32 s3, 0x200, s3
    s_lshl_b32 s{sA}, s{sPH}, 8
    s_lshl_b32 s{sA2}, s3, 17
    s_add_u32 s{sA}, s{sA}, s{sA2}
    v_lshrrev_b32 v1, 4, v0
    v_and_b32 v2, 15, v0
    v_cmp_gt_u32 vcc, 12, v2
    v_lshlrev_b32 v2, 7, v2
    v_lshl_add_u32 v1, v1, 13, v2
    v_add_u32 v1, s{sA}, v1
    v_bfrev_b32 v2, 1
    v_cndmask_b32 v{PFW}, v2, v1, vcc
    s_lshl_b32 s{sA}, s3, 14
    v_lshlrev_b32 v1, 7, v0
    v_cmp_gt_u32 vcc, 128, v0
    buffer_load_dword v255, v{PFW}, {sr(S_W2,4)}, 0 offen
    v_add_u32 v3, s{sA}, v1
    buffer_load_dword v255, v{PFW}, {sr(S_W1,4)}, 0 offen
    v_cndmask_b32 v3, v2, v3, vcc
    buffer_load_dword v255, v3, {sr(S_X,4)}, 0 offen
    s_load_dwordx2 {sr(S_OUT,2)}, s[0:1], 136
    s_load_dwordx2 {sr(P_LRE,2)}, s[0:1], 8
    s_load_dwordx2 {sr(P_LIM,2)}, s[0:1], 16
    s_load_dwordx2 {sr(P_LDT,2)}, s[0:1], 56
    s_load_dwordx2 {sr(P_DSK,2)}, s[0:1], 64
    s_load_dwordx2 {sr(P_GW,2)}, s[0:1], 128
    s_waitcnt lgkmcnt(0)
    s_load_dwordx2 {sr(P_CRE,2)}, s[0:1], 40
    s_load_dwordx2 {sr(P_CIM,2)}, s[0:1], 48
    s_cmp_ge_u32 s{sW}, 2
    s_cbranch_scc1 L_h_hi
    s_mov_b64 {sr(S_W2,2)}, {sr(S_PF,2)}
    s_mov_b32 s{sStI}, {4*8192}
    s_mov_b32 s{sStS}, {32*8192}
    s_branch L_h_sel
    """)
    a.label('L_h_hi')
    a(f"""
    s_mov_b64 {sr(S_W1,2)}, {sr(P_WV,2)}
    s_mov_b32 s{S_W2+2}, 524288
    s_mov_b32 s{sStI}, 0x10000000
    s_mov_b32 s{sStS}, 64
    s_cmp_eq_u32 s{sW}, 3
    s_cbranch_scc1 L_h_w3
    s_load_dwordx2 {sr(S_W2,2)}, s[0:1], 24
    s_branch L_h_sel
    """)
    a.label('L_h_w3')
    a(f"s_load_dwordx2 {sr(S_W2,2)}, s[0:1], 32")
    a.label('L_h_sel')
    a("s_waitcnt lgkmcnt(0)")
    return 3

def h_once(a):
    a(f"v_and_b32 v{LANE}, 63, v0")
    t = 32
    a(f"""
    v_lshlrev_b32 v{L16}, 4, v{LANE}
    v_and_b32 v{VN}, 31, v{LANE}
    v_lshrrev_b32 v{HH}, 5, v{LANE}
    v_lshrrev_b32 v{t}, 2, v{LANE}              ; r = lane>>2
    v_lshrrev_b32 v{t+1}, 4, v{LANE}            ; lane>>4
    v_and_b32 v{t+2}, 3, v{LANE}                ; c
    v_xor_b32 v{t+3}, v{t+2}, v{t+1}
    v_lshlrev_b32 v{t+3}, 4, v{t+3}
    v_lshl_add_u32 v{VX_}, v{t}, 10, v{t+3}
    v_and_b32 v{t+3}, 15, v{LANE}
    v_lshlrev_b32 v{t+4}, 2, v{t+1}
    v_xor_b32 v{t+3}, v{t+3}, v{t+4}
    v_lshlrev_b32 v{t+3}, 4, v{t+3}
    v_lshl_add_u32 v{VW}, v{t+1}, 13, v{t+3}
    s_cmp_ge_u32 s{sW}, 2
    s_cselect_b64 vcc, -1, 0
    v_cndmask_b32 v{VW2}, v{VW}, v{VX_}, vcc
    v_bfe_u32 v{t+5}, v{LANE}, 2, 1             ; h'
    v_bfe_u32 v{t+6}, v{LANE}, 3, 1             ; t
    v_bfe_u32 v{t+7}, v{LANE}, 4, 1             ; n>>4
    v_lshl_add_u32 v{t+8}, v{t+7}, 2, v{t+2}
    v_lshl_add_u32 v{t+8}, v{t+5}, 3, v{t+8}    ; i = 8h' + 4(n>>4) + (n&3)
    v_lshl_add_u32 v{t+9}, v{HH}, 5, v{t+8}
    v_lshlrev_b32 v{t+9}, 4, v{t+9}
    v_lshl_add_u32 v{VKV}, v{t+6}, 10, v{t+9}
    v_lshl_add_u32 v{t+9}, v{HH}, 4, v{t+8}
    v_lshlrev_b32 v{t+9}, 4, v{t+9}
    v_lshl_add_u32 v{t+9}, v{t+6}, 2, v{t+9}
    s_lshl_b32 s{sA}, s{sW}, 12
    s_add_u32 s{sA}, s{sA}, {H_K}
    v_add3_u32 v{VVM}, v{t+9}, s{sA}, 8
    v_and_b32 v{t+9}, 7, v{LANE}
    v_lshl_add_u32 v{t+9}, v{HH}, 5, v{t+9}
    v_lshl_add_u32 v{VKM}, v{t+9}, 4, s{sA}
    s_waitcnt lgkmcnt(0)
    """)

def xaddr(a, row, base_s, dst):
    a(f"""
    v_bfe_u32 v{T}, v{row}, 2, 2
    v_xor_b32 v{T}, v{T}, v{HH}
    v_lshlrev_b32 v{T}, 4, v{T}
    v_lshl_add_u32 v{T}, v{row}, 6, v{T}
    v_add_u32 v{dst}, {base_s}, v{T}
    v_xor_b32 v{dst+1}, 32, v{dst}
    """)

OPT = {}
sXC, sClr, sMode = 57, 3, 2
def dma_part(part, kind):
    G_ = []
    for i in range(2 if kind == 'xh' else 4):
        o = (16384 if part == 'B' else 0) + 1024 * i
        L = [f"s_add_u32 m0, s{sSlot}, {o}"]
        if kind == 'wo': L += [f"s_add_u32 s{sA}, s{sWoo}, {o}", f"buffer_load_dwordx4 v{WOA + i}, {sr(S_WO,4)}, s{sA} offen lds"]
        elif part == 'A': L += [f"s_add_u32 s{sA}, s{sXC}, {(i >> 1) * 131072 + (i & 1) * 16384}", f"buffer_load_dwordx4 v{VX_}, {sr(S_X,4)}, s{sA} offen lds"]
        elif kind == 'p1': L += [f"s_add_u32 s{sA}, s{sWo1}, {4*8192*i}", f"buffer_load_dwordx4 v{VW}, {sr(S_W1,4)}, s{sA} offen lds"]
        else: L += [f"s_mov_b32 s{sA2}, s{sWo2}" if i == 0 else f"s_add_u32 s{sA2}, s{sA2}, s{sStI}", f"buffer_load_dwordx4 v{VW2}, {sr(S_W2,4)}, s{sA2} offen lds"]
        G_.append(L)
    if part == 'A' and kind != 'wo': G_[-1] += [f"s_add_u32 s{sXC}, s{sXC}, 64", f"s_and_b32 s{sXC}, s{sXC}, 0xfffffbff"]
    if part == 'B':
        G_[-1] += [{'p1': f"s_add_u32 s{sWo1}, s{sWo1}, {32*8192}", 'p2': f"s_add_u32 s{sWo2}, s{sWo2}, s{sStS}", 'wo': f"s_add_u32 s{sWoo}, s{sWoo}, 32768"}[kind]]
        G_[-1] += [f"s_add_u32 s{sSlot}, s{sSlot}, 32768", f"s_and_b32 s{sSlot}, s{sSlot}, 0x1ffff"]
    return G_

def frag_reads(p, k, fs, nj=2):
    b = FR + 40 * fs
    L = [f"ds_read_b128 {vr(b + 4*j, 4)}, v{XA + k} offset:{2048*j}" for j in range(nj)]
    for m in range(2 if p == 1 else 1):
        for tau in range(4):
            for pp in range(2):
                L.append(f"ds_read_b64_tr_b16 {vr(b + 8 + 16*m + 4*tau + 2*pp, 2)}, v{WA + tau} offset:{8192*m + (16*k + 4*pp)*256}")
    if p == 2:
        L.append(f"ds_read_b128 {vr(b + 24, 4)}, v{BA + k}")
        L.append(f"ds_read_b128 {vr(b + 28, 4)}, v{GA} offset:{32*k}")
    return L
def mfmas(p, fs, nj=2):
    b = FR + 40 * fs
    L = []
    x = lambda j: vr(b + 4 * j, 4)
    for tau in range(4):
        for j in range(nj):
            D = ar(64 * j + 16 * tau, 16); L.append((D, vr(b + 8 + 4 * tau, 4), x(j), D))
    if p == 1:
        for tau in range(4):
            for j in range(nj):
                D = ar(128 + 64 * j + 16 * tau, 16); L.append((D, x(j), vr(b + 24 + 4 * tau, 4), D))
    else:
        for q in range(2):
            for j in range(2):
                D = ar(128 + 32 * q + 16 * j, 16); L.append((D, vr(b + 24 + 4 * q, 4), x(j), D))
    return L
def adv_addr(p):
    L = []
    regs_ = [XA, XA + 1] + [WA + t for t in range(4)] + ([BA, BA + 1] if p == 2 else [])
    for r in regs_: L += [f"v_add_u32 v{r}, 0x8000, v{r}", f"v_and_b32 v{r}, 0x1ffff, v{r}"]
    if p == 2: L.append(f"v_add_u32 v{GA}, 64, v{GA}")
    return L

def stage_loop(a, name, p, kB, kA, n, nj=2, vmn=None):
    if n != 1:
        a(f"s_mov_b32 s{sCnt}, {n}")
        a.label(name)
    a("s_waitcnt lgkmcnt(0)")
    rd = frag_reads(p, 1, 1, nj); av = adv_addr(p); dg = dma_part('B', kB)
    M = mfmas(p, 0, nj); q = len(M) // 4
    for i, m in enumerate(M):
        mf(a, *m)
        for _ in range(2 if nj == 2 else (2 if i & 1 else 5)):
            if rd: a(rd.pop(0))
        if i % q == 1:
            for l in dg.pop(0): a(l)
        elif not rd:
            for _ in range(5 if nj == 2 else 6):
                if av: a(av.pop(0))
    assert not rd and not av and not dg
    a(f"s_waitcnt vmcnt({vmn or (18 if p == 1 else 16)}) lgkmcnt(0)\ns_barrier")
    rd = frag_reads(p, 0, 0, nj); dg = dma_part('A', kA)
    M = mfmas(p, 1, nj)
    for i, m in enumerate(M):
        mf(a, *m)
        for _ in range(2 if nj == 2 else (2 if i & 1 else 5)):
            if rd: a(rd.pop(0))
        if i % q == 1 and dg:
            for l in dg.pop(0): a(l)
        if p == 1 and i == (11 if nj == 2 else 99): a(f"buffer_store_dwordx4 v[44:47], v{L16}, {WS}, s{sClr} offen sc1\ns_add_u32 s{sClr}, s{sClr}, 1024")
        if p == 1 and i == (12 if nj == 2 else 99): a(f"s_and_b32 s{sA}, s{sClr}, 0xfff\ns_cselect_b32 s{sA}, 0, s{sX0}\ns_cselect_b32 s{sX0}, s{sX0}, 0x20000000\ns_add_u32 s{sClr}, s{sClr}, s{sA}")
        if i == len(M) - 1 and n != 1: a(f"s_sub_u32 s{sCnt}, s{sCnt}, 1\ns_cmp_lg_u32 s{sCnt}, 0")
    assert not rd and not dg
    if n != 1: a(f"s_cbranch_scc1 {name}")

SLEEP = [4]
def poll_fail(a, back, sl=None):
    a(f"s_add_u32 s{sSpin}, s{sSpin}, 1\ns_cmp_gt_u32 s{sSpin}, {HSPIN}\ns_cbranch_scc1 L_end\ns_sleep {sl or SLEEP[0]}\ns_branch {back}")

def unpack8(a, dst, src):
    for j in range(4):
        a(f"v_lshlrev_b32 v{dst+2*j}, 16, v{src+j}\nv_and_b32 v{dst+2*j+1}, 0xffff0000, v{src+j}")

def pw(a, LR, LI, A2, B2, n, cnt, tmp):
    for j in range(cnt):
        if n is None: a(f"v_exp_f32 v{tmp+j}, v{A2+j}\nv_fract_f32 v{LI+j}, v{B2+j}")
        else: a(f"v_mul_f32 v{tmp+j}, {n}, v{A2+j}\nv_mul_f32 v{LI+j}, {n}, v{B2+j}\nv_exp_f32 v{tmp+j}, v{tmp+j}\nv_fract_f32 v{LI+j}, v{LI+j}")
    for j in range(cnt): a(f"v_cos_f32 v{LR+j}, v{LI+j}\nv_sin_f32 v{LI+j}, v{LI+j}")
    a("s_nop 0")
    for j in range(cnt): a(f"v_mul_f32 v{LR+j}, v{LR+j}, v{tmp+j}\nv_mul_f32 v{LI+j}, v{LI+j}, v{tmp+j}")

def dtprep(a, A2, B2, DT, cnt):
    for j in range(cnt): a(f"v_mul_f32 v{DT+j}, {LOG2E}, v{DT+j}")
    for j in range(cnt): a(f"v_exp_f32 v{DT+j}, v{DT+j}")
    a("s_nop 0")
    for j in range(cnt): a(f"v_cvt_pk_bf16_f32 v{DT+j}, v{DT+j}, v{DT+j}")
    for j in range(cnt): a(f"v_and_b32 v{DT+j}, 0xffff0000, v{DT+j}")
    for j in range(cnt):
        a(f"v_mul_f32 v{A2+j}, v{DT+j}, v{A2+j}\nv_mul_f32 v{B2+j}, v{DT+j}, v{B2+j}")
        a(f"v_mul_f32 v{A2+j}, {LOG2E}, v{A2+j}\nv_mul_f32 v{B2+j}, 0.15915494, v{B2+j}")

def h_static(a):
    t = 32
    a(f"""
    v_bfe_u32 v{t}, v{LANE}, 2, 1
    v_bfe_u32 v{t+1}, v{LANE}, 3, 2
    v_and_b32 v{t+2}, 3, v{LANE}
    v_lshl_add_u32 v{t+3}, v{t+1}, 2, v{t+2}
    v_lshl_add_u32 v{t+3}, v{t}, 4, v{t+3}
    s_lshl_b32 s{sA}, s{sW}, 12
    """)
    xaddr(a, t + 3, f"s{sA}", XA)
    a(f"""
    v_bfe_u32 v{t+4}, v{LANE}, 2, 2             ; r'
    v_bfe_u32 v{t+5}, v{LANE}, 4, 1             ; half
    v_and_b32 v{t+6}, 1, v{LANE}
    v_bfe_u32 v{t+7}, v{LANE}, 1, 1
    v_lshl_add_u32 v{t+8}, v{t+5}, 1, v{t+7}
    v_lshl_add_u32 v{t+8}, v{t+6}, 2, v{t+8}
    v_lshlrev_b32 v{t+8}, 3, v{t+8}
    v_lshl_add_u32 v{t+9}, v{HH}, 3, v{t+4}
    v_lshl_add_u32 v{t+8}, v{t+9}, 8, v{t+8}
    v_lshl_add_u32 v{t+8}, v{t+4}, 6, v{t+8}
    v_add_u32 v{WA}, 16384, v{t+8}
    """)
    for tau in range(1, 4): a(f"v_xor_b32 v{WA+tau}, {64*tau}, v{WA}")
    for i in range(4): a(f"v_xor_b32 v{WOA+i}, {64*i}, v{L16}")
    for i in range(4): a(f"v_mov_b32 v{t+12+i}, -1")
    for i in range(256): a(f"v_accvgpr_write_b32 a{i}, 0")

def helper_task(a, P):
    DBG = sr(S_DBG, 4)
    SLEEP[0] = P.get('sleep', 4); OPT.clear(); OPT.update(P)
    def hs(k, alt=0):
        if P.get('alt') and not alt:
            if k in (4, 5, 6): return
            k = {2: 5, 3: 6}.get(k, k)
        if P.get('stat'): a(f"{'s_memtime' if P.get('hcyc') else 's_memrealtime'} s[{74+2*k}:{75+2*k}]")
    def signal(tag, off, so, nv, last='31', inc=1):
        a(f"""
        s_waitcnt vmcnt({nv})
        s_barrier
        s_cmp_lg_u32 s{sW}, 0
        s_cbranch_scc1 L_h_ns{tag}
        s_lshl_b32 s{sA}, s{sB}, 2
        v_mov_b32 v{T}, {inc}
        s_mov_b64 exec, 1
        buffer_atomic_add v{T}, off, {DBG}, {so} offset:{off} sc0
        v_mov_b32 v{T+1}, 32
        s_waitcnt vmcnt(0)
        v_cmp_eq_u32 vcc, {last}, v{T}
        s_cbranch_vccz L_h_ng{tag}
        buffer_store_dword v{T+1}, off, {DBG}, {so} offset:{off + DBG_DN} sc1
        """)
        a.label(f'L_h_ng{tag}')
        a("s_mov_b64 exec, -1")
        a.label(f'L_h_ns{tag}')
    a.label('L_h_task')
    hs(0)
    t = 32
    a(f"""
    s_lshl_b32 s{sSeg}, s{sB}, 3
    s_cmp_eq_u32 s{sMode}, 2
    s_cselect_b32 s{sSeg}, 4, s{sSeg}
    s_add_u32 s{sSeg}, s{sSeg}, s{sW}
    s_lshl_b32 s{sXC}, s{sSeg}, 15
    s_lshl_b32 s{sWo1}, s{sH}, 8
    s_and_b32 s{sA}, s{sW}, 1
    s_lshl_b32 s{sA}, s{sA}, 17
    s_add_u32 s{sWo1}, s{sWo1}, s{sA}
    s_lshl_b32 s{sA}, s{sH}, 14
    s_cmp_ge_u32 s{sW}, 2
    s_cselect_b32 s{sWo2}, s{sA}, s{sWo1}
    s_lshl_b32 s{sSlot}, s{sW}, 12
    s_lshl_b32 s{sWoo}, s{sH}, 17
    s_add_u32 s{sWoo}, s{sWoo}, s{sSlot}
    s_mov_b32 s{sSpin}, 0
    """)
    NE = P.get('nearly', 2)
    if P.get('pfw'): a("s_waitcnt vmcnt(0)"); hs(0)
    a(f"""
    s_cmp_lg_u32 s{sB}, 8
    s_cbranch_scc1 L_h_nse
    v_lshlrev_b32 v{T+2}, 7, v{LANE}
    s_lshl_b32 s{sA}, s{sH}, 14
    buffer_load_dword v255, v{T+2}, {sr(S_W2,4)}, s{sA} offen
    s_add_u32 s{sA2}, s{sA}, 8192
    buffer_load_dword v255, v{T+2}, {sr(S_W2,4)}, s{sA2} offen
    s_and_b32 s{sA2}, s{sW}, 1
    s_lshl_b32 s{sA2}, s{sA2}, 13
    s_add_u32 s{sA}, s{sA}, s{sA2}
    v_add_u32 v{T+2}, s{sA}, v{T+2}
    global_load_dword v255, v{T+2}, {sr(P_CRE,2)}
    global_load_dword v255, v{T+2}, {sr(P_CIM,2)}
    s_lshl_b32 s{sA}, s{sW}, 17
    s_lshl_b32 s{sA2}, s{sH}, 12
    s_add_u32 s{sA}, s{sA}, s{sA2}
    s_add_u32 s{sA}, s{sA}, {WS_KM}
    s_add_u32 s{sA2}, s{sA}, {4 << 17}
    """)
    for k in range(8): a(f"buffer_store_dwordx4 v[44:47], v{L16}, {WS}, s{sA if k < 4 else sA2} offen offset:{1024*(k&3)} sc1")
    signal('e', DBG_ARM, '0', 0, '-1')
    a(f"""
    s_lshl_b32 s{sA}, s{sW}, 6
    v_add_u32 v{T}, s{sA}, v{LANE}
    v_lshlrev_b32 v{T+1}, 7, v{T}
    s_sub_u32 s{sA3}, s{sB}, 2
    s_cmp_ge_u32 s{sA3}, {P.get('nq', 2)}
    s_cbranch_scc1 L_h_nq
    {'s_waitcnt vmcnt(0)' if P.get('w1', 1) else ''}
    v_lshrrev_b32 v{T+2}, 1, v{T}
    v_and_b32 v{T}, 128, v{T+1}
    v_lshl_add_u32 v{T}, v{T+2}, 13, v{T}
    s_lshl_b32 s{sA}, s{sA3}, 20
    s_lshl_b32 s{sA2}, s{sH}, 8
    s_add_u32 s{sA}, s{sA}, s{sA2}
    buffer_load_dword v255, v{T}, {sr(S_PF,4)}, s{sA} offen
    s_add_u32 s{sA}, s{sA}, {2 << 20}
    buffer_load_dword v255, v{T}, {sr(S_PF,4)}, s{sA} offen
    {'s_waitcnt vmcnt(0)' if P.get('w2', 1) else ''}
    s_lshl_b32 s{sA}, s{sA3}, 15
    s_lshl_b32 s{sA2}, s{sH}, 17
    s_add_u32 s{sA}, s{sA}, s{sA2}
    buffer_load_dword v255, v{T+1}, {sr(S_WO,4)}, s{sA} offen
    s_add_u32 s{sA}, s{sA}, 65536
    buffer_load_dword v255, v{T+1}, {sr(S_WO,4)}, s{sA} offen
    s_waitcnt vmcnt(0)
    {'s_sleep %d' % P['s2'] if P.get('s2') else ''}
    L_h_nq:
    s_cmp_lg_u32 s{sB}, 8
    s_cbranch_scc1 L_h_nt
    s_lshl_b32 s{sA}, s{sH}, 16
    buffer_load_dword v255, v{T+1}, {sr(S_X,4)}, s{sA} offen
    s_add_u32 s{sA}, s{sA}, 32768
    buffer_load_dword v255, v{T+1}, {sr(S_X,4)}, s{sA} offen
    """)
    if P.get('spinT'):
        a(f"s_cmp_lg_u32 s{sH}, 0\ns_cbranch_scc1 L_end\ns_cmp_lg_u32 s{sW}, 0\ns_cbranch_scc1 L_end")
        a(f"s_mov_b32 s74, {P['spinT']*100}")
        if P.get('ev'):
            a.label('L_ev0')
            a(f"s_sleep 4\nbuffer_load_dword v{T}, off, {DBG}, 0 offset:{DBG_ARM} sc1\ns_waitcnt vmcnt(0)\nv_cmp_gt_u32 vcc, {ARM_ALL[P.get('tb', 1)]}, v{T}\ns_cbranch_vccnz L_ev0")
            if P['ev'].startswith('km'):
                n_ = int(P['ev'][2:]); srd_, off_, bad = WS, WS_KM + (n_ << 17), -1
                if n_ >= 8:
                    a.label('L_ev2')
                    a(f"s_sleep 16\nbuffer_load_dword v{T}, off, {DBG}, 0 offset:{DBG_DN + DBG_KVC + 4 * (n_ >> 3)} sc1\ns_waitcnt vmcnt(0)\nv_cmp_eq_u32 vcc, 0, v{T}\ns_cbranch_vccnz L_ev2")
            elif P['ev'].startswith('dn'): srd_, off_, bad = DBG, DBG_DN + DBG_KVC + 4 * int(P['ev'][2:]), 0
            else: srd_, off_, bad = {'arm': (DBG, DBG_ARM, 0), 'kv0': (DBG, DBG_DN + DBG_KV0, 0), 'm1': (WS, WS_IMB + 8188, -1), 'kvd': (WS, WS_KV + 16380, -1)}[P['ev']]
            a(f"s_mov_b32 s75, {off_}")
            a.label('L_ev1')
            a(f"s_sleep 2\nbuffer_load_dword v{T}, off, {srd_}, s75 sc1\ns_waitcnt vmcnt(0)\nv_cmp_eq_u32 vcc, {bad}, v{T}\ns_cbranch_vccnz L_ev1")
            a("s_memrealtime s[72:73]\ns_waitcnt lgkmcnt(0)\ns_sub_u32 s72, s72, s98\ns_add_u32 s74, s74, s72")
        a.label('L_spinT')
        a(f"s_sleep 1\ns_memrealtime s[72:73]\ns_waitcnt lgkmcnt(0)\ns_sub_u32 s72, s72, s98\ns_cmp_lt_u32 s72, s74\ns_cbranch_scc1 L_spinT")
    a("s_branch L_end")
    a.label('L_h_nt')
    a(f"s_cmp_eq_u32 s{sMode}, 0\ns_cbranch_scc1 L_h_d2")
    for kA, lab in (('xh', 'L_h_d2'), ('x', 'L_h_d3')):
        for st in range(4):
            for g_ in dma_part('A', kA) + (dma_part('B', 'p1') if st < 3 else []):
                for l in g_: a(l)
        if kA == 'xh': a("s_branch L_h_d3")
        a.label(lab)
    a(f"""
    s_lshl_b32 s{sA}, s{sSeg}, 17
    s_lshl_b32 s{sA2}, s{sH}, 12
    s_add_u32 s{sA}, s{sA}, s{sA2}
    s_add_u32 s{sClr}, s{sA}, {WS_KM}
    s_cmp_ge_u32 s{sMode}, 1
    s_cselect_b32 s{sClr}, 0x70000000, s{sClr}
    s_mov_b32 s{sX0}, {(4 << 17) - 4096}
    """)
    a(f"""
    s_lshl_b32 s{sA}, s{sB}, 5
    s_add_u32 s{sA}, s{sA}, s{sH}
    s_lshl_b32 s{sA}, s{sA}, 7
    s_add_u32 s{sA}, s{sA}, {WS_A}
    s_mov_b64 exec, 0xff
    buffer_store_dwordx4 {vr(t+12,4)}, v{L16}, {WS}, s{sA} offen sc1
    s_mov_b64 exec, -1
    s_lshl_b32 s{sA}, s{sH}, 2
    s_add_u32 s{sA}, s{sA}, s{sSeg}
    s_lshl_b32 s{sA}, s{sA}, 7
    s_add_u32 s{sA}, s{sA}, {WS_CNT}
    s_add_u32 s{sA2}, s{sH}, s{sMode}
    s_cmp_eq_u32 s{sMode}, 1
    s_cselect_b32 s{sA2}, s{sH}, s{sA2}
    s_cmp_lt_u32 s{sA2}, 2
    s_cselect_b32 s{sA}, s{sA}, 0x70000000
    v_mov_b32 v{t+16}, 0
    s_mov_b64 exec, 1
    buffer_store_dword v{t+16}, v{t+16}, {WS}, s{sA} offen sc1
    s_mov_b64 exec, -1
    global_load_dwordx4 {vr(t+20,4)}, v{L16}, {sr(P_GW,2)}
    """)
    a(f"s_cmp_lt_u32 s{sB}, {NE}\ns_cbranch_scc1 L_h_go\ns_cmp_eq_u32 s{sMode}, 2\ns_cbranch_scc1 L_h_go")
    a(f"v_lshlrev_b32 v{T}, 7, v{LANE}\ns_and_b32 s{sA2}, s{sXC}, 0xfffffc00\ns_cmp_ge_u32 s{sB}, 6\ns_cbranch_scc1 L_h_x2\ns_waitcnt vmcnt(0)")
    a.label('L_h_x2')
    for k in range(8 if P.get('xt', 1) else 0): a(f"s_add_u32 s{sA}, s{sA2}, {(k >> 2) * 131072 + (k & 3) * 8192}\nbuffer_load_dword v255, v{T}, {sr(S_X,4)}, s{sA} offen")
    a(f"""
    s_cmp_lg_u32 s{sB}, {P.get('clt', 4)}
    s_cbranch_scc1 L_h_n7
    s_add_u32 s{sA}, s{sW}, 56
    s_lshl_b32 s{sA}, s{sA}, 20
    s_lshl_b32 s{sA2}, s{sH}, 15
    s_add_u32 s{sA}, s{sA}, s{sA2}
    s_add_u32 s{sA}, s{sA}, {WS_PART}
    s_mov_b32 s{sCnt}, 8
    """)
    if P.get('r8w'):
        a(f"s_cmp_lg_u32 s{sW}, 0\ns_cbranch_scc1 L_h_c6")
        a.label('L_h_c5')
        a(f"buffer_load_dword v{T}, off, {DBG}, 0 offset:{DBG_DN + DBG_KVC + 4 * (P['r8w'] - 1)} sc1\ns_waitcnt vmcnt(0)\nv_cmp_eq_u32 vcc, 0, v{T}\ns_cbranch_vccz L_h_c6")
        poll_fail(a, 'L_h_c5', 16)
        a.label('L_h_c6')
        a("s_barrier")
    a.label('L_h_c7')
    if P.get('r8s'): a(f"s_waitcnt vmcnt(0)\ns_sleep {P['r8s']}")
    a(f"s_add_u32 s{sA2}, s{sA}, {4 << 20}")
    for k in range(8): a(f"buffer_store_dwordx4 v[44:47], v{L16}, {WS}, s{sA if k < 4 else sA2} offen offset:{1024*(k&3)} sc1")
    a(f"s_add_u32 s{sA}, s{sA}, 4096\ns_sub_u32 s{sCnt}, s{sCnt}, 1\ns_cmp_lg_u32 s{sCnt}, 0\ns_cbranch_scc1 L_h_c7")
    a.label('L_h_n7')
    a(f"s_sub_i32 s{sA3}, s{sB}, {P.get('lag', 2)}\ns_max_i32 s{sA3}, s{sA3}, 0\ns_lshl_b32 s{sA3}, s{sA3}, 2\ns_cmp_ge_u32 s{sB}, 6\ns_cbranch_scc1 L_h_go")
    a(f"s_cmp_lg_u32 s{sW}, 0\ns_cbranch_scc1 L_h_go")
    a.label('L_h_w0')
    a(f"buffer_load_dword v{T}, off, {DBG}, s{sA3} offset:{DBG_DN + DBG_KVC} sc1\ns_waitcnt vmcnt(0)\nv_cmp_eq_u32 vcc, 0, v{T}\ns_cbranch_vccz L_h_go")
    poll_fail(a, 'L_h_w0', 8)
    a.label('L_h_go')
    a(f"s_waitcnt vmcnt({14 + 3})\ns_barrier")
    hs(1)
    for l in frag_reads(1, 0, 0): a(l)
    gw = f"v_add_u32 v{T}, {H_GW}, v{L16}\nds_write_b128 v{T}, {vr(t+20,4)}"
    a(f"s_cmp_eq_u32 s{sMode}, 0\ns_cbranch_scc1 L_h_full")
    stage_loop(a, 'L_h_q1a', 1, 'p1', 'xh', 12, 1, 12)
    stage_loop(a, 'L_h_q1c', 1, 'p1', 'x', 1, 1, 12)
    a(gw)
    kv0 = f"buffer_load_dword v{G}, off, {DBG}, 0 offset:{DBG_ARM} sc1"
    a(f"v_mov_b32 v{G}, 64\ns_add_u32 s{sA}, s{sW}, s{sMode}\ns_cmp_lg_u32 s{sA}, 1\ns_cbranch_scc1 L_h_a1"); a(kv0)
    a.label('L_h_a1')
    stage_loop(a, 'L_h_q1b', 1, 'p2', 'x', 3, 1, 14)
    a.label('L_h_a0')
    a(f"v_cmp_gt_u32 vcc, {ARM_ALL[P.get('tb', 1)]}, v{G}\ns_cbranch_vccz L_h_e1"); a(kv0); a("s_waitcnt vmcnt(0)")
    poll_fail(a, 'L_h_a0', 4)
    a.label('L_h_full')
    stage_loop(a, 'L_h_p1a', 1, 'p1', 'x', 13)
    a(gw)
    stage_loop(a, 'L_h_p1b', 1, 'p2', 'x', 3)
    a.label('L_h_e1')
    hs(2)
    a(f"""
    s_lshl_b32 s{sA3}, s{sSeg}, 19
    s_lshl_b32 s{sA2}, s{sH}, 14
    s_add_u32 s{sA3}, s{sA3}, s{sA2}
    s_add_u32 s{sA3}, s{sA3}, {WS_KV}
    s_waitcnt lgkmcnt(0)
    s_nop 7
    """)
    TM = 240
    if P.get('s0f'): a(f"s_cmp_lg_u32 s{sMode}, 1\ns_cbranch_scc1 L_h_s0\ns_cmp_eq_u32 s{sW}, 0\ns_cbranch_scc1 L_h_s0\ns_sleep {P['s0f']}"); a.label('L_h_s0')
    def kv_store(j, m, tau):
        dst = (KF if m == 0 else VF) + 32 * j + 8 * tau
        a(f"s_add_u32 s{sA}, s{sA3}, {j * (4 << 19) + 4096 * tau}")
        for u in range(2): a(f"buffer_store_dwordx4 {vr(dst+4*u,4)}, v{VKV}, {WS}, s{sA} offen offset:{2048*m + 256*u} sc1")
    for j in range(2):
        for m in range(2):
            for tau in range(4):
                src = 128 * m + 64 * j + 16 * tau; dst = (KF if m == 0 else VF) + 32 * j + 8 * tau
                for r in range(16): a(f"v_accvgpr_read_b32 v{TM+r}, a{src+r}")
                for r in range(8): a(f"v_cvt_pk_bf16_f32 v{dst+r}, v{TM+2*r}, v{TM+2*r+1}")
                if j == 0:
                    a(f"s_cmp_eq_u32 s{sMode}, 0\ns_cbranch_scc1 L_h_sk{j}{m}{tau}")
                    kv_store(j, m, tau)
                    a.label(f'L_h_sk{j}{m}{tau}')
        if j == 0:
            a(f"s_cmp_eq_u32 s{sMode}, 0\ns_cbranch_scc1 L_h_j1\ns_lshl_b32 s{sA2}, s{sMode}, 2")
            if P.get('dlyh'): a(f"s_sleep {P['dlyh']}")
            signal('a', DBG_KV0 - 4, f"s{sA2}", 0)
            a(f"s_cmp_eq_u32 s{sMode}, 1\ns_cbranch_scc1 L_h_nj1\ns_mov_b32 s{sMode}, 0\ns_waitcnt vmcnt(0) lgkmcnt(0)\ns_branch L_h_again")
            a.label('L_h_j1')
    a.label('L_h_nj1')
    for i in range(192): a(f"v_accvgpr_write_b32 a{i}, 0")
    a(f"s_lshl_b32 s{sA}, s{sW}, 12")
    xaddr(a, VN, f"s{sA}", XA)
    a(f"""
    v_bfe_u32 v{TM}, v{LANE}, 2, 1
    v_bfe_u32 v{TM+1}, v{LANE}, 3, 1
    v_and_b32 v{TM+2}, 3, v{LANE}
    v_lshl_add_u32 v{TM+2}, v{TM+1}, 2, v{TM+2}
    v_lshl_add_u32 v{TM+2}, v{TM}, 3, v{TM+2}      ; ch
    v_bfe_u32 v{TM+3}, v{LANE}, 4, 1
    v_lshlrev_b32 v{TM+3}, 12, v{TM+3}
    v_add_u32 v{TM+3}, 24576, v{TM+3}
    v_lshlrev_b32 v{GA}, 4, v{HH}
    v_add_u32 v{GA}, {H_GW}, v{GA}
    """)
    xaddr(a, TM + 2, f"v{TM+3}", BA)
    hs(3)
    for l in frag_reads(2, 0, 0): a(l)
    a(f"s_lshl_b32 s{sA4}, s{sB}, 1\ns_and_b32 s{sA4}, s{sA4}, {2 if P.get('lag', 2) == 2 else 14}\ns_sub_i32 s{sA4}, s{sA4}, {-1 if P.get('lag', 2) == 2 else 3}\ns_max_i32 s{sA4}, s{sA4}, 1\ns_cmp_ge_u32 s{sB}, 6\ns_cselect_b32 s{sA4}, 1, s{sA4}\ns_sub_u32 s{sJ}, 12, s{sA4}")
    stage_loop(a, 'L_h_p20', 2, 'p2', 'x', f"s{sA4}")
    a(f"s_cmp_eq_u32 s{sMode}, 0\ns_cbranch_scc1 L_h_st\ns_cmp_lg_u32 s{sW}, 0\ns_cbranch_scc1 L_h_l1")
    a.label('L_h_l0')
    a(f"buffer_load_dword v{T}, off, {DBG}, 0 offset:{DBG_DN + DBG_KVC} sc1\ns_waitcnt vmcnt(0)\nv_cmp_eq_u32 vcc, 0, v{T}\ns_cbranch_vccz L_h_l1")
    poll_fail(a, 'L_h_l0', 8)
    a.label('L_h_l1')
    a("s_barrier")
    n0 = len(a.lines)
    for m in range(2):
        for tau in range(4): kv_store(1, m, tau)
    a.lines[n0:] = [l.replace('buffer_store', 'buffer_load') for l in a.lines[n0:]]
    a(f"s_mov_b32 s{sMode}, 0\ns_branch L_h_nsc")
    a.label('L_h_st')
    for j in range(2):
        for m in range(2):
            for tau in range(4): kv_store(j, m, tau)
    signal('c', DBG_KVC, f"s{sA}", 0)
    stage_loop(a, 'L_h_p2a', 2, 'p2', 'x', f"s{sJ}")
    stage_loop(a, 'L_h_p2c', 2, 'p2', 'wo', 1)
    stage_loop(a, 'L_h_p2b', 2, 'wo', 'wo', 3)
    for g_ in dma_part('B', 'wo'):
        for l in g_: a(l)
    hs(4)
    a("s_waitcnt lgkmcnt(0)\ns_nop 7")
    PK = 128 + 0
    for j in range(2):
        for tau in range(4):
            src = 64 * j + 16 * tau; dst = QF + 32 * j + 8 * tau
            for r in range(16): a(f"v_accvgpr_read_b32 v{TM+r}, a{src+r}")
            for r in range(8): a(f"v_cvt_pk_bf16_f32 v{dst+r}, v{TM+2*r}, v{TM+2*r+1}")
    a(f"""
    v_bfe_u32 v{T}, v{LANE}, 2, 1
    v_bfe_u32 v{T+1}, v{LANE}, 3, 1
    v_and_b32 v{T+2}, 0x13, v{LANE}
    v_lshl_add_u32 v{T+2}, v{T+1}, 2, v{T+2}
    v_lshl_add_u32 v{T+2}, v{T}, 3, v{T+2}
    v_lshlrev_b32 v{T+2}, 10, v{T+2}
    s_lshl_b32 s{sA}, s{sH}, 5
    v_lshl_add_u32 v{T+1}, v{HH}, 4, s{sA}
    s_lshl_b32 s{sA}, s{sW}, 17
    v_add3_u32 v{BA}, v{T+2}, v{T+1}, s{sA}
    """)
    for j in range(2):
        for k in range(8):
            D = vr(SS + 16 * j, 16)
            mf(a, D, vr(KF + 32 * j + 4 * k, 4), vr(QF + 32 * j + 4 * k, 4), D if k else 0)
    RI = 32
    for r in range(32): a(f"v_accvgpr_read_b32 v{RI+r}, a{128+r}")
    a(f"v_accvgpr_read_b32 v{G}, a160\nv_accvgpr_read_b32 v{MX}, a176")
    A2, B2, LR, LI = 64, 72, 80, 88
    a(f"global_load_dwordx4 {vr(LR,4)}, v{T+1}, {sr(P_LRE,2)}\nglobal_load_dwordx4 {vr(LR+4,4)}, v{T+1}, {sr(P_LIM,2)}\nglobal_load_dwordx4 {vr(LI,4)}, v{T+1}, {sr(P_LDT,2)}")
    for r in (G, MX): a(f"v_mul_f32 v{r}, 0xbfb8aa3b, v{r}")
    for r in (G, MX): a(f"v_exp_f32 v{r}, v{r}")
    a("s_nop 0")
    for r in (G, MX): a(f"v_add_f32 v{r}, 1.0, v{r}")
    for r in (G, MX): a(f"v_rcp_f32 v{r}, v{r}")
    a(f"v_lshlrev_b32 v{T}, 4, v{HH}\nv_sub_u32 v{T}, v{VN}, v{T}\nv_mov_b32 v{T+2}, 0xff800000")
    for r in range(16):
        a(f"v_cmp_le_i32 vcc, {r}, v{T}\ns_nop 1")
        for j in range(2): a(f"v_cndmask_b32 v{SS+16*j+r}, v{T+2}, v{SS+16*j+r}, vcc")
    PQ, PV, PS, PH, PG = 128, 160, 192, 208, 216
    for r in range(32): a(f"v_accvgpr_write_b32 a{PQ+r}, v{QF+32+r}\nv_accvgpr_write_b32 a{PV+r}, v{VF+32+r}")
    for r in range(16): a(f"v_accvgpr_write_b32 a{PS+r}, v{SS+16+r}")
    a(f"v_accvgpr_write_b32 a{PG}, v{MX}")
    CA, CB, CD = 192, 193, 194
    a(f"""
    v_and_b32 v{T}, 15, v{LANE}
    s_lshl_b32 s{sA}, s{sH}, 5
    v_lshl_add_u32 v{T+2}, v{T}, 1, s{sA}
    global_load_ushort v{CA}, v{T+2}, {sr(P_LRE,2)}
    global_load_ushort v{CB}, v{T+2}, {sr(P_LIM,2)}
    global_load_ushort v{CD}, v{T+2}, {sr(P_LDT,2)}
    """)
    ACW = 220
    for tt in range(4):
        a(f"global_load_dwordx4 {ar(ACW+8*tt,4)}, v{BA}, {sr(P_CRE,2)}\nglobal_load_dwordx4 {ar(ACW+8*tt+4,4)}, v{BA}, {sr(P_CIM,2)}")
        if tt < 3: a(f"v_add_u32 v{BA}, 32768, v{BA}")
    a(f"s_lshl_b32 s{sA}, s{sW}, 12\nv_add_u32 v{BA+1}, {H_K}, v{L16}\nv_add_u32 v{GA}, s{sA}, v{BA+1}\ns_waitcnt vmcnt(8)")
    def c_put(r):
        for tt in range(4): a(f"ds_write_b128 v{GA}, {ar(ACW+8*tt+4*r,4)} offset:{1024*tt}")
    def c_get(r):
        for tile in range(16): a(f"ds_read_b128 {ar(8*tile+4*r,4)}, v{BA+1} offset:{1024*tile}")
    TT, LE, LM = 128, 136, 144
    unpack8(a, LE, LR); unpack8(a, LM, LR + 4); unpack8(a, TT, LI)
    for j in range(8): a(f"v_mov_b32 v{A2+j}, v{LE+j}\nv_mov_b32 v{B2+j}, v{LM+j}")
    dtprep(a, A2, B2, TT, 8)
    pw(a, LR, LI, A2, B2, None, 8, TT)
    for j in range(8):
        a(f"""
        v_mul_f32 v{TT}, v{LE+j}, v{LE+j}
        v_fmac_f32 v{TT}, v{LM+j}, v{LM+j}
        v_rcp_f32 v{TT}, v{TT}
        v_add_f32 v{TT+1}, -1.0, v{LR+j}
        v_mul_f32 v{TT+2}, v{TT+1}, v{LE+j}
        v_fmac_f32 v{TT+2}, v{LI+j}, v{LM+j}
        v_mul_f32 v{TT+3}, v{LI+j}, v{LE+j}
        v_fma_f32 v{TT+3}, -v{TT+1}, v{LM+j}, v{TT+3}
        v_mul_f32 v{LE+j}, v{TT+2}, v{TT}
        v_mul_f32 v{LM+j}, v{TT+3}, v{TT}
        """)
    for d in (1, 2, 4, 8):
        dp = f"row_shr:{d} row_mask:0xf bank_mask:0xf bound_ctrl:1"
        for j in range(2):
            R, I = RI + 16 * j, RI + 16 * j + 8
            for c in range(8): a(f"v_mov_b32 v{TT+c}, v{R+c}")
            for c in range(8): a(f"v_fmac_f32_dpp v{R+c}, v{R+c}, v{LR+c} {dp}")
            for c in range(8): a(f"v_fmac_f32_dpp v{R+c}, -v{I+c}, v{LI+c} {dp}")
            for c in range(8): a(f"v_fmac_f32_dpp v{I+c}, v{I+c}, v{LR+c} {dp}")
            for c in range(8): a(f"v_fmac_f32_dpp v{I+c}, v{TT+c}, v{LI+c} {dp}")
        if d < 8:
            for c in range(8):
                a(f"v_mul_f32 v{TT}, v{LI+c}, v{LI+c}\nv_add_f32 v{TT+1}, v{LR+c}, v{LR+c}\nv_fma_f32 v{LR+c}, v{LR+c}, v{LR+c}, -v{TT}\nv_mul_f32 v{LI+c}, v{TT+1}, v{LI+c}")
    a(f"v_and_b32 v{T+2}, 15, v{LANE}\nv_add_u32 v{T+2}, 1, v{T+2}\nv_cvt_f32_u32 v{T+2}, v{T+2}")
    pw(a, LR, LI, A2, B2, f"v{T+2}", 8, TT)
    dp = "row_bcast:15 row_mask:0xa bank_mask:0xf"
    for j in range(2):
        R, I = RI + 16 * j, RI + 16 * j + 8
        for c in range(8): a(f"v_fmac_f32_dpp v{R+c}, v{R+c}, v{LR+c} {dp}")
        for c in range(8): a(f"v_fmac_f32_dpp v{R+c}, -v{I+c}, v{LI+c} {dp}")
        for c in range(8): a(f"v_fmac_f32_dpp v{I+c}, v{I+c}, v{LR+c} {dp}")
        for c in range(8): a(f"v_fmac_f32_dpp v{I+c}, v{R+c}, v{LI+c} {dp}")
    a(f"""
    s_lshl_b32 s{sA}, s{sW}, 7
    s_add_u32 s{sA}, s{sA}, {H_E}
    v_lshl_add_u32 v{T+2}, v{HH}, 5, s{sA}
    s_mov_b32 exec_lo, 0x80000000
    s_mov_b32 exec_hi, 0x80000000
    """)
    for j in range(2):
        for q in range(4): a(f"ds_write_b128 v{T+2}, {vr(RI + 16*j + 4*q, 4)} offset:{512*j + 64*(q>>1) + 16*(q&1)}")
    a("s_mov_b64 exec, -1")
    a(f"v_lshlrev_b32 v{CA}, 16, v{CA}\nv_lshlrev_b32 v{CB}, 16, v{CB}\nv_lshlrev_b32 v{CD}, 16, v{CD}")
    dtprep(a, CA, CB, CD, 1)
    U, W_ = 196, 198
    pw(a, U, U + 1, CA, CB, "0x42000000", 1, CD)
    pw(a, W_, W_ + 1, CA, CB, "0x43800000", 1, CD)
    a(f"v_add_u32 v{T+2}, 1, v{VN}\nv_cvt_f32_u32 v{T+2}, v{T+2}")
    pw(a, LR, LI, A2, B2, f"v{T+2}", 8, TT)
    EE = 200
    a(f"v_lshlrev_b32 v{T}, 2, v{T}\nv_add_u32 v{T+2}, {H_E}, v{T}\ns_waitcnt vmcnt(0)")
    c_put(0); a("s_waitcnt lgkmcnt(0)\ns_barrier")
    c_get(0); a("s_waitcnt lgkmcnt(0)\ns_barrier")
    c_put(1); a("s_waitcnt lgkmcnt(0)\ns_barrier")
    c_get(1); a("s_waitcnt lgkmcnt(0)\ns_barrier")
    for s_ in range(8): a(f"ds_read2_b32 {vr(EE+2*s_,2)}, v{T+2} offset0:{32*s_} offset1:{32*s_+16}")
    AC_ = 216
    def cmac(M_, Er):
        a(f"""
        v_fma_f32 v{AC_+2}, v{M_}, v{AC_}, v{Er}
        v_fma_f32 v{AC_+3}, v{M_}, v{AC_+1}, v{Er+1}
        v_fma_f32 v{AC_+2}, -v{M_+1}, v{AC_+1}, v{AC_+2}
        v_fma_f32 v{AC_+1}, v{M_+1}, v{AC_}, v{AC_+3}
        v_mov_b32 v{AC_}, v{AC_+2}
        """)
    a(f"s_waitcnt lgkmcnt(0)\nv_mov_b32 v{AC_}, v{EE}\nv_mov_b32 v{AC_+1}, v{EE+1}")
    for s_ in range(1, 8): cmac(U, EE + 2 * s_)
    a(f"""
    v_min_u32 v{AC_}, -2, v{AC_}
    v_min_u32 v{AC_+1}, -2, v{AC_+1}
    v_lshlrev_b32 v{T+1}, 1, v{T}
    s_lshl_b32 s{sA3}, s{sH}, 7
    s_add_u32 s{sA3}, s{sA3}, {WS_A}
    s_lshl_b32 s{sA}, s{sB}, 12
    s_add_u32 s{sA}, s{sA}, s{sA3}
    s_cmp_eq_u32 s{sW}, 0
    s_cselect_b32 s{sA}, s{sA}, 0x70000000
    buffer_store_dwordx2 {vr(AC_,2)}, v{T+1}, {WS}, s{sA} offen sc1
    v_and_b32 v{T+2}, 7, v{LANE}
    v_cmp_ge_u32 {sr(sM,2)}, s{sB}, v{T+2}
    v_lshlrev_b32 v{T+2}, 2, v{T+2}
    v_mov_b32 v{AC_}, 0
    v_mov_b32 v{AC_+1}, 0
    s_mov_b32 s{sCnt}, 0
    """)
    a.label('L_h_wk')
    a(f"""
    buffer_load_dword v{AC_+2}, v{T+2}, {DBG}, 0 offen offset:{DBG_DN + DBG_KV0} sc1
    s_waitcnt vmcnt(0)
    v_cmp_gt_u32 vcc, 32, v{AC_+2}
    s_and_b64 vcc, vcc, {sr(sM,2)}
    s_cbranch_vccz L_h_wa
    """)
    poll_fail(a, 'L_h_wk')
    a.label('L_h_wa')
    a(f"""
    s_cmp_ge_u32 s{sCnt}, s{sB}
    s_cbranch_scc1 L_h_wd
    buffer_load_dwordx2 {vr(220,2)}, v{T+1}, {WS}, s{sA3} offen sc1
    s_waitcnt vmcnt(0)
    v_max_u32 v{AC_+2}, v220, v221
    v_cmp_eq_u32 vcc, -1, v{AC_+2}
    s_cbranch_vccz L_h_wb
    """)
    poll_fail(a, 'L_h_wa')
    a.label('L_h_wb')
    cmac(W_, 220)
    a(f"s_add_u32 s{sCnt}, s{sCnt}, 1\ns_add_u32 s{sA3}, s{sA3}, 4096\ns_branch L_h_wa")
    a.label('L_h_wd')
    a(f"s_lshl_b32 s{sA}, s{sW}, 10\ns_add_u32 s{sA}, s{sA}, {H_C}\nv_add_u32 v{T+2}, s{sA}, v{T}")
    for s_ in range(8):
        a(f"ds_write2_b32 v{T+2}, v{AC_}, v{AC_+1} offset0:{32*s_} offset1:{32*s_+16}")
        if s_ < 7: cmac(U, EE + 2 * s_)
    a(f"""
    s_lshl_b32 s{sA2}, s{sW}, 7
    s_add_u32 s{sA}, s{sA}, s{sA2}
    v_lshl_add_u32 v{T+2}, v{HH}, 5, s{sA}
    s_waitcnt lgkmcnt(0)
    """)
    CC = 192
    for j in range(2):
        for q in range(4): a(f"ds_read_b128 {vr(CC + 16*j + 4*q, 4)}, v{T+2} offset:{512*j + 64*(q>>1) + 16*(q&1)}")
    a(f"v_add_f32 v{T}, v{G}, v{G}\nv_add_f32 v{T+1}, v{MX}, v{MX}\ns_waitcnt lgkmcnt(0)")
    for j in range(2):
        R, I, cr, ci = RI + 16 * j, RI + 16 * j + 8, CC + 16 * j, CC + 16 * j + 8
        for c in range(8):
            a(f"""
            v_fmac_f32 v{R+c}, v{LR+c}, v{cr+c}
            v_fmac_f32 v{I+c}, v{LR+c}, v{ci+c}
            v_fma_f32 v{R+c}, -v{LI+c}, v{ci+c}, v{R+c}
            v_fmac_f32 v{I+c}, v{LI+c}, v{cr+c}
            v_mul_f32 v{cr+c}, v{R+c}, v{LE+c}
            v_mul_f32 v{ci+c}, v{R+c}, v{LM+c}
            v_fma_f32 v{cr+c}, -v{I+c}, v{LM+c}, v{cr+c}
            v_fmac_f32 v{ci+c}, v{I+c}, v{LE+c}
            v_mul_f32 v{cr+c}, v{cr+c}, v{T+j}
            v_mul_f32_e64 v{ci+c}, -v{ci+c}, v{T+j}
            """)
        for r in range(8): a(f"v_cvt_pk_bf16_f32 v{HF+8*j+r}, v{cr+2*r}, v{cr+2*r+1}")
    for r in range(8): a(f"v_accvgpr_write_b32 a{PH+r}, v{HF+8+r}")
    a(f"""
    v_bfe_u32 v{t+4}, v{LANE}, 2, 2
    v_bfe_u32 v{t+5}, v{LANE}, 4, 1
    v_and_b32 v{t+6}, 1, v{LANE}
    v_bfe_u32 v{t+7}, v{LANE}, 1, 1
    v_lshl_add_u32 v{t+8}, v{t+6}, 1, v{t+7}
    v_lshl_add_u32 v{t+8}, v{t+5}, 2, v{t+8}
    v_lshlrev_b32 v{t+8}, 3, v{t+8}
    v_lshl_add_u32 v{t+9}, v{HH}, 4, v{t+4}
    v_lshl_add_u32 v{t+8}, v{t+9}, 10, v{t+8}
    v_lshl_add_u32 v{WOA}, v{t+4}, 6, v{t+8}
    """)
    for tt in range(1, 4): a(f"v_xor_b32 v{WOA+tt}, {64*tt}, v{WOA}")
    for tt in range(4): a(f"v_add_u32 v{WOA+4+tt}, 0x10000, v{WOA+tt}")
    a(f"s_mov_b32 s{sJ}, 0")
    MINI = P.get('mini', 1)
    if MINI:
        a(f"""
        s_cmp_lg_u32 s{sB}, 7
        s_cbranch_scc1 L_h_nsd
        s_lshl_b32 s{sA2}, s{sW}, 5
        s_add_u32 s{sA2}, s{sA2}, s{sH}
        s_mul_i32 s{sA2}, s{sA2}, {23*1024}
        s_add_u32 s{sA2}, s{sA2}, {WS_ST}
        """)
        for q in range(23):
            a(f"buffer_store_dwordx4 {ar(128+4*q,4)}, v{L16}, {WS}, s{sA2} offen offset:{1024*(q&3)} sc1")
            if q & 3 == 3: a(f"s_add_u32 s{sA2}, s{sA2}, 4096")
        signal('d', DBG_ST, '0', 0)
    hs(5)
    a.label('L_h_seg')
    KMF, VMF, SM, PX, PM, OA_ = 32, 64, 80, 248, 128, 192
    a(f"v_max3_f32 v{MX}, v{SS}, v{SS+1}, v{SS+2}")
    for r in range(3, 15, 2): a(f"v_max3_f32 v{MX}, v{MX}, v{SS+r}, v{SS+r+1}")
    a(f"""
    v_max_f32 v{MX}, v{MX}, v{SS+15}
    s_lshl_b32 s{sA}, s{sSeg}, 17
    s_lshl_b32 s{sA2}, s{sH}, 12
    s_add_u32 s{sA}, s{sA}, s{sA2}
    s_add_u32 s{sA}, s{sA}, {WS_KM}
    s_sub_u32 s{sA2}, s{sSeg}, {P.get('pm0', 0)}
    s_cmp_lt_u32 s{sA2}, {48 - P.get('pm0', 0)}
    s_cselect_b32 s{sA2}, {P.get('pm', 7)}, {P.get('pm6', 3)}
    s_cmp_lt_u32 s{sSeg}, 56
    s_cselect_b32 s{sA2}, s{sA2}, {P.get('pm7', 3)}
    s_cmp_lt_u32 s{sSeg}, 60
    s_cselect_b32 s{sA2}, s{sA2}, 0
    s_or_b32 s{sA2}, s{sA2}, s{sSeg}
    s_min_u32 s{sA2}, s{sA2}, 62
    s_sub_i32 s{sA2}, s{sA2}, s{sSeg}
    s_lshl_b32 s{sA2}, s{sA2}, 17
    s_add_u32 s{sA2}, s{sA}, s{sA2}
    s_mov_b32 s{sA4}, 0x3e0293ee
    s_lshl_b32 s{sA3}, s{sW}, 12
    s_add_u32 s{sA3}, s{sA3}, {H_K}
    v_add_u32 v{T+1}, s{sA3}, v{L16}
    v_add_u32 v{T+2}, 2048, v{VKM}
    """)
    for tau in range(4): a(f"v_mov_b64 {vr(VMF + 4*tau + 2, 2)}, 0")
    a(f"v_mov_b64 {vr(PM+2,2)}, 0")
    a.label('L_h_pr')
    a(f"""
    buffer_load_dword v{T}, off, {WS}, s{sA2} offset:3072 sc1
    s_waitcnt vmcnt(0)
    v_cmp_eq_u32 vcc, -1, v{T}
    s_cbranch_vccz L_h_ld
    """)
    poll_fail(a, 'L_h_pr')
    a.label('L_h_pf')
    a(f"s_add_u32 s{sSpin}, s{sSpin}, 1\ns_cmp_gt_u32 s{sSpin}, {HSPIN}\ns_cbranch_scc1 L_end")
    a.label('L_h_ld')
    LD = 192
    for k in range(4): a(f"buffer_load_dwordx4 {vr(LD + 4*k, 4)}, v{L16}, {WS}, s{sA} offen offset:{1024*k} sc1")
    a("s_waitcnt vmcnt(0)")
    hs(6)
    for k in range(4): a(f"ds_write_b128 v{T+1}, {vr(LD + 4*k, 4)} offset:{1024*k}")
    a(f"v_max3_u32 v{T}, v{LD}, v{LD+1}, v{LD+2}")
    for r in range(3, 15, 2): a(f"v_max3_u32 v{T}, v{T}, v{LD+r}, v{LD+r+1}")
    a(f"v_max_u32 v{T}, v{T}, v{LD+15}\nv_cmp_eq_u32 vcc, -1, v{T}\ns_cbranch_vccnz L_h_pf")
    for k in range(8):
        o = ((k >> 1) & 1) * 128 + (k & 1) * 32
        a(f"ds_read2_b64 {vr(KMF + 4*k, 4)}, v{VKM if k < 4 else T+2} offset0:{o} offset1:{o+16}")
    for tau in range(4): a(f"ds_read2st64_b32 {vr(VMF + 4*tau, 2)}, v{VVM} offset0:{4*tau} offset1:{4*tau+2}")
    for k in range(8):
        a(f"s_waitcnt lgkmcnt({11-k})")
        mf(a, vr(SM, 16), vr(KMF + 4 * k, 4), vr(QF + 4 * k, 4), vr(SM, 16) if k else 0)
    a("s_waitcnt lgkmcnt(0)\ns_nop 11")
    a(f"""
    v_max3_f32 v{T}, v{MX}, v{SM}, v{SM+1}
    v_max3_f32 v{T}, v{T}, v{SM+2}, v{SM+3}
    v_mov_b32 v{T+1}, v{T}
    s_nop 1
    v_permlane32_swap_b32 v{T}, v{T+1}
    v_max_f32 v{T}, v{T}, v{T+1}
    v_mul_f32 v{T}, s{sA4}, v{T}
    """)
    ev = [SM + r for r in range(4)] + [SS + r for r in range(16)]
    for r in ev: a(f"v_fma_f32 v{r}, v{r}, s{sA4}, -v{T}")
    for r in ev: a(f"v_exp_f32 v{r}, v{r}")
    a(f"v_cvt_pk_bf16_f32 v{PM}, v{SM}, v{SM+1}\nv_cvt_pk_bf16_f32 v{PM+1}, v{SM+2}, v{SM+3}")
    for r in range(8): a(f"v_cvt_pk_bf16_f32 v{PX+r}, v{SS+2*r}, v{SS+2*r+1}")
    sm = [f"v_add_f32 v{T}, v{ev[0]}, v{ev[1]}"] + [f"v_add_f32 v{T}, v{T}, v{r}" for r in ev[2:]]
    sm += [f"v_mov_b32 v{T+1}, v{T}", f"v_sub_f32 v{T+2}, 1.0, v{G}", "s_nop 0", f"v_permlane32_swap_b32 v{T}, v{T+1}", f"v_add_f32 v{T}, v{T}, v{T+1}",
           f"v_rcp_f32 v{T}, v{T}", "s_nop 0", f"v_mul_f32 v{T}, v{T}, v{T+2}"]
    WF = 32
    wrd = lambda tile: [f"ds_read_b64_tr_b16 {vr(WF + 32*(tile&1) + 4*k + 2*pp, 2)}, v{WOA + 4*(k>>2) + (tile&3)} offset:{(32*((k>>1)&1) + 8*(k&1) + 4*pp)*1024 + 256*(tile>>2)}"
                        for k in range(8) for pp in range(2)]
    rd = wrd(0)
    OB = [192, 208, 132, 148]
    OB = [192, 208, 132, 80]
    def onorm(tau):
        L_ = [f"v_mul_f32 v{OB[tau]+r}, v{OB[tau]+r}, v{T}" for r in range(16)]
        L_ += [f"v_cvt_pk_bf16_f32 v{QF+8*tau+r}, v{OB[tau]+2*r}, v{OB[tau]+2*r+1}" for r in range(8)]
        return L_
    n = 0
    for tau in range(4):
        D = vr(OB[tau], 16)
        for k in range(3):
            if k == 0: mf(a, D, vr(VMF + 4 * tau, 4), vr(PM, 4), 0)
            else: mf(a, D, vr(VF + 8 * tau + 4 * (k - 1), 4), vr(PX + 4 * (k - 1), 4), D)
            for _ in range(2):
                if rd: a(rd.pop(0))
            if n == 6: sm += onorm(0)
            if n == 9: sm += onorm(1)
            for _ in range(6):
                if sm: a(sm.pop(0))
            n += 1
    for l in sm + onorm(2) + onorm(3): a(l)
    hs(7)
    a(f"""
    s_lshl_b32 s{sA}, s{sSeg}, 20
    s_lshl_b32 s{sA2}, s{sH}, 10
    s_add_u32 s{sA}, s{sA}, s{sA2}
    s_add_u32 s{sA}, s{sA}, {WS_PART}
    """)
    CT = 128
    def epi(tile):
        D = 192 + 16 * (tile & 1); c = CT + 8 * (tile & 1)
        L_ = []
        for u in range(2):
            L_ += [f"v_cvt_pk_bf16_f32 v{c+4*u+r}, v{D+8*u+2*r}, v{D+8*u+2*r+1}\nv_min_u32 v{c+4*u+r}, -2, v{c+4*u+r}" for r in range(4)]
        for u in range(2):
            L_ += [f"buffer_store_dwordx4 {vr(c+4*u,4)}, v{L16}, {WS}, s{sA} offen sc1\ns_add_u32 s{sA}, s{sA}, 32768"]
        return L_
    for tile in range(16):
        D = vr(192 + 16 * (tile & 1), 16)
        rd = wrd(tile + 1) if tile < 15 else []
        ep = epi(tile - 1) if tile else []
        for k in range(10):
            if k == 2: a("s_waitcnt lgkmcnt(0)")
            if k < 2: mf(a, D, ar(8 * tile + 4 * k, 4), vr(HF + 4 * k, 4), D if k else 0)
            else: mf(a, D, vr(WF + 32 * (tile & 1) + 4 * (k - 2), 4), vr(QF + 4 * (k - 2), 4), D)
            if k >= 2:
                for _ in range(2):
                    if rd: a(rd.pop(0))
            if ep and k >= 6 and len(ep) <= 2: a(ep.pop(0))
            elif ep and k >= 1 and len(ep) > 2:
                a(ep.pop(0)); a(ep.pop(0))
        assert not ep and not rd
    a("s_nop 12")
    for l in epi(15): a(l)
    hs(8)
    a(f"""
    s_lshl_b32 s{sA4}, s{sSeg}, 7
    s_add_u32 s{sA4}, s{sA4}, {WS_CNT}
    v_mov_b32 v220, 1
    """)
    if MINI: a(f"s_cmp_eq_u32 s{sB}, 7\ns_cselect_b32 s{sJ}, 3, s{sJ}\ns_cbranch_scc1 L_h_s7")
    a(f"s_cmp_lg_u32 s{sJ}, 0\ns_cbranch_scc1 L_h_sg")
    for r in range(32): a(f"v_accvgpr_read_b32 v{QF+r}, a{PQ+r}\nv_accvgpr_read_b32 v{VF+r}, a{PV+r}")
    for r in range(16): a(f"v_accvgpr_read_b32 v{SS+r}, a{PS+r}")
    for r in range(8): a(f"v_accvgpr_read_b32 v{HF+r}, a{PH+r}")
    a.label('L_h_sg')
    a(f"""
    v_accvgpr_read_b32 v{T}, a{PG}
    v_accvgpr_write_b32 a{PG}, v{G}
    s_xor_b32 s{sSeg}, s{sSeg}, 4
    s_add_u32 s{sJ}, s{sJ}, 1
    v_mov_b32 v{G}, v{T}
    {'' if P.get('sg', 1) else 'L_h_s7:'}
    s_waitcnt vmcnt(0)
    s_mov_b64 exec, 1
    buffer_atomic_add v220, off, {WS}, s{sA4}
    s_mov_b64 exec, -1
    s_cmp_eq_u32 s{sJ}, 1
    s_cbranch_scc1 L_h_seg
    {'L_h_s7:' if P.get('sg', 1) else ''}
    s_waitcnt vmcnt(0)
    """)
    SELR, XS, DS_ = 216, 208, 212
    XU, DU = 224, 232
    def red_prep(SELR, DS_):
        a(f"""
        s_lshl_b32 s{sA2}, s{sH}, 5
        v_lshlrev_b32 v{T+1}, 4, v{HH}
        v_lshl_add_u32 v{T+2}, v{VN}, 10, v{T+1}
        v_add_u32 v{T+1}, s{sA2}, v{T+1}
        global_load_dwordx4 {vr(DS_,4)}, v{T+1}, {sr(P_DSK,2)}
        v_lshlrev_b32 v{MX}, 1, v{T+2}
        v_bfe_u32 v{t}, v{LANE}, 2, 1
        v_bfe_u32 v{t+1}, v{LANE}, 3, 2
        v_and_b32 v{t+2}, 3, v{LANE}
        v_lshl_add_u32 v{t+1}, v{t+1}, 2, v{t+2}
        v_cmp_eq_u32 vcc, v{t}, v{HH}
        v_mov_b32 v{t+3}, 64
        s_mov_b32 s{sA2}, 0x3f80
        v_cndmask_b32 v{t+1}, v{t+3}, v{t+1}, vcc
        v_and_b32 v{t+2}, 1, v{t+1}
        v_lshlrev_b32 v{t+2}, 4, v{t+2}
        v_lshlrev_b32 v{t+2}, v{t+2}, s{sA2}
        v_lshrrev_b32 v{t+1}, 1, v{t+1}
        """)
        for d in range(4): a(f"v_cmp_eq_u32 vcc, {d}, v{t+1}\ns_nop 1\nv_cndmask_b32 v{SELR+d}, 0, v{t+2}, vcc")
    red_prep(SELR, DS_)
    a.label('L_h_red')
    a(f"""
    s_lshl_b32 s{sA3}, s{sSeg}, 15
    s_lshl_b32 s{sA2}, s{sH}, 5
    s_add_u32 s{sA3}, s{sA3}, s{sA2}
    buffer_load_dwordx4 {vr(XS,4)}, v{T+2}, {sr(S_X,4)}, s{sA3} offen
    s_lshl_b32 s{sA4}, s{sSeg}, 7
    s_add_u32 s{sA4}, s{sA4}, {WS_CNT}
    s_lshl_b32 s{sA}, s{sSeg}, 20
    s_lshl_b32 s{sA2}, s{sH}, 15
    s_add_u32 s{sA}, s{sA}, s{sA2}
    s_add_u32 s{sA}, s{sA}, {WS_PART}
    s_lshl_b32 s{sA3}, s{sA3}, 1
    v_lshlrev_b32 v221, 10, v{VN}
    s_cmp_ge_u32 s{sSeg}, {56 if P.get('sg', 1) else 64}
    s_cbranch_scc1 L_h_rf
    """)
    a.label('L_h_wc')
    a(f"""
    buffer_load_dword v220, off, {WS}, s{sA4} sc1
    s_waitcnt vmcnt(0)
    v_cmp_gt_u32 vcc, 32, v220
    s_cbranch_vccz L_h_rd
    """)
    poll_fail(a, 'L_h_wc', P.get('slc', 2))
    a.label('L_h_rf')
    a(f"""
    s_mov_b64 exec, 0xffffffff
    buffer_load_dword v220, v221, {WS}, s{sA} offen offset:1020 sc1
    s_add_u32 s{sSpin}, s{sSpin}, 1
    s_cmp_gt_u32 s{sSpin}, {HSPIN}
    s_cbranch_scc1 L_end
    s_waitcnt vmcnt(0)
    v_cmp_eq_u32 vcc, -1, v220
    s_mov_b64 exec, -1
    s_cbranch_vccz L_h_rd
    s_sleep 2
    s_branch L_h_rf
    """)
    a.label('L_h_rd')
    hs(9)
    for k in range(32):
        if k & 3 == 0: a(f"s_add_u32 s{sA2}, s{sA}, {1024*k}")
        a(f"buffer_load_dwordx4 {vr(32+4*k,4)}, v{L16}, {WS}, s{sA2} offen offset:{1024*(k&3)} sc1")
    a("s_waitcnt vmcnt(32)")
    unpack8(a, XU, XS); unpack8(a, DU, DS_)
    for r in range(8): a(f"v_mul_f32 v{XU+r}, v{XU+r}, v{DU+r}")
    a(f"v_mov_b32 v{T}, 0")
    for k in range(32):
        a(f"s_waitcnt vmcnt({31-k})")
        mf(a, vr(192, 16), vr(SELR, 4), vr(32 + 4 * k, 4), vr(192, 16) if k else 0)
        a(f"v_max3_u32 v{T}, v{T}, v{32+4*k}, v{33+4*k}\nv_max3_u32 v{T}, v{T}, v{34+4*k}, v{35+4*k}")
    a(f"v_cmp_eq_u32 vcc, -1, v{T}\ns_cbranch_vccnz L_h_rf\ns_nop 7")
    for r in range(8): a(f"v_fmac_f32 v{192+r}, v{XU+r}, v{G}")
    OF = P.get('of', '')
    a(f"""
    buffer_store_dwordx4 v[192:195], v{MX}, {sr(S_OUT,4)}, s{sA3} offen {OF}
    buffer_store_dwordx4 v[196:199], v{MX}, {sr(S_OUT,4)}, s{sA3} offen offset:16 {OF}
    v_accvgpr_read_b32 v{G}, a{PG}
    s_xor_b32 s{sSeg}, s{sSeg}, 4
    s_add_u32 s{sJ}, s{sJ}, 1
    s_cmp_eq_u32 s{sJ}, 3
    s_cbranch_scc1 L_h_red
    """)
    a.label('L_h_done')
    if P.get('stat'):
        a("s_waitcnt vmcnt(0)"); hs(10); a("s_waitcnt lgkmcnt(0)")
        for k in range(11): a(f"v_mov_b32 v{32+k}, s{74+2*k}")
        a(f"v_mov_b32 v43, s98\ns_lshl_b32 s{sA}, s{sB}, 5\ns_add_u32 s{sA}, s{sA}, s{sH}\ns_lshl_b32 s{sA}, s{sA}, 2\ns_add_u32 s{sA}, s{sA}, s{sW}\ns_lshl_b32 s{sA}, s{sA}, 6\ns_add_u32 s{sA}, s{sA}, {(49 << 20) + (512 << 10)}\ns_mov_b64 exec, 1")
        for q in range(3): a(f"buffer_store_dwordx4 {vr(32+4*q,4)}, v{L16}, {WS}, s{sA} offen offset:{16*q}")
        a("s_mov_b64 exec, -1")
    a(f"""
    s_cmp_ge_u32 s{sB}, 2
    s_cbranch_scc1 {'L_h_mini' if MINI else 'L_end'}
    {'s_sub_u32 s%d, 7, s%d' % (sB, sB) if P.get('r2', 0) else 's_add_u32 s%d, s%d, 6' % (sB, sB)}
    s_waitcnt vmcnt(0)
    s_branch L_h_again
    """)
    if not MINI: return
    a.label('L_h_mini')
    a(f"""
    s_sub_u32 s{sA3}, s{sB}, 2
    s_cmp_ge_u32 s{sA3}, 4
    s_cbranch_scc1 L_end
    s_add_u32 s{sSeg}, s{sB}, 58
    s_add_u32 s{sB}, s{sB}, 6
    s_mov_b32 s{sSpin}, 0
    s_lshl_b32 s{sA}, s{sW}, 8
    """)
    AQ, AV, AH, AC_2 = 128, 160, 192, ACW
    for i in range(8): a(f"v_add_u32 v{WOA+i}, s{sA}, v{WOA+i}")
    for tt in range(4):
        for k in range(8):
            for pp in range(2): a(f"ds_read_b64_tr_b16 {ar(32*tt + 4*k + 2*pp, 2)}, v{WOA + 4*(k>>2) + tt} offset:{(32*((k>>1)&1) + 8*(k&1) + 4*pp)*1024}")
    SELM, XM = 20, 24
    a("s_waitcnt lgkmcnt(0)")
    red_prep(SELM, 244)
    a(f"""
    s_lshl_b32 s{sWoo}, s{sSeg}, 15
    s_lshl_b32 s{sA2}, s{sH}, 5
    s_add_u32 s{sWoo}, s{sWoo}, s{sA2}
    buffer_load_dwordx4 v[240:243], v{T+2}, {sr(S_X,4)}, s{sWoo} offen
    s_lshl_b32 s{sWoo}, s{sWoo}, 1
    s_lshl_b32 s{sA}, s{sW}, 4
    v_add_u32 v{VKV}, s{sA}, v{MX}
    s_cmp_lg_u32 s{sW}, 0
    s_cbranch_scc1 L_m_st
    """)
    a.label('L_m_w0')
    a(f"buffer_load_dword v{T}, off, {DBG}, 0 offset:{DBG_DN + DBG_ST} sc1\ns_waitcnt vmcnt(0)\nv_cmp_eq_u32 vcc, 0, v{T}\ns_cbranch_vccz L_m_st")
    poll_fail(a, 'L_m_w0', 16)
    a.label('L_m_st')
    a(f"""
    s_waitcnt vmcnt(0)
    s_barrier
    s_lshl_b32 s{sA2}, s{sA3}, 5
    s_add_u32 s{sA2}, s{sA2}, s{sH}
    s_mul_i32 s{sA2}, s{sA2}, {23*1024}
    s_add_u32 s{sA2}, s{sA2}, {WS_ST}
    """)
    for q in range(23):
        dst = ar(AQ + 4 * q, 4) if q < 16 else vr(SS + 4 * (q - 16), 4) if q < 20 else ar(AH + 4 * (q - 20), 4) if q < 22 else vr(248, 4)
        a(f"buffer_load_dwordx4 {dst}, v{L16}, {WS}, s{sA2} offen offset:{1024*(q&3)} sc1")
        if q & 3 == 3: a(f"s_add_u32 s{sA2}, s{sA2}, 4096")
    unpack8(a, 32, 240); unpack8(a, 40, 244)
    for r in range(8): a(f"v_mul_f32 v{32+r}, v{32+r}, v{40+r}")
    a(f"s_bitcmp1_b32 s{sW}, 0\ns_cselect_b64 vcc, -1, 0\ns_mov_b32 s{sA4}, 0x3e0293ee\ns_waitcnt vmcnt(0)\nv_mov_b32 v{G}, v248")
    for r in range(4): a(f"v_cndmask_b32 v{XM+r}, v{32+r}, v{36+r}, vcc")
    for r in range(4): a(f"v_mul_f32 v{XM+r}, v{XM+r}, v{G}")
    LX = XA
    a(f"v_max3_f32 v{MX}, v{SS}, v{SS+1}, v{SS+2}")
    for r in range(3, 15, 2): a(f"v_max3_f32 v{MX}, v{MX}, v{SS+r}, v{SS+r+1}")
    a(f"""
    v_max_f32 v{MX}, v{MX}, v{SS+15}
    v_mov_b32 v{T+1}, v{MX}
    s_nop 1
    v_permlane32_swap_b32 v{MX}, v{T+1}
    v_max_f32 v{MX}, v{MX}, v{T+1}
    v_mul_f32 v{T}, s{sA4}, v{MX}
    """)
    for r in range(16): a(f"v_fma_f32 v{SS+r}, v{SS+r}, s{sA4}, -v{T}")
    for r in range(16): a(f"v_exp_f32 v{SS+r}, v{SS+r}")
    for r in range(8): a(f"v_cvt_pk_bf16_f32 v{248+r}, v{SS+2*r}, v{SS+2*r+1}")
    a(f"v_add_f32 v{LX}, v{SS}, v{SS+1}")
    for r in range(2, 16): a(f"v_add_f32 v{LX}, v{LX}, v{SS+r}")
    for tau in range(4):
        for u in range(2): mf(a, vr(32 + 16 * tau, 16), ar(AV + 8 * tau + 4 * u, 4), vr(248 + 4 * u, 4), vr(32 + 16 * tau, 16) if u else 0)
    a("s_nop 12")
    for r in range(32): a(f"v_cvt_pk_bf16_f32 v{96+r}, v{32+2*r}, v{33+2*r}")
    YC, YX = 96, 160
    a("s_nop 1")
    for tt in range(4):
        for k in range(8): mf(a, vr(YX + 16 * tt, 16), ar(32 * tt + 4 * k, 4), vr(96 + 4 * k, 4), vr(YX + 16 * tt, 16) if k else 0)
    a("s_nop 7")
    for tt in range(4):
        for k in range(2): mf(a, vr(YC + 16 * tt, 16), ar(AC_2 + 8 * tt + 4 * k, 4), ar(AH + 4 * k, 4), vr(YC + 16 * tt, 16) if k else 0)
    PMm, LDm = 240, 244
    a(f"""
    s_lshl_b32 s{sA}, s{sSeg}, 17
    s_lshl_b32 s{sA2}, s{sH}, 12
    s_add_u32 s{sA}, s{sA}, s{sA2}
    s_add_u32 s{sA}, s{sA}, {WS_KM}
    s_cmp_ge_u32 s{sSeg}, {P.get('mfp', 63)}
    s_cselect_b32 s{sA2}, {1 << 17}, 0
    s_sub_u32 s{sA2}, s{sA}, s{sA2}
    s_lshl_b32 s{sA3}, s{sW}, 10
    s_add_u32 s{sA}, s{sA}, s{sA3}
    s_add_u32 s{sA3}, s{sA3}, {H_K}
    v_add_u32 v{XA+1}, s{sA3}, v{L16}
    s_lshl_b32 s{sA3}, s{sW}, 12
    v_subrev_u32 v{VKM}, s{sA3}, v{VKM}
    v_subrev_u32 v{VVM}, s{sA3}, v{VVM}
    v_add_u32 v{T+2}, 2048, v{VKM}
    v_sub_f32 v{G}, 1.0, v{G}
    s_lshl_b32 s{sWo1}, s{sSeg}, 20
    s_add_u32 s{sWo1}, s{sWo1}, {WS_PART}
    s_lshl_b32 s{sA3}, s{sH}, 15
    s_add_u32 s{sWo2}, s{sWo1}, s{sA3}
    s_lshl_b32 s{sA3}, s{sW}, 13
    s_add_u32 s{sWo2}, s{sWo2}, s{sA3}
    s_add_u32 s{sSlot}, s{sWo2}, 4096
    s_lshl_b32 s{sA3}, s{sH}, 10
    s_add_u32 s{sWo1}, s{sWo1}, s{sA3}
    s_lshl_b32 s{sA3}, s{sW}, 18
    s_add_u32 s{sWo1}, s{sWo1}, s{sA3}
    """)
    for tau in range(4): a(f"v_mov_b64 {vr(VMF + 4*tau + 2, 2)}, 0")
    a(f"v_mov_b64 {vr(PMm+2,2)}, 0")
    a("s_getpc_b64 s[60:61]")
    a.label('L_m_pc')
    a(f"v_lshlrev_b32 v{T}, 3, v{L16}\nv_min_u32 v{T}, L_m_fin-L_m_pc, v{T}\nglobal_load_dword v{T}, v{T}, s[60:61]")
    hs(5)
    a.label('L_m_pr')
    a(f"buffer_load_dword v{T}, off, {WS}, s{sA2} offset:3072 sc1\ns_waitcnt vmcnt(0)\nv_cmp_eq_u32 vcc, -1, v{T}\ns_cbranch_vccz L_m_ld")
    poll_fail(a, 'L_m_pr', P.get('mps', 2))
    a.label('L_m_pf')
    a(f"s_add_u32 s{sSpin}, s{sSpin}, 1\ns_cmp_gt_u32 s{sSpin}, {HSPIN}\ns_cbranch_scc1 L_end")
    a.label('L_m_ld')
    a(f"""
    buffer_load_dwordx4 {vr(LDm,4)}, v{L16}, {WS}, s{sA} offen sc1
    s_waitcnt vmcnt(0)
    ds_write_b128 v{XA+1}, {vr(LDm,4)}
    v_max3_u32 v{T}, v{LDm}, v{LDm+1}, v{LDm+2}
    v_max_u32 v{T}, v{T}, v{LDm+3}
    v_cmp_eq_u32 vcc, -1, v{T}
    s_cbranch_vccnz L_m_pf
    s_waitcnt lgkmcnt(0)
    s_barrier
    """)
    for k in range(8):
        o = ((k >> 1) & 1) * 128 + (k & 1) * 32
        a(f"ds_read2_b64 {vr(KMF + 4*k, 4)}, v{VKM if k < 4 else T+2} offset0:{o} offset1:{o+16}")
    for tau in range(4): a(f"ds_read2st64_b32 {vr(VMF + 4*tau, 2)}, v{VVM} offset0:{4*tau} offset1:{4*tau+2}")
    for k in range(8):
        a(f"s_waitcnt lgkmcnt({11-k})")
        mf(a, vr(SM, 16), vr(KMF + 4 * k, 4), ar(AQ + 4 * k, 4), vr(SM, 16) if k else 0)
    hs(6)
    a(f"""
    s_waitcnt lgkmcnt(0)
    s_nop 11
    v_max3_f32 v{T}, v{MX}, v{SM}, v{SM+1}
    v_max3_f32 v{T}, v{T}, v{SM+2}, v{SM+3}
    v_mov_b32 v{T+1}, v{T}
    s_nop 1
    v_permlane32_swap_b32 v{T}, v{T+1}
    v_max_f32 v{T}, v{T}, v{T+1}
    v_mul_f32 v{T}, s{sA4}, v{T}
    """)
    for r in [SM, SM + 1, SM + 2, SM + 3, MX]: a(f"v_fma_f32 v{r}, v{r}, s{sA4}, -v{T}")
    for r in [SM, SM + 1, SM + 2, SM + 3, MX]: a(f"v_exp_f32 v{r}, v{r}")
    a(f"""
    v_add_f32 v{T}, v{SM}, v{SM+1}
    v_add_f32 v{T+1}, v{SM+2}, v{SM+3}
    v_fmac_f32 v{T}, v{LX}, v{MX}
    v_add_f32 v{T}, v{T}, v{T+1}
    v_mov_b32 v{T+1}, v{T}
    s_nop 1
    v_permlane32_swap_b32 v{T}, v{T+1}
    v_add_f32 v{T}, v{T}, v{T+1}
    v_rcp_f32 v{T}, v{T}
    s_nop 0
    v_mul_f32 v{T}, v{T}, v{G}
    """)
    for r in range(4): a(f"v_mul_f32 v{SM+r}, v{SM+r}, v{T}")
    a(f"v_cvt_pk_bf16_f32 v{PMm}, v{SM}, v{SM+1}\nv_cvt_pk_bf16_f32 v{PMm+1}, v{SM+2}, v{SM+3}\nv_mul_f32 v{MX}, v{MX}, v{T}")
    OBm = [32, 48, 80, 224]; OF = 160
    fm = [f"v_fmac_f32 v{YC+r}, v{YX+r}, v{MX}" for r in range(64)]
    a(fm.pop(0))
    for tau in range(4):
        mf(a, vr(OBm[tau], 16), vr(VMF + 4 * tau, 4), vr(PMm, 4), 0)
        for _ in range(6): a(fm.pop(0))
    for _ in range(7): a(fm.pop(0))
    cvo = lambda tau: [f"v_cvt_pk_bf16_f32 v{OF+8*tau+r}, v{OBm[tau]+2*r}, v{OBm[tau]+2*r+1}" for r in range(8)]
    for l in cvo(0): a(l)
    fill = cvo(1) + cvo(2) + cvo(3) + fm
    a(fill.pop(0)); a(fill.pop(0))
    CTm = 32
    def epim(tt):
        L_ = [f"v_cvt_pk_bf16_f32 v{CTm+8*tt+r}, v{YC+16*tt+2*r}, v{YC+16*tt+2*r+1}\nv_min_u32 v{CTm+8*tt+r}, -2, v{CTm+8*tt+r}" for r in range(8)]
        L_ += [f"buffer_store_dwordx4 {vr(CTm+8*tt+4*u,4)}, v{L16}, {WS}, s{sWo1} offen sc1\ns_add_u32 s{sWo1}, s{sWo1}, 32768" for u in range(2)]
        return L_
    order = [(tt, k) for k in range(8) for tt in range(2)] + [(2, k) for k in range(8)] + [(3, k) for k in range(8)]
    ep = []
    for n, (tt, k) in enumerate(order):
        mf(a, vr(YC + 16 * tt, 16), ar(32 * tt + 4 * k, 4), vr(OF + 4 * k, 4), vr(YC + 16 * tt, 16))
        for _ in range(6):
            if fill: a(fill.pop(0))
        if n == 17: ep += epim(0) + epim(1)
        if n == 25: ep += epim(2)
        for _ in range(3):
            if ep: a(ep.pop(0))
    assert not fill and not ep
    a("s_nop 12")
    for l in epim(3): a(l)
    hs(8)
    a(f"s_lshl_b32 s{sA3}, s{sW}, 11\ns_add_u32 s{sA3}, s{sA3}, {H_K + 4096}\nv_add_u32 v{T+1}, s{sA3}, v{L16}")
    a(f"s_lshl_b32 s{sA3}, s{sW}, 10\ns_add_u32 s{sA3}, s{sA3}, {H_K + 4096}\nv_add_u32 v{T+2}, s{sA3}, v{L16}")
    a(f"v_and_b32 v{MX}, 7, v{LANE}\nv_lshlrev_b32 v{MX}, 10, v{MX}")
    a(f"s_waitcnt vmcnt({P.get('mdr', 0)})")
    a(f"""
    s_cmp_ge_u32 s{sSeg}, {P.get('mth', 60)}
    s_cbranch_scc1 {'L_m_rd' if P.get('mg', 0) else 'L_m_rf'}
    s_barrier
    s_cmp_lg_u32 s{sW}, 0
    s_cbranch_scc1 L_m_c1
    s_lshl_b32 s{sA4}, s{sSeg}, 7
    s_add_u32 s{sA4}, s{sA4}, {WS_CNT}
    v_mov_b32 v{T}, 1
    s_mov_b64 exec, 1
    buffer_atomic_add v{T}, off, {WS}, s{sA4}
    s_mov_b64 exec, -1
    """)
    a.label('L_m_c0')
    a(f"buffer_load_dword v{T}, off, {WS}, s{sA4} sc1\ns_waitcnt vmcnt(0)\nv_cmp_gt_u32 vcc, 32, v{T}\ns_cbranch_vccz L_m_c1")
    poll_fail(a, 'L_m_c0', P.get('slc', 2))
    a.label('L_m_c1')
    a("s_barrier\ns_branch L_m_rd")
    a.label('L_m_rf')
    a(f"""
    s_mov_b64 exec, 0xff
    buffer_load_dword v{T}, v{MX}, {WS}, s{sWo2} offen offset:1020 sc1
    s_add_u32 s{sSpin}, s{sSpin}, 1
    s_cmp_gt_u32 s{sSpin}, {HSPIN}
    s_cbranch_scc1 L_end
    s_waitcnt vmcnt(0)
    v_cmp_eq_u32 vcc, -1, v{T}
    s_mov_b64 exec, -1
    s_cbranch_vccz L_m_rd
    s_sleep {P.get('msl', 1)}
    s_branch L_m_rf
    """)
    a.label('L_m_rd')
    hs(9)
    for k in range(8): a(f"buffer_load_dwordx4 {vr(96+4*k,4)}, v{L16}, {WS}, s{sWo2 if k < 4 else sSlot} offen offset:{1024*(k&3)} sc1")
    a(f"v_mov_b32 v{T}, 0")
    for k in range(8):
        a(f"s_waitcnt vmcnt({7-k})")
        mf(a, vr(64, 16), vr(SELM, 4), vr(96 + 4 * k, 4), vr(64, 16) if k else 0)
        a(f"v_max3_u32 v{T}, v{T}, v{96+4*k}, v{97+4*k}\nv_max3_u32 v{T}, v{T}, v{98+4*k}, v{99+4*k}")
    a(f"""
    v_cmp_eq_u32 vcc, -1, v{T}
    s_cbranch_vccnz L_m_rf
    s_nop 7
    ds_write_b128 v{T+1}, v[64:67]
    ds_write_b128 v{T+1}, v[68:71] offset:1024
    s_waitcnt lgkmcnt(0)
    s_barrier
    s_cmp_ge_u32 s{sW}, 2
    s_cbranch_scc1 L_m_fin
    """)
    for k in range(4): a(f"ds_read_b128 {vr(96+4*k,4)}, v{T+2} offset:{2048*k}")
    for k in range(4):
        a(f"s_waitcnt lgkmcnt({3-k})")
        a(f"v_pk_add_f32 {vr(XM,2)}, {vr(XM,2)}, {vr(96+4*k,2)}\nv_pk_add_f32 {vr(XM+2,2)}, {vr(XM+2,2)}, {vr(98+4*k,2)}")
    a(f"buffer_store_dwordx4 {vr(XM,4)}, v{VKV}, {sr(S_OUT,4)}, s{sWoo} offen")
    a.label('L_m_fin')
    a("s_branch L_h_done" if P.get('stat') else "s_branch L_hend" if P.get('dbgt') else "s_branch L_end")

if __name__ == '__main__':
    a = Asm(); h_once(a); helper_task(a, {})
    errs, ins = check(a.lines, 'helper')
    for e in errs: print(e)
    print(len(ins), ins[-1]['t'])
```

```python
from asmlib import *

WS_KV = 65536
WS_KM = (34 << 20) + 65536
WS_H1 = 48 << 20
WS_IMG = WS_H1 + (512 << 10)
WS_FL = WS_IMG + (64 << 10)
WS_H1B = WS_H1 + (256 << 10)
WS_IMB = WS_IMG + (128 << 10)
DBG_ARM = 132
ARM_ALL = {0: 32, 1: 64}
WS_STAMP = 49 << 20
WS_SIZE = 268435456
DBG_XCNT = 0
DBG_CBAR = 4
DBG_KV0 = 12
DBG_KVC = 16
DBG_DN = 128
L_MEM, L_S, L_KV, L_W = 0, 8192, 16384, 32768
L_O = L_MEM + 1024
L_SM = L_S + 1024
L_MISC = L_S + 5120
S_WS, S_WQ, S_WK, S_WV, S_WO, S_DBG, S_M0 = 4, 8, 12, 16, 20, 24, 28
sH, sW, sS = 32, 33, 34
sKV, sKM, sH1l, sTAG, sIMl = 35, 36, 37, 38, 39
sH1 = 40
sIMw, sIMr, sFL, sSPIN = 44, 45, 46, 47
sIML, sKMv = 59, 58
sONE, sMLO, sFLn, sRB, sFM, sLX = 84, 86, 3, 2, 54, 56
sFG, sKB = 80, 81
sC = 48
sT = 50
IDX, L16, A_W, A_SMW, NEG1, A_O, A_H1S, A_IMS = 0, 1, 2, 3, 4, 5, 6, 7
A_OW, FLV, HZ = 8, 9, 10
F, SEL, ONE = 12, 16, 20
MA = 24
Q0, K0, Q1, K1, V0, V1 = 56, 60, 64, 68, 72, 76
KX, VX, ST = 80, 88, 96
RW = 128
SPIN_MAX = 1000000

QK_A = {1: 0, 2: 1, 3: 2, 5: 3, 6: 4, 7: 5}
def wqk_reg(sig, u):
    if sig in (0, 4): return ('v', ST + 8 * u)
    return ('a', 32 * QK_A[sig] + 8 * u)
def wv_reg(sig, tau):
    if sig < 4: return ('a', 192 + 8 * (2 * sig + tau))
    return ('v', RW + 8 * (2 * (sig - 4) + tau))
def wo_reg(T, k2):
    if T < 2: return ('v', RW + 64 + 8 * (4 * T + k2))
    return ('v', (ST if T == 2 else MA) + 8 * k2)
def R8(r): return vr(r[1], 8, r[0])
def smf(a, D, A, B): a(f"v_smfmac_f32_16x16x64_bf16 {vr(D,4)}, {vr(A,4)}, {R8(B)}, v{IDX}")
def lw_qk(sig, u): return 8192 * (sig >> 2) + 4096 * (u & 1) + 2048 * (u >> 1)
def lw_wo(T, k2): return 16384 + 2048 * (4 * (T - 2) + k2)
def nops(a, n):
    while n > 0:
        k = min(n, 16); a(f"s_nop {k-1}"); n -= k

def srd(a, s, koff, size):
    a(f"s_load_dwordx2 {sr(s,2)}, s[0:1], {koff}")
    a(f"s_mov_b32 s{s+2}, {size}\ns_mov_b32 s{s+3}, 0x20000")

def chain_setup(a):
    t = 96
    lane, i, g, g1, g0, hi, i3, i2 = t + 1, t + 2, t + 3, t + 6, t + 7, t + 8, t + 9, t + 10
    x, y, z = t + 5, t + 12, t + 13
    a(f"""
    v_and_b32 v{lane}, 63, v0
    v_and_b32 v{i}, 15, v{lane}
    v_lshrrev_b32 v{g}, 4, v{lane}
    v_lshlrev_b32 v{L16}, 4, v{lane}
    v_lshrrev_b32 v{g1}, 1, v{g}
    v_and_b32 v{g0}, 1, v{g}
    v_lshrrev_b32 v{hi}, 3, v{i}
    v_and_b32 v{i3}, 3, v{i}
    v_lshrrev_b32 v{i2}, 2, v{i}
    s_lshl_b32 s{sT+1}, s{sW}, 15
    s_add_u32 s{sT+1}, s{sT+1}, {L_W}
    v_add_u32 v{A_W}, s{sT+1}, v{L16}
    v_lshl_add_u32 v{y}, v{hi}, 1, v{g0}
    v_and_b32 v{x}, 7, v{i}
    v_lshl_add_u32 v{x}, v{y}, 4, v{x}
    v_lshlrev_b32 v{x}, 4, v{x}
    v_add_u32 v{y}, s{sW}, v{y}
    v_and_b32 v{y}, 3, v{y}
    v_lshl_add_u32 v{x}, v{y}, 2, v{x}
    v_xor_b32 v{y}, 1, v{g1}
    v_lshl_add_u32 v{x}, v{y}, 11, v{x}
    v_add_u32 v{A_SMW}, {L_SM}, v{x}
    v_mov_b32 v{HZ}, 0x3f803f80
    v_mov_b32 v{HZ+1}, 0
    v_mov_b32 v{NEG1}, -1
    v_and_b32 v{A_O}, 0x37f, v{L16}
    v_lshlrev_b32 v{y}, 7, v{g0}
    v_or_b32 v{A_O}, v{A_O}, v{y}
    v_xor_b32 v{A_OW}, v{L16}, v{y}
    v_mov_b32 v{FLV}, 0
    v_cmp_lt_u32 vcc, 7, v{i}
    v_mov_b32 v{y}, 0x4444
    v_mov_b32 v{z}, 0xeeee
    v_cndmask_b32 v{t+11}, v{y}, v{z}, vcc
    """)
    a(f"""
    v_lshlrev_b32 v{x}, 2, v{g1}
    v_lshl_add_u32 v{x}, v{hi}, 1, v{x}
    v_add_u32 v{x}, v{x}, v{g0}
    v_lshlrev_b32 v{x}, 11, v{x}
    v_and_b32 v{y}, 7, v{i}
    v_lshl_add_u32 v{x}, v{y}, 3, v{x}
    s_lshl_b32 s{sT+2}, s{sW}, 14
    s_lshl_b32 s{sT+3}, s{sH}, 6
    s_add_u32 s{sT+2}, s{sT+2}, s{sT+3}
    v_add_u32 v{A_H1S}, s{sT+2}, v{x}
    """)
    a(f"""
    s_lshl_b32 s{sT+2}, s{sW}, 5
    s_add_u32 s{sT+2}, s{sT+2}, s{sH}
    s_lshl_b32 s{sT+2}, s{sT+2}, 6
    v_lshlrev_b32 v{x}, 4, v{g}
    v_lshl_add_u32 v{x}, v{i}, 2, v{x}
    v_add_u32 v{x}, s{sT+2}, v{x}
    v_cmp_gt_u32 vcc, 4, v{i}
    v_bfrev_b32 v{z}, 1
    s_nop 0
    v_cndmask_b32 v{A_IMS}, v{z}, v{x}, vcc
    """)
    a(f"""
    v_lshl_add_u32 v{x}, v{hi}, 2, v{i3}
    v_and_b32 v{y}, 1, v{i2}
    v_cmp_eq_u32 vcc, v{y}, v{g0}
    v_mov_b32 v{z}, 64
    s_nop 0
    v_cndmask_b32 v{x}, v{z}, v{x}, vcc
    v_and_b32 v{y}, 1, v{i}
    v_lshl_add_u32 v{t+14}, v{y}, 2, v{i2}
    v_cmp_gt_u32 vcc, 2, v{i3}
    s_mov_b32 s{sT+3}, 0x3f80
    s_nop 0
    v_cndmask_b32 v{t+14}, v{z}, v{t+14}, vcc
    """)
    for base, pos in ((F, x), (SEL, t + 14)):
        a(f"""
        v_and_b32 v{t+15}, 1, v{pos}
        v_lshlrev_b32 v{t+15}, 4, v{t+15}
        v_lshlrev_b32 v{t+15}, v{t+15}, s{sT+3}
        v_lshrrev_b32 v{t+16}, 1, v{pos}
        """)
        for d in range(4):
            a(f"""
            v_cmp_eq_u32 vcc, {d}, v{t+16}
            s_nop 1
            v_cndmask_b32 v{base+d}, 0, v{t+15}, vcc
            """)
    a(f"""
    v_and_b32 v{t+16}, 1, v{i2}
    v_lshl_add_u32 v{t+14}, v{g0}, 2, v{t+16}
    v_lshl_add_u32 v{t+16}, v{g0}, 1, v{t+16}
    v_xor_b32 v{t+16}, s{sW}, v{t+16}
    v_lshlrev_b32 v{t+16}, 6, v{t+16}
    v_add_u32 v{t+16}, {L_W}, v{t+16}
    v_lshl_add_u32 v{t+15}, v{hi}, 3, v{t+14}
    v_lshl_add_u32 v{t+15}, v{t+15}, 8, v{t+16}
    v_lshl_add_u32 v{t+15}, v{g1}, 15, v{t+15}
    v_lshl_add_u32 v58, v{i3}, 4, v{t+15}
    v_add_u32 v61, 0x10000, v58
    v_lshl_add_u32 v{t+15}, v{g1}, 3, v{t+14}
    v_lshl_add_u32 v{t+15}, v{t+15}, 8, v{t+16}
    v_lshl_add_u32 v{t+15}, v{hi}, 5, v{t+15}
    v_lshl_add_u32 v59, v{i3}, 3, v{t+15}
    v_add_u32 v62, 0x10000, v59
    v_and_b32 v{x}, 7, v{i}
    v_lshlrev_b32 v{x}, 10, v{x}
    v_lshl_add_u32 v{x}, v{g}, 5, v{x}
    v_lshl_add_u32 v{x}, v{hi}, 4, v{x}
    s_lshl_b32 s{sT+2}, s{sW}, 7
    v_add_u32 v60, s{sT+2}, v{x}
    v_mov_b32 v{IDX}, v{t+11}
    """)
    for k in range(4): a(f"v_mov_b32 v{64+k}, -1")

def chain_prologue(a, P):
    WS = sr(S_WS, 4)
    a(f"""
    s_mov_b32 s{sS}, 0
    s_lshl_b32 s{sT}, s{sH}, 2
    s_add_u32 s{sT}, s{sT}, s{sW}
    s_lshl_b32 s{sKV}, s{sT}, 12
    s_add_u32 s{sKV}, s{sKV}, {WS_KV}
    s_lshl_b32 s{sKM}, s{sT}, 10
    s_mov_b32 s{sFLn}, {DBG_DN + DBG_KV0}
    s_add_u32 s{sKM}, s{sKM}, {WS_KM}
    s_mov_b32 s{sH1}, {WS_H1}
    s_mov_b32 s{sH1+1}, {WS_H1 + 65536}
    s_mov_b32 s{sH1+2}, {WS_H1 + 2*65536}
    s_mov_b32 s{sH1+3}, {WS_H1 + 3*65536}
    s_lshl_b32 s{sT}, s{sW}, 5
    s_add_u32 s{sT}, s{sT}, s{sH}
    s_lshl_b32 s{sT}, s{sT}, 11
    s_add_u32 s{sH1l}, s{sT}, {WS_H1}
    s_mov_b32 s{sTAG}, 0
    s_mov_b32 s{sIMw}, {WS_IMG + 8192}
    s_mov_b32 s{sIMr}, {WS_IMG + 16384}
    s_mov_b32 s{sIMl}, {WS_IMG}
    s_mov_b32 s{sIML}, {WS_IMG}
    s_mov_b32 s{sKMv}, 0x70000000
    s_mov_b32 s{sONE}, 0x3f803f80
    s_mov_b32 s{sONE+1}, 0x3f803f80
    s_mov_b32 s{sMLO}, 0x00ff00ff
    s_mov_b32 s{sMLO+1}, 0x00ff00ff
    s_mov_b32 s{sC}, 0x3e0293ee
    s_mov_b32 s{sC+1}, 0x3e0293ee
    """)
    if P.get('tb', 1):
        a(f"s_cmp_lg_u32 s{sRB}, 0\ns_cbranch_scc1 L_c_b0\ns_mov_b32 s{sS}, 1\ns_add_u32 s{sKV}, s{sKV}, 0x80000\ns_add_u32 s{sKM}, s{sKM}, 0x20000\ns_branch L_c_b1")
        a.label('L_c_b0')
        for T in range(4): a(f"s_mov_b32 s{sH1+T}, {WS_H1B + 65536*T}")
        a(f"s_mov_b32 s{sIMr}, 0x70000000")
        a(f"s_add_u32 s{sH1l}, s{sH1l}, {WS_H1B - WS_H1}\ns_mov_b32 s{sIMw}, {WS_IMB}")
        for k in range(4): a(f"buffer_store_dwordx4 v[64:67], v{L16}, {WS}, s{sKV} offen offset:{1024*k} sc1"); a.vm.pop()
        a.label('L_c_b1')
    a(f"""
    buffer_store_dwordx4 v[64:67], v{L16}, {WS}, s{sH1l} offen sc1
    buffer_store_dwordx4 v[64:67], v{L16}, {WS}, s{sH1l} offen offset:1024 sc1
    buffer_store_dword v64, v{A_IMS}, {WS}, s{sIMw} offen sc1
    v_xor_b32 v63, {256 if P.get('sw', 2) else 0}, v60
    buffer_load_dwordx4 {vr(MA,4)}, v63, {sr(S_M0,4)}, 0 offen
    buffer_load_dwordx4 {vr(MA+16,4)}, v{63 if P.get('sw', 2) == 2 else 60}, {sr(S_M0,4)}, 0 offen offset:512
    """, vm='init')
    for w in range(3): a(f"s_cmp_eq_u32 s{sW}, {w}\ns_cbranch_scc1 L_cp_{w}")
    a("s_branch L_cp_3")

UNITS = []; SLOT = {}; ISSUE = {}
def plan_units(P):
    L = [(m, k) for m in P.get('mord', 'vkq') for k in range(8)]
    if P.get('ilv', 0):
        U = []
        for i in range(8): U += L[3 * i:3 * i + 3] + [('o', i)]
    else: U = L + [('o', u) for u in range(8)]
    UNITS[:] = U; SLOT.clear(); ISSUE.clear()
    fin = lambda u: U[u][0] == 'o' and U[u][1] >= 4
    free = list(range(8)); nxt = 0
    for it in range(-1, 32):
        if it >= 1 and not fin(it - 1): free.append(SLOT[it - 1])
        ISSUE[it] = []
        if it == 0: continue
        while nxt < 32:
            if fin(nxt):
                if U[nxt][1] not in free: break
                s = U[nxt][1]
            else:
                soon = [U[v][1] for v in range(nxt + 1, min(nxt + 8, 32)) if fin(v)]
                c = [x for x in free if x not in soon]
                if not c: break
                s = c[0]
            free.remove(s); SLOT[nxt] = s; ISSUE[it].append(nxt); nxt += 1
    assert nxt == 32
sLB, sO1, sHB, sHO = sT + 4, sT + 5, sT + 6, sT + 7
PF = ['']
def issue_one(a, u, i):
    kind, x = UNITS[u]
    if kind == 'o': base, off, step, voff, S = sHO, 64 * (x & 1) * 1024 + 256 * (x >> 1), 4 * 1024, 57, S_WO
    else: base, off, step, voff, S = sHB, x << 19, 4 * 8192, 56, {'q': S_WQ, 'k': S_WK, 'v': S_WV}[kind]
    a(f"s_add_u32 m0, s{sLB}, {SLOT[u] * 4096 + i * 1024}")
    a(f"s_add_u32 s{sO1}, s{base}, {off + i * step}")
    a(f"buffer_load_dwordx4 v{voff - 4 * (i & 1)}, {sr(S,4)}, s{sO1} offen {PF[0]} lds", vm=('u', u))
def issue_unit(a, u):
    for i in range(4): issue_one(a, u, i)

def chain_first_dma(a):
    a(f"""
    v_bfe_u32 v96, v0, 4, 2
    v_and_b32 v97, 15, v0
    v_bfe_u32 v98, v0, 4, 1
    v_lshlrev_b32 v98, 2, v98
    v_xor_b32 v97, v97, v98
    v_lshlrev_b32 v97, 4, v97
    v_lshl_add_u32 v56, v96, 13, v97
    v_lshl_add_u32 v57, v96, 10, v97
    v_xor_b32 v52, 128, v56
    v_xor_b32 v53, 128, v57
    s_lshl_b32 s{sLB}, s{sW}, 15
    s_add_u32 s{sLB}, s{sLB}, {L_W}
    s_lshl_b32 s{sHB}, s{sH}, 8
    s_lshl_b32 s{sT+2}, s{sW}, 17
    s_add_u32 s{sHB}, s{sHB}, s{sT+2}
    s_lshl_b32 s{sHO}, s{sH}, 17
    s_lshl_b32 s{sT+2}, s{sW}, 14
    s_add_u32 s{sHO}, s{sHO}, s{sT+2}
    """)
    for u in ISSUE[-1]: issue_unit(a, u)

def chain_prologue_w(a, P, w, vm0):
    WS = sr(S_WS, 4)
    a.label(f'L_cp_{w}')
    a.vm = list(vm0); a.lg = []
    TB = P.get('tb', 1); ALL = 32
    PK4 = 64
    def wb(u):
        for i in range(4): a(f"ds_write_b128 v{A_W}, {vr(28 + 16*(i>>1) + 4*(i&1),4)} offset:{SLOT[u] * 4096 + 1024*i}")
    for u in range(32):
        kind, x = UNITS[u]
        a.wait(vm=('u', u))
        a("s_barrier")
        if u == P.get('ek', 30) - 6: a(f"s_lshl_b32 s{sT+2}, s{sRB}, 12\nbuffer_load_dword v39, off, {sr(S_DBG,4)}, s{sT+2} offset:{DBG_KV0} sc1", vm='fe')
        if P.get('pu') == u: a("s_memrealtime s[100:101]")
        dq = [(v, i) for v in ISSUE[u] for i in range(4)]
        if u == 9:
            for r in list(range(MA, MA + 4)) + list(range(MA + 16, MA + 20)): a(f"v_min_u32 v{r}, -2, v{r}")
            if w == 0:
                a(f"s_cmp_lg_u32 s{sRB}, 0\ns_cselect_b32 s{sT+2}, {DBG_ARM}, {DBG_CBAR}\ns_mov_b64 exec, 1\nv_mov_b32 v38, 1")
                a(f"buffer_atomic_add v38, off, {sr(S_DBG,4)}, s{sT+2}", vm='at')
                a("s_mov_b64 exec, -1")
        if u == P.get('uw', 25):
            a(f"s_getpc_b64 {sr(sT,2)}")
            a.label(f'L_cpc_{w}')
            a(f"v_lshlrev_b32 v63, 3, v{L16}\ns_cmp_lg_u32 s{sRB}, 0\ns_cselect_b32 s{sT+2}, s{sIMr}, {WS_IMG + 8192*w}\ns_cselect_b32 s{sT+3}, s{sIMr}, s{sH1l}")
            a(f"buffer_load_dword v36, v63, {WS}, s{sT+2} offen sc1", vm='w')
            a(f"v_and_b32 v37, 0x780, v63\nv_min_u32 v63, L_step_{w}-L_top_{w}, v63\nv_add_u32 v63, L_top_{w}-L_cpc_{w}, v63")
            if TB: a(f"s_mul_i32 s{sT+2}, s{sRB}, L_bstep_{w}-L_top_{w}\nv_add_u32 v63, s{sT+2}, v63")
            a(f"buffer_load_dword v36, v37, {WS}, s{sT+3} offen sc1", vm='w')
            a(f"global_load_dword v36, v63, {sr(sT,2)}", vm='w')
            if P.get('tlb', 1) and w < 2:
                a(f"s_mov_b32 s{sT+2}, {(WS_KV if w == 0 else WS_KM) - 4096}")
                a(f"buffer_load_dword v36, off, {WS}, s{sT+2} sc1", vm='w')
        fin = lambda v: UNITS[v][0] == 'o' and UNITS[v][1] >= 4
        if u == 1 + max(v for v in range(32) if not fin(v)):
            for sg, src in ((0, ST), (4, PK4)):
                for uu in range(4):
                    for hf in range(2): a(f"ds_write_b128 v{A_W}, {vr(src + 8*uu + 4*hf,4)} offset:{lw_qk(sg, uu) + 1024*hf}")
                a.wait(lg='all')
        fl0 = f"s_mul_i32 s{sT}, s{sRB}, {DBG_ARM - DBG_CBAR}\ns_mul_i32 s{sT+1}, s{sRB}, {DBG_ARM - DBG_KV0}\nbuffer_load_dword v36, off, {sr(S_DBG,4)}, s{sT} offset:{DBG_CBAR} sc1\nbuffer_load_dword v37, off, {sr(S_DBG,4)}, s{sT+1} offset:{DBG_KV0} sc1"
        if u == 30 and P.get('dlyc'): a(f"s_sleep {P['dlyc']}")
        kvl = lambda so: '\n'.join(f"buffer_load_dwordx4 {vr(KX+4*k,4)}, v{L16}, {WS}, s{so} offen offset:{1024*k} sc1" for k in range(4))
        sw = P.get('sw', 2)
        m1l = f"buffer_load_dwordx4 v[64:67], v{L16}, {WS}, s{sIMl} offen sc1\nbuffer_load_dwordx4 v[68:71], v{L16}, {WS}, s{sIML} offen sc1"
        m1a = f"s_mov_b32 s{sIMl}, {WS_IMB + 1024*(w ^ (2 if sw else 0))}\ns_mov_b32 s{sIML}, {WS_IMB + 4096 + 1024*(w ^ (2 if sw == 2 else 0))}"
        ek = P.get('ek', 30)
        if u == ek:
            a.wait(vm='fe'); a(f"v_readfirstlane_b32 s{sT+3}, v39")
            a(f"s_cmp_ge_u32 s{sT+3}, {ALL}\ns_cselect_b32 s{sT+2}, s{sKV}, 0x70000000")
            if TB:
                a(m1a); a(f"s_cselect_b32 s{sIMl}, s{sIMl}, s{sT+2}\ns_cselect_b32 s{sIML}, s{sIML}, s{sT+2}\ns_cmp_lg_u32 s{sRB}, 0\ns_cselect_b32 s{sT+2}, s{sKV}, s{sT+2}")
            a(kvl(sT + 2), vm='kv')
            if TB: a(m1l, vm='kv')
        if u == 30 and w == 0: a(fl0, vm='f0')
        if u and fin(u - 1): wb(u - 1)
        base = SLOT[u] * 4096
        sig = ((x - w - (2 if P.get('sw', 2) > (x >> 2) else 0)) & 3) | (x & 4)
        for half in range(2):
            if fin(u): k, dst = 'v', 28 + 16 * half
            elif kind in 'qk':
                uu = 2 * half + (kind == 'k')
                k, dst = ('v', PK4 + 8 * uu) if sig == 4 else wqk_reg(sig, uu)
            elif kind == 'v': k, dst = wv_reg(sig, half)
            else: k, dst = wo_reg(x >> 1, 2 * (x & 1) + half)
            for p in range(4):
                if kind == 'o': off, ad = base + 32768 * (p >> 1) + 512 * (p & 1), (59, 62)[half]
                else: off, ad = base + 512 * (p & 1) + 8 * half, (58, 61)[p >> 1]
                a(f"ds_read_b64_tr_b16 {vr(dst + 2*p, 2, k)}, v{ad} offset:{off}")
                if p & 1 and dq: issue_one(a, *dq.pop(0))
        while dq: issue_one(a, *dq.pop(0))
        if P.get('pw') and P.get('pw0', 8) <= u < 31:
            for k in range(P['pw']): a(f"v_smfmac_f32_16x16x64_bf16 v[48:51], v[24:27], a[{192 + 8 * (k & 7)}:{199 + 8 * (k & 7)}], v0" if u < 28 else f"v_smfmac_f32_16x16x64_bf16 v[72:75], v[24:27], a[{192 + 8 * (k & 7)}:{199 + 8 * (k & 7)}], v0")
        a.wait(lg='all')
    a("s_barrier")
    wb(31)
    a.wait(lg='all')
    if (P.get('stat') or P.get('dbgt')) and P.get('pu') is None: a("s_memrealtime s[100:101]")
    a(f"s_mov_b32 s{sSPIN}, 0\ns_mov_b32 m0, {L_KV + 4096*w}")
    if w == 0:
        a(f"s_lshl_b32 s{sT+2}, s{sRB}, 5\ns_add_u32 s{sT+2}, s{sT+2}, 32\ns_branch L_c_w1")
        a.label(f'L_c_w0')
        a(f"""
        s_add_u32 s{sSPIN}, s{sSPIN}, 1
        s_cmp_gt_u32 s{sSPIN}, {SPIN_MAX}
        s_cbranch_scc1 L_exit
        s_sleep {P.get('slp0', 4)}
        """)
        a(fl0)
        a.label('L_c_w1')
        a.wait(vm='all')
        a(f"""
        v_cmp_gt_u32 vcc, 32, v36
        s_cbranch_vccnz L_c_w0
        v_cmp_gt_u32 vcc, s{sT+2}, v37
        s_cbranch_vccnz L_c_w0
        """)
    a("s_barrier")
    if ek < 32: a(f"s_cmp_ge_u32 s{sT+3}, {ALL}\ns_cbranch_scc1 L_c_kv_{w}")
    if TB: a(f"s_cmp_lg_u32 s{sRB}, 0\ns_cbranch_scc1 L_c_m3_{w}")
    a(kvl(sKV))
    if TB:
        a.label(f'L_c_m1_{w}')
        a(m1a); a(f"s_sleep {P.get('aps', 4)}"); a(m1l)
        a(f"s_add_u32 s{sSPIN}, s{sSPIN}, 1\ns_cmp_gt_u32 s{sSPIN}, {SPIN_MAX}\ns_cbranch_scc1 L_exit")
    a.label(f'L_c_kv_{w}')
    if TB:
        a(f"""
        s_cmp_lg_u32 s{sRB}, 0
        s_cbranch_scc1 L_c_m3_{w}
        s_waitcnt vmcnt(0)
        v_max3_u32 v36, v64, v65, v66
        v_max3_u32 v37, v67, v68, v69
        v_max3_u32 v36, v36, v70, v71
        v_max_u32 v36, v36, v37
        v_cmp_eq_u32 vcc, -1, v36
        v_mov_b64 {vr(MA,2)}, v[64:65]
        v_mov_b64 {vr(MA+2,2)}, v[66:67]
        v_mov_b64 {vr(MA+16,2)}, v[68:69]
        v_mov_b64 {vr(MA+18,2)}, v[70:71]
        s_cbranch_vccnz L_c_m1_{w}
        s_branch L_c_m4_{w}
        """)
        a.label(f'L_c_m2_{w}')
        a(f"""
        s_add_u32 s{sSPIN}, s{sSPIN}, 1
        s_cmp_gt_u32 s{sSPIN}, {SPIN_MAX}
        s_cbranch_scc1 L_end
        s_sleep {P.get('bps', 4)}
        buffer_load_dword v{FLV}, off, {WS}, s{sKB} offset:4092 sc1
        s_waitcnt vmcnt(0)
        v_cmp_eq_u32 vcc, -1, v{FLV}
        s_cbranch_vccnz L_c_m2_{w}
        """)
        a(f"s_branch L_c_m5_{w}")
        a.label(f'L_c_m7_{w}')
        a(f"s_add_u32 s{sSPIN}, s{sSPIN}, 1\ns_cmp_gt_u32 s{sSPIN}, {SPIN_MAX}\ns_cbranch_scc1 L_end\ns_sleep {P.get('bps', 4)}")
        a.label(f'L_c_m5_{w}')
        a(kvl(sKB))
        a.label(f'L_c_m6_{w}')
        a(f"s_waitcnt vmcnt(0)\nv_max3_u32 v{FLV}, v{KX}, v{KX+1}, v{KX+2}")
        for r in range(3, 15, 2): a(f"v_max3_u32 v{FLV}, v{FLV}, v{KX+r}, v{KX+r+1}")
        a(f"v_max_u32 v{FLV}, v{FLV}, v{KX+15}\nv_cmp_eq_u32 vcc, -1, v{FLV}\ns_cbranch_vccnz L_c_m{7 if P.get('bd', 1) else 2}_{w}\ns_branch L_{'bk' if P.get('ba', 1) else 'c_m4'}_{w}")
        a.label(f'L_c_m3_{w}')
        a(f"s_waitcnt vmcnt(0)\ns_mov_b32 s{sKB}, s{sKV}\ns_mov_b32 s{sKV}, 0x70000000")
        if not P.get('ba', 1): a(f"s_branch L_c_m6_{w}")
        a.label(f'L_c_m4_{w}')
    a(f"s_add_u32 s{sKV}, s{sKV}, 0x80000\ns_mov_b32 s{sFL}, {DBG_DN + DBG_KV0}\ns_mov_b64 {sr(sFM,2)}, 0\nv_mov_b32 v{FLV}, 32\ns_mov_b32 s{sSPIN}, 0")
    for l in idle_work():
        if not l.startswith('ds_'): a(l)
    a.wait(lg='all')
    if P.get('stat'): a("s_memrealtime s[64:65]\ns_waitcnt lgkmcnt(0)")
    a.label(f'L_cpe_{w}')
    if TB: a(f"s_cmp_lg_u32 s{sRB}, 0\ns_cbranch_scc1 L_bstep_{w}")
    a(f"s_branch L_step_{w}")

def idle_work():
    L = [f"ds_read_b128 {vr(ST + 8*u + 4*hf, 4)}, v{A_W} offset:{lw_qk(0, u) + 1024*hf}" for u in range(4) for hf in range(2)]
    L += [f"v_mov_b64 {vr(Q0+i,2)}, 0" for i in range(0, 24, 2)]
    return L

DEF = dict(b1=3, nL=10, nB2=4, nv1=2, nv2=0, nvA=6, sv=9, so=1, nr4=3, earlyL=0, dH1=[26, 42, 64, 75], dE=[36, 20, 6, 0], h2=[28, 28, 28, 28],
           dwf=0, cs=0, g2v=0, dup=1, c1=1, lb1=0, svp=[-1, 0, 2, 4], dp=None, sync=0, fpos=-2, pp=[-1, 1, 3, 5, 7, 11], pE=23, inGap=[0, 0, 0, 1],
           nPre=[0, 0, 0, 0], dS=[-1, -1], kw=0, mx=1, ad=1, nrc=4, nE=3, dT=0, stg=1, own3=0)
def pack_km():
    X = Q0
    L = [f"v_mov_b32_dpp v{X+2}, v{X} row_ror:8 row_mask:0xf bank_mask:0x3", f"v_mov_b32_dpp v{X+3}, v{X+1} row_ror:8 row_mask:0xf bank_mask:0x3",
         f"v_min_u32 v{ONE}, -2, v{X+2}", f"v_min_u32 v{ONE+1}, -2, v{X+3}"]
    for t in range(2):
        p = V0 + 2 * t
        L += [f"v_lshlrev_b32 v{X}, 16, v{p}", f"v_lshlrev_b32 v{X+1}, 16, v{p+1}", f"v_and_b32 v{p}, 0xffff0000, v{p}", f"v_and_b32 v{p+1}, 0xffff0000, v{p+1}",
              f"v_add_f32 v{X}, v{X}, v{X+1}", f"v_add_f32 v{X+1}, v{p}, v{p+1}", f"v_cvt_pk_bf16_f32 v{X}, v{X}, v{X+1}", f"v_min_u32 v{ONE+2+t}, -2, v{X}"]
    return L
def sync_tmp(P, w):
    if not P['sync']: return []
    if w == 3: return [f"v_bfe_u32 v{MA+24}, v{L16}, 2, 7"]
    if w < 2: return [f"v_mov_b32 v{MA+24}, s{sS}"]
    return []
def b_tail(a, P):
    WS = sr(S_WS, 4); HB, HD, T1 = MA + 20, MA + 8, MA + 12
    a.label('L_btail')
    if P.get('stat'): a("s_memrealtime s[66:67]")
    for l in pack_km(): a(l)
    a(f"buffer_store_dwordx4 {vr(ONE,4)}, v{L16}, {WS}, s{sKMv} offen sc1\ns_waitcnt vmcnt(0)")
    if P.get('stat'): a("s_memrealtime s[68:69]")
    a.label('L_bt1')
    a(f"""
    s_sleep {P.get('bsl', 1)}
    buffer_load_dwordx4 {vr(HB,4)}, v{L16}, {WS}, s{sH1l} offen sc1
    buffer_load_dwordx4 {vr(HB+4,4)}, v{L16}, {WS}, s{sH1l} offen offset:1024 sc1
    s_add_u32 s{sSPIN}, s{sSPIN}, 1
    s_cmp_gt_u32 s{sSPIN}, {SPIN_MAX}
    s_cbranch_scc1 L_end
    s_waitcnt vmcnt(0)
    v_mfma_f32_16x16x32_bf16 {vr(HD,4)}, {vr(SEL,4)}, {vr(HB,4)}, 0
    v_or_b32 v{T1}, v{HB}, v{HB+2}
    v_or3_b32 v{T1}, v{T1}, v{HB+4}, v{HB+6}
    v_mfma_f32_16x16x32_bf16 {vr(HD,4)}, {vr(SEL,4)}, {vr(HB+4,4)}, {vr(HD,4)}
    v_and_b32 v{T1}, 1, v{T1}
    v_cmp_ne_u32 vcc, 0, v{T1}
    s_nop 4
    """)
    for n in (4, 8):
        for r in (HD, HD + 1): a(f"v_add_f32_dpp v{r}, v{r}, v{r} row_ror:{n} row_mask:0xf bank_mask:0xf")
        a("s_nop 0")
    a(f"""
    v_cvt_pk_bf16_f32 v{HD}, v{HD}, v{HD+1}
    s_cbranch_vccnz L_bt1
    buffer_store_dword v{HD}, v{A_IMS}, {WS}, s{sIMw} offen sc1
    """)
    if P.get('stat'):
        a("s_memrealtime s[70:71]\ns_waitcnt lgkmcnt(0)")
        for k, r in enumerate([100, 64, 66, 68, 70, sSPIN]): a(f"v_mov_b32 v{56+k}, s{r}")
        a(f"s_lshl_b32 s{sT}, s{sH}, 2\ns_add_u32 s{sT}, s{sT}, s{sW}\ns_lshl_b32 s{sT}, s{sT}, 5\ns_add_u32 s{sT}, s{sT}, {WS_STAMP + (768 << 10)}\ns_mov_b64 exec, 1")
        a(f"buffer_store_dwordx4 v[56:59], v{L16}, {WS}, s{sT} offen\nbuffer_store_dwordx4 v[60:63], v{L16}, {WS}, s{sT} offen offset:16\ns_mov_b64 exec, -1")
    a(f"""
    v_lshrrev_b32 v0, 4, v{L16}
    s_mov_b32 s80, 4
    s_mov_b32 s{sT}, 1
    s_waitcnt vmcnt(0) lgkmcnt(0)
    s_branch L_helper2
    """)
BBODY = {}
LASTV = []
def chain_last(a):
    for q in LASTV: smf(a, *q)
    a("s_nop 7")
    for d, s0 in ((V0, V0), (V0 + 1, V0 + 2), (V0 + 2, V1), (V0 + 3, V1 + 2)): a(f"v_cvt_pk_bf16_f32 v{d}, v{s0}, v{s0+1}")
    L = pack_km()
    for l in L[:2]: a(l)
    a(f"v_permlane32_swap_b32 v{V0}, v{V0+1}\nv_permlane32_swap_b32 v{V0+2}, v{V0+3}")
    for l in L[2:]: a(l)
    a(f"buffer_store_dwordx4 {vr(ONE,4)}, v{L16}, {sr(S_WS,4)}, s{sKM} offen sc1")
LISTING = {}
def chain_step(a, P0, w):
    P = dict(DEF); P.update(P0)
    allow = P.get('stamps', [])
    used = []
    def stamp(k):
        if k in allow:
            a(f"s_memtime s[{72+2*len(used)}:{73+2*len(used)}]"); used.append(k)
            if P.get('rt'): a(f"s_memrealtime s[{72+2*len(used)}:{73+2*len(used)}]"); used.append(k)
    WS = sr(S_WS, 4)
    acc = [Q0, K0, Q1, K1]
    lb = lambda s: f"L_{s}_{w}"
    own = 2048 * w
    oth = lambda q: 2048 * ((w + q) & 3)
    T0 = MA + 28
    ldE = f"buffer_load_dwordx4 {vr(MA,4)}, v{L16}, {WS}, s{sIMl} offen sc1"
    ldL = f"buffer_load_dwordx4 {vr(MA+16,4)}, v{L16}, {WS}, s{sIML} offen sc1"
    chkE = f"v_max3_u32 v{T0}, v{MA}, v{MA+1}, v{MA+2}\nv_max_u32 v{T0}, v{T0}, v{MA+3}\nv_cmp_eq_u32 vcc, -1, v{T0}"
    chkL = [f"v_max3_u32 v{T0}, v{MA+16}, v{MA+17}, v{MA+18}", f"v_max_u32 v{T0}, v{T0}, v{MA+19}", f"v_cmp_eq_u32 vcc, -1, v{T0}"]
    if P['c1']:
        chkE = f"v_cmp_eq_u32 vcc, -1, v{MA+3}"
        chkL = ["s_nop 0", "s_nop 0", f"v_cmp_eq_u32 vcc, -1, v{MA+19}"]
    ldF = f"buffer_load_dword v{FLV}, off, {sr(S_DBG,4)}, s{sFL} sc1"
    cvF = [f"v_subrev_u32 v{FLV}, 32, v{FLV}", f"v_ashrrev_i32 v{FLV}, 31, v{FLV}"]
    dwE = f"ds_write_b128 v{L16}, {vr(MA,4)} offset:{L_MEM + own}"
    dwL = f"ds_write_b128 v{L16}, {vr(MA+16,4)} offset:{L_MEM + own + 1024}"
    cv = lambda d, s0: f"v_cvt_pk_bf16_f32 v{d}, v{s0}, v{s0+1}"
    z2 = lambda r: f"v_mov_b64 {vr(r,2)}, 0"
    ror8 = lambda d, s0, bm: f"v_mov_b32_dpp v{d}, v{s0} row_ror:8 row_mask:0xf bank_mask:{bm}"
    mf32 = lambda D, A, B, C: a(f"v_mfma_f32_16x16x32_bf16 {vr(D,4)}, {vr(A,4)}, {vr(B,4)}, {vr(C,4) if C is not None else 0}")
    mf16 = lambda D, A, B, C: a(f"v_mfma_f32_16x16x16_bf16 {vr(D,4)}, {vr(A,2)}, {vr(B,2)}, {vr(C,4) if C is not None else 0}")
    def wdelay(n):
        while P['kw'] and n >= 8:
            mf32(MA + 24, F, F, None); a("s_nop 2"); mf32(MA + 4, F, F, None); a("s_nop 2"); n -= 8
        nops(a, n)
    a.label(lb('top'))
    a("s_waitcnt vmcnt(0)")
    a.vm = []; a.lg = []
    stamp(0)
    EB = MA + 20 if P['dwf'] else MA
    ldB = ldE.replace(vr(MA, 4), vr(EB, 4))
    if P['dwf']:
        a(dwE, lg='we'); a(chkE); a(ldL, vm='L2')
        a(f"s_cbranch_vccnz {lb('f1')}")
    else:
        if P['earlyL']: a(ldL, vm='L2')
        a(chkE)
        a(dwE, lg='we')
        a(f"s_cbranch_vccnz {lb('f1')}")
        if not P['earlyL'] and not P.get('lateL'): a(ldL, vm='L2')
    a.label(lb('go'))
    igo = len(a.lines)
    stamp(14)
    KVF = P.get('kvf', 'sc1')
    dma = [f"buffer_load_dwordx4 v{L16}, {WS}, s{sKV} offen offset:{1024*k} {KVF} lds" for k in range(4)]
    mrd = lambda s: f"ds_read_b128 {vr(MA+4*s,4)}, v{L16} offset:{L_MEM + oth(s & 3) + 1024*(s>>2)}"
    r2 = [f"ds_read_b128 {vr(ST + 8*u + 4*hf, 4)}, v{A_W} offset:{lw_qk(4, u) + 1024*hf}" for u in range(4) for hf in range(2)]
    r3 = [f"ds_read_b128 {vr(ST + 8*k + 4*hf, 4)}, v{A_W} offset:{lw_wo(2,k) + 1024*hf}" for k in range(4) for hf in range(2)]
    vq = [(V0 + 4 * tau, MA + 4 * s, wv_reg(s, tau)) for s in range(8) for tau in range(2)]
    qk = lambda s: [(acc[u], MA + 4 * s, wqk_reg(s, u)) for u in range(4)]
    sA = qk(0) + [vq.pop(0), vq.pop(0)]
    stV = f"buffer_store_dwordx4 {vr(ONE,4)}, v{L16}, {WS}, s{sKMv} offen sc1"
    for k in range(P['b1']):
        smf(a, *sA.pop(0))
        if k == P['sv']: a(stV, vm='km')
        if P.get('lateL') == k + 2: a(f"s_mov_b64 exec, {sr(sLX,2)}"); a(ldL, vm='L2'); a("s_mov_b64 exec, -1")
    a.wait(lg='all')
    a("s_barrier")
    stamp(1)
    a(mrd(1), lg=('ma', 1)); a(mrd(2), lg=('ma', 2))
    smf(a, *sA.pop(0))
    a(mrd(3), lg=('ma', 3))
    if P.get('lateL') == 1: a(f"s_mov_b64 exec, {sr(sLX,2)}"); a(ldL, vm='L2'); a("s_mov_b64 exec, -1")
    sync = P['sync']; TS = MA + 24
    prober = sync and w == 3; poster = sync and w < 2
    probe = f"buffer_load_dword v{FLV}, v{TS}, {WS}, s{sFG} offen sc1"
    post = f"s_mov_b64 exec, 1\nbuffer_store_dword v{TS}, off, {WS}, s{sFG}\ns_mov_b64 exec, -1"
    pp = list(P['pp']); npr = len(pp)
    def syncops(n):
        c = 0
        if poster and n == P['fpos']: a(post, vm='fg'); c = 2
        if prober and n in pp: a(probe, vm=('P', pp.index(n))); c = 1
        return c
    svp = P['svp'][w]
    if P['sv'] == 9 and svp < 0: a(stV, vm='km')
    syncops(-len(sA) - 1)
    while sA:
        smf(a, *sA.pop(0)); syncops(-len(sA) - 1)
    dupA = a.lines[igo:]
    a.label(lb('go2'))
    seq = qk(1) + qk(2) + qk(3) + [vq.pop(0) for _ in range(P['nv1'])]
    i4 = len(seq); seq += qk(4) + [vq.pop(0) for _ in range(P['nv2'])]
    i5 = len(seq); seq += qk(5)
    i6 = len(seq); q6, q7 = qk(6), qk(7)
    seq += [q6[0], q6[1], q7[0], q7[1], q6[2], q6[3], q7[2], q7[3]]
    nL, nB = P['nL'], P['nL'] + P['nB2']
    assert i4 >= nL + 4 and nB <= i5
    KVST = 0 if P.get('kvfix') else 0x80000
    ones = [f"v_mov_b64 {vr(ONE,2)}, {sr(sONE,2)}", f"v_mov_b64 {vr(ONE+2,2)}, {sr(sONE,2)}"]
    bk = False
    for n, q in enumerate(seq):
        if n == 0: a.wait(lg=('ma', 1))
        if n == 4: a.wait(lg=('ma', 3))
        if n == nL:
            stamp(2)
            a.wait(vm='L2'); a(dwL, lg='wl')
            if not P['c1']: a(chkL[0])
            if prober: a.wait(vm=('P', 0)); a(f"v_subrev_u32 v{T0+1}, s{sS}, v{FLV}")
        if n == nB:
            a.wait(lg='all' if not r2 else 'wl'); a("s_barrier"); stamp(3); a(mrd(5), lg=('ma', 5))
        if n == i4 and 'r2' in a.lg: a.wait(lg='r2')
        if n == i5: a.wait(lg=('ma', 5))
        if n == i6: a.wait(lg=('ma', 7))
        smf(a, *q)
        cap = 2 - (n + 1 in (4, i5, i6)) - (n >= i6 + 4) - (n in (nL, nL + 1))
        if n == nB: a(mrd(6), lg=('ma', 6)); a(mrd(7), lg=('ma', 7)); cap = 0
        if P['sv'] == 9 and n == svp: a(stV, vm='km')
        cap = max(cap - syncops(n), 1 if r2 else 0)
        dp = P['dp']
        if dp:
            if dma and dp[4 - len(dma)] < 100 and n >= dp[4 - len(dma)] + w and n != nB: a(dma.pop(0), vm='dma'); cap = max(cap - 1, 1 if r2 else 0)
        elif dma and cap and n > nB and n >= min(nB + 1 + w * P['stg'] + 4 * (4 - len(dma)), len(seq) - 1):
            a(dma.pop(0), vm='dma'); cap -= 1
        if r2 and cap and n + 1 != nL and not (nL <= n < nB): a(r2.pop(0), lg='r2'); cap -= 1
        elif r3 and cap and n > nB and n >= i4 + (8 - len(r3)) // 2: a(r3.pop(0), lg='r3'); cap -= 1
        if ones and cap and n >= i5 and P['sv'] == 9: a(ones.pop(0))
        if n == nL: a(chkL[1] if not prober else f"v_max3_u32 v{T0+1}, v{T0}, v{MA+19}, v{T0+1}")
        if n == nL + 1: a(chkL[2] if not prober else f"v_cmp_eq_u32 vcc, -1, v{T0+1}")
        if n == nL + 3:
            a(f"s_cbranch_vccnz {lb('p1' if prober else 'rL')}"); a.label(lb('bL'))
            if prober: assert len(a.vm) == npr - 1
        if n == len(seq) - 1: ibk = len(a.lines)
        if n == i6 + 4: a(cv(Q0, Q0))
        if n == i6 + 5: a(cv(Q0 + 1, Q0 + 2))
        if n == i6 + 6: a(cv(Q0 + 2, K0))
    assert not r3 and not r2, (len(r2), len(r3), len(dma))
    stamp(4)
    a(cv(Q0 + 3, K0 + 2))
    a("s_nop 0")
    a(cv(Q1, Q1))
    mf32(K0, Q0, F, None)
    a(cv(Q1 + 1, Q1 + 2)); a(cv(Q1 + 2, K1)); a(cv(Q1 + 3, K1 + 2))
    a("s_nop 1")
    mf32(K1, Q1, F, None)
    X = Q0
    a(cv(X, K0)); a(cv(X + 1, K0 + 2))
    rsI = f"buffer_store_dword v{NEG1}, v{A_IMS}, {WS}, s{sIMr} offen"
    S1, S2, SM = Q1, K0, K1
    if not P['mx']:
        smf(a, *vq.pop(0))
        a("s_nop 0"); a(f"buffer_store_dword v{NEG1}, v{A_IMS}, {WS}, s{sIMr} offen", vm='rs'); a("s_nop 1")
        a(cv(X + 2, K1)); a(cv(X + 3, K1 + 2))
        a("s_nop 1")
        S1, S2, SM = Q1, K0, K1
        mf32(SM, X, X, None); mf32(S2, KX + 4, X, None); mf32(S1, KX, X, None)
        for r in range(2): a(ror8(SM + r, SM + 2 + r, '0xc'))
        smf(a, *vq.pop(0))
        a("s_nop 0")
        a(f"ds_write2_b32 v{A_SMW}, v{SM}, v{SM+1} offset0:0 offset1:32")
        a("s_nop 1")
        for r in range(4): a(ror8(S1 + r, S2 + r, '0xc'))
        smf(a, *vq.pop(0))
        a(f"ds_write_b128 v{L16}, {vr(S1,4)} offset:{L_S + own}")
    else:
        assert all(q[1] >= MA + 8 for q in vq)
        XL, XH = MA, MA + 4
        lo = lambda r: a(f"v_cndmask_b32 v{XL+r}, 0, v{X+r}, {sr(sMLO,2)}")
        hi = lambda r: a(f"v_mov_b32_dpp v{XH+r}, v{X+r} row_shr:8 row_mask:0xf bank_mask:0xf bound_ctrl:1")
        lo(0); lo(1); hi(0); hi(1); a("s_nop 0")
        a(cv(X + 2, K1)); a(cv(X + 3, K1 + 2))
        lo(2); lo(3)
        mf32(SM, X, X, None)
        hi(2); hi(3)
        mf32(S1, KX, XL, None)
        a("s_nop 0")
        mf32(S1, KX + 4, XH, S1)
        for r in range(2): a(ror8(SM + r, SM + 2 + r, '0xc'))
        dw2 = f"ds_write2_b32 v{A_SMW}, v{SM}, v{SM+1} offset0:0 offset1:32"
        dw4 = f"ds_write_b128 v{L16}, {vr(S1,4)} offset:{L_S + own}"
        smf(a, *vq.pop(0))
        if P['so'] == 0: a("s_nop 0"); a(dw2); a("s_nop 1"); a(dw4)
        elif P['so'] == 1: a("s_nop 0"); a(dw2); smf(a, *vq.pop(0)); a(dw4)
        else: smf(a, *vq.pop(0)); a(dw4); a(dw2)
    stamp(5)
    for k in range(P['nvA']):
        smf(a, *vq.pop(0))
        if k == P['nvA'] - 3: a(f"s_cmp_eq_u32 s{sS}, 63")
        if k == P['nvA'] - 2:
            a("s_cbranch_scc1 L_last"); LASTV[:] = list(vq)
        if k == 1 and w == 0:
            if P.get('fsk', 1):
                a(f"s_mov_b64 exec, {sr(sFM,2)}"); a(ldF, vm='fl'); a("s_mov_b64 exec, -1")
            else: a(ldF, vm='fl')
        if dma and dp[4 - len(dma)] == 100 and k == w + 1: a(dma.pop(0), vm='dma')
        if P['sv'] == 20 and k == min(3 - w, P['nvA'] - 1): a(stV, vm='km')
        if k == (w & 1) + (2 if w >= 2 and P['sv'] == 20 else 0) and P['mx']: a(rsI, vm='rs')
    a.wait(lg='all')
    a("s_barrier")
    stamp(6)
    R1, R2, R3, RM = K0, KX, KX + 4, K1
    a(f"ds_read_b128 {vr(RM,4)}, v{L16} offset:{L_SM}", lg='rm')
    a(f"ds_read_b128 {vr(R1,4)}, v{L16} offset:{L_S + oth(1)}", lg='r1')
    smf(a, *vq.pop(0))
    a(f"ds_read_b128 {vr(R2,4)}, v{L16} offset:{L_S + oth(2)}", lg='r2')
    a(f"ds_read_b128 {vr(R3,4)}, v{L16} offset:{L_S + oth(3)}", lg='r3')
    while vq:
        smf(a, *vq.pop(0))
        if dma and len(vq) <= max(2 - w, 0): a(dma.pop(0), vm='dma')
        if ones: a(ones.pop(0))
    assert not ones and not dma
    for _ in range(P.get('npd', 0)): mf16(MA, F, F, None)
    pka = lambda d, s0: f"v_pk_add_f32 {vr(d,2)}, {vr(d,2)}, {vr(s0,2)}"
    a.wait(lg='r1')
    a(f"v_add_f32 v{RM}, v{RM}, v{RM+1}\nv_add_f32 v{RM+2}, v{RM+2}, v{RM+3}")
    a(f"v_add_f32 v{S1}, v{S1}, v{R1}\nv_add_f32 v{S1+1}, v{S1+1}, v{R1+1}")
    a(pka(S1 + 2, R1 + 2))
    a(f"v_add_f32 v{RM}, v{RM}, v{RM+2}")
    if P['ad']:
        a.wait(lg='all')
        stamp(7)
        a(pka(R2, R3)); a(pka(R2 + 2, R3 + 2)); a(pka(S1, R2)); a(pka(S1 + 2, R2 + 2))
    else:
        a.wait(lg='r2')
        a(pka(S1, R2)); a(pka(S1 + 2, R2 + 2))
        a.wait(lg='all')
        stamp(7)
        a(pka(S1, R3)); a(pka(S1 + 2, R3 + 2))
    m0, m1 = K0, K0 + 1
    a(f"v_max3_f32 v{m0}, v{RM}, v{S1}, v{S1+1}")
    a(f"v_max3_f32 v{m0}, v{m0}, v{S1+2}, v{S1+3}")
    a(cv(V0, V0)); a(cv(V0 + 1, V0 + 2))
    a(f"v_max_f32_dpp v{m1}, v{m0}, v{m0} row_ror:8 row_mask:0xf bank_mask:0xf")
    a(f"v_max_f32_dpp v{m0}, v{m0}, v{m0} row_ror:8 row_mask:0xf bank_mask:0xf")
    a(cv(V0 + 2, V1)); a(cv(V0 + 3, V1 + 2))
    a(f"v_permlane32_swap_b32 v{m0}, v{m1}")
    a(f"v_max_f32 v{m0+2}, v{m0}, v{m1}")
    a(f"v_max_f32 v{m0+3}, v{m0}, v{m1}")
    a(f"v_permlane32_swap_b32 v{V0}, v{V0+1}")
    a(f"v_permlane32_swap_b32 v{V0+2}, v{V0+3}")
    a(f"v_permlane16_swap_b32 v{m0+2}, v{m0+3}")
    a(f"v_max_f32 v{m0}, v{m0+2}, v{m0+3}")
    a(f"v_mul_f32 v{m0}, s{sC}, v{m0}")
    a(f"v_fma_f32 v{RM}, v{RM}, s{sC}, -v{m0}")
    pkf = lambda r: f"v_pk_fma_f32 {vr(r,2)}, {vr(r,2)}, {sr(sC,2)}, {vr(m0,2)} op_sel_hi:[1,1,0] neg_lo:[0,0,1] neg_hi:[0,0,1]"
    ks = [(w + q) & 3 for q in range(1, 4)]
    r4 = [f"ds_read_b128 {vr(MA + 8*k + 4*hf, 4)}, v{A_W} offset:{lw_wo(3,k) + 1024*hf}" for k in [w] + ks for hf in range(2)]
    rd4 = lambda: a(r4.pop(0), lg='r4') if r4 else None
    BX, BM = K0, MA + 8 * ks[2] + 4
    O0, O1, L = KX, V1, K1
    a(f"v_exp_f32 v{RM}, v{RM}")
    a(pkf(S1)); a(pkf(S1 + 2))
    a(ror8(RM + 1, RM, '0xf'))
    a(cv(BM, RM)); a(cv(BM + 1, RM))
    a(f"v_exp_f32 v{S1}, v{S1}\nv_exp_f32 v{S1+1}, v{S1+1}")
    mf16(O0, V0, BM, None)
    a(f"v_exp_f32 v{S1+2}, v{S1+2}\nv_exp_f32 v{S1+3}, v{S1+3}")
    a(cv(BX, S1)); a(cv(BX + 1, S1 + 2))
    mf16(O1, V0 + 2, BM, None)
    a(ror8(BX + 2, BX, '0xf')); a(ror8(BX + 3, BX + 1, '0xf'))
    AC = [Q1, KX, V1, ONE]
    OW = KX + 4
    a(z2(AC[0])); a(z2(AC[0] + 2))
    mf32(O0, VX, BX, O0)
    stamp(8)
    if P['nr4'] >= 1: rd4()
    if P['nr4'] >= 4: rd4()
    mf32(O1, VX + 4, BX, O1)
    if P['nr4'] >= 2: rd4()
    if P['nr4'] >= 3: rd4()
    mf16(L, BM, HZ, None)
    a(cv(OW, O0)); a(cv(OW + 1, O0 + 2))
    a(z2(AC[1])); a(z2(AC[1] + 2))
    a(cv(OW + 2, O1)); a(cv(OW + 3, O1 + 2))
    mf32(L, BX, ONE, L)
    a("s_nop 0")
    a(f"ds_write_b128 v{A_OW}, {vr(OW,4)} offset:{L_O + own}")
    stamp(9)
    for r in range(4): a(ror8(OW + r, OW + r, '0xc'))
    a(z2(AC[2])); a(z2(AC[2] + 2))
    if P.get('z3', 1): a(z2(AC[3]))
    rcp = lambda r: a(f"v_rcp_f32 v{L+r}, v{L+r}")
    for r in range(P['nrc']): rcp(r)
    smf(a, AC[0], OW, wo_reg(0, w))
    a.wait(lg='all')
    a("s_barrier")
    stamp(10)
    OA = {ks[0]: VX, ks[1]: VX + 4, ks[2]: K0, w: OW}
    oard = lambda k: a(f"ds_read_b128 {vr(OA[k],4)}, v{A_O} offset:{L_O + 2048*k}", lg=('oa', k))
    g2 = lambda T, k: smf(a, AC[T], OA[k], wo_reg(T, k))
    mul = lambda T, r: a(f"v_mul_f32 v{AC[T]+r}, v{AC[T]+r}, v{L+r}")
    def cvt(T, r):
        a(cv(AC[T] + r, AC[T] + 2 * r))
        if r == 1: a(f"v_bfi_b32 v{AC[T]}, 1, s{sTAG}, v{AC[T]}")
    sto = lambda T: f"buffer_store_dwordx2 {vr(AC[T],2)}, v{A_H1S}, {WS}, s{sH1+T} offen"
    oard(ks[0]); oard(ks[1])
    g2(1, w); oard(ks[2]); a(z2(AC[3] + (2 if P.get('z3', 1) else 0)))
    g2(2, w)
    if not P.get('z3', 1): a(z2(AC[3] + 2))
    for r in range(P['nrc'], 4): rcp(r)
    own3 = P['nr4'] >= 2 and P.get('own3', 1)
    if own3: a("s_nop 1"); g2(3, w)
    a.wait(lg=('oa', ks[0])); g2(0, ks[0]); stamp(20); rd4()
    a.wait(lg=('oa', ks[1])); g2(0, ks[1]); rd4()
    a.wait(lg=('oa', ks[2])); g2(0, ks[2]); rd4()
    g2(1, ks[0]); rd4()
    if P['g2v'] >= 3:
        rd4(); a("s_nop 1")
        for r in range(4): mul(0, r)
        cvt(0, 0); cvt(0, 1)
        g2(1, ks[1]); a("s_nop 0"); a(sto(0), vm='h1')
        g2(1, ks[2]); g2(2, ks[0])
        if P['g2v'] == 3: g2(2, ks[1])
        else: a("s_nop 3")
        for r in range(4): mul(1, r)
        cvt(1, 0); cvt(1, 1)
        if P['g2v'] == 4: g2(2, ks[1]); a("s_nop 0"); a(sto(1), vm='h1')
    else:
        g2(1, ks[1]); rd4(); mul(0, 0)
        g2(1, ks[2]); rd4()
        mul(0, 1); mul(0, 2); mul(0, 3); cvt(0, 0); cvt(0, 1)
    assert not r4 or P['g2v'] == 0
    pkm = lambda T: a(f"v_pk_mul_f32 {vr(AC[T],2)}, {vr(AC[T],2)}, {vr(L,2)}\nv_pk_mul_f32 {vr(AC[T]+2,2)}, {vr(AC[T]+2,2)}, {vr(L+2,2)}")
    if P['g2v'] == 0:
        g2(2, ks[0]); a("s_nop 0"); a(sto(0), vm='h1')
        while r4: rd4()
        for r in range(4): mul(1, r)
        cvt(1, 0); cvt(1, 1)
        g2(2, ks[1]); a("s_nop 0"); a(sto(1), vm='h1')
    elif P['g2v'] == 1:
        a("s_nop 1"); a(sto(0), vm='h1')
        pkm(1); cvt(1, 0); cvt(1, 1)
        g2(2, ks[0]); a("s_nop 0"); a(sto(1), vm='h1')
        g2(2, ks[1])
    elif P['g2v'] == 2:
        pkm(1); cvt(1, 0); cvt(1, 1)
        g2(2, ks[0]); a("s_nop 0"); a(sto(0), vm='h1'); a(sto(1), vm='h1')
        g2(2, ks[1])
    stamp(21)
    g2(2, ks[2])
    if P['g2v'] == 3: a("s_nop 0"); a(sto(1), vm='h1')
    a.wait(lg='all')
    if not own3: g2(3, w)
    a(f"s_add_u32 s{sIMl}, s{sIMw}, {1024*(w ^ (2 if P.get('sw', 2) else 0))}\ns_add_u32 s{sIML}, s{sIMw}, {4096+1024*(w ^ (2 if P.get('sw', 2) == 2 else 0))}")
    g2(3, ks[0]); a(f"s_add_u32 s{sS}, s{sS}, 1\ns_mov_b32 s{sKMv}, s{sKM}")
    if not own3: mul(2, 0)
    g2(3, ks[1]); mul(2, 1)
    g2(3, ks[2])
    if own3: mul(2, 0)
    mul(2, 2); mul(2, 3); cvt(2, 0); cvt(2, 1)
    dS = P['dS']
    a(f"s_add_u32 s{sKM}, s{sKM}, 0x20000\ns_add_u32 s{sKV}, s{sKV}, {KVST}")
    if dS[0] < 0: a(sto(2), vm='h1')
    c = AC[3]
    a(f"v_pk_mul_f32 {vr(c,2)}, {vr(c,2)}, {vr(L,2)}\nv_pk_mul_f32 {vr(c+2,2)}, {vr(c+2,2)}, {vr(L+2,2)}")
    cvt(3, 0); cvt(3, 1)
    a("s_nop 1")
    if dS[1] < 0: a(sto(3), vm='h1')
    def bfix(l):
        if l.endswith(':') or l.startswith('s_memtime') or l.startswith('s_memrealtime'): return None
        if l.startswith('buffer_store_dwordx2'): return l + ' sc1'
        if l.startswith('buffer_') or l.startswith('s_cbranch') or l.startswith('s_mov_b64 exec'): return 's_nop 0'
        return l
    BBODY[w] = [f'L_bstep_{w}:', dwE, 's_nop 0'] + [l for l in map(bfix, a.lines[igo:ibk]) if l] + [f's_branch L_c_m6_{w}', f'L_bk_{w}:'] + [l for l in map(bfix, a.lines[ibk:]) if l] + ['s_branch L_btail']
    stamp(11)
    HA = KX
    ld1 = [f"buffer_load_dwordx4 {vr(HA+4*c_,4)}, v{L16}, {WS}, s{sH1l} offen offset:{1024*c_} sc1" for c_ in range(2)]
    HD, T1 = MA + 8, MA + 12
    idle = idle_work()
    late = [l for l in idle if any(l.startswith(f"v_mov_b64 v[{r}:") for r in (Q0, Q0 + 2, V0, V0 + 2, V1, V1 + 2))]
    dsq = [l for l in idle if l.startswith('ds_')]
    idle = [l for l in idle if l not in late and l not in dsq]
    ev = [(max(dS[k], 0), k, [(sto(2 + k) if dS[k] >= 0 else None, 'h1')]) for k in range(2)]
    ev.append((P['dH1'][w], -1 if w < 2 else 2, [(ld1[0], 'H0'), (ld1[1], 'H1')]))
    h2 = P.get('h2', [0, 0, 0, 0])[w]; HB = MA + 20
    if h2: ev.append((P['dH1'][w] + h2, 3, [(ld1[c_].replace(vr(HA + 4 * c_, 4), vr(HB + 4 * c_, 4)), f'B{c_}') for c_ in range(2)]))
    pos = 0; nst = 0
    for (tpos, _, ops) in sorted(ev):
        while pos < tpos:
            if idle and tpos - pos > 2: a(idle.pop(0)); pos += 1
            elif dsq and nst == 2 and tpos - pos >= 6:
                if P['kw']: mf32(MA + 24 if len(dsq) & 1 else MA + 4, F, F, None); a("s_nop 1")
                else: a("s_nop 2")
                a(dsq.pop(0), lg='pre'); pos += 4
            else: wdelay(tpos - pos); pos = tpos
        for (o, tag) in ops:
            if tag == 'H0' and P.get('ackw'): a(f"s_waitcnt vmcnt({max(3 - w - P['ackw'][w], 0)})")
            if o: a(o, vm=tag); pos += 1
            if tag == 'h1':
                nst += 1
                if nst == 2: idle += pack_km() + late
    for l in dsq + idle: a(l, lg='pre')
    dE = P['dE'][w]; pE = P['pE']; nPre = P['nPre'][w]; inGap = P['inGap'][w]
    eq = ['E0', 'E1', 'E2', 'E3', 'E4'][:P['nE']]; nE = len(eq)
    for k in range(nPre):
        wdelay(dE if k == 0 else pE); a(ldE if eq[0] == 'E0' else ldB, vm=eq.pop(0))
    nH0 = len(a.vm) - 1 - a.vm.index('H0')
    a(f"s_waitcnt vmcnt({nH0})")
    a.label(lb('a1'))
    stamp(12)
    mf32(HD, SEL, HA, None)
    a(f"v_bitop3_b32 v{T1}, v{HA}, v{HA+2}, s{sTAG} bitop3:0x7e")
    a.wait(vm='H1')
    mf32(HD, SEL, HA + 4, HD)
    a(f"v_bitop3_b32 v{T1+1}, v{HA+4}, v{HA+6}, s{sTAG} bitop3:0x7e\nv_bitop3_b32 v{T1}, v{T1}, v{T1+1}, 1 bitop3:0xa8\nv_cmp_ne_u32 vcc, 0, v{T1}")
    if inGap and eq:
        a("s_nop 1"); a(ldE if eq[0] == 'E0' else ldB, vm=eq.pop(0)); a("s_nop 0")
    else: a("s_nop 3")
    dpa = lambda r, n: f"v_add_f32_dpp v{r}, v{r}, v{r} row_ror:{n} row_mask:0xf bank_mask:0xf"
    a(dpa(HD, 4)); a(dpa(HD + 1, 4)); a("s_nop 0"); a(dpa(HD, 8)); a(dpa(HD + 1, 8))
    a(cv(HD, HD))
    if P['cs']:
        a(f"s_cmp_eq_u64 vcc, 0\ns_cselect_b32 s{sT+2}, s{sIMw}, 0x70000000")
        a(f"buffer_store_dword v{HD}, v{A_IMS}, {WS}, s{sT+2} offen", vm='im')
        if eq and (inGap or (len(eq) == nE and dE == 0)): a(ldE if eq[0] == 'E0' else ldB, vm=eq.pop(0))
        a(f"s_cbranch_vccnz {lb('r1')}")
        dE = max(dE - 4, 0)
    else:
        nB1 = len(a.vm) - 1 - a.vm.index('B1') if h2 else 0
        a(f"s_cbranch_vccnz {lb('r2' if h2 else 'r1')}")
        a(f"buffer_store_dword v{HD}, v{A_IMS}, {WS}, s{sIMw} offen", vm='im')
        a.label(lb('a2'))
        if inGap and eq: a(ldE if eq[0] == 'E0' else ldB, vm=eq.pop(0))
    stamp(13)
    misc = [f"ds_read_b128 {vr(KX+4*k,4)}, v{L16} offset:{L_KV + 4096*w + 1024*k}" for k in range(4)]
    misc += [f"s_mov_b32 s{sIMw}, s{sIMr}", f"s_add_u32 s{sIMr}, s{sIMr}, 0x2000", f"s_and_b32 s{sIMr}, s{sIMr}, 0xffff7fff",
             f"s_xor_b32 s{sTAG}, s{sTAG}, 1"]
    if P.get('lateL'): misc += [f"s_mov_b64 {sr(sLX,2)}, -1"]
    if P.get('nod', 1): misc += [f"s_cmp_eq_u32 s{sS}, 63", f"s_cselect_b32 s{sKV}, 0x70000000, s{sKV}"]
    if w == 0: misc = [f"v_cmp_gt_u32 vcc, 32, v{FLV}"] + misc + [f"s_cbranch_vccnz {lb('rF')}\n{lb('bF')}:", f"s_add_u32 s{sFLn}, s{sS}, 2", f"s_lshr_b32 s{sFLn}, s{sFLn}, 3", f"s_min_u32 s{sFLn}, s{sFLn}, 7", f"s_lshl2_add_u32 s{sFLn}, s{sFLn}, {DBG_DN + DBG_KVC}",
                     f"s_cmp_lt_u32 s{sS}, 2", f"s_cselect_b32 s{sFLn}, {DBG_DN + DBG_KV0}, s{sFLn}",
                     f"s_cmp_lg_u32 s{sFL}, s{sFLn}", f"s_cselect_b64 {sr(sFM,2)}, -1, 0", f"s_mov_b32 s{sFL}, s{sFLn}"]
    misc += sync_tmp(P, w)
    def delay(n):
        while n > 0 and misc: a(misc.pop(0), lg='pre'); n -= 1
        wdelay(n)
    while eq:
        delay(dE if len(eq) == nE else pE); a(ldE if eq[0] == 'E0' else ldB, vm=eq.pop(0))
    delay(len(misc))
    if P.get('pr'):
        i0 = a.lines.index(lb('top') + ':'); i0 = a.lines.index('s_barrier', i0) + 1
        body = a.lines[i0:]; a.lines = a.lines[:i0] + ["s_memtime s[72:73]"]; used = [0]; n = 0
        LISTING[w] = [l for l in body if not l.endswith(':')]
        for l in body:
            if not l.endswith(':'):
                if n in P['pr']: a.lines.append(f"s_memtime s[{72+2*len(used)}:{73+2*len(used)}]"); used.append(n)
                n += 1
            a.lines.append(l)
    if used:
        a("s_waitcnt lgkmcnt(0)")
        if P.get('trace'):
            a("s_nop 7")
            for k in range(len(used)): a(f"v_mov_b32 v{MA+8+k}, s{72+2*k}")
            a(f"s_lshl_b32 s{sT}, s{sH}, 12\ns_lshl_b32 s{sT+1}, s{sS}, 4\ns_add_u32 s{sT}, s{sT}, s{sT+1}\ns_add_u32 s{sT}, s{sT}, {WS_STAMP + 65536 + 1024*w}\ns_mov_b64 exec, 1")
            a(f"buffer_store_dwordx4 {vr(MA+8,4)}, v{L16}, {WS}, s{sT} offen", vm='tr')
            a("s_mov_b64 exec, -1")
        else:
            for k in range(1, len(used)):
                a(f"s_sub_u32 s{sT}, s{72+2*k}, s{70+2*k}\ns_add_u32 s{88+k}, s{88+k}, s{sT}")
    if w == 0: wdelay(P['dT'])
    if P.get('stat'):
        a(f"s_cmp_lg_u32 s{sS}, 3\ns_cbranch_scc1 {lb('top')}\ns_memtime s[68:69]\ns_memrealtime s[62:63]\ns_mov_b32 s70, 0\ns_mov_b32 s71, 0")
        for k in range(8): a(f"s_mov_b32 s{88+k}, 0")
    young = lambda t: len(a.vm) - 1 - a.vm.index(t)
    eL = 1 if P['dwf'] else P['earlyL']
    ns = [young(f'E{k}') + k + (eL if k else 0) for k in range(nE)]
    a.lines[a.lines.index(lb('top') + ':') + 1] = f"s_waitcnt vmcnt({ns[0]}) lgkmcnt(0)"
    a(f"s_branch {lb('top')}")
    end_main = len(a.lines)
    if w == 0:
        a.label('L_last'); chain_last(a); a("s_branch L_exit" if P.get('stat') or P.get('dbgt') else "s_endpgm")
    cnt = lambda r, v: (f"s_add_u32 s{r}, s{r}, {v}\n" if P.get('stat') else '')
    spin = f"s_add_u32 s{sSPIN}, s{sSPIN}, 1\ns_cmp_gt_u32 s{sSPIN}, {SPIN_MAX}\ns_cbranch_scc1 L_exit\n"
    for k in range(1, nE + 1):
        a.label(lb(f'f{k}'))
        late = P['lb1'] and k == 1
        if P['lb1'] and k == 2: a(ldB)
        if P.get('fpad') and k >= P.get('fpk', 1): nops(a, P['fpad'])
        if not late: a(ldB)
        a(f"s_waitcnt vmcnt({(ns[k] if k < nE else nE - 1) - (1 if late else 0)})")
        if P['dwf']: a(f"v_mov_b64 {vr(MA,2)}, {vr(EB,2)}\nv_mov_b64 {vr(MA+2,2)}, {vr(EB+2,2)}\ns_nop 0"); a(dwE); a(chkE)
        else: a(chkE); a(cnt(71, 1) or 's_nop 0'); a(dwE)
        a(f"s_cbranch_vccnz {lb(f'f{k+1}')}")
        if not P.get('lateL'): a(ldL)
        if P['dup'] and k == 1:
            a.lines += dupA; a(f"s_branch {lb('go2')}")
        else: a(f"s_branch {lb('go')}")
    a.label(lb(f'f{nE+1}'))
    a(spin + f"s_branch {lb(f'f{nE}')}")
    if prober:
        a.label(lb('p1'))
        a(probe); a(chkL[1]); a(chkL[2]); a(f"s_cbranch_vccnz {lb('rL')}")
        a. label(lb('p2'))
        for k in range(3):
            a(cnt(70, 65536) + f"s_waitcnt vmcnt({npr-1})\nv_cmp_ne_u32 vcc, s{sS}, v{FLV}"); a(probe); a(f"s_cbranch_vccz {lb('bL')}")
        a(spin + f"s_branch {lb('p2')}")
    a.label(lb('rL'))
    a(ldL)
    a(cnt(71, 65536) + spin + "s_waitcnt vmcnt(0)")
    a(dwL)
    a('\n'.join(chkL))
    a(f"s_waitcnt lgkmcnt(0)\ns_cbranch_vccnz {lb('rL')}\ns_branch {lb('p2' if prober else 'bL')}")
    if w == 0:
        a.label(lb('rF'))
        a(ldF); a(spin + f"s_waitcnt vmcnt(0)\nv_cmp_gt_u32 vcc, 32, v{FLV}\ns_cbranch_vccnz {lb('rF')}\ns_branch {lb('bF')}")
    if h2:
        a.label(lb('r2'))
        a(f"s_waitcnt vmcnt({nB1})")
        mf32(HD, SEL, HB, None)
        a(f"v_bitop3_b32 v{T1}, v{HB}, v{HB+2}, s{sTAG} bitop3:0x7e\nv_bitop3_b32 v{T1+1}, v{HB+4}, v{HB+6}, s{sTAG} bitop3:0x7e")
        mf32(HD, SEL, HB + 4, HD)
        a(f"v_bitop3_b32 v{T1}, v{T1}, v{T1+1}, 1 bitop3:0xa8\nv_cmp_ne_u32 vcc, 0, v{T1}\n" + (cnt(70, 65536) or 's_nop 0\n') + "s_nop 3")
        a(dpa(HD, 4)); a(dpa(HD + 1, 4)); a("s_nop 0"); a(dpa(HD, 8)); a(dpa(HD + 1, 8))
        a(cv(HD, HD))
        a(f"s_cbranch_vccnz {lb('r1')}")
        a(f"buffer_store_dword v{HD}, v{A_IMS}, {WS}, s{sIMw} offen")
        a(f"s_branch {lb('a2')}")
    a.label(lb('r1'))
    a(ld1[0]); a(ld1[1])
    a(cnt(70, 1) + spin + f"s_waitcnt vmcnt(0)\ns_branch {lb('a1')}")
    a.label(lb('step'))
    if P.get('lateL'): a(f"s_mov_b64 {sr(sLX,2)}, 0")
    for l in sync_tmp(P, w): a(l)
    a(dwE)
    a(f"s_branch {lb('go')}")
    return end_main, None
```

```python
from asmlib import *
from chain import WS_IMB, WS_KV, WS_KM, WS_SIZE, DBG_KVC, DBG_KV0, DBG_DN, DBG_ARM, ARM_ALL, S_WS, S_DBG, sH, sW, nops

WS_A = 50 << 20
WS_CNT = WS_A + (64 << 10)
WS_ST = 52 << 20
DBG_ST = 8
WS_PART = 64 << 20
H_GW = 131072
H_E = H_GW + 1024
H_C = H_E + 1024
H_K = H_C + 4096
S_X, S_W1, S_W2, S_WO, S_OUT = 8, 12, 16, 20, 28
sB = 34
sX0, sWo1, sWo2, sStI, sStS, sSlot, sCnt, sSeg, sSpin, sJ = 35, 36, 37, 38, 39, 40, 41, 42, 43, 44
sA, sA2, sA3, sA4 = 45, 46, 47, 48
sWoo = 49
sM = 50
P_LRE, P_LIM, P_LDT, P_DSK, P_GW, P_CRE, P_CIM = 58, 62, 64, 66, 68, 70, 72
LANE, L16, VX_, VW, VW2, XA, WA, BA, GA, VKV, G, VN, HH, VKM, VVM, WOA, MX = 0, 1, 2, 3, 4, 5, 7, 11, 13, 14, 15, 16, 17, 18, 19, 20, 28
T = 29
KF, VF, FR = 32, 96, 160
QF, SS, HF = 160, 224, 240
HSPIN = 1000000
LOG2E = 0x3fb8aa3b
def mf(a, D, A, B, C): a(f"v_mfma_f32_32x32x16_bf16 {D}, {A}, {B}, {C}")
WS = sr(S_WS, 4)

S_PF = 52
P_WQ, P_WK, P_WV = 74, 76, 78
sPH = 56
def h_ptrs(a):
    a(f"""
    s_load_dwordx2 {sr(S_X,2)}, s[0:1], 0
    s_load_dwordx2 {sr(P_WK,2)}, s[0:1], 96
    s_load_dwordx2 {sr(P_WV,2)}, s[0:1], 104
    s_load_dwordx2 {sr(S_WO,2)}, s[0:1], 112
    s_load_dwordx2 {sr(S_PF,2)}, s[0:1], 88
    s_mov_b32 s{S_X+2}, 2097152
    s_mov_b32 s{S_X+3}, 0x20000
    s_mov_b32 s{S_WO+2}, 4194304
    s_mov_b32 s{S_WO+3}, 0x20000
    s_mov_b32 s{S_OUT+2}, 4194304
    s_mov_b32 s{S_OUT+3}, 0x20000
    s_mov_b32 s{S_W1+2}, 4194304
    s_mov_b32 s{S_W1+3}, 0x20000
    s_mov_b32 s{S_W2+2}, 4194304
    s_mov_b32 s{S_W2+3}, 0x20000
    s_mov_b32 s{S_PF+2}, 4194304
    s_mov_b32 s{S_PF+3}, 0x20000
    """)
PFW, PFO = 253, 254
def h_prefetch(a, sR):
    a(f"""
    s_mov_b64 {sr(S_W1,2)}, {sr(P_WK,2)}
    s_mov_b64 {sr(S_W2,2)}, {sr(P_WV,2)}
    s_mul_i32 s{sPH}, s{sR}, {32*10923}
    s_lshr_b32 s{sPH}, s{sPH}, 16
    s_cmp_eq_u32 s{sR}, 6
    s_cselect_b32 s3, 0x200, s3
    s_lshl_b32 s{sA}, s{sPH}, 8
    s_lshl_b32 s{sA2}, s3, 17
    s_add_u32 s{sA}, s{sA}, s{sA2}
    v_lshrrev_b32 v1, 4, v0
    v_and_b32 v2, 15, v0
    v_cmp_gt_u32 vcc, 12, v2
    v_lshlrev_b32 v2, 7, v2
    v_lshl_add_u32 v1, v1, 13, v2
    v_add_u32 v1, s{sA}, v1
    v_bfrev_b32 v2, 1
    v_cndmask_b32 v{PFW}, v2, v1, vcc
    s_lshl_b32 s{sA}, s3, 14
    v_lshlrev_b32 v1, 7, v0
    v_cmp_gt_u32 vcc, 128, v0
    buffer_load_dword v255, v{PFW}, {sr(S_W2,4)}, 0 offen
    v_add_u32 v3, s{sA}, v1
    buffer_load_dword v255, v{PFW}, {sr(S_W1,4)}, 0 offen
    v_cndmask_b32 v3, v2, v3, vcc
    buffer_load_dword v255, v3, {sr(S_X,4)}, 0 offen
    s_load_dwordx2 {sr(S_OUT,2)}, s[0:1], 136
    s_load_dwordx2 {sr(P_LRE,2)}, s[0:1], 8
    s_load_dwordx2 {sr(P_LIM,2)}, s[0:1], 16
    s_load_dwordx2 {sr(P_LDT,2)}, s[0:1], 56
    s_load_dwordx2 {sr(P_DSK,2)}, s[0:1], 64
    s_load_dwordx2 {sr(P_GW,2)}, s[0:1], 128
    s_waitcnt lgkmcnt(0)
    s_load_dwordx2 {sr(P_CRE,2)}, s[0:1], 40
    s_load_dwordx2 {sr(P_CIM,2)}, s[0:1], 48
    s_cmp_ge_u32 s{sW}, 2
    s_cbranch_scc1 L_h_hi
    s_mov_b64 {sr(S_W2,2)}, {sr(S_PF,2)}
    s_mov_b32 s{sStI}, {4*8192}
    s_mov_b32 s{sStS}, {32*8192}
    s_branch L_h_sel
    """)
    a.label('L_h_hi')
    a(f"""
    s_mov_b64 {sr(S_W1,2)}, {sr(P_WV,2)}
    s_mov_b32 s{S_W2+2}, 524288
    s_mov_b32 s{sStI}, 0x10000000
    s_mov_b32 s{sStS}, 64
    s_cmp_eq_u32 s{sW}, 3
    s_cbranch_scc1 L_h_w3
    s_load_dwordx2 {sr(S_W2,2)}, s[0:1], 24
    s_branch L_h_sel
    """)
    a.label('L_h_w3')
    a(f"s_load_dwordx2 {sr(S_W2,2)}, s[0:1], 32")
    a.label('L_h_sel')
    a("s_waitcnt lgkmcnt(0)")
    return 3

def h_once(a):
    a(f"v_and_b32 v{LANE}, 63, v0")
    t = 32
    a(f"""
    v_lshlrev_b32 v{L16}, 4, v{LANE}
    v_and_b32 v{VN}, 31, v{LANE}
    v_lshrrev_b32 v{HH}, 5, v{LANE}
    v_lshrrev_b32 v{t}, 2, v{LANE}              ; r = lane>>2
    v_lshrrev_b32 v{t+1}, 4, v{LANE}            ; lane>>4
    v_and_b32 v{t+2}, 3, v{LANE}                ; c
    v_xor_b32 v{t+3}, v{t+2}, v{t+1}
    v_lshlrev_b32 v{t+3}, 4, v{t+3}
    v_lshl_add_u32 v{VX_}, v{t}, 10, v{t+3}
    v_and_b32 v{t+3}, 15, v{LANE}
    v_lshlrev_b32 v{t+4}, 2, v{t+1}
    v_xor_b32 v{t+3}, v{t+3}, v{t+4}
    v_lshlrev_b32 v{t+3}, 4, v{t+3}
    v_lshl_add_u32 v{VW}, v{t+1}, 13, v{t+3}
    s_cmp_ge_u32 s{sW}, 2
    s_cselect_b64 vcc, -1, 0
    v_cndmask_b32 v{VW2}, v{VW}, v{VX_}, vcc
    v_bfe_u32 v{t+5}, v{LANE}, 2, 1             ; h'
    v_bfe_u32 v{t+6}, v{LANE}, 3, 1             ; t
    v_bfe_u32 v{t+7}, v{LANE}, 4, 1             ; n>>4
    v_lshl_add_u32 v{t+8}, v{t+7}, 2, v{t+2}
    v_lshl_add_u32 v{t+8}, v{t+5}, 3, v{t+8}    ; i = 8h' + 4(n>>4) + (n&3)
    v_lshl_add_u32 v{t+9}, v{HH}, 5, v{t+8}
    v_lshlrev_b32 v{t+9}, 4, v{t+9}
    v_lshl_add_u32 v{VKV}, v{t+6}, 10, v{t+9}
    v_lshl_add_u32 v{t+9}, v{HH}, 4, v{t+8}
    v_lshlrev_b32 v{t+9}, 4, v{t+9}
    v_lshl_add_u32 v{t+9}, v{t+6}, 2, v{t+9}
    s_lshl_b32 s{sA}, s{sW}, 12
    s_add_u32 s{sA}, s{sA}, {H_K}
    v_add3_u32 v{VVM}, v{t+9}, s{sA}, 8
    v_and_b32 v{t+9}, 7, v{LANE}
    v_lshl_add_u32 v{t+9}, v{HH}, 5, v{t+9}
    v_lshl_add_u32 v{VKM}, v{t+9}, 4, s{sA}
    s_waitcnt lgkmcnt(0)
    """)

def xaddr(a, row, base_s, dst):
    a(f"""
    v_bfe_u32 v{T}, v{row}, 2, 2
    v_xor_b32 v{T}, v{T}, v{HH}
    v_lshlrev_b32 v{T}, 4, v{T}
    v_lshl_add_u32 v{T}, v{row}, 6, v{T}
    v_add_u32 v{dst}, {base_s}, v{T}
    v_xor_b32 v{dst+1}, 32, v{dst}
    """)

OPT = {}
sXC, sClr, sMode = 57, 3, 2
def dma_part(part, kind):
    G_ = []
    for i in range(2 if kind == 'xh' else 4):
        o = (16384 if part == 'B' else 0) + 1024 * i
        L = [f"s_add_u32 m0, s{sSlot}, {o}"]
        if kind == 'wo': L += [f"s_add_u32 s{sA}, s{sWoo}, {o}", f"buffer_load_dwordx4 v{WOA + i}, {sr(S_WO,4)}, s{sA} offen lds"]
        elif part == 'A': L += [f"s_add_u32 s{sA}, s{sXC}, {(i >> 1) * 131072 + (i & 1) * 16384}", f"buffer_load_dwordx4 v{VX_}, {sr(S_X,4)}, s{sA} offen lds"]
        elif kind == 'p1': L += [f"s_add_u32 s{sA}, s{sWo1}, {4*8192*i}", f"buffer_load_dwordx4 v{VW}, {sr(S_W1,4)}, s{sA} offen lds"]
        else: L += [f"s_mov_b32 s{sA2}, s{sWo2}" if i == 0 else f"s_add_u32 s{sA2}, s{sA2}, s{sStI}", f"buffer_load_dwordx4 v{VW2}, {sr(S_W2,4)}, s{sA2} offen lds"]
        G_.append(L)
    if part == 'A' and kind != 'wo': G_[-1] += [f"s_add_u32 s{sXC}, s{sXC}, 64", f"s_and_b32 s{sXC}, s{sXC}, 0xfffffbff"]
    if part == 'B':
        G_[-1] += [{'p1': f"s_add_u32 s{sWo1}, s{sWo1}, {32*8192}", 'p2': f"s_add_u32 s{sWo2}, s{sWo2}, s{sStS}", 'wo': f"s_add_u32 s{sWoo}, s{sWoo}, 32768"}[kind]]
        G_[-1] += [f"s_add_u32 s{sSlot}, s{sSlot}, 32768", f"s_and_b32 s{sSlot}, s{sSlot}, 0x1ffff"]
    return G_

def frag_reads(p, k, fs, nj=2):
    b = FR + 40 * fs
    L = [f"ds_read_b128 {vr(b + 4*j, 4)}, v{XA + k} offset:{2048*j}" for j in range(nj)]
    for m in range(2 if p == 1 else 1):
        for tau in range(4):
            for pp in range(2):
                L.append(f"ds_read_b64_tr_b16 {vr(b + 8 + 16*m + 4*tau + 2*pp, 2)}, v{WA + tau} offset:{8192*m + (16*k + 4*pp)*256}")
    if p == 2:
        L.append(f"ds_read_b128 {vr(b + 24, 4)}, v{BA + k}")
        L.append(f"ds_read_b128 {vr(b + 28, 4)}, v{GA} offset:{32*k}")
    return L
def mfmas(p, fs, nj=2):
    b = FR + 40 * fs
    L = []
    x = lambda j: vr(b + 4 * j, 4)
    for tau in range(4):
        for j in range(nj):
            D = ar(64 * j + 16 * tau, 16); L.append((D, vr(b + 8 + 4 * tau, 4), x(j), D))
    if p == 1:
        for tau in range(4):
            for j in range(nj):
                D = ar(128 + 64 * j + 16 * tau, 16); L.append((D, x(j), vr(b + 24 + 4 * tau, 4), D))
    else:
        for q in range(2):
            for j in range(2):
                D = ar(128 + 32 * q + 16 * j, 16); L.append((D, vr(b + 24 + 4 * q, 4), x(j), D))
    return L
def adv_addr(p):
    L = []
    regs_ = [XA, XA + 1] + [WA + t for t in range(4)] + ([BA, BA + 1] if p == 2 else [])
    for r in regs_: L += [f"v_add_u32 v{r}, 0x8000, v{r}", f"v_and_b32 v{r}, 0x1ffff, v{r}"]
    if p == 2: L.append(f"v_add_u32 v{GA}, 64, v{GA}")
    return L

def stage_loop(a, name, p, kB, kA, n, nj=2, vmn=None):
    if n != 1:
        a(f"s_mov_b32 s{sCnt}, {n}")
        a.label(name)
    a("s_waitcnt lgkmcnt(0)")
    rd = frag_reads(p, 1, 1, nj); av = adv_addr(p); dg = dma_part('B', kB)
    M = mfmas(p, 0, nj); q = len(M) // 4
    for i, m in enumerate(M):
        mf(a, *m)
        for _ in range(2 if nj == 2 else (2 if i & 1 else 5)):
            if rd: a(rd.pop(0))
        if i % q == 1:
            for l in dg.pop(0): a(l)
        elif not rd:
            for _ in range(5 if nj == 2 else 6):
                if av: a(av.pop(0))
    assert not rd and not av and not dg
    a(f"s_waitcnt vmcnt({vmn or (18 if p == 1 else 16)}) lgkmcnt(0)\ns_barrier")
    rd = frag_reads(p, 0, 0, nj); dg = dma_part('A', kA)
    M = mfmas(p, 1, nj)
    for i, m in enumerate(M):
        mf(a, *m)
        for _ in range(2 if nj == 2 else (2 if i & 1 else 5)):
            if rd: a(rd.pop(0))
        if i % q == 1 and dg:
            for l in dg.pop(0): a(l)
        if p == 1 and i == (11 if nj == 2 else 99): a(f"buffer_store_dwordx4 v[44:47], v{L16}, {WS}, s{sClr} offen sc1\ns_add_u32 s{sClr}, s{sClr}, 1024")
        if p == 1 and i == (12 if nj == 2 else 99): a(f"s_and_b32 s{sA}, s{sClr}, 0xfff\ns_cselect_b32 s{sA}, 0, s{sX0}\ns_cselect_b32 s{sX0}, s{sX0}, 0x20000000\ns_add_u32 s{sClr}, s{sClr}, s{sA}")
        if i == len(M) - 1 and n != 1: a(f"s_sub_u32 s{sCnt}, s{sCnt}, 1\ns_cmp_lg_u32 s{sCnt}, 0")
    assert not rd and not dg
    if n != 1: a(f"s_cbranch_scc1 {name}")

SLEEP = [4]
def poll_fail(a, back, sl=None):
    a(f"s_add_u32 s{sSpin}, s{sSpin}, 1\ns_cmp_gt_u32 s{sSpin}, {HSPIN}\ns_cbranch_scc1 L_end\ns_sleep {sl or SLEEP[0]}\ns_branch {back}")

def unpack8(a, dst, src):
    for j in range(4):
        a(f"v_lshlrev_b32 v{dst+2*j}, 16, v{src+j}\nv_and_b32 v{dst+2*j+1}, 0xffff0000, v{src+j}")

def pw(a, LR, LI, A2, B2, n, cnt, tmp):
    for j in range(cnt):
        if n is None: a(f"v_exp_f32 v{tmp+j}, v{A2+j}\nv_fract_f32 v{LI+j}, v{B2+j}")
        else: a(f"v_mul_f32 v{tmp+j}, {n}, v{A2+j}\nv_mul_f32 v{LI+j}, {n}, v{B2+j}\nv_exp_f32 v{tmp+j}, v{tmp+j}\nv_fract_f32 v{LI+j}, v{LI+j}")
    for j in range(cnt): a(f"v_cos_f32 v{LR+j}, v{LI+j}\nv_sin_f32 v{LI+j}, v{LI+j}")
    a("s_nop 0")
    for j in range(cnt): a(f"v_mul_f32 v{LR+j}, v{LR+j}, v{tmp+j}\nv_mul_f32 v{LI+j}, v{LI+j}, v{tmp+j}")

def dtprep(a, A2, B2, DT, cnt):
    for j in range(cnt): a(f"v_mul_f32 v{DT+j}, {LOG2E}, v{DT+j}")
    for j in range(cnt): a(f"v_exp_f32 v{DT+j}, v{DT+j}")
    a("s_nop 0")
    for j in range(cnt): a(f"v_cvt_pk_bf16_f32 v{DT+j}, v{DT+j}, v{DT+j}")
    for j in range(cnt): a(f"v_and_b32 v{DT+j}, 0xffff0000, v{DT+j}")
    for j in range(cnt):
        a(f"v_mul_f32 v{A2+j}, v{DT+j}, v{A2+j}\nv_mul_f32 v{B2+j}, v{DT+j}, v{B2+j}")
        a(f"v_mul_f32 v{A2+j}, {LOG2E}, v{A2+j}\nv_mul_f32 v{B2+j}, 0.15915494, v{B2+j}")

def h_static(a):
    t = 32
    a(f"""
    v_bfe_u32 v{t}, v{LANE}, 2, 1
    v_bfe_u32 v{t+1}, v{LANE}, 3, 2
    v_and_b32 v{t+2}, 3, v{LANE}
    v_lshl_add_u32 v{t+3}, v{t+1}, 2, v{t+2}
    v_lshl_add_u32 v{t+3}, v{t}, 4, v{t+3}
    s_lshl_b32 s{sA}, s{sW}, 12
    """)
    xaddr(a, t + 3, f"s{sA}", XA)
    a(f"""
    v_bfe_u32 v{t+4}, v{LANE}, 2, 2             ; r'
    v_bfe_u32 v{t+5}, v{LANE}, 4, 1             ; half
    v_and_b32 v{t+6}, 1, v{LANE}
    v_bfe_u32 v{t+7}, v{LANE}, 1, 1
    v_lshl_add_u32 v{t+8}, v{t+5}, 1, v{t+7}
    v_lshl_add_u32 v{t+8}, v{t+6}, 2, v{t+8}
    v_lshlrev_b32 v{t+8}, 3, v{t+8}
    v_lshl_add_u32 v{t+9}, v{HH}, 3, v{t+4}
    v_lshl_add_u32 v{t+8}, v{t+9}, 8, v{t+8}
    v_lshl_add_u32 v{t+8}, v{t+4}, 6, v{t+8}
    v_add_u32 v{WA}, 16384, v{t+8}
    """)
    for tau in range(1, 4): a(f"v_xor_b32 v{WA+tau}, {64*tau}, v{WA}")
    for i in range(4): a(f"v_xor_b32 v{WOA+i}, {64*i}, v{L16}")
    for i in range(4): a(f"v_mov_b32 v{t+12+i}, -1")
    for i in range(256): a(f"v_accvgpr_write_b32 a{i}, 0")

def helper_task(a, P):
    DBG = sr(S_DBG, 4)
    SLEEP[0] = P.get('sleep', 4); OPT.clear(); OPT.update(P)
    def hs(k, alt=0):
        if P.get('alt') and not alt:
            if k in (4, 5, 6): return
            k = {2: 5, 3: 6}.get(k, k)
        if P.get('stat'): a(f"{'s_memtime' if P.get('hcyc') else 's_memrealtime'} s[{74+2*k}:{75+2*k}]")
    def signal(tag, off, so, nv, last='31', inc=1):
        a(f"""
        s_waitcnt vmcnt({nv})
        s_barrier
        s_cmp_lg_u32 s{sW}, 0
        s_cbranch_scc1 L_h_ns{tag}
        s_lshl_b32 s{sA}, s{sB}, 2
        v_mov_b32 v{T}, {inc}
        s_mov_b64 exec, 1
        buffer_atomic_add v{T}, off, {DBG}, {so} offset:{off} sc0
        v_mov_b32 v{T+1}, 32
        s_waitcnt vmcnt(0)
        v_cmp_eq_u32 vcc, {last}, v{T}
        s_cbranch_vccz L_h_ng{tag}
        buffer_store_dword v{T+1}, off, {DBG}, {so} offset:{off + DBG_DN} sc1
        """)
        a.label(f'L_h_ng{tag}')
        a("s_mov_b64 exec, -1")
        a.label(f'L_h_ns{tag}')
    a.label('L_h_task')
    hs(0)
    t = 32
    a(f"""
    s_lshl_b32 s{sSeg}, s{sB}, 3
    s_cmp_eq_u32 s{sMode}, 2
    s_cselect_b32 s{sSeg}, 4, s{sSeg}
    s_add_u32 s{sSeg}, s{sSeg}, s{sW}
    s_lshl_b32 s{sXC}, s{sSeg}, 15
    s_lshl_b32 s{sWo1}, s{sH}, 8
    s_and_b32 s{sA}, s{sW}, 1
    s_lshl_b32 s{sA}, s{sA}, 17
    s_add_u32 s{sWo1}, s{sWo1}, s{sA}
    s_lshl_b32 s{sA}, s{sH}, 14
    s_cmp_ge_u32 s{sW}, 2
    s_cselect_b32 s{sWo2}, s{sA}, s{sWo1}
    s_lshl_b32 s{sSlot}, s{sW}, 12
    s_lshl_b32 s{sWoo}, s{sH}, 17
    s_add_u32 s{sWoo}, s{sWoo}, s{sSlot}
    s_mov_b32 s{sSpin}, 0
    """)
    NE = P.get('nearly', 2)
    if P.get('pfw'): a("s_waitcnt vmcnt(0)"); hs(0)
    a(f"""
    s_cmp_lg_u32 s{sB}, 8
    s_cbranch_scc1 L_h_nse
    v_lshlrev_b32 v{T+2}, 7, v{LANE}
    s_lshl_b32 s{sA}, s{sH}, 14
    buffer_load_dword v255, v{T+2}, {sr(S_W2,4)}, s{sA} offen
    s_add_u32 s{sA2}, s{sA}, 8192
    buffer_load_dword v255, v{T+2}, {sr(S_W2,4)}, s{sA2} offen
    s_and_b32 s{sA2}, s{sW}, 1
    s_lshl_b32 s{sA2}, s{sA2}, 13
    s_add_u32 s{sA}, s{sA}, s{sA2}
    v_add_u32 v{T+2}, s{sA}, v{T+2}
    global_load_dword v255, v{T+2}, {sr(P_CRE,2)}
    global_load_dword v255, v{T+2}, {sr(P_CIM,2)}
    s_lshl_b32 s{sA}, s{sW}, 17
    s_lshl_b32 s{sA2}, s{sH}, 12
    s_add_u32 s{sA}, s{sA}, s{sA2}
    s_add_u32 s{sA}, s{sA}, {WS_KM}
    s_add_u32 s{sA2}, s{sA}, {4 << 17}
    """)
    for k in range(8): a(f"buffer_store_dwordx4 v[44:47], v{L16}, {WS}, s{sA if k < 4 else sA2} offen offset:{1024*(k&3)} sc1")
    signal('e', DBG_ARM, '0', 0, '-1')
    a(f"""
    s_lshl_b32 s{sA}, s{sW}, 6
    v_add_u32 v{T}, s{sA}, v{LANE}
    v_lshlrev_b32 v{T+1}, 7, v{T}
    s_sub_u32 s{sA3}, s{sB}, 2
    s_cmp_ge_u32 s{sA3}, {P.get('nq', 2)}
    s_cbranch_scc1 L_h_nq
    {'s_waitcnt vmcnt(0)' if P.get('w1', 1) else ''}
    v_lshrrev_b32 v{T+2}, 1, v{T}
    v_and_b32 v{T}, 128, v{T+1}
    v_lshl_add_u32 v{T}, v{T+2}, 13, v{T}
    s_lshl_b32 s{sA}, s{sA3}, 20
    s_lshl_b32 s{sA2}, s{sH}, 8
    s_add_u32 s{sA}, s{sA}, s{sA2}
    buffer_load_dword v255, v{T}, {sr(S_PF,4)}, s{sA} offen
    s_add_u32 s{sA}, s{sA}, {2 << 20}
    buffer_load_dword v255, v{T}, {sr(S_PF,4)}, s{sA} offen
    {'s_waitcnt vmcnt(0)' if P.get('w2', 1) else ''}
    s_lshl_b32 s{sA}, s{sA3}, 15
    s_lshl_b32 s{sA2}, s{sH}, 17
    s_add_u32 s{sA}, s{sA}, s{sA2}
    buffer_load_dword v255, v{T+1}, {sr(S_WO,4)}, s{sA} offen
    s_add_u32 s{sA}, s{sA}, 65536
    buffer_load_dword v255, v{T+1}, {sr(S_WO,4)}, s{sA} offen
    s_waitcnt vmcnt(0)
    {'s_sleep %d' % P['s2'] if P.get('s2') else ''}
    L_h_nq:
    s_cmp_lg_u32 s{sB}, 8
    s_cbranch_scc1 L_h_nt
    s_lshl_b32 s{sA}, s{sH}, 16
    buffer_load_dword v255, v{T+1}, {sr(S_X,4)}, s{sA} offen
    s_add_u32 s{sA}, s{sA}, 32768
    buffer_load_dword v255, v{T+1}, {sr(S_X,4)}, s{sA} offen
    """)
    if P.get('spinT'):
        a(f"s_cmp_lg_u32 s{sH}, 0\ns_cbranch_scc1 L_end\ns_cmp_lg_u32 s{sW}, 0\ns_cbranch_scc1 L_end")
        a(f"s_mov_b32 s74, {P['spinT']*100}")
        if P.get('ev'):
            a.label('L_ev0')
            a(f"s_sleep 4\nbuffer_load_dword v{T}, off, {DBG}, 0 offset:{DBG_ARM} sc1\ns_waitcnt vmcnt(0)\nv_cmp_gt_u32 vcc, {ARM_ALL[P.get('tb', 1)]}, v{T}\ns_cbranch_vccnz L_ev0")
            if P['ev'].startswith('km'):
                n_ = int(P['ev'][2:]); srd_, off_, bad = WS, WS_KM + (n_ << 17), -1
                if n_ >= 8:
                    a.label('L_ev2')
                    a(f"s_sleep 16\nbuffer_load_dword v{T}, off, {DBG}, 0 offset:{DBG_DN + DBG_KVC + 4 * (n_ >> 3)} sc1\ns_waitcnt vmcnt(0)\nv_cmp_eq_u32 vcc, 0, v{T}\ns_cbranch_vccnz L_ev2")
            elif P['ev'].startswith('dn'): srd_, off_, bad = DBG, DBG_DN + DBG_KVC + 4 * int(P['ev'][2:]), 0
            else: srd_, off_, bad = {'arm': (DBG, DBG_ARM, 0), 'kv0': (DBG, DBG_DN + DBG_KV0, 0), 'm1': (WS, WS_IMB + 8188, -1), 'kvd': (WS, WS_KV + 16380, -1)}[P['ev']]
            a(f"s_mov_b32 s75, {off_}")
            a.label('L_ev1')
            a(f"s_sleep 2\nbuffer_load_dword v{T}, off, {srd_}, s75 sc1\ns_waitcnt vmcnt(0)\nv_cmp_eq_u32 vcc, {bad}, v{T}\ns_cbranch_vccnz L_ev1")
            a("s_memrealtime s[72:73]\ns_waitcnt lgkmcnt(0)\ns_sub_u32 s72, s72, s98\ns_add_u32 s74, s74, s72")
        a.label('L_spinT')
        a(f"s_sleep 1\ns_memrealtime s[72:73]\ns_waitcnt lgkmcnt(0)\ns_sub_u32 s72, s72, s98\ns_cmp_lt_u32 s72, s74\ns_cbranch_scc1 L_spinT")
    a("s_branch L_end")
    a.label('L_h_nt')
    a(f"s_cmp_eq_u32 s{sMode}, 0\ns_cbranch_scc1 L_h_d2")
    for kA, lab in (('xh', 'L_h_d2'), ('x', 'L_h_d3')):
        for st in range(4):
            for g_ in dma_part('A', kA) + (dma_part('B', 'p1') if st < 3 else []):
                for l in g_: a(l)
        if kA == 'xh': a("s_branch L_h_d3")
        a.label(lab)
    a(f"""
    s_lshl_b32 s{sA}, s{sSeg}, 17
    s_lshl_b32 s{sA2}, s{sH}, 12
    s_add_u32 s{sA}, s{sA}, s{sA2}
    s_add_u32 s{sClr}, s{sA}, {WS_KM}
    s_cmp_ge_u32 s{sMode}, 1
    s_cselect_b32 s{sClr}, 0x70000000, s{sClr}
    s_mov_b32 s{sX0}, {(4 << 17) - 4096}
    """)
    a(f"""
    s_lshl_b32 s{sA}, s{sB}, 5
    s_add_u32 s{sA}, s{sA}, s{sH}
    s_lshl_b32 s{sA}, s{sA}, 7
    s_add_u32 s{sA}, s{sA}, {WS_A}
    s_mov_b64 exec, 0xff
    buffer_store_dwordx4 {vr(t+12,4)}, v{L16}, {WS}, s{sA} offen sc1
    s_mov_b64 exec, -1
    s_lshl_b32 s{sA}, s{sH}, 2
    s_add_u32 s{sA}, s{sA}, s{sSeg}
    s_lshl_b32 s{sA}, s{sA}, 7
    s_add_u32 s{sA}, s{sA}, {WS_CNT}
    s_add_u32 s{sA2}, s{sH}, s{sMode}
    s_cmp_eq_u32 s{sMode}, 1
    s_cselect_b32 s{sA2}, s{sH}, s{sA2}
    s_cmp_lt_u32 s{sA2}, 2
    s_cselect_b32 s{sA}, s{sA}, 0x70000000
    v_mov_b32 v{t+16}, 0
    s_mov_b64 exec, 1
    buffer_store_dword v{t+16}, v{t+16}, {WS}, s{sA} offen sc1
    s_mov_b64 exec, -1
    global_load_dwordx4 {vr(t+20,4)}, v{L16}, {sr(P_GW,2)}
    """)
    a(f"s_cmp_lt_u32 s{sB}, {NE}\ns_cbranch_scc1 L_h_go\ns_cmp_eq_u32 s{sMode}, 2\ns_cbranch_scc1 L_h_go")
    a(f"v_lshlrev_b32 v{T}, 7, v{LANE}\ns_and_b32 s{sA2}, s{sXC}, 0xfffffc00\ns_cmp_ge_u32 s{sB}, 6\ns_cbranch_scc1 L_h_x2\ns_waitcnt vmcnt(0)")
    a.label('L_h_x2')
    for k in range(8 if P.get('xt', 1) else 0): a(f"s_add_u32 s{sA}, s{sA2}, {(k >> 2) * 131072 + (k & 3) * 8192}\nbuffer_load_dword v255, v{T}, {sr(S_X,4)}, s{sA} offen")
    a(f"""
    s_cmp_lg_u32 s{sB}, {P.get('clt', 5)}
    s_cbranch_scc1 L_h_n7
    s_add_u32 s{sA}, s{sW}, 56
    s_lshl_b32 s{sA}, s{sA}, 20
    s_lshl_b32 s{sA2}, s{sH}, 15
    s_add_u32 s{sA}, s{sA}, s{sA2}
    s_add_u32 s{sA}, s{sA}, {WS_PART}
    s_mov_b32 s{sCnt}, 8
    """)
    if P.get('r8w'):
        a(f"s_cmp_lg_u32 s{sW}, 0\ns_cbranch_scc1 L_h_c6")
        a.label('L_h_c5')
        a(f"buffer_load_dword v{T}, off, {DBG}, 0 offset:{DBG_DN + DBG_KVC + 4 * (P['r8w'] - 1)} sc1\ns_waitcnt vmcnt(0)\nv_cmp_eq_u32 vcc, 0, v{T}\ns_cbranch_vccz L_h_c6")
        poll_fail(a, 'L_h_c5', 16)
        a.label('L_h_c6')
        a("s_barrier")
    a.label('L_h_c7')
    if P.get('r8s'): a(f"s_waitcnt vmcnt(0)\ns_sleep {P['r8s']}")
    a(f"s_add_u32 s{sA2}, s{sA}, {4 << 20}")
    for k in range(8): a(f"buffer_store_dwordx4 v[44:47], v{L16}, {WS}, s{sA if k < 4 else sA2} offen offset:{1024*(k&3)} sc1")
    a(f"s_add_u32 s{sA}, s{sA}, 4096\ns_sub_u32 s{sCnt}, s{sCnt}, 1\ns_cmp_lg_u32 s{sCnt}, 0\ns_cbranch_scc1 L_h_c7")
    a.label('L_h_n7')
    a(f"s_sub_i32 s{sA3}, s{sB}, {P.get('lag', 2)}\ns_max_i32 s{sA3}, s{sA3}, 0\ns_lshl_b32 s{sA3}, s{sA3}, 2\ns_cmp_ge_u32 s{sB}, 6\ns_cbranch_scc1 L_h_go")
    a(f"s_cmp_lg_u32 s{sW}, 0\ns_cbranch_scc1 L_h_go")
    a.label('L_h_w0')
    a(f"buffer_load_dword v{T}, off, {DBG}, s{sA3} offset:{DBG_DN + DBG_KVC} sc1\ns_waitcnt vmcnt(0)\nv_cmp_eq_u32 vcc, 0, v{T}\ns_cbranch_vccz L_h_go")
    poll_fail(a, 'L_h_w0', 8)
    a.label('L_h_go')
    a(f"s_waitcnt vmcnt({14 + 3})\ns_barrier")
    hs(1)
    for l in frag_reads(1, 0, 0): a(l)
    gw = f"v_add_u32 v{T}, {H_GW}, v{L16}\nds_write_b128 v{T}, {vr(t+20,4)}"
    a(f"s_cmp_eq_u32 s{sMode}, 0\ns_cbranch_scc1 L_h_full")
    stage_loop(a, 'L_h_q1a', 1, 'p1', 'xh', 12, 1, 12)
    stage_loop(a, 'L_h_q1c', 1, 'p1', 'x', 1, 1, 12)
    a(gw)
    kv0 = f"buffer_load_dword v{G}, off, {DBG}, 0 offset:{DBG_ARM} sc1"
    a(f"v_mov_b32 v{G}, 64\ns_lshl_b32 s{sA}, s{sMode}, 2\ns_add_u32 s{sA}, s{sA}, s{sW}\ns_cmp_ge_u32 s{sA}, {4 + max(P.get('tb', 1), 1)}\ns_cbranch_scc1 L_h_a1"); a(kv0)
    a.label('L_h_a1')
    stage_loop(a, 'L_h_q1b', 1, 'p2', 'x', 3, 1, 14)
    a.label('L_h_a0')
    a(f"v_cmp_gt_u32 vcc, {ARM_ALL[P.get('tb', 1)]}, v{G}\ns_cbranch_vccz L_h_e1"); a(kv0); a("s_waitcnt vmcnt(0)")
    poll_fail(a, 'L_h_a0', 4)
    a.label('L_h_full')
    stage_loop(a, 'L_h_p1a', 1, 'p1', 'x', 13)
    a(gw)
    stage_loop(a, 'L_h_p1b', 1, 'p2', 'x', 3)
    a.label('L_h_e1')
    hs(2)
    a(f"""
    s_lshl_b32 s{sA3}, s{sSeg}, 19
    s_lshl_b32 s{sA2}, s{sH}, 14
    s_add_u32 s{sA3}, s{sA3}, s{sA2}
    s_add_u32 s{sA3}, s{sA3}, {WS_KV}
    s_waitcnt lgkmcnt(0)
    s_nop 7
    """)
    TM = 240
    a(f"s_lshl_b32 s{sA4}, s{sW}, 2\ns_add_u32 s{sA4}, s{sA4}, s{sMode}")
    def kv_store(j, m, tau):
        dst = (KF if m == 0 else VF) + 32 * j + 8 * tau
        a(f"s_add_u32 s{sA}, s{sA3}, {j * (4 << 19) + 4096 * tau}")
        for u in range(2): a(f"buffer_store_dwordx4 {vr(dst+4*u,4)}, v{VKV}, {WS}, s{sA} offen offset:{2048*m + 256*u} sc1")
    for j in range(2):
        for m in range(2):
            for tau in range(4):
                src = 128 * m + 64 * j + 16 * tau; dst = (KF if m == 0 else VF) + 32 * j + 8 * tau
                for r in range(16): a(f"v_accvgpr_read_b32 v{TM+r}, a{src+r}")
                for r in range(8): a(f"v_cvt_pk_bf16_f32 v{dst+r}, v{TM+2*r}, v{TM+2*r+1}")
                if j == 0:
                    a(f"s_cmp_lg_u32 s{sA4}, 1\ns_cbranch_scc1 L_h_sk{j}{m}{tau}")
                    kv_store(j, m, tau)
                    a.label(f'L_h_sk{j}{m}{tau}')
        if j == 0:
            a(f"s_cmp_eq_u32 s{sMode}, 0\ns_cbranch_scc1 L_h_j1\ns_lshl_b32 s{sA2}, s{sMode}, 2\ns_cmp_eq_u32 s{sA4}, 1\ns_cbranch_scc1 L_h_s0")
            for m in range(2):
                for tau in range(4): kv_store(0, m, tau)
            a.label('L_h_s0')
            if P.get('dlyh'): a(f"s_sleep {P['dlyh']}")
            signal('a', DBG_KV0 - 4, f"s{sA2}", 0)
            a(f"s_cmp_eq_u32 s{sMode}, 1\ns_cbranch_scc1 L_h_nj1\ns_mov_b32 s{sMode}, 0\ns_waitcnt vmcnt(0) lgkmcnt(0)\ns_branch L_h_again")
            a.label('L_h_j1')
    a.label('L_h_nj1')
    for i in range(192): a(f"v_accvgpr_write_b32 a{i}, 0")
    a(f"s_lshl_b32 s{sA}, s{sW}, 12")
    xaddr(a, VN, f"s{sA}", XA)
    a(f"""
    v_bfe_u32 v{TM}, v{LANE}, 2, 1
    v_bfe_u32 v{TM+1}, v{LANE}, 3, 1
    v_and_b32 v{TM+2}, 3, v{LANE}
    v_lshl_add_u32 v{TM+2}, v{TM+1}, 2, v{TM+2}
    v_lshl_add_u32 v{TM+2}, v{TM}, 3, v{TM+2}      ; ch
    v_bfe_u32 v{TM+3}, v{LANE}, 4, 1
    v_lshlrev_b32 v{TM+3}, 12, v{TM+3}
    v_add_u32 v{TM+3}, 24576, v{TM+3}
    v_lshlrev_b32 v{GA}, 4, v{HH}
    v_add_u32 v{GA}, {H_GW}, v{GA}
    """)
    xaddr(a, TM + 2, f"v{TM+3}", BA)
    hs(3)
    for l in frag_reads(2, 0, 0): a(l)
    a(f"s_lshl_b32 s{sA4}, s{sB}, 1\ns_and_b32 s{sA4}, s{sA4}, {2 if P.get('lag', 2) == 2 else 14}\ns_sub_i32 s{sA4}, s{sA4}, {-1 if P.get('lag', 2) == 2 else 3}\ns_max_i32 s{sA4}, s{sA4}, 1\ns_cmp_ge_u32 s{sB}, 6\ns_cselect_b32 s{sA4}, 1, s{sA4}\ns_sub_u32 s{sJ}, 12, s{sA4}")
    stage_loop(a, 'L_h_p20', 2, 'p2', 'x', f"s{sA4}")
    a(f"s_cmp_eq_u32 s{sMode}, 0\ns_cbranch_scc1 L_h_st\ns_cmp_lg_u32 s{sW}, 0\ns_cbranch_scc1 L_h_l1")
    a.label('L_h_l0')
    a(f"buffer_load_dword v{T}, off, {DBG}, 0 offset:{DBG_DN + DBG_KVC} sc1\ns_waitcnt vmcnt(0)\nv_cmp_eq_u32 vcc, 0, v{T}\ns_cbranch_vccz L_h_l1")
    poll_fail(a, 'L_h_l0', 8)
    a.label('L_h_l1')
    a("s_barrier")
    n0 = len(a.lines)
    for m in range(2):
        for tau in range(4): kv_store(1, m, tau)
    a.lines[n0:] = [l.replace('buffer_store', 'buffer_load') for l in a.lines[n0:]]
    a(f"s_mov_b32 s{sMode}, 0\ns_branch L_h_nsc")
    a.label('L_h_st')
    for j in range(2):
        for m in range(2):
            for tau in range(4): kv_store(j, m, tau)
    signal('c', DBG_KVC, f"s{sA}", 0)
    stage_loop(a, 'L_h_p2a', 2, 'p2', 'x', f"s{sJ}")
    stage_loop(a, 'L_h_p2c', 2, 'p2', 'wo', 1)
    stage_loop(a, 'L_h_p2b', 2, 'wo', 'wo', 3)
    for g_ in dma_part('B', 'wo'):
        for l in g_: a(l)
    hs(4)
    a("s_waitcnt lgkmcnt(0)\ns_nop 7")
    PK = 128 + 0
    for j in range(2):
        for tau in range(4):
            src = 64 * j + 16 * tau; dst = QF + 32 * j + 8 * tau
            for r in range(16): a(f"v_accvgpr_read_b32 v{TM+r}, a{src+r}")
            for r in range(8): a(f"v_cvt_pk_bf16_f32 v{dst+r}, v{TM+2*r}, v{TM+2*r+1}")
    a(f"""
    v_bfe_u32 v{T}, v{LANE}, 2, 1
    v_bfe_u32 v{T+1}, v{LANE}, 3, 1
    v_and_b32 v{T+2}, 0x13, v{LANE}
    v_lshl_add_u32 v{T+2}, v{T+1}, 2, v{T+2}
    v_lshl_add_u32 v{T+2}, v{T}, 3, v{T+2}
    v_lshlrev_b32 v{T+2}, 10, v{T+2}
    s_lshl_b32 s{sA}, s{sH}, 5
    v_lshl_add_u32 v{T+1}, v{HH}, 4, s{sA}
    s_lshl_b32 s{sA}, s{sW}, 17
    v_add3_u32 v{BA}, v{T+2}, v{T+1}, s{sA}
    """)
    for j in range(2):
        for k in range(8):
            D = vr(SS + 16 * j, 16)
            mf(a, D, vr(KF + 32 * j + 4 * k, 4), vr(QF + 32 * j + 4 * k, 4), D if k else 0)
    RI = 32
    for r in range(32): a(f"v_accvgpr_read_b32 v{RI+r}, a{128+r}")
    a(f"v_accvgpr_read_b32 v{G}, a160\nv_accvgpr_read_b32 v{MX}, a176")
    A2, B2, LR, LI = 64, 72, 80, 88
    a(f"global_load_dwordx4 {vr(LR,4)}, v{T+1}, {sr(P_LRE,2)}\nglobal_load_dwordx4 {vr(LR+4,4)}, v{T+1}, {sr(P_LIM,2)}\nglobal_load_dwordx4 {vr(LI,4)}, v{T+1}, {sr(P_LDT,2)}")
    for r in (G, MX): a(f"v_mul_f32 v{r}, 0xbfb8aa3b, v{r}")
    for r in (G, MX): a(f"v_exp_f32 v{r}, v{r}")
    a("s_nop 0")
    for r in (G, MX): a(f"v_add_f32 v{r}, 1.0, v{r}")
    for r in (G, MX): a(f"v_rcp_f32 v{r}, v{r}")
    a(f"v_lshlrev_b32 v{T}, 4, v{HH}\nv_sub_u32 v{T}, v{VN}, v{T}\nv_mov_b32 v{T+2}, 0xff800000")
    for r in range(16):
        a(f"v_cmp_le_i32 vcc, {r}, v{T}\ns_nop 1")
        for j in range(2): a(f"v_cndmask_b32 v{SS+16*j+r}, v{T+2}, v{SS+16*j+r}, vcc")
    PQ, PV, PS, PH, PG = 128, 160, 192, 208, 216
    for r in range(32): a(f"v_accvgpr_write_b32 a{PQ+r}, v{QF+32+r}\nv_accvgpr_write_b32 a{PV+r}, v{VF+32+r}")
    for r in range(16): a(f"v_accvgpr_write_b32 a{PS+r}, v{SS+16+r}")
    a(f"v_accvgpr_write_b32 a{PG}, v{MX}")
    CA, CB, CD = 192, 193, 194
    a(f"""
    v_and_b32 v{T}, 15, v{LANE}
    s_lshl_b32 s{sA}, s{sH}, 5
    v_lshl_add_u32 v{T+2}, v{T}, 1, s{sA}
    global_load_ushort v{CA}, v{T+2}, {sr(P_LRE,2)}
    global_load_ushort v{CB}, v{T+2}, {sr(P_LIM,2)}
    global_load_ushort v{CD}, v{T+2}, {sr(P_LDT,2)}
    """)
    ACW = 220
    for tt in range(4):
        a(f"global_load_dwordx4 {ar(ACW+8*tt,4)}, v{BA}, {sr(P_CRE,2)}\nglobal_load_dwordx4 {ar(ACW+8*tt+4,4)}, v{BA}, {sr(P_CIM,2)}")
        if tt < 3: a(f"v_add_u32 v{BA}, 32768, v{BA}")
    a(f"s_lshl_b32 s{sA}, s{sW}, 12\nv_add_u32 v{BA+1}, {H_K}, v{L16}\nv_add_u32 v{GA}, s{sA}, v{BA+1}\ns_waitcnt vmcnt(8)")
    def c_put(r):
        for tt in range(4): a(f"ds_write_b128 v{GA}, {ar(ACW+8*tt+4*r,4)} offset:{1024*tt}")
    def c_get(r):
        for tile in range(16): a(f"ds_read_b128 {ar(8*tile+4*r,4)}, v{BA+1} offset:{1024*tile}")
    TT, LE, LM = 128, 136, 144
    unpack8(a, LE, LR); unpack8(a, LM, LR + 4); unpack8(a, TT, LI)
    for j in range(8): a(f"v_mov_b32 v{A2+j}, v{LE+j}\nv_mov_b32 v{B2+j}, v{LM+j}")
    dtprep(a, A2, B2, TT, 8)
    pw(a, LR, LI, A2, B2, None, 8, TT)
    for j in range(8):
        a(f"""
        v_mul_f32 v{TT}, v{LE+j}, v{LE+j}
        v_fmac_f32 v{TT}, v{LM+j}, v{LM+j}
        v_rcp_f32 v{TT}, v{TT}
        v_add_f32 v{TT+1}, -1.0, v{LR+j}
        v_mul_f32 v{TT+2}, v{TT+1}, v{LE+j}
        v_fmac_f32 v{TT+2}, v{LI+j}, v{LM+j}
        v_mul_f32 v{TT+3}, v{LI+j}, v{LE+j}
        v_fma_f32 v{TT+3}, -v{TT+1}, v{LM+j}, v{TT+3}
        v_mul_f32 v{LE+j}, v{TT+2}, v{TT}
        v_mul_f32 v{LM+j}, v{TT+3}, v{TT}
        """)
    for d in (1, 2, 4, 8):
        dp = f"row_shr:{d} row_mask:0xf bank_mask:0xf bound_ctrl:1"
        for j in range(2):
            R, I = RI + 16 * j, RI + 16 * j + 8
            for c in range(8): a(f"v_mov_b32 v{TT+c}, v{R+c}")
            for c in range(8): a(f"v_fmac_f32_dpp v{R+c}, v{R+c}, v{LR+c} {dp}")
            for c in range(8): a(f"v_fmac_f32_dpp v{R+c}, -v{I+c}, v{LI+c} {dp}")
            for c in range(8): a(f"v_fmac_f32_dpp v{I+c}, v{I+c}, v{LR+c} {dp}")
            for c in range(8): a(f"v_fmac_f32_dpp v{I+c}, v{TT+c}, v{LI+c} {dp}")
        if d < 8:
            for c in range(8):
                a(f"v_mul_f32 v{TT}, v{LI+c}, v{LI+c}\nv_add_f32 v{TT+1}, v{LR+c}, v{LR+c}\nv_fma_f32 v{LR+c}, v{LR+c}, v{LR+c}, -v{TT}\nv_mul_f32 v{LI+c}, v{TT+1}, v{LI+c}")
    a(f"v_and_b32 v{T+2}, 15, v{LANE}\nv_add_u32 v{T+2}, 1, v{T+2}\nv_cvt_f32_u32 v{T+2}, v{T+2}")
    pw(a, LR, LI, A2, B2, f"v{T+2}", 8, TT)
    dp = "row_bcast:15 row_mask:0xa bank_mask:0xf"
    for j in range(2):
        R, I = RI + 16 * j, RI + 16 * j + 8
        for c in range(8): a(f"v_fmac_f32_dpp v{R+c}, v{R+c}, v{LR+c} {dp}")
        for c in range(8): a(f"v_fmac_f32_dpp v{R+c}, -v{I+c}, v{LI+c} {dp}")
        for c in range(8): a(f"v_fmac_f32_dpp v{I+c}, v{I+c}, v{LR+c} {dp}")
        for c in range(8): a(f"v_fmac_f32_dpp v{I+c}, v{R+c}, v{LI+c} {dp}")
    a(f"""
    s_lshl_b32 s{sA}, s{sW}, 7
    s_add_u32 s{sA}, s{sA}, {H_E}
    v_lshl_add_u32 v{T+2}, v{HH}, 5, s{sA}
    s_mov_b32 exec_lo, 0x80000000
    s_mov_b32 exec_hi, 0x80000000
    """)
    for j in range(2):
        for q in range(4): a(f"ds_write_b128 v{T+2}, {vr(RI + 16*j + 4*q, 4)} offset:{512*j + 64*(q>>1) + 16*(q&1)}")
    a("s_mov_b64 exec, -1")
    a(f"v_lshlrev_b32 v{CA}, 16, v{CA}\nv_lshlrev_b32 v{CB}, 16, v{CB}\nv_lshlrev_b32 v{CD}, 16, v{CD}")
    dtprep(a, CA, CB, CD, 1)
    U, W_ = 196, 198
    pw(a, U, U + 1, CA, CB, "0x42000000", 1, CD)
    pw(a, W_, W_ + 1, CA, CB, "0x43800000", 1, CD)
    a(f"v_add_u32 v{T+2}, 1, v{VN}\nv_cvt_f32_u32 v{T+2}, v{T+2}")
    pw(a, LR, LI, A2, B2, f"v{T+2}", 8, TT)
    EE = 200
    a(f"v_lshlrev_b32 v{T}, 2, v{T}\nv_add_u32 v{T+2}, {H_E}, v{T}\ns_waitcnt vmcnt(0)")
    c_put(0); a("s_waitcnt lgkmcnt(0)\ns_barrier")
    c_get(0); a("s_waitcnt lgkmcnt(0)\ns_barrier")
    c_put(1); a("s_waitcnt lgkmcnt(0)\ns_barrier")
    c_get(1); a("s_waitcnt lgkmcnt(0)\ns_barrier")
    for s_ in range(8): a(f"ds_read2_b32 {vr(EE+2*s_,2)}, v{T+2} offset0:{32*s_} offset1:{32*s_+16}")
    AC_ = 216
    def cmac(M_, Er):
        a(f"""
        v_fma_f32 v{AC_+2}, v{M_}, v{AC_}, v{Er}
        v_fma_f32 v{AC_+3}, v{M_}, v{AC_+1}, v{Er+1}
        v_fma_f32 v{AC_+2}, -v{M_+1}, v{AC_+1}, v{AC_+2}
        v_fma_f32 v{AC_+1}, v{M_+1}, v{AC_}, v{AC_+3}
        v_mov_b32 v{AC_}, v{AC_+2}
        """)
    a(f"s_waitcnt lgkmcnt(0)\nv_mov_b32 v{AC_}, v{EE}\nv_mov_b32 v{AC_+1}, v{EE+1}")
    for s_ in range(1, 8): cmac(U, EE + 2 * s_)
    a(f"""
    v_min_u32 v{AC_}, -2, v{AC_}
    v_min_u32 v{AC_+1}, -2, v{AC_+1}
    v_lshlrev_b32 v{T+1}, 1, v{T}
    s_lshl_b32 s{sA3}, s{sH}, 7
    s_add_u32 s{sA3}, s{sA3}, {WS_A}
    s_lshl_b32 s{sA}, s{sB}, 12
    s_add_u32 s{sA}, s{sA}, s{sA3}
    s_cmp_eq_u32 s{sW}, 0
    s_cselect_b32 s{sA}, s{sA}, 0x70000000
    buffer_store_dwordx2 {vr(AC_,2)}, v{T+1}, {WS}, s{sA} offen sc1
    v_and_b32 v{T+2}, 7, v{LANE}
    v_cmp_ge_u32 {sr(sM,2)}, s{sB}, v{T+2}
    v_lshlrev_b32 v{T+2}, 2, v{T+2}
    v_mov_b32 v{AC_}, 0
    v_mov_b32 v{AC_+1}, 0
    s_mov_b32 s{sCnt}, 0
    """)
    a.label('L_h_wk')
    a(f"""
    buffer_load_dword v{AC_+2}, v{T+2}, {DBG}, 0 offen offset:{DBG_DN + DBG_KV0} sc1
    s_waitcnt vmcnt(0)
    v_cmp_gt_u32 vcc, 32, v{AC_+2}
    s_and_b64 vcc, vcc, {sr(sM,2)}
    s_cbranch_vccz L_h_wa
    """)
    poll_fail(a, 'L_h_wk')
    a.label('L_h_wa')
    a(f"""
    s_cmp_ge_u32 s{sCnt}, s{sB}
    s_cbranch_scc1 L_h_wd
    buffer_load_dwordx2 {vr(220,2)}, v{T+1}, {WS}, s{sA3} offen sc1
    s_waitcnt vmcnt(0)
    v_max_u32 v{AC_+2}, v220, v221
    v_cmp_eq_u32 vcc, -1, v{AC_+2}
    s_cbranch_vccz L_h_wb
    """)
    poll_fail(a, 'L_h_wa')
    a.label('L_h_wb')
    cmac(W_, 220)
    a(f"s_add_u32 s{sCnt}, s{sCnt}, 1\ns_add_u32 s{sA3}, s{sA3}, 4096\ns_branch L_h_wa")
    a.label('L_h_wd')
    a(f"s_lshl_b32 s{sA}, s{sW}, 10\ns_add_u32 s{sA}, s{sA}, {H_C}\nv_add_u32 v{T+2}, s{sA}, v{T}")
    for s_ in range(8):
        a(f"ds_write2_b32 v{T+2}, v{AC_}, v{AC_+1} offset0:{32*s_} offset1:{32*s_+16}")
        if s_ < 7: cmac(U, EE + 2 * s_)
    a(f"""
    s_lshl_b32 s{sA2}, s{sW}, 7
    s_add_u32 s{sA}, s{sA}, s{sA2}
    v_lshl_add_u32 v{T+2}, v{HH}, 5, s{sA}
    s_waitcnt lgkmcnt(0)
    """)
    CC = 192
    for j in range(2):
        for q in range(4): a(f"ds_read_b128 {vr(CC + 16*j + 4*q, 4)}, v{T+2} offset:{512*j + 64*(q>>1) + 16*(q&1)}")
    a(f"v_add_f32 v{T}, v{G}, v{G}\nv_add_f32 v{T+1}, v{MX}, v{MX}\ns_waitcnt lgkmcnt(0)")
    for j in range(2):
        R, I, cr, ci = RI + 16 * j, RI + 16 * j + 8, CC + 16 * j, CC + 16 * j + 8
        for c in range(8):
            a(f"""
            v_fmac_f32 v{R+c}, v{LR+c}, v{cr+c}
            v_fmac_f32 v{I+c}, v{LR+c}, v{ci+c}
            v_fma_f32 v{R+c}, -v{LI+c}, v{ci+c}, v{R+c}
            v_fmac_f32 v{I+c}, v{LI+c}, v{cr+c}
            v_mul_f32 v{cr+c}, v{R+c}, v{LE+c}
            v_mul_f32 v{ci+c}, v{R+c}, v{LM+c}
            v_fma_f32 v{cr+c}, -v{I+c}, v{LM+c}, v{cr+c}
            v_fmac_f32 v{ci+c}, v{I+c}, v{LE+c}
            v_mul_f32 v{cr+c}, v{cr+c}, v{T+j}
            v_mul_f32_e64 v{ci+c}, -v{ci+c}, v{T+j}
            """)
        for r in range(8): a(f"v_cvt_pk_bf16_f32 v{HF+8*j+r}, v{cr+2*r}, v{cr+2*r+1}")
    for r in range(8): a(f"v_accvgpr_write_b32 a{PH+r}, v{HF+8+r}")
    a(f"""
    v_bfe_u32 v{t+4}, v{LANE}, 2, 2
    v_bfe_u32 v{t+5}, v{LANE}, 4, 1
    v_and_b32 v{t+6}, 1, v{LANE}
    v_bfe_u32 v{t+7}, v{LANE}, 1, 1
    v_lshl_add_u32 v{t+8}, v{t+6}, 1, v{t+7}
    v_lshl_add_u32 v{t+8}, v{t+5}, 2, v{t+8}
    v_lshlrev_b32 v{t+8}, 3, v{t+8}
    v_lshl_add_u32 v{t+9}, v{HH}, 4, v{t+4}
    v_lshl_add_u32 v{t+8}, v{t+9}, 10, v{t+8}
    v_lshl_add_u32 v{WOA}, v{t+4}, 6, v{t+8}
    """)
    for tt in range(1, 4): a(f"v_xor_b32 v{WOA+tt}, {64*tt}, v{WOA}")
    for tt in range(4): a(f"v_add_u32 v{WOA+4+tt}, 0x10000, v{WOA+tt}")
    a(f"s_mov_b32 s{sJ}, 0")
    MINI = P.get('mini', 1)
    if MINI:
        a(f"""
        s_cmp_lg_u32 s{sB}, 7
        s_cbranch_scc1 L_h_nsd
        s_lshl_b32 s{sA2}, s{sW}, 5
        s_add_u32 s{sA2}, s{sA2}, s{sH}
        s_mul_i32 s{sA2}, s{sA2}, {23*1024}
        s_add_u32 s{sA2}, s{sA2}, {WS_ST}
        """)
        for q in range(23):
            a(f"buffer_store_dwordx4 {ar(128+4*q,4)}, v{L16}, {WS}, s{sA2} offen offset:{1024*(q&3)} sc1")
            if q & 3 == 3: a(f"s_add_u32 s{sA2}, s{sA2}, 4096")
        signal('d', DBG_ST, '0', 0)
    hs(5)
    a.label('L_h_seg')
    KMF, VMF, SM, PX, PM, OA_ = 32, 64, 80, 248, 128, 192
    a(f"v_max3_f32 v{MX}, v{SS}, v{SS+1}, v{SS+2}")
    for r in range(3, 15, 2): a(f"v_max3_f32 v{MX}, v{MX}, v{SS+r}, v{SS+r+1}")
    a(f"""
    v_max_f32 v{MX}, v{MX}, v{SS+15}
    s_lshl_b32 s{sA}, s{sSeg}, 17
    s_lshl_b32 s{sA2}, s{sH}, 12
    s_add_u32 s{sA}, s{sA}, s{sA2}
    s_add_u32 s{sA}, s{sA}, {WS_KM}
    s_sub_u32 s{sA2}, s{sSeg}, {P.get('pm0', 0)}
    s_cmp_lt_u32 s{sA2}, {48 - P.get('pm0', 0)}
    s_cselect_b32 s{sA2}, {P.get('pm', 7)}, {P.get('pm6', 3)}
    s_cmp_lt_u32 s{sSeg}, 56
    s_cselect_b32 s{sA2}, s{sA2}, {P.get('pm7', 3)}
    s_cmp_lt_u32 s{sSeg}, 60
    s_cselect_b32 s{sA2}, s{sA2}, 0
    s_or_b32 s{sA2}, s{sA2}, s{sSeg}
    s_min_u32 s{sA2}, s{sA2}, 62
    s_sub_i32 s{sA2}, s{sA2}, s{sSeg}
    s_lshl_b32 s{sA2}, s{sA2}, 17
    s_add_u32 s{sA2}, s{sA}, s{sA2}
    s_mov_b32 s{sA4}, 0x3e0293ee
    s_lshl_b32 s{sA3}, s{sW}, 12
    s_add_u32 s{sA3}, s{sA3}, {H_K}
    v_add_u32 v{T+1}, s{sA3}, v{L16}
    v_add_u32 v{T+2}, 2048, v{VKM}
    """)
    for tau in range(4): a(f"v_mov_b64 {vr(VMF + 4*tau + 2, 2)}, 0")
    a(f"v_mov_b64 {vr(PM+2,2)}, 0")
    a.label('L_h_pr')
    a(f"""
    buffer_load_dword v{T}, off, {WS}, s{sA2} offset:3072 sc1
    s_waitcnt vmcnt(0)
    v_cmp_eq_u32 vcc, -1, v{T}
    s_cbranch_vccz L_h_ld
    """)
    poll_fail(a, 'L_h_pr')
    a.label('L_h_pf')
    a(f"s_add_u32 s{sSpin}, s{sSpin}, 1\ns_cmp_gt_u32 s{sSpin}, {HSPIN}\ns_cbranch_scc1 L_end")
    a.label('L_h_ld')
    LD = 192
    for k in range(4): a(f"buffer_load_dwordx4 {vr(LD + 4*k, 4)}, v{L16}, {WS}, s{sA} offen offset:{1024*k} sc1")
    a("s_waitcnt vmcnt(0)")
    hs(6)
    for k in range(4): a(f"ds_write_b128 v{T+1}, {vr(LD + 4*k, 4)} offset:{1024*k}")
    a(f"v_max3_u32 v{T}, v{LD}, v{LD+1}, v{LD+2}")
    for r in range(3, 15, 2): a(f"v_max3_u32 v{T}, v{T}, v{LD+r}, v{LD+r+1}")
    a(f"v_max_u32 v{T}, v{T}, v{LD+15}\nv_cmp_eq_u32 vcc, -1, v{T}\ns_cbranch_vccnz L_h_pf")
    for k in range(8):
        o = ((k >> 1) & 1) * 128 + (k & 1) * 32
        a(f"ds_read2_b64 {vr(KMF + 4*k, 4)}, v{VKM if k < 4 else T+2} offset0:{o} offset1:{o+16}")
    for tau in range(4): a(f"ds_read2st64_b32 {vr(VMF + 4*tau, 2)}, v{VVM} offset0:{4*tau} offset1:{4*tau+2}")
    for k in range(8):
        a(f"s_waitcnt lgkmcnt({11-k})")
        mf(a, vr(SM, 16), vr(KMF + 4 * k, 4), vr(QF + 4 * k, 4), vr(SM, 16) if k else 0)
    a("s_waitcnt lgkmcnt(0)\ns_nop 11")
    a(f"""
    v_max3_f32 v{T}, v{MX}, v{SM}, v{SM+1}
    v_max3_f32 v{T}, v{T}, v{SM+2}, v{SM+3}
    v_mov_b32 v{T+1}, v{T}
    s_nop 1
    v_permlane32_swap_b32 v{T}, v{T+1}
    v_max_f32 v{T}, v{T}, v{T+1}
    v_mul_f32 v{T}, s{sA4}, v{T}
    """)
    ev = [SM + r for r in range(4)] + [SS + r for r in range(16)]
    for r in ev: a(f"v_fma_f32 v{r}, v{r}, s{sA4}, -v{T}")
    for r in ev: a(f"v_exp_f32 v{r}, v{r}")
    a(f"v_cvt_pk_bf16_f32 v{PM}, v{SM}, v{SM+1}\nv_cvt_pk_bf16_f32 v{PM+1}, v{SM+2}, v{SM+3}")
    for r in range(8): a(f"v_cvt_pk_bf16_f32 v{PX+r}, v{SS+2*r}, v{SS+2*r+1}")
    sm = [f"v_add_f32 v{T}, v{ev[0]}, v{ev[1]}"] + [f"v_add_f32 v{T}, v{T}, v{r}" for r in ev[2:]]
    sm += [f"v_mov_b32 v{T+1}, v{T}", f"v_sub_f32 v{T+2}, 1.0, v{G}", "s_nop 0", f"v_permlane32_swap_b32 v{T}, v{T+1}", f"v_add_f32 v{T}, v{T}, v{T+1}",
           f"v_rcp_f32 v{T}, v{T}", "s_nop 0", f"v_mul_f32 v{T}, v{T}, v{T+2}"]
    WF = 32
    wrd = lambda tile: [f"ds_read_b64_tr_b16 {vr(WF + 32*(tile&1) + 4*k + 2*pp, 2)}, v{WOA + 4*(k>>2) + (tile&3)} offset:{(32*((k>>1)&1) + 8*(k&1) + 4*pp)*1024 + 256*(tile>>2)}"
                        for k in range(8) for pp in range(2)]
    rd = wrd(0)
    OB = [192, 208, 132, 148]
    OB = [192, 208, 132, 80]
    def onorm(tau):
        L_ = [f"v_mul_f32 v{OB[tau]+r}, v{OB[tau]+r}, v{T}" for r in range(16)]
        L_ += [f"v_cvt_pk_bf16_f32 v{QF+8*tau+r}, v{OB[tau]+2*r}, v{OB[tau]+2*r+1}" for r in range(8)]
        return L_
    n = 0
    for tau in range(4):
        D = vr(OB[tau], 16)
        for k in range(3):
            if k == 0: mf(a, D, vr(VMF + 4 * tau, 4), vr(PM, 4), 0)
            else: mf(a, D, vr(VF + 8 * tau + 4 * (k - 1), 4), vr(PX + 4 * (k - 1), 4), D)
            for _ in range(2):
                if rd: a(rd.pop(0))
            if n == 6: sm += onorm(0)
            if n == 9: sm += onorm(1)
            for _ in range(6):
                if sm: a(sm.pop(0))
            n += 1
    for l in sm + onorm(2) + onorm(3): a(l)
    hs(7)
    a(f"""
    s_lshl_b32 s{sA}, s{sSeg}, 20
    s_lshl_b32 s{sA2}, s{sH}, 10
    s_add_u32 s{sA}, s{sA}, s{sA2}
    s_add_u32 s{sA}, s{sA}, {WS_PART}
    """)
    CT = 128
    def epi(tile):
        D = 192 + 16 * (tile & 1); c = CT + 8 * (tile & 1)
        L_ = []
        for u in range(2):
            L_ += [f"v_cvt_pk_bf16_f32 v{c+4*u+r}, v{D+8*u+2*r}, v{D+8*u+2*r+1}\nv_min_u32 v{c+4*u+r}, -2, v{c+4*u+r}" for r in range(4)]
        for u in range(2):
            L_ += [f"buffer_store_dwordx4 {vr(c+4*u,4)}, v{L16}, {WS}, s{sA} offen sc1\ns_add_u32 s{sA}, s{sA}, 32768"]
        return L_
    for tile in range(16):
        D = vr(192 + 16 * (tile & 1), 16)
        rd = wrd(tile + 1) if tile < 15 else []
        ep = epi(tile - 1) if tile else []
        for k in range(10):
            if k == 2: a("s_waitcnt lgkmcnt(0)")
            if k < 2: mf(a, D, ar(8 * tile + 4 * k, 4), vr(HF + 4 * k, 4), D if k else 0)
            else: mf(a, D, vr(WF + 32 * (tile & 1) + 4 * (k - 2), 4), vr(QF + 4 * (k - 2), 4), D)
            if k >= 2:
                for _ in range(2):
                    if rd: a(rd.pop(0))
            if ep and k >= 6 and len(ep) <= 2: a(ep.pop(0))
            elif ep and k >= 1 and len(ep) > 2:
                a(ep.pop(0)); a(ep.pop(0))
        assert not ep and not rd
    a("s_nop 12")
    for l in epi(15): a(l)
    hs(8)
    a(f"""
    s_lshl_b32 s{sA4}, s{sSeg}, 7
    s_add_u32 s{sA4}, s{sA4}, {WS_CNT}
    v_mov_b32 v220, 1
    """)
    if MINI: a(f"s_cmp_eq_u32 s{sB}, 7\ns_cselect_b32 s{sJ}, 3, s{sJ}\ns_cbranch_scc1 L_h_s7")
    a(f"s_cmp_lg_u32 s{sJ}, 0\ns_cbranch_scc1 L_h_sg")
    for r in range(32): a(f"v_accvgpr_read_b32 v{QF+r}, a{PQ+r}\nv_accvgpr_read_b32 v{VF+r}, a{PV+r}")
    for r in range(16): a(f"v_accvgpr_read_b32 v{SS+r}, a{PS+r}")
    for r in range(8): a(f"v_accvgpr_read_b32 v{HF+r}, a{PH+r}")
    a.label('L_h_sg')
    a(f"""
    v_accvgpr_read_b32 v{T}, a{PG}
    v_accvgpr_write_b32 a{PG}, v{G}
    s_xor_b32 s{sSeg}, s{sSeg}, 4
    s_add_u32 s{sJ}, s{sJ}, 1
    v_mov_b32 v{G}, v{T}
    {'' if P.get('sg', 1) else 'L_h_s7:'}
    s_waitcnt vmcnt(0)
    s_mov_b64 exec, 1
    buffer_atomic_add v220, off, {WS}, s{sA4}
    s_mov_b64 exec, -1
    s_cmp_eq_u32 s{sJ}, 1
    s_cbranch_scc1 L_h_seg
    {'L_h_s7:' if P.get('sg', 1) else ''}
    s_waitcnt vmcnt(0)
    """)
    SELR, XS, DS_ = 216, 208, 212
    XU, DU = 224, 232
    def red_prep(SELR, DS_):
        a(f"""
        s_lshl_b32 s{sA2}, s{sH}, 5
        v_lshlrev_b32 v{T+1}, 4, v{HH}
        v_lshl_add_u32 v{T+2}, v{VN}, 10, v{T+1}
        v_add_u32 v{T+1}, s{sA2}, v{T+1}
        global_load_dwordx4 {vr(DS_,4)}, v{T+1}, {sr(P_DSK,2)}
        v_lshlrev_b32 v{MX}, 1, v{T+2}
        v_bfe_u32 v{t}, v{LANE}, 2, 1
        v_bfe_u32 v{t+1}, v{LANE}, 3, 2
        v_and_b32 v{t+2}, 3, v{LANE}
        v_lshl_add_u32 v{t+1}, v{t+1}, 2, v{t+2}
        v_cmp_eq_u32 vcc, v{t}, v{HH}
        v_mov_b32 v{t+3}, 64
        s_mov_b32 s{sA2}, 0x3f80
        v_cndmask_b32 v{t+1}, v{t+3}, v{t+1}, vcc
        v_and_b32 v{t+2}, 1, v{t+1}
        v_lshlrev_b32 v{t+2}, 4, v{t+2}
        v_lshlrev_b32 v{t+2}, v{t+2}, s{sA2}
        v_lshrrev_b32 v{t+1}, 1, v{t+1}
        """)
        for d in range(4): a(f"v_cmp_eq_u32 vcc, {d}, v{t+1}\ns_nop 1\nv_cndmask_b32 v{SELR+d}, 0, v{t+2}, vcc")
    red_prep(SELR, DS_)
    a.label('L_h_red')
    a(f"""
    s_lshl_b32 s{sA3}, s{sSeg}, 15
    s_lshl_b32 s{sA2}, s{sH}, 5
    s_add_u32 s{sA3}, s{sA3}, s{sA2}
    buffer_load_dwordx4 {vr(XS,4)}, v{T+2}, {sr(S_X,4)}, s{sA3} offen
    s_lshl_b32 s{sA4}, s{sSeg}, 7
    s_add_u32 s{sA4}, s{sA4}, {WS_CNT}
    s_lshl_b32 s{sA}, s{sSeg}, 20
    s_lshl_b32 s{sA2}, s{sH}, 15
    s_add_u32 s{sA}, s{sA}, s{sA2}
    s_add_u32 s{sA}, s{sA}, {WS_PART}
    s_lshl_b32 s{sA3}, s{sA3}, 1
    v_lshlrev_b32 v221, 10, v{VN}
    s_cmp_ge_u32 s{sSeg}, {56 if P.get('sg', 1) else 64}
    s_cbranch_scc1 L_h_rf
    """)
    a.label('L_h_wc')
    a(f"""
    buffer_load_dword v220, off, {WS}, s{sA4} sc1
    s_waitcnt vmcnt(0)
    v_cmp_gt_u32 vcc, 32, v220
    s_cbranch_vccz L_h_rd
    """)
    poll_fail(a, 'L_h_wc', P.get('slc', 2))
    a.label('L_h_rf')
    a(f"""
    s_mov_b64 exec, 0xffffffff
    buffer_load_dword v220, v221, {WS}, s{sA} offen offset:1020 sc1
    s_add_u32 s{sSpin}, s{sSpin}, 1
    s_cmp_gt_u32 s{sSpin}, {HSPIN}
    s_cbranch_scc1 L_end
    s_waitcnt vmcnt(0)
    v_cmp_eq_u32 vcc, -1, v220
    s_mov_b64 exec, -1
    s_cbranch_vccz L_h_rd
    s_sleep 2
    s_branch L_h_rf
    """)
    a.label('L_h_rd')
    hs(9)
    for k in range(32):
        if k & 3 == 0: a(f"s_add_u32 s{sA2}, s{sA}, {1024*k}")
        a(f"buffer_load_dwordx4 {vr(32+4*k,4)}, v{L16}, {WS}, s{sA2} offen offset:{1024*(k&3)} sc1")
    a("s_waitcnt vmcnt(32)")
    unpack8(a, XU, XS); unpack8(a, DU, DS_)
    for r in range(8): a(f"v_mul_f32 v{XU+r}, v{XU+r}, v{DU+r}")
    a(f"v_mov_b32 v{T}, 0")
    for k in range(32):
        a(f"s_waitcnt vmcnt({31-k})")
        mf(a, vr(192, 16), vr(SELR, 4), vr(32 + 4 * k, 4), vr(192, 16) if k else 0)
        a(f"v_max3_u32 v{T}, v{T}, v{32+4*k}, v{33+4*k}\nv_max3_u32 v{T}, v{T}, v{34+4*k}, v{35+4*k}")
    a(f"v_cmp_eq_u32 vcc, -1, v{T}\ns_cbranch_vccnz L_h_rf\ns_nop 7")
    for r in range(8): a(f"v_fmac_f32 v{192+r}, v{XU+r}, v{G}")
    OF = P.get('of', '')
    a(f"""
    buffer_store_dwordx4 v[192:195], v{MX}, {sr(S_OUT,4)}, s{sA3} offen {OF}
    buffer_store_dwordx4 v[196:199], v{MX}, {sr(S_OUT,4)}, s{sA3} offen offset:16 {OF}
    v_accvgpr_read_b32 v{G}, a{PG}
    s_xor_b32 s{sSeg}, s{sSeg}, 4
    s_add_u32 s{sJ}, s{sJ}, 1
    s_cmp_eq_u32 s{sJ}, 3
    s_cbranch_scc1 L_h_red
    """)
    a.label('L_h_done')
    if P.get('stat'):
        a("s_waitcnt vmcnt(0)"); hs(10); a("s_waitcnt lgkmcnt(0)")
        for k in range(11): a(f"v_mov_b32 v{32+k}, s{74+2*k}")
        a(f"v_mov_b32 v43, s98\ns_lshl_b32 s{sA}, s{sB}, 5\ns_add_u32 s{sA}, s{sA}, s{sH}\ns_lshl_b32 s{sA}, s{sA}, 2\ns_add_u32 s{sA}, s{sA}, s{sW}\ns_lshl_b32 s{sA}, s{sA}, 6\ns_add_u32 s{sA}, s{sA}, {(49 << 20) + (512 << 10)}\ns_mov_b64 exec, 1")
        for q in range(3): a(f"buffer_store_dwordx4 {vr(32+4*q,4)}, v{L16}, {WS}, s{sA} offen offset:{16*q}")
        a("s_mov_b64 exec, -1")
    a(f"""
    s_cmp_ge_u32 s{sB}, 2
    s_cbranch_scc1 {'L_h_mini' if MINI else 'L_end'}
    {'s_sub_u32 s%d, 7, s%d' % (sB, sB) if P.get('r2', 0) else 's_add_u32 s%d, s%d, 6' % (sB, sB)}
    s_waitcnt vmcnt(0)
    s_branch L_h_again
    """)
    if not MINI: return
    a.label('L_h_mini')
    a(f"""
    s_sub_u32 s{sA3}, s{sB}, 2
    s_cmp_ge_u32 s{sA3}, 4
    s_cbranch_scc1 L_end
    s_add_u32 s{sSeg}, s{sB}, 58
    s_add_u32 s{sB}, s{sB}, 6
    s_mov_b32 s{sSpin}, 0
    s_lshl_b32 s{sA}, s{sW}, 8
    """)
    AQ, AV, AH, AC_2 = 128, 160, 192, ACW
    for i in range(8): a(f"v_add_u32 v{WOA+i}, s{sA}, v{WOA+i}")
    for tt in range(4):
        for k in range(8):
            for pp in range(2): a(f"ds_read_b64_tr_b16 {ar(32*tt + 4*k + 2*pp, 2)}, v{WOA + 4*(k>>2) + tt} offset:{(32*((k>>1)&1) + 8*(k&1) + 4*pp)*1024}")
    SELM, XM = 20, 24
    a("s_waitcnt lgkmcnt(0)")
    red_prep(SELM, 244)
    a(f"""
    s_lshl_b32 s{sWoo}, s{sSeg}, 15
    s_lshl_b32 s{sA2}, s{sH}, 5
    s_add_u32 s{sWoo}, s{sWoo}, s{sA2}
    buffer_load_dwordx4 v[240:243], v{T+2}, {sr(S_X,4)}, s{sWoo} offen
    s_lshl_b32 s{sWoo}, s{sWoo}, 1
    s_lshl_b32 s{sA}, s{sW}, 4
    v_add_u32 v{VKV}, s{sA}, v{MX}
    s_cmp_lg_u32 s{sW}, 0
    s_cbranch_scc1 L_m_st
    """)
    a.label('L_m_w0')
    a(f"buffer_load_dword v{T}, off, {DBG}, 0 offset:{DBG_DN + DBG_ST} sc1\ns_waitcnt vmcnt(0)\nv_cmp_eq_u32 vcc, 0, v{T}\ns_cbranch_vccz L_m_st")
    poll_fail(a, 'L_m_w0', 16)
    a.label('L_m_st')
    a(f"""
    s_waitcnt vmcnt(0)
    s_barrier
    s_lshl_b32 s{sA2}, s{sA3}, 5
    s_add_u32 s{sA2}, s{sA2}, s{sH}
    s_mul_i32 s{sA2}, s{sA2}, {23*1024}
    s_add_u32 s{sA2}, s{sA2}, {WS_ST}
    """)
    for q in range(23):
        dst = ar(AQ + 4 * q, 4) if q < 16 else vr(SS + 4 * (q - 16), 4) if q < 20 else ar(AH + 4 * (q - 20), 4) if q < 22 else vr(248, 4)
        a(f"buffer_load_dwordx4 {dst}, v{L16}, {WS}, s{sA2} offen offset:{1024*(q&3)} sc1")
        if q & 3 == 3: a(f"s_add_u32 s{sA2}, s{sA2}, 4096")
    unpack8(a, 32, 240); unpack8(a, 40, 244)
    for r in range(8): a(f"v_mul_f32 v{32+r}, v{32+r}, v{40+r}")
    a(f"s_bitcmp1_b32 s{sW}, 0\ns_cselect_b64 vcc, -1, 0\ns_mov_b32 s{sA4}, 0x3e0293ee\ns_waitcnt vmcnt(0)\nv_mov_b32 v{G}, v248")
    for r in range(4): a(f"v_cndmask_b32 v{XM+r}, v{32+r}, v{36+r}, vcc")
    for r in range(4): a(f"v_mul_f32 v{XM+r}, v{XM+r}, v{G}")
    LX = XA
    a(f"v_max3_f32 v{MX}, v{SS}, v{SS+1}, v{SS+2}")
    for r in range(3, 15, 2): a(f"v_max3_f32 v{MX}, v{MX}, v{SS+r}, v{SS+r+1}")
    a(f"""
    v_max_f32 v{MX}, v{MX}, v{SS+15}
    v_mov_b32 v{T+1}, v{MX}
    s_nop 1
    v_permlane32_swap_b32 v{MX}, v{T+1}
    v_max_f32 v{MX}, v{MX}, v{T+1}
    v_mul_f32 v{T}, s{sA4}, v{MX}
    """)
    for r in range(16): a(f"v_fma_f32 v{SS+r}, v{SS+r}, s{sA4}, -v{T}")
    for r in range(16): a(f"v_exp_f32 v{SS+r}, v{SS+r}")
    for r in range(8): a(f"v_cvt_pk_bf16_f32 v{248+r}, v{SS+2*r}, v{SS+2*r+1}")
    a(f"v_add_f32 v{LX}, v{SS}, v{SS+1}")
    for r in range(2, 16): a(f"v_add_f32 v{LX}, v{LX}, v{SS+r}")
    for tau in range(4):
        for u in range(2): mf(a, vr(32 + 16 * tau, 16), ar(AV + 8 * tau + 4 * u, 4), vr(248 + 4 * u, 4), vr(32 + 16 * tau, 16) if u else 0)
    a("s_nop 12")
    for r in range(32): a(f"v_cvt_pk_bf16_f32 v{96+r}, v{32+2*r}, v{33+2*r}")
    YC, YX = 96, 160
    a("s_nop 1")
    for tt in range(4):
        for k in range(8): mf(a, vr(YX + 16 * tt, 16), ar(32 * tt + 4 * k, 4), vr(96 + 4 * k, 4), vr(YX + 16 * tt, 16) if k else 0)
    a("s_nop 7")
    for tt in range(4):
        for k in range(2): mf(a, vr(YC + 16 * tt, 16), ar(AC_2 + 8 * tt + 4 * k, 4), ar(AH + 4 * k, 4), vr(YC + 16 * tt, 16) if k else 0)
    PMm, LDm = 240, 244
    a(f"""
    s_lshl_b32 s{sA}, s{sSeg}, 17
    s_lshl_b32 s{sA2}, s{sH}, 12
    s_add_u32 s{sA}, s{sA}, s{sA2}
    s_add_u32 s{sA}, s{sA}, {WS_KM}
    s_cmp_ge_u32 s{sSeg}, {P.get('mfp', 63)}
    s_cselect_b32 s{sA2}, {1 << 17}, 0
    s_sub_u32 s{sA2}, s{sA}, s{sA2}
    s_lshl_b32 s{sA3}, s{sW}, 10
    s_add_u32 s{sA}, s{sA}, s{sA3}
    s_add_u32 s{sA3}, s{sA3}, {H_K}
    v_add_u32 v{XA+1}, s{sA3}, v{L16}
    s_lshl_b32 s{sA3}, s{sW}, 12
    v_subrev_u32 v{VKM}, s{sA3}, v{VKM}
    v_subrev_u32 v{VVM}, s{sA3}, v{VVM}
    v_add_u32 v{T+2}, 2048, v{VKM}
    v_sub_f32 v{G}, 1.0, v{G}
    s_lshl_b32 s{sWo1}, s{sSeg}, 20
    s_add_u32 s{sWo1}, s{sWo1}, {WS_PART}
    s_lshl_b32 s{sA3}, s{sH}, 15
    s_add_u32 s{sWo2}, s{sWo1}, s{sA3}
    s_lshl_b32 s{sA3}, s{sW}, 13
    s_add_u32 s{sWo2}, s{sWo2}, s{sA3}
    s_add_u32 s{sSlot}, s{sWo2}, 4096
    s_lshl_b32 s{sA3}, s{sH}, 10
    s_add_u32 s{sWo1}, s{sWo1}, s{sA3}
    s_lshl_b32 s{sA3}, s{sW}, 18
    s_add_u32 s{sWo1}, s{sWo1}, s{sA3}
    """)
    for tau in range(4): a(f"v_mov_b64 {vr(VMF + 4*tau + 2, 2)}, 0")
    a(f"v_mov_b64 {vr(PMm+2,2)}, 0")
    a("s_getpc_b64 s[60:61]")
    a.label('L_m_pc')
    a(f"v_lshlrev_b32 v{T}, 3, v{L16}\nv_min_u32 v{T}, L_m_fin-L_m_pc, v{T}\nglobal_load_dword v{T}, v{T}, s[60:61]")
    hs(5)
    a.label('L_m_pr')
    a(f"buffer_load_dword v{T}, off, {WS}, s{sA2} offset:3072 sc1\ns_waitcnt vmcnt(0)\nv_cmp_eq_u32 vcc, -1, v{T}\ns_cbranch_vccz L_m_ld")
    poll_fail(a, 'L_m_pr', P.get('mps', 2))
    a.label('L_m_pf')
    a(f"s_add_u32 s{sSpin}, s{sSpin}, 1\ns_cmp_gt_u32 s{sSpin}, {HSPIN}\ns_cbranch_scc1 L_end")
    a.label('L_m_ld')
    a(f"""
    buffer_load_dwordx4 {vr(LDm,4)}, v{L16}, {WS}, s{sA} offen sc1
    s_waitcnt vmcnt(0)
    ds_write_b128 v{XA+1}, {vr(LDm,4)}
    v_max3_u32 v{T}, v{LDm}, v{LDm+1}, v{LDm+2}
    v_max_u32 v{T}, v{T}, v{LDm+3}
    v_cmp_eq_u32 vcc, -1, v{T}
    s_cbranch_vccnz L_m_pf
    s_waitcnt lgkmcnt(0)
    s_barrier
    """)
    for k in range(8):
        o = ((k >> 1) & 1) * 128 + (k & 1) * 32
        a(f"ds_read2_b64 {vr(KMF + 4*k, 4)}, v{VKM if k < 4 else T+2} offset0:{o} offset1:{o+16}")
    for tau in range(4): a(f"ds_read2st64_b32 {vr(VMF + 4*tau, 2)}, v{VVM} offset0:{4*tau} offset1:{4*tau+2}")
    for k in range(8):
        a(f"s_waitcnt lgkmcnt({11-k})")
        mf(a, vr(SM, 16), vr(KMF + 4 * k, 4), ar(AQ + 4 * k, 4), vr(SM, 16) if k else 0)
    hs(6)
    a(f"""
    s_waitcnt lgkmcnt(0)
    s_nop 11
    v_max3_f32 v{T}, v{MX}, v{SM}, v{SM+1}
    v_max3_f32 v{T}, v{T}, v{SM+2}, v{SM+3}
    v_mov_b32 v{T+1}, v{T}
    s_nop 1
    v_permlane32_swap_b32 v{T}, v{T+1}
    v_max_f32 v{T}, v{T}, v{T+1}
    v_mul_f32 v{T}, s{sA4}, v{T}
    """)
    for r in [SM, SM + 1, SM + 2, SM + 3, MX]: a(f"v_fma_f32 v{r}, v{r}, s{sA4}, -v{T}")
    for r in [SM, SM + 1, SM + 2, SM + 3, MX]: a(f"v_exp_f32 v{r}, v{r}")
    a(f"""
    v_add_f32 v{T}, v{SM}, v{SM+1}
    v_add_f32 v{T+1}, v{SM+2}, v{SM+3}
    v_fmac_f32 v{T}, v{LX}, v{MX}
    v_add_f32 v{T}, v{T}, v{T+1}
    v_mov_b32 v{T+1}, v{T}
    s_nop 1
    v_permlane32_swap_b32 v{T}, v{T+1}
    v_add_f32 v{T}, v{T}, v{T+1}
    v_rcp_f32 v{T}, v{T}
    s_nop 0
    v_mul_f32 v{T}, v{T}, v{G}
    """)
    for r in range(4): a(f"v_mul_f32 v{SM+r}, v{SM+r}, v{T}")
    a(f"v_cvt_pk_bf16_f32 v{PMm}, v{SM}, v{SM+1}\nv_cvt_pk_bf16_f32 v{PMm+1}, v{SM+2}, v{SM+3}\nv_mul_f32 v{MX}, v{MX}, v{T}")
    OBm = [32, 48, 80, 224]; OF = 160
    fm = [f"v_fmac_f32 v{YC+r}, v{YX+r}, v{MX}" for r in range(64)]
    a(fm.pop(0))
    for tau in range(4):
        mf(a, vr(OBm[tau], 16), vr(VMF + 4 * tau, 4), vr(PMm, 4), 0)
        for _ in range(6): a(fm.pop(0))
    for _ in range(7): a(fm.pop(0))
    cvo = lambda tau: [f"v_cvt_pk_bf16_f32 v{OF+8*tau+r}, v{OBm[tau]+2*r}, v{OBm[tau]+2*r+1}" for r in range(8)]
    for l in cvo(0): a(l)
    fill = cvo(1) + cvo(2) + cvo(3) + fm
    a(fill.pop(0)); a(fill.pop(0))
    CTm = 32
    def epim(tt):
        L_ = [f"v_cvt_pk_bf16_f32 v{CTm+8*tt+r}, v{YC+16*tt+2*r}, v{YC+16*tt+2*r+1}\nv_min_u32 v{CTm+8*tt+r}, -2, v{CTm+8*tt+r}" for r in range(8)]
        L_ += [f"buffer_store_dwordx4 {vr(CTm+8*tt+4*u,4)}, v{L16}, {WS}, s{sWo1} offen sc1\ns_add_u32 s{sWo1}, s{sWo1}, 32768" for u in range(2)]
        return L_
    order = [(tt, k) for k in range(8) for tt in range(2)] + [(2, k) for k in range(8)] + [(3, k) for k in range(8)]
    ep = []
    for n, (tt, k) in enumerate(order):
        mf(a, vr(YC + 16 * tt, 16), ar(32 * tt + 4 * k, 4), vr(OF + 4 * k, 4), vr(YC + 16 * tt, 16))
        for _ in range(6):
            if fill: a(fill.pop(0))
        if n == 17: ep += epim(0) + epim(1)
        if n == 25: ep += epim(2)
        for _ in range(3):
            if ep: a(ep.pop(0))
    assert not fill and not ep
    a("s_nop 12")
    for l in epim(3): a(l)
    hs(8)
    a(f"s_lshl_b32 s{sA3}, s{sW}, 11\ns_add_u32 s{sA3}, s{sA3}, {H_K + 4096}\nv_add_u32 v{T+1}, s{sA3}, v{L16}")
    a(f"s_lshl_b32 s{sA3}, s{sW}, 10\ns_add_u32 s{sA3}, s{sA3}, {H_K + 4096}\nv_add_u32 v{T+2}, s{sA3}, v{L16}")
    a(f"v_and_b32 v{MX}, 7, v{LANE}\nv_lshlrev_b32 v{MX}, 10, v{MX}")
    a(f"s_waitcnt vmcnt({P.get('mdr', 0)})")
    a(f"""
    s_cmp_ge_u32 s{sSeg}, {P.get('mth', 60)}
    s_cbranch_scc1 {'L_m_rd' if P.get('mg', 0) else 'L_m_rf'}
    s_barrier
    s_cmp_lg_u32 s{sW}, 0
    s_cbranch_scc1 L_m_c1
    s_lshl_b32 s{sA4}, s{sSeg}, 7
    s_add_u32 s{sA4}, s{sA4}, {WS_CNT}
    v_mov_b32 v{T}, 1
    s_mov_b64 exec, 1
    buffer_atomic_add v{T}, off, {WS}, s{sA4}
    s_mov_b64 exec, -1
    """)
    a.label('L_m_c0')
    a(f"buffer_load_dword v{T}, off, {WS}, s{sA4} sc1\ns_waitcnt vmcnt(0)\nv_cmp_gt_u32 vcc, 32, v{T}\ns_cbranch_vccz L_m_c1")
    poll_fail(a, 'L_m_c0', P.get('slc', 2))
    a.label('L_m_c1')
    a("s_barrier\ns_branch L_m_rd")
    a.label('L_m_rf')
    a(f"""
    s_mov_b64 exec, 0xff
    buffer_load_dword v{T}, v{MX}, {WS}, s{sWo2} offen offset:1020 sc1
    s_add_u32 s{sSpin}, s{sSpin}, 1
    s_cmp_gt_u32 s{sSpin}, {HSPIN}
    s_cbranch_scc1 L_end
    s_waitcnt vmcnt(0)
    v_cmp_eq_u32 vcc, -1, v{T}
    s_mov_b64 exec, -1
    s_cbranch_vccz L_m_rd
    s_sleep {P.get('msl', 1)}
    s_branch L_m_rf
    """)
    a.label('L_m_rd')
    hs(9)
    for k in range(8): a(f"buffer_load_dwordx4 {vr(96+4*k,4)}, v{L16}, {WS}, s{sWo2 if k < 4 else sSlot} offen offset:{1024*(k&3)} sc1")
    a(f"v_mov_b32 v{T}, 0")
    for k in range(8):
        a(f"s_waitcnt vmcnt({7-k})")
        mf(a, vr(64, 16), vr(SELM, 4), vr(96 + 4 * k, 4), vr(64, 16) if k else 0)
        a(f"v_max3_u32 v{T}, v{T}, v{96+4*k}, v{97+4*k}\nv_max3_u32 v{T}, v{T}, v{98+4*k}, v{99+4*k}")
    a(f"""
    v_cmp_eq_u32 vcc, -1, v{T}
    s_cbranch_vccnz L_m_rf
    s_nop 7
    ds_write_b128 v{T+1}, v[64:67]
    ds_write_b128 v{T+1}, v[68:71] offset:1024
    s_waitcnt lgkmcnt(0)
    s_barrier
    s_cmp_ge_u32 s{sW}, 2
    s_cbranch_scc1 L_m_fin
    """)
    for k in range(4): a(f"ds_read_b128 {vr(96+4*k,4)}, v{T+2} offset:{2048*k}")
    for k in range(4):
        a(f"s_waitcnt lgkmcnt({3-k})")
        a(f"v_pk_add_f32 {vr(XM,2)}, {vr(XM,2)}, {vr(96+4*k,2)}\nv_pk_add_f32 {vr(XM+2,2)}, {vr(XM+2,2)}, {vr(98+4*k,2)}")
    a(f"buffer_store_dwordx4 {vr(XM,4)}, v{VKV}, {sr(S_OUT,4)}, s{sWoo} offen")
    a.label('L_m_fin')
    a("s_branch L_h_done" if P.get('stat') else "s_branch L_hend" if P.get('dbgt') else "s_branch L_end")

if __name__ == '__main__':
    a = Asm(); h_once(a); helper_task(a, {})
    errs, ins = check(a.lines, 'helper')
    for e in errs: print(e)
    print(len(ins), ins[-1]['t'])
```

```python
from asmlib import *

WS_KV = 65536
WS_KM = (34 << 20) + 65536
WS_H1 = 48 << 20
WS_IMG = WS_H1 + (512 << 10)
WS_FL = WS_IMG + (64 << 10)
WS_H1B = WS_H1 + (256 << 10)
WS_IMB = WS_IMG + (128 << 10)
DBG_ARM = 132
ARM_ALL = {0: 32, 1: 64}
WS_STAMP = 49 << 20
WS_SIZE = 268435456
DBG_XCNT = 0
DBG_CBAR = 4
DBG_KV0 = 12
DBG_KVC = 16
DBG_DN = 128
L_MEM, L_S, L_KV, L_W = 0, 8192, 16384, 32768
L_O = L_MEM + 1024
L_SM = L_S + 1024
L_MISC = L_S + 5120
S_WS, S_WQ, S_WK, S_WV, S_WO, S_DBG, S_M0 = 4, 8, 12, 16, 20, 24, 28
sH, sW, sS = 32, 33, 34
sKV, sKM, sH1l, sTAG, sIMl = 35, 36, 37, 38, 39
sH1 = 40
sIMw, sIMr, sFL, sSPIN = 44, 45, 46, 47
sIML, sKMv = 59, 58
sONE, sMLO, sFLn, sRB, sFM, sLX = 84, 86, 3, 2, 54, 56
sFG, sKB = 80, 81
sC = 48
sT = 50
IDX, L16, A_W, A_SMW, NEG1, A_O, A_H1S, A_IMS = 0, 1, 2, 3, 4, 5, 6, 7
A_OW, FLV, HZ = 8, 9, 10
F, SEL, ONE = 12, 16, 20
MA = 24
Q0, K0, Q1, K1, V0, V1 = 56, 60, 64, 68, 72, 76
KX, VX, ST = 80, 88, 96
RW = 128
SPIN_MAX = 1000000

QK_A = {1: 0, 2: 1, 3: 2, 5: 3, 6: 4, 7: 5}
def wqk_reg(sig, u):
    if sig in (0, 4): return ('v', ST + 8 * u)
    return ('a', 32 * QK_A[sig] + 8 * u)
def wv_reg(sig, tau):
    if sig < 4: return ('a', 192 + 8 * (2 * sig + tau))
    return ('v', RW + 8 * (2 * (sig - 4) + tau))
def wo_reg(T, k2):
    if T < 2: return ('v', RW + 64 + 8 * (4 * T + k2))
    return ('v', (ST if T == 2 else MA) + 8 * k2)
def R8(r): return vr(r[1], 8, r[0])
def smf(a, D, A, B): a(f"v_smfmac_f32_16x16x64_bf16 {vr(D,4)}, {vr(A,4)}, {R8(B)}, v{IDX}")
def lw_qk(sig, u): return 8192 * (sig >> 2) + 4096 * (u & 1) + 2048 * (u >> 1)
def lw_wo(T, k2): return 16384 + 2048 * (4 * (T - 2) + k2)
def nops(a, n):
    while n > 0:
        k = min(n, 16); a(f"s_nop {k-1}"); n -= k

def srd(a, s, koff, size):
    a(f"s_load_dwordx2 {sr(s,2)}, s[0:1], {koff}")
    a(f"s_mov_b32 s{s+2}, {size}\ns_mov_b32 s{s+3}, 0x20000")

def chain_setup(a):
    t = 96
    lane, i, g, g1, g0, hi, i3, i2 = t + 1, t + 2, t + 3, t + 6, t + 7, t + 8, t + 9, t + 10
    x, y, z = t + 5, t + 12, t + 13
    a(f"""
    v_and_b32 v{lane}, 63, v0
    v_and_b32 v{i}, 15, v{lane}
    v_lshrrev_b32 v{g}, 4, v{lane}
    v_lshlrev_b32 v{L16}, 4, v{lane}
    v_lshrrev_b32 v{g1}, 1, v{g}
    v_and_b32 v{g0}, 1, v{g}
    v_lshrrev_b32 v{hi}, 3, v{i}
    v_and_b32 v{i3}, 3, v{i}
    v_lshrrev_b32 v{i2}, 2, v{i}
    s_lshl_b32 s{sT+1}, s{sW}, 15
    s_add_u32 s{sT+1}, s{sT+1}, {L_W}
    v_add_u32 v{A_W}, s{sT+1}, v{L16}
    v_lshl_add_u32 v{y}, v{hi}, 1, v{g0}
    v_and_b32 v{x}, 7, v{i}
    v_lshl_add_u32 v{x}, v{y}, 4, v{x}
    v_lshlrev_b32 v{x}, 4, v{x}
    v_add_u32 v{y}, s{sW}, v{y}
    v_and_b32 v{y}, 3, v{y}
    v_lshl_add_u32 v{x}, v{y}, 2, v{x}
    v_xor_b32 v{y}, 1, v{g1}
    v_lshl_add_u32 v{x}, v{y}, 11, v{x}
    v_add_u32 v{A_SMW}, {L_SM}, v{x}
    v_mov_b32 v{HZ}, 0x3f803f80
    v_mov_b32 v{HZ+1}, 0
    v_mov_b32 v{NEG1}, -1
    v_and_b32 v{A_O}, 0x37f, v{L16}
    v_lshlrev_b32 v{y}, 7, v{g0}
    v_or_b32 v{A_O}, v{A_O}, v{y}
    v_xor_b32 v{A_OW}, v{L16}, v{y}
    v_mov_b32 v{FLV}, 0
    v_cmp_lt_u32 vcc, 7, v{i}
    v_mov_b32 v{y}, 0x4444
    v_mov_b32 v{z}, 0xeeee
    v_cndmask_b32 v{t+11}, v{y}, v{z}, vcc
    """)
    a(f"""
    v_lshlrev_b32 v{x}, 2, v{g1}
    v_lshl_add_u32 v{x}, v{hi}, 1, v{x}
    v_add_u32 v{x}, v{x}, v{g0}
    v_lshlrev_b32 v{x}, 11, v{x}
    v_and_b32 v{y}, 7, v{i}
    v_lshl_add_u32 v{x}, v{y}, 3, v{x}
    s_lshl_b32 s{sT+2}, s{sW}, 14
    s_lshl_b32 s{sT+3}, s{sH}, 6
    s_add_u32 s{sT+2}, s{sT+2}, s{sT+3}
    v_add_u32 v{A_H1S}, s{sT+2}, v{x}
    """)
    a(f"""
    s_lshl_b32 s{sT+2}, s{sW}, 5
    s_add_u32 s{sT+2}, s{sT+2}, s{sH}
    s_lshl_b32 s{sT+2}, s{sT+2}, 6
    v_lshlrev_b32 v{x}, 4, v{g}
    v_lshl_add_u32 v{x}, v{i}, 2, v{x}
    v_add_u32 v{x}, s{sT+2}, v{x}
    v_cmp_gt_u32 vcc, 4, v{i}
    v_bfrev_b32 v{z}, 1
    s_nop 0
    v_cndmask_b32 v{A_IMS}, v{z}, v{x}, vcc
    """)
    a(f"""
    v_lshl_add_u32 v{x}, v{hi}, 2, v{i3}
    v_and_b32 v{y}, 1, v{i2}
    v_cmp_eq_u32 vcc, v{y}, v{g0}
    v_mov_b32 v{z}, 64
    s_nop 0
    v_cndmask_b32 v{x}, v{z}, v{x}, vcc
    v_and_b32 v{y}, 1, v{i}
    v_lshl_add_u32 v{t+14}, v{y}, 2, v{i2}
    v_cmp_gt_u32 vcc, 2, v{i3}
    s_mov_b32 s{sT+3}, 0x3f80
    s_nop 0
    v_cndmask_b32 v{t+14}, v{z}, v{t+14}, vcc
    """)
    for base, pos in ((F, x), (SEL, t + 14)):
        a(f"""
        v_and_b32 v{t+15}, 1, v{pos}
        v_lshlrev_b32 v{t+15}, 4, v{t+15}
        v_lshlrev_b32 v{t+15}, v{t+15}, s{sT+3}
        v_lshrrev_b32 v{t+16}, 1, v{pos}
        """)
        for d in range(4):
            a(f"""
            v_cmp_eq_u32 vcc, {d}, v{t+16}
            s_nop 1
            v_cndmask_b32 v{base+d}, 0, v{t+15}, vcc
            """)
    a(f"""
    v_and_b32 v{t+16}, 1, v{i2}
    v_lshl_add_u32 v{t+14}, v{g0}, 2, v{t+16}
    v_lshl_add_u32 v{t+16}, v{g0}, 1, v{t+16}
    v_xor_b32 v{t+16}, s{sW}, v{t+16}
    v_lshlrev_b32 v{t+16}, 6, v{t+16}
    v_add_u32 v{t+16}, {L_W}, v{t+16}
    v_lshl_add_u32 v{t+15}, v{hi}, 3, v{t+14}
    v_lshl_add_u32 v{t+15}, v{t+15}, 8, v{t+16}
    v_lshl_add_u32 v{t+15}, v{g1}, 15, v{t+15}
    v_lshl_add_u32 v58, v{i3}, 4, v{t+15}
    v_add_u32 v61, 0x10000, v58
    v_lshl_add_u32 v{t+15}, v{g1}, 3, v{t+14}
    v_lshl_add_u32 v{t+15}, v{t+15}, 8, v{t+16}
    v_lshl_add_u32 v{t+15}, v{hi}, 5, v{t+15}
    v_lshl_add_u32 v59, v{i3}, 3, v{t+15}
    v_add_u32 v62, 0x10000, v59
    v_and_b32 v{x}, 7, v{i}
    v_lshlrev_b32 v{x}, 10, v{x}
    v_lshl_add_u32 v{x}, v{g}, 5, v{x}
    v_lshl_add_u32 v{x}, v{hi}, 4, v{x}
    s_lshl_b32 s{sT+2}, s{sW}, 7
    v_add_u32 v60, s{sT+2}, v{x}
    v_mov_b32 v{IDX}, v{t+11}
    """)
    for k in range(4): a(f"v_mov_b32 v{64+k}, -1")

def chain_prologue(a, P):
    WS = sr(S_WS, 4)
    a(f"""
    s_mov_b32 s{sS}, 0
    s_lshl_b32 s{sT}, s{sH}, 2
    s_add_u32 s{sT}, s{sT}, s{sW}
    s_lshl_b32 s{sKV}, s{sT}, 12
    s_add_u32 s{sKV}, s{sKV}, {WS_KV}
    s_lshl_b32 s{sKM}, s{sT}, 10
    s_mov_b32 s{sFLn}, {DBG_DN + DBG_KV0}
    s_add_u32 s{sKM}, s{sKM}, {WS_KM}
    s_mov_b32 s{sH1}, {WS_H1}
    s_mov_b32 s{sH1+1}, {WS_H1 + 65536}
    s_mov_b32 s{sH1+2}, {WS_H1 + 2*65536}
    s_mov_b32 s{sH1+3}, {WS_H1 + 3*65536}
    s_lshl_b32 s{sT}, s{sW}, 5
    s_add_u32 s{sT}, s{sT}, s{sH}
    s_lshl_b32 s{sT}, s{sT}, 11
    s_add_u32 s{sH1l}, s{sT}, {WS_H1}
    s_mov_b32 s{sTAG}, 0
    s_mov_b32 s{sIMw}, {WS_IMG + 8192}
    s_mov_b32 s{sIMr}, {WS_IMG + 16384}
    s_mov_b32 s{sIMl}, {WS_IMG}
    s_mov_b32 s{sIML}, {WS_IMG}
    s_mov_b32 s{sKMv}, 0x70000000
    s_mov_b32 s{sONE}, 0x3f803f80
    s_mov_b32 s{sONE+1}, 0x3f803f80
    s_mov_b32 s{sMLO}, 0x00ff00ff
    s_mov_b32 s{sMLO+1}, 0x00ff00ff
    s_mov_b32 s{sC}, 0x3e0293ee
    s_mov_b32 s{sC+1}, 0x3e0293ee
    """)
    if P.get('tb', 1):
        a(f"s_cmp_lg_u32 s{sRB}, 0\ns_cbranch_scc1 L_c_b0\ns_mov_b32 s{sS}, 1\ns_add_u32 s{sKV}, s{sKV}, 0x80000\ns_add_u32 s{sKM}, s{sKM}, 0x20000\ns_branch L_c_b1")
        a.label('L_c_b0')
        for T in range(4): a(f"s_mov_b32 s{sH1+T}, {WS_H1B + 65536*T}")
        a(f"s_mov_b32 s{sIMr}, 0x70000000")
        a(f"s_add_u32 s{sH1l}, s{sH1l}, {WS_H1B - WS_H1}\ns_mov_b32 s{sIMw}, {WS_IMB}")
        for k in range(4): a(f"buffer_store_dwordx4 v[64:67], v{L16}, {WS}, s{sKV} offen offset:{1024*k} sc1"); a.vm.pop()
        a.label('L_c_b1')
    a(f"""
    buffer_store_dwordx4 v[64:67], v{L16}, {WS}, s{sH1l} offen sc1
    buffer_store_dwordx4 v[64:67], v{L16}, {WS}, s{sH1l} offen offset:1024 sc1
    buffer_store_dword v64, v{A_IMS}, {WS}, s{sIMw} offen sc1
    v_xor_b32 v63, {256 if P.get('sw', 2) else 0}, v60
    buffer_load_dwordx4 {vr(MA,4)}, v63, {sr(S_M0,4)}, 0 offen
    buffer_load_dwordx4 {vr(MA+16,4)}, v{63 if P.get('sw', 2) == 2 else 60}, {sr(S_M0,4)}, 0 offen offset:512
    """, vm='init')
    for w in range(3): a(f"s_cmp_eq_u32 s{sW}, {w}\ns_cbranch_scc1 L_cp_{w}")
    a("s_branch L_cp_3")

UNITS = []; SLOT = {}; ISSUE = {}
def plan_units(P):
    L = [(m, k) for m in P.get('mord', 'vkq') for k in range(8)]
    if P.get('ilv', 0):
        U = []
        for i in range(8): U += L[3 * i:3 * i + 3] + [('o', i)]
    else: U = L + [('o', u) for u in range(8)]
    UNITS[:] = U; SLOT.clear(); ISSUE.clear()
    fin = lambda u: U[u][0] == 'o' and U[u][1] >= 4
    free = list(range(8)); nxt = 0
    for it in range(-1, 32):
        if it >= 1 and not fin(it - 1): free.append(SLOT[it - 1])
        ISSUE[it] = []
        if it == 0: continue
        while nxt < 32:
            if fin(nxt):
                if U[nxt][1] not in free: break
                s = U[nxt][1]
            else:
                soon = [U[v][1] for v in range(nxt + 1, min(nxt + 8, 32)) if fin(v)]
                c = [x for x in free if x not in soon]
                if not c: break
                s = c[0]
            free.remove(s); SLOT[nxt] = s; ISSUE[it].append(nxt); nxt += 1
    assert nxt == 32
sLB, sO1, sHB, sHO = sT + 4, sT + 5, sT + 6, sT + 7
PF = ['']
def issue_one(a, u, i):
    kind, x = UNITS[u]
    if kind == 'o': base, off, step, voff, S = sHO, 64 * (x & 1) * 1024 + 256 * (x >> 1), 4 * 1024, 57, S_WO
    else: base, off, step, voff, S = sHB, x << 19, 4 * 8192, 56, {'q': S_WQ, 'k': S_WK, 'v': S_WV}[kind]
    a(f"s_add_u32 m0, s{sLB}, {SLOT[u] * 4096 + i * 1024}")
    a(f"s_add_u32 s{sO1}, s{base}, {off + i * step}")
    a(f"buffer_load_dwordx4 v{voff - 4 * (i & 1)}, {sr(S,4)}, s{sO1} offen {PF[0]} lds", vm=('u', u))
def issue_unit(a, u):
    for i in range(4): issue_one(a, u, i)

def chain_first_dma(a):
    a(f"""
    v_bfe_u32 v96, v0, 4, 2
    v_and_b32 v97, 15, v0
    v_bfe_u32 v98, v0, 4, 1
    v_lshlrev_b32 v98, 2, v98
    v_xor_b32 v97, v97, v98
    v_lshlrev_b32 v97, 4, v97
    v_lshl_add_u32 v56, v96, 13, v97
    v_lshl_add_u32 v57, v96, 10, v97
    v_xor_b32 v52, 128, v56
    v_xor_b32 v53, 128, v57
    s_lshl_b32 s{sLB}, s{sW}, 15
    s_add_u32 s{sLB}, s{sLB}, {L_W}
    s_lshl_b32 s{sHB}, s{sH}, 8
    s_lshl_b32 s{sT+2}, s{sW}, 17
    s_add_u32 s{sHB}, s{sHB}, s{sT+2}
    s_lshl_b32 s{sHO}, s{sH}, 17
    s_lshl_b32 s{sT+2}, s{sW}, 14
    s_add_u32 s{sHO}, s{sHO}, s{sT+2}
    """)
    for u in ISSUE[-1]: issue_unit(a, u)

def chain_prologue_w(a, P, w, vm0):
    WS = sr(S_WS, 4)
    a.label(f'L_cp_{w}')
    a.vm = list(vm0); a.lg = []
    TB = P.get('tb', 1); ALL = 32
    PK4 = 64
    def wb(u):
        for i in range(4): a(f"ds_write_b128 v{A_W}, {vr(28 + 16*(i>>1) + 4*(i&1),4)} offset:{SLOT[u] * 4096 + 1024*i}")
    for u in range(32):
        kind, x = UNITS[u]
        a.wait(vm=('u', u))
        a("s_barrier")
        if u == P.get('ek', 30) - 6: a(f"s_lshl_b32 s{sT+2}, s{sRB}, 12\nbuffer_load_dword v39, off, {sr(S_DBG,4)}, s{sT+2} offset:{DBG_KV0} sc1", vm='fe')
        if P.get('pu') == u: a("s_memrealtime s[100:101]")
        dq = [(v, i) for v in ISSUE[u] for i in range(4)]
        if u == 9:
            for r in list(range(MA, MA + 4)) + list(range(MA + 16, MA + 20)): a(f"v_min_u32 v{r}, -2, v{r}")
            if w == 0:
                a(f"s_cmp_lg_u32 s{sRB}, 0\ns_cselect_b32 s{sT+2}, {DBG_ARM}, {DBG_CBAR}\ns_mov_b64 exec, 1\nv_mov_b32 v38, 1")
                a(f"buffer_atomic_add v38, off, {sr(S_DBG,4)}, s{sT+2}", vm='at')
                a("s_mov_b64 exec, -1")
        if u == P.get('uw', 25):
            a(f"s_getpc_b64 {sr(sT,2)}")
            a.label(f'L_cpc_{w}')
            a(f"v_lshlrev_b32 v63, 3, v{L16}\ns_cmp_lg_u32 s{sRB}, 0\ns_cselect_b32 s{sT+2}, s{sIMr}, {WS_IMG + 8192*w}\ns_cselect_b32 s{sT+3}, s{sIMr}, s{sH1l}")
            a(f"buffer_load_dword v36, v63, {WS}, s{sT+2} offen sc1", vm='w')
            a(f"v_and_b32 v37, 0x780, v63\nv_min_u32 v63, L_step_{w}-L_top_{w}, v63\nv_add_u32 v63, L_top_{w}-L_cpc_{w}, v63")
            if TB: a(f"s_mul_i32 s{sT+2}, s{sRB}, L_bstep_{w}-L_top_{w}\nv_add_u32 v63, s{sT+2}, v63")
            a(f"buffer_load_dword v36, v37, {WS}, s{sT+3} offen sc1", vm='w')
            a(f"global_load_dword v36, v63, {sr(sT,2)}", vm='w')
            if P.get('tlb', 1) and w < 2:
                a(f"s_mov_b32 s{sT+2}, {(WS_KV if w == 0 else WS_KM) - 4096}")
                a(f"buffer_load_dword v36, off, {WS}, s{sT+2} sc1", vm='w')
        fin = lambda v: UNITS[v][0] == 'o' and UNITS[v][1] >= 4
        if u == 1 + max(v for v in range(32) if not fin(v)):
            for sg, src in ((0, ST), (4, PK4)):
                for uu in range(4):
                    for hf in range(2): a(f"ds_write_b128 v{A_W}, {vr(src + 8*uu + 4*hf,4)} offset:{lw_qk(sg, uu) + 1024*hf}")
                a.wait(lg='all')
        fl0 = f"s_mul_i32 s{sT}, s{sRB}, {DBG_ARM - DBG_CBAR}\ns_mul_i32 s{sT+1}, s{sRB}, {DBG_ARM - DBG_KV0}\nbuffer_load_dword v36, off, {sr(S_DBG,4)}, s{sT} offset:{DBG_CBAR} sc1\nbuffer_load_dword v37, off, {sr(S_DBG,4)}, s{sT+1} offset:{DBG_KV0} sc1"
        if u == 30 and P.get('dlyc'): a(f"s_sleep {P['dlyc']}")
        kvl = lambda so: '\n'.join(f"buffer_load_dwordx4 {vr(KX+4*k,4)}, v{L16}, {WS}, s{so} offen offset:{1024*k} sc1" for k in range(4))
        sw = P.get('sw', 2)
        m1l = f"buffer_load_dwordx4 v[64:67], v{L16}, {WS}, s{sIMl} offen sc1\nbuffer_load_dwordx4 v[68:71], v{L16}, {WS}, s{sIML} offen sc1"
        m1a = f"s_mov_b32 s{sIMl}, {WS_IMB + 1024*(w ^ (2 if sw else 0))}\ns_mov_b32 s{sIML}, {WS_IMB + 4096 + 1024*(w ^ (2 if sw == 2 else 0))}"
        ek = P.get('ek', 30)
        if u == ek:
            a.wait(vm='fe'); a(f"v_readfirstlane_b32 s{sT+3}, v39")
            a(f"s_cmp_ge_u32 s{sT+3}, {ALL}\ns_cselect_b32 s{sT+2}, s{sKV}, 0x70000000")
            if TB:
                a(m1a); a(f"s_cselect_b32 s{sIMl}, s{sIMl}, s{sT+2}\ns_cselect_b32 s{sIML}, s{sIML}, s{sT+2}\ns_cmp_lg_u32 s{sRB}, 0\ns_cselect_b32 s{sT+2}, s{sKV}, s{sT+2}")
            a(kvl(sT + 2), vm='kv')
            if TB: a(m1l, vm='kv')
        if u == 30 and w == 0: a(fl0, vm='f0')
        if u and fin(u - 1): wb(u - 1)
        base = SLOT[u] * 4096
        sig = ((x - w - (2 if P.get('sw', 2) > (x >> 2) else 0)) & 3) | (x & 4)
        for half in range(2):
            if fin(u): k, dst = 'v', 28 + 16 * half
            elif kind in 'qk':
                uu = 2 * half + (kind == 'k')
                k, dst = ('v', PK4 + 8 * uu) if sig == 4 else wqk_reg(sig, uu)
            elif kind == 'v': k, dst = wv_reg(sig, half)
            else: k, dst = wo_reg(x >> 1, 2 * (x & 1) + half)
            for p in range(4):
                if kind == 'o': off, ad = base + 32768 * (p >> 1) + 512 * (p & 1), (59, 62)[half]
                else: off, ad = base + 512 * (p & 1) + 8 * half, (58, 61)[p >> 1]
                a(f"ds_read_b64_tr_b16 {vr(dst + 2*p, 2, k)}, v{ad} offset:{off}")
                if p & 1 and dq: issue_one(a, *dq.pop(0))
        while dq: issue_one(a, *dq.pop(0))
        if P.get('pw') and P.get('pw0', 8) <= u < 31:
            for k in range(P['pw']): a(f"v_smfmac_f32_16x16x64_bf16 v[48:51], v[24:27], a[{192 + 8 * (k & 7)}:{199 + 8 * (k & 7)}], v0" if u < 28 else f"v_smfmac_f32_16x16x64_bf16 v[72:75], v[24:27], a[{192 + 8 * (k & 7)}:{199 + 8 * (k & 7)}], v0")
        a.wait(lg='all')
    a("s_barrier")
    wb(31)
    a.wait(lg='all')
    if (P.get('stat') or P.get('dbgt')) and P.get('pu') is None: a("s_memrealtime s[100:101]")
    a(f"s_mov_b32 s{sSPIN}, 0\ns_mov_b32 m0, {L_KV + 4096*w}")
    if w == 0:
        a(f"s_lshl_b32 s{sT+2}, s{sRB}, 5\ns_add_u32 s{sT+2}, s{sT+2}, 32\ns_branch L_c_w1")
        a.label(f'L_c_w0')
        a(f"""
        s_add_u32 s{sSPIN}, s{sSPIN}, 1
        s_cmp_gt_u32 s{sSPIN}, {SPIN_MAX}
        s_cbranch_scc1 L_exit
        s_sleep {P.get('slp0', 4)}
        """)
        a(fl0)
        a.label('L_c_w1')
        a.wait(vm='all')
        a(f"""
        v_cmp_gt_u32 vcc, 32, v36
        s_cbranch_vccnz L_c_w0
        v_cmp_gt_u32 vcc, s{sT+2}, v37
        s_cbranch_vccnz L_c_w0
        """)
    a("s_barrier")
    if ek < 32: a(f"s_cmp_ge_u32 s{sT+3}, {ALL}\ns_cbranch_scc1 L_c_kv_{w}")
    if TB: a(f"s_cmp_lg_u32 s{sRB}, 0\ns_cbranch_scc1 L_c_m3_{w}")
    a(kvl(sKV))
    if TB:
        a.label(f'L_c_m1_{w}')
        a(m1a); a(f"s_sleep {P.get('aps', 4)}"); a(m1l)
        a(f"s_add_u32 s{sSPIN}, s{sSPIN}, 1\ns_cmp_gt_u32 s{sSPIN}, {SPIN_MAX}\ns_cbranch_scc1 L_exit")
    a.label(f'L_c_kv_{w}')
    if TB:
        a(f"""
        s_cmp_lg_u32 s{sRB}, 0
        s_cbranch_scc1 L_c_m3_{w}
        s_waitcnt vmcnt(0)
        v_max3_u32 v36, v64, v65, v66
        v_max3_u32 v37, v67, v68, v69
        v_max3_u32 v36, v36, v70, v71
        v_max_u32 v36, v36, v37
        v_cmp_eq_u32 vcc, -1, v36
        v_mov_b64 {vr(MA,2)}, v[64:65]
        v_mov_b64 {vr(MA+2,2)}, v[66:67]
        v_mov_b64 {vr(MA+16,2)}, v[68:69]
        v_mov_b64 {vr(MA+18,2)}, v[70:71]
        s_cbranch_vccnz L_c_m1_{w}
        s_branch L_c_m4_{w}
        """)
        a.label(f'L_c_m2_{w}')
        a(f"""
        s_add_u32 s{sSPIN}, s{sSPIN}, 1
        s_cmp_gt_u32 s{sSPIN}, {SPIN_MAX}
        s_cbranch_scc1 L_end
        s_sleep {P.get('bps', 4)}
        buffer_load_dword v{FLV}, off, {WS}, s{sKB} offset:4092 sc1
        s_waitcnt vmcnt(0)
        v_cmp_eq_u32 vcc, -1, v{FLV}
        s_cbranch_vccnz L_c_m2_{w}
        """)
        a(f"s_branch L_c_m5_{w}")
        a.label(f'L_c_m7_{w}')
        a(f"s_add_u32 s{sSPIN}, s{sSPIN}, 1\ns_cmp_gt_u32 s{sSPIN}, {SPIN_MAX}\ns_cbranch_scc1 L_end\ns_sleep {P.get('bps', 4)}")
        a.label(f'L_c_m5_{w}')
        a(kvl(sKB))
        a.label(f'L_c_m6_{w}')
        a(f"s_waitcnt vmcnt(0)\nv_max3_u32 v{FLV}, v{KX}, v{KX+1}, v{KX+2}")
        for r in range(3, 15, 2): a(f"v_max3_u32 v{FLV}, v{FLV}, v{KX+r}, v{KX+r+1}")
        a(f"v_max_u32 v{FLV}, v{FLV}, v{KX+15}\nv_cmp_eq_u32 vcc, -1, v{FLV}\ns_cbranch_vccnz L_c_m{7 if P.get('bd', 1) else 2}_{w}\ns_branch L_{'bk' if P.get('ba', 1) else 'c_m4'}_{w}")
        a.label(f'L_c_m3_{w}')
        a(f"s_waitcnt vmcnt(0)\ns_mov_b32 s{sKB}, s{sKV}\ns_mov_b32 s{sKV}, 0x70000000")
        if not P.get('ba', 1): a(f"s_branch L_c_m6_{w}")
        a.label(f'L_c_m4_{w}')
    a(f"s_add_u32 s{sKV}, s{sKV}, 0x80000\ns_mov_b32 s{sFL}, {DBG_DN + DBG_KV0}\ns_mov_b64 {sr(sFM,2)}, 0\nv_mov_b32 v{FLV}, 32\ns_mov_b32 s{sSPIN}, 0")
    for l in idle_work():
        if not l.startswith('ds_'): a(l)
    a.wait(lg='all')
    if P.get('stat'): a("s_memrealtime s[64:65]\ns_waitcnt lgkmcnt(0)")
    a.label(f'L_cpe_{w}')
    if TB: a(f"s_cmp_lg_u32 s{sRB}, 0\ns_cbranch_scc1 L_bstep_{w}")
    a(f"s_branch L_step_{w}")

def idle_work():
    L = [f"ds_read_b128 {vr(ST + 8*u + 4*hf, 4)}, v{A_W} offset:{lw_qk(0, u) + 1024*hf}" for u in range(4) for hf in range(2)]
    L += [f"v_mov_b64 {vr(Q0+i,2)}, 0" for i in range(0, 24, 2)]
    return L

DEF = dict(b1=3, nL=10, nB2=4, nv1=2, nv2=0, nvA=6, sv=9, so=1, nr4=4, earlyL=0, dH1=[27, 40, 62, 73], dE=[36, 20, 6, 0], h2=[30, 32, 30, 26], ls=1,
           dwf=0, cs=0, g2v=0, dup=1, c1=1, lb1=0, svp=[4, 2, 0, -1], dp=None, sync=0, fpos=-2, pp=[-1, 1, 3, 5, 7, 11], pE=23, inGap=[0, 0, 0, 1],
           nPre=[0, 0, 0, 0], dS=[-1, -1], kw=0, mx=1, ad=1, nrc=4, nE=3, dT=0, stg=1, own3=0)
def pack_km():
    X = Q0
    L = [f"v_mov_b32_dpp v{X+2}, v{X} row_ror:8 row_mask:0xf bank_mask:0x3", f"v_mov_b32_dpp v{X+3}, v{X+1} row_ror:8 row_mask:0xf bank_mask:0x3",
         f"v_min_u32 v{ONE}, -2, v{X+2}", f"v_min_u32 v{ONE+1}, -2, v{X+3}"]
    for t in range(2):
        p = V0 + 2 * t
        L += [f"v_lshlrev_b32 v{X}, 16, v{p}", f"v_lshlrev_b32 v{X+1}, 16, v{p+1}", f"v_and_b32 v{p}, 0xffff0000, v{p}", f"v_and_b32 v{p+1}, 0xffff0000, v{p+1}",
              f"v_add_f32 v{X}, v{X}, v{X+1}", f"v_add_f32 v{X+1}, v{p}, v{p+1}", f"v_cvt_pk_bf16_f32 v{X}, v{X}, v{X+1}", f"v_min_u32 v{ONE+2+t}, -2, v{X}"]
    return L
def sync_tmp(P, w):
    if not P['sync']: return []
    if w == 3: return [f"v_bfe_u32 v{MA+24}, v{L16}, 2, 7"]
    if w < 2: return [f"v_mov_b32 v{MA+24}, s{sS}"]
    return []
def b_tail(a, P):
    WS = sr(S_WS, 4); HB, HD, T1 = MA + 20, MA + 8, MA + 12
    a.label('L_btail')
    if P.get('stat'): a("s_memrealtime s[66:67]")
    for l in pack_km(): a(l)
    a(f"buffer_store_dwordx4 {vr(ONE,4)}, v{L16}, {WS}, s{sKMv} offen sc1\ns_waitcnt vmcnt(0)")
    if P.get('stat'): a("s_memrealtime s[68:69]")
    a.label('L_bt1')
    a(f"""
    s_sleep {P.get('bsl', 1)}
    buffer_load_dwordx4 {vr(HB,4)}, v{L16}, {WS}, s{sH1l} offen sc1
    buffer_load_dwordx4 {vr(HB+4,4)}, v{L16}, {WS}, s{sH1l} offen offset:1024 sc1
    s_add_u32 s{sSPIN}, s{sSPIN}, 1
    s_cmp_gt_u32 s{sSPIN}, {SPIN_MAX}
    s_cbranch_scc1 L_end
    s_waitcnt vmcnt(0)
    v_mfma_f32_16x16x32_bf16 {vr(HD,4)}, {vr(SEL,4)}, {vr(HB,4)}, 0
    v_or_b32 v{T1}, v{HB}, v{HB+2}
    v_or3_b32 v{T1}, v{T1}, v{HB+4}, v{HB+6}
    v_mfma_f32_16x16x32_bf16 {vr(HD,4)}, {vr(SEL,4)}, {vr(HB+4,4)}, {vr(HD,4)}
    v_and_b32 v{T1}, 1, v{T1}
    v_cmp_ne_u32 vcc, 0, v{T1}
    s_nop 4
    """)
    for n in (4, 8):
        for r in (HD, HD + 1): a(f"v_add_f32_dpp v{r}, v{r}, v{r} row_ror:{n} row_mask:0xf bank_mask:0xf")
        a("s_nop 0")
    a(f"""
    v_cvt_pk_bf16_f32 v{HD}, v{HD}, v{HD+1}
    s_cbranch_vccnz L_bt1
    buffer_store_dword v{HD}, v{A_IMS}, {WS}, s{sIMw} offen sc1
    """)
    if P.get('stat'):
        a("s_memrealtime s[70:71]\ns_waitcnt lgkmcnt(0)")
        for k, r in enumerate([100, 64, 66, 68, 70, sSPIN]): a(f"v_mov_b32 v{56+k}, s{r}")
        a(f"s_lshl_b32 s{sT}, s{sH}, 2\ns_add_u32 s{sT}, s{sT}, s{sW}\ns_lshl_b32 s{sT}, s{sT}, 5\ns_add_u32 s{sT}, s{sT}, {WS_STAMP + (768 << 10)}\ns_mov_b64 exec, 1")
        a(f"buffer_store_dwordx4 v[56:59], v{L16}, {WS}, s{sT} offen\nbuffer_store_dwordx4 v[60:63], v{L16}, {WS}, s{sT} offen offset:16\ns_mov_b64 exec, -1")
    a(f"""
    v_lshrrev_b32 v0, 4, v{L16}
    s_mov_b32 s80, 4
    s_mov_b32 s{sT}, 1
    s_waitcnt vmcnt(0) lgkmcnt(0)
    s_branch L_helper2
    """)
BBODY = {}
LASTV = []
def chain_last(a, n=7):
    for q in LASTV: smf(a, *q)
    a(f"s_nop {n}")
    for d, s0 in ((V0, V0), (V0 + 1, V0 + 2), (V0 + 2, V1), (V0 + 3, V1 + 2)): a(f"v_cvt_pk_bf16_f32 v{d}, v{s0}, v{s0+1}")
    L = pack_km()
    for l in L[:2]: a(l)
    a(f"v_permlane32_swap_b32 v{V0}, v{V0+1}\nv_permlane32_swap_b32 v{V0+2}, v{V0+3}")
    for l in L[2:]: a(l)
    a(f"buffer_store_dwordx4 {vr(ONE,4)}, v{L16}, {sr(S_WS,4)}, s{sKM} offen sc1")
LISTING = {}
def chain_step(a, P0, w):
    P = dict(DEF); P.update(P0)
    allow = P.get('stamps', [])
    used = []
    def stamp(k):
        if k in allow:
            a(f"s_memtime s[{72+2*len(used)}:{73+2*len(used)}]"); used.append(k)
            if P.get('rt'): a(f"s_memrealtime s[{72+2*len(used)}:{73+2*len(used)}]"); used.append(k)
    WS = sr(S_WS, 4)
    acc = [Q0, K0, Q1, K1]
    lb = lambda s: f"L_{s}_{w}"
    own = 2048 * w
    oth = lambda q: 2048 * ((w + q) & 3)
    T0 = MA + 28
    ldE = f"buffer_load_dwordx4 {vr(MA,4)}, v{L16}, {WS}, s{sIMl} offen sc1"
    ldL = f"buffer_load_dwordx4 {vr(MA+16,4)}, v{L16}, {WS}, s{sIML} offen sc1"
    chkE = f"v_max3_u32 v{T0}, v{MA}, v{MA+1}, v{MA+2}\nv_max_u32 v{T0}, v{T0}, v{MA+3}\nv_cmp_eq_u32 vcc, -1, v{T0}"
    chkL = [f"v_max3_u32 v{T0}, v{MA+16}, v{MA+17}, v{MA+18}", f"v_max_u32 v{T0}, v{T0}, v{MA+19}", f"v_cmp_eq_u32 vcc, -1, v{T0}"]
    if P['c1']:
        chkE = f"v_cmp_eq_u32 vcc, -1, v{MA+3}"
        chkL = ["s_nop 0", "s_nop 0", f"v_cmp_eq_u32 vcc, -1, v{MA+19}"]
    ldF = f"buffer_load_dword v{FLV}, off, {sr(S_DBG,4)}, s{sFL} sc1"
    cvF = [f"v_subrev_u32 v{FLV}, 32, v{FLV}", f"v_ashrrev_i32 v{FLV}, 31, v{FLV}"]
    dwE = f"ds_write_b128 v{L16}, {vr(MA,4)} offset:{L_MEM + own}"
    dwL = f"ds_write_b128 v{L16}, {vr(MA+16,4)} offset:{L_MEM + own + 1024}"
    cv = lambda d, s0: f"v_cvt_pk_bf16_f32 v{d}, v{s0}, v{s0+1}"
    z2 = lambda r: f"v_mov_b64 {vr(r,2)}, 0"
    ror8 = lambda d, s0, bm: f"v_mov_b32_dpp v{d}, v{s0} row_ror:8 row_mask:0xf bank_mask:{bm}"
    mf32 = lambda D, A, B, C: a(f"v_mfma_f32_16x16x32_bf16 {vr(D,4)}, {vr(A,4)}, {vr(B,4)}, {vr(C,4) if C is not None else 0}")
    mf16 = lambda D, A, B, C: a(f"v_mfma_f32_16x16x16_bf16 {vr(D,4)}, {vr(A,2)}, {vr(B,2)}, {vr(C,4) if C is not None else 0}")
    def wdelay(n):
        while P['kw'] and n >= 8:
            mf32(MA + 24, F, F, None); a("s_nop 2"); mf32(MA + 4, F, F, None); a("s_nop 2"); n -= 8
        nops(a, n)
    a.label(lb('top'))
    a("s_waitcnt vmcnt(0)")
    a.vm = []; a.lg = []
    stamp(0)
    EB = MA + 20 if P['dwf'] else MA
    ldB = ldE.replace(vr(MA, 4), vr(EB, 4))
    if P['dwf']:
        a(dwE, lg='we'); a(chkE); a(ldL, vm='L2')
        a(f"s_cbranch_vccnz {lb('f1')}")
    else:
        if P['earlyL']: a(ldL, vm='L2')
        a(chkE)
        a(dwE, lg='we')
        a(f"s_cbranch_vccnz {lb('f1')}")
        if not P['earlyL'] and not P.get('lateL'): a(ldL, vm='L2')
    a.label(lb('go'))
    igo = len(a.lines)
    stamp(14)
    KVF = P.get('kvf', 'sc1')
    dma = [f"buffer_load_dwordx4 v{L16}, {WS}, s{sKV} offen offset:{1024*k} {KVF} lds" for k in range(4)]
    mrd = lambda s: f"ds_read_b128 {vr(MA+4*s,4)}, v{L16} offset:{L_MEM + oth(s & 3) + 1024*(s>>2)}"
    r2 = [f"ds_read_b128 {vr(ST + 8*u + 4*hf, 4)}, v{A_W} offset:{lw_qk(4, u) + 1024*hf}" for u in range(4) for hf in range(2)]
    r3 = [f"ds_read_b128 {vr(ST + 8*k + 4*hf, 4)}, v{A_W} offset:{lw_wo(2,k) + 1024*hf}" for k in range(4) for hf in range(2)]
    vq = [(V0 + 4 * tau, MA + 4 * s, wv_reg(s, tau)) for s in range(8) for tau in range(2)]
    qk = lambda s: [(acc[u], MA + 4 * s, wqk_reg(s, u)) for u in range(4)]
    sA = qk(0) + [vq.pop(0), vq.pop(0)]
    stV = f"buffer_store_dwordx4 {vr(ONE,4)}, v{L16}, {WS}, s{sKMv} offen sc1"
    for k in range(P['b1']):
        smf(a, *sA.pop(0))
        if k == P['sv']: a(stV, vm='km')
        if P.get('lateL') == k + 2: a(f"s_mov_b64 exec, {sr(sLX,2)}"); a(ldL, vm='L2'); a("s_mov_b64 exec, -1")
    a.wait(lg='all')
    a("s_barrier")
    stamp(1)
    a(mrd(1), lg=('ma', 1)); a(mrd(2), lg=('ma', 2))
    smf(a, *sA.pop(0))
    a(mrd(3), lg=('ma', 3))
    if P.get('lateL') == 1: a(f"s_mov_b64 exec, {sr(sLX,2)}"); a(ldL, vm='L2'); a("s_mov_b64 exec, -1")
    sync = P['sync']; TS = MA + 24
    prober = sync and w == 3; poster = sync and w < 2
    probe = f"buffer_load_dword v{FLV}, v{TS}, {WS}, s{sFG} offen sc1"
    post = f"s_mov_b64 exec, 1\nbuffer_store_dword v{TS}, off, {WS}, s{sFG}\ns_mov_b64 exec, -1"
    pp = list(P['pp']); npr = len(pp)
    def syncops(n):
        c = 0
        if poster and n == P['fpos']: a(post, vm='fg'); c = 2
        if prober and n in pp: a(probe, vm=('P', pp.index(n))); c = 1
        return c
    svp = P['svp'][w]
    if P['sv'] == 9 and svp < 0: a(stV, vm='km')
    syncops(-len(sA) - 1)
    while sA:
        smf(a, *sA.pop(0)); syncops(-len(sA) - 1)
    dupA = a.lines[igo:]
    a.label(lb('go2'))
    seq = qk(1) + qk(2) + qk(3) + [vq.pop(0) for _ in range(P['nv1'])]
    i4 = len(seq); seq += qk(4) + [vq.pop(0) for _ in range(P['nv2'])]
    i5 = len(seq); seq += qk(5)
    i6 = len(seq); q6, q7 = qk(6), qk(7)
    seq += [q6[0], q6[1], q7[0], q7[1], q6[2], q6[3], q7[2], q7[3]]
    nL, nB = P['nL'], P['nL'] + P['nB2']
    assert i4 >= nL + 4 and nB <= i5
    KVST = 0 if P.get('kvfix') else 0x80000
    ones = [f"v_mov_b64 {vr(ONE,2)}, {sr(sONE,2)}", f"v_mov_b64 {vr(ONE+2,2)}, {sr(sONE,2)}"]
    bk = False
    for n, q in enumerate(seq):
        if n == 0: a.wait(lg=('ma', 1))
        if n == 4: a.wait(lg=('ma', 3))
        if n == nL:
            stamp(2)
            a.wait(vm='L2'); a(dwL, lg='wl')
            if not P['c1']: a(chkL[0])
            if prober: a.wait(vm=('P', 0)); a(f"v_subrev_u32 v{T0+1}, s{sS}, v{FLV}")
        if n == nB:
            a.wait(lg='all' if not r2 else 'wl'); a("s_barrier"); stamp(3); a(mrd(5), lg=('ma', 5))
        if n == i4 and 'r2' in a.lg: a.wait(lg='r2')
        if n == i5: a.wait(lg=('ma', 5))
        if n == i6: a.wait(lg=('ma', 7))
        smf(a, *q)
        cap = 2 - (n + 1 in (4, i5, i6)) - (n >= i6 + 4) - (n in (nL, nL + 1))
        if n == nB: a(mrd(6), lg=('ma', 6)); a(mrd(7), lg=('ma', 7)); cap = 0
        if P['sv'] == 9 and n == svp: a(stV, vm='km')
        cap = max(cap - syncops(n), 1 if r2 else 0)
        dp = P['dp']
        if dp:
            if dma and dp[4 - len(dma)] < 100 and n >= dp[4 - len(dma)] + w and n != nB: a(dma.pop(0), vm='dma'); cap = max(cap - 1, 1 if r2 else 0)
        elif dma and cap and n > nB and n >= min(nB + 1 + w * P['stg'] + 4 * (4 - len(dma)), len(seq) - 1):
            a(dma.pop(0), vm='dma'); cap -= 1
        if r2 and cap and n + 1 != nL and not (nL <= n < nB): a(r2.pop(0), lg='r2'); cap -= 1
        elif r3 and cap and n > nB and n >= i4 + (8 - len(r3)) // 2: a(r3.pop(0), lg='r3'); cap -= 1
        if ones and cap and n >= i5 and P['sv'] == 9: a(ones.pop(0))
        if n == nL: a(chkL[1] if not prober else f"v_max3_u32 v{T0+1}, v{T0}, v{MA+19}, v{T0+1}")
        if n == nL + 1: a(chkL[2] if not prober else f"v_cmp_eq_u32 vcc, -1, v{T0+1}")
        if n == nL + 3:
            a(f"s_cbranch_vccnz {lb('p1' if prober else 'rL')}"); a.label(lb('bL'))
            if prober: assert len(a.vm) == npr - 1
        if n == len(seq) - 1: ibk = len(a.lines)
        if n == i6 + 4: a(cv(Q0, Q0))
        if n == i6 + 5: a(cv(Q0 + 1, Q0 + 2))
        if n == i6 + 6: a(cv(Q0 + 2, K0))
    assert not r3 and not r2, (len(r2), len(r3), len(dma))
    stamp(4)
    a(cv(Q0 + 3, K0 + 2))
    a("s_nop 0")
    a(cv(Q1, Q1))
    mf32(K0, Q0, F, None)
    a(cv(Q1 + 1, Q1 + 2)); a(cv(Q1 + 2, K1)); a(cv(Q1 + 3, K1 + 2))
    a("s_nop 1")
    mf32(K1, Q1, F, None)
    X = Q0
    a(cv(X, K0)); a(cv(X + 1, K0 + 2))
    rsI = f"buffer_store_dword v{NEG1}, v{A_IMS}, {WS}, s{sIMr} offen"
    S1, S2, SM = Q1, K0, K1
    if not P['mx']:
        smf(a, *vq.pop(0))
        a("s_nop 0"); a(f"buffer_store_dword v{NEG1}, v{A_IMS}, {WS}, s{sIMr} offen", vm='rs'); a("s_nop 1")
        a(cv(X + 2, K1)); a(cv(X + 3, K1 + 2))
        a("s_nop 1")
        S1, S2, SM = Q1, K0, K1
        mf32(SM, X, X, None); mf32(S2, KX + 4, X, None); mf32(S1, KX, X, None)
        for r in range(2): a(ror8(SM + r, SM + 2 + r, '0xc'))
        smf(a, *vq.pop(0))
        a("s_nop 0")
        a(f"ds_write2_b32 v{A_SMW}, v{SM}, v{SM+1} offset0:0 offset1:32")
        a("s_nop 1")
        for r in range(4): a(ror8(S1 + r, S2 + r, '0xc'))
        smf(a, *vq.pop(0))
        a(f"ds_write_b128 v{L16}, {vr(S1,4)} offset:{L_S + own}")
    else:
        assert all(q[1] >= MA + 8 for q in vq)
        XL, XH = MA, MA + 4
        lo = lambda r: a(f"v_cndmask_b32 v{XL+r}, 0, v{X+r}, {sr(sMLO,2)}")
        hi = lambda r: a(f"v_mov_b32_dpp v{XH+r}, v{X+r} row_shr:8 row_mask:0xf bank_mask:0xf bound_ctrl:1")
        lo(0); lo(1); hi(0); hi(1); a("s_nop 0")
        a(cv(X + 2, K1)); a(cv(X + 3, K1 + 2))
        lo(2); lo(3)
        mf32(SM, X, X, None)
        hi(2); hi(3)
        mf32(S1, KX, XL, None)
        a("s_nop 0")
        mf32(S1, KX + 4, XH, S1)
        for r in range(2): a(ror8(SM + r, SM + 2 + r, '0xc'))
        dw2 = f"ds_write2_b32 v{A_SMW}, v{SM}, v{SM+1} offset0:0 offset1:32"
        dw4 = f"ds_write_b128 v{L16}, {vr(S1,4)} offset:{L_S + own}"
        smf(a, *vq.pop(0))
        if P['so'] == 0: a("s_nop 0"); a(dw2); a("s_nop 1"); a(dw4)
        elif P['so'] == 1: a("s_nop 0"); a(dw2); smf(a, *vq.pop(0)); a(dw4)
        else: smf(a, *vq.pop(0)); a(dw4); a(dw2)
    stamp(5)
    for k in range(P['nvA']):
        smf(a, *vq.pop(0))
        if k == P['nvA'] - 3 and not P['ls']: a(f"s_cmp_eq_u32 s{sS}, 63")
        if k == P['nvA'] - 2 and not P['ls']:
            a("s_cbranch_scc1 L_last"); LASTV[:] = list(vq)
        if k == 1 and w == 0:
            if P.get('fsk', 1):
                a(f"s_mov_b64 exec, {sr(sFM,2)}"); a(ldF, vm='fl'); a("s_mov_b64 exec, -1")
            else: a(ldF, vm='fl')
        if dma and dp[4 - len(dma)] == 100 and k == w + 1: a(dma.pop(0), vm='dma')
        if P['sv'] == 20 and k == min(3 - w, P['nvA'] - 1): a(stV, vm='km')
        if k == (w & 1) + (2 if w >= 2 and P['sv'] == 20 else 0) and P['mx']: a(rsI, vm='rs')
    a.wait(lg='all')
    a("s_barrier")
    stamp(6)
    R1, R2, R3, RM = K0, KX, KX + 4, K1
    a(f"ds_read_b128 {vr(RM,4)}, v{L16} offset:{L_SM}", lg='rm')
    a(f"ds_read_b128 {vr(R1,4)}, v{L16} offset:{L_S + oth(1)}", lg='r1')
    smf(a, *vq.pop(0))
    a(f"ds_read_b128 {vr(R2,4)}, v{L16} offset:{L_S + oth(2)}", lg='r2')
    a(f"ds_read_b128 {vr(R3,4)}, v{L16} offset:{L_S + oth(3)}", lg='r3')
    while vq:
        smf(a, *vq.pop(0))
        if dma and len(vq) <= max(2 - w, 0): a(dma.pop(0), vm='dma')
        if ones: a(ones.pop(0))
    assert not ones and not dma
    for _ in range(P.get('npd', 0)): mf16(MA, F, F, None)
    pka = lambda d, s0: f"v_pk_add_f32 {vr(d,2)}, {vr(d,2)}, {vr(s0,2)}"
    a.wait(lg='r1')
    a(f"v_add_f32 v{RM}, v{RM}, v{RM+1}\nv_add_f32 v{RM+2}, v{RM+2}, v{RM+3}")
    a(f"v_add_f32 v{S1}, v{S1}, v{R1}\nv_add_f32 v{S1+1}, v{S1+1}, v{R1+1}")
    a(pka(S1 + 2, R1 + 2))
    a(f"v_add_f32 v{RM}, v{RM}, v{RM+2}")
    if P['ad']:
        a.wait(lg='all')
        stamp(7)
        a(pka(R2, R3)); a(pka(R2 + 2, R3 + 2)); a(pka(S1, R2)); a(pka(S1 + 2, R2 + 2))
    else:
        a.wait(lg='r2')
        a(pka(S1, R2)); a(pka(S1 + 2, R2 + 2))
        a.wait(lg='all')
        stamp(7)
        a(pka(S1, R3)); a(pka(S1 + 2, R3 + 2))
    m0, m1 = K0, K0 + 1
    a(f"v_max3_f32 v{m0}, v{RM}, v{S1}, v{S1+1}")
    a(f"v_max3_f32 v{m0}, v{m0}, v{S1+2}, v{S1+3}")
    a(cv(V0, V0)); a(cv(V0 + 1, V0 + 2))
    a(f"v_max_f32_dpp v{m1}, v{m0}, v{m0} row_ror:8 row_mask:0xf bank_mask:0xf")
    a(f"v_max_f32_dpp v{m0}, v{m0}, v{m0} row_ror:8 row_mask:0xf bank_mask:0xf")
    a(cv(V0 + 2, V1)); a(cv(V0 + 3, V1 + 2))
    a(f"v_permlane32_swap_b32 v{m0}, v{m1}")
    a(f"v_max_f32 v{m0+2}, v{m0}, v{m1}")
    a(f"v_max_f32 v{m0+3}, v{m0}, v{m1}")
    a(f"v_permlane32_swap_b32 v{V0}, v{V0+1}")
    a(f"v_permlane32_swap_b32 v{V0+2}, v{V0+3}")
    a(f"v_permlane16_swap_b32 v{m0+2}, v{m0+3}")
    a(f"v_max_f32 v{m0}, v{m0+2}, v{m0+3}")
    a(f"v_mul_f32 v{m0}, s{sC}, v{m0}")
    a(f"v_fma_f32 v{RM}, v{RM}, s{sC}, -v{m0}")
    pkf = lambda r: f"v_pk_fma_f32 {vr(r,2)}, {vr(r,2)}, {sr(sC,2)}, {vr(m0,2)} op_sel_hi:[1,1,0] neg_lo:[0,0,1] neg_hi:[0,0,1]"
    ks = [(w + q) & 3 for q in range(1, 4)]
    r4 = [f"ds_read_b128 {vr(MA + 8*k + 4*hf, 4)}, v{A_W} offset:{lw_wo(3,k) + 1024*hf}" for k in [w] + ks for hf in range(2)]
    rd4 = lambda: a(r4.pop(0), lg='r4') if r4 else None
    BX, BM = K0, MA + 8 * ks[2] + 4
    O0, O1, L = KX, V1, K1
    a(f"v_exp_f32 v{RM}, v{RM}")
    a(pkf(S1)); a(pkf(S1 + 2))
    a(ror8(RM + 1, RM, '0xf'))
    a(cv(BM, RM)); a(cv(BM + 1, RM))
    a(f"v_exp_f32 v{S1}, v{S1}\nv_exp_f32 v{S1+1}, v{S1+1}")
    mf16(O0, V0, BM, None)
    a(f"v_exp_f32 v{S1+2}, v{S1+2}\nv_exp_f32 v{S1+3}, v{S1+3}")
    a(cv(BX, S1)); a(cv(BX + 1, S1 + 2))
    mf16(O1, V0 + 2, BM, None)
    a(ror8(BX + 2, BX, '0xf')); a(ror8(BX + 3, BX + 1, '0xf'))
    AC = [Q1, KX, V1, ONE]
    OW = KX + 4
    a(z2(AC[0])); a(z2(AC[0] + 2))
    mf32(O0, VX, BX, O0)
    stamp(8)
    if P['nr4'] >= 1: rd4()
    if P['nr4'] >= 4: rd4()
    mf32(O1, VX + 4, BX, O1)
    if P['nr4'] >= 2: rd4()
    if P['nr4'] >= 3: rd4()
    mf16(L, BM, HZ, None)
    a(cv(OW, O0)); a(cv(OW + 1, O0 + 2))
    a(z2(AC[1])); a(z2(AC[1] + 2))
    a(cv(OW + 2, O1)); a(cv(OW + 3, O1 + 2))
    mf32(L, BX, ONE, L)
    a("s_nop 0")
    a(f"ds_write_b128 v{A_OW}, {vr(OW,4)} offset:{L_O + own}")
    stamp(9)
    for r in range(4): a(ror8(OW + r, OW + r, '0xc'))
    a(z2(AC[2])); a(z2(AC[2] + 2))
    if P.get('z3', 1): a(z2(AC[3]))
    rcp = lambda r: a(f"v_rcp_f32 v{L+r}, v{L+r}")
    for r in range(P['nrc']): rcp(r)
    smf(a, AC[0], OW, wo_reg(0, w))
    a.wait(lg='all')
    a("s_barrier")
    stamp(10)
    OA = {ks[0]: VX, ks[1]: VX + 4, ks[2]: K0, w: OW}
    oard = lambda k: a(f"ds_read_b128 {vr(OA[k],4)}, v{A_O} offset:{L_O + 2048*k}", lg=('oa', k))
    g2 = lambda T, k: smf(a, AC[T], OA[k], wo_reg(T, k))
    mul = lambda T, r: a(f"v_mul_f32 v{AC[T]+r}, v{AC[T]+r}, v{L+r}")
    def cvt(T, r):
        a(cv(AC[T] + r, AC[T] + 2 * r))
        if r == 1: a(f"v_bfi_b32 v{AC[T]}, 1, s{sTAG}, v{AC[T]}")
    sto = lambda T: f"buffer_store_dwordx2 {vr(AC[T],2)}, v{A_H1S}, {WS}, s{sH1+T} offen"
    oard(ks[0]); oard(ks[1])
    g2(1, w); oard(ks[2]); a(z2(AC[3] + (2 if P.get('z3', 1) else 0)))
    g2(2, w)
    if not P.get('z3', 1): a(z2(AC[3] + 2))
    for r in range(P['nrc'], 4): rcp(r)
    own3 = P['nr4'] >= 2 and P.get('own3', 1)
    if own3: a("s_nop 1"); g2(3, w)
    a.wait(lg=('oa', ks[0])); g2(0, ks[0]); stamp(20); rd4()
    a.wait(lg=('oa', ks[1])); g2(0, ks[1]); rd4()
    a.wait(lg=('oa', ks[2])); g2(0, ks[2]); rd4()
    g2(1, ks[0]); rd4()
    if P['g2v'] >= 3:
        rd4(); a("s_nop 1")
        for r in range(4): mul(0, r)
        cvt(0, 0); cvt(0, 1)
        g2(1, ks[1]); a("s_nop 0"); a(sto(0), vm='h1')
        g2(1, ks[2]); g2(2, ks[0])
        if P['g2v'] == 3: g2(2, ks[1])
        else: a("s_nop 3")
        for r in range(4): mul(1, r)
        cvt(1, 0); cvt(1, 1)
        if P['g2v'] == 4: g2(2, ks[1]); a("s_nop 0"); a(sto(1), vm='h1')
    else:
        g2(1, ks[1]); rd4(); mul(0, 0)
        g2(1, ks[2]); rd4()
        mul(0, 1); mul(0, 2); mul(0, 3); cvt(0, 0); cvt(0, 1)
    assert not r4 or P['g2v'] == 0
    pkm = lambda T: a(f"v_pk_mul_f32 {vr(AC[T],2)}, {vr(AC[T],2)}, {vr(L,2)}\nv_pk_mul_f32 {vr(AC[T]+2,2)}, {vr(AC[T]+2,2)}, {vr(L+2,2)}")
    if P['g2v'] == 0:
        g2(2, ks[0]); a("s_nop 0"); a(sto(0), vm='h1')
        while r4: rd4()
        for r in range(4): mul(1, r)
        cvt(1, 0); cvt(1, 1)
        g2(2, ks[1]); a("s_nop 0"); a(sto(1), vm='h1')
    elif P['g2v'] == 1:
        a("s_nop 1"); a(sto(0), vm='h1')
        pkm(1); cvt(1, 0); cvt(1, 1)
        g2(2, ks[0]); a("s_nop 0"); a(sto(1), vm='h1')
        g2(2, ks[1])
    elif P['g2v'] == 2:
        pkm(1); cvt(1, 0); cvt(1, 1)
        g2(2, ks[0]); a("s_nop 0"); a(sto(0), vm='h1'); a(sto(1), vm='h1')
        g2(2, ks[1])
    stamp(21)
    g2(2, ks[2])
    if P['g2v'] == 3: a("s_nop 0"); a(sto(1), vm='h1')
    a.wait(lg='all')
    if not own3: g2(3, w)
    a(f"s_add_u32 s{sIMl}, s{sIMw}, {1024*(w ^ (2 if P.get('sw', 2) else 0))}\ns_add_u32 s{sIML}, s{sIMw}, {4096+1024*(w ^ (2 if P.get('sw', 2) == 2 else 0))}")
    g2(3, ks[0]); a(f"s_add_u32 s{sS}, s{sS}, 1\ns_mov_b32 s{sKMv}, s{sKM}")
    if not own3: mul(2, 0)
    g2(3, ks[1]); mul(2, 1)
    g2(3, ks[2])
    if own3: mul(2, 0)
    mul(2, 2); mul(2, 3); cvt(2, 0); cvt(2, 1)
    dS = P['dS']
    a(f"s_add_u32 s{sKM}, s{sKM}, 0x20000\ns_add_u32 s{sKV}, s{sKV}, {KVST}")
    if dS[0] < 0: a(sto(2), vm='h1')
    c = AC[3]
    a(f"v_pk_mul_f32 {vr(c,2)}, {vr(c,2)}, {vr(L,2)}\nv_pk_mul_f32 {vr(c+2,2)}, {vr(c+2,2)}, {vr(L+2,2)}")
    cvt(3, 0); cvt(3, 1)
    a("s_nop 1")
    if dS[1] < 0: a(sto(3), vm='h1')
    def bfix(l):
        if l.endswith(':') or l.startswith('s_memtime') or l.startswith('s_memrealtime'): return None
        if l.startswith('buffer_store_dwordx2'): return l + ' sc1'
        if l.startswith('buffer_') or l.startswith('s_cbranch') or l.startswith('s_mov_b64 exec'): return 's_nop 0'
        return l
    BBODY[w] = [f'L_bstep_{w}:', dwE, 's_nop 0'] + [l for l in map(bfix, a.lines[igo:ibk]) if l] + [f's_branch L_c_m6_{w}', f'L_bk_{w}:'] + [l for l in map(bfix, a.lines[ibk:]) if l] + ['s_branch L_btail']
    stamp(11)
    HA = KX
    ld1 = [f"buffer_load_dwordx4 {vr(HA+4*c_,4)}, v{L16}, {WS}, s{sH1l} offen offset:{1024*c_} sc1" for c_ in range(2)]
    HD, T1 = MA + 8, MA + 12
    idle = idle_work()
    late = [l for l in idle if any(l.startswith(f"v_mov_b64 v[{r}:") for r in (Q0, Q0 + 2, V0, V0 + 2, V1, V1 + 2))]
    dsq = [l for l in idle if l.startswith('ds_')]
    idle = [l for l in idle if l not in late and l not in dsq]
    ev = [(max(dS[k], 0), k, [(sto(2 + k) if dS[k] >= 0 else None, 'h1')]) for k in range(2)]
    ev.append((P['dH1'][w], -1 if w < 2 else 2, [(ld1[0], 'H0'), (ld1[1], 'H1')]))
    h2 = P.get('h2', [0, 0, 0, 0])[w]; HB = MA + 20
    if h2: ev.append((P['dH1'][w] + h2, 3, [(ld1[c_].replace(vr(HA + 4 * c_, 4), vr(HB + 4 * c_, 4)), f'B{c_}') for c_ in range(2)]))
    pos = 0; nst = 0
    for (tpos, _, ops) in sorted(ev):
        while pos < tpos:
            if idle and tpos - pos > 2: a(idle.pop(0)); pos += 1
            elif dsq and nst == 2 and tpos - pos >= 6:
                if P['kw']: mf32(MA + 24 if len(dsq) & 1 else MA + 4, F, F, None); a("s_nop 1")
                else: a("s_nop 2")
                a(dsq.pop(0), lg='pre'); pos += 4
            else: wdelay(tpos - pos); pos = tpos
        for (o, tag) in ops:
            if tag == 'H0' and P.get('ackw'): a(f"s_waitcnt vmcnt({max(3 - w - P['ackw'][w], 0)})")
            if o: a(o, vm=tag); pos += 1
            if tag == 'h1':
                nst += 1
                if nst == 2: idle += pack_km() + late
    for l in dsq + idle: a(l, lg='pre')
    dE = P['dE'][w]; pE = P['pE']; nPre = P['nPre'][w]; inGap = P['inGap'][w]
    eq = ['E0', 'E1', 'E2', 'E3', 'E4'][:P['nE']]; nE = len(eq)
    for k in range(nPre):
        wdelay(dE if k == 0 else pE); a(ldE if eq[0] == 'E0' else ldB, vm=eq.pop(0))
    nH0 = len(a.vm) - 1 - a.vm.index('H0')
    a(f"s_waitcnt vmcnt({nH0})")
    a.label(lb('a1'))
    stamp(12)
    mf32(HD, SEL, HA, None)
    a(f"v_bitop3_b32 v{T1}, v{HA}, v{HA+2}, s{sTAG} bitop3:0x7e")
    a.wait(vm='H1')
    mf32(HD, SEL, HA + 4, HD)
    a(f"v_bitop3_b32 v{T1+1}, v{HA+4}, v{HA+6}, s{sTAG} bitop3:0x7e\nv_bitop3_b32 v{T1}, v{T1}, v{T1+1}, 1 bitop3:0xa8\nv_cmp_ne_u32 vcc, 0, v{T1}")
    if inGap and eq:
        a("s_nop 1"); a(ldE if eq[0] == 'E0' else ldB, vm=eq.pop(0)); a("s_nop 0")
    else: a("s_nop 3")
    dpa = lambda r, n: f"v_add_f32_dpp v{r}, v{r}, v{r} row_ror:{n} row_mask:0xf bank_mask:0xf"
    a(dpa(HD, 4)); a(dpa(HD + 1, 4)); a("s_nop 0"); a(dpa(HD, 8)); a(dpa(HD + 1, 8))
    a(cv(HD, HD))
    if P['cs']:
        a(f"s_cmp_eq_u64 vcc, 0\ns_cselect_b32 s{sT+2}, s{sIMw}, 0x70000000")
        a(f"buffer_store_dword v{HD}, v{A_IMS}, {WS}, s{sT+2} offen", vm='im')
        if eq and (inGap or (len(eq) == nE and dE == 0)): a(ldE if eq[0] == 'E0' else ldB, vm=eq.pop(0))
        a(f"s_cbranch_vccnz {lb('r1')}")
        dE = max(dE - 4, 0)
    else:
        nB1 = len(a.vm) - 1 - a.vm.index('B1') if h2 else 0
        a(f"s_cbranch_vccnz {lb('r2' if h2 else 'r1')}")
        a(f"buffer_store_dword v{HD}, v{A_IMS}, {WS}, s{sIMw} offen", vm='im')
        a.label(lb('a2'))
        if inGap and eq: a(ldE if eq[0] == 'E0' else ldB, vm=eq.pop(0))
    stamp(13)
    misc = [f"ds_read_b128 {vr(KX+4*k,4)}, v{L16} offset:{L_KV + 4096*w + 1024*k}" for k in range(4)]
    misc += [f"s_mov_b32 s{sIMw}, s{sIMr}", f"s_add_u32 s{sIMr}, s{sIMr}, 0x2000", f"s_and_b32 s{sIMr}, s{sIMr}, 0xffff7fff",
             f"s_xor_b32 s{sTAG}, s{sTAG}, 1"]
    if P.get('lateL'): misc += [f"s_mov_b64 {sr(sLX,2)}, -1"]
    if P.get('nod', 1) and not P['ls']: misc += [f"s_cmp_eq_u32 s{sS}, 63", f"s_cselect_b32 s{sKV}, 0x70000000, s{sKV}"]
    if w == 0: misc = [f"v_cmp_gt_u32 vcc, 32, v{FLV}"] + misc + [f"s_cbranch_vccnz {lb('rF')}\n{lb('bF')}:", f"s_add_u32 s{sFLn}, s{sS}, 2", f"s_lshr_b32 s{sFLn}, s{sFLn}, 3", f"s_min_u32 s{sFLn}, s{sFLn}, 7", f"s_lshl2_add_u32 s{sFLn}, s{sFLn}, {DBG_DN + DBG_KVC}",
                     f"s_cmp_lt_u32 s{sS}, 2", f"s_cselect_b32 s{sFLn}, {DBG_DN + DBG_KV0}, s{sFLn}",
                     f"s_cmp_lg_u32 s{sFL}, s{sFLn}", f"s_cselect_b64 {sr(sFM,2)}, -1, 0", f"s_mov_b32 s{sFL}, s{sFLn}"]
    misc += sync_tmp(P, w)
    def delay(n):
        while n > 0 and misc: a(misc.pop(0), lg='pre'); n -= 1
        wdelay(n)
    while eq:
        delay(dE if len(eq) == nE else pE); a(ldE if eq[0] == 'E0' else ldB, vm=eq.pop(0))
    delay(len(misc))
    if P.get('pr'):
        i0 = a.lines.index(lb('top') + ':'); i0 = a.lines.index('s_barrier', i0) + 1
        body = a.lines[i0:]; a.lines = a.lines[:i0] + ["s_memtime s[72:73]"]; used = [0]; n = 0
        LISTING[w] = [l for l in body if not l.endswith(':')]
        for l in body:
            if not l.endswith(':'):
                if n in P['pr']: a.lines.append(f"s_memtime s[{72+2*len(used)}:{73+2*len(used)}]"); used.append(n)
                n += 1
            a.lines.append(l)
    if used:
        a("s_waitcnt lgkmcnt(0)")
        if P.get('trace'):
            a("s_nop 7")
            for k in range(len(used)): a(f"v_mov_b32 v{MA+8+k}, s{72+2*k}")
            a(f"s_lshl_b32 s{sT}, s{sH}, 12\ns_lshl_b32 s{sT+1}, s{sS}, 4\ns_add_u32 s{sT}, s{sT}, s{sT+1}\ns_add_u32 s{sT}, s{sT}, {WS_STAMP + 65536 + 1024*w}\ns_mov_b64 exec, 1")
            a(f"buffer_store_dwordx4 {vr(MA+8,4)}, v{L16}, {WS}, s{sT} offen", vm='tr')
            a("s_mov_b64 exec, -1")
        else:
            for k in range(1, len(used)):
                a(f"s_sub_u32 s{sT}, s{72+2*k}, s{70+2*k}\ns_add_u32 s{88+k}, s{88+k}, s{sT}")
    if w == 0: wdelay(P['dT'])
    if P.get('stat') == 1:
        a(f"s_cmp_lg_u32 s{sS}, 3\ns_cbranch_scc1 {lb('nst')}\ns_memtime s[68:69]\ns_memrealtime s[62:63]\ns_mov_b32 s70, 0\ns_mov_b32 s71, 0")
        for k in range(8): a(f"s_mov_b32 s{88+k}, 0")
        a.label(lb('nst'))
    young = lambda t: len(a.vm) - 1 - a.vm.index(t)
    eL = 1 if P['dwf'] else P['earlyL']
    ns = [young(f'E{k}') + k + (eL if k else 0) for k in range(nE)]
    a.lines[a.lines.index(lb('top') + ':') + 1] = f"s_waitcnt vmcnt({ns[0]}) lgkmcnt(0)"
    fin = "s_branch L_exit" if P.get('stat') or P.get('dbgt') else "s_endpgm"
    spin = f"s_add_u32 s{sSPIN}, s{sSPIN}, 1\ns_cmp_gt_u32 s{sSPIN}, {SPIN_MAX}\ns_cbranch_scc1 L_exit\n"
    if not P['ls']:
        a(f"s_branch {lb('top')}")
        end_main = len(a.lines)
        if w == 0: a.label('L_last'); chain_last(a); a(fin)
    else:
        a(f"s_cmp_lg_u32 s{sS}, 63\ns_cbranch_scc1 {lb('top')}")
        end_main = len(a.lines)
        a(f"s_waitcnt vmcnt({ns[0]}) lgkmcnt(0)")
        a.label(lb('l0'))
        a.vm = []; a.lg = []
        a(chkE); a(dwE); a(f"s_cbranch_vccnz {lb('l1')}")
        a(ldL)
        kk = lambda sg: [(K0, MA + 4 * sg, wqk_reg(sg, 1)), (K1, MA + 4 * sg, wqk_reg(sg, 3))]
        vv = lambda sg: [(V0 + 4 * t_, MA + 4 * sg, wv_reg(sg, t_)) for t_ in range(2)]
        for q in kk(0): smf(a, *q)
        a.wait(lg='all'); a("s_barrier")
        for sg in (1, 2, 3): a(mrd(sg), lg=('ma', sg))
        for q in vv(0): smf(a, *q)
        a(stV)
        for u in (1, 3):
            for hf in range(2): a(f"ds_read_b128 {vr(ST + 8*u + 4*hf, 4)}, v{A_W} offset:{lw_qk(4, u) + 1024*hf}")
        for sg in (1, 2):
            a.wait(lg=('ma', sg))
            for q in kk(sg) + vv(sg): smf(a, *q)
        a("s_waitcnt vmcnt(1) lgkmcnt(0)"); a.lg = []
        a.label(lb('l2'))
        a('\n'.join(chkL)); a(dwL); a(f"s_cbranch_vccnz {lb('l3')}")
        for q in kk(3) + vv(3): smf(a, *q)
        a.wait(lg='all'); a("s_barrier")
        for sg in (5, 6, 7): a(mrd(sg), lg=('ma', sg))
        for q in kk(4) + vv(4): smf(a, *q)
        for sg in (5, 6, 7):
            a.wait(lg=('ma', sg))
            for q in kk(sg): smf(a, *q)
        vr_ = vv(5) + vv(6) + vv(7)
        smf(a, *vr_.pop(0)); smf(a, *vr_.pop(0))
        a(cv(Q0 + 2, K0)); a(cv(Q0 + 3, K0 + 2)); a(cv(Q1 + 2, K1)); a(cv(Q1 + 3, K1 + 2))
        smf(a, *vr_.pop(0))
        mf32(K0, Q0, F, None); mf32(K1, Q1, F, None)
        while vr_: smf(a, *vr_.pop(0))
        a(cv(Q0, K0)); a(cv(Q0 + 1, K0 + 2)); a(cv(Q0 + 2, K1)); a(cv(Q0 + 3, K1 + 2))
        LASTV[:] = []
        chain_last(a, 1); a(fin)
        a.label(lb('l1'))
        a(ldE); a(spin + f"s_waitcnt vmcnt({nE-1})\ns_branch {lb('l0')}")
        a.label(lb('l3'))
        a(ldL); a(spin + f"s_waitcnt vmcnt(0)\ns_branch {lb('l2')}")
    cnt = lambda r, v: (f"s_add_u32 s{r}, s{r}, {v}\n" if P.get('stat') == 1 else '')
    spin = f"s_add_u32 s{sSPIN}, s{sSPIN}, 1\ns_cmp_gt_u32 s{sSPIN}, {SPIN_MAX}\ns_cbranch_scc1 L_exit\n"
    for k in range(1, nE + 1):
        a.label(lb(f'f{k}'))
        late = P['lb1'] and k == 1
        if P['lb1'] and k == 2: a(ldB)
        if P.get('fpad') and k >= P.get('fpk', 1): nops(a, P['fpad'])
        if not late: a(ldB)
        a(f"s_waitcnt vmcnt({(ns[k] if k < nE else nE - 1) - (1 if late else 0)})")
        if P['dwf']: a(f"v_mov_b64 {vr(MA,2)}, {vr(EB,2)}\nv_mov_b64 {vr(MA+2,2)}, {vr(EB+2,2)}\ns_nop 0"); a(dwE); a(chkE)
        else: a(chkE); a(cnt(71, 1) or 's_nop 0'); a(dwE)
        a(f"s_cbranch_vccnz {lb(f'f{k+1}')}")
        if not P.get('lateL'): a(ldL)
        if P['dup'] and k == 1:
            a.lines += dupA; a(f"s_branch {lb('go2')}")
        else: a(f"s_branch {lb('go')}")
    a.label(lb(f'f{nE+1}'))
    a(spin + f"s_branch {lb(f'f{nE}')}")
    if prober:
        a.label(lb('p1'))
        a(probe); a(chkL[1]); a(chkL[2]); a(f"s_cbranch_vccnz {lb('rL')}")
        a. label(lb('p2'))
        for k in range(3):
            a(cnt(70, 65536) + f"s_waitcnt vmcnt({npr-1})\nv_cmp_ne_u32 vcc, s{sS}, v{FLV}"); a(probe); a(f"s_cbranch_vccz {lb('bL')}")
        a(spin + f"s_branch {lb('p2')}")
    a.label(lb('rL'))
    a(ldL)
    a(cnt(71, 65536) + spin + "s_waitcnt vmcnt(0)")
    a(dwL)
    a('\n'.join(chkL))
    a(f"s_waitcnt lgkmcnt(0)\ns_cbranch_vccnz {lb('rL')}\ns_branch {lb('p2' if prober else 'bL')}")
    if w == 0:
        a.label(lb('rF'))
        a(ldF); a(spin + f"s_waitcnt vmcnt(0)\nv_cmp_gt_u32 vcc, 32, v{FLV}\ns_cbranch_vccnz {lb('rF')}\ns_branch {lb('bF')}")
    if h2:
        a.label(lb('r2'))
        a(f"s_waitcnt vmcnt({nB1})")
        mf32(HD, SEL, HB, None)
        a(f"v_bitop3_b32 v{T1}, v{HB}, v{HB+2}, s{sTAG} bitop3:0x7e\nv_bitop3_b32 v{T1+1}, v{HB+4}, v{HB+6}, s{sTAG} bitop3:0x7e")
        mf32(HD, SEL, HB + 4, HD)
        a(f"v_bitop3_b32 v{T1}, v{T1}, v{T1+1}, 1 bitop3:0xa8\nv_cmp_ne_u32 vcc, 0, v{T1}\n" + (cnt(70, 65536) or 's_nop 0\n') + "s_nop 3")
        a(dpa(HD, 4)); a(dpa(HD + 1, 4)); a("s_nop 0"); a(dpa(HD, 8)); a(dpa(HD + 1, 8))
        a(cv(HD, HD))
        a(f"s_cbranch_vccnz {lb('r1')}")
        a(f"buffer_store_dword v{HD}, v{A_IMS}, {WS}, s{sIMw} offen")
        a(f"s_branch {lb('a2')}")
    a.label(lb('r1'))
    a(ld1[0]); a(ld1[1])
    a(cnt(70, 1) + spin + f"s_waitcnt vmcnt(0)\ns_branch {lb('a1')}")
    a.label(lb('step'))
    if P.get('lateL'): a(f"s_mov_b64 {sr(sLX,2)}, 0")
    for l in sync_tmp(P, w): a(l)
    a(dwE)
    a(f"s_branch {lb('go')}")
    return end_main, None
```

```python
from asmlib import *

WS_KV = 65536
WS_KM = (34 << 20) + 65536
WS_H1 = 48 << 20
WS_IMG = WS_H1 + (512 << 10)
WS_FL = WS_IMG + (64 << 10)
WS_H1B = WS_H1 + (256 << 10)
WS_IMB = WS_IMG + (128 << 10)
DBG_ARM = 132
ARM_ALL = {0: 32, 1: 64, 2: 64, 3: 64}
WS_STAMP = 49 << 20
WS_SIZE = 268435456
DBG_XCNT = 0
DBG_CBAR = 4
DBG_KV0 = 12
DBG_KVC = 16
DBG_DN = 128
L_MEM, L_S, L_KV, L_W = 0, 8192, 16384, 32768
L_O = L_MEM + 1024
L_SM = L_S + 1024
L_MISC = L_S + 5120
S_WS, S_WQ, S_WK, S_WV, S_WO, S_DBG, S_M0 = 4, 8, 12, 16, 20, 24, 28
sH, sW, sS = 32, 33, 34
sKV, sKM, sH1l, sTAG, sIMl = 35, 36, 37, 38, 39
sH1 = 40
sIMw, sIMr, sFL, sSPIN = 44, 45, 46, 47
sIML, sKMv = 59, 58
sONE, sMLO, sFLn, sRB, sFM, sLX = 84, 86, 3, 2, 54, 56
sFG, sKB = 80, 81
sC = 48
sT = 50
IDX, L16, A_W, A_SMW, NEG1, A_O, A_H1S, A_IMS = 0, 1, 2, 3, 4, 5, 6, 7
A_OW, FLV, HZ = 8, 9, 10
F, SEL, ONE = 12, 16, 20
MA = 24
Q0, K0, Q1, K1, V0, V1 = 56, 60, 64, 68, 72, 76
KX, VX, ST = 80, 88, 96
RW = 128
SPIN_MAX = 1000000

QK_A = {1: 0, 2: 1, 3: 2, 5: 3, 6: 4, 7: 5}
def wqk_reg(sig, u):
    if sig in (0, 4): return ('v', ST + 8 * u)
    return ('a', 32 * QK_A[sig] + 8 * u)
def wv_reg(sig, tau):
    if sig < 4: return ('a', 192 + 8 * (2 * sig + tau))
    return ('v', RW + 8 * (2 * (sig - 4) + tau))
def wo_reg(T, k2):
    if T < 2: return ('v', RW + 64 + 8 * (4 * T + k2))
    return ('v', (ST if T == 2 else MA) + 8 * k2)
def R8(r): return vr(r[1], 8, r[0])
def smf(a, D, A, B): a(f"v_smfmac_f32_16x16x64_bf16 {vr(D,4)}, {vr(A,4)}, {R8(B)}, v{IDX}")
def lw_qk(sig, u): return 8192 * (sig >> 2) + 4096 * (u & 1) + 2048 * (u >> 1)
def lw_wo(T, k2): return 16384 + 2048 * (4 * (T - 2) + k2)
def nops(a, n):
    while n > 0:
        k = min(n, 16); a(f"s_nop {k-1}"); n -= k

def imo(P, k):
    return (k & 1) * 128 + (k >> 1) * 2048 if P.get('il', 0) else 1024 * k
def ima(P, dst):
    return [f"v_and_b32 v{dst}, 0x380, v{L16}", f"v_add_u32 v{dst}, v{dst}, v{L16}"] if P.get('il', 0) else []

def srd(a, s, koff, size):
    a(f"s_load_dwordx2 {sr(s,2)}, s[0:1], {koff}")
    a(f"s_mov_b32 s{s+2}, {size}\ns_mov_b32 s{s+3}, 0x20000")

def chain_setup(a, P):
    t = 96
    lane, i, g, g1, g0, hi, i3, i2 = t + 1, t + 2, t + 3, t + 6, t + 7, t + 8, t + 9, t + 10
    x, y, z = t + 5, t + 12, t + 13
    a(f"""
    v_and_b32 v{lane}, 63, v0
    v_and_b32 v{i}, 15, v{lane}
    v_lshrrev_b32 v{g}, 4, v{lane}
    v_lshlrev_b32 v{L16}, 4, v{lane}
    v_lshrrev_b32 v{g1}, 1, v{g}
    v_and_b32 v{g0}, 1, v{g}
    v_lshrrev_b32 v{hi}, 3, v{i}
    v_and_b32 v{i3}, 3, v{i}
    v_lshrrev_b32 v{i2}, 2, v{i}
    s_lshl_b32 s{sT+1}, s{sW}, 15
    s_add_u32 s{sT+1}, s{sT+1}, {L_W}
    v_add_u32 v{A_W}, s{sT+1}, v{L16}
    v_lshl_add_u32 v{y}, v{hi}, 1, v{g0}
    v_and_b32 v{x}, 7, v{i}
    v_lshl_add_u32 v{x}, v{y}, 4, v{x}
    v_lshlrev_b32 v{x}, 4, v{x}
    v_add_u32 v{y}, s{sW}, v{y}
    v_and_b32 v{y}, 3, v{y}
    v_lshl_add_u32 v{x}, v{y}, 2, v{x}
    v_xor_b32 v{y}, 1, v{g1}
    v_lshl_add_u32 v{x}, v{y}, 11, v{x}
    v_add_u32 v{A_SMW}, {L_SM}, v{x}
    v_mov_b32 v{HZ}, 0x3f803f80
    v_mov_b32 v{HZ+1}, 0
    v_mov_b32 v{NEG1}, -1
    v_and_b32 v{A_O}, 0x37f, v{L16}
    v_lshlrev_b32 v{y}, 7, v{g0}
    v_or_b32 v{A_O}, v{A_O}, v{y}
    v_xor_b32 v{A_OW}, v{L16}, v{y}
    v_mov_b32 v{FLV}, 0
    v_cmp_lt_u32 vcc, 7, v{i}
    v_mov_b32 v{y}, 0x4444
    v_mov_b32 v{z}, 0xeeee
    v_cndmask_b32 v{t+11}, v{y}, v{z}, vcc
    """)
    if P.get('x4'):
        a(f"""
        v_lshlrev_b32 v{x}, 3, v{g1}
        v_lshl_add_u32 v{x}, v{i2}, 1, v{x}
        v_add_u32 v{x}, v{x}, v{g0}
        v_lshlrev_b32 v{x}, 11, v{x}
        v_lshl_add_u32 v{x}, v{i3}, 4, v{x}
        s_lshl_b32 s{sT+2}, s{sW}, 15
        s_lshl_b32 s{sT+3}, s{sH}, 6
        s_add_u32 s{sT+2}, s{sT+2}, s{sT+3}
        v_add_u32 v{A_H1S}, s{sT+2}, v{x}
        """)
    else:
        a(f"""
        v_lshlrev_b32 v{x}, 2, v{g1}
        v_lshl_add_u32 v{x}, v{hi}, 1, v{x}
        v_add_u32 v{x}, v{x}, v{g0}
        s_lshl_b32 s{sT+2}, s{sW}, 3
        v_add_u32 v{x}, s{sT+2}, v{x}
        v_lshrrev_b32 v{y}, 1, v{x}
        v_lshrrev_b32 v{z}, 4, v{x}
        v_xor_b32 v{y}, v{y}, v{z}
        v_and_b32 v{y}, {P.get('hx', 0)}, v{y}
        v_lshlrev_b32 v{y}, 2, v{y}
        v_xor_b32 v{y}, s{sH}, v{y}
        v_lshlrev_b32 v{y}, 6, v{y}
        v_lshl_add_u32 v{x}, v{x}, 11, v{y}
        v_and_b32 v{y}, 7, v{i}
        v_lshl_add_u32 v{A_H1S}, v{y}, 3, v{x}
        """)
    a(f"""
    s_lshl_b32 s{sT+2}, s{sW}, 5
    s_add_u32 s{sT+2}, s{sT+2}, s{sH}
    s_lshl_b32 s{sT+2}, s{sT+2}, 6
    """)
    if P.get('il', 0):
        a(f"""
        s_and_b32 s{sT+3}, s{sT+2}, 0x380
        s_bfe_u32 s{sT}, s{sT+2}, 0x1000a
        s_and_b32 s{sT+2}, s{sT+2}, 0x1840
        s_lshl_b32 s{sT+3}, s{sT+3}, 1
        s_lshl_b32 s{sT}, s{sT}, 7
        s_or_b32 s{sT+2}, s{sT+2}, s{sT+3}
        s_or_b32 s{sT+2}, s{sT+2}, s{sT}
        """)
    a(f"""
    v_lshlrev_b32 v{x}, 4, v{g}
    v_lshl_add_u32 v{x}, v{i}, 2, v{x}
    v_add_u32 v{x}, s{sT+2}, v{x}
    v_cmp_gt_u32 vcc, 4, v{i}
    v_bfrev_b32 v{z}, 1
    s_nop 0
    v_cndmask_b32 v{A_IMS}, v{z}, v{x}, vcc
    """)
    a(f"""
    v_lshl_add_u32 v{x}, v{hi}, 2, v{i3}
    v_and_b32 v{y}, 1, v{i2}
    v_cmp_eq_u32 vcc, v{y}, v{g0}
    v_mov_b32 v{z}, 64
    s_nop 0
    v_cndmask_b32 v{x}, v{z}, v{x}, vcc
    v_and_b32 v{y}, 1, v{i}
    v_lshl_add_u32 v{t+14}, v{y}, 2, v{i2}
    v_cmp_gt_u32 vcc, 2, v{i3}
    s_mov_b32 s{sT+3}, 0x3f80
    s_nop 0
    v_cndmask_b32 v{t+14}, v{z}, v{t+14}, vcc
    """)
    for base, pos in ((F, x), (SEL, t + 14)):
        a(f"""
        v_and_b32 v{t+15}, 1, v{pos}
        v_lshlrev_b32 v{t+15}, 4, v{t+15}
        v_lshlrev_b32 v{t+15}, v{t+15}, s{sT+3}
        v_lshrrev_b32 v{t+16}, 1, v{pos}
        """)
        for d in range(4):
            a(f"""
            v_cmp_eq_u32 vcc, {d}, v{t+16}
            s_nop 1
            v_cndmask_b32 v{base+d}, 0, v{t+15}, vcc
            """)
    a(f"""
    v_and_b32 v{t+16}, 1, v{i2}
    v_lshl_add_u32 v{t+14}, v{g0}, 2, v{t+16}
    v_lshl_add_u32 v{t+16}, v{g0}, 1, v{t+16}
    v_xor_b32 v{t+16}, s{sW}, v{t+16}
    v_lshlrev_b32 v{t+16}, 6, v{t+16}
    v_add_u32 v{t+16}, {L_W}, v{t+16}
    v_lshl_add_u32 v{t+15}, v{hi}, 3, v{t+14}
    v_lshl_add_u32 v{t+15}, v{t+15}, 8, v{t+16}
    v_lshl_add_u32 v{t+15}, v{g1}, 15, v{t+15}
    v_lshl_add_u32 v58, v{i3}, 4, v{t+15}
    v_add_u32 v61, 0x10000, v58
    v_lshl_add_u32 v{t+15}, v{g1}, 3, v{t+14}
    v_lshl_add_u32 v{t+15}, v{t+15}, 8, v{t+16}
    v_lshl_add_u32 v{t+15}, v{hi}, 5, v{t+15}
    v_lshl_add_u32 v59, v{i3}, 3, v{t+15}
    v_add_u32 v62, 0x10000, v59
    v_and_b32 v{x}, 7, v{i}
    v_lshlrev_b32 v{x}, 10, v{x}
    v_lshl_add_u32 v{x}, v{g}, 5, v{x}
    v_lshl_add_u32 v{x}, v{hi}, 4, v{x}
    s_lshl_b32 s{sT+2}, s{sW}, 7
    v_add_u32 v60, s{sT+2}, v{x}
    v_mov_b32 v{IDX}, v{t+11}
    """)
    for k in range(4): a(f"v_mov_b32 v{64+k}, -1")

def chain_prologue(a, P):
    WS = sr(S_WS, 4)
    a(f"""
    s_mov_b32 s{sS}, 0
    s_lshl_b32 s{sT}, s{sH}, 2
    s_add_u32 s{sT}, s{sT}, s{sW}
    s_lshl_b32 s{sKV}, s{sT}, 12
    s_add_u32 s{sKV}, s{sKV}, {WS_KV}
    s_lshl_b32 s{sKM}, s{sT}, 10
    s_mov_b32 s{sFLn}, {DBG_DN + DBG_KV0}
    s_add_u32 s{sKM}, s{sKM}, {WS_KM}
    s_mov_b32 s{sH1}, {WS_H1}
    s_mov_b32 s{sH1+1}, {WS_H1 + 65536}
    s_mov_b32 s{sH1+2}, {WS_H1 + 2*65536}
    s_mov_b32 s{sH1+3}, {WS_H1 + 3*65536}
    s_lshl_b32 s{sT}, s{sW}, 5
    s_add_u32 s{sT}, s{sT}, s{sH}
    s_lshl_b32 s{sT}, s{sT}, 11
    s_add_u32 s{sH1l}, s{sT}, {WS_H1}
    s_mov_b32 s{sTAG}, 0
    s_mov_b32 s{sIMw}, {WS_IMG + 8192}
    s_mov_b32 s{sIMr}, {WS_IMG + 16384}
    s_mov_b32 s{sIMl}, {WS_IMG}
    s_mov_b32 s{sIML}, {WS_IMG}
    s_mov_b32 s{sKMv}, 0x70000000
    s_mov_b32 s{sONE}, 0x3f803f80
    s_mov_b32 s{sONE+1}, 0x3f803f80
    s_mov_b32 s{sMLO}, 0x00ff00ff
    s_mov_b32 s{sMLO+1}, 0x00ff00ff
    s_mov_b32 s{sC}, 0x3e0293ee
    s_mov_b32 s{sC+1}, 0x3e0293ee
    """)
    NB = P.get('tb', 1)
    if NB:
        a(f"s_cmp_lg_u32 s{sRB}, 0\ns_cbranch_scc1 L_c_b0\ns_mov_b32 s{sS}, {NB}\ns_add_u32 s{sKV}, s{sKV}, {0x80000*NB}\ns_add_u32 s{sKM}, s{sKM}, {0x20000*NB}\ns_branch L_c_b1")
        a.label('L_c_b0')
        for T in range(4): a(f"s_mov_b32 s{sH1+T}, {WS_H1B + 65536*T}")
        a(f"s_mov_b32 s{sIMr}, 0x70000000")
        a(f"s_add_u32 s{sH1l}, s{sH1l}, {WS_H1B - WS_H1}\ns_mov_b32 s{sIMw}, {WS_IMB}")
        for j in range(NB):
            a(f"s_add_u32 s{sT}, s{sKV}, {0x80000*j}")
            for k in range(4): a(f"buffer_store_dwordx4 v[64:67], v{L16}, {WS}, s{sT} offen offset:{1024*k} sc1"); a.vm.pop()
            if j: a(f"s_mov_b32 s{sT}, {WS_IMB + 8192*j}\nbuffer_store_dword v64, v{A_IMS}, {WS}, s{sT} offen sc1"); a.vm.pop()
        a.label('L_c_b1')
    a(f"""
    buffer_store_dwordx4 v[64:67], v{L16}, {WS}, s{sH1l} offen sc1
    buffer_store_dwordx4 v[64:67], v{L16}, {WS}, s{sH1l} offen offset:1024 sc1
    buffer_store_dword v64, v{A_IMS}, {WS}, s{sIMw} offen sc1
    v_xor_b32 v63, {256 if P.get('sw', 2) else 0}, v60
    buffer_load_dwordx4 {vr(MA,4)}, v63, {sr(S_M0,4)}, 0 offen
    buffer_load_dwordx4 {vr(MA+16,4)}, v{63 if P.get('sw', 2) == 2 else 60}, {sr(S_M0,4)}, 0 offen offset:512
    """, vm='init')
    for w in range(3): a(f"s_cmp_eq_u32 s{sW}, {w}\ns_cbranch_scc1 L_cp_{w}")
    a("s_branch L_cp_3")

UNITS = []; SLOT = {}; ISSUE = {}
def plan_units(P):
    L = [(m, k) for m in P.get('mord', 'vkq') for k in range(8)]
    if P.get('ilv', 0):
        U = []
        for i in range(8): U += L[3 * i:3 * i + 3] + [('o', i)]
    else: U = L + [('o', u) for u in range(8)]
    UNITS[:] = U; SLOT.clear(); ISSUE.clear()
    fin = lambda u: U[u][0] == 'o' and U[u][1] >= 4
    free = list(range(8)); nxt = 0
    for it in range(-1, 32):
        if it >= 1 and not fin(it - 1): free.append(SLOT[it - 1])
        ISSUE[it] = []
        if it == 0: continue
        while nxt < 32:
            if fin(nxt):
                if U[nxt][1] not in free: break
                s = U[nxt][1]
            else:
                soon = [U[v][1] for v in range(nxt + 1, min(nxt + 8, 32)) if fin(v)]
                c = [x for x in free if x not in soon]
                if not c: break
                s = c[0]
            free.remove(s); SLOT[nxt] = s; ISSUE[it].append(nxt); nxt += 1
    assert nxt == 32
sLB, sO1, sHB, sHO = sT + 4, sT + 5, sT + 6, sT + 7
PF = ['']
def issue_one(a, u, i):
    kind, x = UNITS[u]
    if kind == 'o': base, off, step, voff, S = sHO, 64 * (x & 1) * 1024 + 256 * (x >> 1), 4 * 1024, 57, S_WO
    else: base, off, step, voff, S = sHB, x << 19, 4 * 8192, 56, {'q': S_WQ, 'k': S_WK, 'v': S_WV}[kind]
    a(f"s_add_u32 m0, s{sLB}, {SLOT[u] * 4096 + i * 1024}")
    a(f"s_add_u32 s{sO1}, s{base}, {off + i * step}")
    a(f"buffer_load_dwordx4 v{voff - 4 * (i & 1)}, {sr(S,4)}, s{sO1} offen {PF[0]} lds", vm=('u', u))
def issue_unit(a, u):
    for i in range(4): issue_one(a, u, i)

def chain_first_dma(a):
    a(f"""
    v_bfe_u32 v96, v0, 4, 2
    v_and_b32 v97, 15, v0
    v_bfe_u32 v98, v0, 4, 1
    v_lshlrev_b32 v98, 2, v98
    v_xor_b32 v97, v97, v98
    v_lshlrev_b32 v97, 4, v97
    v_lshl_add_u32 v56, v96, 13, v97
    v_lshl_add_u32 v57, v96, 10, v97
    v_xor_b32 v52, 128, v56
    v_xor_b32 v53, 128, v57
    s_lshl_b32 s{sLB}, s{sW}, 15
    s_add_u32 s{sLB}, s{sLB}, {L_W}
    s_lshl_b32 s{sHB}, s{sH}, 8
    s_lshl_b32 s{sT+2}, s{sW}, 17
    s_add_u32 s{sHB}, s{sHB}, s{sT+2}
    s_lshl_b32 s{sHO}, s{sH}, 17
    s_lshl_b32 s{sT+2}, s{sW}, 14
    s_add_u32 s{sHO}, s{sHO}, s{sT+2}
    """)
    for u in ISSUE[-1]: issue_unit(a, u)

def chain_prologue_w(a, P, w, vm0):
    WS = sr(S_WS, 4)
    a.label(f'L_cp_{w}')
    a.vm = list(vm0); a.lg = []
    TB = P.get('tb', 1); ALL = 32
    PK4 = 64
    for l in ima(P, 54): a(l)
    def wb(u):
        for i in range(4): a(f"ds_write_b128 v{A_W}, {vr(28 + 16*(i>>1) + 4*(i&1),4)} offset:{SLOT[u] * 4096 + 1024*i}")
    for u in range(32):
        kind, x = UNITS[u]
        a.wait(vm=('u', u))
        a("s_barrier")
        if u == P.get('ek', 30) - 6: a(f"s_lshl_b32 s{sT+2}, s{sRB}, 12\nbuffer_load_dword v39, off, {sr(S_DBG,4)}, s{sT+2} offset:{DBG_KV0} sc1", vm='fe')
        if P.get('pu') == u: a("s_memrealtime s[100:101]")
        dq = [(v, i) for v in ISSUE[u] for i in range(4)]
        if u == 9:
            for r in list(range(MA, MA + 4)) + list(range(MA + 16, MA + 20)): a(f"v_min_u32 v{r}, -2, v{r}")
            if w == 0:
                a(f"s_cmp_lg_u32 s{sRB}, 0\ns_cselect_b32 s{sT+2}, {DBG_ARM}, {DBG_CBAR}\ns_mov_b64 exec, 1\nv_mov_b32 v38, 1")
                a(f"buffer_atomic_add v38, off, {sr(S_DBG,4)}, s{sT+2}", vm='at')
                a("s_mov_b64 exec, -1")
        if u == P.get('uw', 25):
            a(f"s_getpc_b64 {sr(sT,2)}")
            a.label(f'L_cpc_{w}')
            a(f"v_lshlrev_b32 v63, 3, v{L16}\ns_cmp_lg_u32 s{sRB}, 0\ns_cselect_b32 s{sT+2}, s{sIMr}, {WS_IMG + 8192*w}\ns_cselect_b32 s{sT+3}, s{sIMr}, s{sH1l}")
            a(f"buffer_load_dword v36, v63, {WS}, s{sT+2} offen sc1", vm='w')
            a(f"v_and_b32 v37, 0x780, v63\nv_min_u32 v63, L_step_{w}-L_top_{w}, v63\nv_add_u32 v63, L_top_{w}-L_cpc_{w}, v63")
            if TB: a(f"s_mul_i32 s{sT+2}, s{sRB}, L_bstep_{w}-L_top_{w}\nv_add_u32 v63, s{sT+2}, v63")
            a(f"buffer_load_dword v36, v37, {WS}, s{sT+3} offen sc1", vm='w')
            a(f"global_load_dword v36, v63, {sr(sT,2)}", vm='w')
            if P.get('tlb', 1) and w < 2:
                a(f"s_mov_b32 s{sT+2}, {(WS_KV if w == 0 else WS_KM) - 4096}")
                a(f"buffer_load_dword v36, off, {WS}, s{sT+2} sc1", vm='w')
        fin = lambda v: UNITS[v][0] == 'o' and UNITS[v][1] >= 4
        if u == 1 + max(v for v in range(32) if not fin(v)):
            for sg, src in ((0, ST), (4, PK4)):
                for uu in range(4):
                    for hf in range(2): a(f"ds_write_b128 v{A_W}, {vr(src + 8*uu + 4*hf,4)} offset:{lw_qk(sg, uu) + 1024*hf}")
                a.wait(lg='all')
        fl0 = f"s_mul_i32 s{sT}, s{sRB}, {DBG_ARM - DBG_CBAR}\ns_mul_i32 s{sT+1}, s{sRB}, {DBG_ARM - DBG_KV0}\nbuffer_load_dword v36, off, {sr(S_DBG,4)}, s{sT} offset:{DBG_CBAR} sc1\nbuffer_load_dword v37, off, {sr(S_DBG,4)}, s{sT+1} offset:{DBG_KV0} sc1"
        if u == 30 and P.get('dlyc'): a(f"s_sleep {P['dlyc']}")
        kvl = lambda so: '\n'.join(f"buffer_load_dwordx4 {vr(KX+4*k,4)}, v{L16}, {WS}, s{so} offen offset:{1024*k} sc1" for k in range(4))
        sw = P.get('sw', 2)
        IA = 54 if P.get('il', 0) else L16
        m1l = f"buffer_load_dwordx4 v[64:67], v{IA}, {WS}, s{sIMl} offen sc1\nbuffer_load_dwordx4 v[68:71], v{IA}, {WS}, s{sIML} offen sc1"
        m1a = f"s_mov_b32 s{sIMl}, {WS_IMB + 8192*(TB-1) + imo(P, w ^ (2 if sw else 0))}\ns_mov_b32 s{sIML}, {WS_IMB + 8192*(TB-1) + imo(P, 4 + (w ^ (2 if sw == 2 else 0)))}"
        ek = P.get('ek', 30)
        if u == ek:
            a.wait(vm='fe'); a(f"v_readfirstlane_b32 s{sT+3}, v39")
            a(f"s_cmp_ge_u32 s{sT+3}, {ALL}\ns_cselect_b32 s{sT+2}, s{sKV}, 0x70000000")
            if TB:
                a(m1a); a(f"s_cselect_b32 s{sIMl}, s{sIMl}, s{sT+2}\ns_cselect_b32 s{sIML}, s{sIML}, s{sT+2}\ns_cmp_lg_u32 s{sRB}, 0\ns_cselect_b32 s{sT+2}, s{sKV}, s{sT+2}")
            a(kvl(sT + 2), vm='kv')
            if TB: a(m1l, vm='kv')
        if u == 30 and w == 0: a(fl0, vm='f0')
        if u and fin(u - 1): wb(u - 1)
        base = SLOT[u] * 4096
        sig = ((x - w - (2 if P.get('sw', 2) > (x >> 2) else 0)) & 3) | (x & 4)
        for half in range(2):
            if fin(u): k, dst = 'v', 28 + 16 * half
            elif kind in 'qk':
                uu = 2 * half + (kind == 'k')
                k, dst = ('v', PK4 + 8 * uu) if sig == 4 else wqk_reg(sig, uu)
            elif kind == 'v': k, dst = wv_reg(sig, half)
            else: k, dst = wo_reg(x >> 1, 2 * (x & 1) + half)
            for p in range(4):
                if kind == 'o': off, ad = base + 32768 * (p >> 1) + 512 * (p & 1), (59, 62)[half]
                else: off, ad = base + 512 * (p & 1) + 8 * half, (58, 61)[p >> 1]
                a(f"ds_read_b64_tr_b16 {vr(dst + 2*p, 2, k)}, v{ad} offset:{off}")
                if p & 1 and dq: issue_one(a, *dq.pop(0))
        while dq: issue_one(a, *dq.pop(0))
        if P.get('pw') and P.get('pw0', 8) <= u < 31:
            for k in range(P['pw']): a(f"v_smfmac_f32_16x16x64_bf16 v[48:51], v[24:27], a[{192 + 8 * (k & 7)}:{199 + 8 * (k & 7)}], v0" if u < 28 else f"v_smfmac_f32_16x16x64_bf16 v[72:75], v[24:27], a[{192 + 8 * (k & 7)}:{199 + 8 * (k & 7)}], v0")
        a.wait(lg='all')
    a("s_barrier")
    wb(31)
    a.wait(lg='all')
    if (P.get('stat') or P.get('dbgt')) and P.get('pu') is None: a("s_memrealtime s[100:101]")
    a(f"s_mov_b32 s{sSPIN}, 0\ns_mov_b32 m0, {L_KV + 4096*w}")
    if w == 0:
        a(f"s_lshl_b32 s{sT+2}, s{sRB}, 5\ns_add_u32 s{sT+2}, s{sT+2}, 32\ns_branch L_c_w1")
        a.label(f'L_c_w0')
        a(f"""
        s_add_u32 s{sSPIN}, s{sSPIN}, 1
        s_cmp_gt_u32 s{sSPIN}, {SPIN_MAX}
        s_cbranch_scc1 L_exit
        s_sleep {P.get('slp0', 4)}
        """)
        a(fl0)
        a.label('L_c_w1')
        a.wait(vm='all')
        a(f"""
        v_cmp_gt_u32 vcc, 32, v36
        s_cbranch_vccnz L_c_w0
        v_cmp_gt_u32 vcc, s{sT+2}, v37
        s_cbranch_vccnz L_c_w0
        """)
    a("s_barrier")
    if ek < 32: a(f"s_cmp_ge_u32 s{sT+3}, {ALL}\ns_cbranch_scc1 L_c_kv_{w}")
    if TB: a(f"s_cmp_lg_u32 s{sRB}, 0\ns_cbranch_scc1 L_c_m3_{w}")
    a(kvl(sKV))
    if TB:
        a.label(f'L_c_m1_{w}')
        a(m1a); a(f"s_sleep {P.get('aps', 4)}"); a(m1l)
        a(f"s_add_u32 s{sSPIN}, s{sSPIN}, 1\ns_cmp_gt_u32 s{sSPIN}, {SPIN_MAX}\ns_cbranch_scc1 L_exit")
    a.label(f'L_c_kv_{w}')
    if TB:
        a(f"""
        s_cmp_lg_u32 s{sRB}, 0
        s_cbranch_scc1 L_c_m3_{w}
        s_waitcnt vmcnt(0)
        v_max3_u32 v36, v64, v65, v66
        v_max3_u32 v37, v67, v68, v69
        v_max3_u32 v36, v36, v70, v71
        v_max_u32 v36, v36, v37
        v_cmp_eq_u32 vcc, -1, v36
        v_mov_b64 {vr(MA,2)}, v[64:65]
        v_mov_b64 {vr(MA+2,2)}, v[66:67]
        v_mov_b64 {vr(MA+16,2)}, v[68:69]
        v_mov_b64 {vr(MA+18,2)}, v[70:71]
        s_cbranch_vccnz L_c_m1_{w}
        s_branch L_c_m4_{w}
        """)
        a.label(f'L_c_m2_{w}')
        a(f"""
        s_add_u32 s{sSPIN}, s{sSPIN}, 1
        s_cmp_gt_u32 s{sSPIN}, {SPIN_MAX}
        s_cbranch_scc1 L_end
        s_sleep {P.get('bps', 4)}
        buffer_load_dword v{FLV}, off, {WS}, s{sKB} offset:4092 sc1
        s_waitcnt vmcnt(0)
        v_cmp_eq_u32 vcc, -1, v{FLV}
        s_cbranch_vccnz L_c_m2_{w}
        """)
        a(f"s_branch L_c_m5_{w}")
        a.label(f'L_c_m7_{w}')
        a(f"s_add_u32 s{sSPIN}, s{sSPIN}, 1\ns_cmp_gt_u32 s{sSPIN}, {SPIN_MAX}\ns_cbranch_scc1 L_end\ns_sleep {P.get('bps', 4)}")
        a.label(f'L_c_m5_{w}')
        a(kvl(sKB))
        a.label(f'L_c_m6_{w}')
        a(f"s_waitcnt vmcnt(0)\nv_max3_u32 v{FLV}, v{KX}, v{KX+1}, v{KX+2}")
        for r in range(3, 15, 2): a(f"v_max3_u32 v{FLV}, v{FLV}, v{KX+r}, v{KX+r+1}")
        a(f"v_max_u32 v{FLV}, v{FLV}, v{KX+15}\nv_cmp_eq_u32 vcc, -1, v{FLV}\ns_cbranch_vccnz L_c_m{7 if P.get('bd', 1) else 2}_{w}\ns_branch L_{'bk' if P.get('ba', 1) else 'c_m4'}_{w}")
        a.label(f'L_c_m3_{w}')
        a(f"s_waitcnt vmcnt(0)\ns_mov_b32 s{sKB}, s{sKV}\ns_mov_b32 s{sKV}, 0x70000000")
        if not P.get('ba', 1): a(f"s_branch L_c_m6_{w}")
        a.label(f'L_c_m4_{w}')
    a(f"s_add_u32 s{sKV}, s{sKV}, 0x80000\ns_mov_b32 s{sFL}, {DBG_DN + (DBG_KVC if TB == 2 else DBG_KV0)}\ns_mov_b64 {sr(sFM,2)}, {-1 if TB == 2 else 0}\nv_mov_b32 v{FLV}, 32\ns_mov_b32 s{sSPIN}, 0")
    for l in idle_work():
        if not l.startswith('ds_'): a(l)
    a.wait(lg='all')
    if P.get('stat'): a("s_memrealtime s[64:65]\ns_waitcnt lgkmcnt(0)")
    a.label(f'L_cpe_{w}')
    if TB: a(f"s_cmp_lg_u32 s{sRB}, 0\ns_cbranch_scc1 L_bstep_{w}")
    a(f"s_branch L_step_{w}")

def idle_work():
    L = [f"ds_read_b128 {vr(ST + 8*u + 4*hf, 4)}, v{A_W} offset:{lw_qk(0, u) + 1024*hf}" for u in range(4) for hf in range(2)]
    L += [f"v_mov_b64 {vr(Q0+i,2)}, 0" for i in range(0, 24, 2)]
    return L

DEF = dict(b1=3, nL=10, nB2=4, nv1=2, nv2=0, nvA=6, sv=9, so=1, nr4=4, earlyL=0, dH1=[27, 40, 62, 73], dE=[36, 20, 6, 0], h2=[30, 32, 30, 26], ls=1,
           dwf=0, cs=0, g2v=0, dup=1, c1=1, lb1=0, svp=[4, 2, 0, -1], dp=None, sync=0, fpos=-2, pp=[-1, 1, 3, 5, 7, 11], pE=23, inGap=[0, 0, 0, 1],
           nPre=[0, 0, 0, 0], dS=[-1, -1], kw=0, mx=1, ad=1, nrc=4, nE=3, dT=0, stg=1, own3=0)
def pack_km():
    X = Q0
    L = [f"v_mov_b32_dpp v{X+2}, v{X} row_ror:8 row_mask:0xf bank_mask:0x3", f"v_mov_b32_dpp v{X+3}, v{X+1} row_ror:8 row_mask:0xf bank_mask:0x3",
         f"v_min_u32 v{ONE}, -2, v{X+2}", f"v_min_u32 v{ONE+1}, -2, v{X+3}"]
    for t in range(2):
        p = V0 + 2 * t
        L += [f"v_lshlrev_b32 v{X}, 16, v{p}", f"v_lshlrev_b32 v{X+1}, 16, v{p+1}", f"v_and_b32 v{p}, 0xffff0000, v{p}", f"v_and_b32 v{p+1}, 0xffff0000, v{p+1}",
              f"v_add_f32 v{X}, v{X}, v{X+1}", f"v_add_f32 v{X+1}, v{p}, v{p+1}", f"v_cvt_pk_bf16_f32 v{X}, v{X}, v{X+1}", f"v_min_u32 v{ONE+2+t}, -2, v{X}"]
    return L
def sync_tmp(P, w):
    if not P['sync']: return []
    if w == 3: return [f"v_bfe_u32 v{MA+24}, v{L16}, 2, 7"]
    if w < 2: return [f"v_mov_b32 v{MA+24}, s{sS}"]
    return []
def b_tail(a, P):
    WS = sr(S_WS, 4); HB, HD, T1 = MA + 20, MA + 8, MA + 12
    a.label('L_btail')
    if P.get('stat'): a("s_memrealtime s[66:67]")
    for l in pack_km(): a(l)
    a(f"buffer_store_dwordx4 {vr(ONE,4)}, v{L16}, {WS}, s{sKMv} offen sc1")
    NB = P.get('tb', 1)
    if NB > 1:
        a(f"s_add_u32 s{sKB}, s{sKB}, 0x80000\ns_cmp_eq_u32 s{sS}, {NB}\ns_cbranch_scc1 L_bt0")
        for k in range(4): a(f"buffer_load_dwordx4 {vr(KX+4*k,4)}, v{L16}, {WS}, s{sKB} offen offset:{1024*k} sc1")
        for l in idle_work(): a(l)
        a.label('L_bt0')
    a("s_waitcnt vmcnt(0)")
    if P.get('stat'): a("s_memrealtime s[68:69]")
    a.label('L_bt1')
    a(f"""
    s_sleep {P.get('bsl', 1)}
    buffer_load_dwordx4 {vr(HB,4)}, v{L16}, {WS}, s{sH1l} offen sc1
    buffer_load_dwordx4 {vr(HB+4,4)}, v{L16}, {WS}, s{sH1l} offen offset:1024 sc1
    s_add_u32 s{sSPIN}, s{sSPIN}, 1
    s_cmp_gt_u32 s{sSPIN}, {SPIN_MAX}
    s_cbranch_scc1 L_end
    s_waitcnt vmcnt(0)
    v_mfma_f32_16x16x32_bf16 {vr(HD,4)}, {vr(SEL,4)}, {vr(HB,4)}, 0
    v_bitop3_b32 v{T1}, v{HB}, v{HB+2}, s{sTAG} bitop3:0x7e
    v_bitop3_b32 v{T1+1}, v{HB+4}, v{HB+6}, s{sTAG} bitop3:0x7e
    v_mfma_f32_16x16x32_bf16 {vr(HD,4)}, {vr(SEL,4)}, {vr(HB+4,4)}, {vr(HD,4)}
    v_bitop3_b32 v{T1}, v{T1}, v{T1+1}, 1 bitop3:0xa8
    v_cmp_ne_u32 vcc, 0, v{T1}
    s_nop 4
    """)
    for n in (4, 8):
        for r in (HD, HD + 1): a(f"v_add_f32_dpp v{r}, v{r}, v{r} row_ror:{n} row_mask:0xf bank_mask:0xf")
        a("s_nop 0")
    a(f"""
    v_cvt_pk_bf16_f32 v{HD}, v{HD}, v{HD+1}
    s_cbranch_vccnz L_bt1
    buffer_store_dword v{HD}, v{A_IMS}, {WS}, s{sIMw} offen sc1
    """)
    if NB > 1:
        a(f"s_cmp_eq_u32 s{sS}, {NB}\ns_cbranch_scc1 L_bt3\ns_xor_b32 s{sTAG}, s{sTAG}, 1\ns_add_u32 s{sIMw}, s{sIMw}, 8192\ns_waitcnt vmcnt(0)")
        a.label('L_bt2')
        a(f"""
        s_sleep {P.get('bs2', 1)}
        buffer_load_dwordx4 {vr(MA,4)}, v{L16}, {WS}, s{sIMl} offen sc1
        buffer_load_dwordx4 {vr(MA+16,4)}, v{L16}, {WS}, s{sIML} offen sc1
        s_add_u32 s{sSPIN}, s{sSPIN}, 1
        s_cmp_gt_u32 s{sSPIN}, {SPIN_MAX}
        s_cbranch_scc1 L_end
        s_waitcnt vmcnt(0) lgkmcnt(0)
        v_max3_u32 v{T1}, v{MA}, v{MA+1}, v{MA+2}
        v_max3_u32 v{T1+1}, v{MA+3}, v{MA+16}, v{MA+17}
        v_max3_u32 v{T1}, v{T1}, v{MA+18}, v{MA+19}
        v_max_u32 v{T1}, v{T1}, v{T1+1}
        v_cmp_eq_u32 vcc, -1, v{T1}
        s_cbranch_vccnz L_bt2
        """)
        for w in range(3): a(f"s_cmp_eq_u32 s{sW}, {w}\ns_cbranch_scc1 L_bstep_{w}")
        a("s_branch L_bstep_3")
        a.label('L_bt3')
    if P.get('stat'):
        a("s_memrealtime s[70:71]\ns_waitcnt lgkmcnt(0)")
        for k, r in enumerate([100, 64, 66, 68, 70, sSPIN]): a(f"v_mov_b32 v{56+k}, s{r}")
        a(f"s_lshl_b32 s{sT}, s{sH}, 2\ns_add_u32 s{sT}, s{sT}, s{sW}\ns_lshl_b32 s{sT}, s{sT}, 5\ns_add_u32 s{sT}, s{sT}, {WS_STAMP + (768 << 10)}\ns_mov_b64 exec, 1")
        a(f"buffer_store_dwordx4 v[56:59], v{L16}, {WS}, s{sT} offen\nbuffer_store_dwordx4 v[60:63], v{L16}, {WS}, s{sT} offen offset:16\ns_mov_b64 exec, -1")
    a(f"""
    v_lshrrev_b32 v0, 4, v{L16}
    s_mov_b32 s80, 4
    s_mov_b32 s{sT}, 1
    s_waitcnt vmcnt(0) lgkmcnt(0)
    s_branch L_helper2
    """)
BBODY = {}
LASTV = []
def chain_last(a, n=7):
    for q in LASTV: smf(a, *q)
    a(f"s_nop {n}")
    for d, s0 in ((V0, V0), (V0 + 1, V0 + 2), (V0 + 2, V1), (V0 + 3, V1 + 2)): a(f"v_cvt_pk_bf16_f32 v{d}, v{s0}, v{s0+1}")
    L = pack_km()
    for l in L[:2]: a(l)
    a(f"v_permlane32_swap_b32 v{V0}, v{V0+1}\nv_permlane32_swap_b32 v{V0+2}, v{V0+3}")
    for l in L[2:]: a(l)
    a(f"buffer_store_dwordx4 {vr(ONE,4)}, v{L16}, {sr(S_WS,4)}, s{sKM} offen sc1")
LISTING = {}
def chain_step(a, P0, w):
    P = dict(DEF); P.update(P0)
    allow = P.get('stamps', [])
    used = []
    def stamp(k):
        if k in allow:
            a(f"s_memtime s[{72+2*len(used)}:{73+2*len(used)}]"); used.append(k)
            if P.get('rt'): a(f"s_memrealtime s[{72+2*len(used)}:{73+2*len(used)}]"); used.append(k)
    WS = sr(S_WS, 4)
    acc = [Q0, K0, Q1, K1]
    lb = lambda s: f"L_{s}_{w}"
    own = 2048 * w
    oth = lambda q: 2048 * ((w + q) & 3)
    T0 = MA + 28
    IA = MA + 30 if P.get('il', 0) else L16
    ldE = f"buffer_load_dwordx4 {vr(MA,4)}, v{IA}, {WS}, s{sIMl} offen sc1"
    ldL = f"buffer_load_dwordx4 {vr(MA+16,4)}, v{IA}, {WS}, s{sIML} offen sc1"
    chkE = f"v_max3_u32 v{T0}, v{MA}, v{MA+1}, v{MA+2}\nv_max_u32 v{T0}, v{T0}, v{MA+3}\nv_cmp_eq_u32 vcc, -1, v{T0}"
    chkL = [f"v_max3_u32 v{T0}, v{MA+16}, v{MA+17}, v{MA+18}", f"v_max_u32 v{T0}, v{T0}, v{MA+19}", f"v_cmp_eq_u32 vcc, -1, v{T0}"]
    if P['c1']:
        chkE = f"v_cmp_eq_u32 vcc, -1, v{MA+3}"
        chkL = ["s_nop 0", "s_nop 0", f"v_cmp_eq_u32 vcc, -1, v{MA+19}"]
    ldF = f"buffer_load_dword v{FLV}, off, {sr(S_DBG,4)}, s{sFL} sc1"
    cvF = [f"v_subrev_u32 v{FLV}, 32, v{FLV}", f"v_ashrrev_i32 v{FLV}, 31, v{FLV}"]
    dwE = f"ds_write_b128 v{L16}, {vr(MA,4)} offset:{L_MEM + own}"
    dwL = f"ds_write_b128 v{L16}, {vr(MA+16,4)} offset:{L_MEM + own + 1024}"
    cv = lambda d, s0: f"v_cvt_pk_bf16_f32 v{d}, v{s0}, v{s0+1}"
    z2 = lambda r: f"v_mov_b64 {vr(r,2)}, 0"
    ror8 = lambda d, s0, bm: f"v_mov_b32_dpp v{d}, v{s0} row_ror:8 row_mask:0xf bank_mask:{bm}"
    mf32 = lambda D, A, B, C: a(f"v_mfma_f32_16x16x32_bf16 {vr(D,4)}, {vr(A,4)}, {vr(B,4)}, {vr(C,4) if C is not None else 0}")
    mf16 = lambda D, A, B, C: a(f"v_mfma_f32_16x16x16_bf16 {vr(D,4)}, {vr(A,2)}, {vr(B,2)}, {vr(C,4) if C is not None else 0}")
    def wdelay(n):
        while P['kw'] and n >= 8:
            mf32(MA + 24, F, F, None); a("s_nop 2"); mf32(MA + 4, F, F, None); a("s_nop 2"); n -= 8
        nops(a, n)
    a.label(lb('top'))
    a("s_waitcnt vmcnt(0)")
    a.vm = []; a.lg = []
    stamp(0)
    EB = MA + 20 if P['dwf'] else MA
    ldB = ldE.replace(vr(MA, 4), vr(EB, 4))
    if P['dwf']:
        a(dwE, lg='we'); a(chkE); a(ldL, vm='L2')
        a(f"s_cbranch_vccnz {lb('f1')}")
    else:
        if P['earlyL']: a(ldL, vm='L2')
        a(chkE)
        a(dwE, lg='we')
        a(f"s_cbranch_vccnz {lb('f1')}")
        if not P['earlyL'] and not P.get('lateL'): a(ldL, vm='L2')
    a.label(lb('go'))
    igo = len(a.lines)
    stamp(14)
    KVF = P.get('kvf', 'sc1')
    dma = [f"buffer_load_dwordx4 v{L16}, {WS}, s{sKV} offen offset:{1024*k} {KVF} lds" for k in range(4)]
    mrd = lambda s: f"ds_read_b128 {vr(MA+4*s,4)}, v{L16} offset:{L_MEM + oth(s & 3) + 1024*(s>>2)}"
    r2 = [f"ds_read_b128 {vr(ST + 8*u + 4*hf, 4)}, v{A_W} offset:{lw_qk(4, u) + 1024*hf}" for u in range(4) for hf in range(2)]
    r3 = [f"ds_read_b128 {vr(ST + 8*k + 4*hf, 4)}, v{A_W} offset:{lw_wo(2,k) + 1024*hf}" for k in range(4) for hf in range(2)]
    vq = [(V0 + 4 * tau, MA + 4 * s, wv_reg(s, tau)) for s in range(8) for tau in range(2)]
    qk = lambda s: [(acc[u], MA + 4 * s, wqk_reg(s, u)) for u in range(4)]
    sA = qk(0) + [vq.pop(0), vq.pop(0)]
    stV = f"buffer_store_dwordx4 {vr(ONE,4)}, v{L16}, {WS}, s{sKMv} offen sc1"
    for k in range(P['b1']):
        smf(a, *sA.pop(0))
        if k == P['sv']: a(stV, vm='km')
        if P.get('lateL') == k + 2: a(f"s_mov_b64 exec, {sr(sLX,2)}"); a(ldL, vm='L2'); a("s_mov_b64 exec, -1")
    a.wait(lg='all')
    a("s_barrier")
    stamp(1)
    a(mrd(1), lg=('ma', 1)); a(mrd(2), lg=('ma', 2))
    smf(a, *sA.pop(0))
    a(mrd(3), lg=('ma', 3))
    if P.get('lateL') == 1: a(f"s_mov_b64 exec, {sr(sLX,2)}"); a(ldL, vm='L2'); a("s_mov_b64 exec, -1")
    sync = P['sync']; TS = MA + 24
    prober = sync and w == 3; poster = sync and w < 2
    probe = f"buffer_load_dword v{FLV}, v{TS}, {WS}, s{sFG} offen sc1"
    post = f"s_mov_b64 exec, 1\nbuffer_store_dword v{TS}, off, {WS}, s{sFG}\ns_mov_b64 exec, -1"
    pp = list(P['pp']); npr = len(pp)
    def syncops(n):
        c = 0
        if poster and n == P['fpos']: a(post, vm='fg'); c = 2
        if prober and n in pp: a(probe, vm=('P', pp.index(n))); c = 1
        return c
    svp = P['svp'][w]
    if P['sv'] == 9 and svp < 0: a(stV, vm='km')
    syncops(-len(sA) - 1)
    while sA:
        smf(a, *sA.pop(0)); syncops(-len(sA) - 1)
    dupA = a.lines[igo:]
    a.label(lb('go2'))
    seq = qk(1) + qk(2) + qk(3) + [vq.pop(0) for _ in range(P['nv1'])]
    i4 = len(seq); seq += qk(4) + [vq.pop(0) for _ in range(P['nv2'])]
    i5 = len(seq); seq += qk(5)
    i6 = len(seq); q6, q7 = qk(6), qk(7)
    seq += [q6[0], q6[1], q7[0], q7[1], q6[2], q6[3], q7[2], q7[3]]
    nL, nB = P['nL'], P['nL'] + P['nB2']
    assert i4 >= nL + 4 and nB <= i5
    KVST = 0 if P.get('kvfix') else 0x80000
    ones = [f"v_mov_b64 {vr(ONE,2)}, {sr(sONE,2)}", f"v_mov_b64 {vr(ONE+2,2)}, {sr(sONE,2)}"]
    bk = False
    for n, q in enumerate(seq):
        if n == 0: a.wait(lg=('ma', 1))
        if n == 4: a.wait(lg=('ma', 3))
        if n == nL:
            stamp(2)
            a.wait(vm='L2'); a(dwL, lg='wl')
            if not P['c1']: a(chkL[0])
            if prober: a.wait(vm=('P', 0)); a(f"v_subrev_u32 v{T0+1}, s{sS}, v{FLV}")
        if n == nB:
            a.wait(lg='all' if not r2 else 'wl'); a("s_barrier"); stamp(3); a(mrd(5), lg=('ma', 5))
        if n == i4 and 'r2' in a.lg: a.wait(lg='r2')
        if n == i5: a.wait(lg=('ma', 5))
        if n == i6: a.wait(lg=('ma', 7))
        smf(a, *q)
        cap = 2 - (n + 1 in (4, i5, i6)) - (n >= i6 + 4) - (n in (nL, nL + 1))
        if n == nB: a(mrd(6), lg=('ma', 6)); a(mrd(7), lg=('ma', 7)); cap = 0
        if P['sv'] == 9 and n == svp: a(stV, vm='km')
        cap = max(cap - syncops(n), 1 if r2 else 0)
        dp = P['dp']
        if dp:
            if dma and dp[4 - len(dma)] < 100 and n >= dp[4 - len(dma)] + w and n != nB: a(dma.pop(0), vm='dma'); cap = max(cap - 1, 1 if r2 else 0)
        elif dma and cap and n > nB and n >= min(nB + 1 + w * P['stg'] + 4 * (4 - len(dma)), len(seq) - 1):
            a(dma.pop(0), vm='dma'); cap -= 1
        if r2 and cap and n + 1 != nL and not (nL <= n < nB): a(r2.pop(0), lg='r2'); cap -= 1
        elif r3 and cap and n > nB and n >= i4 + (8 - len(r3)) // 2: a(r3.pop(0), lg='r3'); cap -= 1
        if ones and cap and n >= i5 and P['sv'] == 9: a(ones.pop(0))
        if n == nL: a(chkL[1] if not prober else f"v_max3_u32 v{T0+1}, v{T0}, v{MA+19}, v{T0+1}")
        if n == nL + 1: a(chkL[2] if not prober else f"v_cmp_eq_u32 vcc, -1, v{T0+1}")
        if n == nL + 3:
            a(f"s_cbranch_vccnz {lb('p1' if prober else 'rL')}"); a.label(lb('bL'))
            if prober: assert len(a.vm) == npr - 1
        if n == len(seq) - 1: ibk = len(a.lines)
        if n == i6 + 4: a(cv(Q0, Q0))
        if n == i6 + 5: a(cv(Q0 + 1, Q0 + 2))
        if n == i6 + 6: a(cv(Q0 + 2, K0))
    assert not r3 and not r2, (len(r2), len(r3), len(dma))
    stamp(4)
    a(cv(Q0 + 3, K0 + 2))
    a("s_nop 0")
    a(cv(Q1, Q1))
    mf32(K0, Q0, F, None)
    a(cv(Q1 + 1, Q1 + 2)); a(cv(Q1 + 2, K1)); a(cv(Q1 + 3, K1 + 2))
    a("s_nop 1")
    mf32(K1, Q1, F, None)
    X = Q0
    a(cv(X, K0)); a(cv(X + 1, K0 + 2))
    rsI = f"buffer_store_dword v{NEG1}, v{A_IMS}, {WS}, s{sIMr} offen"
    S1, S2, SM = Q1, K0, K1
    if not P['mx']:
        smf(a, *vq.pop(0))
        a("s_nop 0"); a(f"buffer_store_dword v{NEG1}, v{A_IMS}, {WS}, s{sIMr} offen", vm='rs'); a("s_nop 1")
        a(cv(X + 2, K1)); a(cv(X + 3, K1 + 2))
        a("s_nop 1")
        S1, S2, SM = Q1, K0, K1
        mf32(SM, X, X, None); mf32(S2, KX + 4, X, None); mf32(S1, KX, X, None)
        for r in range(2): a(ror8(SM + r, SM + 2 + r, '0xc'))
        smf(a, *vq.pop(0))
        a("s_nop 0")
        a(f"ds_write2_b32 v{A_SMW}, v{SM}, v{SM+1} offset0:0 offset1:32")
        a("s_nop 1")
        for r in range(4): a(ror8(S1 + r, S2 + r, '0xc'))
        smf(a, *vq.pop(0))
        a(f"ds_write_b128 v{L16}, {vr(S1,4)} offset:{L_S + own}")
    else:
        assert all(q[1] >= MA + 8 for q in vq)
        XL, XH = MA, MA + 4
        lo = lambda r: a(f"v_cndmask_b32 v{XL+r}, 0, v{X+r}, {sr(sMLO,2)}")
        hi = lambda r: a(f"v_mov_b32_dpp v{XH+r}, v{X+r} row_shr:8 row_mask:0xf bank_mask:0xf bound_ctrl:1")
        lo(0); lo(1); hi(0); hi(1); a("s_nop 0")
        a(cv(X + 2, K1)); a(cv(X + 3, K1 + 2))
        lo(2); lo(3)
        mf32(SM, X, X, None)
        hi(2); hi(3)
        mf32(S1, KX, XL, None)
        a("s_nop 0")
        mf32(S1, KX + 4, XH, S1)
        for r in range(2): a(ror8(SM + r, SM + 2 + r, '0xc'))
        dw2 = f"ds_write2_b32 v{A_SMW}, v{SM}, v{SM+1} offset0:0 offset1:32"
        dw4 = f"ds_write_b128 v{L16}, {vr(S1,4)} offset:{L_S + own}"
        smf(a, *vq.pop(0))
        if P['so'] == 0: a("s_nop 0"); a(dw2); a("s_nop 1"); a(dw4)
        elif P['so'] == 1: a("s_nop 0"); a(dw2); smf(a, *vq.pop(0)); a(dw4)
        else: smf(a, *vq.pop(0)); a(dw4); a(dw2)
    stamp(5)
    for k in range(P['nvA']):
        smf(a, *vq.pop(0))
        if k == P['nvA'] - 3 and not P['ls']: a(f"s_cmp_eq_u32 s{sS}, 63")
        if k == P['nvA'] - 2 and not P['ls']:
            a("s_cbranch_scc1 L_last"); LASTV[:] = list(vq)
        if k == 1 and w == 0:
            if P.get('fsk', 1):
                a(f"s_mov_b64 exec, {sr(sFM,2)}"); a(ldF, vm='fl'); a("s_mov_b64 exec, -1")
            else: a(ldF, vm='fl')
        if dma and dp[4 - len(dma)] == 100 and k == w + 1: a(dma.pop(0), vm='dma')
        if P['sv'] == 20 and k == min(3 - w, P['nvA'] - 1): a(stV, vm='km')
        if k == (w & 1) + (2 if w >= 2 and P['sv'] == 20 else 0) and P['mx']: a(rsI, vm='rs')
    a.wait(lg='all')
    a("s_barrier")
    stamp(6)
    R1, R2, R3, RM = K0, KX, KX + 4, K1
    a(f"ds_read_b128 {vr(RM,4)}, v{L16} offset:{L_SM}", lg='rm')
    a(f"ds_read_b128 {vr(R1,4)}, v{L16} offset:{L_S + oth(1)}", lg='r1')
    smf(a, *vq.pop(0))
    a(f"ds_read_b128 {vr(R2,4)}, v{L16} offset:{L_S + oth(2)}", lg='r2')
    a(f"ds_read_b128 {vr(R3,4)}, v{L16} offset:{L_S + oth(3)}", lg='r3')
    while vq:
        smf(a, *vq.pop(0))
        if dma and len(vq) <= max(2 - w, 0): a(dma.pop(0), vm='dma')
        if ones: a(ones.pop(0))
    assert not ones and not dma
    for _ in range(P.get('npd', 0)): mf16(MA, F, F, None)
    pka = lambda d, s0: f"v_pk_add_f32 {vr(d,2)}, {vr(d,2)}, {vr(s0,2)}"
    a.wait(lg='r1')
    a(f"v_add_f32 v{RM}, v{RM}, v{RM+1}\nv_add_f32 v{RM+2}, v{RM+2}, v{RM+3}")
    a(f"v_add_f32 v{S1}, v{S1}, v{R1}\nv_add_f32 v{S1+1}, v{S1+1}, v{R1+1}")
    a(pka(S1 + 2, R1 + 2))
    a(f"v_add_f32 v{RM}, v{RM}, v{RM+2}")
    if P['ad']:
        a.wait(lg='all')
        stamp(7)
        a(pka(R2, R3)); a(pka(R2 + 2, R3 + 2)); a(pka(S1, R2)); a(pka(S1 + 2, R2 + 2))
    else:
        a.wait(lg='r2')
        a(pka(S1, R2)); a(pka(S1 + 2, R2 + 2))
        a.wait(lg='all')
        stamp(7)
        a(pka(S1, R3)); a(pka(S1 + 2, R3 + 2))
    m0, m1 = K0, K0 + 1
    a(f"v_max3_f32 v{m0}, v{RM}, v{S1}, v{S1+1}")
    a(f"v_max3_f32 v{m0}, v{m0}, v{S1+2}, v{S1+3}")
    a(cv(V0, V0)); a(cv(V0 + 1, V0 + 2))
    a(f"v_max_f32_dpp v{m1}, v{m0}, v{m0} row_ror:8 row_mask:0xf bank_mask:0xf")
    a(f"v_max_f32_dpp v{m0}, v{m0}, v{m0} row_ror:8 row_mask:0xf bank_mask:0xf")
    a(cv(V0 + 2, V1)); a(cv(V0 + 3, V1 + 2))
    a(f"v_permlane32_swap_b32 v{m0}, v{m1}")
    a(f"v_max_f32 v{m0+2}, v{m0}, v{m1}")
    a(f"v_max_f32 v{m0+3}, v{m0}, v{m1}")
    a(f"v_permlane32_swap_b32 v{V0}, v{V0+1}")
    a(f"v_permlane32_swap_b32 v{V0+2}, v{V0+3}")
    a(f"v_permlane16_swap_b32 v{m0+2}, v{m0+3}")
    a(f"v_max_f32 v{m0}, v{m0+2}, v{m0+3}")
    a(f"v_mul_f32 v{m0}, s{sC}, v{m0}")
    a(f"v_fma_f32 v{RM}, v{RM}, s{sC}, -v{m0}")
    pkf = lambda r: f"v_pk_fma_f32 {vr(r,2)}, {vr(r,2)}, {sr(sC,2)}, {vr(m0,2)} op_sel_hi:[1,1,0] neg_lo:[0,0,1] neg_hi:[0,0,1]"
    ks = [(w + q) & 3 for q in range(1, 4)]
    r4 = [f"ds_read_b128 {vr(MA + 8*k + 4*hf, 4)}, v{A_W} offset:{lw_wo(3,k) + 1024*hf}" for k in [w] + ks for hf in range(2)]
    rd4 = lambda: a(r4.pop(0), lg='r4') if r4 else None
    BX, BM = K0, MA + 8 * ks[2] + 4
    O0, O1, L = KX, V1, K1
    a(f"v_exp_f32 v{RM}, v{RM}")
    a(pkf(S1)); a(pkf(S1 + 2))
    a(ror8(RM + 1, RM, '0xf'))
    a(cv(BM, RM)); a(cv(BM + 1, RM))
    a(f"v_exp_f32 v{S1}, v{S1}\nv_exp_f32 v{S1+1}, v{S1+1}")
    mf16(O0, V0, BM, None)
    a(f"v_exp_f32 v{S1+2}, v{S1+2}\nv_exp_f32 v{S1+3}, v{S1+3}")
    a(cv(BX, S1)); a(cv(BX + 1, S1 + 2))
    mf16(O1, V0 + 2, BM, None)
    a(ror8(BX + 2, BX, '0xf')); a(ror8(BX + 3, BX + 1, '0xf'))
    AC = [Q1, KX, V1, ONE]
    OW = KX + 4
    a(z2(AC[0])); a(z2(AC[0] + 2))
    mf32(O0, VX, BX, O0)
    stamp(8)
    if P['nr4'] >= 1: rd4()
    if P['nr4'] >= 4: rd4()
    mf32(O1, VX + 4, BX, O1)
    if P['nr4'] >= 2: rd4()
    if P['nr4'] >= 3: rd4()
    mf16(L, BM, HZ, None)
    a(cv(OW, O0)); a(cv(OW + 1, O0 + 2))
    a(z2(AC[1])); a(z2(AC[1] + 2))
    a(cv(OW + 2, O1)); a(cv(OW + 3, O1 + 2))
    mf32(L, BX, ONE, L)
    a("s_nop 0")
    a(f"ds_write_b128 v{A_OW}, {vr(OW,4)} offset:{L_O + own}")
    stamp(9)
    for r in range(4): a(ror8(OW + r, OW + r, '0xc'))
    a(z2(AC[2])); a(z2(AC[2] + 2))
    if P.get('z3', 1): a(z2(AC[3]))
    rcp = lambda r: a(f"v_rcp_f32 v{L+r}, v{L+r}")
    for r in range(P['nrc']): rcp(r)
    smf(a, AC[0], OW, wo_reg(0, w))
    a.wait(lg='all')
    a("s_barrier")
    stamp(10)
    OA = {ks[0]: VX, ks[1]: VX + 4, ks[2]: K0, w: OW}
    oard = lambda k: a(f"ds_read_b128 {vr(OA[k],4)}, v{A_O} offset:{L_O + 2048*k}", lg=('oa', k))
    g2 = lambda T, k: smf(a, AC[T], OA[k], wo_reg(T, k))
    mul = lambda T, r: a(f"v_mul_f32 v{AC[T]+r}, v{AC[T]+r}, v{L+r}")
    def cvt(T, r):
        a(cv(AC[T] + r, AC[T] + 2 * r))
        if r == 1: a(f"v_bfi_b32 v{AC[T]}, 1, s{sTAG}, v{AC[T]}")
    sto = lambda T: f"buffer_store_dwordx2 {vr(AC[T],2)}, v{A_H1S}, {WS}, s{sH1+T} offen"
    oard(ks[0]); oard(ks[1])
    g2(1, w); oard(ks[2]); a(z2(AC[3] + (2 if P.get('z3', 1) else 0)))
    g2(2, w)
    if not P.get('z3', 1): a(z2(AC[3] + 2))
    for r in range(P['nrc'], 4): rcp(r)
    own3 = P['nr4'] >= 2 and P.get('own3', 1)
    if own3: a("s_nop 1"); g2(3, w)
    a.wait(lg=('oa', ks[0])); g2(0, ks[0]); stamp(20); rd4()
    a.wait(lg=('oa', ks[1])); g2(0, ks[1]); rd4()
    a.wait(lg=('oa', ks[2])); g2(0, ks[2]); rd4()
    g2(1, ks[0]); rd4()
    dS = P['dS']
    if P.get('x4'):
        x4 = P['x4']
        pkm = lambda T: a(f"v_pk_mul_f32 {vr(AC[T],2)}, {vr(AC[T],2)}, {vr(L,2)}\nv_pk_mul_f32 {vr(AC[T]+2,2)}, {vr(AC[T]+2,2)}, {vr(L+2,2)}")
        st4 = lambda ph: a(f"buffer_store_dwordx4 {vr(AC[2*ph],4)}, v{A_H1S}, {WS}, s{sH1+2*ph} offen", vm='h1')
        def cv2(T):
            a(cv(AC[T - 1] + 2, AC[T])); a(cv(AC[T - 1] + 3, AC[T] + 2))
            if P.get('t2', 1): a(f"v_bfi_b32 v{AC[T-1]+2}, 1, s{sTAG}, v{AC[T-1]+2}")
        g2(1, ks[1]); rd4(); mul(0, 0)
        g2(1, ks[2]); rd4(); assert not r4
        if x4 == 1:
            mul(0, 1); mul(0, 2); mul(0, 3); cvt(0, 0); cvt(0, 1)
            pkm(1); cv2(1)
            g2(2, ks[0]); a("s_nop 0"); st4(0)
            g2(2, ks[1])
        else:
            mul(0, 1); mul(0, 2)
            g2(2, ks[0]); mul(0, 3); cvt(0, 0); cvt(0, 1)
            pkm(1); cv2(1)
            g2(2, ks[1]); a("s_nop 0"); st4(0)
        stamp(21)
        g2(2, ks[2])
        a.wait(lg='all')
        if not own3: g2(3, w)
        a(f"s_add_u32 s{sIMl}, s{sIMw}, {imo(P, w ^ (2 if P.get('sw', 2) else 0))}\ns_add_u32 s{sIML}, s{sIMw}, {imo(P, 4 + (w ^ (2 if P.get('sw', 2) == 2 else 0)))}")
        g2(3, ks[0]); a(f"s_add_u32 s{sS}, s{sS}, 1\ns_mov_b32 s{sKMv}, s{sKM}")
        if not own3: mul(2, 0)
        g2(3, ks[1]); mul(2, 1)
        g2(3, ks[2])
        if own3: mul(2, 0)
        mul(2, 2); mul(2, 3); cvt(2, 0); cvt(2, 1)
        if not own3: a("s_nop 0")
        pkm(3); cv2(3)
        a(f"s_add_u32 s{sKM}, s{sKM}, 0x20000\ns_add_u32 s{sKV}, s{sKV}, {KVST}")
        st4(1)
    else:
        if P['g2v'] >= 3:
            rd4(); a("s_nop 1")
            for r in range(4): mul(0, r)
            cvt(0, 0); cvt(0, 1)
            g2(1, ks[1]); a("s_nop 0"); a(sto(0), vm='h1')
            g2(1, ks[2]); g2(2, ks[0])
            if P['g2v'] == 3: g2(2, ks[1])
            else: a("s_nop 3")
            for r in range(4): mul(1, r)
            cvt(1, 0); cvt(1, 1)
            if P['g2v'] == 4: g2(2, ks[1]); a("s_nop 0"); a(sto(1), vm='h1')
        else:
            g2(1, ks[1]); rd4(); mul(0, 0)
            g2(1, ks[2]); rd4()
            mul(0, 1); mul(0, 2); mul(0, 3); cvt(0, 0); cvt(0, 1)
        assert not r4 or P['g2v'] == 0
        pkm = lambda T: a(f"v_pk_mul_f32 {vr(AC[T],2)}, {vr(AC[T],2)}, {vr(L,2)}\nv_pk_mul_f32 {vr(AC[T]+2,2)}, {vr(AC[T]+2,2)}, {vr(L+2,2)}")
        if P['g2v'] == 0:
            g2(2, ks[0]); a("s_nop 0"); a(sto(0), vm='h1')
            while r4: rd4()
            for r in range(4): mul(1, r)
            cvt(1, 0); cvt(1, 1)
            g2(2, ks[1]); a("s_nop 0"); a(sto(1), vm='h1')
        elif P['g2v'] == 1:
            a("s_nop 1"); a(sto(0), vm='h1')
            pkm(1); cvt(1, 0); cvt(1, 1)
            g2(2, ks[0]); a("s_nop 0"); a(sto(1), vm='h1')
            g2(2, ks[1])
        elif P['g2v'] == 2:
            pkm(1); cvt(1, 0); cvt(1, 1)
            g2(2, ks[0]); a("s_nop 0"); a(sto(0), vm='h1'); a(sto(1), vm='h1')
            g2(2, ks[1])
        stamp(21)
        g2(2, ks[2])
        if P['g2v'] == 3: a("s_nop 0"); a(sto(1), vm='h1')
        a.wait(lg='all')
        if not own3: g2(3, w)
        a(f"s_add_u32 s{sIMl}, s{sIMw}, {imo(P, w ^ (2 if P.get('sw', 2) else 0))}\ns_add_u32 s{sIML}, s{sIMw}, {imo(P, 4 + (w ^ (2 if P.get('sw', 2) == 2 else 0)))}")
        g2(3, ks[0]); a(f"s_add_u32 s{sS}, s{sS}, 1\ns_mov_b32 s{sKMv}, s{sKM}")
        if not own3: mul(2, 0)
        g2(3, ks[1]); mul(2, 1)
        g2(3, ks[2])
        if own3: mul(2, 0)
        mul(2, 2); mul(2, 3); cvt(2, 0); cvt(2, 1)
        dS = P['dS']
        a(f"s_add_u32 s{sKM}, s{sKM}, 0x20000\ns_add_u32 s{sKV}, s{sKV}, {KVST}")
        if dS[0] < 0: a(sto(2), vm='h1')
        c = AC[3]
        a(f"v_pk_mul_f32 {vr(c,2)}, {vr(c,2)}, {vr(L,2)}\nv_pk_mul_f32 {vr(c+2,2)}, {vr(c+2,2)}, {vr(L+2,2)}")
        cvt(3, 0); cvt(3, 1)
        a("s_nop 1")
        if dS[1] < 0: a(sto(3), vm='h1')
    def bfix(l):
        if l.endswith(':') or l.startswith('s_memtime') or l.startswith('s_memrealtime'): return None
        if l.startswith('buffer_store') and f', v{A_H1S},' in l: return l + ' sc1'
        if l.startswith('buffer_') or l.startswith('s_cbranch') or l.startswith('s_mov_b64 exec'): return 's_nop 0'
        return l
    BBODY[w] = [f'L_bstep_{w}:', dwE, 's_nop 0'] + [l for l in map(bfix, a.lines[igo:ibk]) if l] + [f's_branch L_c_m6_{w}', f'L_bk_{w}:'] + [l for l in map(bfix, a.lines[ibk:]) if l] + ['s_branch L_btail']
    stamp(11)
    HA = KX
    ld1 = [f"buffer_load_dwordx4 {vr(HA+4*c_,4)}, v{L16}, {WS}, s{sH1l} offen offset:{1024*c_} sc1" for c_ in range(2)]
    HD, T1 = MA + 8, MA + 12
    idle = idle_work() + ima(P, IA)
    late = [l for l in idle if any(l.startswith(f"v_mov_b64 v[{r}:") for r in (Q0, Q0 + 2, V0, V0 + 2, V1, V1 + 2))]
    dsq = [l for l in idle if l.startswith('ds_')]
    idle = [l for l in idle if l not in late and l not in dsq]
    ev = [(max(dS[k], 0), k, [(sto(2 + k) if dS[k] >= 0 else None, 'h1')]) for k in range(2)]
    ev.append((P['dH1'][w], -1 if w < 2 else 2, [(ld1[0], 'H0'), (ld1[1], 'H1')]))
    h2 = P.get('h2', [0, 0, 0, 0])[w]; HB = MA + 20
    if h2: ev.append((P['dH1'][w] + h2, 3, [(ld1[c_].replace(vr(HA + 4 * c_, 4), vr(HB + 4 * c_, 4)), f'B{c_}') for c_ in range(2)]))
    pos = 0; nst = 0
    for (tpos, _, ops) in sorted(ev):
        while pos < tpos:
            if idle and tpos - pos > 2: a(idle.pop(0)); pos += 1
            elif dsq and nst == 2 and tpos - pos >= 6:
                if P['kw']: mf32(MA + 24 if len(dsq) & 1 else MA + 4, F, F, None); a("s_nop 1")
                else: a("s_nop 2")
                a(dsq.pop(0), lg='pre'); pos += 4
            else: wdelay(tpos - pos); pos = tpos
        for (o, tag) in ops:
            if tag == 'H0' and P.get('ackw'): a(f"s_waitcnt vmcnt({max(3 - w - P['ackw'][w], 0)})")
            if o: a(o, vm=tag); pos += 1
            if tag == 'h1':
                nst += 1
                if nst == 2: idle += pack_km() + late
    for l in dsq + idle: a(l, lg='pre')
    dE = P['dE'][w]; pE = P['pE']; nPre = P['nPre'][w]; inGap = P['inGap'][w]
    eq = ['E0', 'E1', 'E2', 'E3', 'E4'][:P['nE']]; nE = len(eq)
    for k in range(nPre):
        wdelay(dE if k == 0 else pE); a(ldE if eq[0] == 'E0' else ldB, vm=eq.pop(0))
    nH0 = len(a.vm) - 1 - a.vm.index('H0')
    a(f"s_waitcnt vmcnt({nH0})")
    a.label(lb('a1'))
    stamp(12)
    mf32(HD, SEL, HA, None)
    a(f"v_bitop3_b32 v{T1}, v{HA}, v{HA+2}, s{sTAG} bitop3:0x7e")
    a.wait(vm='H1')
    mf32(HD, SEL, HA + 4, HD)
    a(f"v_bitop3_b32 v{T1+1}, v{HA+4}, v{HA+6}, s{sTAG} bitop3:0x7e\nv_bitop3_b32 v{T1}, v{T1}, v{T1+1}, 1 bitop3:0xa8\nv_cmp_ne_u32 vcc, 0, v{T1}")
    if inGap and eq:
        a("s_nop 1"); a(ldE if eq[0] == 'E0' else ldB, vm=eq.pop(0)); a("s_nop 0")
    else: a("s_nop 3")
    dpa = lambda r, n: f"v_add_f32_dpp v{r}, v{r}, v{r} row_ror:{n} row_mask:0xf bank_mask:0xf"
    a(dpa(HD, 4)); a(dpa(HD + 1, 4)); a("s_nop 0"); a(dpa(HD, 8)); a(dpa(HD + 1, 8))
    a(cv(HD, HD))
    if P['cs']:
        a(f"s_cmp_eq_u64 vcc, 0\ns_cselect_b32 s{sT+2}, s{sIMw}, 0x70000000")
        a(f"buffer_store_dword v{HD}, v{A_IMS}, {WS}, s{sT+2} offen", vm='im')
        if eq and (inGap or (len(eq) == nE and dE == 0)): a(ldE if eq[0] == 'E0' else ldB, vm=eq.pop(0))
        a(f"s_cbranch_vccnz {lb('r1')}")
        dE = max(dE - 4, 0)
    else:
        nB1 = len(a.vm) - 1 - a.vm.index('B1') if h2 else 0
        a(f"s_cbranch_vccnz {lb('r2' if h2 else 'r1')}")
        a(f"buffer_store_dword v{HD}, v{A_IMS}, {WS}, s{sIMw} offen", vm='im')
        a.label(lb('a2'))
        if inGap and eq: a(ldE if eq[0] == 'E0' else ldB, vm=eq.pop(0))
    stamp(13)
    misc = [f"ds_read_b128 {vr(KX+4*k,4)}, v{L16} offset:{L_KV + 4096*w + 1024*k}" for k in range(4)]
    misc += [f"s_mov_b32 s{sIMw}, s{sIMr}", f"s_add_u32 s{sIMr}, s{sIMr}, 0x2000", f"s_and_b32 s{sIMr}, s{sIMr}, 0xffff7fff",
             f"s_xor_b32 s{sTAG}, s{sTAG}, 1"]
    if P.get('lateL'): misc += [f"s_mov_b64 {sr(sLX,2)}, -1"]
    if P.get('nod', 1) and not P['ls']: misc += [f"s_cmp_eq_u32 s{sS}, 63", f"s_cselect_b32 s{sKV}, 0x70000000, s{sKV}"]
    if w == 0: misc = [f"v_cmp_gt_u32 vcc, 32, v{FLV}"] + misc + [f"s_cbranch_vccnz {lb('rF')}\n{lb('bF')}:", f"s_add_u32 s{sFLn}, s{sS}, 2", f"s_lshr_b32 s{sFLn}, s{sFLn}, 3", f"s_min_u32 s{sFLn}, s{sFLn}, 7", f"s_lshl2_add_u32 s{sFLn}, s{sFLn}, {DBG_DN + DBG_KVC}",
                     f"s_cmp_lt_u32 s{sS}, 2", f"s_cselect_b32 s{sFLn}, {DBG_DN + DBG_KV0}, s{sFLn}",
                     f"s_cmp_lg_u32 s{sFL}, s{sFLn}", f"s_cselect_b64 {sr(sFM,2)}, -1, 0", f"s_mov_b32 s{sFL}, s{sFLn}"]
    misc += sync_tmp(P, w)
    def delay(n):
        while n > 0 and misc: a(misc.pop(0), lg='pre'); n -= 1
        wdelay(n)
    while eq:
        delay(dE if len(eq) == nE else pE); a(ldE if eq[0] == 'E0' else ldB, vm=eq.pop(0))
    delay(len(misc))
    if P.get('pr'):
        i0 = a.lines.index(lb('top') + ':'); i0 = a.lines.index('s_barrier', i0) + 1
        body = a.lines[i0:]; a.lines = a.lines[:i0] + ["s_memtime s[72:73]"]; used = [0]; n = 0
        LISTING[w] = [l for l in body if not l.endswith(':')]
        for l in body:
            if not l.endswith(':'):
                if n in P['pr']: a.lines.append(f"s_memtime s[{72+2*len(used)}:{73+2*len(used)}]"); used.append(n)
                n += 1
            a.lines.append(l)
    if used:
        a("s_waitcnt lgkmcnt(0)")
        if P.get('trace'):
            a("s_nop 7")
            for k in range(len(used)): a(f"v_mov_b32 v{MA+8+k}, s{72+2*k}")
            a(f"s_lshl_b32 s{sT}, s{sH}, 12\ns_lshl_b32 s{sT+1}, s{sS}, 4\ns_add_u32 s{sT}, s{sT}, s{sT+1}\ns_add_u32 s{sT}, s{sT}, {WS_STAMP + 65536 + 1024*w}\ns_mov_b64 exec, 1")
            a(f"buffer_store_dwordx4 {vr(MA+8,4)}, v{L16}, {WS}, s{sT} offen", vm='tr')
            a("s_mov_b64 exec, -1")
        else:
            for k in range(1, len(used)):
                a(f"s_sub_u32 s{sT}, s{72+2*k}, s{70+2*k}\ns_add_u32 s{88+k}, s{88+k}, s{sT}")
    if w == 0: wdelay(P['dT'])
    if P.get('stat') == 1:
        a(f"s_cmp_lg_u32 s{sS}, 3\ns_cbranch_scc1 {lb('nst')}\ns_memtime s[68:69]\ns_memrealtime s[62:63]\ns_mov_b32 s70, 0\ns_mov_b32 s71, 0")
        for k in range(8): a(f"s_mov_b32 s{88+k}, 0")
        a.label(lb('nst'))
    young = lambda t: len(a.vm) - 1 - a.vm.index(t)
    eL = 1 if P['dwf'] else P['earlyL']
    ns = [young(f'E{k}') + k + (eL if k else 0) for k in range(nE)]
    a.lines[a.lines.index(lb('top') + ':') + 1] = f"s_waitcnt vmcnt({ns[0]}) lgkmcnt(0)"
    fin = "s_branch L_exit" if P.get('stat') or P.get('dbgt') else "s_endpgm"
    spin = f"s_add_u32 s{sSPIN}, s{sSPIN}, 1\ns_cmp_gt_u32 s{sSPIN}, {SPIN_MAX}\ns_cbranch_scc1 L_exit\n"
    if not P['ls']:
        a(f"s_branch {lb('top')}")
        end_main = len(a.lines)
        if w == 0: a.label('L_last'); chain_last(a); a(fin)
    else:
        a(f"s_cmp_lg_u32 s{sS}, 63\ns_cbranch_scc1 {lb('top')}")
        end_main = len(a.lines)
        a(f"s_waitcnt vmcnt({ns[0]}) lgkmcnt(0)")
        a.label(lb('l0'))
        a.vm = []; a.lg = []
        a(chkE); a(dwE); a(f"s_cbranch_vccnz {lb('l1')}")
        a(ldL)
        kk = lambda sg: [(K0, MA + 4 * sg, wqk_reg(sg, 1)), (K1, MA + 4 * sg, wqk_reg(sg, 3))]
        vv = lambda sg: [(V0 + 4 * t_, MA + 4 * sg, wv_reg(sg, t_)) for t_ in range(2)]
        for q in kk(0): smf(a, *q)
        a.wait(lg='all'); a("s_barrier")
        for sg in (1, 2, 3): a(mrd(sg), lg=('ma', sg))
        for q in vv(0): smf(a, *q)
        a(stV)
        for u in (1, 3):
            for hf in range(2): a(f"ds_read_b128 {vr(ST + 8*u + 4*hf, 4)}, v{A_W} offset:{lw_qk(4, u) + 1024*hf}")
        for sg in (1, 2):
            a.wait(lg=('ma', sg))
            for q in kk(sg) + vv(sg): smf(a, *q)
        a("s_waitcnt vmcnt(1) lgkmcnt(0)"); a.lg = []
        a.label(lb('l2'))
        a('\n'.join(chkL)); a(dwL); a(f"s_cbranch_vccnz {lb('l3')}")
        for q in kk(3) + vv(3): smf(a, *q)
        a.wait(lg='all'); a("s_barrier")
        for sg in (5, 6, 7): a(mrd(sg), lg=('ma', sg))
        for q in kk(4) + vv(4): smf(a, *q)
        for sg in (5, 6, 7):
            a.wait(lg=('ma', sg))
            for q in kk(sg): smf(a, *q)
        vr_ = vv(5) + vv(6) + vv(7)
        smf(a, *vr_.pop(0)); smf(a, *vr_.pop(0))
        a(cv(Q0 + 2, K0)); a(cv(Q0 + 3, K0 + 2)); a(cv(Q1 + 2, K1)); a(cv(Q1 + 3, K1 + 2))
        smf(a, *vr_.pop(0))
        mf32(K0, Q0, F, None); mf32(K1, Q1, F, None)
        while vr_: smf(a, *vr_.pop(0))
        a(cv(Q0, K0)); a(cv(Q0 + 1, K0 + 2)); a(cv(Q0 + 2, K1)); a(cv(Q0 + 3, K1 + 2))
        LASTV[:] = []
        chain_last(a, 1); a(fin)
        a.label(lb('l1'))
        a(ldE); a(spin + f"s_waitcnt vmcnt({nE-1})\ns_branch {lb('l0')}")
        a.label(lb('l3'))
        a(ldL); a(spin + f"s_waitcnt vmcnt(0)\ns_branch {lb('l2')}")
    cnt = lambda r, v: (f"s_add_u32 s{r}, s{r}, {v}\n" if P.get('stat') == 1 else '')
    spin = f"s_add_u32 s{sSPIN}, s{sSPIN}, 1\ns_cmp_gt_u32 s{sSPIN}, {SPIN_MAX}\ns_cbranch_scc1 L_exit\n"
    for k in range(1, nE + 1):
        a.label(lb(f'f{k}'))
        late = P['lb1'] and k == 1
        if P['lb1'] and k == 2: a(ldB)
        if P.get('fpad') and k >= P.get('fpk', 1): nops(a, P['fpad'])
        if not late: a(ldB)
        a(f"s_waitcnt vmcnt({(ns[k] if k < nE else nE - 1) - (1 if late else 0)})")
        if P['dwf']: a(f"v_mov_b64 {vr(MA,2)}, {vr(EB,2)}\nv_mov_b64 {vr(MA+2,2)}, {vr(EB+2,2)}\ns_nop 0"); a(dwE); a(chkE)
        else: a(chkE); a(cnt(71, 1) or 's_nop 0'); a(dwE)
        a(f"s_cbranch_vccnz {lb(f'f{k+1}')}")
        if not P.get('lateL'): a(ldL)
        if P['dup'] and k == 1:
            a.lines += dupA; a(f"s_branch {lb('go2')}")
        else: a(f"s_branch {lb('go')}")
    a.label(lb(f'f{nE+1}'))
    a(spin + f"s_branch {lb(f'f{nE}')}")
    if prober:
        a.label(lb('p1'))
        a(probe); a(chkL[1]); a(chkL[2]); a(f"s_cbranch_vccnz {lb('rL')}")
        a. label(lb('p2'))
        for k in range(3):
            a(cnt(70, 65536) + f"s_waitcnt vmcnt({npr-1})\nv_cmp_ne_u32 vcc, s{sS}, v{FLV}"); a(probe); a(f"s_cbranch_vccz {lb('bL')}")
        a(spin + f"s_branch {lb('p2')}")
    a.label(lb('rL'))
    a(ldL)
    a(cnt(71, 65536) + spin + "s_waitcnt vmcnt(0)")
    a(dwL)
    a('\n'.join(chkL))
    a(f"s_waitcnt lgkmcnt(0)\ns_cbranch_vccnz {lb('rL')}\ns_branch {lb('p2' if prober else 'bL')}")
    if w == 0:
        a.label(lb('rF'))
        a(ldF); a(spin + f"s_waitcnt vmcnt(0)\nv_cmp_gt_u32 vcc, 32, v{FLV}\ns_cbranch_vccnz {lb('rF')}\ns_branch {lb('bF')}")
    if h2:
        a.label(lb('r2'))
        a(f"s_waitcnt vmcnt({nB1})")
        mf32(HD, SEL, HB, None)
        a(f"v_bitop3_b32 v{T1}, v{HB}, v{HB+2}, s{sTAG} bitop3:0x7e\nv_bitop3_b32 v{T1+1}, v{HB+4}, v{HB+6}, s{sTAG} bitop3:0x7e")
        mf32(HD, SEL, HB + 4, HD)
        a(f"v_bitop3_b32 v{T1}, v{T1}, v{T1+1}, 1 bitop3:0xa8\nv_cmp_ne_u32 vcc, 0, v{T1}\n" + (cnt(70, 65536) or 's_nop 0\n') + "s_nop 3")
        a(dpa(HD, 4)); a(dpa(HD + 1, 4)); a("s_nop 0"); a(dpa(HD, 8)); a(dpa(HD + 1, 8))
        a(cv(HD, HD))
        a(f"s_cbranch_vccnz {lb('r1')}")
        a(f"buffer_store_dword v{HD}, v{A_IMS}, {WS}, s{sIMw} offen")
        a(f"s_branch {lb('a2')}")
    a.label(lb('r1'))
    a(ld1[0]); a(ld1[1])
    a(cnt(70, 1) + spin + f"s_waitcnt vmcnt(0)\ns_branch {lb('a1')}")
    a.label(lb('step'))
    if P.get('lateL'): a(f"s_mov_b64 {sr(sLX,2)}, 0")
    for l in sync_tmp(P, w): a(l)
    a(dwE)
    a(f"s_branch {lb('go')}")
    return end_main, None
```

```python
M = dict(modes=(0,), reps=24)
L = [dict(), dict(hx=7), dict(hx=3), dict(hx=4), dict(hx=1), dict(il=1), dict(il=1, dE=[32,16,2,0]), dict(il=1, pE=20), dict(il=1, dH1=[24,37,59,70]), dict(il=1, hx=4), dict()]
cfgs = [dict(M, **x) for x in L]
```

```python
import sys
sys.path.insert(0,'gen')
import main as M, scan_cfg
for P in scan_cfg.cfgs:
    try:
        t, e = M.full_text(P)
        if e: print(P, len(e), e[0])
    except Exception as x: print(P, 'EXC', repr(x))
sys.path.insert(0,'scratch')
from runk import *
for P in (scan_cfg.cfgs[0], scan_cfg.cfgs[-1]):
    co = build(M.full_text(P)[0], M.KNAME, 20)
print('checked', cl.address_register_problem(co, M.KNAME))
```
